```python
import torch

def _softmax(x, axis=-1):
    return torch.softmax(x, dim=axis)
def _gelu(x):
    return torch.nn.functional.gelu(x, approximate="tanh")
def _silu(x):
    return torch.nn.functional.silu(x)
def _sigmoid(x):
    return torch.sigmoid(x)
def _layernorm(x, axis=-1, eps=1e-5):
    m = x.mean(dim=axis, keepdim=True)
    v = x.var(dim=axis, keepdim=True, unbiased=False)
    return (x - m) / torch.sqrt(v + eps)
def _scatter_add(tgt, idx, src, axis=0):
    return tgt.clone().index_add_(axis, idx, src)
def _segment_sum(src, seg, n):
    out = torch.zeros((n,) + src.shape[1:], dtype=src.dtype)
    return out.index_add_(0, seg, src)
def _pad(x, pw):
    flat = tuple(v for pair in reversed(pw) for v in pair)
    return torch.nn.functional.pad(x, flat)

kernel_name = 'parallel_sum__grouped_kv_mqa__glu_gated_geglu__prompt'

def setup_inputs():

    _w = (lambda a: (lambda t: t.to(torch.bfloat16) if t.is_floating_point() else t)(torch.as_tensor(a)))
    def _A_setup():
        B, S, D, H = 1, 2048, 448, 16
        Dh = D // H
        return {
            "x": _w((lambda *s: torch.randn(*s, dtype=torch.bfloat16) * 0.05)(B, S, D)),
            "wq": _w((lambda *s: torch.randn(*s, dtype=torch.bfloat16) * 0.05)(D, H * Dh)),
            "wk": _w((lambda *s: torch.randn(*s, dtype=torch.bfloat16) * 0.05)(D, Dh)),
            "wv": _w((lambda *s: torch.randn(*s, dtype=torch.bfloat16) * 0.05)(D, Dh)),
            "wo": _w((lambda *s: torch.randn(*s, dtype=torch.bfloat16) * 0.05)(H * Dh, D)),
        }
    _A_in = _A_setup()

    def _B_setup():
        B, S, Dm, Df = 1, 2048, 448, 1792
        return {
            "x": _w((lambda *s: torch.randn(*s, dtype=torch.bfloat16) * 0.05)(B, S, Dm)),
            "w_gate": _w((lambda *s: torch.randn(*s, dtype=torch.bfloat16) * 0.4)(Dm, Df) * (Dm ** -0.5)),
            "w_up": _w((lambda *s: torch.randn(*s, dtype=torch.bfloat16) * 0.4)(Dm, Df) * (Dm ** -0.5)),
            "w_down": _w((lambda *s: torch.randn(*s, dtype=torch.bfloat16) * 0.4)(Df, Dm) * (Df ** -0.5)),
        }
    _B_in = _B_setup()

    return {
        "A_x": _A_in["x"],
        "A_wq": _A_in["wq"],
        "A_wk": _A_in["wk"],
        "A_wv": _A_in["wv"],
        "A_wo": _A_in["wo"],
        "B_x": _B_in["x"],
        "B_w_gate": _B_in["w_gate"],
        "B_w_up": _B_in["w_up"],
        "B_w_down": _B_in["w_down"],
    }

def reference(A_x, A_wq, A_wk, A_wv, A_wo, B_x, B_w_gate, B_w_up, B_w_down):
    def _A_ref(x, wq, wk, wv, wo):
        B, S, D = x.shape
        H = 16
        Dh = D // H
        q = (lambda x, *d: x.permute(*d))((x @ wq).reshape(B, S, H, Dh), 0, 2, 1, 3)
        k = x @ wk
        v = x @ wv
        scores = torch.einsum("bhqd,bkd->bhqk", q, k) * (Dh ** -0.5)
        p = _softmax(scores, axis=-1)
        o = torch.einsum("bhqk,bkd->bhqd", p, v)
        return (lambda x, *d: x.permute(*d))(o, 0, 2, 1, 3).reshape(B, S, H * Dh) @ wo

    def _B_ref(x, w_gate, w_up, w_down):
        g = torch.einsum("bsd,df->bsf", x, w_gate)
        u = torch.einsum("bsd,df->bsf", x, w_up)
        h = _gelu(g) * u
        return torch.einsum("bsf,fd->bsd", h, w_down)

    x = A_x
    xn = _layernorm(x, axis=-1)
    return x + _A_ref(xn, A_wq, A_wk, A_wv, A_wo) + _B_ref(xn, B_w_gate, B_w_up, B_w_down)
```

```python
import re

class Asm:
    def __init__(self):
        self.lines = []
    def __call__(self, s, *a):
        for l in s.strip("\n").split("\n"):
            l = l.strip()
            if l:
                self.lines.append("    " + l if not l.endswith(":") else l)
    def label(self, l):
        self.lines.append(l + ":")
    def raw(self, s):
        self.lines.append(s)
    def text(self):
        return "\n".join(self.lines) + "\n"

def vr(b, n=1):
    return f"v{b}" if n == 1 else f"v[{b}:{b+n-1}]"
def sr(b, n=1):
    return f"s{b}" if n == 1 else f"s[{b}:{b+n-1}]"

_REG = re.compile(r"\b([vsa])(\d+)\b|\b([vsa])\[(\d+):(\d+)\]")
def regs_in(tok):
    out = set()
    for m in _REG.finditer(tok):
        if m.group(1):
            out.add((m.group(1), int(m.group(2))))
        else:
            for i in range(int(m.group(4)), int(m.group(5)) + 1):
                out.add((m.group(3), i))
    if re.search(r"\bvcc\b", tok): out.add(("s", "vcc"))
    if re.search(r"\bm0\b", tok): out.add(("s", "m0"))
    if re.search(r"\bexec\b", tok): out.add(("s", "exec"))
    return out

TRANS = ("v_exp_f32", "v_log_f32", "v_rcp_f32", "v_rsq_f32", "v_sqrt_f32", "v_sin_f32", "v_cos_f32")
def parse(line):
    line = line.split(";")[0].strip()
    if not line or line.endswith(":") or line.startswith("."):
        return None
    parts = line.split(None, 1)
    op = parts[0]
    ops = [o.strip() for o in re.split(r",(?![^\[]*\])", parts[1])] if len(parts) > 1 else []
    d = dict(op=op, ops=ops, w=set(), r=set(), text=line)
    allr = lambda lst: set().union(*[regs_in(o) for o in lst]) if lst else set()
    base = op.replace("_e32", "").replace("_e64", "")
    d["base"] = base
    if op.startswith("v_mfma"):
        d["k"] = "mfma"; d["w"] = regs_in(ops[0]); d["ab"] = regs_in(ops[1]) | regs_in(ops[2]); d["c"] = regs_in(ops[3]); d["r"] = d["ab"] | d["c"]
        d["passes"] = 8 if "32x32" in op else 4
    elif op.startswith("v_cmp"):
        d["k"] = "valu"; d["w"] = regs_in(ops[0]); d["r"] = allr(ops[1:])
        if op.startswith("v_cmpx"): d["w"].add(("s", "exec"))
    elif op.startswith("v_permlane"):
        d["k"] = "valu"; d["w"] = allr(ops); d["r"] = allr(ops)
    elif op.startswith("v_"):
        d["k"] = "valu"; d["w"] = regs_in(ops[0]); d["r"] = allr(ops[1:])
        if "_co_" in op or base.startswith("v_mad_u64"):
            d["w"] |= regs_in(ops[1]); d["r"] = allr(ops[2:])
        if base.startswith(("v_fmac", "v_dot2c", "v_writelane")) or "sdwa" in op or "dpp" in op: d["r"] |= regs_in(ops[0])
        if base == "v_cndmask_b32" and len(ops) == 3: d["r"].add(("s", "vcc"))
    elif op.startswith("ds_"):
        d["k"] = "ds"
        if op.startswith("ds_read") or "permute" in op or "swizzle" in op:
            d["w"] = regs_in(ops[0]); d["r"] = allr(ops[1:])
        else:
            d["r"] = allr(ops)
    elif op.startswith(("buffer_", "global_")):
        d["k"] = "vmem"
        lds = " lds" in line or "_lds_" in op
        d["lds"] = lds
        if lds:
            d["r"] = allr(ops) | {("s", "m0")}
        elif "load" in op:
            d["w"] = regs_in(ops[0]); d["r"] = allr(ops[1:])
        elif "atomic" in op:
            d["r"] = allr(ops)
            if " sc0" in line: d["w"] = regs_in(ops[0])
        else:
            d["r"] = allr(ops)
            if op.startswith("buffer_store"): d["data"] = regs_in(ops[0])
            elif op.startswith("global_store"): d["data"] = regs_in(ops[1])
            d["wide"] = "x4" in op or "x3" in op
    elif op.startswith("s_"):
        d["k"] = "salu"
        if op in ("s_nop",): d["k"] = "nop"; d["n"] = int(ops[0], 0) + 1
        elif op.startswith(("s_waitcnt", "s_barrier", "s_endpgm", "s_branch", "s_cbranch", "s_sleep", "s_setprio", "s_cmp")):
            d["r"] = allr(ops) if op.startswith("s_cmp") else set()
        else:
            d["w"] = regs_in(ops[0]); d["r"] = allr(ops[1:])
            if "saveexec" in op: d["w"].add(("s", "exec"))
    else:
        raise ValueError("unknown op " + line)
    return d

def isv(r): return r[0] in "va"

def check_hazards(lines, name=""):
    ins = []
    for ln, l in enumerate(lines):
        p = parse(l)
        if p: p["ln"] = ln; ins.append(p)
    probs = []
    for i, c in enumerate(ins):
        dist = 0
        j = i - 1
        while j >= 0 and dist < 20:
            p = ins[j]
            need = 0; why = ""
            pk, ck = p["k"], c["k"]
            pw = p["w"]
            def upd(n, w):
                nonlocal need, why
                if n > need: need, why = n, w
            if pk == "valu":
                pv = {r for r in pw if isv(r)}; ps = {r for r in pw if not isv(r)}
                if ck == "mfma" and pv & c["r"]: upd(3 if p["base"].startswith("v_dot") else 2, "valu->mfma")
                if ck == "mfma" and ("s", "exec") in ps: upd(4, "exec->mfma")
                if ck == "vmem" and ps & c["r"]: upd(5, "valu sgpr->vmem")
                if ck == "valu":
                    if c["base"].startswith(("v_readlane", "v_readfirstlane")) and pv & c["r"]: upd(1, "valu->readlane")
                    if c["base"].startswith("v_permlane") and pv & c["r"]: upd(2, "valu->permlane")
                    if "dpp" in c["op"] and pv & c["r"]: upd(2, "valu->dpp")
                    if ps & c["r"]: upd(2, "valu sgpr->valu")
                    if p["base"] in TRANS and c["base"] not in TRANS and pv & c["r"]: upd(1, "trans->valu")
                    if p["base"].startswith("v_dot") and pv & (c["r"] | c["w"]):
                        if c["base"] != p["base"]: upd(3, "dot->other")
                        else:
                            ab = set().union(*[regs_in(o) for o in c["ops"][1:3]])
                            if pv & ab: upd(3, "dot->dot ab")
                    if "sdwa" in p["op"] and pv & c["r"]: upd(1, "sdwa->valu")
                if ck in ("ds", "vmem") and p["base"].startswith("v_dot") and pv & c["r"]: upd(3, "dot->mem")
                if ck in ("ds", "vmem") and p["base"] in TRANS and pv & c["r"]: upd(1, "trans->mem")
            if pk == "mfma":
                big = p["passes"] == 8
                if ck == "mfma":
                    if pw & c["ab"]: upd(12 if big else 8, "mfma->mfma ab")
                    if pw & c["c"] and pw != c["c"]: upd(10 if big else 6, "mfma->mfma c overlap")
                    if pw & c["w"] and not (pw & c["c"]) : upd(10 if big else 6, "mfma waw")
                elif ck in ("valu", "ds", "vmem"):
                    if pw & (c["r"] | c["w"]): upd(12 if big else 8, "mfma->valu/mem")
                    if ck == "valu" and p["c"] & c["w"]: upd(7 if big else 3, "mfma srcC war")
            if pk == "salu" and ("s", "m0") in pw and ck == "vmem" and c.get("lds"): upd(1, "m0->dma")
            if pk == "vmem" and p.get("wide") and p.get("data"):
                if p["data"] & c["w"]: upd(2 if ck == "valu" else 1, "store data war")
            if need > dist:
                probs.append(f"{name} line {c['ln']}: '{c['text']}' needs {need} after '{p['text']}' ({why}), has {dist}")
            dist += p.get("n", 1)
            j -= 1
    return probs
```

```python
import sys, math, struct
from asmlib import *

NAME = "parallel_sum__grouped_kv_mqa__glu_gated_geglu__prompt"
def f2u(x): return struct.unpack("<I", struct.pack("<f", x))[0]

A2F = 0
W2T = 64 * 144 * 1024
QF  = W2T + 7 * 144 * 2048
KVF = QF + 64 * 16 * 2048
WS_END = KVF + 64 * 4096
P_X, P_WQ, P_WK, P_WV, P_WO, P_BX, P_WG, P_WU, P_WD, P_OUT, P_DBG, P_WS = 8, 10, 12, 14, 16, 18, 20, 22, 24, 26, 28, 30
SRD_X, SRD_WS, SRD_T, SRD_PC, SRD_OUT = 32, 36, 40, 44, 48
S_W, S_RB, S_J = 3, 4, 5

def srd(a, d, p, nbytes):
    a(f"s_mov_b32 s{d}, s{p}\ns_mov_b32 s{d+1}, s{p+1}\ns_mov_b32 s{d+2}, {nbytes}\ns_mov_b32 s{d+3}, 0x00020000")

def head(a, name, nwg, endlabel):
    a.raw(f".globl {name}\n.p2align 8\n.type {name},@function")
    a.label(name)
    a(f"s_cmp_ge_u32 s2, {nwg}\ns_cbranch_scc1 {endlabel}")
    a("s_load_dwordx16 s[8:23], s[0:1], 0\ns_load_dwordx8 s[24:31], s[0:1], 64")
    a(f"s_getpc_b64 s[{SRD_PC}:{SRD_PC+1}]")
    a.label(name + "_pc")
    a(f"s_mov_b32 s{SRD_PC+2}, {endlabel}-{name}_pc\ns_mov_b32 s{SRD_PC+3}, 0x00020000")
    a(f"v_lshlrev_b32 v1, 7, v0\nbuffer_load_dword v2, v1, s[{SRD_PC}:{SRD_PC+3}], 0 offen")
    a(f"v_lshrrev_b32 v1, 6, v0\nv_and_b32 v0, 63, v0\nv_readfirstlane_b32 s{S_W}, v1")
    a(f"""s_and_b32 s6, s2, 7
s_lshr_b32 s7, s2, 3
s_lshr_b32 s{S_RB}, s6, 1
s_lshl_b32 s{S_RB}, s{S_RB}, 2
s_lshr_b32 s52, s7, 3
s_add_u32 s{S_RB}, s{S_RB}, s52
s_and_b32 s{S_J}, s6, 1
s_lshl_b32 s{S_J}, s{S_J}, 3
s_and_b32 s52, s7, 7
s_add_u32 s{S_J}, s{S_J}, s52""")

def desc(name, nv, ns=96):
    return f""".section .rodata,"a"
.p2align 6
.amdhsa_kernel {name}
  .amdhsa_next_free_vgpr {nv}
  .amdhsa_next_free_sgpr {ns}
  .amdhsa_accum_offset {(nv+3)//4*4}
  .amdhsa_group_segment_fixed_size 0
  .amdhsa_kernarg_size 96
  .amdhsa_user_sgpr_count 2
  .amdhsa_user_sgpr_kernarg_segment_ptr 1
  .amdhsa_system_sgpr_workgroup_id_x 1
  .amdhsa_float_denorm_mode_32 3
.end_amdhsa_kernel
.text
"""

def mfma(d, A, B, C=None):
    c = vr(d, 16) if C is None else C
    return f"v_mfma_f32_32x32x16_bf16 {vr(d,16)}, {vr(A,4)}, {vr(B,4)}, {c}"

SLOT = 49152
EX = 98304
def phaseB(a, st=""):
    L = 0
    VX, GA, GS = 3, 4, 6
    XA = 8
    WA = 16
    CS, SM, SQ = 20, 22, 24
    T = 26
    XF, WF = 32, 48
    ACC = 64
    S_WB, S_ONES, S_XO0, S_XO1, S_RH, S_CG, S_P, S_T0, S_T1, S_RT0, S_RT1 = 53, 54, 55, 56, 57, 58, 59, 60, 61, 62, 63
    S_U, S_HI = 64, 66
    a(f"""s_lshl_b32 s{S_WB}, s{S_W}, 10
s_and_b32 s{S_RH}, s{S_W}, 1
s_lshr_b32 s{S_CG}, s{S_W}, 1
s_lshr_b32 s{S_P}, s{S_W}, 2
s_mov_b32 s{S_ONES}, 0x3f803f80
s_mov_b32 s{S_HI}, 0
s_mov_b32 s{S_HI+1}, -1""")
    a(f"""s_lshl_b32 s6, s{S_RB}, 7
s_lshl_b32 s7, s{S_W}, 3
s_add_u32 s6, s6, s7
v_lshrrev_b32 v{T}, 3, v0
v_add_u32 v{T}, s6, v{T}
v_mul_u32_u24 v{T}, 896, v{T}
s_lshl_b32 s7, s{S_W}, 2
v_lshrrev_b32 v{T+1}, 4, v0
v_add_u32 v{T+1}, s7, v{T+1}
v_xor_b32 v{T+1}, v{T+1}, v0
v_and_b32 v{T+1}, 7, v{T+1}
v_lshl_add_u32 v{VX}, v{T+1}, 4, v{T}""")
    a(f"""s_lshl_b32 s7, s{S_W}, 1
v_lshrrev_b32 v{T+2}, 5, v0
v_add_u32 v{T+2}, s7, v{T+2}
v_and_b32 v{T+3}, 3, v{T+2}
s_waitcnt lgkmcnt(0)""")
    srd(a, SRD_X, P_X, 2048 * 896)
    srd(a, SRD_WS, P_WS, WS_END)
    def dma_x(stage, i):
        return [f"s_add_u32 m0, s{S_WB}, {(stage % 3) * SLOT + i * 8192}",
                f"s_mov_b32 s{S_XO0}, {stage * 128 + i * 64 * 896}",
                f"buffer_load_dwordx4 v{VX}, s[{SRD_X}:{SRD_X+3}], s{S_XO0} offen lds"]
    def dma_w(stage, i):
        return [f"s_add_u32 m0, s{S_WB}, {(stage % 3) * SLOT + 16384 + i * 8192}",
                "s_nop 0",
                f"global_load_lds_dwordx4 {vr(GA,2)}, off",
                f"v_lshl_add_u64 {vr(GA,2)}, {vr(GS,2)}, 0, {vr(GA,2)}"]
    for l in dma_x(0, 0) + dma_x(0, 1): a(l)
    a(f"s_cmp_ge_u32 s{S_J}, 14\ns_cbranch_scc1 B_qkv_src")
    a(f"""v_bfe_u32 v{T}, v0, 4, 1
v_lshlrev_b32 v{T+1}, 1, v{T+3}
v_lshl_add_u32 v{T+1}, v{T}, 3, v{T+1}
v_xor_b32 v{T+1}, v{T+1}, v0
v_and_b32 v{T+1}, 15, v{T+1}
v_mul_u32_u24 v{T+4}, 3584, v{T+2}
s_lshl_b32 s6, s{S_J}, 8
v_lshl_add_u32 v{T+4}, v{T+1}, 4, v{T+4}
v_add_u32 v{T+4}, s6, v{T+4}
v_cmp_eq_u32 vcc, 1, v{T}
v_mov_b32 v{GA}, s{P_WG}
v_mov_b32 v{GA+1}, s{P_WG+1}
v_mov_b32 v{T}, s{P_WU}
v_mov_b32 v{T+1}, s{P_WU+1}
v_cndmask_b32 v{GA}, v{GA}, v{T}, vcc
v_cndmask_b32 v{GA+1}, v{GA+1}, v{T+1}, vcc
v_mov_b32 v{GS}, 57344
s_branch B_src_done""")
    a.label("B_qkv_src")
    a(f"""v_lshlrev_b32 v{T}, 2, v{T+3}
v_xor_b32 v{T}, v{T}, v0
v_and_b32 v{T}, 31, v{T}
s_cmp_eq_u32 s{S_J}, 14
s_cselect_b32 s6, 4, 0
s_cselect_b32 s7, 0, 384
s_cselect_b32 s68, s{P_WK}, s{P_WV}
s_cselect_b32 s69, s{P_WK+1}, s{P_WV+1}
v_add_u32 v{T+1}, s6, v{T}
v_and_b32 v{T+1}, 31, v{T+1}
v_cmp_gt_u32 vcc, 4, v{T+1}
v_mul_u32_u24 v{T+4}, 896, v{T+2}
v_lshl_add_u32 v{T+4}, v{T}, 4, v{T+4}
v_add_u32 v{T+4}, s7, v{T+4}
v_lshlrev_b32 v{T+1}, 4, v{T+1}
v_min_u32 v{T+1}, 40, v{T+1}
v_mul_u32_u24 v{T}, 56, v{T+2}
v_add_u32 v{T}, v{T}, v{T+1}
v_cndmask_b32 v{T+4}, v{T+4}, v{T}, vcc
v_mov_b32 v{GA}, s{P_WQ}
v_mov_b32 v{GA+1}, s{P_WQ+1}
v_mov_b32 v{T}, s68
v_mov_b32 v{T+1}, s69
v_cndmask_b32 v{GA}, v{GA}, v{T}, vcc
v_cndmask_b32 v{GA+1}, v{GA+1}, v{T+1}, vcc
v_mov_b32 v{GS}, 14336
v_mov_b32 v{T}, 896
v_cndmask_b32 v{GS}, v{GS}, v{T}, vcc""")
    a.label("B_src_done")
    a(f"""v_add_co_u32 v{GA}, vcc, v{GA}, v{T+4}
v_mov_b32 v{GS+1}, 0
s_nop 0
v_addc_co_u32 v{GA+1}, vcc, 0, v{GA+1}, vcc""")
    for i in range(4):
        for l in dma_w(0, i): a(l)
    for s in (1, 2):
        for i in range(2):
            for l in dma_x(s, i): a(l)
        for i in range(4):
            for l in dma_w(s, i): a(l)
    a(f"""s_lshl_b32 s{S_T0}, s{S_CG}, 1
s_add_u32 s{S_T0}, s{S_T0}, s{S_RH}
s_xor_b32 s{S_T1}, s{S_T0}, 1
s_and_b32 s6, s{S_CG}, 1
s_lshl_b32 s{S_RT0}, s{S_RH}, 1
s_add_u32 s{S_RT0}, s{S_RT0}, s6
s_xor_b32 s{S_RT1}, s{S_RT0}, 1""")
    a(f"""v_and_b32 v{T}, 31, v0
v_lshrrev_b32 v{T+1}, 5, v0
v_bfe_u32 v{T+2}, v0, 1, 3
v_xor_b32 v{T+2}, v{T+2}, v{T+1}
v_lshlrev_b32 v{T+2}, 4, v{T+2}
v_lshl_add_u32 v{T+2}, v{T}, 7, v{T+2}
s_lshl_b32 s6, s{S_RT0}, 12
s_lshl_b32 s7, s{S_P}, 5
s_or_b32 s6, s6, s7
v_xor_b32 v{XA}, s6, v{T+2}""")
    for pos in range(4):
        if pos: a(f"v_xor_b32 v{XA+2*pos}, {pos<<5}, v{XA}")
        a(f"v_xor_b32 v{XA+2*pos+1}, {4096 | (pos<<5)}, v{XA}")
    a(f"""v_bfe_u32 v{T+4}, v0, 2, 2
v_lshl_add_u32 v{T+3}, v{T+1}, 3, v{T+4}
v_lshlrev_b32 v{T+3}, 9, v{T+3}
v_add_u32 v{T+3}, 16384, v{T+3}
v_bfe_u32 v{T+5}, v0, 4, 1
v_and_b32 v{T}, 3, v0
s_cmp_ge_u32 s{S_J}, 14
s_cbranch_scc1 B_qkv_rd""")
    for i, st_ in ((0, S_T0), (1, S_T1)):
        a(f"""v_lshl_add_u32 v{T+1}, v{T+5}, 2, v{T+4}
v_xor_b32 v{T+1}, s{st_}, v{T+1}
v_lshlrev_b32 v{T+1}, 5, v{T+1}
v_lshl_add_u32 v{T+1}, v{T+5}, 8, v{T+1}
v_lshl_add_u32 v{T+1}, v{T}, 3, v{T+1}
v_add_u32 v{WA+2*i}, v{T+1}, v{T+3}""")
    a("s_branch B_rd_done")
    a.label("B_qkv_rd")
    a(f"""v_lshl_add_u32 v{T}, v{T+5}, 2, v{T}
v_cmp_eq_u32 vcc, 7, v{T}
s_cmp_eq_u32 s{S_J}, 14
s_cselect_b32 s68, 0, 64
s_cselect_b32 s69, 448, 0""")
    for i, st_ in ((0, S_T0), (1, S_T1)):
        a(f"""s_mul_i32 s6, s{st_}, 56
s_add_u32 s6, s6, s68
s_lshl_b32 s7, s{st_}, 3
s_cmp_eq_u32 s{st_}, 6
s_cselect_b32 s7, 56, s7
s_and_b32 s7, s7, 63
s_cmp_eq_u32 s{st_}, 7
s_cselect_b32 s7, 0, s7
s_add_u32 s7, s7, s69
v_lshl_add_u32 v{T+1}, v{T}, 3, s6
v_mov_b32 v{T+2}, s7
v_cndmask_b32 v{T+1}, v{T+1}, v{T+2}, vcc
v_lshlrev_b32 v{T+2}, 6, v{T+4}
v_xor_b32 v{T+1}, v{T+1}, v{T+2}
v_add_u32 v{WA+2*i}, v{T+1}, v{T+3}""")
    a.label("B_rd_done")
    a(f"""s_lshl_b32 s6, s{S_P}, 13
s_xor_b32 s7, s6, 8192""")
    for i in range(2):
        a(f"v_add_u32 v{WA+2*i+1}, s7, v{WA+2*i}\nv_add_u32 v{WA+2*i}, s6, v{WA+2*i}")
    for r in range(CS, CS + 6): a(f"v_mov_b32 v{r}, 0")
    VT = 2
    a(f"""s_lshl_b32 s{S_U}, s2, 2
s_add_u32 s{S_U}, s{S_U}, s{S_CG}
s_min_u32 s{S_U}, s{S_U}, 1007
s_mul_hi_u32 s6, s{S_U}, {(2**32 + 143)//144}
s_mul_i32 s7, s6, 144
s_sub_u32 s7, s{S_U}, s7
s_lshl_b32 s68, s7, 4
s_sub_u32 s69, s7, 112
s_lshr_b32 s70, s69, 1
s_mul_i32 s70, s70, 28
s_and_b32 s69, s69, 1
s_lshl_b32 s69, s69, 4
s_add_u32 s69, s69, s70
s_cmp_lt_u32 s7, 112
s_cselect_b32 s68, s68, s69
s_cselect_b32 s{SRD_T}, s{P_WD}, s{P_WO}
s_cselect_b32 s{SRD_T+1}, s{P_WD+1}, s{P_WO+1}
s_mov_b32 s72, {448*896}
s_cselect_b32 s{SRD_T+2}, {1792*896}, s72
s_mov_b32 s{SRD_T+3}, 0x00020000
s_lshl_b32 s69, s{S_RH}, 3
s_add_u32 s68, s68, s69
s_mul_i32 s68, s68, 896
s_lshl_b32 s6, s6, 7
s_add_u32 s71, s68, s6
v_lshrrev_b32 v{T}, 3, v0
v_mul_u32_u24 v{T}, 896, v{T}
v_and_b32 v{T+1}, 7, v0""")
    a(f"s_waitcnt vmcnt(12)")
    a(f"v_lshl_add_u32 v{VT}, v{T+1}, 4, v{T}")
    a("s_barrier")
    def reads(pos, buf):
        par = pos & 1; off = (pos >> 1) * 16384
        return [f"ds_read_b128 {vr(XF+8*buf,4)}, v{XA+2*pos}",
                f"ds_read_b64_tr_b16 {vr(WF+8*buf,2)}, v{WA+par} offset:{off}",
                f"ds_read_b64_tr_b16 {vr(WF+8*buf+2,2)}, v{WA+par} offset:{off+2048}",
                f"ds_read_b128 {vr(XF+8*buf+4,4)}, v{XA+2*pos+1}",
                f"ds_read_b64_tr_b16 {vr(WF+8*buf+4,2)}, v{WA+2+par} offset:{off}",
                f"ds_read_b64_tr_b16 {vr(WF+8*buf+6,2)}, v{WA+2+par} offset:{off+2048}"]
    for l in reads(0, 0): a(l)
    pend = []
    for s in range(7):
        for pos in range(4):
            buf = pos & 1
            first = (s == 0 and pos == 0)
            M = [mfma(ACC + 32*irt + 16*it, WF + 8*buf + 4*it, XF + 8*buf + 4*irt, "0" if first else None)
                 for (irt, it) in ((0, 0), (1, 0), (0, 1), (1, 1))]
            D = [f"v_dot2c_f32_bf16 v{CS + (k&1)}, s{S_ONES}, v{WF+8*buf+k}" for k in range(4)]
            if pos % 2 == 0:
                for k in range(4):
                    D.append(f"v_dot2c_f32_bf16 v{SM + (k&1)}, s{S_ONES}, v{XF+8*buf+k}")
                    D.append(f"v_dot2c_f32_bf16 v{SQ + (k&1)}, v{XF+8*buf+k}, v{XF+8*buf+k}")
            nd = len(D) // 4
            if pos < 3:
                R = reads(pos + 1, buf ^ 1)
                a("s_waitcnt lgkmcnt(0)")
                for q in range(4):
                    a(M[q])
                    for l in R[2*q:2*q+2]: a(l)
                    for l in D[q*nd:(q+1)*nd]: a(l)
                    if q in (1, 3) and pend:
                        for l in pend.pop(0): a(l)
            else:
                a("s_waitcnt lgkmcnt(0)")
                a(M[0]); a(D[0]); a(M[1]); a(D[1])
                if s < 6:
                    assert not pend
                    a(f"s_waitcnt vmcnt({6 if s < 5 else 1})")
                    a("s_barrier")
                    d = SLOT if (s + 1) % 3 else -2 * SLOT
                    a(f"s_mov_b32 s6, {d}")
                    for r in (XA, WA, XA + 1, WA + 2): a(f"v_add_u32 v{r}, s6, v{r}")
                    R = reads(0, 0)
                    for l in R[:3]: a(l)
                    a(M[2])
                    for l in R[3:]: a(l)
                    for r in (XA+2, XA+3, WA+1, WA+3): a(f"v_add_u32 v{r}, s6, v{r}")
                    a(D[2]); a(M[3]); a(D[3])
                    for r in (XA+4, XA+5, XA+6, XA+7): a(f"v_add_u32 v{r}, s6, v{r}")
                    if s + 3 <= 6:
                        pend = [dma_x(s+3, 0), dma_x(s+3, 1)] + [dma_w(s+3, i) for i in range(4)]
                    elif s == 4:
                        pend = [[f"s_add_u32 m0, s{S_WB}, {SLOT}", "s_nop 0",
                                 f"buffer_load_dwordx4 v{VT}, s[{SRD_T}:{SRD_T+3}], s71 offen lds"]]
                else:
                    a(M[2]); a(D[2]); a(M[3]); a(D[3])
    a(f"""v_lshlrev_b32 v{T}, 2, v0
s_lshl_b32 s6, s{S_T0}, 8
s_lshl_b32 s7, s{S_RT0}, 1
s_add_u32 s7, s7, s{S_P}
s_lshl_b32 s7, s7, 8
v_add_u32 v{T+1}, s6, v{T}
v_add_u32 v{T+2}, s7, v{T}
v_add_f32 v{CS}, v{CS}, v{CS+1}
v_add_f32 v{SM}, v{SM}, v{SM+1}
v_add_f32 v{SQ}, v{SQ}, v{SQ+1}
v_cvt_pk_bf16_f32 v{T+3}, v{CS}, v{CS}
v_and_b32 v{T+3}, 0xffff0000, v{T+3}
v_permlane32_swap_b32 v{SM}, v{SQ}
v_sub_f32 v{T+3}, v{CS}, v{T+3}
v_cvt_pk_bf16_f32 v{WF}, v{CS}, v{T+3}
v_add_f32 v{SM}, v{SM}, v{SQ}
v_add_u32 v{T+1}, {EX}, v{T+1}
v_add_u32 v{T+2}, {EX+2048}, v{T+2}
ds_write_b32 v{T+1}, v{WF}
ds_write_b32 v{T+2}, v{SM}
v_xor_b32 v{T+1}, 256, v{T+1}
v_and_b32 v{T}, 31, v0
v_lshlrev_b32 v{T}, 2, v{T}
s_lshl_b32 s6, s{S_RT0}, 9
s_add_u32 s6, s6, {EX+2048}
v_add_u32 v{T+2}, s6, v{T}
v_xor_b32 v{T+3}, 512, v{T+2}
s_waitcnt vmcnt(0) lgkmcnt(0)
s_barrier
ds_read_b32 v{WF+4}, v{T+1}
ds_read2_b32 {vr(XF,2)}, v{T+2} offset0:0 offset1:32
ds_read2_b32 {vr(XF+2,2)}, v{T+2} offset0:64 offset1:96
ds_read2_b32 {vr(XF+4,2)}, v{T+3} offset0:0 offset1:32
ds_read2_b32 {vr(XF+6,2)}, v{T+3} offset0:64 offset1:96""")
    a(f"""v_lshrrev_b32 v{T}, 5, v0
v_bfe_u32 v{T+1}, v0, 2, 2
v_lshl_add_u32 v{T}, v{T}, 2, v{T+1}
v_lshlrev_b32 v{T}, 7, v{T}
v_bfe_u32 v{T+1}, v0, 4, 1
v_lshl_add_u32 v{T}, v{T+1}, 5, v{T}
v_and_b32 v{T+1}, 3, v0
v_lshl_add_u32 v{T}, v{T+1}, 3, v{T}
s_lshl_b32 s6, s{S_CG}, 11
s_lshl_b32 s7, s{S_RH}, 6
s_add_u32 s6, s6, s7
s_add_u32 s6, s6, {SLOT}
v_add_u32 v{T}, s6, v{T}
ds_read_b64_tr_b16 {vr(WF+8,2)}, v{T}
ds_read_b64_tr_b16 {vr(WF+10,2)}, v{T} offset:1024""")
    VL16 = 1
    a(f"v_lshlrev_b32 v{VL16}, 4, v0")
    for r in (WF+1, WF+2, WF+3, WF+5, WF+6, WF+7, XF+9, XF+10, XF+11, XF+13, XF+14, XF+15): a(f"v_mov_b32 v{r}, 0")
    a(f"""s_lshl_b32 s6, s{S_U}, 11
s_lshl_b32 s7, s{S_RH}, 10
s_add_u32 s6, s6, s7
s_add_u32 s6, s6, {W2T}
s_waitcnt lgkmcnt(0)
buffer_store_dwordx4 {vr(WF+8,4)}, v{VL16}, s[{SRD_WS}:{SRD_WS+3}], s6 offen {st}""")
    R_, S_ = XA, XA + 2
    a(f"s_mov_b32 s6, {f2u(1.0/448)}\ns_mov_b32 s7, {f2u(1e-5)}")
    for i in range(2):
        x = XF + 4 * i; t = T + 2 * i
        a(f"""v_add_f32 v{x}, v{x}, v{x+2}
v_add_f32 v{x+1}, v{x+1}, v{x+3}
v_mul_f32 v{x}, s6, v{x}
v_mul_f32 v{x+1}, s6, v{x+1}
v_fma_f32 v{x+1}, -v{x}, v{x}, v{x+1}
v_max_f32 v{x+1}, 0, v{x+1}
v_cvt_pk_bf16_f32 v{XF+8+4*i}, -v{x}, -v{x}
v_cvt_pk_bf16_f32 v{x+1}, v{x+1}, v{x+1}
v_and_b32 v{x+1}, 0xffff0000, v{x+1}
v_add_f32 v{x+1}, s7, v{x+1}
v_cvt_pk_bf16_f32 v{x+1}, v{x+1}, v{x+1}
v_and_b32 v{x+1}, 0xffff0000, v{x+1}
v_sqrt_f32 v{x+1}, v{x+1}
s_nop 0
v_cvt_pk_bf16_f32 v{x+1}, v{x+1}, v{x+1}
v_and_b32 v{S_+i}, 0xffff0000, v{x+1}
v_rcp_f32 v{R_+i}, v{S_+i}""")
    for (irt, it) in ((0, 0), (0, 1), (1, 0), (1, 1)):
        a(mfma(ACC + 32*irt + 16*it, WF + 4*it, XF + 8 + 4*irt))
    a(f"s_cmp_ge_u32 s{S_J}, 14\ns_cbranch_scc1 B_qkv_epi")
    KA = -2.0 * math.log2(math.e) * math.sqrt(2.0 / math.pi); KB = KA * 0.044715
    AC, BC, I2 = XA + 4, XA + 6, WA
    a(f"s_mov_b32 s6, {f2u(KA)}\ns_mov_b32 s7, {f2u(KB)}")
    for i in range(2):
        a(f"""v_mul_f32 v{AC+i}, s6, v{R_+i}
v_mul_f32 v{BC+i}, v{R_+i}, v{R_+i}
v_mul_f32 v{I2+i}, v{S_+i}, v{S_+i}
v_mul_f32 v{BC+i}, v{BC+i}, v{R_+i}
v_mul_f32 v{BC+i}, s7, v{BC+i}""")
    for irt, srt in ((0, S_RT0), (1, S_RT1)):
        for it, stt in ((0, S_T0), (1, S_T1)):
            d = 68 + 2*irt + it
            a(f"""s_lshl_b32 s6, s{S_RB}, 2
s_add_u32 s6, s6, s{srt}
s_mul_i32 s6, s6, 144
s_lshl_b32 s7, s{S_J}, 3
s_add_u32 s6, s6, s7
s_add_u32 s6, s6, s{stt}
s_lshl_b32 s{d}, s6, 10""")
    G = 32
    n = 0
    for irt in range(2):
        for it in range(2):
            acc = ACC + 32*irt + 16*it
            tb = G + 16 * (n & 1); n += 1
            for e in range(8): a(f"v_mul_f32 v{tb+e}, v{acc+e}, v{acc+e}")
            for e in range(8): a(f"v_fma_f32 v{tb+e}, v{tb+e}, v{BC+irt}, v{AC+irt}")
            for e in range(8): a(f"v_mul_f32 v{tb+e}, v{tb+e}, v{acc+e}")
            for e in range(8):
                a(f"v_exp_f32 v{tb+e}, v{tb+e}")
                a(f"v_mul_f32 v{acc+e}, v{acc+e}, v{acc+8+e}")
            for e in range(8): a(f"v_fma_f32 v{tb+e}, v{tb+e}, v{I2+irt}, v{I2+irt}")
            for e in range(8): a(f"v_rcp_f32 v{tb+e}, v{tb+e}")
            for e in range(8): a(f"v_mul_f32 v{acc+e}, v{acc+e}, v{tb+e}")
            for e in range(4): a(f"v_cvt_pk_bf16_f32 v{tb+8+e}, v{acc+2*e}, v{acc+2*e+1}")
            a(f"buffer_store_dwordx4 {vr(tb+8,4)}, v{VL16}, s[{SRD_WS}:{SRD_WS+3}], s{68+2*irt+it} offen {st}")
    a("s_branch B_end")
    a.label("B_qkv_epi")
    RQ = XA + 4
    a(f"s_mov_b32 s6, {f2u(28 ** -0.5 * math.log2(math.e))}")
    for i in range(2): a(f"v_mul_f32 v{RQ+i}, s6, v{R_+i}")
    a(f"""s_cmp_eq_u32 s{S_J}, 14
s_mov_b32 s73, 0x00003f80
s_cselect_b32 s72, 0x3f803f80, s73
s_cselect_b32 s73, s73, 0
v_and_b32 v{T}, 31, v0
v_lshlrev_b32 v{T}, 6, v{T}
v_add_u32 v{T}, {EX+4096}, v{T}""")
    n = 0
    for irt, srt in ((0, S_RT0), (1, S_RT1)):
        for it, stt in ((0, S_T0), (1, S_T1)):
            acc = ACC + 32*irt + 16*it
            tb = G + 16 * (n & 1); n += 1
            a(f"""s_lshl_b32 s6, s{S_RB}, 2
s_add_u32 s6, s6, s{srt}
s_lshl_b32 s6, s6, 4
s_sub_u32 s7, s{S_J}, 14
s_lshl_b32 s7, s7, 3
s_add_u32 s6, s6, s7
s_add_u32 s6, s6, s{stt}
s_lshl_b32 s6, s6, 11
s_add_u32 s6, s6, {QF}
s_lshl_b32 s7, s{srt}, 11
s_lshl_b32 s68, s{stt}, 3
s_add_u32 s7, s7, s68""")
            for e in range(4): a(f"v_mul_f32 v{tb+8+e}, v{acc+12+e}, v{R_+irt}")
            for e in range(16): a(f"v_mul_f32 v{acc+e}, v{acc+e}, v{RQ+irt}")
            a(f"v_cvt_pk_bf16_f32 v{tb+8}, v{tb+8}, v{tb+9}\nv_cvt_pk_bf16_f32 v{tb+9}, v{tb+10}, v{tb+11}")
            a(f"v_add_u32 v{tb+10}, s7, v{T}")
            lab = f"B_nc{irt}{it}"
            a(f"s_cmp_eq_u32 s{stt}, 7\ns_cbranch_scc0 {lab}\nv_mov_b32 v{tb+8}, s72\nv_mov_b32 v{tb+9}, s73")
            a.label(lab)
            for e in range(8): a(f"v_cvt_pk_bf16_f32 v{tb+e}, v{acc+2*e}, v{acc+2*e+1}")
            a(f"""s_mov_b64 exec, s[{S_HI}:{S_HI+1}]
ds_write_b64 v{tb+10}, {vr(tb+8,2)}
v_mov_b32 v{tb+6}, 0
v_mov_b32 v{tb+7}, 0
s_mov_b64 exec, -1
buffer_store_dwordx4 {vr(tb,4)}, v{VL16}, s[{SRD_WS}:{SRD_WS+3}], s6 offen {st}
buffer_store_dwordx4 {vr(tb+4,4)}, v{VL16}, s[{SRD_WS}:{SRD_WS+3}], s6 offen offset:1024 {st}""")
    a(f"""s_lshl_b32 s6, s{S_RB}, 2
s_add_u32 s6, s6, s{S_CG}
s_lshl_b32 s6, s6, 2
s_add_u32 s6, s6, s{S_RH}
s_sub_u32 s7, s{S_J}, 14
s_lshl_b32 s7, s7, 1
s_add_u32 s6, s6, s7
s_lshl_b32 s6, s6, 10
s_add_u32 s6, s6, {KVF}
s_lshl_b32 s7, s{S_CG}, 11
s_waitcnt lgkmcnt(0)
s_barrier
s_cmp_eq_u32 s{S_J}, 14
s_cbranch_scc0 B_vpath
s_lshl_b32 s68, s{S_RH}, 5
s_add_u32 s7, s7, s68
v_lshrrev_b32 v{T+1}, 5, v0
v_lshl_add_u32 v{T}, v{T+1}, 3, v{T}
v_add_u32 v{T}, s7, v{T}
ds_read2_b64 {vr(T+2,4)}, v{T} offset0:0 offset1:2
s_branch B_kvst""")
    a.label("B_vpath")
    a(f"""s_lshl_b32 s68, s{S_RH}, 10
s_add_u32 s7, s7, s68
s_add_u32 s7, s7, {EX+4096}
v_lshrrev_b32 v{T}, 5, v0
v_bfe_u32 v{T+1}, v0, 2, 2
v_lshl_add_u32 v{T}, v{T}, 2, v{T+1}
v_lshlrev_b32 v{T}, 6, v{T}
v_bfe_u32 v{T+1}, v0, 4, 1
v_lshl_add_u32 v{T}, v{T+1}, 5, v{T}
v_and_b32 v{T+1}, 3, v0
v_lshl_add_u32 v{T}, v{T+1}, 3, v{T}
v_add_u32 v{T}, s7, v{T}
ds_read_b64_tr_b16 {vr(T+2,2)}, v{T}
ds_read_b64_tr_b16 {vr(T+4,2)}, v{T} offset:512""")
    a.label("B_kvst")
    a(f"""s_waitcnt lgkmcnt(0)
buffer_store_dwordx4 {vr(T+2,4)}, v{VL16}, s[{SRD_WS}:{SRD_WS+3}], s6 offen {st}""")
    a.label("B_end")

def attention(a, st=""):
    VL16, LB0, LB1, T = 1, 3, 4, 5
    Q, O, S0, P, K, V0, V1 = 8, 16, 32, 64, 72, 80, 88
    S_QT, S_KH, S_KVO, S_WB = 53, 54, 55, 56
    a(f"""s_and_b32 s{S_QT}, s{S_W}, 3
s_lshr_b32 s{S_KH}, s{S_W}, 2
v_lshlrev_b32 v{VL16}, 4, v0
s_lshl_b32 s{S_WB}, s{S_W}, 12
s_lshl_b32 s6, s{S_KH}, 14
v_add_u32 v{LB0}, s6, v{VL16}
v_add_u32 v{LB1}, 65536, v{LB0}
s_lshl_b32 s6, s{S_KH}, 5
s_add_u32 s6, s6, s{S_QT}
s_lshl_b32 s6, s6, 12
s_add_u32 s{S_KVO}, s6, {KVF}
s_lshl_b32 s6, s{S_RB}, 2
s_add_u32 s6, s6, s{S_QT}
s_lshl_b32 s7, s6, 4
s_add_u32 s7, s7, s{S_J}
s_lshl_b32 s7, s7, 11
s_add_u32 s7, s7, {QF}
s_waitcnt lgkmcnt(0)""")
    srd(a, SRD_WS, P_WS, WS_END)
    ws = f"s[{SRD_WS}:{SRD_WS+3}]"
    a(f"buffer_load_dwordx4 {vr(Q,4)}, v{VL16}, {ws}, s7 offen {st}\nbuffer_load_dwordx4 {vr(Q+4,4)}, v{VL16}, {ws}, s7 offen offset:1024 {st}")
    def dma(stage):
        l = [f"s_add_u32 m0, s{S_WB}, {(stage % 4) * 32768}", "s_nop 0" if stage else "s_nop 0"]
        for f in range(4): l.append(f"buffer_load_dwordx4 v{VL16}, {ws}, s{S_KVO} offen offset:{1024*f} {st} lds")
        l.append(f"s_add_u32 s{S_KVO}, s{S_KVO}, 16384")
        return l
    for s in range(3):
        for l in dma(s): a(l)
    def rd(dst, tile, f):
        stg = tile // 4; sl = stg % 4
        base = LB0 if sl < 2 else LB1
        return f"ds_read_b128 {vr(dst,4)}, v{base} offset:{(sl & 1) * 32768 + (tile % 4) * 4096 + f * 1024}"
    a("s_waitcnt vmcnt(8)\ns_barrier")
    a(rd(K, 0, 0)); a(rd(K + 4, 0, 1)); a(rd(V0, 0, 2))
    a("s_waitcnt lgkmcnt(1)")
    a(mfma(S0, K, Q, "0")); a(mfma(S0, K + 4, Q + 4))
    a(rd(K, 1, 0)); a(rd(K + 4, 1, 1))
    a("s_nop 9")
    NT = 32
    for i in range(NT):
        sc = S0 + 16 * (i & 1); sn = S0 + 16 * ((i + 1) & 1)
        v0c = V0 + 4 * (i & 1); v0n = V0 + 4 * ((i + 1) & 1)
        E = lambda r: f"v_exp_f32 v{r}, v{r}"
        C = lambda d, r: f"v_cvt_pk_bf16_f32 v{d}, v{r}, v{r+1}"
        def g(k): return [E(sc + 4*k + q) for q in range(4)] + [C(P + 2*k, sc + 4*k), C(P + 2*k + 1, sc + 4*k + 2)]
        g0, g1, g2, g3 = g(0), g(1), g(2), g(3)
        seq = g0[:2] + ["s_waitcnt lgkmcnt(0)"]
        if i > 0: seq += [mfma(O, V1, P + 4)]
        seq += [rd(V1, i, 3)]
        seq += g0[2:] + g1[:2]
        if i + 1 < NT: seq += [mfma(sn, K, Q, "0"), rd(v0n, i + 1, 2)] if not (i % 4 == 3) or True else []
        seq += g1[2:] + g2[:2]
        if i + 1 < NT: seq += [mfma(sn, K + 4, Q + 4)]
        extra = []
        if i % 4 == 2 and i + 2 < NT:
            stg = i // 4
            seq += [f"s_waitcnt vmcnt({4 if stg + 2 <= 7 else 0})", "s_barrier"]
            if stg + 3 <= 7: extra = dma(stg + 3)
        if i + 2 < NT: seq += [g2[2], rd(K, i + 2, 0), g2[3], rd(K + 4, i + 2, 1)] + g2[4:]
        else: seq += g2[2:] + ["s_nop 0"]
        seq += g3[:2] + [mfma(O, v0c, P, "0" if i == 0 else None)]
        seq += extra[:3] + g3[2:4] + extra[3:] + g3[4:]
        for l in seq: a(l)
    a("s_waitcnt lgkmcnt(0)\ns_nop 0")
    a(mfma(O, V1, P + 4))
    a(f"""s_barrier
v_add_u32 v{T}, s{S_WB}, v{VL16}
s_xor_b32 s6, s{S_WB}, 16384
s_lshl_b32 s7, s{S_KH}, 11
v_add_u32 v{T+1}, s7, v{T}
v_xor_b32 v{T+2}, 16384, v{T+1}
v_or_b32 v{LB0}, 32, v0
v_lshlrev_b32 v{LB0}, 4, v{LB0}
v_add_u32 v{LB0}, s{S_WB}, v{LB0}
v_xor_b32 v{LB1}, 16384, v{LB0}
s_nop 3""")
    for q in range(4): a(f"ds_write_b128 v{T}, {vr(O+4*q,4)} offset:{1024*q}")
    a(f"""s_waitcnt lgkmcnt(0)
s_barrier
ds_read_b32 v{P}, v{LB0} offset:3072
ds_read_b32 v{P+1}, v{LB1} offset:3072
ds_read_b128 {vr(S0,4)}, v{T+1}
ds_read_b128 {vr(S0+4,4)}, v{T+1} offset:1024
ds_read_b128 {vr(S0+8,4)}, v{T+2}
ds_read_b128 {vr(S0+12,4)}, v{T+2} offset:1024
s_lshl_b32 s6, s{S_RB}, 2
s_add_u32 s6, s6, s{S_QT}
s_mul_i32 s6, s6, 144
s_lshl_b32 s7, s{S_J}, 1
s_add_u32 s6, s6, s7
s_add_u32 s6, s6, s{S_KH}
s_add_u32 s6, s6, 112
s_lshl_b32 s6, s6, 10
s_waitcnt lgkmcnt(4)
v_add_f32 v{P}, v{P}, v{P+1}
v_rcp_f32 v{P}, v{P}
s_waitcnt lgkmcnt(0)""")
    for e in range(8): a(f"v_add_f32 v{S0+e}, v{S0+e}, v{S0+8+e}")
    for e in range(8): a(f"v_mul_f32 v{S0+e}, v{S0+e}, v{P}")
    for e in range(4): a(f"v_cvt_pk_bf16_f32 v{K+e}, v{S0+2*e}, v{S0+2*e+1}")
    a(f"""s_mov_b32 s60, 0
s_sub_u32 s61, 0, s{S_KH}
s_mov_b64 exec, s[60:61]
s_cbranch_execz A_nz
v_mov_b32 v{K+2}, 0
v_mov_b32 v{K+3}, 0""")
    a.label("A_nz")
    a(f"s_mov_b64 exec, -1\nbuffer_store_dwordx4 {vr(K,4)}, v{VL16}, {ws}, s6 offen {st}")

def final(a, st=""):
    VL16, VO, T = 1, 3, 4
    X = 8
    ACC = 64; FB = 128
    S_B0, S_B1, S_A = 53, 54, 55
    a(f"""v_lshlrev_b32 v{VL16}, 4, v0
s_and_b32 s6, s{S_J}, 1
s_lshl_b32 s7, s{S_RB}, 1
s_add_u32 s6, s6, s7
s_lshr_b32 s7, s{S_J}, 1
s_mul_i32 s56, s{S_W}, 18
s_mul_i32 s{S_B0}, s6, 288
s_add_u32 s{S_B0}, s{S_B0}, s56
s_lshl_b32 s{S_B0}, s{S_B0}, 10
s_add_u32 s{S_B1}, s{S_B0}, {144*1024}
s_mul_i32 s{S_A}, s7, 144
s_add_u32 s{S_A}, s{S_A}, s56
s_lshl_b32 s{S_A}, s{S_A}, 11
s_add_u32 s{S_A}, s{S_A}, {W2T}
s_lshl_b32 s57, s{S_W}, 3
s_lshl_b32 s6, s6, 6
s_add_u32 s6, s6, s57
v_lshrrev_b32 v{T}, 3, v0
v_add_u32 v{T}, s6, v{T}
v_mul_u32_u24 v{T}, 896, v{T}
v_and_b32 v{T+1}, 7, v0
v_lshl_add_u32 v{T}, v{T+1}, 4, v{T}
s_lshl_b32 s7, s7, 7
v_add_u32 v{VO}, s7, v{T}
s_waitcnt lgkmcnt(0)""")
    srd(a, SRD_WS, P_WS, WS_END); srd(a, SRD_X, P_X, 2048 * 896); srd(a, SRD_OUT, P_OUT, 2048 * 896)
    ws = f"s[{SRD_WS}:{SRD_WS+3}]"
    a(f"buffer_load_dwordx4 {vr(X,4)}, v{VO}, s[{SRD_X}:{SRD_X+3}], 0 offen")
    def loads(k):
        b = FB + 16 * (k % 4)
        l = [f"buffer_load_dwordx4 {vr(b,4)}, v{VL16}, {ws}, s{S_A} offen {st}",
             f"buffer_load_dwordx4 {vr(b+4,4)}, v{VL16}, {ws}, s{S_A} offen offset:1024 {st}",
             f"buffer_load_dwordx4 {vr(b+8,4)}, v{VL16}, {ws}, s{S_B0} offen {st}",
             f"buffer_load_dwordx4 {vr(b+12,4)}, v{VL16}, {ws}, s{S_B1} offen {st}",
             f"s_add_u32 s{S_A}, s{S_A}, 2048", f"s_add_u32 s{S_B0}, s{S_B0}, 1024", f"s_add_u32 s{S_B1}, s{S_B1}, 1024"]
        return l
    NK = 18
    for k in range(3):
        for l in loads(k): a(l)
    for k in range(NK):
        if k + 3 < NK:
            for l in loads(k + 3): a(l)
        a(f"s_waitcnt vmcnt({4 * min(3, NK - 1 - k)})")
        b = FB + 16 * (k % 4)
        for r2 in range(2):
            for d2 in range(2):
                a(mfma(ACC + 32*r2 + 16*d2, b + 4*d2, b + 8 + 4*r2, "0" if k == 0 else None))
    a(f"""v_and_b32 v{T}, 31, v0
v_lshrrev_b32 v{T+1}, 5, v0
v_and_b32 v{T+2}, 7, v0
v_xor_b32 v{T+1}, v{T+1}, v{T+2}
v_lshlrev_b32 v{T+1}, 4, v{T+1}
v_lshl_add_u32 v{T}, v{T}, 8, v{T+1}
s_lshl_b32 s6, s{S_W}, 14
v_add_u32 v{T}, s6, v{T}""")
    for q in range(1, 4): a(f"v_xor_b32 v{12+q}, {q*32}, v{T}")
    a(f"v_mov_b32 v12, v{T}\ns_nop 3")
    for r2 in range(2):
        for d2 in range(2):
            for q in range(4):
                a(f"ds_write_b128 v{12+q}, {vr(ACC+32*r2+16*d2+4*q,4)} offset:{r2*8192 + d2*128}")
    a(f"""v_lshrrev_b32 v{T}, 3, v0
v_and_b32 v{T+1}, 7, v0
v_lshlrev_b32 v{T+1}, 1, v{T+1}
v_xor_b32 v{T+1}, v{T+1}, v{T}
v_lshlrev_b32 v{T+1}, 4, v{T+1}
v_lshl_add_u32 v{T}, v{T}, 8, v{T+1}
s_lshl_b32 s6, s{S_W}, 11
v_add_u32 v{T}, s6, v{T}
v_xor_b32 v{T+1}, 16, v{T}
v_add_u32 v{T+2}, 65536, v{T}
v_add_u32 v{T+3}, 65536, v{T+1}
s_waitcnt lgkmcnt(0)
s_barrier""")
    for p in range(8):
        b0 = T if p < 4 else T + 2
        a(f"ds_read_b128 {vr(ACC+8*p,4)}, v{b0} offset:{(p&3)*16384}\nds_read_b128 {vr(ACC+8*p+4,4)}, v{b0+1} offset:{(p&3)*16384}")
    for e in range(4):
        a(f"v_lshlrev_b32 v{16+2*e}, 16, v{X+e}\nv_and_b32 v{17+2*e}, 0xffff0000, v{X+e}")
    for p in range(8):
        a(f"s_waitcnt lgkmcnt({min(15, 14 - 2*p)})")
        for e in range(8): a(f"v_add_f32 v{16+e}, v{16+e}, v{ACC+8*p+e}")
    for e in range(4): a(f"v_cvt_pk_bf16_f32 v{X+e}, v{16+2*e}, v{17+2*e}")
    a(f"buffer_store_dwordx4 {vr(X,4)}, v{VO}, s[{SRD_OUT}:{SRD_OUT+3}], 0 offen")

def build():
    hdr = open("cdna_kernels/" + NAME + ".s.ref").read().split("; Override launch")[0]
    out = hdr
    out += "; @launch kernel=kb_kernel grid=(256,1,1) block=(512,1,1) lds=147456\n"
    out += "; @launch kernel=ka_kernel grid=(256,1,1) block=(512,1,1) lds=131072\n"
    out += "; @launch kernel=kf_kernel grid=(256,1,1) block=(512,1,1) lds=131072\n"
    out += '.amdgcn_target "amdgcn-amd-amdhsa--gfx950"\n.text\n'
    probs = []
    for name, fn, nv in (("kb_kernel", phaseB, 128), ("ka_kernel", attention, 96), ("kf_kernel", final, 192)):
        a = Asm()
        head(a, name, 256, name + "_end")
        if fn is final: a(f"s_cmp_ge_u32 s{S_J}, 14\ns_cbranch_scc1 {name}_end")
        fn(a)
        a.label(name + "_end")
        a("s_endpgm")
        probs += check_hazards(a.lines, name)
        out += a.text() + desc(name, nv)
    return out, probs

if __name__ == "__main__":
    out, probs = build()
    for p in probs: print("HAZARD", p, file=sys.stderr)
    open(sys.argv[1] if len(sys.argv) > 1 else "cdna_kernels/" + NAME + ".s", "w").write(out)
```

```python
import sys, os, math, struct
X = set(os.environ.get('XFLAGS', '').split(','))
from asmlib import *

NAME = "parallel_sum__grouped_kv_mqa__glu_gated_geglu__prompt"
def f2u(x): return struct.unpack("<I", struct.pack("<f", x))[0]

A2F = 0
W2T = 64 * 144 * 1024
QF  = W2T + 7 * 144 * 2048
KVF = QF + 64 * 16 * 2048
WS_END = KVF + 64 * 4096
P_X, P_WQ, P_WK, P_WV, P_WO, P_BX, P_WG, P_WU, P_WD, P_OUT, P_DBG, P_WS = 8, 10, 12, 14, 16, 18, 20, 22, 24, 26, 28, 30
SRD_X, SRD_WS, SRD_T, SRD_PC, SRD_OUT = 32, 36, 40, 44, 48
S_W, S_RB, S_J = 3, 4, 5

def srd(a, d, p, nbytes):
    a(f"s_mov_b32 s{d}, s{p}\ns_mov_b32 s{d+1}, s{p+1}\ns_mov_b32 s{d+2}, {nbytes}\ns_mov_b32 s{d+3}, 0x00020000")

def head(a, name, nwg, endlabel):
    a.raw(f".globl {name}\n.p2align 8\n.type {name},@function")
    a.label(name)
    a(f"s_cmp_ge_u32 s2, {nwg}\ns_cbranch_scc1 {endlabel}")
    stamp_begin(a)
    if 'diag' in X: a("s_memtime s[88:89]")
    a("s_load_dwordx16 s[8:23], s[0:1], 0\ns_load_dwordx8 s[24:31], s[0:1], 64")
    a(f"s_getpc_b64 s[{SRD_PC}:{SRD_PC+1}]")
    a.label(name + "_pc")
    a(f"s_mov_b32 s{SRD_PC+2}, {endlabel}-{name}_pc\ns_mov_b32 s{SRD_PC+3}, 0x00020000")
    a(f"v_lshlrev_b32 v1, {2 if 'diagc' in X else 7}, v0\nbuffer_load_dword v2, v1, s[{SRD_PC}:{SRD_PC+3}], 0 offen")
    a(f"v_lshrrev_b32 v1, 6, v0\nv_and_b32 v0, 63, v0\nv_readfirstlane_b32 s{S_W}, v1")
    a(f"""s_and_b32 s6, s2, 7
s_lshr_b32 s7, s2, 3
s_lshr_b32 s{S_RB}, s6, 1
s_lshl_b32 s{S_RB}, s{S_RB}, 2
s_lshr_b32 s52, s7, 3
s_add_u32 s{S_RB}, s{S_RB}, s52
s_and_b32 s{S_J}, s6, 1
s_lshl_b32 s{S_J}, s{S_J}, 3
s_and_b32 s52, s7, 7
s_add_u32 s{S_J}, s{S_J}, s52""")

STAMPS = False
STAMP_WS = 200 * 1024 * 1024
class St:
    n = 0
def stamp(a):
    if not STAMPS: return
    if 'cold' in X and St.n >= 7:
        if St.n == 7: a("s_memtime s[90:91]")
        St.n = 8
        return
    k = St.n; St.n += 1
    assert k < 8
    a(f"s_memtime s[{76+2*k}:{77+2*k}]")
def stamp_begin(a):
    if not STAMPS: return
    St.n = 0
    a("s_memrealtime s[92:93]")
    stamp(a)
def stamp_end(a, kid):
    if not STAMPS: return
    stamp(a)
    a("s_memrealtime s[94:95]\ns_waitcnt lgkmcnt(0) vmcnt(0)")
    a(f"""s_mov_b32 s40, s{P_WS}
s_mov_b32 s41, s{P_WS+1}
s_mov_b32 s42, 0x10000000
s_mov_b32 s43, 0x00020000
s_lshl_b32 s6, s2, 3
s_add_u32 s6, s6, s{S_W}
s_lshl_b32 s6, s6, 6
s_add_u32 s6, s6, {STAMP_WS + kid * 256 * 8 * 64}
v_mov_b32 v2, s92
v_mov_b32 v3, s94""")
    for k in range(St.n): a(f"v_mov_b32 v{4+k}, s{76+2*k}")
    for k in range(St.n, 10): a(f"v_mov_b32 v{4+k}, 0")
    a("v_mov_b32 v1, 0\ns_mov_b64 exec, 1")
    for q in range(3): a(f"buffer_store_dwordx4 v[{2+4*q}:{5+4*q}], v1, s[40:43], s6 offen offset:{16*q}")

def desc(name, nv, ns=96):
    return f""".section .rodata,"a"
.p2align 6
.amdhsa_kernel {name}
  .amdhsa_next_free_vgpr {nv}
  .amdhsa_next_free_sgpr {ns}
  .amdhsa_accum_offset {(nv+3)//4*4}
  .amdhsa_group_segment_fixed_size 0
  .amdhsa_kernarg_size 96
  .amdhsa_user_sgpr_count 2
  .amdhsa_user_sgpr_kernarg_segment_ptr 1
  .amdhsa_system_sgpr_workgroup_id_x 1
  .amdhsa_float_denorm_mode_32 3
.end_amdhsa_kernel
.text
"""

def mfma(d, A, B, C=None):
    c = vr(d, 16) if C is None else C
    return f"v_mfma_f32_32x32x16_bf16 {vr(d,16)}, {vr(A,4)}, {vr(B,4)}, {c}"

SLOT = 49152
EX = 98304
def phaseB(a, st=""):
    L = 0
    VX, GA, GS = 3, 4, 6
    XA = 8
    WA = 16
    CS, SM, SQ = 20, 22, 24
    T = 26
    XF, WF = 32, 48
    ACC = 64
    S_WB, S_ONES, S_XO0, S_XO1, S_RH, S_CG, S_P, S_T0, S_T1, S_RT0, S_RT1 = 53, 54, 55, 56, 57, 58, 59, 60, 61, 62, 63
    S_U, S_HI = 64, 66
    a(f"""s_lshl_b32 s{S_WB}, s{S_W}, 10
s_and_b32 s{S_RH}, s{S_W}, 1
s_lshr_b32 s{S_CG}, s{S_W}, 1
s_lshr_b32 s{S_P}, s{S_W}, 2
s_mov_b32 s{S_ONES}, 0x3f803f80
s_mov_b32 s{S_HI}, 0
s_mov_b32 s{S_HI+1}, -1""")
    a(f"""s_lshl_b32 s6, s{S_RB}, 7
s_lshl_b32 s7, s{S_W}, 3
s_add_u32 s6, s6, s7
v_lshrrev_b32 v{T}, 3, v0
v_add_u32 v{T}, s6, v{T}
v_mul_u32_u24 v{T}, 896, v{T}
s_lshl_b32 s7, s{S_W}, 2
v_lshrrev_b32 v{T+1}, 4, v0
v_add_u32 v{T+1}, s7, v{T+1}
v_xor_b32 v{T+1}, v{T+1}, v0
v_and_b32 v{T+1}, 7, v{T+1}
v_lshl_add_u32 v{VX}, v{T+1}, 4, v{T}""")
    a(f"""s_lshl_b32 s7, s{S_W}, 1
v_lshrrev_b32 v{T+2}, 5, v0
v_add_u32 v{T+2}, s7, v{T+2}
v_and_b32 v{T+3}, 3, v{T+2}
s_waitcnt lgkmcnt(0)""")
    srd(a, SRD_X, P_X, 2048 * 896)
    srd(a, SRD_WS, P_WS, WS_END)
    def dma_x(stage, i):
        return [f"s_add_u32 m0, s{S_WB}, {(stage % 3) * SLOT + i * 8192}",
                f"s_mov_b32 s{S_XO0}, {stage * 128 + i * 64 * 896}",
                f"buffer_load_dwordx4 v{VX}, s[{SRD_X}:{SRD_X+3}], s{S_XO0} offen lds"]
    def dma_w(stage, i):
        return [f"s_add_u32 m0, s{S_WB}, {(stage % 3) * SLOT + 16384 + i * 8192}",
                "s_nop 0",
                f"global_load_lds_dwordx4 {vr(GA,2)}, off",
                f"v_lshl_add_u64 {vr(GA,2)}, {vr(GS,2)}, 0, {vr(GA,2)}"]
    if 'cold' in X: stamp(a)
    if 'touch' in X:
        a(f"""s_lshr_b32 s6, s2, 3
s_lshl_b32 s6, s6, 3
s_add_u32 s6, s6, s{S_W}
s_mul_i32 s7, s6, 14
s_lshr_b32 s68, s{S_RB}, 2
s_mul_i32 s68, s68, 3584
s_add_u32 s7, s7, s68
v_add_u32 v40, s7, v0
v_lshlrev_b32 v40, 7, v40
s_mov_b64 exec, 0x3fff
buffer_load_dword v41, v40, s[{SRD_X}:{SRD_X+3}], 0 offen
s_mov_b64 exec, -1
s_mul_i32 s7, s6, 28
v_add_u32 v42, s7, v0
v_lshrrev_b32 v43, 4, v42
v_and_b32 v42, 15, v42
v_mul_u32_u24 v43, 3584, v43
v_lshl_add_u32 v43, v42, 7, v43
s_lshr_b32 s68, s{S_J}, 3
s_lshl_b32 s68, s68, 11
v_add_u32 v43, s68, v43
s_mov_b32 s40, s{P_WG}
s_mov_b32 s41, s{P_WG+1}
s_mov_b32 s42, {448*3584}
s_mov_b32 s43, 0x00020000
s_mov_b32 s48, s{P_WU}
s_mov_b32 s49, s{P_WU+1}
s_mov_b32 s50, {448*3584}
s_mov_b32 s51, 0x00020000
s_mov_b32 exec_lo, 0x0fffffff
s_mov_b32 exec_hi, 0
buffer_load_dword v44, v43, s[40:43], 0 offen
buffer_load_dword v45, v43, s[48:51], 0 offen
s_mov_b64 exec, -1""")
        if 'touchw' in X:
            a("s_waitcnt vmcnt(0)"); stamp(a)
    for l in dma_x(0, 0) + dma_x(0, 1): a(l)
    a(f"s_cmp_ge_u32 s{S_J}, 14\ns_cbranch_scc1 B_qkv_src")
    a(f"""v_bfe_u32 v{T}, v0, 4, 1
v_lshlrev_b32 v{T+1}, 1, v{T+3}
v_lshl_add_u32 v{T+1}, v{T}, 3, v{T+1}
v_xor_b32 v{T+1}, v{T+1}, v0
v_and_b32 v{T+1}, 15, v{T+1}
v_mul_u32_u24 v{T+4}, 3584, v{T+2}
s_lshl_b32 s6, s{S_J}, 8
v_lshl_add_u32 v{T+4}, v{T+1}, 4, v{T+4}
v_add_u32 v{T+4}, s6, v{T+4}
v_cmp_eq_u32 vcc, 1, v{T}
v_mov_b32 v{GA}, s{P_WG}
v_mov_b32 v{GA+1}, s{P_WG+1}
v_mov_b32 v{T}, s{P_WU}
v_mov_b32 v{T+1}, s{P_WU+1}
v_cndmask_b32 v{GA}, v{GA}, v{T}, vcc
v_cndmask_b32 v{GA+1}, v{GA+1}, v{T+1}, vcc
v_mov_b32 v{GS}, 57344
s_branch B_src_done""")
    a.label("B_qkv_src")
    a(f"""v_lshlrev_b32 v{T}, 2, v{T+3}
v_xor_b32 v{T}, v{T}, v0
v_and_b32 v{T}, 31, v{T}
s_cmp_eq_u32 s{S_J}, 14
s_cselect_b32 s6, 4, 0
s_cselect_b32 s7, 0, 384
s_cselect_b32 s68, s{P_WK}, s{P_WV}
s_cselect_b32 s69, s{P_WK+1}, s{P_WV+1}
v_add_u32 v{T+1}, s6, v{T}
v_and_b32 v{T+1}, 31, v{T+1}
v_cmp_gt_u32 vcc, 4, v{T+1}
v_mul_u32_u24 v{T+4}, 896, v{T+2}
v_lshl_add_u32 v{T+4}, v{T}, 4, v{T+4}
v_add_u32 v{T+4}, s7, v{T+4}
v_lshlrev_b32 v{T+1}, 4, v{T+1}
v_min_u32 v{T+1}, 40, v{T+1}
v_mul_u32_u24 v{T}, 56, v{T+2}
v_add_u32 v{T}, v{T}, v{T+1}
v_cndmask_b32 v{T+4}, v{T+4}, v{T}, vcc
v_mov_b32 v{GA}, s{P_WQ}
v_mov_b32 v{GA+1}, s{P_WQ+1}
v_mov_b32 v{T}, s68
v_mov_b32 v{T+1}, s69
v_cndmask_b32 v{GA}, v{GA}, v{T}, vcc
v_cndmask_b32 v{GA+1}, v{GA+1}, v{T+1}, vcc
v_mov_b32 v{GS}, 14336
v_mov_b32 v{T}, 896
v_cndmask_b32 v{GS}, v{GS}, v{T}, vcc""")
    a.label("B_src_done")
    a(f"""v_add_co_u32 v{GA}, vcc, v{GA}, v{T+4}
v_mov_b32 v{GS+1}, 0
s_nop 0
v_addc_co_u32 v{GA+1}, vcc, 0, v{GA+1}, vcc""")
    for i in range(4):
        for l in dma_w(0, i): a(l)
    if 'cold2' in X:
        stamp(a)
        for n in (6, 4, 0):
            a(f"s_waitcnt vmcnt({n})"); stamp(a)
    SPIN = """s_memtime s[90:91]
s_waitcnt lgkmcnt(0)
s_sub_u32 s6, s90, s88
s_mul_i32 s6, s6, %d
B_spin:
s_sleep 2
s_memtime s[88:89]
s_waitcnt lgkmcnt(0)
s_sub_u32 s7, s88, s90
s_cmp_lt_u32 s7, s6
s_cbranch_scc1 B_spin"""
    if 'diagc' in X:
        a("s_memtime s[88:89]\ns_waitcnt lgkmcnt(0)")
        for i in range(2000): a(f"v_fma_f32 v{100+i%8}, v{110+i%8}, v{110+i%8}, v{110+i%8}")
        a(SPIN % 20)
    for s in (1, 2):
        if 'diagd' in X and s == 2: a("s_waitcnt vmcnt(0)\ns_barrier\ns_memtime s[88:89]\ns_waitcnt lgkmcnt(0)")
        for i in range(2):
            for l in dma_x(s, i): a(l)
        for i in range(4):
            for l in dma_w(s, i): a(l)
        if 'diagd' in X and s == 2: a("s_waitcnt vmcnt(0)\n" + SPIN % 100)
        if 'cold2' in X:
            a(f"s_waitcnt vmcnt(0)"); stamp(a)
    if 'cold2' in X: a("s_branch B_end")
    a(f"""s_lshl_b32 s{S_T0}, s{S_CG}, 1
s_add_u32 s{S_T0}, s{S_T0}, s{S_RH}
s_xor_b32 s{S_T1}, s{S_T0}, 1
s_and_b32 s6, s{S_CG}, 1
s_lshl_b32 s{S_RT0}, s{S_RH}, 1
s_add_u32 s{S_RT0}, s{S_RT0}, s6
s_xor_b32 s{S_RT1}, s{S_RT0}, 1""")
    a(f"""v_and_b32 v{T}, 31, v0
v_lshrrev_b32 v{T+1}, 5, v0
v_bfe_u32 v{T+2}, v0, 1, 3
v_xor_b32 v{T+2}, v{T+2}, v{T+1}
v_lshlrev_b32 v{T+2}, 4, v{T+2}
v_lshl_add_u32 v{T+2}, v{T}, 7, v{T+2}
s_lshl_b32 s6, s{S_RT0}, 12
s_lshl_b32 s7, s{S_P}, 5
s_or_b32 s6, s6, s7
v_xor_b32 v{XA}, s6, v{T+2}""")
    for pos in range(4):
        if pos: a(f"v_xor_b32 v{XA+2*pos}, {pos<<5}, v{XA}")
        a(f"v_xor_b32 v{XA+2*pos+1}, {4096 | (pos<<5)}, v{XA}")
    a(f"""v_bfe_u32 v{T+4}, v0, 2, 2
v_lshl_add_u32 v{T+3}, v{T+1}, 3, v{T+4}
v_lshlrev_b32 v{T+3}, 9, v{T+3}
v_add_u32 v{T+3}, 16384, v{T+3}
v_bfe_u32 v{T+5}, v0, 4, 1
v_and_b32 v{T}, 3, v0
s_cmp_ge_u32 s{S_J}, 14
s_cbranch_scc1 B_qkv_rd""")
    for i, st_ in ((0, S_T0), (1, S_T1)):
        a(f"""v_lshl_add_u32 v{T+1}, v{T+5}, 2, v{T+4}
v_xor_b32 v{T+1}, s{st_}, v{T+1}
v_lshlrev_b32 v{T+1}, 5, v{T+1}
v_lshl_add_u32 v{T+1}, v{T+5}, 8, v{T+1}
v_lshl_add_u32 v{T+1}, v{T}, 3, v{T+1}
v_add_u32 v{WA+2*i}, v{T+1}, v{T+3}""")
    a("s_branch B_rd_done")
    a.label("B_qkv_rd")
    a(f"""v_lshl_add_u32 v{T}, v{T+5}, 2, v{T}
v_cmp_eq_u32 vcc, 7, v{T}
s_cmp_eq_u32 s{S_J}, 14
s_cselect_b32 s68, 0, 64
s_cselect_b32 s69, 448, 0""")
    for i, st_ in ((0, S_T0), (1, S_T1)):
        a(f"""s_mul_i32 s6, s{st_}, 56
s_add_u32 s6, s6, s68
s_lshl_b32 s7, s{st_}, 3
s_cmp_eq_u32 s{st_}, 6
s_cselect_b32 s7, 56, s7
s_and_b32 s7, s7, 63
s_cmp_eq_u32 s{st_}, 7
s_cselect_b32 s7, 0, s7
s_add_u32 s7, s7, s69
v_lshl_add_u32 v{T+1}, v{T}, 3, s6
v_mov_b32 v{T+2}, s7
v_cndmask_b32 v{T+1}, v{T+1}, v{T+2}, vcc
v_lshlrev_b32 v{T+2}, 6, v{T+4}
v_xor_b32 v{T+1}, v{T+1}, v{T+2}
v_add_u32 v{WA+2*i}, v{T+1}, v{T+3}""")
    a.label("B_rd_done")
    a(f"""s_lshl_b32 s6, s{S_P}, 13
s_xor_b32 s7, s6, 8192""")
    for i in range(2):
        a(f"v_add_u32 v{WA+2*i+1}, s7, v{WA+2*i}\nv_add_u32 v{WA+2*i}, s6, v{WA+2*i}")
    for r in range(CS, CS + 6): a(f"v_mov_b32 v{r}, 0")
    VT = 2
    a(f"""s_lshl_b32 s{S_U}, s2, 2
s_add_u32 s{S_U}, s{S_U}, s{S_CG}
s_min_u32 s{S_U}, s{S_U}, 1007
s_mul_hi_u32 s6, s{S_U}, {(2**32 + 143)//144}
s_mul_i32 s7, s6, 144
s_sub_u32 s7, s{S_U}, s7
s_lshl_b32 s68, s7, 4
s_sub_u32 s69, s7, 112
s_lshr_b32 s70, s69, 1
s_mul_i32 s70, s70, 28
s_and_b32 s69, s69, 1
s_lshl_b32 s69, s69, 4
s_add_u32 s69, s69, s70
s_cmp_lt_u32 s7, 112
s_cselect_b32 s68, s68, s69
s_cselect_b32 s{SRD_T}, s{P_WD}, s{P_WO}
s_cselect_b32 s{SRD_T+1}, s{P_WD+1}, s{P_WO+1}
s_mov_b32 s72, {448*896}
s_cselect_b32 s{SRD_T+2}, {1792*896}, s72
s_mov_b32 s{SRD_T+3}, 0x00020000
s_lshl_b32 s69, s{S_RH}, 3
s_add_u32 s68, s68, s69
s_mul_i32 s68, s68, 896
s_lshl_b32 s6, s6, 7
s_add_u32 s71, s68, s6
v_lshrrev_b32 v{T}, 3, v0
v_mul_u32_u24 v{T}, 896, v{T}
v_and_b32 v{T+1}, 7, v0""")
    if 'cold' in X:
        stamp(a)
        for n in (18, 16, 12, 6, 0):
            a(f"s_waitcnt vmcnt({n})"); stamp(a)
        St.n -= 1
        a("s_branch B_end")
    a(f"s_waitcnt vmcnt(12)")
    a(f"v_lshl_add_u32 v{VT}, v{T+1}, 4, v{T}")
    a("s_barrier")
    stamp(a)
    def reads(pos, buf):
        par = pos & 1; off = (pos >> 1) * 16384
        if 'nords' in X: return ['s_nop 0'] * 6
        if 'notr' in X: return [f"ds_read_b128 {vr(XF+8*buf,4)}, v{XA+2*pos}", 's_nop 0', 's_nop 0', f"ds_read_b128 {vr(XF+8*buf+4,4)}, v{XA+2*pos+1}", 's_nop 0', 's_nop 0']
        if 'nox' in X: return ['s_nop 0', f"ds_read_b64_tr_b16 {vr(WF+8*buf,2)}, v{WA+par} offset:{off}",
                f"ds_read_b64_tr_b16 {vr(WF+8*buf+2,2)}, v{WA+par} offset:{off+2048}", 's_nop 0',
                f"ds_read_b64_tr_b16 {vr(WF+8*buf+4,2)}, v{WA+2+par} offset:{off}",
                f"ds_read_b64_tr_b16 {vr(WF+8*buf+6,2)}, v{WA+2+par} offset:{off+2048}"]
        return [f"ds_read_b128 {vr(XF+8*buf,4)}, v{XA+2*pos}",
                f"ds_read_b64_tr_b16 {vr(WF+8*buf,2)}, v{WA+par} offset:{off}",
                f"ds_read_b64_tr_b16 {vr(WF+8*buf+2,2)}, v{WA+par} offset:{off+2048}",
                f"ds_read_b128 {vr(XF+8*buf+4,4)}, v{XA+2*pos+1}",
                f"ds_read_b64_tr_b16 {vr(WF+8*buf+4,2)}, v{WA+2+par} offset:{off}",
                f"ds_read_b64_tr_b16 {vr(WF+8*buf+6,2)}, v{WA+2+par} offset:{off+2048}"]
    for l in reads(0, 0): a(l)
    pend = []
    for s in range(7):
        for pos in range(4):
            buf = pos & 1
            first = (s == 0 and pos == 0)
            M = [mfma(ACC + 32*irt + 16*it, WF + 8*buf + 4*it, XF + 8*buf + 4*irt, "0" if first else None)
                 for (irt, it) in ((0, 0), (1, 0), (0, 1), (1, 1))]
            D = [f"v_dot2c_f32_bf16 v{CS + (k&1)}, s{S_ONES}, v{WF+8*buf+k}" for k in range(4)]
            if pos % 2 == 0:
                for k in range(4):
                    D.append(f"v_dot2c_f32_bf16 v{SM + (k&1)}, s{S_ONES}, v{XF+8*buf+k}")
                    D.append(f"v_dot2c_f32_bf16 v{SQ + (k&1)}, v{XF+8*buf+k}, v{XF+8*buf+k}")
            if 'nodot' in X: D = ['s_nop 0'] * 4
            nd = len(D) // 4
            if pos < 3:
                R = reads(pos + 1, buf ^ 1)
                a("s_waitcnt lgkmcnt(0)")
                for q in range(4):
                    a(M[q])
                    for l in R[2*q:2*q+2]: a(l)
                    for l in D[q*nd:(q+1)*nd]: a(l)
                    if q in (1, 3) and pend:
                        for l in pend.pop(0): a(l)
            else:
                a("s_waitcnt lgkmcnt(0)")
                a(M[0]); a(D[0]); a(M[1]); a(D[1])
                if s < 6:
                    assert not pend
                    a(f"s_waitcnt vmcnt({6 if s < 5 else 1})")
                    a("s_barrier")
                    d = SLOT if (s + 1) % 3 else -2 * SLOT
                    a(f"s_mov_b32 s6, {d}")
                    for r in (XA, WA, XA + 1, WA + 2): a(f"v_add_u32 v{r}, s6, v{r}")
                    R = reads(0, 0)
                    for l in R[:3]: a(l)
                    a(M[2])
                    for l in R[3:]: a(l)
                    for r in (XA+2, XA+3, WA+1, WA+3): a(f"v_add_u32 v{r}, s6, v{r}")
                    a(D[2]); a(M[3]); a(D[3])
                    for r in (XA+4, XA+5, XA+6, XA+7): a(f"v_add_u32 v{r}, s6, v{r}")
                    if 'nodma' in X and s != 4: pass
                    elif s + 3 <= 6:
                        pend = [dma_x(s+3, 0), dma_x(s+3, 1)] + [dma_w(s+3, i) for i in range(4)]
                    elif s == 4:
                        pend = [[f"s_add_u32 m0, s{S_WB}, {SLOT}", "s_nop 0",
                                 f"buffer_load_dwordx4 v{VT}, s[{SRD_T}:{SRD_T+3}], s71 offen lds"]]
                else:
                    a(M[2]); a(D[2]); a(M[3]); a(D[3])
    stamp(a)
    if 'diag' in X:
        a("""s_memtime s[90:91]
s_waitcnt lgkmcnt(0)
s_sub_u32 s6, s90, s88
s_mul_i32 s6, s6, 20
B_spin:
s_sleep 2
s_memtime s[88:89]
s_waitcnt lgkmcnt(0)
s_sub_u32 s7, s88, s90
s_cmp_lt_u32 s7, s6
s_cbranch_scc1 B_spin""")
    a(f"""v_lshlrev_b32 v{T}, 2, v0
s_lshl_b32 s6, s{S_T0}, 8
s_lshl_b32 s7, s{S_RT0}, 1
s_add_u32 s7, s7, s{S_P}
s_lshl_b32 s7, s7, 8
v_add_u32 v{T+1}, s6, v{T}
v_add_u32 v{T+2}, s7, v{T}
v_add_f32 v{CS}, v{CS}, v{CS+1}
v_add_f32 v{SM}, v{SM}, v{SM+1}
v_add_f32 v{SQ}, v{SQ}, v{SQ+1}
v_cvt_pk_bf16_f32 v{T+3}, v{CS}, v{CS}
v_and_b32 v{T+3}, 0xffff0000, v{T+3}
v_permlane32_swap_b32 v{SM}, v{SQ}
v_sub_f32 v{T+3}, v{CS}, v{T+3}
v_cvt_pk_bf16_f32 v{WF}, v{CS}, v{T+3}
v_add_f32 v{SM}, v{SM}, v{SQ}
v_add_u32 v{T+1}, {EX}, v{T+1}
v_add_u32 v{T+2}, {EX+2048}, v{T+2}
ds_write_b32 v{T+1}, v{WF}
ds_write_b32 v{T+2}, v{SM}
v_xor_b32 v{T+1}, 256, v{T+1}
v_and_b32 v{T}, 31, v0
v_lshlrev_b32 v{T}, 2, v{T}
s_lshl_b32 s6, s{S_RT0}, 9
s_add_u32 s6, s6, {EX+2048}
v_add_u32 v{T+2}, s6, v{T}
v_xor_b32 v{T+3}, 512, v{T+2}
s_waitcnt vmcnt(0) lgkmcnt(0)
s_barrier
ds_read_b32 v{WF+4}, v{T+1}
ds_read2_b32 {vr(XF,2)}, v{T+2} offset0:0 offset1:32
ds_read2_b32 {vr(XF+2,2)}, v{T+2} offset0:64 offset1:96
ds_read2_b32 {vr(XF+4,2)}, v{T+3} offset0:0 offset1:32
ds_read2_b32 {vr(XF+6,2)}, v{T+3} offset0:64 offset1:96""")
    a(f"""v_lshrrev_b32 v{T}, 5, v0
v_bfe_u32 v{T+1}, v0, 2, 2
v_lshl_add_u32 v{T}, v{T}, 2, v{T+1}
v_lshlrev_b32 v{T}, 7, v{T}
v_bfe_u32 v{T+1}, v0, 4, 1
v_lshl_add_u32 v{T}, v{T+1}, 5, v{T}
v_and_b32 v{T+1}, 3, v0
v_lshl_add_u32 v{T}, v{T+1}, 3, v{T}
s_lshl_b32 s6, s{S_CG}, 11
s_lshl_b32 s7, s{S_RH}, 6
s_add_u32 s6, s6, s7
s_add_u32 s6, s6, {SLOT}
v_add_u32 v{T}, s6, v{T}
ds_read_b64_tr_b16 {vr(WF+8,2)}, v{T}
ds_read_b64_tr_b16 {vr(WF+10,2)}, v{T} offset:1024""")
    VL16 = 1
    a(f"v_lshlrev_b32 v{VL16}, 4, v0")
    for r in (WF+1, WF+2, WF+3, WF+5, WF+6, WF+7, XF+9, XF+10, XF+11, XF+13, XF+14, XF+15): a(f"v_mov_b32 v{r}, 0")
    a(f"""s_lshl_b32 s6, s{S_U}, 11
s_lshl_b32 s7, s{S_RH}, 10
s_add_u32 s6, s6, s7
s_add_u32 s6, s6, {W2T}
s_waitcnt lgkmcnt(0)
buffer_store_dwordx4 {vr(WF+8,4)}, v{VL16}, s[{SRD_WS}:{SRD_WS+3}], s6 offen {st}""")
    R_, S_ = XA, XA + 2
    a(f"s_mov_b32 s6, {f2u(1.0/448)}\ns_mov_b32 s7, {f2u(1e-5)}")
    for i in range(2):
        x = XF + 4 * i; t = T + 2 * i
        a(f"""v_add_f32 v{x}, v{x}, v{x+2}
v_add_f32 v{x+1}, v{x+1}, v{x+3}
v_mul_f32 v{x}, s6, v{x}
v_mul_f32 v{x+1}, s6, v{x+1}
v_fma_f32 v{x+1}, -v{x}, v{x}, v{x+1}
v_max_f32 v{x+1}, 0, v{x+1}
v_cvt_pk_bf16_f32 v{XF+8+4*i}, -v{x}, -v{x}
v_cvt_pk_bf16_f32 v{x+1}, v{x+1}, v{x+1}
v_and_b32 v{x+1}, 0xffff0000, v{x+1}
v_add_f32 v{x+1}, s7, v{x+1}
v_cvt_pk_bf16_f32 v{x+1}, v{x+1}, v{x+1}
v_and_b32 v{x+1}, 0xffff0000, v{x+1}
v_sqrt_f32 v{x+1}, v{x+1}
s_nop 0
v_cvt_pk_bf16_f32 v{x+1}, v{x+1}, v{x+1}
v_and_b32 v{S_+i}, 0xffff0000, v{x+1}
v_rcp_f32 v{R_+i}, v{S_+i}""")
    for (irt, it) in ((0, 0), (0, 1), (1, 0), (1, 1)):
        a(mfma(ACC + 32*irt + 16*it, WF + 4*it, XF + 8 + 4*irt))
    stamp(a)
    a(f"s_cmp_ge_u32 s{S_J}, 14\ns_cbranch_scc1 B_qkv_epi")
    KA = -2.0 * math.log2(math.e) * math.sqrt(2.0 / math.pi); KB = KA * 0.044715
    AC, BC, I2 = XA + 4, XA + 6, WA
    a(f"s_mov_b32 s6, {f2u(KA)}\ns_mov_b32 s7, {f2u(KB)}")
    for i in range(2):
        a(f"""v_mul_f32 v{AC+i}, s6, v{R_+i}
v_mul_f32 v{BC+i}, v{R_+i}, v{R_+i}
v_mul_f32 v{I2+i}, v{S_+i}, v{S_+i}
v_mul_f32 v{BC+i}, v{BC+i}, v{R_+i}
v_mul_f32 v{BC+i}, s7, v{BC+i}""")
    for irt, srt in ((0, S_RT0), (1, S_RT1)):
        for it, stt in ((0, S_T0), (1, S_T1)):
            d = 68 + 2*irt + it
            a(f"""s_lshl_b32 s6, s{S_RB}, 2
s_add_u32 s6, s6, s{srt}
s_mul_i32 s6, s6, 144
s_lshl_b32 s7, s{S_J}, 3
s_add_u32 s6, s6, s7
s_add_u32 s6, s6, s{stt}
s_lshl_b32 s{d}, s6, 10""")
    G = 32
    n = 0
    for irt in range(2):
        for it in range(2):
            acc = ACC + 32*irt + 16*it
            tb = G + 16 * (n & 1); n += 1
            for e in range(8): a(f"v_mul_f32 v{tb+e}, v{acc+e}, v{acc+e}")
            for e in range(8): a(f"v_fma_f32 v{tb+e}, v{tb+e}, v{BC+irt}, v{AC+irt}")
            for e in range(8): a(f"v_mul_f32 v{tb+e}, v{tb+e}, v{acc+e}")
            for e in range(8):
                a(f"v_exp_f32 v{tb+e}, v{tb+e}")
                a(f"v_mul_f32 v{acc+e}, v{acc+e}, v{acc+8+e}")
            for e in range(8): a(f"v_fma_f32 v{tb+e}, v{tb+e}, v{I2+irt}, v{I2+irt}")
            for e in range(8): a(f"v_rcp_f32 v{tb+e}, v{tb+e}")
            for e in range(8): a(f"v_mul_f32 v{acc+e}, v{acc+e}, v{tb+e}")
            for e in range(4): a(f"v_cvt_pk_bf16_f32 v{tb+8+e}, v{acc+2*e}, v{acc+2*e+1}")
            a(f"buffer_store_dwordx4 {vr(tb+8,4)}, v{VL16}, s[{SRD_WS}:{SRD_WS+3}], s{68+2*irt+it} offen {st}")
    a("s_branch B_end")
    a.label("B_qkv_epi")
    RQ = XA + 4
    a(f"s_mov_b32 s6, {f2u(28 ** -0.5 * math.log2(math.e))}")
    for i in range(2): a(f"v_mul_f32 v{RQ+i}, s6, v{R_+i}")
    a(f"""s_cmp_eq_u32 s{S_J}, 14
s_mov_b32 s73, 0x00003f80
s_cselect_b32 s72, 0x3f803f80, s73
s_cselect_b32 s73, s73, 0
v_and_b32 v{T}, 31, v0
v_lshlrev_b32 v{T}, 6, v{T}
v_add_u32 v{T}, {EX+4096}, v{T}""")
    n = 0
    for irt, srt in ((0, S_RT0), (1, S_RT1)):
        for it, stt in ((0, S_T0), (1, S_T1)):
            acc = ACC + 32*irt + 16*it
            tb = G + 16 * (n & 1); n += 1
            a(f"""s_lshl_b32 s6, s{S_RB}, 2
s_add_u32 s6, s6, s{srt}
s_lshl_b32 s6, s6, 4
s_sub_u32 s7, s{S_J}, 14
s_lshl_b32 s7, s7, 3
s_add_u32 s6, s6, s7
s_add_u32 s6, s6, s{stt}
s_lshl_b32 s6, s6, 11
s_add_u32 s6, s6, {QF}
s_lshl_b32 s7, s{srt}, 11
s_lshl_b32 s68, s{stt}, 3
s_add_u32 s7, s7, s68""")
            for e in range(4): a(f"v_mul_f32 v{tb+8+e}, v{acc+12+e}, v{R_+irt}")
            for e in range(16): a(f"v_mul_f32 v{acc+e}, v{acc+e}, v{RQ+irt}")
            a(f"v_cvt_pk_bf16_f32 v{tb+8}, v{tb+8}, v{tb+9}\nv_cvt_pk_bf16_f32 v{tb+9}, v{tb+10}, v{tb+11}")
            a(f"v_add_u32 v{tb+10}, s7, v{T}")
            lab = f"B_nc{irt}{it}"
            a(f"s_cmp_eq_u32 s{stt}, 7\ns_cbranch_scc0 {lab}\nv_mov_b32 v{tb+8}, s72\nv_mov_b32 v{tb+9}, s73")
            a.label(lab)
            for e in range(8): a(f"v_cvt_pk_bf16_f32 v{tb+e}, v{acc+2*e}, v{acc+2*e+1}")
            a(f"""s_mov_b64 exec, s[{S_HI}:{S_HI+1}]
ds_write_b64 v{tb+10}, {vr(tb+8,2)}
v_mov_b32 v{tb+6}, 0
v_mov_b32 v{tb+7}, 0
s_mov_b64 exec, -1
buffer_store_dwordx4 {vr(tb,4)}, v{VL16}, s[{SRD_WS}:{SRD_WS+3}], s6 offen {st}
buffer_store_dwordx4 {vr(tb+4,4)}, v{VL16}, s[{SRD_WS}:{SRD_WS+3}], s6 offen offset:1024 {st}""")
    a(f"""s_lshl_b32 s6, s{S_RB}, 2
s_add_u32 s6, s6, s{S_CG}
s_lshl_b32 s6, s6, 2
s_add_u32 s6, s6, s{S_RH}
s_sub_u32 s7, s{S_J}, 14
s_lshl_b32 s7, s7, 1
s_add_u32 s6, s6, s7
s_lshl_b32 s6, s6, 10
s_add_u32 s6, s6, {KVF}
s_lshl_b32 s7, s{S_CG}, 11
s_waitcnt lgkmcnt(0)
s_barrier
s_cmp_eq_u32 s{S_J}, 14
s_cbranch_scc0 B_vpath
s_lshl_b32 s68, s{S_RH}, 5
s_add_u32 s7, s7, s68
v_lshrrev_b32 v{T+1}, 5, v0
v_lshl_add_u32 v{T}, v{T+1}, 3, v{T}
v_add_u32 v{T}, s7, v{T}
ds_read2_b64 {vr(T+2,4)}, v{T} offset0:0 offset1:2
s_branch B_kvst""")
    a.label("B_vpath")
    a(f"""s_lshl_b32 s68, s{S_RH}, 10
s_add_u32 s7, s7, s68
s_add_u32 s7, s7, {EX+4096}
v_lshrrev_b32 v{T}, 5, v0
v_bfe_u32 v{T+1}, v0, 2, 2
v_lshl_add_u32 v{T}, v{T}, 2, v{T+1}
v_lshlrev_b32 v{T}, 6, v{T}
v_bfe_u32 v{T+1}, v0, 4, 1
v_lshl_add_u32 v{T}, v{T+1}, 5, v{T}
v_and_b32 v{T+1}, 3, v0
v_lshl_add_u32 v{T}, v{T+1}, 3, v{T}
v_add_u32 v{T}, s7, v{T}
ds_read_b64_tr_b16 {vr(T+2,2)}, v{T}
ds_read_b64_tr_b16 {vr(T+4,2)}, v{T} offset:512""")
    a.label("B_kvst")
    a(f"""s_waitcnt lgkmcnt(0)
buffer_store_dwordx4 {vr(T+2,4)}, v{VL16}, s[{SRD_WS}:{SRD_WS+3}], s6 offen {st}""")
    a.label("B_end")

def attention(a, st=""):
    VL16, LB0, LB1, T = 1, 3, 4, 5
    Q, O, S0, P, K, V0, V1 = 8, 16, 32, 64, 72, 80, 88
    S_QT, S_KH, S_KVO, S_WB = 53, 54, 55, 56
    a(f"""s_and_b32 s{S_QT}, s{S_W}, 3
s_lshr_b32 s{S_KH}, s{S_W}, 2
v_lshlrev_b32 v{VL16}, 4, v0
s_lshl_b32 s{S_WB}, s{S_W}, 12
s_lshl_b32 s6, s{S_KH}, 14
v_add_u32 v{LB0}, s6, v{VL16}
v_add_u32 v{LB1}, 65536, v{LB0}
s_lshl_b32 s6, s{S_KH}, 5
s_add_u32 s6, s6, s{S_QT}
s_lshl_b32 s6, s6, 12
s_add_u32 s{S_KVO}, s6, {KVF}
s_lshl_b32 s6, s{S_RB}, 2
s_add_u32 s6, s6, s{S_QT}
s_lshl_b32 s7, s6, 4
s_add_u32 s7, s7, s{S_J}
s_lshl_b32 s7, s7, 11
s_add_u32 s7, s7, {QF}
s_waitcnt lgkmcnt(0)""")
    srd(a, SRD_WS, P_WS, WS_END)
    ws = f"s[{SRD_WS}:{SRD_WS+3}]"
    a(f"buffer_load_dwordx4 {vr(Q,4)}, v{VL16}, {ws}, s7 offen {st}\nbuffer_load_dwordx4 {vr(Q+4,4)}, v{VL16}, {ws}, s7 offen offset:1024 {st}")
    def dma(stage):
        l = [f"s_add_u32 m0, s{S_WB}, {(stage % 4) * 32768}", "s_nop 0" if stage else "s_nop 0"]
        for f in range(4): l.append(f"buffer_load_dwordx4 v{VL16}, {ws}, s{S_KVO} offen offset:{1024*f} {st} lds")
        l.append(f"s_add_u32 s{S_KVO}, s{S_KVO}, 16384")
        return l
    for s in range(3):
        for l in dma(s): a(l)
    def rd(dst, tile, f):
        stg = tile // 4; sl = stg % 4
        base = LB0 if sl < 2 else LB1
        return f"ds_read_b128 {vr(dst,4)}, v{base} offset:{(sl & 1) * 32768 + (tile % 4) * 4096 + f * 1024}"
    a("s_waitcnt vmcnt(8)\ns_barrier")
    stamp(a)
    a(rd(K, 0, 0)); a(rd(K + 4, 0, 1)); a(rd(V0, 0, 2))
    a("s_waitcnt lgkmcnt(1)")
    a(mfma(S0, K, Q, "0")); a(mfma(S0, K + 4, Q + 4))
    a(rd(K, 1, 0)); a(rd(K + 4, 1, 1))
    a("s_nop 9")
    NT = 32
    for i in range(NT):
        sc = S0 + 16 * (i & 1); sn = S0 + 16 * ((i + 1) & 1)
        v0c = V0 + 4 * (i & 1); v0n = V0 + 4 * ((i + 1) & 1)
        E = lambda r: f"v_exp_f32 v{r}, v{r}"
        C = lambda d, r: f"v_cvt_pk_bf16_f32 v{d}, v{r}, v{r+1}"
        def g(k): return [E(sc + 4*k + q) for q in range(4)] + [C(P + 2*k, sc + 4*k), C(P + 2*k + 1, sc + 4*k + 2)]
        g0, g1, g2, g3 = g(0), g(1), g(2), g(3)
        seq = g0[:2] + ["s_waitcnt lgkmcnt(0)"]
        if i > 0: seq += [mfma(O, V1, P + 4)]
        seq += [rd(V1, i, 3)]
        seq += g0[2:] + g1[:2]
        if i + 1 < NT: seq += [mfma(sn, K, Q, "0"), rd(v0n, i + 1, 2)] if not (i % 4 == 3) or True else []
        seq += g1[2:] + g2[:2]
        if i + 1 < NT: seq += [mfma(sn, K + 4, Q + 4)]
        extra = []
        if i % 4 == 2 and i + 2 < NT:
            stg = i // 4
            seq += [f"s_waitcnt vmcnt({4 if stg + 2 <= 7 else 0})", "s_barrier"]
            if stg + 3 <= 7: extra = dma(stg + 3)
        if i + 2 < NT: seq += [g2[2], rd(K, i + 2, 0), g2[3], rd(K + 4, i + 2, 1)] + g2[4:]
        else: seq += g2[2:] + ["s_nop 0"]
        seq += g3[:2] + [mfma(O, v0c, P, "0" if i == 0 else None)]
        seq += extra[:3] + g3[2:4] + extra[3:] + g3[4:]
        for l in seq: a(l)
    a("s_waitcnt lgkmcnt(0)\ns_nop 0")
    a(mfma(O, V1, P + 4))
    stamp(a)
    a(f"""s_barrier
v_add_u32 v{T}, s{S_WB}, v{VL16}
s_xor_b32 s6, s{S_WB}, 16384
s_lshl_b32 s7, s{S_KH}, 11
v_add_u32 v{T+1}, s7, v{T}
v_xor_b32 v{T+2}, 16384, v{T+1}
v_or_b32 v{LB0}, 32, v0
v_lshlrev_b32 v{LB0}, 4, v{LB0}
v_add_u32 v{LB0}, s{S_WB}, v{LB0}
v_xor_b32 v{LB1}, 16384, v{LB0}
s_nop 3""")
    for q in range(4): a(f"ds_write_b128 v{T}, {vr(O+4*q,4)} offset:{1024*q}")
    a(f"""s_waitcnt lgkmcnt(0)
s_barrier
ds_read_b32 v{P}, v{LB0} offset:3072
ds_read_b32 v{P+1}, v{LB1} offset:3072
ds_read_b128 {vr(S0,4)}, v{T+1}
ds_read_b128 {vr(S0+4,4)}, v{T+1} offset:1024
ds_read_b128 {vr(S0+8,4)}, v{T+2}
ds_read_b128 {vr(S0+12,4)}, v{T+2} offset:1024
s_lshl_b32 s6, s{S_RB}, 2
s_add_u32 s6, s6, s{S_QT}
s_mul_i32 s6, s6, 144
s_lshl_b32 s7, s{S_J}, 1
s_add_u32 s6, s6, s7
s_add_u32 s6, s6, s{S_KH}
s_add_u32 s6, s6, 112
s_lshl_b32 s6, s6, 10
s_waitcnt lgkmcnt(4)
v_add_f32 v{P}, v{P}, v{P+1}
v_rcp_f32 v{P}, v{P}
s_waitcnt lgkmcnt(0)""")
    for e in range(8): a(f"v_add_f32 v{S0+e}, v{S0+e}, v{S0+8+e}")
    for e in range(8): a(f"v_mul_f32 v{S0+e}, v{S0+e}, v{P}")
    for e in range(4): a(f"v_cvt_pk_bf16_f32 v{K+e}, v{S0+2*e}, v{S0+2*e+1}")
    a(f"""s_mov_b32 s60, 0
s_sub_u32 s61, 0, s{S_KH}
s_mov_b64 exec, s[60:61]
s_cbranch_execz A_nz
v_mov_b32 v{K+2}, 0
v_mov_b32 v{K+3}, 0""")
    a.label("A_nz")
    a(f"s_mov_b64 exec, -1\nbuffer_store_dwordx4 {vr(K,4)}, v{VL16}, {ws}, s6 offen {st}")

def final(a, st=""):
    VL16, VO, T = 1, 3, 4
    XR = 8
    ACC = 64; FB = 128
    S_B0, S_B1, S_A = 53, 54, 55
    a(f"""v_lshlrev_b32 v{VL16}, 4, v0
s_and_b32 s6, s{S_J}, 1
s_lshl_b32 s7, s{S_RB}, 1
s_add_u32 s6, s6, s7
s_lshr_b32 s7, s{S_J}, 1
s_mul_i32 s56, s{S_W}, 18
s_mul_i32 s{S_B0}, s6, 288
s_add_u32 s{S_B0}, s{S_B0}, s56
s_lshl_b32 s{S_B0}, s{S_B0}, 10
s_add_u32 s{S_B1}, s{S_B0}, {144*1024}
s_mul_i32 s{S_A}, s7, 144
s_add_u32 s{S_A}, s{S_A}, s56
s_lshl_b32 s{S_A}, s{S_A}, 11
s_add_u32 s{S_A}, s{S_A}, {W2T}
s_lshl_b32 s57, s{S_W}, 3
s_lshl_b32 s6, s6, 6
s_add_u32 s6, s6, s57
v_lshrrev_b32 v{T}, 3, v0
v_add_u32 v{T}, s6, v{T}
v_mul_u32_u24 v{T}, 896, v{T}
v_and_b32 v{T+1}, 7, v0
v_lshl_add_u32 v{T}, v{T+1}, 4, v{T}
s_lshl_b32 s7, s7, 7
v_add_u32 v{VO}, s7, v{T}
s_waitcnt lgkmcnt(0)""")
    srd(a, SRD_WS, P_WS, WS_END); srd(a, SRD_X, P_X, 2048 * 896); srd(a, SRD_OUT, P_OUT, 2048 * 896)
    ws = f"s[{SRD_WS}:{SRD_WS+3}]"
    a(f"buffer_load_dwordx4 {vr(XR,4)}, v{VO}, s[{SRD_X}:{SRD_X+3}], 0 offen")
    def loads(k):
        b = FB + 16 * (k % 4)
        l = [f"buffer_load_dwordx4 {vr(b,4)}, v{VL16}, {ws}, s{S_A} offen {st}",
             f"buffer_load_dwordx4 {vr(b+4,4)}, v{VL16}, {ws}, s{S_A} offen offset:1024 {st}",
             f"buffer_load_dwordx4 {vr(b+8,4)}, v{VL16}, {ws}, s{S_B0} offen {st}",
             f"buffer_load_dwordx4 {vr(b+12,4)}, v{VL16}, {ws}, s{S_B1} offen {st}",
             f"s_add_u32 s{S_A}, s{S_A}, 2048", f"s_add_u32 s{S_B0}, s{S_B0}, 1024", f"s_add_u32 s{S_B1}, s{S_B1}, 1024"]
        return l
    NK = 18
    for k in range(3):
        for l in loads(k): a(l)
    for k in range(NK):
        if k + 3 < NK:
            for l in loads(k + 3): a(l)
        a(f"s_waitcnt vmcnt({4 * min(3, NK - 1 - k)})")
        if k == 0: stamp(a)
        b = FB + 16 * (k % 4)
        for r2 in range(2):
            for d2 in range(2):
                a(mfma(ACC + 32*r2 + 16*d2, b + 4*d2, b + 8 + 4*r2, "0" if k == 0 else None))
    stamp(a)
    a(f"""v_and_b32 v{T}, 31, v0
v_lshrrev_b32 v{T+1}, 5, v0
v_and_b32 v{T+2}, 7, v0
v_xor_b32 v{T+1}, v{T+1}, v{T+2}
v_lshlrev_b32 v{T+1}, 4, v{T+1}
v_lshl_add_u32 v{T}, v{T}, 8, v{T+1}
s_lshl_b32 s6, s{S_W}, 14
v_add_u32 v{T}, s6, v{T}""")
    for q in range(1, 4): a(f"v_xor_b32 v{12+q}, {q*32}, v{T}")
    a(f"v_mov_b32 v12, v{T}\ns_nop 3")
    for r2 in range(2):
        for d2 in range(2):
            for q in range(4):
                a(f"ds_write_b128 v{12+q}, {vr(ACC+32*r2+16*d2+4*q,4)} offset:{r2*8192 + d2*128}")
    a(f"""v_lshrrev_b32 v{T}, 3, v0
v_and_b32 v{T+1}, 7, v0
v_lshlrev_b32 v{T+1}, 1, v{T+1}
v_xor_b32 v{T+1}, v{T+1}, v{T}
v_lshlrev_b32 v{T+1}, 4, v{T+1}
v_lshl_add_u32 v{T}, v{T}, 8, v{T+1}
s_lshl_b32 s6, s{S_W}, 11
v_add_u32 v{T}, s6, v{T}
v_xor_b32 v{T+1}, 16, v{T}
v_add_u32 v{T+2}, 65536, v{T}
v_add_u32 v{T+3}, 65536, v{T+1}
s_waitcnt lgkmcnt(0)
s_barrier""")
    for p in range(8):
        b0 = T if p < 4 else T + 2
        a(f"ds_read_b128 {vr(ACC+8*p,4)}, v{b0} offset:{(p&3)*16384}\nds_read_b128 {vr(ACC+8*p+4,4)}, v{b0+1} offset:{(p&3)*16384}")
    for e in range(4):
        a(f"v_lshlrev_b32 v{16+2*e}, 16, v{XR+e}\nv_and_b32 v{17+2*e}, 0xffff0000, v{XR+e}")
    for p in range(8):
        a(f"s_waitcnt lgkmcnt({min(15, 14 - 2*p)})")
        for e in range(8): a(f"v_add_f32 v{16+e}, v{16+e}, v{ACC+8*p+e}")
    for e in range(4): a(f"v_cvt_pk_bf16_f32 v{XR+e}, v{16+2*e}, v{17+2*e}")
    a(f"buffer_store_dwordx4 {vr(XR,4)}, v{VO}, s[{SRD_OUT}:{SRD_OUT+3}], 0 offen")

def build():
    hdr = open("cdna_kernels/" + NAME + ".s.ref").read().split("; Override launch")[0]
    out = hdr
    out += "; @launch kernel=kb_kernel grid=(256,1,1) block=(512,1,1) lds=147456\n"
    out += "; @launch kernel=ka_kernel grid=(256,1,1) block=(512,1,1) lds=131072\n"
    out += "; @launch kernel=kf_kernel grid=(256,1,1) block=(512,1,1) lds=131072\n"
    out += '.amdgcn_target "amdgcn-amd-amdhsa--gfx950"\n.text\n'
    probs = []
    kid = 0
    for name, fn, nv in (("kb_kernel", phaseB, 128), ("ka_kernel", attention, 96), ("kf_kernel", final, 192)):
        a = Asm()
        head(a, name, 256, name + "_end")
        if fn is final: a(f"s_cmp_ge_u32 s{S_J}, 14\ns_cbranch_scc1 {name}_end")
        fn(a)
        stamp_end(a, kid); kid += 1
        a.label(name + "_end")
        a("s_endpgm")
        probs += check_hazards(a.lines, name)
        out += a.text() + desc(name, nv)
    return out, probs

if __name__ == "__main__":
    import os
    STAMPS = bool(os.environ.get("STAMPS"))
    out, probs = build()
    for p in probs: print("HAZARD", p, file=sys.stderr)
    open(sys.argv[1] if len(sys.argv) > 1 else "cdna_kernels/" + NAME + ".s", "w").write(out)
```

```python
import re

class Asm:
    def __init__(self):
        self.lines = []
    def __call__(self, s, *a):
        for l in s.strip("\n").split("\n"):
            l = l.strip()
            if l:
                self.lines.append("    " + l if not l.endswith(":") else l)
    def label(self, l):
        self.lines.append(l + ":")
    def raw(self, s):
        self.lines.append(s)
    def text(self):
        return "\n".join(self.lines) + "\n"

def vr(b, n=1):
    return f"v{b}" if n == 1 else f"v[{b}:{b+n-1}]"
def sr(b, n=1):
    return f"s{b}" if n == 1 else f"s[{b}:{b+n-1}]"

_REG = re.compile(r"\b([vsa])(\d+)\b|\b([vsa])\[(\d+):(\d+)\]")
def regs_in(tok):
    out = set()
    for m in _REG.finditer(tok):
        if m.group(1):
            out.add((m.group(1), int(m.group(2))))
        else:
            for i in range(int(m.group(4)), int(m.group(5)) + 1):
                out.add((m.group(3), i))
    if re.search(r"\bvcc\b", tok): out.add(("s", "vcc"))
    if re.search(r"\bm0\b", tok): out.add(("s", "m0"))
    if re.search(r"\bexec\b", tok): out.add(("s", "exec"))
    return out

TRANS = ("v_exp_f32", "v_log_f32", "v_rcp_f32", "v_rsq_f32", "v_sqrt_f32", "v_sin_f32", "v_cos_f32")
def parse(line):
    line = line.split(";")[0].strip()
    if not line or line.endswith(":") or line.startswith("."):
        return None
    parts = line.split(None, 1)
    op = parts[0]
    ops = [o.strip() for o in re.split(r",(?![^\[]*\])", parts[1])] if len(parts) > 1 else []
    d = dict(op=op, ops=ops, w=set(), r=set(), text=line)
    allr = lambda lst: set().union(*[regs_in(o) for o in lst]) if lst else set()
    base = op.replace("_e32", "").replace("_e64", "")
    d["base"] = base
    if op.startswith("v_mfma"):
        d["k"] = "mfma"; d["w"] = regs_in(ops[0]); d["ab"] = regs_in(ops[1]) | regs_in(ops[2]); d["c"] = regs_in(ops[3]); d["r"] = d["ab"] | d["c"]
        d["passes"] = 8 if "32x32" in op else 2 if "4x4x4" in op else 4
    elif op.startswith("v_cmp"):
        d["k"] = "valu"; d["w"] = regs_in(ops[0]); d["r"] = allr(ops[1:])
        if op.startswith("v_cmpx"): d["w"].add(("s", "exec"))
    elif op.startswith("v_permlane"):
        d["k"] = "valu"; d["w"] = allr(ops); d["r"] = allr(ops)
    elif op.startswith("v_"):
        d["k"] = "valu"; d["w"] = regs_in(ops[0]); d["r"] = allr(ops[1:])
        if "_co_" in op or base.startswith("v_mad_u64"):
            d["w"] |= regs_in(ops[1]); d["r"] = allr(ops[2:])
        if base.startswith(("v_fmac", "v_dot2c", "v_writelane")) or "sdwa" in op or "dpp" in op: d["r"] |= regs_in(ops[0])
        if base == "v_cndmask_b32" and len(ops) == 3: d["r"].add(("s", "vcc"))
    elif op.startswith("ds_"):
        d["k"] = "ds"
        if op.startswith("ds_read") or "permute" in op or "swizzle" in op or "_rtn" in op:
            d["w"] = regs_in(ops[0]); d["r"] = allr(ops[1:])
        else:
            d["r"] = allr(ops)
    elif op.startswith(("buffer_", "global_")):
        d["k"] = "vmem"
        lds = " lds" in line or "_lds_" in op
        d["lds"] = lds
        if lds:
            d["r"] = allr(ops) | {("s", "m0")}
        elif "load" in op:
            d["w"] = regs_in(ops[0]); d["r"] = allr(ops[1:])
        elif "atomic" in op:
            d["r"] = allr(ops)
            if " sc0" in line: d["w"] = regs_in(ops[0])
        else:
            d["r"] = allr(ops)
            if op.startswith("buffer_store"): d["data"] = regs_in(ops[0])
            elif op.startswith("global_store"): d["data"] = regs_in(ops[1])
            d["wide"] = "x4" in op or "x3" in op
    elif op.startswith("s_"):
        d["k"] = "salu"
        if op in ("s_nop",): d["k"] = "nop"; d["n"] = int(ops[0], 0) + 1
        elif op.startswith(("s_waitcnt", "s_barrier", "s_endpgm", "s_branch", "s_cbranch", "s_sleep", "s_setprio", "s_cmp")):
            d["r"] = allr(ops) if op.startswith("s_cmp") else set()
        else:
            d["w"] = regs_in(ops[0]); d["r"] = allr(ops[1:])
            if "saveexec" in op: d["w"].add(("s", "exec"))
    else:
        raise ValueError("unknown op " + line)
    return d

def isv(r): return r[0] in "va"

def check_hazards(lines, name=""):
    ins = []; labels = {}
    for ln, l in enumerate(lines):
        t = l.strip()
        if t.endswith(":"): labels[t[:-1]] = len(ins)
        p = parse(l)
        if p: p["ln"] = ln; ins.append(p)
    probs = []
    segs = [[]]
    for p in ins:
        segs[-1].append(p)
        if p["op"] in ("s_branch", "s_endpgm"): segs.append([])
    for sg in segs: probs += _scan(sg, name)
    for i, p in enumerate(ins):
        if p["op"].startswith(("s_branch", "s_cbranch")) and p["ops"][0] in labels:
            t = labels[p["ops"][0]]
            pre = []
            j = i
            while j >= 0 and len(pre) < 24:
                if j < i and ins[j]["op"] in ("s_branch", "s_endpgm"): break
                pre.insert(0, ins[j]); j -= 1
            post = []
            j = t
            while j < len(ins) and len(post) < 24:
                post.append(ins[j])
                if ins[j]["op"] in ("s_branch", "s_endpgm"): break
                j += 1
            probs += _scan(pre + post, name + " (taken)")
    return sorted(set(probs))

def _scan(ins, name):
    probs = []
    for i, c in enumerate(ins):
        dist = 0
        j = i - 1
        while j >= 0 and dist < 20:
            p = ins[j]
            need = 0; why = ""
            pk, ck = p["k"], c["k"]
            pw = p["w"]
            def upd(n, w):
                nonlocal need, why
                if n > need: need, why = n, w
            if pk == "valu":
                pv = {r for r in pw if isv(r)}; ps = {r for r in pw if not isv(r)}
                if ck == "mfma" and pv & c["r"]: upd(3 if p["base"].startswith("v_dot") else 2, "valu->mfma")
                if ck == "mfma" and ("s", "exec") in ps: upd(4, "exec->mfma")
                if ck == "vmem" and ps & c["r"]: upd(5, "valu sgpr->vmem")
                if ck == "valu":
                    if c["base"].startswith(("v_readlane", "v_readfirstlane")) and pv & c["r"]: upd(1, "valu->readlane")
                    if c["base"].startswith("v_permlane") and pv & c["r"]: upd(2, "valu->permlane")
                    if "dpp" in c["op"] and pv & c["r"]: upd(2, "valu->dpp")
                    if ps & c["r"]: upd(2, "valu sgpr->valu")
                    if p["base"] in TRANS and c["base"] not in TRANS and pv & c["r"]: upd(1, "trans->valu")
                    if p["base"].startswith("v_dot") and pv & (c["r"] | c["w"]):
                        if c["base"] != p["base"]: upd(3, "dot->other")
                        else:
                            ab = set().union(*[regs_in(o) for o in c["ops"][1:3]])
                            if pv & ab: upd(3, "dot->dot ab")
                    if "sdwa" in p["op"] and pv & c["r"]: upd(1, "sdwa->valu")
                if ck in ("ds", "vmem") and p["base"].startswith("v_dot") and pv & c["r"]: upd(3, "dot->mem")
                if ck in ("ds", "vmem") and p["base"] in TRANS and pv & c["r"]: upd(1, "trans->mem")
            if pk == "mfma":
                ix = {2: 0, 4: 1, 8: 2}[p["passes"]]
                if ck == "mfma":
                    if pw & c["ab"]: upd((5, 8, 12)[ix], "mfma->mfma ab")
                    if pw & c["c"] and (pw != c["c"] or p["passes"] != c["passes"]): upd((4, 6, 10)[ix], "mfma->mfma c overlap")
                    if pw == c["c"] and ix == 0: upd(2, "2-pass chain")
                    if pw & c["w"] and not (pw & c["c"]) : upd((4, 6, 10)[ix], "mfma waw")
                elif ck in ("valu", "ds", "vmem"):
                    if pw & (c["r"] | c["w"]): upd((5, 8, 12)[ix], "mfma->valu/mem")
                    if ck == "valu" and p["c"] & c["w"]: upd((1, 3, 7)[ix], "mfma srcC war")
            if pk == "salu" and ("s", "m0") in pw and ck == "vmem" and c.get("lds"): upd(1, "m0->dma")
            if pk == "vmem" and p.get("wide") and p.get("data"):
                if p["data"] & c["w"]: upd(2 if ck == "valu" else 1, "store data war")
            if need > dist:
                probs.append(f"{name} line {c['ln']}: '{c['text']}' needs {need} after '{p['text']}' ({why}), has {dist}")
            dist += p.get("n", 1)
            j -= 1
    return probs
```

```python
import sys, os, math, struct
from asmlib import *
X = set(os.environ.get('XFLAGS', '').split(','))
def P(name, default): return int(os.environ.get(name, default))
NAME = "parallel_sum__grouped_kv_mqa__glu_gated_geglu__prompt"
def f2u(x): return struct.unpack("<I", struct.pack("<f", x))[0]

A2F = 0
W2T = 64 * 144 * 1024
QF  = W2T + 7 * 144 * 2048
KVF = QF + 64 * 16 * 2048
FLG = KVF + 64 * 4096
RKV = P("RKV", 16)
F_W  = FLG
F_H  = FLG + 2048
F_O  = FLG + 4096
EPO  = FLG + 6144
F_KV = FLG + 8192
WS_END = F_KV + 256 * RKV
OOB = 0x7ffffff0
P_X, P_WQ, P_WK, P_WV, P_WO, P_BX, P_WG, P_WU, P_WD, P_OUT, P_DBG, P_WS = 8, 10, 12, 14, 16, 18, 20, 22, 24, 26, 28, 30
SRD_X, SRD_WS, SRD_T, SRD_PC = 32, 36, 40, 44
SRD_OUT = SRD_T
S_W, S_RB, S_J = 3, 4, 5
(S_WB, S_MASK, S_XO, S_XO2, S_RT, S_CG, S_MUL, S_T0, S_T1, S_U, S_NON, S_LA, S_LB, S_TO, S_QU) = range(48, 63)
S_HI = 64
S_A, S_B, S_C, S_D, S_E, S_F = 66, 67, 68, 69, 70, 71
S_G, S_H2 = 72, 73
S_CNT = 74
WS = f"s[{SRD_WS}:{SRD_WS+3}]"
SC = "sc1"
STAMPS = bool(os.environ.get("STAMPS"))
STAMP_WS = 200 * 1024 * 1024
SPIN_MAX = 1 << 18

class Em:
    def __init__(s):
        s.a = Asm(); s.q = {'ds': [], 'vm': []}; s.done = {'ds': 0, 'vm': 0}; s.nst = 0; s.uid = 0
    def __call__(s, t): s.a(t)
    def label(s, l): s.a.label(l)
    def ds(s, ins, tag=None): s.a(ins); s.q['ds'].append(tag)
    def vm(s, ins, tag=None): s.a(ins); s.q['vm'].append(tag)
    def _n(s, k, tags, cap):
        idx = -1
        for t in tags:
            ii = [i for i, x in enumerate(s.q[k]) if x == t]
            assert ii, f"tag {t} never issued"
            idx = max(idx, ii[-1])
        if idx < s.done[k]: return None
        n = min(len(s.q[k]) - 1 - idx, cap)
        s.done[k] = len(s.q[k]) - n
        return n
    def wds(s, *tags):
        n = s._n('ds', tags, 15)
        if n is not None: s.a(f"s_waitcnt lgkmcnt({n})")
    def wvm(s, *tags):
        n = s._n('vm', tags, 63)
        if n is not None: s.a(f"s_waitcnt vmcnt({n})")
    def all_ds(s): s.a("s_waitcnt lgkmcnt(0)"); s.done['ds'] = len(s.q['ds'])
    def all_vm(s): s.a("s_waitcnt vmcnt(0)"); s.done['vm'] = len(s.q['vm'])
    def snap(s): return ({k: list(v) for k, v in s.q.items()}, dict(s.done))
    def restore(s, sn): s.q = {k: list(v) for k, v in sn[0].items()}; s.done = dict(sn[1])
    def stamp(s, name=None):
        sel = os.environ.get("STSEL")
        if sel is not None and name is not None and name not in sel.split(","): return
        if sel is None and name is not None and name.startswith("x"): return
        if STAMPS:
            assert s.nst < 10
            s.a(f"s_memtime s[{76+2*s.nst}:{77+2*s.nst}]"); s.nst += 1
            s.all_ds()
    def newlabel(s, p): s.uid += 1; return f"{p}_{s.uid}"

def srd(e, d, p, nbytes):
    e(f"s_mov_b32 s{d}, s{p}\ns_mov_b32 s{d+1}, s{p+1}\ns_mov_b32 s{d+2}, {nbytes}\ns_mov_b32 s{d+3}, 0x00020000")
def mfma(d, A, B, C=None):
    return f"v_mfma_f32_32x32x16_bf16 {vr(d,16)}, {vr(A,4)}, {vr(B,4)}, {vr(d,16) if C is None else C}"
def mfma16(d, A, B, C=None):
    return f"v_mfma_f32_16x16x32_bf16 {vr(d,4)}, {vr(A,4)}, {vr(B,4)}, {vr(d,4) if C is None else C}"

class Side:
    def __init__(s, e): s.e = e; s.q = []
    def add(s, items):
        if isinstance(items, str):
            raw = [l.strip() for l in items.strip().split("\n") if l.strip()]
            items = []
            for l in raw:
                if l.startswith("s_cselect"): items[-1] += "\n" + l
                else: items.append(l)
        s.q += list(items)
    def emit(s, n):
        while n > 0 and s.q:
            it = s.q.pop(0)
            if callable(it): it()
            else: s.e(it)
            n -= 1
    def flush(s): s.emit(1 << 30)

def flag_store(e, addr_lines, nlanes, vt):
    l = e.newlabel("fl")
    e(f"s_cmp_eq_u32 s{S_W}, 0\ns_cbranch_scc0 {l}")
    e(addr_lines)
    e(f"v_mov_b32 v{vt+1}, s{S_NON}\ns_mov_b64 exec, {(1 << nlanes) - 1}\nbuffer_store_dword v{vt+1}, v{vt}, {WS}, 0 offen {SC}\ns_mov_b64 exec, -1")
    e.label(l)

def poll_issue(e, addr_lines, vaddr, vdat, tag):
    e(addr_lines)
    e(f"s_cmp_eq_u32 s{S_W}, 0\ns_cselect_b32 s6, 0, {OOB}\nv_or_b32 v{vaddr}, s6, v{vaddr}")
    e.vm(f"buffer_load_dword v{vdat}, v{vaddr}, {WS}, 0 offen {SC}", tag)

def poll_check(e, vaddr, vdat, tag):
    ok = e.newlabel("pok"); sp = e.newlabel("psp")
    e(f"s_cmp_eq_u32 s{S_W}, 0\ns_cbranch_scc0 {ok}")
    dn = dict(e.done); e.wvm(tag); e.done = dn
    e(f"v_cmp_ne_u32 vcc, s{S_NON}, v{vdat}\ns_cbranch_vccz {ok}\ns_mov_b32 s{S_CNT}, {SPIN_MAX}")
    e.label(sp)
    e(f"""s_sleep {P('SLEEP', 4)}
buffer_load_dword v{vdat}, v{vaddr}, {WS}, 0 offen {SC}
s_sub_u32 s{S_CNT}, s{S_CNT}, 1
s_waitcnt vmcnt(0)
v_cmp_ne_u32 vcc, s{S_NON}, v{vdat}
s_cmp_eq_u32 s{S_CNT}, 0
s_cbranch_scc1 {ok}
s_cbranch_vccnz {sp}""")
    e.label(ok)

RING = 32768
L_W2T = 131072
L_CSA = L_W2T + 8192
L_CSB = L_CSA + 2048
L_ST  = L_CSB + 2048
L_KVB = L_ST + 4096
L_FLG = L_KVB + 4096
LDS_BYTES = L_FLG + 256

VL16, VT, VX, GA, GS = 1, 2, 3, 4, 6
XA, WA = 8, 12
ST, SEL, CSA, WF, TM = 20, 24, 28, 36, 60
ACCA, ACCB, XR, G = 64, 96, 128, 240
SQA, SQB, TP = 60, 240, 248
WB, GB = 250, 254
R_, S_, AC, BC, I2 = 8, 9, 10, 11, 7
BEXT = 60

def prologue(e):
    e(f"s_cmp_ge_u32 s2, 256\ns_cbranch_scc1 K_end")
    if STAMPS: e("s_memrealtime s[96:97]")
    e.stamp()
    e("s_load_dwordx16 s[8:23], s[0:1], 0\ns_load_dwordx8 s[24:31], s[0:1], 64")
    e(f"s_getpc_b64 s[{SRD_PC}:{SRD_PC+1}]")
    e.label("K_pc")
    e(f"""s_mov_b32 s{SRD_PC+2}, K_end-K_pc
s_mov_b32 s{SRD_PC+3}, 0x00020000
v_lshlrev_b32 v1, 7, v0""")
    e.vm(f"buffer_load_dword v7, v1, s[{SRD_PC}:{SRD_PC+3}], 0 offen")
    e(f"""v_lshrrev_b32 v1, 6, v0
v_and_b32 v0, 63, v0
v_readfirstlane_b32 s{S_W}, v1
s_and_b32 s6, s2, 7
s_lshr_b32 s7, s2, 3
s_lshr_b32 s{S_RB}, s6, 1
s_lshl_b32 s{S_RB}, s{S_RB}, 2
s_lshr_b32 s{S_A}, s7, 3
s_add_u32 s{S_RB}, s{S_RB}, s{S_A}
s_and_b32 s{S_J}, s6, 1
s_lshl_b32 s{S_J}, s{S_J}, 3
s_and_b32 s{S_A}, s7, 7
s_add_u32 s{S_J}, s{S_J}, s{S_A}""")
    rot = P("ROT", 2)
    if rot == 1: e(f"s_mov_b32 s{S_G}, 0")
    elif rot == 2: e(f"s_xor_b32 s{S_G}, s{S_J}, s{S_RB}\ns_and_b32 s{S_G}, s{S_G}, 1\ns_mul_i32 s{S_G}, s{S_G}, 3")
    elif rot == 4: e(f"s_add_u32 s{S_G}, s{S_J}, s{S_RB}\ns_and_b32 s{S_G}, s{S_G}, 3\ns_lshl_b32 s{S_G}, s{S_G}, 1")
    elif rot == 7: e(f"""s_and_b32 s{S_G}, s{S_RB}, 3
s_lshl_b32 s{S_G}, s{S_G}, 1
s_and_b32 s{S_A}, s{S_J}, 7
s_add_u32 s{S_G}, s{S_G}, s{S_A}
s_cmp_ge_u32 s{S_G}, 7
s_cselect_b32 s{S_A}, 7, 0
s_sub_u32 s{S_G}, s{S_G}, s{S_A}
s_cmp_ge_u32 s{S_G}, 7
s_cselect_b32 s{S_A}, 7, 0
s_sub_u32 s{S_G}, s{S_G}, s{S_A}""")
    T = TM
    e(f"""s_lshl_b32 s{S_XO}, s{S_G}, 7
s_lshl_b32 s{S_WB}, s{S_W}, 10
s_lshl_b32 s6, s{S_RB}, 7
s_lshl_b32 s7, s{S_W}, 3
s_add_u32 s6, s6, s7
v_lshrrev_b32 v{T}, 3, v0
v_add_u32 v{T}, s6, v{T}
v_mul_u32_u24 v{T}, 896, v{T}
s_lshl_b32 s7, s{S_W}, 2
v_lshrrev_b32 v{T+1}, 4, v0
v_add_u32 v{T+2}, s7, v{T+1}
v_xor_b32 v{T+3}, v{T+2}, v0
v_and_b32 v{T+3}, 7, v{T+3}
v_lshl_add_u32 v{VX}, v{T+3}, 4, v{T}
s_lshl_b32 s6, s{S_G}, 6
v_add_u32 v{T+2}, s6, v{T+2}
s_waitcnt lgkmcnt(0)""")
    srd(e, SRD_X, P_X, 2048 * 896)

def dma_x(e, sig, i):
    def f():
        e(f"s_add_u32 m0, s{S_WB}, {(sig % 4) * RING + i * 8192}")
        if i == 0: e("s_nop 0"); so = S_XO
        else: e(f"s_add_u32 s{S_XO2}, s{S_XO}, {64*896}"); so = S_XO2
        e.vm(f"buffer_load_dwordx4 v{VX}, s[{SRD_X}:{SRD_X+3}], s{so} offen lds", f"d{sig}")
    return f
def dma_w(e, sig, off, i):
    def f():
        e(f"s_add_u32 m0, s{S_WB}, {(sig % 4) * RING + off + i * 8192}")
        if i == 0: e(f"s_mov_b32 s{S_MUL}, 1")
        else: e(f"s_add_u32 s{S_XO}, s{S_XO}, 128\ns_cmp_eq_u32 s{S_XO}, 896\ns_cselect_b32 s{S_XO}, 0, s{S_XO}\ns_cselect_b32 s{S_MUL}, -13, 1")
        e.vm(f"global_load_lds_dwordx4 {vr(GA,2)}, off", f"d{sig}")
        e(f"v_mad_i64_i32 {vr(GA,2)}, s[{S_E}:{S_E+1}], v{GS}, s{S_MUL}, {vr(GA,2)}")
    return f
def stage_dmas(e, sig):
    if sig < 7: return [dma_x(e, sig, 0), dma_x(e, sig, 1), dma_w(e, sig, 16384, 0), dma_w(e, sig, 16384, 1)]
    l = []
    if sig == 7: l.append(lambda: e(f"v_mov_b32 v{GA}, v{GB}\nv_mov_b32 v{GA+1}, v{GB+1}\nv_mov_b32 v{GS}, {32*3584}"))
    l += [dma_w(e, sig, 0, 0), dma_w(e, sig, 0, 1)]
    if sig < 10: l += [dma_w(e, sig, 16384, 0), dma_w(e, sig, 16384, 1)]
    return l

def phaseB(e):
    T = TM
    for f in stage_dmas(e, 0)[:2]: f()
    e(f"""s_lshr_b32 s{S_QU}, s{S_J}, 2
s_sub_u32 s{S_LA}, s{S_J}, s{S_QU}
s_lshl_b32 s{S_LA}, s{S_LA}, 1
s_add_u32 s{S_LB}, s{S_LA}, 1
s_add_u32 s6, s{S_QU}, 24
s_and_b32 s7, s{S_J}, 3
s_cmp_eq_u32 s7, 3
s_cselect_b32 s{S_LB}, s6, s{S_LB}""")
    e(f"""v_lshlrev_b32 v{T}, 1, v{T+1}
v_xor_b32 v{T}, v{T}, v0
v_and_b32 v{T+3}, 7, v{T}
v_mul_u32_u24 v{G}, 3584, v{T+2}
v_lshl_add_u32 v{G}, v{T+3}, 4, v{G}
v_and_b32 v{T}, 8, v{T}
v_cmp_eq_u32 vcc, 8, v{T}
v_mov_b32 v{GB}, s{P_WG}
v_mov_b32 v{GB+1}, s{P_WG+1}
v_mov_b32 v{T}, s{P_WU}
v_mov_b32 v{T+3}, s{P_WU+1}
v_cndmask_b32 v{GB}, v{GB}, v{T}, vcc
v_cndmask_b32 v{GB+1}, v{GB+1}, v{T+3}, vcc
v_add_co_u32 v{GB}, vcc, v{GB}, v{G}
s_lshl_b32 s6, s{S_LA}, 7
s_lshl_b32 s{S_A}, s{S_LB}, 7
v_addc_co_u32 v{GB+1}, vcc, 0, v{GB+1}, vcc""")
    e(f"""s_cmp_eq_u32 s7, 3
s_cbranch_scc1 B_qsrc
v_add_co_u32 v{GA}, vcc, s6, v{GB}
v_mov_b32 v{GS}, {32*3584}
s_nop 0
v_addc_co_u32 v{GA+1}, vcc, 0, v{GB+1}, vcc
s_branch B_srcdone""")
    e.label("B_qsrc")
    e(f"""v_lshlrev_b32 v{T}, 2, v{T+1}
v_xor_b32 v{T}, v{T}, v0
v_and_b32 v{T}, 15, v{T}
v_cmp_lt_u32 vcc, 13, v{T}
s_mul_i32 s6, s{S_QU}, 224
v_mul_u32_u24 v{G}, 896, v{T+2}
v_lshl_add_u32 v{G}, v{T}, 4, v{G}
v_add_u32 v{G}, s6, v{G}
s_cmp_lt_u32 s{S_QU}, 2
s_cselect_b32 s{S_B}, s{P_WK}, s{P_WV}
s_cselect_b32 s{S_C}, s{P_WK+1}, s{P_WV+1}
s_bitcmp1_b32 s{S_QU}, 0
s_cselect_b32 s6, 32, 0
s_cselect_b32 s{S_D}, 3, 4
v_and_b32 v{T}, 1, v{T}
v_lshlrev_b32 v{T}, s{S_D}, v{T}
v_mul_u32_u24 v{G+1}, 56, v{T+2}
v_add3_u32 v{G+1}, v{G+1}, v{T}, s6
v_cndmask_b32 v{G}, v{G}, v{G+1}, vcc
v_mov_b32 v{GA}, s{P_WQ}
v_mov_b32 v{GA+1}, s{P_WQ+1}
v_mov_b32 v{T}, s{S_B}
v_mov_b32 v{T+3}, s{S_C}
v_cndmask_b32 v{GA}, v{GA}, v{T}, vcc
v_cndmask_b32 v{GA+1}, v{GA+1}, v{T+3}, vcc
v_mov_b32 v{GS}, {32*896}
v_mov_b32 v{T}, {32*56}
v_cndmask_b32 v{GS}, v{GS}, v{T}, vcc
v_add_co_u32 v{GA}, vcc, v{GA}, v{G}
s_nop 1
v_addc_co_u32 v{GA+1}, vcc, 0, v{GA+1}, vcc""")
    e.label("B_srcdone")
    for f in stage_dmas(e, 0)[2:]: f()
    e(f"""v_add_co_u32 v{GB}, vcc, s{S_A}, v{GB}
s_nop 1
v_addc_co_u32 v{GB+1}, vcc, 0, v{GB+1}, vcc""")
    for f in stage_dmas(e, 1): f()
    srd(e, SRD_WS, P_WS, WS_END)
    e(f"s_mov_b32 s6, {EPO}\ns_load_dword s{S_NON}, s[{P_WS}:{P_WS+1}], s6")
    e(f"""s_and_b32 s{S_RT}, s{S_W}, 3
s_lshr_b32 s{S_CG}, s{S_W}, 2
s_lshl_b32 s{S_T0}, s{S_CG}, 1
s_add_u32 s{S_T1}, s{S_T0}, 1
s_xor_b32 s{S_A}, s{S_RT}, s{S_CG}
s_mov_b32 s{S_MASK}, 0xffff0000
s_mov_b32 s{S_HI}, 0
s_mov_b32 s{S_HI+1}, -1
v_lshlrev_b32 v{VL16}, 4, v0
v_and_b32 v{T}, 31, v0
v_lshrrev_b32 v{T+1}, 5, v0
v_bfe_u32 v{T+2}, v0, 1, 3
v_xor_b32 v{T+2}, v{T+2}, v{T+1}
v_lshlrev_b32 v{T+2}, 4, v{T+2}
v_lshl_add_u32 v{T+2}, v{T}, 7, v{T+2}
s_lshl_b32 s6, s{S_RT}, 12
s_lshl_b32 s{S_B}, s{S_A}, 5
s_or_b32 s6, s6, s{S_B}
v_xor_b32 v{XA}, s6, v{T+2}""")
    for pos in range(1, 4): e(f"v_xor_b32 v{XA+pos}, {pos<<5}, v{XA}")
    e(f"""v_bfe_u32 v{G+1}, v0, 2, 2
v_lshl_add_u32 v{G}, v{T+1}, 3, v{G+1}
v_lshlrev_b32 v{G}, 8, v{G}
s_lshl_b32 s{S_A}, s{S_A}, 12
v_add_u32 v{G}, s{S_A}, v{G}
v_bfe_u32 v{T}, v0, 4, 1
v_and_b32 v{T+1}, 3, v0
v_lshl_add_u32 v{G+2}, v{T}, 2, v{T+1}
v_lshlrev_b32 v{T+1}, 3, v{T+1}
v_lshl_add_u32 v{T}, v{T}, 7, v{T+1}
v_lshlrev_b32 v{T+1}, 5, v{G+1}
v_xor_b32 v{T}, v{T}, v{T+1}
s_lshl_b32 s6, s{S_T0}, 5
v_xor_b32 v{T}, s6, v{T}
v_add_u32 v{WB}, v{T}, v{G}
v_xor_b32 v{WB+1}, 32, v{WB}
v_mov_b32 v{WA}, v{WB}
v_mov_b32 v{WA+4}, v{WB+1}
s_cmp_eq_u32 s7, 3
s_cbranch_scc0 B_rddone
v_cmp_eq_u32 vcc, 7, v{G+2}
v_lshlrev_b32 v{T+1}, 6, v{G+1}""")
    for i, st_ in ((0, S_T0), (1, S_T1)):
        e(f"""s_mul_i32 s6, s{st_}, 56
s_lshl_b32 s{S_B}, s{st_}, 3
s_sub_u32 s{S_B}, 248, s{S_B}
v_lshl_add_u32 v{T}, v{G+2}, 3, s6
v_mov_b32 v{T+2}, s{S_B}
v_cndmask_b32 v{T}, v{T}, v{T+2}, vcc
v_xor_b32 v{T}, v{T}, v{T+1}
v_add_u32 v{WA+4*i}, v{T}, v{G}""")
    e.label("B_rddone")
    for i in range(2):
        for pos in range(1, 4): e(f"v_xor_b32 v{WA+4*i+pos}, {pos<<12}, v{WA+4*i}")
    e(f"""v_bfe_u32 v{T}, v0, 4, 1
v_and_b32 v{T+1}, 15, v0
v_cmp_eq_u32 vcc, v{T}, v{T+1}
v_mov_b32 v{T}, 0x3f803f80
s_nop 0
v_cndmask_b32 v{SEL}, 0, v{T}, vcc
v_mov_b32 v{SEL+1}, v{SEL}
v_mov_b32 v{SEL+2}, v{SEL}
v_mov_b32 v{SEL+3}, v{SEL}""")
    w2t_addr = f"""s_lshl_b32 s{S_U}, s2, 2
s_lshr_b32 s6, s{S_W}, 1
s_add_u32 s{S_U}, s{S_U}, s6
s_min_u32 s{S_U}, s{S_U}, 1007
s_mul_hi_u32 s6, s{S_U}, {(2**32 + 143)//144}
s_mul_i32 s{S_A}, s6, 144
s_sub_u32 s{S_A}, s{S_U}, s{S_A}
s_lshl_b32 s{S_B}, s{S_A}, 4
s_sub_u32 s{S_C}, s{S_A}, 112
s_lshr_b32 s{S_D}, s{S_C}, 1
s_mul_i32 s{S_D}, s{S_D}, 28
s_and_b32 s{S_C}, s{S_C}, 1
s_lshl_b32 s{S_C}, s{S_C}, 4
s_add_u32 s{S_C}, s{S_C}, s{S_D}
s_mov_b32 s{S_D}, {448*896}
s_cmp_lt_u32 s{S_A}, 112
s_cselect_b32 s{S_B}, s{S_B}, s{S_C}
s_cselect_b32 s{SRD_T}, s{P_WD}, s{P_WO}
s_cselect_b32 s{SRD_T+1}, s{P_WD+1}, s{P_WO+1}
s_cselect_b32 s{SRD_T+2}, {1792*896}, s{S_D}
s_mov_b32 s{SRD_T+3}, 0x00020000
s_and_b32 s{S_C}, s{S_W}, 1
s_lshl_b32 s{S_C}, s{S_C}, 3
s_add_u32 s{S_B}, s{S_B}, s{S_C}
s_mul_i32 s{S_B}, s{S_B}, 896
s_lshl_b32 s6, s6, 7
s_add_u32 s{S_TO}, s{S_B}, s6
v_lshrrev_b32 v{TP}, 3, v0
v_mul_u32_u24 v{TP}, 896, v{TP}
v_and_b32 v{TP+1}, 7, v0
v_lshl_add_u32 v{VT}, v{TP+1}, 4, v{TP}"""
    e("s_waitcnt lgkmcnt(0)")
    e(f"s_add_u32 s{S_NON}, s{S_NON}, 1")
    e.wvm("d0")
    e("s_barrier")
    e.stamp("start")

    half = {'x': [0]*4, 'w': [0]*4}
    def reads(gp):
        if gp < 28: sig, sub, pos, reg = gp // 4, 0, gp % 4, 16384
        else:
            g = gp - 28; sig, sub, pos = 7 + g // 8, (g // 4) & 1, g % 4; reg = sub * 16384
        sl = sig % 4; h = sl >> 1; imm = (sl & 1) * RING
        buf = WF + 8 * (gp % 3)
        pre = []
        if 28 <= gp < 32:
            pre = [f"v_xor_b32 v{WA+4*i+pos}, {(pos << 12) | (h << 16)}, v{WB+i}" for i in range(2)]
            half['w'][pos] = h
        elif half['w'][pos] != h:
            pre = [f"v_xor_b32 v{WA+4*i+pos}, 0x10000, v{WA+4*i+pos}" for i in range(2)]
            half['w'][pos] = h
        if gp < 28 and half['x'][pos] != h:
            pre.append(f"v_xor_b32 v{XA+pos}, 0x10000, v{XA+pos}"); half['x'][pos] = h
        out = [(lambda l=l: e(l)) for l in pre]
        if gp < 28: out.append(lambda: e.ds(f"ds_read_b128 {vr(XR+4*gp,4)}, v{XA+pos} offset:{imm}", f"r{gp}"))
        for i in range(2):
            for u in range(2):
                out.append(lambda i=i, u=u: e.ds(f"ds_read_b64_tr_b16 {vr(buf+4*i+2*u,2)}, v{WA+4*i+pos} offset:{imm+reg+u*1024}", f"r{gp}"))
        return out
    def position(gp, side, dmaq, nside, barrier=None):
        p2 = gp >= 28; g = gp - 28 if p2 else gp
        acc = ACCB if p2 else ACCA
        buf = WF + 8 * (gp % 3); xr = XR + 4 * g
        e.wds(f"r{gp}")
        e(mfma(acc, buf, xr, "0" if g == 0 else None))
        if barrier: barrier()
        R = reads(gp + 2) if gp + 2 < 56 else []
        for f in R[:len(R) - 2]: f()
        side.emit((nside + 1) // 2)
        e(mfma(acc + 16, buf + 4, xr, "0" if g == 0 else None))
        for f in R[len(R) - 2:]: f()
        if g % 4 == 0:
            e(mfma16(CSA, SEL, buf, "0" if g == 0 else None))
        if dmaq: dmaq.pop(0)()
        side.emit(nside // 2)
        if g % 4 == 0:
            e(mfma16(CSA + 4, SEL, buf + 4, "0" if g == 0 else None))
    def stats(gp):
        x = XR + 4 * gp; c = lambda r: "0" if gp == 0 else vr(r, 4)
        return [mfma16(ST, SEL, x, c(ST)),
                f"v_mfma_f32_4x4x4_16b_bf16 {vr(SQA,4)}, {vr(x,2)}, {vr(x,2)}, {c(SQA)}\nv_mfma_f32_4x4x4_16b_bf16 {vr(SQB,4)}, {vr(x+2,2)}, {vr(x+2,2)}, {c(SQB)}"]
    def cs_write(dst):
        return [f"v_lshlrev_b32 v{G+8}, 4, v0", f"s_lshl_b32 s6, s{S_T0}, 9", f"s_lshl_b32 s{S_A}, s{S_RT}, 2",
                f"s_add_u32 s6, s6, s{S_A}", f"s_add_u32 s6, s6, {dst}", f"v_add_u32 v{G+8}, s6, v{G+8}",
                lambda: (e("s_mov_b64 exec, 0xffff"),
                         e.ds(f"ds_write_b32 v{G+8}, v{CSA}", "csw"), e.ds(f"ds_write_b32 v{G+8}, v{CSA+1} offset:256", "csw"),
                         e.ds(f"ds_write_b32 v{G+8}, v{CSA+4} offset:512", "csw"), e.ds(f"ds_write_b32 v{G+8}, v{CSA+5} offset:768", "csw"),
                         e("s_mov_b64 exec, -1"))]
    def cs_read(src):
        l = [f"v_and_b32 v{G+8}, 31, v0", f"v_lshlrev_b32 v{G+8}, 4, v{G+8}", f"s_lshl_b32 s6, s{S_T0}, 9", f"s_add_u32 s6, s6, {src}",
             f"v_add_u32 v{G+8}, s6, v{G+8}",
             lambda: e.ds(f"ds_read_b128 {vr(G,4)}, v{G+8}", "csr"), lambda: e.ds(f"ds_read_b128 {vr(G+4,4)}, v{G+8} offset:512", "csr")]
        m = [lambda: e.wds("csr")]
        for i in range(2):
            b = G + 4 * i
            m += [f"v_add_f32 v{b}, v{b}, v{b+1}", f"v_add_f32 v{b+2}, v{b+2}, v{b+3}"]
        for i in range(2): m += [f"v_add_f32 v{G+4*i}, v{G+4*i}, v{G+4*i+2}"]
        for i in range(2): m += [f"v_cvt_pk_bf16_f32 v{G+4*i+1}, v{G+4*i}, v{G+4*i}"]
        for i in range(2): m += [f"v_and_b32 v{G+4*i+1}, s{S_MASK}, v{G+4*i+1}"]
        for i in range(2): m += [f"v_sub_f32 v{G+4*i+1}, v{G+4*i}, v{G+4*i+1}"]
        for i in range(2): m += [f"v_cvt_pk_bf16_f32 v{G+4*i}, v{G+4*i}, v{G+4*i+1}"]
        for i in range(2): m += [f"v_cndmask_b32 v{ST+2*i}, v{G+4*i}, 0, s[{S_HI}:{S_HI+1}]"]
        return l, m

    for f in reads(0) + reads(1): f()
    side = Side(e); dmaq = list(stage_dmas(e, 2))
    w2side = Side(e); w2side.add(w2t_addr)
    for gp in range(28):
        sig, pos = gp // 4, gp % 4
        bar = None
        if pos == 2:
            def bar(sig=sig):
                tags = [f"d{sig+1}"] + (["w2td"] if sig == 2 else []) + (["w2ts"] if sig == 5 else [])
                e.wvm(*tags); e("s_barrier")
                assert not dmaq
                dmaq.extend(stage_dmas(e, sig + 3))
                if sig == 0:
                    dmaq.append(lambda: (e(f"s_add_u32 m0, s{S_WB}, {L_W2T}\ns_nop 0"),
                                         e.vm(f"buffer_load_dwordx4 v{VT}, s[{SRD_T}:{SRD_T+3}], s{S_TO} offen lds", "w2td")))
                if sig == 2:
                    side.add(f"""v_lshrrev_b32 v{TP}, 5, v0
v_bfe_u32 v{TP+1}, v0, 2, 2
v_lshl_add_u32 v{TP}, v{TP}, 2, v{TP+1}
v_lshlrev_b32 v{TP}, 7, v{TP}
v_bfe_u32 v{TP+1}, v0, 4, 1
v_lshl_add_u32 v{TP}, v{TP+1}, 5, v{TP}
v_and_b32 v{TP+1}, 3, v0
v_lshl_add_u32 v{TP}, v{TP+1}, 3, v{TP}
s_lshr_b32 s6, s{S_W}, 1
s_lshl_b32 s6, s6, 11
s_and_b32 s{S_A}, s{S_W}, 1
s_lshl_b32 s{S_B}, s{S_A}, 6
s_add_u32 s6, s6, s{S_B}
s_add_u32 s6, s6, {L_W2T}
v_add_u32 v{TP}, s6, v{TP}""")
                    side.add([lambda: (e.ds(f"ds_read_b64_tr_b16 {vr(G+4,2)}, v{TP}", "w2tr"), e.ds(f"ds_read_b64_tr_b16 {vr(G+6,2)}, v{TP} offset:1024", "w2tr")),
                              f"s_lshl_b32 s6, s{S_U}, 11", f"s_lshl_b32 s{S_A}, s{S_A}, 10", f"s_add_u32 s6, s6, s{S_A}", f"s_add_u32 s{S_TO}, s6, {W2T}"])
                if sig == 3:
                    side.add([lambda: (e.wds("w2tr"), e.vm(f"buffer_store_dwordx4 {vr(G+4,4)}, v{VL16}, {WS}, s{S_TO} offen {SC}", "w2ts"))])
                if sig == 5:
                    flag_store(e, f"""s_mul_hi_u32 s6, s2, {(2**32 + 35)//36}
s_mul_i32 s{S_A}, s6, 28
s_add_u32 s6, s2, s{S_A}
s_lshl_b32 s6, s6, 2
s_add_u32 s6, s6, {F_W}
v_mov_b32 v{TP}, s6""", 1, TP)
        if pos % 2 == 0: side.add(stats(gp))
        if gp == 26: side.add(cs_write(L_CSA))
        n = -(-len(side.q) // (2 - pos % 2)) if gp < 26 else len(side.q) if gp == 27 else 16
        if len(dmaq) > 4 - ((pos + 2) % 4): dmaq.pop(0)()
        if gp in (8, 16): e.stamp(f"xp{gp}")
        w2side.emit(8)
        position(gp, side, dmaq, n, bar)
    side.flush()
    e(f"""v_and_b32 v{TP}, 3, v0
v_cmp_eq_u32 vcc, 1, v{TP}
v_cmp_eq_u32 s[{S_A}:{S_B}], 2, v{TP}
v_cmp_eq_u32 s[{S_C}:{S_D}], 3, v{TP}
s_lshl_b32 s6, s{S_RT}, 1
s_add_u32 s6, s6, s{S_CG}
s_lshl_b32 s6, s6, 8
s_add_u32 s6, s6, {L_ST}
v_lshl_add_u32 v{TP+1}, v0, 2, s6""")
    for k in range(4): e(f"v_add_f32 v{SQA+k}, v{SQA+k}, v{SQB+k}")
    e(f"""v_cndmask_b32 v{SQA}, v{SQA}, v{SQA+1}, vcc
v_cndmask_b32 v{SQA}, v{SQA}, v{SQA+2}, s[{S_A}:{S_B}]
v_cndmask_b32 v{SQA}, v{SQA}, v{SQA+3}, s[{S_C}:{S_D}]""")
    e.ds(f"ds_write_b32 v{TP+1}, v{SQA}", "stw")
    e("s_mov_b64 exec, 0xffff")
    e.ds(f"ds_write_b32 v{TP+1}, v{ST} offset:2048", "stw")
    e.ds(f"ds_write_b32 v{TP+1}, v{ST+1} offset:2112", "stw")
    e("s_mov_b64 exec, -1")
    e.stamp("p1")

    KA = -2.0 * math.log2(math.e) * math.sqrt(2.0 / math.pi); KB = KA * 0.044715
    def gelu(acc, so, tb):
        l = []
        for k in range(8): l.append(f"v_mul_f32 v{tb+k}, v{acc+k}, v{acc+k}")
        for k in range(8): l.append(f"v_fma_f32 v{tb+k}, v{tb+k}, v{BC}, v{AC}")
        for k in range(8): l.append(f"v_mul_f32 v{tb+k}, v{tb+k}, v{acc+k}")
        for k in range(8): l += [f"v_exp_f32 v{tb+k}, v{tb+k}", f"v_mul_f32 v{acc+k}, v{acc+k}, v{acc+8+k}"]
        for k in range(8): l.append(f"v_fma_f32 v{tb+k}, v{tb+k}, v{I2}, v{I2}")
        for k in range(8): l.append(f"v_rcp_f32 v{tb+k}, v{tb+k}")
        for k in range(8): l.append(f"v_mul_f32 v{acc+k}, v{acc+k}, v{tb+k}")
        for k in range(4): l.append(f"v_cvt_pk_bf16_f32 v{acc+8+k}, v{acc+2*k}, v{acc+2*k+1}")
        l.append(lambda: e.vm(f"buffer_store_dwordx4 {vr(acc+8,4)}, v{VL16}, {WS}, s{so} offen {SC}", "hs"))
        return l
    def h_off(line, dst):
        return f"""s_lshl_b32 s6, s{S_RB}, 2
s_add_u32 s6, s6, s{S_RT}
s_mul_i32 s6, s6, 144
s_lshl_b32 s{dst}, s{line}, 2
s_add_u32 s6, s6, s{dst}
s_add_u32 s6, s6, s{S_T0}
s_lshl_b32 s{dst}, s6, 10
s_add_u32 s{dst+1}, s{dst}, 1024"""
    def after_exchange(side):
        l, m = cs_read(L_CSA)
        side.add(l)
        side.add([f"v_and_b32 v{G+9}, 31, v0", f"v_lshlrev_b32 v{G+9}, 2, v{G+9}", f"s_lshl_b32 s6, s{S_RT}, 9", f"s_add_u32 s6, s6, {L_ST}",
                  f"v_add_u32 v{G+9}, s6, v{G+9}",
                  lambda: (e.ds(f"ds_read2_b32 {vr(G+10,2)}, v{G+9} offset0:0 offset1:32", "str"),
                           e.ds(f"ds_read2_b32 {vr(G+12,2)}, v{G+9} offset0:64 offset1:96", "str"),
                           e.ds(f"ds_read2st64_b32 {vr(G+14,2)}, v{G+9} offset0:8 offset1:9", "str")),
                  f"v_mov_b32 v{ST+1}, 0", f"v_mov_b32 v{ST+3}, 0", f"v_mov_b32 v{BEXT+1}, 0", f"v_mov_b32 v{BEXT+2}, 0", f"v_mov_b32 v{BEXT+3}, 0"])
        side.add(m)
        x = G + 10
        side.add([lambda: e.wds("str")])
        side.add(f"""s_mov_b32 s6, {f2u(1.0/448)}
v_add_f32 v{x}, v{x}, v{x+2}
v_add_f32 v{x+1}, v{x+1}, v{x+3}
v_add_f32 v{x+1}, v{x+1}, v{x}
v_add_f32 v{x}, v{x+4}, v{x+5}
v_mul_f32 v{x}, s6, v{x}
v_mul_f32 v{x+1}, s6, v{x+1}
v_cvt_pk_bf16_f32 v{BEXT}, -v{x}, -v{x}
v_fma_f32 v{x+1}, -v{x}, v{x}, v{x+1}
v_max_f32 v{x+1}, 0, v{x+1}""")
        side.add([mfma(ACCA, ST, BEXT)])
        side.add(f"""v_cvt_pk_bf16_f32 v{x+1}, v{x+1}, v{x+1}
v_and_b32 v{x+1}, s{S_MASK}, v{x+1}
v_add_f32 v{x+1}, {f2u(1e-5)}, v{x+1}""")
        side.add([mfma(ACCA + 16, ST + 2, BEXT)])
        side.add(f"""v_cvt_pk_bf16_f32 v{x+1}, v{x+1}, v{x+1}
v_and_b32 v{x+1}, s{S_MASK}, v{x+1}
v_sqrt_f32 v{x+1}, v{x+1}
s_mov_b32 s6, {f2u(KA)}
v_cvt_pk_bf16_f32 v{x+1}, v{x+1}, v{x+1}
v_and_b32 v{S_}, s{S_MASK}, v{x+1}
v_rcp_f32 v{R_}, v{S_}
v_mul_f32 v{I2}, v{S_}, v{S_}
v_mul_f32 v{AC}, s6, v{R_}
v_mul_f32 v{BC}, v{R_}, v{R_}
v_mul_f32 v{BC}, v{BC}, v{AC}
v_mul_f32 v{BC}, {f2u(0.044715)}, v{BC}""")

    def pass2(qfirst):
        side = Side(e); dq = list(dmaq)
        for g in range(28):
            gp = 28 + g
            bar = None
            if g == 1:
                def bar():
                    e.wds("stw", "csw"); e("s_barrier")
                    dq.extend(stage_dmas(e, 10))
                    after_exchange(side)
                    if not qfirst:
                        side.add(h_off(S_LA, S_C))
                        side.add(gelu(ACCA, S_C, G)); side.add(gelu(ACCA + 16, S_D, G))
                    else:
                        qkv_part1(side)
            if g in (6, 14, 22):
                def bar(g=g):
                    if qfirst and g == 6:
                        side.flush(); e.wds("kvw")
                    tags = [f"d{8 + g // 8}"]
                    if qfirst and g == 14: side.flush(); tags += ["qs"]
                    e.wvm(*tags); e("s_barrier")
                    if qfirst and g == 6: qkv_part2(side)
                    if qfirst and g == 14:
                        flag_store(e, f"""s_lshl_b32 s6, s{S_RB}, 2
s_add_u32 s6, s6, s{S_QU}
s_lshl_b32 s6, s6, 2
s_add_u32 s6, s6, {F_KV}
v_lshlrev_b32 v{G}, 8, v0
v_add_u32 v{G}, s6, v{G}""", RKV, G)
            if g == 24:
                poll_issue(e, f"""s_and_b32 s6, s2, {RKV-1}
s_lshl_b32 s6, s6, 8
s_add_u32 s6, s6, {F_KV}
v_lshl_add_u32 v{VX}, v0, 2, s6""", VX, VT, "kvp")
            if g == 25:
                side.flush(); side.add(cs_write(L_CSB))
            if g == 26:
                def bar():
                    side.flush(); e.wds("csw"); e("s_barrier")
                    l, m = cs_read(L_CSB); side.add(l); side.add(m)
            if qfirst: n = 14 if g < 14 else 12
            else: n = -(-len(side.q) // max(1, 25 - g)) if 1 < g < 25 else 12
            if g in (7, 14, 21): e.stamp(f"xg{g}")
            position(gp, side, dq, n, bar)
        side.flush()
        e.stamp("xp2")
        e("s_nop 1")
        e(mfma(ACCB, ST, BEXT)); e(mfma(ACCB + 16, ST + 2, BEXT))
    RQ = 2
    def qkv_part1(side):
        side.add(f"""v_mul_f32 v{RQ}, {f2u(28 ** -0.5 * math.log2(math.e))}, v{R_}
v_and_b32 v{G+8}, 31, v0
v_lshlrev_b32 v{G+8}, 5, v{G+8}
s_lshl_b32 s6, s{S_RT}, 10
s_add_u32 s6, s6, {L_KVB}
v_add_u32 v{G+8}, s6, v{G+8}
s_mov_b32 s{S_D}, 0x00003f80
s_cmp_lt_u32 s{S_QU}, 2
s_cselect_b32 s{S_C}, 0x3f803f80, s{S_D}
s_cselect_b32 s{S_D}, s{S_D}, 0""")
        for i, st_ in ((0, S_T0), (1, S_T1)):
            acc = ACCA + 16 * i; b = G + 4 * i
            for k in range(4): side.add([f"v_mul_f32 v{b+k}, v{acc+12+k}, v{R_}"])
            side.add(f"""s_sub_u32 s6, 3, s{st_}
s_lshl_b32 s{S_A}, s{st_}, 2
s_lshr_b32 s{S_A}, 0x0132, s{S_A}
s_and_b32 s{S_A}, s{S_A}, 3
s_bitcmp1_b32 s{S_QU}, 0
s_cselect_b32 s6, s{S_A}, s6
s_cselect_b32 s{S_A}, s{S_A}, 0
s_lshl_b32 s6, s6, 3
v_cvt_pk_bf16_f32 v{b}, v{b}, v{b+1}
v_cvt_pk_bf16_f32 v{b+1}, v{b+2}, v{b+3}
v_add_u32 v{b+2}, s6, v{G+8}""")
            def wr(b=b):
                l = e.newlabel("nc")
                e(f"s_cmp_eq_u32 s{S_A}, 3\ns_cbranch_scc0 {l}\nv_mov_b32 v{b}, s{S_C}\nv_mov_b32 v{b+1}, s{S_D}")
                e.label(l)
                e(f"s_mov_b64 exec, s[{S_HI}:{S_HI+1}]")
                e.ds(f"ds_write_b64 v{b+2}, {vr(b,2)}", "kvw")
                e("s_mov_b64 exec, -1")
            side.add([wr])
    def qkv_part2(side):
        def kv():
            l = e.newlabel("kvs"); lv = e.newlabel("kvv"); ls = e.newlabel("kvt")
            e(f"""s_cmp_eq_u32 s{S_CG}, 0
s_cbranch_scc0 {l}
s_lshl_b32 s6, s{S_RB}, 2
s_add_u32 s6, s6, s{S_RT}
s_lshl_b32 s6, s6, 12
s_add_u32 s6, s6, {KVF}
s_lshl_b32 s{S_A}, s{S_RT}, 10
s_add_u32 s{S_A}, s{S_A}, {L_KVB}
s_cmp_lt_u32 s{S_QU}, 2
s_cbranch_scc0 {lv}
v_and_b32 v{G}, 31, v0
v_lshrrev_b32 v{G+1}, 5, v0
v_lshlrev_b32 v{G}, 5, v{G}
v_lshl_add_u32 v{G}, v{G+1}, 3, v{G}
v_add_u32 v{G}, s{S_A}, v{G}
ds_read2_b64 {vr(G+4,4)}, v{G} offset0:0 offset1:2
s_lshl_b32 s{S_A}, s{S_QU}, 10
s_add_u32 s6, s6, s{S_A}
v_mov_b32 v{G+2}, v{VL16}
s_branch {ls}""")
            e.label(lv)
            e(f"""v_lshrrev_b32 v{G}, 5, v0
v_bfe_u32 v{G+1}, v0, 4, 1
v_lshlrev_b32 v{G+2}, 10, v{G}
v_lshl_add_u32 v{G+2}, v{G+1}, 9, v{G+2}
v_lshlrev_b32 v{G}, 4, v{G}
v_lshl_add_u32 v{G}, v{G+1}, 2, v{G}
v_bfe_u32 v{G+1}, v0, 2, 2
v_add_u32 v{G}, v{G}, v{G+1}
v_lshlrev_b32 v{G}, 5, v{G}
v_and_b32 v{G+1}, 3, v0
v_lshl_add_u32 v{G}, v{G+1}, 3, v{G}
v_add_u32 v{G}, s{S_A}, v{G}
ds_read_b64_tr_b16 {vr(G+4,2)}, v{G}
ds_read_b64_tr_b16 {vr(G+6,2)}, v{G} offset:256
v_and_b32 v{G+1}, 15, v0
v_lshl_add_u32 v{G+2}, v{G+1}, 4, v{G+2}
s_and_b32 s{S_A}, s{S_QU}, 1
s_lshl_b32 s{S_A}, s{S_A}, 8
s_add_u32 s6, s6, s{S_A}
s_add_u32 s6, s6, 2048""")
            e.label(ls)
            e(f"s_waitcnt lgkmcnt(0)\nbuffer_store_dwordx4 {vr(G+4,4)}, v{G+2}, {WS}, s6 offen {SC}")
            e.label(l)
        side.add([kv])
        side.add(f"""s_lshl_b32 s6, s{S_RB}, 2
s_add_u32 s6, s6, s{S_RT}
s_lshl_b32 s6, s6, 2
s_add_u32 s6, s6, s{S_QU}
s_lshl_b32 s6, s6, 2
s_add_u32 s6, s6, s{S_T0}
s_lshl_b32 s6, s6, 11
s_add_u32 s{S_C}, s6, {QF}""")
        for i in range(2):
            acc = ACCA + 16 * i
            for k in range(16): side.add([f"v_mul_f32 v{acc+k}, v{acc+k}, v{RQ}"])
            for k in range(8): side.add([f"v_cvt_pk_bf16_f32 v{acc+k}, v{acc+2*k}, v{acc+2*k+1}"])
            side.add([f"v_cndmask_b32 v{acc+6}, v{acc+6}, 0, s[{S_HI}:{S_HI+1}]", f"v_cndmask_b32 v{acc+7}, v{acc+7}, 0, s[{S_HI}:{S_HI+1}]",
                      lambda acc=acc, i=i: e.vm(f"buffer_store_dwordx4 {vr(acc,4)}, v{VL16}, {WS}, s{S_C} offen offset:{2048*i} {SC}", "qs"),
                      lambda acc=acc, i=i: e.vm(f"buffer_store_dwordx4 {vr(acc+4,4)}, v{VL16}, {WS}, s{S_C} offen offset:{2048*i+1024} {SC}", "qs")])
    e(f"s_and_b32 s6, s{S_J}, 3\ns_cmp_eq_u32 s6, 3\ns_cbranch_scc1 B_p2q")
    sn = e.snap(); hs = {k: list(v) for k, v in half.items()}; ns = e.nst
    pass2(False)
    e("s_branch B_join")
    e.label("B_p2q")
    e.nst = ns
    e.restore(sn); half.update({k: list(v) for k, v in hs.items()})
    pass2(True)
    e.label("B_join")
    e.q = {'ds': [], 'vm': ['kvp']}; e.done = {'ds': 0, 'vm': 0}
    e.stamp("join")
    return gelu, h_off

LB0, LB1, VO = 3, 4, 5
Q, O, S0, PP, K, V0, V1 = 36, 44, 64, 96, 104, 112, 120
FA, FB = 128, 192
XRES = 244
S_KH, S_QT, S_KVO, S_WB4, S_FA, S_FB0, S_FB1, S_OO = 50, 51, 54, 55, 56, 57, 59, 60
F0 = P("F0", 8)

def kv_dma(e, st):
    l = [lambda: e(f"s_add_u32 m0, s{S_WB4}, {((st + 3) % 4) * RING}\ns_nop 0")]
    for f in range(4):
        l.append(lambda f=f: e.vm(f"buffer_load_dwordx4 v{VL16}, {WS}, s{S_KVO} offen offset:{1024*f} {SC} lds", f"k{st}"))
    l.append(lambda: e(f"s_add_u32 s{S_KVO}, s{S_KVO}, 16384"))
    return l

def f_loads(e, q):
    b = FB + 16 * (q % 3)
    return [lambda: e.vm(f"buffer_load_dwordx4 {vr(b,4)}, v{VL16}, {WS}, s{S_FA} offen offset:{(q&1)*2048} {SC}", f"f{q}"),
            lambda: e.vm(f"buffer_load_dwordx4 {vr(b+8,4)}, v{VL16}, {WS}, s{S_FB0} offen offset:{(q&3)*1024} {SC}", f"f{q}"),
            lambda: (e.vm(f"buffer_load_dwordx4 {vr(b+4,4)}, v{VL16}, {WS}, s{S_FA} offen offset:{(q&1)*2048+1024} {SC}", f"f{q}"),
                     e(f"s_add_u32 s{S_FA}, s{S_FA}, 4096") if q & 1 else None),
            lambda: (e.vm(f"buffer_load_dwordx4 {vr(b+12,4)}, v{VL16}, {WS}, s{S_FB1} offen offset:{(q&3)*1024} {SC}", f"f{q}"),
                     e(f"s_add_u32 s{S_FB0}, s{S_FB0}, 4096\ns_add_u32 s{S_FB1}, s{S_FB1}, 4096") if (q & 3) == 3 else None)]
def f_mfma(q, k):
    b = FB + 16 * (q % 3); r2, d2 = ((0, 0), (0, 1), (1, 1), (1, 0))[k]
    return mfma(FA + 32*r2 + 16*d2, b + 4*d2, b + 8 + 4*r2, "0" if q == 0 else None)

def attn_setup(e, gelu, h_off):
    e(h_off(S_LB, S_C))
    e(f"""s_mov_b32 s{S_QT}, s{S_RT}
s_mov_b32 s{S_KH}, s{S_CG}
s_lshl_b32 s{S_WB4}, s{S_W}, 12
s_lshl_b32 s6, s{S_KH}, 5
s_add_u32 s6, s6, s{S_QT}
s_lshl_b32 s6, s6, 12
s_add_u32 s{S_KVO}, s6, {KVF}
s_lshl_b32 s6, s{S_RB}, 2
s_add_u32 s6, s6, s{S_QT}
s_lshl_b32 s7, s6, 4
s_add_u32 s7, s7, s{S_J}
s_lshl_b32 s7, s7, 11
s_add_u32 s7, s7, {QF}""")
    g0 = gelu(ACCB, S_C, G); g1 = gelu(ACCB + 16, S_D, G)
    nfirst = P("GFIRST", 0)
    both = g0 + g1
    for it in both[:nfirst]: it() if callable(it) else e(it)
    poll_check(e, VX, VT, "kvp")
    e("s_barrier")
    e.stamp("xkv")
    for f in kv_dma(e, 0): f()
    e.vm(f"buffer_load_dwordx4 {vr(Q,4)}, v{VL16}, {WS}, s7 offen {SC}", "q")
    e.vm(f"buffer_load_dwordx4 {vr(Q+4,4)}, v{VL16}, {WS}, s7 offen offset:1024 {SC}", "q")
    side = Side(e); side.add(kv_dma(e, 1)); side.add(kv_dma(e, 2))
    for n, it in enumerate(both[nfirst:]):
        it() if callable(it) else e(it)
        if n % 4 == 3: side.emit(1)
    side.flush()
    e(f"""s_lshl_b32 s6, s{S_KH}, 14
v_add_u32 v{LB0}, s6, v{VL16}
v_add_u32 v{LB1}, 0x10000, v{LB0}
s_lshl_b32 s6, s{S_RB}, 2
s_add_u32 s6, s6, s{S_QT}
s_mul_i32 s6, s6, 144
s_lshl_b32 s7, s{S_J}, 1
s_add_u32 s6, s6, s7
s_add_u32 s6, s6, s{S_KH}
s_add_u32 s6, s6, 112
s_lshl_b32 s{S_OO}, s6, 10""")

def rd(e, dst, tile, f, tag):
    sl = (tile // 4 + 3) % 4
    e.ds(f"ds_read_b128 {vr(dst,4)}, v{LB0 if sl < 2 else LB1} offset:{(sl & 1) * RING + (tile % 4) * 4096 + f * 1024}", tag)

def attn_loop(e, withF):
    e.wvm("k0", "q"); e("s_barrier")
    e.stamp("astart")
    rd(e, K, 0, 0, "a"); rd(e, K + 4, 0, 1, "a"); rd(e, V0, 0, 2, "b")
    e.wds("a")
    e(mfma(S0, K, Q, "0")); e(mfma(S0, K + 4, Q + 4))
    rd(e, K, 1, 0, "b"); rd(e, K + 4, 1, 1, "b")
    if withF:
        e(f"""s_lshr_b32 s6, s{S_J}, 3
s_lshl_b32 s7, s{S_RB}, 1
s_add_u32 s6, s6, s7
s_and_b32 s7, s{S_J}, 7
s_mul_i32 s{S_A}, s{S_W}, 14
s_mul_i32 s{S_FB0}, s6, 288
s_add_u32 s{S_FB0}, s{S_FB0}, s{S_A}
s_lshl_b32 s{S_FB0}, s{S_FB0}, 10
s_add_u32 s{S_FB1}, s{S_FB0}, {144*1024}
s_mul_i32 s{S_FA}, s7, 144
s_add_u32 s{S_FA}, s{S_FA}, s{S_A}
s_lshl_b32 s{S_FA}, s{S_FA}, 11
s_add_u32 s{S_FA}, s{S_FA}, {W2T}""")
    else:
        e("s_nop 9")
    NT = 32
    fq = []
    nq = 0
    for i in range(NT):
        sc = S0 + 16 * (i & 1); sn = S0 + 16 * ((i + 1) & 1)
        v0c = V0 + 4 * (i & 1); v0n = V0 + 4 * ((i + 1) & 1)
        E = lambda r: f"v_exp_f32 v{r}, v{r}"
        C = lambda d, r: f"v_cvt_pk_bf16_f32 v{d}, v{r}, v{r+1}"
        def g(k): return [E(sc + 4*k + q) for q in range(4)] + [C(PP + 2*k, sc + 4*k), C(PP + 2*k + 1, sc + 4*k + 2)]
        g0, g1, g2, g3 = g(0), g(1), g(2), g(3)
        fm = [None, None]; fl = []
        if withF:
            if i == F0 - 4:
                assert (F0 - 2) % 4 == 2
                fl = [lambda: poll_issue(e, f"""s_lshl_b32 s6, s{S_RB}, 7
s_add_u32 s6, s6, {F_H}
s_and_b32 s7, s{S_J}, 7
s_lshl_b32 s7, s7, 8
s_add_u32 s7, s7, {F_W - 64}
v_lshl_add_u32 v{G}, v0, 2, s6
v_lshl_add_u32 v{G+1}, v0, 2, s7
v_cmp_lt_u32 vcc, 15, v0
v_mov_b32 v{G+2}, s6
s_nop 0
v_cndmask_b32 v{G}, v{G}, v{G+1}, vcc
v_cmp_lt_u32 vcc, 51, v0
s_nop 1
v_cndmask_b32 v{G}, v{G}, v{G+2}, vcc""", G, G + 1, "hp")]
            if i == F0 - 2: fl = [lambda: None] + f_loads(e, 0)
            if i == F0 - 1: fl = f_loads(e, 1)
            if i >= F0:
                q = (i - F0) // 2; h = (i - F0) & 1
                fm = [f_mfma(q, 2*h), f_mfma(q, 2*h + 1)]
                if h == 0 and q + 2 < 14: fq = f_loads(e, q + 2)
                fl = fq[:2]; fq = fq[2:]
                nq = q + 1
        def em(x): x() if callable(x) else e(x)
        if i in (4, 8, 16, 24): e.stamp(f"xa{i}")
        for x in g0[:2]: em(x)
        e.all_ds()
        if i > 0: e(mfma(O, V1, PP + 4))
        rd(e, V1, i, 3, "c")
        for x in g0[2:5]: em(x)
        if fm[0]:
            if (i - F0) & 1 == 0: e.wvm(f"f{(i - F0) // 2}")
            e(fm[0])
        for x in g0[5:] + g1[:2]: em(x)
        if i + 1 < NT: e(mfma(sn, K, Q, "0")); rd(e, v0n, i + 1, 2, "c")
        for x in g1[2:4]: em(x)
        if fl: em(fl.pop(0))
        for x in g1[4:] + g2[:2]: em(x)
        if i + 1 < NT: e(mfma(sn, K + 4, Q + 4))
        extra = []
        if i % 4 == 2 and i + 2 < NT:
            st = i // 4
            if withF and i == F0 - 2: poll_check(e, G, G + 1, "hp")
            e.wvm(*([f"k{st+1}"] + (["hs"] if i == 2 else []))); e("s_barrier")
            if i == 2:
                flag_store(e, f"""s_lshl_b32 s6, s{S_RB}, 5
s_add_u32 s6, s6, s{S_J}
s_lshl_b32 s6, s6, 2
s_add_u32 s6, s6, {F_H}
v_mov_b32 v{G}, s6""", 1, G)
            if st + 3 <= 7: extra = kv_dma(e, st + 3)
        em(g2[2])
        if i + 2 < NT: rd(e, K, i + 2, 0, "c")
        em(g2[3])
        if i + 2 < NT: rd(e, K + 4, i + 2, 1, "c")
        else: e("s_nop 0")
        em(g2[4])
        if fm[1]: e(fm[1])
        for x in g2[5:] + g3[:2]: em(x)
        e(mfma(O, v0c, PP, "0" if i == 0 else None))
        rest = extra + fl
        for x in rest[:3]: em(x)
        for x in g3[2:4]: em(x)
        for x in rest[3:]: em(x)
        for x in g3[4:]: em(x)
    e.all_ds()
    e("s_nop 0")
    e(mfma(O, V1, PP + 4))
    return nq, fq

def attn_finish(e):
    T = G
    e.stamp("aend")
    e(f"""s_barrier
v_add_u32 v{T}, s{S_WB4}, v{VL16}
s_lshl_b32 s7, s{S_KH}, 11
v_add_u32 v{T+1}, s7, v{T}
v_xor_b32 v{T+2}, 16384, v{T+1}
v_or_b32 v{T+3}, 32, v0
v_lshlrev_b32 v{T+3}, 4, v{T+3}
v_add_u32 v{T+3}, s{S_WB4}, v{T+3}
v_xor_b32 v{T+8}, 16384, v{T+3}
s_nop 3""")
    for q in range(4): e.ds(f"ds_write_b128 v{T}, {vr(O+4*q,4)} offset:{1024*q}")
    e.all_ds()
    e("s_barrier")
    e.ds(f"ds_read_b32 v{PP}, v{T+3} offset:3072", "l"); e.ds(f"ds_read_b32 v{PP+1}, v{T+8} offset:3072", "l")
    e.ds(f"ds_read_b128 {vr(S0,4)}, v{T+1}"); e.ds(f"ds_read_b128 {vr(S0+4,4)}, v{T+1} offset:1024")
    e.ds(f"ds_read_b128 {vr(S0+8,4)}, v{T+2}"); e.ds(f"ds_read_b128 {vr(S0+12,4)}, v{T+2} offset:1024")
    e.wds("l")
    e(f"v_add_f32 v{PP}, v{PP}, v{PP+1}\nv_rcp_f32 v{PP+1}, v{PP}")
    e.all_ds()
    for k in range(8): e(f"v_add_f32 v{S0+k}, v{S0+k}, v{S0+8+k}")
    for k in range(8): e(f"v_mul_f32 v{S0+k}, v{S0+k}, v{PP+1}")
    for k in range(4): e(f"v_cvt_pk_bf16_f32 v{K+k}, v{S0+2*k}, v{S0+2*k+1}")
    e(f"""s_mov_b32 s{S_A}, 0
s_sub_u32 s{S_B}, 0, s{S_KH}
v_cndmask_b32 v{K+2}, v{K+2}, 0, s[{S_A}:{S_B}]
v_cndmask_b32 v{K+3}, v{K+3}, 0, s[{S_A}:{S_B}]""")
    e.vm(f"buffer_store_dwordx4 {vr(K,4)}, v{VL16}, {WS}, s{S_OO} offen {SC}", "os")

def o_flag(e):
    e.wvm("os"); e("s_barrier")
    flag_store(e, f"""s_lshl_b32 s6, s{S_RB}, 5
s_add_u32 s6, s6, s{S_J}
s_lshl_b32 s6, s6, 2
s_add_u32 s6, s6, {F_O}
v_mov_b32 v{G}, s6""", 1, G)

def tail(e, nq, fq):
    T = G
    OA, OB = 64, 96
    for f in fq: f()
    done_flag = False
    def kstep(q):
        if q + 2 < 14:
            for f in f_loads(e, q + 2): f()
        e.wvm(f"f{q}")
        for k in range(4): e(f_mfma(q, k))
    if nq < 14: kstep(nq); nq += 1
    o_flag(e)
    e(f"""s_lshr_b32 s6, s{S_J}, 3
s_lshl_b32 s7, s{S_RB}, 1
s_add_u32 s6, s6, s7
s_mul_i32 s{S_A}, s6, 288
s_lshl_b32 s{S_B}, s{S_W}, 2
s_add_u32 s{S_A}, s{S_A}, s{S_B}
s_add_u32 s{S_A}, s{S_A}, 112
s_lshl_b32 s{S_C}, s{S_A}, 10
s_add_u32 s{S_D}, s{S_C}, {144*1024}
s_and_b32 s7, s{S_J}, 7
s_mul_i32 s{S_A}, s7, 144
s_add_u32 s{S_A}, s{S_A}, s{S_B}
s_add_u32 s{S_A}, s{S_A}, 112
s_lshl_b32 s{S_A}, s{S_A}, 11
s_add_u32 s{S_A}, s{S_A}, {W2T}
s_add_u32 s{S_G}, s{S_A}, 4096
s_lshl_b32 s6, s6, 6
s_lshl_b32 s{S_B}, s{S_W}, 3
s_add_u32 s6, s6, s{S_B}
v_lshrrev_b32 v{T}, 3, v0
v_add_u32 v{T}, s6, v{T}
v_mul_u32_u24 v{T}, 896, v{T}
v_and_b32 v{T+1}, 7, v0
v_lshl_add_u32 v{T}, v{T+1}, 4, v{T}
s_lshl_b32 s7, s7, 7
v_add_u32 v{VO}, s7, v{T}
""")
    for k in range(8):
        e.vm(f"buffer_load_dwordx4 {vr(OA+4*k,4)}, v{VL16}, {WS}, s{S_A if k < 4 else S_G} offen offset:{(k&3)*1024} {SC}", "oa")
    e.vm(f"buffer_load_dwordx4 {vr(XRES,4)}, v{VO}, s[{SRD_X}:{SRD_X+3}], 0 offen", "xr")
    while nq < 14: kstep(nq); nq += 1
    poll_issue(e, f"""s_lshl_b32 s6, s{S_RB}, 7
s_add_u32 s6, s6, {F_O}
v_and_b32 v{T}, 15, v0
v_lshl_add_u32 v{T}, v{T}, 2, s6""", T, T + 1, "op")
    srd(e, SRD_OUT, P_OUT, 2048 * 896)
    e.stamp("t1")
    poll_check(e, T, T + 1, "op")
    e.wvm("xr")
    e("s_barrier")
    e.stamp("t2")
    for k in range(4):
        e.vm(f"buffer_load_dwordx4 {vr(OB+8*k,4)}, v{VL16}, {WS}, s{S_C} offen offset:{k*1024} {SC}", f"ob{k}")
        e.vm(f"buffer_load_dwordx4 {vr(OB+8*k+4,4)}, v{VL16}, {WS}, s{S_D} offen offset:{k*1024} {SC}", f"ob{k}")
    e(f"""v_and_b32 v{T}, 31, v0
v_lshrrev_b32 v{T+1}, 5, v0
v_and_b32 v{T+2}, 7, v0
v_xor_b32 v{T+1}, v{T+1}, v{T+2}
v_lshlrev_b32 v{T+1}, 4, v{T+1}
v_lshl_add_u32 v{T}, v{T}, 8, v{T+1}
s_lshl_b32 s6, s{S_W}, 14
v_add_u32 v8, s6, v{T}""")
    for q in range(1, 4): e(f"v_xor_b32 v{8+q}, {q*32}, v8")
    e(f"""v_lshrrev_b32 v{T}, 3, v0
v_and_b32 v{T+1}, 7, v0
v_lshlrev_b32 v{T+1}, 1, v{T+1}
v_xor_b32 v{T+1}, v{T+1}, v{T}
v_lshlrev_b32 v{T+1}, 4, v{T+1}
v_lshl_add_u32 v{T}, v{T}, 8, v{T+1}
s_lshl_b32 s6, s{S_W}, 11
v_add_u32 v12, s6, v{T}
v_xor_b32 v13, 16, v12
v_add_u32 v14, 0x10000, v12
v_add_u32 v15, 0x10000, v13""")
    for k in range(4):
        e(f"v_lshlrev_b32 v{16+2*k}, 16, v{XRES+k}\nv_and_b32 v{17+2*k}, s{S_MASK}, v{XRES+k}")
    for k in range(4):
        e.wvm(f"ob{k}")
        order = ((0, 0), (0, 1), (1, 1), (1, 0))
        for r2, d2 in order: e(mfma(FA + 32*r2 + 16*d2, OA + 8*k + 4*d2, OB + 8*k + 4*r2))
    e("s_nop 8")
    e.stamp("t3")
    for (r2, d2) in ((0, 0), (0, 1), (1, 1), (1, 0)):
        for q in range(4):
            e.ds(f"ds_write_b128 v{8+q}, {vr(FA+32*r2+16*d2+4*q,4)} offset:{r2*8192 + d2*128}")
    e.all_ds()
    e("s_barrier")
    for p in range(8):
        b0 = 12 if p < 4 else 14
        e.ds(f"ds_read_b128 {vr(FA+8*p,4)}, v{b0} offset:{(p&3)*16384}", f"p{p}")
        e.ds(f"ds_read_b128 {vr(FA+8*p+4,4)}, v{b0+1} offset:{(p&3)*16384}", f"p{p}")
    for p in range(8):
        e.wds(f"p{p}")
        for k in range(8): e(f"v_add_f32 v{16+k}, v{16+k}, v{FA+8*p+k}")
    for k in range(4): e(f"v_cvt_pk_bf16_f32 v{XRES+k}, v{16+2*k}, v{17+2*k}")
    e.vm(f"buffer_store_dwordx4 {vr(XRES,4)}, v{VO}, s[{SRD_OUT}:{SRD_OUT+3}], 0 offen")

def build():
    e = Em()
    kn = NAME + "_kernel"
    e.a.raw(f".globl {kn}\n.p2align 8\n.type {kn},@function")
    e.label(kn)
    prologue(e)
    gelu, h_off = phaseB(e)
    attn_setup(e, gelu, h_off)
    e(f"s_and_b32 s6, s{S_J}, 7\ns_cmp_eq_u32 s6, 7\ns_cbranch_scc1 C_noF")
    sn = e.snap(); ns = e.nst
    nq, fq = attn_loop(e, True)
    attn_finish(e)
    tail(e, nq, fq)
    nend = e.nst
    e("s_branch K_fin")
    e.label("C_noF")
    e.restore(sn); e.nst = ns
    attn_loop(e, False)
    attn_finish(e)
    o_flag(e)
    e(f"""s_cmp_eq_u32 s{S_RB}, 0
s_cbranch_scc0 C_noF_done
s_cmp_eq_u32 s{S_J}, 7
s_cbranch_scc0 C_noF_done
s_cmp_eq_u32 s{S_W}, 0
s_cbranch_scc0 C_noF_done""")
    for k in range(4):
        e(f"""v_lshrrev_b32 v{G}, 4, v0
v_and_b32 v{G+1}, 15, v0
v_lshlrev_b32 v{G}, 7, v{G}
v_lshl_add_u32 v{G}, v{G+1}, 2, v{G}
v_add_u32 v{G}, {F_H + 512*k}, v{G}""")
        e.vm(f"buffer_load_dword v{G+1}, v{G}, {WS}, 0 offen {SC}", f"ep{k}")
        poll_check(e, G, G + 1, f"ep{k}")
    e(f"v_mov_b32 v{G}, {EPO}\nv_mov_b32 v{G+1}, s{S_NON}\ns_mov_b64 exec, 1\nbuffer_store_dword v{G+1}, v{G}, {WS}, 0 offen {SC}\ns_mov_b64 exec, -1")
    e.label("C_noF_done")
    while e.nst < nend: e.stamp()
    e.label("K_fin")
    if STAMPS:
        e.stamp()
        e("s_memrealtime s[98:99]\ns_waitcnt lgkmcnt(0) vmcnt(0)")
        e(f"""s_mov_b32 s40, s{P_WS}
s_mov_b32 s41, s{P_WS+1}
s_mov_b32 s42, 0x10000000
s_mov_b32 s43, 0x00020000
s_lshl_b32 s6, s2, 3
s_add_u32 s6, s6, s{S_W}
s_lshl_b32 s6, s6, 6
s_add_u32 s6, s6, {STAMP_WS}
v_mov_b32 v2, s96
v_mov_b32 v3, s98""")
        for k in range(10): e(f"v_mov_b32 v{4+k}, {'s%d' % (76+2*k) if k < e.nst else 0}")
        e("v_mov_b32 v1, 0\ns_mov_b64 exec, 1")
        for q in range(3): e(f"buffer_store_dwordx4 v[{2+4*q}:{5+4*q}], v1, s[40:43], s6 offen offset:{16*q}")
    e.label("K_end")
    e("s_endpgm")
    probs = check_hazards(e.a.lines, "k")
    hdr = open("cdna_kernels/" + NAME + ".s.ref").read().split("; Override launch")[0]
    out = hdr + f"; @launch grid=(256,1,1) block=(512,1,1) lds={LDS_BYTES}\n"
    out += '.amdgcn_target "amdgcn-amd-amdhsa--gfx950"\n.text\n' + e.a.text()
    out += f""".section .rodata,"a"
.p2align 6
.amdhsa_kernel {kn}
  .amdhsa_next_free_vgpr 256
  .amdhsa_next_free_sgpr 102
  .amdhsa_accum_offset 256
  .amdhsa_group_segment_fixed_size 0
  .amdhsa_kernarg_size 96
  .amdhsa_user_sgpr_count 2
  .amdhsa_user_sgpr_kernarg_segment_ptr 1
  .amdhsa_system_sgpr_workgroup_id_x 1
  .amdhsa_float_denorm_mode_32 3
.end_amdhsa_kernel
"""
    return out, probs

if __name__ == "__main__":
    out, probs = build()
    for p in probs: print("HAZARD", p, file=sys.stderr)
    open(sys.argv[1] if len(sys.argv) > 1 else "cdna_kernels/" + NAME + ".s", "w").write(out)
```

```python
import sys, os, math, struct
from asmlib import *
X = set(os.environ.get('XFLAGS', '').split(','))
def P(name, default): return int(os.environ.get(name, default))
NAME = "parallel_sum__grouped_kv_mqa__glu_gated_geglu__prompt"
def f2u(x): return struct.unpack("<I", struct.pack("<f", x))[0]

A2F = 0
W2T = 64 * 144 * 1024
QF  = W2T + 7 * 144 * 2048
KVF = QF + 64 * 16 * 2048
FLG = KVF + 64 * 4096
RKV = P("RKV", 16)
F_W  = FLG
F_H  = FLG + 2048
F_O  = FLG + 4096
EPO  = FLG + 6144
F_KV = FLG + 8192
WS_END = F_KV + 256 * RKV
OOB = 0x7ffffff0
P_X, P_WQ, P_WK, P_WV, P_WO, P_BX, P_WG, P_WU, P_WD, P_OUT, P_DBG, P_WS = 8, 10, 12, 14, 16, 18, 20, 22, 24, 26, 28, 30
SRD_X, SRD_WS, SRD_T, SRD_PC = 32, 36, 40, 44
SRD_OUT = SRD_T
S_W, S_RB, S_J = 3, 4, 5
(S_WB, S_MASK, S_XO, S_XO2, S_RT, S_CG, S_MUL, S_T0, S_T1, S_U, S_NON, S_LA, S_LB, S_TO, S_QU) = range(48, 63)
S_HI = 64
S_A, S_B, S_C, S_D, S_E, S_F = 66, 67, 68, 69, 70, 71
S_G, S_H2 = 72, 73
S_CNT = 74
WS = f"s[{SRD_WS}:{SRD_WS+3}]"
SC = "sc1"
STAMPS = bool(os.environ.get("STAMPS"))
STAMP_WS = 200 * 1024 * 1024
SPIN_MAX = 1 << 18
STAMPS_OFF = False

class Em:
    def __init__(s):
        s.a = Asm(); s.q = {'ds': [], 'vm': []}; s.done = {'ds': 0, 'vm': 0}; s.nst = 0; s.uid = 0
    def __call__(s, t): s.a(t)
    def label(s, l): s.a.label(l)
    def ds(s, ins, tag=None): s.a(ins); s.q['ds'].append(tag)
    def vm(s, ins, tag=None): s.a(ins); s.q['vm'].append(tag)
    def _n(s, k, tags, cap):
        idx = -1
        for t in tags:
            ii = [i for i, x in enumerate(s.q[k]) if x == t]
            assert ii, f"tag {t} never issued"
            idx = max(idx, ii[-1])
        if idx < s.done[k]: return None
        n = min(len(s.q[k]) - 1 - idx, cap)
        s.done[k] = len(s.q[k]) - n
        return n
    def wds(s, *tags):
        n = s._n('ds', tags, 15)
        if n is not None: s.a(f"s_waitcnt lgkmcnt({n})")
    def wvm(s, *tags):
        n = s._n('vm', tags, 63)
        if n is not None: s.a(f"s_waitcnt vmcnt({n})")
    def all_ds(s): s.a("s_waitcnt lgkmcnt(0)"); s.done['ds'] = len(s.q['ds'])
    def all_vm(s): s.a("s_waitcnt vmcnt(0)"); s.done['vm'] = len(s.q['vm'])
    def snap(s): return ({k: list(v) for k, v in s.q.items()}, dict(s.done))
    def restore(s, sn): s.q = {k: list(v) for k, v in sn[0].items()}; s.done = dict(sn[1])
    def stamp(s, name=None):
        sel = os.environ.get("STSEL")
        if sel is not None and name is not None and name not in sel.split(","): return
        if sel is None and name is not None and name.startswith("x"): return
        if STAMPS and not STAMPS_OFF:
            assert s.nst < 10
            s.a(f"{'s_memrealtime' if os.environ.get('RT') else 's_memtime'} s[{76+2*s.nst}:{77+2*s.nst}]"); s.nst += 1
            s.all_ds()
    def newlabel(s, p): s.uid += 1; return f"{p}_{s.uid}"

def srd(e, d, p, nbytes):
    e(f"s_mov_b32 s{d}, s{p}\ns_mov_b32 s{d+1}, s{p+1}\ns_mov_b32 s{d+2}, {nbytes}\ns_mov_b32 s{d+3}, 0x00020000")
def mfma(d, A, B, C=None):
    return f"v_mfma_f32_32x32x16_bf16 {vr(d,16)}, {vr(A,4)}, {vr(B,4)}, {vr(d,16) if C is None else C}"
def mfma16(d, A, B, C=None):
    return f"v_mfma_f32_16x16x32_bf16 {vr(d,4)}, {vr(A,4)}, {vr(B,4)}, {vr(d,4) if C is None else C}"

class Side:
    def __init__(s, e): s.e = e; s.q = []
    def add(s, items):
        if isinstance(items, str):
            raw = [l.strip() for l in items.strip().split("\n") if l.strip()]
            items = []
            for l in raw:
                if l.startswith("s_cselect"): items[-1] += "\n" + l
                else: items.append(l)
        s.q += list(items)
    def emit(s, n):
        while n > 0 and s.q:
            it = s.q.pop(0)
            if callable(it): it()
            else: s.e(it)
            n -= 1
    def flush(s): s.emit(1 << 30)

def flag_store(e, addr_lines, nlanes, vt):
    l = e.newlabel("fl")
    e(f"s_cmp_eq_u32 s{S_W}, 0\ns_cbranch_scc0 {l}")
    e(addr_lines)
    e(f"v_mov_b32 v{vt+1}, s{S_NON}\ns_mov_b64 exec, {(1 << nlanes) - 1}\nbuffer_store_dword v{vt+1}, v{vt}, {WS}, 0 offen {SC}\ns_mov_b64 exec, -1")
    e.label(l)

def poll_issue(e, addr_lines, vaddr, vdat, tag):
    e(addr_lines)
    e(f"s_cmp_eq_u32 s{S_W}, 0\ns_cselect_b32 s6, 0, {OOB}\nv_or_b32 v{vaddr}, s6, v{vaddr}")
    e.vm(f"buffer_load_dword v{vdat}, v{vaddr}, {WS}, 0 offen {SC}", tag)

def poll_check(e, vaddr, vdat, tag):
    ok = e.newlabel("pok"); sp = e.newlabel("psp")
    e(f"s_cmp_eq_u32 s{S_W}, 0\ns_cbranch_scc0 {ok}")
    dn = dict(e.done); e.wvm(tag); e.done = dn
    e(f"v_cmp_ne_u32 vcc, s{S_NON}, v{vdat}\ns_cbranch_vccz {ok}\ns_mov_b32 s{S_CNT}, {SPIN_MAX}")
    e.label(sp)
    e(f"""s_sleep {P('SLEEP', 4)}
buffer_load_dword v{vdat}, v{vaddr}, {WS}, 0 offen {SC}
s_sub_u32 s{S_CNT}, s{S_CNT}, 1
s_waitcnt vmcnt(0)
v_cmp_ne_u32 vcc, s{S_NON}, v{vdat}
s_cmp_eq_u32 s{S_CNT}, 0
s_cbranch_scc1 {ok}
s_cbranch_vccnz {sp}""")
    e.label(ok)

RING = 32768
L_W2T = 131072
L_CSA = L_W2T + 8192
L_CSB = L_CSA + 2048
L_ST  = L_CSB + 2048
L_KVB = L_ST + 4096
L_FLG = L_KVB + 4096
LDS_BYTES = L_FLG + 256

VL16, VT, VX, GA, GS = 1, 2, 3, 4, 6
XA, WA = 8, 12
ST, SEL, CSA, WF, TM = 20, 24, 28, 36, 60
ACCA, ACCB, XR, G = 64, 96, 128, 240
SQA, SQB, TP = 60, 240, 248
WB, GB, PL = 250, 102, 252
R_, S_, AC, BC, I2 = 8, 9, 10, 11, 3
BEXT = 60


TA, TS, TX, TD = 96, 98, 99, 100
S_ISQ, S_SH = 63, 75
def w_source(row, c, dst, gs, t0):
    return f"""v_cmp_le_u32 vcc, s{S_A}, v{c}
v_mul_lo_u32 v{dst}, v{row}, s{S_B}
v_lshl_add_u32 v{dst}, v{c}, 4, v{dst}
v_add_u32 v{dst}, s{S_C}, v{dst}
v_subrev_u32 v{c}, s{S_A}, v{c}
v_lshlrev_b32 v{c}, s{S_G}, v{c}
v_mul_lo_u32 v{t0}, v{row}, s{S_D}
v_add3_u32 v{t0}, v{t0}, v{c}, s{S_H2}
v_cndmask_b32 v{dst}, v{dst}, v{t0}, vcc
v_mov_b32 v{gs}, s{S_B}
v_mov_b32 v{t0}, s{S_D}
v_cndmask_b32 v{gs}, v{gs}, v{t0}, vcc
v_lshlrev_b32 v{gs}, 5, v{gs}"""

ROTS = {0: [0]*8, 1: [0, 3, 2, 5, 4, 0, 6, 2], 2: [0, 3, 3, 0, 0, 3, 3, 0], 3: [0, 1, 2, 3, 4, 5, 6, 0], 4: [0, 4, 1, 5, 2, 6, 3, 0]}
ROTTAB = sum(v << (4 * i) for i, v in enumerate(ROTS[P("ROT", 1)]))
def prologue(e):
    e(f"s_cmp_ge_u32 s2, 256\ns_cbranch_scc1 K_end")
    if STAMPS or 'fix' in X or 'amp' in X: e("s_memrealtime s[96:97]")
    e.stamp()
    e("s_load_dwordx16 s[8:23], s[0:1], 0\ns_load_dwordx8 s[24:31], s[0:1], 64")
    e(f"s_getpc_b64 s[{SRD_PC}:{SRD_PC+1}]")
    e.label("K_pc")
    e(f"""s_mov_b32 s{SRD_PC+2}, K_end-K_pc
s_mov_b32 s{SRD_PC+3}, 0x00020000
v_lshlrev_b32 v1, 7, v0""")
    e.vm(f"buffer_load_dword v{TD}, v1, s[{SRD_PC}:{SRD_PC+3}], 0 offen")
    T = TM
    e(f"""v_lshrrev_b32 v1, 6, v0
v_and_b32 v0, 63, v0
v_readfirstlane_b32 s{S_W}, v1""")
    if GT:
        e(f"""s_lshl_b32 s{S_TG}, s2, 3
s_add_u32 s{S_TG}, s{S_TG}, s{S_W}
s_min_u32 s6, s{S_TG}, 2039
s_cmp_ge_u32 s6, 768
s_cselect_b32 s7, 56, 48
s_cselect_b32 s{S_A}, 768, 0
s_cmp_ge_u32 s6, 1536
s_cselect_b32 s7, 8, s7
s_cselect_b32 s{S_A}, 1536, s{S_A}
s_cselect_b32 s{S_B}, 7, 12
s_cselect_b32 s{S_C}, 7, 28
s_cmp_ge_u32 s6, 1984
s_cselect_b32 s7, 16, s7
s_cselect_b32 s{S_A}, 1984, s{S_A}
s_cselect_b32 s{S_B}, 28, s{S_B}
s_cmp_ge_u32 s6, 2012
s_cselect_b32 s7, 24, s7
s_cselect_b32 s{S_A}, 2012, s{S_A}
s_load_dwordx2 s[{SRD_PC}:{SRD_PC+1}], s[0:1], s7
s_sub_u32 s6, s6, s{S_A}
v_cvt_f32_u32 v{T}, s6
v_cvt_f32_u32 v{T+1}, s{S_B}
v_add_f32 v{T}, 0.5, v{T}
v_rcp_f32 v{T+1}, v{T+1}
s_lshl_b32 s{S_C}, s{S_C}, 7
s_cmp_eq_u32 s{S_B}, 28
v_mul_f32 v{T}, v{T}, v{T+1}
v_cvt_u32_f32 v{T}, v{T}
s_cselect_b32 s{S_D}, 3584, 0
s_lshl_b32 s7, s{S_C}, 6
s_cmp_eq_u32 s{S_B}, 28
s_cselect_b32 s7, s{S_D}, s7
s_mul_i32 s{SRD_PC+2}, s7, 7
v_mul_lo_u32 v{T+1}, v{T}, s{S_B}
v_sub_u32 v{T+1}, s6, v{T+1}
v_mul_lo_u32 v{T}, v{T}, s{S_C}
v_lshl_add_u32 v{T}, v{T+1}, 7, v{T}
v_and_b32 v{T+1}, 1, v0
v_mul_lo_u32 v{TA}, v{T+1}, s7
v_add_u32 v{TA}, v{TA}, v{T}
s_mul_i32 s6, s{S_TG}, 896
v_lshl_add_u32 v{TX}, v{T+1}, 7, s6
s_mov_b32 s{S_TS}, s7""")
    e(f"""
s_bfe_u32 s{S_RB}, s2, 0x20001
s_lshl_b32 s{S_RB}, s{S_RB}, 2
s_lshr_b32 s6, s2, 6
s_add_u32 s{S_RB}, s{S_RB}, s6
s_and_b32 s{S_J}, s2, 1
s_lshl_b32 s{S_J}, s{S_J}, 3
s_bfe_u32 s7, s2, 0x30003
s_add_u32 s{S_J}, s{S_J}, s7
s_lshr_b32 s{S_QU}, s{S_J}, 2
s_sub_u32 s{S_LA}, s{S_J}, s{S_QU}
s_lshl_b32 s{S_WB}, s{S_W}, 10
s_lshl_b32 s{S_C}, s{S_LA}, 7
s_mul_i32 s{S_E}, s{S_QU}, 224
s_and_b32 s{S_F}, s{S_QU}, 1
s_sub_u32 s{S_G}, 4, s{S_F}
s_lshl_b32 s{S_F}, s{S_F}, 5
s_movk_i32 s{S_D}, 3584
s_and_b32 s{S_ISQ}, s{S_J}, 3
s_cmp_eq_u32 s{S_ISQ}, 3
s_cselect_b32 s{S_ISQ}, 1, 0
s_cselect_b32 s{S_A}, 14, 8
s_cselect_b32 s{S_B}, 896, s{S_D}
s_cselect_b32 s{S_D}, 56, s{S_D}
s_cselect_b32 s{S_H2}, s{S_F}, s{S_C}
s_cselect_b32 s{S_C}, s{S_E}, s{S_C}
s_cselect_b32 s{S_G}, s{S_G}, 4
s_add_u32 s{S_SH}, s{S_ISQ}, 1
s_lshl_b32 s{S_E}, s{S_RB}, 7
s_lshl_b32 s{S_F}, s{S_W}, 3
s_add_u32 s{S_F}, s{S_F}, s{S_E}
v_lshrrev_b32 v{T}, 3, v0
v_add_u32 v{T}, s{S_F}, v{T}
v_mul_u32_u24 v{T}, 896, v{T}
s_lshl_b32 s{S_F}, s{S_W}, 2
v_lshrrev_b32 v{T+1}, 4, v0
v_add_u32 v{T+2}, s{S_F}, v{T+1}
v_xor_b32 v{T+3}, v{T+2}, v0
v_and_b32 v{T+3}, 7, v{T+3}
v_lshl_add_u32 v{VX}, v{T+3}, 4, v{T}
s_and_b32 s{S_XO}, s2, 7
s_lshl_b32 s{S_XO}, s{S_XO}, 2
s_lshr_b32 s{S_XO}, {ROTTAB:#x}, s{S_XO}
s_and_b32 s{S_XO}, s{S_XO}, 7
s_lshl_b32 s{S_F}, s{S_XO}, 6
s_lshl_b32 s{S_XO}, s{S_XO}, 7
v_add_u32 v{T+2}, s{S_F}, v{T+2}
v_lshlrev_b32 v{T+1}, s{S_SH}, v{T+1}
v_xor_b32 v{T+1}, v{T+1}, v0
v_and_b32 v{T+1}, 15, v{T+1}""")
    e(w_source(T + 2, T + 1, G, GS, T))
    e(f"s_mov_b64 s[{S_HI}:{S_HI+1}], vcc")
    if TOUCH:
        e(f"""s_and_b32 s6, s6, 3
s_lshl_b32 s6, s6, 3
s_add_u32 s6, s6, s{S_W}
s_lshl_b32 s6, s6, 1
s_lshl_b32 s7, s7, 3
s_add_u32 s7, s7, s{S_W}
s_lshl_b32 s7, s7, 1
s_add_u32 s7, s7, s{S_E}
v_bfe_u32 v{T+2}, v0, 3, 1
v_bfe_u32 v{T+1}, v0, 2, 1
v_lshl_add_u32 v{T+2}, v{T+2}, 6, v{T+1}
v_add_u32 v{T+2}, s6, v{T+2}
v_and_b32 v{T+1}, 3, v0
v_lshlrev_b32 v{T+1}, 2, v{T+1}
v_lshrrev_b32 v{T+1}, v{T+1}, s{S_MASK}
v_and_b32 v{T+1}, 15, v{T+1}
v_and_b32 v{T}, 1, v0
v_add_u32 v{T}, s7, v{T}
v_mul_u32_u24 v{TX}, 896, v{T}
v_bfe_u32 v{T}, v0, 1, 1
v_lshl_add_u32 v{TX}, v{T}, 7, v{TX}""".replace(f"v_lshrrev_b32 v{T+1}, v{T+1}, s{S_MASK}", f"s_movk_i32 s6, 0xed80\nv_lshrrev_b32 v{T+1}, v{T+1}, s6"))
        e(w_source(T + 2, T + 1, G + 1, TS, T))
    e("s_waitcnt lgkmcnt(0)")
    e.stamp("xs0")
    if 'stdiag' in X:
        e(f"""s_mov_b32 s40, s{P_WS}
s_mov_b32 s41, s{P_WS+1}
s_mov_b32 s42, 0x10000000
s_mov_b32 s43, 0x00020000
s_lshl_b32 s90, s2, 3
s_add_u32 s90, s90, s{S_W}
s_lshl_b32 s90, s90, 10
s_add_u32 s90, s90, {P('DOFF', 100) * 1024 * 1024}
v_lshlrev_b32 v110, 4, v0
buffer_store_dwordx4 v[112:115], v110, s[40:43], s90 offen sc1
s_waitcnt vmcnt(0)
s_add_u32 s90, s90, 0x200000
s_barrier
s_memtime s[92:93]
s_waitcnt lgkmcnt(0)
buffer_store_dwordx4 v[112:115], v110, s[40:43], s90 offen sc1
s_waitcnt vmcnt(0)
s_barrier
s_memtime s[94:95]
s_waitcnt lgkmcnt(0)
s_sub_u32 s94, s94, s92
s_mul_i32 s94, s94, 100""")
    srd(e, SRD_X, P_X, 2048 * 896)
    e(f"""s_cmp_lt_u32 s{S_QU}, 2
s_cselect_b32 s{S_C}, s{P_WK}, s{P_WV}
s_cselect_b32 s{S_D}, s{P_WK+1}, s{P_WV+1}
s_cmp_eq_u32 s{S_ISQ}, 1
s_cselect_b32 s{S_A}, s{P_WQ}, s{P_WG}
s_cselect_b32 s{S_B}, s{P_WQ+1}, s{P_WG+1}
s_cselect_b32 s{S_C}, s{S_C}, s{P_WU}
s_cselect_b32 s{S_D}, s{S_D}, s{P_WU+1}
v_mov_b32 v{T}, s{S_A}
v_mov_b32 v{T+1}, s{S_B}
v_mov_b32 v{T+2}, s{S_C}
v_mov_b32 v{T+3}, s{S_D}""")
    if TOUCH:
        e(f"""v_cndmask_b32 v{TA}, v{T}, v{T+2}, vcc
v_cndmask_b32 v{TA+1}, v{T+1}, v{T+3}, vcc
v_add_co_u32 v{TA}, vcc, v{TA}, v{G+1}
v_cndmask_b32 v{GA}, v{T}, v{T+2}, s[{S_HI}:{S_HI+1}]
v_cndmask_b32 v{GA+1}, v{T+1}, v{T+3}, s[{S_HI}:{S_HI+1}]
v_addc_co_u32 v{TA+1}, vcc, 0, v{TA+1}, vcc""")
        touch(e, 0)()
    else:
        e(f"""v_cndmask_b32 v{GA}, v{T}, v{T+2}, s[{S_HI}:{S_HI+1}]
v_cndmask_b32 v{GA+1}, v{T+1}, v{T+3}, s[{S_HI}:{S_HI+1}]""")
    e(f"v_add_co_u32 v{GA}, vcc, v{GA}, v{G}\nv_mov_b32 v{GS+1}, 0")
    for st in os.environ.get("GPRE", "").split(): gtouch(e, int(st))()
    if 'gonly' in X: e.all_vm(); e.stamp()
    dma_x(e, 0, 0)()
    e(f"v_addc_co_u32 v{GA+1}, vcc, 0, v{GA+1}, vcc")

TOUCH = P("TOUCH", 0)
GT = P("GT", 0)
ROT = P("ROT", 1)
LDX = os.environ.get("LDX", ""); LDW = os.environ.get("LDW", ""); LDT = os.environ.get("LDT", "")
def touch(e, k):
    def f():
        st = (0, 2, 4, 5)[k]
        e.vm(f"global_load_dword v{TD}, {vr(TA,2)}, off", f"t{k}")
        e(f"s_movk_i32 s{S_XO2}, {st * 128}")
        e.vm(f"buffer_load_dword v{TD}, v{TX}, s[{SRD_X}:{SRD_X+3}], s{S_XO2} offen", f"t{k}")
        if k < 3: e(f"v_mad_u64_u32 {vr(TA,2)}, s[{S_E}:{S_E+1}], v{TS}, {4 if k < 2 else 2}, {vr(TA,2)}")
    return f
S_TG, S_TS = 61, 57
def gtouch(e, st):
    def f():
        e(f"s_mul_i32 s{S_XO2}, s{S_TS}, {st}")
        e.vm(f"buffer_load_dword v{TD}, v{TA}, s[{SRD_PC}:{SRD_PC+3}], s{S_XO2} offen {LDT}", "t")
        e(f"s_movk_i32 s{S_XO2}, {st * 128}")
        e.vm(f"buffer_load_dword v{TD}, v{TX}, s[{SRD_X}:{SRD_X+3}], s{S_XO2} offen {LDT}", "t")
    return f
def dma_x(e, sig, i):
    def f():
        e(f"s_add_u32 m0, s{S_WB}, {(sig % 4) * RING + i * 8192}")
        if i == 0: e("s_nop 0"); so = S_XO
        else: e(f"s_add_u32 s{S_XO2}, s{S_XO}, {64*896}"); so = S_XO2
        e.vm(f"buffer_load_dwordx4 v{VX}, s[{SRD_X}:{SRD_X+3}], s{so} offen {LDX} lds", f"d{sig}")
    return f
def dma_w(e, sig, off, i, first=False):
    def f():
        if i == 0 and not first:
            e(f"s_add_u32 s{S_XO}, s{S_XO}, 128\ns_cmp_eq_u32 s{S_XO}, 896\ns_cselect_b32 s{S_XO}, 0, s{S_XO}\ns_cselect_b32 s{S_MUL}, -13, 1")
        e(f"s_add_u32 m0, s{S_WB}, {(sig % 4) * RING + off + i * 8192}")
        if first == 2: e(f"s_add_u32 s{S_XO}, s{S_XO}, 128\ns_cmp_eq_u32 s{S_XO}, 896\ns_cselect_b32 s{S_XO}, 0, s{S_XO}")
        elif first: e("s_nop 0")
        elif i == 0: e(f"v_mad_i64_i32 {vr(GA,2)}, s[{S_E}:{S_E+1}], v{GS}, s{S_MUL}, {vr(GA,2)}")
        else: e(f"v_lshl_add_u64 {vr(GA,2)}, {vr(GS,2)}, 0, {vr(GA,2)}")
        e.vm(f"global_load_lds_dwordx4 {vr(GA,2)}, off {LDW}", f"d{sig}")
    return f
def stage_dmas(e, sig):
    if sig == 0: return [dma_x(e, sig, 0), dma_w(e, sig, 16384, 0, True), dma_x(e, sig, 1), dma_w(e, sig, 16384, 1)]
    if sig < 7: return [dma_w(e, sig, 16384, 0), dma_x(e, sig, 0), dma_w(e, sig, 16384, 1), dma_x(e, sig, 1)]
    l = []
    if sig == 7: l.append(lambda: e(f"v_mov_b32 v{GA}, v{GB}\nv_mov_b32 v{GA+1}, v{GB+1}\nv_mov_b32 v{GS}, {32*3584}"))
    l += [dma_w(e, sig, 0, 0, 2 if sig == 7 else False), dma_w(e, sig, 0, 1)]
    if sig < 10: l += [dma_w(e, sig, 16384, 0), dma_w(e, sig, 16384, 1)]
    return l

def phaseB(e):
    T = TM
    for f in stage_dmas(e, 0)[1:]: f()
    if 'arr' in X:
        order = os.environ.get("ARR", "D1 D2 W0 D3 W1 D4 W2 D5 W3 D6 W4 W5 W6").split()
        for it in order:
            k = int(it[1:])
            if it[0] == 'D':
                for f in stage_dmas(e, k): f()
            elif it[0] == 'T': touch(e, k)()
            elif it[0] == 'G': gtouch(e, k)()
            elif it[0] == 'A': e.all_vm(); e.stamp()
            else: e.wvm(f"d{k}"); e("s_barrier"); e.stamp()
        srd(e, SRD_WS, P_WS, WS_END)
        e.stamp()
        e("s_branch K_fin2")
        global STAMPS_OFF; STAMPS_OFF = True
    e.stamp("xs2")
    e(f"s_mov_b32 s6, {EPO}\ns_load_dword s{S_NON}, s[{P_WS}:{P_WS+1}], s6")
    if TOUCH == 2: touch(e, 1)()
    for f in stage_dmas(e, 1): f()
    if TOUCH == 1: touch(e, 1)()
    e.stamp("xs3")
    e(f"""s_and_b32 s{S_RT}, s{S_W}, 3
s_lshr_b32 s{S_CG}, s{S_W}, 2
s_lshl_b32 s{S_T0}, s{S_CG}, 1
s_add_u32 s{S_T1}, s{S_T0}, 1
s_xor_b32 s{S_A}, s{S_RT}, s{S_CG}
s_mov_b32 s{S_MASK}, 0xffff0000
s_mov_b32 s{S_HI}, 0
s_mov_b32 s{S_HI+1}, -1
v_lshlrev_b32 v{VL16}, 4, v0
v_and_b32 v{T}, 31, v0
v_lshrrev_b32 v{T+1}, 5, v0
v_bfe_u32 v{T+2}, v0, 1, 3
v_xor_b32 v{T+2}, v{T+2}, v{T+1}
v_lshlrev_b32 v{T+2}, 4, v{T+2}
v_lshl_add_u32 v{T+2}, v{T}, 7, v{T+2}
s_lshl_b32 s6, s{S_RT}, 12
s_lshl_b32 s{S_B}, s{S_A}, 5
s_or_b32 s6, s6, s{S_B}
v_xor_b32 v{XA}, s6, v{T+2}""")
    for pos in range(1, 4): e(f"v_xor_b32 v{XA+pos}, {pos<<5}, v{XA}")
    e(f"""v_bfe_u32 v{G+1}, v0, 2, 2
v_lshl_add_u32 v{WB}, v{T+1}, 3, v{G+1}
v_lshlrev_b32 v{WB}, 8, v{WB}
s_lshl_b32 s{S_A}, s{S_A}, 12
v_add_u32 v{WB}, s{S_A}, v{WB}
s_cmp_eq_u32 s{S_ISQ}, 1
s_cselect_b32 s{S_A}, 56, 32
s_cselect_b32 s{S_B}, 5, 7
s_cselect_b32 s{S_C}, 0x88880000, 0
s_mov_b32 s{S_D}, s{S_C}
s_add_u32 s6, s{S_SH}, 4
v_bfe_u32 v{T}, v0, 4, 1
v_and_b32 v{T+1}, 3, v0
v_lshlrev_b32 v{T}, s{S_B}, v{T}
v_lshl_add_u32 v{T}, v{T+1}, 3, v{T}
v_lshlrev_b32 v{T+1}, s6, v{G+1}""")
    for i, st_ in ((0, S_T0), (1, S_T1)):
        e(f"""s_mul_i32 s6, s{st_}, s{S_A}
s_lshl_b32 s7, s{st_}, 3
s_sub_u32 s7, 248, s7
v_add_u32 v{T+2}, s6, v{T}
v_mov_b32 v{T+3}, s7
v_cndmask_b32 v{T+2}, v{T+2}, v{T+3}, s[{S_C}:{S_D}]
v_xor_b32 v{T+2}, v{T+2}, v{T+1}
v_add_u32 v{WA+4*i}, v{T+2}, v{WB}""")
    for i in range(2):
        for pos in range(1, 4): e(f"v_xor_b32 v{WA+4*i+pos}, {pos<<12}, v{WA+4*i}")
    e(f"""v_bfe_u32 v{T}, v0, 4, 1
v_and_b32 v{T+1}, 15, v0
v_cmp_eq_u32 vcc, v{T}, v{T+1}
v_mov_b32 v{T}, 0x3f803f80
s_nop 0
v_cndmask_b32 v{SEL}, 0, v{T}, vcc
v_mov_b32 v{SEL+1}, v{SEL}
v_mov_b32 v{SEL+2}, v{SEL}
v_mov_b32 v{SEL+3}, v{SEL}""")
    w2t_addr = f"""s_lshl_b32 s{S_U}, s2, 2
s_lshr_b32 s6, s{S_W}, 1
s_add_u32 s{S_U}, s{S_U}, s6
s_min_u32 s{S_U}, s{S_U}, 1007
s_mul_hi_u32 s6, s{S_U}, {(2**32 + 143)//144}
s_mul_i32 s{S_A}, s6, 144
s_sub_u32 s{S_A}, s{S_U}, s{S_A}
s_lshl_b32 s{S_B}, s{S_A}, 4
s_sub_u32 s{S_C}, s{S_A}, 112
s_lshr_b32 s{S_D}, s{S_C}, 1
s_mul_i32 s{S_D}, s{S_D}, 28
s_and_b32 s{S_C}, s{S_C}, 1
s_lshl_b32 s{S_C}, s{S_C}, 4
s_add_u32 s{S_C}, s{S_C}, s{S_D}
s_mov_b32 s{S_D}, {448*896}
s_cmp_lt_u32 s{S_A}, 112
s_cselect_b32 s{S_B}, s{S_B}, s{S_C}
s_cselect_b32 s{SRD_T}, s{P_WD}, s{P_WO}
s_cselect_b32 s{SRD_T+1}, s{P_WD+1}, s{P_WO+1}
s_cselect_b32 s{SRD_T+2}, {1792*896}, s{S_D}
s_mov_b32 s{SRD_T+3}, 0x00020000
s_and_b32 s{S_C}, s{S_W}, 1
s_lshl_b32 s{S_C}, s{S_C}, 3
s_add_u32 s{S_B}, s{S_B}, s{S_C}
s_mul_i32 s{S_B}, s{S_B}, 896
s_lshl_b32 s6, s6, 7
s_add_u32 s{S_TO}, s{S_B}, s6
v_lshrrev_b32 v{TP}, 3, v0
v_mul_u32_u24 v{TP}, 896, v{TP}
v_and_b32 v{TP+1}, 7, v0
v_lshl_add_u32 v{VT}, v{TP+1}, 4, v{TP}"""
    late = f"""s_add_u32 s{S_LB}, s{S_LA}, 12
s_add_u32 s6, s{S_QU}, 24
s_cmp_eq_u32 s{S_ISQ}, 1
s_cselect_b32 s{S_LB}, s6, s{S_LB}
v_lshrrev_b32 v{TP}, 4, v0
s_and_b32 s6, s2, 7
s_lshl_b32 s6, s6, 2
s_lshr_b32 s6, {ROTTAB:#x}, s6
s_and_b32 s6, s6, 7
s_lshl_b32 s6, s6, 4
s_add_u32 s6, s6, s{S_W}
s_lshl_b32 s6, s6, 2
v_add_u32 v{TP+1}, s6, v{TP}
v_mul_u32_u24 v{TP+1}, 3584, v{TP+1}
v_lshlrev_b32 v{TP}, 1, v{TP}
v_xor_b32 v{TP}, v{TP}, v0
v_and_b32 v{GB}, 7, v{TP}
v_lshl_add_u32 v{TP+1}, v{GB}, 4, v{TP+1}
s_lshl_b32 s6, s{S_LB}, 7
v_add_u32 v{TP+1}, s6, v{TP+1}
v_and_b32 v{TP}, 8, v{TP}
v_cmp_eq_u32 vcc, 8, v{TP}
v_mov_b32 v{GB}, s{P_WG}
v_mov_b32 v{TP}, s{P_WU}
v_cndmask_b32 v{GB}, v{GB}, v{TP}, vcc
v_mov_b32 v{GB+1}, s{P_WG+1}
v_mov_b32 v{TP}, s{P_WU+1}
v_cndmask_b32 v{GB+1}, v{GB+1}, v{TP}, vcc
v_add_co_u32 v{GB}, vcc, v{GB}, v{TP+1}
v_bfe_u32 v{TP}, v0, 4, 1
v_and_b32 v{TP+1}, 3, v0
v_addc_co_u32 v{GB+1}, vcc, 0, v{GB+1}, vcc
v_lshlrev_b32 v{TP+1}, 3, v{TP+1}
v_lshl_add_u32 v{TP}, v{TP}, 7, v{TP+1}
v_bfe_u32 v{TP+1}, v0, 2, 2
v_lshlrev_b32 v{TP+1}, 5, v{TP+1}
v_xor_b32 v{TP}, v{TP}, v{TP+1}
s_lshl_b32 s6, s{S_T0}, 5
v_xor_b32 v{TP}, s6, v{TP}
v_add_u32 v{WB}, v{TP}, v{WB}
v_xor_b32 v{WB+1}, 32, v{WB}
s_mov_b32 s{SRD_WS}, s{P_WS}
s_mov_b32 s{SRD_WS+1}, s{P_WS+1}
s_mov_b32 s{SRD_WS+2}, {WS_END}
s_mov_b32 s{SRD_WS+3}, 0x00020000"""
    e.stamp("xs4")
    e("s_waitcnt lgkmcnt(0)")
    e(f"s_add_u32 s{S_NON}, s{S_NON}, 1")
    e.stamp("xs5")
    e.wvm("d0")
    e("s_barrier")
    e.stamp("start")

    half = {'x': [0]*4, 'w': [0]*4}
    def reads(gp):
        if gp < 28: sig, sub, pos, reg = gp // 4, 0, gp % 4, 16384
        else:
            g = gp - 28; sig, sub, pos = 7 + g // 8, (g // 4) & 1, g % 4; reg = sub * 16384
        sl = sig % 4; h = sl >> 1; imm = (sl & 1) * RING
        buf = WF + 8 * (gp % 3)
        pre = []
        if 28 <= gp < 32:
            pre = [f"v_xor_b32 v{WA+4*i+pos}, {(pos << 12) | (h << 16)}, v{WB+i}" for i in range(2)]
            half['w'][pos] = h
        elif half['w'][pos] != h:
            pre = [f"v_xor_b32 v{WA+4*i+pos}, 0x10000, v{WA+4*i+pos}" for i in range(2)]
            half['w'][pos] = h
        if gp < 28 and half['x'][pos] != h:
            pre.append(f"v_xor_b32 v{XA+pos}, 0x10000, v{XA+pos}"); half['x'][pos] = h
        out = [(lambda l=l: e(l)) for l in pre]
        if gp < 28: out.append(lambda: e.ds(f"ds_read_b128 {vr(XR+4*gp,4)}, v{XA+pos} offset:{imm}", f"r{gp}"))
        for i in range(2):
            for u in range(2):
                out.append(lambda i=i, u=u: e.ds(f"ds_read_b64_tr_b16 {vr(buf+4*i+2*u,2)}, v{WA+4*i+pos} offset:{imm+reg+u*1024}", f"r{gp}"))
        return out
    def position(gp, side, dmaq, nside, barrier=None):
        p2 = gp >= 28; g = gp - 28 if p2 else gp
        acc = ACCB if p2 else ACCA
        buf = WF + 8 * (gp % 3); xr = XR + 4 * g
        e.wds(f"r{gp}")
        e(mfma(acc, buf, xr, "0" if g == 0 else None))
        if barrier: barrier()
        R = reads(gp + 2) if gp + 2 < 56 else []
        for f in R[:len(R) - 2]: f()
        side.emit((nside + 1) // 2)
        e(mfma(acc + 16, buf + 4, xr, "0" if g == 0 else None))
        for f in R[len(R) - 2:]: f()
        if g % 4 == 0 and 'nosel' not in X:
            e(mfma16(CSA, SEL, buf, "0" if g == 0 else None))
        if dmaq: dmaq.pop(0)()
        side.emit(nside // 2)
        if g % 4 == 0 and 'nosel' not in X:
            e(mfma16(CSA + 4, SEL, buf + 4, "0" if g == 0 else None))
    def stats(gp):
        x = XR + 4 * gp; c = lambda r: "0" if gp == 0 else vr(r, 4)
        return [mfma16(ST, SEL, x, c(ST)),
                f"v_mfma_f32_4x4x4_16b_bf16 {vr(SQA,4)}, {vr(x,2)}, {vr(x,2)}, {c(SQA)}\nv_mfma_f32_4x4x4_16b_bf16 {vr(SQB,4)}, {vr(x+2,2)}, {vr(x+2,2)}, {c(SQB)}"]
    def cs_write(dst):
        return [f"v_lshlrev_b32 v{G+8}, 4, v0", f"s_lshl_b32 s6, s{S_T0}, 9", f"s_lshl_b32 s{S_A}, s{S_RT}, 2",
                f"s_add_u32 s6, s6, s{S_A}", f"s_add_u32 s6, s6, {dst}", f"v_add_u32 v{G+8}, s6, v{G+8}",
                lambda: (e("s_mov_b64 exec, 0xffff"),
                         e.ds(f"ds_write_b32 v{G+8}, v{CSA}", "csw"), e.ds(f"ds_write_b32 v{G+8}, v{CSA+1} offset:256", "csw"),
                         e.ds(f"ds_write_b32 v{G+8}, v{CSA+4} offset:512", "csw"), e.ds(f"ds_write_b32 v{G+8}, v{CSA+5} offset:768", "csw"),
                         e("s_mov_b64 exec, -1"))]
    def cs_read(src):
        l = [f"v_and_b32 v{G+8}, 31, v0", f"v_lshlrev_b32 v{G+8}, 4, v{G+8}", f"s_lshl_b32 s6, s{S_T0}, 9", f"s_add_u32 s6, s6, {src}",
             f"v_add_u32 v{G+8}, s6, v{G+8}",
             lambda: e.ds(f"ds_read_b128 {vr(G,4)}, v{G+8}", "csr"), lambda: e.ds(f"ds_read_b128 {vr(G+4,4)}, v{G+8} offset:512", "csr")]
        m = [lambda: e.wds("csr")]
        for i in range(2):
            b = G + 4 * i
            m += [f"v_add_f32 v{b}, v{b}, v{b+1}", f"v_add_f32 v{b+2}, v{b+2}, v{b+3}"]
        for i in range(2): m += [f"v_add_f32 v{G+4*i}, v{G+4*i}, v{G+4*i+2}"]
        for i in range(2): m += [f"v_cvt_pk_bf16_f32 v{G+4*i+1}, v{G+4*i}, v{G+4*i}"]
        for i in range(2): m += [f"v_and_b32 v{G+4*i+1}, s{S_MASK}, v{G+4*i+1}"]
        for i in range(2): m += [f"v_sub_f32 v{G+4*i+1}, v{G+4*i}, v{G+4*i+1}"]
        for i in range(2): m += [f"v_cvt_pk_bf16_f32 v{G+4*i}, v{G+4*i}, v{G+4*i+1}"]
        for i in range(2): m += [f"v_cndmask_b32 v{ST+2*i}, v{G+4*i}, 0, s[{S_HI}:{S_HI+1}]"]
        return l, m

    for f in reads(0) + reads(1): f()
    side = Side(e); dmaq = list(stage_dmas(e, 2)) + ([touch(e, 2)] if TOUCH else [])
    w2side = Side(e); w2side.add(w2t_addr); w2side.add(late)
    for gp in range(28):
        sig, pos = gp // 4, gp % 4
        bar = None
        if pos == 2:
            def bar(sig=sig):
                e.wvm(f"d{sig+1}"); e("s_barrier")
                assert not dmaq
                dmaq.extend(stage_dmas(e, sig + 3))
                if sig == 0 and TOUCH: dmaq.append(touch(e, 3))
                if sig == 1:
                    dmaq.append(lambda: (e(f"s_add_u32 m0, s{S_WB}, {L_W2T}\ns_nop 0"),
                                         e.vm(f"buffer_load_dwordx4 v{VT}, s[{SRD_T}:{SRD_T+3}], s{S_TO} offen lds", "w2td")))
        if pos % 2 == 0 and 'nostat' not in X: side.add(stats(gp))
        if gp == 26: side.add(cs_write(L_CSA))
        n = -(-len(side.q) // (2 - pos % 2)) if gp < 26 else len(side.q) if gp == 27 else 16
        while len(dmaq) > 4 - ((pos + 2) % 4): dmaq.pop(0)()
        e.stamp(f"xp{gp}")
        w2side.emit(8 if gp < 4 else 4)
        position(gp, side, dmaq, n, bar)
    side.flush()
    e(f"""v_and_b32 v{TP}, 3, v0
v_cmp_eq_u32 vcc, 1, v{TP}
v_cmp_eq_u32 s[{S_A}:{S_B}], 2, v{TP}
v_cmp_eq_u32 s[{S_C}:{S_D}], 3, v{TP}
s_lshl_b32 s6, s{S_RT}, 1
s_add_u32 s6, s6, s{S_CG}
s_lshl_b32 s6, s6, 8
s_add_u32 s6, s6, {L_ST}
v_lshl_add_u32 v{TP+1}, v0, 2, s6""")
    for k in range(4): e(f"v_add_f32 v{SQA+k}, v{SQA+k}, v{SQB+k}")
    e(f"""v_cndmask_b32 v{SQA}, v{SQA}, v{SQA+1}, vcc
v_cndmask_b32 v{SQA}, v{SQA}, v{SQA+2}, s[{S_A}:{S_B}]
v_cndmask_b32 v{SQA}, v{SQA}, v{SQA+3}, s[{S_C}:{S_D}]""")
    e.ds(f"ds_write_b32 v{TP+1}, v{SQA}", "stw")
    e("s_mov_b64 exec, 0xffff")
    e.ds(f"ds_write_b32 v{TP+1}, v{ST} offset:2048", "stw")
    e.ds(f"ds_write_b32 v{TP+1}, v{ST+1} offset:2112", "stw")
    e("s_mov_b64 exec, -1")
    e.stamp("p1")

    KA = -2.0 * math.log2(math.e) * math.sqrt(2.0 / math.pi); KB = KA * 0.044715
    def gelu(acc, so, tb):
        l = []
        for k in range(8): l.append(f"v_mul_f32 v{tb+k}, v{acc+k}, v{acc+k}")
        for k in range(8): l.append(f"v_fma_f32 v{tb+k}, v{tb+k}, v{BC}, v{AC}")
        for k in range(8): l.append(f"v_mul_f32 v{tb+k}, v{tb+k}, v{acc+k}")
        for k in range(8): l += [f"v_exp_f32 v{tb+k}, v{tb+k}", f"v_mul_f32 v{acc+k}, v{acc+k}, v{acc+8+k}"]
        for k in range(8): l.append(f"v_fma_f32 v{tb+k}, v{tb+k}, v{I2}, v{I2}")
        for k in range(8): l.append(f"v_rcp_f32 v{tb+k}, v{tb+k}")
        for k in range(8): l.append(f"v_mul_f32 v{acc+k}, v{acc+k}, v{tb+k}")
        for k in range(4): l.append(f"v_cvt_pk_bf16_f32 v{acc+8+k}, v{acc+2*k}, v{acc+2*k+1}")
        l.append(lambda: e.vm(f"buffer_store_dwordx4 {vr(acc+8,4)}, v{VL16}, {WS}, s{so} offen {SC}", "hs"))
        return l
    def h_off(line, dst):
        return f"""s_lshl_b32 s6, s{S_RB}, 2
s_add_u32 s6, s6, s{S_RT}
s_mul_i32 s6, s6, 144
s_lshl_b32 s{dst}, s{line}, 2
s_add_u32 s6, s6, s{dst}
s_add_u32 s6, s6, s{S_T0}
s_lshl_b32 s{dst}, s6, 10
s_add_u32 s{dst+1}, s{dst}, 1024"""
    def after_exchange(side):
        l, m = cs_read(L_CSA)
        side.add(l)
        side.add([f"v_and_b32 v{G+9}, 31, v0", f"v_lshlrev_b32 v{G+9}, 2, v{G+9}", f"s_lshl_b32 s6, s{S_RT}, 9", f"s_add_u32 s6, s6, {L_ST}",
                  f"v_add_u32 v{G+9}, s6, v{G+9}",
                  lambda: (e.ds(f"ds_read2_b32 {vr(G+12,2)}, v{G+9} offset0:0 offset1:32", "str"),
                           e.ds(f"ds_read2_b32 {vr(G+14,2)}, v{G+9} offset0:64 offset1:96", "str"),
                           e.ds(f"ds_read2st64_b32 {vr(BEXT+2,2)}, v{G+9} offset0:8 offset1:9", "str")),
                  f"v_mov_b32 v{ST+1}, 0", f"v_mov_b32 v{ST+3}, 0", f"v_mov_b32 v{BEXT+1}, 0"])
        side.add(m)
        x = G + 12
        side.add([lambda: e.wds("str")])
        side.add(f"""s_mov_b32 s6, {f2u(1.0/448)}
v_add_f32 v{x}, v{x}, v{x+2}
v_add_f32 v{x+1}, v{x+1}, v{x+3}
v_add_f32 v{x+1}, v{x+1}, v{x}
v_add_f32 v{x}, v{BEXT+2}, v{BEXT+3}
v_mov_b32 v{BEXT+2}, 0
v_mov_b32 v{BEXT+3}, 0
v_mul_f32 v{x}, s6, v{x}
v_mul_f32 v{x+1}, s6, v{x+1}
v_cvt_pk_bf16_f32 v{BEXT}, -v{x}, -v{x}
v_fma_f32 v{x+1}, -v{x}, v{x}, v{x+1}
v_max_f32 v{x+1}, 0, v{x+1}""")
        side.add([mfma(ACCA, ST, BEXT)])
        side.add(f"""v_cvt_pk_bf16_f32 v{x+1}, v{x+1}, v{x+1}
v_and_b32 v{x+1}, s{S_MASK}, v{x+1}
v_add_f32 v{x+1}, {f2u(1e-5)}, v{x+1}""")
        side.add([mfma(ACCA + 16, ST + 2, BEXT)])
        side.add(f"""v_cvt_pk_bf16_f32 v{x+1}, v{x+1}, v{x+1}
v_and_b32 v{x+1}, s{S_MASK}, v{x+1}
v_sqrt_f32 v{x+1}, v{x+1}
s_mov_b32 s6, {f2u(KA)}
v_cvt_pk_bf16_f32 v{x+1}, v{x+1}, v{x+1}
v_and_b32 v{S_}, s{S_MASK}, v{x+1}
v_rcp_f32 v{R_}, v{S_}
v_mul_f32 v{I2}, v{S_}, v{S_}
v_mul_f32 v{AC}, s6, v{R_}
v_mul_f32 v{BC}, v{R_}, v{R_}
v_mul_f32 v{BC}, v{BC}, v{AC}
v_mul_f32 v{BC}, {f2u(0.044715)}, v{BC}""")

    def w2t_out(side):
        side.add(f"""v_lshrrev_b32 v{TP}, 5, v0
v_bfe_u32 v{TP+1}, v0, 2, 2
v_lshl_add_u32 v{TP}, v{TP}, 2, v{TP+1}
v_lshlrev_b32 v{TP}, 7, v{TP}
v_bfe_u32 v{TP+1}, v0, 4, 1
v_lshl_add_u32 v{TP}, v{TP+1}, 5, v{TP}
v_and_b32 v{TP+1}, 3, v0
v_lshl_add_u32 v{TP}, v{TP+1}, 3, v{TP}
s_lshr_b32 s6, s{S_W}, 1
s_lshl_b32 s6, s6, 11
s_and_b32 s{S_A}, s{S_W}, 1
s_lshl_b32 s{S_B}, s{S_A}, 6
s_add_u32 s6, s6, s{S_B}
s_add_u32 s6, s6, {L_W2T}
v_add_u32 v{TP}, s6, v{TP}""")
        side.add([lambda: (e.ds(f"ds_read_b64_tr_b16 {vr(PL,2)}, v{TP}", "w2tr"), e.ds(f"ds_read_b64_tr_b16 {vr(PL+2,2)}, v{TP} offset:1024", "w2tr")),
                  f"s_lshl_b32 s6, s{S_U}, 11", f"s_lshl_b32 s{S_A}, s{S_A}, 10", f"s_add_u32 s6, s6, s{S_A}", f"s_add_u32 s{S_TO}, s6, {W2T}",
                  lambda: (e.wds("w2tr"), e.vm(f"buffer_store_dwordx4 {vr(PL,4)}, v{VL16}, {WS}, s{S_TO} offen {SC}", "w2ts"))])
    GX, GBN, GFL, QRATE = P("GX", 0), P("GBN", 3), P("GFL", 10), P("QRATE", 30)
    def pass2(qfirst):
        side = Side(e); dq = list(dmaq)
        for g in range(28):
            gp = 28 + g
            pre = []; wd = []; wv = []; post = []
            if g == GX:
                wd += ["stw", "csw"]
                def p():
                    dq.extend(stage_dmas(e, 10))
                    after_exchange(side)
                    if not qfirst:
                        side.add(h_off(S_LA, S_C))
                        side.add(gelu(ACCA, S_C, G)); side.add(gelu(ACCA + 16, S_D, G))
                    else: qkv_part1(side)
                post.append(p)
            if g in (6, 14, 22): wv.append(f"d{8 + g // 8}")
            if qfirst and g == GBN: pre.append(side.flush); wd.append("kvw"); post.append(lambda: qkv_part2(side))
            if qfirst and g == GFL:
                pre.append(side.flush); wv.append("qs")
                post.append(lambda: flag_store(e, f"""s_lshl_b32 s6, s{S_RB}, 2
s_add_u32 s6, s6, s{S_QU}
s_lshl_b32 s6, s6, 2
s_add_u32 s6, s6, {F_KV}
v_lshlrev_b32 v{G}, 8, v0
v_add_u32 v{G}, s6, v{G}""", RKV, G))
            if g == P("GW2", 11):
                q0 = side.q; side.q = []; w2t_out(side); side.q += q0
            if g == 22:
                wv.append("w2ts")
                post.append(lambda: flag_store(e, f"""s_mul_hi_u32 s6, s2, {(2**32 + 35)//36}
s_mul_i32 s6, s6, 28
s_add_u32 s6, s6, s2
s_lshl_b32 s6, s6, 2
s_add_u32 s6, s6, {F_W}
v_mov_b32 v{TP}, s6""", 1, TP))
            if g == 24:
                poll_issue(e, f"""s_and_b32 s6, s2, {RKV-1}
s_lshl_b32 s6, s6, 8
s_add_u32 s6, s6, {F_KV}
v_lshl_add_u32 v{PL}, v0, 2, s6""", PL, PL + 1, "kvp")
            if g == 25:
                side.flush(); side.add(cs_write(L_CSB))
            if g == 26:
                pre.append(side.flush); wd.append("csw")
                def p():
                    l, m = cs_read(L_CSB); side.add(l); side.add(m)
                post.append(p)
            bar = None
            if wd or wv:
                def bar():
                    for f in pre: f()
                    if wd: e.wds(*wd)
                    if wv: e.wvm(*wv)
                    e("s_barrier")
                    for f in post: f()
            if qfirst: n = QRATE if g < GFL else 12
            else: n = -(-len(side.q) // max(1, 25 - g)) if GX < g < 25 else 12
            e.stamp(f"xg{g}")
            position(gp, side, dq, n, bar)
        side.flush()
        e.stamp("xpe2")
        e("s_nop 1")
        e(mfma(ACCB, ST, BEXT)); e(mfma(ACCB + 16, ST + 2, BEXT))
    RQ = 2
    def qkv_part1(side):
        side.add(f"""v_mul_f32 v{RQ}, {f2u(28 ** -0.5 * math.log2(math.e))}, v{R_}
v_and_b32 v{G+8}, 31, v0
v_lshlrev_b32 v{G+8}, 5, v{G+8}
s_lshl_b32 s6, s{S_RT}, 10
s_add_u32 s6, s6, {L_KVB}
v_add_u32 v{G+8}, s6, v{G+8}
s_mov_b32 s{S_D}, 0x00003f80
s_cmp_lt_u32 s{S_QU}, 2
s_cselect_b32 s{S_C}, 0x3f803f80, s{S_D}
s_cselect_b32 s{S_D}, s{S_D}, 0""")
        for i, st_ in ((0, S_T0), (1, S_T1)):
            acc = ACCA + 16 * i; b = G + 4 * i
            for k in range(4): side.add([f"v_mul_f32 v{b+k}, v{acc+12+k}, v{R_}"])
            side.add(f"""s_sub_u32 s6, 3, s{st_}
s_lshl_b32 s{S_A}, s{st_}, 2
s_lshr_b32 s{S_A}, 0x0132, s{S_A}
s_and_b32 s{S_A}, s{S_A}, 3
s_bitcmp1_b32 s{S_QU}, 0
s_cselect_b32 s6, s{S_A}, s6
s_cselect_b32 s{S_A}, s{S_A}, 0
s_lshl_b32 s6, s6, 3
v_cvt_pk_bf16_f32 v{b}, v{b}, v{b+1}
v_cvt_pk_bf16_f32 v{b+1}, v{b+2}, v{b+3}
v_add_u32 v{b+2}, s6, v{G+8}""")
            def wr(b=b):
                l = e.newlabel("nc")
                e(f"s_cmp_eq_u32 s{S_A}, 3\ns_cbranch_scc0 {l}\nv_mov_b32 v{b}, s{S_C}\nv_mov_b32 v{b+1}, s{S_D}")
                e.label(l)
                e(f"s_mov_b64 exec, s[{S_HI}:{S_HI+1}]")
                e.ds(f"ds_write_b64 v{b+2}, {vr(b,2)}", "kvw")
                e("s_mov_b64 exec, -1")
            side.add([wr])
    def qkv_part2(side):
        def kv():
            l = e.newlabel("kvs"); lv = e.newlabel("kvv"); ls = e.newlabel("kvt")
            e(f"""s_cmp_eq_u32 s{S_CG}, 0
s_cbranch_scc0 {l}
s_lshl_b32 s6, s{S_RB}, 2
s_add_u32 s6, s6, s{S_RT}
s_lshl_b32 s6, s6, 12
s_add_u32 s6, s6, {KVF}
s_lshl_b32 s{S_A}, s{S_RT}, 10
s_add_u32 s{S_A}, s{S_A}, {L_KVB}
s_cmp_lt_u32 s{S_QU}, 2
s_cbranch_scc0 {lv}
v_and_b32 v{G}, 31, v0
v_lshrrev_b32 v{G+1}, 5, v0
v_lshlrev_b32 v{G}, 5, v{G}
v_lshl_add_u32 v{G}, v{G+1}, 3, v{G}
v_add_u32 v{G}, s{S_A}, v{G}
ds_read2_b64 {vr(G+4,4)}, v{G} offset0:0 offset1:2
s_lshl_b32 s{S_A}, s{S_QU}, 10
s_add_u32 s6, s6, s{S_A}
v_mov_b32 v{G+2}, v{VL16}
s_branch {ls}""")
            e.label(lv)
            e(f"""v_lshrrev_b32 v{G}, 5, v0
v_bfe_u32 v{G+1}, v0, 4, 1
v_lshlrev_b32 v{G+2}, 10, v{G}
v_lshl_add_u32 v{G+2}, v{G+1}, 9, v{G+2}
v_lshlrev_b32 v{G}, 4, v{G}
v_lshl_add_u32 v{G}, v{G+1}, 2, v{G}
v_bfe_u32 v{G+1}, v0, 2, 2
v_add_u32 v{G}, v{G}, v{G+1}
v_lshlrev_b32 v{G}, 5, v{G}
v_and_b32 v{G+1}, 3, v0
v_lshl_add_u32 v{G}, v{G+1}, 3, v{G}
v_add_u32 v{G}, s{S_A}, v{G}
ds_read_b64_tr_b16 {vr(G+4,2)}, v{G}
ds_read_b64_tr_b16 {vr(G+6,2)}, v{G} offset:256
v_and_b32 v{G+1}, 15, v0
v_lshl_add_u32 v{G+2}, v{G+1}, 4, v{G+2}
s_and_b32 s{S_A}, s{S_QU}, 1
s_lshl_b32 s{S_A}, s{S_A}, 8
s_add_u32 s6, s6, s{S_A}
s_add_u32 s6, s6, 2048""")
            e.label(ls)
            e(f"s_waitcnt lgkmcnt(0)\nbuffer_store_dwordx4 {vr(G+4,4)}, v{G+2}, {WS}, s6 offen {SC}")
            e.label(l)
        side.add([kv])
        side.add(f"""s_lshl_b32 s6, s{S_RB}, 2
s_add_u32 s6, s6, s{S_RT}
s_lshl_b32 s6, s6, 2
s_add_u32 s6, s6, s{S_QU}
s_lshl_b32 s6, s6, 2
s_add_u32 s6, s6, s{S_T0}
s_lshl_b32 s6, s6, 11
s_add_u32 s{S_C}, s6, {QF}""")
        for i in range(2):
            acc = ACCA + 16 * i
            for k in range(16): side.add([f"v_mul_f32 v{acc+k}, v{acc+k}, v{RQ}"])
            for k in range(8): side.add([f"v_cvt_pk_bf16_f32 v{acc+k}, v{acc+2*k}, v{acc+2*k+1}"])
            side.add([f"v_cndmask_b32 v{acc+6}, v{acc+6}, 0, s[{S_HI}:{S_HI+1}]", f"v_cndmask_b32 v{acc+7}, v{acc+7}, 0, s[{S_HI}:{S_HI+1}]",
                      lambda acc=acc, i=i: e.vm(f"buffer_store_dwordx4 {vr(acc,4)}, v{VL16}, {WS}, s{S_C} offen offset:{2048*i} {SC}", "qs"),
                      lambda acc=acc, i=i: e.vm(f"buffer_store_dwordx4 {vr(acc+4,4)}, v{VL16}, {WS}, s{S_C} offen offset:{2048*i+1024} {SC}", "qs")])
    e(f"s_cmp_eq_u32 s{S_ISQ}, 1\ns_cbranch_scc1 B_p2q")
    sn = e.snap(); hs = {k: list(v) for k, v in half.items()}; ns = e.nst
    pass2(False)
    e("s_branch B_join")
    e.label("B_p2q")
    e.nst = ns
    e.restore(sn); half.update({k: list(v) for k, v in hs.items()})
    pass2(True)
    e.label("B_join")
    e.q = {'ds': [], 'vm': ['kvp']}; e.done = {'ds': 0, 'vm': 0}
    e.stamp("join")
    return gelu, h_off

LB0, LB1, VO = 3, 4, 5
Q, O, S0, PP, K, V0, V1 = 36, 44, 64, 96, 104, 112, 120
FA, FB = 128, 192
XRES = 244
S_KH, S_QT, S_KVO, S_WB4, S_FA, S_FB0, S_FB1, S_OO = 50, 51, 54, 55, 56, 57, 59, 60
S_FQ, S_K1 = 62, 63
F0 = P("F0", 8)

def kv_dma(e, st):
    l = [lambda: e(f"s_add_u32 m0, s{S_WB4}, {((st + 3) % 4) * RING}\ns_nop 0")]
    for f in range(4):
        l.append(lambda f=f: e.vm(f"buffer_load_dwordx4 v{VL16}, {WS}, s{S_KVO} offen offset:{1024*f} {SC} lds", f"k{st}"))
    l.append(lambda: e(f"s_add_u32 s{S_KVO}, s{S_KVO}, 16384"))
    return l

def f_loads(e, q):
    b = FB + 16 * (q % 3)
    adv = f"""s_add_u32 s{S_FQ}, s{S_FQ}, 1
s_cmp_eq_u32 s{S_FQ}, 14
s_cselect_b32 s6, {-13*1024}, s{S_K1}
s_add_u32 s{S_FB0}, s{S_FB0}, s6
s_add_u32 s{S_FB1}, s{S_FB1}, s6
s_lshl_b32 s6, s6, 1
s_add_u32 s{S_FA}, s{S_FA}, s6"""
    return [lambda: e.vm(f"buffer_load_dwordx4 {vr(b,4)}, v{VL16}, {WS}, s{S_FA} offen {SC}", f"f{q}"),
            lambda: e.vm(f"buffer_load_dwordx4 {vr(b+8,4)}, v{VL16}, {WS}, s{S_FB0} offen {SC}", f"f{q}"),
            lambda: e.vm(f"buffer_load_dwordx4 {vr(b+4,4)}, v{VL16}, {WS}, s{S_FA} offen offset:1024 {SC}", f"f{q}"),
            lambda: (e.vm(f"buffer_load_dwordx4 {vr(b+12,4)}, v{VL16}, {WS}, s{S_FB1} offen {SC}", f"f{q}"), e(adv))]
def f_mfma(q, k):
    b = FB + 16 * (q % 3); r2, d2 = ((0, 0), (0, 1), (1, 1), (1, 0))[k]
    return mfma(FA + 32*r2 + 16*d2, b + 4*d2, b + 8 + 4*r2, "0" if q == 0 else None)

def attn_setup(e, gelu, h_off):
    e(h_off(S_LB, S_C))
    e(f"""s_mov_b32 s{S_QT}, s{S_RT}
s_mov_b32 s{S_KH}, s{S_CG}
s_lshl_b32 s{S_WB4}, s{S_W}, 12
s_lshl_b32 s6, s{S_KH}, 5
s_add_u32 s6, s6, s{S_QT}
s_lshl_b32 s6, s6, 12
s_add_u32 s{S_KVO}, s6, {KVF}
s_lshl_b32 s6, s{S_RB}, 2
s_add_u32 s6, s6, s{S_QT}
s_lshl_b32 s7, s6, 4
s_add_u32 s7, s7, s{S_J}
s_lshl_b32 s7, s7, 11
s_add_u32 s7, s7, {QF}""")
    g0 = gelu(ACCB, S_C, G); g1 = gelu(ACCB + 16, S_D, G)
    nfirst = P("GFIRST", 0)
    both = g0 + g1
    for it in both[:nfirst]: it() if callable(it) else e(it)
    poll_check(e, PL, PL + 1, "kvp")
    e("s_barrier")
    e.stamp("xkv")
    for f in kv_dma(e, 0): f()
    e.vm(f"buffer_load_dwordx4 {vr(Q,4)}, v{VL16}, {WS}, s7 offen {SC}", "q")
    e.vm(f"buffer_load_dwordx4 {vr(Q+4,4)}, v{VL16}, {WS}, s7 offen offset:1024 {SC}", "q")
    side = Side(e); side.add(kv_dma(e, 1)); side.add(kv_dma(e, 2))
    for n, it in enumerate(both[nfirst:]):
        it() if callable(it) else e(it)
        if n % 3 == 2: side.emit(1)
    side.flush()
    e(f"""s_lshl_b32 s6, s{S_KH}, 14
v_add_u32 v{LB0}, s6, v{VL16}
v_add_u32 v{LB1}, 0x10000, v{LB0}
s_lshl_b32 s6, s{S_RB}, 2
s_add_u32 s6, s6, s{S_QT}
s_mul_i32 s6, s6, 144
s_lshl_b32 s7, s{S_J}, 1
s_add_u32 s6, s6, s7
s_add_u32 s6, s6, s{S_KH}
s_add_u32 s6, s6, 112
s_lshl_b32 s{S_OO}, s6, 10""")

def rd(e, dst, tile, f, tag):
    sl = (tile // 4 + 3) % 4
    e.ds(f"ds_read_b128 {vr(dst,4)}, v{LB0 if sl < 2 else LB1} offset:{(sl & 1) * RING + (tile % 4) * 4096 + f * 1024}", tag)

def attn_loop(e, withF):
    e.stamp("xge")
    e.wvm("k0", "q"); e.stamp("xk0"); e("s_barrier")
    e.stamp("astart")
    rd(e, K, 0, 0, "a"); rd(e, K + 4, 0, 1, "a"); rd(e, V0, 0, 2, "b")
    e.wds("a")
    e(mfma(S0, K, Q, "0")); e(mfma(S0, K + 4, Q + 4))
    rd(e, K, 1, 0, "b"); rd(e, K + 4, 1, 1, "b")
    if withF:
        e(f"""s_lshr_b32 s6, s{S_J}, 3
s_lshl_b32 s7, s{S_RB}, 1
s_add_u32 s6, s6, s7
s_and_b32 s7, s{S_J}, 7
s_and_b32 s{S_FQ}, s{S_RB}, 3
s_lshl_b32 s{S_FQ}, s{S_FQ}, 1
s_add_u32 s{S_FQ}, s{S_FQ}, s7
s_cmp_ge_u32 s{S_FQ}, 7
s_cselect_b32 s{S_A}, 7, 0
s_sub_u32 s{S_FQ}, s{S_FQ}, s{S_A}
s_mul_i32 s{S_FQ}, s{S_FQ}, {P("FROT", 0)}
s_movk_i32 s{S_K1}, 1024
s_mul_i32 s{S_A}, s{S_W}, 14
s_add_u32 s{S_A}, s{S_A}, s{S_FQ}
s_mul_i32 s{S_FB0}, s6, 288
s_add_u32 s{S_FB0}, s{S_FB0}, s{S_A}
s_lshl_b32 s{S_FB0}, s{S_FB0}, 10
s_add_u32 s{S_FB1}, s{S_FB0}, {144*1024}
s_mul_i32 s{S_FA}, s7, 144
s_add_u32 s{S_FA}, s{S_FA}, s{S_A}
s_lshl_b32 s{S_FA}, s{S_FA}, 11
s_add_u32 s{S_FA}, s{S_FA}, {W2T}""")
    else:
        e("s_nop 9")
    NT = 32
    fq = []
    nq = 0
    for i in range(NT):
        sc = S0 + 16 * (i & 1); sn = S0 + 16 * ((i + 1) & 1)
        v0c = V0 + 4 * (i & 1); v0n = V0 + 4 * ((i + 1) & 1)
        E = lambda r: f"v_exp_f32 v{r}, v{r}"
        C = lambda d, r: f"v_cvt_pk_bf16_f32 v{d}, v{r}, v{r+1}"
        def g(k): return [E(sc + 4*k + q) for q in range(4)] + [C(PP + 2*k, sc + 4*k), C(PP + 2*k + 1, sc + 4*k + 2)]
        g0, g1, g2, g3 = g(0), g(1), g(2), g(3)
        fm = [None, None]; fl = []
        if withF:
            if i == F0 - 4:
                assert (F0 - 2) % 4 == 2
                fl = [lambda: poll_issue(e, f"""s_lshl_b32 s6, s{S_RB}, 7
s_add_u32 s6, s6, {F_H}
s_and_b32 s7, s{S_J}, 7
s_lshl_b32 s7, s7, 8
s_add_u32 s7, s7, {F_W - 64}
v_lshl_add_u32 v{G}, v0, 2, s6
v_lshl_add_u32 v{G+1}, v0, 2, s7
v_cmp_lt_u32 vcc, 15, v0
v_mov_b32 v{G+2}, s6
s_nop 0
v_cndmask_b32 v{G}, v{G}, v{G+1}, vcc
v_cmp_lt_u32 vcc, 51, v0
s_nop 1
v_cndmask_b32 v{G}, v{G}, v{G+2}, vcc""", G, G + 1, "hp")]
            if i == F0 - 2: fl = [lambda: None] + f_loads(e, 0)
            if i == F0 - 1: fl = f_loads(e, 1)
            if i >= F0:
                q = (i - F0) // 2; h = (i - F0) & 1
                fm = [f_mfma(q, 2*h), f_mfma(q, 2*h + 1)]
                if h == 0 and q + 2 < 14: fq = f_loads(e, q + 2)
                fl = fq[:2]; fq = fq[2:]
                nq = q + 1
        def em(x): x() if callable(x) else e(x)
        e.stamp(f"xa{i}")
        for x in g0[:2]: em(x)
        e.all_ds()
        if i > 0: e(mfma(O, V1, PP + 4))
        rd(e, V1, i, 3, "c")
        for x in g0[2:5]: em(x)
        if fm[0]:
            if (i - F0) & 1 == 0: e.wvm(f"f{(i - F0) // 2}")
            e(fm[0])
        for x in g0[5:] + g1[:2]: em(x)
        if i + 1 < NT: e(mfma(sn, K, Q, "0")); rd(e, v0n, i + 1, 2, "c")
        for x in g1[2:4]: em(x)
        if fl: em(fl.pop(0))
        for x in g1[4:] + g2[:2]: em(x)
        if i + 1 < NT: e(mfma(sn, K + 4, Q + 4))
        extra = []
        if i % 4 == 2 and i + 2 < NT:
            st = i // 4
            if withF and i == F0 - 2: poll_check(e, G, G + 1, "hp")
            e.wvm(*([f"k{st+1}"] + (["hs"] if i == 2 else []))); e("s_barrier")
            if i == 2:
                flag_store(e, f"""s_lshl_b32 s6, s{S_RB}, 5
s_add_u32 s6, s6, s{S_J}
s_lshl_b32 s6, s6, 2
s_add_u32 s6, s6, {F_H}
v_mov_b32 v{G}, s6""", 1, G)
            if st + 3 <= 7: extra = kv_dma(e, st + 3)
        em(g2[2])
        if i + 2 < NT: rd(e, K, i + 2, 0, "c")
        em(g2[3])
        if i + 2 < NT: rd(e, K + 4, i + 2, 1, "c")
        else: e("s_nop 0")
        em(g2[4])
        if fm[1]: e(fm[1])
        for x in g2[5:] + g3[:2]: em(x)
        e(mfma(O, v0c, PP, "0" if i == 0 else None))
        rest = extra + fl
        for x in rest[:3]: em(x)
        for x in g3[2:4]: em(x)
        for x in rest[3:]: em(x)
        for x in g3[4:]: em(x)
    e.all_ds()
    e("s_nop 0")
    e(mfma(O, V1, PP + 4))
    return nq, fq

def attn_finish(e):
    T = G
    e.stamp("aend")
    e(f"""s_barrier
v_add_u32 v{T}, s{S_WB4}, v{VL16}
s_lshl_b32 s7, s{S_KH}, 11
v_add_u32 v{T+1}, s7, v{T}
v_xor_b32 v{T+2}, 16384, v{T+1}
v_or_b32 v{T+3}, 32, v0
v_lshlrev_b32 v{T+3}, 4, v{T+3}
v_add_u32 v{T+3}, s{S_WB4}, v{T+3}
v_xor_b32 v{T+8}, 16384, v{T+3}
s_nop 3""")
    for q in range(4): e.ds(f"ds_write_b128 v{T}, {vr(O+4*q,4)} offset:{1024*q}")
    e.all_ds()
    e("s_barrier")
    e.ds(f"ds_read_b32 v{PP}, v{T+3} offset:3072", "l"); e.ds(f"ds_read_b32 v{PP+1}, v{T+8} offset:3072", "l")
    e.ds(f"ds_read_b128 {vr(S0,4)}, v{T+1}"); e.ds(f"ds_read_b128 {vr(S0+4,4)}, v{T+1} offset:1024")
    e.ds(f"ds_read_b128 {vr(S0+8,4)}, v{T+2}"); e.ds(f"ds_read_b128 {vr(S0+12,4)}, v{T+2} offset:1024")
    e.wds("l")
    e(f"v_add_f32 v{PP}, v{PP}, v{PP+1}\nv_rcp_f32 v{PP+1}, v{PP}")
    e.all_ds()
    for k in range(8): e(f"v_add_f32 v{S0+k}, v{S0+k}, v{S0+8+k}")
    for k in range(8): e(f"v_mul_f32 v{S0+k}, v{S0+k}, v{PP+1}")
    for k in range(4): e(f"v_cvt_pk_bf16_f32 v{K+k}, v{S0+2*k}, v{S0+2*k+1}")
    e(f"""s_mov_b32 s{S_A}, 0
s_sub_u32 s{S_B}, 0, s{S_KH}
v_cndmask_b32 v{K+2}, v{K+2}, 0, s[{S_A}:{S_B}]
v_cndmask_b32 v{K+3}, v{K+3}, 0, s[{S_A}:{S_B}]""")
    e.vm(f"buffer_store_dwordx4 {vr(K,4)}, v{VL16}, {WS}, s{S_OO} offen {SC}", "os")

def o_flag(e):
    e.wvm("os"); e("s_barrier")
    flag_store(e, f"""s_lshl_b32 s6, s{S_RB}, 5
s_add_u32 s6, s6, s{S_J}
s_lshl_b32 s6, s6, 2
s_add_u32 s6, s6, {F_O}
v_mov_b32 v{G}, s6""", 1, G)

def tail(e, nq, fq):
    T = G
    OA, OB = 64, 96
    for f in fq: f()
    done_flag = False
    def kstep(q):
        if q + 2 < 14:
            for f in f_loads(e, q + 2): f()
        e.wvm(f"f{q}")
        for k in range(4): e(f_mfma(q, k))
    if nq < 14: kstep(nq); nq += 1
    o_flag(e)
    e(f"""s_lshr_b32 s6, s{S_J}, 3
s_lshl_b32 s7, s{S_RB}, 1
s_add_u32 s6, s6, s7
s_mul_i32 s{S_A}, s6, 288
s_lshl_b32 s{S_B}, s{S_W}, 2
s_add_u32 s{S_A}, s{S_A}, s{S_B}
s_add_u32 s{S_A}, s{S_A}, 112
s_lshl_b32 s{S_C}, s{S_A}, 10
s_add_u32 s{S_D}, s{S_C}, {144*1024}
s_and_b32 s7, s{S_J}, 7
s_mul_i32 s{S_A}, s7, 144
s_add_u32 s{S_A}, s{S_A}, s{S_B}
s_add_u32 s{S_A}, s{S_A}, 112
s_lshl_b32 s{S_A}, s{S_A}, 11
s_add_u32 s{S_A}, s{S_A}, {W2T}
s_add_u32 s{S_G}, s{S_A}, 4096
s_lshl_b32 s6, s6, 6
s_lshl_b32 s{S_B}, s{S_W}, 3
s_add_u32 s6, s6, s{S_B}
v_lshrrev_b32 v{T}, 3, v0
v_add_u32 v{T}, s6, v{T}
v_mul_u32_u24 v{T}, 896, v{T}
v_and_b32 v{T+1}, 7, v0
v_lshl_add_u32 v{T}, v{T+1}, 4, v{T}
s_lshl_b32 s7, s7, 7
v_add_u32 v{VO}, s7, v{T}
""")
    for k in range(8):
        e.vm(f"buffer_load_dwordx4 {vr(OA+4*k,4)}, v{VL16}, {WS}, s{S_A if k < 4 else S_G} offen offset:{(k&3)*1024} {SC}", "oa")
    e.vm(f"buffer_load_dwordx4 {vr(XRES,4)}, v{VO}, s[{SRD_X}:{SRD_X+3}], 0 offen", "xr")
    while nq < 14: kstep(nq); nq += 1
    poll_issue(e, f"""s_lshl_b32 s6, s{S_RB}, 7
s_add_u32 s6, s6, {F_O}
v_and_b32 v{T}, 15, v0
v_lshl_add_u32 v{T}, v{T}, 2, s6""", T, T + 1, "op")
    srd(e, SRD_OUT, P_OUT, 2048 * 896)
    e.stamp("t1")
    poll_check(e, T, T + 1, "op")
    e.wvm("xr")
    e("s_barrier")
    e.stamp("t2")
    for k in range(4):
        e.vm(f"buffer_load_dwordx4 {vr(OB+8*k,4)}, v{VL16}, {WS}, s{S_C} offen offset:{k*1024} {SC}", f"ob{k}")
        e.vm(f"buffer_load_dwordx4 {vr(OB+8*k+4,4)}, v{VL16}, {WS}, s{S_D} offen offset:{k*1024} {SC}", f"ob{k}")
    e(f"""v_and_b32 v{T}, 31, v0
v_lshrrev_b32 v{T+1}, 5, v0
v_and_b32 v{T+2}, 7, v0
v_xor_b32 v{T+1}, v{T+1}, v{T+2}
v_lshlrev_b32 v{T+1}, 4, v{T+1}
v_lshl_add_u32 v{T}, v{T}, 8, v{T+1}
s_lshl_b32 s6, s{S_W}, 14
v_add_u32 v8, s6, v{T}""")
    for q in range(1, 4): e(f"v_xor_b32 v{8+q}, {q*32}, v8")
    e(f"""v_lshrrev_b32 v{T}, 3, v0
v_and_b32 v{T+1}, 7, v0
v_lshlrev_b32 v{T+1}, 1, v{T+1}
v_xor_b32 v{T+1}, v{T+1}, v{T}
v_lshlrev_b32 v{T+1}, 4, v{T+1}
v_lshl_add_u32 v{T}, v{T}, 8, v{T+1}
s_lshl_b32 s6, s{S_W}, 11
v_add_u32 v12, s6, v{T}
v_xor_b32 v13, 16, v12
v_add_u32 v14, 0x10000, v12
v_add_u32 v15, 0x10000, v13""")
    for k in range(4):
        e(f"v_lshlrev_b32 v{16+2*k}, 16, v{XRES+k}\nv_and_b32 v{17+2*k}, s{S_MASK}, v{XRES+k}")
    for k in range(4):
        e.wvm(f"ob{k}")
        order = ((0, 0), (0, 1), (1, 1), (1, 0))
        for r2, d2 in order: e(mfma(FA + 32*r2 + 16*d2, OA + 8*k + 4*d2, OB + 8*k + 4*r2))
    e("s_nop 8")
    e.stamp("t3")
    for (r2, d2) in ((0, 0), (0, 1), (1, 1), (1, 0)):
        for q in range(4):
            e.ds(f"ds_write_b128 v{8+q}, {vr(FA+32*r2+16*d2+4*q,4)} offset:{r2*8192 + d2*128}")
    e.all_ds()
    e("s_barrier")
    for p in range(8):
        b0 = 12 if p < 4 else 14
        e.ds(f"ds_read_b128 {vr(FA+8*p,4)}, v{b0} offset:{(p&3)*16384}", f"p{p}")
        e.ds(f"ds_read_b128 {vr(FA+8*p+4,4)}, v{b0+1} offset:{(p&3)*16384}", f"p{p}")
    for p in range(8):
        e.wds(f"p{p}")
        for k in range(8): e(f"v_add_f32 v{16+k}, v{16+k}, v{FA+8*p+k}")
    for k in range(4): e(f"v_cvt_pk_bf16_f32 v{XRES+k}, v{16+2*k}, v{17+2*k}")
    e.vm(f"buffer_store_dwordx4 {vr(XRES,4)}, v{VO}, s[{SRD_OUT}:{SRD_OUT+3}], 0 offen")

def build():
    e = Em()
    kn = NAME + "_kernel"
    e.a.raw(f".globl {kn}\n.p2align 8\n.type {kn},@function")
    e.label(kn)
    prologue(e)
    gelu, h_off = phaseB(e)
    attn_setup(e, gelu, h_off)
    e(f"s_and_b32 s6, s{S_J}, 7\ns_cmp_eq_u32 s6, 7\ns_cbranch_scc1 C_noF")
    sn = e.snap(); ns = e.nst
    nq, fq = attn_loop(e, True)
    attn_finish(e)
    tail(e, nq, fq)
    nend = e.nst
    e("s_branch K_fin")
    e.label("C_noF")
    e.restore(sn); e.nst = ns
    attn_loop(e, False)
    attn_finish(e)
    o_flag(e)
    e(f"""s_cmp_eq_u32 s{S_RB}, 0
s_cbranch_scc0 C_noF_done
s_cmp_eq_u32 s{S_J}, 7
s_cbranch_scc0 C_noF_done
s_cmp_eq_u32 s{S_W}, 0
s_cbranch_scc0 C_noF_done""")
    for k in range(4):
        e(f"""v_lshrrev_b32 v{G}, 4, v0
v_and_b32 v{G+1}, 15, v0
v_lshlrev_b32 v{G}, 7, v{G}
v_lshl_add_u32 v{G}, v{G+1}, 2, v{G}
v_add_u32 v{G}, {F_H + 512*k}, v{G}""")
        e.vm(f"buffer_load_dword v{G+1}, v{G}, {WS}, 0 offen {SC}", f"ep{k}")
        poll_check(e, G, G + 1, f"ep{k}")
    e(f"v_mov_b32 v{G}, {EPO}\nv_mov_b32 v{G+1}, s{S_NON}\ns_mov_b64 exec, 1\nbuffer_store_dword v{G+1}, v{G}, {WS}, 0 offen {SC}\ns_mov_b64 exec, -1")
    e.label("C_noF_done")
    while e.nst < nend and not STAMPS_OFF: e.stamp()
    e.label("K_fin")
    if 'stdiag' in X:
        e("""s_memtime s[92:93]
s_waitcnt lgkmcnt(0)
K_sd:
s_sleep 2
s_memtime s[90:91]
s_waitcnt lgkmcnt(0)
s_sub_u32 s6, s90, s92
s_cmp_lt_u32 s6, s94
s_cbranch_scc1 K_sd""")
    if 'fix' in X:
        e("""K_fx:
s_sleep 1
s_memrealtime s[98:99]
s_waitcnt lgkmcnt(0)
s_sub_u32 s6, s98, s96
s_cmp_lt_u32 s6, 10000
s_cbranch_scc1 K_fx""")
    if 'amp' in X:
        e("""s_waitcnt vmcnt(0)
s_memrealtime s[98:99]
s_waitcnt lgkmcnt(0)
s_sub_u32 s7, s98, s96
s_mul_i32 s7, s7, 10
K_fx:
s_sleep 1
s_memrealtime s[98:99]
s_waitcnt lgkmcnt(0)
s_sub_u32 s6, s98, s96
s_cmp_lt_u32 s6, s7
s_cbranch_scc1 K_fx""")
    if STAMPS:
        e.stamp()
        e.label("K_fin2")
        e("s_memrealtime s[98:99]\ns_waitcnt lgkmcnt(0) vmcnt(0)")
        e(f"""s_mov_b32 s40, s{P_WS}
s_mov_b32 s41, s{P_WS+1}
s_mov_b32 s42, 0x10000000
s_mov_b32 s43, 0x00020000
s_lshl_b32 s6, s2, 3
s_add_u32 s6, s6, s{S_W}
s_lshl_b32 s6, s6, 6
s_add_u32 s6, s6, {STAMP_WS}
v_mov_b32 v2, s96
v_mov_b32 v3, s98""")
        for k in range(10): e(f"v_mov_b32 v{4+k}, {'s%d' % (76+2*k) if k < e.nst else 0}")
        e("v_mov_b32 v1, 0\ns_mov_b64 exec, 1")
        for q in range(3): e(f"buffer_store_dwordx4 v[{2+4*q}:{5+4*q}], v1, s[40:43], s6 offen offset:{16*q}")
    e.label("K_end")
    e("s_endpgm")
    probs = check_hazards(e.a.lines, "k")
    hdr = open("cdna_kernels/" + NAME + ".s.ref").read().split("; Override launch")[0]
    out = hdr + f"; @launch grid=(256,1,1) block=(512,1,1) lds={LDS_BYTES}\n"
    out += '.amdgcn_target "amdgcn-amd-amdhsa--gfx950"\n.text\n' + e.a.text()
    out += f""".section .rodata,"a"
.p2align 6
.amdhsa_kernel {kn}
  .amdhsa_next_free_vgpr 256
  .amdhsa_next_free_sgpr 102
  .amdhsa_accum_offset 256
  .amdhsa_group_segment_fixed_size 0
  .amdhsa_kernarg_size 96
  .amdhsa_user_sgpr_count 2
  .amdhsa_user_sgpr_kernarg_segment_ptr 1
  .amdhsa_system_sgpr_workgroup_id_x 1
  .amdhsa_float_denorm_mode_32 3
.end_amdhsa_kernel
"""
    return out, probs

if __name__ == "__main__":
    out, probs = build()
    for p in probs: print("HAZARD", p, file=sys.stderr)
    open(sys.argv[1] if len(sys.argv) > 1 else "cdna_kernels/" + NAME + ".s", "w").write(out)
```

```python
import sys, os, math, struct
from asmlib import *
X = set(os.environ.get('XFLAGS', '').split(','))
def P(name, default): return int(os.environ.get(name, default))
NAME = "parallel_sum__grouped_kv_mqa__glu_gated_geglu__prompt"
def f2u(x): return struct.unpack("<I", struct.pack("<f", x))[0]

A2F = 0
W2T = 64 * 144 * 1024
QF  = W2T + 7 * 144 * 2048
KVF = QF + 64 * 16 * 2048
FLG = KVF + 64 * 4096
RKV = P("RKV", 16)
F_W  = FLG
F_H  = FLG + 2048
F_O  = FLG + 4096
EPO  = FLG + 6144
F_KV = FLG + 8192
WS_END = F_KV + 256 * RKV
OOB = 0x7ffffff0
P_X, P_WQ, P_WK, P_WV, P_WO, P_BX, P_WG, P_WU, P_WD, P_OUT, P_DBG, P_WS = 8, 10, 12, 14, 16, 18, 20, 22, 24, 26, 28, 30
SRD_X, SRD_WS, SRD_T, SRD_PC = 32, 36, 40, 44
SRD_OUT = SRD_T
S_W, S_RB, S_J = 3, 4, 5
(S_WB, S_MASK, S_XO, S_XO2, S_RT, S_CG, S_MUL, S_T0, S_T1, S_U, S_NON, S_LA, S_LB, S_TO, S_QU) = range(48, 63)
S_HI = 64
S_A, S_B, S_C, S_D, S_E, S_F = 66, 67, 68, 69, 70, 71
S_G, S_H2 = 72, 73
S_CNT = 74
WS = f"s[{SRD_WS}:{SRD_WS+3}]"
SC = "sc1"
STAMPS = bool(os.environ.get("STAMPS"))
STAMP_WS = 200 * 1024 * 1024
SPIN_MAX = 1 << 18
STAMPS_OFF = False

class Em:
    def __init__(s):
        s.a = Asm(); s.q = {'ds': [], 'vm': []}; s.done = {'ds': 0, 'vm': 0}; s.nst = 0; s.uid = 0
    def __call__(s, t): s.a(t)
    def label(s, l): s.a.label(l)
    def ds(s, ins, tag=None): s.a(ins); s.q['ds'].append(tag)
    def vm(s, ins, tag=None): s.a(ins); s.q['vm'].append(tag)
    def _n(s, k, tags, cap):
        idx = -1
        for t in tags:
            ii = [i for i, x in enumerate(s.q[k]) if x == t]
            assert ii, f"tag {t} never issued"
            idx = max(idx, ii[-1])
        if idx < s.done[k]: return None
        n = min(len(s.q[k]) - 1 - idx, cap)
        s.done[k] = len(s.q[k]) - n
        return n
    def wds(s, *tags):
        n = s._n('ds', tags, 15)
        if n is not None: s.a(f"s_waitcnt lgkmcnt({n})")
    def wvm(s, *tags):
        n = s._n('vm', tags, 63)
        if n is not None: s.a(f"s_waitcnt vmcnt({n})")
    def all_ds(s): s.a("s_waitcnt lgkmcnt(0)"); s.done['ds'] = len(s.q['ds'])
    def all_vm(s): s.a("s_waitcnt vmcnt(0)"); s.done['vm'] = len(s.q['vm'])
    def snap(s): return ({k: list(v) for k, v in s.q.items()}, dict(s.done))
    def restore(s, sn): s.q = {k: list(v) for k, v in sn[0].items()}; s.done = dict(sn[1])
    def stamp(s, name=None):
        sel = os.environ.get("STSEL")
        if sel is not None and name is not None and name not in sel.split(","): return
        if sel is None and name is not None and name.startswith("x"): return
        if STAMPS and not STAMPS_OFF:
            assert s.nst < 10
            s.a(f"{'s_memrealtime' if os.environ.get('RT') else 's_memtime'} s[{76+2*s.nst}:{77+2*s.nst}]"); s.nst += 1
            s.all_ds()
    def newlabel(s, p): s.uid += 1; return f"{p}_{s.uid}"

def srd(e, d, p, nbytes):
    e(f"s_mov_b32 s{d}, s{p}\ns_mov_b32 s{d+1}, s{p+1}\ns_mov_b32 s{d+2}, {nbytes}\ns_mov_b32 s{d+3}, 0x00020000")
def mfma(d, A, B, C=None):
    return f"v_mfma_f32_32x32x16_bf16 {vr(d,16)}, {vr(A,4)}, {vr(B,4)}, {vr(d,16) if C is None else C}"
def mfma16(d, A, B, C=None):
    return f"v_mfma_f32_16x16x32_bf16 {vr(d,4)}, {vr(A,4)}, {vr(B,4)}, {vr(d,4) if C is None else C}"

class Side:
    def __init__(s, e): s.e = e; s.q = []
    def add(s, items):
        if isinstance(items, str):
            raw = [l.strip() for l in items.strip().split("\n") if l.strip()]
            items = []
            for l in raw:
                if l.startswith("s_cselect"): items[-1] += "\n" + l
                else: items.append(l)
        s.q += list(items)
    def emit(s, n):
        while n > 0 and s.q:
            it = s.q.pop(0)
            if callable(it): it()
            else: s.e(it)
            n -= 1
    def flush(s): s.emit(1 << 30)

def flag_store(e, addr_lines, nlanes, vt):
    l = e.newlabel("fl")
    e(f"s_cmp_eq_u32 s{S_W}, 0\ns_cbranch_scc0 {l}")
    e(addr_lines)
    e(f"v_mov_b32 v{vt+1}, s{S_NON}\ns_mov_b64 exec, {(1 << nlanes) - 1}\nbuffer_store_dword v{vt+1}, v{vt}, {WS}, 0 offen {SC}\ns_mov_b64 exec, -1")
    e.label(l)

def poll_issue(e, addr_lines, vaddr, vdat, tag):
    e(addr_lines)
    e(f"s_cmp_eq_u32 s{S_W}, 0\ns_cselect_b32 s6, 0, {OOB}\nv_or_b32 v{vaddr}, s6, v{vaddr}")
    e.vm(f"buffer_load_dword v{vdat}, v{vaddr}, {WS}, 0 offen {SC}", tag)

def poll_check(e, vaddr, vdat, tag):
    ok = e.newlabel("pok"); sp = e.newlabel("psp")
    e(f"s_cmp_eq_u32 s{S_W}, 0\ns_cbranch_scc0 {ok}")
    dn = dict(e.done); e.wvm(tag); e.done = dn
    e(f"v_cmp_ne_u32 vcc, s{S_NON}, v{vdat}\ns_cbranch_vccz {ok}\ns_mov_b32 s{S_CNT}, {SPIN_MAX}")
    e.label(sp)
    e(f"""s_sleep {P('SLEEP', 4)}
buffer_load_dword v{vdat}, v{vaddr}, {WS}, 0 offen {SC}
s_sub_u32 s{S_CNT}, s{S_CNT}, 1
s_waitcnt vmcnt(0)
v_cmp_ne_u32 vcc, s{S_NON}, v{vdat}
s_cmp_eq_u32 s{S_CNT}, 0
s_cbranch_scc1 {ok}
s_cbranch_vccnz {sp}""")
    e.label(ok)

RING = 32768
L_W2T = 131072
L_CSA = L_W2T + 8192
L_CSB = L_CSA + 2048
L_ST  = L_CSB + 2048
L_KVB = L_ST + 4096
L_FLG = L_KVB + 4096
LDS_BYTES = L_FLG + 256

VL16, VT, VX, GA, GS = 1, 2, 3, 4, 6
XA, WA = 8, 12
ST, SEL, CSA, WF, TM = 20, 24, 28, 36, 60
ACCA, ACCB, XR, G = 64, 96, 128, 240
SQA, SQB, TP = 60, 240, 248
WB, GB, PL = 250, 102, 252
R_, S_, AC, BC, I2 = 8, 9, 10, 11, 3
BEXT = 60


TA, TS, TX, TD = 96, 98, 99, 100
S_ISQ, S_SH = 63, 75
def w_source(row, c, dst, gs, t0):
    return f"""v_cmp_le_u32 vcc, s{S_A}, v{c}
v_mul_lo_u32 v{dst}, v{row}, s{S_B}
v_lshl_add_u32 v{dst}, v{c}, 4, v{dst}
v_add_u32 v{dst}, s{S_C}, v{dst}
v_subrev_u32 v{c}, s{S_A}, v{c}
v_lshlrev_b32 v{c}, s{S_G}, v{c}
v_mul_lo_u32 v{t0}, v{row}, s{S_D}
v_add3_u32 v{t0}, v{t0}, v{c}, s{S_H2}
v_cndmask_b32 v{dst}, v{dst}, v{t0}, vcc
v_mov_b32 v{gs}, s{S_B}
v_mov_b32 v{t0}, s{S_D}
v_cndmask_b32 v{gs}, v{gs}, v{t0}, vcc
v_lshlrev_b32 v{gs}, 5, v{gs}"""

ROTS = {0: [0]*8, 1: [0, 3, 2, 5, 4, 0, 6, 2], 2: [0, 3, 3, 0, 0, 3, 3, 0], 3: [0, 1, 2, 3, 4, 5, 6, 0], 4: [0, 4, 1, 5, 2, 6, 3, 0]}
ROTTAB = sum(v << (4 * i) for i, v in enumerate(ROTS[P("ROT", 1)]))
def prologue(e):
    e(f"s_cmp_ge_u32 s2, 256\ns_cbranch_scc1 K_end")
    if STAMPS or 'fix' in X or 'amp' in X: e("s_memrealtime s[96:97]")
    e.stamp()
    e("s_load_dwordx16 s[8:23], s[0:1], 0\ns_load_dwordx8 s[24:31], s[0:1], 64")
    e(f"s_getpc_b64 s[{SRD_PC}:{SRD_PC+1}]")
    e.label("K_pc")
    e(f"""s_mov_b32 s{SRD_PC+2}, K_end-K_pc
s_mov_b32 s{SRD_PC+3}, 0x00020000
v_lshlrev_b32 v1, 7, v0""")
    e.vm(f"buffer_load_dword v{TD}, v1, s[{SRD_PC}:{SRD_PC+3}], 0 offen")
    T = TM
    e(f"""v_lshrrev_b32 v1, 6, v0
v_and_b32 v0, 63, v0
v_readfirstlane_b32 s{S_W}, v1""")
    if GT:
        e(f"""s_lshl_b32 s{S_TG}, s2, 3
s_add_u32 s{S_TG}, s{S_TG}, s{S_W}
s_min_u32 s6, s{S_TG}, 2039
s_cmp_ge_u32 s6, 768
s_cselect_b32 s7, 56, 48
s_cselect_b32 s{S_A}, 768, 0
s_cmp_ge_u32 s6, 1536
s_cselect_b32 s7, 8, s7
s_cselect_b32 s{S_A}, 1536, s{S_A}
s_cselect_b32 s{S_B}, 7, 12
s_cselect_b32 s{S_C}, 7, 28
s_cmp_ge_u32 s6, 1984
s_cselect_b32 s7, 16, s7
s_cselect_b32 s{S_A}, 1984, s{S_A}
s_cselect_b32 s{S_B}, 28, s{S_B}
s_cmp_ge_u32 s6, 2012
s_cselect_b32 s7, 24, s7
s_cselect_b32 s{S_A}, 2012, s{S_A}
s_load_dwordx2 s[{SRD_PC}:{SRD_PC+1}], s[0:1], s7
s_sub_u32 s6, s6, s{S_A}
v_cvt_f32_u32 v{T}, s6
v_cvt_f32_u32 v{T+1}, s{S_B}
v_add_f32 v{T}, 0.5, v{T}
v_rcp_f32 v{T+1}, v{T+1}
s_lshl_b32 s{S_C}, s{S_C}, 7
s_cmp_eq_u32 s{S_B}, 28
v_mul_f32 v{T}, v{T}, v{T+1}
v_cvt_u32_f32 v{T}, v{T}
s_cselect_b32 s{S_D}, 3584, 0
s_lshl_b32 s7, s{S_C}, 6
s_cmp_eq_u32 s{S_B}, 28
s_cselect_b32 s7, s{S_D}, s7
s_mul_i32 s{SRD_PC+2}, s7, 7
v_mul_lo_u32 v{T+1}, v{T}, s{S_B}
v_sub_u32 v{T+1}, s6, v{T+1}
v_mul_lo_u32 v{T}, v{T}, s{S_C}
v_lshl_add_u32 v{T}, v{T+1}, 7, v{T}
v_and_b32 v{T+1}, 1, v0
v_mul_lo_u32 v{TA}, v{T+1}, s7
v_add_u32 v{TA}, v{TA}, v{T}
s_mul_i32 s6, s{S_TG}, 896
v_lshl_add_u32 v{TX}, v{T+1}, 7, s6
s_mov_b32 s{S_TS}, s7""")
    e(f"""
s_bfe_u32 s{S_RB}, s2, 0x20001
s_lshl_b32 s{S_RB}, s{S_RB}, 2
s_lshr_b32 s6, s2, 6
s_add_u32 s{S_RB}, s{S_RB}, s6
s_and_b32 s{S_J}, s2, 1
s_lshl_b32 s{S_J}, s{S_J}, 3
s_bfe_u32 s7, s2, 0x30003
s_add_u32 s{S_J}, s{S_J}, s7
s_lshr_b32 s{S_QU}, s{S_J}, 2
s_sub_u32 s{S_LA}, s{S_J}, s{S_QU}
s_lshl_b32 s{S_WB}, s{S_W}, 10
s_lshl_b32 s{S_C}, s{S_LA}, 7
s_mul_i32 s{S_E}, s{S_QU}, 224
s_and_b32 s{S_F}, s{S_QU}, 1
s_sub_u32 s{S_G}, 4, s{S_F}
s_lshl_b32 s{S_F}, s{S_F}, 5
s_movk_i32 s{S_D}, 3584
s_and_b32 s{S_ISQ}, s{S_J}, 3
s_cmp_eq_u32 s{S_ISQ}, 3
s_cselect_b32 s{S_ISQ}, 1, 0
s_cselect_b32 s{S_A}, 14, 8
s_cselect_b32 s{S_B}, 896, s{S_D}
s_cselect_b32 s{S_D}, 56, s{S_D}
s_cselect_b32 s{S_H2}, s{S_F}, s{S_C}
s_cselect_b32 s{S_C}, s{S_E}, s{S_C}
s_cselect_b32 s{S_G}, s{S_G}, 4
s_add_u32 s{S_SH}, s{S_ISQ}, 1
s_lshl_b32 s{S_E}, s{S_RB}, 7
s_lshl_b32 s{S_F}, s{S_W}, 3
s_add_u32 s{S_F}, s{S_F}, s{S_E}
v_lshrrev_b32 v{T}, 3, v0
v_add_u32 v{T}, s{S_F}, v{T}
v_mul_u32_u24 v{T}, 896, v{T}
s_lshl_b32 s{S_F}, s{S_W}, 2
v_lshrrev_b32 v{T+1}, 4, v0
v_add_u32 v{T+2}, s{S_F}, v{T+1}
v_xor_b32 v{T+3}, v{T+2}, v0
v_and_b32 v{T+3}, 7, v{T+3}
v_lshl_add_u32 v{VX}, v{T+3}, 4, v{T}
s_and_b32 s{S_XO}, s2, 7
s_lshl_b32 s{S_XO}, s{S_XO}, 2
s_lshr_b32 s{S_XO}, {ROTTAB:#x}, s{S_XO}
s_and_b32 s{S_XO}, s{S_XO}, 7
s_lshl_b32 s{S_F}, s{S_XO}, 6
s_lshl_b32 s{S_XO}, s{S_XO}, 7
v_add_u32 v{T+2}, s{S_F}, v{T+2}
v_lshlrev_b32 v{T+1}, s{S_SH}, v{T+1}
v_xor_b32 v{T+1}, v{T+1}, v0
v_and_b32 v{T+1}, 15, v{T+1}""")
    e(w_source(T + 2, T + 1, G, GS, T))
    e(f"s_mov_b64 s[{S_HI}:{S_HI+1}], vcc")
    if TOUCH:
        e(f"""s_and_b32 s6, s6, 3
s_lshl_b32 s6, s6, 3
s_add_u32 s6, s6, s{S_W}
s_lshl_b32 s6, s6, 1
s_lshl_b32 s7, s7, 3
s_add_u32 s7, s7, s{S_W}
s_lshl_b32 s7, s7, 1
s_add_u32 s7, s7, s{S_E}
v_bfe_u32 v{T+2}, v0, 3, 1
v_bfe_u32 v{T+1}, v0, 2, 1
v_lshl_add_u32 v{T+2}, v{T+2}, 6, v{T+1}
v_add_u32 v{T+2}, s6, v{T+2}
v_and_b32 v{T+1}, 3, v0
v_lshlrev_b32 v{T+1}, 2, v{T+1}
v_lshrrev_b32 v{T+1}, v{T+1}, s{S_MASK}
v_and_b32 v{T+1}, 15, v{T+1}
v_and_b32 v{T}, 1, v0
v_add_u32 v{T}, s7, v{T}
v_mul_u32_u24 v{TX}, 896, v{T}
v_bfe_u32 v{T}, v0, 1, 1
v_lshl_add_u32 v{TX}, v{T}, 7, v{TX}""".replace(f"v_lshrrev_b32 v{T+1}, v{T+1}, s{S_MASK}", f"s_movk_i32 s6, 0xed80\nv_lshrrev_b32 v{T+1}, v{T+1}, s6"))
        e(w_source(T + 2, T + 1, G + 1, TS, T))
    e("s_waitcnt lgkmcnt(0)")
    e.stamp("xs0")
    if 'stdiag' in X:
        e(f"""s_mov_b32 s40, s{P_WS}
s_mov_b32 s41, s{P_WS+1}
s_mov_b32 s42, 0x10000000
s_mov_b32 s43, 0x00020000
s_lshl_b32 s90, s2, 3
s_add_u32 s90, s90, s{S_W}
s_lshl_b32 s90, s90, 10
s_add_u32 s90, s90, {P('DOFF', 100) * 1024 * 1024}
v_lshlrev_b32 v110, 4, v0
buffer_store_dwordx4 v[112:115], v110, s[40:43], s90 offen sc1
s_waitcnt vmcnt(0)
s_add_u32 s90, s90, 0x200000
s_barrier
s_memtime s[92:93]
s_waitcnt lgkmcnt(0)
buffer_store_dwordx4 v[112:115], v110, s[40:43], s90 offen sc1
s_waitcnt vmcnt(0)
s_barrier
s_memtime s[94:95]
s_waitcnt lgkmcnt(0)
s_sub_u32 s94, s94, s92
s_mul_i32 s94, s94, 100""")
    srd(e, SRD_X, P_X, 2048 * 896)
    e(f"""s_cmp_lt_u32 s{S_QU}, 2
s_cselect_b32 s{S_C}, s{P_WK}, s{P_WV}
s_cselect_b32 s{S_D}, s{P_WK+1}, s{P_WV+1}
s_cmp_eq_u32 s{S_ISQ}, 1
s_cselect_b32 s{S_A}, s{P_WQ}, s{P_WG}
s_cselect_b32 s{S_B}, s{P_WQ+1}, s{P_WG+1}
s_cselect_b32 s{S_C}, s{S_C}, s{P_WU}
s_cselect_b32 s{S_D}, s{S_D}, s{P_WU+1}
v_mov_b32 v{T}, s{S_A}
v_mov_b32 v{T+1}, s{S_B}
v_mov_b32 v{T+2}, s{S_C}
v_mov_b32 v{T+3}, s{S_D}""")
    if TOUCH:
        e(f"""v_cndmask_b32 v{TA}, v{T}, v{T+2}, vcc
v_cndmask_b32 v{TA+1}, v{T+1}, v{T+3}, vcc
v_add_co_u32 v{TA}, vcc, v{TA}, v{G+1}
v_cndmask_b32 v{GA}, v{T}, v{T+2}, s[{S_HI}:{S_HI+1}]
v_cndmask_b32 v{GA+1}, v{T+1}, v{T+3}, s[{S_HI}:{S_HI+1}]
v_addc_co_u32 v{TA+1}, vcc, 0, v{TA+1}, vcc""")
        touch(e, 0)()
    else:
        e(f"""v_cndmask_b32 v{GA}, v{T}, v{T+2}, s[{S_HI}:{S_HI+1}]
v_cndmask_b32 v{GA+1}, v{T+1}, v{T+3}, s[{S_HI}:{S_HI+1}]""")
    e(f"v_add_co_u32 v{GA}, vcc, v{GA}, v{G}\nv_mov_b32 v{GS+1}, 0")
    for st in os.environ.get("GPRE", "").split(): gtouch(e, int(st))()
    if 'gonly' in X: e.all_vm(); e.stamp()
    dma_x(e, 0, 0)()
    e(f"v_addc_co_u32 v{GA+1}, vcc, 0, v{GA+1}, vcc")

TOUCH = P("TOUCH", 0)
GT = P("GT", 0)
ROT = P("ROT", 1)
LDX = os.environ.get("LDX", ""); LDW = os.environ.get("LDW", ""); LDT = os.environ.get("LDT", "")
def touch(e, k):
    def f():
        st = (0, 2, 4, 5)[k]
        e.vm(f"global_load_dword v{TD}, {vr(TA,2)}, off", f"t{k}")
        e(f"s_movk_i32 s{S_XO2}, {st * 128}")
        e.vm(f"buffer_load_dword v{TD}, v{TX}, s[{SRD_X}:{SRD_X+3}], s{S_XO2} offen", f"t{k}")
        if k < 3: e(f"v_mad_u64_u32 {vr(TA,2)}, s[{S_E}:{S_E+1}], v{TS}, {4 if k < 2 else 2}, {vr(TA,2)}")
    return f
S_TG, S_TS = 61, 57
def gtouch(e, st):
    def f():
        e(f"s_mul_i32 s{S_XO2}, s{S_TS}, {st}")
        e.vm(f"buffer_load_dword v{TD}, v{TA}, s[{SRD_PC}:{SRD_PC+3}], s{S_XO2} offen {LDT}", "t")
        e(f"s_movk_i32 s{S_XO2}, {st * 128}")
        e.vm(f"buffer_load_dword v{TD}, v{TX}, s[{SRD_X}:{SRD_X+3}], s{S_XO2} offen {LDT}", "t")
    return f
def dma_x(e, sig, i):
    def f():
        e(f"s_add_u32 m0, s{S_WB}, {(sig % 4) * RING + i * 8192}")
        if i == 0: e("s_nop 0"); so = S_XO
        else: e(f"s_add_u32 s{S_XO2}, s{S_XO}, {64*896}"); so = S_XO2
        e.vm(f"buffer_load_dwordx4 v{VX}, s[{SRD_X}:{SRD_X+3}], s{so} offen {LDX} lds", f"d{sig}")
    return f
def dma_w(e, sig, off, i, first=False):
    def f():
        if i == 0 and not first:
            e(f"s_add_u32 s{S_XO}, s{S_XO}, 128\ns_cmp_eq_u32 s{S_XO}, 896\ns_cselect_b32 s{S_XO}, 0, s{S_XO}\ns_cselect_b32 s{S_MUL}, -13, 1")
        e(f"s_add_u32 m0, s{S_WB}, {(sig % 4) * RING + off + i * 8192}")
        if first == 2: e(f"s_add_u32 s{S_XO}, s{S_XO}, 128\ns_cmp_eq_u32 s{S_XO}, 896\ns_cselect_b32 s{S_XO}, 0, s{S_XO}")
        elif first: e("s_nop 0")
        elif i == 0: e(f"v_mad_i64_i32 {vr(GA,2)}, s[{S_E}:{S_E+1}], v{GS}, s{S_MUL}, {vr(GA,2)}")
        else: e(f"v_lshl_add_u64 {vr(GA,2)}, {vr(GS,2)}, 0, {vr(GA,2)}")
        e.vm(f"global_load_lds_dwordx4 {vr(GA,2)}, off {LDW}", f"d{sig}")
    return f
def stage_dmas(e, sig):
    if sig == 0: return [dma_x(e, sig, 0), dma_w(e, sig, 16384, 0, True), dma_x(e, sig, 1), dma_w(e, sig, 16384, 1)]
    if sig < 7: return [dma_w(e, sig, 16384, 0), dma_x(e, sig, 0), dma_w(e, sig, 16384, 1), dma_x(e, sig, 1)]
    l = []
    if sig == 7: l.append(lambda: e(f"v_mov_b32 v{GA}, v{GB}\nv_mov_b32 v{GA+1}, v{GB+1}\nv_mov_b32 v{GS}, {32*3584}"))
    l += [dma_w(e, sig, 0, 0, 2 if sig == 7 else False), dma_w(e, sig, 0, 1)]
    if sig < 10: l += [dma_w(e, sig, 16384, 0), dma_w(e, sig, 16384, 1)]
    return l

def phaseB(e):
    T = TM
    for f in stage_dmas(e, 0)[1:]: f()
    if 'arr' in X:
        order = os.environ.get("ARR", "D1 D2 W0 D3 W1 D4 W2 D5 W3 D6 W4 W5 W6").split()
        for it in order:
            k = int(it[1:])
            if it[0] == 'D':
                for f in stage_dmas(e, k): f()
            elif it[0] == 'T': touch(e, k)()
            elif it[0] == 'G': gtouch(e, k)()
            elif it[0] == 'A': e.all_vm(); e.stamp()
            else: e.wvm(f"d{k}"); e("s_barrier"); e.stamp()
        srd(e, SRD_WS, P_WS, WS_END)
        e.stamp()
        e("s_branch K_fin2")
        global STAMPS_OFF; STAMPS_OFF = True
    e.stamp("xs2")
    e(f"s_mov_b32 s6, {EPO}\ns_load_dword s{S_NON}, s[{P_WS}:{P_WS+1}], s6")
    if TOUCH == 2: touch(e, 1)()
    for f in stage_dmas(e, 1): f()
    if TOUCH == 1: touch(e, 1)()
    e.stamp("xs3")
    e(f"""s_and_b32 s{S_RT}, s{S_W}, 3
s_lshr_b32 s{S_CG}, s{S_W}, 2
s_lshl_b32 s{S_T0}, s{S_CG}, 1
s_add_u32 s{S_T1}, s{S_T0}, 1
s_xor_b32 s{S_A}, s{S_RT}, s{S_CG}
s_mov_b32 s{S_MASK}, 0xffff0000
s_mov_b32 s{S_HI}, 0
s_mov_b32 s{S_HI+1}, -1
v_lshlrev_b32 v{VL16}, 4, v0
v_and_b32 v{T}, 31, v0
v_lshrrev_b32 v{T+1}, 5, v0
v_bfe_u32 v{T+2}, v0, 1, 3
v_xor_b32 v{T+2}, v{T+2}, v{T+1}
v_lshlrev_b32 v{T+2}, 4, v{T+2}
v_lshl_add_u32 v{T+2}, v{T}, 7, v{T+2}
s_lshl_b32 s6, s{S_RT}, 12
s_lshl_b32 s{S_B}, s{S_A}, 5
s_or_b32 s6, s6, s{S_B}
v_xor_b32 v{XA}, s6, v{T+2}""")
    for pos in range(1, 4): e(f"v_xor_b32 v{XA+pos}, {pos<<5}, v{XA}")
    e(f"""v_bfe_u32 v{G+1}, v0, 2, 2
v_lshl_add_u32 v{WB}, v{T+1}, 3, v{G+1}
v_lshlrev_b32 v{WB}, 8, v{WB}
s_lshl_b32 s{S_A}, s{S_A}, 12
v_add_u32 v{WB}, s{S_A}, v{WB}
s_cmp_eq_u32 s{S_ISQ}, 1
s_cselect_b32 s{S_A}, 56, 32
s_cselect_b32 s{S_B}, 5, 7
s_cselect_b32 s{S_C}, 0x88880000, 0
s_mov_b32 s{S_D}, s{S_C}
s_add_u32 s6, s{S_SH}, 4
v_bfe_u32 v{T}, v0, 4, 1
v_and_b32 v{T+1}, 3, v0
v_lshlrev_b32 v{T}, s{S_B}, v{T}
v_lshl_add_u32 v{T}, v{T+1}, 3, v{T}
v_lshlrev_b32 v{T+1}, s6, v{G+1}""")
    for i, st_ in ((0, S_T0), (1, S_T1)):
        e(f"""s_mul_i32 s6, s{st_}, s{S_A}
s_lshl_b32 s7, s{st_}, 3
s_sub_u32 s7, 248, s7
v_add_u32 v{T+2}, s6, v{T}
v_mov_b32 v{T+3}, s7
v_cndmask_b32 v{T+2}, v{T+2}, v{T+3}, s[{S_C}:{S_D}]
v_xor_b32 v{T+2}, v{T+2}, v{T+1}
v_add_u32 v{WA+4*i}, v{T+2}, v{WB}""")
    for i in range(2):
        for pos in range(1, 4): e(f"v_xor_b32 v{WA+4*i+pos}, {pos<<12}, v{WA+4*i}")
    e(f"""v_bfe_u32 v{T}, v0, 4, 1
v_and_b32 v{T+1}, 15, v0
v_cmp_eq_u32 vcc, v{T}, v{T+1}
v_mov_b32 v{T}, 0x3f803f80
s_nop 0
v_cndmask_b32 v{SEL}, 0, v{T}, vcc
v_mov_b32 v{SEL+1}, v{SEL}
v_mov_b32 v{SEL+2}, v{SEL}
v_mov_b32 v{SEL+3}, v{SEL}""")
    w2t_addr = f"""s_lshl_b32 s{S_U}, s2, 2
s_lshr_b32 s6, s{S_W}, 1
s_add_u32 s{S_U}, s{S_U}, s6
s_min_u32 s{S_U}, s{S_U}, 1007
s_mul_hi_u32 s6, s{S_U}, {(2**32 + 143)//144}
s_mul_i32 s{S_A}, s6, 144
s_sub_u32 s{S_A}, s{S_U}, s{S_A}
s_lshl_b32 s{S_B}, s{S_A}, 4
s_sub_u32 s{S_C}, s{S_A}, 112
s_lshr_b32 s{S_D}, s{S_C}, 1
s_mul_i32 s{S_D}, s{S_D}, 28
s_and_b32 s{S_C}, s{S_C}, 1
s_lshl_b32 s{S_C}, s{S_C}, 4
s_add_u32 s{S_C}, s{S_C}, s{S_D}
s_mov_b32 s{S_D}, {448*896}
s_cmp_lt_u32 s{S_A}, 112
s_cselect_b32 s{S_B}, s{S_B}, s{S_C}
s_cselect_b32 s{SRD_T}, s{P_WD}, s{P_WO}
s_cselect_b32 s{SRD_T+1}, s{P_WD+1}, s{P_WO+1}
s_cselect_b32 s{SRD_T+2}, {1792*896}, s{S_D}
s_mov_b32 s{SRD_T+3}, 0x00020000
s_and_b32 s{S_C}, s{S_W}, 1
s_lshl_b32 s{S_C}, s{S_C}, 3
s_add_u32 s{S_B}, s{S_B}, s{S_C}
s_mul_i32 s{S_B}, s{S_B}, 896
s_lshl_b32 s6, s6, 7
s_add_u32 s{S_TO}, s{S_B}, s6
v_lshrrev_b32 v{TP}, 3, v0
v_mul_u32_u24 v{TP}, 896, v{TP}
v_and_b32 v{TP+1}, 7, v0
v_lshl_add_u32 v{VT}, v{TP+1}, 4, v{TP}"""
    late = f"""s_add_u32 s{S_LB}, s{S_LA}, 12
s_add_u32 s6, s{S_QU}, 24
s_cmp_eq_u32 s{S_ISQ}, 1
s_cselect_b32 s{S_LB}, s6, s{S_LB}
v_lshrrev_b32 v{TP}, 4, v0
s_and_b32 s6, s2, 7
s_lshl_b32 s6, s6, 2
s_lshr_b32 s6, {ROTTAB:#x}, s6
s_and_b32 s6, s6, 7
s_lshl_b32 s6, s6, 4
s_add_u32 s6, s6, s{S_W}
s_lshl_b32 s6, s6, 2
v_add_u32 v{TP+1}, s6, v{TP}
v_mul_u32_u24 v{TP+1}, 3584, v{TP+1}
v_lshlrev_b32 v{TP}, 1, v{TP}
v_xor_b32 v{TP}, v{TP}, v0
v_and_b32 v{GB}, 7, v{TP}
v_lshl_add_u32 v{TP+1}, v{GB}, 4, v{TP+1}
s_lshl_b32 s6, s{S_LB}, 7
v_add_u32 v{TP+1}, s6, v{TP+1}
v_and_b32 v{TP}, 8, v{TP}
v_cmp_eq_u32 vcc, 8, v{TP}
v_mov_b32 v{GB}, s{P_WG}
v_mov_b32 v{TP}, s{P_WU}
v_cndmask_b32 v{GB}, v{GB}, v{TP}, vcc
v_mov_b32 v{GB+1}, s{P_WG+1}
v_mov_b32 v{TP}, s{P_WU+1}
v_cndmask_b32 v{GB+1}, v{GB+1}, v{TP}, vcc
v_add_co_u32 v{GB}, vcc, v{GB}, v{TP+1}
v_bfe_u32 v{TP}, v0, 4, 1
v_and_b32 v{TP+1}, 3, v0
v_addc_co_u32 v{GB+1}, vcc, 0, v{GB+1}, vcc
v_lshlrev_b32 v{TP+1}, 3, v{TP+1}
v_lshl_add_u32 v{TP}, v{TP}, 7, v{TP+1}
v_bfe_u32 v{TP+1}, v0, 2, 2
v_lshlrev_b32 v{TP+1}, 5, v{TP+1}
v_xor_b32 v{TP}, v{TP}, v{TP+1}
s_lshl_b32 s6, s{S_T0}, 5
v_xor_b32 v{TP}, s6, v{TP}
v_add_u32 v{WB}, v{TP}, v{WB}
v_xor_b32 v{WB+1}, 32, v{WB}
s_mov_b32 s{SRD_WS}, s{P_WS}
s_mov_b32 s{SRD_WS+1}, s{P_WS+1}
s_mov_b32 s{SRD_WS+2}, {WS_END}
s_mov_b32 s{SRD_WS+3}, 0x00020000"""
    e.stamp("xs4")
    e("s_waitcnt lgkmcnt(0)")
    e(f"s_add_u32 s{S_NON}, s{S_NON}, 1")
    e.stamp("xs5")
    e.wvm("d0")
    e("s_barrier")
    e.stamp("start")

    half = {'x': [0]*4, 'w': [0]*4}
    def reads(gp):
        if gp < 28: sig, sub, pos, reg = gp // 4, 0, gp % 4, 16384
        else:
            g = gp - 28; sig, sub, pos = 7 + g // 8, (g // 4) & 1, g % 4; reg = sub * 16384
        sl = sig % 4; h = sl >> 1; imm = (sl & 1) * RING
        buf = WF + 8 * (gp % 3)
        pre = []
        if 28 <= gp < 32:
            pre = [f"v_xor_b32 v{WA+4*i+pos}, {(pos << 12) | (h << 16)}, v{WB+i}" for i in range(2)]
            half['w'][pos] = h
        elif half['w'][pos] != h:
            pre = [f"v_xor_b32 v{WA+4*i+pos}, 0x10000, v{WA+4*i+pos}" for i in range(2)]
            half['w'][pos] = h
        if gp < 28 and half['x'][pos] != h:
            pre.append(f"v_xor_b32 v{XA+pos}, 0x10000, v{XA+pos}"); half['x'][pos] = h
        out = [(lambda l=l: e(l)) for l in pre]
        if gp < 28: out.append(lambda: e.ds(f"ds_read_b128 {vr(XR+4*gp,4)}, v{XA+pos} offset:{imm}", f"r{gp}"))
        for i in range(2):
            for u in range(2):
                out.append(lambda i=i, u=u: e.ds(f"ds_read_b64_tr_b16 {vr(buf+4*i+2*u,2)}, v{WA+4*i+pos} offset:{imm+reg+u*1024}", f"r{gp}"))
        return out
    def position(gp, side, dmaq, nside, barrier=None):
        p2 = gp >= 28; g = gp - 28 if p2 else gp
        acc = ACCB if p2 else ACCA
        buf = WF + 8 * (gp % 3); xr = XR + 4 * g
        e.wds(f"r{gp}")
        e(mfma(acc, buf, xr, "0" if g == 0 else None))
        if barrier: barrier()
        R = reads(gp + 2) if gp + 2 < 56 else []
        for f in R[:len(R) - 2]: f()
        side.emit((nside + 1) // 2)
        e(mfma(acc + 16, buf + 4, xr, "0" if g == 0 else None))
        for f in R[len(R) - 2:]: f()
        if g % 4 == 0 and 'nosel' not in X:
            e(mfma16(CSA, SEL, buf, "0" if g == 0 else None))
        if dmaq: dmaq.pop(0)()
        side.emit(nside // 2)
        if g % 4 == 0 and 'nosel' not in X:
            e(mfma16(CSA + 4, SEL, buf + 4, "0" if g == 0 else None))
    def stats(gp):
        x = XR + 4 * gp; c = lambda r: "0" if gp == 0 else vr(r, 4)
        return [mfma16(ST, SEL, x, c(ST)),
                f"v_mfma_f32_4x4x4_16b_bf16 {vr(SQA,4)}, {vr(x,2)}, {vr(x,2)}, {c(SQA)}\nv_mfma_f32_4x4x4_16b_bf16 {vr(SQB,4)}, {vr(x+2,2)}, {vr(x+2,2)}, {c(SQB)}"]
    def cs_write(dst):
        return [f"v_lshlrev_b32 v{G+8}, 4, v0", f"s_lshl_b32 s6, s{S_T0}, 9", f"s_lshl_b32 s{S_A}, s{S_RT}, 2",
                f"s_add_u32 s6, s6, s{S_A}", f"s_add_u32 s6, s6, {dst}", f"v_add_u32 v{G+8}, s6, v{G+8}",
                lambda: (e("s_mov_b64 exec, 0xffff"),
                         e.ds(f"ds_write_b32 v{G+8}, v{CSA}", "csw"), e.ds(f"ds_write_b32 v{G+8}, v{CSA+1} offset:256", "csw"),
                         e.ds(f"ds_write_b32 v{G+8}, v{CSA+4} offset:512", "csw"), e.ds(f"ds_write_b32 v{G+8}, v{CSA+5} offset:768", "csw"),
                         e("s_mov_b64 exec, -1"))]
    def cs_read(src):
        l = [f"v_and_b32 v{G+8}, 31, v0", f"v_lshlrev_b32 v{G+8}, 4, v{G+8}", f"s_lshl_b32 s6, s{S_T0}, 9", f"s_add_u32 s6, s6, {src}",
             f"v_add_u32 v{G+8}, s6, v{G+8}",
             lambda: e.ds(f"ds_read_b128 {vr(G,4)}, v{G+8}", "csr"), lambda: e.ds(f"ds_read_b128 {vr(G+4,4)}, v{G+8} offset:512", "csr")]
        m = [lambda: e.wds("csr")]
        for i in range(2):
            b = G + 4 * i
            m += [f"v_add_f32 v{b}, v{b}, v{b+1}", f"v_add_f32 v{b+2}, v{b+2}, v{b+3}"]
        for i in range(2): m += [f"v_add_f32 v{G+4*i}, v{G+4*i}, v{G+4*i+2}"]
        for i in range(2): m += [f"v_cvt_pk_bf16_f32 v{G+4*i+1}, v{G+4*i}, v{G+4*i}"]
        for i in range(2): m += [f"v_and_b32 v{G+4*i+1}, s{S_MASK}, v{G+4*i+1}"]
        for i in range(2): m += [f"v_sub_f32 v{G+4*i+1}, v{G+4*i}, v{G+4*i+1}"]
        for i in range(2): m += [f"v_cvt_pk_bf16_f32 v{G+4*i}, v{G+4*i}, v{G+4*i+1}"]
        for i in range(2): m += [f"v_cndmask_b32 v{ST+2*i}, v{G+4*i}, 0, s[{S_HI}:{S_HI+1}]"]
        return l, m

    for f in reads(0) + reads(1): f()
    side = Side(e); dmaq = list(stage_dmas(e, 2)) + ([touch(e, 2)] if TOUCH else [])
    w2side = Side(e); w2side.add(w2t_addr); w2side.add(late)
    for gp in range(28):
        sig, pos = gp // 4, gp % 4
        bar = None
        if pos == 2:
            def bar(sig=sig):
                e.wvm(f"d{sig+1}"); e("s_barrier")
                assert not dmaq
                dmaq.extend(stage_dmas(e, sig + 3))
                if sig == 0 and TOUCH: dmaq.append(touch(e, 3))
                if sig == 1:
                    dmaq.append(lambda: (e(f"s_add_u32 m0, s{S_WB}, {L_W2T}\ns_nop 0"),
                                         e.vm(f"buffer_load_dwordx4 v{VT}, s[{SRD_T}:{SRD_T+3}], s{S_TO} offen lds", "w2td")))
        if pos % 2 == 0 and 'nostat' not in X: side.add(stats(gp))
        if gp == 26: side.add(cs_write(L_CSA))
        n = -(-len(side.q) // (2 - pos % 2)) if gp < 26 else len(side.q) if gp == 27 else 16
        while len(dmaq) > 4 - ((pos + 2) % 4): dmaq.pop(0)()
        e.stamp(f"xp{gp}")
        w2side.emit(8 if gp < 4 else 4)
        position(gp, side, dmaq, n, bar)
    side.flush()
    e(f"""v_and_b32 v{TP}, 3, v0
v_cmp_eq_u32 vcc, 1, v{TP}
v_cmp_eq_u32 s[{S_A}:{S_B}], 2, v{TP}
v_cmp_eq_u32 s[{S_C}:{S_D}], 3, v{TP}
s_lshl_b32 s6, s{S_RT}, 1
s_add_u32 s6, s6, s{S_CG}
s_lshl_b32 s6, s6, 8
s_add_u32 s6, s6, {L_ST}
v_lshl_add_u32 v{TP+1}, v0, 2, s6""")
    for k in range(4): e(f"v_add_f32 v{SQA+k}, v{SQA+k}, v{SQB+k}")
    e(f"""v_cndmask_b32 v{SQA}, v{SQA}, v{SQA+1}, vcc
v_cndmask_b32 v{SQA}, v{SQA}, v{SQA+2}, s[{S_A}:{S_B}]
v_cndmask_b32 v{SQA}, v{SQA}, v{SQA+3}, s[{S_C}:{S_D}]""")
    e.ds(f"ds_write_b32 v{TP+1}, v{SQA}", "stw")
    e("s_mov_b64 exec, 0xffff")
    e.ds(f"ds_write_b32 v{TP+1}, v{ST} offset:2048", "stw")
    e.ds(f"ds_write_b32 v{TP+1}, v{ST+1} offset:2112", "stw")
    e("s_mov_b64 exec, -1")
    e.stamp("p1")

    KA = -2.0 * math.log2(math.e) * math.sqrt(2.0 / math.pi); KB = KA * 0.044715
    def gelu(acc, so, tb):
        l = []
        for k in range(8): l.append(f"v_mul_f32 v{tb+k}, v{acc+k}, v{acc+k}")
        for k in range(8): l.append(f"v_fma_f32 v{tb+k}, v{tb+k}, v{BC}, v{AC}")
        for k in range(8): l.append(f"v_mul_f32 v{tb+k}, v{tb+k}, v{acc+k}")
        for k in range(8): l += [f"v_exp_f32 v{tb+k}, v{tb+k}", f"v_mul_f32 v{acc+k}, v{acc+k}, v{acc+8+k}"]
        for k in range(8): l.append(f"v_fma_f32 v{tb+k}, v{tb+k}, v{I2}, v{I2}")
        for k in range(8): l.append(f"v_rcp_f32 v{tb+k}, v{tb+k}")
        for k in range(8): l.append(f"v_mul_f32 v{acc+k}, v{acc+k}, v{tb+k}")
        for k in range(4): l.append(f"v_cvt_pk_bf16_f32 v{acc+8+k}, v{acc+2*k}, v{acc+2*k+1}")
        l.append(lambda: e.vm(f"buffer_store_dwordx4 {vr(acc+8,4)}, v{VL16}, {WS}, s{so} offen {SC}", "hs"))
        return l
    def h_off(line, dst):
        return f"""s_lshl_b32 s6, s{S_RB}, 2
s_add_u32 s6, s6, s{S_RT}
s_mul_i32 s6, s6, 144
s_lshl_b32 s{dst}, s{line}, 2
s_add_u32 s6, s6, s{dst}
s_add_u32 s6, s6, s{S_T0}
s_lshl_b32 s{dst}, s6, 10
s_add_u32 s{dst+1}, s{dst}, 1024"""
    def after_exchange(side):
        l, m = cs_read(L_CSA)
        side.add(l)
        side.add([f"v_and_b32 v{G+9}, 31, v0", f"v_lshlrev_b32 v{G+9}, 2, v{G+9}", f"s_lshl_b32 s6, s{S_RT}, 9", f"s_add_u32 s6, s6, {L_ST}",
                  f"v_add_u32 v{G+9}, s6, v{G+9}",
                  lambda: (e.ds(f"ds_read2_b32 {vr(G+12,2)}, v{G+9} offset0:0 offset1:32", "str"),
                           e.ds(f"ds_read2_b32 {vr(G+14,2)}, v{G+9} offset0:64 offset1:96", "str"),
                           e.ds(f"ds_read2st64_b32 {vr(BEXT+2,2)}, v{G+9} offset0:8 offset1:9", "str")),
                  f"v_mov_b32 v{ST+1}, 0", f"v_mov_b32 v{ST+3}, 0", f"v_mov_b32 v{BEXT+1}, 0"])
        side.add(m)
        x = G + 12
        side.add([lambda: e.wds("str")])
        side.add(f"""s_mov_b32 s6, {f2u(1.0/448)}
v_add_f32 v{x}, v{x}, v{x+2}
v_add_f32 v{x+1}, v{x+1}, v{x+3}
v_add_f32 v{x+1}, v{x+1}, v{x}
v_add_f32 v{x}, v{BEXT+2}, v{BEXT+3}
v_mov_b32 v{BEXT+2}, 0
v_mov_b32 v{BEXT+3}, 0
v_mul_f32 v{x}, s6, v{x}
v_mul_f32 v{x+1}, s6, v{x+1}
v_cvt_pk_bf16_f32 v{BEXT}, -v{x}, -v{x}
v_fma_f32 v{x+1}, -v{x}, v{x}, v{x+1}
v_max_f32 v{x+1}, 0, v{x+1}""")
        side.add([mfma(ACCA, ST, BEXT)])
        side.add(f"""v_cvt_pk_bf16_f32 v{x+1}, v{x+1}, v{x+1}
v_and_b32 v{x+1}, s{S_MASK}, v{x+1}
v_add_f32 v{x+1}, {f2u(1e-5)}, v{x+1}""")
        side.add([mfma(ACCA + 16, ST + 2, BEXT)])
        side.add(f"""v_cvt_pk_bf16_f32 v{x+1}, v{x+1}, v{x+1}
v_and_b32 v{x+1}, s{S_MASK}, v{x+1}
v_sqrt_f32 v{x+1}, v{x+1}
s_mov_b32 s6, {f2u(KA)}
v_cvt_pk_bf16_f32 v{x+1}, v{x+1}, v{x+1}
v_and_b32 v{S_}, s{S_MASK}, v{x+1}
v_rcp_f32 v{R_}, v{S_}
v_mul_f32 v{I2}, v{S_}, v{S_}
v_mul_f32 v{AC}, s6, v{R_}
v_mul_f32 v{BC}, v{R_}, v{R_}
v_mul_f32 v{BC}, v{BC}, v{AC}
v_mul_f32 v{BC}, {f2u(0.044715)}, v{BC}""")

    def w2t_out(side):
        side.add(f"""v_lshrrev_b32 v{TP}, 5, v0
v_bfe_u32 v{TP+1}, v0, 2, 2
v_lshl_add_u32 v{TP}, v{TP}, 2, v{TP+1}
v_lshlrev_b32 v{TP}, 7, v{TP}
v_bfe_u32 v{TP+1}, v0, 4, 1
v_lshl_add_u32 v{TP}, v{TP+1}, 5, v{TP}
v_and_b32 v{TP+1}, 3, v0
v_lshl_add_u32 v{TP}, v{TP+1}, 3, v{TP}
s_lshr_b32 s6, s{S_W}, 1
s_lshl_b32 s6, s6, 11
s_and_b32 s{S_A}, s{S_W}, 1
s_lshl_b32 s{S_B}, s{S_A}, 6
s_add_u32 s6, s6, s{S_B}
s_add_u32 s6, s6, {L_W2T}
v_add_u32 v{TP}, s6, v{TP}""")
        side.add([lambda: (e.ds(f"ds_read_b64_tr_b16 {vr(PL,2)}, v{TP}", "w2tr"), e.ds(f"ds_read_b64_tr_b16 {vr(PL+2,2)}, v{TP} offset:1024", "w2tr")),
                  f"s_lshl_b32 s6, s{S_U}, 11", f"s_lshl_b32 s{S_A}, s{S_A}, 10", f"s_add_u32 s6, s6, s{S_A}", f"s_add_u32 s{S_TO}, s6, {W2T}",
                  lambda: (e.wds("w2tr"), e.vm(f"buffer_store_dwordx4 {vr(PL,4)}, v{VL16}, {WS}, s{S_TO} offen {SC}", "w2ts"))])
    GEND = P("GEND", 22)
    GX, GBN, GFL, QRATE = P("GX", 0), P("GBN", 3), P("GFL", 14), P("QRATE", 30)
    def pass2(qfirst):
        side = Side(e); dq = list(dmaq)
        for g in range(28):
            gp = 28 + g
            pre = []; wd = []; wv = []; post = []
            if g == GX:
                wd += ["stw", "csw"]
                def p():
                    dq.extend(stage_dmas(e, 10))
                    after_exchange(side)
                    if not qfirst:
                        side.add(h_off(S_LA, S_C))
                        side.add(gelu(ACCA, S_C, G)); side.add(gelu(ACCA + 16, S_D, G))
                    else: qkv_part1(side)
                post.append(p)
            if g in (6, 14, 22): wv.append(f"d{8 + g // 8}")
            if qfirst and g == GBN: pre.append(side.flush); wd.append("kvw"); post.append(lambda: qkv_part2(side))
            if qfirst and g == GFL:
                pre.append(side.flush); wv.append("qs")
                post.append(lambda: flag_store(e, f"""s_lshl_b32 s6, s{S_RB}, 2
s_add_u32 s6, s6, s{S_QU}
s_lshl_b32 s6, s6, 2
s_add_u32 s6, s6, {F_KV}
v_lshlrev_b32 v{G}, 8, v0
v_add_u32 v{G}, s6, v{G}""", RKV, G))
            if g == P("GW2", 15):
                q0 = side.q; side.q = []; w2t_out(side); side.q += q0
            if g == 24:
                side.flush()
                poll_issue(e, f"""s_and_b32 s6, s2, {RKV-1}
s_lshl_b32 s6, s6, 8
s_add_u32 s6, s6, {F_KV}
v_lshl_add_u32 v{PL}, v0, 2, s6""", PL, PL + 1, "kvp")
            if g == 25:
                side.flush(); side.add(cs_write(L_CSB))
            if g == 26:
                pre.append(side.flush); wd.append("csw")
                def p():
                    l, m = cs_read(L_CSB); side.add(l); side.add(m)
                post.append(p)
            bar = None
            if wd or wv:
                def bar():
                    for f in pre: f()
                    if wd: e.wds(*wd)
                    if wv: e.wvm(*wv)
                    e("s_barrier")
                    for f in post: f()
            if qfirst: n = QRATE if g < GFL else 12
            else: n = -(-len(side.q) // max(1, GEND - g)) if GX < g < GEND else 12
            e.stamp(f"xg{g}")
            position(gp, side, dq, n, bar)
        side.flush()
        e.stamp("xpe2")
        e("s_nop 1")
        e(mfma(ACCB, ST, BEXT)); e(mfma(ACCB + 16, ST + 2, BEXT))
    RQ = 2
    def qkv_part1(side):
        side.add(f"""v_mul_f32 v{RQ}, {f2u(28 ** -0.5 * math.log2(math.e))}, v{R_}
v_and_b32 v{G+8}, 31, v0
v_lshlrev_b32 v{G+8}, 5, v{G+8}
s_lshl_b32 s6, s{S_RT}, 10
s_add_u32 s6, s6, {L_KVB}
v_add_u32 v{G+8}, s6, v{G+8}
s_mov_b32 s{S_D}, 0x00003f80
s_cmp_lt_u32 s{S_QU}, 2
s_cselect_b32 s{S_C}, 0x3f803f80, s{S_D}
s_cselect_b32 s{S_D}, s{S_D}, 0""")
        for i, st_ in ((0, S_T0), (1, S_T1)):
            acc = ACCA + 16 * i; b = G + 4 * i
            for k in range(4): side.add([f"v_mul_f32 v{b+k}, v{acc+12+k}, v{R_}"])
            side.add(f"""s_sub_u32 s6, 3, s{st_}
s_lshl_b32 s{S_A}, s{st_}, 2
s_lshr_b32 s{S_A}, 0x0132, s{S_A}
s_and_b32 s{S_A}, s{S_A}, 3
s_bitcmp1_b32 s{S_QU}, 0
s_cselect_b32 s6, s{S_A}, s6
s_cselect_b32 s{S_A}, s{S_A}, 0
s_lshl_b32 s6, s6, 3
v_cvt_pk_bf16_f32 v{b}, v{b}, v{b+1}
v_cvt_pk_bf16_f32 v{b+1}, v{b+2}, v{b+3}
v_add_u32 v{b+2}, s6, v{G+8}""")
            def wr(b=b):
                l = e.newlabel("nc")
                e(f"s_cmp_eq_u32 s{S_A}, 3\ns_cbranch_scc0 {l}\nv_mov_b32 v{b}, s{S_C}\nv_mov_b32 v{b+1}, s{S_D}")
                e.label(l)
                e(f"s_mov_b64 exec, s[{S_HI}:{S_HI+1}]")
                e.ds(f"ds_write_b64 v{b+2}, {vr(b,2)}", "kvw")
                e("s_mov_b64 exec, -1")
            side.add([wr])
    def qkv_part2(side):
        def kv():
            l = e.newlabel("kvs"); lv = e.newlabel("kvv"); ls = e.newlabel("kvt")
            e(f"""s_cmp_eq_u32 s{S_CG}, 0
s_cbranch_scc0 {l}
s_lshl_b32 s6, s{S_RB}, 2
s_add_u32 s6, s6, s{S_RT}
s_lshl_b32 s6, s6, 12
s_add_u32 s6, s6, {KVF}
s_lshl_b32 s{S_A}, s{S_RT}, 10
s_add_u32 s{S_A}, s{S_A}, {L_KVB}
s_cmp_lt_u32 s{S_QU}, 2
s_cbranch_scc0 {lv}
v_and_b32 v{G}, 31, v0
v_lshrrev_b32 v{G+1}, 5, v0
v_lshlrev_b32 v{G}, 5, v{G}
v_lshl_add_u32 v{G}, v{G+1}, 3, v{G}
v_add_u32 v{G}, s{S_A}, v{G}
ds_read2_b64 {vr(G+4,4)}, v{G} offset0:0 offset1:2
s_lshl_b32 s{S_A}, s{S_QU}, 10
s_add_u32 s6, s6, s{S_A}
v_mov_b32 v{G+2}, v{VL16}
s_branch {ls}""")
            e.label(lv)
            e(f"""v_lshrrev_b32 v{G}, 5, v0
v_bfe_u32 v{G+1}, v0, 4, 1
v_lshlrev_b32 v{G+2}, 10, v{G}
v_lshl_add_u32 v{G+2}, v{G+1}, 9, v{G+2}
v_lshlrev_b32 v{G}, 4, v{G}
v_lshl_add_u32 v{G}, v{G+1}, 2, v{G}
v_bfe_u32 v{G+1}, v0, 2, 2
v_add_u32 v{G}, v{G}, v{G+1}
v_lshlrev_b32 v{G}, 5, v{G}
v_and_b32 v{G+1}, 3, v0
v_lshl_add_u32 v{G}, v{G+1}, 3, v{G}
v_add_u32 v{G}, s{S_A}, v{G}
ds_read_b64_tr_b16 {vr(G+4,2)}, v{G}
ds_read_b64_tr_b16 {vr(G+6,2)}, v{G} offset:256
v_and_b32 v{G+1}, 15, v0
v_lshl_add_u32 v{G+2}, v{G+1}, 4, v{G+2}
s_and_b32 s{S_A}, s{S_QU}, 1
s_lshl_b32 s{S_A}, s{S_A}, 8
s_add_u32 s6, s6, s{S_A}
s_add_u32 s6, s6, 2048""")
            e.label(ls)
            e(f"s_waitcnt lgkmcnt(0)\nbuffer_store_dwordx4 {vr(G+4,4)}, v{G+2}, {WS}, s6 offen {SC}")
            e.label(l)
        side.add([kv])
        side.add(f"""s_lshl_b32 s6, s{S_RB}, 2
s_add_u32 s6, s6, s{S_RT}
s_lshl_b32 s6, s6, 2
s_add_u32 s6, s6, s{S_QU}
s_lshl_b32 s6, s6, 2
s_add_u32 s6, s6, s{S_T0}
s_lshl_b32 s6, s6, 11
s_add_u32 s{S_C}, s6, {QF}""")
        for i in range(2):
            acc = ACCA + 16 * i
            for k in range(16): side.add([f"v_mul_f32 v{acc+k}, v{acc+k}, v{RQ}"])
            for k in range(8): side.add([f"v_cvt_pk_bf16_f32 v{acc+k}, v{acc+2*k}, v{acc+2*k+1}"])
            side.add([f"v_cndmask_b32 v{acc+6}, v{acc+6}, 0, s[{S_HI}:{S_HI+1}]", f"v_cndmask_b32 v{acc+7}, v{acc+7}, 0, s[{S_HI}:{S_HI+1}]",
                      lambda acc=acc, i=i: e.vm(f"buffer_store_dwordx4 {vr(acc,4)}, v{VL16}, {WS}, s{S_C} offen offset:{2048*i} {SC}", "qs"),
                      lambda acc=acc, i=i: e.vm(f"buffer_store_dwordx4 {vr(acc+4,4)}, v{VL16}, {WS}, s{S_C} offen offset:{2048*i+1024} {SC}", "qs")])
    e(f"s_cmp_eq_u32 s{S_ISQ}, 1\ns_cbranch_scc1 B_p2q")
    sn = e.snap(); hs = {k: list(v) for k, v in half.items()}; ns = e.nst
    pass2(False)
    e("s_branch B_join")
    e.label("B_p2q")
    e.nst = ns
    e.restore(sn); half.update({k: list(v) for k, v in hs.items()})
    pass2(True)
    e.label("B_join")
    e.q = {'ds': [], 'vm': ['kvp']}; e.done = {'ds': 0, 'vm': 0}
    e.stamp("join")
    return gelu, h_off

LB0, LB1, VO = 3, 4, 5
Q, O, S0, PP, K, V0, V1 = 36, 44, 64, 96, 104, 112, 120
FA, FB = 128, 192
XRES = 244
S_KH, S_QT, S_KVO, S_WB4, S_FA, S_FB0, S_FB1, S_OO = 50, 51, 54, 55, 56, 57, 59, 60
S_FQ, S_K1 = 62, 63
F0 = P("F0", 8)
FP = P("FP", 6)
HBP = P("HBP", 10)

def kv_dma(e, st):
    l = [lambda: e(f"s_add_u32 m0, s{S_WB4}, {((st + 3) % 4) * RING}\ns_nop 0")]
    for f in range(4):
        l.append(lambda f=f: e.vm(f"buffer_load_dwordx4 v{VL16}, {WS}, s{S_KVO} offen offset:{1024*f} {SC} lds", f"k{st}"))
    l.append(lambda: e(f"s_add_u32 s{S_KVO}, s{S_KVO}, 16384"))
    return l

NB = P("NB", 4)
FBUF = [[FB + 16 * n + 4 * k for k in range(4)] for n in range(3)] + [[60, 124, 248, 252]]
def f_loads(e, q):
    bb = FBUF[q % NB]
    r = q if q < 6 else q - 6
    advA = advB = None
    if q == 5:
        advA = f"s_add_u32 s{S_FA}, s{S_FA}, s{S_FQ}"
        advB = f"s_add_u32 s{S_FB0}, s{S_FB0}, s{S_K1}\ns_add_u32 s{S_FB1}, s{S_FB1}, s{S_K1}"
    else:
        if r & 1: advA = f"s_add_u32 s{S_FA}, s{S_FA}, 4096"
        if (r & 3) == 3: advB = f"s_add_u32 s{S_FB0}, s{S_FB0}, 4096\ns_add_u32 s{S_FB1}, s{S_FB1}, 4096"
    return [lambda: e.vm(f"buffer_load_dwordx4 {vr(bb[0],4)}, v{VL16}, {WS}, s{S_FA} offen offset:{(r&1)*2048} {SC}", f"f{q}"),
            lambda: e.vm(f"buffer_load_dwordx4 {vr(bb[2],4)}, v{VL16}, {WS}, s{S_FB0} offen offset:{(r&3)*1024} {SC}", f"f{q}"),
            lambda: (e.vm(f"buffer_load_dwordx4 {vr(bb[1],4)}, v{VL16}, {WS}, s{S_FA} offen offset:{(r&1)*2048+1024} {SC}", f"f{q}"),
                     e(advA) if advA else None),
            lambda: (e.vm(f"buffer_load_dwordx4 {vr(bb[3],4)}, v{VL16}, {WS}, s{S_FB1} offen offset:{(r&3)*1024} {SC}", f"f{q}"),
                     e(advB) if advB else None)]
def f_mfma(q, k):
    bb = FBUF[q % NB]; r2, d2 = ((0, 0), (0, 1), (1, 1), (1, 0))[k]
    return mfma(FA + 32*r2 + 16*d2, bb[d2], bb[2 + r2], "0" if q == 0 else None)

NOA = P("NOA", 7)
OAREG = [8, 12, 16, 20, 24, 28, 32, 60, 124][:NOA] + [FB + 4 * k for k in range(16)]
S_OA = 61
def oa_load(e, k):
    def f():
        e.vm(f"buffer_load_dwordx4 {vr(OAREG[k],4)}, v{VL16}, {WS}, s{S_OA} offen offset:{(k&3)*1024} {SC}", f"oa{k}")
        if (k & 3) == 3 and k < 15: e(f"s_add_u32 s{S_OA}, s{S_OA}, 4096")
    return f
KVPRE = P('KVPRE', 2)
def attn_setup(e, gelu, h_off):
    e(h_off(S_LB, S_C))
    e(f"""s_mov_b32 s{S_QT}, s{S_RT}
s_mov_b32 s{S_KH}, s{S_CG}
s_lshl_b32 s{S_WB4}, s{S_W}, 12
s_lshl_b32 s6, s{S_KH}, 5
s_add_u32 s6, s6, s{S_QT}
s_lshl_b32 s6, s6, 12
s_add_u32 s{S_KVO}, s6, {KVF}
s_lshl_b32 s6, s{S_RB}, 2
s_add_u32 s6, s6, s{S_QT}
s_lshl_b32 s7, s6, 4
s_add_u32 s7, s7, s{S_J}
s_lshl_b32 s7, s7, 11
s_add_u32 s7, s7, {QF}""")
    g0 = gelu(ACCB, S_C, G); g1 = gelu(ACCB + 16, S_D, G)
    nfirst = P("GFIRST", 0)
    both = g0 + g1
    for it in both[:nfirst]: it() if callable(it) else e(it)
    poll_check(e, PL, PL + 1, "kvp")
    e.wvm("kvp")
    e("s_barrier")
    e.stamp("xkv")
    flag_store(e, f"""s_lshl_b32 s6, s{S_RB}, 5
s_add_u32 s6, s6, s{S_J}
s_lshl_b32 s6, s6, 2
s_add_u32 s6, s6, {F_H + 64}
s_mul_hi_u32 s{S_A}, s2, {(2**32 + 35)//36}
s_mul_i32 s{S_A}, s{S_A}, 28
s_add_u32 s{S_A}, s{S_A}, s2
s_lshl_b32 s{S_A}, s{S_A}, 2
s_add_u32 s{S_A}, s{S_A}, {F_W}
s_sub_u32 s{S_A}, s{S_A}, s6
v_mul_lo_u32 v{PL}, v0, s{S_A}
v_add_u32 v{PL}, s6, v{PL}""", 2, PL)
    side = Side(e)
    side.add(kv_dma(e, 0))
    side.add([lambda: e.vm(f"buffer_load_dwordx4 {vr(Q,4)}, v{VL16}, {WS}, s7 offen {SC}", "q"),
              lambda: e.vm(f"buffer_load_dwordx4 {vr(Q+4,4)}, v{VL16}, {WS}, s7 offen offset:1024 {SC}", "q")])
    side.emit(P("KPRE0", 3))
    for st in range(1, KVPRE): side.add(kv_dma(e, st))
    for n, it in enumerate(both[nfirst:]):
        it() if callable(it) else e(it)
        if n % P('GSP', 8) == P('GSP', 8) - 1: side.emit(1)
    side.flush()
    e(f"""s_lshl_b32 s6, s{S_KH}, 14
v_add_u32 v{LB0}, s6, v{VL16}
v_add_u32 v{LB1}, 0x10000, v{LB0}
s_lshl_b32 s6, s{S_RB}, 2
s_add_u32 s6, s6, s{S_QT}
s_mul_i32 s6, s6, 144
s_lshl_b32 s7, s{S_J}, 1
s_add_u32 s6, s6, s7
s_add_u32 s6, s6, s{S_KH}
s_add_u32 s6, s6, 112
s_lshl_b32 s{S_OO}, s6, 10""")

def rd(e, dst, tile, f, tag):
    sl = (tile // 4 + 3) % 4
    e.ds(f"ds_read_b128 {vr(dst,4)}, v{LB0 if sl < 2 else LB1} offset:{(sl & 1) * RING + (tile % 4) * 4096 + f * 1024}", tag)

def attn_loop(e, withF):
    e.stamp("xge")
    e.wvm("k0", "q"); e.stamp("xk0"); e("s_barrier")
    e.stamp("astart")
    rd(e, K, 0, 0, "a"); rd(e, K + 4, 0, 1, "a"); rd(e, V0, 0, 2, "b")
    e.wds("a")
    e(mfma(S0, K, Q, "0")); e(mfma(S0, K + 4, Q + 4))
    rd(e, K, 1, 0, "b"); rd(e, K + 4, 1, 1, "b")
    if withF:
        e(f"""s_lshr_b32 s6, s{S_J}, 3
s_lshl_b32 s7, s{S_RB}, 1
s_add_u32 s6, s6, s7
s_and_b32 s7, s{S_J}, 7
s_mul_i32 s{S_A}, s{S_W}, 6
s_lshl_b32 s{S_K1}, s{S_W}, 1
s_add_u32 s{S_K1}, s{S_K1}, 44
s_lshl_b32 s{S_K1}, s{S_K1}, 10
s_lshl_b32 s{S_FQ}, s{S_K1}, 1
s_mul_i32 s{S_FB0}, s6, 288
s_add_u32 s{S_FB0}, s{S_FB0}, s{S_A}
s_lshl_b32 s{S_FB0}, s{S_FB0}, 10
s_add_u32 s{S_FB1}, s{S_FB0}, {144*1024}
s_mul_i32 s{S_FA}, s7, 144
s_add_u32 s{S_FA}, s{S_FA}, s{S_A}
s_lshl_b32 s{S_FA}, s{S_FA}, 11
s_add_u32 s{S_FA}, s{S_FA}, {W2T}
s_lshr_b32 s{S_A}, s{S_W}, 1
s_lshl_b32 s{S_A}, s{S_A}, 3
s_mul_i32 s{S_OA}, s7, 144
s_add_u32 s{S_OA}, s{S_OA}, s{S_A}
s_add_u32 s{S_OA}, s{S_OA}, 112
s_lshl_b32 s{S_OA}, s{S_OA}, 11
s_add_u32 s{S_OA}, s{S_OA}, {W2T}""")
    else:
        e("s_nop 9")
    NT = 32
    fq = []
    nq = 0
    for i in range(NT):
        sc = S0 + 16 * (i & 1); sn = S0 + 16 * ((i + 1) & 1)
        v0c = V0 + 4 * (i & 1); v0n = V0 + 4 * ((i + 1) & 1)
        E = lambda r: f"v_exp_f32 v{r}, v{r}"
        C = lambda d, r: f"v_cvt_pk_bf16_f32 v{d}, v{r}, v{r+1}"
        def g(k): return [E(sc + 4*k + q) for q in range(4)] + [C(PP + 2*k, sc + 4*k), C(PP + 2*k + 1, sc + 4*k + 2)]
        g0, g1, g2, g3 = g(0), g(1), g(2), g(3)
        fm = [None, None]; fl = []
        if withF:
            if i == FP - 2:
                assert FP % 4 == 2
                fl = [lambda: poll_issue(e, f"""s_lshl_b32 s6, s{S_RB}, 7
s_add_u32 s6, s6, {F_H + 64}
s_and_b32 s7, s{S_J}, 7
s_lshl_b32 s7, s7, 8
s_add_u32 s7, s7, {F_W - 64}
v_lshl_add_u32 v{G}, v0, 2, s6
v_lshl_add_u32 v{G+1}, v0, 2, s7
v_cmp_lt_u32 vcc, 15, v0
v_mov_b32 v{G+2}, s6
s_nop 0
v_cndmask_b32 v{G}, v{G}, v{G+1}, vcc
v_cmp_lt_u32 vcc, 51, v0
s_nop 1
v_cndmask_b32 v{G}, v{G}, v{G+2}, vcc""", G, G + 1, "hp")]
            if FP <= i < F0:
                if i == FP:
                    for q in range(NB - 1): fq += f_loads(e, q)
                n = -(-len(fq) // (F0 - i))
                fl = ([lambda: None] if i == FP else []) + fq[:n]; fq = fq[n:]
            pb = []
            if i == HBP - 2:
                pb = [lambda: poll_issue(e, f"""s_lshl_b32 s6, s{S_RB}, 7
s_add_u32 s6, s6, {F_H}
v_and_b32 v{G}, 15, v0
v_lshl_add_u32 v{G}, v{G}, 2, s6""", G, G + 1, "hb")]
            if i >= F0:
                q = (i - F0) // 2; h = (i - F0) & 1
                fm = [f_mfma(q, 2*h), f_mfma(q, 2*h + 1)]
                if h == 0 and q + NB - 1 < 14:
                    if q + NB - 1 == 6: assert i > HBP
                    fq = f_loads(e, q + NB - 1)
                fl = fq[:2] + pb; fq = fq[2:]
                nq = q + 1
        def em(x): x() if callable(x) else e(x)
        e.stamp(f"xa{i}")
        for x in g0[:2]: em(x)
        e.all_ds()
        if i > 0: e(mfma(O, V1, PP + 4))
        rd(e, V1, i, 3, "c")
        for x in g0[2:5]: em(x)
        if fm[0]:
            if (i - F0) & 1 == 0: e.wvm(f"f{(i - F0) // 2}")
            e(fm[0])
        for x in g0[5:] + g1[:2]: em(x)
        if i + 1 < NT: e(mfma(sn, K, Q, "0")); rd(e, v0n, i + 1, 2, "c")
        for x in g1[2:4]: em(x)
        if fl: em(fl.pop(0))
        for x in g1[4:] + g2[:2]: em(x)
        if i + 1 < NT: e(mfma(sn, K + 4, Q + 4))
        extra = []
        if i % 4 == 2 and i + 2 < NT:
            st = i // 4
            if withF and i == FP: poll_check(e, G, G + 1, "hp")
            if withF and i == HBP: poll_check(e, G, G + 1, "hb")
            e.wvm(*([f"k{st+1}"] + (["hs"] if i == 2 else []))); e("s_barrier")
            if i == 2:
                flag_store(e, f"""s_lshl_b32 s6, s{S_RB}, 5
s_add_u32 s6, s6, s{S_J}
s_lshl_b32 s6, s6, 2
s_add_u32 s6, s6, {F_H}
v_mov_b32 v{G+2}, s6""", 1, G + 2)
            if st + 3 <= 7: extra = kv_dma(e, st + 3)
        em(g2[2])
        if i + 2 < NT: rd(e, K, i + 2, 0, "c")
        em(g2[3])
        if i + 2 < NT: rd(e, K + 4, i + 2, 1, "c")
        else: e("s_nop 0")
        em(g2[4])
        if fm[1]: e(fm[1])
        for x in g2[5:] + g3[:2]: em(x)
        e(mfma(O, v0c, PP, "0" if i == 0 else None))
        rest = extra + fl
        if i == 29: rest = rest + [comb_addr()]
        if i + KVPRE <= 2: rest = kv_dma(e, i + KVPRE) + rest
        if withF and 31 - NOA <= i < 31: rest = rest + [oa_load(e, i - (31 - NOA))]
        for x in rest[:3]: em(x)
        for x in g3[2:4]: em(x)
        for x in rest[3:]: em(x)
        for x in g3[4:]: em(x)
    e.all_ds()
    e("s_nop 0")
    e(mfma(O, V1, PP + 4))
    return nq, fq

CMB = L_W2T
def comb_addr():
    T = G
    return f"""s_lshl_b32 s6, s{S_W}, 11
s_add_u32 s6, s6, {CMB}
v_add_u32 v{T}, s6, v{VL16}
v_xor_b32 v{T+1}, 8192, v{T}
s_lshl_b32 s6, s{S_W}, 8
s_add_u32 s6, s6, {CMB + 16384}
v_lshl_add_u32 v{T+2}, v0, 2, s6
v_or_b32 v{T+3}, 32, v0
s_lshl_b32 s6, s{S_QT}, 8
s_add_u32 s6, s6, {CMB + 16384}
v_lshl_add_u32 v{T+3}, v{T+3}, 2, s6
s_mov_b32 s{S_C}, {f2u(2.0 ** -64)}
s_mov_b32 s{S_D}, {f2u(2.0 ** 64)}"""

def attn_finish(e):
    T = G
    e.stamp("aend")
    hi = e.newlabel("chi"); jn = e.newlabel("cjn"); fb = e.newlabel("cfb"); bk = e.newlabel("cbk")
    e(f"s_cmp_eq_u32 s{S_KH}, 0\ns_nop 10")
    e.ds(f"ds_write_b32 v{T+2}, v{O+12}")
    e(f"s_cbranch_scc0 {hi}")
    e.ds(f"ds_write_b128 v{T}, {vr(O+8,4)}"); e.ds(f"ds_write_b128 v{T}, {vr(O+12,4)} offset:1024")
    e(f"s_branch {jn}")
    e.label(hi)
    e(f"ds_write_b128 v{T}, {vr(O,4)}\nds_write_b128 v{T}, {vr(O+4,4)} offset:1024")
    e.all_ds()
    for k in range(8): e(f"v_mov_b32 v{O+k}, v{O+8+k}")
    e.label(jn)
    e.all_ds()
    e.stamp("xc0")
    e("s_barrier")
    e.stamp("xc1")
    e.ds(f"ds_read2st64_b32 {vr(PP,2)}, v{T+3} offset0:0 offset1:4", "l")
    e.ds(f"ds_read_b128 {vr(S0,4)}, v{T+1}", "h0"); e.ds(f"ds_read_b128 {vr(S0+4,4)}, v{T+1} offset:1024", "h1")
    e(f"s_mov_b32 s{S_A}, 0\ns_sub_u32 s{S_B}, 0, s{S_KH}")
    e.wds("l")
    e(f"""v_add_f32 v{PP}, v{PP}, v{PP+1}
v_rcp_f32 v{PP+1}, v{PP}
v_cmp_nle_f32 vcc, s{S_C}, v{PP}
v_cmp_nge_f32 s[{S_E}:{S_F}], s{S_D}, v{PP}""")
    e.all_ds()
    for k in range(8): e(f"v_add_f32 v{S0+k}, v{S0+k}, v{O+k}")
    e(f"s_or_b64 s[{S_E}:{S_F}], s[{S_E}:{S_F}], vcc")
    for k in range(8): e(f"v_mul_f32 v{S0+k}, v{S0+k}, v{PP+1}")
    e(f"""v_add_f32 v{PP+2}, |v{S0}|, |v{S0+1}|
v_add_f32 v{PP+3}, |v{S0+2}|, |v{S0+3}|
v_add_f32 v{PP+4}, |v{S0+4}|, |v{S0+5}|
v_add_f32 v{PP+5}, |v{S0+6}|, |v{S0+7}|
v_add_f32 v{PP+2}, v{PP+2}, v{PP+3}
v_add_f32 v{PP+4}, v{PP+4}, v{PP+5}
s_mov_b32 s6, 0x7f7fffff
v_add_f32 v{PP+2}, v{PP+2}, v{PP+4}
v_cmp_nge_f32 vcc, s6, v{PP+2}
s_or_b64 vcc, vcc, s[{S_E}:{S_F}]""")
    if 'forcefb' in X: e("s_mov_b64 vcc, 1")
    e(f"s_cbranch_vccnz {fb}")
    e.label(bk)
    for k in range(4): e(f"v_cvt_pk_bf16_f32 v{K+k}, v{S0+2*k}, v{S0+2*k+1}")
    e(f"""v_cndmask_b32 v{K+2}, v{K+2}, 0, s[{S_A}:{S_B}]
v_cndmask_b32 v{K+3}, v{K+3}, 0, s[{S_A}:{S_B}]""")
    e.vm(f"buffer_store_dwordx4 {vr(K,4)}, v{VL16}, {WS}, s{S_OO} offen {SC}", "os")
    FALLBACKS.append((fb, bk))
    e.stamp("xc2")

FALLBACKS = []
def fallback(e, fb, bk):
    l1 = e.newlabel("fb1"); l2 = e.newlabel("fb2"); l3 = e.newlabel("fb3")
    M = PP + 7
    e.label(fb)
    e(f"s_mov_b32 s6, {KVF}\nv_mov_b32 v{M}, 0xff800000")
    e.label(l1)
    e(f"""buffer_load_dwordx4 {vr(K,4)}, v{VL16}, {WS}, s6 offen {SC}
buffer_load_dwordx4 {vr(K+4,4)}, v{VL16}, {WS}, s6 offen offset:1024 {SC}
s_add_u32 s6, s6, 4096
s_waitcnt vmcnt(0)""")
    e(mfma(S0, K, Q, "0")); e(mfma(S0, K + 4, Q + 4))
    e("s_nop 11")
    for k in range(8): e(f"v_max3_f32 v{M}, v{M}, v{S0+2*k}, v{S0+2*k+1}")
    e(f"""s_cmp_lt_u32 s6, {KVF + 64*4096}
s_cbranch_scc1 {l1}
v_mov_b32 v{PP}, v{M}
s_nop 1
v_permlane32_swap_b32 v{PP}, v{M}
v_max_f32 v{M}, v{M}, v{PP}
v_cvt_pk_bf16_f32 v{PP}, v{M}, v{M}
v_and_b32 v{PP}, s{S_MASK}, v{PP}
v_sub_f32 v{PP+1}, v{M}, v{PP}
v_cvt_pk_bf16_f32 v{PP+2}, v{PP+1}, v{PP+1}
v_and_b32 v{PP+2}, s{S_MASK}, v{PP+2}
v_sub_f32 v{PP+1}, v{PP+1}, v{PP+2}
v_cvt_pk_bf16_f32 v{PP}, -v{PP}, -v{PP+2}
v_cvt_pk_bf16_f32 v{PP+1}, -v{PP+1}, 0
v_cndmask_b32 v{Q+6}, v{Q+6}, v{PP}, s[{S_HI}:{S_HI+1}]
v_cndmask_b32 v{Q+7}, v{Q+7}, v{PP+1}, s[{S_HI}:{S_HI+1}]
s_mov_b32 s6, {KVF}""")
    for k in range(16): e(f"v_mov_b32 v{O+k}, 0")
    e.label(l2)
    for f in range(4): e(f"buffer_load_dwordx4 {vr(K+4*f,4)}, v{VL16}, {WS}, s6 offen offset:{1024*f} {SC}")
    e("s_add_u32 s6, s6, 4096\ns_waitcnt vmcnt(0)")
    e(mfma(S0, K, Q, "0")); e(mfma(S0, K + 4, Q + 4))
    e("s_nop 11")
    for k in range(16): e(f"v_exp_f32 v{S0+k}, v{S0+k}")
    e("s_nop 0")
    for k in range(8): e(f"v_cvt_pk_bf16_f32 v{PP+k}, v{S0+2*k}, v{S0+2*k+1}")
    e("s_nop 1")
    e(mfma(O, K + 8, PP)); e(mfma(O, K + 12, PP + 4))
    e(f"""s_cmp_lt_u32 s6, {KVF + 64*4096}
s_cbranch_scc1 {l2}
s_nop 11
v_mov_b32 v{PP}, v{O+12}
v_mov_b32 v{PP+1}, v{O+12}
s_cmp_eq_u32 s{S_KH}, 0
s_nop 0
v_permlane32_swap_b32 v{PP}, v{PP+1}
v_rcp_f32 v{PP+1}, v{PP+1}
s_cbranch_scc1 {l3}""")
    for k in range(8): e(f"v_mov_b32 v{O+k}, v{O+8+k}")
    e.label(l3)
    e("s_nop 0")
    for k in range(8): e(f"v_mul_f32 v{S0+k}, v{O+k}, v{PP+1}")
    e(f"s_branch {bk}")

def o_flag(e):
    e.stamp("xc3")
    e.wvm("os"); e.stamp("xc4"); e("s_barrier")
    flag_store(e, f"""s_lshl_b32 s6, s{S_RB}, 5
s_add_u32 s6, s6, s{S_J}
s_lshl_b32 s6, s6, 2
s_add_u32 s6, s6, {F_O}
v_mov_b32 v{G}, s6""", 1, G)

def tail(e, nq, fq):
    T = G
    OC, SUM = 64, 232
    OBR = [96 + 4 * k for k in range(7)] + [36]
    assert NOA >= 6
    AD = 248
    OA = lambda k: OAREG[k]
    for f in fq: f()
    while nq < 14:
        if nq + NB - 1 < 14:
            for f in f_loads(e, nq + NB - 1): f()
        e.wvm(f"f{nq}")
        for k in range(4): e(f_mfma(nq, k))
        nq += 1
    e(f"""v_and_b32 v{T}, 31, v0
v_lshrrev_b32 v{T+1}, 5, v0
v_and_b32 v{T+2}, 7, v0
v_xor_b32 v{T+1}, v{T+1}, v{T+2}
v_lshlrev_b32 v{T+1}, 4, v{T+1}
v_lshl_add_u32 v{T+3}, v{T}, 8, v{T+1}
s_lshl_b32 s6, s{S_W}, 14
v_add_u32 v{AD}, s6, v{T+3}""")
    for q in range(1, 4): e(f"v_xor_b32 v{AD+q}, {q*32}, v{AD}")
    dump = [(lambda r2=r2, d2=d2, q=q: e.ds(f"ds_write_b128 v{AD+q}, {vr(FA+32*r2+16*d2+4*q,4)} offset:{r2*8192 + d2*128}"))
            for (r2, d2) in ((0, 0), (0, 1), (1, 1), (1, 0)) for q in range(4)]
    setup = Side(e)
    setup.add(f"""s_lshr_b32 s6, s{S_J}, 3
s_lshl_b32 s7, s{S_RB}, 1
s_add_u32 s6, s6, s7
s_and_b32 s{S_B}, s{S_W}, 1
s_lshl_b32 s{S_C}, s6, 1
s_add_u32 s{S_C}, s{S_C}, s{S_B}
s_mul_i32 s{S_C}, s{S_C}, 144
s_lshr_b32 s{S_A}, s{S_W}, 1
s_lshl_b32 s{S_D}, s{S_A}, 3
s_add_u32 s{S_D}, s{S_D}, 112
s_add_u32 s{S_C}, s{S_C}, s{S_D}
s_lshl_b32 s{S_C}, s{S_C}, 10
s_and_b32 s7, s{S_J}, 7
s_add_u32 s{S_D}, s{S_C}, 4096
s_lshl_b32 s{S_A}, s{S_A}, 14
s_lshl_b32 s{S_B}, s{S_B}, 13
s_add_u32 s{S_G}, s{S_A}, s{S_B}
s_lshl_b32 s6, s6, 6
s_lshl_b32 s{S_B}, s{S_W}, 3
s_add_u32 s6, s6, s{S_B}
v_lshrrev_b32 v{T}, 3, v0
v_add_u32 v{T+1}, s6, v{T}
v_mul_u32_u24 v{T+1}, 896, v{T+1}
v_and_b32 v{T+2}, 7, v0
v_lshl_add_u32 v{T+1}, v{T+2}, 4, v{T+1}
s_lshl_b32 s7, s7, 7
v_add_u32 v{VO}, s7, v{T+1}
v_lshlrev_b32 v{T+2}, 1, v{T+2}
v_xor_b32 v{T+2}, v{T+2}, v{T}
v_lshlrev_b32 v{T+2}, 4, v{T+2}
v_lshl_add_u32 v{T}, v{T}, 8, v{T+2}
s_lshl_b32 s6, s{S_W}, 11
v_add_u32 v{AD+4}, s6, v{T}
v_xor_b32 v{AD+5}, 16, v{AD+4}
v_add_u32 v{AD+6}, 0x10000, v{AD+4}
v_add_u32 v{AD+7}, 0x10000, v{AD+5}""")
    nd1 = P("ND1", 8)
    oaq = [oa_load(e, k) for k in range(NOA, 16)]
    for f in dump[:nd1]:
        if oaq: oaq.pop(0)()
        f(); setup.emit(5)
    setup.flush()
    o_flag_regs = True
    e.stamp("xc3")
    e.wvm("os"); e.stamp("xc4"); e("s_barrier")
    flag_store(e, f"""s_lshl_b32 s6, s{S_RB}, 5
s_add_u32 s6, s6, s{S_J}
s_lshl_b32 s6, s6, 2
s_add_u32 s6, s6, {F_O}
v_mov_b32 v{T}, s6""", 1, T)
    e.vm(f"buffer_load_dwordx4 {vr(XRES,4)}, v{VO}, s[{SRD_X}:{SRD_X+3}], 0 offen", "xr")
    for f in dump[nd1:]:
        if oaq: oaq.pop(0)()
        f()
    for f in oaq: f()
    poll_issue(e, f"""s_lshl_b32 s6, s{S_RB}, 7
s_add_u32 s6, s6, {F_O}
v_and_b32 v{T}, 15, v0
v_lshl_add_u32 v{T}, v{T}, 2, s6""", T, T + 1, "op")
    srd(e, SRD_OUT, P_OUT, 2048 * 896)
    e(f"v_add_u32 v{AD}, s{S_G}, v{T+3}")
    e.wvm("xr")
    for k in range(4): e(f"v_lshlrev_b32 v{SUM+2*k}, 16, v{XRES+k}\nv_and_b32 v{SUM+1+2*k}, s{S_MASK}, v{XRES+k}")
    e.all_ds()
    for q in range(1, 4): e(f"v_xor_b32 v{AD+q}, {q*32}, v{AD}")
    if P("EARLYRED", 1):
        e("s_barrier")
        def reduce_reads():
            for p in range(8):
                b0 = AD + 4 if p < 4 else AD + 6
                e.ds(f"ds_read_b128 {vr(FA+8*p,4)}, v{b0} offset:{(p&3)*16384}", f"p{p}")
                e.ds(f"ds_read_b128 {vr(FA+8*p+4,4)}, v{b0+1} offset:{(p&3)*16384}", f"p{p}")
            for p in range(8):
                e.wds(f"p{p}")
                for k in range(8): e(f"v_add_f32 v{SUM+k}, v{SUM+k}, v{FA+8*p+k}")
        reduce_reads()
    e.stamp("t1")
    poll_check(e, T, T + 1, "op")
    e("s_barrier")
    e.stamp("t2")
    for k in range(8):
        e.vm(f"buffer_load_dwordx4 {vr(OBR[k],4)}, v{VL16}, {WS}, s{S_C if k < 4 else S_D} offen offset:{(k&3)*1024} {SC}", f"ob{k}")
    for k in range(8):
        e.wvm(f"ob{k}")
        for d2 in range(2): e(mfma(OC + 16*d2, OA(2*k + d2), OBR[k], "0" if k == 0 else None))
    e("s_nop 10")
    e.stamp("t3")
    for d2 in range(2):
        for q in range(4): e.ds(f"ds_write_b128 v{AD+q}, {vr(OC+16*d2+4*q,4)} offset:{d2*128}")
    e.all_ds()
    e("s_barrier")
    for p in range(4):
        e.ds(f"ds_read_b128 {vr(FA+8*p,4)}, v{AD+4} offset:{p*16384}", f"s{p}")
        e.ds(f"ds_read_b128 {vr(FA+8*p+4,4)}, v{AD+5} offset:{p*16384}", f"s{p}")
    for p in range(4):
        e.wds(f"s{p}")
        for k in range(8): e(f"v_add_f32 v{SUM+k}, v{SUM+k}, v{FA+8*p+k}")
    for k in range(4): e(f"v_cvt_pk_bf16_f32 v{XRES+k}, v{SUM+2*k}, v{SUM+1+2*k}")
    e.vm(f"buffer_store_dwordx4 {vr(XRES,4)}, v{VO}, s[{SRD_OUT}:{SRD_OUT+3}], 0 offen")

def build():
    e = Em()
    kn = NAME + "_kernel"
    e.a.raw(f".globl {kn}\n.p2align 8\n.type {kn},@function")
    e.label(kn)
    prologue(e)
    gelu, h_off = phaseB(e)
    attn_setup(e, gelu, h_off)
    e(f"s_and_b32 s6, s{S_J}, 7\ns_cmp_eq_u32 s6, 7\ns_cbranch_scc1 C_noF")
    sn = e.snap(); ns = e.nst
    nq, fq = attn_loop(e, True)
    attn_finish(e)
    tail(e, nq, fq)
    nend = e.nst
    e("s_branch K_fin")
    e.label("C_noF")
    e.restore(sn); e.nst = ns
    attn_loop(e, False)
    attn_finish(e)
    o_flag(e)
    e(f"""s_cmp_eq_u32 s{S_RB}, 0
s_cbranch_scc0 C_noF_done
s_cmp_eq_u32 s{S_J}, 7
s_cbranch_scc0 C_noF_done
s_cmp_eq_u32 s{S_W}, 0
s_cbranch_scc0 C_noF_done""")
    for k in range(4):
        e(f"""v_lshrrev_b32 v{G}, 4, v0
v_and_b32 v{G+1}, 15, v0
v_lshlrev_b32 v{G}, 7, v{G}
v_lshl_add_u32 v{G}, v{G+1}, 2, v{G}
v_add_u32 v{G}, {F_H + 512*k}, v{G}""")
        e.vm(f"buffer_load_dword v{G+1}, v{G}, {WS}, 0 offen {SC}", f"ep{k}")
        poll_check(e, G, G + 1, f"ep{k}")
    e(f"v_mov_b32 v{G}, {EPO}\nv_mov_b32 v{G+1}, s{S_NON}\ns_mov_b64 exec, 1\nbuffer_store_dword v{G+1}, v{G}, {WS}, 0 offen {SC}\ns_mov_b64 exec, -1")
    e.label("C_noF_done")
    while e.nst < nend and not STAMPS_OFF: e.stamp()
    e.label("K_fin")
    if 'stdiag' in X:
        e("""s_memtime s[92:93]
s_waitcnt lgkmcnt(0)
K_sd:
s_sleep 2
s_memtime s[90:91]
s_waitcnt lgkmcnt(0)
s_sub_u32 s6, s90, s92
s_cmp_lt_u32 s6, s94
s_cbranch_scc1 K_sd""")
    if 'fix' in X:
        e("""K_fx:
s_sleep 1
s_memrealtime s[98:99]
s_waitcnt lgkmcnt(0)
s_sub_u32 s6, s98, s96
s_cmp_lt_u32 s6, 10000
s_cbranch_scc1 K_fx""")
    if 'amp' in X:
        e("""s_waitcnt vmcnt(0)
s_memrealtime s[98:99]
s_waitcnt lgkmcnt(0)
s_sub_u32 s7, s98, s96
s_mul_i32 s7, s7, 10
K_fx:
s_sleep 1
s_memrealtime s[98:99]
s_waitcnt lgkmcnt(0)
s_sub_u32 s6, s98, s96
s_cmp_lt_u32 s6, s7
s_cbranch_scc1 K_fx""")
    if STAMPS:
        e.stamp()
        e.label("K_fin2")
        e("s_memrealtime s[98:99]\ns_waitcnt lgkmcnt(0) vmcnt(0)")
        e(f"""s_mov_b32 s40, s{P_WS}
s_mov_b32 s41, s{P_WS+1}
s_mov_b32 s42, 0x10000000
s_mov_b32 s43, 0x00020000
s_lshl_b32 s6, s2, 3
s_add_u32 s6, s6, s{S_W}
s_lshl_b32 s6, s6, 6
s_add_u32 s6, s6, {STAMP_WS}
v_mov_b32 v2, s96
v_mov_b32 v3, s98""")
        for k in range(10): e(f"v_mov_b32 v{4+k}, {'s%d' % (76+2*k) if k < e.nst else 0}")
        e("v_mov_b32 v1, 0\ns_mov_b64 exec, 1")
        for q in range(3): e(f"buffer_store_dwordx4 v[{2+4*q}:{5+4*q}], v1, s[40:43], s6 offen offset:{16*q}")
    e("s_endpgm")
    for fb, bk in FALLBACKS: fallback(e, fb, bk)
    e.label("K_end")
    e("s_endpgm")
    probs = check_hazards(e.a.lines, "k")
    hdr = open("cdna_kernels/" + NAME + ".s.ref").read().split("; Override launch")[0]
    out = hdr + f"; @launch grid=(256,1,1) block=(512,1,1) lds={LDS_BYTES}\n"
    out += '.amdgcn_target "amdgcn-amd-amdhsa--gfx950"\n.text\n' + e.a.text()
    out += f""".section .rodata,"a"
.p2align 6
.amdhsa_kernel {kn}
  .amdhsa_next_free_vgpr 256
  .amdhsa_next_free_sgpr 102
  .amdhsa_accum_offset 256
  .amdhsa_group_segment_fixed_size 0
  .amdhsa_kernarg_size 96
  .amdhsa_user_sgpr_count 2
  .amdhsa_user_sgpr_kernarg_segment_ptr 1
  .amdhsa_system_sgpr_workgroup_id_x 1
  .amdhsa_float_denorm_mode_32 3
.end_amdhsa_kernel
"""
    return out, probs

if __name__ == "__main__":
    out, probs = build()
    for p in probs: print("HAZARD", p, file=sys.stderr)
    open(sys.argv[1] if len(sys.argv) > 1 else "cdna_kernels/" + NAME + ".s", "w").write(out)
```

```python
import sys, os, math, struct
from asmlib import *
X = set(os.environ.get('XFLAGS', '').split(','))
def P(name, default): return int(os.environ.get(name, default))
NAME = "parallel_sum__grouped_kv_mqa__glu_gated_geglu__prompt"
def f2u(x): return struct.unpack("<I", struct.pack("<f", x))[0]

A2F = 0
W2T = 64 * 144 * 1024
QF  = W2T + 7 * 144 * 2048
KVF = QF + 64 * 16 * 2048
FLG = KVF + 64 * 4096
RKV = P("RKV", 16)
F_W  = FLG
F_H  = FLG + 2048
F_O  = FLG + 4096
EPO  = FLG + 6144
F_KV = FLG + 8192
WS_END = F_KV + 256 * RKV
OOB = 0x7ffffff0
P_X, P_WQ, P_WK, P_WV, P_WO, P_BX, P_WG, P_WU, P_WD, P_OUT, P_DBG, P_WS = 8, 10, 12, 14, 16, 18, 20, 22, 24, 26, 28, 30
SRD_X, SRD_WS, SRD_T, SRD_PC = 32, 36, 40, 44
SRD_OUT = SRD_T
S_W, S_RB, S_J = 3, 4, 5
(S_WB, S_MASK, S_XO, S_XO2, S_RT, S_CG, S_MUL, S_T0, S_T1, S_U, S_NON, S_LA, S_LB, S_TO, S_QU) = range(48, 63)
S_HI = 64
S_A, S_B, S_C, S_D, S_E, S_F = 66, 67, 68, 69, 70, 71
S_G, S_H2 = 72, 73
S_CNT = 74
WS = f"s[{SRD_WS}:{SRD_WS+3}]"
SC = "sc1"
STAMPS = bool(os.environ.get("STAMPS"))
STAMP_WS = 200 * 1024 * 1024
SPIN_MAX = 1 << 18
STAMPS_OFF = False

class Em:
    def __init__(s):
        s.a = Asm(); s.q = {'ds': [], 'vm': []}; s.done = {'ds': 0, 'vm': 0}; s.nst = 0; s.uid = 0
    def __call__(s, t): s.a(t)
    def label(s, l): s.a.label(l)
    def ds(s, ins, tag=None): s.a(ins); s.q['ds'].append(tag)
    def vm(s, ins, tag=None): s.a(ins); s.q['vm'].append(tag)
    def _n(s, k, tags, cap):
        idx = -1
        for t in tags:
            ii = [i for i, x in enumerate(s.q[k]) if x == t]
            assert ii, f"tag {t} never issued"
            idx = max(idx, ii[-1])
        if idx < s.done[k]: return None
        n = min(len(s.q[k]) - 1 - idx, cap)
        s.done[k] = len(s.q[k]) - n
        return n
    def wds(s, *tags):
        n = s._n('ds', tags, 15)
        if n is not None: s.a(f"s_waitcnt lgkmcnt({n})")
    def wvm(s, *tags):
        n = s._n('vm', tags, 63)
        if n is not None: s.a(f"s_waitcnt vmcnt({n})")
    def all_ds(s): s.a("s_waitcnt lgkmcnt(0)"); s.done['ds'] = len(s.q['ds'])
    def all_vm(s): s.a("s_waitcnt vmcnt(0)"); s.done['vm'] = len(s.q['vm'])
    def snap(s): return ({k: list(v) for k, v in s.q.items()}, dict(s.done))
    def restore(s, sn): s.q = {k: list(v) for k, v in sn[0].items()}; s.done = dict(sn[1])
    def stamp(s, name=None):
        if name is not None and name == os.environ.get("AMPAT"):
            s.a("s_memrealtime s[94:95]"); s.all_ds()
        sel = os.environ.get("STSEL")
        if sel is not None and name is not None and name not in sel.split(","): return
        if sel is None and name is not None and name.startswith("x"): return
        if STAMPS and not STAMPS_OFF:
            assert s.nst < 10
            s.a(f"{'s_memrealtime' if os.environ.get('RT') else 's_memtime'} s[{76+2*s.nst}:{77+2*s.nst}]"); s.nst += 1
            s.all_ds()
    def newlabel(s, p): s.uid += 1; return f"{p}_{s.uid}"

def srd(e, d, p, nbytes):
    e(f"s_mov_b32 s{d}, s{p}\ns_mov_b32 s{d+1}, s{p+1}\ns_mov_b32 s{d+2}, {nbytes}\ns_mov_b32 s{d+3}, 0x00020000")
def mfma(d, A, B, C=None):
    return f"v_mfma_f32_32x32x16_bf16 {vr(d,16)}, {vr(A,4)}, {vr(B,4)}, {vr(d,16) if C is None else C}"
def mfma16(d, A, B, C=None):
    return f"v_mfma_f32_16x16x32_bf16 {vr(d,4)}, {vr(A,4)}, {vr(B,4)}, {vr(d,4) if C is None else C}"

class Side:
    def __init__(s, e): s.e = e; s.q = []
    def add(s, items):
        if isinstance(items, str):
            raw = [l.strip() for l in items.strip().split("\n") if l.strip()]
            items = []
            for l in raw:
                if l.startswith("s_cselect"): items[-1] += "\n" + l
                else: items.append(l)
        s.q += list(items)
    def emit(s, n):
        while n > 0 and s.q:
            it = s.q.pop(0)
            if callable(it): it()
            else: s.e(it)
            n -= 1
    def flush(s): s.emit(1 << 30)

def flag_store(e, addr_lines, nlanes, vt):
    l = e.newlabel("fl")
    e(f"s_cmp_eq_u32 s{S_W}, 0\ns_cbranch_scc0 {l}")
    e(addr_lines)
    e(f"v_mov_b32 v{vt+1}, s{S_NON}\ns_mov_b64 exec, {(1 << nlanes) - 1}\nbuffer_store_dword v{vt+1}, v{vt}, {WS}, 0 offen {SC}\ns_mov_b64 exec, -1")
    e.label(l)

def poll_issue(e, addr_lines, vaddr, vdat, tag):
    e(addr_lines)
    e(f"s_cmp_eq_u32 s{S_W}, 0\ns_cselect_b32 s6, 0, {OOB}\nv_or_b32 v{vaddr}, s6, v{vaddr}")
    e.vm(f"buffer_load_dword v{vdat}, v{vaddr}, {WS}, 0 offen {SC}", tag)

def poll_check(e, vaddr, vdat, tag):
    ok = e.newlabel("pok"); sp = e.newlabel("psp")
    e(f"s_cmp_eq_u32 s{S_W}, 0\ns_cbranch_scc0 {ok}")
    dn = dict(e.done); e.wvm(tag); e.done = dn
    e(f"v_cmp_ne_u32 vcc, s{S_NON}, v{vdat}\ns_cbranch_vccz {ok}\ns_mov_b32 s{S_CNT}, {SPIN_MAX}")
    e.label(sp)
    e(f"""s_sleep {P('SLEEP', 4)}
buffer_load_dword v{vdat}, v{vaddr}, {WS}, 0 offen {SC}
s_sub_u32 s{S_CNT}, s{S_CNT}, 1
s_waitcnt vmcnt(0)
v_cmp_ne_u32 vcc, s{S_NON}, v{vdat}
s_cmp_eq_u32 s{S_CNT}, 0
s_cbranch_scc1 {ok}
s_cbranch_vccnz {sp}""")
    e.label(ok)

RING = 32768
L_W2T = 131072
L_CSA = L_W2T + 8192
L_CSB = L_CSA + 2048
L_ST  = L_CSB + 2048
L_KVB = L_ST + 4096
L_FLG = L_KVB + 4096
LDS_BYTES = L_FLG + 256

VL16, VT, VX, GA, GS = 1, 2, 3, 4, 6
XA, WA = 8, 12
ST, SEL, CSA, WF, TM = 20, 24, 28, 36, 60
ACCA, ACCB, XR, G = 64, 96, 128, 240
SQA, SQB, TP = 60, 240, 248
WB, GB, PL = 250, 102, 252
R_, S_, AC, BC, I2 = 8, 9, 10, 11, 3
BEXT = 60


TA, TS, TX, TD = 96, 98, 99, 100
S_ISQ, S_SH = 63, 75
def w_source(row, c, dst, gs, t0):
    return f"""v_cmp_le_u32 vcc, s{S_A}, v{c}
v_mul_lo_u32 v{dst}, v{row}, s{S_B}
v_lshl_add_u32 v{dst}, v{c}, 4, v{dst}
v_add_u32 v{dst}, s{S_C}, v{dst}
v_subrev_u32 v{c}, s{S_A}, v{c}
v_lshlrev_b32 v{c}, s{S_G}, v{c}
v_mul_lo_u32 v{t0}, v{row}, s{S_D}
v_add3_u32 v{t0}, v{t0}, v{c}, s{S_H2}
v_cndmask_b32 v{dst}, v{dst}, v{t0}, vcc
v_mov_b32 v{gs}, s{S_B}
v_mov_b32 v{t0}, s{S_D}
v_cndmask_b32 v{gs}, v{gs}, v{t0}, vcc
v_lshlrev_b32 v{gs}, 5, v{gs}"""

ROTS = {0: [0]*8, 1: [0, 3, 2, 5, 4, 0, 6, 2], 2: [0, 3, 3, 0, 0, 3, 3, 0], 3: [0, 1, 2, 3, 4, 5, 6, 0], 4: [0, 4, 1, 5, 2, 6, 3, 0]}
ROTTAB = sum(v << (4 * i) for i, v in enumerate(ROTS[P("ROT", 1)]))
def prologue(e):
    e(f"s_cmp_ge_u32 s2, 256\ns_cbranch_scc1 K_end")
    if STAMPS or 'fix' in X or 'amp' in X or os.environ.get("AMPAT"): e("s_memrealtime s[96:97]")
    e.stamp()
    e("s_load_dwordx16 s[8:23], s[0:1], 0\ns_load_dwordx8 s[24:31], s[0:1], 64")
    e(f"s_getpc_b64 s[{SRD_PC}:{SRD_PC+1}]")
    e.label("K_pc")
    e(f"""s_mov_b32 s{SRD_PC+2}, K_end-K_pc
s_mov_b32 s{SRD_PC+3}, 0x00020000
v_lshlrev_b32 v1, 7, v0""")
    e.vm(f"buffer_load_dword v{TD}, v1, s[{SRD_PC}:{SRD_PC+3}], 0 offen")
    T = TM
    e(f"""v_lshrrev_b32 v1, 6, v0
v_and_b32 v0, 63, v0
v_readfirstlane_b32 s{S_W}, v1""")
    if GT:
        e(f"""s_lshl_b32 s{S_TG}, s2, 3
s_add_u32 s{S_TG}, s{S_TG}, s{S_W}
s_min_u32 s6, s{S_TG}, 2039
s_cmp_ge_u32 s6, 768
s_cselect_b32 s7, 56, 48
s_cselect_b32 s{S_A}, 768, 0
s_cmp_ge_u32 s6, 1536
s_cselect_b32 s7, 8, s7
s_cselect_b32 s{S_A}, 1536, s{S_A}
s_cselect_b32 s{S_B}, 7, 12
s_cselect_b32 s{S_C}, 7, 28
s_cmp_ge_u32 s6, 1984
s_cselect_b32 s7, 16, s7
s_cselect_b32 s{S_A}, 1984, s{S_A}
s_cselect_b32 s{S_B}, 28, s{S_B}
s_cmp_ge_u32 s6, 2012
s_cselect_b32 s7, 24, s7
s_cselect_b32 s{S_A}, 2012, s{S_A}
s_load_dwordx2 s[{SRD_PC}:{SRD_PC+1}], s[0:1], s7
s_sub_u32 s6, s6, s{S_A}
v_cvt_f32_u32 v{T}, s6
v_cvt_f32_u32 v{T+1}, s{S_B}
v_add_f32 v{T}, 0.5, v{T}
v_rcp_f32 v{T+1}, v{T+1}
s_lshl_b32 s{S_C}, s{S_C}, 7
s_cmp_eq_u32 s{S_B}, 28
v_mul_f32 v{T}, v{T}, v{T+1}
v_cvt_u32_f32 v{T}, v{T}
s_cselect_b32 s{S_D}, 3584, 0
s_lshl_b32 s7, s{S_C}, 6
s_cmp_eq_u32 s{S_B}, 28
s_cselect_b32 s7, s{S_D}, s7
s_mul_i32 s{SRD_PC+2}, s7, 7
v_mul_lo_u32 v{T+1}, v{T}, s{S_B}
v_sub_u32 v{T+1}, s6, v{T+1}
v_mul_lo_u32 v{T}, v{T}, s{S_C}
v_lshl_add_u32 v{T}, v{T+1}, 7, v{T}
v_and_b32 v{T+1}, 1, v0
v_mul_lo_u32 v{TA}, v{T+1}, s7
v_add_u32 v{TA}, v{TA}, v{T}
s_mul_i32 s6, s{S_TG}, 896
v_lshl_add_u32 v{TX}, v{T+1}, 7, s6
s_mov_b32 s{S_TS}, s7""")
    e(f"""
s_bfe_u32 s{S_RB}, s2, 0x20001
s_lshl_b32 s{S_RB}, s{S_RB}, 2
s_lshr_b32 s6, s2, 6
s_add_u32 s{S_RB}, s{S_RB}, s6
s_and_b32 s{S_J}, s2, 1
s_lshl_b32 s{S_J}, s{S_J}, 3
s_bfe_u32 s7, s2, 0x30003
s_add_u32 s{S_J}, s{S_J}, s7
s_lshr_b32 s{S_QU}, s{S_J}, 2
s_sub_u32 s{S_LA}, s{S_J}, s{S_QU}
s_lshl_b32 s{S_WB}, s{S_W}, 10
s_lshl_b32 s{S_C}, s{S_LA}, 7
s_mul_i32 s{S_E}, s{S_QU}, 224
s_and_b32 s{S_F}, s{S_QU}, 1
s_sub_u32 s{S_G}, 4, s{S_F}
s_lshl_b32 s{S_F}, s{S_F}, 5
s_movk_i32 s{S_D}, 3584
s_and_b32 s{S_ISQ}, s{S_J}, 3
s_cmp_eq_u32 s{S_ISQ}, 3
s_cselect_b32 s{S_ISQ}, 1, 0
s_cselect_b32 s{S_A}, 14, 8
s_cselect_b32 s{S_B}, 896, s{S_D}
s_cselect_b32 s{S_D}, 56, s{S_D}
s_cselect_b32 s{S_H2}, s{S_F}, s{S_C}
s_cselect_b32 s{S_C}, s{S_E}, s{S_C}
s_cselect_b32 s{S_G}, s{S_G}, 4
s_add_u32 s{S_SH}, s{S_ISQ}, 1
s_lshl_b32 s{S_E}, s{S_RB}, 7
s_lshl_b32 s{S_F}, s{S_W}, 3
s_add_u32 s{S_F}, s{S_F}, s{S_E}
v_lshrrev_b32 v{T}, 3, v0
v_add_u32 v{T}, s{S_F}, v{T}
v_mul_u32_u24 v{T}, 896, v{T}
s_lshl_b32 s{S_F}, s{S_W}, 2
v_lshrrev_b32 v{T+1}, 4, v0
v_add_u32 v{T+2}, s{S_F}, v{T+1}
v_xor_b32 v{T+3}, v{T+2}, v0
v_and_b32 v{T+3}, 7, v{T+3}
v_lshl_add_u32 v{VX}, v{T+3}, 4, v{T}
s_and_b32 s{S_XO}, s2, 7
s_lshl_b32 s{S_XO}, s{S_XO}, 2
s_lshr_b32 s{S_XO}, {ROTTAB:#x}, s{S_XO}
s_and_b32 s{S_XO}, s{S_XO}, 7
s_lshl_b32 s{S_F}, s{S_XO}, 6
s_lshl_b32 s{S_XO}, s{S_XO}, 7
v_add_u32 v{T+2}, s{S_F}, v{T+2}
v_lshlrev_b32 v{T+1}, s{S_SH}, v{T+1}
v_xor_b32 v{T+1}, v{T+1}, v0
v_and_b32 v{T+1}, 15, v{T+1}""")
    e(w_source(T + 2, T + 1, G, GS, T))
    e(f"s_mov_b64 s[{S_HI}:{S_HI+1}], vcc")
    if TOUCH:
        e(f"""s_and_b32 s6, s6, 3
s_lshl_b32 s6, s6, 3
s_add_u32 s6, s6, s{S_W}
s_lshl_b32 s6, s6, 1
s_lshl_b32 s7, s7, 3
s_add_u32 s7, s7, s{S_W}
s_lshl_b32 s7, s7, 1
s_add_u32 s7, s7, s{S_E}
v_bfe_u32 v{T+2}, v0, 3, 1
v_bfe_u32 v{T+1}, v0, 2, 1
v_lshl_add_u32 v{T+2}, v{T+2}, 6, v{T+1}
v_add_u32 v{T+2}, s6, v{T+2}
v_and_b32 v{T+1}, 3, v0
v_lshlrev_b32 v{T+1}, 2, v{T+1}
v_lshrrev_b32 v{T+1}, v{T+1}, s{S_MASK}
v_and_b32 v{T+1}, 15, v{T+1}
v_and_b32 v{T}, 1, v0
v_add_u32 v{T}, s7, v{T}
v_mul_u32_u24 v{TX}, 896, v{T}
v_bfe_u32 v{T}, v0, 1, 1
v_lshl_add_u32 v{TX}, v{T}, 7, v{TX}""".replace(f"v_lshrrev_b32 v{T+1}, v{T+1}, s{S_MASK}", f"s_movk_i32 s6, 0xed80\nv_lshrrev_b32 v{T+1}, v{T+1}, s6"))
        e(w_source(T + 2, T + 1, G + 1, TS, T))
    e("s_waitcnt lgkmcnt(0)")
    e.stamp("xs0")
    if 'stdiag' in X:
        e(f"""s_mov_b32 s40, s{P_WS}
s_mov_b32 s41, s{P_WS+1}
s_mov_b32 s42, 0x10000000
s_mov_b32 s43, 0x00020000
s_lshl_b32 s90, s2, 3
s_add_u32 s90, s90, s{S_W}
s_lshl_b32 s90, s90, 10
s_add_u32 s90, s90, {P('DOFF', 100) * 1024 * 1024}
v_lshlrev_b32 v110, 4, v0
buffer_store_dwordx4 v[112:115], v110, s[40:43], s90 offen sc1
s_waitcnt vmcnt(0)
s_add_u32 s90, s90, 0x200000
s_barrier
s_memtime s[92:93]
s_waitcnt lgkmcnt(0)
buffer_store_dwordx4 v[112:115], v110, s[40:43], s90 offen sc1
s_waitcnt vmcnt(0)
s_barrier
s_memtime s[94:95]
s_waitcnt lgkmcnt(0)
s_sub_u32 s94, s94, s92
s_mul_i32 s94, s94, 100""")
    srd(e, SRD_X, P_X, 2048 * 896)
    e(f"""s_cmp_lt_u32 s{S_QU}, 2
s_cselect_b32 s{S_C}, s{P_WK}, s{P_WV}
s_cselect_b32 s{S_D}, s{P_WK+1}, s{P_WV+1}
s_cmp_eq_u32 s{S_ISQ}, 1
s_cselect_b32 s{S_A}, s{P_WQ}, s{P_WG}
s_cselect_b32 s{S_B}, s{P_WQ+1}, s{P_WG+1}
s_cselect_b32 s{S_C}, s{S_C}, s{P_WU}
s_cselect_b32 s{S_D}, s{S_D}, s{P_WU+1}
v_mov_b32 v{T}, s{S_A}
v_mov_b32 v{T+1}, s{S_B}
v_mov_b32 v{T+2}, s{S_C}
v_mov_b32 v{T+3}, s{S_D}""")
    if TOUCH:
        e(f"""v_cndmask_b32 v{TA}, v{T}, v{T+2}, vcc
v_cndmask_b32 v{TA+1}, v{T+1}, v{T+3}, vcc
v_add_co_u32 v{TA}, vcc, v{TA}, v{G+1}
v_cndmask_b32 v{GA}, v{T}, v{T+2}, s[{S_HI}:{S_HI+1}]
v_cndmask_b32 v{GA+1}, v{T+1}, v{T+3}, s[{S_HI}:{S_HI+1}]
v_addc_co_u32 v{TA+1}, vcc, 0, v{TA+1}, vcc""")
        touch(e, 0)()
    else:
        e(f"""v_cndmask_b32 v{GA}, v{T}, v{T+2}, s[{S_HI}:{S_HI+1}]
v_cndmask_b32 v{GA+1}, v{T+1}, v{T+3}, s[{S_HI}:{S_HI+1}]""")
    e(f"v_add_co_u32 v{GA}, vcc, v{GA}, v{G}\nv_mov_b32 v{GS+1}, 0")
    for st in os.environ.get("GPRE", "").split(): gtouch(e, int(st))()
    if 'gonly' in X: e.all_vm(); e.stamp()
    dma_x(e, 0, 0)()
    e(f"v_addc_co_u32 v{GA+1}, vcc, 0, v{GA+1}, vcc")

TOUCH = P("TOUCH", 0)
GT = P("GT", 0)
ROT = P("ROT", 1)
LDX = os.environ.get("LDX", ""); LDW = os.environ.get("LDW", ""); LDT = os.environ.get("LDT", "")
def touch(e, k):
    def f():
        st = (0, 2, 4, 5)[k]
        e.vm(f"global_load_dword v{TD}, {vr(TA,2)}, off", f"t{k}")
        e(f"s_movk_i32 s{S_XO2}, {st * 128}")
        e.vm(f"buffer_load_dword v{TD}, v{TX}, s[{SRD_X}:{SRD_X+3}], s{S_XO2} offen", f"t{k}")
        if k < 3: e(f"v_mad_u64_u32 {vr(TA,2)}, s[{S_E}:{S_E+1}], v{TS}, {4 if k < 2 else 2}, {vr(TA,2)}")
    return f
S_TG, S_TS = 61, 57
def gtouch(e, st):
    def f():
        e(f"s_mul_i32 s{S_XO2}, s{S_TS}, {st}")
        e.vm(f"buffer_load_dword v{TD}, v{TA}, s[{SRD_PC}:{SRD_PC+3}], s{S_XO2} offen {LDT}", "t")
        e(f"s_movk_i32 s{S_XO2}, {st * 128}")
        e.vm(f"buffer_load_dword v{TD}, v{TX}, s[{SRD_X}:{SRD_X+3}], s{S_XO2} offen {LDT}", "t")
    return f
def dma_x(e, sig, i):
    def f():
        e(f"s_add_u32 m0, s{S_WB}, {(sig % 4) * RING + i * 8192}")
        if i == 0: e("s_nop 0"); so = S_XO
        else: e(f"s_add_u32 s{S_XO2}, s{S_XO}, {64*896}"); so = S_XO2
        e.vm(f"buffer_load_dwordx4 v{VX}, s[{SRD_X}:{SRD_X+3}], s{so} offen {LDX} lds", f"d{sig}")
    return f
def dma_w(e, sig, off, i, first=False):
    def f():
        if i == 0 and not first:
            e(f"s_add_u32 s{S_XO}, s{S_XO}, 128\ns_cmp_eq_u32 s{S_XO}, 896\ns_cselect_b32 s{S_XO}, 0, s{S_XO}\ns_cselect_b32 s{S_MUL}, -13, 1")
        e(f"s_add_u32 m0, s{S_WB}, {(sig % 4) * RING + off + i * 8192}")
        if first == 2: e(f"s_add_u32 s{S_XO}, s{S_XO}, 128\ns_cmp_eq_u32 s{S_XO}, 896\ns_cselect_b32 s{S_XO}, 0, s{S_XO}")
        elif first: e("s_nop 0")
        elif i == 0: e(f"v_mad_i64_i32 {vr(GA,2)}, s[{S_E}:{S_E+1}], v{GS}, s{S_MUL}, {vr(GA,2)}")
        else: e(f"v_lshl_add_u64 {vr(GA,2)}, {vr(GS,2)}, 0, {vr(GA,2)}")
        e.vm(f"global_load_lds_dwordx4 {vr(GA,2)}, off {LDW}", f"d{sig}")
    return f
def stage_dmas(e, sig):
    if sig == 0: return [dma_x(e, sig, 0), dma_w(e, sig, 16384, 0, True), dma_x(e, sig, 1), dma_w(e, sig, 16384, 1)]
    if sig < 7: return [dma_w(e, sig, 16384, 0), dma_x(e, sig, 0), dma_w(e, sig, 16384, 1), dma_x(e, sig, 1)]
    l = []
    if sig == 7: l.append(lambda: e(f"v_mov_b32 v{GA}, v{GB}\nv_mov_b32 v{GA+1}, v{GB+1}\nv_mov_b32 v{GS}, {32*3584}"))
    l += [dma_w(e, sig, 0, 0, 2 if sig == 7 else False), dma_w(e, sig, 0, 1)]
    if sig < 10: l += [dma_w(e, sig, 16384, 0), dma_w(e, sig, 16384, 1)]
    return l

def phaseB(e):
    T = TM
    for f in stage_dmas(e, 0)[1:]: f()
    if 'arr' in X:
        order = os.environ.get("ARR", "D1 D2 W0 D3 W1 D4 W2 D5 W3 D6 W4 W5 W6").split()
        for it in order:
            k = int(it[1:])
            if it[0] == 'D':
                for f in stage_dmas(e, k): f()
            elif it[0] == 'T': touch(e, k)()
            elif it[0] == 'G': gtouch(e, k)()
            elif it[0] == 'A': e.all_vm(); e.stamp()
            else: e.wvm(f"d{k}"); e("s_barrier"); e.stamp()
        srd(e, SRD_WS, P_WS, WS_END)
        e.stamp()
        e("s_branch K_fin2")
        global STAMPS_OFF; STAMPS_OFF = True
    e.stamp("xs2")
    e(f"s_mov_b32 s6, {EPO}\ns_load_dword s{S_NON}, s[{P_WS}:{P_WS+1}], s6")
    if TOUCH == 2: touch(e, 1)()
    for f in stage_dmas(e, 1): f()
    if TOUCH == 1: touch(e, 1)()
    e.stamp("xs3")
    e(f"""s_and_b32 s{S_RT}, s{S_W}, 3
s_lshr_b32 s{S_CG}, s{S_W}, 2
s_lshl_b32 s{S_T0}, s{S_CG}, 1
s_add_u32 s{S_T1}, s{S_T0}, 1
s_xor_b32 s{S_A}, s{S_RT}, s{S_CG}
s_mov_b32 s{S_MASK}, 0xffff0000
s_mov_b32 s{S_HI}, 0
s_mov_b32 s{S_HI+1}, -1
v_lshlrev_b32 v{VL16}, 4, v0
v_and_b32 v{T}, 31, v0
v_lshrrev_b32 v{T+1}, 5, v0
v_bfe_u32 v{T+2}, v0, 1, 3
v_xor_b32 v{T+2}, v{T+2}, v{T+1}
v_lshlrev_b32 v{T+2}, 4, v{T+2}
v_lshl_add_u32 v{T+2}, v{T}, 7, v{T+2}
s_lshl_b32 s6, s{S_RT}, 12
s_lshl_b32 s{S_B}, s{S_A}, 5
s_or_b32 s6, s6, s{S_B}
v_xor_b32 v{XA}, s6, v{T+2}""")
    for pos in range(1, 4): e(f"v_xor_b32 v{XA+pos}, {pos<<5}, v{XA}")
    e(f"""v_bfe_u32 v{G+1}, v0, 2, 2
v_lshl_add_u32 v{WB}, v{T+1}, 3, v{G+1}
v_lshlrev_b32 v{WB}, 8, v{WB}
s_lshl_b32 s{S_A}, s{S_A}, 12
v_add_u32 v{WB}, s{S_A}, v{WB}
s_cmp_eq_u32 s{S_ISQ}, 1
s_cselect_b32 s{S_A}, 56, 32
s_cselect_b32 s{S_B}, 5, 7
s_cselect_b32 s{S_C}, 0x88880000, 0
s_mov_b32 s{S_D}, s{S_C}
s_add_u32 s6, s{S_SH}, 4
v_bfe_u32 v{T}, v0, 4, 1
v_and_b32 v{T+1}, 3, v0
v_lshlrev_b32 v{T}, s{S_B}, v{T}
v_lshl_add_u32 v{T}, v{T+1}, 3, v{T}
v_lshlrev_b32 v{T+1}, s6, v{G+1}""")
    for i, st_ in ((0, S_T0), (1, S_T1)):
        e(f"""s_mul_i32 s6, s{st_}, s{S_A}
s_lshl_b32 s7, s{st_}, 3
s_sub_u32 s7, 248, s7
v_add_u32 v{T+2}, s6, v{T}
v_mov_b32 v{T+3}, s7
v_cndmask_b32 v{T+2}, v{T+2}, v{T+3}, s[{S_C}:{S_D}]
v_xor_b32 v{T+2}, v{T+2}, v{T+1}
v_add_u32 v{WA+4*i}, v{T+2}, v{WB}""")
    for i in range(2):
        for pos in range(1, 4): e(f"v_xor_b32 v{WA+4*i+pos}, {pos<<12}, v{WA+4*i}")
    e(f"""v_bfe_u32 v{T}, v0, 4, 1
v_and_b32 v{T+1}, 15, v0
v_cmp_eq_u32 vcc, v{T}, v{T+1}
v_mov_b32 v{T}, 0x3f803f80
s_nop 0
v_cndmask_b32 v{SEL}, 0, v{T}, vcc
v_mov_b32 v{SEL+1}, v{SEL}
v_mov_b32 v{SEL+2}, v{SEL}
v_mov_b32 v{SEL+3}, v{SEL}""")
    w2t_addr = f"""s_lshl_b32 s{S_U}, s2, 2
s_lshr_b32 s6, s{S_W}, 1
s_add_u32 s{S_U}, s{S_U}, s6
s_min_u32 s{S_U}, s{S_U}, 1007
s_mul_hi_u32 s6, s{S_U}, {(2**32 + 143)//144}
s_mul_i32 s{S_A}, s6, 144
s_sub_u32 s{S_A}, s{S_U}, s{S_A}
s_lshl_b32 s{S_B}, s{S_A}, 4
s_sub_u32 s{S_C}, s{S_A}, 112
s_lshr_b32 s{S_D}, s{S_C}, 1
s_mul_i32 s{S_D}, s{S_D}, 28
s_and_b32 s{S_C}, s{S_C}, 1
s_lshl_b32 s{S_C}, s{S_C}, 4
s_add_u32 s{S_C}, s{S_C}, s{S_D}
s_mov_b32 s{S_D}, {448*896}
s_cmp_lt_u32 s{S_A}, 112
s_cselect_b32 s{S_B}, s{S_B}, s{S_C}
s_cselect_b32 s{SRD_T}, s{P_WD}, s{P_WO}
s_cselect_b32 s{SRD_T+1}, s{P_WD+1}, s{P_WO+1}
s_cselect_b32 s{SRD_T+2}, {1792*896}, s{S_D}
s_mov_b32 s{SRD_T+3}, 0x00020000
s_and_b32 s{S_C}, s{S_W}, 1
s_lshl_b32 s{S_C}, s{S_C}, 3
s_add_u32 s{S_B}, s{S_B}, s{S_C}
s_mul_i32 s{S_B}, s{S_B}, 896
s_lshl_b32 s6, s6, 7
s_add_u32 s{S_TO}, s{S_B}, s6
v_lshrrev_b32 v{TP}, 3, v0
v_mul_u32_u24 v{TP}, 896, v{TP}
v_and_b32 v{TP+1}, 7, v0
v_lshl_add_u32 v{VT}, v{TP+1}, 4, v{TP}"""
    late = f"""s_add_u32 s{S_LB}, s{S_LA}, 12
s_add_u32 s6, s{S_QU}, 24
s_cmp_eq_u32 s{S_ISQ}, 1
s_cselect_b32 s{S_LB}, s6, s{S_LB}
v_lshrrev_b32 v{TP}, 4, v0
s_and_b32 s6, s2, 7
s_lshl_b32 s6, s6, 2
s_lshr_b32 s6, {ROTTAB:#x}, s6
s_and_b32 s6, s6, 7
s_lshl_b32 s6, s6, 4
s_add_u32 s6, s6, s{S_W}
s_lshl_b32 s6, s6, 2
v_add_u32 v{TP+1}, s6, v{TP}
v_mul_u32_u24 v{TP+1}, 3584, v{TP+1}
v_lshlrev_b32 v{TP}, 1, v{TP}
v_xor_b32 v{TP}, v{TP}, v0
v_and_b32 v{GB}, 7, v{TP}
v_lshl_add_u32 v{TP+1}, v{GB}, 4, v{TP+1}
s_lshl_b32 s6, s{S_LB}, 7
v_add_u32 v{TP+1}, s6, v{TP+1}
v_and_b32 v{TP}, 8, v{TP}
v_cmp_eq_u32 vcc, 8, v{TP}
v_mov_b32 v{GB}, s{P_WG}
v_mov_b32 v{TP}, s{P_WU}
v_cndmask_b32 v{GB}, v{GB}, v{TP}, vcc
v_mov_b32 v{GB+1}, s{P_WG+1}
v_mov_b32 v{TP}, s{P_WU+1}
v_cndmask_b32 v{GB+1}, v{GB+1}, v{TP}, vcc
v_add_co_u32 v{GB}, vcc, v{GB}, v{TP+1}
v_bfe_u32 v{TP}, v0, 4, 1
v_and_b32 v{TP+1}, 3, v0
v_addc_co_u32 v{GB+1}, vcc, 0, v{GB+1}, vcc
v_lshlrev_b32 v{TP+1}, 3, v{TP+1}
v_lshl_add_u32 v{TP}, v{TP}, 7, v{TP+1}
v_bfe_u32 v{TP+1}, v0, 2, 2
v_lshlrev_b32 v{TP+1}, 5, v{TP+1}
v_xor_b32 v{TP}, v{TP}, v{TP+1}
s_lshl_b32 s6, s{S_T0}, 5
v_xor_b32 v{TP}, s6, v{TP}
v_add_u32 v{WB}, v{TP}, v{WB}
v_xor_b32 v{WB+1}, 32, v{WB}
s_mov_b32 s{SRD_WS}, s{P_WS}
s_mov_b32 s{SRD_WS+1}, s{P_WS+1}
s_mov_b32 s{SRD_WS+2}, {WS_END}
s_mov_b32 s{SRD_WS+3}, 0x00020000"""
    e.stamp("xs4")
    e("s_waitcnt lgkmcnt(0)")
    e(f"s_add_u32 s{S_NON}, s{S_NON}, 1")
    e.stamp("xs5")
    e.wvm("d0")
    e("s_barrier")
    e.stamp("start")

    half = {'x': [0]*4, 'w': [0]*4}
    def reads(gp):
        if gp < 28: sig, sub, pos, reg = gp // 4, 0, gp % 4, 16384
        else:
            g = gp - 28; sig, sub, pos = 7 + g // 8, (g // 4) & 1, g % 4; reg = sub * 16384
        sl = sig % 4; h = sl >> 1; imm = (sl & 1) * RING
        buf = WF + 8 * (gp % 3)
        pre = []
        if 28 <= gp < 32:
            pre = [f"v_xor_b32 v{WA+4*i+pos}, {(pos << 12) | (h << 16)}, v{WB+i}" for i in range(2)]
            half['w'][pos] = h
        elif half['w'][pos] != h:
            pre = [f"v_xor_b32 v{WA+4*i+pos}, 0x10000, v{WA+4*i+pos}" for i in range(2)]
            half['w'][pos] = h
        if gp < 28 and half['x'][pos] != h:
            pre.append(f"v_xor_b32 v{XA+pos}, 0x10000, v{XA+pos}"); half['x'][pos] = h
        out = [(lambda l=l: e(l)) for l in pre]
        if gp < 28: out.append(lambda: e.ds(f"ds_read_b128 {vr(XR+4*gp,4)}, v{XA+pos} offset:{imm}", f"r{gp}"))
        for i in range(2):
            for u in range(2):
                out.append(lambda i=i, u=u: e.ds(f"ds_read_b64_tr_b16 {vr(buf+4*i+2*u,2)}, v{WA+4*i+pos} offset:{imm+reg+u*1024}", f"r{gp}"))
        return out
    def position(gp, side, dmaq, nside, barrier=None):
        p2 = gp >= 28; g = gp - 28 if p2 else gp
        acc = ACCB if p2 else ACCA
        buf = WF + 8 * (gp % 3); xr = XR + 4 * g
        e.wds(f"r{gp}")
        e(mfma(acc, buf, xr, "0" if g == 0 else None))
        if barrier: barrier()
        R = reads(gp + 2) if gp + 2 < 56 else []
        for f in R[:len(R) - 2]: f()
        side.emit((nside + 1) // 2)
        e(mfma(acc + 16, buf + 4, xr, "0" if g == 0 else None))
        for f in R[len(R) - 2:]: f()
        if g % 4 == 0 and 'nosel' not in X:
            e(mfma16(CSA, SEL, buf, "0" if g == 0 else None))
        if dmaq: dmaq.pop(0)()
        side.emit(nside // 2)
        if g % 4 == 0 and 'nosel' not in X:
            e(mfma16(CSA + 4, SEL, buf + 4, "0" if g == 0 else None))
    def stats(gp):
        x = XR + 4 * gp; c = lambda r: "0" if gp == 0 else vr(r, 4)
        return [mfma16(ST, SEL, x, c(ST)),
                f"v_mfma_f32_4x4x4_16b_bf16 {vr(SQA,4)}, {vr(x,2)}, {vr(x,2)}, {c(SQA)}\nv_mfma_f32_4x4x4_16b_bf16 {vr(SQB,4)}, {vr(x+2,2)}, {vr(x+2,2)}, {c(SQB)}"]
    def cs_write(dst):
        return [f"v_lshlrev_b32 v{G+8}, 4, v0", f"s_lshl_b32 s6, s{S_T0}, 9", f"s_lshl_b32 s{S_A}, s{S_RT}, 2",
                f"s_add_u32 s6, s6, s{S_A}", f"s_add_u32 s6, s6, {dst}", f"v_add_u32 v{G+8}, s6, v{G+8}",
                lambda: (e("s_mov_b64 exec, 0xffff"),
                         e.ds(f"ds_write_b32 v{G+8}, v{CSA}", "csw"), e.ds(f"ds_write_b32 v{G+8}, v{CSA+1} offset:256", "csw"),
                         e.ds(f"ds_write_b32 v{G+8}, v{CSA+4} offset:512", "csw"), e.ds(f"ds_write_b32 v{G+8}, v{CSA+5} offset:768", "csw"),
                         e("s_mov_b64 exec, -1"))]
    def cs_read(src):
        l = [f"v_and_b32 v{G+8}, 31, v0", f"v_lshlrev_b32 v{G+8}, 4, v{G+8}", f"s_lshl_b32 s6, s{S_T0}, 9", f"s_add_u32 s6, s6, {src}",
             f"v_add_u32 v{G+8}, s6, v{G+8}",
             lambda: e.ds(f"ds_read_b128 {vr(G,4)}, v{G+8}", "csr"), lambda: e.ds(f"ds_read_b128 {vr(G+4,4)}, v{G+8} offset:512", "csr")]
        m = [lambda: e.wds("csr")]
        for i in range(2):
            b = G + 4 * i
            m += [f"v_add_f32 v{b}, v{b}, v{b+1}", f"v_add_f32 v{b+2}, v{b+2}, v{b+3}"]
        for i in range(2): m += [f"v_add_f32 v{G+4*i}, v{G+4*i}, v{G+4*i+2}"]
        for i in range(2): m += [f"v_cvt_pk_bf16_f32 v{G+4*i+1}, v{G+4*i}, v{G+4*i}"]
        for i in range(2): m += [f"v_and_b32 v{G+4*i+1}, s{S_MASK}, v{G+4*i+1}"]
        for i in range(2): m += [f"v_sub_f32 v{G+4*i+1}, v{G+4*i}, v{G+4*i+1}"]
        for i in range(2): m += [f"v_cvt_pk_bf16_f32 v{G+4*i}, v{G+4*i}, v{G+4*i+1}"]
        for i in range(2): m += [f"v_cndmask_b32 v{ST+2*i}, v{G+4*i}, 0, s[{S_HI}:{S_HI+1}]"]
        return l, m

    for f in reads(0) + reads(1): f()
    side = Side(e); dmaq = list(stage_dmas(e, 2)) + ([touch(e, 2)] if TOUCH else [])
    w2side = Side(e); w2side.add(w2t_addr); w2side.add(late)
    for gp in range(28):
        sig, pos = gp // 4, gp % 4
        bar = None
        if pos == 2:
            def bar(sig=sig):
                e.wvm(f"d{sig+1}"); e("s_barrier")
                assert not dmaq
                dmaq.extend(stage_dmas(e, sig + 3))
                if sig == 0 and TOUCH: dmaq.append(touch(e, 3))
                if sig == 1:
                    dmaq.append(lambda: (e(f"s_add_u32 m0, s{S_WB}, {L_W2T}\ns_nop 0"),
                                         e.vm(f"buffer_load_dwordx4 v{VT}, s[{SRD_T}:{SRD_T+3}], s{S_TO} offen lds", "w2td")))
        if pos % 2 == 0 and 'nostat' not in X: side.add(stats(gp))
        if gp == 26: side.add(cs_write(L_CSA))
        n = -(-len(side.q) // (2 - pos % 2)) if gp < 26 else len(side.q) if gp == 27 else 16
        while len(dmaq) > 4 - ((pos + 2) % 4): dmaq.pop(0)()
        e.stamp(f"xp{gp}")
        w2side.emit(8 if gp < 4 else 4)
        position(gp, side, dmaq, n, bar)
    side.flush()
    e(f"""v_and_b32 v{TP}, 3, v0
v_cmp_eq_u32 vcc, 1, v{TP}
v_cmp_eq_u32 s[{S_A}:{S_B}], 2, v{TP}
v_cmp_eq_u32 s[{S_C}:{S_D}], 3, v{TP}
s_lshl_b32 s6, s{S_RT}, 1
s_add_u32 s6, s6, s{S_CG}
s_lshl_b32 s6, s6, 8
s_add_u32 s6, s6, {L_ST}
v_lshl_add_u32 v{TP+1}, v0, 2, s6""")
    for k in range(4): e(f"v_add_f32 v{SQA+k}, v{SQA+k}, v{SQB+k}")
    e(f"""v_cndmask_b32 v{SQA}, v{SQA}, v{SQA+1}, vcc
v_cndmask_b32 v{SQA}, v{SQA}, v{SQA+2}, s[{S_A}:{S_B}]
v_cndmask_b32 v{SQA}, v{SQA}, v{SQA+3}, s[{S_C}:{S_D}]""")
    e.ds(f"ds_write_b32 v{TP+1}, v{SQA}", "stw")
    e("s_mov_b64 exec, 0xffff")
    e.ds(f"ds_write_b32 v{TP+1}, v{ST} offset:2048", "stw")
    e.ds(f"ds_write_b32 v{TP+1}, v{ST+1} offset:2112", "stw")
    e("s_mov_b64 exec, -1")
    e.stamp("p1")

    KA = -2.0 * math.log2(math.e) * math.sqrt(2.0 / math.pi); KB = KA * 0.044715
    def gelu(acc, so, tb):
        l = []
        for k in range(8): l.append(f"v_mul_f32 v{tb+k}, v{acc+k}, v{acc+k}")
        for k in range(8): l.append(f"v_fma_f32 v{tb+k}, v{tb+k}, v{BC}, v{AC}")
        for k in range(8): l.append(f"v_mul_f32 v{tb+k}, v{tb+k}, v{acc+k}")
        for k in range(8): l += [f"v_exp_f32 v{tb+k}, v{tb+k}", f"v_mul_f32 v{acc+k}, v{acc+k}, v{acc+8+k}"]
        for k in range(8): l.append(f"v_fma_f32 v{tb+k}, v{tb+k}, v{I2}, v{I2}")
        for k in range(8): l.append(f"v_rcp_f32 v{tb+k}, v{tb+k}")
        for k in range(8): l.append(f"v_mul_f32 v{acc+k}, v{acc+k}, v{tb+k}")
        for k in range(4): l.append(f"v_cvt_pk_bf16_f32 v{acc+8+k}, v{acc+2*k}, v{acc+2*k+1}")
        l.append(lambda: e.vm(f"buffer_store_dwordx4 {vr(acc+8,4)}, v{VL16}, {WS}, s{so} offen {SC}", "hs"))
        return l
    def h_off(line, dst):
        return f"""s_lshl_b32 s6, s{S_RB}, 2
s_add_u32 s6, s6, s{S_RT}
s_mul_i32 s6, s6, 144
s_lshl_b32 s{dst}, s{line}, 2
s_add_u32 s6, s6, s{dst}
s_add_u32 s6, s6, s{S_T0}
s_lshl_b32 s{dst}, s6, 10
s_add_u32 s{dst+1}, s{dst}, 1024"""
    def after_exchange(side):
        l, m = cs_read(L_CSA)
        side.add(l)
        side.add([f"v_and_b32 v{G+9}, 31, v0", f"v_lshlrev_b32 v{G+9}, 2, v{G+9}", f"s_lshl_b32 s6, s{S_RT}, 9", f"s_add_u32 s6, s6, {L_ST}",
                  f"v_add_u32 v{G+9}, s6, v{G+9}",
                  lambda: (e.ds(f"ds_read2_b32 {vr(G+12,2)}, v{G+9} offset0:0 offset1:32", "str"),
                           e.ds(f"ds_read2_b32 {vr(G+14,2)}, v{G+9} offset0:64 offset1:96", "str"),
                           e.ds(f"ds_read2st64_b32 {vr(BEXT+2,2)}, v{G+9} offset0:8 offset1:9", "str")),
                  f"v_mov_b32 v{ST+1}, 0", f"v_mov_b32 v{ST+3}, 0", f"v_mov_b32 v{BEXT+1}, 0"])
        side.add(m)
        x = G + 12
        side.add([lambda: e.wds("str")])
        side.add(f"""s_mov_b32 s6, {f2u(1.0/448)}
v_add_f32 v{x}, v{x}, v{x+2}
v_add_f32 v{x+1}, v{x+1}, v{x+3}
v_add_f32 v{x+1}, v{x+1}, v{x}
v_add_f32 v{x}, v{BEXT+2}, v{BEXT+3}
v_mov_b32 v{BEXT+2}, 0
v_mov_b32 v{BEXT+3}, 0
v_mul_f32 v{x}, s6, v{x}
v_mul_f32 v{x+1}, s6, v{x+1}
v_cvt_pk_bf16_f32 v{BEXT}, -v{x}, -v{x}
v_fma_f32 v{x+1}, -v{x}, v{x}, v{x+1}
v_max_f32 v{x+1}, 0, v{x+1}""")
        side.add([mfma(ACCA, ST, BEXT)])
        side.add(f"""v_cvt_pk_bf16_f32 v{x+1}, v{x+1}, v{x+1}
v_and_b32 v{x+1}, s{S_MASK}, v{x+1}
v_add_f32 v{x+1}, {f2u(1e-5)}, v{x+1}""")
        side.add([mfma(ACCA + 16, ST + 2, BEXT)])
        side.add(f"""v_cvt_pk_bf16_f32 v{x+1}, v{x+1}, v{x+1}
v_and_b32 v{x+1}, s{S_MASK}, v{x+1}
v_sqrt_f32 v{x+1}, v{x+1}
s_mov_b32 s6, {f2u(KA)}
v_cvt_pk_bf16_f32 v{x+1}, v{x+1}, v{x+1}
v_and_b32 v{S_}, s{S_MASK}, v{x+1}
v_rcp_f32 v{R_}, v{S_}
v_mul_f32 v{I2}, v{S_}, v{S_}
v_mul_f32 v{AC}, s6, v{R_}
v_mul_f32 v{BC}, v{R_}, v{R_}
v_mul_f32 v{BC}, v{BC}, v{AC}
v_mul_f32 v{BC}, {f2u(0.044715)}, v{BC}""")

    def w2t_out(side):
        side.add(f"""v_lshrrev_b32 v{TP}, 5, v0
v_bfe_u32 v{TP+1}, v0, 2, 2
v_lshl_add_u32 v{TP}, v{TP}, 2, v{TP+1}
v_lshlrev_b32 v{TP}, 7, v{TP}
v_bfe_u32 v{TP+1}, v0, 4, 1
v_lshl_add_u32 v{TP}, v{TP+1}, 5, v{TP}
v_and_b32 v{TP+1}, 3, v0
v_lshl_add_u32 v{TP}, v{TP+1}, 3, v{TP}
s_lshr_b32 s6, s{S_W}, 1
s_lshl_b32 s6, s6, 11
s_and_b32 s{S_A}, s{S_W}, 1
s_lshl_b32 s{S_B}, s{S_A}, 6
s_add_u32 s6, s6, s{S_B}
s_add_u32 s6, s6, {L_W2T}
v_add_u32 v{TP}, s6, v{TP}""")
        side.add([lambda: (e.ds(f"ds_read_b64_tr_b16 {vr(PL,2)}, v{TP}", "w2tr"), e.ds(f"ds_read_b64_tr_b16 {vr(PL+2,2)}, v{TP} offset:1024", "w2tr")),
                  f"s_lshl_b32 s6, s{S_U}, 11", f"s_lshl_b32 s{S_A}, s{S_A}, 10", f"s_add_u32 s6, s6, s{S_A}", f"s_add_u32 s{S_TO}, s6, {W2T}",
                  lambda: (e.wds("w2tr"), e.vm(f"buffer_store_dwordx4 {vr(PL,4)}, v{VL16}, {WS}, s{S_TO} offen {SC}", "w2ts"))])
    GEND = P("GEND", 22)
    GX, GBN, GFL, QRATE = P("GX", 0), P("GBN", 3), P("GFL", 14), P("QRATE", 30)
    def pass2(qfirst):
        side = Side(e); dq = list(dmaq)
        for g in range(28):
            gp = 28 + g
            pre = []; wd = []; wv = []; post = []
            if g == GX:
                wd += ["stw", "csw"]
                def p():
                    dq.extend(stage_dmas(e, 10))
                    after_exchange(side)
                    if not qfirst:
                        side.add(h_off(S_LA, S_C))
                        side.add(gelu(ACCA, S_C, G)); side.add(gelu(ACCA + 16, S_D, G))
                    else: qkv_part1(side)
                post.append(p)
            if g in (6, 14, 22): wv.append(f"d{8 + g // 8}")
            if qfirst and g == GBN: pre.append(side.flush); wd.append("kvw"); post.append(lambda: qkv_part2(side))
            if qfirst and g == GFL:
                pre.append(side.flush); wv.append("qs")
                post.append(lambda: flag_store(e, f"""s_lshl_b32 s6, s{S_RB}, 2
s_add_u32 s6, s6, s{S_QU}
s_lshl_b32 s6, s6, 2
s_add_u32 s6, s6, {F_KV}
v_lshlrev_b32 v{G}, 8, v0
v_add_u32 v{G}, s6, v{G}""", RKV, G))
            if g == P("GW2", 15):
                q0 = side.q; side.q = []; w2t_out(side); side.q += q0
            if g == 24:
                side.flush()
                poll_issue(e, f"""s_and_b32 s6, s2, {RKV-1}
s_lshl_b32 s6, s6, 8
s_add_u32 s6, s6, {F_KV}
v_lshl_add_u32 v{PL}, v0, 2, s6""", PL, PL + 1, "kvp")
            if g == 25:
                side.flush(); side.add(cs_write(L_CSB))
            if g == 26:
                pre.append(side.flush); wd.append("csw")
                def p():
                    l, m = cs_read(L_CSB); side.add(l); side.add(m)
                post.append(p)
            bar = None
            if wd or wv:
                def bar():
                    for f in pre: f()
                    if wd: e.wds(*wd)
                    if wv: e.wvm(*wv)
                    e("s_barrier")
                    for f in post: f()
            if qfirst: n = QRATE if g < GFL else 12
            else: n = -(-len(side.q) // max(1, GEND - g)) if GX < g < GEND else 12
            e.stamp(f"xg{g}")
            position(gp, side, dq, n, bar)
        side.flush()
        e.stamp("xpe2")
        e("s_nop 1")
        e(mfma(ACCB, ST, BEXT)); e(mfma(ACCB + 16, ST + 2, BEXT))
    RQ = 2
    def qkv_part1(side):
        side.add(f"""v_mul_f32 v{RQ}, {f2u(28 ** -0.5 * math.log2(math.e))}, v{R_}
v_and_b32 v{G+8}, 31, v0
v_lshlrev_b32 v{G+8}, 5, v{G+8}
s_lshl_b32 s6, s{S_RT}, 10
s_add_u32 s6, s6, {L_KVB}
v_add_u32 v{G+8}, s6, v{G+8}
s_mov_b32 s{S_D}, 0x00003f80
s_cmp_lt_u32 s{S_QU}, 2
s_cselect_b32 s{S_C}, 0x3f803f80, s{S_D}
s_cselect_b32 s{S_D}, s{S_D}, 0""")
        for i, st_ in ((0, S_T0), (1, S_T1)):
            acc = ACCA + 16 * i; b = G + 4 * i
            for k in range(4): side.add([f"v_mul_f32 v{b+k}, v{acc+12+k}, v{R_}"])
            side.add(f"""s_sub_u32 s6, 3, s{st_}
s_lshl_b32 s{S_A}, s{st_}, 2
s_lshr_b32 s{S_A}, 0x0132, s{S_A}
s_and_b32 s{S_A}, s{S_A}, 3
s_bitcmp1_b32 s{S_QU}, 0
s_cselect_b32 s6, s{S_A}, s6
s_cselect_b32 s{S_A}, s{S_A}, 0
s_lshl_b32 s6, s6, 3
v_cvt_pk_bf16_f32 v{b}, v{b}, v{b+1}
v_cvt_pk_bf16_f32 v{b+1}, v{b+2}, v{b+3}
v_add_u32 v{b+2}, s6, v{G+8}""")
            def wr(b=b):
                l = e.newlabel("nc")
                e(f"s_cmp_eq_u32 s{S_A}, 3\ns_cbranch_scc0 {l}\nv_mov_b32 v{b}, s{S_C}\nv_mov_b32 v{b+1}, s{S_D}")
                e.label(l)
                e(f"s_mov_b64 exec, s[{S_HI}:{S_HI+1}]")
                e.ds(f"ds_write_b64 v{b+2}, {vr(b,2)}", "kvw")
                e("s_mov_b64 exec, -1")
            side.add([wr])
    def qkv_part2(side):
        def kv():
            l = e.newlabel("kvs"); lv = e.newlabel("kvv"); ls = e.newlabel("kvt")
            e(f"""s_cmp_eq_u32 s{S_CG}, 0
s_cbranch_scc0 {l}
s_lshl_b32 s6, s{S_RB}, 2
s_add_u32 s6, s6, s{S_RT}
s_lshl_b32 s6, s6, 12
s_add_u32 s6, s6, {KVF}
s_lshl_b32 s{S_A}, s{S_RT}, 10
s_add_u32 s{S_A}, s{S_A}, {L_KVB}
s_cmp_lt_u32 s{S_QU}, 2
s_cbranch_scc0 {lv}
v_and_b32 v{G}, 31, v0
v_lshrrev_b32 v{G+1}, 5, v0
v_lshlrev_b32 v{G}, 5, v{G}
v_lshl_add_u32 v{G}, v{G+1}, 3, v{G}
v_add_u32 v{G}, s{S_A}, v{G}
ds_read2_b64 {vr(G+4,4)}, v{G} offset0:0 offset1:2
s_lshl_b32 s{S_A}, s{S_QU}, 10
s_add_u32 s6, s6, s{S_A}
v_mov_b32 v{G+2}, v{VL16}
s_branch {ls}""")
            e.label(lv)
            e(f"""v_lshrrev_b32 v{G}, 5, v0
v_bfe_u32 v{G+1}, v0, 4, 1
v_lshlrev_b32 v{G+2}, 10, v{G}
v_lshl_add_u32 v{G+2}, v{G+1}, 9, v{G+2}
v_lshlrev_b32 v{G}, 4, v{G}
v_lshl_add_u32 v{G}, v{G+1}, 2, v{G}
v_bfe_u32 v{G+1}, v0, 2, 2
v_add_u32 v{G}, v{G}, v{G+1}
v_lshlrev_b32 v{G}, 5, v{G}
v_and_b32 v{G+1}, 3, v0
v_lshl_add_u32 v{G}, v{G+1}, 3, v{G}
v_add_u32 v{G}, s{S_A}, v{G}
ds_read_b64_tr_b16 {vr(G+4,2)}, v{G}
ds_read_b64_tr_b16 {vr(G+6,2)}, v{G} offset:256
v_and_b32 v{G+1}, 15, v0
v_lshl_add_u32 v{G+2}, v{G+1}, 4, v{G+2}
s_and_b32 s{S_A}, s{S_QU}, 1
s_lshl_b32 s{S_A}, s{S_A}, 8
s_add_u32 s6, s6, s{S_A}
s_add_u32 s6, s6, 2048""")
            e.label(ls)
            e(f"s_waitcnt lgkmcnt(0)\nbuffer_store_dwordx4 {vr(G+4,4)}, v{G+2}, {WS}, s6 offen {SC}")
            e.label(l)
        side.add([kv])
        side.add(f"""s_lshl_b32 s6, s{S_RB}, 2
s_add_u32 s6, s6, s{S_RT}
s_lshl_b32 s6, s6, 2
s_add_u32 s6, s6, s{S_QU}
s_lshl_b32 s6, s6, 2
s_add_u32 s6, s6, s{S_T0}
s_lshl_b32 s6, s6, 11
s_add_u32 s{S_C}, s6, {QF}""")
        for i in range(2):
            acc = ACCA + 16 * i
            for k in range(16): side.add([f"v_mul_f32 v{acc+k}, v{acc+k}, v{RQ}"])
            for k in range(8): side.add([f"v_cvt_pk_bf16_f32 v{acc+k}, v{acc+2*k}, v{acc+2*k+1}"])
            side.add([f"v_cndmask_b32 v{acc+6}, v{acc+6}, 0, s[{S_HI}:{S_HI+1}]", f"v_cndmask_b32 v{acc+7}, v{acc+7}, 0, s[{S_HI}:{S_HI+1}]",
                      lambda acc=acc, i=i: e.vm(f"buffer_store_dwordx4 {vr(acc,4)}, v{VL16}, {WS}, s{S_C} offen offset:{2048*i} {SC}", "qs"),
                      lambda acc=acc, i=i: e.vm(f"buffer_store_dwordx4 {vr(acc+4,4)}, v{VL16}, {WS}, s{S_C} offen offset:{2048*i+1024} {SC}", "qs")])
    e(f"s_cmp_eq_u32 s{S_ISQ}, 1\ns_cbranch_scc1 B_p2q")
    sn = e.snap(); hs = {k: list(v) for k, v in half.items()}; ns = e.nst
    pass2(False)
    e("s_branch B_join")
    e.label("B_p2q")
    e.nst = ns
    e.restore(sn); half.update({k: list(v) for k, v in hs.items()})
    pass2(True)
    e.label("B_join")
    e.q = {'ds': [], 'vm': ['kvp']}; e.done = {'ds': 0, 'vm': 0}
    e.stamp("join")
    return gelu, h_off

LB0, LB1, VO = 3, 4, 5
Q, O, S0, PP, K, V0, V1 = 36, 44, 64, 96, 104, 112, 120
FA, FB = 128, 192
XRES = 244
S_KH, S_QT, S_KVO, S_WB4, S_FA, S_FB0, S_FB1, S_OO = 50, 51, 54, 55, 56, 57, 59, 60
S_FQ, S_K1 = 62, 63
F0 = P("F0", 10)
FP = P("FP", 6)
HBP = P("HBP", 14)

def kv_dma(e, st):
    l = [lambda: e(f"s_add_u32 m0, s{S_WB4}, {((st + 3) % 4) * RING}\ns_nop 0")]
    for f in range(4):
        l.append(lambda f=f: e.vm(f"buffer_load_dwordx4 v{VL16}, {WS}, s{S_KVO} offen offset:{1024*f} {SC} lds", f"k{st}"))
    l.append(lambda: e(f"s_add_u32 s{S_KVO}, s{S_KVO}, 16384"))
    return l

NB = P("NB", 4)
FBUF = [[FB + 16 * n + 4 * k for k in range(4)] for n in range(3)] + [[60, 124, 248, 252]]
def f_loads(e, q):
    bb = FBUF[q % NB]
    r = q if q < 6 else q - 6
    advA = advB = None
    if q == 5:
        advA = f"s_add_u32 s{S_FA}, s{S_FA}, s{S_FQ}"
        advB = f"s_add_u32 s{S_FB0}, s{S_FB0}, s{S_K1}\ns_add_u32 s{S_FB1}, s{S_FB1}, s{S_K1}"
    else:
        if r & 1: advA = f"s_add_u32 s{S_FA}, s{S_FA}, 4096"
        if (r & 3) == 3: advB = f"s_add_u32 s{S_FB0}, s{S_FB0}, 4096\ns_add_u32 s{S_FB1}, s{S_FB1}, 4096"
    return [lambda: e.vm(f"buffer_load_dwordx4 {vr(bb[0],4)}, v{VL16}, {WS}, s{S_FA} offen offset:{(r&1)*2048} {SC}", f"f{q}"),
            lambda: e.vm(f"buffer_load_dwordx4 {vr(bb[2],4)}, v{VL16}, {WS}, s{S_FB0} offen offset:{(r&3)*1024} {SC}", f"f{q}"),
            lambda: (e.vm(f"buffer_load_dwordx4 {vr(bb[1],4)}, v{VL16}, {WS}, s{S_FA} offen offset:{(r&1)*2048+1024} {SC}", f"f{q}"),
                     e(advA) if advA else None),
            lambda: (e.vm(f"buffer_load_dwordx4 {vr(bb[3],4)}, v{VL16}, {WS}, s{S_FB1} offen offset:{(r&3)*1024} {SC}", f"f{q}"),
                     e(advB) if advB else None)]
def f_mfma(q, k):
    bb = FBUF[q % NB]; r2, d2 = ((0, 0), (0, 1), (1, 1), (1, 0))[k]
    return mfma(FA + 32*r2 + 16*d2, bb[d2], bb[2 + r2], "0" if q == 0 else None)

NOA = P("NOA", 7)
OAREG = [8, 12, 16, 20, 24, 28, 32, 60, 124][:NOA] + [FB + 4 * k for k in range(16)]
S_OA = 61
def oa_load(e, k):
    def f():
        e.vm(f"buffer_load_dwordx4 {vr(OAREG[k],4)}, v{VL16}, {WS}, s{S_OA} offen offset:{(k&3)*1024} {SC}", f"oa{k}")
        if (k & 3) == 3 and k < 15: e(f"s_add_u32 s{S_OA}, s{S_OA}, 4096")
    return f
KVPRE = P('KVPRE', 2)
def attn_setup(e, gelu, h_off):
    e(h_off(S_LB, S_C))
    e(f"""s_mov_b32 s{S_QT}, s{S_RT}
s_mov_b32 s{S_KH}, s{S_CG}
s_lshl_b32 s{S_WB4}, s{S_W}, 12
s_lshl_b32 s6, s{S_KH}, 5
s_add_u32 s6, s6, s{S_QT}
s_lshl_b32 s6, s6, 12
s_add_u32 s{S_KVO}, s6, {KVF}
s_lshl_b32 s6, s{S_RB}, 2
s_add_u32 s6, s6, s{S_QT}
s_lshl_b32 s7, s6, 4
s_add_u32 s7, s7, s{S_J}
s_lshl_b32 s7, s7, 11
s_add_u32 s7, s7, {QF}""")
    g0 = gelu(ACCB, S_C, G); g1 = gelu(ACCB + 16, S_D, G)
    nfirst = P("GFIRST", 0)
    both = g0 + g1
    for it in both[:nfirst]: it() if callable(it) else e(it)
    poll_check(e, PL, PL + 1, "kvp")
    e.wvm("kvp")
    e("s_barrier")
    e.stamp("xkv")
    flag_store(e, f"""s_lshl_b32 s6, s{S_RB}, 5
s_add_u32 s6, s6, s{S_J}
s_lshl_b32 s6, s6, 2
s_add_u32 s6, s6, {F_H + 64}
s_mul_hi_u32 s{S_A}, s2, {(2**32 + 35)//36}
s_mul_i32 s{S_A}, s{S_A}, 28
s_add_u32 s{S_A}, s{S_A}, s2
s_lshl_b32 s{S_A}, s{S_A}, 2
s_add_u32 s{S_A}, s{S_A}, {F_W}
s_sub_u32 s{S_A}, s{S_A}, s6
v_mul_lo_u32 v{PL}, v0, s{S_A}
v_add_u32 v{PL}, s6, v{PL}""", 2, PL)
    side = Side(e)
    side.add(kv_dma(e, 0))
    side.add([lambda: e.vm(f"buffer_load_dwordx4 {vr(Q,4)}, v{VL16}, {WS}, s7 offen {SC}", "q"),
              lambda: e.vm(f"buffer_load_dwordx4 {vr(Q+4,4)}, v{VL16}, {WS}, s7 offen offset:1024 {SC}", "q")])
    side.emit(P("KPRE0", 3))
    for st in range(1, KVPRE): side.add(kv_dma(e, st))
    for n, it in enumerate(both[nfirst:]):
        it() if callable(it) else e(it)
        if n % P('GSP', 8) == P('GSP', 8) - 1: side.emit(1)
    side.flush()
    e(f"""s_lshl_b32 s6, s{S_KH}, 14
v_add_u32 v{LB0}, s6, v{VL16}
v_add_u32 v{LB1}, 0x10000, v{LB0}
s_lshl_b32 s6, s{S_RB}, 2
s_add_u32 s6, s6, s{S_QT}
s_mul_i32 s6, s6, 144
s_lshl_b32 s7, s{S_J}, 1
s_add_u32 s6, s6, s7
s_add_u32 s6, s6, s{S_KH}
s_add_u32 s6, s6, 112
s_lshl_b32 s{S_OO}, s6, 10""")

def rd(e, dst, tile, f, tag):
    sl = (tile // 4 + 3) % 4
    e.ds(f"ds_read_b128 {vr(dst,4)}, v{LB0 if sl < 2 else LB1} offset:{(sl & 1) * RING + (tile % 4) * 4096 + f * 1024}", tag)

def attn_loop(e, withF):
    e.stamp("xge")
    e.wvm("k0", "q"); e.stamp("xk0"); e("s_barrier")
    e.stamp("astart")
    rd(e, K, 0, 0, "a"); rd(e, K + 4, 0, 1, "a"); rd(e, V0, 0, 2, "b")
    e.wds("a")
    e(mfma(S0, K, Q, "0")); e(mfma(S0, K + 4, Q + 4))
    rd(e, K, 1, 0, "b"); rd(e, K + 4, 1, 1, "b")
    if withF:
        e(f"""s_lshr_b32 s6, s{S_J}, 3
s_lshl_b32 s7, s{S_RB}, 1
s_add_u32 s6, s6, s7
s_and_b32 s7, s{S_J}, 7
s_mul_i32 s{S_A}, s{S_W}, 6
s_lshl_b32 s{S_K1}, s{S_W}, 1
s_add_u32 s{S_K1}, s{S_K1}, 44
s_lshl_b32 s{S_K1}, s{S_K1}, 10
s_lshl_b32 s{S_FQ}, s{S_K1}, 1
s_mul_i32 s{S_FB0}, s6, 288
s_add_u32 s{S_FB0}, s{S_FB0}, s{S_A}
s_lshl_b32 s{S_FB0}, s{S_FB0}, 10
s_add_u32 s{S_FB1}, s{S_FB0}, {144*1024}
s_mul_i32 s{S_FA}, s7, 144
s_add_u32 s{S_FA}, s{S_FA}, s{S_A}
s_lshl_b32 s{S_FA}, s{S_FA}, 11
s_add_u32 s{S_FA}, s{S_FA}, {W2T}
s_lshr_b32 s{S_A}, s{S_W}, 1
s_lshl_b32 s{S_A}, s{S_A}, 3
s_mul_i32 s{S_OA}, s7, 144
s_add_u32 s{S_OA}, s{S_OA}, s{S_A}
s_add_u32 s{S_OA}, s{S_OA}, 112
s_lshl_b32 s{S_OA}, s{S_OA}, 11
s_add_u32 s{S_OA}, s{S_OA}, {W2T}""")
    else:
        e("s_nop 9")
    NT = 32
    fq = []
    nq = 0
    for i in range(NT):
        sc = S0 + 16 * (i & 1); sn = S0 + 16 * ((i + 1) & 1)
        v0c = V0 + 4 * (i & 1); v0n = V0 + 4 * ((i + 1) & 1)
        E = lambda r: f"v_exp_f32 v{r}, v{r}"
        C = lambda d, r: f"v_cvt_pk_bf16_f32 v{d}, v{r}, v{r+1}"
        def g(k): return [E(sc + 4*k + q) for q in range(4)] + [C(PP + 2*k, sc + 4*k), C(PP + 2*k + 1, sc + 4*k + 2)]
        g0, g1, g2, g3 = g(0), g(1), g(2), g(3)
        fm = [None, None]; fl = []
        if withF:
            if i == FP - 2:
                assert FP % 4 == 2
                fl = [lambda: poll_issue(e, f"""s_lshl_b32 s6, s{S_RB}, 7
s_add_u32 s6, s6, {F_H + 64}
s_and_b32 s7, s{S_J}, 7
s_lshl_b32 s7, s7, 8
s_add_u32 s7, s7, {F_W - 64}
v_lshl_add_u32 v{G}, v0, 2, s6
v_lshl_add_u32 v{G+1}, v0, 2, s7
v_cmp_lt_u32 vcc, 15, v0
v_mov_b32 v{G+2}, s6
s_nop 0
v_cndmask_b32 v{G}, v{G}, v{G+1}, vcc
v_cmp_lt_u32 vcc, 51, v0
s_nop 1
v_cndmask_b32 v{G}, v{G}, v{G+2}, vcc""", G, G + 1, "hp")]
            if FP <= i < F0:
                if i == FP:
                    for q in range(NB - 1): fq += f_loads(e, q)
                n = -(-len(fq) // (F0 - i))
                fl = ([lambda: None] if i == FP else []) + fq[:n]; fq = fq[n:]
            pb = []
            if i == HBP - 2:
                pb = [lambda: poll_issue(e, f"""s_lshl_b32 s6, s{S_RB}, 7
s_add_u32 s6, s6, {F_H}
v_and_b32 v{G}, 15, v0
v_lshl_add_u32 v{G}, v{G}, 2, s6""", G, G + 1, "hb")]
            if i >= F0:
                q = (i - F0) // 2; h = (i - F0) & 1
                fm = [f_mfma(q, 2*h), f_mfma(q, 2*h + 1)]
                if h == 0 and q + NB - 1 < 14:
                    if q + NB - 1 == 6: assert i > HBP
                    fq = f_loads(e, q + NB - 1)
                fl = fq[:2] + pb; fq = fq[2:]
                nq = q + 1
        def em(x): x() if callable(x) else e(x)
        e.stamp(f"xa{i}")
        for x in g0[:2]: em(x)
        e.all_ds()
        if i > 0: e(mfma(O, V1, PP + 4))
        rd(e, V1, i, 3, "c")
        for x in g0[2:5]: em(x)
        if fm[0]:
            if (i - F0) & 1 == 0: e.wvm(f"f{(i - F0) // 2}")
            e(fm[0])
        for x in g0[5:] + g1[:2]: em(x)
        if i + 1 < NT: e(mfma(sn, K, Q, "0")); rd(e, v0n, i + 1, 2, "c")
        for x in g1[2:4]: em(x)
        if fl: em(fl.pop(0))
        for x in g1[4:] + g2[:2]: em(x)
        if i + 1 < NT: e(mfma(sn, K + 4, Q + 4))
        extra = []
        if i % 4 == 2 and i + 2 < NT:
            st = i // 4
            if withF and i == FP: poll_check(e, G, G + 1, "hp")
            if withF and i == HBP: poll_check(e, G, G + 1, "hb")
            e.wvm(*([f"k{st+1}"] + (["hs"] if i == 2 else []))); e("s_barrier")
            if i == 2:
                flag_store(e, f"""s_lshl_b32 s6, s{S_RB}, 5
s_add_u32 s6, s6, s{S_J}
s_lshl_b32 s6, s6, 2
s_add_u32 s6, s6, {F_H}
v_mov_b32 v{G+2}, s6""", 1, G + 2)
            if st + 3 <= 7: extra = kv_dma(e, st + 3)
        em(g2[2])
        if i + 2 < NT: rd(e, K, i + 2, 0, "c")
        em(g2[3])
        if i + 2 < NT: rd(e, K + 4, i + 2, 1, "c")
        else: e("s_nop 0")
        em(g2[4])
        if fm[1]: e(fm[1])
        for x in g2[5:] + g3[:2]: em(x)
        e(mfma(O, v0c, PP, "0" if i == 0 else None))
        rest = extra + fl
        if i == 29: rest = rest + [comb_addr()]
        if i + KVPRE <= 2: rest = kv_dma(e, i + KVPRE) + rest
        if withF and 31 - NOA <= i < 31: rest = rest + [oa_load(e, i - (31 - NOA))]
        for x in rest[:3]: em(x)
        for x in g3[2:4]: em(x)
        for x in rest[3:]: em(x)
        for x in g3[4:]: em(x)
    e.all_ds()
    e("s_nop 0")
    e(mfma(O, V1, PP + 4))
    return nq, fq

CMB = L_W2T
def comb_addr():
    T = G
    return f"""s_lshl_b32 s6, s{S_W}, 11
s_add_u32 s6, s6, {CMB}
v_add_u32 v{T}, s6, v{VL16}
v_xor_b32 v{T+1}, 8192, v{T}
s_lshl_b32 s6, s{S_W}, 8
s_add_u32 s6, s6, {CMB + 16384}
v_lshl_add_u32 v{T+2}, v0, 2, s6
v_or_b32 v{T+3}, 32, v0
s_lshl_b32 s6, s{S_QT}, 8
s_add_u32 s6, s6, {CMB + 16384}
v_lshl_add_u32 v{T+3}, v{T+3}, 2, s6
s_mov_b32 s{S_C}, {f2u(2.0 ** -64)}
s_mov_b32 s{S_D}, {f2u(2.0 ** 64)}"""

def attn_finish(e):
    T = G
    e.stamp("aend")
    hi = e.newlabel("chi"); jn = e.newlabel("cjn"); fb = e.newlabel("cfb"); bk = e.newlabel("cbk")
    e(f"s_cmp_eq_u32 s{S_KH}, 0\ns_nop 10")
    e.ds(f"ds_write_b32 v{T+2}, v{O+12}")
    e(f"s_cbranch_scc0 {hi}")
    e.ds(f"ds_write_b128 v{T}, {vr(O+8,4)}"); e.ds(f"ds_write_b128 v{T}, {vr(O+12,4)} offset:1024")
    e(f"s_branch {jn}")
    e.label(hi)
    e(f"ds_write_b128 v{T}, {vr(O,4)}\nds_write_b128 v{T}, {vr(O+4,4)} offset:1024")
    e.all_ds()
    for k in range(8): e(f"v_mov_b32 v{O+k}, v{O+8+k}")
    e.label(jn)
    e.all_ds()
    e.stamp("xc0")
    e("s_barrier")
    e.stamp("xc1")
    e.ds(f"ds_read2st64_b32 {vr(PP,2)}, v{T+3} offset0:0 offset1:4", "l")
    e.ds(f"ds_read_b128 {vr(S0,4)}, v{T+1}", "h0"); e.ds(f"ds_read_b128 {vr(S0+4,4)}, v{T+1} offset:1024", "h1")
    e(f"s_mov_b32 s{S_A}, 0\ns_sub_u32 s{S_B}, 0, s{S_KH}")
    e.wds("l")
    e(f"""v_add_f32 v{PP}, v{PP}, v{PP+1}
v_rcp_f32 v{PP+1}, v{PP}
v_cmp_nle_f32 vcc, s{S_C}, v{PP}
v_cmp_nge_f32 s[{S_E}:{S_F}], s{S_D}, v{PP}""")
    e.all_ds()
    for k in range(8): e(f"v_add_f32 v{S0+k}, v{S0+k}, v{O+k}")
    e(f"s_or_b64 s[{S_E}:{S_F}], s[{S_E}:{S_F}], vcc")
    for k in range(8): e(f"v_mul_f32 v{S0+k}, v{S0+k}, v{PP+1}")
    e(f"""v_add_f32 v{PP+2}, |v{S0}|, |v{S0+1}|
v_add_f32 v{PP+3}, |v{S0+2}|, |v{S0+3}|
v_add_f32 v{PP+4}, |v{S0+4}|, |v{S0+5}|
v_add_f32 v{PP+5}, |v{S0+6}|, |v{S0+7}|
v_add_f32 v{PP+2}, v{PP+2}, v{PP+3}
v_add_f32 v{PP+4}, v{PP+4}, v{PP+5}
s_mov_b32 s6, 0x7f7fffff
v_add_f32 v{PP+2}, v{PP+2}, v{PP+4}
v_cmp_nge_f32 vcc, s6, v{PP+2}
s_or_b64 vcc, vcc, s[{S_E}:{S_F}]""")
    if 'forcefb' in X: e("s_mov_b64 vcc, 1")
    e(f"s_cbranch_vccnz {fb}")
    e.label(bk)
    for k in range(4): e(f"v_cvt_pk_bf16_f32 v{K+k}, v{S0+2*k}, v{S0+2*k+1}")
    e(f"""v_cndmask_b32 v{K+2}, v{K+2}, 0, s[{S_A}:{S_B}]
v_cndmask_b32 v{K+3}, v{K+3}, 0, s[{S_A}:{S_B}]""")
    e.vm(f"buffer_store_dwordx4 {vr(K,4)}, v{VL16}, {WS}, s{S_OO} offen {SC}", "os")
    FALLBACKS.append((fb, bk))
    e.stamp("xc2")

FALLBACKS = []
def fallback(e, fb, bk):
    l1 = e.newlabel("fb1"); l2 = e.newlabel("fb2"); l3 = e.newlabel("fb3")
    M = PP + 7
    e.label(fb)
    e(f"s_mov_b32 s6, {KVF}\nv_mov_b32 v{M}, 0xff800000")
    e.label(l1)
    e(f"""buffer_load_dwordx4 {vr(K,4)}, v{VL16}, {WS}, s6 offen {SC}
buffer_load_dwordx4 {vr(K+4,4)}, v{VL16}, {WS}, s6 offen offset:1024 {SC}
s_add_u32 s6, s6, 4096
s_waitcnt vmcnt(0)""")
    e(mfma(S0, K, Q, "0")); e(mfma(S0, K + 4, Q + 4))
    e("s_nop 11")
    for k in range(8): e(f"v_max3_f32 v{M}, v{M}, v{S0+2*k}, v{S0+2*k+1}")
    e(f"""s_cmp_lt_u32 s6, {KVF + 64*4096}
s_cbranch_scc1 {l1}
v_mov_b32 v{PP}, v{M}
s_nop 1
v_permlane32_swap_b32 v{PP}, v{M}
v_max_f32 v{M}, v{M}, v{PP}
v_cvt_pk_bf16_f32 v{PP}, v{M}, v{M}
v_and_b32 v{PP}, s{S_MASK}, v{PP}
v_sub_f32 v{PP+1}, v{M}, v{PP}
v_cvt_pk_bf16_f32 v{PP+2}, v{PP+1}, v{PP+1}
v_and_b32 v{PP+2}, s{S_MASK}, v{PP+2}
v_sub_f32 v{PP+1}, v{PP+1}, v{PP+2}
v_cvt_pk_bf16_f32 v{PP}, -v{PP}, -v{PP+2}
v_cvt_pk_bf16_f32 v{PP+1}, -v{PP+1}, 0
v_cndmask_b32 v{Q+6}, v{Q+6}, v{PP}, s[{S_HI}:{S_HI+1}]
v_cndmask_b32 v{Q+7}, v{Q+7}, v{PP+1}, s[{S_HI}:{S_HI+1}]
s_mov_b32 s6, {KVF}""")
    for k in range(16): e(f"v_mov_b32 v{O+k}, 0")
    e.label(l2)
    for f in range(4): e(f"buffer_load_dwordx4 {vr(K+4*f,4)}, v{VL16}, {WS}, s6 offen offset:{1024*f} {SC}")
    e("s_add_u32 s6, s6, 4096\ns_waitcnt vmcnt(0)")
    e(mfma(S0, K, Q, "0")); e(mfma(S0, K + 4, Q + 4))
    e("s_nop 11")
    for k in range(16): e(f"v_exp_f32 v{S0+k}, v{S0+k}")
    e("s_nop 0")
    for k in range(8): e(f"v_cvt_pk_bf16_f32 v{PP+k}, v{S0+2*k}, v{S0+2*k+1}")
    e("s_nop 1")
    e(mfma(O, K + 8, PP)); e(mfma(O, K + 12, PP + 4))
    e(f"""s_cmp_lt_u32 s6, {KVF + 64*4096}
s_cbranch_scc1 {l2}
s_nop 11
v_mov_b32 v{PP}, v{O+12}
v_mov_b32 v{PP+1}, v{O+12}
s_cmp_eq_u32 s{S_KH}, 0
s_nop 0
v_permlane32_swap_b32 v{PP}, v{PP+1}
v_rcp_f32 v{PP+1}, v{PP+1}
s_cbranch_scc1 {l3}""")
    for k in range(8): e(f"v_mov_b32 v{O+k}, v{O+8+k}")
    e.label(l3)
    e("s_nop 0")
    for k in range(8): e(f"v_mul_f32 v{S0+k}, v{O+k}, v{PP+1}")
    e(f"s_branch {bk}")

def o_flag(e):
    e.stamp("xc3")
    e.wvm("os"); e.stamp("xc4"); e("s_barrier")
    flag_store(e, f"""s_lshl_b32 s6, s{S_RB}, 5
s_add_u32 s6, s6, s{S_J}
s_lshl_b32 s6, s6, 2
s_add_u32 s6, s6, {F_O}
v_mov_b32 v{G}, s6""", 1, G)

def tail(e, nq, fq):
    T = G
    OC, SUM = 64, 232
    OBR = [96 + 4 * k for k in range(7)] + [36]
    assert NOA >= 6
    AD = 248
    OA = lambda k: OAREG[k]
    for f in fq: f()
    while nq < 14:
        if nq + NB - 1 < 14:
            for f in f_loads(e, nq + NB - 1): f()
        e.wvm(f"f{nq}")
        for k in range(4): e(f_mfma(nq, k))
        nq += 1
    e(f"""v_and_b32 v{T}, 31, v0
v_lshrrev_b32 v{T+1}, 5, v0
v_and_b32 v{T+2}, 7, v0
v_xor_b32 v{T+1}, v{T+1}, v{T+2}
v_lshlrev_b32 v{T+1}, 4, v{T+1}
v_lshl_add_u32 v{T+3}, v{T}, 8, v{T+1}
s_lshl_b32 s6, s{S_W}, 14
v_add_u32 v{AD}, s6, v{T+3}""")
    for q in range(1, 4): e(f"v_xor_b32 v{AD+q}, {q*32}, v{AD}")
    dump = [(lambda r2=r2, d2=d2, q=q: e.ds(f"ds_write_b128 v{AD+q}, {vr(FA+32*r2+16*d2+4*q,4)} offset:{r2*8192 + d2*128}"))
            for (r2, d2) in ((0, 0), (0, 1), (1, 1), (1, 0)) for q in range(4)]
    setup = Side(e)
    setup.add(f"""s_lshr_b32 s6, s{S_J}, 3
s_lshl_b32 s7, s{S_RB}, 1
s_add_u32 s6, s6, s7
s_and_b32 s{S_B}, s{S_W}, 1
s_lshl_b32 s{S_C}, s6, 1
s_add_u32 s{S_C}, s{S_C}, s{S_B}
s_mul_i32 s{S_C}, s{S_C}, 144
s_lshr_b32 s{S_A}, s{S_W}, 1
s_lshl_b32 s{S_D}, s{S_A}, 3
s_add_u32 s{S_D}, s{S_D}, 112
s_add_u32 s{S_C}, s{S_C}, s{S_D}
s_lshl_b32 s{S_C}, s{S_C}, 10
s_and_b32 s7, s{S_J}, 7
s_add_u32 s{S_D}, s{S_C}, 4096
s_lshl_b32 s{S_A}, s{S_A}, 14
s_lshl_b32 s{S_B}, s{S_B}, 13
s_add_u32 s{S_G}, s{S_A}, s{S_B}
s_lshl_b32 s6, s6, 6
s_lshl_b32 s{S_B}, s{S_W}, 3
s_add_u32 s6, s6, s{S_B}
v_lshrrev_b32 v{T}, 3, v0
v_add_u32 v{T+1}, s6, v{T}
v_mul_u32_u24 v{T+1}, 896, v{T+1}
v_and_b32 v{T+2}, 7, v0
v_lshl_add_u32 v{T+1}, v{T+2}, 4, v{T+1}
s_lshl_b32 s7, s7, 7
v_add_u32 v{VO}, s7, v{T+1}
v_lshlrev_b32 v{T+2}, 1, v{T+2}
v_xor_b32 v{T+2}, v{T+2}, v{T}
v_lshlrev_b32 v{T+2}, 4, v{T+2}
v_lshl_add_u32 v{T}, v{T}, 8, v{T+2}
s_lshl_b32 s6, s{S_W}, 11
v_add_u32 v{AD+4}, s6, v{T}
v_xor_b32 v{AD+5}, 16, v{AD+4}
v_add_u32 v{AD+6}, 0x10000, v{AD+4}
v_add_u32 v{AD+7}, 0x10000, v{AD+5}""")
    nd1 = P("ND1", 8)
    oaq = [oa_load(e, k) for k in range(NOA, 16)]
    for f in dump[:nd1]:
        if oaq: oaq.pop(0)()
        f(); setup.emit(5)
    setup.flush()
    o_flag_regs = True
    e.stamp("xc3")
    e.wvm("os"); e.stamp("xc4"); e("s_barrier")
    flag_store(e, f"""s_lshl_b32 s6, s{S_RB}, 5
s_add_u32 s6, s6, s{S_J}
s_lshl_b32 s6, s6, 2
s_add_u32 s6, s6, {F_O}
v_mov_b32 v{T}, s6""", 1, T)
    e.vm(f"buffer_load_dwordx4 {vr(XRES,4)}, v{VO}, s[{SRD_X}:{SRD_X+3}], 0 offen", "xr")
    for f in dump[nd1:]:
        if oaq: oaq.pop(0)()
        f()
    for f in oaq: f()
    poll_issue(e, f"""s_lshl_b32 s6, s{S_RB}, 7
s_add_u32 s6, s6, {F_O}
v_and_b32 v{T}, 15, v0
v_lshl_add_u32 v{T}, v{T}, 2, s6""", T, T + 1, "op")
    srd(e, SRD_OUT, P_OUT, 2048 * 896)
    e(f"v_add_u32 v{AD}, s{S_G}, v{T+3}")
    e.wvm("xr")
    for k in range(4): e(f"v_lshlrev_b32 v{SUM+2*k}, 16, v{XRES+k}\nv_and_b32 v{SUM+1+2*k}, s{S_MASK}, v{XRES+k}")
    e.all_ds()
    for q in range(1, 4): e(f"v_xor_b32 v{AD+q}, {q*32}, v{AD}")
    if P("EARLYRED", 1):
        e("s_barrier")
        def reduce_reads():
            for p in range(8):
                b0 = AD + 4 if p < 4 else AD + 6
                e.ds(f"ds_read_b128 {vr(FA+8*p,4)}, v{b0} offset:{(p&3)*16384}", f"p{p}")
                e.ds(f"ds_read_b128 {vr(FA+8*p+4,4)}, v{b0+1} offset:{(p&3)*16384}", f"p{p}")
            for p in range(8):
                e.wds(f"p{p}")
                for k in range(8): e(f"v_add_f32 v{SUM+k}, v{SUM+k}, v{FA+8*p+k}")
        reduce_reads()
    e.stamp("t1")
    poll_check(e, T, T + 1, "op")
    e("s_barrier")
    e.stamp("t2")
    for k in range(8):
        e.vm(f"buffer_load_dwordx4 {vr(OBR[k],4)}, v{VL16}, {WS}, s{S_C if k < 4 else S_D} offen offset:{(k&3)*1024} {SC}", f"ob{k}")
    for k in range(8):
        e.wvm(f"ob{k}")
        for d2 in range(2): e(mfma(OC + 16*d2, OA(2*k + d2), OBR[k], "0" if k == 0 else None))
    e("s_nop 10")
    e.stamp("t3")
    for d2 in range(2):
        for q in range(4): e.ds(f"ds_write_b128 v{AD+q}, {vr(OC+16*d2+4*q,4)} offset:{d2*128}")
    e.all_ds()
    e("s_barrier")
    for p in range(4):
        e.ds(f"ds_read_b128 {vr(FA+8*p,4)}, v{AD+4} offset:{p*16384}", f"s{p}")
        e.ds(f"ds_read_b128 {vr(FA+8*p+4,4)}, v{AD+5} offset:{p*16384}", f"s{p}")
    for p in range(4):
        e.wds(f"s{p}")
        for k in range(8): e(f"v_add_f32 v{SUM+k}, v{SUM+k}, v{FA+8*p+k}")
    for k in range(4): e(f"v_cvt_pk_bf16_f32 v{XRES+k}, v{SUM+2*k}, v{SUM+1+2*k}")
    e.vm(f"buffer_store_dwordx4 {vr(XRES,4)}, v{VO}, s[{SRD_OUT}:{SRD_OUT+3}], 0 offen")

def build():
    e = Em()
    kn = NAME + "_kernel"
    e.a.raw(f".globl {kn}\n.p2align 8\n.type {kn},@function")
    e.label(kn)
    prologue(e)
    gelu, h_off = phaseB(e)
    attn_setup(e, gelu, h_off)
    e(f"s_and_b32 s6, s{S_J}, 7\ns_cmp_eq_u32 s6, 7\ns_cbranch_scc1 C_noF")
    sn = e.snap(); ns = e.nst
    nq, fq = attn_loop(e, True)
    attn_finish(e)
    tail(e, nq, fq)
    nend = e.nst
    e("s_branch K_fin")
    e.label("C_noF")
    e.restore(sn); e.nst = ns
    attn_loop(e, False)
    attn_finish(e)
    o_flag(e)
    e(f"""s_cmp_eq_u32 s{S_RB}, 0
s_cbranch_scc0 C_noF_done
s_cmp_eq_u32 s{S_J}, 7
s_cbranch_scc0 C_noF_done
s_cmp_eq_u32 s{S_W}, 0
s_cbranch_scc0 C_noF_done""")
    for k in range(4):
        e(f"""v_lshrrev_b32 v{G}, 4, v0
v_and_b32 v{G+1}, 15, v0
v_lshlrev_b32 v{G}, 7, v{G}
v_lshl_add_u32 v{G}, v{G+1}, 2, v{G}
v_add_u32 v{G}, {F_H + 512*k}, v{G}""")
        e.vm(f"buffer_load_dword v{G+1}, v{G}, {WS}, 0 offen {SC}", f"ep{k}")
        poll_check(e, G, G + 1, f"ep{k}")
    e(f"v_mov_b32 v{G}, {EPO}\nv_mov_b32 v{G+1}, s{S_NON}\ns_mov_b64 exec, 1\nbuffer_store_dword v{G+1}, v{G}, {WS}, 0 offen {SC}\ns_mov_b64 exec, -1")
    e.label("C_noF_done")
    while e.nst < nend and not STAMPS_OFF: e.stamp()
    e.label("K_fin")
    if os.environ.get("AMPAT"):
        e("""s_waitcnt vmcnt(0)
s_memrealtime s[92:93]
s_waitcnt lgkmcnt(0)
s_sub_u32 s7, s94, s96
s_mul_i32 s7, s7, 10
K_amp:
s_sleep 1
s_memrealtime s[98:99]
s_waitcnt lgkmcnt(0)
s_sub_u32 s6, s98, s92
s_cmp_lt_u32 s6, s7
s_cbranch_scc1 K_amp""")
    if 'stdiag' in X:
        e("""s_memtime s[92:93]
s_waitcnt lgkmcnt(0)
K_sd:
s_sleep 2
s_memtime s[90:91]
s_waitcnt lgkmcnt(0)
s_sub_u32 s6, s90, s92
s_cmp_lt_u32 s6, s94
s_cbranch_scc1 K_sd""")
    if 'fix' in X:
        e("""K_fx:
s_sleep 1
s_memrealtime s[98:99]
s_waitcnt lgkmcnt(0)
s_sub_u32 s6, s98, s96
s_cmp_lt_u32 s6, 10000
s_cbranch_scc1 K_fx""")
    if 'amp' in X:
        e("""s_waitcnt vmcnt(0)
s_memrealtime s[98:99]
s_waitcnt lgkmcnt(0)
s_sub_u32 s7, s98, s96
s_mul_i32 s7, s7, 10
K_fx:
s_sleep 1
s_memrealtime s[98:99]
s_waitcnt lgkmcnt(0)
s_sub_u32 s6, s98, s96
s_cmp_lt_u32 s6, s7
s_cbranch_scc1 K_fx""")
    if STAMPS:
        e.stamp()
        e.label("K_fin2")
        e("s_memrealtime s[98:99]\ns_waitcnt lgkmcnt(0) vmcnt(0)")
        e(f"""s_mov_b32 s40, s{P_WS}
s_mov_b32 s41, s{P_WS+1}
s_mov_b32 s42, 0x10000000
s_mov_b32 s43, 0x00020000
s_lshl_b32 s6, s2, 3
s_add_u32 s6, s6, s{S_W}
s_lshl_b32 s6, s6, 6
s_add_u32 s6, s6, {STAMP_WS}
v_mov_b32 v2, s96
v_mov_b32 v3, s98""")
        for k in range(10): e(f"v_mov_b32 v{4+k}, {'s%d' % (76+2*k) if k < e.nst else 0}")
        e("v_mov_b32 v1, 0\ns_mov_b64 exec, 1")
        for q in range(3): e(f"buffer_store_dwordx4 v[{2+4*q}:{5+4*q}], v1, s[40:43], s6 offen offset:{16*q}")
    e("s_endpgm")
    for fb, bk in FALLBACKS: fallback(e, fb, bk)
    e.label("K_end")
    e("s_endpgm")
    probs = check_hazards(e.a.lines, "k")
    hdr = open("cdna_kernels/" + NAME + ".s.ref").read().split("; Override launch")[0]
    out = hdr + f"; @launch grid=(256,1,1) block=(512,1,1) lds={LDS_BYTES}\n"
    out += '.amdgcn_target "amdgcn-amd-amdhsa--gfx950"\n.text\n' + e.a.text()
    out += f""".section .rodata,"a"
.p2align 6
.amdhsa_kernel {kn}
  .amdhsa_next_free_vgpr 256
  .amdhsa_next_free_sgpr 102
  .amdhsa_accum_offset 256
  .amdhsa_group_segment_fixed_size 0
  .amdhsa_kernarg_size 96
  .amdhsa_user_sgpr_count 2
  .amdhsa_user_sgpr_kernarg_segment_ptr 1
  .amdhsa_system_sgpr_workgroup_id_x 1
  .amdhsa_float_denorm_mode_32 3
.end_amdhsa_kernel
"""
    return out, probs

if __name__ == "__main__":
    out, probs = build()
    for p in probs: print("HAZARD", p, file=sys.stderr)
    open(sys.argv[1] if len(sys.argv) > 1 else "cdna_kernels/" + NAME + ".s", "w").write(out)
```

```python
import sys, os, math, struct
from asmlib import *
X = set(os.environ.get('XFLAGS', '').split(','))
def P(name, default): return int(os.environ.get(name, default))
NAME = "parallel_sum__grouped_kv_mqa__glu_gated_geglu__prompt"
def f2u(x): return struct.unpack("<I", struct.pack("<f", x))[0]

A2F = 0
W2T = 64 * 144 * 1024
QF  = W2T + 7 * 144 * 2048
KVF = QF + 64 * 16 * 2048
FLG = KVF + 64 * 4096
RKV = P("RKV", 16)
F_W  = FLG
F_H  = FLG + 2048
F_O  = FLG + 4096
EPO  = FLG + 6144
F_KV = FLG + 8192
WS_END = F_KV + 256 * RKV
OOB = 0x7ffffff0
P_X, P_WQ, P_WK, P_WV, P_WO, P_BX, P_WG, P_WU, P_WD, P_OUT, P_DBG, P_WS = 8, 10, 12, 14, 16, 18, 20, 22, 24, 26, 28, 30
SRD_X, SRD_WS, SRD_T, SRD_PC = 32, 36, 40, 44
SRD_OUT = SRD_T
S_W, S_RB, S_J = 3, 4, 5
(S_WB, S_MASK, S_XO, S_XO2, S_RT, S_CG, S_MUL, S_T0, S_T1, S_U, S_NON, S_LA, S_LB, S_TO, S_QU) = range(48, 63)
S_HI = 64
S_A, S_B, S_C, S_D, S_E, S_F = 66, 67, 68, 69, 70, 71
S_G, S_H2 = 72, 73
S_CNT = 74
WS = f"s[{SRD_WS}:{SRD_WS+3}]"
SC = "sc1"
STAMPS = bool(os.environ.get("STAMPS"))
STAMP_WS = 200 * 1024 * 1024
SPIN_MAX = 1 << 18
STAMPS_OFF = False

class Em:
    def __init__(s):
        s.a = Asm(); s.q = {'ds': [], 'vm': []}; s.done = {'ds': 0, 'vm': 0}; s.nst = 0; s.uid = 0
    def __call__(s, t): s.a(t)
    def label(s, l): s.a.label(l)
    def ds(s, ins, tag=None): s.a(ins); s.q['ds'].append(tag)
    def vm(s, ins, tag=None): s.a(ins); s.q['vm'].append(tag)
    def _n(s, k, tags, cap):
        idx = -1
        for t in tags:
            ii = [i for i, x in enumerate(s.q[k]) if x == t]
            assert ii, f"tag {t} never issued"
            idx = max(idx, ii[-1])
        if idx < s.done[k]: return None
        n = min(len(s.q[k]) - 1 - idx, cap)
        s.done[k] = len(s.q[k]) - n
        return n
    def wds(s, *tags):
        n = s._n('ds', tags, 15)
        if n is not None: s.a(f"s_waitcnt lgkmcnt({n})")
    def wvm(s, *tags):
        n = s._n('vm', tags, 63)
        if n is not None: s.a(f"s_waitcnt vmcnt({n})")
    def wboth(s, *tags):
        n = s._n('vm', tags, 63)
        s.a("s_waitcnt lgkmcnt(0)" if n is None else f"s_waitcnt vmcnt({n}) lgkmcnt(0)"); s.done['ds'] = len(s.q['ds'])
    def all_ds(s): s.a("s_waitcnt lgkmcnt(0)"); s.done['ds'] = len(s.q['ds'])
    def all_vm(s): s.a("s_waitcnt vmcnt(0)"); s.done['vm'] = len(s.q['vm'])
    def snap(s): return ({k: list(v) for k, v in s.q.items()}, dict(s.done))
    def restore(s, sn): s.q = {k: list(v) for k, v in sn[0].items()}; s.done = dict(sn[1])
    def stamp(s, name=None):
        if name is not None and name == os.environ.get("AMPAT"):
            s.a("s_memrealtime s[94:95]"); s.all_ds()
        sel = os.environ.get("STSEL")
        if sel is not None and name is not None and name not in sel.split(","): return
        if sel is None and name is not None and name.startswith("x"): return
        if STAMPS and not STAMPS_OFF:
            assert s.nst < 10
            s.a(f"{'s_memrealtime' if os.environ.get('RT') else 's_memtime'} s[{76+2*s.nst}:{77+2*s.nst}]"); s.nst += 1
            s.all_ds()
    def newlabel(s, p): s.uid += 1; return f"{p}_{s.uid}"

def srd(e, d, p, nbytes):
    e(f"s_mov_b32 s{d}, s{p}\ns_mov_b32 s{d+1}, s{p+1}\ns_mov_b32 s{d+2}, {nbytes}\ns_mov_b32 s{d+3}, 0x00020000")
def mfma(d, A, B, C=None):
    return f"v_mfma_f32_32x32x16_bf16 {vr(d,16)}, {vr(A,4)}, {vr(B,4)}, {vr(d,16) if C is None else C}"
def mfma16(d, A, B, C=None):
    return f"v_mfma_f32_16x16x32_bf16 {vr(d,4)}, {vr(A,4)}, {vr(B,4)}, {vr(d,4) if C is None else C}"

class Side:
    def __init__(s, e): s.e = e; s.q = []
    def add(s, items):
        if isinstance(items, str):
            raw = [l.strip() for l in items.strip().split("\n") if l.strip()]
            items = []
            for l in raw:
                if l.startswith("s_cselect"): items[-1] += "\n" + l
                else: items.append(l)
        s.q += list(items)
    def emit(s, n):
        while n > 0 and s.q:
            it = s.q.pop(0)
            if callable(it): it()
            else: s.e(it)
            n -= 1
    def flush(s): s.emit(1 << 30)

def flag_store(e, addr_lines, nlanes, vt):
    l = e.newlabel("fl")
    e(f"s_cmp_eq_u32 s{S_W}, 0\ns_cbranch_scc0 {l}")
    e(addr_lines)
    e(f"v_mov_b32 v{vt+1}, s{S_NON}\ns_mov_b64 exec, {(1 << nlanes) - 1}\nbuffer_store_dword v{vt+1}, v{vt}, {WS}, 0 offen {SC}\ns_mov_b64 exec, -1")
    e.label(l)

def poll_issue(e, addr_lines, vaddr, vdat, tag):
    e(addr_lines)
    e(f"s_cmp_eq_u32 s{S_W}, 0\ns_cselect_b32 s6, 0, {OOB}\nv_or_b32 v{vaddr}, s6, v{vaddr}")
    e.vm(f"buffer_load_dword v{vdat}, v{vaddr}, {WS}, 0 offen {SC}", tag)

def poll_check(e, vaddr, vdat, tag):
    ok = e.newlabel("pok"); sp = e.newlabel("psp")
    e(f"s_cmp_eq_u32 s{S_W}, 0\ns_cbranch_scc0 {ok}")
    dn = dict(e.done); e.wvm(tag); e.done = dn
    e(f"v_cmp_ne_u32 vcc, s{S_NON}, v{vdat}\ns_cbranch_vccz {ok}\ns_mov_b32 s{S_CNT}, {SPIN_MAX}")
    e.label(sp)
    e(f"""s_sleep {P('SLEEP', 4)}
buffer_load_dword v{vdat}, v{vaddr}, {WS}, 0 offen {SC}
s_sub_u32 s{S_CNT}, s{S_CNT}, 1
s_waitcnt vmcnt(0)
v_cmp_ne_u32 vcc, s{S_NON}, v{vdat}
s_cmp_eq_u32 s{S_CNT}, 0
s_cbranch_scc1 {ok}
s_cbranch_vccnz {sp}""")
    e.label(ok)

RING = 32768
L_W2T = 131072
L_CSA = L_W2T + 8192
L_CSB = L_CSA + 2048
L_ST  = L_CSB + 2048
L_KVB = L_ST + 4096
L_FLG = L_KVB + 4096
LDS_BYTES = L_FLG + 256

VL16, VT, VX, GA, GS = 1, 2, 3, 4, 6
XA, WA = 8, 12
ST, SEL, CSA, WF, TM = 20, 24, 28, 36, 60
ACCA, ACCB, XR, G = 64, 96, 128, 240
SQA, SQB, TP = 60, 240, 248
WB, GB, PL = 250, 102, 252
R_, S_, AC, BC, I2 = 8, 9, 10, 11, 3
BEXT = 60


TA, TS, TX, TD = 96, 98, 99, 100
S_ISQ, S_SH = 63, 75
def w_source(row, c, dst, gs, t0):
    return f"""v_cmp_le_u32 vcc, s{S_A}, v{c}
v_mul_lo_u32 v{dst}, v{row}, s{S_B}
v_lshl_add_u32 v{dst}, v{c}, 4, v{dst}
v_add_u32 v{dst}, s{S_C}, v{dst}
v_subrev_u32 v{c}, s{S_A}, v{c}
v_lshlrev_b32 v{c}, s{S_G}, v{c}
v_mul_lo_u32 v{t0}, v{row}, s{S_D}
v_add3_u32 v{t0}, v{t0}, v{c}, s{S_H2}
v_cndmask_b32 v{dst}, v{dst}, v{t0}, vcc
v_mov_b32 v{gs}, s{S_B}
v_mov_b32 v{t0}, s{S_D}
v_cndmask_b32 v{gs}, v{gs}, v{t0}, vcc
v_lshlrev_b32 v{gs}, 5, v{gs}"""

ROTS = {0: [0]*8, 1: [0, 3, 2, 5, 4, 0, 6, 2], 2: [0, 3, 3, 0, 0, 3, 3, 0], 3: [0, 1, 2, 3, 4, 5, 6, 0], 4: [0, 4, 1, 5, 2, 6, 3, 0]}
ROTTAB = sum(v << (4 * i) for i, v in enumerate(ROTS[P("ROT", 1)]))
S_ROT = 47
RPAR, RBIT = P("RPAR", 0), P("RBIT", 0)
RPARCODE = "" if not RPAR else f"""
s_lshr_b32 s{S_F}, s2, 3
s_lshr_b32 s{S_T0}, s2, 6
s_xor_b32 s{S_F}, s{S_F}, s{S_T0}
s_and_b32 s{S_F}, s{S_F}, {RBIT or 1}
s_mul_i32 s{S_F}, s{S_F}, {RPAR}
s_add_u32 s{S_XO}, s{S_XO}, s{S_F}
s_cmp_ge_u32 s{S_XO}, 7
s_cselect_b32 s{S_F}, 7, 0
s_sub_u32 s{S_XO}, s{S_XO}, s{S_F}"""
def prologue(e):
    e(f"s_cmp_ge_u32 s2, 256\ns_cbranch_scc1 K_end")
    if STAMPS or 'fix' in X or 'amp' in X or os.environ.get("AMPAT"): e("s_memrealtime s[96:97]")
    e.stamp()
    e("s_load_dwordx16 s[8:23], s[0:1], 0\ns_load_dwordx8 s[24:31], s[0:1], 64")
    e(f"s_getpc_b64 s[{SRD_PC}:{SRD_PC+1}]")
    e.label("K_pc")
    e(f"""s_mov_b32 s{SRD_PC+2}, K_end-K_pc
s_mov_b32 s{SRD_PC+3}, 0x00020000
v_lshlrev_b32 v1, 7, v0""")
    e.vm(f"buffer_load_dword v{TD}, v1, s[{SRD_PC}:{SRD_PC+3}], 0 offen")
    T = TM
    e(f"""v_lshrrev_b32 v1, 6, v0
v_and_b32 v0, 63, v0
v_readfirstlane_b32 s{S_W}, v1""")
    if GT:
        e(f"""s_lshl_b32 s{S_TG}, s2, 3
s_add_u32 s{S_TG}, s{S_TG}, s{S_W}
s_min_u32 s6, s{S_TG}, 1393
s_cmp_ge_u32 s6, 448
s_cselect_b32 s7, 56, 48
s_cselect_b32 s{S_A}, 448, 0
s_mov_b32 s{S_D}, {448*3584}
s_cmp_ge_u32 s6, 896
s_cselect_b32 s7, 8, s7
s_cselect_b32 s{S_A}, 896, s{S_A}
s_cselect_b32 s{S_B}, 6, 11
s_cselect_b32 s{S_C}, 7, 28
s_cselect_b32 s{S_D}, {448*896}, s{S_D}
s_cmp_ge_u32 s6, 1344
s_cselect_b32 s7, 16, s7
s_cselect_b32 s{S_A}, 1344, s{S_A}
s_cselect_b32 s{S_B}, 7, s{S_B}
s_cselect_b32 s{S_C}, 8, s{S_C}
s_cselect_b32 s{S_D}, {448*56}, s{S_D}
s_cmp_ge_u32 s6, 1369
s_cselect_b32 s7, 24, s7
s_cselect_b32 s{S_A}, 1369, s{S_A}
s_load_dwordx2 s[{SRD_T}:{SRD_T+1}], s[0:1], s7
s_mov_b32 s{SRD_T+2}, s{S_D}
s_mov_b32 s{SRD_T+3}, 0x00020000
s_sub_u32 s6, s6, s{S_A}
s_mul_i32 s6, s6, s{S_C}
v_min_u32 v{TA}, s{S_B}, v0
v_add_u32 v{TA}, s6, v{TA}
v_lshlrev_b32 v{TA}, 7, v{TA}
s_mul_i32 s6, s{S_TG}, 896
v_min_u32 v{TX}, 6, v0
v_lshl_add_u32 v{TX}, v{TX}, 7, s6""")
    e(f"""
s_bfe_u32 s{S_RB}, s2, 0x20001
s_lshl_b32 s{S_RB}, s{S_RB}, 2
s_lshr_b32 s6, s2, 6
s_add_u32 s{S_RB}, s{S_RB}, s6
s_and_b32 s{S_J}, s2, 1
s_lshl_b32 s{S_J}, s{S_J}, 3
s_bfe_u32 s7, s2, 0x30003
s_add_u32 s{S_J}, s{S_J}, s7
s_lshr_b32 s{S_QU}, s{S_J}, 2
s_sub_u32 s{S_LA}, s{S_J}, s{S_QU}
s_lshl_b32 s{S_WB}, s{S_W}, 10
s_lshl_b32 s{S_C}, s{S_LA}, 7
s_mul_i32 s{S_E}, s{S_QU}, 224
s_and_b32 s{S_F}, s{S_QU}, 1
s_sub_u32 s{S_G}, 4, s{S_F}
s_lshl_b32 s{S_F}, s{S_F}, 5
s_movk_i32 s{S_D}, 3584
s_and_b32 s{S_ISQ}, s{S_J}, 3
s_cmp_eq_u32 s{S_ISQ}, 3
s_cselect_b32 s{S_ISQ}, 1, 0
s_cselect_b32 s{S_A}, 14, 8
s_cselect_b32 s{S_B}, 896, s{S_D}
s_cselect_b32 s{S_D}, 56, s{S_D}
s_cselect_b32 s{S_H2}, s{S_F}, s{S_C}
s_cselect_b32 s{S_C}, s{S_E}, s{S_C}
s_cselect_b32 s{S_G}, s{S_G}, 4
s_add_u32 s{S_SH}, s{S_ISQ}, 1
s_lshl_b32 s{S_E}, s{S_RB}, 7
s_lshl_b32 s{S_F}, s{S_W}, 3
s_add_u32 s{S_F}, s{S_F}, s{S_E}
v_lshrrev_b32 v{T}, 3, v0
v_add_u32 v{T}, s{S_F}, v{T}
v_mul_u32_u24 v{T}, 896, v{T}
s_lshl_b32 s{S_F}, s{S_W}, 2
v_lshrrev_b32 v{T+1}, 4, v0
v_add_u32 v{T+2}, s{S_F}, v{T+1}
v_xor_b32 v{T+3}, v{T+2}, v0
v_and_b32 v{T+3}, 7, v{T+3}
v_lshl_add_u32 v{VX}, v{T+3}, 4, v{T}
s_and_b32 s{S_XO}, s2, 7
s_lshl_b32 s{S_XO}, s{S_XO}, 2
s_lshr_b32 s{S_XO}, {ROTTAB:#x}, s{S_XO}
s_and_b32 s{S_XO}, s{S_XO}, 7{RPARCODE}
s_mov_b32 s{S_ROT}, s{S_XO}
s_lshl_b32 s{S_F}, s{S_XO}, 6
s_lshl_b32 s{S_XO}, s{S_XO}, 7
v_add_u32 v{T+2}, s{S_F}, v{T+2}
v_lshlrev_b32 v{T+1}, s{S_SH}, v{T+1}
v_xor_b32 v{T+1}, v{T+1}, v0
v_and_b32 v{T+1}, 15, v{T+1}""")
    e(w_source(T + 2, T + 1, G, GS, T))
    e(f"s_mov_b64 s[{S_HI}:{S_HI+1}], vcc")
    if TOUCH:
        e(f"""s_and_b32 s6, s6, 3
s_lshl_b32 s6, s6, 3
s_add_u32 s6, s6, s{S_W}
s_lshl_b32 s6, s6, 1
s_lshl_b32 s7, s7, 3
s_add_u32 s7, s7, s{S_W}
s_lshl_b32 s7, s7, 1
s_add_u32 s7, s7, s{S_E}
v_bfe_u32 v{T+2}, v0, 3, 1
v_bfe_u32 v{T+1}, v0, 2, 1
v_lshl_add_u32 v{T+2}, v{T+2}, 6, v{T+1}
v_add_u32 v{T+2}, s6, v{T+2}
v_and_b32 v{T+1}, 3, v0
v_lshlrev_b32 v{T+1}, 2, v{T+1}
v_lshrrev_b32 v{T+1}, v{T+1}, s{S_MASK}
v_and_b32 v{T+1}, 15, v{T+1}
v_and_b32 v{T}, 1, v0
v_add_u32 v{T}, s7, v{T}
v_mul_u32_u24 v{TX}, 896, v{T}
v_bfe_u32 v{T}, v0, 1, 1
v_lshl_add_u32 v{TX}, v{T}, 7, v{TX}""".replace(f"v_lshrrev_b32 v{T+1}, v{T+1}, s{S_MASK}", f"s_movk_i32 s6, 0xed80\nv_lshrrev_b32 v{T+1}, v{T+1}, s6"))
        e(w_source(T + 2, T + 1, G + 1, TS, T))
    e("s_waitcnt lgkmcnt(0)")
    e.stamp("xs0")
    if 'stdiag' in X:
        e(f"""s_mov_b32 s40, s{P_WS}
s_mov_b32 s41, s{P_WS+1}
s_mov_b32 s42, 0x10000000
s_mov_b32 s43, 0x00020000
s_lshl_b32 s90, s2, 3
s_add_u32 s90, s90, s{S_W}
s_lshl_b32 s90, s90, 10
s_add_u32 s90, s90, {P('DOFF', 100) * 1024 * 1024}
v_lshlrev_b32 v110, 4, v0
buffer_store_dwordx4 v[112:115], v110, s[40:43], s90 offen sc1
s_waitcnt vmcnt(0)
s_add_u32 s90, s90, 0x200000
s_barrier
s_memtime s[92:93]
s_waitcnt lgkmcnt(0)
buffer_store_dwordx4 v[112:115], v110, s[40:43], s90 offen sc1
s_waitcnt vmcnt(0)
s_barrier
s_memtime s[94:95]
s_waitcnt lgkmcnt(0)
s_sub_u32 s94, s94, s92
s_mul_i32 s94, s94, 100""")
    srd(e, SRD_X, P_X, 2048 * 896)
    e(f"""s_cmp_lt_u32 s{S_QU}, 2
s_cselect_b32 s{S_C}, s{P_WK}, s{P_WV}
s_cselect_b32 s{S_D}, s{P_WK+1}, s{P_WV+1}
s_cmp_eq_u32 s{S_ISQ}, 1
s_cselect_b32 s{S_A}, s{P_WQ}, s{P_WG}
s_cselect_b32 s{S_B}, s{P_WQ+1}, s{P_WG+1}
s_cselect_b32 s{S_C}, s{S_C}, s{P_WU}
s_cselect_b32 s{S_D}, s{S_D}, s{P_WU+1}
v_mov_b32 v{T}, s{S_A}
v_mov_b32 v{T+1}, s{S_B}
v_mov_b32 v{T+2}, s{S_C}
v_mov_b32 v{T+3}, s{S_D}""")
    if TOUCH:
        e(f"""v_cndmask_b32 v{TA}, v{T}, v{T+2}, vcc
v_cndmask_b32 v{TA+1}, v{T+1}, v{T+3}, vcc
v_add_co_u32 v{TA}, vcc, v{TA}, v{G+1}
v_cndmask_b32 v{GA}, v{T}, v{T+2}, s[{S_HI}:{S_HI+1}]
v_cndmask_b32 v{GA+1}, v{T+1}, v{T+3}, s[{S_HI}:{S_HI+1}]
v_addc_co_u32 v{TA+1}, vcc, 0, v{TA+1}, vcc""")
        touch(e, 0)()
    else:
        e(f"""v_cndmask_b32 v{GA}, v{T}, v{T+2}, s[{S_HI}:{S_HI+1}]
v_cndmask_b32 v{GA+1}, v{T+1}, v{T+3}, s[{S_HI}:{S_HI+1}]""")
    e(f"v_add_co_u32 v{GA}, vcc, v{GA}, v{G}\nv_mov_b32 v{GS+1}, 0")
    if GT:
        if GT & 1: e.vm(f"buffer_load_dword v{TD}, v{TX}, s[{SRD_X}:{SRD_X+3}], 0 offen", "t")
        if GT & 2: e.vm(f"buffer_load_dword v{TD}, v{TA}, s[{SRD_T}:{SRD_T+3}], 0 offen", "t")
    if 'gonly' in X: e.all_vm(); e.stamp()
    dma_x(e, 0, 0)()
    e(f"v_addc_co_u32 v{GA+1}, vcc, 0, v{GA+1}, vcc")

TOUCH = P("TOUCH", 0)
GT = P("GT", 0)
ROT = P("ROT", 1)
LDX = os.environ.get("LDX", ""); LDW = os.environ.get("LDW", ""); LDT = os.environ.get("LDT", "")
def touch(e, k):
    def f():
        st = (0, 2, 4, 5)[k]
        e.vm(f"global_load_dword v{TD}, {vr(TA,2)}, off", f"t{k}")
        e(f"s_movk_i32 s{S_XO2}, {st * 128}")
        e.vm(f"buffer_load_dword v{TD}, v{TX}, s[{SRD_X}:{SRD_X+3}], s{S_XO2} offen", f"t{k}")
        if k < 3: e(f"v_mad_u64_u32 {vr(TA,2)}, s[{S_E}:{S_E+1}], v{TS}, {4 if k < 2 else 2}, {vr(TA,2)}")
    return f
S_TG, S_TS = 61, 57
def gtouch(e, st):
    def f():
        e(f"s_mul_i32 s{S_XO2}, s{S_TS}, {st}")
        e.vm(f"buffer_load_dword v{TD}, v{TA}, s[{SRD_PC}:{SRD_PC+3}], s{S_XO2} offen {LDT}", "t")
        e(f"s_movk_i32 s{S_XO2}, {st * 128}")
        e.vm(f"buffer_load_dword v{TD}, v{TX}, s[{SRD_X}:{SRD_X+3}], s{S_XO2} offen {LDT}", "t")
    return f
def dma_x(e, sig, i):
    def f():
        e(f"s_add_u32 m0, s{S_WB}, {(sig % 4) * RING + i * 8192}")
        if i == 0: e("s_nop 0"); so = S_XO
        else: e(f"s_add_u32 s{S_XO2}, s{S_XO}, {64*896}"); so = S_XO2
        e.vm(f"buffer_load_dwordx4 v{VX}, s[{SRD_X}:{SRD_X+3}], s{so} offen {LDX} lds", f"d{sig}")
    return f
def dma_w(e, sig, off, i, first=False):
    def f():
        if i == 0 and not first:
            e(f"s_add_u32 s{S_XO}, s{S_XO}, 128\ns_cmp_eq_u32 s{S_XO}, 896\ns_cselect_b32 s{S_XO}, 0, s{S_XO}\ns_cselect_b32 s{S_MUL}, -13, 1")
        e(f"s_add_u32 m0, s{S_WB}, {(sig % 4) * RING + off + i * 8192}")
        if first == 2: e(f"s_add_u32 s{S_XO}, s{S_XO}, 128\ns_cmp_eq_u32 s{S_XO}, 896\ns_cselect_b32 s{S_XO}, 0, s{S_XO}")
        elif first: e("s_nop 0")
        elif i == 0: e(f"v_mad_i64_i32 {vr(GA,2)}, s[{S_E}:{S_E+1}], v{GS}, s{S_MUL}, {vr(GA,2)}")
        else: e(f"v_lshl_add_u64 {vr(GA,2)}, {vr(GS,2)}, 0, {vr(GA,2)}")
        e.vm(f"global_load_lds_dwordx4 {vr(GA,2)}, off {LDW}", f"d{sig}")
    return f
def stage_dmas(e, sig):
    if sig == 0: return [dma_x(e, sig, 0), dma_w(e, sig, 16384, 0, True), dma_x(e, sig, 1), dma_w(e, sig, 16384, 1)]
    if sig < 7: return [dma_w(e, sig, 16384, 0), dma_x(e, sig, 0), dma_w(e, sig, 16384, 1), dma_x(e, sig, 1)]
    l = []
    if sig == 7: l.append(lambda: e(f"v_mov_b32 v{GA}, v{GB}\nv_mov_b32 v{GA+1}, v{GB+1}\nv_mov_b32 v{GS}, {32*3584}"))
    l += [dma_w(e, sig, 0, 0, 2 if sig == 7 else False), dma_w(e, sig, 0, 1)]
    if sig < 10: l += [dma_w(e, sig, 16384, 0), dma_w(e, sig, 16384, 1)]
    return l

def phaseB(e):
    T = TM
    for f in stage_dmas(e, 0)[1:]: f()
    if 'arr' in X:
        order = os.environ.get("ARR", "D1 D2 W0 D3 W1 D4 W2 D5 W3 D6 W4 W5 W6").split()
        for it in order:
            k = int(it[1:])
            if it[0] == 'D':
                for f in stage_dmas(e, k): f()
            elif it[0] == 'T': touch(e, k)()
            elif it[0] == 'G': gtouch(e, k)()
            elif it[0] == 'A': e.all_vm(); e.stamp()
            else: e.wvm(f"d{k}"); e("s_barrier"); e.stamp()
        srd(e, SRD_WS, P_WS, WS_END)
        e.stamp()
        e("s_branch K_fin2")
        global STAMPS_OFF; STAMPS_OFF = True
    e.stamp("xs2")
    e(f"s_mov_b32 s6, {EPO}\ns_load_dword s{S_NON}, s[{P_WS}:{P_WS+1}], s6")
    if TOUCH == 2: touch(e, 1)()
    for f in stage_dmas(e, 1): f()
    if TOUCH == 1: touch(e, 1)()
    e.stamp("xs3")
    e(f"""s_and_b32 s{S_RT}, s{S_W}, 3
s_lshr_b32 s{S_CG}, s{S_W}, 2
s_lshl_b32 s{S_T0}, s{S_CG}, 1
s_add_u32 s{S_T1}, s{S_T0}, 1
s_xor_b32 s{S_A}, s{S_RT}, s{S_CG}
s_mov_b32 s{S_MASK}, 0xffff0000
s_mov_b32 s{S_HI}, 0
s_mov_b32 s{S_HI+1}, -1
v_lshlrev_b32 v{VL16}, 4, v0
v_and_b32 v{T}, 31, v0
v_lshrrev_b32 v{T+1}, 5, v0
v_bfe_u32 v{T+2}, v0, 1, 3
v_xor_b32 v{T+2}, v{T+2}, v{T+1}
v_lshlrev_b32 v{T+2}, 4, v{T+2}
v_lshl_add_u32 v{T+2}, v{T}, 7, v{T+2}
s_lshl_b32 s6, s{S_RT}, 12
s_lshl_b32 s{S_B}, s{S_A}, 5
s_or_b32 s6, s6, s{S_B}
v_xor_b32 v{XA}, s6, v{T+2}""")
    for pos in range(1, 4): e(f"v_xor_b32 v{XA+pos}, {pos<<5}, v{XA}")
    e(f"""v_bfe_u32 v{G+1}, v0, 2, 2
v_lshl_add_u32 v{WB}, v{T+1}, 3, v{G+1}
v_lshlrev_b32 v{WB}, 8, v{WB}
s_lshl_b32 s{S_A}, s{S_A}, 12
v_add_u32 v{WB}, s{S_A}, v{WB}
s_cmp_eq_u32 s{S_ISQ}, 1
s_cselect_b32 s{S_A}, 56, 32
s_cselect_b32 s{S_B}, 5, 7
s_cselect_b32 s{S_C}, 0x88880000, 0
s_mov_b32 s{S_D}, s{S_C}
s_add_u32 s6, s{S_SH}, 4
v_bfe_u32 v{T}, v0, 4, 1
v_and_b32 v{T+1}, 3, v0
v_lshlrev_b32 v{T}, s{S_B}, v{T}
v_lshl_add_u32 v{T}, v{T+1}, 3, v{T}
v_lshlrev_b32 v{T+1}, s6, v{G+1}""")
    for i, st_ in ((0, S_T0), (1, S_T1)):
        e(f"""s_mul_i32 s6, s{st_}, s{S_A}
s_lshl_b32 s7, s{st_}, 3
s_sub_u32 s7, 248, s7
v_add_u32 v{T+2}, s6, v{T}
v_mov_b32 v{T+3}, s7
v_cndmask_b32 v{T+2}, v{T+2}, v{T+3}, s[{S_C}:{S_D}]
v_xor_b32 v{T+2}, v{T+2}, v{T+1}
v_add_u32 v{WA+4*i}, v{T+2}, v{WB}""")
    for i in range(2):
        for pos in range(1, 4): e(f"v_xor_b32 v{WA+4*i+pos}, {pos<<12}, v{WA+4*i}")
    e(f"""v_bfe_u32 v{T}, v0, 4, 1
v_and_b32 v{T+1}, 15, v0
v_cmp_eq_u32 vcc, v{T}, v{T+1}
v_mov_b32 v{T}, 0x3f803f80
s_nop 0
v_cndmask_b32 v{SEL}, 0, v{T}, vcc
v_mov_b32 v{SEL+1}, v{SEL}
v_mov_b32 v{SEL+2}, v{SEL}
v_mov_b32 v{SEL+3}, v{SEL}""")
    w2t_addr = f"""s_lshl_b32 s{S_U}, s2, 2
s_lshr_b32 s6, s{S_W}, 1
s_add_u32 s{S_U}, s{S_U}, s6
s_min_u32 s{S_U}, s{S_U}, 1007
s_mul_hi_u32 s6, s{S_U}, {(2**32 + 143)//144}
s_mul_i32 s{S_A}, s6, 144
s_sub_u32 s{S_A}, s{S_U}, s{S_A}
s_lshl_b32 s{S_B}, s{S_A}, 4
s_sub_u32 s{S_C}, s{S_A}, 112
s_lshr_b32 s{S_D}, s{S_C}, 1
s_mul_i32 s{S_D}, s{S_D}, 28
s_and_b32 s{S_C}, s{S_C}, 1
s_lshl_b32 s{S_C}, s{S_C}, 4
s_add_u32 s{S_C}, s{S_C}, s{S_D}
s_mov_b32 s{S_D}, {448*896}
s_cmp_lt_u32 s{S_A}, 112
s_cselect_b32 s{S_B}, s{S_B}, s{S_C}
s_cselect_b32 s{SRD_T}, s{P_WD}, s{P_WO}
s_cselect_b32 s{SRD_T+1}, s{P_WD+1}, s{P_WO+1}
s_cselect_b32 s{SRD_T+2}, {1792*896}, s{S_D}
s_mov_b32 s{SRD_T+3}, 0x00020000
s_and_b32 s{S_C}, s{S_W}, 1
s_lshl_b32 s{S_C}, s{S_C}, 3
s_add_u32 s{S_B}, s{S_B}, s{S_C}
s_mul_i32 s{S_B}, s{S_B}, 896
s_lshl_b32 s6, s6, 7
s_add_u32 s{S_TO}, s{S_B}, s6
v_lshrrev_b32 v{TP}, 3, v0
v_mul_u32_u24 v{TP}, 896, v{TP}
v_and_b32 v{TP+1}, 7, v0
v_lshl_add_u32 v{VT}, v{TP+1}, 4, v{TP}"""
    late = f"""s_add_u32 s{S_LB}, s{S_LA}, 12
s_add_u32 s6, s{S_QU}, 24
s_cmp_eq_u32 s{S_ISQ}, 1
s_cselect_b32 s{S_LB}, s6, s{S_LB}
v_lshrrev_b32 v{TP}, 4, v0
s_lshl_b32 s6, s{S_ROT}, 4
s_add_u32 s6, s6, s{S_W}
s_lshl_b32 s6, s6, 2
v_add_u32 v{TP+1}, s6, v{TP}
v_mul_u32_u24 v{TP+1}, 3584, v{TP+1}
v_lshlrev_b32 v{TP}, 1, v{TP}
v_xor_b32 v{TP}, v{TP}, v0
v_and_b32 v{GB}, 7, v{TP}
v_lshl_add_u32 v{TP+1}, v{GB}, 4, v{TP+1}
s_lshl_b32 s6, s{S_LB}, 7
v_add_u32 v{TP+1}, s6, v{TP+1}
v_and_b32 v{TP}, 8, v{TP}
v_cmp_eq_u32 vcc, 8, v{TP}
v_mov_b32 v{GB}, s{P_WG}
v_mov_b32 v{TP}, s{P_WU}
v_cndmask_b32 v{GB}, v{GB}, v{TP}, vcc
v_mov_b32 v{GB+1}, s{P_WG+1}
v_mov_b32 v{TP}, s{P_WU+1}
v_cndmask_b32 v{GB+1}, v{GB+1}, v{TP}, vcc
v_add_co_u32 v{GB}, vcc, v{GB}, v{TP+1}
v_bfe_u32 v{TP}, v0, 4, 1
v_and_b32 v{TP+1}, 3, v0
v_addc_co_u32 v{GB+1}, vcc, 0, v{GB+1}, vcc
v_lshlrev_b32 v{TP+1}, 3, v{TP+1}
v_lshl_add_u32 v{TP}, v{TP}, 7, v{TP+1}
v_bfe_u32 v{TP+1}, v0, 2, 2
v_lshlrev_b32 v{TP+1}, 5, v{TP+1}
v_xor_b32 v{TP}, v{TP}, v{TP+1}
s_lshl_b32 s6, s{S_T0}, 5
v_xor_b32 v{TP}, s6, v{TP}
v_add_u32 v{WB}, v{TP}, v{WB}
v_xor_b32 v{WB+1}, 32, v{WB}
s_mov_b32 s{SRD_WS}, s{P_WS}
s_mov_b32 s{SRD_WS+1}, s{P_WS+1}
s_mov_b32 s{SRD_WS+2}, {WS_END}
s_mov_b32 s{SRD_WS+3}, 0x00020000"""
    e.stamp("xs4")
    e("s_waitcnt lgkmcnt(0)")
    e(f"s_add_u32 s{S_NON}, s{S_NON}, 1")
    e.stamp("xs5")
    e.wvm("d0")
    e("s_barrier")
    e.stamp("start")

    half = {'x': [0]*4, 'w': [0]*4}
    def reads(gp):
        if gp < 28: sig, sub, pos, reg = gp // 4, 0, gp % 4, 16384
        else:
            g = gp - 28; sig, sub, pos = 7 + g // 8, (g // 4) & 1, g % 4; reg = sub * 16384
        sl = sig % 4; h = sl >> 1; imm = (sl & 1) * RING
        buf = WF + 8 * (gp % 3)
        pre = []
        if 28 <= gp < 32:
            pre = [f"v_xor_b32 v{WA+4*i+pos}, {(pos << 12) | (h << 16)}, v{WB+i}" for i in range(2)]
            half['w'][pos] = h
        elif half['w'][pos] != h:
            pre = [f"v_xor_b32 v{WA+4*i+pos}, 0x10000, v{WA+4*i+pos}" for i in range(2)]
            half['w'][pos] = h
        if gp < 28 and half['x'][pos] != h:
            pre.append(f"v_xor_b32 v{XA+pos}, 0x10000, v{XA+pos}"); half['x'][pos] = h
        out = [(lambda l=l: e(l)) for l in pre]
        if gp < 28: out.append(lambda: e.ds(f"ds_read_b128 {vr(XR+4*gp,4)}, v{XA+pos} offset:{imm}", f"r{gp}"))
        for i in range(2):
            for u in range(2):
                out.append(lambda i=i, u=u: e.ds(f"ds_read_b64_tr_b16 {vr(buf+4*i+2*u,2)}, v{WA+4*i+pos} offset:{imm+reg+u*1024}", f"r{gp}"))
        return out
    def position(gp, side, dmaq, nside, barrier=None):
        p2 = gp >= 28; g = gp - 28 if p2 else gp
        acc = ACCB if p2 else ACCA
        buf = WF + 8 * (gp % 3); xr = XR + 4 * g
        e.wds(f"r{gp}")
        e(mfma(acc, buf, xr, "0" if g == 0 else None))
        if barrier: barrier()
        R = reads(gp + 2) if gp + 2 < 56 else []
        for f in R[:len(R) - 2]: f()
        side.emit((nside + 1) // 2)
        e(mfma(acc + 16, buf + 4, xr, "0" if g == 0 else None))
        for f in R[len(R) - 2:]: f()
        if g % 4 == 0 and 'nosel' not in X:
            e(mfma16(CSA, SEL, buf, "0" if g == 0 else None))
        if dmaq: dmaq.pop(0)()
        side.emit(nside // 2)
        if g % 4 == 0 and 'nosel' not in X:
            e(mfma16(CSA + 4, SEL, buf + 4, "0" if g == 0 else None))
    def stats(gp):
        x = XR + 4 * gp; c = lambda r: "0" if gp == 0 else vr(r, 4)
        return [mfma16(ST, SEL, x, c(ST)),
                f"v_mfma_f32_4x4x4_16b_bf16 {vr(SQA,4)}, {vr(x,2)}, {vr(x,2)}, {c(SQA)}\nv_mfma_f32_4x4x4_16b_bf16 {vr(SQB,4)}, {vr(x+2,2)}, {vr(x+2,2)}, {c(SQB)}"]
    def cs_write(dst):
        return [f"v_lshlrev_b32 v{G+8}, 4, v0", f"s_lshl_b32 s6, s{S_T0}, 9", f"s_lshl_b32 s{S_A}, s{S_RT}, 2",
                f"s_add_u32 s6, s6, s{S_A}", f"s_add_u32 s6, s6, {dst}", f"v_add_u32 v{G+8}, s6, v{G+8}",
                lambda: (e("s_mov_b64 exec, 0xffff"),
                         e.ds(f"ds_write_b32 v{G+8}, v{CSA}", "csw"), e.ds(f"ds_write_b32 v{G+8}, v{CSA+1} offset:256", "csw"),
                         e.ds(f"ds_write_b32 v{G+8}, v{CSA+4} offset:512", "csw"), e.ds(f"ds_write_b32 v{G+8}, v{CSA+5} offset:768", "csw"),
                         e("s_mov_b64 exec, -1"))]
    def cs_read(src):
        l = [f"v_and_b32 v{G+8}, 31, v0", f"v_lshlrev_b32 v{G+8}, 4, v{G+8}", f"s_lshl_b32 s6, s{S_T0}, 9", f"s_add_u32 s6, s6, {src}",
             f"v_add_u32 v{G+8}, s6, v{G+8}",
             lambda: e.ds(f"ds_read_b128 {vr(G,4)}, v{G+8}", "csr"), lambda: e.ds(f"ds_read_b128 {vr(G+4,4)}, v{G+8} offset:512", "csr")]
        m = [lambda: e.wds("csr")]
        for i in range(2):
            b = G + 4 * i
            m += [f"v_add_f32 v{b}, v{b}, v{b+1}", f"v_add_f32 v{b+2}, v{b+2}, v{b+3}"]
        for i in range(2): m += [f"v_add_f32 v{G+4*i}, v{G+4*i}, v{G+4*i+2}"]
        for i in range(2): m += [f"v_cvt_pk_bf16_f32 v{G+4*i+1}, v{G+4*i}, v{G+4*i}"]
        for i in range(2): m += [f"v_and_b32 v{G+4*i+1}, s{S_MASK}, v{G+4*i+1}"]
        for i in range(2): m += [f"v_sub_f32 v{G+4*i+1}, v{G+4*i}, v{G+4*i+1}"]
        for i in range(2): m += [f"v_cvt_pk_bf16_f32 v{G+4*i}, v{G+4*i}, v{G+4*i+1}"]
        for i in range(2): m += [f"v_cndmask_b32 v{ST+2*i}, v{G+4*i}, 0, s[{S_HI}:{S_HI+1}]"]
        return l, m

    for f in reads(0) + reads(1): f()
    side = Side(e); dmaq = list(stage_dmas(e, 2)) + ([touch(e, 2)] if TOUCH else [])
    w2side = Side(e); w2side.add(w2t_addr); w2side.add(late)
    for gp in range(28):
        sig, pos = gp // 4, gp % 4
        bar = None
        if pos == 2:
            def bar(sig=sig):
                e.wvm(f"d{sig+1}"); e("s_barrier")
                assert not dmaq
                dmaq.extend(stage_dmas(e, sig + 3))
                if sig == 0 and TOUCH: dmaq.append(touch(e, 3))
                if sig == 1:
                    dmaq.append(lambda: (e(f"s_add_u32 m0, s{S_WB}, {L_W2T}\ns_nop 0"),
                                         e.vm(f"buffer_load_dwordx4 v{VT}, s[{SRD_T}:{SRD_T+3}], s{S_TO} offen lds", "w2td")))
        if pos % 2 == 0 and 'nostat' not in X: side.add(stats(gp))
        if gp == 26: side.add(cs_write(L_CSA))
        n = -(-len(side.q) // (2 - pos % 2)) if gp < 26 else len(side.q) if gp == 27 else 16
        while len(dmaq) > 4 - ((pos + 2) % 4): dmaq.pop(0)()
        e.stamp(f"xp{gp}")
        w2side.emit(8 if gp < 4 else 4)
        position(gp, side, dmaq, n, bar)
    side.flush()
    e(f"""v_and_b32 v{TP}, 3, v0
v_cmp_eq_u32 vcc, 1, v{TP}
v_cmp_eq_u32 s[{S_A}:{S_B}], 2, v{TP}
v_cmp_eq_u32 s[{S_C}:{S_D}], 3, v{TP}
s_lshl_b32 s6, s{S_RT}, 1
s_add_u32 s6, s6, s{S_CG}
s_lshl_b32 s6, s6, 8
s_add_u32 s6, s6, {L_ST}
v_lshl_add_u32 v{TP+1}, v0, 2, s6""")
    for k in range(4): e(f"v_add_f32 v{SQA+k}, v{SQA+k}, v{SQB+k}")
    e(f"""v_cndmask_b32 v{SQA}, v{SQA}, v{SQA+1}, vcc
v_cndmask_b32 v{SQA}, v{SQA}, v{SQA+2}, s[{S_A}:{S_B}]
v_cndmask_b32 v{SQA}, v{SQA}, v{SQA+3}, s[{S_C}:{S_D}]""")
    e.ds(f"ds_write_b32 v{TP+1}, v{SQA}", "stw")
    e("s_mov_b64 exec, 0xffff")
    e.ds(f"ds_write_b32 v{TP+1}, v{ST} offset:2048", "stw")
    e.ds(f"ds_write_b32 v{TP+1}, v{ST+1} offset:2112", "stw")
    e("s_mov_b64 exec, -1")
    e.stamp("p1")

    KA = -2.0 * math.log2(math.e) * math.sqrt(2.0 / math.pi); KB = KA * 0.044715
    def gelu(acc, so, tb):
        l = []
        for k in range(8): l.append(f"v_mul_f32 v{tb+k}, v{acc+k}, v{acc+k}")
        for k in range(8): l.append(f"v_fma_f32 v{tb+k}, v{tb+k}, v{BC}, v{AC}")
        for k in range(8): l.append(f"v_mul_f32 v{tb+k}, v{tb+k}, v{acc+k}")
        for k in range(8): l += [f"v_exp_f32 v{tb+k}, v{tb+k}", f"v_mul_f32 v{acc+k}, v{acc+k}, v{acc+8+k}"]
        for k in range(8): l.append(f"v_fma_f32 v{tb+k}, v{tb+k}, v{I2}, v{I2}")
        for k in range(8): l.append(f"v_rcp_f32 v{tb+k}, v{tb+k}")
        for k in range(8): l.append(f"v_mul_f32 v{acc+k}, v{acc+k}, v{tb+k}")
        for k in range(4): l.append(f"v_cvt_pk_bf16_f32 v{acc+8+k}, v{acc+2*k}, v{acc+2*k+1}")
        l.append(lambda: e.vm(f"buffer_store_dwordx4 {vr(acc+8,4)}, v{VL16}, {WS}, s{so} offen {SC}", "hs"))
        return l
    def h_off(line, dst):
        return f"""s_lshl_b32 s6, s{S_RB}, 2
s_add_u32 s6, s6, s{S_RT}
s_mul_i32 s6, s6, 144
s_lshl_b32 s{dst}, s{line}, 2
s_add_u32 s6, s6, s{dst}
s_add_u32 s6, s6, s{S_T0}
s_lshl_b32 s{dst}, s6, 10
s_add_u32 s{dst+1}, s{dst}, 1024"""
    def after_exchange(side):
        l, m = cs_read(L_CSA)
        side.add(l)
        side.add([f"v_and_b32 v{G+9}, 31, v0", f"v_lshlrev_b32 v{G+9}, 2, v{G+9}", f"s_lshl_b32 s6, s{S_RT}, 9", f"s_add_u32 s6, s6, {L_ST}",
                  f"v_add_u32 v{G+9}, s6, v{G+9}",
                  lambda: (e.ds(f"ds_read2_b32 {vr(G+12,2)}, v{G+9} offset0:0 offset1:32", "str"),
                           e.ds(f"ds_read2_b32 {vr(G+14,2)}, v{G+9} offset0:64 offset1:96", "str"),
                           e.ds(f"ds_read2st64_b32 {vr(BEXT+2,2)}, v{G+9} offset0:8 offset1:9", "str")),
                  f"v_mov_b32 v{ST+1}, 0", f"v_mov_b32 v{ST+3}, 0", f"v_mov_b32 v{BEXT+1}, 0"])
        side.add(m)
        x = G + 12
        side.add([lambda: e.wds("str")])
        side.add(f"""s_mov_b32 s6, {f2u(1.0/448)}
v_add_f32 v{x}, v{x}, v{x+2}
v_add_f32 v{x+1}, v{x+1}, v{x+3}
v_add_f32 v{x+1}, v{x+1}, v{x}
v_add_f32 v{x}, v{BEXT+2}, v{BEXT+3}
v_mov_b32 v{BEXT+2}, 0
v_mov_b32 v{BEXT+3}, 0
v_mul_f32 v{x}, s6, v{x}
v_mul_f32 v{x+1}, s6, v{x+1}
v_cvt_pk_bf16_f32 v{BEXT}, -v{x}, -v{x}
v_fma_f32 v{x+1}, -v{x}, v{x}, v{x+1}
v_max_f32 v{x+1}, 0, v{x+1}""")
        side.add([mfma(ACCA, ST, BEXT)])
        side.add(f"""v_cvt_pk_bf16_f32 v{x+1}, v{x+1}, v{x+1}
v_and_b32 v{x+1}, s{S_MASK}, v{x+1}
v_add_f32 v{x+1}, {f2u(1e-5)}, v{x+1}""")
        side.add([mfma(ACCA + 16, ST + 2, BEXT)])
        side.add(f"""v_cvt_pk_bf16_f32 v{x+1}, v{x+1}, v{x+1}
v_and_b32 v{x+1}, s{S_MASK}, v{x+1}
v_sqrt_f32 v{x+1}, v{x+1}
s_mov_b32 s6, {f2u(KA)}
v_cvt_pk_bf16_f32 v{x+1}, v{x+1}, v{x+1}
v_and_b32 v{S_}, s{S_MASK}, v{x+1}
v_rcp_f32 v{R_}, v{S_}
v_mul_f32 v{I2}, v{S_}, v{S_}
v_mul_f32 v{AC}, s6, v{R_}
v_mul_f32 v{BC}, v{R_}, v{R_}
v_mul_f32 v{BC}, v{BC}, v{AC}
v_mul_f32 v{BC}, {f2u(0.044715)}, v{BC}""")

    def w2t_out(side):
        side.add(f"""v_lshrrev_b32 v{TP}, 5, v0
v_bfe_u32 v{TP+1}, v0, 2, 2
v_lshl_add_u32 v{TP}, v{TP}, 2, v{TP+1}
v_lshlrev_b32 v{TP}, 7, v{TP}
v_bfe_u32 v{TP+1}, v0, 4, 1
v_lshl_add_u32 v{TP}, v{TP+1}, 5, v{TP}
v_and_b32 v{TP+1}, 3, v0
v_lshl_add_u32 v{TP}, v{TP+1}, 3, v{TP}
s_lshr_b32 s6, s{S_W}, 1
s_lshl_b32 s6, s6, 11
s_and_b32 s{S_A}, s{S_W}, 1
s_lshl_b32 s{S_B}, s{S_A}, 6
s_add_u32 s6, s6, s{S_B}
s_add_u32 s6, s6, {L_W2T}
v_add_u32 v{TP}, s6, v{TP}""")
        side.add([lambda: (e.ds(f"ds_read_b64_tr_b16 {vr(PL,2)}, v{TP}", "w2tr"), e.ds(f"ds_read_b64_tr_b16 {vr(PL+2,2)}, v{TP} offset:1024", "w2tr")),
                  f"s_lshl_b32 s6, s{S_U}, 11", f"s_lshl_b32 s{S_A}, s{S_A}, 10", f"s_add_u32 s6, s6, s{S_A}", f"s_add_u32 s{S_TO}, s6, {W2T}",
                  lambda: (e.wds("w2tr"), e.vm(f"buffer_store_dwordx4 {vr(PL,4)}, v{VL16}, {WS}, s{S_TO} offen {SC}", "w2ts"))])
    GEND = P("GEND", 22)
    GX, GBN, GFL, QRATE = P("GX", 0), P("GBN", 3), P("GFL", 14), P("QRATE", 30)
    def pass2(qfirst):
        side = Side(e); dq = list(dmaq)
        for g in range(28):
            gp = 28 + g
            pre = []; wd = []; wv = []; post = []
            if g == GX:
                wd += ["stw", "csw"]
                def p():
                    dq.extend(stage_dmas(e, 10))
                    after_exchange(side)
                    if not qfirst:
                        side.add(h_off(S_LA, S_C))
                        side.add(gelu(ACCA, S_C, G)); side.add(gelu(ACCA + 16, S_D, G))
                    else: qkv_part1(side)
                post.append(p)
            if g in (6, 14, 22): wv.append(f"d{8 + g // 8}")
            if qfirst and g == GBN: pre.append(side.flush); wd.append("kvw"); post.append(lambda: qkv_part2(side))
            if qfirst and g == GFL:
                pre.append(side.flush); wv.append("qs")
                post.append(lambda: flag_store(e, f"""s_lshl_b32 s6, s{S_RB}, 2
s_add_u32 s6, s6, s{S_QU}
s_lshl_b32 s6, s6, 2
s_add_u32 s6, s6, {F_KV}
v_lshlrev_b32 v{G}, 8, v0
v_add_u32 v{G}, s6, v{G}""", RKV, G))
            if g == P("GW2", 15):
                q0 = side.q; side.q = []; w2t_out(side); side.q += q0
            if g == 24:
                side.flush()
                poll_issue(e, f"""s_and_b32 s6, s2, {RKV-1}
s_lshl_b32 s6, s6, 8
s_add_u32 s6, s6, {F_KV}
v_lshl_add_u32 v{PL}, v0, 2, s6""", PL, PL + 1, "kvp")
            if g == 25:
                side.flush(); side.add(cs_write(L_CSB))
            if g == 26:
                pre.append(side.flush); wd.append("csw")
                def p():
                    l, m = cs_read(L_CSB); side.add(l); side.add(m)
                post.append(p)
            bar = None
            if wd or wv:
                def bar():
                    for f in pre: f()
                    if wd: e.wds(*wd)
                    if wv: e.wvm(*wv)
                    e("s_barrier")
                    for f in post: f()
            if qfirst: n = QRATE if g < GFL else 12
            else: n = -(-len(side.q) // max(1, GEND - g)) if GX < g < GEND else 12
            e.stamp(f"xg{g}")
            position(gp, side, dq, n, bar)
        side.flush()
        e.stamp("xpe2")
        e("s_nop 1")
        e(mfma(ACCB, ST, BEXT)); e(mfma(ACCB + 16, ST + 2, BEXT))
    RQ = 2
    def qkv_part1(side):
        side.add(f"""v_mul_f32 v{RQ}, {f2u(28 ** -0.5 * math.log2(math.e))}, v{R_}
v_and_b32 v{G+8}, 31, v0
v_lshlrev_b32 v{G+8}, 5, v{G+8}
s_lshl_b32 s6, s{S_RT}, 10
s_add_u32 s6, s6, {L_KVB}
v_add_u32 v{G+8}, s6, v{G+8}
s_mov_b32 s{S_D}, 0x00003f80
s_cmp_lt_u32 s{S_QU}, 2
s_cselect_b32 s{S_C}, 0x3f803f80, s{S_D}
s_cselect_b32 s{S_D}, s{S_D}, 0""")
        for i, st_ in ((0, S_T0), (1, S_T1)):
            acc = ACCA + 16 * i; b = G + 4 * i
            for k in range(4): side.add([f"v_mul_f32 v{b+k}, v{acc+12+k}, v{R_}"])
            side.add(f"""s_sub_u32 s6, 3, s{st_}
s_lshl_b32 s{S_A}, s{st_}, 2
s_lshr_b32 s{S_A}, 0x0132, s{S_A}
s_and_b32 s{S_A}, s{S_A}, 3
s_bitcmp1_b32 s{S_QU}, 0
s_cselect_b32 s6, s{S_A}, s6
s_cselect_b32 s{S_A}, s{S_A}, 0
s_lshl_b32 s6, s6, 3
v_cvt_pk_bf16_f32 v{b}, v{b}, v{b+1}
v_cvt_pk_bf16_f32 v{b+1}, v{b+2}, v{b+3}
v_add_u32 v{b+2}, s6, v{G+8}""")
            def wr(b=b):
                l = e.newlabel("nc")
                e(f"s_cmp_eq_u32 s{S_A}, 3\ns_cbranch_scc0 {l}\nv_mov_b32 v{b}, s{S_C}\nv_mov_b32 v{b+1}, s{S_D}")
                e.label(l)
                e(f"s_mov_b64 exec, s[{S_HI}:{S_HI+1}]")
                e.ds(f"ds_write_b64 v{b+2}, {vr(b,2)}", "kvw")
                e("s_mov_b64 exec, -1")
            side.add([wr])
    def qkv_part2(side):
        def kv():
            l = e.newlabel("kvs"); lv = e.newlabel("kvv"); ls = e.newlabel("kvt")
            e(f"""s_cmp_eq_u32 s{S_CG}, 0
s_cbranch_scc0 {l}
s_lshl_b32 s6, s{S_RB}, 2
s_add_u32 s6, s6, s{S_RT}
s_lshl_b32 s6, s6, 12
s_add_u32 s6, s6, {KVF}
s_lshl_b32 s{S_A}, s{S_RT}, 10
s_add_u32 s{S_A}, s{S_A}, {L_KVB}
s_cmp_lt_u32 s{S_QU}, 2
s_cbranch_scc0 {lv}
v_and_b32 v{G}, 31, v0
v_lshrrev_b32 v{G+1}, 5, v0
v_lshlrev_b32 v{G}, 5, v{G}
v_lshl_add_u32 v{G}, v{G+1}, 3, v{G}
v_add_u32 v{G}, s{S_A}, v{G}
ds_read2_b64 {vr(G+4,4)}, v{G} offset0:0 offset1:2
s_lshl_b32 s{S_A}, s{S_QU}, 10
s_add_u32 s6, s6, s{S_A}
v_mov_b32 v{G+2}, v{VL16}
s_branch {ls}""")
            e.label(lv)
            e(f"""v_lshrrev_b32 v{G}, 5, v0
v_bfe_u32 v{G+1}, v0, 4, 1
v_lshlrev_b32 v{G+2}, 10, v{G}
v_lshl_add_u32 v{G+2}, v{G+1}, 9, v{G+2}
v_lshlrev_b32 v{G}, 4, v{G}
v_lshl_add_u32 v{G}, v{G+1}, 2, v{G}
v_bfe_u32 v{G+1}, v0, 2, 2
v_add_u32 v{G}, v{G}, v{G+1}
v_lshlrev_b32 v{G}, 5, v{G}
v_and_b32 v{G+1}, 3, v0
v_lshl_add_u32 v{G}, v{G+1}, 3, v{G}
v_add_u32 v{G}, s{S_A}, v{G}
ds_read_b64_tr_b16 {vr(G+4,2)}, v{G}
ds_read_b64_tr_b16 {vr(G+6,2)}, v{G} offset:256
v_and_b32 v{G+1}, 15, v0
v_lshl_add_u32 v{G+2}, v{G+1}, 4, v{G+2}
s_and_b32 s{S_A}, s{S_QU}, 1
s_lshl_b32 s{S_A}, s{S_A}, 8
s_add_u32 s6, s6, s{S_A}
s_add_u32 s6, s6, 2048""")
            e.label(ls)
            e(f"s_waitcnt lgkmcnt(0)\nbuffer_store_dwordx4 {vr(G+4,4)}, v{G+2}, {WS}, s6 offen {SC}")
            e.label(l)
        side.add([kv])
        side.add(f"""s_lshl_b32 s6, s{S_RB}, 2
s_add_u32 s6, s6, s{S_RT}
s_lshl_b32 s6, s6, 2
s_add_u32 s6, s6, s{S_QU}
s_lshl_b32 s6, s6, 2
s_add_u32 s6, s6, s{S_T0}
s_lshl_b32 s6, s6, 11
s_add_u32 s{S_C}, s6, {QF}""")
        for i in range(2):
            acc = ACCA + 16 * i
            for k in range(16): side.add([f"v_mul_f32 v{acc+k}, v{acc+k}, v{RQ}"])
            for k in range(8): side.add([f"v_cvt_pk_bf16_f32 v{acc+k}, v{acc+2*k}, v{acc+2*k+1}"])
            side.add([f"v_cndmask_b32 v{acc+6}, v{acc+6}, 0, s[{S_HI}:{S_HI+1}]", f"v_cndmask_b32 v{acc+7}, v{acc+7}, 0, s[{S_HI}:{S_HI+1}]",
                      lambda acc=acc, i=i: e.vm(f"buffer_store_dwordx4 {vr(acc,4)}, v{VL16}, {WS}, s{S_C} offen offset:{2048*i} {SC}", "qs"),
                      lambda acc=acc, i=i: e.vm(f"buffer_store_dwordx4 {vr(acc+4,4)}, v{VL16}, {WS}, s{S_C} offen offset:{2048*i+1024} {SC}", "qs")])
    e(f"s_cmp_eq_u32 s{S_ISQ}, 1\ns_cbranch_scc1 B_p2q")
    sn = e.snap(); hs = {k: list(v) for k, v in half.items()}; ns = e.nst
    pass2(False)
    e("s_branch B_join")
    e.label("B_p2q")
    e.nst = ns
    e.restore(sn); half.update({k: list(v) for k, v in hs.items()})
    pass2(True)
    e.label("B_join")
    e.q = {'ds': [], 'vm': ['kvp']}; e.done = {'ds': 0, 'vm': 0}
    e.stamp("join")
    return gelu, h_off

LB0, LB1, VO = 3, 4, 5
Q, O, S0, PP, K, V0, V1 = 36, 44, 64, 96, 104, 112, 120
FA, FB = 128, 192
XRES = 244
S_KH, S_QT, S_KVO, S_WB4, S_FA, S_FB0, S_FB1, S_OO = 50, 51, 54, 55, 56, 57, 59, 60
S_FQ, S_K1 = 62, 63
F0 = P("F0", 8)
FP = P("FP", 6)
HBP = P("HBP", 10)
F3 = P("F3", 24)

def kv_dma(e, st):
    def m(): e(f"s_add_u32 m0, s{S_WB4}, {((st + 3) % 4) * RING}" + ("\ns_nop 0" if st < 3 else ""))
    m.scalar = True
    l = [m]
    for f in range(4):
        l.append(lambda f=f: (e.vm(f"buffer_load_dwordx4 v{VL16}, {WS}, s{S_KVO} offen offset:{1024*f} {SC} lds", f"k{st}"),
                              e(f"s_add_u32 s{S_KVO}, s{S_KVO}, 16384") if f == 3 else None))
    return l

NB = P("NB", 4)
FBUF = [[FB + 16 * n + 4 * k for k in range(4)] for n in range(3)] + [[60, 124, 248, 252]]
def f_loads(e, q):
    bb = FBUF[q % NB]
    r = q if q < 6 else q - 6
    advA = advB = None
    if q == 5:
        advA = f"s_add_u32 s{S_FA}, s{S_FA}, s{S_FQ}"
        advB = f"s_add_u32 s{S_FB0}, s{S_FB0}, s{S_K1}\ns_add_u32 s{S_FB1}, s{S_FB1}, s{S_K1}"
    else:
        if r & 1: advA = f"s_add_u32 s{S_FA}, s{S_FA}, 4096"
        if (r & 3) == 3: advB = f"s_add_u32 s{S_FB0}, s{S_FB0}, 4096\ns_add_u32 s{S_FB1}, s{S_FB1}, 4096"
    return [lambda: e.vm(f"buffer_load_dwordx4 {vr(bb[0],4)}, v{VL16}, {WS}, s{S_FA} offen offset:{(r&1)*2048} {SC}", f"f{q}"),
            lambda: e.vm(f"buffer_load_dwordx4 {vr(bb[2],4)}, v{VL16}, {WS}, s{S_FB0} offen offset:{(r&3)*1024} {SC}", f"f{q}"),
            lambda: (e.vm(f"buffer_load_dwordx4 {vr(bb[1],4)}, v{VL16}, {WS}, s{S_FA} offen offset:{(r&1)*2048+1024} {SC}", f"f{q}"),
                     e(advA) if advA else None),
            lambda: (e.vm(f"buffer_load_dwordx4 {vr(bb[3],4)}, v{VL16}, {WS}, s{S_FB1} offen offset:{(r&3)*1024} {SC}", f"f{q}"),
                     e(advB) if advB else None)]
def f_mfma(q, k):
    bb = FBUF[q % NB]; r2, d2 = ((0, 0), (0, 1), (1, 1), (1, 0))[k]
    return mfma(FA + 32*r2 + 16*d2, bb[d2], bb[2 + r2], "0" if q == 0 else None)

NOA = P("NOA", 7)
OAREG = [8, 12, 16, 20, 24, 28, 32, 60, 124][:NOA] + [FB + 4 * k for k in range(16)]
S_OA = 61
def oa_load(e, k):
    def f():
        e.vm(f"buffer_load_dwordx4 {vr(OAREG[k],4)}, v{VL16}, {WS}, s{S_OA} offen offset:{(k&3)*1024} {SC}", f"oa{k}")
        if (k & 3) == 3 and k < 15: e(f"s_add_u32 s{S_OA}, s{S_OA}, 4096")
    return f
KVPRE = P('KVPRE', 2)
def attn_setup(e, gelu, h_off):
    e(h_off(S_LB, S_C))
    e(f"""s_mov_b32 s{S_QT}, s{S_RT}
s_mov_b32 s{S_KH}, s{S_CG}
s_lshl_b32 s{S_WB4}, s{S_W}, 12
s_lshl_b32 s6, s{S_KH}, 5
s_add_u32 s6, s6, s{S_QT}
s_lshl_b32 s6, s6, 12
s_add_u32 s{S_KVO}, s6, {KVF}
s_lshl_b32 s6, s{S_RB}, 2
s_add_u32 s6, s6, s{S_QT}
s_lshl_b32 s7, s6, 4
s_add_u32 s7, s7, s{S_J}
s_lshl_b32 s7, s7, 11
s_add_u32 s7, s7, {QF}""")
    g0 = gelu(ACCB, S_C, G); g1 = gelu(ACCB + 16, S_D, G)
    nfirst = P("GFIRST", 0)
    both = g0 + g1
    for it in both[:nfirst]: it() if callable(it) else e(it)
    poll_check(e, PL, PL + 1, "kvp")
    e.wvm("kvp")
    e("s_barrier")
    e.stamp("xkv")
    flag_store(e, f"""s_lshl_b32 s6, s{S_RB}, 5
s_add_u32 s6, s6, s{S_J}
s_lshl_b32 s6, s6, 2
s_add_u32 s6, s6, {F_H + 64}
s_mul_hi_u32 s{S_A}, s2, {(2**32 + 35)//36}
s_mul_i32 s{S_A}, s{S_A}, 28
s_add_u32 s{S_A}, s{S_A}, s2
s_lshl_b32 s{S_A}, s{S_A}, 2
s_add_u32 s{S_A}, s{S_A}, {F_W}
s_sub_u32 s{S_A}, s{S_A}, s6
v_mul_lo_u32 v{PL}, v0, s{S_A}
v_add_u32 v{PL}, s6, v{PL}""", 2, PL)
    side = Side(e)
    side.add(kv_dma(e, 0))
    side.add([lambda: e.vm(f"buffer_load_dwordx4 {vr(Q,4)}, v{VL16}, {WS}, s7 offen {SC}", "q"),
              lambda: e.vm(f"buffer_load_dwordx4 {vr(Q+4,4)}, v{VL16}, {WS}, s7 offen offset:1024 {SC}", "q")])
    side.emit(P("KPRE0", 3))
    for st in range(1, KVPRE): side.add(kv_dma(e, st))
    for n, it in enumerate(both[nfirst:]):
        it() if callable(it) else e(it)
        if n % P('GSP', 8) == P('GSP', 8) - 1: side.emit(1)
    side.flush()
    e(f"""s_lshl_b32 s6, s{S_KH}, 14
v_add_u32 v{LB0}, s6, v{VL16}
v_add_u32 v{LB1}, 0x10000, v{LB0}
s_lshl_b32 s6, s{S_RB}, 2
s_add_u32 s6, s6, s{S_QT}
s_mul_i32 s6, s6, 144
s_lshl_b32 s7, s{S_J}, 1
s_add_u32 s6, s6, s7
s_add_u32 s6, s6, s{S_KH}
s_add_u32 s6, s6, 112
s_lshl_b32 s{S_OO}, s6, 10""")

def rd(e, dst, tile, f, tag):
    sl = (tile // 4 + 3) % 4
    e.ds(f"ds_read_b128 {vr(dst,4)}, v{LB0 if sl < 2 else LB1} offset:{(sl & 1) * RING + (tile % 4) * 4096 + f * 1024}", tag)

def attn_loop(e, withF):
    e.stamp("xge")
    e.wvm("k0", "q"); e.stamp("xk0"); e("s_barrier")
    e.stamp("astart")
    rd(e, K, 0, 0, "a"); rd(e, K + 4, 0, 1, "a"); rd(e, V0, 0, 2, "b")
    e.wds("a")
    e(mfma(S0, K, Q, "0")); e(mfma(S0, K + 4, Q + 4))
    rd(e, K, 1, 0, "b"); rd(e, K + 4, 1, 1, "b")
    if withF:
        e(f"""s_lshr_b32 s6, s{S_J}, 3
s_lshl_b32 s7, s{S_RB}, 1
s_add_u32 s6, s6, s7
s_and_b32 s7, s{S_J}, 7
s_mul_i32 s{S_A}, s{S_W}, 6
s_lshl_b32 s{S_K1}, s{S_W}, 1
s_add_u32 s{S_K1}, s{S_K1}, 44
s_lshl_b32 s{S_K1}, s{S_K1}, 10
s_lshl_b32 s{S_FQ}, s{S_K1}, 1
s_mul_i32 s{S_FB0}, s6, 288
s_add_u32 s{S_FB0}, s{S_FB0}, s{S_A}
s_lshl_b32 s{S_FB0}, s{S_FB0}, 10
s_add_u32 s{S_FB1}, s{S_FB0}, {144*1024}
s_mul_i32 s{S_FA}, s7, 144
s_add_u32 s{S_FA}, s{S_FA}, s{S_A}
s_lshl_b32 s{S_FA}, s{S_FA}, 11
s_add_u32 s{S_FA}, s{S_FA}, {W2T}
s_lshr_b32 s{S_A}, s{S_W}, 1
s_lshl_b32 s{S_A}, s{S_A}, 3
s_mul_i32 s{S_OA}, s7, 144
s_add_u32 s{S_OA}, s{S_OA}, s{S_A}
s_add_u32 s{S_OA}, s{S_OA}, 112
s_lshl_b32 s{S_OA}, s{S_OA}, 11
s_add_u32 s{S_OA}, s{S_OA}, {W2T}""")
    else:
        e("s_nop 9")
    NT = 32
    fq = []
    nq = 0
    dq = []
    fi = 0
    need = {}; keep = []; done = [0]
    for i in range(NT):
        sc = S0 + 16 * (i & 1); sn = S0 + 16 * ((i + 1) & 1)
        v0c = V0 + 4 * (i & 1); v0n = V0 + 4 * ((i + 1) & 1)
        E = lambda r: f"v_exp_f32 v{r}, v{r}"
        C = lambda d, r: f"v_cvt_pk_bf16_f32 v{d}, v{r}, v{r+1}"
        def g(k): return [E(sc + 4*k + q) for q in range(4)] + [C(PP + 2*k, sc + 4*k), C(PP + 2*k + 1, sc + 4*k + 2)]
        g0, g1, g2, g3 = g(0), g(1), g(2), g(3)
        fm = []; fl = []
        if withF:
            if i == FP - 2:
                assert FP % 4 == 2
                fl = [lambda: poll_issue(e, f"""s_lshl_b32 s6, s{S_RB}, 7
s_add_u32 s6, s6, {F_H + 64}
s_and_b32 s7, s{S_J}, 7
s_lshl_b32 s7, s7, 8
s_add_u32 s7, s7, {F_W - 64}
v_lshl_add_u32 v{G}, v0, 2, s6
v_lshl_add_u32 v{G+1}, v0, 2, s7
v_cmp_lt_u32 vcc, 15, v0
v_mov_b32 v{G+2}, s6
s_nop 0
v_cndmask_b32 v{G}, v{G}, v{G+1}, vcc
v_cmp_lt_u32 vcc, 51, v0
s_nop 1
v_cndmask_b32 v{G}, v{G}, v{G+2}, vcc""", G, G + 1, "hp")]
            if FP <= i < F0:
                if i == FP:
                    for q in range(NB - 1): fq += f_loads(e, q)
                n = -(-len(fq) // (F0 - i))
                fl = fq[:n]; fq = fq[n:]
            pb = []
            if i == HBP - 2:
                pb = [lambda: poll_issue(e, f"""s_lshl_b32 s6, s{S_RB}, 7
s_add_u32 s6, s6, {F_H}
v_and_b32 v{G}, 15, v0
v_lshl_add_u32 v{G}, v{G}, 2, s6""", G, G + 1, "hb")]
            if i >= F0:
                cnt = 3 if i >= F3 else 2
                idx = list(range(fi, min(fi + cnt, 56))); fi += len(idx)
                fm = [(n // 4, n % 4) for n in idx]
                for (q, k) in fm:
                    if k == 0 and q + NB - 1 < 14:
                        if q + NB - 1 == 6: assert i > HBP
                        nl = f_loads(e, q + NB - 1)
                        for f in nl: need[id(f)] = 4 * q
                        keep.extend(nl); fq += nl
                n = min(len(fq), cnt)
                fl = fq[:n] + pb; fq = fq[n:]
        def em(x): x() if callable(x) else e(x)
        e.stamp(f"xa{i}")
        ex = [E(sc + k) for k in range(16)]; cv = [C(PP + k, sc + 2 * k) for k in range(8)]
        if i + KVPRE <= 2: dq += kv_dma(e, i + KVPRE)
        misc = []
        if i == 29: misc.append(comb_addr())
        if withF and 31 - NOA <= i < 31: misc.append(oa_load(e, i - (31 - NOA)))
        gate = withF and i == FP
        def take(n):
            for _ in range(n):
                if fl and need.get(id(fl[0]), 0) <= done[0]: em(fl.pop(0))
        per = -(-len(fl) // 2)
        for x in ex[0:2]: em(x)
        def fmf(n):
            if n < len(fm):
                q, k = fm[n]
                e.wvm(f"f{q}"); e(f_mfma(q, k)); done[0] += 1
        if fm and fm[0][1] == 0: e.wboth(f"f{fm[0][0]}")
        else: e.all_ds()
        if i > 0: e(mfma(O, V1, PP + 4))
        rd(e, V1, i, 3, "c")
        for x in ex[2:5]: em(x)
        fmf(0)
        if not gate: take(1 if fm else per)
        for x in cv[0:2] + ex[5:7]: em(x)
        if i + 1 < NT: e(mfma(sn, K, Q, "0")); rd(e, v0n, i + 1, 2, "c")
        for x in ex[7:10]: em(x)
        if i + 1 < NT: e(mfma(sn, K + 4, Q + 4))
        if i % 4 == 2 and i + 2 < NT:
            st = i // 4
            if withF and i == FP: poll_check(e, G, G + 1, "hp")
            if withF and i == HBP: poll_check(e, G, G + 1, "hb")
            while dq and i == 2: dq.pop(0)()
            e.wvm(*([f"k{st+1}"] + (["hs"] if i == 2 else []))); e("s_barrier")
            if i == 2:
                flag_store(e, f"""s_lshl_b32 s6, s{S_RB}, 5
s_add_u32 s6, s6, s{S_J}
s_lshl_b32 s6, s6, 2
s_add_u32 s6, s6, {F_H}
v_mov_b32 v{G+2}, s6""", 1, G + 2)
            assert not dq
            if st + 3 <= 7: dq += kv_dma(e, st + 3)
        if i + 2 < NT: rd(e, K, i + 2, 0, "c"); rd(e, K + 4, i + 2, 1, "c")
        if dq and getattr(dq[0], "scalar", False): dq.pop(0)()
        for x in cv[2:4] + ex[10:12]: em(x)
        fmf(1)
        take(1 if fm else len(fl) if not gate else per)
        for x in ex[12:14] + cv[4:6]: em(x)
        e(mfma(O, v0c, PP, "0" if i == 0 else None))
        for _ in range(1 if i >= 2 else 2):
            if dq: dq.pop(0)()
        if len(fm) < 3: take(len(fl))
        for x in misc: em(x)
        for x in ex[14:16] + cv[6:7]: em(x)
        fmf(2); take(len(fl))
        fq = fl + fq
        em(cv[7])
        if i + 2 >= NT: e("s_nop 1")
    e.all_ds()
    e("s_nop 0")
    e(mfma(O, V1, PP + 4))
    return fi, fq

CMB = L_W2T
def comb_addr():
    T = G
    return f"""s_lshl_b32 s6, s{S_W}, 11
s_add_u32 s6, s6, {CMB}
v_add_u32 v{T}, s6, v{VL16}
v_xor_b32 v{T+1}, 8192, v{T}
s_lshl_b32 s6, s{S_W}, 8
s_add_u32 s6, s6, {CMB + 16384}
v_lshl_add_u32 v{T+2}, v0, 2, s6
v_or_b32 v{T+3}, 32, v0
s_lshl_b32 s6, s{S_QT}, 8
s_add_u32 s6, s6, {CMB + 16384}
v_lshl_add_u32 v{T+3}, v{T+3}, 2, s6
s_mov_b32 s{S_C}, {f2u(2.0 ** -64)}
s_mov_b32 s{S_D}, {f2u(2.0 ** 64)}"""

def attn_finish(e):
    T = G
    e.stamp("aend")
    hi = e.newlabel("chi"); jn = e.newlabel("cjn"); fb = e.newlabel("cfb"); bk = e.newlabel("cbk")
    e(f"s_cmp_eq_u32 s{S_KH}, 0\ns_nop 10")
    e.ds(f"ds_write_b32 v{T+2}, v{O+12}")
    e(f"s_cbranch_scc0 {hi}")
    e.ds(f"ds_write_b128 v{T}, {vr(O+8,4)}"); e.ds(f"ds_write_b128 v{T}, {vr(O+12,4)} offset:1024")
    e(f"s_branch {jn}")
    e.label(hi)
    e(f"ds_write_b128 v{T}, {vr(O,4)}\nds_write_b128 v{T}, {vr(O+4,4)} offset:1024")
    e.all_ds()
    for k in range(8): e(f"v_mov_b32 v{O+k}, v{O+8+k}")
    e.label(jn)
    e.all_ds()
    e.stamp("xc0")
    e("s_barrier")
    e.stamp("xc1")
    e.ds(f"ds_read2st64_b32 {vr(PP,2)}, v{T+3} offset0:0 offset1:4", "l")
    e.ds(f"ds_read_b128 {vr(S0,4)}, v{T+1}", "h0"); e.ds(f"ds_read_b128 {vr(S0+4,4)}, v{T+1} offset:1024", "h1")
    e(f"s_mov_b32 s{S_A}, 0\ns_sub_u32 s{S_B}, 0, s{S_KH}")
    e.wds("l")
    e(f"""v_add_f32 v{PP}, v{PP}, v{PP+1}
v_rcp_f32 v{PP+1}, v{PP}
v_cmp_nle_f32 vcc, s{S_C}, v{PP}
v_cmp_nge_f32 s[{S_E}:{S_F}], s{S_D}, v{PP}""")
    e.all_ds()
    for k in range(8): e(f"v_add_f32 v{S0+k}, v{S0+k}, v{O+k}")
    e(f"s_or_b64 s[{S_E}:{S_F}], s[{S_E}:{S_F}], vcc")
    for k in range(8): e(f"v_mul_f32 v{S0+k}, v{S0+k}, v{PP+1}")
    e(f"""v_add_f32 v{PP+2}, |v{S0}|, |v{S0+1}|
v_add_f32 v{PP+3}, |v{S0+2}|, |v{S0+3}|
v_add_f32 v{PP+4}, |v{S0+4}|, |v{S0+5}|
v_add_f32 v{PP+5}, |v{S0+6}|, |v{S0+7}|
v_add_f32 v{PP+2}, v{PP+2}, v{PP+3}
v_add_f32 v{PP+4}, v{PP+4}, v{PP+5}
s_mov_b32 s6, 0x7f7fffff
v_add_f32 v{PP+2}, v{PP+2}, v{PP+4}
v_cmp_nge_f32 vcc, s6, v{PP+2}
s_or_b64 vcc, vcc, s[{S_E}:{S_F}]""")
    if 'forcefb' in X: e("s_mov_b64 vcc, 1")
    e(f"s_cbranch_vccnz {fb}")
    e.label(bk)
    for k in range(4): e(f"v_cvt_pk_bf16_f32 v{K+k}, v{S0+2*k}, v{S0+2*k+1}")
    e(f"""v_cndmask_b32 v{K+2}, v{K+2}, 0, s[{S_A}:{S_B}]
v_cndmask_b32 v{K+3}, v{K+3}, 0, s[{S_A}:{S_B}]""")
    e.vm(f"buffer_store_dwordx4 {vr(K,4)}, v{VL16}, {WS}, s{S_OO} offen {SC}", "os")
    FALLBACKS.append((fb, bk))
    e.stamp("xc2")

FALLBACKS = []
def fallback(e, fb, bk):
    l1 = e.newlabel("fb1"); l2 = e.newlabel("fb2"); l3 = e.newlabel("fb3")
    M = PP + 7
    e.label(fb)
    e(f"s_mov_b32 s6, {KVF}\nv_mov_b32 v{M}, 0xff800000")
    e.label(l1)
    e(f"""buffer_load_dwordx4 {vr(K,4)}, v{VL16}, {WS}, s6 offen {SC}
buffer_load_dwordx4 {vr(K+4,4)}, v{VL16}, {WS}, s6 offen offset:1024 {SC}
s_add_u32 s6, s6, 4096
s_waitcnt vmcnt(0)""")
    e(mfma(S0, K, Q, "0")); e(mfma(S0, K + 4, Q + 4))
    e("s_nop 11")
    for k in range(8): e(f"v_max3_f32 v{M}, v{M}, v{S0+2*k}, v{S0+2*k+1}")
    e(f"""s_cmp_lt_u32 s6, {KVF + 64*4096}
s_cbranch_scc1 {l1}
v_mov_b32 v{PP}, v{M}
s_nop 1
v_permlane32_swap_b32 v{PP}, v{M}
v_max_f32 v{M}, v{M}, v{PP}
v_cvt_pk_bf16_f32 v{PP}, v{M}, v{M}
v_and_b32 v{PP}, s{S_MASK}, v{PP}
v_sub_f32 v{PP+1}, v{M}, v{PP}
v_cvt_pk_bf16_f32 v{PP+2}, v{PP+1}, v{PP+1}
v_and_b32 v{PP+2}, s{S_MASK}, v{PP+2}
v_sub_f32 v{PP+1}, v{PP+1}, v{PP+2}
v_cvt_pk_bf16_f32 v{PP}, -v{PP}, -v{PP+2}
v_cvt_pk_bf16_f32 v{PP+1}, -v{PP+1}, 0
v_cndmask_b32 v{Q+6}, v{Q+6}, v{PP}, s[{S_HI}:{S_HI+1}]
v_cndmask_b32 v{Q+7}, v{Q+7}, v{PP+1}, s[{S_HI}:{S_HI+1}]
s_mov_b32 s6, {KVF}""")
    for k in range(16): e(f"v_mov_b32 v{O+k}, 0")
    e.label(l2)
    for f in range(4): e(f"buffer_load_dwordx4 {vr(K+4*f,4)}, v{VL16}, {WS}, s6 offen offset:{1024*f} {SC}")
    e("s_add_u32 s6, s6, 4096\ns_waitcnt vmcnt(0)")
    e(mfma(S0, K, Q, "0")); e(mfma(S0, K + 4, Q + 4))
    e("s_nop 11")
    for k in range(16): e(f"v_exp_f32 v{S0+k}, v{S0+k}")
    e("s_nop 0")
    for k in range(8): e(f"v_cvt_pk_bf16_f32 v{PP+k}, v{S0+2*k}, v{S0+2*k+1}")
    e("s_nop 1")
    e(mfma(O, K + 8, PP)); e(mfma(O, K + 12, PP + 4))
    e(f"""s_cmp_lt_u32 s6, {KVF + 64*4096}
s_cbranch_scc1 {l2}
s_nop 11
v_mov_b32 v{PP}, v{O+12}
v_mov_b32 v{PP+1}, v{O+12}
s_cmp_eq_u32 s{S_KH}, 0
s_nop 0
v_permlane32_swap_b32 v{PP}, v{PP+1}
v_rcp_f32 v{PP+1}, v{PP+1}
s_cbranch_scc1 {l3}""")
    for k in range(8): e(f"v_mov_b32 v{O+k}, v{O+8+k}")
    e.label(l3)
    e("s_nop 0")
    for k in range(8): e(f"v_mul_f32 v{S0+k}, v{O+k}, v{PP+1}")
    e(f"s_branch {bk}")

def o_flag(e):
    e.stamp("xc3")
    e.wvm("os"); e.stamp("xc4"); e("s_barrier")
    flag_store(e, f"""s_lshl_b32 s6, s{S_RB}, 5
s_add_u32 s6, s6, s{S_J}
s_lshl_b32 s6, s6, 2
s_add_u32 s6, s6, {F_O}
v_mov_b32 v{G}, s6""", 1, G)

def tail(e, nq, fq):
    T = G
    OC, SUM = 64, 232
    OBR = [96 + 4 * k for k in range(7)] + [36]
    assert NOA >= 6
    AD = 248
    OA = lambda k: OAREG[k]
    for f in fq: f()
    for n in range(nq, 56):
        q, k = n // 4, n % 4
        if k == 0 and q + NB - 1 < 14:
            for f in f_loads(e, q + NB - 1): f()
        e.wvm(f"f{q}"); e(f_mfma(q, k))
    e(f"""v_and_b32 v{T}, 31, v0
v_lshrrev_b32 v{T+1}, 5, v0
v_and_b32 v{T+2}, 7, v0
v_xor_b32 v{T+1}, v{T+1}, v{T+2}
v_lshlrev_b32 v{T+1}, 4, v{T+1}
v_lshl_add_u32 v{T+3}, v{T}, 8, v{T+1}
s_lshl_b32 s6, s{S_W}, 14
v_add_u32 v{AD}, s6, v{T+3}""")
    for q in range(1, 4): e(f"v_xor_b32 v{AD+q}, {q*32}, v{AD}")
    dump = [(lambda r2=r2, d2=d2, q=q: e.ds(f"ds_write_b128 v{AD+q}, {vr(FA+32*r2+16*d2+4*q,4)} offset:{r2*8192 + d2*128}"))
            for (r2, d2) in ((0, 0), (0, 1), (1, 1), (1, 0)) for q in range(4)]
    setup = Side(e)
    setup.add(f"""s_lshr_b32 s6, s{S_J}, 3
s_lshl_b32 s7, s{S_RB}, 1
s_add_u32 s6, s6, s7
s_and_b32 s{S_B}, s{S_W}, 1
s_lshl_b32 s{S_C}, s6, 1
s_add_u32 s{S_C}, s{S_C}, s{S_B}
s_mul_i32 s{S_C}, s{S_C}, 144
s_lshr_b32 s{S_A}, s{S_W}, 1
s_lshl_b32 s{S_D}, s{S_A}, 3
s_add_u32 s{S_D}, s{S_D}, 112
s_add_u32 s{S_C}, s{S_C}, s{S_D}
s_lshl_b32 s{S_C}, s{S_C}, 10
s_and_b32 s7, s{S_J}, 7
s_add_u32 s{S_D}, s{S_C}, 4096
s_lshl_b32 s{S_A}, s{S_A}, 14
s_lshl_b32 s{S_B}, s{S_B}, 13
s_add_u32 s{S_G}, s{S_A}, s{S_B}
s_lshl_b32 s6, s6, 6
s_lshl_b32 s{S_B}, s{S_W}, 3
s_add_u32 s6, s6, s{S_B}
v_lshrrev_b32 v{T}, 3, v0
v_add_u32 v{T+1}, s6, v{T}
v_mul_u32_u24 v{T+1}, 896, v{T+1}
v_and_b32 v{T+2}, 7, v0
v_lshl_add_u32 v{T+1}, v{T+2}, 4, v{T+1}
s_lshl_b32 s7, s7, 7
v_add_u32 v{VO}, s7, v{T+1}
v_lshlrev_b32 v{T+2}, 1, v{T+2}
v_xor_b32 v{T+2}, v{T+2}, v{T}
v_lshlrev_b32 v{T+2}, 4, v{T+2}
v_lshl_add_u32 v{T}, v{T}, 8, v{T+2}
s_lshl_b32 s6, s{S_W}, 11
v_add_u32 v{AD+4}, s6, v{T}
v_xor_b32 v{AD+5}, 16, v{AD+4}
v_add_u32 v{AD+6}, 0x10000, v{AD+4}
v_add_u32 v{AD+7}, 0x10000, v{AD+5}""")
    nd1 = P("ND1", 5)
    oaq = [oa_load(e, k) for k in range(NOA, 16)]
    for f in dump[:nd1]:
        if oaq: oaq.pop(0)()
        f(); setup.emit(5)
    setup.flush()
    o_flag_regs = True
    e.stamp("xc3")
    e.wvm("os"); e.stamp("xc4"); e("s_barrier")
    flag_store(e, f"""s_lshl_b32 s6, s{S_RB}, 5
s_add_u32 s6, s6, s{S_J}
s_lshl_b32 s6, s6, 2
s_add_u32 s6, s6, {F_O}
v_mov_b32 v{T}, s6""", 1, T)
    e.vm(f"buffer_load_dwordx4 {vr(XRES,4)}, v{VO}, s[{SRD_X}:{SRD_X+3}], 0 offen", "xr")
    for f in dump[nd1:]:
        if oaq: oaq.pop(0)()
        f()
    for f in oaq: f()
    poll_issue(e, f"""s_lshl_b32 s6, s{S_RB}, 7
s_add_u32 s6, s6, {F_O}
v_and_b32 v{T}, 15, v0
v_lshl_add_u32 v{T}, v{T}, 2, s6""", T, T + 1, "op")
    srd(e, SRD_OUT, P_OUT, 2048 * 896)
    e(f"v_add_u32 v{AD}, s{S_G}, v{T+3}")
    e.wvm("xr")
    for k in range(4): e(f"v_lshlrev_b32 v{SUM+2*k}, 16, v{XRES+k}\nv_and_b32 v{SUM+1+2*k}, s{S_MASK}, v{XRES+k}")
    e.all_ds()
    for q in range(1, 4): e(f"v_xor_b32 v{AD+q}, {q*32}, v{AD}")
    def reduce_reads():
        for p in range(8):
            b0 = AD + 4 if p < 4 else AD + 6
            e.ds(f"ds_read_b128 {vr(FA+8*p,4)}, v{b0} offset:{(p&3)*16384}", f"p{p}")
            e.ds(f"ds_read_b128 {vr(FA+8*p+4,4)}, v{b0+1} offset:{(p&3)*16384}", f"p{p}")
        for p in range(8):
            e.wds(f"p{p}")
            for k in range(8): e(f"v_add_f32 v{SUM+k}, v{SUM+k}, v{FA+8*p+k}")
    early = P("EARLYRED", 1)
    if early: e("s_barrier"); reduce_reads()
    e.stamp("t1")
    poll_check(e, T, T + 1, "op")
    e("s_barrier")
    e.stamp("t2")
    for k in range(8):
        e.vm(f"buffer_load_dwordx4 {vr(OBR[k],4)}, v{VL16}, {WS}, s{S_C if k < 4 else S_D} offen offset:{(k&3)*1024} {SC}", f"ob{k}")
    if not early: reduce_reads(); e("s_barrier")
    for k in range(8):
        e.wvm(f"ob{k}")
        for d2 in range(2): e(mfma(OC + 16*d2, OA(2*k + d2), OBR[k], "0" if k == 0 else None))
    e("s_nop 10")
    e.stamp("t3")
    for d2 in range(2):
        for q in range(4): e.ds(f"ds_write_b128 v{AD+q}, {vr(OC+16*d2+4*q,4)} offset:{d2*128}")
    e.all_ds()
    e("s_barrier")
    for p in range(4):
        e.ds(f"ds_read_b128 {vr(FA+8*p,4)}, v{AD+4} offset:{p*16384}", f"s{p}")
        e.ds(f"ds_read_b128 {vr(FA+8*p+4,4)}, v{AD+5} offset:{p*16384}", f"s{p}")
    for p in range(4):
        e.wds(f"s{p}")
        for k in range(8): e(f"v_add_f32 v{SUM+k}, v{SUM+k}, v{FA+8*p+k}")
    for k in range(4): e(f"v_cvt_pk_bf16_f32 v{XRES+k}, v{SUM+2*k}, v{SUM+1+2*k}")
    e.vm(f"buffer_store_dwordx4 {vr(XRES,4)}, v{VO}, s[{SRD_OUT}:{SRD_OUT+3}], 0 offen {os.environ.get('OUTF', '')}")

def build():
    e = Em()
    kn = NAME + "_kernel"
    e.a.raw(f".globl {kn}\n.p2align 8\n.type {kn},@function")
    e.label(kn)
    prologue(e)
    gelu, h_off = phaseB(e)
    attn_setup(e, gelu, h_off)
    e(f"s_and_b32 s6, s{S_J}, 7\ns_cmp_eq_u32 s6, 7\ns_cbranch_scc1 C_noF")
    sn = e.snap(); ns = e.nst
    nq, fq = attn_loop(e, True)
    attn_finish(e)
    tail(e, nq, fq)
    nend = e.nst
    e("s_branch K_fin")
    e.label("C_noF")
    e.restore(sn); e.nst = ns
    attn_loop(e, False)
    attn_finish(e)
    o_flag(e)
    e(f"""s_cmp_eq_u32 s{S_RB}, 0
s_cbranch_scc0 C_noF_done
s_cmp_eq_u32 s{S_J}, 7
s_cbranch_scc0 C_noF_done
s_cmp_eq_u32 s{S_W}, 0
s_cbranch_scc0 C_noF_done""")
    for k in range(4):
        e(f"""v_lshrrev_b32 v{G}, 4, v0
v_and_b32 v{G+1}, 15, v0
v_lshlrev_b32 v{G}, 7, v{G}
v_lshl_add_u32 v{G}, v{G+1}, 2, v{G}
v_add_u32 v{G}, {F_H + 512*k}, v{G}""")
        e.vm(f"buffer_load_dword v{G+1}, v{G}, {WS}, 0 offen {SC}", f"ep{k}")
        poll_check(e, G, G + 1, f"ep{k}")
    e(f"v_mov_b32 v{G}, {EPO}\nv_mov_b32 v{G+1}, s{S_NON}\ns_mov_b64 exec, 1\nbuffer_store_dword v{G+1}, v{G}, {WS}, 0 offen {SC}\ns_mov_b64 exec, -1")
    e.label("C_noF_done")
    while e.nst < nend and not STAMPS_OFF: e.stamp()
    e.label("K_fin")
    if os.environ.get("AMPAT"):
        e("""s_waitcnt vmcnt(0)
s_memrealtime s[92:93]
s_waitcnt lgkmcnt(0)
s_sub_u32 s7, s94, s96
s_mul_i32 s7, s7, 10
K_amp:
s_sleep 1
s_memrealtime s[98:99]
s_waitcnt lgkmcnt(0)
s_sub_u32 s6, s98, s92
s_cmp_lt_u32 s6, s7
s_cbranch_scc1 K_amp""")
    if 'stdiag' in X:
        e("""s_memtime s[92:93]
s_waitcnt lgkmcnt(0)
K_sd:
s_sleep 2
s_memtime s[90:91]
s_waitcnt lgkmcnt(0)
s_sub_u32 s6, s90, s92
s_cmp_lt_u32 s6, s94
s_cbranch_scc1 K_sd""")
    if 'fix' in X:
        e("""K_fx:
s_sleep 1
s_memrealtime s[98:99]
s_waitcnt lgkmcnt(0)
s_sub_u32 s6, s98, s96
s_cmp_lt_u32 s6, 10000
s_cbranch_scc1 K_fx""")
    if 'amp' in X:
        e("""s_waitcnt vmcnt(0)
s_memrealtime s[98:99]
s_waitcnt lgkmcnt(0)
s_sub_u32 s7, s98, s96
s_mul_i32 s7, s7, 10
K_fx:
s_sleep 1
s_memrealtime s[98:99]
s_waitcnt lgkmcnt(0)
s_sub_u32 s6, s98, s96
s_cmp_lt_u32 s6, s7
s_cbranch_scc1 K_fx""")
    if STAMPS:
        e.stamp()
        e.label("K_fin2")
        e("s_memrealtime s[98:99]\ns_waitcnt lgkmcnt(0) vmcnt(0)")
        e(f"""s_mov_b32 s40, s{P_WS}
s_mov_b32 s41, s{P_WS+1}
s_mov_b32 s42, 0x10000000
s_mov_b32 s43, 0x00020000
s_lshl_b32 s6, s2, 3
s_add_u32 s6, s6, s{S_W}
s_lshl_b32 s6, s6, 6
s_add_u32 s6, s6, {STAMP_WS}
v_mov_b32 v2, s96
v_mov_b32 v3, s98""")
        for k in range(10): e(f"v_mov_b32 v{4+k}, {'s%d' % (76+2*k) if k < e.nst else 0}")
        e("v_mov_b32 v1, 0\ns_mov_b64 exec, 1")
        for q in range(3): e(f"buffer_store_dwordx4 v[{2+4*q}:{5+4*q}], v1, s[40:43], s6 offen offset:{16*q}")
    e("s_endpgm")
    for fb, bk in FALLBACKS: fallback(e, fb, bk)
    e.label("K_end")
    e("s_endpgm")
    probs = check_hazards(e.a.lines, "k")
    hdr = open("cdna_kernels/" + NAME + ".s.ref").read().split("; Override launch")[0]
    out = hdr + f"; @launch grid=(256,1,1) block=(512,1,1) lds={LDS_BYTES}\n"
    out += '.amdgcn_target "amdgcn-amd-amdhsa--gfx950"\n.text\n' + e.a.text()
    out += f""".section .rodata,"a"
.p2align 6
.amdhsa_kernel {kn}
  .amdhsa_next_free_vgpr 256
  .amdhsa_next_free_sgpr 102
  .amdhsa_accum_offset 256
  .amdhsa_group_segment_fixed_size 0
  .amdhsa_kernarg_size 96
  .amdhsa_user_sgpr_count 2
  .amdhsa_user_sgpr_kernarg_segment_ptr 1
  .amdhsa_system_sgpr_workgroup_id_x 1
  .amdhsa_float_denorm_mode_32 3
.end_amdhsa_kernel
"""
    return out, probs

if __name__ == "__main__":
    out, probs = build()
    for p in probs: print("HAZARD", p, file=sys.stderr)
    open(sys.argv[1] if len(sys.argv) > 1 else "cdna_kernels/" + NAME + ".s", "w").write(out)
```

```python
import sys, os, math, struct
from asmlib import *
X = set(os.environ.get('XFLAGS', '').split(','))
def P(name, default): return int(os.environ.get(name, default))
NAME = "parallel_sum__grouped_kv_mqa__glu_gated_geglu__prompt"
def f2u(x): return struct.unpack("<I", struct.pack("<f", x))[0]

A2F = 0
W2T = 64 * 144 * 1024
QF  = W2T + 7 * 144 * 2048
KVF = QF + 64 * 16 * 2048
FLG = KVF + 64 * 4096
RKV = P("RKV", 16)
F_W  = FLG
F_H  = FLG + 2048
F_O  = FLG + 4096
EPO  = FLG + 6144
F_KV = FLG + 8192
STAT = F_KV + 256 * RKV
WS_END = STAT + 2048 * 8
OOB = 0x7ffffff0
P_X, P_WQ, P_WK, P_WV, P_WO, P_BX, P_WG, P_WU, P_WD, P_OUT, P_DBG, P_WS = 8, 10, 12, 14, 16, 18, 20, 22, 24, 26, 28, 30
SRD_X, SRD_WS, SRD_T, SRD_PC = 32, 36, 40, 44
SRD_OUT = SRD_T
S_W, S_RB, S_J = 3, 4, 5
(S_WB, S_MASK, S_XO, S_XO2, S_RT, S_CG, S_MUL, S_T0, S_T1, S_U, S_NON, S_LA, S_LB, S_TO, S_QU) = range(48, 63)
S_HI = 64
S_A, S_B, S_C, S_D, S_E, S_F = 66, 67, 68, 69, 70, 71
S_G, S_H2 = 72, 73
S_CNT = 74
WS = f"s[{SRD_WS}:{SRD_WS+3}]"
SC = "sc1"
STAMPS = bool(os.environ.get("STAMPS"))
STAMP_WS = 200 * 1024 * 1024
SPIN_MAX = 1 << 18
STAMPS_OFF = False

class Em:
    def __init__(s):
        s.a = Asm(); s.q = {'ds': [], 'vm': []}; s.done = {'ds': 0, 'vm': 0}; s.nst = 0; s.uid = 0
    def __call__(s, t): s.a(t)
    def label(s, l): s.a.label(l)
    def ds(s, ins, tag=None): s.a(ins); s.q['ds'].append(tag)
    def vm(s, ins, tag=None): s.a(ins); s.q['vm'].append(tag)
    def _n(s, k, tags, cap):
        idx = -1
        for t in tags:
            ii = [i for i, x in enumerate(s.q[k]) if x == t]
            if not ii and 'nodma' in X: continue
            assert ii, f"tag {t} never issued"
            idx = max(idx, ii[-1])
        if idx < s.done[k]: return None
        n = min(len(s.q[k]) - 1 - idx, cap)
        s.done[k] = len(s.q[k]) - n
        return n
    def wds(s, *tags):
        n = s._n('ds', tags, 15)
        if n is not None: s.a(f"s_waitcnt lgkmcnt({n})")
    def wvm(s, *tags):
        n = s._n('vm', tags, 63)
        if n is not None: s.a(f"s_waitcnt vmcnt({n})")
    def wboth(s, *tags):
        n = s._n('vm', tags, 63)
        s.a("s_waitcnt lgkmcnt(0)" if n is None else f"s_waitcnt vmcnt({n}) lgkmcnt(0)"); s.done['ds'] = len(s.q['ds'])
    def all_ds(s): s.a("s_waitcnt lgkmcnt(0)"); s.done['ds'] = len(s.q['ds'])
    def all_vm(s): s.a("s_waitcnt vmcnt(0)"); s.done['vm'] = len(s.q['vm'])
    def snap(s): return ({k: list(v) for k, v in s.q.items()}, dict(s.done))
    def restore(s, sn): s.q = {k: list(v) for k, v in sn[0].items()}; s.done = dict(sn[1])
    def stamp(s, name=None):
        if name is not None and name == os.environ.get("AMPAT"):
            s.a("s_memrealtime s[94:95]"); s.all_ds()
        sel = os.environ.get("STSEL")
        if sel is not None and name is not None and name not in sel.split(","): return
        if sel is None and name is not None and name.startswith("x"): return
        if STAMPS and not STAMPS_OFF:
            assert s.nst < 10
            s.a(f"{'s_memrealtime' if os.environ.get('RT') else 's_memtime'} s[{76+2*s.nst}:{77+2*s.nst}]"); s.nst += 1
            s.all_ds()
    def newlabel(s, p): s.uid += 1; return f"{p}_{s.uid}"

def srd(e, d, p, nbytes):
    e(f"s_mov_b32 s{d}, s{p}\ns_mov_b32 s{d+1}, s{p+1}\ns_mov_b32 s{d+2}, {nbytes}\ns_mov_b32 s{d+3}, 0x00020000")
def mfma(d, A, B, C=None):
    return f"v_mfma_f32_32x32x16_bf16 {vr(d,16)}, {vr(A,4)}, {vr(B,4)}, {vr(d,16) if C is None else C}"
def mfma16(d, A, B, C=None):
    return f"v_mfma_f32_16x16x32_bf16 {vr(d,4)}, {vr(A,4)}, {vr(B,4)}, {vr(d,4) if C is None else C}"

class Side:
    def __init__(s, e): s.e = e; s.q = []
    def add(s, items):
        if isinstance(items, str):
            raw = [l.strip() for l in items.strip().split("\n") if l.strip()]
            items = []
            for l in raw:
                if l.startswith("s_cselect"): items[-1] += "\n" + l
                else: items.append(l)
        s.q += list(items)
    def emit(s, n):
        while n > 0 and s.q:
            it = s.q.pop(0)
            if callable(it): it()
            else: s.e(it)
            n -= 1
    def flush(s): s.emit(1 << 30)

def flag_store(e, addr_lines, nlanes, vt):
    l = e.newlabel("fl")
    e(f"s_cmp_eq_u32 s{S_W}, 0\ns_cbranch_scc0 {l}")
    e(addr_lines)
    e(f"v_mov_b32 v{vt+1}, s{S_NON}\ns_mov_b64 exec, {(1 << nlanes) - 1}\nbuffer_store_dword v{vt+1}, v{vt}, {WS}, 0 offen {SC}\ns_mov_b64 exec, -1")
    e.label(l)

def poll_issue(e, addr_lines, vaddr, vdat, tag):
    e(addr_lines)
    e(f"s_cmp_eq_u32 s{S_W}, 0\ns_cselect_b32 s6, 0, {OOB}\nv_or_b32 v{vaddr}, s6, v{vaddr}")
    e.vm(f"buffer_load_dword v{vdat}, v{vaddr}, {WS}, 0 offen {SC}", tag)

def poll_check(e, vaddr, vdat, tag):
    ok = e.newlabel("pok"); sp = e.newlabel("psp")
    e(f"s_cmp_eq_u32 s{S_W}, 0\ns_cbranch_scc0 {ok}")
    dn = dict(e.done); e.wvm(tag); e.done = dn
    e(f"v_cmp_ne_u32 vcc, s{S_NON}, v{vdat}\ns_cbranch_vccz {ok}\ns_mov_b32 s{S_CNT}, {SPIN_MAX}")
    e.label(sp)
    e(f"""s_sleep {P('SLEEP', 4)}
buffer_load_dword v{vdat}, v{vaddr}, {WS}, 0 offen {SC}
s_sub_u32 s{S_CNT}, s{S_CNT}, 1
s_waitcnt vmcnt(0)
v_cmp_ne_u32 vcc, s{S_NON}, v{vdat}
s_cmp_eq_u32 s{S_CNT}, 0
s_cbranch_scc1 {ok}
s_cbranch_vccnz {sp}""")
    e.label(ok)

RING = 32768
L_W2T = 131072
L_CSA = L_W2T + 8192
L_CSB = L_CSA + 2048
L_ST  = L_CSB + 2048
L_KVB = L_ST + 4096
L_FLG = L_KVB + 4096
LDS_BYTES = L_FLG + 256

VL16, VT, VX, GA, GS = 1, 2, 3, 4, 6
XA, WA = 8, 12
ST, SEL, CSA, WF, TM = 20, 24, 28, 36, 60
ACCA, ACCB, XR, G = 64, 96, 128, 240
SQA, SQB, TP = 60, 240, 248
WB, GB, PL = 250, 102, 252
R_, S_, AC, BC, I2 = 8, 9, 10, 11, 3
BEXT = 60


TA, TS, TX, TD = 96, 98, 99, 100
S_ISQ, S_SH = 63, 75
RW = 104
def w_source(row, c, dst, gs, t0):
    return f"""v_cmp_le_u32 vcc, s{S_A}, v{c}
v_mul_lo_u32 v{dst}, v{row}, s{S_B}
v_lshl_add_u32 v{dst}, v{c}, 4, v{dst}
v_add_u32 v{dst}, s{S_C}, v{dst}
v_subrev_u32 v{c}, s{S_A}, v{c}
v_lshlrev_b32 v{c}, s{S_G}, v{c}
v_mul_lo_u32 v{t0}, v{row}, s{S_D}
v_add3_u32 v{t0}, v{t0}, v{c}, s{S_H2}
v_cndmask_b32 v{dst}, v{dst}, v{t0}, vcc
v_mov_b32 v{gs}, s{S_B}
v_mov_b32 v{t0}, s{S_D}
v_cndmask_b32 v{gs}, v{gs}, v{t0}, vcc
v_lshlrev_b32 v{gs}, 5, v{gs}"""

ROTS = {0: [0]*8, 1: [0, 3, 2, 5, 4, 0, 6, 2], 2: [0, 3, 3, 0, 0, 3, 3, 0], 3: [0, 1, 2, 3, 4, 5, 6, 0], 4: [0, 4, 1, 5, 2, 6, 3, 0]}
ROTTAB = sum(v << (4 * i) for i, v in enumerate(ROTS[P("ROT", 0)]))
S_ROT = 47
S_WF = 46
RPAR, RBIT = P("RPAR", 0), P("RBIT", 0)
RPARCODE = "" if not RPAR else f"""
s_lshr_b32 s{S_F}, s2, 3
s_lshr_b32 s{S_T0}, s2, 6
s_xor_b32 s{S_F}, s{S_F}, s{S_T0}
s_and_b32 s{S_F}, s{S_F}, {RBIT or 1}
s_mul_i32 s{S_F}, s{S_F}, {RPAR}
s_add_u32 s{S_XO}, s{S_XO}, s{S_F}
s_cmp_ge_u32 s{S_XO}, 7
s_cselect_b32 s{S_F}, 7, 0
s_sub_u32 s{S_XO}, s{S_XO}, s{S_F}"""
def prologue(e):
    T = TM
    ROTCODE = f"""s_and_b32 s{S_XO}, s2, 7
s_lshl_b32 s{S_XO}, s{S_XO}, 2
s_lshr_b32 s{S_XO}, {ROTTAB:#x}, s{S_XO}
s_and_b32 s{S_XO}, s{S_XO}, 7{RPARCODE}
s_mov_b32 s{S_ROT}, s{S_XO}
s_lshl_b32 s{S_F}, s{S_XO}, 6
s_lshl_b32 s{S_XO}, s{S_XO}, 7
v_add_u32 v{T+2}, s{S_F}, v{T+2}
""" if any(ROTS[P('ROT', 0)]) or RPAR else f"s_mov_b32 s{S_ROT}, 0\n"
    e(f"s_cmp_ge_u32 s2, 256\ns_cbranch_scc1 K_end")
    if STAMPS or 'fix' in X or 'amp' in X or os.environ.get("AMPAT"): e("s_memrealtime s[96:97]")
    e.stamp()
    e("s_load_dwordx16 s[8:23], s[0:1], 0\ns_load_dwordx8 s[24:31], s[0:1], 64")
    e(f"s_getpc_b64 s[{SRD_PC}:{SRD_PC+1}]")
    e.label("K_pc")
    e(f"""s_mov_b32 s{SRD_PC+2}, K_end-K_pc
s_mov_b32 s{SRD_PC+3}, 0x00020000
v_lshlrev_b32 v1, 7, v0""")
    e.vm(f"buffer_load_dword v{TD}, v1, s[{SRD_PC}:{SRD_PC+3}], 0 offen")
    T = TM
    e(f"""v_lshrrev_b32 v1, 6, v0
v_and_b32 v0, 63, v0
v_readfirstlane_b32 s{S_W}, v1""")
    if GT:
        e(f"""s_lshl_b32 s{S_TG}, s2, 3
s_add_u32 s{S_TG}, s{S_TG}, s{S_W}
s_min_u32 s6, s{S_TG}, 1393
s_cmp_ge_u32 s6, 448
s_cselect_b32 s7, 56, 48
s_cselect_b32 s{S_A}, 448, 0
s_mov_b32 s{S_D}, {448*3584}
s_cmp_ge_u32 s6, 896
s_cselect_b32 s7, 8, s7
s_cselect_b32 s{S_A}, 896, s{S_A}
s_cselect_b32 s{S_B}, 6, 11
s_cselect_b32 s{S_C}, 7, 28
s_cselect_b32 s{S_D}, {448*896}, s{S_D}
s_cmp_ge_u32 s6, 1344
s_cselect_b32 s7, 16, s7
s_cselect_b32 s{S_A}, 1344, s{S_A}
s_cselect_b32 s{S_B}, 7, s{S_B}
s_cselect_b32 s{S_C}, 8, s{S_C}
s_cselect_b32 s{S_D}, {448*56}, s{S_D}
s_cmp_ge_u32 s6, 1369
s_cselect_b32 s7, 24, s7
s_cselect_b32 s{S_A}, 1369, s{S_A}
s_load_dwordx2 s[{SRD_T}:{SRD_T+1}], s[0:1], s7
s_mov_b32 s{SRD_T+2}, s{S_D}
s_mov_b32 s{SRD_T+3}, 0x00020000
s_sub_u32 s6, s6, s{S_A}
s_mul_i32 s6, s6, s{S_C}
v_min_u32 v{TA}, s{S_B}, v0
v_add_u32 v{TA}, s6, v{TA}
v_lshlrev_b32 v{TA}, 7, v{TA}
s_mul_i32 s6, s{S_TG}, 896
v_lshl_add_u32 v{TX}, v0, 4, s6
v_cmp_lt_u32 vcc, 55, v0
v_mov_b32 v{TX+2}, {OOB}
s_nop 0
v_cndmask_b32 v{TX}, v{TX}, v{TX+2}, vcc""")
    e(f"""
s_bfe_u32 s{S_RB}, s2, 0x20001
s_lshl_b32 s{S_RB}, s{S_RB}, 2
s_lshr_b32 s6, s2, 6
s_add_u32 s{S_RB}, s{S_RB}, s6
s_and_b32 s{S_J}, s2, 1
s_lshl_b32 s{S_J}, s{S_J}, 3
s_bfe_u32 s7, s2, 0x30003
s_add_u32 s{S_J}, s{S_J}, s7
s_lshr_b32 s{S_QU}, s{S_J}, 2
s_sub_u32 s{S_LA}, s{S_J}, s{S_QU}
s_lshl_b32 s{S_WB}, s{S_W}, 10
s_lshl_b32 s{S_C}, s{S_LA}, 7
s_mul_i32 s{S_E}, s{S_QU}, 224
s_and_b32 s{S_F}, s{S_QU}, 1
s_sub_u32 s{S_G}, 4, s{S_F}
s_lshl_b32 s{S_F}, s{S_F}, 5
s_movk_i32 s{S_D}, 3584
s_and_b32 s{S_ISQ}, s{S_J}, 3
s_cmp_eq_u32 s{S_ISQ}, 3
s_cselect_b32 s{S_ISQ}, 1, 0
s_cselect_b32 s{S_A}, 14, 8
s_cselect_b32 s{S_B}, 896, s{S_D}
s_cselect_b32 s{S_D}, 56, s{S_D}
s_cselect_b32 s{S_H2}, s{S_F}, s{S_C}
s_cselect_b32 s{S_C}, s{S_E}, s{S_C}
s_cselect_b32 s{S_G}, s{S_G}, 4
s_add_u32 s{S_SH}, s{S_ISQ}, 1
s_lshl_b32 s{S_E}, s{S_RB}, 7
s_lshl_b32 s{S_F}, s{S_W}, 3
s_add_u32 s{S_F}, s{S_F}, s{S_E}
v_lshrrev_b32 v{T}, 3, v0
v_add_u32 v{T}, s{S_F}, v{T}
v_mul_u32_u24 v{T}, 896, v{T}
s_lshl_b32 s{S_F}, s{S_W}, 2
v_lshrrev_b32 v{T+1}, 4, v0
v_add_u32 v{T+2}, s{S_F}, v{T+1}
v_xor_b32 v{T+3}, v{T+2}, v0
v_and_b32 v{T+3}, 7, v{T+3}
v_lshl_add_u32 v{VX}, v{T+3}, 4, v{T}
{ROTCODE}v_lshlrev_b32 v{T+1}, s{S_SH}, v{T+1}
v_xor_b32 v{T+1}, v{T+1}, v0
v_and_b32 v{T+1}, 15, v{T+1}""")
    e(w_source(T + 2, T + 1, G, GS, T))
    e(f"s_mov_b64 s[{S_HI}:{S_HI+1}], vcc")
    if TOUCH:
        e(f"""s_and_b32 s6, s6, 3
s_lshl_b32 s6, s6, 3
s_add_u32 s6, s6, s{S_W}
s_lshl_b32 s6, s6, 1
s_lshl_b32 s7, s7, 3
s_add_u32 s7, s7, s{S_W}
s_lshl_b32 s7, s7, 1
s_add_u32 s7, s7, s{S_E}
v_bfe_u32 v{T+2}, v0, 3, 1
v_bfe_u32 v{T+1}, v0, 2, 1
v_lshl_add_u32 v{T+2}, v{T+2}, 6, v{T+1}
v_add_u32 v{T+2}, s6, v{T+2}
v_and_b32 v{T+1}, 3, v0
v_lshlrev_b32 v{T+1}, 2, v{T+1}
v_lshrrev_b32 v{T+1}, v{T+1}, s{S_MASK}
v_and_b32 v{T+1}, 15, v{T+1}
v_and_b32 v{T}, 1, v0
v_add_u32 v{T}, s7, v{T}
v_mul_u32_u24 v{TX}, 896, v{T}
v_bfe_u32 v{T}, v0, 1, 1
v_lshl_add_u32 v{TX}, v{T}, 7, v{TX}""".replace(f"v_lshrrev_b32 v{T+1}, v{T+1}, s{S_MASK}", f"s_movk_i32 s6, 0xed80\nv_lshrrev_b32 v{T+1}, v{T+1}, s6"))
        e(w_source(T + 2, T + 1, G + 1, TS, T))
    e("s_waitcnt lgkmcnt(0)")
    e.stamp("xs0")
    if 'stdiag' in X:
        e(f"""s_mov_b32 s40, s{P_WS}
s_mov_b32 s41, s{P_WS+1}
s_mov_b32 s42, 0x10000000
s_mov_b32 s43, 0x00020000
s_lshl_b32 s90, s2, 3
s_add_u32 s90, s90, s{S_W}
s_lshl_b32 s90, s90, 10
s_add_u32 s90, s90, {P('DOFF', 100) * 1024 * 1024}
v_lshlrev_b32 v110, 4, v0
buffer_store_dwordx4 v[112:115], v110, s[40:43], s90 offen sc1
s_waitcnt vmcnt(0)
s_add_u32 s90, s90, 0x200000
s_barrier
s_memtime s[92:93]
s_waitcnt lgkmcnt(0)
buffer_store_dwordx4 v[112:115], v110, s[40:43], s90 offen sc1
s_waitcnt vmcnt(0)
s_barrier
s_memtime s[94:95]
s_waitcnt lgkmcnt(0)
s_sub_u32 s94, s94, s92
s_mul_i32 s94, s94, 100""")
    srd(e, SRD_X, P_X, 2048 * 896)
    e(f"""s_cmp_lt_u32 s{S_QU}, 2
s_cselect_b32 s{S_C}, s{P_WK}, s{P_WV}
s_cselect_b32 s{S_D}, s{P_WK+1}, s{P_WV+1}
s_cmp_eq_u32 s{S_ISQ}, 1
s_cselect_b32 s{S_A}, s{P_WQ}, s{P_WG}
s_cselect_b32 s{S_B}, s{P_WQ+1}, s{P_WG+1}
s_cselect_b32 s{S_C}, s{S_C}, s{P_WU}
s_cselect_b32 s{S_D}, s{S_D}, s{P_WU+1}
v_mov_b32 v{T}, s{S_A}
v_mov_b32 v{T+1}, s{S_B}
v_mov_b32 v{T+2}, s{S_C}
v_mov_b32 v{T+3}, s{S_D}""")
    if TOUCH:
        e(f"""v_cndmask_b32 v{TA}, v{T}, v{T+2}, vcc
v_cndmask_b32 v{TA+1}, v{T+1}, v{T+3}, vcc
v_add_co_u32 v{TA}, vcc, v{TA}, v{G+1}
v_cndmask_b32 v{GA}, v{T}, v{T+2}, s[{S_HI}:{S_HI+1}]
v_cndmask_b32 v{GA+1}, v{T+1}, v{T+3}, s[{S_HI}:{S_HI+1}]
v_addc_co_u32 v{TA+1}, vcc, 0, v{TA+1}, vcc""")
        touch(e, 0)()
    else:
        e(f"""v_cndmask_b32 v{GA}, v{T}, v{T+2}, s[{S_HI}:{S_HI+1}]
v_cndmask_b32 v{GA+1}, v{T+1}, v{T+3}, s[{S_HI}:{S_HI+1}]""")
    e(f"v_add_co_u32 v{GA}, vcc, v{GA}, v{G}\nv_mov_b32 v{GS+1}, 0")
    if GT:
        e.vm(f"buffer_load_dwordx4 {vr(RW,4)}, v{TX}, s[{SRD_X}:{SRD_X+3}], 0 offen", "row")
        if GT & 2: e.vm(f"buffer_load_dword v{TD}, v{TA}, s[{SRD_T}:{SRD_T+3}], 0 offen", "t")
    if 'gonly' in X: e.all_vm(); e.stamp()
    dma_x(e, 0, 0)()
    e(f"v_addc_co_u32 v{GA+1}, vcc, 0, v{GA+1}, vcc")

TOUCH = P("TOUCH", 0)
GT = P("GT", 3)
ROT = P("ROT", 0)
LDX = os.environ.get("LDX", ""); LDW = os.environ.get("LDW", ""); LDT = os.environ.get("LDT", "")
def touch(e, k):
    def f():
        st = (0, 2, 4, 5)[k]
        e.vm(f"global_load_dword v{TD}, {vr(TA,2)}, off", f"t{k}")
        e(f"s_movk_i32 s{S_XO2}, {st * 128}")
        e.vm(f"buffer_load_dword v{TD}, v{TX}, s[{SRD_X}:{SRD_X+3}], s{S_XO2} offen", f"t{k}")
        if k < 3: e(f"v_mad_u64_u32 {vr(TA,2)}, s[{S_E}:{S_E+1}], v{TS}, {4 if k < 2 else 2}, {vr(TA,2)}")
    return f
S_TG, S_TS = 61, 57
def gtouch(e, st):
    def f():
        e(f"s_mul_i32 s{S_XO2}, s{S_TS}, {st}")
        e.vm(f"buffer_load_dword v{TD}, v{TA}, s[{SRD_PC}:{SRD_PC+3}], s{S_XO2} offen {LDT}", "t")
        e(f"s_movk_i32 s{S_XO2}, {st * 128}")
        e.vm(f"buffer_load_dword v{TD}, v{TX}, s[{SRD_X}:{SRD_X+3}], s{S_XO2} offen {LDT}", "t")
    return f
def dma_x(e, sig, i):
    def f():
        e(f"s_add_u32 m0, s{S_WB}, {(sig % 4) * RING + i * 8192}")
        if i == 0: e("s_nop 0"); so = S_XO
        else: e(f"s_add_u32 s{S_XO2}, s{S_XO}, {64*896}"); so = S_XO2
        e.vm(f"buffer_load_dwordx4 v{VX}, s[{SRD_X}:{SRD_X+3}], s{so} offen {LDX} lds", f"d{sig}")
    return f
def dma_w(e, sig, off, i, first=False):
    def f():
        if i == 0 and not first:
            e(f"s_add_u32 s{S_XO}, s{S_XO}, 128\ns_cmp_eq_u32 s{S_XO}, 896\ns_cselect_b32 s{S_XO}, 0, s{S_XO}\ns_cselect_b32 s{S_MUL}, -13, 1")
        e(f"s_add_u32 m0, s{S_WB}, {(sig % 4) * RING + off + i * 8192}")
        if first == 2: e(f"s_add_u32 s{S_XO}, s{S_XO}, 128\ns_cmp_eq_u32 s{S_XO}, 896\ns_cselect_b32 s{S_XO}, 0, s{S_XO}")
        elif first: e("s_nop 0")
        elif i == 0: e(f"v_mad_i64_i32 {vr(GA,2)}, s[{S_E}:{S_E+1}], v{GS}, s{S_MUL}, {vr(GA,2)}")
        else: e(f"v_lshl_add_u64 {vr(GA,2)}, {vr(GS,2)}, 0, {vr(GA,2)}")
        e.vm(f"global_load_lds_dwordx4 {vr(GA,2)}, off {LDW}", f"d{sig}")
    return f
if not any(ROTS[P("ROT", 0)]) and not RPAR:
    def dma_x(e, sig, i):
        def f():
            e(f"s_add_u32 m0, s{S_WB}, {(sig % 4) * RING + i * 8192}\ns_mov_b32 s{S_XO}, {sig * 128 + i * 64 * 896}")
            e.vm(f"buffer_load_dwordx4 v{VX}, s[{SRD_X}:{SRD_X+3}], s{S_XO} offen {LDX} lds", f"d{sig}")
        return f
    def dma_w(e, sig, off, i, first=False):
        def f():
            e(f"s_add_u32 m0, s{S_WB}, {(sig % 4) * RING + off + i * 8192}")
            e("s_nop 0" if first else f"v_lshl_add_u64 {vr(GA,2)}, {vr(GS,2)}, 0, {vr(GA,2)}")
            e.vm(f"global_load_lds_dwordx4 {vr(GA,2)}, off {LDW}", f"d{sig}")
        return f
def stage_dmas(e, sig):
    if 'nodma' in X and 2 <= sig: return [(lambda: e.q['vm'].append(f'd{sig}') or e.q['vm'].pop() if False else None)] if False else [lambda: None]
    if sig == 0: return [dma_x(e, sig, 0), dma_w(e, sig, 16384, 0, True), dma_x(e, sig, 1), dma_w(e, sig, 16384, 1)]
    if sig < 7: return [dma_w(e, sig, 16384, 0), dma_x(e, sig, 0), dma_w(e, sig, 16384, 1), dma_x(e, sig, 1)]
    l = []
    if sig == 7: l.append(lambda: e(f"v_mov_b32 v{GA}, v{GB}\nv_mov_b32 v{GA+1}, v{GB+1}\nv_mov_b32 v{GS}, {32*3584}"))
    l += [dma_w(e, sig, 0, 0, 2 if sig == 7 else False), dma_w(e, sig, 0, 1)]
    if sig < 10: l += [dma_w(e, sig, 16384, 0), dma_w(e, sig, 16384, 1)]
    return l

def phaseB(e):
    T = TM
    for f in stage_dmas(e, 0)[1:]: f()
    if 'arr' in X:
        order = os.environ.get("ARR", "D1 D2 W0 D3 W1 D4 W2 D5 W3 D6 W4 W5 W6").split()
        for it in order:
            k = int(it[1:])
            if it[0] == 'D':
                for f in stage_dmas(e, k): f()
            elif it[0] == 'T': touch(e, k)()
            elif it[0] == 'G': gtouch(e, k)()
            elif it[0] == 'A': e.all_vm(); e.stamp()
            else: e.wvm(f"d{k}"); e("s_barrier"); e.stamp()
        srd(e, SRD_WS, P_WS, WS_END)
        e.stamp()
        e("s_branch K_fin2")
        global STAMPS_OFF; STAMPS_OFF = True
    e.stamp("xs2")
    e(f"s_mov_b32 s6, {EPO}\ns_load_dword s{S_NON}, s[{P_WS}:{P_WS+1}], s6")
    if TOUCH == 2: touch(e, 1)()
    for f in stage_dmas(e, 1): f()
    if TOUCH == 1: touch(e, 1)()
    e.stamp("xs3")
    e(f"""s_and_b32 s{S_RT}, s{S_W}, 3
s_lshr_b32 s{S_CG}, s{S_W}, 2
s_lshl_b32 s{S_T0}, s{S_CG}, 1
s_add_u32 s{S_T1}, s{S_T0}, 1
s_xor_b32 s{S_A}, s{S_RT}, s{S_CG}
s_mov_b32 s{S_MASK}, 0xffff0000
s_mov_b32 s{S_HI}, 0
s_mov_b32 s{S_HI+1}, -1
v_lshlrev_b32 v{VL16}, 4, v0
v_and_b32 v{T}, 31, v0
v_lshrrev_b32 v{T+1}, 5, v0
v_bfe_u32 v{T+2}, v0, 1, 3
v_xor_b32 v{T+2}, v{T+2}, v{T+1}
v_lshlrev_b32 v{T+2}, 4, v{T+2}
v_lshl_add_u32 v{T+2}, v{T}, 7, v{T+2}
s_lshl_b32 s6, s{S_RT}, 12
s_lshl_b32 s{S_B}, s{S_A}, 5
s_or_b32 s6, s6, s{S_B}
v_xor_b32 v{XA}, s6, v{T+2}""")
    for pos in range(1, 4): e(f"v_xor_b32 v{XA+pos}, {pos<<5}, v{XA}")
    e(f"""v_bfe_u32 v{G+1}, v0, 2, 2
v_lshl_add_u32 v{WB}, v{T+1}, 3, v{G+1}
v_lshlrev_b32 v{WB}, 8, v{WB}
s_lshl_b32 s{S_A}, s{S_A}, 12
v_add_u32 v{WB}, s{S_A}, v{WB}
s_cmp_eq_u32 s{S_ISQ}, 1
s_cselect_b32 s{S_A}, 56, 32
s_cselect_b32 s{S_B}, 5, 7
s_cselect_b32 s{S_C}, 0x88880000, 0
s_mov_b32 s{S_D}, s{S_C}
s_add_u32 s6, s{S_SH}, 4
v_bfe_u32 v{T}, v0, 4, 1
v_and_b32 v{T+1}, 3, v0
v_lshlrev_b32 v{T}, s{S_B}, v{T}
v_lshl_add_u32 v{T}, v{T+1}, 3, v{T}
v_lshlrev_b32 v{T+1}, s6, v{G+1}""")
    for i, st_ in ((0, S_T0), (1, S_T1)):
        e(f"""s_mul_i32 s6, s{st_}, s{S_A}
s_lshl_b32 s7, s{st_}, 3
s_sub_u32 s7, 248, s7
v_add_u32 v{T+2}, s6, v{T}
v_mov_b32 v{T+3}, s7
v_cndmask_b32 v{T+2}, v{T+2}, v{T+3}, s[{S_C}:{S_D}]
v_xor_b32 v{T+2}, v{T+2}, v{T+1}
v_add_u32 v{WA+4*i}, v{T+2}, v{WB}""")
    for i in range(2):
        for pos in range(1, 4): e(f"v_xor_b32 v{WA+4*i+pos}, {pos<<12}, v{WA+4*i}")
    e(f"""v_bfe_u32 v{T}, v0, 4, 1
v_and_b32 v{T+1}, 15, v0
v_cmp_eq_u32 vcc, v{T}, v{T+1}
v_mov_b32 v{T}, 0x3f803f80
s_nop 0
v_cndmask_b32 v{SEL}, 0, v{T}, vcc
v_mov_b32 v{SEL+1}, v{SEL}
v_mov_b32 v{SEL+2}, v{SEL}
v_mov_b32 v{SEL+3}, v{SEL}""")
    w2t_addr = f"""s_mul_i32 s6, s{S_RB}, 12
s_add_u32 s6, s6, s{S_LA}
s_lshl_b32 s7, s{S_RB}, 2
s_add_u32 s7, s7, s{S_QU}
s_min_u32 s7, s7, 59
s_add_u32 s{S_A}, s7, 136
s_cmp_eq_u32 s{S_ISQ}, 1
s_cselect_b32 s6, s{S_A}, s6
s_cselect_b32 s7, s7, 63
s_mul_hi_u32 s{S_A}, s6, {(2**32 + 27)//28}
s_mul_i32 s{S_B}, s{S_A}, 28
s_sub_u32 s{S_B}, s6, s{S_B}
s_lshr_b32 s{S_C}, s7, 3
s_and_b32 s{S_D}, s7, 7
s_add_u32 s{S_D}, s{S_D}, 28
s_cmp_lt_u32 s7, 56
s_cselect_b32 s6, s{S_C}, s{S_A}
s_cselect_b32 s{S_B}, s{S_D}, s{S_B}
s_lshl_b32 s{S_WF}, s6, 6
s_add_u32 s{S_WF}, s{S_WF}, s{S_B}
s_lshl_b32 s{S_A}, s{S_B}, 2
s_lshr_b32 s{S_B}, s{S_W}, 1
s_add_u32 s{S_A}, s{S_A}, s{S_B}
s_mul_i32 s{S_U}, s6, 144
s_add_u32 s{S_U}, s{S_U}, s{S_A}
s_lshl_b32 s{S_B}, s{S_A}, 4
s_sub_u32 s{S_C}, s{S_A}, 112
s_lshr_b32 s{S_D}, s{S_C}, 1
s_mul_i32 s{S_D}, s{S_D}, 28
s_and_b32 s{S_C}, s{S_C}, 1
s_lshl_b32 s{S_C}, s{S_C}, 4
s_add_u32 s{S_C}, s{S_C}, s{S_D}
s_mov_b32 s{S_D}, {448*896}
s_cmp_lt_u32 s{S_A}, 112
s_cselect_b32 s{S_B}, s{S_B}, s{S_C}
s_cselect_b32 s{SRD_T}, s{P_WD}, s{P_WO}
s_cselect_b32 s{SRD_T+1}, s{P_WD+1}, s{P_WO+1}
s_cselect_b32 s{SRD_T+2}, {1792*896}, s{S_D}
s_mov_b32 s{SRD_T+3}, 0x00020000
s_and_b32 s{S_C}, s{S_W}, 1
s_lshl_b32 s{S_C}, s{S_C}, 3
s_add_u32 s{S_B}, s{S_B}, s{S_C}
s_mul_i32 s{S_B}, s{S_B}, 896
s_lshl_b32 s6, s6, 7
s_add_u32 s{S_TO}, s{S_B}, s6
v_lshrrev_b32 v{TP}, 3, v0
v_mul_u32_u24 v{TP}, 896, v{TP}
v_and_b32 v{TP+1}, 7, v0
v_lshl_add_u32 v{VT}, v{TP+1}, 4, v{TP}"""
    late = f"""s_add_u32 s{S_LB}, s{S_LA}, 12
s_add_u32 s6, s{S_QU}, 24
s_cmp_eq_u32 s{S_ISQ}, 1
s_cselect_b32 s{S_LB}, s6, s{S_LB}
v_lshrrev_b32 v{TP}, 4, v0
s_lshl_b32 s6, s{S_ROT}, 4
s_add_u32 s6, s6, s{S_W}
s_lshl_b32 s6, s6, 2
v_add_u32 v{TP+1}, s6, v{TP}
v_mul_u32_u24 v{TP+1}, 3584, v{TP+1}
v_lshlrev_b32 v{TP}, 1, v{TP}
v_xor_b32 v{TP}, v{TP}, v0
v_and_b32 v{GB}, 7, v{TP}
v_lshl_add_u32 v{TP+1}, v{GB}, 4, v{TP+1}
s_lshl_b32 s6, s{S_LB}, 7
v_add_u32 v{TP+1}, s6, v{TP+1}
v_and_b32 v{TP}, 8, v{TP}
v_cmp_eq_u32 vcc, 8, v{TP}
v_mov_b32 v{GB}, s{P_WG}
v_mov_b32 v{TP}, s{P_WU}
v_cndmask_b32 v{GB}, v{GB}, v{TP}, vcc
v_mov_b32 v{GB+1}, s{P_WG+1}
v_mov_b32 v{TP}, s{P_WU+1}
v_cndmask_b32 v{GB+1}, v{GB+1}, v{TP}, vcc
v_add_co_u32 v{GB}, vcc, v{GB}, v{TP+1}
v_bfe_u32 v{TP}, v0, 4, 1
v_and_b32 v{TP+1}, 3, v0
v_addc_co_u32 v{GB+1}, vcc, 0, v{GB+1}, vcc
v_lshlrev_b32 v{TP+1}, 3, v{TP+1}
v_lshl_add_u32 v{TP}, v{TP}, 7, v{TP+1}
v_bfe_u32 v{TP+1}, v0, 2, 2
v_lshlrev_b32 v{TP+1}, 5, v{TP+1}
v_xor_b32 v{TP}, v{TP}, v{TP+1}
s_lshl_b32 s6, s{S_T0}, 5
v_xor_b32 v{TP}, s6, v{TP}
v_add_u32 v{WB}, v{TP}, v{WB}
v_xor_b32 v{WB+1}, 32, v{WB}"""
    e.stamp("xs4")
    srd(e, SRD_WS, P_WS, WS_END)
    e("s_waitcnt lgkmcnt(0)")
    e(f"s_add_u32 s{S_NON}, s{S_NON}, 1")
    U = RW + 4; A_, B_ = RW, RW + 1
    e.wvm("row")
    for k in range(4): e(f"v_lshlrev_b32 v{U+2*k}, 16, v{RW+k}\nv_and_b32 v{U+2*k+1}, s{S_MASK}, v{RW+k}")
    e(f"v_add_f32 v{A_}, v{U}, v{U+1}\nv_mul_f32 v{B_}, v{U}, v{U}\nv_add_f32 v{A_+2}, v{U+2}, v{U+3}\nv_mul_f32 v{B_+2}, v{U+1}, v{U+1}")
    for k in (2, 4, 6): e(f"v_fmac_f32 v{B_}, v{U+k}, v{U+k}\nv_fmac_f32 v{B_+2}, v{U+k+1}, v{U+k+1}")
    e(f"""v_add_f32 v{U}, v{U+4}, v{U+5}
v_add_f32 v{U+1}, v{U+6}, v{U+7}
v_add_f32 v{A_}, v{A_}, v{A_+2}
v_add_f32 v{U}, v{U}, v{U+1}
v_add_f32 v{B_}, v{B_}, v{B_+2}
v_add_f32 v{A_}, v{A_}, v{U}
s_lshl_b32 s6, s{S_TG}, 3""")
    for d in ("row_shr:1 row_mask:0xf bank_mask:0xf bound_ctrl:0", "row_shr:2 row_mask:0xf bank_mask:0xf bound_ctrl:0",
              "row_shr:4 row_mask:0xf bank_mask:0xf bound_ctrl:0", "row_shr:8 row_mask:0xf bank_mask:0xf bound_ctrl:0",
              "row_bcast:15 row_mask:0xa bank_mask:0xf", "row_bcast:31 row_mask:0xc bank_mask:0xf"):
        e(f"v_add_f32_dpp v{B_}, v{B_}, v{B_} {d}\nv_add_f32_dpp v{A_}, v{A_}, v{A_} {d}\ns_nop 0")
    e(f"""s_add_u32 s6, s6, {STAT}
v_mul_f32 v{A_}, {f2u(1.0/448)}, v{A_}
v_mul_f32 v{B_}, {f2u(1.0/448)}, v{B_}
v_fma_f32 v{B_}, -v{A_}, v{A_}, v{B_}
v_max_f32 v{B_}, 0, v{B_}
v_cvt_pk_bf16_f32 v{B_}, v{B_}, v{B_}
v_and_b32 v{B_}, s{S_MASK}, v{B_}
v_add_f32 v{B_}, {f2u(1e-5)}, v{B_}
v_cvt_pk_bf16_f32 v{B_}, v{B_}, v{B_}
v_and_b32 v{B_}, s{S_MASK}, v{B_}
v_sqrt_f32 v{B_}, v{B_}
v_mov_b32 v{U}, s6
v_cvt_pk_bf16_f32 v{A_}, -v{A_}, v{B_}
v_mov_b32 v{B_}, s{S_NON}
s_mov_b32 exec_lo, 0
s_mov_b32 exec_hi, 0x80000000""")
    e.vm(f"buffer_store_dwordx2 {vr(A_,2)}, v{U}, {WS}, 0 offen {SC}", "sts")
    e("s_mov_b64 exec, -1")
    e.stamp("xs5")
    e.wvm("d0")
    e("s_barrier")
    e.stamp("start")

    half = {'x': [0]*4, 'w': [0]*4}
    def reads(gp):
        if gp < 28: sig, sub, pos, reg = gp // 4, 0, gp % 4, 16384
        else:
            g = gp - 28; sig, sub, pos = 7 + g // 8, (g // 4) & 1, g % 4; reg = sub * 16384
        sl = sig % 4; h = sl >> 1; imm = (sl & 1) * RING
        buf = WF + 8 * (gp % 3)
        pre = []
        if 28 <= gp < 32:
            pre = [f"v_xor_b32 v{WA+4*i+pos}, {(pos << 12) | (h << 16)}, v{WB+i}" for i in range(2)]
            half['w'][pos] = h
        elif half['w'][pos] != h:
            pre = [f"v_xor_b32 v{WA+4*i+pos}, 0x10000, v{WA+4*i+pos}" for i in range(2)]
            half['w'][pos] = h
        if gp < 28 and half['x'][pos] != h:
            pre.append(f"v_xor_b32 v{XA+pos}, 0x10000, v{XA+pos}"); half['x'][pos] = h
        out = [(lambda l=l: e(l)) for l in pre]
        if gp < 28: out.append(lambda: e.ds(f"ds_read_b128 {vr(XR+4*gp,4)}, v{XA+pos} offset:{imm}", f"r{gp}"))
        for i in range(2):
            for u in range(2):
                out.append(lambda i=i, u=u: e.ds(f"ds_read_b64_tr_b16 {vr(buf+4*i+2*u,2)}, v{WA+4*i+pos} offset:{imm+reg+u*1024}", f"r{gp}"))
        return out
    def position(gp, side, dmaq, nside, barrier=None):
        p2 = gp >= 28; g = gp - 28 if p2 else gp
        acc = ACCB if p2 else ACCA
        buf = WF + 8 * (gp % 3); xr = XR + 4 * g
        e.wds(f"r{gp}")
        e(mfma(acc, buf, xr, "0" if g == 0 else None))
        if barrier: barrier()
        R = reads(gp + 2) if gp + 2 < 56 else []
        nx = 1 if gp + 2 < 28 else 0
        pre = R[:max(0, len(R) - 4 - nx)]; xrd = R[len(pre):len(pre) + nx]; tr = R[len(pre) + nx:]
        na = (nside + 1) // 2; nb = nside // 2
        for f in pre: f()
        if P("ORD", 1) == 0:
            for f in xrd + tr[:2]: f()
            side.emit(na)
            e(mfma(acc + 16, buf + 4, xr, "0" if g == 0 else None))
            for f in tr[2:]: f()
            if g % 4 == 0: e(mfma16(CSA, SEL, buf, "0" if g == 0 else None))
            if dmaq: dmaq.pop(0)()
            side.emit(nb)
            if g % 4 == 0: e(mfma16(CSA + 4, SEL, buf + 4, "0" if g == 0 else None))
        else:
            for f in tr[:1]: f()
            side.emit(min(2, na))
            for f in tr[1:2]: f()
            side.emit(na - min(2, na))
            e(mfma(acc + 16, buf + 4, xr, "0" if g == 0 else None))
            for f in tr[2:3]: f()
            side.emit(min(2, nb))
            for f in tr[3:]: f()
            side.emit(nb - min(2, nb))
            if g % 4 == 0: e(mfma16(CSA, SEL, buf, "0" if g == 0 else None))
            for f in xrd: f()
            if g % 4 == 0: e(mfma16(CSA + 4, SEL, buf + 4, "0" if g == 0 else None))
            if dmaq: dmaq.pop(0)()
    def stats(gp):
        x = XR + 4 * gp; c = lambda r: "0" if gp == 0 else vr(r, 4)
        return [mfma16(ST, SEL, x, c(ST)),
                f"v_mfma_f32_4x4x4_16b_bf16 {vr(SQA,4)}, {vr(x,2)}, {vr(x,2)}, {c(SQA)}\nv_mfma_f32_4x4x4_16b_bf16 {vr(SQB,4)}, {vr(x+2,2)}, {vr(x+2,2)}, {c(SQB)}"]
    def cs_write(dst):
        return [f"v_lshlrev_b32 v{G+8}, 4, v0", f"s_lshl_b32 s6, s{S_T0}, 9", f"s_lshl_b32 s{S_A}, s{S_RT}, 2",
                f"s_add_u32 s6, s6, s{S_A}", f"s_add_u32 s6, s6, {dst}", f"v_add_u32 v{G+8}, s6, v{G+8}",
                lambda: (e("s_mov_b64 exec, 0xffff"),
                         e.ds(f"ds_write_b32 v{G+8}, v{CSA}", "csw"), e.ds(f"ds_write_b32 v{G+8}, v{CSA+1} offset:256", "csw"),
                         e.ds(f"ds_write_b32 v{G+8}, v{CSA+4} offset:512", "csw"), e.ds(f"ds_write_b32 v{G+8}, v{CSA+5} offset:768", "csw"),
                         e("s_mov_b64 exec, -1"))]
    def cs_read(src):
        l = [f"v_and_b32 v{G+8}, 31, v0", f"v_lshlrev_b32 v{G+8}, 4, v{G+8}", f"s_lshl_b32 s6, s{S_T0}, 9", f"s_add_u32 s6, s6, {src}",
             f"v_add_u32 v{G+8}, s6, v{G+8}",
             lambda: e.ds(f"ds_read_b128 {vr(G,4)}, v{G+8}", "csr"), lambda: e.ds(f"ds_read_b128 {vr(G+4,4)}, v{G+8} offset:512", "csr")]
        m = [lambda: e.wds("csr")]
        for i in range(2):
            b = G + 4 * i
            m += [f"v_add_f32 v{b}, v{b}, v{b+1}", f"v_add_f32 v{b+2}, v{b+2}, v{b+3}"]
        for i in range(2): m += [f"v_add_f32 v{G+4*i}, v{G+4*i}, v{G+4*i+2}"]
        for i in range(2): m += [f"v_cvt_pk_bf16_f32 v{G+4*i+1}, v{G+4*i}, v{G+4*i}"]
        for i in range(2): m += [f"v_and_b32 v{G+4*i+1}, s{S_MASK}, v{G+4*i+1}"]
        for i in range(2): m += [f"v_sub_f32 v{G+4*i+1}, v{G+4*i}, v{G+4*i+1}"]
        for i in range(2): m += [f"v_cvt_pk_bf16_f32 v{G+4*i}, v{G+4*i}, v{G+4*i+1}"]
        for i in range(2): m += [f"v_cndmask_b32 v{ST+2*i}, v{G+4*i}, 0, s[{S_HI}:{S_HI+1}]"]
        return l, m

    KA = -2.0 * math.log2(math.e) * math.sqrt(2.0 / math.pi)
    GST = P("GST", 18)
    def stat_check():
        ok = e.newlabel("sok"); sp = e.newlabel("ssp")
        e.wvm("stl")
        e(f"v_cmp_ne_u32 vcc, s{S_NON}, v{BEXT+3}\ns_cbranch_vccz {ok}\ns_mov_b32 s{S_CNT}, {SPIN_MAX}")
        e.label(sp)
        e(f"""s_sleep 4
buffer_load_dwordx2 {vr(BEXT+2,2)}, v{G}, {WS}, 0 offen {SC}
s_sub_u32 s{S_CNT}, s{S_CNT}, 1
s_waitcnt vmcnt(0)
v_cmp_ne_u32 vcc, s{S_NON}, v{BEXT+3}
s_cmp_eq_u32 s{S_CNT}, 0
s_cbranch_scc1 {ok}
s_cbranch_vccnz {sp}""")
        e.label(ok)
    def after_exchange(side):
        l, m = cs_read(L_CSA)
        side.add(l)
        side.add(f"""v_and_b32 v{S_}, s{S_MASK}, v{BEXT+2}
v_and_b32 v{BEXT}, 0xffff, v{BEXT+2}
v_rcp_f32 v{R_}, v{S_}
v_lshl_or_b32 v{BEXT}, v{BEXT+2}, 16, v{BEXT}
v_mul_f32 v{I2}, v{S_}, v{S_}
v_mul_f32 v{AC}, {f2u(KA)}, v{R_}
v_mul_f32 v{BC}, v{R_}, v{R_}
v_mov_b32 v{ST+1}, 0
v_mul_f32 v{BC}, v{BC}, v{AC}
v_mov_b32 v{ST+3}, 0
v_mul_f32 v{BC}, {f2u(0.044715)}, v{BC}
v_mov_b32 v{BEXT+1}, 0
v_mov_b32 v{BEXT+2}, 0
v_mov_b32 v{BEXT+3}, 0""")
        side.add(m)
    for f in reads(0) + reads(1): f()
    side = Side(e); dmaq = list(stage_dmas(e, 2)) + ([touch(e, 2)] if TOUCH else [])
    w2side = Side(e)
    if GT & 4:
        w2side.add(f"""s_min_u32 s6, s{S_TG}, 895
s_cmp_ge_u32 s6, 448
s_cselect_b32 s{SRD_T}, s{P_WU}, s{P_WG}
s_cselect_b32 s{SRD_T+1}, s{P_WU+1}, s{P_WG+1}
s_cselect_b32 s7, 448, 0
s_mov_b32 s{SRD_T+2}, {448*3584}
s_sub_u32 s6, s6, s7
s_mul_i32 s6, s6, 3584
s_add_u32 s6, s6, 1536
v_and_b32 v{TA}, 15, v0
v_lshlrev_b32 v{TA}, 7, v{TA}""")
        w2side.add([lambda: e.vm(f"buffer_load_dword v{TD}, v{TA}, s[{SRD_T}:{SRD_T+3}], s6 offen", "t2")])
    w2side.add(late); w2side.add(w2t_addr)
    for gp in range(28):
        sig, pos = gp // 4, gp % 4
        bar = None
        if pos == 2:
            def bar(sig=sig):
                if sig == 6: side.flush(); stat_check(); e.wds("csw")
                e.wvm(f"d{sig+1}"); e("s_barrier")
                if sig == 6: after_exchange(side)
                assert not dmaq
                dmaq.extend(stage_dmas(e, sig + 3))
                if sig == 0 and TOUCH: dmaq.append(touch(e, 3))
        if gp == GST:
            side.add([f"s_lshl_b32 s{S_G}, s{S_RB}, 2", f"s_add_u32 s{S_G}, s{S_G}, s{S_RT}", f"s_lshl_b32 s{S_G}, s{S_G}, 8", f"s_add_u32 s{S_G}, s{S_G}, {STAT}",
                      f"v_and_b32 v{G}, 31, v0", f"v_lshl_add_u32 v{G}, v{G}, 3, s{S_G}",
                      lambda: e.vm(f"buffer_load_dwordx2 {vr(BEXT+2,2)}, v{G}, {WS}, 0 offen {SC}", "stl")])
        if gp == 25: assert not w2side.q; side.add(cs_write(L_CSA))
        n = len(side.q) if gp < 26 else P('NEX', 10)
        while len(dmaq) > 4 - ((pos + 2) % 4): dmaq.pop(0)()
        e.stamp(f"xp{gp}")
        w2side.emit(5 if gp < 2 else 3)
        position(gp, side, dmaq, n, bar)
    assert not w2side.q
    side.add(["s_nop 1", mfma(ACCA, ST, BEXT), mfma(ACCA + 16, ST + 2, BEXT)])
    carry = list(side.q)
    e.stamp("p1")

    KA = -2.0 * math.log2(math.e) * math.sqrt(2.0 / math.pi); KB = KA * 0.044715
    def gelu(acc, so, tb):
        l = []
        for k in range(8): l.append(f"v_mul_f32 v{tb+k}, v{acc+k}, v{acc+k}")
        for k in range(8): l.append(f"v_fma_f32 v{tb+k}, v{tb+k}, v{BC}, v{AC}")
        for k in range(8): l.append(f"v_mul_f32 v{tb+k}, v{tb+k}, v{acc+k}")
        for k in range(8): l += [f"v_exp_f32 v{tb+k}, v{tb+k}", f"v_mul_f32 v{acc+k}, v{acc+k}, v{acc+8+k}"]
        for k in range(8): l.append(f"v_fma_f32 v{tb+k}, v{tb+k}, v{I2}, v{I2}")
        for k in range(8): l.append(f"v_rcp_f32 v{tb+k}, v{tb+k}")
        for k in range(8): l.append(f"v_mul_f32 v{acc+k}, v{acc+k}, v{tb+k}")
        for k in range(4): l.append(f"v_cvt_pk_bf16_f32 v{acc+8+k}, v{acc+2*k}, v{acc+2*k+1}")
        l.append(lambda: e.vm(f"buffer_store_dwordx4 {vr(acc+8,4)}, v{VL16}, {WS}, s{so} offen {SC}", "hs"))
        return l
    def h_off(line, dst):
        return f"""s_lshl_b32 s6, s{S_RB}, 2
s_add_u32 s6, s6, s{S_RT}
s_mul_i32 s6, s6, 144
s_lshl_b32 s{dst}, s{line}, 2
s_add_u32 s6, s6, s{dst}
s_add_u32 s6, s6, s{S_T0}
s_lshl_b32 s{dst}, s6, 10
s_add_u32 s{dst+1}, s{dst}, 1024"""
    def w2t_out(side):
        side.add(f"""v_lshrrev_b32 v{TP}, 5, v0
v_bfe_u32 v{TP+1}, v0, 2, 2
v_lshl_add_u32 v{TP}, v{TP}, 2, v{TP+1}
v_lshlrev_b32 v{TP}, 7, v{TP}
v_bfe_u32 v{TP+1}, v0, 4, 1
v_lshl_add_u32 v{TP}, v{TP+1}, 5, v{TP}
v_and_b32 v{TP+1}, 3, v0
v_lshl_add_u32 v{TP}, v{TP+1}, 3, v{TP}
s_lshr_b32 s6, s{S_W}, 1
s_lshl_b32 s6, s6, 11
s_and_b32 s{S_A}, s{S_W}, 1
s_lshl_b32 s{S_B}, s{S_A}, 6
s_add_u32 s6, s6, s{S_B}
s_add_u32 s6, s6, {L_W2T}
v_add_u32 v{TP}, s6, v{TP}""")
        side.add([lambda: (e.ds(f"ds_read_b64_tr_b16 {vr(PL,2)}, v{TP}", "w2tr"), e.ds(f"ds_read_b64_tr_b16 {vr(PL+2,2)}, v{TP} offset:1024", "w2tr")),
                  f"s_lshl_b32 s6, s{S_U}, 11", f"s_lshl_b32 s{S_A}, s{S_A}, 10", f"s_add_u32 s6, s6, s{S_A}", f"s_add_u32 s{S_TO}, s6, {W2T}",
                  lambda: (e.wds("w2tr"), e.vm(f"buffer_store_dwordx4 {vr(PL,4)}, v{VL16}, {WS}, s{S_TO} offen {SC}", "w2ts"))])
    GEND = P("GEND", 22); GW2 = P("GW2", 18)
    GX, GBN, GFL, QRATE = P("GX", 0), P("GBN", 2), P("GFL", 11), P("QRATE", 30)
    def pass2(qfirst):
        side = Side(e); dq = list(dmaq); side.q = list(carry)
        for g in range(28):
            gp = 28 + g
            pre = []; wd = []; wv = []; post = []
            if g == 0:
                if not qfirst:
                    side.add(h_off(S_LA, S_C))
                    side.add(gelu(ACCA, S_C, G)); side.add(gelu(ACCA + 16, S_D, G))
                else: qkv_part1(side)
            if g == 6:
                post.append(lambda: dq.extend(stage_dmas(e, 10) + [lambda: (e(f"s_add_u32 m0, s{S_WB}, {L_W2T}\ns_nop 0"),
                            e.vm(f"buffer_load_dwordx4 v{VT}, s[{SRD_T}:{SRD_T+3}], s{S_TO} offen lds", "w2td"))]))
            if g == GW2: wv.append("w2td")
            if g in (6, 14, 22): wv.append(f"d{8 + g // 8}")
            if qfirst and g == GBN: pre.append(side.flush); wd.append("kvw"); post.append(lambda: qkv_part2(side))
            if qfirst and g == GFL:
                pre.append(side.flush); wv.append("qs")
                post.append(lambda: flag_store(e, f"""s_lshl_b32 s6, s{S_RB}, 2
s_add_u32 s6, s6, s{S_QU}
s_lshl_b32 s6, s6, 2
s_add_u32 s6, s6, {F_KV}
v_lshlrev_b32 v{G}, 8, v0
v_add_u32 v{G}, s6, v{G}""", RKV, G))
            if g == GW2 + 1:
                q0 = side.q; side.q = []; w2t_out(side); side.q += q0
            if g == 24:
                side.flush()
                poll_issue(e, f"""s_and_b32 s6, s2, {RKV-1}
s_lshl_b32 s6, s6, 8
s_add_u32 s6, s6, {F_KV}
v_lshl_add_u32 v{PL}, v0, 2, s6""", PL, PL + 1, "kvp")
            if g == 25:
                side.flush(); side.add(cs_write(L_CSB))
            if g == 26:
                pre.append(side.flush); wd.append("csw")
                def p():
                    l, m = cs_read(L_CSB); side.add(l); side.add(m)
                post.append(p)
            bar = None
            if wd or wv:
                def bar():
                    for f in pre: f()
                    if wd: e.wds(*wd)
                    if wv: e.wvm(*wv)
                    e("s_barrier")
                    for f in post: f()
            if qfirst: n = QRATE if g < GFL else 12
            else: n = -(-len(side.q) // max(1, GEND - g)) if g < GEND else 12
            e.stamp(f"xg{g}")
            position(gp, side, dq, n, bar)
        side.flush()
        e.stamp("xpe2")
        e("s_nop 1")
        e(mfma(ACCB, ST, BEXT)); e(mfma(ACCB + 16, ST + 2, BEXT))
    RQ = PL
    def qkv_part1(side):
        side.add(f"""v_mul_f32 v{RQ}, {f2u(28 ** -0.5 * math.log2(math.e))}, v{R_}
v_and_b32 v{G+8}, 31, v0
v_lshlrev_b32 v{G+8}, 5, v{G+8}
s_lshl_b32 s6, s{S_RT}, 10
s_add_u32 s6, s6, {L_KVB}
v_add_u32 v{G+8}, s6, v{G+8}
s_mov_b32 s{S_D}, 0x00003f80
s_cmp_lt_u32 s{S_QU}, 2
s_cselect_b32 s{S_C}, 0x3f803f80, s{S_D}
s_cselect_b32 s{S_D}, s{S_D}, 0
s_nop 1""")
        for i, st_ in ((0, S_T0), (1, S_T1)):
            acc = ACCA + 16 * i; b = G + 4 * i
            for k in range(4): side.add([f"v_mul_f32 v{b+k}, v{acc+12+k}, v{R_}"])
            side.add(f"""s_sub_u32 s6, 3, s{st_}
s_lshl_b32 s{S_A}, s{st_}, 2
s_lshr_b32 s{S_A}, 0x0132, s{S_A}
s_and_b32 s{S_A}, s{S_A}, 3
s_bitcmp1_b32 s{S_QU}, 0
s_cselect_b32 s6, s{S_A}, s6
s_cselect_b32 s{S_A}, s{S_A}, 0
s_lshl_b32 s6, s6, 3
v_cvt_pk_bf16_f32 v{b}, v{b}, v{b+1}
v_cvt_pk_bf16_f32 v{b+1}, v{b+2}, v{b+3}
v_add_u32 v{b+2}, s6, v{G+8}""")
            def wr(b=b):
                l = e.newlabel("nc")
                e(f"s_cmp_eq_u32 s{S_A}, 3\ns_cbranch_scc0 {l}\nv_mov_b32 v{b}, s{S_C}\nv_mov_b32 v{b+1}, s{S_D}")
                e.label(l)
                e(f"s_mov_b64 exec, s[{S_HI}:{S_HI+1}]")
                e.ds(f"ds_write_b64 v{b+2}, {vr(b,2)}", "kvw")
                e("s_mov_b64 exec, -1")
            side.add([wr])
    def qkv_part2(side):
        def kv():
            l = e.newlabel("kvs"); lv = e.newlabel("kvv"); ls = e.newlabel("kvt")
            e(f"""s_cmp_eq_u32 s{S_CG}, 0
s_cbranch_scc0 {l}
s_lshl_b32 s6, s{S_RB}, 2
s_add_u32 s6, s6, s{S_RT}
s_lshl_b32 s6, s6, 12
s_add_u32 s6, s6, {KVF}
s_lshl_b32 s{S_A}, s{S_RT}, 10
s_add_u32 s{S_A}, s{S_A}, {L_KVB}
s_cmp_lt_u32 s{S_QU}, 2
s_cbranch_scc0 {lv}
v_and_b32 v{G}, 31, v0
v_lshrrev_b32 v{G+1}, 5, v0
v_lshlrev_b32 v{G}, 5, v{G}
v_lshl_add_u32 v{G}, v{G+1}, 3, v{G}
v_add_u32 v{G}, s{S_A}, v{G}
ds_read2_b64 {vr(G+4,4)}, v{G} offset0:0 offset1:2
s_lshl_b32 s{S_A}, s{S_QU}, 10
s_add_u32 s6, s6, s{S_A}
v_mov_b32 v{G+2}, v{VL16}
s_branch {ls}""")
            e.label(lv)
            e(f"""v_lshrrev_b32 v{G}, 5, v0
v_bfe_u32 v{G+1}, v0, 4, 1
v_lshlrev_b32 v{G+2}, 10, v{G}
v_lshl_add_u32 v{G+2}, v{G+1}, 9, v{G+2}
v_lshlrev_b32 v{G}, 4, v{G}
v_lshl_add_u32 v{G}, v{G+1}, 2, v{G}
v_bfe_u32 v{G+1}, v0, 2, 2
v_add_u32 v{G}, v{G}, v{G+1}
v_lshlrev_b32 v{G}, 5, v{G}
v_and_b32 v{G+1}, 3, v0
v_lshl_add_u32 v{G}, v{G+1}, 3, v{G}
v_add_u32 v{G}, s{S_A}, v{G}
ds_read_b64_tr_b16 {vr(G+4,2)}, v{G}
ds_read_b64_tr_b16 {vr(G+6,2)}, v{G} offset:256
v_and_b32 v{G+1}, 15, v0
v_lshl_add_u32 v{G+2}, v{G+1}, 4, v{G+2}
s_and_b32 s{S_A}, s{S_QU}, 1
s_lshl_b32 s{S_A}, s{S_A}, 8
s_add_u32 s6, s6, s{S_A}
s_add_u32 s6, s6, 2048""")
            e.label(ls)
            e(f"s_waitcnt lgkmcnt(0)\nbuffer_store_dwordx4 {vr(G+4,4)}, v{G+2}, {WS}, s6 offen {SC}")
            e.label(l)
        side.add([kv])
        side.add(f"""s_lshl_b32 s6, s{S_RB}, 2
s_add_u32 s6, s6, s{S_RT}
s_lshl_b32 s6, s6, 2
s_add_u32 s6, s6, s{S_QU}
s_lshl_b32 s6, s6, 2
s_add_u32 s6, s6, s{S_T0}
s_lshl_b32 s6, s6, 11
s_add_u32 s{S_C}, s6, {QF}""")
        for i in range(2):
            acc = ACCA + 16 * i
            for k in range(16): side.add([f"v_mul_f32 v{acc+k}, v{acc+k}, v{RQ}"])
            for k in range(8): side.add([f"v_cvt_pk_bf16_f32 v{acc+k}, v{acc+2*k}, v{acc+2*k+1}"])
            side.add([f"v_cndmask_b32 v{acc+6}, v{acc+6}, 0, s[{S_HI}:{S_HI+1}]", f"v_cndmask_b32 v{acc+7}, v{acc+7}, 0, s[{S_HI}:{S_HI+1}]",
                      lambda acc=acc, i=i: e.vm(f"buffer_store_dwordx4 {vr(acc,4)}, v{VL16}, {WS}, s{S_C} offen offset:{2048*i} {SC}", "qs"),
                      lambda acc=acc, i=i: e.vm(f"buffer_store_dwordx4 {vr(acc+4,4)}, v{VL16}, {WS}, s{S_C} offen offset:{2048*i+1024} {SC}", "qs")])
    e(f"s_cmp_eq_u32 s{S_ISQ}, 1\ns_cbranch_scc1 B_p2q")
    sn = e.snap(); hs = {k: list(v) for k, v in half.items()}; ns = e.nst
    pass2(False)
    e("s_branch B_join")
    e.label("B_p2q")
    e.nst = ns
    e.restore(sn); half.update({k: list(v) for k, v in hs.items()})
    pass2(True)
    e.label("B_join")
    e.q = {'ds': [], 'vm': ['kvp']}; e.done = {'ds': 0, 'vm': 0}
    e.stamp("join")
    return gelu, h_off

LB0, LB1, VO = 3, 4, 5
Q, O, S0, PP, K, V0, V1 = 36, 44, 64, 96, 104, 112, 120
FA, FB = 128, 192
XRES = 244
S_KH, S_QT, S_KVO, S_WB4, S_FA, S_FB0, S_FB1, S_OO = 50, 51, 54, 55, 56, 57, 59, 60
S_FQ, S_K1 = 62, 63
F0 = P("F0", 8)
FP = P("FP", 2)
HBP = P("HBP", 10)
F3 = P("F3", 24)
WOP = 18

def kv_dma(e, st):
    def m(): e(f"s_add_u32 m0, s{S_WB4}, {((st + 3) % 4) * RING}" + ("\ns_nop 0" if st < 3 else ""))
    m.scalar = True
    l = [m]
    for f in range(4):
        l.append(lambda f=f: (e.vm(f"buffer_load_dwordx4 v{VL16}, {WS}, s{S_KVO} offen offset:{1024*f} {SC} lds", f"k{st}"),
                              e(f"s_add_u32 s{S_KVO}, s{S_KVO}, 16384") if f == 3 else None))
    return l

NB = P("NB", 4)
FBUF = [[FB + 16 * n + 4 * k for k in range(4)] for n in range(3)] + [[60, 124, 248, 252]]
def f_loads(e, q):
    bb = FBUF[q % NB]
    r = q if q < 6 else q - 6
    advA = advB = None
    if q == 5:
        advA = f"s_add_u32 s{S_FA}, s{S_FA}, s{S_FQ}"
        advB = f"s_add_u32 s{S_FB0}, s{S_FB0}, s{S_K1}\ns_add_u32 s{S_FB1}, s{S_FB1}, s{S_K1}"
    else:
        if r & 1: advA = f"s_add_u32 s{S_FA}, s{S_FA}, 4096"
        if (r & 3) == 3: advB = f"s_add_u32 s{S_FB0}, s{S_FB0}, 4096\ns_add_u32 s{S_FB1}, s{S_FB1}, 4096"
    return [lambda: e.vm(f"buffer_load_dwordx4 {vr(bb[0],4)}, v{VL16}, {WS}, s{S_FA} offen offset:{(r&1)*2048} {SC}", f"f{q}"),
            lambda: e.vm(f"buffer_load_dwordx4 {vr(bb[2],4)}, v{VL16}, {WS}, s{S_FB0} offen offset:{(r&3)*1024} {SC}", f"f{q}"),
            lambda: (e.vm(f"buffer_load_dwordx4 {vr(bb[1],4)}, v{VL16}, {WS}, s{S_FA} offen offset:{(r&1)*2048+1024} {SC}", f"f{q}"),
                     e(advA) if advA else None),
            lambda: (e.vm(f"buffer_load_dwordx4 {vr(bb[3],4)}, v{VL16}, {WS}, s{S_FB1} offen offset:{(r&3)*1024} {SC}", f"f{q}"),
                     e(advB) if advB else None)]
def f_mfma(q, k):
    bb = FBUF[q % NB]; r2, d2 = ((0, 0), (0, 1), (1, 1), (1, 0))[k]
    return mfma(FA + 32*r2 + 16*d2, bb[d2], bb[2 + r2], "0" if q == 0 else None)

NOA = P("NOA", 7)
OAREG = [8, 12, 16, 20, 24, 28, 32, 60, 124][:NOA] + [FB + 4 * k for k in range(16)]
S_OA = 61
def oa_load(e, k):
    def f():
        e.vm(f"buffer_load_dwordx4 {vr(OAREG[k],4)}, v{VL16}, {WS}, s{S_OA} offen offset:{(k&3)*1024} {SC}", f"oa{k}")
        if (k & 3) == 3 and k < 15: e(f"s_add_u32 s{S_OA}, s{S_OA}, 4096")
    return f
KVPRE = P('KVPRE', 2)
def attn_setup(e, gelu, h_off):
    e(h_off(S_LB, S_C))
    e(f"""s_mov_b32 s{S_QT}, s{S_RT}
s_mov_b32 s{S_KH}, s{S_CG}
s_lshl_b32 s{S_WB4}, s{S_W}, 12
s_lshl_b32 s6, s{S_KH}, 5
s_add_u32 s6, s6, s{S_QT}
s_lshl_b32 s6, s6, 12
s_add_u32 s{S_KVO}, s6, {KVF}
s_lshl_b32 s6, s{S_RB}, 2
s_add_u32 s6, s6, s{S_QT}
s_lshl_b32 s7, s6, 4
s_add_u32 s7, s7, s{S_J}
s_lshl_b32 s7, s7, 11
s_add_u32 s7, s7, {QF}""")
    g0 = gelu(ACCB, S_C, G); g1 = gelu(ACCB + 16, S_D, G)
    nfirst = P("GFIRST", 0)
    both = g0 + g1
    for it in both[:nfirst]: it() if callable(it) else e(it)
    poll_check(e, PL, PL + 1, "kvp")
    e.wvm("kvp")
    e("s_barrier")
    e.stamp("xkv")
    flag_store(e, f"""s_lshl_b32 s6, s{S_RB}, 5
s_add_u32 s6, s6, s{S_J}
s_lshl_b32 s6, s6, 2
s_add_u32 s6, s6, {F_H + 64}
s_lshl_b32 s{S_A}, s{S_WF}, 2
s_add_u32 s{S_A}, s{S_A}, {F_W}
s_sub_u32 s{S_A}, s{S_A}, s6
v_mul_lo_u32 v{PL}, v0, s{S_A}
v_add_u32 v{PL}, s6, v{PL}""", 2, PL)
    side = Side(e)
    side.add(kv_dma(e, 0))
    side.add([lambda: e.vm(f"buffer_load_dwordx4 {vr(Q,4)}, v{VL16}, {WS}, s7 offen {SC}", "q"),
              lambda: e.vm(f"buffer_load_dwordx4 {vr(Q+4,4)}, v{VL16}, {WS}, s7 offen offset:1024 {SC}", "q")])
    side.emit(P("KPRE0", 3))
    for st in range(1, KVPRE): side.add(kv_dma(e, st))
    for n, it in enumerate(both[nfirst:]):
        it() if callable(it) else e(it)
        if n % P('GSP', 8) == P('GSP', 8) - 1: side.emit(1)
    side.flush()
    e(f"""s_lshl_b32 s6, s{S_KH}, 14
v_add_u32 v{LB0}, s6, v{VL16}
v_add_u32 v{LB1}, 0x10000, v{LB0}
s_lshl_b32 s6, s{S_RB}, 2
s_add_u32 s6, s6, s{S_QT}
s_mul_i32 s6, s6, 144
s_lshl_b32 s7, s{S_J}, 1
s_add_u32 s6, s6, s7
s_add_u32 s6, s6, s{S_KH}
s_add_u32 s6, s6, 112
s_lshl_b32 s{S_OO}, s6, 10""")

def rd(e, dst, tile, f, tag):
    sl = (tile // 4 + 3) % 4
    e.ds(f"ds_read_b128 {vr(dst,4)}, v{LB0 if sl < 2 else LB1} offset:{(sl & 1) * RING + (tile % 4) * 4096 + f * 1024}", tag)

def attn_loop(e, withF):
    e.stamp("xge")
    e.wvm("k0", "q"); e.stamp("xk0"); e("s_barrier")
    e.stamp("astart")
    rd(e, K, 0, 0, "a"); rd(e, K + 4, 0, 1, "a"); rd(e, V0, 0, 2, "b")
    e.wds("a")
    e(mfma(S0, K, Q, "0")); e(mfma(S0, K + 4, Q + 4))
    rd(e, K, 1, 0, "b"); rd(e, K + 4, 1, 1, "b")
    if withF:
        e(f"""s_lshr_b32 s6, s{S_J}, 3
s_lshl_b32 s7, s{S_RB}, 1
s_add_u32 s6, s6, s7
s_and_b32 s7, s{S_J}, 7
s_mul_i32 s{S_A}, s{S_W}, 6
s_lshl_b32 s{S_K1}, s{S_W}, 1
s_add_u32 s{S_K1}, s{S_K1}, 44
s_lshl_b32 s{S_K1}, s{S_K1}, 10
s_lshl_b32 s{S_FQ}, s{S_K1}, 1
s_mul_i32 s{S_FB0}, s6, 288
s_add_u32 s{S_FB0}, s{S_FB0}, s{S_A}
s_lshl_b32 s{S_FB0}, s{S_FB0}, 10
s_add_u32 s{S_FB1}, s{S_FB0}, {144*1024}
s_mul_i32 s{S_FA}, s7, 144
s_add_u32 s{S_FA}, s{S_FA}, s{S_A}
s_lshl_b32 s{S_FA}, s{S_FA}, 11
s_add_u32 s{S_FA}, s{S_FA}, {W2T}
s_lshr_b32 s{S_A}, s{S_W}, 1
s_lshl_b32 s{S_A}, s{S_A}, 3
s_mul_i32 s{S_OA}, s7, 144
s_add_u32 s{S_OA}, s{S_OA}, s{S_A}
s_add_u32 s{S_OA}, s{S_OA}, 112
s_lshl_b32 s{S_OA}, s{S_OA}, 11
s_add_u32 s{S_OA}, s{S_OA}, {W2T}""")
    else:
        e("s_nop 9")
    NT = 32
    fq = []
    nq = 0
    dq = []
    fi = 0
    need = {}; keep = []; done = [0]
    for i in range(NT):
        sc = S0 + 16 * (i & 1); sn = S0 + 16 * ((i + 1) & 1)
        v0c = V0 + 4 * (i & 1); v0n = V0 + 4 * ((i + 1) & 1)
        E = lambda r: f"v_exp_f32 v{r}, v{r}"
        C = lambda d, r: f"v_cvt_pk_bf16_f32 v{d}, v{r}, v{r+1}"
        def g(k): return [E(sc + 4*k + q) for q in range(4)] + [C(PP + 2*k, sc + 4*k), C(PP + 2*k + 1, sc + 4*k + 2)]
        g0, g1, g2, g3 = g(0), g(1), g(2), g(3)
        fm = []; fl = []
        if withF:
            if i == FP - 2:
                assert FP % 4 == 2
                fl = [lambda: poll_issue(e, f"""s_lshl_b32 s6, s{S_RB}, 7
s_add_u32 s6, s6, {F_H + 64}
s_and_b32 s7, s{S_J}, 7
s_lshl_b32 s7, s7, 8
s_add_u32 s7, s7, {F_W - 64}
v_lshl_add_u32 v{G}, v0, 2, s6
v_lshl_add_u32 v{G+1}, v0, 2, s7
v_mov_b32 v{G+2}, s6
s_mov_b32 s{S_A}, 0xffff0000
s_mov_b32 s{S_B}, 0x00000fff
s_mov_b32 s{S_C}, 0x00008888
s_mov_b32 s{S_D}, 0xfffff000
v_cndmask_b32 v{G}, v{G}, v{G+1}, s[{S_A}:{S_B}]
v_cndmask_b32 v{G}, v{G}, v{G+2}, s[{S_C}:{S_D}]""", G, G + 1, "hp")]
            if FP <= i < F0:
                if i == FP:
                    for q in range(NB - 1): fq += f_loads(e, q)
                n = -(-len(fq) // (F0 - i))
                fl = fq[:n]; fq = fq[n:]
            pb = []
            if i == HBP - 2:
                pb = [lambda: poll_issue(e, f"""s_lshl_b32 s6, s{S_RB}, 7
s_add_u32 s6, s6, {F_H}
v_and_b32 v{G}, 15, v0
v_lshl_add_u32 v{G}, v{G}, 2, s6""", G, G + 1, "hb")]
            if i == WOP - 2:
                pb = [lambda: poll_issue(e, f"""s_and_b32 s6, s{S_J}, 7
s_lshl_b32 s6, s6, 8
s_add_u32 s6, s6, {F_W + 112}
v_and_b32 v{G}, 7, v0
v_lshl_add_u32 v{G}, v{G}, 2, s6""", G, G + 1, "wo")]
            if i >= F0:
                cnt = 3 if i >= F3 else 2
                idx = list(range(fi, min(fi + cnt, 56))); fi += len(idx)
                fm = [(n // 4, n % 4) for n in idx]
                for (q, k) in fm:
                    if k == 0 and q + NB - 1 < 14:
                        if q + NB - 1 == 6: assert i > HBP
                        nl = f_loads(e, q + NB - 1)
                        for f in nl: need[id(f)] = 4 * q
                        keep.extend(nl); fq += nl
                n = min(len(fq), cnt)
                fl = fq[:n] + pb; fq = fq[n:]
        def em(x): x() if callable(x) else e(x)
        e.stamp(f"xa{i}")
        ex = [E(sc + k) for k in range(16)]; cv = [C(PP + k, sc + 2 * k) for k in range(8)]
        if i + KVPRE <= 2: dq += kv_dma(e, i + KVPRE)
        misc = []
        if i == 29: misc.append(comb_addr())
        if withF and 31 - NOA <= i < 31: misc.append(oa_load(e, i - (31 - NOA)))
        gate = withF and i == FP
        def take(n):
            for _ in range(n):
                if fl and need.get(id(fl[0]), 0) <= done[0]: em(fl.pop(0))
        per = -(-len(fl) // 2)
        for x in ex[0:2]: em(x)
        def fmf(n):
            if n < len(fm):
                q, k = fm[n]
                e.wvm(f"f{q}"); e(f_mfma(q, k)); done[0] += 1
        if fm and fm[0][1] == 0: e.wboth(f"f{fm[0][0]}")
        else: e.all_ds()
        if i > 0: e(mfma(O, V1, PP + 4))
        rd(e, V1, i, 3, "c")
        for x in ex[2:5]: em(x)
        fmf(0)
        if not gate: take(1 if fm else per)
        for x in cv[0:2] + ex[5:7]: em(x)
        if i + 1 < NT: e(mfma(sn, K, Q, "0")); rd(e, v0n, i + 1, 2, "c")
        for x in ex[7:10]: em(x)
        if i + 1 < NT: e(mfma(sn, K + 4, Q + 4))
        if i % 4 == 2 and i + 2 < NT:
            st = i // 4
            if withF and i == FP: poll_check(e, G, G + 1, "hp")
            if withF and i == HBP: poll_check(e, G, G + 1, "hb")
            if withF and i == WOP: poll_check(e, G, G + 1, "wo")
            while dq and i == 2: dq.pop(0)()
            e.wvm(*([f"k{st+1}"] + (["hs"] if i == 2 else []))); e("s_barrier")
            if i == 2:
                flag_store(e, f"""s_lshl_b32 s6, s{S_RB}, 5
s_add_u32 s6, s6, s{S_J}
s_lshl_b32 s6, s6, 2
s_add_u32 s6, s6, {F_H}
v_mov_b32 v{G+2}, s6""", 1, G + 2)
            assert not dq
            if st + 3 <= 7: dq += kv_dma(e, st + 3)
        if i + 2 < NT: rd(e, K, i + 2, 0, "c"); rd(e, K + 4, i + 2, 1, "c")
        if dq and getattr(dq[0], "scalar", False): dq.pop(0)()
        for x in cv[2:4] + ex[10:12]: em(x)
        fmf(1)
        take(1 if fm else len(fl) if not gate else per)
        for x in ex[12:14] + cv[4:6]: em(x)
        e(mfma(O, v0c, PP, "0" if i == 0 else None))
        for _ in range(1 if i >= 2 else 2):
            if dq: dq.pop(0)()
        if len(fm) < 3: take(len(fl))
        for x in misc: em(x)
        for x in ex[14:16] + cv[6:7]: em(x)
        fmf(2); take(len(fl))
        fq = fl + fq
        em(cv[7])
        if i + 2 >= NT: e("s_nop 1")
    e.all_ds()
    e("s_nop 0")
    e(mfma(O, V1, PP + 4))
    return fi, fq

CMB = L_W2T
def comb_addr():
    T = G
    return f"""s_lshl_b32 s6, s{S_W}, 11
s_add_u32 s6, s6, {CMB}
v_add_u32 v{T}, s6, v{VL16}
v_xor_b32 v{T+1}, 8192, v{T}
s_lshl_b32 s6, s{S_W}, 8
s_add_u32 s6, s6, {CMB + 16384}
v_lshl_add_u32 v{T+2}, v0, 2, s6
v_or_b32 v{T+3}, 32, v0
s_lshl_b32 s6, s{S_QT}, 8
s_add_u32 s6, s6, {CMB + 16384}
v_lshl_add_u32 v{T+3}, v{T+3}, 2, s6
s_mov_b32 s{S_C}, {f2u(2.0 ** -64)}
s_mov_b32 s{S_D}, {f2u(2.0 ** 64)}"""

def attn_finish(e):
    T = G
    e.stamp("aend")
    hi = e.newlabel("chi"); jn = e.newlabel("cjn"); fb = e.newlabel("cfb"); bk = e.newlabel("cbk")
    e(f"s_cmp_eq_u32 s{S_KH}, 0\ns_nop 10")
    e.ds(f"ds_write_b32 v{T+2}, v{O+12}")
    e(f"s_cbranch_scc0 {hi}")
    e.ds(f"ds_write_b128 v{T}, {vr(O+8,4)}"); e.ds(f"ds_write_b128 v{T}, {vr(O+12,4)} offset:1024")
    e(f"s_branch {jn}")
    e.label(hi)
    e(f"ds_write_b128 v{T}, {vr(O,4)}\nds_write_b128 v{T}, {vr(O+4,4)} offset:1024")
    e.all_ds()
    for k in range(8): e(f"v_mov_b32 v{O+k}, v{O+8+k}")
    e.label(jn)
    e.all_ds()
    e.stamp("xc0")
    e("s_barrier")
    e.stamp("xc1")
    e.ds(f"ds_read2st64_b32 {vr(PP,2)}, v{T+3} offset0:0 offset1:4", "l")
    e.ds(f"ds_read_b128 {vr(S0,4)}, v{T+1}", "h0"); e.ds(f"ds_read_b128 {vr(S0+4,4)}, v{T+1} offset:1024", "h1")
    e(f"s_mov_b32 s{S_A}, 0\ns_sub_u32 s{S_B}, 0, s{S_KH}")
    e.wds("l")
    e(f"""v_add_f32 v{PP}, v{PP}, v{PP+1}
v_rcp_f32 v{PP+1}, v{PP}
v_cmp_nle_f32 vcc, s{S_C}, v{PP}
v_cmp_nge_f32 s[{S_E}:{S_F}], s{S_D}, v{PP}""")
    e.all_ds()
    for k in range(8): e(f"v_add_f32 v{S0+k}, v{S0+k}, v{O+k}")
    e(f"s_or_b64 s[{S_E}:{S_F}], s[{S_E}:{S_F}], vcc")
    for k in range(8): e(f"v_mul_f32 v{S0+k}, v{S0+k}, v{PP+1}")
    e(f"""v_add_f32 v{PP+2}, |v{S0}|, |v{S0+1}|
v_add_f32 v{PP+3}, |v{S0+2}|, |v{S0+3}|
v_add_f32 v{PP+4}, |v{S0+4}|, |v{S0+5}|
v_add_f32 v{PP+5}, |v{S0+6}|, |v{S0+7}|
v_add_f32 v{PP+2}, v{PP+2}, v{PP+3}
v_add_f32 v{PP+4}, v{PP+4}, v{PP+5}
s_mov_b32 s6, 0x7f7fffff
v_add_f32 v{PP+2}, v{PP+2}, v{PP+4}
v_cmp_nge_f32 vcc, s6, v{PP+2}
s_or_b64 vcc, vcc, s[{S_E}:{S_F}]""")
    if 'forcefb' in X: e("s_mov_b64 vcc, 1")
    e(f"s_cbranch_vccnz {fb}")
    e.label(bk)
    for k in range(4): e(f"v_cvt_pk_bf16_f32 v{K+k}, v{S0+2*k}, v{S0+2*k+1}")
    e(f"""v_cndmask_b32 v{K+2}, v{K+2}, 0, s[{S_A}:{S_B}]
v_cndmask_b32 v{K+3}, v{K+3}, 0, s[{S_A}:{S_B}]""")
    e.vm(f"buffer_store_dwordx4 {vr(K,4)}, v{VL16}, {WS}, s{S_OO} offen {SC}", "os")
    FALLBACKS.append((fb, bk))
    e.stamp("xc2")

FALLBACKS = []
def fallback(e, fb, bk):
    l1 = e.newlabel("fb1"); l2 = e.newlabel("fb2"); l3 = e.newlabel("fb3")
    M = PP + 7
    e.label(fb)
    e(f"s_mov_b32 s6, {KVF}\nv_mov_b32 v{M}, 0xff800000")
    e.label(l1)
    e(f"""buffer_load_dwordx4 {vr(K,4)}, v{VL16}, {WS}, s6 offen {SC}
buffer_load_dwordx4 {vr(K+4,4)}, v{VL16}, {WS}, s6 offen offset:1024 {SC}
s_add_u32 s6, s6, 4096
s_waitcnt vmcnt(0)""")
    e(mfma(S0, K, Q, "0")); e(mfma(S0, K + 4, Q + 4))
    e("s_nop 11")
    for k in range(8): e(f"v_max3_f32 v{M}, v{M}, v{S0+2*k}, v{S0+2*k+1}")
    e(f"""s_cmp_lt_u32 s6, {KVF + 64*4096}
s_cbranch_scc1 {l1}
v_mov_b32 v{PP}, v{M}
s_nop 1
v_permlane32_swap_b32 v{PP}, v{M}
v_max_f32 v{M}, v{M}, v{PP}
v_cvt_pk_bf16_f32 v{PP}, v{M}, v{M}
v_and_b32 v{PP}, s{S_MASK}, v{PP}
v_sub_f32 v{PP+1}, v{M}, v{PP}
v_cvt_pk_bf16_f32 v{PP+2}, v{PP+1}, v{PP+1}
v_and_b32 v{PP+2}, s{S_MASK}, v{PP+2}
v_sub_f32 v{PP+1}, v{PP+1}, v{PP+2}
v_cvt_pk_bf16_f32 v{PP}, -v{PP}, -v{PP+2}
v_cvt_pk_bf16_f32 v{PP+1}, -v{PP+1}, 0
v_cndmask_b32 v{Q+6}, v{Q+6}, v{PP}, s[{S_HI}:{S_HI+1}]
v_cndmask_b32 v{Q+7}, v{Q+7}, v{PP+1}, s[{S_HI}:{S_HI+1}]
s_mov_b32 s6, {KVF}""")
    for k in range(16): e(f"v_mov_b32 v{O+k}, 0")
    e.label(l2)
    for f in range(4): e(f"buffer_load_dwordx4 {vr(K+4*f,4)}, v{VL16}, {WS}, s6 offen offset:{1024*f} {SC}")
    e("s_add_u32 s6, s6, 4096\ns_waitcnt vmcnt(0)")
    e(mfma(S0, K, Q, "0")); e(mfma(S0, K + 4, Q + 4))
    e("s_nop 11")
    for k in range(16): e(f"v_exp_f32 v{S0+k}, v{S0+k}")
    e("s_nop 0")
    for k in range(8): e(f"v_cvt_pk_bf16_f32 v{PP+k}, v{S0+2*k}, v{S0+2*k+1}")
    e("s_nop 1")
    e(mfma(O, K + 8, PP)); e(mfma(O, K + 12, PP + 4))
    e(f"""s_cmp_lt_u32 s6, {KVF + 64*4096}
s_cbranch_scc1 {l2}
s_nop 11
v_mov_b32 v{PP}, v{O+12}
v_mov_b32 v{PP+1}, v{O+12}
s_cmp_eq_u32 s{S_KH}, 0
s_nop 0
v_permlane32_swap_b32 v{PP}, v{PP+1}
v_rcp_f32 v{PP+1}, v{PP+1}
s_cbranch_scc1 {l3}""")
    for k in range(8): e(f"v_mov_b32 v{O+k}, v{O+8+k}")
    e.label(l3)
    e("s_nop 0")
    for k in range(8): e(f"v_mul_f32 v{S0+k}, v{O+k}, v{PP+1}")
    e(f"s_branch {bk}")

def o_flag(e):
    e.stamp("xc3")
    e.wvm("os"); e.stamp("xc4"); e("s_barrier")
    flag_store(e, f"""s_lshl_b32 s6, s{S_RB}, 5
s_add_u32 s6, s6, s{S_J}
s_lshl_b32 s6, s6, 2
s_add_u32 s6, s6, {F_O}
v_mov_b32 v{G}, s6""", 1, G)

def tail(e, nq, fq):
    T = G
    OC, SUM = 64, 232
    OBR = [96 + 4 * k for k in range(7)] + [36]
    assert NOA >= 6
    AD = 248
    OA = lambda k: OAREG[k]
    for f in fq: f()
    for n in range(nq, 56):
        q, k = n // 4, n % 4
        if k == 0 and q + NB - 1 < 14:
            for f in f_loads(e, q + NB - 1): f()
        e.wvm(f"f{q}"); e(f_mfma(q, k))
    e(f"""v_and_b32 v{T}, 31, v0
v_lshrrev_b32 v{T+1}, 5, v0
v_and_b32 v{T+2}, 7, v0
v_xor_b32 v{T+1}, v{T+1}, v{T+2}
v_lshlrev_b32 v{T+1}, 4, v{T+1}
v_lshl_add_u32 v{T+3}, v{T}, 8, v{T+1}
s_lshl_b32 s6, s{S_W}, 14
v_add_u32 v{AD}, s6, v{T+3}""")
    for q in range(1, 4): e(f"v_xor_b32 v{AD+q}, {q*32}, v{AD}")
    dump = [(lambda r2=r2, d2=d2, q=q: e.ds(f"ds_write_b128 v{AD+q}, {vr(FA+32*r2+16*d2+4*q,4)} offset:{r2*8192 + d2*128}"))
            for (r2, d2) in ((0, 0), (0, 1), (1, 1), (1, 0)) for q in range(4)]
    setup = Side(e)
    setup.add(f"""s_lshr_b32 s6, s{S_J}, 3
s_lshl_b32 s7, s{S_RB}, 1
s_add_u32 s6, s6, s7
s_and_b32 s{S_B}, s{S_W}, 1
s_lshl_b32 s{S_C}, s6, 1
s_add_u32 s{S_C}, s{S_C}, s{S_B}
s_mul_i32 s{S_C}, s{S_C}, 144
s_lshr_b32 s{S_A}, s{S_W}, 1
s_lshl_b32 s{S_D}, s{S_A}, 3
s_add_u32 s{S_D}, s{S_D}, 112
s_add_u32 s{S_C}, s{S_C}, s{S_D}
s_lshl_b32 s{S_C}, s{S_C}, 10
s_and_b32 s7, s{S_J}, 7
s_add_u32 s{S_D}, s{S_C}, 4096
s_lshl_b32 s{S_A}, s{S_A}, 14
s_lshl_b32 s{S_B}, s{S_B}, 13
s_add_u32 s{S_G}, s{S_A}, s{S_B}
s_lshl_b32 s6, s6, 6
s_lshl_b32 s{S_B}, s{S_W}, 3
s_add_u32 s6, s6, s{S_B}
v_lshrrev_b32 v{T}, 3, v0
v_add_u32 v{T+1}, s6, v{T}
v_mul_u32_u24 v{T+1}, 896, v{T+1}
v_and_b32 v{T+2}, 7, v0
v_lshl_add_u32 v{T+1}, v{T+2}, 4, v{T+1}
s_lshl_b32 s7, s7, 7
v_add_u32 v{VO}, s7, v{T+1}
v_lshlrev_b32 v{T+2}, 1, v{T+2}
v_xor_b32 v{T+2}, v{T+2}, v{T}
v_lshlrev_b32 v{T+2}, 4, v{T+2}
v_lshl_add_u32 v{T}, v{T}, 8, v{T+2}
s_lshl_b32 s6, s{S_W}, 11
v_add_u32 v{AD+4}, s6, v{T}
v_xor_b32 v{AD+5}, 16, v{AD+4}
v_add_u32 v{AD+6}, 0x10000, v{AD+4}
v_add_u32 v{AD+7}, 0x10000, v{AD+5}""")
    nd1 = P("ND1", 5)
    oaq = [oa_load(e, k) for k in range(NOA, 16)]
    for f in dump[:nd1]:
        if oaq: oaq.pop(0)()
        f(); setup.emit(5)
    setup.flush()
    o_flag_regs = True
    e.stamp("xc3")
    e.wvm("os"); e.stamp("xc4"); e("s_barrier")
    flag_store(e, f"""s_lshl_b32 s6, s{S_RB}, 5
s_add_u32 s6, s6, s{S_J}
s_lshl_b32 s6, s6, 2
s_add_u32 s6, s6, {F_O}
v_mov_b32 v{T}, s6""", 1, T)
    e.vm(f"buffer_load_dwordx4 {vr(XRES,4)}, v{VO}, s[{SRD_X}:{SRD_X+3}], 0 offen", "xr")
    for f in dump[nd1:]:
        if oaq: oaq.pop(0)()
        f()
    for f in oaq: f()
    poll_issue(e, f"""s_lshl_b32 s6, s{S_RB}, 7
s_add_u32 s6, s6, {F_O}
v_and_b32 v{T}, 15, v0
v_lshl_add_u32 v{T}, v{T}, 2, s6""", T, T + 1, "op")
    srd(e, SRD_OUT, P_OUT, 2048 * 896)
    e(f"v_add_u32 v{AD}, s{S_G}, v{T+3}")
    e.wvm("xr")
    for k in range(4): e(f"v_lshlrev_b32 v{SUM+2*k}, 16, v{XRES+k}\nv_and_b32 v{SUM+1+2*k}, s{S_MASK}, v{XRES+k}")
    e.all_ds()
    for q in range(1, 4): e(f"v_xor_b32 v{AD+q}, {q*32}, v{AD}")
    def reduce_reads():
        for p in range(8):
            b0 = AD + 4 if p < 4 else AD + 6
            e.ds(f"ds_read_b128 {vr(FA+8*p,4)}, v{b0} offset:{(p&3)*16384}", f"p{p}")
            e.ds(f"ds_read_b128 {vr(FA+8*p+4,4)}, v{b0+1} offset:{(p&3)*16384}", f"p{p}")
        for p in range(8):
            e.wds(f"p{p}")
            for k in range(8): e(f"v_add_f32 v{SUM+k}, v{SUM+k}, v{FA+8*p+k}")
    early = P("EARLYRED", 1)
    if early: e("s_barrier"); reduce_reads()
    e.stamp("t1")
    poll_check(e, T, T + 1, "op")
    e("s_barrier")
    e.stamp("t2")
    for k in range(8):
        e.vm(f"buffer_load_dwordx4 {vr(OBR[k],4)}, v{VL16}, {WS}, s{S_C if k < 4 else S_D} offen offset:{(k&3)*1024} {SC}", f"ob{k}")
    if not early: reduce_reads(); e("s_barrier")
    for k in range(8):
        e.wvm(f"ob{k}")
        for d2 in range(2): e(mfma(OC + 16*d2, OA(2*k + d2), OBR[k], "0" if k == 0 else None))
    e("s_nop 10")
    e.stamp("t3")
    for d2 in range(2):
        for q in range(4): e.ds(f"ds_write_b128 v{AD+q}, {vr(OC+16*d2+4*q,4)} offset:{d2*128}")
    e.all_ds()
    e("s_barrier")
    for p in range(4):
        e.ds(f"ds_read_b128 {vr(FA+8*p,4)}, v{AD+4} offset:{p*16384}", f"s{p}")
        e.ds(f"ds_read_b128 {vr(FA+8*p+4,4)}, v{AD+5} offset:{p*16384}", f"s{p}")
    for p in range(4):
        e.wds(f"s{p}")
        for k in range(8): e(f"v_add_f32 v{SUM+k}, v{SUM+k}, v{FA+8*p+k}")
    for k in range(4): e(f"v_cvt_pk_bf16_f32 v{XRES+k}, v{SUM+2*k}, v{SUM+1+2*k}")
    e.vm(f"buffer_store_dwordx4 {vr(XRES,4)}, v{VO}, s[{SRD_OUT}:{SRD_OUT+3}], 0 offen {os.environ.get('OUTF', '')}")

def build():
    e = Em()
    kn = NAME + "_kernel"
    e.a.raw(f".globl {kn}\n.p2align 8\n.type {kn},@function")
    e.label(kn)
    prologue(e)
    gelu, h_off = phaseB(e)
    attn_setup(e, gelu, h_off)
    e(f"s_and_b32 s6, s{S_J}, 7\ns_cmp_eq_u32 s6, 7\ns_cbranch_scc1 C_noF")
    sn = e.snap(); ns = e.nst
    nq, fq = attn_loop(e, True)
    attn_finish(e)
    tail(e, nq, fq)
    nend = e.nst
    e("s_branch K_fin")
    e.label("C_noF")
    e.restore(sn); e.nst = ns
    attn_loop(e, False)
    attn_finish(e)
    o_flag(e)
    e(f"""s_cmp_eq_u32 s{S_RB}, 0
s_cbranch_scc0 C_noF_done
s_cmp_eq_u32 s{S_J}, 7
s_cbranch_scc0 C_noF_done
s_cmp_eq_u32 s{S_W}, 0
s_cbranch_scc0 C_noF_done""")
    for k in range(4):
        e(f"""v_lshrrev_b32 v{G}, 4, v0
v_and_b32 v{G+1}, 15, v0
v_lshlrev_b32 v{G}, 7, v{G}
v_lshl_add_u32 v{G}, v{G+1}, 2, v{G}
v_add_u32 v{G}, {F_H + 512*k}, v{G}""")
        e.vm(f"buffer_load_dword v{G+1}, v{G}, {WS}, 0 offen {SC}", f"ep{k}")
        poll_check(e, G, G + 1, f"ep{k}")
    e(f"v_mov_b32 v{G}, {EPO}\nv_mov_b32 v{G+1}, s{S_NON}\ns_mov_b64 exec, 1\nbuffer_store_dword v{G+1}, v{G}, {WS}, 0 offen {SC}\ns_mov_b64 exec, -1")
    e.label("C_noF_done")
    while e.nst < nend and not STAMPS_OFF: e.stamp()
    e.label("K_fin")
    if os.environ.get("AMPAT"):
        e("""s_waitcnt vmcnt(0)
s_memrealtime s[92:93]
s_waitcnt lgkmcnt(0)
s_sub_u32 s7, s94, s96
s_mul_i32 s7, s7, 10
K_amp:
s_sleep 1
s_memrealtime s[98:99]
s_waitcnt lgkmcnt(0)
s_sub_u32 s6, s98, s92
s_cmp_lt_u32 s6, s7
s_cbranch_scc1 K_amp""")
    if 'stdiag' in X:
        e("""s_memtime s[92:93]
s_waitcnt lgkmcnt(0)
K_sd:
s_sleep 2
s_memtime s[90:91]
s_waitcnt lgkmcnt(0)
s_sub_u32 s6, s90, s92
s_cmp_lt_u32 s6, s94
s_cbranch_scc1 K_sd""")
    if 'fix' in X:
        e("""K_fx:
s_sleep 1
s_memrealtime s[98:99]
s_waitcnt lgkmcnt(0)
s_sub_u32 s6, s98, s96
s_cmp_lt_u32 s6, 10000
s_cbranch_scc1 K_fx""")
    if 'amp' in X:
        e("""s_waitcnt vmcnt(0)
s_memrealtime s[98:99]
s_waitcnt lgkmcnt(0)
s_sub_u32 s7, s98, s96
s_mul_i32 s7, s7, 10
K_fx:
s_sleep 1
s_memrealtime s[98:99]
s_waitcnt lgkmcnt(0)
s_sub_u32 s6, s98, s96
s_cmp_lt_u32 s6, s7
s_cbranch_scc1 K_fx""")
    if STAMPS:
        e.stamp()
        e.label("K_fin2")
        e("s_memrealtime s[98:99]\ns_waitcnt lgkmcnt(0) vmcnt(0)")
        e(f"""s_mov_b32 s40, s{P_WS}
s_mov_b32 s41, s{P_WS+1}
s_mov_b32 s42, 0x10000000
s_mov_b32 s43, 0x00020000
s_lshl_b32 s6, s2, 3
s_add_u32 s6, s6, s{S_W}
s_lshl_b32 s6, s6, 6
s_add_u32 s6, s6, {STAMP_WS}
v_mov_b32 v2, s96
v_mov_b32 v3, s98""")
        for k in range(10): e(f"v_mov_b32 v{4+k}, {'s%d' % (76+2*k) if k < e.nst else 0}")
        e("v_mov_b32 v1, 0\ns_mov_b64 exec, 1")
        for q in range(3): e(f"buffer_store_dwordx4 v[{2+4*q}:{5+4*q}], v1, s[40:43], s6 offen offset:{16*q}")
    e("s_endpgm")
    for fb, bk in FALLBACKS: fallback(e, fb, bk)
    e.label("K_end")
    e("s_endpgm")
    probs = check_hazards(e.a.lines, "k")
    hdr = open("cdna_kernels/" + NAME + ".s.ref").read().split("; Override launch")[0]
    out = hdr + f"; @launch grid=(256,1,1) block=(512,1,1) lds={LDS_BYTES}\n"
    out += '.amdgcn_target "amdgcn-amd-amdhsa--gfx950"\n.text\n' + e.a.text()
    out += f""".section .rodata,"a"
.p2align 6
.amdhsa_kernel {kn}
  .amdhsa_next_free_vgpr 256
  .amdhsa_next_free_sgpr 102
  .amdhsa_accum_offset 256
  .amdhsa_group_segment_fixed_size 0
  .amdhsa_kernarg_size 96
  .amdhsa_user_sgpr_count 2
  .amdhsa_user_sgpr_kernarg_segment_ptr 1
  .amdhsa_system_sgpr_workgroup_id_x 1
  .amdhsa_float_denorm_mode_32 3
.end_amdhsa_kernel
"""
    return out, probs

if __name__ == "__main__":
    out, probs = build()
    for p in probs: print("HAZARD", p, file=sys.stderr)
    open(sys.argv[1] if len(sys.argv) > 1 else "cdna_kernels/" + NAME + ".s", "w").write(out)
```

```python
import sys, os, math, struct
from asmlib import *
X = set(os.environ.get('XFLAGS', '').split(','))
def P(name, default): return int(os.environ.get(name, default))
NAME = "parallel_sum__grouped_kv_mqa__glu_gated_geglu__prompt"
def f2u(x): return struct.unpack("<I", struct.pack("<f", x))[0]

A2F = 0
W2T = 64 * 144 * 1024
QF  = W2T + 7 * 144 * 2048
KVF = QF + 64 * 16 * 2048
FLG = KVF + 64 * 4096
RKV = P("RKV", 16)
F_W  = FLG
F_H  = FLG + 2048
F_O  = FLG + 4096
EPO  = FLG + 6144
F_KV = FLG + 8192
STAT = F_KV + 256 * RKV
WS_END = STAT + 2048 * 8
OOB = 0x7ffffff0
P_X, P_WQ, P_WK, P_WV, P_WO, P_BX, P_WG, P_WU, P_WD, P_OUT, P_DBG, P_WS = 8, 10, 12, 14, 16, 18, 20, 22, 24, 26, 28, 30
SRD_X, SRD_WS, SRD_T, SRD_PC = 32, 36, 40, 44
SRD_OUT = SRD_T
S_W, S_RB, S_J = 3, 4, 5
(S_WB, S_MASK, S_XO, S_XO2, S_RT, S_CG, S_MUL, S_T0, S_T1, S_U, S_NON, S_LA, S_LB, S_TO, S_QU) = range(48, 63)
S_HI = 64
S_A, S_B, S_C, S_D, S_E, S_F = 66, 67, 68, 69, 70, 71
S_G, S_H2 = 72, 73
S_CNT = 74
WS = f"s[{SRD_WS}:{SRD_WS+3}]"
SC = "sc1"
STAMPS = bool(os.environ.get("STAMPS"))
STAMP_WS = 200 * 1024 * 1024
SPIN_MAX = 1 << 18
STAMPS_OFF = False

class Em:
    def __init__(s):
        s.a = Asm(); s.q = {'ds': [], 'vm': []}; s.done = {'ds': 0, 'vm': 0}; s.nst = 0; s.uid = 0; s.mark = {}
    def __call__(s, t): s.a(t)
    def label(s, l): s.a.label(l)
    def ds(s, ins, tag=None): s.a(ins); s.q['ds'].append(tag)
    def vm(s, ins, tag=None): s.a(ins); s.q['vm'].append(tag)
    def _n(s, k, tags, cap):
        idx = -1
        for t in tags:
            ii = [i for i, x in enumerate(s.q[k]) if x == t]
            if not ii and 'nodma' in X: continue
            assert ii, f"tag {t} never issued"
            idx = max(idx, ii[-1])
        if idx < s.done[k]: return None
        n = min(len(s.q[k]) - 1 - idx, cap)
        s.done[k] = len(s.q[k]) - n
        return n
    def wds(s, *tags):
        n = s._n('ds', tags, 15)
        if n is not None: s.a(f"s_waitcnt lgkmcnt({n})")
    def wvm(s, *tags):
        n = s._n('vm', tags, 63)
        if n is not None: s.a(f"s_waitcnt vmcnt({n})")
    def wboth(s, *tags):
        n = s._n('vm', tags, 63)
        s.a("s_waitcnt lgkmcnt(0)" if n is None else f"s_waitcnt vmcnt({n}) lgkmcnt(0)"); s.done['ds'] = len(s.q['ds'])
    def all_ds(s): s.a("s_waitcnt lgkmcnt(0)"); s.done['ds'] = len(s.q['ds'])
    def all_vm(s): s.a("s_waitcnt vmcnt(0)"); s.done['vm'] = len(s.q['vm'])
    def snap(s): return ({k: list(v) for k, v in s.q.items()}, dict(s.done))
    def restore(s, sn): s.q = {k: list(v) for k, v in sn[0].items()}; s.done = dict(sn[1])
    def stamp(s, name=None):
        if name is not None and name == os.environ.get("IDLEAT"): s.a("s_sleep 32")
        if name is not None and name == os.environ.get("AMPAT"):
            s.a("s_memrealtime s[94:95]"); s.all_ds()
        sel = os.environ.get("STSEL")
        if sel is not None and name is not None and name not in sel.split(","): return
        if sel is None and name is not None and name.startswith("x"): return
        if STAMPS and not STAMPS_OFF:
            assert s.nst < 10
            s.a(f"{'s_memrealtime' if os.environ.get('RT') else 's_memtime'} s[{76+2*s.nst}:{77+2*s.nst}]"); s.nst += 1
            s.all_ds()
    def newlabel(s, p): s.uid += 1; return f"{p}_{s.uid}"

def srd(e, d, p, nbytes):
    e(f"s_mov_b32 s{d}, s{p}\ns_mov_b32 s{d+1}, s{p+1}\ns_mov_b32 s{d+2}, {nbytes}\ns_mov_b32 s{d+3}, 0x00020000")
def mfma(d, A, B, C=None):
    return f"v_mfma_f32_32x32x16_bf16 {vr(d,16)}, {vr(A,4)}, {vr(B,4)}, {vr(d,16) if C is None else C}"
def mfma16(d, A, B, C=None):
    return f"v_mfma_f32_16x16x32_bf16 {vr(d,4)}, {vr(A,4)}, {vr(B,4)}, {vr(d,4) if C is None else C}"

class Side:
    def __init__(s, e): s.e = e; s.q = []
    def add(s, items):
        if isinstance(items, str):
            raw = [l.strip() for l in items.strip().split("\n") if l.strip()]
            items = []
            for l in raw:
                if l.startswith("s_cselect"): items[-1] += "\n" + l
                else: items.append(l)
        s.q += list(items)
    def emit(s, n):
        while n > 0 and s.q:
            it = s.q.pop(0)
            if callable(it): it()
            else: s.e(it)
            n -= 1
    def flush(s): s.emit(1 << 30)

def flag_store(e, addr_lines, nlanes, vt):
    l = e.newlabel("fl")
    e(f"s_cmp_eq_u32 s{S_W}, 0\ns_cbranch_scc0 {l}")
    e(addr_lines)
    e(f"v_mov_b32 v{vt+1}, s{S_NON}\ns_mov_b64 exec, {(1 << nlanes) - 1}\nbuffer_store_dword v{vt+1}, v{vt}, {WS}, 0 offen {SC}\ns_mov_b64 exec, -1")
    e.label(l)

def poll_issue(e, addr_lines, vaddr, vdat, tag):
    l = e.newlabel("pi")
    e(f"s_cmp_eq_u32 s{S_W}, 0\ns_cbranch_scc0 {l}")
    e(addr_lines)
    e(f"buffer_load_dword v{vdat}, v{vaddr}, {WS}, 0 offen {SC}")
    e.label(l)
    e.mark[tag] = len(e.q['vm'])

def poll_check(e, vaddr, vdat, tag):
    ok = e.newlabel("pok"); sp = e.newlabel("psp")
    e(f"s_cmp_eq_u32 s{S_W}, 0\ns_cbranch_scc0 {ok}")
    e(f"s_waitcnt vmcnt({min(63, len(e.q['vm']) - e.mark[tag])})")
    e(f"v_cmp_ne_u32 vcc, s{S_NON}, v{vdat}\ns_cbranch_vccz {ok}\ns_mov_b32 s{S_CNT}, {SPIN_MAX}")
    e.label(sp)
    e(f"""s_sleep {P('SLEEP', 4)}
buffer_load_dword v{vdat}, v{vaddr}, {WS}, 0 offen {SC}
s_sub_u32 s{S_CNT}, s{S_CNT}, 1
s_waitcnt vmcnt(0)
v_cmp_ne_u32 vcc, s{S_NON}, v{vdat}
s_cmp_eq_u32 s{S_CNT}, 0
s_cbranch_scc1 {ok}
s_cbranch_vccnz {sp}""")
    e.label(ok)

RING = 32768
L_W2T = 131072
L_CSA = L_W2T + 8192
L_CSB = L_CSA + 2048
L_ST  = L_CSB + 2048
L_KVB = L_ST + 4096
L_FLG = L_KVB + 4096
LDS_BYTES = L_FLG + 256

VL16, VT, VX, GA, GS = 1, 2, 3, 4, 6
XA, WA = 8, 12
ST, SEL, CSA, WF, TM = 20, 24, 28, 36, 60
ACCA, ACCB, XR, G = 64, 96, 128, 240
SQA, SQB, TP = 60, 240, 248
WB, GB, PL = 250, 102, 252
R_, S_, AC, BC, I2 = 8, 9, 10, 11, 3
BEXT = 60


TA, TS, TX, TD = 96, 98, 99, 100
S_ISQ, S_SH = 63, 75
RW = 104
def w_source(row, c, dst, gs, t0):
    return f"""v_cmp_le_u32 vcc, s{S_A}, v{c}
v_mul_lo_u32 v{dst}, v{row}, s{S_B}
v_lshl_add_u32 v{dst}, v{c}, 4, v{dst}
v_add_u32 v{dst}, s{S_C}, v{dst}
v_subrev_u32 v{c}, s{S_A}, v{c}
v_lshlrev_b32 v{c}, s{S_G}, v{c}
v_mul_lo_u32 v{t0}, v{row}, s{S_D}
v_add3_u32 v{t0}, v{t0}, v{c}, s{S_H2}
v_cndmask_b32 v{dst}, v{dst}, v{t0}, vcc
v_mov_b32 v{gs}, s{S_B}
v_mov_b32 v{t0}, s{S_D}
v_cndmask_b32 v{gs}, v{gs}, v{t0}, vcc
v_lshlrev_b32 v{gs}, 5, v{gs}"""

ROTS = {0: [0]*8, 1: [0, 3, 2, 5, 4, 0, 6, 2], 2: [0, 3, 3, 0, 0, 3, 3, 0], 3: [0, 1, 2, 3, 4, 5, 6, 0], 4: [0, 4, 1, 5, 2, 6, 3, 0]}
ROTTAB = sum(v << (4 * i) for i, v in enumerate(ROTS[P("ROT", 0)]))
S_ROT = 47
S_WF = 46
RPAR, RBIT = P("RPAR", 0), P("RBIT", 0)
RPARCODE = "" if not RPAR else f"""
s_lshr_b32 s{S_F}, s2, 3
s_lshr_b32 s{S_T0}, s2, 6
s_xor_b32 s{S_F}, s{S_F}, s{S_T0}
s_and_b32 s{S_F}, s{S_F}, {RBIT or 1}
s_mul_i32 s{S_F}, s{S_F}, {RPAR}
s_add_u32 s{S_XO}, s{S_XO}, s{S_F}
s_cmp_ge_u32 s{S_XO}, 7
s_cselect_b32 s{S_F}, 7, 0
s_sub_u32 s{S_XO}, s{S_XO}, s{S_F}"""
def prologue(e):
    T = TM
    ROTCODE = f"""s_and_b32 s{S_XO}, s2, 7
s_lshl_b32 s{S_XO}, s{S_XO}, 2
s_lshr_b32 s{S_XO}, {ROTTAB:#x}, s{S_XO}
s_and_b32 s{S_XO}, s{S_XO}, 7{RPARCODE}
s_mov_b32 s{S_ROT}, s{S_XO}
s_lshl_b32 s{S_F}, s{S_XO}, 6
s_lshl_b32 s{S_XO}, s{S_XO}, 7
v_add_u32 v{T+2}, s{S_F}, v{T+2}
""" if any(ROTS[P('ROT', 0)]) or RPAR else f"s_mov_b32 s{S_ROT}, 0\n"
    e(f"s_cmp_ge_u32 s2, 256\ns_cbranch_scc1 K_end")
    if STAMPS or 'fix' in X or 'amp' in X or os.environ.get("AMPAT"): e("s_memrealtime s[96:97]")
    e.stamp()
    e("s_load_dwordx16 s[8:23], s[0:1], 0\ns_load_dwordx8 s[24:31], s[0:1], 64")
    e(f"s_getpc_b64 s[{SRD_PC}:{SRD_PC+1}]")
    e.label("K_pc")
    e(f"""s_mov_b32 s{SRD_PC+2}, K_end-K_pc
s_mov_b32 s{SRD_PC+3}, 0x00020000
v_lshlrev_b32 v1, 7, v0""")
    e.vm(f"buffer_load_dword v{TD}, v1, s[{SRD_PC}:{SRD_PC+3}], 0 offen")
    T = TM
    e(f"""v_lshrrev_b32 v1, 6, v0
v_and_b32 v0, 63, v0
v_readfirstlane_b32 s{S_W}, v1
s_nop 1""")
    if GT:
        e(f"""s_lshl_b32 s{S_TG}, s2, 3
s_add_u32 s{S_TG}, s{S_TG}, s{S_W}
s_min_u32 s6, s{S_TG}, 1393
s_cmp_ge_u32 s6, 448
s_cselect_b32 s7, 56, 48
s_cselect_b32 s{S_A}, 448, 0
s_mov_b32 s{S_D}, {448*3584}
s_cmp_ge_u32 s6, 896
s_cselect_b32 s7, 8, s7
s_cselect_b32 s{S_A}, 896, s{S_A}
s_cselect_b32 s{S_B}, 6, {15 if P('TQB', 0) else 11}
s_cselect_b32 s{S_C}, 7, 28
s_cselect_b32 s{S_D}, {448*896}, s{S_D}
s_cmp_ge_u32 s6, 1344
s_cselect_b32 s7, 16, s7
s_cselect_b32 s{S_A}, 1344, s{S_A}
s_cselect_b32 s{S_B}, 7, s{S_B}
s_cselect_b32 s{S_C}, 8, s{S_C}
s_cselect_b32 s{S_D}, {448*56}, s{S_D}
s_cmp_ge_u32 s6, 1369
s_cselect_b32 s7, 24, s7
s_cselect_b32 s{S_A}, 1369, s{S_A}
s_load_dwordx2 s[{SRD_T}:{SRD_T+1}], s[0:1], s7
s_mov_b32 s{SRD_T+2}, s{S_D}
s_mov_b32 s{SRD_T+3}, 0x00020000
s_sub_u32 s6, s6, s{S_A}
s_cmp_lt_u32 s6, {64 * P('GTS', 0)}
s_cselect_b32 s{S_TS}, 0, {OOB}
s_mul_i32 s6, s6, s{S_C}
v_min_u32 v{TA}, s{S_B}, v0
v_cmp_lt_u32 vcc, 11, v{TA}
v_add_u32 v{TA}, s6, v{TA}
v_add_u32 v{TA+1}, 12, v{TA}
v_cndmask_b32 v{TA}, v{TA}, v{TA+1}, vcc
v_lshlrev_b32 v{TA}, 7, v{TA}
s_mul_i32 s6, s{S_TG}, 896
v_lshl_add_u32 v{TX}, v0, 4, s6
v_cmp_lt_u32 vcc, 55, v0
v_mov_b32 v{TX+2}, {OOB}
s_nop 0
v_cndmask_b32 v{TX}, v{TX}, v{TX+2}, vcc""")
    e(f"""
s_bfe_u32 s{S_RB}, s2, 0x20001
s_lshl_b32 s{S_RB}, s{S_RB}, 2
s_lshr_b32 s6, s2, 6
s_add_u32 s{S_RB}, s{S_RB}, s6
s_and_b32 s{S_J}, s2, 1
s_lshl_b32 s{S_J}, s{S_J}, 3
s_bfe_u32 s7, s2, 0x30003
s_add_u32 s{S_J}, s{S_J}, s7
s_lshr_b32 s{S_QU}, s{S_J}, 2
s_sub_u32 s{S_LA}, s{S_J}, s{S_QU}
s_lshl_b32 s{S_WB}, s{S_W}, 10
s_lshl_b32 s{S_C}, s{S_LA}, 7
s_mul_i32 s{S_E}, s{S_QU}, 224
s_and_b32 s{S_F}, s{S_QU}, 1
s_sub_u32 s{S_G}, 4, s{S_F}
s_lshl_b32 s{S_F}, s{S_F}, 5
s_movk_i32 s{S_D}, 3584
s_and_b32 s{S_ISQ}, s{S_J}, 3
s_cmp_eq_u32 s{S_ISQ}, 3
s_cselect_b32 s{S_ISQ}, 1, 0
s_cselect_b32 s{S_A}, 14, 8
s_cselect_b32 s{S_B}, 896, s{S_D}
s_cselect_b32 s{S_D}, 56, s{S_D}
s_cselect_b32 s{S_H2}, s{S_F}, s{S_C}
s_cselect_b32 s{S_C}, s{S_E}, s{S_C}
s_cselect_b32 s{S_G}, s{S_G}, 4
s_add_u32 s{S_SH}, s{S_ISQ}, 1
s_lshl_b32 s{S_E}, s{S_RB}, 7
s_lshl_b32 s{S_F}, s{S_W}, 3
s_add_u32 s{S_F}, s{S_F}, s{S_E}
v_lshrrev_b32 v{T}, 3, v0
v_add_u32 v{T}, s{S_F}, v{T}
v_mul_u32_u24 v{T}, 896, v{T}
s_lshl_b32 s{S_F}, s{S_W}, 2
v_lshrrev_b32 v{T+1}, 4, v0
v_add_u32 v{T+2}, s{S_F}, v{T+1}
v_xor_b32 v{T+3}, v{T+2}, v0
v_and_b32 v{T+3}, 7, v{T+3}
v_lshl_add_u32 v{VX}, v{T+3}, 4, v{T}
{ROTCODE}v_lshlrev_b32 v{T+1}, s{S_SH}, v{T+1}
v_xor_b32 v{T+1}, v{T+1}, v0
v_and_b32 v{T+1}, 15, v{T+1}""")
    e(w_source(T + 2, T + 1, G, GS, T))
    e(f"s_mov_b64 s[{S_HI}:{S_HI+1}], vcc")
    if TOUCH:
        e(f"""s_and_b32 s6, s6, 3
s_lshl_b32 s6, s6, 3
s_add_u32 s6, s6, s{S_W}
s_lshl_b32 s6, s6, 1
s_lshl_b32 s7, s7, 3
s_add_u32 s7, s7, s{S_W}
s_lshl_b32 s7, s7, 1
s_add_u32 s7, s7, s{S_E}
v_bfe_u32 v{T+2}, v0, 3, 1
v_bfe_u32 v{T+1}, v0, 2, 1
v_lshl_add_u32 v{T+2}, v{T+2}, 6, v{T+1}
v_add_u32 v{T+2}, s6, v{T+2}
v_and_b32 v{T+1}, 3, v0
v_lshlrev_b32 v{T+1}, 2, v{T+1}
v_lshrrev_b32 v{T+1}, v{T+1}, s{S_MASK}
v_and_b32 v{T+1}, 15, v{T+1}
v_and_b32 v{T}, 1, v0
v_add_u32 v{T}, s7, v{T}
v_mul_u32_u24 v{TX}, 896, v{T}
v_bfe_u32 v{T}, v0, 1, 1
v_lshl_add_u32 v{TX}, v{T}, 7, v{TX}""".replace(f"v_lshrrev_b32 v{T+1}, v{T+1}, s{S_MASK}", f"s_movk_i32 s6, 0xed80\nv_lshrrev_b32 v{T+1}, v{T+1}, s6"))
        e(w_source(T + 2, T + 1, G + 1, TS, T))
    e("s_waitcnt lgkmcnt(0)")
    e.stamp("xs0")
    if 'stdiag' in X:
        e(f"""s_mov_b32 s40, s{P_WS}
s_mov_b32 s41, s{P_WS+1}
s_mov_b32 s42, 0x10000000
s_mov_b32 s43, 0x00020000
s_lshl_b32 s90, s2, 3
s_add_u32 s90, s90, s{S_W}
s_lshl_b32 s90, s90, 10
s_add_u32 s90, s90, {P('DOFF', 100) * 1024 * 1024}
v_lshlrev_b32 v110, 4, v0
buffer_store_dwordx4 v[112:115], v110, s[40:43], s90 offen sc1
s_waitcnt vmcnt(0)
s_add_u32 s90, s90, 0x200000
s_barrier
s_memtime s[92:93]
s_waitcnt lgkmcnt(0)
buffer_store_dwordx4 v[112:115], v110, s[40:43], s90 offen sc1
s_waitcnt vmcnt(0)
s_barrier
s_memtime s[94:95]
s_waitcnt lgkmcnt(0)
s_sub_u32 s94, s94, s92
s_mul_i32 s94, s94, 100""")
    srd(e, SRD_X, P_X, 2048 * 896)
    e(f"""s_cmp_lt_u32 s{S_QU}, 2
s_cselect_b32 s{S_C}, s{P_WK}, s{P_WV}
s_cselect_b32 s{S_D}, s{P_WK+1}, s{P_WV+1}
s_cmp_eq_u32 s{S_ISQ}, 1
s_cselect_b32 s{S_A}, s{P_WQ}, s{P_WG}
s_cselect_b32 s{S_B}, s{P_WQ+1}, s{P_WG+1}
s_cselect_b32 s{S_C}, s{S_C}, s{P_WU}
s_cselect_b32 s{S_D}, s{S_D}, s{P_WU+1}
v_mov_b32 v{T}, s{S_A}
v_mov_b32 v{T+1}, s{S_B}
v_mov_b32 v{T+2}, s{S_C}
v_mov_b32 v{T+3}, s{S_D}""")
    if TOUCH:
        e(f"""v_cndmask_b32 v{TA}, v{T}, v{T+2}, vcc
v_cndmask_b32 v{TA+1}, v{T+1}, v{T+3}, vcc
v_add_co_u32 v{TA}, vcc, v{TA}, v{G+1}
v_cndmask_b32 v{GA}, v{T}, v{T+2}, s[{S_HI}:{S_HI+1}]
v_cndmask_b32 v{GA+1}, v{T+1}, v{T+3}, s[{S_HI}:{S_HI+1}]
v_addc_co_u32 v{TA+1}, vcc, 0, v{TA+1}, vcc""")
        touch(e, 0)()
    else:
        e(f"""v_cndmask_b32 v{GA}, v{T}, v{T+2}, s[{S_HI}:{S_HI+1}]
v_cndmask_b32 v{GA+1}, v{T+1}, v{T+3}, s[{S_HI}:{S_HI+1}]""")
    e(f"v_add_co_u32 v{GA}, vcc, v{GA}, v{G}\nv_mov_b32 v{GS+1}, 0")
    if GT:
        e.vm(f"buffer_load_dwordx4 {vr(RW,4)}, v{TX}, s[{SRD_X}:{SRD_X+3}], 0 offen", "row")
        if GT & 2: e.vm(f"buffer_load_dword v{TD}, v{TA}, s[{SRD_T}:{SRD_T+3}], {'s%d' % S_TS if P('GTS', 0) else 0} offen", "t")
        if P("GTW", 0): e.wvm("row")
    if 'gonly' in X: e.all_vm(); e.stamp()
    dma_x(e, 0, 0)()
    e(f"v_addc_co_u32 v{GA+1}, vcc, 0, v{GA+1}, vcc")

TOUCH = P("TOUCH", 0)
GT = P("GT", 3)
ROT = P("ROT", 0)
LDX = os.environ.get("LDX", ""); LDW = os.environ.get("LDW", ""); LDT = os.environ.get("LDT", "")
def touch(e, k):
    def f():
        st = (0, 2, 4, 5)[k]
        e.vm(f"global_load_dword v{TD}, {vr(TA,2)}, off", f"t{k}")
        e(f"s_movk_i32 s{S_XO2}, {st * 128}")
        e.vm(f"buffer_load_dword v{TD}, v{TX}, s[{SRD_X}:{SRD_X+3}], s{S_XO2} offen", f"t{k}")
        if k < 3: e(f"v_mad_u64_u32 {vr(TA,2)}, s[{S_E}:{S_E+1}], v{TS}, {4 if k < 2 else 2}, {vr(TA,2)}")
    return f
S_TG, S_TS = 61, 57
def gtouch(e, st):
    def f():
        e(f"s_mul_i32 s{S_XO2}, s{S_TS}, {st}")
        e.vm(f"buffer_load_dword v{TD}, v{TA}, s[{SRD_PC}:{SRD_PC+3}], s{S_XO2} offen {LDT}", "t")
        e(f"s_movk_i32 s{S_XO2}, {st * 128}")
        e.vm(f"buffer_load_dword v{TD}, v{TX}, s[{SRD_X}:{SRD_X+3}], s{S_XO2} offen {LDT}", "t")
    return f
def dma_x(e, sig, i):
    def f():
        e(f"s_add_u32 m0, s{S_WB}, {(sig % 4) * RING + i * 8192}")
        if i == 0: e("s_nop 0"); so = S_XO
        else: e(f"s_add_u32 s{S_XO2}, s{S_XO}, {64*896}"); so = S_XO2
        e.vm(f"buffer_load_dwordx4 v{VX}, s[{SRD_X}:{SRD_X+3}], s{so} offen {LDX} lds", f"d{sig}")
    return f
def dma_w(e, sig, off, i, first=False):
    def f():
        if i == 0 and not first:
            e(f"s_add_u32 s{S_XO}, s{S_XO}, 128\ns_cmp_eq_u32 s{S_XO}, 896\ns_cselect_b32 s{S_XO}, 0, s{S_XO}\ns_cselect_b32 s{S_MUL}, -13, 1")
        e(f"s_add_u32 m0, s{S_WB}, {(sig % 4) * RING + off + i * 8192}")
        if first == 2: e(f"s_add_u32 s{S_XO}, s{S_XO}, 128\ns_cmp_eq_u32 s{S_XO}, 896\ns_cselect_b32 s{S_XO}, 0, s{S_XO}")
        elif first: e("s_nop 0")
        elif i == 0: e(f"v_mad_i64_i32 {vr(GA,2)}, s[{S_E}:{S_E+1}], v{GS}, s{S_MUL}, {vr(GA,2)}")
        else: e(f"v_lshl_add_u64 {vr(GA,2)}, {vr(GS,2)}, 0, {vr(GA,2)}")
        e.vm(f"global_load_lds_dwordx4 {vr(GA,2)}, off {LDW}", f"d{sig}")
    return f
if not any(ROTS[P("ROT", 0)]) and not RPAR:
    def dma_x(e, sig, i):
        def f():
            e(f"s_add_u32 m0, s{S_WB}, {(sig % 4) * RING + i * 8192}\ns_mov_b32 s{S_XO}, {sig * 128 + i * 64 * 896}")
            e.vm(f"buffer_load_dwordx4 v{VX}, s[{SRD_X}:{SRD_X+3}], s{S_XO} offen {LDX} lds", f"d{sig}")
        return f
    def dma_w(e, sig, off, i, first=False):
        def f():
            e(f"s_add_u32 m0, s{S_WB}, {(sig % 4) * RING + off + i * 8192}")
            e("s_nop 0" if first else f"v_lshl_add_u64 {vr(GA,2)}, {vr(GS,2)}, 0, {vr(GA,2)}")
            e.vm(f"global_load_lds_dwordx4 {vr(GA,2)}, off {LDW}", f"d{sig}")
        return f
def stage_dmas(e, sig):
    if 'nodma' in X and 2 <= sig: return [(lambda: e.q['vm'].append(f'd{sig}') or e.q['vm'].pop() if False else None)] if False else [lambda: None]
    if sig == 0: return [dma_x(e, sig, 0), dma_w(e, sig, 16384, 0, True), dma_x(e, sig, 1), dma_w(e, sig, 16384, 1)]
    if sig < 7: return [dma_w(e, sig, 16384, 0), dma_x(e, sig, 0), dma_w(e, sig, 16384, 1), dma_x(e, sig, 1)]
    l = []
    if sig == 7: l.append(lambda: e(f"v_mov_b32 v{GA}, v{GB}\nv_mov_b32 v{GA+1}, v{GB+1}\nv_mov_b32 v{GS}, {32*3584}"))
    l += [dma_w(e, sig, 0, 0, 2 if sig == 7 else False), dma_w(e, sig, 0, 1)]
    if sig < 10: l += [dma_w(e, sig, 16384, 0), dma_w(e, sig, 16384, 1)]
    return l

def late_touch(e):
    if P('GTS', 0):
        e(f"s_xor_b32 s{S_TS}, s{S_TS}, {OOB}")
        e.vm(f"buffer_load_dword v{TD}, v{TA}, s[{SRD_T}:{SRD_T+3}], s{S_TS} offen", "t")

def phaseB(e):
    T = TM
    for f in stage_dmas(e, 0)[1:]: f()
    if 'arr' in X:
        order = os.environ.get("ARR", "D1 D2 W0 D3 W1 D4 W2 D5 W3 D6 W4 W5 W6").split()
        for it in order:
            k = int(it[1:])
            if it[0] == 'D':
                for f in stage_dmas(e, k): f()
            elif it[0] == 'T': touch(e, k)()
            elif it[0] == 'G': gtouch(e, k)()
            elif it[0] == 'L': late_touch(e)
            elif it[0] == 'A': e.all_vm(); e.stamp()
            else: e.wvm(f"d{k}"); e("s_barrier"); e.stamp()
        srd(e, SRD_WS, P_WS, WS_END)
        e.stamp()
        e("s_branch K_fin2")
        global STAMPS_OFF; STAMPS_OFF = True
    e.stamp("xs2")
    e(f"s_mov_b32 s6, {EPO}\ns_load_dword s{S_NON}, s[{P_WS}:{P_WS+1}], s6")
    if TOUCH == 2: touch(e, 1)()
    for f in stage_dmas(e, 1): f()
    if TOUCH == 1: touch(e, 1)()
    late_touch(e)
    e.stamp("xs3")
    e(f"""s_and_b32 s{S_RT}, s{S_W}, 3
s_lshr_b32 s{S_CG}, s{S_W}, 2
s_lshl_b32 s{S_T0}, s{S_CG}, 1
s_add_u32 s{S_T1}, s{S_T0}, 1
s_xor_b32 s{S_A}, s{S_RT}, s{S_CG}
s_mov_b32 s{S_MASK}, 0xffff0000
s_mov_b32 s{S_HI}, 0
s_mov_b32 s{S_HI+1}, -1
v_lshlrev_b32 v{VL16}, 4, v0
v_and_b32 v{T}, 31, v0
v_lshrrev_b32 v{T+1}, 5, v0
v_bfe_u32 v{T+2}, v0, 1, 3
v_xor_b32 v{T+2}, v{T+2}, v{T+1}
v_lshlrev_b32 v{T+2}, 4, v{T+2}
v_lshl_add_u32 v{T+2}, v{T}, 7, v{T+2}
s_lshl_b32 s6, s{S_RT}, 12
s_lshl_b32 s{S_B}, s{S_A}, 5
s_or_b32 s6, s6, s{S_B}
v_xor_b32 v{XA}, s6, v{T+2}""")
    for pos in range(1, 4): e(f"v_xor_b32 v{XA+pos}, {pos<<5}, v{XA}")
    e(f"""v_bfe_u32 v{G+1}, v0, 2, 2
v_lshl_add_u32 v{WB}, v{T+1}, 3, v{G+1}
v_lshlrev_b32 v{WB}, 8, v{WB}
s_lshl_b32 s{S_A}, s{S_A}, 12
v_add_u32 v{WB}, s{S_A}, v{WB}
s_cmp_eq_u32 s{S_ISQ}, 1
s_cselect_b32 s{S_A}, 56, 32
s_cselect_b32 s{S_B}, 5, 7
s_cselect_b32 s{S_C}, 0x88880000, 0
s_mov_b32 s{S_D}, s{S_C}
s_add_u32 s6, s{S_SH}, 4
v_bfe_u32 v{T}, v0, 4, 1
v_and_b32 v{T+1}, 3, v0
v_lshlrev_b32 v{T}, s{S_B}, v{T}
v_lshl_add_u32 v{T}, v{T+1}, 3, v{T}
v_lshlrev_b32 v{T+1}, s6, v{G+1}""")
    for i, st_ in ((0, S_T0), (1, S_T1)):
        e(f"""s_mul_i32 s6, s{st_}, s{S_A}
s_lshl_b32 s7, s{st_}, 3
s_sub_u32 s7, 248, s7
v_add_u32 v{T+2}, s6, v{T}
v_mov_b32 v{T+3}, s7
v_cndmask_b32 v{T+2}, v{T+2}, v{T+3}, s[{S_C}:{S_D}]
v_xor_b32 v{T+2}, v{T+2}, v{T+1}
v_add_u32 v{WA+4*i}, v{T+2}, v{WB}""")
    for i in range(2):
        for pos in range(1, 4): e(f"v_xor_b32 v{WA+4*i+pos}, {pos<<12}, v{WA+4*i}")
    e(f"""v_bfe_u32 v{T}, v0, 4, 1
v_and_b32 v{T+1}, 15, v0
v_cmp_eq_u32 vcc, v{T}, v{T+1}
v_mov_b32 v{T}, 0x3f803f80
s_nop 0
v_cndmask_b32 v{SEL}, 0, v{T}, vcc
v_mov_b32 v{SEL+1}, v{SEL}
v_mov_b32 v{SEL+2}, v{SEL}
v_mov_b32 v{SEL+3}, v{SEL}""")
    w2t_addr = f"""s_mul_i32 s6, s{S_RB}, 12
s_add_u32 s6, s6, s{S_LA}
s_lshl_b32 s7, s{S_RB}, 2
s_add_u32 s7, s7, s{S_QU}
s_min_u32 s7, s7, 59
s_add_u32 s{S_A}, s7, 136
s_cmp_eq_u32 s{S_ISQ}, 1
s_cselect_b32 s6, s{S_A}, s6
s_cselect_b32 s7, s7, 63
s_mul_hi_u32 s{S_A}, s6, {(2**32 + 27)//28}
s_mul_i32 s{S_B}, s{S_A}, 28
s_sub_u32 s{S_B}, s6, s{S_B}
s_lshr_b32 s{S_C}, s7, 3
s_and_b32 s{S_D}, s7, 7
s_add_u32 s{S_D}, s{S_D}, 28
s_cmp_lt_u32 s7, 56
s_cselect_b32 s6, s{S_C}, s{S_A}
s_cselect_b32 s{S_B}, s{S_D}, s{S_B}
s_lshl_b32 s{S_WF}, s6, 6
s_add_u32 s{S_WF}, s{S_WF}, s{S_B}
s_lshl_b32 s{S_A}, s{S_B}, 2
s_lshr_b32 s{S_B}, s{S_W}, 1
s_add_u32 s{S_A}, s{S_A}, s{S_B}
s_mul_i32 s{S_U}, s6, 144
s_add_u32 s{S_U}, s{S_U}, s{S_A}
s_lshl_b32 s{S_B}, s{S_A}, 4
s_sub_u32 s{S_C}, s{S_A}, 112
s_lshr_b32 s{S_D}, s{S_C}, 1
s_mul_i32 s{S_D}, s{S_D}, 28
s_and_b32 s{S_C}, s{S_C}, 1
s_lshl_b32 s{S_C}, s{S_C}, 4
s_add_u32 s{S_C}, s{S_C}, s{S_D}
s_mov_b32 s{S_D}, {448*896}
s_cmp_lt_u32 s{S_A}, 112
s_cselect_b32 s{S_B}, s{S_B}, s{S_C}
s_cselect_b32 s{SRD_T}, s{P_WD}, s{P_WO}
s_cselect_b32 s{SRD_T+1}, s{P_WD+1}, s{P_WO+1}
s_cselect_b32 s{SRD_T+2}, {1792*896}, s{S_D}
s_mov_b32 s{SRD_T+3}, 0x00020000
s_and_b32 s{S_C}, s{S_W}, 1
s_lshl_b32 s{S_C}, s{S_C}, 3
s_add_u32 s{S_B}, s{S_B}, s{S_C}
s_mul_i32 s{S_B}, s{S_B}, 896
s_lshl_b32 s6, s6, 7
s_add_u32 s{S_TO}, s{S_B}, s6
v_lshrrev_b32 v{TP}, 3, v0
v_mul_u32_u24 v{TP}, 896, v{TP}
v_and_b32 v{TP+1}, 7, v0
v_lshl_add_u32 v{VT}, v{TP+1}, 4, v{TP}"""
    late = (f"""s_add_u32 s{S_LB}, s{S_LA}, 12
s_add_u32 s6, s{S_QU}, 24
s_cmp_eq_u32 s{S_ISQ}, 1
s_cselect_b32 s{S_LB}, s6, s{S_LB}
""" if P("LBOLD", 1) else f"s_add_u32 s{S_LB}, s{S_J}, 12\n") + f"""v_lshrrev_b32 v{TP}, 4, v0
s_lshl_b32 s6, s{S_ROT}, 4
s_add_u32 s6, s6, s{S_W}
s_lshl_b32 s6, s6, 2
v_add_u32 v{TP+1}, s6, v{TP}
v_mul_u32_u24 v{TP+1}, 3584, v{TP+1}
v_lshlrev_b32 v{TP}, 1, v{TP}
v_xor_b32 v{TP}, v{TP}, v0
v_and_b32 v{GB}, 7, v{TP}
v_lshl_add_u32 v{TP+1}, v{GB}, 4, v{TP+1}
s_lshl_b32 s6, s{S_LB}, 7
v_add_u32 v{TP+1}, s6, v{TP+1}
v_and_b32 v{TP}, 8, v{TP}
v_cmp_eq_u32 vcc, 8, v{TP}
v_mov_b32 v{GB}, s{P_WG}
v_mov_b32 v{TP}, s{P_WU}
v_cndmask_b32 v{GB}, v{GB}, v{TP}, vcc
v_mov_b32 v{GB+1}, s{P_WG+1}
v_mov_b32 v{TP}, s{P_WU+1}
v_cndmask_b32 v{GB+1}, v{GB+1}, v{TP}, vcc
v_add_co_u32 v{GB}, vcc, v{GB}, v{TP+1}
v_bfe_u32 v{TP}, v0, 4, 1
v_and_b32 v{TP+1}, 3, v0
v_addc_co_u32 v{GB+1}, vcc, 0, v{GB+1}, vcc
v_lshlrev_b32 v{TP+1}, 3, v{TP+1}
v_lshl_add_u32 v{TP}, v{TP}, 7, v{TP+1}
v_bfe_u32 v{TP+1}, v0, 2, 2
v_lshlrev_b32 v{TP+1}, 5, v{TP+1}
v_xor_b32 v{TP}, v{TP}, v{TP+1}
s_lshl_b32 s6, s{S_T0}, 5
v_xor_b32 v{TP}, s6, v{TP}
v_add_u32 v{WB}, v{TP}, v{WB}
v_xor_b32 v{WB+1}, 32, v{WB}"""
    e.stamp("xs4")
    srd(e, SRD_WS, P_WS, WS_END)
    e("s_waitcnt lgkmcnt(0)")
    e(f"s_add_u32 s{S_NON}, s{S_NON}, 1")
    U = RW + 4; A_, B_ = RW, RW + 1
    e.wvm("row")
    for k in range(4): e(f"v_lshlrev_b32 v{U+2*k}, 16, v{RW+k}\nv_and_b32 v{U+2*k+1}, s{S_MASK}, v{RW+k}")
    e(f"v_add_f32 v{A_}, v{U}, v{U+1}\nv_mul_f32 v{B_}, v{U}, v{U}\nv_add_f32 v{A_+2}, v{U+2}, v{U+3}\nv_mul_f32 v{B_+2}, v{U+1}, v{U+1}")
    for k in (2, 4, 6): e(f"v_fmac_f32 v{B_}, v{U+k}, v{U+k}\nv_fmac_f32 v{B_+2}, v{U+k+1}, v{U+k+1}")
    e(f"""v_add_f32 v{U}, v{U+4}, v{U+5}
v_add_f32 v{U+1}, v{U+6}, v{U+7}
v_add_f32 v{A_}, v{A_}, v{A_+2}
v_add_f32 v{U}, v{U}, v{U+1}
v_add_f32 v{B_}, v{B_}, v{B_+2}
v_add_f32 v{A_}, v{A_}, v{U}
s_lshl_b32 s6, s{S_TG}, 3""")
    for d in ("row_shr:1 row_mask:0xf bank_mask:0xf bound_ctrl:0", "row_shr:2 row_mask:0xf bank_mask:0xf bound_ctrl:0",
              "row_shr:4 row_mask:0xf bank_mask:0xf bound_ctrl:0", "row_shr:8 row_mask:0xf bank_mask:0xf bound_ctrl:0",
              "row_bcast:15 row_mask:0xa bank_mask:0xf", "row_bcast:31 row_mask:0xc bank_mask:0xf"):
        e(f"v_add_f32_dpp v{B_}, v{B_}, v{B_} {d}\nv_add_f32_dpp v{A_}, v{A_}, v{A_} {d}\ns_nop 0")
    e(f"""s_add_u32 s6, s6, {STAT}
v_mul_f32 v{A_}, {f2u(1.0/448)}, v{A_}
v_mul_f32 v{B_}, {f2u(1.0/448)}, v{B_}
v_fma_f32 v{B_}, -v{A_}, v{A_}, v{B_}
v_max_f32 v{B_}, 0, v{B_}
v_cvt_pk_bf16_f32 v{B_}, v{B_}, v{B_}
v_and_b32 v{B_}, s{S_MASK}, v{B_}
v_add_f32 v{B_}, {f2u(1e-5)}, v{B_}
v_cvt_pk_bf16_f32 v{B_}, v{B_}, v{B_}
v_and_b32 v{B_}, s{S_MASK}, v{B_}
v_sqrt_f32 v{B_}, v{B_}
v_mov_b32 v{U}, s6
v_cvt_pk_bf16_f32 v{A_}, -v{A_}, v{B_}
v_mov_b32 v{B_}, s{S_NON}
s_mov_b32 exec_lo, 0
s_mov_b32 exec_hi, 0x80000000""")
    e.vm(f"buffer_store_dwordx2 {vr(A_,2)}, v{U}, {WS}, 0 offen {SC}", "sts")
    e("s_mov_b64 exec, -1")
    e.stamp("xs5")
    if P("PRIO", 2) & 1: e(f"s_cmp_ge_u32 s{S_W}, 4\ns_cbranch_scc0 K_np\ns_setprio 1\nK_np:")
    e.wvm("d0")
    e("s_barrier")
    e.stamp("start")

    half = {'x': [0]*4, 'w': [0]*4}
    def reads(gp):
        if gp < 28: sig, sub, pos, reg = gp // 4, 0, gp % 4, 16384
        else:
            g = gp - 28; sig, sub, pos = 7 + g // 8, (g // 4) & 1, g % 4; reg = sub * 16384
        sl = sig % 4; h = sl >> 1; imm = (sl & 1) * RING
        buf = WF + 8 * (gp % 3)
        pre = []
        if 28 <= gp < 32:
            pre = [f"v_xor_b32 v{WA+4*i+pos}, {(pos << 12) | (h << 16)}, v{WB+i}" for i in range(2)]
            half['w'][pos] = h
        elif half['w'][pos] != h:
            pre = [f"v_xor_b32 v{WA+4*i+pos}, 0x10000, v{WA+4*i+pos}" for i in range(2)]
            half['w'][pos] = h
        if gp < 28 and half['x'][pos] != h:
            pre.append(f"v_xor_b32 v{XA+pos}, 0x10000, v{XA+pos}"); half['x'][pos] = h
        out = [(lambda l=l: e(l)) for l in pre]
        if gp < 28: out.append(lambda: e.ds(f"ds_read_b128 {vr(XR+4*gp,4)}, v{XA+pos} offset:{imm}", f"r{gp}"))
        for i in range(2):
            for u in range(2):
                out.append(lambda i=i, u=u: e.ds(f"ds_read_b64_tr_b16 {vr(buf+4*i+2*u,2)}, v{WA+4*i+pos} offset:{imm+reg+u*1024}", f"r{gp}"))
        return out
    def position(gp, side, dmaq, nside, barrier=None):
        p2 = gp >= 28; g = gp - 28 if p2 else gp
        acc = ACCB if p2 else ACCA
        buf = WF + 8 * (gp % 3); xr = XR + 4 * g
        e.wds(f"r{gp}")
        e(mfma(acc, buf, xr, "0" if g == 0 else None))
        if barrier: barrier()
        R = reads(gp + 2) if gp + 2 < 56 else []
        nx = 1 if gp + 2 < 28 else 0
        pre = R[:max(0, len(R) - 4 - nx)]; xrd = R[len(pre):len(pre) + nx]; tr = R[len(pre) + nx:]
        na = (nside + 1) // 2; nb = nside // 2
        for f in pre: f()
        if P("ORD", 1) == 0:
            for f in xrd + tr[:2]: f()
            side.emit(na)
            e(mfma(acc + 16, buf + 4, xr, "0" if g == 0 else None))
            for f in tr[2:]: f()
            if g % 4 == 0: e(mfma16(CSA, SEL, buf, "0" if g == 0 else None))
            if dmaq: dmaq.pop(0)()
            side.emit(nb)
            if g % 4 == 0: e(mfma16(CSA + 4, SEL, buf + 4, "0" if g == 0 else None))
        else:
            for f in tr[:1]: f()
            side.emit(min(2, na))
            for f in tr[1:2]: f()
            side.emit(na - min(2, na))
            e(mfma(acc + 16, buf + 4, xr, "0" if g == 0 else None))
            for f in tr[2:3]: f()
            side.emit(min(2, nb))
            for f in tr[3:]: f()
            side.emit(nb - min(2, nb))
            if g % 4 == 0: e(mfma16(CSA, SEL, buf, "0" if g == 0 else None))
            for f in xrd: f()
            if g % 4 == 0: e(mfma16(CSA + 4, SEL, buf + 4, "0" if g == 0 else None))
            if dmaq: dmaq.pop(0)()
    def stats(gp):
        x = XR + 4 * gp; c = lambda r: "0" if gp == 0 else vr(r, 4)
        return [mfma16(ST, SEL, x, c(ST)),
                f"v_mfma_f32_4x4x4_16b_bf16 {vr(SQA,4)}, {vr(x,2)}, {vr(x,2)}, {c(SQA)}\nv_mfma_f32_4x4x4_16b_bf16 {vr(SQB,4)}, {vr(x+2,2)}, {vr(x+2,2)}, {c(SQB)}"]
    def cs_write(dst):
        return [f"v_lshlrev_b32 v{G+8}, 4, v0", f"s_lshl_b32 s6, s{S_T0}, 9", f"s_lshl_b32 s{S_A}, s{S_RT}, 2",
                f"s_add_u32 s6, s6, s{S_A}", f"s_add_u32 s6, s6, {dst}", f"v_add_u32 v{G+8}, s6, v{G+8}",
                lambda: (e("s_mov_b64 exec, 0xffff"),
                         e.ds(f"ds_write_b32 v{G+8}, v{CSA}", "csw"), e.ds(f"ds_write_b32 v{G+8}, v{CSA+1} offset:256", "csw"),
                         e.ds(f"ds_write_b32 v{G+8}, v{CSA+4} offset:512", "csw"), e.ds(f"ds_write_b32 v{G+8}, v{CSA+5} offset:768", "csw"),
                         e("s_mov_b64 exec, -1"))]
    def cs_read(src):
        l = [f"v_and_b32 v{G+8}, 31, v0", f"v_lshlrev_b32 v{G+8}, 4, v{G+8}", f"s_lshl_b32 s6, s{S_T0}, 9", f"s_add_u32 s6, s6, {src}",
             f"v_add_u32 v{G+8}, s6, v{G+8}",
             lambda: e.ds(f"ds_read_b128 {vr(G,4)}, v{G+8}", "csr"), lambda: e.ds(f"ds_read_b128 {vr(G+4,4)}, v{G+8} offset:512", "csr")]
        m = [lambda: e.wds("csr")]
        for i in range(2):
            b = G + 4 * i
            m += [f"v_add_f32 v{b}, v{b}, v{b+1}", f"v_add_f32 v{b+2}, v{b+2}, v{b+3}"]
        for i in range(2): m += [f"v_add_f32 v{G+4*i}, v{G+4*i}, v{G+4*i+2}"]
        for i in range(2): m += [f"v_cvt_pk_bf16_f32 v{G+4*i+1}, v{G+4*i}, v{G+4*i}"]
        for i in range(2): m += [f"v_and_b32 v{G+4*i+1}, s{S_MASK}, v{G+4*i+1}"]
        for i in range(2): m += [f"v_sub_f32 v{G+4*i+1}, v{G+4*i}, v{G+4*i+1}"]
        for i in range(2): m += [f"v_cvt_pk_bf16_f32 v{G+4*i}, v{G+4*i}, v{G+4*i+1}"]
        for i in range(2): m += [f"v_cndmask_b32 v{ST+2*i}, v{G+4*i}, 0, s[{S_HI}:{S_HI+1}]"]
        return l, m

    KA = -2.0 * math.log2(math.e) * math.sqrt(2.0 / math.pi)
    GST = P("GST", 18)
    def stat_check():
        ok = e.newlabel("sok"); sp = e.newlabel("ssp")
        e.wvm("stl")
        e(f"v_cmp_ne_u32 vcc, s{S_NON}, v{BEXT+3}\ns_cbranch_vccz {ok}\ns_mov_b32 s{S_CNT}, {SPIN_MAX}")
        e.label(sp)
        e(f"""s_sleep 4
buffer_load_dwordx2 {vr(BEXT+2,2)}, v{G}, {WS}, 0 offen {SC}
s_sub_u32 s{S_CNT}, s{S_CNT}, 1
s_waitcnt vmcnt(0)
v_cmp_ne_u32 vcc, s{S_NON}, v{BEXT+3}
s_cmp_eq_u32 s{S_CNT}, 0
s_cbranch_scc1 {ok}
s_cbranch_vccnz {sp}""")
        e.label(ok)
    def after_exchange(side):
        l, m = cs_read(L_CSA)
        side.add(l)
        side.add(f"""v_and_b32 v{S_}, s{S_MASK}, v{BEXT+2}
v_and_b32 v{BEXT}, 0xffff, v{BEXT+2}
v_rcp_f32 v{R_}, v{S_}
v_lshl_or_b32 v{BEXT}, v{BEXT+2}, 16, v{BEXT}
v_mul_f32 v{I2}, v{S_}, v{S_}
v_mul_f32 v{AC}, {f2u(KA)}, v{R_}
v_mul_f32 v{BC}, v{R_}, v{R_}
v_mov_b32 v{ST+1}, 0
v_mul_f32 v{BC}, v{BC}, v{AC}
v_mov_b32 v{ST+3}, 0
v_mul_f32 v{BC}, {f2u(0.044715)}, v{BC}
v_mov_b32 v{BEXT+1}, 0
v_mov_b32 v{BEXT+2}, 0
v_mov_b32 v{BEXT+3}, 0""")
        side.add(m)
    for f in reads(0) + reads(1): f()
    side = Side(e); dmaq = list(stage_dmas(e, 2)) + ([touch(e, 2)] if TOUCH else [])
    w2side = Side(e)
    if GT & 4:
        w2side.add(f"""s_min_u32 s6, s{S_TG}, 895
s_cmp_ge_u32 s6, 448
s_cselect_b32 s{SRD_T}, s{P_WU}, s{P_WG}
s_cselect_b32 s{SRD_T+1}, s{P_WU+1}, s{P_WG+1}
s_cselect_b32 s7, 448, 0
s_mov_b32 s{SRD_T+2}, {448*3584}
s_sub_u32 s6, s6, s7
s_mul_i32 s6, s6, 3584
s_add_u32 s6, s6, 1536
v_and_b32 v{TA}, 15, v0
v_lshlrev_b32 v{TA}, 7, v{TA}""")
        w2side.add([lambda: e.vm(f"buffer_load_dword v{TD}, v{TA}, s[{SRD_T}:{SRD_T+3}], s6 offen", "t2")])
    w2side.add(late); w2side.add(w2t_addr)
    for gp in range(28):
        sig, pos = gp // 4, gp % 4
        bar = None
        if pos == 2:
            def bar(sig=sig):
                if sig == 6: side.flush(); stat_check(); e.wds("csw")
                e.wvm(f"d{sig+1}"); e("s_barrier")
                if sig == 6: after_exchange(side)
                assert not dmaq
                dmaq.extend(stage_dmas(e, sig + 3))
                if sig == 0 and TOUCH: dmaq.append(touch(e, 3))
        if gp == GST:
            side.add([f"s_lshl_b32 s{S_G}, s{S_RB}, 2", f"s_add_u32 s{S_G}, s{S_G}, s{S_RT}", f"s_lshl_b32 s{S_G}, s{S_G}, 8", f"s_add_u32 s{S_G}, s{S_G}, {STAT}",
                      f"v_and_b32 v{G}, 31, v0", f"v_lshl_add_u32 v{G}, v{G}, 3, s{S_G}",
                      lambda: e.vm(f"buffer_load_dwordx2 {vr(BEXT+2,2)}, v{G}, {WS}, 0 offen {SC}", "stl")])
        if gp == 25: assert not w2side.q; side.add(cs_write(L_CSA))
        n = len(side.q) if gp < 26 else P('NEX', 10)
        while len(dmaq) > 4 - ((pos + 2) % 4): dmaq.pop(0)()
        e.stamp(f"xp{gp}")
        w2side.emit(5 if gp < 2 else 3)
        position(gp, side, dmaq, n, bar)
    assert not w2side.q
    side.add(["s_nop 1", mfma(ACCA, ST, BEXT), mfma(ACCA + 16, ST + 2, BEXT)])
    carry = list(side.q)
    e.stamp("p1")

    KA = -2.0 * math.log2(math.e) * math.sqrt(2.0 / math.pi); KB = KA * 0.044715
    def gelu(acc, so, tb, keep=None):
        l = []
        for k in range(8): l.append(f"v_mul_f32 v{tb+k}, v{acc+k}, v{acc+k}")
        for k in range(8): l.append(f"v_fma_f32 v{tb+k}, v{tb+k}, v{BC}, v{AC}")
        for k in range(8): l.append(f"v_mul_f32 v{tb+k}, v{tb+k}, v{acc+k}")
        for k in range(8): l += [f"v_exp_f32 v{tb+k}, v{tb+k}", f"v_mul_f32 v{acc+k}, v{acc+k}, v{acc+8+k}"]
        for k in range(8): l.append(f"v_fma_f32 v{tb+k}, v{tb+k}, v{I2}, v{I2}")
        for k in range(8): l.append(f"v_rcp_f32 v{tb+k}, v{tb+k}")
        for k in range(8): l.append(f"v_mul_f32 v{acc+k}, v{acc+k}, v{tb+k}")
        if keep is not None:
            return l + [f"v_cvt_pk_bf16_f32 v{keep+k}, v{acc+2*k}, v{acc+2*k+1}" for k in range(4)]
        for k in range(4): l.append(f"v_cvt_pk_bf16_f32 v{acc+8+k}, v{acc+2*k}, v{acc+2*k+1}")
        l.append(lambda: e.vm(f"buffer_store_dwordx4 {vr(acc+8,4)}, v{VL16}, {WS}, s{so} offen {SC}", "hs"))
        return l
    def h_off(line, dst):
        return f"""s_lshl_b32 s6, s{S_RB}, 2
s_add_u32 s6, s6, s{S_RT}
s_mul_i32 s6, s6, 144
s_lshl_b32 s{dst}, s{line}, 2
s_add_u32 s6, s6, s{dst}
s_add_u32 s6, s6, s{S_T0}
s_lshl_b32 s{dst}, s6, 10
s_add_u32 s{dst+1}, s{dst}, 1024"""
    def w2t_out(side):
        side.add(f"""v_lshrrev_b32 v{TP}, 5, v0
v_bfe_u32 v{TP+1}, v0, 2, 2
v_lshl_add_u32 v{TP}, v{TP}, 2, v{TP+1}
v_lshlrev_b32 v{TP}, 7, v{TP}
v_bfe_u32 v{TP+1}, v0, 4, 1
v_lshl_add_u32 v{TP}, v{TP+1}, 5, v{TP}
v_and_b32 v{TP+1}, 3, v0
v_lshl_add_u32 v{TP}, v{TP+1}, 3, v{TP}
s_lshr_b32 s6, s{S_W}, 1
s_lshl_b32 s6, s6, 11
s_and_b32 s{S_A}, s{S_W}, 1
s_lshl_b32 s{S_B}, s{S_A}, 6
s_add_u32 s6, s6, s{S_B}
s_add_u32 s6, s6, {L_W2T}
v_add_u32 v{TP}, s6, v{TP}""")
        side.add([lambda: (e.ds(f"ds_read_b64_tr_b16 {vr(PL,2)}, v{TP}", "w2tr"), e.ds(f"ds_read_b64_tr_b16 {vr(PL+2,2)}, v{TP} offset:1024", "w2tr")),
                  f"s_lshl_b32 s6, s{S_U}, 11", f"s_lshl_b32 s{S_A}, s{S_A}, 10", f"s_add_u32 s6, s6, s{S_A}", f"s_add_u32 s{S_TO}, s6, {W2T}",
                  lambda: (e.wds("w2tr"), e.vm(f"buffer_store_dwordx4 {vr(PL,4)}, v{VL16}, {WS}, s{S_TO} offen {SC}", "w2ts"))])
    GEND = P("GEND", 20); GW2 = P("GW2", 22)
    GX, GBN, GFL, QRATE = P("GX", 0), P("GBN", 2), P("GFL", 9), P("QRATE", 40)
    def pass2(qfirst):
        side = Side(e); dq = list(dmaq); side.q = list(carry)
        for g in range(28):
            gp = 28 + g
            pre = []; wd = []; wv = []; post = []
            if g == 0:
                if not qfirst:
                    side.add(h_off(S_LA, S_C))
                    side.add(gelu(ACCA, S_C, G)); side.add(gelu(ACCA + 16, S_D, G))
                else: qkv_part1(side)
            if g == 6:
                post.append(lambda: dq.extend(stage_dmas(e, 10) + [lambda: (e(f"s_add_u32 m0, s{S_WB}, {L_W2T}\ns_nop 0"),
                            e.vm(f"buffer_load_dwordx4 v{VT}, s[{SRD_T}:{SRD_T+3}], s{S_TO} offen lds", "w2td"))]))
            if g == GW2: wv.append("w2td")
            if g in (6, 14, 22): wv.append(f"d{8 + g // 8}")
            if qfirst and g == GBN: pre.append(side.flush); wd.append("kvw"); post.append(lambda: qkv_part2(side))
            if qfirst and g == GFL:
                pre.append(side.flush); wv.append("qs")
                post.append(lambda: flag_store(e, f"""s_lshl_b32 s6, s{S_RB}, 2
s_add_u32 s6, s6, s{S_QU}
s_lshl_b32 s6, s6, 2
s_add_u32 s6, s6, {F_KV}
v_lshlrev_b32 v{G}, 8, v0
v_add_u32 v{G}, s6, v{G}""", RKV, G))
            if g == GW2 + 1:
                q0 = side.q; side.q = []; w2t_out(side); side.q += q0
            if g == 24:
                side.flush()
                poll_issue(e, f"""s_and_b32 s6, s2, {RKV-1}
s_lshl_b32 s6, s6, 8
s_add_u32 s6, s6, {F_KV}
v_lshl_add_u32 v{PL}, v0, 2, s6""", PL, PL + 1, "kvp")
            if g == 25:
                side.flush(); side.add(cs_write(L_CSB))
            if g == 26:
                pre.append(side.flush); wd.append("csw")
                def p():
                    l, m = cs_read(L_CSB); side.add(l); side.add(m)
                post.append(p)
            bar = None
            if wd or wv:
                def bar():
                    for f in pre: f()
                    if wd: e.wds(*wd)
                    if wv: e.wvm(*wv)
                    e("s_barrier")
                    for f in post: f()
            if qfirst: n = QRATE if g < GFL else 12
            else: n = -(-len(side.q) // max(1, GEND - g)) if g < GEND else 12
            e.stamp(f"xg{g}")
            position(gp, side, dq, n, bar)
        side.flush()
        e.stamp("xpe2")
        e("s_nop 1")
        e(mfma(ACCB, ST, BEXT)); e(mfma(ACCB + 16, ST + 2, BEXT))
    RQ = PL
    def qkv_part1(side):
        side.add(f"""v_mul_f32 v{RQ}, {f2u(28 ** -0.5 * math.log2(math.e))}, v{R_}
v_and_b32 v{G+8}, 31, v0
v_lshlrev_b32 v{G+8}, 5, v{G+8}
s_lshl_b32 s6, s{S_RT}, 10
s_add_u32 s6, s6, {L_KVB}
v_add_u32 v{G+8}, s6, v{G+8}
s_mov_b32 s{S_D}, 0x00003f80
s_cmp_lt_u32 s{S_QU}, 2
s_cselect_b32 s{S_C}, 0x3f803f80, s{S_D}
s_cselect_b32 s{S_D}, s{S_D}, 0
s_nop 1""")
        for i, st_ in ((0, S_T0), (1, S_T1)):
            acc = ACCA + 16 * i; b = G + 4 * i
            for k in range(4): side.add([f"v_mul_f32 v{b+k}, v{acc+12+k}, v{R_}"])
            side.add(f"""s_sub_u32 s6, 3, s{st_}
s_lshl_b32 s{S_A}, s{st_}, 2
s_lshr_b32 s{S_A}, 0x0132, s{S_A}
s_and_b32 s{S_A}, s{S_A}, 3
s_bitcmp1_b32 s{S_QU}, 0
s_cselect_b32 s6, s{S_A}, s6
s_cselect_b32 s{S_A}, s{S_A}, 0
s_lshl_b32 s6, s6, 3
v_cvt_pk_bf16_f32 v{b}, v{b}, v{b+1}
v_cvt_pk_bf16_f32 v{b+1}, v{b+2}, v{b+3}
v_add_u32 v{b+2}, s6, v{G+8}""")
            def wr(b=b):
                l = e.newlabel("nc")
                e(f"s_cmp_eq_u32 s{S_A}, 3\ns_cbranch_scc0 {l}\nv_mov_b32 v{b}, s{S_C}\nv_mov_b32 v{b+1}, s{S_D}")
                e.label(l)
                e(f"s_mov_b64 exec, s[{S_HI}:{S_HI+1}]")
                e.ds(f"ds_write_b64 v{b+2}, {vr(b,2)}", "kvw")
                e("s_mov_b64 exec, -1")
            side.add([wr])
    def qkv_part2(side):
        def kv():
            l = e.newlabel("kvs"); lv = e.newlabel("kvv"); ls = e.newlabel("kvt")
            e(f"""s_cmp_eq_u32 s{S_CG}, 0
s_cbranch_scc0 {l}
s_lshl_b32 s6, s{S_RB}, 2
s_add_u32 s6, s6, s{S_RT}
s_lshl_b32 s6, s6, 12
s_add_u32 s6, s6, {KVF}
s_lshl_b32 s{S_A}, s{S_RT}, 10
s_add_u32 s{S_A}, s{S_A}, {L_KVB}
s_cmp_lt_u32 s{S_QU}, 2
s_cbranch_scc0 {lv}
v_and_b32 v{G}, 31, v0
v_lshrrev_b32 v{G+1}, 5, v0
v_lshlrev_b32 v{G}, 5, v{G}
v_lshl_add_u32 v{G}, v{G+1}, 3, v{G}
v_add_u32 v{G}, s{S_A}, v{G}
ds_read2_b64 {vr(G+4,4)}, v{G} offset0:0 offset1:2
s_lshl_b32 s{S_A}, s{S_QU}, 10
s_add_u32 s6, s6, s{S_A}
v_mov_b32 v{G+2}, v{VL16}
s_branch {ls}""")
            e.label(lv)
            e(f"""v_lshrrev_b32 v{G}, 5, v0
v_bfe_u32 v{G+1}, v0, 4, 1
v_lshlrev_b32 v{G+2}, 10, v{G}
v_lshl_add_u32 v{G+2}, v{G+1}, 9, v{G+2}
v_lshlrev_b32 v{G}, 4, v{G}
v_lshl_add_u32 v{G}, v{G+1}, 2, v{G}
v_bfe_u32 v{G+1}, v0, 2, 2
v_add_u32 v{G}, v{G}, v{G+1}
v_lshlrev_b32 v{G}, 5, v{G}
v_and_b32 v{G+1}, 3, v0
v_lshl_add_u32 v{G}, v{G+1}, 3, v{G}
v_add_u32 v{G}, s{S_A}, v{G}
ds_read_b64_tr_b16 {vr(G+4,2)}, v{G}
ds_read_b64_tr_b16 {vr(G+6,2)}, v{G} offset:256
v_and_b32 v{G+1}, 15, v0
v_lshl_add_u32 v{G+2}, v{G+1}, 4, v{G+2}
s_and_b32 s{S_A}, s{S_QU}, 1
s_lshl_b32 s{S_A}, s{S_A}, 8
s_add_u32 s6, s6, s{S_A}
s_add_u32 s6, s6, 2048""")
            e.label(ls)
            e(f"s_waitcnt lgkmcnt(0)\nbuffer_store_dwordx4 {vr(G+4,4)}, v{G+2}, {WS}, s6 offen {SC}")
            e.label(l)
        side.add([kv])
        side.add(f"""s_lshl_b32 s6, s{S_RB}, 2
s_add_u32 s6, s6, s{S_RT}
s_lshl_b32 s6, s6, 2
s_add_u32 s6, s6, s{S_QU}
s_lshl_b32 s6, s6, 2
s_add_u32 s6, s6, s{S_T0}
s_lshl_b32 s6, s6, 11
s_add_u32 s{S_C}, s6, {QF}""")
        for i in range(2):
            acc = ACCA + 16 * i
            for k in range(16): side.add([f"v_mul_f32 v{acc+k}, v{acc+k}, v{RQ}"])
            for k in range(8): side.add([f"v_cvt_pk_bf16_f32 v{acc+k}, v{acc+2*k}, v{acc+2*k+1}"])
            side.add([f"v_cndmask_b32 v{acc+6}, v{acc+6}, 0, s[{S_HI}:{S_HI+1}]", f"v_cndmask_b32 v{acc+7}, v{acc+7}, 0, s[{S_HI}:{S_HI+1}]",
                      lambda acc=acc, i=i: e.vm(f"buffer_store_dwordx4 {vr(acc,4)}, v{VL16}, {WS}, s{S_C} offen offset:{2048*i} {SC}", "qs"),
                      lambda acc=acc, i=i: e.vm(f"buffer_store_dwordx4 {vr(acc+4,4)}, v{VL16}, {WS}, s{S_C} offen offset:{2048*i+1024} {SC}", "qs")])
    e(f"s_cmp_eq_u32 s{S_ISQ}, 1\ns_cbranch_scc1 B_p2q")
    sn = e.snap(); hs = {k: list(v) for k, v in half.items()}; ns = e.nst
    pass2(False)
    e("s_branch B_join")
    e.label("B_p2q")
    e.nst = ns
    e.restore(sn); half.update({k: list(v) for k, v in hs.items()})
    pass2(True)
    e.label("B_join")
    e.q = {'ds': [], 'vm': []}; e.done = {'ds': 0, 'vm': 0}; e.mark['kvp'] = 0
    e.stamp("join")
    return gelu, h_off

LB0, LB1, VO = 3, 4, 5
Q, O, S0, PP, K, V0, V1 = 36, 44, 64, 96, 104, 112, 120
FA, FB = 128, 192
XRES = 244
S_KH, S_QT, S_KVO, S_WB4, S_FA, S_FB0, S_FB1, S_OO = 50, 51, 54, 55, 56, 57, 59, 60
S_FQ, S_K1 = 62, 63
F0 = P("F0", 8)
FP = P("FP", 2)
HBP = P("HBP", 10)
F3 = P("F3", 40)
WOP = 18

def kv_dma(e, st):
    def m(): e(f"s_add_u32 m0, s{S_WB4}, {((st + 3) % 4) * RING}" + ("\ns_nop 0" if st < 3 else ""))
    m.scalar = True
    l = [m]
    for f in range(4):
        l.append(lambda f=f: (e.vm(f"buffer_load_dwordx4 v{VL16}, {WS}, s{S_KVO} offen offset:{1024*f} {SC} lds", f"k{st}"),
                              e(f"s_add_u32 s{S_KVO}, s{S_KVO}, 16384") if f == 3 else None))
    return l

NB = P("NB", 4)
FBUF = [[FB + 16 * n + 4 * k for k in range(4)] for n in range(3)] + [[60, 124, 248, 252]]
def f_loads(e, q):
    bb = FBUF[q % NB]
    r = q if q < 6 else q - 6
    advA = advB = None
    if q == 5:
        advA = f"s_add_u32 s{S_FA}, s{S_FA}, s{S_FQ}"
        advB = f"s_add_u32 s{S_FB0}, s{S_FB0}, s{S_K1}\ns_add_u32 s{S_FB1}, s{S_FB1}, s{S_K1}"
    else:
        if r & 1: advA = f"s_add_u32 s{S_FA}, s{S_FA}, 4096"
        if (r & 3) == 3: advB = f"s_add_u32 s{S_FB0}, s{S_FB0}, 4096\ns_add_u32 s{S_FB1}, s{S_FB1}, 4096"
    return [lambda: e.vm(f"buffer_load_dwordx4 {vr(bb[0],4)}, v{VL16}, {WS}, s{S_FA} offen offset:{(r&1)*2048} {SC}", f"f{q}"),
            lambda: e.vm(f"buffer_load_dwordx4 {vr(bb[2],4)}, v{VL16}, {WS}, s{S_FB0} offen offset:{(r&3)*1024} {SC}", f"f{q}"),
            lambda: (e.vm(f"buffer_load_dwordx4 {vr(bb[1],4)}, v{VL16}, {WS}, s{S_FA} offen offset:{(r&1)*2048+1024} {SC}", f"f{q}"),
                     e(advA) if advA else None),
            lambda: (e.vm(f"buffer_load_dwordx4 {vr(bb[3],4)}, v{VL16}, {WS}, s{S_FB1} offen offset:{(r&3)*1024} {SC}", f"f{q}"),
                     e(advB) if advB else None)]
def f_mfma(q, k):
    bb = FBUF[q % NB]; r2, d2 = ((0, 0), (0, 1), (1, 1), (1, 0))[k]
    return mfma(FA + 32*r2 + 16*d2, bb[d2], bb[2 + r2], "0" if q == 0 else None)

S_OA, S_OL = 61, 75
OAREG = [8 + 4 * k for k in range(7)] + [FB + 4 * k for k in range(9)]
def oa_dma(e, n):
    def f():
        if n == 0: e(f"s_add_u32 m0, s{S_OL}, {3 * RING}\ns_nop 0")
        if n == 4: e(f"s_mov_b32 m0, s{S_OL}\ns_add_u32 s{S_OA}, s{S_OA}, 8192")
        e.vm(f"buffer_load_dwordx4 v{VL16}, {WS}, s{S_OA} offen offset:{(n & 3) * 1024} {SC} lds", "oa")
    return f
KVPRE = P('KVPRE', 2)
HDEF = P('HDEF', 1); HFL = P('HFL', 6 if HDEF else 2); S_HO = 47
def attn_setup(e, gelu, h_off):
    e(h_off(S_LB, S_C))
    e(f"""s_mov_b32 s{S_QT}, s{S_RT}
s_mov_b32 s{S_KH}, s{S_CG}
s_lshl_b32 s{S_WB4}, s{S_W}, 12
s_lshl_b32 s6, s{S_KH}, 5
s_add_u32 s6, s6, s{S_QT}
s_lshl_b32 s6, s6, 12
s_add_u32 s{S_KVO}, s6, {KVF}
s_lshl_b32 s6, s{S_RB}, 2
s_add_u32 s6, s6, s{S_QT}
s_lshl_b32 s7, s6, 4
s_add_u32 s7, s7, s{S_J}
s_lshl_b32 s7, s7, 11
s_add_u32 s7, s7, {QF}""")
    if HDEF: e(f"s_mov_b32 s{S_HO}, s{S_C}")
    g0 = gelu(ACCB, S_C, G, 16 if HDEF else None); g1 = gelu(ACCB + 16, S_D, G, 20 if HDEF else None)
    nfirst = P("GFIRST", 0)
    both = g0 + g1
    for it in both[:nfirst]: it() if callable(it) else e(it)
    assert nfirst == 0
    poll_check(e, PL, PL + 1, "kvp")
    e.all_vm()
    e("s_barrier")
    e.stamp("xkv")
    flag_store(e, f"""s_lshl_b32 s6, s{S_RB}, 5
s_add_u32 s6, s6, s{S_J}
s_lshl_b32 s6, s6, 2
s_add_u32 s6, s6, {F_H + 64}
s_lshl_b32 s{S_A}, s{S_WF}, 2
s_add_u32 s{S_A}, s{S_A}, {F_W}
s_sub_u32 s{S_A}, s{S_A}, s6
v_mul_lo_u32 v{PL}, v0, s{S_A}
v_add_u32 v{PL}, s6, v{PL}""", 2, PL)
    if P("KVT", 0):
        e(f"""s_lshr_b32 s6, s2, 3
s_lshl_b32 s6, s6, 3
s_add_u32 s6, s6, s{S_W}
s_lshl_b32 s6, s6, 10
s_add_u32 s6, s6, {KVF}
v_and_b32 v{TP}, 7, v0
v_lshlrev_b32 v{TP}, 7, v{TP}""")
        e.vm(f"buffer_load_dword v{TP+1}, v{TP}, {WS}, s6 offen {SC}", "kvt")
    side = Side(e)
    side.add(kv_dma(e, 0))
    side.add([lambda: e.vm(f"buffer_load_dwordx4 {vr(Q,4)}, v{VL16}, {WS}, s7 offen {SC}", "q"),
              lambda: e.vm(f"buffer_load_dwordx4 {vr(Q+4,4)}, v{VL16}, {WS}, s7 offen offset:1024 {SC}", "q")])
    side.emit(P("KPRE0", 7))
    for st in range(1, KVPRE): side.add(kv_dma(e, st))
    for n, it in enumerate(both[nfirst:]):
        it() if callable(it) else e(it)
        if n % P('GSP', 1000) == P('GSP', 1000) - 1: side.emit(1)
        if n == 68: e.stamp("xg69")
    e.stamp("xgv")
    side.flush()
    e(f"""s_lshl_b32 s6, s{S_KH}, 14
v_add_u32 v{LB0}, s6, v{VL16}
v_add_u32 v{LB1}, 0x10000, v{LB0}
s_lshl_b32 s6, s{S_RB}, 2
s_add_u32 s6, s6, s{S_QT}
s_mul_i32 s6, s6, 144
s_lshl_b32 s7, s{S_J}, 1
s_add_u32 s6, s6, s7
s_add_u32 s6, s6, s{S_KH}
s_add_u32 s6, s6, 112
s_lshl_b32 s{S_OO}, s6, 10""")

def rd(e, dst, tile, f, tag):
    sl = (tile // 4 + 3) % 4
    e.ds(f"ds_read_b128 {vr(dst,4)}, v{LB0 if sl < 2 else LB1} offset:{(sl & 1) * RING + (tile % 4) * 4096 + f * 1024}", tag)

def attn_loop(e, withF):
    e.stamp("xge")
    if P("PRIO", 2) == 2:
        l = e.newlabel("np"); e(f"s_cmp_ge_u32 s{S_W}, 4\ns_cbranch_scc0 {l}\ns_setprio 1"); e.label(l)
    if P("PRIO", 2) == 5: e("s_setprio 0")
    e.wvm("k0", "q"); e.stamp("xk0"); e("s_barrier")
    e.stamp("astart")
    rd(e, K, 0, 0, "a"); rd(e, K + 4, 0, 1, "a"); rd(e, V0, 0, 2, "b")
    e.wds("a")
    e(mfma(S0, K, Q, "0")); e(mfma(S0, K + 4, Q + 4))
    rd(e, K, 1, 0, "b"); rd(e, K + 4, 1, 1, "b")
    if withF:
        e(f"""s_lshr_b32 s6, s{S_J}, 3
s_lshl_b32 s7, s{S_RB}, 1
s_add_u32 s6, s6, s7
s_and_b32 s7, s{S_J}, 7
s_mul_i32 s{S_A}, s{S_W}, 6
s_lshl_b32 s{S_K1}, s{S_W}, 1
s_add_u32 s{S_K1}, s{S_K1}, 44
s_lshl_b32 s{S_K1}, s{S_K1}, 10
s_lshl_b32 s{S_FQ}, s{S_K1}, 1
s_mul_i32 s{S_FB0}, s6, 288
s_add_u32 s{S_FB0}, s{S_FB0}, s{S_A}
s_lshl_b32 s{S_FB0}, s{S_FB0}, 10
s_add_u32 s{S_FB1}, s{S_FB0}, {144*1024}
s_bitcmp1_b32 s{S_W}, 0
s_cselect_b32 s{S_B}, s{S_FB1}, s{S_FB0}
s_cselect_b32 s{S_FB1}, s{S_FB0}, s{S_FB1}
s_mov_b32 s{S_FB0}, s{S_B}
s_mul_i32 s{S_FA}, s7, 144
s_add_u32 s{S_FA}, s{S_FA}, s{S_A}
s_lshl_b32 s{S_FA}, s{S_FA}, 11
s_add_u32 s{S_FA}, s{S_FA}, {W2T}
s_lshr_b32 s{S_A}, s{S_W}, 1
s_lshl_b32 s{S_A}, s{S_A}, 3
s_mul_i32 s{S_OA}, s7, 144
s_add_u32 s{S_OA}, s{S_OA}, s{S_A}
s_add_u32 s{S_OA}, s{S_OA}, 112
s_lshl_b32 s{S_OA}, s{S_OA}, 11
s_add_u32 s{S_OA}, s{S_OA}, {W2T}
s_and_b32 s{S_B}, s{S_W}, 1
s_lshl_b32 s{S_B}, s{S_B}, 12
s_add_u32 s{S_OA}, s{S_OA}, s{S_B}
s_lshl_b32 s{S_OL}, s{S_W}, 12""")
    else:
        e("s_nop 9")
    NT = 32
    fq = []
    nq = 0
    dq = []
    fi = 0
    need = {}; keep = []; done = [0]
    for i in range(NT):
        sc = S0 + 16 * (i & 1); sn = S0 + 16 * ((i + 1) & 1)
        v0c = V0 + 4 * (i & 1); v0n = V0 + 4 * ((i + 1) & 1)
        E = lambda r: f"v_exp_f32 v{r}, v{r}"
        C = lambda d, r: f"v_cvt_pk_bf16_f32 v{d}, v{r}, v{r+1}"
        def g(k): return [E(sc + 4*k + q) for q in range(4)] + [C(PP + 2*k, sc + 4*k), C(PP + 2*k + 1, sc + 4*k + 2)]
        g0, g1, g2, g3 = g(0), g(1), g(2), g(3)
        fm = []; fl = []
        if withF:
            if i == FP - 2:
                assert FP % 4 == 2
                fl = [lambda: poll_issue(e, f"""s_lshl_b32 s6, s{S_RB}, 7
s_add_u32 s6, s6, {F_H + 64}
s_and_b32 s7, s{S_J}, 7
s_lshl_b32 s7, s7, 8
s_add_u32 s7, s7, {F_W - 64}
v_lshl_add_u32 v{G}, v0, 2, s6
v_lshl_add_u32 v{G+1}, v0, 2, s7
v_mov_b32 v{G+2}, s6
s_mov_b32 s{S_A}, 0xffff0000
s_mov_b32 s{S_B}, 0x00000fff
s_mov_b32 s{S_C}, 0x00008888
s_mov_b32 s{S_D}, 0xfffff000
v_cndmask_b32 v{G}, v{G}, v{G+1}, s[{S_A}:{S_B}]
v_cndmask_b32 v{G}, v{G}, v{G+2}, s[{S_C}:{S_D}]""", G, G + 1, "hp")]
            if FP <= i < F0:
                if i == FP:
                    for q in range(NB - 1): fq += f_loads(e, q)
                n = -(-len(fq) // (F0 - i))
                fl = fq[:n]; fq = fq[n:]
            pb = []
            if i == HBP - 2:
                pb = [lambda: poll_issue(e, f"""s_lshl_b32 s6, s{S_RB}, 7
s_add_u32 s6, s6, {F_H}
v_and_b32 v{G}, 15, v0
v_lshl_add_u32 v{G}, v{G}, 2, s6""", G, G + 1, "hb")]
            if i == WOP - 2:
                pb = [lambda: poll_issue(e, f"""s_and_b32 s6, s{S_J}, 7
s_lshl_b32 s6, s6, 8
s_add_u32 s6, s6, {F_W + 112}
v_and_b32 v{G}, 7, v0
v_lshl_add_u32 v{G}, v{G}, 2, s6""", G, G + 1, "wo")]
            if i >= F0:
                cnt = 3 if i >= F3 else 2
                idx = list(range(fi, min(fi + cnt, 56))); fi += len(idx)
                fm = [(n // 4, n % 4) for n in idx]
                for (q, k) in fm:
                    if k == 0 and q + NB - 1 < 14:
                        if q + NB - 1 == 6: assert i > HBP
                        nl = f_loads(e, q + NB - 1)
                        for f in nl: need[id(f)] = 4 * q
                        keep.extend(nl); fq += nl
                n = min(len(fq), cnt)
                fl = fq[:n] + pb; fq = fq[n:]
        def em(x): x() if callable(x) else e(x)
        e.stamp(f"xa{i}")
        ex = [E(sc + k) for k in range(16)]; cv = [C(PP + k, sc + 2 * k) for k in range(8)]
        if i + KVPRE <= 2: dq += kv_dma(e, i + KVPRE)
        misc = []
        if i == 29: misc.append(comb_addr())
        if HDEF and i in (HDEF, HDEF + 1):
            misc.append(lambda i=i: e.vm(f"buffer_store_dwordx4 {vr(16 + 4*(i - HDEF),4)}, v{VL16}, {WS}, s{S_HO} offen offset:{1024*(i - HDEF)} {SC}", "hs"))
        if withF and 22 <= i < 30: misc.append(oa_dma(e, i - 22))
        gate = withF and i == FP
        def take(n):
            for _ in range(n):
                if fl and need.get(id(fl[0]), 0) <= done[0]: em(fl.pop(0))
        per = -(-len(fl) // 2)
        for x in ex[0:2]: em(x)
        def fmf(n):
            if n < len(fm):
                q, k = fm[n]
                e.wvm(f"f{q}"); e(f_mfma(q, k)); done[0] += 1
        if fm and fm[0][1] == 0: e.wboth(f"f{fm[0][0]}")
        else: e.all_ds()
        if i > 0: e(mfma(O, V1, PP + 4))
        rd(e, V1, i, 3, "c")
        for x in ex[2:5]: em(x)
        fmf(0)
        if not gate: take(1 if fm else per)
        for x in cv[0:2] + ex[5:7]: em(x)
        if i + 1 < NT: e(mfma(sn, K, Q, "0")); rd(e, v0n, i + 1, 2, "c")
        for x in ex[7:10]: em(x)
        if i + 1 < NT: e(mfma(sn, K + 4, Q + 4))
        if i % 4 == 2 and i + 2 < NT:
            st = i // 4
            if withF and i == FP: poll_check(e, G, G + 1, "hp")
            if withF and i == HBP: poll_check(e, G, G + 1, "hb")
            if withF and i == WOP: poll_check(e, G, G + 1, "wo")
            while dq and i == 2: dq.pop(0)()
            e.wvm(*([f"k{st+1}"] + (["hs"] if i == HFL else []))); e("s_barrier")
            if i == HFL:
                flag_store(e, f"""s_lshl_b32 s6, s{S_RB}, 5
s_add_u32 s6, s6, s{S_J}
s_lshl_b32 s6, s6, 2
s_add_u32 s6, s6, {F_H}
v_mov_b32 v{G+2}, s6""", 1, G + 2)
            assert not dq
            if st + 3 <= 7: dq += kv_dma(e, st + 3)
        if i + 2 < NT: rd(e, K, i + 2, 0, "c"); rd(e, K + 4, i + 2, 1, "c")
        if dq and getattr(dq[0], "scalar", False): dq.pop(0)()
        for x in cv[2:4] + ex[10:12]: em(x)
        fmf(1)
        take(1 if fm else len(fl) if not gate else per)
        for x in ex[12:14] + cv[4:6]: em(x)
        e(mfma(O, v0c, PP, "0" if i == 0 else None))
        for _ in range(1 if i >= 2 else 2):
            if dq: dq.pop(0)()
        if len(fm) < 3: take(len(fl))
        for x in misc: em(x)
        for x in ex[14:16] + cv[6:7]: em(x)
        fmf(2); take(len(fl))
        fq = fl + fq
        em(cv[7])
        if i + 2 >= NT: e("s_nop 1")
    e.all_ds()
    e("s_nop 0")
    e(mfma(O, V1, PP + 4))
    return fi, fq

CMB = L_W2T
def comb_addr():
    T = G
    return f"""s_lshl_b32 s6, s{S_W}, 11
s_add_u32 s6, s6, {CMB}
v_add_u32 v{T}, s6, v{VL16}
v_xor_b32 v{T+1}, 8192, v{T}
s_lshl_b32 s6, s{S_W}, 8
s_add_u32 s6, s6, {CMB + 16384}
v_lshl_add_u32 v{T+2}, v0, 2, s6
v_or_b32 v{T+3}, 32, v0
s_lshl_b32 s6, s{S_QT}, 8
s_add_u32 s6, s6, {CMB + 16384}
v_lshl_add_u32 v{T+3}, v{T+3}, 2, s6
s_mov_b32 s{S_C}, {f2u(2.0 ** -64)}
s_mov_b32 s{S_D}, {f2u(2.0 ** 64)}"""

def attn_finish(e, withF=False):
    T = G
    e.stamp("aend")
    hi = e.newlabel("chi"); jn = e.newlabel("cjn"); fb = e.newlabel("cfb"); bk = e.newlabel("cbk")
    e(f"s_cmp_eq_u32 s{S_KH}, 0\ns_nop 10")
    e.ds(f"ds_write_b32 v{T+2}, v{O+12}")
    e(f"s_cbranch_scc0 {hi}")
    e.ds(f"ds_write_b128 v{T}, {vr(O+8,4)}"); e.ds(f"ds_write_b128 v{T}, {vr(O+12,4)} offset:1024")
    e(f"s_branch {jn}")
    e.label(hi)
    e(f"ds_write_b128 v{T}, {vr(O,4)}\nds_write_b128 v{T}, {vr(O+4,4)} offset:1024")
    e.all_ds()
    for k in range(8): e(f"v_mov_b32 v{O+k}, v{O+8+k}")
    e.label(jn)
    if withF: e.wboth("oa")
    else: e.all_ds()
    e.stamp("xc0")
    e("s_barrier")
    e.stamp("xc1")
    e.ds(f"ds_read2st64_b32 {vr(PP,2)}, v{T+3} offset0:0 offset1:4", "l")
    e.ds(f"ds_read_b128 {vr(S0,4)}, v{T+1}", "h0"); e.ds(f"ds_read_b128 {vr(S0+4,4)}, v{T+1} offset:1024", "h1")
    e(f"s_mov_b32 s{S_A}, 0\ns_sub_u32 s{S_B}, 0, s{S_KH}")
    e.wds("l")
    e(f"""v_add_f32 v{PP}, v{PP}, v{PP+1}
v_rcp_f32 v{PP+1}, v{PP}
v_cmp_nle_f32 vcc, s{S_C}, v{PP}
v_cmp_nge_f32 s[{S_E}:{S_F}], s{S_D}, v{PP}""")
    e.all_ds()
    for k in range(8): e(f"v_add_f32 v{S0+k}, v{S0+k}, v{O+k}")
    e(f"s_or_b64 s[{S_E}:{S_F}], s[{S_E}:{S_F}], vcc")
    for k in range(8): e(f"v_mul_f32 v{S0+k}, v{S0+k}, v{PP+1}")
    e(f"""v_add_f32 v{PP+2}, |v{S0}|, |v{S0+1}|
v_add_f32 v{PP+3}, |v{S0+2}|, |v{S0+3}|
v_add_f32 v{PP+4}, |v{S0+4}|, |v{S0+5}|
v_add_f32 v{PP+5}, |v{S0+6}|, |v{S0+7}|
v_add_f32 v{PP+2}, v{PP+2}, v{PP+3}
v_add_f32 v{PP+4}, v{PP+4}, v{PP+5}
s_mov_b32 s6, 0x7f7fffff
v_add_f32 v{PP+2}, v{PP+2}, v{PP+4}
v_cmp_nge_f32 vcc, s6, v{PP+2}
s_or_b64 vcc, vcc, s[{S_E}:{S_F}]""")
    if 'forcefb' in X: e("s_mov_b64 vcc, 1")
    e(f"s_cbranch_vccnz {fb}")
    e.label(bk)
    for k in range(4): e(f"v_cvt_pk_bf16_f32 v{K+k}, v{S0+2*k}, v{S0+2*k+1}")
    e(f"""v_cndmask_b32 v{K+2}, v{K+2}, 0, s[{S_A}:{S_B}]
v_cndmask_b32 v{K+3}, v{K+3}, 0, s[{S_A}:{S_B}]""")
    e.vm(f"buffer_store_dwordx4 {vr(K,4)}, v{VL16}, {WS}, s{S_OO} offen {SC}", "os")
    FALLBACKS.append((fb, bk))
    e.stamp("xc2")

FALLBACKS = []
def fallback(e, fb, bk):
    l1 = e.newlabel("fb1"); l2 = e.newlabel("fb2"); l3 = e.newlabel("fb3")
    M = PP + 7
    e.label(fb)
    if 'fbcount' in X:
        e(f"""s_mov_b32 s80, s{P_DBG}
s_mov_b32 s81, s{P_DBG+1}
s_mov_b32 s82, 256
s_mov_b32 s83, 0x00020000
v_mov_b32 v{M}, 0
v_mov_b32 v{M-1}, 1
s_mov_b64 exec, 1
buffer_atomic_add v{M-1}, v{M}, s[80:83], 0 offen
v_mov_b32 v{M-1}, s2
buffer_store_dword v{M-1}, v{M}, s[80:83], 0 offen offset:4
v_mov_b32 v{M-1}, s{S_W}
buffer_store_dword v{M-1}, v{M}, s[80:83], 0 offen offset:8
v_mov_b32 v{M-1}, vcc_lo
buffer_store_dword v{M-1}, v{M}, s[80:83], 0 offen offset:12
v_mov_b32 v{M-1}, vcc_hi
buffer_store_dword v{M-1}, v{M}, s[80:83], 0 offen offset:16
v_mov_b32 v{M-1}, s{S_E}
buffer_store_dword v{M-1}, v{M}, s[80:83], 0 offen offset:20
v_mov_b32 v{M-1}, s{S_F}
buffer_store_dword v{M-1}, v{M}, s[80:83], 0 offen offset:24
buffer_store_dword v{PP}, v{M}, s[80:83], 0 offen offset:28
buffer_store_dword v{PP+2}, v{M}, s[80:83], 0 offen offset:32
s_waitcnt vmcnt(0)
s_mov_b64 exec, -1""")
    e(f"s_mov_b32 s6, {KVF}\nv_mov_b32 v{M}, 0xff800000")
    e.label(l1)
    e(f"""buffer_load_dwordx4 {vr(K,4)}, v{VL16}, {WS}, s6 offen {SC}
buffer_load_dwordx4 {vr(K+4,4)}, v{VL16}, {WS}, s6 offen offset:1024 {SC}
s_add_u32 s6, s6, 4096
s_waitcnt vmcnt(0)""")
    e(mfma(S0, K, Q, "0")); e(mfma(S0, K + 4, Q + 4))
    e("s_nop 11")
    for k in range(8): e(f"v_max3_f32 v{M}, v{M}, v{S0+2*k}, v{S0+2*k+1}")
    e(f"""s_cmp_lt_u32 s6, {KVF + 64*4096}
s_cbranch_scc1 {l1}
v_mov_b32 v{PP}, v{M}
s_nop 1
v_permlane32_swap_b32 v{PP}, v{M}
v_max_f32 v{M}, v{M}, v{PP}
v_cvt_pk_bf16_f32 v{PP}, v{M}, v{M}
v_and_b32 v{PP}, s{S_MASK}, v{PP}
v_sub_f32 v{PP+1}, v{M}, v{PP}
v_cvt_pk_bf16_f32 v{PP+2}, v{PP+1}, v{PP+1}
v_and_b32 v{PP+2}, s{S_MASK}, v{PP+2}
v_sub_f32 v{PP+1}, v{PP+1}, v{PP+2}
v_cvt_pk_bf16_f32 v{PP}, -v{PP}, -v{PP+2}
v_cvt_pk_bf16_f32 v{PP+1}, -v{PP+1}, 0
v_cndmask_b32 v{Q+6}, v{Q+6}, v{PP}, s[{S_HI}:{S_HI+1}]
v_cndmask_b32 v{Q+7}, v{Q+7}, v{PP+1}, s[{S_HI}:{S_HI+1}]
s_mov_b32 s6, {KVF}""")
    for k in range(16): e(f"v_mov_b32 v{O+k}, 0")
    e.label(l2)
    for f in range(4): e(f"buffer_load_dwordx4 {vr(K+4*f,4)}, v{VL16}, {WS}, s6 offen offset:{1024*f} {SC}")
    e("s_add_u32 s6, s6, 4096\ns_waitcnt vmcnt(0)")
    e(mfma(S0, K, Q, "0")); e(mfma(S0, K + 4, Q + 4))
    e("s_nop 11")
    for k in range(16): e(f"v_exp_f32 v{S0+k}, v{S0+k}")
    e("s_nop 0")
    for k in range(8): e(f"v_cvt_pk_bf16_f32 v{PP+k}, v{S0+2*k}, v{S0+2*k+1}")
    e("s_nop 1")
    e(mfma(O, K + 8, PP)); e(mfma(O, K + 12, PP + 4))
    e(f"""s_cmp_lt_u32 s6, {KVF + 64*4096}
s_cbranch_scc1 {l2}
s_nop 11
v_mov_b32 v{PP}, v{O+12}
v_mov_b32 v{PP+1}, v{O+12}
s_cmp_eq_u32 s{S_KH}, 0
s_nop 0
v_permlane32_swap_b32 v{PP}, v{PP+1}
v_rcp_f32 v{PP+1}, v{PP+1}
s_cbranch_scc1 {l3}""")
    for k in range(8): e(f"v_mov_b32 v{O+k}, v{O+8+k}")
    e.label(l3)
    e("s_nop 0")
    for k in range(8): e(f"v_mul_f32 v{S0+k}, v{O+k}, v{PP+1}")
    e(f"s_branch {bk}")

def o_flag(e):
    e.stamp("xc3")
    e.wvm("os"); e.stamp("xc4"); e("s_barrier")
    flag_store(e, f"""s_lshl_b32 s6, s{S_RB}, 5
s_add_u32 s6, s6, s{S_J}
s_lshl_b32 s6, s6, 2
s_add_u32 s6, s6, {F_O}
v_mov_b32 v{G}, s6""", 1, G)

def tail(e, nq, fq):
    T = G
    SUM = 232
    RB = 64
    OBR = [96 + 4 * k for k in range(7)] + [36]
    AD = 248
    for f in fq: f()
    for n in range(nq, 56):
        q, k = n // 4, n % 4
        if k == 0 and q + NB - 1 < 14:
            for f in f_loads(e, q + NB - 1): f()
        e.wvm(f"f{q}"); e(f_mfma(q, k))
    e(f"""s_lshl_b32 s6, s{S_W}, 13
s_add_u32 s6, s6, {RING}
v_add_u32 v{AD+6}, s6, v{VL16}
v_xor_b32 v{AD+7}, 8192, v{AD+6}""")
    if nq < 56: e("s_nop 8")
    setup = Side(e)
    setup.add(f"""s_lshr_b32 s6, s{S_J}, 3
s_lshl_b32 s7, s{S_RB}, 1
s_add_u32 s6, s6, s7
s_and_b32 s{S_B}, s{S_W}, 1
s_lshl_b32 s{S_C}, s6, 1
s_add_u32 s{S_C}, s{S_C}, s{S_B}
s_mul_i32 s{S_C}, s{S_C}, 144
s_lshr_b32 s{S_A}, s{S_W}, 1
s_lshl_b32 s{S_D}, s{S_A}, 3
s_add_u32 s{S_D}, s{S_D}, 112
s_add_u32 s{S_C}, s{S_C}, s{S_D}
s_lshl_b32 s{S_C}, s{S_C}, 10
s_and_b32 s7, s{S_J}, 7
s_add_u32 s{S_D}, s{S_C}, 4096
s_lshl_b32 s{S_A}, s{S_A}, 14
s_lshl_b32 s{S_B}, s{S_B}, 13
s_add_u32 s{S_G}, s{S_A}, s{S_B}
s_add_u32 s{S_G}, s{S_G}, {RING}
v_and_b32 v{T}, 31, v0
v_lshrrev_b32 v{T+1}, 5, v0
v_and_b32 v{T+2}, 7, v0
v_xor_b32 v{T+1}, v{T+1}, v{T+2}
v_lshlrev_b32 v{T+1}, 4, v{T+1}
v_lshl_add_u32 v{T}, v{T}, 8, v{T+1}
v_add_u32 v{AD}, s{S_G}, v{T}
v_xor_b32 v{AD+1}, 32, v{AD}
v_xor_b32 v{AD+2}, 64, v{AD}
v_xor_b32 v{AD+3}, 96, v{AD}
s_lshl_b32 s6, s6, 6
s_lshl_b32 s{S_B}, s{S_W}, 3
s_add_u32 s6, s6, s{S_B}
v_lshrrev_b32 v{T}, 3, v0
v_add_u32 v{T+1}, s6, v{T}
v_mul_u32_u24 v{T+1}, 896, v{T+1}
v_lshl_add_u32 v{T+1}, v{T+2}, 4, v{T+1}
s_lshl_b32 s7, s7, 7
v_add_u32 v{VO}, s7, v{T+1}
v_lshlrev_b32 v{T+2}, 1, v{T+2}
v_xor_b32 v{T+2}, v{T+2}, v{T}
v_lshlrev_b32 v{T+2}, 4, v{T+2}
v_lshl_add_u32 v{T}, v{T}, 8, v{T+2}
s_lshl_b32 s6, s{S_W}, 11
s_add_u32 s6, s6, {RING}
v_add_u32 v{AD+4}, s6, v{T}
v_xor_b32 v{AD+5}, 16, v{AD+4}
v_add_u32 v{T+2}, {3 * RING}, v{T+3}""")
    e(f"s_lshr_b32 s6, s{S_W}, 1\ns_lshl_b32 s6, s6, 13\nv_add_u32 v{T+3}, s6, v{VL16}\ns_nop 0")
    oaq = [(lambda k=k: e.ds(f"ds_read_b128 {vr(OAREG[k],4)}, v{T+2 if k < 8 else T+3} offset:{(k & 7) * 1024}", "oar")) for k in range(16)]
    nw1 = P("NW1", 2)
    def oflag():
        e.stamp("xc3")
        e.wvm("os");
        if nw1 == 8: e.all_ds()
        e.stamp("xc4"); e("s_barrier")
        flag_store(e, f"""s_lshl_b32 s{S_E}, s{S_RB}, 5
s_add_u32 s{S_E}, s{S_E}, s{S_J}
s_lshl_b32 s{S_E}, s{S_E}, 2
s_add_u32 s{S_E}, s{S_E}, {F_O}
v_mov_b32 v{SUM}, s{S_E}""", 1, SUM)
    for q in range(8):
        if q == nw1: oflag()
        e.ds(f"ds_write_b128 v{AD+6}, {vr(FA+32+4*q,4)} offset:{q*1024}")
        setup.emit(6)
    setup.flush()
    if nw1 == 8: oflag()
    if not P('OAL', 0):
        for f in oaq: f()
    e.vm(f"buffer_load_dwordx4 {vr(XRES,4)}, v{VO}, s[{SRD_X}:{SRD_X+3}], 0 offen", "xr")
    if nw1 < 8: e.all_ds(); e("s_barrier")
    for q in range(8): e.ds(f"ds_read_b128 {vr(RB+4*q,4)}, v{AD+7} offset:{q*1024}", f"p{q}")
    poll_issue(e, f"""s_lshl_b32 s6, s{S_RB}, 7
s_add_u32 s6, s6, {F_O}
v_and_b32 v{T}, 15, v0
v_lshl_add_u32 v{T}, v{T}, 2, s6""", T, T + 1, "op")
    srd(e, SRD_OUT, P_OUT, 2048 * 896)
    for q in range(8):
        e.wds(f"p{q}")
        for k in range(4): e(f"v_add_f32 v{FA+4*q+k}, v{FA+4*q+k}, v{RB+4*q+k}")
    e.stamp("t1")
    poll_check(e, T, T + 1, "op")
    e("s_barrier")
    e.stamp("t2")
    for k in range(8):
        e.vm(f"buffer_load_dwordx4 {vr(OBR[k],4)}, v{VL16}, {WS}, s{S_C if k < 4 else S_D} offen offset:{(k&3)*1024} {SC}", f"ob{k}")
    if P('OAL', 0):
        for f in oaq: f()
        e.all_ds()
    e.wvm("xr")
    for k in range(4): e(f"v_lshlrev_b32 v{SUM+2*k}, 16, v{XRES+k}\nv_and_b32 v{SUM+1+2*k}, s{S_MASK}, v{XRES+k}")
    for k in range(8):
        e.wvm(f"ob{k}")
        for d2 in range(2): e(mfma(FA + 16*d2, OAREG[2*k + d2], OBR[k]))
    e("s_nop 10")
    e.stamp("t3")
    for d2 in range(2):
        for q in range(4): e.ds(f"ds_write_b128 v{AD+q}, {vr(FA+16*d2+4*q,4)} offset:{d2*128}")
    e.all_ds()
    e("s_barrier")
    for p in range(4):
        e.ds(f"ds_read_b128 {vr(RB+8*p,4)}, v{AD+4} offset:{p*16384}", f"s{p}")
        e.ds(f"ds_read_b128 {vr(RB+8*p+4,4)}, v{AD+5} offset:{p*16384}", f"s{p}")
    for p in range(4):
        e.wds(f"s{p}")
        for k in range(8): e(f"v_add_f32 v{SUM+k}, v{SUM+k}, v{RB+8*p+k}")
    for k in range(4): e(f"v_cvt_pk_bf16_f32 v{XRES+k}, v{SUM+2*k}, v{SUM+1+2*k}")
    e.vm(f"buffer_store_dwordx4 {vr(XRES,4)}, v{VO}, s[{SRD_OUT}:{SRD_OUT+3}], 0 offen {os.environ.get('OUTF', '')}")

def build():
    e = Em()
    kn = NAME + "_kernel"
    e.a.raw(f".globl {kn}\n.p2align 8\n.type {kn},@function")
    e.label(kn)
    prologue(e)
    gelu, h_off = phaseB(e)
    attn_setup(e, gelu, h_off)
    e(f"s_and_b32 s6, s{S_J}, 7\ns_cmp_eq_u32 s6, 7\ns_cbranch_scc1 C_noF")
    sn = e.snap(); ns = e.nst
    nq, fq = attn_loop(e, True)
    attn_finish(e, True)
    tail(e, nq, fq)
    nend = e.nst
    e("s_branch K_fin")
    e.label("C_noF")
    e.restore(sn); e.nst = ns
    attn_loop(e, False)
    attn_finish(e)
    o_flag(e)
    e(f"""s_cmp_eq_u32 s{S_RB}, 0
s_cbranch_scc0 C_noF_done
s_cmp_eq_u32 s{S_J}, 7
s_cbranch_scc0 C_noF_done
s_cmp_eq_u32 s{S_W}, 0
s_cbranch_scc0 C_noF_done""")
    for k in range(4):
        e(f"""v_lshrrev_b32 v{G}, 4, v0
v_and_b32 v{G+1}, 15, v0
v_lshlrev_b32 v{G}, 7, v{G}
v_lshl_add_u32 v{G}, v{G+1}, 2, v{G}
v_add_u32 v{G}, {F_H + 512*k}, v{G}""")
        e(f"buffer_load_dword v{G+1}, v{G}, {WS}, 0 offen {SC}"); e.mark[f"ep{k}"] = len(e.q['vm'])
        poll_check(e, G, G + 1, f"ep{k}")
    e(f"v_mov_b32 v{G}, {EPO}\nv_mov_b32 v{G+1}, s{S_NON}\ns_mov_b64 exec, 1\nbuffer_store_dword v{G+1}, v{G}, {WS}, 0 offen {SC}\ns_mov_b64 exec, -1")
    e.label("C_noF_done")
    while e.nst < nend and not STAMPS_OFF: e.stamp()
    e.label("K_fin")
    if os.environ.get("AMPAT"):
        e("""s_waitcnt vmcnt(0)
s_memrealtime s[92:93]
s_waitcnt lgkmcnt(0)
s_sub_u32 s7, s94, s96
s_mul_i32 s7, s7, 10
K_amp:
s_sleep 1
s_memrealtime s[98:99]
s_waitcnt lgkmcnt(0)
s_sub_u32 s6, s98, s92
s_cmp_lt_u32 s6, s7
s_cbranch_scc1 K_amp""")
    if 'stdiag' in X:
        e("""s_memtime s[92:93]
s_waitcnt lgkmcnt(0)
K_sd:
s_sleep 2
s_memtime s[90:91]
s_waitcnt lgkmcnt(0)
s_sub_u32 s6, s90, s92
s_cmp_lt_u32 s6, s94
s_cbranch_scc1 K_sd""")
    if 'fix' in X:
        e("""K_fx:
s_sleep 1
s_memrealtime s[98:99]
s_waitcnt lgkmcnt(0)
s_sub_u32 s6, s98, s96
s_cmp_lt_u32 s6, 10000
s_cbranch_scc1 K_fx""")
    if 'amp' in X:
        e("""s_waitcnt vmcnt(0)
s_memrealtime s[98:99]
s_waitcnt lgkmcnt(0)
s_sub_u32 s7, s98, s96
s_mul_i32 s7, s7, 10
K_fx:
s_sleep 1
s_memrealtime s[98:99]
s_waitcnt lgkmcnt(0)
s_sub_u32 s6, s98, s96
s_cmp_lt_u32 s6, s7
s_cbranch_scc1 K_fx""")
    if STAMPS:
        e.stamp()
        e.label("K_fin2")
        e("s_memrealtime s[98:99]\ns_waitcnt lgkmcnt(0) vmcnt(0)")
        e(f"""s_mov_b32 s40, s{P_WS}
s_mov_b32 s41, s{P_WS+1}
s_mov_b32 s42, 0x10000000
s_mov_b32 s43, 0x00020000
s_lshl_b32 s6, s2, 3
s_add_u32 s6, s6, s{S_W}
s_lshl_b32 s6, s6, 6
s_add_u32 s6, s6, {STAMP_WS}
v_mov_b32 v2, s96
v_mov_b32 v3, s98""")
        for k in range(10): e(f"v_mov_b32 v{4+k}, {'s%d' % (76+2*k) if k < e.nst else 0}")
        e("v_mov_b32 v1, 0\ns_mov_b64 exec, 1")
        for q in range(3): e(f"buffer_store_dwordx4 v[{2+4*q}:{5+4*q}], v1, s[40:43], s6 offen offset:{16*q}")
    e("s_endpgm")
    for fb, bk in FALLBACKS: fallback(e, fb, bk)
    e.label("K_end")
    e("s_endpgm")
    probs = check_hazards(e.a.lines, "k")
    hdr = open("cdna_kernels/" + NAME + ".s.ref").read().split("; Override launch")[0]
    out = hdr + f"; @launch grid=(256,1,1) block=(512,1,1) lds={LDS_BYTES}\n"
    out += '.amdgcn_target "amdgcn-amd-amdhsa--gfx950"\n.text\n' + e.a.text()
    out += f""".section .rodata,"a"
.p2align 6
.amdhsa_kernel {kn}
  .amdhsa_next_free_vgpr 256
  .amdhsa_next_free_sgpr 102
  .amdhsa_accum_offset 256
  .amdhsa_group_segment_fixed_size 0
  .amdhsa_kernarg_size 96
  .amdhsa_user_sgpr_count 2
  .amdhsa_user_sgpr_kernarg_segment_ptr 1
  .amdhsa_system_sgpr_workgroup_id_x 1
  .amdhsa_float_denorm_mode_32 3
.end_amdhsa_kernel
"""
    return out, probs

if __name__ == "__main__":
    out, probs = build()
    for p in probs: print("HAZARD", p, file=sys.stderr)
    open(sys.argv[1] if len(sys.argv) > 1 else "cdna_kernels/" + NAME + ".s", "w").write(out)
```

```python
import sys, os, math, struct
from asmlib import *
X = set(os.environ.get('XFLAGS', '').split(','))
def P(name, default): return int(os.environ.get(name, default))
NAME = "parallel_sum__grouped_kv_mqa__glu_gated_geglu__prompt"
def f2u(x): return struct.unpack("<I", struct.pack("<f", x))[0]

A2F = 0
W2T = 64 * 144 * 1024
QF  = W2T + 7 * 144 * 2048
KVF = QF + 64 * 16 * 2048
FLG = KVF + 64 * 4096
RKV = P("RKV", 16)
F_W  = FLG
F_H  = FLG + 2048
F_O  = FLG + 4096
EPO  = FLG + 6144
F_Q  = FLG + 4096
SPLITQ = P('SPLITQ', 0)
F_KV = FLG + 8192
F_O2 = F_KV + 256 * RKV
STAT = F_O2 + 32768
WS_END = STAT + 2048 * 8
OOB = 0x7ffffff0
P_X, P_WQ, P_WK, P_WV, P_WO, P_BX, P_WG, P_WU, P_WD, P_OUT, P_DBG, P_WS = 8, 10, 12, 14, 16, 18, 20, 22, 24, 26, 28, 30
SRD_X, SRD_WS, SRD_T, SRD_PC = 32, 36, 40, 44
SRD_OUT = SRD_T
S_W, S_RB, S_J = 3, 4, 5
(S_WB, S_MASK, S_XO, S_XO2, S_RT, S_CG, S_MUL, S_T0, S_T1, S_U, S_NON, S_LA, S_LB, S_TO, S_QU) = range(48, 63)
S_HI = 64
S_A, S_B, S_C, S_D, S_E, S_F = 66, 67, 68, 69, 70, 71
S_G, S_H2 = 72, 73
S_CNT = 74
WS = f"s[{SRD_WS}:{SRD_WS+3}]"
SC = "sc1"
STAMPS = bool(os.environ.get("STAMPS"))
STAMP_WS = 200 * 1024 * 1024
SPIN_MAX = 1 << 18
STAMPS_OFF = False

class Em:
    def __init__(s):
        s.a = Asm(); s.q = {'ds': [], 'vm': []}; s.done = {'ds': 0, 'vm': 0}; s.nst = 0; s.uid = 0; s.mark = {}
    def __call__(s, t): s.a(t)
    def label(s, l): s.a.label(l)
    def ds(s, ins, tag=None): s.a(ins); s.q['ds'].append(tag)
    def vm(s, ins, tag=None): s.a(ins); s.q['vm'].append(tag)
    def _n(s, k, tags, cap):
        idx = -1
        for t in tags:
            ii = [i for i, x in enumerate(s.q[k]) if x == t]
            if not ii and 'nodma' in X: continue
            assert ii, f"tag {t} never issued"
            idx = max(idx, ii[-1])
        if idx < s.done[k]: return None
        n = min(len(s.q[k]) - 1 - idx, cap)
        s.done[k] = len(s.q[k]) - n
        return n
    def wds(s, *tags):
        n = s._n('ds', tags, 15)
        if n is not None: s.a(f"s_waitcnt lgkmcnt({n})")
    def wvm(s, *tags):
        n = s._n('vm', tags, 63)
        if n is not None: s.a(f"s_waitcnt vmcnt({n})")
    def wboth(s, *tags):
        n = s._n('vm', tags, 63)
        s.a("s_waitcnt lgkmcnt(0)" if n is None else f"s_waitcnt vmcnt({n}) lgkmcnt(0)"); s.done['ds'] = len(s.q['ds'])
    def all_ds(s): s.a("s_waitcnt lgkmcnt(0)"); s.done['ds'] = len(s.q['ds'])
    def all_vm(s): s.a("s_waitcnt vmcnt(0)"); s.done['vm'] = len(s.q['vm'])
    def snap(s): return ({k: list(v) for k, v in s.q.items()}, dict(s.done))
    def restore(s, sn): s.q = {k: list(v) for k, v in sn[0].items()}; s.done = dict(sn[1])
    def stamp(s, name=None):
        if name is not None and name == os.environ.get("IDLEAT"): s.a("s_sleep 32")
        if name is not None and name == os.environ.get("AMPAT"):
            s.a("s_memrealtime s[94:95]"); s.all_ds()
        sel = os.environ.get("STSEL")
        if sel is not None and name is not None and name not in sel.split(","): return
        if sel is None and name is not None and name.startswith("x"): return
        if STAMPS and not STAMPS_OFF:
            assert s.nst < 10
            s.a(f"{'s_memrealtime' if os.environ.get('RT') else 's_memtime'} s[{76+2*s.nst}:{77+2*s.nst}]"); s.nst += 1
            s.all_ds()
    def newlabel(s, p): s.uid += 1; return f"{p}_{s.uid}"

def srd(e, d, p, nbytes):
    e(f"s_mov_b32 s{d}, s{p}\ns_mov_b32 s{d+1}, s{p+1}\ns_mov_b32 s{d+2}, {nbytes}\ns_mov_b32 s{d+3}, 0x00020000")
def mfma(d, A, B, C=None):
    return f"v_mfma_f32_32x32x16_bf16 {vr(d,16)}, {vr(A,4)}, {vr(B,4)}, {vr(d,16) if C is None else C}"
def mfma16(d, A, B, C=None):
    return f"v_mfma_f32_16x16x32_bf16 {vr(d,4)}, {vr(A,4)}, {vr(B,4)}, {vr(d,4) if C is None else C}"

class Side:
    def __init__(s, e): s.e = e; s.q = []
    def add(s, items):
        if isinstance(items, str):
            raw = [l.strip() for l in items.strip().split("\n") if l.strip()]
            items = []
            for l in raw:
                if l.startswith("s_cselect"): items[-1] += "\n" + l
                else: items.append(l)
        s.q += list(items)
    def emit(s, n):
        while n > 0 and s.q:
            it = s.q.pop(0)
            if callable(it): it()
            else: s.e(it)
            n -= 1
    def flush(s): s.emit(1 << 30)

def flag_store(e, addr_lines, nlanes, vt):
    l = e.newlabel("fl")
    e(f"s_cmp_eq_u32 s{S_W}, 0\ns_cbranch_scc0 {l}")
    e(addr_lines)
    e(f"v_mov_b32 v{vt+1}, s{S_NON}\ns_mov_b64 exec, {(1 << nlanes) - 1}\nbuffer_store_dword v{vt+1}, v{vt}, {WS}, 0 offen {SC}\ns_mov_b64 exec, -1")
    e.label(l)

def poll_issue(e, addr_lines, vaddr, vdat, tag):
    l = e.newlabel("pi")
    e(f"s_cmp_eq_u32 s{S_W}, 0\ns_cbranch_scc0 {l}")
    e(addr_lines)
    e(f"buffer_load_dword v{vdat}, v{vaddr}, {WS}, 0 offen {SC}")
    e.label(l)
    e.mark[tag] = len(e.q['vm'])

def poll_check(e, vaddr, vdat, tag, sleep=None):
    ok = e.newlabel("pok"); sp = e.newlabel("psp")
    e(f"s_cmp_eq_u32 s{S_W}, 0\ns_cbranch_scc0 {ok}")
    e(f"s_waitcnt vmcnt({min(63, len(e.q['vm']) - e.mark[tag])})")
    e(f"v_cmp_ne_u32 vcc, s{S_NON}, v{vdat}\ns_cbranch_vccz {ok}\ns_mov_b32 s{S_CNT}, {SPIN_MAX}")
    e.label(sp)
    e(f"""s_sleep {P('SLEEP', 4) if sleep is None else sleep}
buffer_load_dword v{vdat}, v{vaddr}, {WS}, 0 offen {SC}
s_sub_u32 s{S_CNT}, s{S_CNT}, 1
s_waitcnt vmcnt(0)
v_cmp_ne_u32 vcc, s{S_NON}, v{vdat}
s_cmp_eq_u32 s{S_CNT}, 0
s_cbranch_scc1 {ok}
s_cbranch_vccnz {sp}""")
    if 'spincnt' in X and tag in SPINIDX: e(f"s_sub_u32 s{78 + 2 * SPINIDX[tag]}, {SPIN_MAX + 1000}, s{S_CNT}")
    e.label(ok)
SPINIDX = {'kvp': 0, 'hp': 1, 'hb': 2, 'wo': 3, 'op': 4}

RING = 32768
L_W2T = 131072
L_CSA = L_W2T + 8192
L_CSB = L_CSA + 2048
L_ST  = L_CSB + 2048
L_KVB = L_ST + 4096
L_FLG = L_KVB + 4096
LDS_BYTES = L_FLG + 256

VL16, VT, VX, GA, GS = 1, 2, 3, 4, 6
XA, WA = 8, 12
ST, SEL, CSA, WF, TM = 20, 24, 28, 36, 60
ACCA, ACCB, XR, G = 64, 96, 128, 240
SQA, SQB, TP = 60, 240, 248
WB, GB, PL = 250, 102, 252
R_, S_, AC, BC, I2 = 8, 9, 10, 11, 3
BEXT = 60


TA, TS, TX, TD = 96, 98, 99, 100
S_ISQ, S_SH = 63, 75
RW = 104
def w_source(row, c, dst, gs, t0):
    return f"""v_cmp_le_u32 vcc, s{S_A}, v{c}
v_mul_lo_u32 v{dst}, v{row}, s{S_B}
v_lshl_add_u32 v{dst}, v{c}, 4, v{dst}
v_add_u32 v{dst}, s{S_C}, v{dst}
v_subrev_u32 v{c}, s{S_A}, v{c}
v_lshlrev_b32 v{c}, s{S_G}, v{c}
v_mul_lo_u32 v{t0}, v{row}, s{S_D}
v_add3_u32 v{t0}, v{t0}, v{c}, s{S_H2}
v_cndmask_b32 v{dst}, v{dst}, v{t0}, vcc
v_mov_b32 v{gs}, s{S_B}
v_mov_b32 v{t0}, s{S_D}
v_cndmask_b32 v{gs}, v{gs}, v{t0}, vcc
v_lshlrev_b32 v{gs}, 5, v{gs}"""

ROTS = {0: [0]*8, 1: [0, 3, 2, 5, 4, 0, 6, 2], 2: [0, 3, 3, 0, 0, 3, 3, 0], 3: [0, 1, 2, 3, 4, 5, 6, 0], 4: [0, 4, 1, 5, 2, 6, 3, 0]}
ROTTAB = sum(v << (4 * i) for i, v in enumerate(ROTS[P("ROT", 0)]))
S_ROT = 47
S_WF = 46
RPAR, RBIT = P("RPAR", 0), P("RBIT", 0)
RPARCODE = "" if not RPAR else f"""
s_lshr_b32 s{S_F}, s2, 3
s_lshr_b32 s{S_T0}, s2, 6
s_xor_b32 s{S_F}, s{S_F}, s{S_T0}
s_and_b32 s{S_F}, s{S_F}, {RBIT or 1}
s_mul_i32 s{S_F}, s{S_F}, {RPAR}
s_add_u32 s{S_XO}, s{S_XO}, s{S_F}
s_cmp_ge_u32 s{S_XO}, 7
s_cselect_b32 s{S_F}, 7, 0
s_sub_u32 s{S_XO}, s{S_XO}, s{S_F}"""
def prologue(e):
    T = TM
    ROTCODE = f"""s_and_b32 s{S_XO}, s2, 7
s_lshl_b32 s{S_XO}, s{S_XO}, 2
s_lshr_b32 s{S_XO}, {ROTTAB:#x}, s{S_XO}
s_and_b32 s{S_XO}, s{S_XO}, 7{RPARCODE}
s_mov_b32 s{S_ROT}, s{S_XO}
s_lshl_b32 s{S_F}, s{S_XO}, 6
s_lshl_b32 s{S_XO}, s{S_XO}, 7
v_add_u32 v{T+2}, s{S_F}, v{T+2}
""" if any(ROTS[P('ROT', 0)]) or RPAR else f"s_mov_b32 s{S_ROT}, 0\n"
    e(f"s_cmp_ge_u32 s2, 256\ns_cbranch_scc1 K_end")
    if STAMPS or 'fix' in X or 'amp' in X or os.environ.get("AMPAT"): e("s_memrealtime s[96:97]")
    e.stamp()
    if 'spincnt' in X:
        for k in range(6): e(f"s_movk_i32 s{78 + 2*k}, 1000")
        e.nst = 7
    e("s_load_dwordx16 s[8:23], s[0:1], 0\ns_load_dwordx8 s[24:31], s[0:1], 64")
    e(f"s_getpc_b64 s[{SRD_PC}:{SRD_PC+1}]")
    e.label("K_pc")
    e(f"""s_mov_b32 s{SRD_PC+2}, K_end-K_pc
s_mov_b32 s{SRD_PC+3}, 0x00020000
v_lshlrev_b32 v1, 7, v0""")
    e.vm(f"buffer_load_dword v{TD}, v1, s[{SRD_PC}:{SRD_PC+3}], 0 offen")
    T = TM
    e(f"""v_lshrrev_b32 v1, 6, v0
v_and_b32 v0, 63, v0
v_readfirstlane_b32 s{S_W}, v1
s_nop 1""")
    if GT:
        e(f"""s_lshl_b32 s{S_TG}, s2, 3
s_add_u32 s{S_TG}, s{S_TG}, s{S_W}
s_min_u32 s6, s{S_TG}, 1393
s_cmp_ge_u32 s6, 448
s_cselect_b32 s7, 56, 48
s_cselect_b32 s{S_A}, 448, 0
s_mov_b32 s{S_D}, {448*3584}
s_cmp_ge_u32 s6, 896
s_cselect_b32 s7, 8, s7
s_cselect_b32 s{S_A}, 896, s{S_A}
s_cselect_b32 s{S_B}, 6, {15 if P('TQB', 0) else 11}
s_cselect_b32 s{S_C}, 7, 28
s_cselect_b32 s{S_D}, {448*896}, s{S_D}
s_cmp_ge_u32 s6, 1344
s_cselect_b32 s7, 16, s7
s_cselect_b32 s{S_A}, 1344, s{S_A}
s_cselect_b32 s{S_B}, 7, s{S_B}
s_cselect_b32 s{S_C}, 8, s{S_C}
s_cselect_b32 s{S_D}, {448*56}, s{S_D}
s_cmp_ge_u32 s6, 1369
s_cselect_b32 s7, 24, s7
s_cselect_b32 s{S_A}, 1369, s{S_A}
s_load_dwordx2 s[{SRD_T}:{SRD_T+1}], s[0:1], s7
s_mov_b32 s{SRD_T+2}, s{S_D}
s_mov_b32 s{SRD_T+3}, 0x00020000
s_sub_u32 s6, s6, s{S_A}
s_cmp_lt_u32 s6, {64 * P('GTS', 0)}
s_cselect_b32 s{S_TS}, 0, {OOB}
s_mul_i32 s6, s6, s{S_C}
v_min_u32 v{TA}, s{S_B}, v0
v_cmp_lt_u32 vcc, 11, v{TA}
v_add_u32 v{TA}, s6, v{TA}
v_add_u32 v{TA+1}, 12, v{TA}
v_cndmask_b32 v{TA}, v{TA}, v{TA+1}, vcc
v_lshlrev_b32 v{TA}, 7, v{TA}
s_mul_i32 s6, s{S_TG}, 896
v_lshl_add_u32 v{TX}, v0, 4, s6
v_cmp_lt_u32 vcc, 55, v0
v_mov_b32 v{TX+2}, {OOB}
s_nop 0
v_cndmask_b32 v{TX}, v{TX}, v{TX+2}, vcc""")
    e(f"""
s_bfe_u32 s{S_RB}, s2, 0x20001
s_lshl_b32 s{S_RB}, s{S_RB}, 2
s_lshr_b32 s6, s2, 6
s_add_u32 s{S_RB}, s{S_RB}, s6
s_and_b32 s{S_J}, s2, 1
s_lshl_b32 s{S_J}, s{S_J}, 3
s_bfe_u32 s7, s2, 0x30003
s_add_u32 s{S_J}, s{S_J}, s7
s_lshr_b32 s{S_QU}, s{S_J}, 2
s_sub_u32 s{S_LA}, s{S_J}, s{S_QU}
s_lshl_b32 s{S_WB}, s{S_W}, 10
s_lshl_b32 s{S_C}, s{S_LA}, 7
s_mul_i32 s{S_E}, s{S_QU}, 224
s_and_b32 s{S_F}, s{S_QU}, 1
s_sub_u32 s{S_G}, 4, s{S_F}
s_lshl_b32 s{S_F}, s{S_F}, 5
s_movk_i32 s{S_D}, 3584
s_and_b32 s{S_ISQ}, s{S_J}, 3
s_cmp_eq_u32 s{S_ISQ}, 3
s_cselect_b32 s{S_ISQ}, 1, 0
s_cselect_b32 s{S_A}, 14, 8
s_cselect_b32 s{S_B}, 896, s{S_D}
s_cselect_b32 s{S_D}, 56, s{S_D}
s_cselect_b32 s{S_H2}, s{S_F}, s{S_C}
s_cselect_b32 s{S_C}, s{S_E}, s{S_C}
s_cselect_b32 s{S_G}, s{S_G}, 4
s_add_u32 s{S_SH}, s{S_ISQ}, 1
s_lshl_b32 s{S_E}, s{S_RB}, 7
s_lshl_b32 s{S_F}, s{S_W}, 3
s_add_u32 s{S_F}, s{S_F}, s{S_E}
v_lshrrev_b32 v{T}, 3, v0
v_add_u32 v{T}, s{S_F}, v{T}
v_mul_u32_u24 v{T}, 896, v{T}
s_lshl_b32 s{S_F}, s{S_W}, 2
v_lshrrev_b32 v{T+1}, 4, v0
v_add_u32 v{T+2}, s{S_F}, v{T+1}
v_xor_b32 v{T+3}, v{T+2}, v0
v_and_b32 v{T+3}, 7, v{T+3}
v_lshl_add_u32 v{VX}, v{T+3}, 4, v{T}
{ROTCODE}v_lshlrev_b32 v{T+1}, s{S_SH}, v{T+1}
v_xor_b32 v{T+1}, v{T+1}, v0
v_and_b32 v{T+1}, 15, v{T+1}""")
    e(w_source(T + 2, T + 1, G, GS, T))
    e(f"s_mov_b64 s[{S_HI}:{S_HI+1}], vcc")
    if TOUCH:
        e(f"""s_and_b32 s6, s6, 3
s_lshl_b32 s6, s6, 3
s_add_u32 s6, s6, s{S_W}
s_lshl_b32 s6, s6, 1
s_lshl_b32 s7, s7, 3
s_add_u32 s7, s7, s{S_W}
s_lshl_b32 s7, s7, 1
s_add_u32 s7, s7, s{S_E}
v_bfe_u32 v{T+2}, v0, 3, 1
v_bfe_u32 v{T+1}, v0, 2, 1
v_lshl_add_u32 v{T+2}, v{T+2}, 6, v{T+1}
v_add_u32 v{T+2}, s6, v{T+2}
v_and_b32 v{T+1}, 3, v0
v_lshlrev_b32 v{T+1}, 2, v{T+1}
v_lshrrev_b32 v{T+1}, v{T+1}, s{S_MASK}
v_and_b32 v{T+1}, 15, v{T+1}
v_and_b32 v{T}, 1, v0
v_add_u32 v{T}, s7, v{T}
v_mul_u32_u24 v{TX}, 896, v{T}
v_bfe_u32 v{T}, v0, 1, 1
v_lshl_add_u32 v{TX}, v{T}, 7, v{TX}""".replace(f"v_lshrrev_b32 v{T+1}, v{T+1}, s{S_MASK}", f"s_movk_i32 s6, 0xed80\nv_lshrrev_b32 v{T+1}, v{T+1}, s6"))
        e(w_source(T + 2, T + 1, G + 1, TS, T))
    e("s_waitcnt lgkmcnt(0)")
    e.stamp("xs0")
    if 'stdiag' in X:
        e(f"""s_mov_b32 s40, s{P_WS}
s_mov_b32 s41, s{P_WS+1}
s_mov_b32 s42, 0x10000000
s_mov_b32 s43, 0x00020000
s_lshl_b32 s90, s2, 3
s_add_u32 s90, s90, s{S_W}
s_lshl_b32 s90, s90, 10
s_add_u32 s90, s90, {P('DOFF', 100) * 1024 * 1024}
v_lshlrev_b32 v110, 4, v0
buffer_store_dwordx4 v[112:115], v110, s[40:43], s90 offen sc1
s_waitcnt vmcnt(0)
s_add_u32 s90, s90, 0x200000
s_barrier
s_memtime s[92:93]
s_waitcnt lgkmcnt(0)
buffer_store_dwordx4 v[112:115], v110, s[40:43], s90 offen sc1
s_waitcnt vmcnt(0)
s_barrier
s_memtime s[94:95]
s_waitcnt lgkmcnt(0)
s_sub_u32 s94, s94, s92
s_mul_i32 s94, s94, 100""")
    srd(e, SRD_X, P_X, 2048 * 896)
    e(f"""s_cmp_lt_u32 s{S_QU}, 2
s_cselect_b32 s{S_C}, s{P_WK}, s{P_WV}
s_cselect_b32 s{S_D}, s{P_WK+1}, s{P_WV+1}
s_cmp_eq_u32 s{S_ISQ}, 1
s_cselect_b32 s{S_A}, s{P_WQ}, s{P_WG}
s_cselect_b32 s{S_B}, s{P_WQ+1}, s{P_WG+1}
s_cselect_b32 s{S_C}, s{S_C}, s{P_WU}
s_cselect_b32 s{S_D}, s{S_D}, s{P_WU+1}
v_mov_b32 v{T}, s{S_A}
v_mov_b32 v{T+1}, s{S_B}
v_mov_b32 v{T+2}, s{S_C}
v_mov_b32 v{T+3}, s{S_D}""")
    if TOUCH:
        e(f"""v_cndmask_b32 v{TA}, v{T}, v{T+2}, vcc
v_cndmask_b32 v{TA+1}, v{T+1}, v{T+3}, vcc
v_add_co_u32 v{TA}, vcc, v{TA}, v{G+1}
v_cndmask_b32 v{GA}, v{T}, v{T+2}, s[{S_HI}:{S_HI+1}]
v_cndmask_b32 v{GA+1}, v{T+1}, v{T+3}, s[{S_HI}:{S_HI+1}]
v_addc_co_u32 v{TA+1}, vcc, 0, v{TA+1}, vcc""")
        touch(e, 0)()
    else:
        e(f"""v_cndmask_b32 v{GA}, v{T}, v{T+2}, s[{S_HI}:{S_HI+1}]
v_cndmask_b32 v{GA+1}, v{T+1}, v{T+3}, s[{S_HI}:{S_HI+1}]""")
    e(f"v_add_co_u32 v{GA}, vcc, v{GA}, v{G}\nv_mov_b32 v{GS+1}, 0")
    if GT:
        e.vm(f"buffer_load_dwordx4 {vr(RW,4)}, v{TX}, s[{SRD_X}:{SRD_X+3}], 0 offen", "row")
        if GT & 2: e.vm(f"buffer_load_dword v{TD}, v{TA}, s[{SRD_T}:{SRD_T+3}], {'s%d' % S_TS if P('GTS', 0) else 0} offen", "t")
        if P("GTW", 0): e.wvm("row")
    if 'gonly' in X: e.all_vm(); e.stamp()
    dma_x(e, 0, 0)()
    e(f"v_addc_co_u32 v{GA+1}, vcc, 0, v{GA+1}, vcc")

TOUCH = P("TOUCH", 0)
GT = P("GT", 3)
ROT = P("ROT", 0)
LDX = os.environ.get("LDX", ""); LDW = os.environ.get("LDW", ""); LDT = os.environ.get("LDT", "")
def touch(e, k):
    def f():
        st = (0, 2, 4, 5)[k]
        e.vm(f"global_load_dword v{TD}, {vr(TA,2)}, off", f"t{k}")
        e(f"s_movk_i32 s{S_XO2}, {st * 128}")
        e.vm(f"buffer_load_dword v{TD}, v{TX}, s[{SRD_X}:{SRD_X+3}], s{S_XO2} offen", f"t{k}")
        if k < 3: e(f"v_mad_u64_u32 {vr(TA,2)}, s[{S_E}:{S_E+1}], v{TS}, {4 if k < 2 else 2}, {vr(TA,2)}")
    return f
S_TG, S_TS = 61, 57
def gtouch(e, st):
    def f():
        e(f"s_mul_i32 s{S_XO2}, s{S_TS}, {st}")
        e.vm(f"buffer_load_dword v{TD}, v{TA}, s[{SRD_PC}:{SRD_PC+3}], s{S_XO2} offen {LDT}", "t")
        e(f"s_movk_i32 s{S_XO2}, {st * 128}")
        e.vm(f"buffer_load_dword v{TD}, v{TX}, s[{SRD_X}:{SRD_X+3}], s{S_XO2} offen {LDT}", "t")
    return f
def dma_x(e, sig, i):
    def f():
        e(f"s_add_u32 m0, s{S_WB}, {(sig % 4) * RING + i * 8192}")
        if i == 0: e("s_nop 0"); so = S_XO
        else: e(f"s_add_u32 s{S_XO2}, s{S_XO}, {64*896}"); so = S_XO2
        e.vm(f"buffer_load_dwordx4 v{VX}, s[{SRD_X}:{SRD_X+3}], s{so} offen {LDX} lds", f"d{sig}")
    return f
def dma_w(e, sig, off, i, first=False):
    def f():
        if i == 0 and not first:
            e(f"s_add_u32 s{S_XO}, s{S_XO}, 128\ns_cmp_eq_u32 s{S_XO}, 896\ns_cselect_b32 s{S_XO}, 0, s{S_XO}\ns_cselect_b32 s{S_MUL}, -13, 1")
        e(f"s_add_u32 m0, s{S_WB}, {(sig % 4) * RING + off + i * 8192}")
        if first == 2: e(f"s_add_u32 s{S_XO}, s{S_XO}, 128\ns_cmp_eq_u32 s{S_XO}, 896\ns_cselect_b32 s{S_XO}, 0, s{S_XO}")
        elif first: e("s_nop 0")
        elif i == 0: e(f"v_mad_i64_i32 {vr(GA,2)}, s[{S_E}:{S_E+1}], v{GS}, s{S_MUL}, {vr(GA,2)}")
        else: e(f"v_lshl_add_u64 {vr(GA,2)}, {vr(GS,2)}, 0, {vr(GA,2)}")
        e.vm(f"global_load_lds_dwordx4 {vr(GA,2)}, off {LDW}", f"d{sig}")
    return f
if not any(ROTS[P("ROT", 0)]) and not RPAR:
    def dma_x(e, sig, i):
        def f():
            e(f"s_add_u32 m0, s{S_WB}, {(sig % 4) * RING + i * 8192}\ns_mov_b32 s{S_XO}, {sig * 128 + i * 64 * 896}")
            e.vm(f"buffer_load_dwordx4 v{VX}, s[{SRD_X}:{SRD_X+3}], s{S_XO} offen {LDX} lds", f"d{sig}")
        return f
    def dma_w(e, sig, off, i, first=False):
        def f():
            e(f"s_add_u32 m0, s{S_WB}, {(sig % 4) * RING + off + i * 8192}")
            e("s_nop 0" if first else f"v_lshl_add_u64 {vr(GA,2)}, {vr(GS,2)}, 0, {vr(GA,2)}")
            e.vm(f"global_load_lds_dwordx4 {vr(GA,2)}, off {LDW}", f"d{sig}")
        return f
def stage_dmas(e, sig):
    if 'nodma' in X and 2 <= sig: return [(lambda: e.q['vm'].append(f'd{sig}') or e.q['vm'].pop() if False else None)] if False else [lambda: None]
    if sig == 0: return [dma_x(e, sig, 0), dma_w(e, sig, 16384, 0, True), dma_x(e, sig, 1), dma_w(e, sig, 16384, 1)]
    if sig < 7: return [dma_w(e, sig, 16384, 0), dma_x(e, sig, 0), dma_w(e, sig, 16384, 1), dma_x(e, sig, 1)]
    l = []
    if sig == 7: l.append(lambda: e(f"v_mov_b32 v{GA}, v{GB}\nv_mov_b32 v{GA+1}, v{GB+1}\nv_mov_b32 v{GS}, {32*3584}"))
    l += [dma_w(e, sig, 0, 0, 2 if sig == 7 else False), dma_w(e, sig, 0, 1)]
    if sig < 10: l += [dma_w(e, sig, 16384, 0), dma_w(e, sig, 16384, 1)]
    return l

def late_touch(e):
    if P('GTS', 0):
        e(f"s_xor_b32 s{S_TS}, s{S_TS}, {OOB}")
        e.vm(f"buffer_load_dword v{TD}, v{TA}, s[{SRD_T}:{SRD_T+3}], s{S_TS} offen", "t")

def phaseB(e):
    T = TM
    for f in stage_dmas(e, 0)[1:]: f()
    if 'arr' in X:
        order = os.environ.get("ARR", "D1 D2 W0 D3 W1 D4 W2 D5 W3 D6 W4 W5 W6").split()
        for it in order:
            k = int(it[1:])
            if it[0] == 'D':
                for f in stage_dmas(e, k): f()
            elif it[0] == 'T': touch(e, k)()
            elif it[0] == 'G': gtouch(e, k)()
            elif it[0] == 'L': late_touch(e)
            elif it[0] == 'A': e.all_vm(); e.stamp()
            else: e.wvm(f"d{k}"); e("s_barrier"); e.stamp()
        srd(e, SRD_WS, P_WS, WS_END)
        e.stamp()
        e("s_branch K_fin2")
        global STAMPS_OFF; STAMPS_OFF = True
    e.stamp("xs2")
    e(f"s_mov_b32 s6, {EPO}\ns_load_dword s{S_NON}, s[{P_WS}:{P_WS+1}], s6")
    if TOUCH == 2: touch(e, 1)()
    for f in stage_dmas(e, 1): f()
    if TOUCH == 1: touch(e, 1)()
    late_touch(e)
    e.stamp("xs3")
    e(f"""s_and_b32 s{S_RT}, s{S_W}, 3
s_lshr_b32 s{S_CG}, s{S_W}, 2
s_lshl_b32 s{S_T0}, s{S_CG}, 1
s_add_u32 s{S_T1}, s{S_T0}, 1
s_xor_b32 s{S_A}, s{S_RT}, s{S_CG}
s_mov_b32 s{S_MASK}, 0xffff0000
s_mov_b32 s{S_HI}, 0
s_mov_b32 s{S_HI+1}, -1
v_lshlrev_b32 v{VL16}, 4, v0
v_and_b32 v{T}, 31, v0
v_lshrrev_b32 v{T+1}, 5, v0
v_bfe_u32 v{T+2}, v0, 1, 3
v_xor_b32 v{T+2}, v{T+2}, v{T+1}
v_lshlrev_b32 v{T+2}, 4, v{T+2}
v_lshl_add_u32 v{T+2}, v{T}, 7, v{T+2}
s_lshl_b32 s6, s{S_RT}, 12
s_lshl_b32 s{S_B}, s{S_A}, 5
s_or_b32 s6, s6, s{S_B}
v_xor_b32 v{XA}, s6, v{T+2}""")
    for pos in range(1, 4): e(f"v_xor_b32 v{XA+pos}, {pos<<5}, v{XA}")
    e(f"""v_bfe_u32 v{G+1}, v0, 2, 2
v_lshl_add_u32 v{WB}, v{T+1}, 3, v{G+1}
v_lshlrev_b32 v{WB}, 8, v{WB}
s_lshl_b32 s{S_A}, s{S_A}, 12
v_add_u32 v{WB}, s{S_A}, v{WB}
s_cmp_eq_u32 s{S_ISQ}, 1
s_cselect_b32 s{S_A}, 56, 32
s_cselect_b32 s{S_B}, 5, 7
s_cselect_b32 s{S_C}, 0x88880000, 0
s_mov_b32 s{S_D}, s{S_C}
s_add_u32 s6, s{S_SH}, 4
v_bfe_u32 v{T}, v0, 4, 1
v_and_b32 v{T+1}, 3, v0
v_lshlrev_b32 v{T}, s{S_B}, v{T}
v_lshl_add_u32 v{T}, v{T+1}, 3, v{T}
v_lshlrev_b32 v{T+1}, s6, v{G+1}""")
    for i, st_ in ((0, S_T0), (1, S_T1)):
        e(f"""s_mul_i32 s6, s{st_}, s{S_A}
s_lshl_b32 s7, s{st_}, 3
s_sub_u32 s7, 248, s7
v_add_u32 v{T+2}, s6, v{T}
v_mov_b32 v{T+3}, s7
v_cndmask_b32 v{T+2}, v{T+2}, v{T+3}, s[{S_C}:{S_D}]
v_xor_b32 v{T+2}, v{T+2}, v{T+1}
v_add_u32 v{WA+4*i}, v{T+2}, v{WB}""")
    for i in range(2):
        for pos in range(1, 4): e(f"v_xor_b32 v{WA+4*i+pos}, {pos<<12}, v{WA+4*i}")
    e(f"""v_bfe_u32 v{T}, v0, 4, 1
v_and_b32 v{T+1}, 15, v0
v_cmp_eq_u32 vcc, v{T}, v{T+1}
v_mov_b32 v{T}, 0x3f803f80
s_nop 0
v_cndmask_b32 v{SEL}, 0, v{T}, vcc
v_mov_b32 v{SEL+1}, v{SEL}
v_mov_b32 v{SEL+2}, v{SEL}
v_mov_b32 v{SEL+3}, v{SEL}""")
    w2t_addr = f"""s_mul_i32 s6, s{S_RB}, 12
s_add_u32 s6, s6, s{S_LA}
s_lshl_b32 s7, s{S_RB}, 2
s_add_u32 s7, s7, s{S_QU}
s_min_u32 s7, s7, 59
s_add_u32 s{S_A}, s7, 136
s_cmp_eq_u32 s{S_ISQ}, 1
s_cselect_b32 s6, s{S_A}, s6
s_cselect_b32 s7, s7, 63
s_mul_hi_u32 s{S_A}, s6, {(2**32 + 27)//28}
s_mul_i32 s{S_B}, s{S_A}, 28
s_sub_u32 s{S_B}, s6, s{S_B}
s_lshr_b32 s{S_C}, s7, 3
s_and_b32 s{S_D}, s7, 7
s_add_u32 s{S_D}, s{S_D}, 28
s_cmp_lt_u32 s7, 56
s_cselect_b32 s6, s{S_C}, s{S_A}
s_cselect_b32 s{S_B}, s{S_D}, s{S_B}
s_lshl_b32 s{S_WF}, s6, 6
s_add_u32 s{S_WF}, s{S_WF}, s{S_B}
s_lshl_b32 s{S_A}, s{S_B}, 2
s_lshr_b32 s{S_B}, s{S_W}, 1
s_add_u32 s{S_A}, s{S_A}, s{S_B}
s_mul_i32 s{S_U}, s6, 144
s_add_u32 s{S_U}, s{S_U}, s{S_A}
s_lshl_b32 s{S_B}, s{S_A}, 4
s_sub_u32 s{S_C}, s{S_A}, 112
s_lshr_b32 s{S_D}, s{S_C}, 1
s_mul_i32 s{S_D}, s{S_D}, 28
s_and_b32 s{S_C}, s{S_C}, 1
s_lshl_b32 s{S_C}, s{S_C}, 4
s_add_u32 s{S_C}, s{S_C}, s{S_D}
s_mov_b32 s{S_D}, {448*896}
s_cmp_lt_u32 s{S_A}, 112
s_cselect_b32 s{S_B}, s{S_B}, s{S_C}
s_cselect_b32 s{SRD_T}, s{P_WD}, s{P_WO}
s_cselect_b32 s{SRD_T+1}, s{P_WD+1}, s{P_WO+1}
s_cselect_b32 s{SRD_T+2}, {1792*896}, s{S_D}
s_mov_b32 s{SRD_T+3}, 0x00020000
s_and_b32 s{S_C}, s{S_W}, 1
s_lshl_b32 s{S_C}, s{S_C}, 3
s_add_u32 s{S_B}, s{S_B}, s{S_C}
s_mul_i32 s{S_B}, s{S_B}, 896
s_lshl_b32 s6, s6, 7
s_add_u32 s{S_TO}, s{S_B}, s6
v_lshrrev_b32 v{TP}, 3, v0
v_mul_u32_u24 v{TP}, 896, v{TP}
v_and_b32 v{TP+1}, 7, v0
v_lshl_add_u32 v{VT}, v{TP+1}, 4, v{TP}"""
    late = (f"""s_add_u32 s{S_LB}, s{S_LA}, 12
s_add_u32 s6, s{S_QU}, 24
s_cmp_eq_u32 s{S_ISQ}, 1
s_cselect_b32 s{S_LB}, s6, s{S_LB}
""" if P("LBOLD", 1) else f"s_add_u32 s{S_LB}, s{S_J}, 12\n") + f"""v_lshrrev_b32 v{TP}, 4, v0
s_lshl_b32 s6, s{S_ROT}, 4
s_add_u32 s6, s6, s{S_W}
s_lshl_b32 s6, s6, 2
v_add_u32 v{TP+1}, s6, v{TP}
v_mul_u32_u24 v{TP+1}, 3584, v{TP+1}
v_lshlrev_b32 v{TP}, 1, v{TP}
v_xor_b32 v{TP}, v{TP}, v0
v_and_b32 v{GB}, 7, v{TP}
v_lshl_add_u32 v{TP+1}, v{GB}, 4, v{TP+1}
s_lshl_b32 s6, s{S_LB}, 7
v_add_u32 v{TP+1}, s6, v{TP+1}
v_and_b32 v{TP}, 8, v{TP}
v_cmp_eq_u32 vcc, 8, v{TP}
v_mov_b32 v{GB}, s{P_WG}
v_mov_b32 v{TP}, s{P_WU}
v_cndmask_b32 v{GB}, v{GB}, v{TP}, vcc
v_mov_b32 v{GB+1}, s{P_WG+1}
v_mov_b32 v{TP}, s{P_WU+1}
v_cndmask_b32 v{GB+1}, v{GB+1}, v{TP}, vcc
v_add_co_u32 v{GB}, vcc, v{GB}, v{TP+1}
v_bfe_u32 v{TP}, v0, 4, 1
v_and_b32 v{TP+1}, 3, v0
v_addc_co_u32 v{GB+1}, vcc, 0, v{GB+1}, vcc
v_lshlrev_b32 v{TP+1}, 3, v{TP+1}
v_lshl_add_u32 v{TP}, v{TP}, 7, v{TP+1}
v_bfe_u32 v{TP+1}, v0, 2, 2
v_lshlrev_b32 v{TP+1}, 5, v{TP+1}
v_xor_b32 v{TP}, v{TP}, v{TP+1}
s_lshl_b32 s6, s{S_T0}, 5
v_xor_b32 v{TP}, s6, v{TP}
v_add_u32 v{WB}, v{TP}, v{WB}
v_xor_b32 v{WB+1}, 32, v{WB}"""
    e.stamp("xs4")
    srd(e, SRD_WS, P_WS, WS_END)
    e("s_waitcnt lgkmcnt(0)")
    e(f"s_add_u32 s{S_NON}, s{S_NON}, 1")
    U = RW + 4; A_, B_ = RW, RW + 1
    e.wvm("row")
    for k in range(4): e(f"v_lshlrev_b32 v{U+2*k}, 16, v{RW+k}\nv_and_b32 v{U+2*k+1}, s{S_MASK}, v{RW+k}")
    e(f"v_add_f32 v{A_}, v{U}, v{U+1}\nv_mul_f32 v{B_}, v{U}, v{U}\nv_add_f32 v{A_+2}, v{U+2}, v{U+3}\nv_mul_f32 v{B_+2}, v{U+1}, v{U+1}")
    for k in (2, 4, 6): e(f"v_fmac_f32 v{B_}, v{U+k}, v{U+k}\nv_fmac_f32 v{B_+2}, v{U+k+1}, v{U+k+1}")
    e(f"""v_add_f32 v{U}, v{U+4}, v{U+5}
v_add_f32 v{U+1}, v{U+6}, v{U+7}
v_add_f32 v{A_}, v{A_}, v{A_+2}
v_add_f32 v{U}, v{U}, v{U+1}
v_add_f32 v{B_}, v{B_}, v{B_+2}
v_add_f32 v{A_}, v{A_}, v{U}
s_lshl_b32 s6, s{S_TG}, 3""")
    for d in ("row_shr:1 row_mask:0xf bank_mask:0xf bound_ctrl:0", "row_shr:2 row_mask:0xf bank_mask:0xf bound_ctrl:0",
              "row_shr:4 row_mask:0xf bank_mask:0xf bound_ctrl:0", "row_shr:8 row_mask:0xf bank_mask:0xf bound_ctrl:0",
              "row_bcast:15 row_mask:0xa bank_mask:0xf", "row_bcast:31 row_mask:0xc bank_mask:0xf"):
        e(f"v_add_f32_dpp v{B_}, v{B_}, v{B_} {d}\nv_add_f32_dpp v{A_}, v{A_}, v{A_} {d}\ns_nop 0")
    e(f"""s_add_u32 s6, s6, {STAT}
v_mul_f32 v{A_}, {f2u(1.0/448)}, v{A_}
v_mul_f32 v{B_}, {f2u(1.0/448)}, v{B_}
v_fma_f32 v{B_}, -v{A_}, v{A_}, v{B_}
v_max_f32 v{B_}, 0, v{B_}
v_cvt_pk_bf16_f32 v{B_}, v{B_}, v{B_}
v_and_b32 v{B_}, s{S_MASK}, v{B_}
v_add_f32 v{B_}, {f2u(1e-5)}, v{B_}
v_cvt_pk_bf16_f32 v{B_}, v{B_}, v{B_}
v_and_b32 v{B_}, s{S_MASK}, v{B_}
v_sqrt_f32 v{B_}, v{B_}
v_mov_b32 v{U}, s6
v_cvt_pk_bf16_f32 v{A_}, -v{A_}, v{B_}
v_mov_b32 v{B_}, s{S_NON}
s_mov_b32 exec_lo, 0
s_mov_b32 exec_hi, 0x80000000""")
    e.vm(f"buffer_store_dwordx2 {vr(A_,2)}, v{U}, {WS}, 0 offen {SC}", "sts")
    e("s_mov_b64 exec, -1")
    e.stamp("xs5")
    if P("PRIO", 2) & 1: e(f"s_cmp_ge_u32 s{S_W}, 4\ns_cbranch_scc0 K_np\ns_setprio 1\nK_np:")
    e.wvm("d0")
    e("s_barrier")
    e.stamp("start")

    half = {'x': [0]*4, 'w': [0]*4}
    def reads(gp):
        if gp < 28: sig, sub, pos, reg = gp // 4, 0, gp % 4, 16384
        else:
            g = gp - 28; sig, sub, pos = 7 + g // 8, (g // 4) & 1, g % 4; reg = sub * 16384
        sl = sig % 4; h = sl >> 1; imm = (sl & 1) * RING
        buf = WF + 8 * (gp % 3)
        pre = []
        if 28 <= gp < 32:
            pre = [f"v_xor_b32 v{WA+4*i+pos}, {(pos << 12) | (h << 16)}, v{WB+i}" for i in range(2)]
            half['w'][pos] = h
        elif half['w'][pos] != h:
            pre = [f"v_xor_b32 v{WA+4*i+pos}, 0x10000, v{WA+4*i+pos}" for i in range(2)]
            half['w'][pos] = h
        if gp < 28 and half['x'][pos] != h:
            pre.append(f"v_xor_b32 v{XA+pos}, 0x10000, v{XA+pos}"); half['x'][pos] = h
        out = [(lambda l=l: e(l)) for l in pre]
        if gp < 28: out.append(lambda: e.ds(f"ds_read_b128 {vr(XR+4*gp,4)}, v{XA+pos} offset:{imm}", f"r{gp}"))
        for i in range(2):
            for u in range(2):
                out.append(lambda i=i, u=u: e.ds(f"ds_read_b64_tr_b16 {vr(buf+4*i+2*u,2)}, v{WA+4*i+pos} offset:{imm+reg+u*1024}", f"r{gp}"))
        return out
    def position(gp, side, dmaq, nside, barrier=None):
        p2 = gp >= 28; g = gp - 28 if p2 else gp
        acc = ACCB if p2 else ACCA
        buf = WF + 8 * (gp % 3); xr = XR + 4 * g
        e.wds(f"r{gp}")
        e(mfma(acc, buf, xr, "0" if g == 0 else None))
        if barrier: barrier()
        R = reads(gp + 2) if gp + 2 < 56 else []
        nx = 1 if gp + 2 < 28 else 0
        pre = R[:max(0, len(R) - 4 - nx)]; xrd = R[len(pre):len(pre) + nx]; tr = R[len(pre) + nx:]
        na = (nside + 1) // 2; nb = nside // 2
        for f in pre: f()
        if P("ORD", 1) == 0:
            for f in xrd + tr[:2]: f()
            side.emit(na)
            e(mfma(acc + 16, buf + 4, xr, "0" if g == 0 else None))
            for f in tr[2:]: f()
            if g % 4 == 0: e(mfma16(CSA, SEL, buf, "0" if g == 0 else None))
            if dmaq: dmaq.pop(0)()
            side.emit(nb)
            if g % 4 == 0: e(mfma16(CSA + 4, SEL, buf + 4, "0" if g == 0 else None))
        else:
            for f in tr[:1]: f()
            side.emit(min(2, na))
            for f in tr[1:2]: f()
            side.emit(na - min(2, na))
            e(mfma(acc + 16, buf + 4, xr, "0" if g == 0 else None))
            for f in tr[2:3]: f()
            side.emit(min(2, nb))
            for f in tr[3:]: f()
            side.emit(nb - min(2, nb))
            if g % 4 == 0 and 'nosel' not in X: e(mfma16(CSA, SEL, buf, "0" if g == 0 else None))
            for f in xrd: f()
            if g % 4 == 0 and 'nosel' not in X: e(mfma16(CSA + 4, SEL, buf + 4, "0" if g == 0 else None))
            if dmaq: dmaq.pop(0)()
    def stats(gp):
        x = XR + 4 * gp; c = lambda r: "0" if gp == 0 else vr(r, 4)
        return [mfma16(ST, SEL, x, c(ST)),
                f"v_mfma_f32_4x4x4_16b_bf16 {vr(SQA,4)}, {vr(x,2)}, {vr(x,2)}, {c(SQA)}\nv_mfma_f32_4x4x4_16b_bf16 {vr(SQB,4)}, {vr(x+2,2)}, {vr(x+2,2)}, {c(SQB)}"]
    def cs_write(dst):
        return [f"v_lshlrev_b32 v{G+8}, 4, v0", f"s_lshl_b32 s6, s{S_T0}, 9", f"s_lshl_b32 s{S_A}, s{S_RT}, 2",
                f"s_add_u32 s6, s6, s{S_A}", f"s_add_u32 s6, s6, {dst}", f"v_add_u32 v{G+8}, s6, v{G+8}",
                lambda: (e("s_mov_b64 exec, 0xffff"),
                         e.ds(f"ds_write_b32 v{G+8}, v{CSA}", "csw"), e.ds(f"ds_write_b32 v{G+8}, v{CSA+1} offset:256", "csw"),
                         e.ds(f"ds_write_b32 v{G+8}, v{CSA+4} offset:512", "csw"), e.ds(f"ds_write_b32 v{G+8}, v{CSA+5} offset:768", "csw"),
                         e("s_mov_b64 exec, -1"))]
    def cs_read(src):
        l = [f"v_and_b32 v{G+8}, 31, v0", f"v_lshlrev_b32 v{G+8}, 4, v{G+8}", f"s_lshl_b32 s6, s{S_T0}, 9", f"s_add_u32 s6, s6, {src}",
             f"v_add_u32 v{G+8}, s6, v{G+8}",
             lambda: e.ds(f"ds_read_b128 {vr(G,4)}, v{G+8}", "csr"), lambda: e.ds(f"ds_read_b128 {vr(G+4,4)}, v{G+8} offset:512", "csr")]
        m = [lambda: e.wds("csr")]
        for i in range(2):
            b = G + 4 * i
            m += [f"v_add_f32 v{b}, v{b}, v{b+1}", f"v_add_f32 v{b+2}, v{b+2}, v{b+3}"]
        for i in range(2): m += [f"v_add_f32 v{G+4*i}, v{G+4*i}, v{G+4*i+2}"]
        for i in range(2): m += [f"v_cvt_pk_bf16_f32 v{G+4*i+1}, v{G+4*i}, v{G+4*i}"]
        for i in range(2): m += [f"v_and_b32 v{G+4*i+1}, s{S_MASK}, v{G+4*i+1}"]
        for i in range(2): m += [f"v_sub_f32 v{G+4*i+1}, v{G+4*i}, v{G+4*i+1}"]
        for i in range(2): m += [f"v_cvt_pk_bf16_f32 v{G+4*i}, v{G+4*i}, v{G+4*i+1}"]
        for i in range(2): m += [f"v_cndmask_b32 v{ST+2*i}, v{G+4*i}, 0, s[{S_HI}:{S_HI+1}]"]
        return l, m

    KA = -2.0 * math.log2(math.e) * math.sqrt(2.0 / math.pi)
    GST = P("GST", 18)
    def stat_check():
        ok = e.newlabel("sok"); sp = e.newlabel("ssp")
        e.wvm("stl")
        e(f"v_cmp_ne_u32 vcc, s{S_NON}, v{BEXT+3}\ns_cbranch_vccz {ok}\ns_mov_b32 s{S_CNT}, {SPIN_MAX}")
        e.label(sp)
        e(f"""s_sleep 4
buffer_load_dwordx2 {vr(BEXT+2,2)}, v{G}, {WS}, 0 offen {SC}
s_sub_u32 s{S_CNT}, s{S_CNT}, 1
s_waitcnt vmcnt(0)
v_cmp_ne_u32 vcc, s{S_NON}, v{BEXT+3}
s_cmp_eq_u32 s{S_CNT}, 0
s_cbranch_scc1 {ok}
s_cbranch_vccnz {sp}""")
        if 'spincnt' in X: e(f"s_sub_u32 s88, {SPIN_MAX + 1000}, s{S_CNT}")
        e.label(ok)
    def after_exchange(side):
        l, m = cs_read(L_CSA)
        side.add(l)
        side.add(f"""v_and_b32 v{S_}, s{S_MASK}, v{BEXT+2}
v_and_b32 v{BEXT}, 0xffff, v{BEXT+2}
v_rcp_f32 v{R_}, v{S_}
v_lshl_or_b32 v{BEXT}, v{BEXT+2}, 16, v{BEXT}
v_mul_f32 v{I2}, v{S_}, v{S_}
v_mul_f32 v{AC}, {f2u(KA)}, v{R_}
v_mul_f32 v{BC}, v{R_}, v{R_}
v_mov_b32 v{ST+1}, 0
v_mul_f32 v{BC}, v{BC}, v{AC}
v_mov_b32 v{ST+3}, 0
v_mul_f32 v{BC}, {f2u(0.044715)}, v{BC}
v_mov_b32 v{BEXT+1}, 0
v_mov_b32 v{BEXT+2}, 0
v_mov_b32 v{BEXT+3}, 0""")
        side.add(m)
    for f in reads(0) + reads(1): f()
    side = Side(e); dmaq = list(stage_dmas(e, 2)) + ([touch(e, 2)] if TOUCH else [])
    w2side = Side(e)
    if GT & 4:
        w2side.add(f"""s_min_u32 s6, s{S_TG}, 895
s_cmp_ge_u32 s6, 448
s_cselect_b32 s{SRD_T}, s{P_WU}, s{P_WG}
s_cselect_b32 s{SRD_T+1}, s{P_WU+1}, s{P_WG+1}
s_cselect_b32 s7, 448, 0
s_mov_b32 s{SRD_T+2}, {448*3584}
s_sub_u32 s6, s6, s7
s_mul_i32 s6, s6, 3584
s_add_u32 s6, s6, 1536
v_and_b32 v{TA}, 15, v0
v_lshlrev_b32 v{TA}, 7, v{TA}""")
        w2side.add([lambda: e.vm(f"buffer_load_dword v{TD}, v{TA}, s[{SRD_T}:{SRD_T+3}], s6 offen", "t2")])
    w2side.add(late); w2side.add(w2t_addr)
    for gp in range(28):
        sig, pos = gp // 4, gp % 4
        bar = None
        if pos == 2:
            def bar(sig=sig):
                if sig == 6: side.flush(); stat_check(); e.wds("csw")
                e.wvm(f"d{sig+1}"); e("s_barrier")
                if sig == 6: after_exchange(side)
                assert not dmaq
                dmaq.extend(stage_dmas(e, sig + 3))
                if sig == 0 and TOUCH: dmaq.append(touch(e, 3))
        if gp == GST:
            side.add([f"s_lshl_b32 s{S_G}, s{S_RB}, 2", f"s_add_u32 s{S_G}, s{S_G}, s{S_RT}", f"s_lshl_b32 s{S_G}, s{S_G}, 8", f"s_add_u32 s{S_G}, s{S_G}, {STAT}",
                      f"v_and_b32 v{G}, 31, v0", f"v_lshl_add_u32 v{G}, v{G}, 3, s{S_G}",
                      lambda: e.vm(f"buffer_load_dwordx2 {vr(BEXT+2,2)}, v{G}, {WS}, 0 offen {SC}", "stl")])
        if gp == 25: assert not w2side.q; side.add(cs_write(L_CSA))
        n = len(side.q) if gp < 26 else P('NEX', 10)
        while len(dmaq) > 4 - ((pos + 2) % 4): dmaq.pop(0)()
        e.stamp(f"xp{gp}")
        w2side.emit(5 if gp < 2 else 3)
        position(gp, side, dmaq, n, bar)
    assert not w2side.q
    side.add(["s_nop 1", mfma(ACCA, ST, BEXT), mfma(ACCA + 16, ST + 2, BEXT)])
    carry = list(side.q)
    e.stamp("p1")

    KA = -2.0 * math.log2(math.e) * math.sqrt(2.0 / math.pi); KB = KA * 0.044715
    def gelu(acc, so, tb, keep=None, pk=0):
        l = []
        if pk:
            pr = lambda r: vr(r, 2)
            for k in range(0, 8, 2): l.append(f"v_pk_mul_f32 {pr(tb+k)}, {pr(acc+k)}, {pr(acc+k)}")
            for k in range(0, 8, 2): l.append(f"v_pk_fma_f32 {pr(tb+k)}, {pr(tb+k)}, {pr(AC)}, {pr(AC)} op_sel:[0,1,0] op_sel_hi:[1,1,0]")
            for k in range(0, 8, 2): l.append(f"v_pk_mul_f32 {pr(tb+k)}, {pr(tb+k)}, {pr(acc+k)}")
            for k in range(0, 8, 2): l += [f"v_exp_f32 v{tb+k}, v{tb+k}", f"v_exp_f32 v{tb+k+1}, v{tb+k+1}", f"v_pk_mul_f32 {pr(acc+k)}, {pr(acc+k)}, {pr(acc+8+k)}"]
            for k in range(0, 8, 2): l.append(f"v_pk_fma_f32 {pr(tb+k)}, {pr(tb+k)}, {pr(I2-1)}, {pr(I2-1)} op_sel:[0,1,1] op_sel_hi:[1,1,1]")
            for k in range(8): l.append(f"v_rcp_f32 v{tb+k}, v{tb+k}")
            for k in range(0, 8, 2): l.append(f"v_pk_mul_f32 {pr(acc+k)}, {pr(acc+k)}, {pr(tb+k)}")
        else:
            for k in range(8): l.append(f"v_mul_f32 v{tb+k}, v{acc+k}, v{acc+k}")
            for k in range(8): l.append(f"v_fma_f32 v{tb+k}, v{tb+k}, v{BC}, v{AC}")
            for k in range(8): l.append(f"v_mul_f32 v{tb+k}, v{tb+k}, v{acc+k}")
            for k in range(8): l += [f"v_exp_f32 v{tb+k}, v{tb+k}", f"v_mul_f32 v{acc+k}, v{acc+k}, v{acc+8+k}"]
            for k in range(8): l.append(f"v_fma_f32 v{tb+k}, v{tb+k}, v{I2}, v{I2}")
            for k in range(8): l.append(f"v_rcp_f32 v{tb+k}, v{tb+k}")
            for k in range(8): l.append(f"v_mul_f32 v{acc+k}, v{acc+k}, v{tb+k}")
        if keep is not None:
            return l + [f"v_cvt_pk_bf16_f32 v{keep+k}, v{acc+2*k}, v{acc+2*k+1}" for k in range(4)]
        for k in range(4): l.append(f"v_cvt_pk_bf16_f32 v{acc+8+k}, v{acc+2*k}, v{acc+2*k+1}")
        l.append(lambda: e.vm(f"buffer_store_dwordx4 {vr(acc+8,4)}, v{VL16}, {WS}, s{so} offen {SC}", "hs"))
        return l
    def h_off(line, dst):
        return f"""s_lshl_b32 s6, s{S_RB}, 2
s_add_u32 s6, s6, s{S_RT}
s_mul_i32 s6, s6, 144
s_lshl_b32 s{dst}, s{line}, 2
s_add_u32 s6, s6, s{dst}
s_add_u32 s6, s6, s{S_T0}
s_lshl_b32 s{dst}, s6, 10
s_add_u32 s{dst+1}, s{dst}, 1024"""
    def w2t_out(side):
        side.add(f"""v_lshrrev_b32 v{TP}, 5, v0
v_bfe_u32 v{TP+1}, v0, 2, 2
v_lshl_add_u32 v{TP}, v{TP}, 2, v{TP+1}
v_lshlrev_b32 v{TP}, 7, v{TP}
v_bfe_u32 v{TP+1}, v0, 4, 1
v_lshl_add_u32 v{TP}, v{TP+1}, 5, v{TP}
v_and_b32 v{TP+1}, 3, v0
v_lshl_add_u32 v{TP}, v{TP+1}, 3, v{TP}
s_lshr_b32 s6, s{S_W}, 1
s_lshl_b32 s6, s6, 11
s_and_b32 s{S_A}, s{S_W}, 1
s_lshl_b32 s{S_B}, s{S_A}, 6
s_add_u32 s6, s6, s{S_B}
s_add_u32 s6, s6, {L_W2T}
v_add_u32 v{TP}, s6, v{TP}""")
        side.add([lambda: (e.ds(f"ds_read_b64_tr_b16 {vr(PL,2)}, v{TP}", "w2tr"), e.ds(f"ds_read_b64_tr_b16 {vr(PL+2,2)}, v{TP} offset:1024", "w2tr")),
                  f"s_lshl_b32 s6, s{S_U}, 11", f"s_lshl_b32 s{S_A}, s{S_A}, 10", f"s_add_u32 s6, s6, s{S_A}", f"s_add_u32 s{S_TO}, s6, {W2T}",
                  lambda: (e.wds("w2tr"), e.vm(f"buffer_store_dwordx4 {vr(PL,4)}, v{VL16}, {WS}, s{S_TO} offen {SC}", "w2ts"))])
    GEND = P("GEND", 20); GW2 = P("GW2", 22); GFQ = P("GFQ", 9)
    GX, GBN, GFL, QRATE = P("GX", 0), P("GBN", 2), P("GFL", 6 if SPLITQ else 9), P("QRATE", 40)
    def pass2(qfirst):
        side = Side(e); dq = list(dmaq); side.q = list(carry)
        for g in range(28):
            gp = 28 + g
            pre = []; wd = []; wv = []; post = []
            if g == 0:
                if not qfirst and 'nogelu' in X: pass
                elif not qfirst:
                    side.add(h_off(S_LA, S_C))
                    side.add(gelu(ACCA, S_C, G, None, P('PK', 1) & 2)); side.add(gelu(ACCA + 16, S_D, G, None, P('PK', 1) & 2))
                else: qkv_part1(side)
            if g == 6:
                post.append(lambda: dq.extend(stage_dmas(e, 10) + [lambda: (e(f"s_add_u32 m0, s{S_WB}, {L_W2T}\ns_nop 0"),
                            e.vm(f"buffer_load_dwordx4 v{VT}, s[{SRD_T}:{SRD_T+3}], s{S_TO} offen lds", "w2td"))]))
            if g == GW2: wv.append("w2td")
            if g in (6, 14, 22): wv.append(f"d{8 + g // 8}")
            if qfirst and g == GBN: pre.append(side.flush); wd.append("kvw"); post.append(lambda: qkv_part2(side))
            if qfirst and g == GFQ and SPLITQ:
                pre.append(side.flush); wv.append("qs")
                post.append(lambda: flag_store(e, f"""s_lshl_b32 s6, s{S_RB}, 5
s_add_u32 s6, s6, s{S_QU}
s_lshl_b32 s6, s6, 2
s_add_u32 s6, s6, {F_Q}
v_mov_b32 v{TP}, s6""", 1, TP))
            if qfirst and g == GFL:
                if SPLITQ: pre.append(lambda: e(f"s_waitcnt vmcnt({len(e.q['vm']) - e.mark['kvs']})")); wd.append("kvw")
                else: pre.append(side.flush); wv.append("qs")
                post.append(lambda: flag_store(e, f"""s_lshl_b32 s6, s{S_RB}, 2
s_add_u32 s6, s6, s{S_QU}
s_lshl_b32 s6, s6, 2
s_add_u32 s6, s6, {F_KV}
v_lshlrev_b32 v{TP}, 8, v0
v_add_u32 v{TP}, s6, v{TP}""", RKV, TP))
            if g == GW2 + 1 and 'now2o' not in X:
                q0 = side.q; side.q = []; w2t_out(side); side.q += q0
            if g == 24: side.flush()
            if g == P("GKP", 27):
                poll_issue(e, f"""s_and_b32 s6, s2, {RKV-1}
s_lshl_b32 s6, s6, 8
s_add_u32 s6, s6, {F_KV}
v_lshl_add_u32 v{PL}, v0, 2, s6""" + (f"""
s_lshl_b32 s6, s{S_RB}, 5
s_add_u32 s6, s6, s{S_QU}
s_lshl_b32 s6, s6, 2
s_add_u32 s6, s6, {F_Q}
v_mov_b32 v{PL+2}, s6
buffer_load_dword v{PL+3}, v{PL+2}, {WS}, 0 offen {SC}""" if SPLITQ else ""), PL, PL + 1, "kvp")
            if g == 25 and 'nocs' not in X:
                side.flush(); side.add(cs_write(L_CSB))
            if g == 26 and 'nocs' not in X:
                pre.append(side.flush); wd.append("csw")
                def p():
                    l, m = cs_read(L_CSB); side.add(l); side.add(m)
                post.append(p)
            bar = None
            if wd or wv:
                def bar():
                    for f in pre: f()
                    if wd: e.wds(*wd)
                    if wv: e.wvm(*wv)
                    e("s_barrier")
                    for f in post: f()
            if qfirst: n = QRATE if g < 9 else 12
            else: n = -(-len(side.q) // max(1, GEND - g)) if g < GEND else 12
            e.stamp(f"xg{g}")
            position(gp, side, dq, n, bar)
        side.flush()
        e.stamp("xpe2")
        e("s_nop 1")
        e(mfma(ACCB, ST, BEXT)); e(mfma(ACCB + 16, ST + 2, BEXT))
    RQ = PL
    def qkv_part1(side):
        side.add(f"""v_mul_f32 v{RQ}, {f2u(28 ** -0.5 * math.log2(math.e))}, v{R_}
v_and_b32 v{G+8}, 31, v0
v_lshlrev_b32 v{G+8}, 5, v{G+8}
s_lshl_b32 s6, s{S_RT}, 10
s_add_u32 s6, s6, {L_KVB}
v_add_u32 v{G+8}, s6, v{G+8}
s_mov_b32 s{S_D}, 0x00003f80
s_cmp_lt_u32 s{S_QU}, 2
s_cselect_b32 s{S_C}, 0x3f803f80, s{S_D}
s_cselect_b32 s{S_D}, s{S_D}, 0
s_nop 1""")
        for i, st_ in ((0, S_T0), (1, S_T1)):
            acc = ACCA + 16 * i; b = G + 4 * i
            for k in range(4): side.add([f"v_mul_f32 v{b+k}, v{acc+12+k}, v{R_}"])
            side.add(f"""s_sub_u32 s6, 3, s{st_}
s_lshl_b32 s{S_A}, s{st_}, 2
s_lshr_b32 s{S_A}, 0x0132, s{S_A}
s_and_b32 s{S_A}, s{S_A}, 3
s_bitcmp1_b32 s{S_QU}, 0
s_cselect_b32 s6, s{S_A}, s6
s_cselect_b32 s{S_A}, s{S_A}, 0
s_lshl_b32 s6, s6, 3
v_cvt_pk_bf16_f32 v{b}, v{b}, v{b+1}
v_cvt_pk_bf16_f32 v{b+1}, v{b+2}, v{b+3}
v_add_u32 v{b+2}, s6, v{G+8}""")
            def wr(b=b):
                l = e.newlabel("nc")
                e(f"s_cmp_eq_u32 s{S_A}, 3\ns_cbranch_scc0 {l}\nv_mov_b32 v{b}, s{S_C}\nv_mov_b32 v{b+1}, s{S_D}")
                e.label(l)
                e(f"s_mov_b64 exec, s[{S_HI}:{S_HI+1}]")
                e.ds(f"ds_write_b64 v{b+2}, {vr(b,2)}", "kvw")
                e("s_mov_b64 exec, -1")
            side.add([wr])
    def qkv_part2(side):
        def kv():
            l = e.newlabel("kvs"); lv = e.newlabel("kvv"); ls = e.newlabel("kvt")
            e(f"""s_cmp_eq_u32 s{S_CG}, 0
s_cbranch_scc0 {l}
s_lshl_b32 s6, s{S_RB}, 2
s_add_u32 s6, s6, s{S_RT}
s_lshl_b32 s6, s6, 12
s_add_u32 s6, s6, {KVF}
s_lshl_b32 s{S_A}, s{S_RT}, 10
s_add_u32 s{S_A}, s{S_A}, {L_KVB}
s_cmp_lt_u32 s{S_QU}, 2
s_cbranch_scc0 {lv}
v_and_b32 v{G}, 31, v0
v_lshrrev_b32 v{G+1}, 5, v0
v_lshlrev_b32 v{G}, 5, v{G}
v_lshl_add_u32 v{G}, v{G+1}, 3, v{G}
v_add_u32 v{G}, s{S_A}, v{G}
ds_read2_b64 {vr(G+4,4)}, v{G} offset0:0 offset1:2
s_lshl_b32 s{S_A}, s{S_QU}, 10
s_add_u32 s6, s6, s{S_A}
v_mov_b32 v{G+2}, v{VL16}
s_branch {ls}""")
            e.label(lv)
            e(f"""v_lshrrev_b32 v{G}, 5, v0
v_bfe_u32 v{G+1}, v0, 4, 1
v_lshlrev_b32 v{G+2}, 10, v{G}
v_lshl_add_u32 v{G+2}, v{G+1}, 9, v{G+2}
v_lshlrev_b32 v{G}, 4, v{G}
v_lshl_add_u32 v{G}, v{G+1}, 2, v{G}
v_bfe_u32 v{G+1}, v0, 2, 2
v_add_u32 v{G}, v{G}, v{G+1}
v_lshlrev_b32 v{G}, 5, v{G}
v_and_b32 v{G+1}, 3, v0
v_lshl_add_u32 v{G}, v{G+1}, 3, v{G}
v_add_u32 v{G}, s{S_A}, v{G}
ds_read_b64_tr_b16 {vr(G+4,2)}, v{G}
ds_read_b64_tr_b16 {vr(G+6,2)}, v{G} offset:256
v_and_b32 v{G+1}, 15, v0
v_lshl_add_u32 v{G+2}, v{G+1}, 4, v{G+2}
s_and_b32 s{S_A}, s{S_QU}, 1
s_lshl_b32 s{S_A}, s{S_A}, 8
s_add_u32 s6, s6, s{S_A}
s_add_u32 s6, s6, 2048""")
            e.label(ls)
            e(f"s_waitcnt lgkmcnt(0)\nbuffer_store_dwordx4 {vr(G+4,4)}, v{G+2}, {WS}, s6 offen {SC}")
            e.label(l)
            e.mark['kvs'] = len(e.q['vm'])
        side.add([kv])
        side.add(f"""s_lshl_b32 s6, s{S_RB}, 2
s_add_u32 s6, s6, s{S_RT}
s_lshl_b32 s6, s6, 2
s_add_u32 s6, s6, s{S_QU}
s_lshl_b32 s6, s6, 2
s_add_u32 s6, s6, s{S_T0}
s_lshl_b32 s6, s6, 11
s_add_u32 s{S_C}, s6, {QF}""")
        for i in range(2):
            acc = ACCA + 16 * i
            if P('PK', 1) & 4:
                for k in range(0, 16, 2): side.add([f"v_pk_mul_f32 {vr(acc+k,2)}, {vr(acc+k,2)}, {vr(RQ,2)} op_sel_hi:[1,0]"])
            else:
                for k in range(16): side.add([f"v_mul_f32 v{acc+k}, v{acc+k}, v{RQ}"])
            for k in range(8): side.add([f"v_cvt_pk_bf16_f32 v{acc+k}, v{acc+2*k}, v{acc+2*k+1}"])
            side.add([f"v_cndmask_b32 v{acc+6}, v{acc+6}, 0, s[{S_HI}:{S_HI+1}]", f"v_cndmask_b32 v{acc+7}, v{acc+7}, 0, s[{S_HI}:{S_HI+1}]",
                      lambda acc=acc, i=i: e.vm(f"buffer_store_dwordx4 {vr(acc,4)}, v{VL16}, {WS}, s{S_C} offen offset:{2048*i} {SC}", "qs"),
                      lambda acc=acc, i=i: e.vm(f"buffer_store_dwordx4 {vr(acc+4,4)}, v{VL16}, {WS}, s{S_C} offen offset:{2048*i+1024} {SC}", "qs")])
    e(f"s_cmp_eq_u32 s{S_ISQ}, 1\ns_cbranch_scc1 B_p2q")
    sn = e.snap(); hs = {k: list(v) for k, v in half.items()}; ns = e.nst
    pass2(False)
    e("s_branch B_join")
    e.label("B_p2q")
    e.nst = ns
    e.restore(sn); half.update({k: list(v) for k, v in hs.items()})
    pass2(True)
    e.label("B_join")
    e.q = {'ds': [], 'vm': []}; e.done = {'ds': 0, 'vm': 0}; e.mark['kvp'] = 0
    e.stamp("join")
    return gelu, h_off

LB0, LB1, VO = 3, 4, 5
Q, O, S0, PP, K, V0, V1 = 36, 44, 64, 96, 104, 112, 120
FA, FB = 128, 192
XRES = 244
S_KH, S_QT, S_KVO, S_WB4, S_FA, S_FB0, S_FB1, S_OO = 50, 51, 54, 55, 56, 57, 59, 60
S_FQ, S_K1 = 62, 63
F0 = P("F0", 8)
FP = P("FP", 2)
HBP = P("HBP", 10)
F3 = P("F3", 40)
WOP = 18

def kv_dma(e, st):
    def m(): e(f"s_add_u32 m0, s{S_WB4}, {((st + 3) % 4) * RING}" + ("\ns_nop 0" if st < 3 else ""))
    m.scalar = True
    l = [m]
    for f in range(4):
        l.append(lambda f=f: (e.vm(f"buffer_load_dwordx4 v{VL16}, {WS}, s{S_KVO} offen offset:{1024*f} {SC} lds", f"k{st}"),
                              e(f"s_add_u32 s{S_KVO}, s{S_KVO}, 16384") if f == 3 else None))
    return l

NB = P("NB", 4)
FBUF = [[FB + 16 * n + 4 * k for k in range(4)] for n in range(3)] + [[60, 124, 248, 252]]
def f_loads(e, q):
    bb = FBUF[q % NB]
    r = q if q < 6 else q - 6
    advA = advB = None
    if q == 5:
        advA = f"s_add_u32 s{S_FA}, s{S_FA}, s{S_FQ}"
        advB = f"s_add_u32 s{S_FB0}, s{S_FB0}, s{S_K1}\ns_add_u32 s{S_FB1}, s{S_FB1}, s{S_K1}"
    else:
        if r & 1: advA = f"s_add_u32 s{S_FA}, s{S_FA}, 4096"
        if (r & 3) == 3: advB = f"s_add_u32 s{S_FB0}, s{S_FB0}, 4096\ns_add_u32 s{S_FB1}, s{S_FB1}, 4096"
    return [lambda: e.vm(f"buffer_load_dwordx4 {vr(bb[0],4)}, v{VL16}, {WS}, s{S_FA} offen offset:{(r&1)*2048} {SC}", f"f{q}"),
            lambda: e.vm(f"buffer_load_dwordx4 {vr(bb[2],4)}, v{VL16}, {WS}, s{S_FB0} offen offset:{(r&3)*1024} {SC}", f"f{q}"),
            lambda: (e.vm(f"buffer_load_dwordx4 {vr(bb[1],4)}, v{VL16}, {WS}, s{S_FA} offen offset:{(r&1)*2048+1024} {SC}", f"f{q}"),
                     e(advA) if advA else None),
            lambda: (e.vm(f"buffer_load_dwordx4 {vr(bb[3],4)}, v{VL16}, {WS}, s{S_FB1} offen offset:{(r&3)*1024} {SC}", f"f{q}"),
                     e(advB) if advB else None)]
def f_mfma(q, k):
    bb = FBUF[q % NB]; r2, d2 = ((0, 0), (0, 1), (1, 1), (1, 0))[k]
    return mfma(FA + 32*r2 + 16*d2, bb[d2], bb[2 + r2], "0" if q == 0 else None)

S_OA, S_OL = 61, 75
OAREG = [8 + 4 * k for k in range(7)] + [FB + 4 * k for k in range(9)]
def oa_dma(e, n):
    def f():
        if n == 0: e(f"s_add_u32 m0, s{S_OL}, {3 * RING}\ns_nop 0")
        if n == 4: e(f"s_mov_b32 m0, s{S_OL}\ns_add_u32 s{S_OA}, s{S_OA}, 8192")
        e.vm(f"buffer_load_dwordx4 v{VL16}, {WS}, s{S_OA} offen offset:{(n & 3) * 1024} {SC} lds", "oa")
    return f
KVPRE = P('KVPRE', 2)
HDEF = P('HDEF', 1); HFL = P('HFL', 6 if HDEF else 2); S_HO = 47
def attn_setup(e, gelu, h_off):
    e(h_off(S_LB, S_C))
    e(f"""s_mov_b32 s{S_QT}, s{S_RT}
s_mov_b32 s{S_KH}, s{S_CG}
s_lshl_b32 s{S_WB4}, s{S_W}, 12
s_lshl_b32 s6, s{S_KH}, 5
s_add_u32 s6, s6, s{S_QT}
s_lshl_b32 s6, s6, 12
s_add_u32 s{S_KVO}, s6, {KVF}
s_lshl_b32 s6, s{S_RB}, 2
s_add_u32 s6, s6, s{S_QT}
s_lshl_b32 s7, s6, 4
s_add_u32 s7, s7, s{S_J}
s_lshl_b32 s7, s7, 11
s_add_u32 s7, s7, {QF}""")
    if HDEF: e(f"s_mov_b32 s{S_HO}, s{S_C}")
    g0 = gelu(ACCB, S_C, G, 16 if HDEF else None, P('PK', 1) & 1); g1 = gelu(ACCB + 16, S_D, G + 8, 20 if HDEF else None, P('PK', 1) & 1)
    nfirst = P("GFIRST", 0)
    both = g0 + g1
    if P('GIL', 1): both = [x for p in zip(g0, g1) for x in p]
    for it in both[:nfirst]: it() if callable(it) else e(it)
    assert nfirst == 0
    poll_check(e, PL, PL + 1, "kvp", P("KSLEEP", 1))
    if SPLITQ: poll_check(e, PL + 2, PL + 3, "kvp", P("KSLEEP", 1))
    e.all_vm()
    e("s_barrier")
    e.stamp("xkv")
    flag_store(e, f"""s_lshl_b32 s6, s{S_RB}, 5
s_add_u32 s6, s6, s{S_J}
s_lshl_b32 s6, s6, 2
s_add_u32 s6, s6, {F_H + 64}
s_lshl_b32 s{S_A}, s{S_WF}, 2
s_add_u32 s{S_A}, s{S_A}, {F_W}
s_sub_u32 s{S_A}, s{S_A}, s6
v_mul_lo_u32 v{PL}, v0, s{S_A}
v_add_u32 v{PL}, s6, v{PL}""", 2, PL)
    if P("KVT", 0):
        e(f"""s_lshr_b32 s6, s2, 3
s_lshl_b32 s6, s6, 3
s_add_u32 s6, s6, s{S_W}
s_lshl_b32 s6, s6, 10
s_add_u32 s6, s6, {KVF}
v_and_b32 v{TP}, 7, v0
v_lshlrev_b32 v{TP}, 7, v{TP}""")
        e.vm(f"buffer_load_dword v{TP+1}, v{TP}, {WS}, s6 offen {SC}", "kvt")
    side = Side(e)
    side.add(kv_dma(e, 0))
    side.add([lambda: e.vm(f"buffer_load_dwordx4 {vr(Q,4)}, v{VL16}, {WS}, s7 offen {SC}", "q"),
              lambda: e.vm(f"buffer_load_dwordx4 {vr(Q+4,4)}, v{VL16}, {WS}, s7 offen offset:1024 {SC}", "q")])
    side.emit(P("KPRE0", 7))
    for st in range(1, KVPRE): side.add(kv_dma(e, st))
    for n, it in enumerate(both[nfirst:]):
        it() if callable(it) else e(it)
        if n % P('GSP', 1000) == P('GSP', 1000) - 1: side.emit(1)
        if n == 68: e.stamp("xg69")
    e.stamp("xgv")
    side.flush()
    e(f"""s_lshl_b32 s6, s{S_KH}, 14
v_add_u32 v{LB0}, s6, v{VL16}
v_add_u32 v{LB1}, 0x10000, v{LB0}
s_lshl_b32 s6, s{S_RB}, 2
s_add_u32 s6, s6, s{S_QT}
s_mul_i32 s6, s6, 144
s_lshl_b32 s7, s{S_J}, 1
s_add_u32 s6, s6, s7
s_add_u32 s6, s6, s{S_KH}
s_add_u32 s6, s6, 112
s_lshl_b32 s{S_OO}, s6, 10""")

def rd(e, dst, tile, f, tag):
    sl = (tile // 4 + 3) % 4
    e.ds(f"ds_read_b128 {vr(dst,4)}, v{LB0 if sl < 2 else LB1} offset:{(sl & 1) * RING + (tile % 4) * 4096 + f * 1024}", tag)

def attn_loop(e, withF):
    e.stamp("xge")
    if P("PRIO", 2) == 2:
        l = e.newlabel("np"); e(f"s_cmp_ge_u32 s{S_W}, 4\ns_cbranch_scc0 {l}\ns_setprio 1"); e.label(l)
    if P("PRIO", 2) == 5: e("s_setprio 0")
    e.wvm("k0", "q"); e.stamp("xk0"); e("s_barrier")
    e.stamp("astart")
    rd(e, K, 0, 0, "a"); rd(e, K + 4, 0, 1, "a"); rd(e, V0, 0, 2, "b")
    e.wds("a")
    e(mfma(S0, K, Q, "0")); e(mfma(S0, K + 4, Q + 4))
    rd(e, K, 1, 0, "b"); rd(e, K + 4, 1, 1, "b")
    if withF:
        e(f"""s_lshr_b32 s6, s{S_J}, 3
s_lshl_b32 s7, s{S_RB}, 1
s_add_u32 s6, s6, s7
s_and_b32 s7, s{S_J}, 7
s_mul_i32 s{S_A}, s{S_W}, 6
s_lshl_b32 s{S_K1}, s{S_W}, 1
s_add_u32 s{S_K1}, s{S_K1}, 44
s_lshl_b32 s{S_K1}, s{S_K1}, 10
s_lshl_b32 s{S_FQ}, s{S_K1}, 1
s_mul_i32 s{S_FB0}, s6, 288
s_add_u32 s{S_FB0}, s{S_FB0}, s{S_A}
s_lshl_b32 s{S_FB0}, s{S_FB0}, 10
s_add_u32 s{S_FB1}, s{S_FB0}, {144*1024}
s_bitcmp1_b32 s{S_W}, 0
s_cselect_b32 s{S_B}, s{S_FB1}, s{S_FB0}
s_cselect_b32 s{S_FB1}, s{S_FB0}, s{S_FB1}
s_mov_b32 s{S_FB0}, s{S_B}
s_mul_i32 s{S_FA}, s7, 144
s_add_u32 s{S_FA}, s{S_FA}, s{S_A}
s_lshl_b32 s{S_FA}, s{S_FA}, 11
s_add_u32 s{S_FA}, s{S_FA}, {W2T}
s_lshr_b32 s{S_A}, s{S_W}, 1
s_lshl_b32 s{S_A}, s{S_A}, 3
s_mul_i32 s{S_OA}, s7, 144
s_add_u32 s{S_OA}, s{S_OA}, s{S_A}
s_add_u32 s{S_OA}, s{S_OA}, 112
s_lshl_b32 s{S_OA}, s{S_OA}, 11
s_add_u32 s{S_OA}, s{S_OA}, {W2T}
s_and_b32 s{S_B}, s{S_W}, 1
s_lshl_b32 s{S_B}, s{S_B}, 12
s_add_u32 s{S_OA}, s{S_OA}, s{S_B}
s_lshl_b32 s{S_OL}, s{S_W}, 12""")
    else:
        e("s_nop 9")
    NT = 32
    fq = []
    nq = 0
    dq = []
    fi = 0
    need = {}; keep = []; done = [0]
    for i in range(NT):
        sc = S0 + 16 * (i & 1); sn = S0 + 16 * ((i + 1) & 1)
        v0c = V0 + 4 * (i & 1); v0n = V0 + 4 * ((i + 1) & 1)
        E = lambda r: f"v_exp_f32 v{r}, v{r}"
        C = lambda d, r: f"v_cvt_pk_bf16_f32 v{d}, v{r}, v{r+1}"
        def g(k): return [E(sc + 4*k + q) for q in range(4)] + [C(PP + 2*k, sc + 4*k), C(PP + 2*k + 1, sc + 4*k + 2)]
        g0, g1, g2, g3 = g(0), g(1), g(2), g(3)
        fm = []; fl = []
        if withF:
            if i == FP - 2:
                assert FP % 4 == 2
                fl = [lambda: poll_issue(e, f"""s_lshl_b32 s6, s{S_RB}, 7
s_add_u32 s6, s6, {F_H + 64}
s_and_b32 s7, s{S_J}, 7
s_lshl_b32 s7, s7, 8
s_add_u32 s7, s7, {F_W - 64}
v_lshl_add_u32 v{G}, v0, 2, s6
v_lshl_add_u32 v{G+1}, v0, 2, s7
v_mov_b32 v{G+2}, s6
s_mov_b32 s{S_A}, 0xffff0000
s_mov_b32 s{S_B}, 0x00000fff
s_mov_b32 s{S_C}, 0x00008888
s_mov_b32 s{S_D}, 0xfffff000
v_cndmask_b32 v{G}, v{G}, v{G+1}, s[{S_A}:{S_B}]
v_cndmask_b32 v{G}, v{G}, v{G+2}, s[{S_C}:{S_D}]""", G, G + 1, "hp")]
            if FP <= i < F0:
                if i == FP:
                    for q in range(NB - 1): fq += f_loads(e, q)
                n = -(-len(fq) // (F0 - i))
                fl = fq[:n]; fq = fq[n:]
            pb = []
            if i == HBP - 2:
                pb = [lambda: poll_issue(e, f"""s_lshl_b32 s6, s{S_RB}, 7
s_add_u32 s6, s6, {F_H}
v_and_b32 v{G}, 15, v0
v_lshl_add_u32 v{G}, v{G}, 2, s6""", G, G + 1, "hb")]
            if i == WOP - 2:
                pb = [lambda: poll_issue(e, f"""s_and_b32 s6, s{S_J}, 7
s_lshl_b32 s6, s6, 8
s_add_u32 s6, s6, {F_W + 112}
v_and_b32 v{G}, 7, v0
v_lshl_add_u32 v{G}, v{G}, 2, s6""", G, G + 1, "wo")]
            if i >= F0:
                cnt = 3 if i >= F3 else 2
                idx = list(range(fi, min(fi + cnt, 56))); fi += len(idx)
                fm = [(n // 4, n % 4) for n in idx]
                for (q, k) in fm:
                    if k == 0 and q + NB - 1 < 14:
                        if q + NB - 1 == 6: assert i > HBP
                        nl = f_loads(e, q + NB - 1)
                        for f in nl: need[id(f)] = 4 * q
                        keep.extend(nl); fq += nl
                n = min(len(fq), cnt)
                fl = fq[:n] + pb; fq = fq[n:]
        def em(x): x() if callable(x) else e(x)
        e.stamp(f"xa{i}")
        ex = [E(sc + k) for k in range(16)]; cv = [C(PP + k, sc + 2 * k) for k in range(8)]
        if i + KVPRE <= 2: dq += kv_dma(e, i + KVPRE)
        misc = []
        if i == 29: misc.append(comb_addr())
        if HDEF and i in (HDEF, HDEF + 1):
            misc.append(lambda i=i: e.vm(f"buffer_store_dwordx4 {vr(16 + 4*(i - HDEF),4)}, v{VL16}, {WS}, s{S_HO} offen offset:{1024*(i - HDEF)} {SC}", "hs"))
        if withF and 22 <= i < 30: misc.append(oa_dma(e, i - 22))
        gate = withF and i == FP
        def take(n):
            for _ in range(n):
                if fl and need.get(id(fl[0]), 0) <= done[0]: em(fl.pop(0))
        per = -(-len(fl) // 2)
        for x in ex[0:2]: em(x)
        def fmf(n):
            if n < len(fm):
                q, k = fm[n]
                e.wvm(f"f{q}"); e(f_mfma(q, k)); done[0] += 1
        if fm and fm[0][1] == 0: e.wboth(f"f{fm[0][0]}")
        else: e.all_ds()
        if i > 0: e(mfma(O, V1, PP + 4))
        rd(e, V1, i, 3, "c")
        for x in ex[2:5]: em(x)
        fmf(0)
        if not gate: take(1 if fm else per)
        for x in cv[0:2] + ex[5:7]: em(x)
        if i + 1 < NT: e(mfma(sn, K, Q, "0")); rd(e, v0n, i + 1, 2, "c")
        for x in ex[7:10]: em(x)
        if i + 1 < NT: e(mfma(sn, K + 4, Q + 4))
        if i % 4 == 2 and i + 2 < NT:
            st = i // 4
            if withF and i == FP: poll_check(e, G, G + 1, "hp")
            if withF and i == HBP: poll_check(e, G, G + 1, "hb")
            if withF and i == WOP: poll_check(e, G, G + 1, "wo")
            while dq and i == 2: dq.pop(0)()
            e.wvm(*([f"k{st+1}"] + (["hs"] if i == HFL else []))); e("s_barrier")
            if i == HFL:
                flag_store(e, f"""s_lshl_b32 s6, s{S_RB}, 5
s_add_u32 s6, s6, s{S_J}
s_lshl_b32 s6, s6, 2
s_add_u32 s6, s6, {F_H}
v_mov_b32 v{G+2}, s6""", 1, G + 2)
            assert not dq
            if st + 3 <= 7: dq += kv_dma(e, st + 3)
        if i + 2 < NT: rd(e, K, i + 2, 0, "c"); rd(e, K + 4, i + 2, 1, "c")
        if dq and getattr(dq[0], "scalar", False): dq.pop(0)()
        for x in cv[2:4] + ex[10:12]: em(x)
        fmf(1)
        take(1 if fm else len(fl) if not gate else per)
        for x in ex[12:14] + cv[4:6]: em(x)
        e(mfma(O, v0c, PP, "0" if i == 0 else None))
        for _ in range(1 if i >= 2 else 2):
            if dq: dq.pop(0)()
        if len(fm) < 3: take(len(fl))
        for x in misc: em(x)
        for x in ex[14:16] + cv[6:7]: em(x)
        fmf(2); take(len(fl))
        fq = fl + fq
        em(cv[7])
        if i + 2 >= NT: e("s_nop 1")
    e.all_ds()
    e("s_nop 0")
    e(mfma(O, V1, PP + 4))
    return fi, fq

CMB = L_W2T
def comb_addr():
    T = G
    return f"""s_lshl_b32 s6, s{S_W}, 11
s_add_u32 s6, s6, {CMB}
v_add_u32 v{T}, s6, v{VL16}
v_xor_b32 v{T+1}, 8192, v{T}
s_lshl_b32 s6, s{S_W}, 8
s_add_u32 s6, s6, {CMB + 16384}
v_lshl_add_u32 v{T+2}, v0, 2, s6
v_or_b32 v{T+3}, 32, v0
s_lshl_b32 s6, s{S_QT}, 8
s_add_u32 s6, s6, {CMB + 16384}
v_lshl_add_u32 v{T+3}, v{T+3}, 2, s6
s_mov_b32 s{S_C}, {f2u(2.0 ** -64)}
s_mov_b32 s{S_D}, {f2u(2.0 ** 64)}
s_lshl_b32 s6, s{S_RB}, 9
s_add_u32 s6, s6, s{S_J}
s_lshl_b32 s6, s6, 2
s_add_u32 s6, s6, {F_O2}
v_lshl_add_u32 v6, v0, 7, s6
v_mov_b32 v7, s{S_NON}"""

def attn_finish(e, withF=False):
    T = G
    e.stamp("aend")
    hi = e.newlabel("chi"); jn = e.newlabel("cjn"); fb = e.newlabel("cfb"); bk = e.newlabel("cbk")
    e(f"s_cmp_eq_u32 s{S_KH}, 0\ns_nop 10")
    e.ds(f"ds_write_b32 v{T+2}, v{O+12}")
    e(f"s_cbranch_scc0 {hi}")
    e.ds(f"ds_write_b128 v{T}, {vr(O+8,4)}"); e.ds(f"ds_write_b128 v{T}, {vr(O+12,4)} offset:1024")
    e(f"s_branch {jn}")
    e.label(hi)
    e(f"ds_write_b128 v{T}, {vr(O,4)}\nds_write_b128 v{T}, {vr(O+4,4)} offset:1024")
    e.all_ds()
    for k in range(8): e(f"v_mov_b32 v{O+k}, v{O+8+k}")
    e.label(jn)
    if withF: e.wboth("oa")
    else: e.all_ds()
    e.stamp("xc0")
    e("s_barrier")
    e.stamp("xc1")
    e.ds(f"ds_read2st64_b32 {vr(PP,2)}, v{T+3} offset0:0 offset1:4", "l")
    e.ds(f"ds_read_b128 {vr(S0,4)}, v{T+1}", "h0"); e.ds(f"ds_read_b128 {vr(S0+4,4)}, v{T+1} offset:1024", "h1")
    e(f"s_mov_b32 s{S_A}, 0\ns_sub_u32 s{S_B}, 0, s{S_KH}")
    e.wds("l")
    e(f"""v_add_f32 v{PP}, v{PP}, v{PP+1}
v_rcp_f32 v{PP+1}, v{PP}
v_cmp_nle_f32 vcc, s{S_C}, v{PP}
v_cmp_nge_f32 s[{S_E}:{S_F}], s{S_D}, v{PP}""")
    e.all_ds()
    for k in range(8): e(f"v_add_f32 v{S0+k}, v{S0+k}, v{O+k}")
    e(f"s_or_b64 s[{S_E}:{S_F}], s[{S_E}:{S_F}], vcc")
    for k in range(8): e(f"v_mul_f32 v{S0+k}, v{S0+k}, v{PP+1}")
    def pack_store():
        for k in range(4): e(f"v_cvt_pk_bf16_f32 v{K+k}, v{S0+2*k}, v{S0+2*k+1}")
        e(f"""v_cndmask_b32 v{K+2}, v{K+2}, 0, s[{S_A}:{S_B}]
v_cndmask_b32 v{K+3}, v{K+3}, 0, s[{S_A}:{S_B}]""")
    pack_store()
    e.vm(f"buffer_store_dwordx4 {vr(K,4)}, v{VL16}, {WS}, s{S_OO} offen {SC}", "os")
    e(f"""v_add_f32 v{PP+2}, |v{S0}|, |v{S0+1}|
v_add_f32 v{PP+3}, |v{S0+2}|, |v{S0+3}|
v_add_f32 v{PP+4}, |v{S0+4}|, |v{S0+5}|
v_add_f32 v{PP+5}, |v{S0+6}|, |v{S0+7}|
v_add_f32 v{PP+2}, v{PP+2}, v{PP+3}
v_add_f32 v{PP+4}, v{PP+4}, v{PP+5}
s_mov_b32 s6, 0x7f7fffff
v_add_f32 v{PP+2}, v{PP+2}, v{PP+4}
v_cmp_nge_f32 vcc, s6, v{PP+2}
s_nop 1
s_or_b64 vcc, vcc, s[{S_E}:{S_F}]""")
    if 'forcefb' in X: e("s_mov_b64 vcc, 1")
    e(f"s_cbranch_vccnz {fb}")
    e.label(bk)
    FALLBACKS.append((fb, bk))
    e.stamp("xc2")

FALLBACKS = []
def fallback(e, fb, bk):
    l1 = e.newlabel("fb1"); l2 = e.newlabel("fb2"); l3 = e.newlabel("fb3")
    M = PP + 7
    e.label(fb)
    if 'fbcount' in X:
        e(f"""s_mov_b32 s80, s{P_DBG}
s_mov_b32 s81, s{P_DBG+1}
s_mov_b32 s82, 256
s_mov_b32 s83, 0x00020000
v_mov_b32 v{M}, 0
v_mov_b32 v{M-1}, 1
s_mov_b64 exec, 1
buffer_atomic_add v{M-1}, v{M}, s[80:83], 0 offen
v_mov_b32 v{M-1}, s2
buffer_store_dword v{M-1}, v{M}, s[80:83], 0 offen offset:4
v_mov_b32 v{M-1}, s{S_W}
buffer_store_dword v{M-1}, v{M}, s[80:83], 0 offen offset:8
v_mov_b32 v{M-1}, vcc_lo
buffer_store_dword v{M-1}, v{M}, s[80:83], 0 offen offset:12
v_mov_b32 v{M-1}, vcc_hi
buffer_store_dword v{M-1}, v{M}, s[80:83], 0 offen offset:16
v_mov_b32 v{M-1}, s{S_E}
buffer_store_dword v{M-1}, v{M}, s[80:83], 0 offen offset:20
v_mov_b32 v{M-1}, s{S_F}
buffer_store_dword v{M-1}, v{M}, s[80:83], 0 offen offset:24
buffer_store_dword v{PP}, v{M}, s[80:83], 0 offen offset:28
buffer_store_dword v{PP+2}, v{M}, s[80:83], 0 offen offset:32
s_waitcnt vmcnt(0)
s_mov_b64 exec, -1""")
    e(f"s_mov_b32 s6, {KVF}\nv_mov_b32 v{M}, 0xff800000")
    e.label(l1)
    e(f"""buffer_load_dwordx4 {vr(K,4)}, v{VL16}, {WS}, s6 offen {SC}
buffer_load_dwordx4 {vr(K+4,4)}, v{VL16}, {WS}, s6 offen offset:1024 {SC}
s_add_u32 s6, s6, 4096
s_waitcnt vmcnt(0)""")
    e(mfma(S0, K, Q, "0")); e(mfma(S0, K + 4, Q + 4))
    e("s_nop 11")
    for k in range(8): e(f"v_max3_f32 v{M}, v{M}, v{S0+2*k}, v{S0+2*k+1}")
    e(f"""s_cmp_lt_u32 s6, {KVF + 64*4096}
s_cbranch_scc1 {l1}
v_mov_b32 v{PP}, v{M}
s_nop 1
v_permlane32_swap_b32 v{PP}, v{M}
v_max_f32 v{M}, v{M}, v{PP}
v_cvt_pk_bf16_f32 v{PP}, v{M}, v{M}
v_and_b32 v{PP}, s{S_MASK}, v{PP}
v_sub_f32 v{PP+1}, v{M}, v{PP}
v_cvt_pk_bf16_f32 v{PP+2}, v{PP+1}, v{PP+1}
v_and_b32 v{PP+2}, s{S_MASK}, v{PP+2}
v_sub_f32 v{PP+1}, v{PP+1}, v{PP+2}
v_cvt_pk_bf16_f32 v{PP}, -v{PP}, -v{PP+2}
v_cvt_pk_bf16_f32 v{PP+1}, -v{PP+1}, 0
v_cndmask_b32 v{Q+6}, v{Q+6}, v{PP}, s[{S_HI}:{S_HI+1}]
v_cndmask_b32 v{Q+7}, v{Q+7}, v{PP+1}, s[{S_HI}:{S_HI+1}]
s_mov_b32 s6, {KVF}""")
    for k in range(16): e(f"v_mov_b32 v{O+k}, 0")
    e.label(l2)
    for f in range(4): e(f"buffer_load_dwordx4 {vr(K+4*f,4)}, v{VL16}, {WS}, s6 offen offset:{1024*f} {SC}")
    e("s_add_u32 s6, s6, 4096\ns_waitcnt vmcnt(0)")
    e(mfma(S0, K, Q, "0")); e(mfma(S0, K + 4, Q + 4))
    e("s_nop 11")
    for k in range(16): e(f"v_exp_f32 v{S0+k}, v{S0+k}")
    e("s_nop 0")
    for k in range(8): e(f"v_cvt_pk_bf16_f32 v{PP+k}, v{S0+2*k}, v{S0+2*k+1}")
    e("s_nop 1")
    e(mfma(O, K + 8, PP)); e(mfma(O, K + 12, PP + 4))
    e(f"""s_cmp_lt_u32 s6, {KVF + 64*4096}
s_cbranch_scc1 {l2}
s_nop 11
v_mov_b32 v{PP}, v{O+12}
v_mov_b32 v{PP+1}, v{O+12}
s_cmp_eq_u32 s{S_KH}, 0
s_nop 0
v_permlane32_swap_b32 v{PP}, v{PP+1}
v_rcp_f32 v{PP+1}, v{PP+1}
s_cbranch_scc1 {l3}""")
    for k in range(8): e(f"v_mov_b32 v{O+k}, v{O+8+k}")
    e.label(l3)
    e("s_nop 0")
    for k in range(8): e(f"v_mul_f32 v{S0+k}, v{O+k}, v{PP+1}")
    for k in range(4): e(f"v_cvt_pk_bf16_f32 v{K+k}, v{S0+2*k}, v{S0+2*k+1}")
    e(f"""v_cndmask_b32 v{K+2}, v{K+2}, 0, s[{S_A}:{S_B}]
v_cndmask_b32 v{K+3}, v{K+3}, 0, s[{S_A}:{S_B}]
buffer_store_dwordx4 {vr(K,4)}, v{VL16}, {WS}, s{S_OO} offen {SC}
s_waitcnt vmcnt(0)
s_branch {bk}""")

OFA, OFD = 6, 7
def o_signal(e):
    l = e.newlabel("os")
    e(f"s_cbranch_vccz {l}\ns_mov_b64 exec, 0xffff\nbuffer_store_dword v{OFD}, v{OFA}, {WS}, 0 offen {SC}\ns_mov_b64 exec, -1")
    e.label(l)

def o_flag(e):
    e.stamp("xc3")
    e(f"s_cmp_eq_u32 s{S_W}, 0\ns_cselect_b64 vcc, -1, 0")
    e.wvm("os"); e.stamp("xc4"); e("s_barrier")
    o_signal(e)

def tail(e, nq, fq):
    T = G
    SUM = 232
    RB = 64
    OBR = [96 + 4 * k for k in range(7)] + [36]
    AD = 248
    for f in fq: f()
    for n in range(nq, 56):
        q, k = n // 4, n % 4
        if k == 0 and q + NB - 1 < 14:
            for f in f_loads(e, q + NB - 1): f()
        e.wvm(f"f{q}"); e(f_mfma(q, k))
    e(f"""s_lshl_b32 s6, s{S_W}, 13
s_add_u32 s6, s6, {RING}
v_add_u32 v{AD+6}, s6, v{VL16}
v_xor_b32 v{AD+7}, 8192, v{AD+6}""")
    if nq < 56: e("s_nop 8")
    setup = Side(e)
    setup.add(f"""s_lshr_b32 s6, s{S_J}, 3
s_lshl_b32 s7, s{S_RB}, 1
s_add_u32 s6, s6, s7
s_and_b32 s{S_B}, s{S_W}, 1
s_lshl_b32 s{S_C}, s6, 1
s_add_u32 s{S_C}, s{S_C}, s{S_B}
s_mul_i32 s{S_C}, s{S_C}, 144
s_lshr_b32 s{S_A}, s{S_W}, 1
s_lshl_b32 s{S_D}, s{S_A}, 3
s_add_u32 s{S_D}, s{S_D}, 112
s_add_u32 s{S_C}, s{S_C}, s{S_D}
s_lshl_b32 s{S_C}, s{S_C}, 10
s_and_b32 s7, s{S_J}, 7
s_add_u32 s{S_D}, s{S_C}, 4096
s_lshl_b32 s{S_A}, s{S_A}, 14
s_lshl_b32 s{S_B}, s{S_B}, 13
s_add_u32 s{S_G}, s{S_A}, s{S_B}
s_add_u32 s{S_G}, s{S_G}, {RING}
v_and_b32 v{T}, 31, v0
v_lshrrev_b32 v{T+1}, 5, v0
v_and_b32 v{T+2}, 7, v0
v_xor_b32 v{T+1}, v{T+1}, v{T+2}
v_lshlrev_b32 v{T+1}, 4, v{T+1}
v_lshl_add_u32 v{T}, v{T}, 8, v{T+1}
v_add_u32 v{AD}, s{S_G}, v{T}
v_xor_b32 v{AD+1}, 32, v{AD}
v_xor_b32 v{AD+2}, 64, v{AD}
v_xor_b32 v{AD+3}, 96, v{AD}
s_lshl_b32 s6, s6, 6
s_lshl_b32 s{S_B}, s{S_W}, 3
s_add_u32 s6, s6, s{S_B}
v_lshrrev_b32 v{T}, 3, v0
v_add_u32 v{T+1}, s6, v{T}
v_mul_u32_u24 v{T+1}, 896, v{T+1}
v_lshl_add_u32 v{T+1}, v{T+2}, 4, v{T+1}
s_lshl_b32 s7, s7, 7
v_add_u32 v{VO}, s7, v{T+1}
v_lshlrev_b32 v{T+2}, 1, v{T+2}
v_xor_b32 v{T+2}, v{T+2}, v{T}
v_lshlrev_b32 v{T+2}, 4, v{T+2}
v_lshl_add_u32 v{T}, v{T}, 8, v{T+2}
s_lshl_b32 s6, s{S_W}, 11
s_add_u32 s6, s6, {RING}
v_add_u32 v{AD+4}, s6, v{T}
v_xor_b32 v{AD+5}, 16, v{AD+4}
v_add_u32 v{T+2}, {3 * RING}, v{T+3}""")
    e(f"s_lshr_b32 s6, s{S_W}, 1\ns_lshl_b32 s6, s6, 13\nv_add_u32 v{T+3}, s6, v{VL16}\ns_nop 0")
    oaq = [(lambda k=k: e.ds(f"ds_read_b128 {vr(OAREG[k],4)}, v{T+2 if k < 8 else T+3} offset:{(k & 7) * 1024}", "oar")) for k in range(16)]
    nw1 = P("NW1", 2)
    def oflag():
        e.stamp("xc3")
        e(f"s_cmp_eq_u32 s{S_W}, 0\ns_cselect_b64 vcc, -1, 0")
        e.wvm("os")
        if nw1 == 8: e.all_ds()
        e.stamp("xc4"); e("s_barrier")
        o_signal(e)
    for q in range(8):
        if q == nw1: oflag()
        e.ds(f"ds_write_b128 v{AD+6}, {vr(FA+32+4*q,4)} offset:{q*1024}")
        setup.emit(6)
    setup.flush()
    if nw1 == 8: oflag()
    if not P('OAL', 1):
        for f in oaq: f()
    e.vm(f"buffer_load_dwordx4 {vr(XRES,4)}, v{VO}, s[{SRD_X}:{SRD_X+3}], 0 offen", "xr")
    if nw1 < 8: e.all_ds(); e("s_barrier")
    for q in range(8): e.ds(f"ds_read_b128 {vr(RB+4*q,4)}, v{AD+7} offset:{q*1024}", f"p{q}")
    poll_issue(e, f"""s_lshl_b32 s6, s{S_RB}, 4
s_add_u32 s6, s6, s{S_J}
s_lshl_b32 s6, s6, 7
s_add_u32 s6, s6, {F_O2}
v_and_b32 v{T}, 15, v0
v_lshl_add_u32 v{T}, v{T}, 2, s6""", T, T + 1, "op")
    srd(e, SRD_OUT, P_OUT, 2048 * 896)
    for q in range(8):
        e.wds(f"p{q}")
        for k in range(4): e(f"v_add_f32 v{FA+4*q+k}, v{FA+4*q+k}, v{RB+4*q+k}")
    e.stamp("t1")
    poll_check(e, T, T + 1, "op", P("OSLEEP", 1))
    e("s_barrier")
    e.stamp("t2")
    for k in range(8):
        e.vm(f"buffer_load_dwordx4 {vr(OBR[k],4)}, v{VL16}, {WS}, s{S_C if k < 4 else S_D} offen offset:{(k&3)*1024} {SC}", f"ob{k}")
    if P('OAL', 1):
        for f in oaq: f()
        e.all_ds()
    e.wvm("xr")
    for k in range(4): e(f"v_lshlrev_b32 v{SUM+2*k}, 16, v{XRES+k}\nv_and_b32 v{SUM+1+2*k}, s{S_MASK}, v{XRES+k}")
    for k in range(8):
        e.wvm(f"ob{k}")
        for d2 in range(2): e(mfma(FA + 16*d2, OAREG[2*k + d2], OBR[k]))
    e("s_nop 10")
    e.stamp("t3")
    for d2 in range(2):
        for q in range(4): e.ds(f"ds_write_b128 v{AD+q}, {vr(FA+16*d2+4*q,4)} offset:{d2*128}")
    e.all_ds()
    e("s_barrier")
    for p in range(4):
        e.ds(f"ds_read_b128 {vr(RB+8*p,4)}, v{AD+4} offset:{p*16384}", f"s{p}")
        e.ds(f"ds_read_b128 {vr(RB+8*p+4,4)}, v{AD+5} offset:{p*16384}", f"s{p}")
    for p in range(4):
        e.wds(f"s{p}")
        for k in range(8): e(f"v_add_f32 v{SUM+k}, v{SUM+k}, v{RB+8*p+k}")
    for k in range(4): e(f"v_cvt_pk_bf16_f32 v{XRES+k}, v{SUM+2*k}, v{SUM+1+2*k}")
    e.vm(f"buffer_store_dwordx4 {vr(XRES,4)}, v{VO}, s[{SRD_OUT}:{SRD_OUT+3}], 0 offen {os.environ.get('OUTF', '')}")

def build():
    e = Em()
    kn = NAME + "_kernel"
    e.a.raw(f".globl {kn}\n.p2align 8\n.type {kn},@function")
    e.label(kn)
    prologue(e)
    gelu, h_off = phaseB(e)
    attn_setup(e, gelu, h_off)
    e(f"s_and_b32 s6, s{S_J}, 7\ns_cmp_eq_u32 s6, 7\ns_cbranch_scc1 C_noF")
    sn = e.snap(); ns = e.nst
    nq, fq = attn_loop(e, True)
    attn_finish(e, True)
    tail(e, nq, fq)
    nend = e.nst
    e("s_branch K_fin")
    e.label("C_noF")
    e.restore(sn); e.nst = ns
    attn_loop(e, False)
    attn_finish(e)
    o_flag(e)
    e(f"""s_cmp_eq_u32 s{S_RB}, 0
s_cbranch_scc0 C_noF_done
s_cmp_eq_u32 s{S_J}, 7
s_cbranch_scc0 C_noF_done
s_cmp_eq_u32 s{S_W}, 0
s_cbranch_scc0 C_noF_done""")
    for k in range(4):
        e(f"""v_lshrrev_b32 v{G}, 4, v0
v_and_b32 v{G+1}, 15, v0
v_lshlrev_b32 v{G}, 7, v{G}
v_lshl_add_u32 v{G}, v{G+1}, 2, v{G}
v_add_u32 v{G}, {F_H + 512*k}, v{G}""")
        e(f"buffer_load_dword v{G+1}, v{G}, {WS}, 0 offen {SC}"); e.mark[f"ep{k}"] = len(e.q['vm'])
        poll_check(e, G, G + 1, f"ep{k}")
    e(f"v_mov_b32 v{G}, {EPO}\nv_mov_b32 v{G+1}, s{S_NON}\ns_mov_b64 exec, 1\nbuffer_store_dword v{G+1}, v{G}, {WS}, 0 offen {SC}\ns_mov_b64 exec, -1")
    e.label("C_noF_done")
    while e.nst < nend and not STAMPS_OFF: e.stamp()
    e.label("K_fin")
    if os.environ.get("AMPAT"):
        e("""s_waitcnt vmcnt(0)
s_memrealtime s[92:93]
s_waitcnt lgkmcnt(0)
s_sub_u32 s7, s94, s96
s_mul_i32 s7, s7, 10
K_amp:
s_sleep 1
s_memrealtime s[98:99]
s_waitcnt lgkmcnt(0)
s_sub_u32 s6, s98, s92
s_cmp_lt_u32 s6, s7
s_cbranch_scc1 K_amp""")
    if 'stdiag' in X:
        e("""s_memtime s[92:93]
s_waitcnt lgkmcnt(0)
K_sd:
s_sleep 2
s_memtime s[90:91]
s_waitcnt lgkmcnt(0)
s_sub_u32 s6, s90, s92
s_cmp_lt_u32 s6, s94
s_cbranch_scc1 K_sd""")
    if 'fix' in X:
        e("""K_fx:
s_sleep 1
s_memrealtime s[98:99]
s_waitcnt lgkmcnt(0)
s_sub_u32 s6, s98, s96
s_cmp_lt_u32 s6, 10000
s_cbranch_scc1 K_fx""")
    if 'amp' in X:
        e("""s_waitcnt vmcnt(0)
s_memrealtime s[98:99]
s_waitcnt lgkmcnt(0)
s_sub_u32 s7, s98, s96
s_mul_i32 s7, s7, 10
K_fx:
s_sleep 1
s_memrealtime s[98:99]
s_waitcnt lgkmcnt(0)
s_sub_u32 s6, s98, s96
s_cmp_lt_u32 s6, s7
s_cbranch_scc1 K_fx""")
    if STAMPS:
        e.stamp()
        e.label("K_fin2")
        e("s_memrealtime s[98:99]\ns_waitcnt lgkmcnt(0) vmcnt(0)")
        e(f"""s_mov_b32 s40, s{P_WS}
s_mov_b32 s41, s{P_WS+1}
s_mov_b32 s42, 0x10000000
s_mov_b32 s43, 0x00020000
s_lshl_b32 s6, s2, 3
s_add_u32 s6, s6, s{S_W}
s_lshl_b32 s6, s6, 6
s_add_u32 s6, s6, {STAMP_WS}
v_mov_b32 v2, s96
v_mov_b32 v3, s98""")
        for k in range(10): e(f"v_mov_b32 v{4+k}, {'s%d' % (76+2*k) if k < e.nst else 0}")
        e("v_mov_b32 v1, 0\ns_mov_b64 exec, 1")
        for q in range(3): e(f"buffer_store_dwordx4 v[{2+4*q}:{5+4*q}], v1, s[40:43], s6 offen offset:{16*q}")
    e("s_endpgm")
    for fb, bk in FALLBACKS: fallback(e, fb, bk)
    e.label("K_end")
    e("s_endpgm")
    probs = check_hazards(e.a.lines, "k")
    hdr = open("cdna_kernels/" + NAME + ".s.ref").read().split("; Override launch")[0]
    out = hdr + f"; @launch grid=(256,1,1) block=(512,1,1) lds={LDS_BYTES}\n"
    out += '.amdgcn_target "amdgcn-amd-amdhsa--gfx950"\n.text\n' + e.a.text()
    out += f""".section .rodata,"a"
.p2align 6
.amdhsa_kernel {kn}
  .amdhsa_next_free_vgpr 256
  .amdhsa_next_free_sgpr 102
  .amdhsa_accum_offset 256
  .amdhsa_group_segment_fixed_size 0
  .amdhsa_kernarg_size 96
  .amdhsa_user_sgpr_count 2
  .amdhsa_user_sgpr_kernarg_segment_ptr 1
  .amdhsa_system_sgpr_workgroup_id_x 1
  .amdhsa_float_denorm_mode_32 3
.end_amdhsa_kernel
"""
    return out, probs

if __name__ == "__main__":
    out, probs = build()
    for p in probs: print("HAZARD", p, file=sys.stderr)
    open(sys.argv[1] if len(sys.argv) > 1 else "cdna_kernels/" + NAME + ".s", "w").write(out)
```

```python
import sys, os, math, struct
from asmlib import *
X = set(os.environ.get('XFLAGS', '').split(','))
def P(name, default): return int(os.environ.get(name, default))
NAME = "parallel_sum__grouped_kv_mqa__glu_gated_geglu__prompt"
def f2u(x): return struct.unpack("<I", struct.pack("<f", x))[0]

A2F = 0
W2T = 64 * 144 * 1024
QF  = W2T + 7 * 144 * 2048
KVF = QF + 64 * 16 * 2048
FLG = KVF + 64 * 4096
RKV = P("RKV", 16)
F_W  = FLG
F_H  = FLG + 2048
F_O  = FLG + 4096
EPO  = FLG + 6144
F_Q  = FLG + 4096
SPLITQ = P('SPLITQ', 0)
F_KV = FLG + 8192
F_O2 = F_KV + 256 * RKV
STAT = F_O2 + 32768
WS_END = STAT + 2048 * 8
OOB = 0x7ffffff0
P_X, P_WQ, P_WK, P_WV, P_WO, P_BX, P_WG, P_WU, P_WD, P_OUT, P_DBG, P_WS = 8, 10, 12, 14, 16, 18, 20, 22, 24, 26, 28, 30
SRD_X, SRD_WS, SRD_T, SRD_PC = 32, 36, 40, 44
SRD_OUT = SRD_T
S_W, S_RB, S_J = 3, 4, 5
(S_WB, S_MASK, S_XO, S_XO2, S_RT, S_CG, S_MUL, S_T0, S_T1, S_U, S_NON, S_LA, S_LB, S_TO, S_QU) = range(48, 63)
S_HI = 64
S_A, S_B, S_C, S_D, S_E, S_F = 66, 67, 68, 69, 70, 71
S_G, S_H2 = 72, 73
S_CNT = 74
WS = f"s[{SRD_WS}:{SRD_WS+3}]"
SC = "sc1"
STAMPS = bool(os.environ.get("STAMPS"))
STAMP_WS = 200 * 1024 * 1024
SPIN_MAX = 1 << 21
STAMPS_OFF = False

class Em:
    def __init__(s):
        s.a = Asm(); s.q = {'ds': [], 'vm': []}; s.done = {'ds': 0, 'vm': 0}; s.nst = 0; s.uid = 0; s.mark = {}
    def __call__(s, t): s.a(t)
    def label(s, l): s.a.label(l)
    def ds(s, ins, tag=None): s.a(ins); s.q['ds'].append(tag)
    def vm(s, ins, tag=None): s.a(ins); s.q['vm'].append(tag)
    def _n(s, k, tags, cap):
        idx = -1
        for t in tags:
            ii = [i for i, x in enumerate(s.q[k]) if x == t]
            if not ii and 'nodma' in X: continue
            assert ii, f"tag {t} never issued"
            idx = max(idx, ii[-1])
        if idx < s.done[k]: return None
        n = min(len(s.q[k]) - 1 - idx, cap)
        s.done[k] = len(s.q[k]) - n
        return n
    def wds(s, *tags):
        n = s._n('ds', tags, 15)
        if n is not None: s.a(f"s_waitcnt lgkmcnt({n})")
    def wvm(s, *tags):
        n = s._n('vm', tags, 63)
        if n is not None: s.a(f"s_waitcnt vmcnt({n})")
    def wboth(s, *tags):
        n = s._n('vm', tags, 63)
        s.a("s_waitcnt lgkmcnt(0)" if n is None else f"s_waitcnt vmcnt({n}) lgkmcnt(0)"); s.done['ds'] = len(s.q['ds'])
    def all_ds(s): s.a("s_waitcnt lgkmcnt(0)"); s.done['ds'] = len(s.q['ds'])
    def all_vm(s): s.a("s_waitcnt vmcnt(0)"); s.done['vm'] = len(s.q['vm'])
    def snap(s): return ({k: list(v) for k, v in s.q.items()}, dict(s.done))
    def restore(s, sn): s.q = {k: list(v) for k, v in sn[0].items()}; s.done = dict(sn[1])
    def stamp(s, name=None):
        if name is not None and name == os.environ.get("IDLEAT"): s.a("s_sleep 32")
        if name is not None and name == os.environ.get("AMPAT"):
            s.a("s_memrealtime s[94:95]"); s.all_ds()
        sel = os.environ.get("STSEL")
        if sel is not None and name is not None and name not in sel.split(","): return
        if sel is None and name is not None and name.startswith("x"): return
        if STAMPS and not STAMPS_OFF:
            assert s.nst < 10
            s.a(f"{'s_memrealtime' if os.environ.get('RT') else 's_memtime'} s[{76+2*s.nst}:{77+2*s.nst}]"); s.nst += 1
            s.all_ds()
    def newlabel(s, p): s.uid += 1; return f"{p}_{s.uid}"

def srd(e, d, p, nbytes):
    e(f"s_mov_b32 s{d}, s{p}\ns_mov_b32 s{d+1}, s{p+1}\ns_mov_b32 s{d+2}, {nbytes}\ns_mov_b32 s{d+3}, 0x00020000")
def mfma(d, A, B, C=None):
    return f"v_mfma_f32_32x32x16_bf16 {vr(d,16)}, {vr(A,4)}, {vr(B,4)}, {vr(d,16) if C is None else C}"
def mfma16(d, A, B, C=None):
    return f"v_mfma_f32_16x16x32_bf16 {vr(d,4)}, {vr(A,4)}, {vr(B,4)}, {vr(d,4) if C is None else C}"

class Side:
    def __init__(s, e): s.e = e; s.q = []
    def add(s, items):
        if isinstance(items, str):
            raw = [l.strip() for l in items.strip().split("\n") if l.strip()]
            items = []
            for l in raw:
                if l.startswith("s_cselect"): items[-1] += "\n" + l
                else: items.append(l)
        s.q += list(items)
    def emit(s, n):
        while n > 0 and s.q:
            it = s.q.pop(0)
            if callable(it): it()
            else: s.e(it)
            n -= 1
    def flush(s): s.emit(1 << 30)

def flag_store(e, addr_lines, nlanes, vt):
    l = e.newlabel("fl")
    e(f"s_cmp_eq_u32 s{S_W}, 0\ns_cbranch_scc0 {l}")
    e(addr_lines)
    e(f"v_mov_b32 v{vt+1}, s{S_NON}\ns_mov_b64 exec, {(1 << nlanes) - 1}\nbuffer_store_dword v{vt+1}, v{vt}, {WS}, 0 offen {SC}\ns_mov_b64 exec, -1")
    e.label(l)

def poll_issue(e, addr_lines, vaddr, vdat, tag):
    l = e.newlabel("pi")
    e(f"s_cmp_eq_u32 s{S_W}, 0\ns_cbranch_scc0 {l}")
    e(addr_lines)
    e(f"buffer_load_dword v{vdat}, v{vaddr}, {WS}, 0 offen {SC}")
    e.label(l)
    e.mark[tag] = len(e.q['vm'])

def poll_check(e, vaddr, vdat, tag, sleep=None):
    ok = e.newlabel("pok"); sp = e.newlabel("psp")
    e(f"s_cmp_eq_u32 s{S_W}, 0\ns_cbranch_scc0 {ok}")
    e(f"s_waitcnt vmcnt({min(63, len(e.q['vm']) - e.mark[tag])})")
    e(f"v_cmp_ne_u32 vcc, s{S_NON}, v{vdat}\ns_cbranch_vccz {ok}\ns_mov_b32 s{S_CNT}, {SPIN_MAX}")
    e.label(sp)
    e(f"""s_sleep {P('SLEEP', 4) if sleep is None else sleep}
buffer_load_dword v{vdat}, v{vaddr}, {WS}, 0 offen {SC}
s_sub_u32 s{S_CNT}, s{S_CNT}, 1
s_waitcnt vmcnt(0)
v_cmp_ne_u32 vcc, s{S_NON}, v{vdat}
s_cmp_eq_u32 s{S_CNT}, 0
s_cbranch_scc1 {ok}
s_cbranch_vccnz {sp}""")
    if 'spincnt' in X and tag in SPINIDX: e(f"s_sub_u32 s{78 + 2 * SPINIDX[tag]}, {SPIN_MAX + 1000}, s{S_CNT}")
    e.label(ok)
SPINIDX = {'kvp': 0, 'hp': 1, 'hb': 2, 'wo': 3, 'op': 4}

RING = 32768
L_W2T = 131072
L_CSA = L_W2T + 8192
L_CSB = L_CSA + 2048
L_ST  = L_CSB + 2048
L_KVB = L_ST + 4096
L_FLG = L_KVB + 4096
LDS_BYTES = L_FLG + 256

VL16, VT, VX, GA, GS = 1, 2, 3, 4, 6
XA, WA = 8, 12
ST, SEL, CSA, WF, TM = 20, 24, 28, 36, 60
ACCA, ACCB, XR, G = 64, 96, 128, 240
SQA, SQB, TP = 60, 240, 248
WB, GB, PL = 250, 102, 252
R_, S_, AC, BC, I2 = 8, 9, 10, 11, 3
BEXT = 60


TA, TS, TX, TD = 96, 98, 99, 100
S_ISQ, S_SH = 63, 75
RW = 104
def w_source(row, c, dst, gs, t0):
    return f"""v_cmp_le_u32 vcc, s{S_A}, v{c}
v_mul_lo_u32 v{dst}, v{row}, s{S_B}
v_lshl_add_u32 v{dst}, v{c}, 4, v{dst}
v_add_u32 v{dst}, s{S_C}, v{dst}
v_subrev_u32 v{c}, s{S_A}, v{c}
v_lshlrev_b32 v{c}, s{S_G}, v{c}
v_mul_lo_u32 v{t0}, v{row}, s{S_D}
v_add3_u32 v{t0}, v{t0}, v{c}, s{S_H2}
v_cndmask_b32 v{dst}, v{dst}, v{t0}, vcc
v_mov_b32 v{gs}, s{S_B}
v_mov_b32 v{t0}, s{S_D}
v_cndmask_b32 v{gs}, v{gs}, v{t0}, vcc
v_lshlrev_b32 v{gs}, 5, v{gs}"""

ROTS = {0: [0]*8, 1: [0, 3, 2, 5, 4, 0, 6, 2], 2: [0, 3, 3, 0, 0, 3, 3, 0], 3: [0, 1, 2, 3, 4, 5, 6, 0], 4: [0, 4, 1, 5, 2, 6, 3, 0]}
ROTTAB = sum(v << (4 * i) for i, v in enumerate(ROTS[P("ROT", 0)]))
S_ROT = 47
S_WF = 46
RPAR, RBIT = P("RPAR", 0), P("RBIT", 0)
RPARCODE = "" if not RPAR else f"""
s_lshr_b32 s{S_F}, s2, 3
s_lshr_b32 s{S_T0}, s2, 6
s_xor_b32 s{S_F}, s{S_F}, s{S_T0}
s_and_b32 s{S_F}, s{S_F}, {RBIT or 1}
s_mul_i32 s{S_F}, s{S_F}, {RPAR}
s_add_u32 s{S_XO}, s{S_XO}, s{S_F}
s_cmp_ge_u32 s{S_XO}, 7
s_cselect_b32 s{S_F}, 7, 0
s_sub_u32 s{S_XO}, s{S_XO}, s{S_F}"""
def prologue(e):
    T = TM
    ROTCODE = f"""s_and_b32 s{S_XO}, s2, 7
s_lshl_b32 s{S_XO}, s{S_XO}, 2
s_lshr_b32 s{S_XO}, {ROTTAB:#x}, s{S_XO}
s_and_b32 s{S_XO}, s{S_XO}, 7{RPARCODE}
s_mov_b32 s{S_ROT}, s{S_XO}
s_lshl_b32 s{S_F}, s{S_XO}, 6
s_lshl_b32 s{S_XO}, s{S_XO}, 7
v_add_u32 v{T+2}, s{S_F}, v{T+2}
""" if any(ROTS[P('ROT', 0)]) or RPAR else f"s_mov_b32 s{S_ROT}, 0\n"
    e(f"s_cmp_ge_u32 s2, 256\ns_cbranch_scc1 K_end")
    if STAMPS or 'fix' in X or 'amp' in X or os.environ.get("AMPAT"): e("s_memrealtime s[96:97]")
    e.stamp()
    if 'spincnt' in X:
        for k in range(6): e(f"s_movk_i32 s{78 + 2*k}, 1000")
        e.nst = 7
    e("s_load_dwordx16 s[8:23], s[0:1], 0\ns_load_dwordx8 s[24:31], s[0:1], 64")
    e(f"s_getpc_b64 s[{SRD_PC}:{SRD_PC+1}]")
    e.label("K_pc")
    e(f"""s_mov_b32 s{SRD_PC+2}, K_end-K_pc
s_mov_b32 s{SRD_PC+3}, 0x00020000
v_lshlrev_b32 v1, 7, v0""")
    e.vm(f"buffer_load_dword v{TD}, v1, s[{SRD_PC}:{SRD_PC+3}], 0 offen")
    T = TM
    e(f"""v_lshrrev_b32 v1, 6, v0
v_and_b32 v0, 63, v0
v_readfirstlane_b32 s{S_W}, v1
s_nop 1""")
    if GT:
        e(f"""s_lshl_b32 s{S_TG}, s2, 3
s_add_u32 s{S_TG}, s{S_TG}, s{S_W}
s_min_u32 s6, s{S_TG}, 1393
s_cmp_ge_u32 s6, 448
s_cselect_b32 s7, 56, 48
s_cselect_b32 s{S_A}, 448, 0
s_mov_b32 s{S_D}, {448*3584}
s_cmp_ge_u32 s6, 896
s_cselect_b32 s7, 8, s7
s_cselect_b32 s{S_A}, 896, s{S_A}
s_cselect_b32 s{S_B}, 6, {15 if P('TQB', 0) else 11}
s_cselect_b32 s{S_C}, 7, 28
s_cselect_b32 s{S_D}, {448*896}, s{S_D}
s_cmp_ge_u32 s6, 1344
s_cselect_b32 s7, 16, s7
s_cselect_b32 s{S_A}, 1344, s{S_A}
s_cselect_b32 s{S_B}, 7, s{S_B}
s_cselect_b32 s{S_C}, 8, s{S_C}
s_cselect_b32 s{S_D}, {448*56}, s{S_D}
s_cmp_ge_u32 s6, 1369
s_cselect_b32 s7, 24, s7
s_cselect_b32 s{S_A}, 1369, s{S_A}
s_load_dwordx2 s[{SRD_T}:{SRD_T+1}], s[0:1], s7
s_mov_b32 s{SRD_T+2}, s{S_D}
s_mov_b32 s{SRD_T+3}, 0x00020000
s_sub_u32 s6, s6, s{S_A}
s_cmp_lt_u32 s6, {64 * P('GTS', 0)}
s_cselect_b32 s{S_TS}, 0, {OOB}
s_mul_i32 s6, s6, s{S_C}
v_min_u32 v{TA}, s{S_B}, v0
v_cmp_lt_u32 vcc, 11, v{TA}
v_add_u32 v{TA}, s6, v{TA}
v_add_u32 v{TA+1}, 12, v{TA}
v_cndmask_b32 v{TA}, v{TA}, v{TA+1}, vcc
v_lshlrev_b32 v{TA}, 7, v{TA}
s_mul_i32 s6, s{S_TG}, 896
v_lshl_add_u32 v{TX}, v0, 4, s6
v_cmp_lt_u32 vcc, 55, v0
v_mov_b32 v{TX+2}, {OOB}
s_nop 0
v_cndmask_b32 v{TX}, v{TX}, v{TX+2}, vcc""")
    e(f"""
s_bfe_u32 s{S_RB}, s2, 0x20001
s_lshl_b32 s{S_RB}, s{S_RB}, 2
s_lshr_b32 s6, s2, 6
s_add_u32 s{S_RB}, s{S_RB}, s6
s_and_b32 s{S_J}, s2, 1
s_lshl_b32 s{S_J}, s{S_J}, 3
s_bfe_u32 s7, s2, 0x30003
s_add_u32 s{S_J}, s{S_J}, s7
s_lshr_b32 s{S_QU}, s{S_J}, 2
s_sub_u32 s{S_LA}, s{S_J}, s{S_QU}
s_lshl_b32 s{S_WB}, s{S_W}, 10
s_lshl_b32 s{S_C}, s{S_LA}, 7
s_mul_i32 s{S_E}, s{S_QU}, 224
s_and_b32 s{S_F}, s{S_QU}, 1
s_sub_u32 s{S_G}, 4, s{S_F}
s_lshl_b32 s{S_F}, s{S_F}, 5
s_movk_i32 s{S_D}, 3584
s_and_b32 s{S_ISQ}, s{S_J}, 3
s_cmp_eq_u32 s{S_ISQ}, 3
s_cselect_b32 s{S_ISQ}, 1, 0
s_cselect_b32 s{S_A}, 14, 8
s_cselect_b32 s{S_B}, 896, s{S_D}
s_cselect_b32 s{S_D}, 56, s{S_D}
s_cselect_b32 s{S_H2}, s{S_F}, s{S_C}
s_cselect_b32 s{S_C}, s{S_E}, s{S_C}
s_cselect_b32 s{S_G}, s{S_G}, 4
s_add_u32 s{S_SH}, s{S_ISQ}, 1
s_lshl_b32 s{S_E}, s{S_RB}, 7
s_lshl_b32 s{S_F}, s{S_W}, 3
s_add_u32 s{S_F}, s{S_F}, s{S_E}
v_lshrrev_b32 v{T}, 3, v0
v_add_u32 v{T}, s{S_F}, v{T}
v_mul_u32_u24 v{T}, 896, v{T}
s_lshl_b32 s{S_F}, s{S_W}, 2
v_lshrrev_b32 v{T+1}, 4, v0
v_add_u32 v{T+2}, s{S_F}, v{T+1}
v_xor_b32 v{T+3}, v{T+2}, v0
v_and_b32 v{T+3}, 7, v{T+3}
v_lshl_add_u32 v{VX}, v{T+3}, 4, v{T}
{ROTCODE}v_lshlrev_b32 v{T+1}, s{S_SH}, v{T+1}
v_xor_b32 v{T+1}, v{T+1}, v0
v_and_b32 v{T+1}, 15, v{T+1}""")
    e(w_source(T + 2, T + 1, G, GS, T))
    e(f"s_mov_b64 s[{S_HI}:{S_HI+1}], vcc")
    if TOUCH:
        e(f"""s_and_b32 s6, s6, 3
s_lshl_b32 s6, s6, 3
s_add_u32 s6, s6, s{S_W}
s_lshl_b32 s6, s6, 1
s_lshl_b32 s7, s7, 3
s_add_u32 s7, s7, s{S_W}
s_lshl_b32 s7, s7, 1
s_add_u32 s7, s7, s{S_E}
v_bfe_u32 v{T+2}, v0, 3, 1
v_bfe_u32 v{T+1}, v0, 2, 1
v_lshl_add_u32 v{T+2}, v{T+2}, 6, v{T+1}
v_add_u32 v{T+2}, s6, v{T+2}
v_and_b32 v{T+1}, 3, v0
v_lshlrev_b32 v{T+1}, 2, v{T+1}
v_lshrrev_b32 v{T+1}, v{T+1}, s{S_MASK}
v_and_b32 v{T+1}, 15, v{T+1}
v_and_b32 v{T}, 1, v0
v_add_u32 v{T}, s7, v{T}
v_mul_u32_u24 v{TX}, 896, v{T}
v_bfe_u32 v{T}, v0, 1, 1
v_lshl_add_u32 v{TX}, v{T}, 7, v{TX}""".replace(f"v_lshrrev_b32 v{T+1}, v{T+1}, s{S_MASK}", f"s_movk_i32 s6, 0xed80\nv_lshrrev_b32 v{T+1}, v{T+1}, s6"))
        e(w_source(T + 2, T + 1, G + 1, TS, T))
    e("s_waitcnt lgkmcnt(0)")
    e.stamp("xs0")
    if 'stdiag' in X:
        e(f"""s_mov_b32 s40, s{P_WS}
s_mov_b32 s41, s{P_WS+1}
s_mov_b32 s42, 0x10000000
s_mov_b32 s43, 0x00020000
s_lshl_b32 s90, s2, 3
s_add_u32 s90, s90, s{S_W}
s_lshl_b32 s90, s90, 10
s_add_u32 s90, s90, {P('DOFF', 100) * 1024 * 1024}
v_lshlrev_b32 v110, 4, v0
buffer_store_dwordx4 v[112:115], v110, s[40:43], s90 offen sc1
s_waitcnt vmcnt(0)
s_add_u32 s90, s90, 0x200000
s_barrier
s_memtime s[92:93]
s_waitcnt lgkmcnt(0)
buffer_store_dwordx4 v[112:115], v110, s[40:43], s90 offen sc1
s_waitcnt vmcnt(0)
s_barrier
s_memtime s[94:95]
s_waitcnt lgkmcnt(0)
s_sub_u32 s94, s94, s92
s_mul_i32 s94, s94, 100""")
    srd(e, SRD_X, P_X, 2048 * 896)
    if GT:
        e.vm(f"buffer_load_dwordx4 {vr(RW,4)}, v{TX}, s[{SRD_X}:{SRD_X+3}], 0 offen", "row")
        if GT & 2: e.vm(f"buffer_load_dword v{TD}, v{TA}, s[{SRD_T}:{SRD_T+3}], {'s%d' % S_TS if P('GTS', 0) else 0} offen", "t")
        if P("GTW", 0): e.wvm("row")
    if P("XE", 1): dma_x(e, 0, 0)(); dma_x(e, 0, 1)()
    e(f"""s_cmp_lt_u32 s{S_QU}, 2
s_cselect_b32 s{S_C}, s{P_WK}, s{P_WV}
s_cselect_b32 s{S_D}, s{P_WK+1}, s{P_WV+1}
s_cmp_eq_u32 s{S_ISQ}, 1
s_cselect_b32 s{S_A}, s{P_WQ}, s{P_WG}
s_cselect_b32 s{S_B}, s{P_WQ+1}, s{P_WG+1}
s_cselect_b32 s{S_C}, s{S_C}, s{P_WU}
s_cselect_b32 s{S_D}, s{S_D}, s{P_WU+1}
v_mov_b32 v{T}, s{S_A}
v_mov_b32 v{T+1}, s{S_B}
v_mov_b32 v{T+2}, s{S_C}
v_mov_b32 v{T+3}, s{S_D}""")
    if TOUCH:
        e(f"""v_cndmask_b32 v{TA}, v{T}, v{T+2}, vcc
v_cndmask_b32 v{TA+1}, v{T+1}, v{T+3}, vcc
v_add_co_u32 v{TA}, vcc, v{TA}, v{G+1}
v_cndmask_b32 v{GA}, v{T}, v{T+2}, s[{S_HI}:{S_HI+1}]
v_cndmask_b32 v{GA+1}, v{T+1}, v{T+3}, s[{S_HI}:{S_HI+1}]
v_addc_co_u32 v{TA+1}, vcc, 0, v{TA+1}, vcc""")
        touch(e, 0)()
    else:
        e(f"""v_cndmask_b32 v{GA}, v{T}, v{T+2}, s[{S_HI}:{S_HI+1}]
v_cndmask_b32 v{GA+1}, v{T+1}, v{T+3}, s[{S_HI}:{S_HI+1}]""")
    e(f"v_add_co_u32 v{GA}, vcc, v{GA}, v{G}\nv_mov_b32 v{GS+1}, 0")
    if 'gonly' in X: e.all_vm(); e.stamp()
    if not P("XE", 1): dma_x(e, 0, 0)()
    else: e("s_nop 0")
    e(f"v_addc_co_u32 v{GA+1}, vcc, 0, v{GA+1}, vcc")

TOUCH = P("TOUCH", 0)
GT = P("GT", 3)
ROT = P("ROT", 0)
LDX = os.environ.get("LDX", ""); LDW = os.environ.get("LDW", ""); LDT = os.environ.get("LDT", "")
def touch(e, k):
    def f():
        st = (0, 2, 4, 5)[k]
        e.vm(f"global_load_dword v{TD}, {vr(TA,2)}, off", f"t{k}")
        e(f"s_movk_i32 s{S_XO2}, {st * 128}")
        e.vm(f"buffer_load_dword v{TD}, v{TX}, s[{SRD_X}:{SRD_X+3}], s{S_XO2} offen", f"t{k}")
        if k < 3: e(f"v_mad_u64_u32 {vr(TA,2)}, s[{S_E}:{S_E+1}], v{TS}, {4 if k < 2 else 2}, {vr(TA,2)}")
    return f
S_TG, S_TS = 61, 57
def gtouch(e, st):
    def f():
        e(f"s_mul_i32 s{S_XO2}, s{S_TS}, {st}")
        e.vm(f"buffer_load_dword v{TD}, v{TA}, s[{SRD_PC}:{SRD_PC+3}], s{S_XO2} offen {LDT}", "t")
        e(f"s_movk_i32 s{S_XO2}, {st * 128}")
        e.vm(f"buffer_load_dword v{TD}, v{TX}, s[{SRD_X}:{SRD_X+3}], s{S_XO2} offen {LDT}", "t")
    return f
def dma_x(e, sig, i):
    def f():
        e(f"s_add_u32 m0, s{S_WB}, {(sig % 4) * RING + i * 8192}")
        if i == 0: e("s_nop 0"); so = S_XO
        else: e(f"s_add_u32 s{S_XO2}, s{S_XO}, {64*896}"); so = S_XO2
        e.vm(f"buffer_load_dwordx4 v{VX}, s[{SRD_X}:{SRD_X+3}], s{so} offen {LDX} lds", f"d{sig}")
    return f
def dma_w(e, sig, off, i, first=False):
    def f():
        if i == 0 and not first:
            e(f"s_add_u32 s{S_XO}, s{S_XO}, 128\ns_cmp_eq_u32 s{S_XO}, 896\ns_cselect_b32 s{S_XO}, 0, s{S_XO}\ns_cselect_b32 s{S_MUL}, -13, 1")
        e(f"s_add_u32 m0, s{S_WB}, {(sig % 4) * RING + off + i * 8192}")
        if first == 2: e(f"s_add_u32 s{S_XO}, s{S_XO}, 128\ns_cmp_eq_u32 s{S_XO}, 896\ns_cselect_b32 s{S_XO}, 0, s{S_XO}")
        elif first: e("s_nop 0")
        elif i == 0: e(f"v_mad_i64_i32 {vr(GA,2)}, s[{S_E}:{S_E+1}], v{GS}, s{S_MUL}, {vr(GA,2)}")
        else: e(f"v_lshl_add_u64 {vr(GA,2)}, {vr(GS,2)}, 0, {vr(GA,2)}")
        e.vm(f"global_load_lds_dwordx4 {vr(GA,2)}, off {LDW}", f"d{sig}")
    return f
if not any(ROTS[P("ROT", 0)]) and not RPAR:
    def dma_x(e, sig, i):
        def f():
            e(f"s_add_u32 m0, s{S_WB}, {(sig % 4) * RING + i * 8192}\ns_mov_b32 s{S_XO}, {sig * 128 + i * 64 * 896}")
            e.vm(f"buffer_load_dwordx4 v{VX}, s[{SRD_X}:{SRD_X+3}], s{S_XO} offen {LDX} lds", f"d{sig}")
        return f
    def dma_w(e, sig, off, i, first=False):
        def f():
            e(f"s_add_u32 m0, s{S_WB}, {(sig % 4) * RING + off + i * 8192}")
            e("s_nop 0" if first else f"v_lshl_add_u64 {vr(GA,2)}, {vr(GS,2)}, 0, {vr(GA,2)}")
            e.vm(f"global_load_lds_dwordx4 {vr(GA,2)}, off {LDW}", f"d{sig}")
        return f
def stage_dmas(e, sig):
    if 'nodma' in X and 2 <= sig: return [(lambda: e.q['vm'].append(f'd{sig}') or e.q['vm'].pop() if False else None)] if False else [lambda: None]
    if sig == 0: return [dma_x(e, sig, 0), dma_w(e, sig, 16384, 0, True), dma_x(e, sig, 1), dma_w(e, sig, 16384, 1)]
    if sig < 7: return [dma_w(e, sig, 16384, 0), dma_x(e, sig, 0), dma_w(e, sig, 16384, 1), dma_x(e, sig, 1)]
    l = []
    if sig == 7: l.append(lambda: e(f"v_mov_b32 v{GA}, v{GB}\nv_mov_b32 v{GA+1}, v{GB+1}\nv_mov_b32 v{GS}, {32*3584}"))
    l += [dma_w(e, sig, 0, 0, 2 if sig == 7 else False), dma_w(e, sig, 0, 1)]
    if sig < 10: l += [dma_w(e, sig, 16384, 0), dma_w(e, sig, 16384, 1)]
    return l

def late_touch(e):
    if P('GTS', 0):
        e(f"s_xor_b32 s{S_TS}, s{S_TS}, {OOB}")
        e.vm(f"buffer_load_dword v{TD}, v{TA}, s[{SRD_T}:{SRD_T+3}], s{S_TS} offen", "t")

def phaseB(e):
    T = TM
    for f in (stage_dmas(e, 0)[1:] if not P('XE', 1) else stage_dmas(e, 0)[1::2]): f()
    if 'arr' in X:
        order = os.environ.get("ARR", "D1 D2 W0 D3 W1 D4 W2 D5 W3 D6 W4 W5 W6").split()
        for it in order:
            k = int(it[1:])
            if it[0] == 'D':
                for f in stage_dmas(e, k): f()
            elif it[0] == 'T': touch(e, k)()
            elif it[0] == 'G': gtouch(e, k)()
            elif it[0] == 'L': late_touch(e)
            elif it[0] == 'A': e.all_vm(); e.stamp()
            else: e.wvm(f"d{k}"); e("s_barrier"); e.stamp()
        srd(e, SRD_WS, P_WS, WS_END)
        e.stamp()
        e("s_branch K_fin2")
        global STAMPS_OFF; STAMPS_OFF = True
    e.stamp("xs2")
    e(f"s_mov_b32 s6, {EPO}\ns_load_dword s{S_NON}, s[{P_WS}:{P_WS+1}], s6")
    if TOUCH == 2: touch(e, 1)()
    for f in stage_dmas(e, 1): f()
    if TOUCH == 1: touch(e, 1)()
    late_touch(e)
    e.stamp("xs3")
    e(f"""s_and_b32 s{S_RT}, s{S_W}, 3
s_lshr_b32 s{S_CG}, s{S_W}, 2
s_lshl_b32 s{S_T0}, s{S_CG}, 1
s_add_u32 s{S_T1}, s{S_T0}, 1
s_xor_b32 s{S_A}, s{S_RT}, s{S_CG}
s_mov_b32 s{S_MASK}, 0xffff0000
s_mov_b32 s{S_HI}, 0
s_mov_b32 s{S_HI+1}, -1
v_lshlrev_b32 v{VL16}, 4, v0
v_and_b32 v{T}, 31, v0
v_lshrrev_b32 v{T+1}, 5, v0
v_bfe_u32 v{T+2}, v0, 1, 3
v_xor_b32 v{T+2}, v{T+2}, v{T+1}
v_lshlrev_b32 v{T+2}, 4, v{T+2}
v_lshl_add_u32 v{T+2}, v{T}, 7, v{T+2}
s_lshl_b32 s6, s{S_RT}, 12
s_lshl_b32 s{S_B}, s{S_A}, 5
s_or_b32 s6, s6, s{S_B}
v_xor_b32 v{XA}, s6, v{T+2}""")
    for pos in range(1, 4): e(f"v_xor_b32 v{XA+pos}, {pos<<5}, v{XA}")
    e(f"""v_bfe_u32 v{G+1}, v0, 2, 2
v_lshl_add_u32 v{WB}, v{T+1}, 3, v{G+1}
v_lshlrev_b32 v{WB}, 8, v{WB}
s_lshl_b32 s{S_A}, s{S_A}, 12
v_add_u32 v{WB}, s{S_A}, v{WB}
s_cmp_eq_u32 s{S_ISQ}, 1
s_cselect_b32 s{S_A}, 56, 32
s_cselect_b32 s{S_B}, 5, 7
s_cselect_b32 s{S_C}, 0x88880000, 0
s_mov_b32 s{S_D}, s{S_C}
s_add_u32 s6, s{S_SH}, 4
v_bfe_u32 v{T}, v0, 4, 1
v_and_b32 v{T+1}, 3, v0
v_lshlrev_b32 v{T}, s{S_B}, v{T}
v_lshl_add_u32 v{T}, v{T+1}, 3, v{T}
v_lshlrev_b32 v{T+1}, s6, v{G+1}""")
    for i, st_ in ((0, S_T0), (1, S_T1)):
        e(f"""s_mul_i32 s6, s{st_}, s{S_A}
s_lshl_b32 s7, s{st_}, 3
s_sub_u32 s7, 248, s7
v_add_u32 v{T+2}, s6, v{T}
v_mov_b32 v{T+3}, s7
v_cndmask_b32 v{T+2}, v{T+2}, v{T+3}, s[{S_C}:{S_D}]
v_xor_b32 v{T+2}, v{T+2}, v{T+1}
v_add_u32 v{WA+4*i}, v{T+2}, v{WB}""")
    for i in range(2):
        for pos in range(1, 4): e(f"v_xor_b32 v{WA+4*i+pos}, {pos<<12}, v{WA+4*i}")
    e(f"""v_bfe_u32 v{T}, v0, 4, 1
v_and_b32 v{T+1}, 15, v0
v_cmp_eq_u32 vcc, v{T}, v{T+1}
v_mov_b32 v{T}, 0x3f803f80
s_nop 0
v_cndmask_b32 v{SEL}, 0, v{T}, vcc
v_mov_b32 v{SEL+1}, v{SEL}
v_mov_b32 v{SEL+2}, v{SEL}
v_mov_b32 v{SEL+3}, v{SEL}""")
    w2t_addr = f"""s_mul_i32 s6, s{S_RB}, 12
s_add_u32 s6, s6, s{S_LA}
s_lshl_b32 s7, s{S_RB}, 2
s_add_u32 s7, s7, s{S_QU}
s_min_u32 s7, s7, 59
s_add_u32 s{S_A}, s7, 136
s_cmp_eq_u32 s{S_ISQ}, 1
s_cselect_b32 s6, s{S_A}, s6
s_cselect_b32 s7, s7, 63
s_mul_hi_u32 s{S_A}, s6, {(2**32 + 27)//28}
s_mul_i32 s{S_B}, s{S_A}, 28
s_sub_u32 s{S_B}, s6, s{S_B}
s_lshr_b32 s{S_C}, s7, 3
s_and_b32 s{S_D}, s7, 7
s_add_u32 s{S_D}, s{S_D}, 28
s_cmp_lt_u32 s7, 56
s_cselect_b32 s6, s{S_C}, s{S_A}
s_cselect_b32 s{S_B}, s{S_D}, s{S_B}
s_lshl_b32 s{S_WF}, s6, 6
s_add_u32 s{S_WF}, s{S_WF}, s{S_B}
s_lshl_b32 s{S_A}, s{S_B}, 2
s_lshr_b32 s{S_B}, s{S_W}, 1
s_add_u32 s{S_A}, s{S_A}, s{S_B}
s_mul_i32 s{S_U}, s6, 144
s_add_u32 s{S_U}, s{S_U}, s{S_A}
s_lshl_b32 s{S_B}, s{S_A}, 4
s_sub_u32 s{S_C}, s{S_A}, 112
s_lshr_b32 s{S_D}, s{S_C}, 1
s_mul_i32 s{S_D}, s{S_D}, 28
s_and_b32 s{S_C}, s{S_C}, 1
s_lshl_b32 s{S_C}, s{S_C}, 4
s_add_u32 s{S_C}, s{S_C}, s{S_D}
s_mov_b32 s{S_D}, {448*896}
s_cmp_lt_u32 s{S_A}, 112
s_cselect_b32 s{S_B}, s{S_B}, s{S_C}
s_cselect_b32 s{SRD_T}, s{P_WD}, s{P_WO}
s_cselect_b32 s{SRD_T+1}, s{P_WD+1}, s{P_WO+1}
s_cselect_b32 s{SRD_T+2}, {1792*896}, s{S_D}
s_mov_b32 s{SRD_T+3}, 0x00020000
s_and_b32 s{S_C}, s{S_W}, 1
s_lshl_b32 s{S_C}, s{S_C}, 3
s_add_u32 s{S_B}, s{S_B}, s{S_C}
s_mul_i32 s{S_B}, s{S_B}, 896
s_lshl_b32 s6, s6, 7
s_add_u32 s{S_TO}, s{S_B}, s6
v_lshrrev_b32 v{TP}, 3, v0
v_mul_u32_u24 v{TP}, 896, v{TP}
v_and_b32 v{TP+1}, 7, v0
v_lshl_add_u32 v{VT}, v{TP+1}, 4, v{TP}"""
    late = (f"""s_add_u32 s{S_LB}, s{S_LA}, 12
s_add_u32 s6, s{S_QU}, 24
s_cmp_eq_u32 s{S_ISQ}, 1
s_cselect_b32 s{S_LB}, s6, s{S_LB}
""" if P("LBOLD", 1) else f"s_add_u32 s{S_LB}, s{S_J}, 12\n") + f"""v_lshrrev_b32 v{TP}, 4, v0
s_lshl_b32 s6, s{S_ROT}, 4
s_add_u32 s6, s6, s{S_W}
s_lshl_b32 s6, s6, 2
v_add_u32 v{TP+1}, s6, v{TP}
v_mul_u32_u24 v{TP+1}, 3584, v{TP+1}
v_lshlrev_b32 v{TP}, 1, v{TP}
v_xor_b32 v{TP}, v{TP}, v0
v_and_b32 v{GB}, 7, v{TP}
v_lshl_add_u32 v{TP+1}, v{GB}, 4, v{TP+1}
s_lshl_b32 s6, s{S_LB}, 7
v_add_u32 v{TP+1}, s6, v{TP+1}
v_and_b32 v{TP}, 8, v{TP}
v_cmp_eq_u32 vcc, 8, v{TP}
v_mov_b32 v{GB}, s{P_WG}
v_mov_b32 v{TP}, s{P_WU}
v_cndmask_b32 v{GB}, v{GB}, v{TP}, vcc
v_mov_b32 v{GB+1}, s{P_WG+1}
v_mov_b32 v{TP}, s{P_WU+1}
v_cndmask_b32 v{GB+1}, v{GB+1}, v{TP}, vcc
v_add_co_u32 v{GB}, vcc, v{GB}, v{TP+1}
v_bfe_u32 v{TP}, v0, 4, 1
v_and_b32 v{TP+1}, 3, v0
v_addc_co_u32 v{GB+1}, vcc, 0, v{GB+1}, vcc
v_lshlrev_b32 v{TP+1}, 3, v{TP+1}
v_lshl_add_u32 v{TP}, v{TP}, 7, v{TP+1}
v_bfe_u32 v{TP+1}, v0, 2, 2
v_lshlrev_b32 v{TP+1}, 5, v{TP+1}
v_xor_b32 v{TP}, v{TP}, v{TP+1}
s_lshl_b32 s6, s{S_T0}, 5
v_xor_b32 v{TP}, s6, v{TP}
v_add_u32 v{WB}, v{TP}, v{WB}
v_xor_b32 v{WB+1}, 32, v{WB}"""
    e.stamp("xs4")
    srd(e, SRD_WS, P_WS, WS_END)
    e("s_waitcnt lgkmcnt(0)")
    e(f"s_add_u32 s{S_NON}, s{S_NON}, 1")
    U = RW + 4; A_, B_ = RW, RW + 1
    e.wvm("row")
    for k in range(4): e(f"v_lshlrev_b32 v{U+2*k}, 16, v{RW+k}\nv_and_b32 v{U+2*k+1}, s{S_MASK}, v{RW+k}")
    e(f"v_add_f32 v{A_}, v{U}, v{U+1}\nv_mul_f32 v{B_}, v{U}, v{U}\nv_add_f32 v{A_+2}, v{U+2}, v{U+3}\nv_mul_f32 v{B_+2}, v{U+1}, v{U+1}")
    for k in (2, 4, 6): e(f"v_fmac_f32 v{B_}, v{U+k}, v{U+k}\nv_fmac_f32 v{B_+2}, v{U+k+1}, v{U+k+1}")
    e(f"""v_add_f32 v{U}, v{U+4}, v{U+5}
v_add_f32 v{U+1}, v{U+6}, v{U+7}
v_add_f32 v{A_}, v{A_}, v{A_+2}
v_add_f32 v{U}, v{U}, v{U+1}
v_add_f32 v{B_}, v{B_}, v{B_+2}
v_add_f32 v{A_}, v{A_}, v{U}
s_lshl_b32 s6, s{S_TG}, 3""")
    for d in ("row_shr:1 row_mask:0xf bank_mask:0xf bound_ctrl:0", "row_shr:2 row_mask:0xf bank_mask:0xf bound_ctrl:0",
              "row_shr:4 row_mask:0xf bank_mask:0xf bound_ctrl:0", "row_shr:8 row_mask:0xf bank_mask:0xf bound_ctrl:0",
              "row_bcast:15 row_mask:0xa bank_mask:0xf", "row_bcast:31 row_mask:0xc bank_mask:0xf"):
        e(f"v_add_f32_dpp v{B_}, v{B_}, v{B_} {d}\nv_add_f32_dpp v{A_}, v{A_}, v{A_} {d}\ns_nop 0")
    e(f"""s_add_u32 s6, s6, {STAT}
v_mul_f32 v{A_}, {f2u(1.0/448)}, v{A_}
v_mul_f32 v{B_}, {f2u(1.0/448)}, v{B_}
v_fma_f32 v{B_}, -v{A_}, v{A_}, v{B_}
v_max_f32 v{B_}, 0, v{B_}
v_cvt_pk_bf16_f32 v{B_}, v{B_}, v{B_}
v_and_b32 v{B_}, s{S_MASK}, v{B_}
v_add_f32 v{B_}, {f2u(1e-5)}, v{B_}
v_cvt_pk_bf16_f32 v{B_}, v{B_}, v{B_}
v_and_b32 v{B_}, s{S_MASK}, v{B_}
v_sqrt_f32 v{B_}, v{B_}
v_mov_b32 v{U}, s6
v_cvt_pk_bf16_f32 v{A_}, -v{A_}, v{B_}
v_mov_b32 v{B_}, s{S_NON}
s_mov_b32 exec_lo, 0
s_mov_b32 exec_hi, 0x80000000""")
    e.vm(f"buffer_store_dwordx2 {vr(A_,2)}, v{U}, {WS}, 0 offen {SC}", "sts")
    e("s_mov_b64 exec, -1")
    e.stamp("xs5")
    if P("PRIO", 2) & 1: e(f"s_cmp_ge_u32 s{S_W}, 4\ns_cbranch_scc0 K_np\ns_setprio 1\nK_np:")
    e.wvm("d0")
    e("s_barrier")
    e.stamp("start")

    half = {'x': [0]*4, 'w': [0]*4}
    def reads(gp):
        if gp < 28: sig, sub, pos, reg = gp // 4, 0, gp % 4, 16384
        else:
            g = gp - 28; sig, sub, pos = 7 + g // 8, (g // 4) & 1, g % 4; reg = sub * 16384
        sl = sig % 4; h = sl >> 1; imm = (sl & 1) * RING
        buf = WF + 8 * (gp % 3)
        pre = []
        if 28 <= gp < 32:
            pre = [f"v_xor_b32 v{WA+4*i+pos}, {(pos << 12) | (h << 16)}, v{WB+i}" for i in range(2)]
            half['w'][pos] = h
        elif half['w'][pos] != h:
            pre = [f"v_xor_b32 v{WA+4*i+pos}, 0x10000, v{WA+4*i+pos}" for i in range(2)]
            half['w'][pos] = h
        if gp < 28 and half['x'][pos] != h:
            pre.append(f"v_xor_b32 v{XA+pos}, 0x10000, v{XA+pos}"); half['x'][pos] = h
        out = [(lambda l=l: e(l)) for l in pre]
        if gp < 28: out.append(lambda: e.ds(f"ds_read_b128 {vr(XR+4*gp,4)}, v{XA+pos} offset:{imm}", f"r{gp}"))
        for i in range(2):
            for u in range(2):
                out.append(lambda i=i, u=u: e.ds(f"ds_read_b64_tr_b16 {vr(buf+4*i+2*u,2)}, v{WA+4*i+pos} offset:{imm+reg+u*1024}", f"r{gp}"))
        return out
    def position(gp, side, dmaq, nside, barrier=None):
        p2 = gp >= 28; g = gp - 28 if p2 else gp
        acc = ACCB if p2 else ACCA
        buf = WF + 8 * (gp % 3); xr = XR + 4 * g
        e.wds(f"r{gp}")
        e(mfma(acc, buf, xr, "0" if g == 0 else None))
        if barrier: barrier()
        R = reads(gp + 2) if gp + 2 < 56 else []
        nx = 1 if gp + 2 < 28 else 0
        pre = R[:max(0, len(R) - 4 - nx)]; xrd = R[len(pre):len(pre) + nx]; tr = R[len(pre) + nx:]
        na = (nside + 1) // 2; nb = nside // 2
        for f in pre: f()
        if P("ORD", 1) == 0:
            for f in xrd + tr[:2]: f()
            side.emit(na)
            e(mfma(acc + 16, buf + 4, xr, "0" if g == 0 else None))
            for f in tr[2:]: f()
            if g % 4 == 0: e(mfma16(CSA, SEL, buf, "0" if g == 0 else None))
            if dmaq: dmaq.pop(0)()
            side.emit(nb)
            if g % 4 == 0: e(mfma16(CSA + 4, SEL, buf + 4, "0" if g == 0 else None))
        else:
            for f in tr[:1]: f()
            side.emit(min(2, na))
            for f in tr[1:2]: f()
            side.emit(na - min(2, na))
            e(mfma(acc + 16, buf + 4, xr, "0" if g == 0 else None))
            for f in tr[2:3]: f()
            side.emit(min(2, nb))
            for f in tr[3:]: f()
            side.emit(nb - min(2, nb))
            if g % 4 == 0 and 'nosel' not in X: e(mfma16(CSA, SEL, buf, "0" if g == 0 else None))
            for f in xrd: f()
            if g % 4 == 0 and 'nosel' not in X: e(mfma16(CSA + 4, SEL, buf + 4, "0" if g == 0 else None))
            if dmaq: dmaq.pop(0)()
    def stats(gp):
        x = XR + 4 * gp; c = lambda r: "0" if gp == 0 else vr(r, 4)
        return [mfma16(ST, SEL, x, c(ST)),
                f"v_mfma_f32_4x4x4_16b_bf16 {vr(SQA,4)}, {vr(x,2)}, {vr(x,2)}, {c(SQA)}\nv_mfma_f32_4x4x4_16b_bf16 {vr(SQB,4)}, {vr(x+2,2)}, {vr(x+2,2)}, {c(SQB)}"]
    def cs_write(dst):
        return [f"v_lshlrev_b32 v{G+8}, 4, v0", f"s_lshl_b32 s6, s{S_T0}, 9", f"s_lshl_b32 s{S_A}, s{S_RT}, 2",
                f"s_add_u32 s6, s6, s{S_A}", f"s_add_u32 s6, s6, {dst}", f"v_add_u32 v{G+8}, s6, v{G+8}",
                lambda: (e("s_mov_b64 exec, 0xffff"),
                         e.ds(f"ds_write_b32 v{G+8}, v{CSA}", "csw"), e.ds(f"ds_write_b32 v{G+8}, v{CSA+1} offset:256", "csw"),
                         e.ds(f"ds_write_b32 v{G+8}, v{CSA+4} offset:512", "csw"), e.ds(f"ds_write_b32 v{G+8}, v{CSA+5} offset:768", "csw"),
                         e("s_mov_b64 exec, -1"))]
    def cs_read(src):
        l = [f"v_and_b32 v{G+8}, 31, v0", f"v_lshlrev_b32 v{G+8}, 4, v{G+8}", f"s_lshl_b32 s6, s{S_T0}, 9", f"s_add_u32 s6, s6, {src}",
             f"v_add_u32 v{G+8}, s6, v{G+8}",
             lambda: e.ds(f"ds_read_b128 {vr(G,4)}, v{G+8}", "csr"), lambda: e.ds(f"ds_read_b128 {vr(G+4,4)}, v{G+8} offset:512", "csr")]
        m = [lambda: e.wds("csr")]
        for i in range(2):
            b = G + 4 * i
            m += [f"v_add_f32 v{b}, v{b}, v{b+1}", f"v_add_f32 v{b+2}, v{b+2}, v{b+3}"]
        for i in range(2): m += [f"v_add_f32 v{G+4*i}, v{G+4*i}, v{G+4*i+2}"]
        for i in range(2): m += [f"v_cvt_pk_bf16_f32 v{G+4*i+1}, v{G+4*i}, v{G+4*i}"]
        for i in range(2): m += [f"v_and_b32 v{G+4*i+1}, s{S_MASK}, v{G+4*i+1}"]
        for i in range(2): m += [f"v_sub_f32 v{G+4*i+1}, v{G+4*i}, v{G+4*i+1}"]
        for i in range(2): m += [f"v_cvt_pk_bf16_f32 v{G+4*i}, v{G+4*i}, v{G+4*i+1}"]
        for i in range(2): m += [f"v_cndmask_b32 v{ST+2*i}, v{G+4*i}, 0, s[{S_HI}:{S_HI+1}]"]
        return l, m

    KA = -2.0 * math.log2(math.e) * math.sqrt(2.0 / math.pi)
    GST = P("GST", 18)
    def stat_check():
        ok = e.newlabel("sok"); sp = e.newlabel("ssp")
        e.wvm("stl")
        e(f"v_cmp_ne_u32 vcc, s{S_NON}, v{BEXT+3}\ns_cbranch_vccz {ok}\ns_mov_b32 s{S_CNT}, {SPIN_MAX}")
        e.label(sp)
        e(f"""s_sleep 4
buffer_load_dwordx2 {vr(BEXT+2,2)}, v{G}, {WS}, 0 offen {SC}
s_sub_u32 s{S_CNT}, s{S_CNT}, 1
s_waitcnt vmcnt(0)
v_cmp_ne_u32 vcc, s{S_NON}, v{BEXT+3}
s_cmp_eq_u32 s{S_CNT}, 0
s_cbranch_scc1 {ok}
s_cbranch_vccnz {sp}""")
        if 'spincnt' in X: e(f"s_sub_u32 s88, {SPIN_MAX + 1000}, s{S_CNT}")
        e.label(ok)
    def after_exchange(side):
        l, m = cs_read(L_CSA)
        side.add(l)
        side.add(f"""v_and_b32 v{S_}, s{S_MASK}, v{BEXT+2}
v_and_b32 v{BEXT}, 0xffff, v{BEXT+2}
v_rcp_f32 v{R_}, v{S_}
v_lshl_or_b32 v{BEXT}, v{BEXT+2}, 16, v{BEXT}
v_mul_f32 v{I2}, v{S_}, v{S_}
v_mul_f32 v{AC}, {f2u(KA)}, v{R_}
v_mul_f32 v{BC}, v{R_}, v{R_}
v_mov_b32 v{ST+1}, 0
v_mul_f32 v{BC}, v{BC}, v{AC}
v_mov_b32 v{ST+3}, 0
v_mul_f32 v{BC}, {f2u(0.044715)}, v{BC}
v_mov_b32 v{BEXT+1}, 0
v_mov_b32 v{BEXT+2}, 0
v_mov_b32 v{BEXT+3}, 0""")
        side.add(m)
    for f in reads(0) + reads(1): f()
    side = Side(e); dmaq = list(stage_dmas(e, 2)) + ([touch(e, 2)] if TOUCH else [])
    w2side = Side(e)
    if GT & 4:
        w2side.add(f"""s_min_u32 s6, s{S_TG}, 895
s_cmp_ge_u32 s6, 448
s_cselect_b32 s{SRD_T}, s{P_WU}, s{P_WG}
s_cselect_b32 s{SRD_T+1}, s{P_WU+1}, s{P_WG+1}
s_cselect_b32 s7, 448, 0
s_mov_b32 s{SRD_T+2}, {448*3584}
s_sub_u32 s6, s6, s7
s_mul_i32 s6, s6, 3584
s_add_u32 s6, s6, 1536
v_and_b32 v{TA}, 15, v0
v_lshlrev_b32 v{TA}, 7, v{TA}""")
        w2side.add([lambda: e.vm(f"buffer_load_dword v{TD}, v{TA}, s[{SRD_T}:{SRD_T+3}], s6 offen", "t2")])
    w2side.add(late); w2side.add(w2t_addr)
    for gp in range(28):
        sig, pos = gp // 4, gp % 4
        bar = None
        if pos == 2:
            def bar(sig=sig):
                if sig == 6: side.flush(); stat_check(); e.wds("csw")
                e.wvm(f"d{sig+1}"); e("s_barrier")
                if sig == 6: after_exchange(side)
                assert not dmaq
                dmaq.extend(stage_dmas(e, sig + 3))
                if sig == 0 and TOUCH: dmaq.append(touch(e, 3))
        if gp == GST:
            side.add([f"s_lshl_b32 s{S_G}, s{S_RB}, 2", f"s_add_u32 s{S_G}, s{S_G}, s{S_RT}", f"s_lshl_b32 s{S_G}, s{S_G}, 8", f"s_add_u32 s{S_G}, s{S_G}, {STAT}",
                      f"v_and_b32 v{G}, 31, v0", f"v_lshl_add_u32 v{G}, v{G}, 3, s{S_G}",
                      lambda: e.vm(f"buffer_load_dwordx2 {vr(BEXT+2,2)}, v{G}, {WS}, 0 offen {SC}", "stl")])
        if gp == 25: assert not w2side.q; side.add(cs_write(L_CSA))
        n = len(side.q) if gp < 26 else P('NEX', 10)
        while len(dmaq) > 4 - ((pos + 2) % 4): dmaq.pop(0)()
        e.stamp(f"xp{gp}")
        w2side.emit(0 if gp < P('WS0', 0) else 5 if gp < 2 else P('WSR', 3))
        position(gp, side, dmaq, n, bar)
    assert not w2side.q
    side.add(["s_nop 1", mfma(ACCA, ST, BEXT), mfma(ACCA + 16, ST + 2, BEXT)])
    carry = list(side.q)
    e.stamp("p1")

    KA = -2.0 * math.log2(math.e) * math.sqrt(2.0 / math.pi); KB = KA * 0.044715
    def gelu(acc, so, tb, keep=None, pk=0):
        l = []
        if pk:
            pr = lambda r: vr(r, 2)
            for k in range(0, 8, 2): l.append(f"v_pk_mul_f32 {pr(tb+k)}, {pr(acc+k)}, {pr(acc+k)}")
            for k in range(0, 8, 2): l.append(f"v_pk_fma_f32 {pr(tb+k)}, {pr(tb+k)}, {pr(AC)}, {pr(AC)} op_sel:[0,1,0] op_sel_hi:[1,1,0]")
            for k in range(0, 8, 2): l.append(f"v_pk_mul_f32 {pr(tb+k)}, {pr(tb+k)}, {pr(acc+k)}")
            for k in range(0, 8, 2): l += [f"v_exp_f32 v{tb+k}, v{tb+k}", f"v_exp_f32 v{tb+k+1}, v{tb+k+1}", f"v_pk_mul_f32 {pr(acc+k)}, {pr(acc+k)}, {pr(acc+8+k)}"]
            for k in range(0, 8, 2): l.append(f"v_pk_fma_f32 {pr(tb+k)}, {pr(tb+k)}, {pr(I2-1)}, {pr(I2-1)} op_sel:[0,1,1] op_sel_hi:[1,1,1]")
            for k in range(8): l.append(f"v_rcp_f32 v{tb+k}, v{tb+k}")
            for k in range(0, 8, 2): l.append(f"v_pk_mul_f32 {pr(acc+k)}, {pr(acc+k)}, {pr(tb+k)}")
        else:
            for k in range(8): l.append(f"v_mul_f32 v{tb+k}, v{acc+k}, v{acc+k}")
            for k in range(8): l.append(f"v_fma_f32 v{tb+k}, v{tb+k}, v{BC}, v{AC}")
            for k in range(8): l.append(f"v_mul_f32 v{tb+k}, v{tb+k}, v{acc+k}")
            for k in range(8): l += [f"v_exp_f32 v{tb+k}, v{tb+k}", f"v_mul_f32 v{acc+k}, v{acc+k}, v{acc+8+k}"]
            for k in range(8): l.append(f"v_fma_f32 v{tb+k}, v{tb+k}, v{I2}, v{I2}")
            for k in range(8): l.append(f"v_rcp_f32 v{tb+k}, v{tb+k}")
            for k in range(8): l.append(f"v_mul_f32 v{acc+k}, v{acc+k}, v{tb+k}")
        if keep is not None:
            return l + [f"v_cvt_pk_bf16_f32 v{keep+k}, v{acc+2*k}, v{acc+2*k+1}" for k in range(4)]
        for k in range(4): l.append(f"v_cvt_pk_bf16_f32 v{acc+8+k}, v{acc+2*k}, v{acc+2*k+1}")
        l.append(lambda: e.vm(f"buffer_store_dwordx4 {vr(acc+8,4)}, v{VL16}, {WS}, s{so} offen {SC}", "hs"))
        return l
    def h_off(line, dst):
        return f"""s_lshl_b32 s6, s{S_RB}, 2
s_add_u32 s6, s6, s{S_RT}
s_mul_i32 s6, s6, 144
s_lshl_b32 s{dst}, s{line}, 2
s_add_u32 s6, s6, s{dst}
s_add_u32 s6, s6, s{S_T0}
s_lshl_b32 s{dst}, s6, 10
s_add_u32 s{dst+1}, s{dst}, 1024"""
    def w2t_out(side):
        side.add(f"""v_lshrrev_b32 v{TP}, 5, v0
v_bfe_u32 v{TP+1}, v0, 2, 2
v_lshl_add_u32 v{TP}, v{TP}, 2, v{TP+1}
v_lshlrev_b32 v{TP}, 7, v{TP}
v_bfe_u32 v{TP+1}, v0, 4, 1
v_lshl_add_u32 v{TP}, v{TP+1}, 5, v{TP}
v_and_b32 v{TP+1}, 3, v0
v_lshl_add_u32 v{TP}, v{TP+1}, 3, v{TP}
s_lshr_b32 s6, s{S_W}, 1
s_lshl_b32 s6, s6, 11
s_and_b32 s{S_A}, s{S_W}, 1
s_lshl_b32 s{S_B}, s{S_A}, 6
s_add_u32 s6, s6, s{S_B}
s_add_u32 s6, s6, {L_W2T}
v_add_u32 v{TP}, s6, v{TP}""")
        side.add([lambda: (e.ds(f"ds_read_b64_tr_b16 {vr(PL,2)}, v{TP}", "w2tr"), e.ds(f"ds_read_b64_tr_b16 {vr(PL+2,2)}, v{TP} offset:1024", "w2tr")),
                  f"s_lshl_b32 s6, s{S_U}, 11", f"s_lshl_b32 s{S_A}, s{S_A}, 10", f"s_add_u32 s6, s6, s{S_A}", f"s_add_u32 s{S_TO}, s6, {W2T}",
                  lambda: (e.wds("w2tr"), e.vm(f"buffer_store_dwordx4 {vr(PL,4)}, v{VL16}, {WS}, s{S_TO} offen {SC}", "w2ts"))])
    GEND = P("GEND", 22); GW2 = P("GW2", 22); GFQ = P("GFQ", 9)
    GX, GBN, GFL, QRATE = P("GX", 0), P("GBN", 2), P("GFL", 6 if SPLITQ else 9), P("QRATE", 40)
    def pass2(qfirst):
        side = Side(e); dq = list(dmaq); side.q = list(carry)
        for g in range(28):
            gp = 28 + g
            pre = []; wd = []; wv = []; post = []
            if g == 0:
                if not qfirst and 'nogelu' in X: pass
                elif not qfirst:
                    side.add(h_off(S_LA, S_C))
                    ga = gelu(ACCA, S_C, G); gb = gelu(ACCA + 16, S_D, G)
                    k = P('HSD', 68)
                    side.add(ga[:-1] + gb[:k] + ga[-1:] + gb[k:])
                else: qkv_part1(side)
            if g == 6:
                post.append(lambda: dq.extend(stage_dmas(e, 10) + [lambda: (e(f"s_add_u32 m0, s{S_WB}, {L_W2T}\ns_nop 0"),
                            e.vm(f"buffer_load_dwordx4 v{VT}, s[{SRD_T}:{SRD_T+3}], s{S_TO} offen lds", "w2td"))]))
            if g == GW2: wv.append("w2td")
            if g in (6, 14, 22): wv.append(f"d{8 + g // 8}")
            if qfirst and g == GBN: pre.append(side.flush); wd.append("kvw"); post.append(lambda: qkv_part2(side))
            if qfirst and g == GFQ and SPLITQ:
                pre.append(side.flush); wv.append("qs")
                post.append(lambda: flag_store(e, f"""s_lshl_b32 s6, s{S_RB}, 5
s_add_u32 s6, s6, s{S_QU}
s_lshl_b32 s6, s6, 2
s_add_u32 s6, s6, {F_Q}
v_mov_b32 v{TP}, s6""", 1, TP))
            if qfirst and g == GFL:
                if SPLITQ: pre.append(lambda: e(f"s_waitcnt vmcnt({len(e.q['vm']) - e.mark['kvs']})")); wd.append("kvw")
                else: pre.append(side.flush); wv.append("qs")
                post.append(lambda: flag_store(e, f"""s_lshl_b32 s6, s{S_RB}, 2
s_add_u32 s6, s6, s{S_QU}
s_lshl_b32 s6, s6, 2
s_add_u32 s6, s6, {F_KV}
v_lshlrev_b32 v{TP}, 8, v0
v_add_u32 v{TP}, s6, v{TP}""", RKV, TP))
            if g == GW2 + 1 and 'now2o' not in X:
                q0 = side.q; side.q = []; w2t_out(side); side.q += q0
            if g == 24: side.flush()
            if g == P("GKP", 27):
                poll_issue(e, f"""s_and_b32 s6, s2, {RKV-1}
s_lshl_b32 s6, s6, 8
s_add_u32 s6, s6, {F_KV}
v_lshl_add_u32 v{PL}, v0, 2, s6""" + (f"""
s_lshl_b32 s6, s{S_RB}, 5
s_add_u32 s6, s6, s{S_QU}
s_lshl_b32 s6, s6, 2
s_add_u32 s6, s6, {F_Q}
v_mov_b32 v{PL+2}, s6
buffer_load_dword v{PL+3}, v{PL+2}, {WS}, 0 offen {SC}""" if SPLITQ else ""), PL, PL + 1, "kvp")
            if g == 25 and 'nocs' not in X:
                side.flush(); side.add(cs_write(L_CSB))
            if g == 26 and 'nocs' not in X:
                pre.append(side.flush); wd.append("csw")
                def p():
                    l, m = cs_read(L_CSB); side.add(l); side.add(m)
                post.append(p)
            bar = None
            if wd or wv:
                def bar():
                    for f in pre: f()
                    if wd: e.wds(*wd)
                    if wv: e.wvm(*wv)
                    e("s_barrier")
                    for f in post: f()
            if qfirst: n = QRATE if g < 9 else 12
            else: n = -(-len(side.q) // max(1, GEND - g)) if g < GEND else 12
            e.stamp(f"xg{g}")
            position(gp, side, dq, n, bar)
        side.flush()
        e.stamp("xpe2")
        e("s_nop 1")
        e(mfma(ACCB, ST, BEXT)); e(mfma(ACCB + 16, ST + 2, BEXT))
    RQ = PL
    def qkv_part1(side):
        side.add(f"""v_mul_f32 v{RQ}, {f2u(28 ** -0.5 * math.log2(math.e))}, v{R_}
v_and_b32 v{G+8}, 31, v0
v_lshlrev_b32 v{G+8}, 5, v{G+8}
s_lshl_b32 s6, s{S_RT}, 10
s_add_u32 s6, s6, {L_KVB}
v_add_u32 v{G+8}, s6, v{G+8}
s_mov_b32 s{S_D}, 0x00003f80
s_cmp_lt_u32 s{S_QU}, 2
s_cselect_b32 s{S_C}, 0x3f803f80, s{S_D}
s_cselect_b32 s{S_D}, s{S_D}, 0
s_nop 1""")
        for i, st_ in ((0, S_T0), (1, S_T1)):
            acc = ACCA + 16 * i; b = G + 4 * i
            for k in range(4): side.add([f"v_mul_f32 v{b+k}, v{acc+12+k}, v{R_}"])
            side.add(f"""s_sub_u32 s6, 3, s{st_}
s_lshl_b32 s{S_A}, s{st_}, 2
s_lshr_b32 s{S_A}, 0x0132, s{S_A}
s_and_b32 s{S_A}, s{S_A}, 3
s_bitcmp1_b32 s{S_QU}, 0
s_cselect_b32 s6, s{S_A}, s6
s_cselect_b32 s{S_A}, s{S_A}, 0
s_lshl_b32 s6, s6, 3
v_cvt_pk_bf16_f32 v{b}, v{b}, v{b+1}
v_cvt_pk_bf16_f32 v{b+1}, v{b+2}, v{b+3}
v_add_u32 v{b+2}, s6, v{G+8}""")
            def wr(b=b):
                l = e.newlabel("nc")
                e(f"s_cmp_eq_u32 s{S_A}, 3\ns_cbranch_scc0 {l}\nv_mov_b32 v{b}, s{S_C}\nv_mov_b32 v{b+1}, s{S_D}")
                e.label(l)
                e(f"s_mov_b64 exec, s[{S_HI}:{S_HI+1}]")
                e.ds(f"ds_write_b64 v{b+2}, {vr(b,2)}", "kvw")
                e("s_mov_b64 exec, -1")
            side.add([wr])
    def qkv_part2(side):
        def kv():
            l = e.newlabel("kvs"); lv = e.newlabel("kvv"); ls = e.newlabel("kvt")
            e(f"""s_cmp_eq_u32 s{S_CG}, 0
s_cbranch_scc0 {l}
s_lshl_b32 s6, s{S_RB}, 2
s_add_u32 s6, s6, s{S_RT}
s_lshl_b32 s6, s6, 12
s_add_u32 s6, s6, {KVF}
s_lshl_b32 s{S_A}, s{S_RT}, 10
s_add_u32 s{S_A}, s{S_A}, {L_KVB}
s_cmp_lt_u32 s{S_QU}, 2
s_cbranch_scc0 {lv}
v_and_b32 v{G}, 31, v0
v_lshrrev_b32 v{G+1}, 5, v0
v_lshlrev_b32 v{G}, 5, v{G}
v_lshl_add_u32 v{G}, v{G+1}, 3, v{G}
v_add_u32 v{G}, s{S_A}, v{G}
ds_read2_b64 {vr(G+4,4)}, v{G} offset0:0 offset1:2
s_lshl_b32 s{S_A}, s{S_QU}, 10
s_add_u32 s6, s6, s{S_A}
v_mov_b32 v{G+2}, v{VL16}
s_branch {ls}""")
            e.label(lv)
            e(f"""v_lshrrev_b32 v{G}, 5, v0
v_bfe_u32 v{G+1}, v0, 4, 1
v_lshlrev_b32 v{G+2}, 10, v{G}
v_lshl_add_u32 v{G+2}, v{G+1}, 9, v{G+2}
v_lshlrev_b32 v{G}, 4, v{G}
v_lshl_add_u32 v{G}, v{G+1}, 2, v{G}
v_bfe_u32 v{G+1}, v0, 2, 2
v_add_u32 v{G}, v{G}, v{G+1}
v_lshlrev_b32 v{G}, 5, v{G}
v_and_b32 v{G+1}, 3, v0
v_lshl_add_u32 v{G}, v{G+1}, 3, v{G}
v_add_u32 v{G}, s{S_A}, v{G}
ds_read_b64_tr_b16 {vr(G+4,2)}, v{G}
ds_read_b64_tr_b16 {vr(G+6,2)}, v{G} offset:256
v_and_b32 v{G+1}, 15, v0
v_lshl_add_u32 v{G+2}, v{G+1}, 4, v{G+2}
s_and_b32 s{S_A}, s{S_QU}, 1
s_lshl_b32 s{S_A}, s{S_A}, 8
s_add_u32 s6, s6, s{S_A}
s_add_u32 s6, s6, 2048""")
            e.label(ls)
            e(f"s_waitcnt lgkmcnt(0)\nbuffer_store_dwordx4 {vr(G+4,4)}, v{G+2}, {WS}, s6 offen {SC}")
            e.label(l)
            e.mark['kvs'] = len(e.q['vm'])
        side.add([kv])
        side.add(f"""s_lshl_b32 s6, s{S_RB}, 2
s_add_u32 s6, s6, s{S_RT}
s_lshl_b32 s6, s6, 2
s_add_u32 s6, s6, s{S_QU}
s_lshl_b32 s6, s6, 2
s_add_u32 s6, s6, s{S_T0}
s_lshl_b32 s6, s6, 11
s_add_u32 s{S_C}, s6, {QF}""")
        for i in range(2):
            acc = ACCA + 16 * i
            if P('PK', 0) & 4:
                for k in range(0, 16, 2): side.add([f"v_pk_mul_f32 {vr(acc+k,2)}, {vr(acc+k,2)}, {vr(RQ,2)} op_sel_hi:[1,0]"])
            else:
                for k in range(16): side.add([f"v_mul_f32 v{acc+k}, v{acc+k}, v{RQ}"])
            for k in range(8): side.add([f"v_cvt_pk_bf16_f32 v{acc+k}, v{acc+2*k}, v{acc+2*k+1}"])
            side.add([f"v_cndmask_b32 v{acc+6}, v{acc+6}, 0, s[{S_HI}:{S_HI+1}]", f"v_cndmask_b32 v{acc+7}, v{acc+7}, 0, s[{S_HI}:{S_HI+1}]",
                      lambda acc=acc, i=i: e.vm(f"buffer_store_dwordx4 {vr(acc,4)}, v{VL16}, {WS}, s{S_C} offen offset:{2048*i} {SC}", "qs"),
                      lambda acc=acc, i=i: e.vm(f"buffer_store_dwordx4 {vr(acc+4,4)}, v{VL16}, {WS}, s{S_C} offen offset:{2048*i+1024} {SC}", "qs")])
    e(f"s_cmp_eq_u32 s{S_ISQ}, 1\ns_cbranch_scc1 B_p2q")
    sn = e.snap(); hs = {k: list(v) for k, v in half.items()}; ns = e.nst
    pass2(False)
    e("s_branch B_join")
    e.label("B_p2q")
    e.nst = ns
    e.restore(sn); half.update({k: list(v) for k, v in hs.items()})
    pass2(True)
    e.label("B_join")
    e.q = {'ds': [], 'vm': []}; e.done = {'ds': 0, 'vm': 0}; e.mark['kvp'] = 0
    e.stamp("join")
    return gelu, h_off

LB0, LB1, VO = 3, 4, 5
Q, O, S0, PP, K, V0, V1 = 36, 44, 64, 96, 104, 112, 120
FA, FB = 128, 192
XRES = 244
S_KH, S_QT, S_KVO, S_WB4, S_FA, S_FB0, S_FB1, S_OO = 50, 51, 54, 55, 56, 57, 59, 60
S_FQ, S_K1 = 62, 63
F0 = P("F0", 8)
FP = P("FP", 2)
HBP = P("HBP", 10)
F3 = P("F3", 40)
WOP = 18

def kv_dma(e, st):
    def m(): e(f"s_add_u32 m0, s{S_WB4}, {((st + 3) % 4) * RING}" + ("\ns_nop 0" if st < 3 else ""))
    m.scalar = True
    l = [m]
    for f in range(4):
        l.append(lambda f=f: (e.vm(f"buffer_load_dwordx4 v{VL16}, {WS}, s{S_KVO} offen offset:{1024*f} {SC} lds", f"k{st}"),
                              e(f"s_add_u32 s{S_KVO}, s{S_KVO}, 16384") if f == 3 else None))
    return l

NB = P("NB", 4)
FBUF = [[FB + 16 * n + 4 * k for k in range(4)] for n in range(3)] + [[60, 124, 248, 252]]
def f_loads(e, q):
    bb = FBUF[q % NB]
    r = q if q < 6 else q - 6
    advA = advB = None
    if q == 5:
        advA = f"s_add_u32 s{S_FA}, s{S_FA}, s{S_FQ}"
        advB = f"s_add_u32 s{S_FB0}, s{S_FB0}, s{S_K1}\ns_add_u32 s{S_FB1}, s{S_FB1}, s{S_K1}"
    else:
        if r & 1: advA = f"s_add_u32 s{S_FA}, s{S_FA}, 4096"
        if (r & 3) == 3: advB = f"s_add_u32 s{S_FB0}, s{S_FB0}, 4096\ns_add_u32 s{S_FB1}, s{S_FB1}, 4096"
    return [lambda: e.vm(f"buffer_load_dwordx4 {vr(bb[0],4)}, v{VL16}, {WS}, s{S_FA} offen offset:{(r&1)*2048} {SC}", f"f{q}"),
            lambda: e.vm(f"buffer_load_dwordx4 {vr(bb[2],4)}, v{VL16}, {WS}, s{S_FB0} offen offset:{(r&3)*1024} {SC}", f"f{q}"),
            lambda: (e.vm(f"buffer_load_dwordx4 {vr(bb[1],4)}, v{VL16}, {WS}, s{S_FA} offen offset:{(r&1)*2048+1024} {SC}", f"f{q}"),
                     e(advA) if advA else None),
            lambda: (e.vm(f"buffer_load_dwordx4 {vr(bb[3],4)}, v{VL16}, {WS}, s{S_FB1} offen offset:{(r&3)*1024} {SC}", f"f{q}"),
                     e(advB) if advB else None)]
def f_mfma(q, k):
    bb = FBUF[q % NB]; r2, d2 = ((0, 0), (0, 1), (1, 1), (1, 0))[k]
    return mfma(FA + 32*r2 + 16*d2, bb[d2], bb[2 + r2], "0" if q == 0 else None)

S_OA, S_OL = 61, 75
OAREG = [8 + 4 * k for k in range(7)] + [FB + 4 * k for k in range(9)]
def oa_dma(e, n):
    def f():
        if n == 0: e(f"s_add_u32 m0, s{S_OL}, {3 * RING}\ns_nop 0")
        if n == 4: e(f"s_mov_b32 m0, s{S_OL}\ns_add_u32 s{S_OA}, s{S_OA}, 8192")
        e.vm(f"buffer_load_dwordx4 v{VL16}, {WS}, s{S_OA} offen offset:{(n & 3) * 1024} {SC} lds", "oa")
    return f
KVPRE = P('KVPRE', 2)
HDEF = P('HDEF', 1); HFL = P('HFL', 6 if HDEF else 2); S_HO = 47
def attn_setup(e, gelu, h_off):
    e(h_off(S_LB, S_C))
    e(f"""s_mov_b32 s{S_QT}, s{S_RT}
s_mov_b32 s{S_KH}, s{S_CG}
s_lshl_b32 s{S_WB4}, s{S_W}, 12
s_lshl_b32 s6, s{S_KH}, 5
s_add_u32 s6, s6, s{S_QT}
s_lshl_b32 s6, s6, 12
s_add_u32 s{S_KVO}, s6, {KVF}
s_lshl_b32 s6, s{S_RB}, 2
s_add_u32 s6, s6, s{S_QT}
s_lshl_b32 s7, s6, 4
s_add_u32 s7, s7, s{S_J}
s_lshl_b32 s7, s7, 11
s_add_u32 s7, s7, {QF}""")
    if HDEF: e(f"s_mov_b32 s{S_HO}, s{S_C}")
    g0 = gelu(ACCB, S_C, G, 16 if HDEF else None, P('PK', 0) & 1); g1 = gelu(ACCB + 16, S_D, G + 8, 20 if HDEF else None, P('PK', 0) & 1)
    nfirst = P("GFIRST", 0)
    both = g0 + g1
    if P('GIL', 1): both = [x for p in zip(g0, g1) for x in p]
    for it in both[:nfirst]: it() if callable(it) else e(it)
    assert nfirst == 0
    poll_check(e, PL, PL + 1, "kvp", P("KSLEEP", 1))
    if SPLITQ: poll_check(e, PL + 2, PL + 3, "kvp", P("KSLEEP", 1))
    e.all_vm()
    e("s_barrier")
    e.stamp("xkv")
    flag_store(e, f"""s_lshl_b32 s6, s{S_RB}, 5
s_add_u32 s6, s6, s{S_J}
s_lshl_b32 s6, s6, 2
s_add_u32 s6, s6, {F_H + 64}
s_lshl_b32 s{S_A}, s{S_WF}, 2
s_add_u32 s{S_A}, s{S_A}, {F_W}
s_sub_u32 s{S_A}, s{S_A}, s6
v_mul_lo_u32 v{PL}, v0, s{S_A}
v_add_u32 v{PL}, s6, v{PL}""", 2, PL)
    if P("KVT", 0):
        e(f"""s_lshr_b32 s6, s2, 3
s_lshl_b32 s6, s6, 3
s_add_u32 s6, s6, s{S_W}
s_lshl_b32 s6, s6, 10
s_add_u32 s6, s6, {KVF}
v_and_b32 v{TP}, 7, v0
v_lshlrev_b32 v{TP}, 7, v{TP}""")
        e.vm(f"buffer_load_dword v{TP+1}, v{TP}, {WS}, s6 offen {SC}", "kvt")
    side = Side(e)
    side.add(kv_dma(e, 0))
    side.add([lambda: e.vm(f"buffer_load_dwordx4 {vr(Q,4)}, v{VL16}, {WS}, s7 offen {SC}", "q"),
              lambda: e.vm(f"buffer_load_dwordx4 {vr(Q+4,4)}, v{VL16}, {WS}, s7 offen offset:1024 {SC}", "q")])
    side.emit(P("KPRE0", 7))
    for st in range(1, KVPRE): side.add(kv_dma(e, st))
    for n, it in enumerate(both[nfirst:]):
        it() if callable(it) else e(it)
        if n % P('GSP', 1000) == P('GSP', 1000) - 1: side.emit(1)
        if n == 68: e.stamp("xg69")
    e.stamp("xgv")
    side.flush()
    e(f"""s_lshl_b32 s6, s{S_KH}, 14
v_add_u32 v{LB0}, s6, v{VL16}
v_add_u32 v{LB1}, 0x10000, v{LB0}
s_lshl_b32 s6, s{S_RB}, 2
s_add_u32 s6, s6, s{S_QT}
s_mul_i32 s6, s6, 144
s_lshl_b32 s7, s{S_J}, 1
s_add_u32 s6, s6, s7
s_add_u32 s6, s6, s{S_KH}
s_add_u32 s6, s6, 112
s_lshl_b32 s{S_OO}, s6, 10""")

def rd(e, dst, tile, f, tag):
    sl = (tile // 4 + 3) % 4
    e.ds(f"ds_read_b128 {vr(dst,4)}, v{LB0 if sl < 2 else LB1} offset:{(sl & 1) * RING + (tile % 4) * 4096 + f * 1024}", tag)

def attn_loop(e, withF):
    e.stamp("xge")
    if P("PRIO", 2) == 2:
        l = e.newlabel("np"); e(f"s_cmp_ge_u32 s{S_W}, 4\ns_cbranch_scc0 {l}\ns_setprio 1"); e.label(l)
    if P("PRIO", 2) == 5: e("s_setprio 0")
    e.wvm("k0", "q"); e.stamp("xk0"); e("s_barrier")
    e.stamp("astart")
    rd(e, K, 0, 0, "a"); rd(e, K + 4, 0, 1, "a"); rd(e, V0, 0, 2, "b")
    e.wds("a")
    e(mfma(S0, K, Q, "0")); e(mfma(S0, K + 4, Q + 4))
    rd(e, K, 1, 0, "b"); rd(e, K + 4, 1, 1, "b")
    if withF:
        e(f"""s_lshr_b32 s6, s{S_J}, 3
s_lshl_b32 s7, s{S_RB}, 1
s_add_u32 s6, s6, s7
s_and_b32 s7, s{S_J}, 7
s_mul_i32 s{S_A}, s{S_W}, 6
s_lshl_b32 s{S_K1}, s{S_W}, 1
s_add_u32 s{S_K1}, s{S_K1}, 44
s_lshl_b32 s{S_K1}, s{S_K1}, 10
s_lshl_b32 s{S_FQ}, s{S_K1}, 1
s_mul_i32 s{S_FB0}, s6, 288
s_add_u32 s{S_FB0}, s{S_FB0}, s{S_A}
s_lshl_b32 s{S_FB0}, s{S_FB0}, 10
s_add_u32 s{S_FB1}, s{S_FB0}, {144*1024}
s_bitcmp1_b32 s{S_W}, 0
s_cselect_b32 s{S_B}, s{S_FB1}, s{S_FB0}
s_cselect_b32 s{S_FB1}, s{S_FB0}, s{S_FB1}
s_mov_b32 s{S_FB0}, s{S_B}
s_mul_i32 s{S_FA}, s7, 144
s_add_u32 s{S_FA}, s{S_FA}, s{S_A}
s_lshl_b32 s{S_FA}, s{S_FA}, 11
s_add_u32 s{S_FA}, s{S_FA}, {W2T}
s_lshr_b32 s{S_A}, s{S_W}, 1
s_lshl_b32 s{S_A}, s{S_A}, 3
s_mul_i32 s{S_OA}, s7, 144
s_add_u32 s{S_OA}, s{S_OA}, s{S_A}
s_add_u32 s{S_OA}, s{S_OA}, 112
s_lshl_b32 s{S_OA}, s{S_OA}, 11
s_add_u32 s{S_OA}, s{S_OA}, {W2T}
s_and_b32 s{S_B}, s{S_W}, 1
s_lshl_b32 s{S_B}, s{S_B}, 12
s_add_u32 s{S_OA}, s{S_OA}, s{S_B}
s_lshl_b32 s{S_OL}, s{S_W}, 12""")
    else:
        e("s_nop 9")
    NT = 32
    fq = []
    nq = 0
    dq = []
    fi = 0
    need = {}; keep = []; done = [0]
    for i in range(NT):
        sc = S0 + 16 * (i & 1); sn = S0 + 16 * ((i + 1) & 1)
        v0c = V0 + 4 * (i & 1); v0n = V0 + 4 * ((i + 1) & 1)
        E = lambda r: f"v_exp_f32 v{r}, v{r}"
        C = lambda d, r: f"v_cvt_pk_bf16_f32 v{d}, v{r}, v{r+1}"
        def g(k): return [E(sc + 4*k + q) for q in range(4)] + [C(PP + 2*k, sc + 4*k), C(PP + 2*k + 1, sc + 4*k + 2)]
        g0, g1, g2, g3 = g(0), g(1), g(2), g(3)
        fm = []; fl = []
        if withF:
            if i == FP - 2:
                assert FP % 4 == 2
                fl = [lambda: poll_issue(e, f"""s_lshl_b32 s6, s{S_RB}, 7
s_add_u32 s6, s6, {F_H + 64}
s_and_b32 s7, s{S_J}, 7
s_lshl_b32 s7, s7, 8
s_add_u32 s7, s7, {F_W - 64}
v_lshl_add_u32 v{G}, v0, 2, s6
v_lshl_add_u32 v{G+1}, v0, 2, s7
v_mov_b32 v{G+2}, s6
s_mov_b32 s{S_A}, 0xffff0000
s_mov_b32 s{S_B}, 0x00000fff
s_mov_b32 s{S_C}, 0x00008888
s_mov_b32 s{S_D}, 0xfffff000
v_cndmask_b32 v{G}, v{G}, v{G+1}, s[{S_A}:{S_B}]
v_cndmask_b32 v{G}, v{G}, v{G+2}, s[{S_C}:{S_D}]""", G, G + 1, "hp")]
            if FP <= i < F0:
                if i == FP:
                    for q in range(NB - 1): fq += f_loads(e, q)
                n = -(-len(fq) // (F0 - i))
                fl = fq[:n]; fq = fq[n:]
            pb = []
            if i == HBP - 2:
                pb = [lambda: poll_issue(e, f"""s_lshl_b32 s6, s{S_RB}, 7
s_add_u32 s6, s6, {F_H}
v_and_b32 v{G}, 15, v0
v_lshl_add_u32 v{G}, v{G}, 2, s6""", G, G + 1, "hb")]
            if i == WOP - 2:
                pb = [lambda: poll_issue(e, f"""s_and_b32 s6, s{S_J}, 7
s_lshl_b32 s6, s6, 8
s_add_u32 s6, s6, {F_W + 112}
v_and_b32 v{G}, 7, v0
v_lshl_add_u32 v{G}, v{G}, 2, s6""", G, G + 1, "wo")]
            if i >= F0:
                cnt = 3 if i >= F3 else 2
                idx = list(range(fi, min(fi + cnt, 56))); fi += len(idx)
                fm = [(n // 4, n % 4) for n in idx]
                for (q, k) in fm:
                    if k == 0 and q + NB - 1 < 14:
                        if q + NB - 1 == 6: assert i > HBP
                        nl = f_loads(e, q + NB - 1)
                        for f in nl: need[id(f)] = 4 * q
                        keep.extend(nl); fq += nl
                n = min(len(fq), cnt)
                fl = fq[:n] + pb; fq = fq[n:]
        def em(x): x() if callable(x) else e(x)
        e.stamp(f"xa{i}")
        ex = [E(sc + k) for k in range(16)]; cv = [C(PP + k, sc + 2 * k) for k in range(8)]
        if i + KVPRE <= 2: dq += kv_dma(e, i + KVPRE)
        misc = []
        if i == 29: misc.append(comb_addr())
        if HDEF and i in (HDEF, HDEF + 1):
            misc.append(lambda i=i: e.vm(f"buffer_store_dwordx4 {vr(16 + 4*(i - HDEF),4)}, v{VL16}, {WS}, s{S_HO} offen offset:{1024*(i - HDEF)} {SC}", "hs"))
        if withF and 22 <= i < 30: misc.append(oa_dma(e, i - 22))
        gate = withF and i == FP
        def take(n):
            for _ in range(n):
                if fl and need.get(id(fl[0]), 0) <= done[0]: em(fl.pop(0))
        per = -(-len(fl) // 2)
        for x in ex[0:2]: em(x)
        def fmf(n):
            if n < len(fm):
                q, k = fm[n]
                e.wvm(f"f{q}"); e(f_mfma(q, k)); done[0] += 1
        if fm and fm[0][1] == 0: e.wboth(f"f{fm[0][0]}")
        else: e.all_ds()
        if i > 0: e(mfma(O, V1, PP + 4))
        rd(e, V1, i, 3, "c")
        for x in ex[2:5]: em(x)
        fmf(0)
        if not gate: take(1 if fm else per)
        for x in cv[0:2] + ex[5:7]: em(x)
        if i + 1 < NT: e(mfma(sn, K, Q, "0")); rd(e, v0n, i + 1, 2, "c")
        for x in ex[7:10]: em(x)
        if i + 1 < NT: e(mfma(sn, K + 4, Q + 4))
        if i % 4 == 2 and i + 2 < NT:
            st = i // 4
            if withF and i == FP: poll_check(e, G, G + 1, "hp")
            if withF and i == HBP: poll_check(e, G, G + 1, "hb")
            if withF and i == WOP: poll_check(e, G, G + 1, "wo")
            while dq and i == 2: dq.pop(0)()
            e.wvm(*([f"k{st+1}"] + (["hs"] if i == HFL else []))); e("s_barrier")
            if i == HFL:
                flag_store(e, f"""s_lshl_b32 s6, s{S_RB}, 5
s_add_u32 s6, s6, s{S_J}
s_lshl_b32 s6, s6, 2
s_add_u32 s6, s6, {F_H}
v_mov_b32 v{G+2}, s6""", 1, G + 2)
            assert not dq
            if st + 3 <= 7: dq += kv_dma(e, st + 3)
        if i + 2 < NT: rd(e, K, i + 2, 0, "c"); rd(e, K + 4, i + 2, 1, "c")
        if dq and getattr(dq[0], "scalar", False): dq.pop(0)()
        for x in cv[2:4] + ex[10:12]: em(x)
        fmf(1)
        take(1 if fm else len(fl) if not gate else per)
        for x in ex[12:14] + cv[4:6]: em(x)
        e(mfma(O, v0c, PP, "0" if i == 0 else None))
        for _ in range(1 if i >= 2 else 2):
            if dq: dq.pop(0)()
        if len(fm) < 3: take(len(fl))
        for x in misc: em(x)
        for x in ex[14:16] + cv[6:7]: em(x)
        fmf(2); take(len(fl))
        fq = fl + fq
        em(cv[7])
        if i + 2 >= NT: e("s_nop 1")
    e.all_ds()
    e("s_nop 0")
    e(mfma(O, V1, PP + 4))
    return fi, fq

CMB = L_W2T
def comb_addr():
    T = G
    return f"""s_lshl_b32 s6, s{S_W}, 11
s_add_u32 s6, s6, {CMB}
v_add_u32 v{T}, s6, v{VL16}
v_xor_b32 v{T+1}, 8192, v{T}
s_lshl_b32 s6, s{S_W}, 8
s_add_u32 s6, s6, {CMB + 16384}
v_lshl_add_u32 v{T+2}, v0, 2, s6
v_or_b32 v{T+3}, 32, v0
s_lshl_b32 s6, s{S_QT}, 8
s_add_u32 s6, s6, {CMB + 16384}
v_lshl_add_u32 v{T+3}, v{T+3}, 2, s6
s_mov_b32 s{S_C}, {f2u(2.0 ** -64)}
s_mov_b32 s{S_D}, {f2u(2.0 ** 64)}
s_lshl_b32 s6, s{S_RB}, 9
s_add_u32 s6, s6, s{S_J}
s_lshl_b32 s6, s6, 2
s_add_u32 s6, s6, {F_O2}
v_lshl_add_u32 v6, v0, 7, s6
v_mov_b32 v7, s{S_NON}"""

def attn_finish(e, withF=False):
    T = G
    e.stamp("aend")
    hi = e.newlabel("chi"); jn = e.newlabel("cjn"); fb = e.newlabel("cfb"); bk = e.newlabel("cbk")
    e(f"s_cmp_eq_u32 s{S_KH}, 0\ns_nop 10")
    e.ds(f"ds_write_b32 v{T+2}, v{O+12}")
    e(f"s_cbranch_scc0 {hi}")
    e.ds(f"ds_write_b128 v{T}, {vr(O+8,4)}"); e.ds(f"ds_write_b128 v{T}, {vr(O+12,4)} offset:1024")
    e(f"s_branch {jn}")
    e.label(hi)
    e(f"ds_write_b128 v{T}, {vr(O,4)}\nds_write_b128 v{T}, {vr(O+4,4)} offset:1024")
    e.all_ds()
    for k in range(8): e(f"v_mov_b32 v{O+k}, v{O+8+k}")
    e.label(jn)
    if withF: e.wboth("oa")
    else: e.all_ds()
    e.stamp("xc0")
    e("s_barrier")
    e.stamp("xc1")
    e.ds(f"ds_read2st64_b32 {vr(PP,2)}, v{T+3} offset0:0 offset1:4", "l")
    e.ds(f"ds_read_b128 {vr(S0,4)}, v{T+1}", "h0"); e.ds(f"ds_read_b128 {vr(S0+4,4)}, v{T+1} offset:1024", "h1")
    e(f"s_mov_b32 s{S_A}, 0\ns_sub_u32 s{S_B}, 0, s{S_KH}")
    e.wds("l")
    e(f"""v_add_f32 v{PP}, v{PP}, v{PP+1}
v_rcp_f32 v{PP+1}, v{PP}
v_cmp_nle_f32 vcc, s{S_C}, v{PP}
v_cmp_nge_f32 s[{S_E}:{S_F}], s{S_D}, v{PP}""")
    e.all_ds()
    for k in range(8): e(f"v_add_f32 v{S0+k}, v{S0+k}, v{O+k}")
    e(f"s_or_b64 s[{S_E}:{S_F}], s[{S_E}:{S_F}], vcc")
    for k in range(8): e(f"v_mul_f32 v{S0+k}, v{S0+k}, v{PP+1}")
    def pack_store():
        for k in range(4): e(f"v_cvt_pk_bf16_f32 v{K+k}, v{S0+2*k}, v{S0+2*k+1}")
        e(f"""v_cndmask_b32 v{K+2}, v{K+2}, 0, s[{S_A}:{S_B}]
v_cndmask_b32 v{K+3}, v{K+3}, 0, s[{S_A}:{S_B}]""")
    pack_store()
    e.vm(f"buffer_store_dwordx4 {vr(K,4)}, v{VL16}, {WS}, s{S_OO} offen {SC}", "os")
    e(f"""v_add_f32 v{PP+2}, |v{S0}|, |v{S0+1}|
v_add_f32 v{PP+3}, |v{S0+2}|, |v{S0+3}|
v_add_f32 v{PP+4}, |v{S0+4}|, |v{S0+5}|
v_add_f32 v{PP+5}, |v{S0+6}|, |v{S0+7}|
v_add_f32 v{PP+2}, v{PP+2}, v{PP+3}
v_add_f32 v{PP+4}, v{PP+4}, v{PP+5}
s_mov_b32 s6, 0x7f7fffff
v_add_f32 v{PP+2}, v{PP+2}, v{PP+4}
v_cmp_nge_f32 vcc, s6, v{PP+2}
s_nop 1
s_or_b64 vcc, vcc, s[{S_E}:{S_F}]""")
    if 'forcefb' in X: e("s_mov_b64 vcc, 1")
    e(f"s_cbranch_vccnz {fb}")
    e.label(bk)
    FALLBACKS.append((fb, bk))
    e.stamp("xc2")

FALLBACKS = []
def fallback(e, fb, bk):
    l1 = e.newlabel("fb1"); l2 = e.newlabel("fb2"); l3 = e.newlabel("fb3")
    M = PP + 7
    e.label(fb)
    if 'fbcount' in X:
        e(f"""s_mov_b32 s80, s{P_DBG}
s_mov_b32 s81, s{P_DBG+1}
s_mov_b32 s82, 256
s_mov_b32 s83, 0x00020000
v_mov_b32 v{M}, 0
v_mov_b32 v{M-1}, 1
s_mov_b64 exec, 1
buffer_atomic_add v{M-1}, v{M}, s[80:83], 0 offen
v_mov_b32 v{M-1}, s2
buffer_store_dword v{M-1}, v{M}, s[80:83], 0 offen offset:4
v_mov_b32 v{M-1}, s{S_W}
buffer_store_dword v{M-1}, v{M}, s[80:83], 0 offen offset:8
v_mov_b32 v{M-1}, vcc_lo
buffer_store_dword v{M-1}, v{M}, s[80:83], 0 offen offset:12
v_mov_b32 v{M-1}, vcc_hi
buffer_store_dword v{M-1}, v{M}, s[80:83], 0 offen offset:16
v_mov_b32 v{M-1}, s{S_E}
buffer_store_dword v{M-1}, v{M}, s[80:83], 0 offen offset:20
v_mov_b32 v{M-1}, s{S_F}
buffer_store_dword v{M-1}, v{M}, s[80:83], 0 offen offset:24
buffer_store_dword v{PP}, v{M}, s[80:83], 0 offen offset:28
buffer_store_dword v{PP+2}, v{M}, s[80:83], 0 offen offset:32
s_waitcnt vmcnt(0)
s_mov_b64 exec, -1""")
    e(f"s_mov_b32 s6, {KVF}\nv_mov_b32 v{M}, 0xff800000")
    e.label(l1)
    e(f"""buffer_load_dwordx4 {vr(K,4)}, v{VL16}, {WS}, s6 offen {SC}
buffer_load_dwordx4 {vr(K+4,4)}, v{VL16}, {WS}, s6 offen offset:1024 {SC}
s_add_u32 s6, s6, 4096
s_waitcnt vmcnt(0)""")
    e(mfma(S0, K, Q, "0")); e(mfma(S0, K + 4, Q + 4))
    e("s_nop 11")
    for k in range(8): e(f"v_max3_f32 v{M}, v{M}, v{S0+2*k}, v{S0+2*k+1}")
    e(f"""s_cmp_lt_u32 s6, {KVF + 64*4096}
s_cbranch_scc1 {l1}
v_mov_b32 v{PP}, v{M}
s_nop 1
v_permlane32_swap_b32 v{PP}, v{M}
v_max_f32 v{M}, v{M}, v{PP}
v_cvt_pk_bf16_f32 v{PP}, v{M}, v{M}
v_and_b32 v{PP}, s{S_MASK}, v{PP}
v_sub_f32 v{PP+1}, v{M}, v{PP}
v_cvt_pk_bf16_f32 v{PP+2}, v{PP+1}, v{PP+1}
v_and_b32 v{PP+2}, s{S_MASK}, v{PP+2}
v_sub_f32 v{PP+1}, v{PP+1}, v{PP+2}
v_cvt_pk_bf16_f32 v{PP}, -v{PP}, -v{PP+2}
v_cvt_pk_bf16_f32 v{PP+1}, -v{PP+1}, 0
v_cndmask_b32 v{Q+6}, v{Q+6}, v{PP}, s[{S_HI}:{S_HI+1}]
v_cndmask_b32 v{Q+7}, v{Q+7}, v{PP+1}, s[{S_HI}:{S_HI+1}]
s_mov_b32 s6, {KVF}""")
    for k in range(16): e(f"v_mov_b32 v{O+k}, 0")
    e.label(l2)
    for f in range(4): e(f"buffer_load_dwordx4 {vr(K+4*f,4)}, v{VL16}, {WS}, s6 offen offset:{1024*f} {SC}")
    e("s_add_u32 s6, s6, 4096\ns_waitcnt vmcnt(0)")
    e(mfma(S0, K, Q, "0")); e(mfma(S0, K + 4, Q + 4))
    e("s_nop 11")
    for k in range(16): e(f"v_exp_f32 v{S0+k}, v{S0+k}")
    e("s_nop 0")
    for k in range(8): e(f"v_cvt_pk_bf16_f32 v{PP+k}, v{S0+2*k}, v{S0+2*k+1}")
    e("s_nop 1")
    e(mfma(O, K + 8, PP)); e(mfma(O, K + 12, PP + 4))
    e(f"""s_cmp_lt_u32 s6, {KVF + 64*4096}
s_cbranch_scc1 {l2}
s_nop 11
v_mov_b32 v{PP}, v{O+12}
v_mov_b32 v{PP+1}, v{O+12}
s_cmp_eq_u32 s{S_KH}, 0
s_nop 0
v_permlane32_swap_b32 v{PP}, v{PP+1}
v_rcp_f32 v{PP+1}, v{PP+1}
s_cbranch_scc1 {l3}""")
    for k in range(8): e(f"v_mov_b32 v{O+k}, v{O+8+k}")
    e.label(l3)
    e("s_nop 0")
    for k in range(8): e(f"v_mul_f32 v{S0+k}, v{O+k}, v{PP+1}")
    for k in range(4): e(f"v_cvt_pk_bf16_f32 v{K+k}, v{S0+2*k}, v{S0+2*k+1}")
    e(f"""v_cndmask_b32 v{K+2}, v{K+2}, 0, s[{S_A}:{S_B}]
v_cndmask_b32 v{K+3}, v{K+3}, 0, s[{S_A}:{S_B}]
buffer_store_dwordx4 {vr(K,4)}, v{VL16}, {WS}, s{S_OO} offen {SC}
s_waitcnt vmcnt(0)
s_branch {bk}""")

OFA, OFD = 6, 7
def o_signal(e):
    l = e.newlabel("os")
    e(f"s_cbranch_vccz {l}\ns_mov_b64 exec, 0xffff\nbuffer_store_dword v{OFD}, v{OFA}, {WS}, 0 offen {SC}\ns_mov_b64 exec, -1")
    e.label(l)

def o_flag(e):
    e.stamp("xc3")
    e(f"s_cmp_eq_u32 s{S_W}, 0\ns_cselect_b64 vcc, -1, 0")
    e.wvm("os"); e.stamp("xc4"); e("s_barrier")
    o_signal(e)

def tail(e, nq, fq):
    T = G
    SUM = 232
    RB = 64
    OBR = [96 + 4 * k for k in range(7)] + [36]
    AD = 248
    for f in fq: f()
    for n in range(nq, 56):
        q, k = n // 4, n % 4
        if k == 0 and q + NB - 1 < 14:
            for f in f_loads(e, q + NB - 1): f()
        e.wvm(f"f{q}"); e(f_mfma(q, k))
    e(f"""s_lshl_b32 s6, s{S_W}, 13
s_add_u32 s6, s6, {RING}
v_add_u32 v{AD+6}, s6, v{VL16}
v_xor_b32 v{AD+7}, 8192, v{AD+6}""")
    if nq < 56: e("s_nop 8")
    setup = Side(e)
    setup.add(f"""s_lshr_b32 s6, s{S_J}, 3
s_lshl_b32 s7, s{S_RB}, 1
s_add_u32 s6, s6, s7
s_and_b32 s{S_B}, s{S_W}, 1
s_lshl_b32 s{S_C}, s6, 1
s_add_u32 s{S_C}, s{S_C}, s{S_B}
s_mul_i32 s{S_C}, s{S_C}, 144
s_lshr_b32 s{S_A}, s{S_W}, 1
s_lshl_b32 s{S_D}, s{S_A}, 3
s_add_u32 s{S_D}, s{S_D}, 112
s_add_u32 s{S_C}, s{S_C}, s{S_D}
s_lshl_b32 s{S_C}, s{S_C}, 10
s_and_b32 s7, s{S_J}, 7
s_add_u32 s{S_D}, s{S_C}, 4096
s_lshl_b32 s{S_A}, s{S_A}, 14
s_lshl_b32 s{S_B}, s{S_B}, 13
s_add_u32 s{S_G}, s{S_A}, s{S_B}
s_add_u32 s{S_G}, s{S_G}, {RING}
v_and_b32 v{T}, 31, v0
v_lshrrev_b32 v{T+1}, 5, v0
v_and_b32 v{T+2}, 7, v0
v_xor_b32 v{T+1}, v{T+1}, v{T+2}
v_lshlrev_b32 v{T+1}, 4, v{T+1}
v_lshl_add_u32 v{T}, v{T}, 8, v{T+1}
v_add_u32 v{AD}, s{S_G}, v{T}
v_xor_b32 v{AD+1}, 32, v{AD}
v_xor_b32 v{AD+2}, 64, v{AD}
v_xor_b32 v{AD+3}, 96, v{AD}
s_lshl_b32 s6, s6, 6
s_lshl_b32 s{S_B}, s{S_W}, 3
s_add_u32 s6, s6, s{S_B}
v_lshrrev_b32 v{T}, 3, v0
v_add_u32 v{T+1}, s6, v{T}
v_mul_u32_u24 v{T+1}, 896, v{T+1}
v_lshl_add_u32 v{T+1}, v{T+2}, 4, v{T+1}
s_lshl_b32 s7, s7, 7
v_add_u32 v{VO}, s7, v{T+1}
v_lshlrev_b32 v{T+2}, 1, v{T+2}
v_xor_b32 v{T+2}, v{T+2}, v{T}
v_lshlrev_b32 v{T+2}, 4, v{T+2}
v_lshl_add_u32 v{T}, v{T}, 8, v{T+2}
s_lshl_b32 s6, s{S_W}, 11
s_add_u32 s6, s6, {RING}
v_add_u32 v{AD+4}, s6, v{T}
v_xor_b32 v{AD+5}, 16, v{AD+4}
v_add_u32 v{T+2}, {3 * RING}, v{T+3}""")
    e(f"s_lshr_b32 s6, s{S_W}, 1\ns_lshl_b32 s6, s6, 13\nv_add_u32 v{T+3}, s6, v{VL16}\ns_nop 0")
    oaq = [(lambda k=k: e.ds(f"ds_read_b128 {vr(OAREG[k],4)}, v{T+2 if k < 8 else T+3} offset:{(k & 7) * 1024}", "oar")) for k in range(16)]
    nw1 = P("NW1", 2)
    def oflag():
        e.stamp("xc3")
        e(f"s_cmp_eq_u32 s{S_W}, 0\ns_cselect_b64 vcc, -1, 0")
        e.wvm("os")
        if nw1 == 8: e.all_ds()
        e.stamp("xc4"); e("s_barrier")
        o_signal(e)
    for q in range(8):
        if q == nw1: oflag()
        e.ds(f"ds_write_b128 v{AD+6}, {vr(FA+32+4*q,4)} offset:{q*1024}")
        setup.emit(6)
    setup.flush()
    if nw1 == 8: oflag()
    if not P('OAL', 1):
        for f in oaq: f()
    e.vm(f"buffer_load_dwordx4 {vr(XRES,4)}, v{VO}, s[{SRD_X}:{SRD_X+3}], 0 offen", "xr")
    if nw1 < 8: e.all_ds(); e("s_barrier")
    for q in range(8): e.ds(f"ds_read_b128 {vr(RB+4*q,4)}, v{AD+7} offset:{q*1024}", f"p{q}")
    def olook():
        poll_issue(e, f"""s_lshl_b32 s6, s{S_RB}, 4
s_add_u32 s6, s6, s{S_J}
s_lshl_b32 s6, s6, 7
s_add_u32 s6, s6, {F_O2}
v_and_b32 v{T}, 15, v0
v_lshl_add_u32 v{T}, v{T}, 2, s6""", T, T + 1, "op")
    if P('OLATE', 1) == 0: olook()
    srd(e, SRD_OUT, P_OUT, 2048 * 896)
    for q in range(8):
        e.wds(f"p{q}")
        for k in range(4): e(f"v_add_f32 v{FA+4*q+k}, v{FA+4*q+k}, v{RB+4*q+k}")
    if P('OLATE', 1) == 2:
        for f in oaq: f()
        oaq = []
    if P('OLATE', 1): olook()
    e.stamp("t1")
    poll_check(e, T, T + 1, "op", P("OSLEEP", 1))
    e("s_barrier")
    e.stamp("t2")
    for k in range(8):
        e.vm(f"buffer_load_dwordx4 {vr(OBR[k],4)}, v{VL16}, {WS}, s{S_C if k < 4 else S_D} offen offset:{(k&3)*1024} {SC}", f"ob{k}")
    if P('OAL', 1):
        for f in oaq: f()
        e.all_ds()
    e.wvm("xr")
    for k in range(4): e(f"v_lshlrev_b32 v{SUM+2*k}, 16, v{XRES+k}\nv_and_b32 v{SUM+1+2*k}, s{S_MASK}, v{XRES+k}")
    for k in range(8):
        e.wvm(f"ob{k}")
        for d2 in range(2): e(mfma(FA + 16*d2, OAREG[2*k + d2], OBR[k]))
    e("s_nop 10")
    e.stamp("t3")
    for d2 in range(2):
        for q in range(4): e.ds(f"ds_write_b128 v{AD+q}, {vr(FA+16*d2+4*q,4)} offset:{d2*128}")
    e.all_ds()
    e("s_barrier")
    for p in range(4):
        e.ds(f"ds_read_b128 {vr(RB+8*p,4)}, v{AD+4} offset:{p*16384}", f"s{p}")
        e.ds(f"ds_read_b128 {vr(RB+8*p+4,4)}, v{AD+5} offset:{p*16384}", f"s{p}")
    for p in range(4):
        e.wds(f"s{p}")
        for k in range(8): e(f"v_add_f32 v{SUM+k}, v{SUM+k}, v{RB+8*p+k}")
    for k in range(4): e(f"v_cvt_pk_bf16_f32 v{XRES+k}, v{SUM+2*k}, v{SUM+1+2*k}")
    e.vm(f"buffer_store_dwordx4 {vr(XRES,4)}, v{VO}, s[{SRD_OUT}:{SRD_OUT+3}], 0 offen {os.environ.get('OUTF', '')}")

def build():
    e = Em()
    kn = NAME + "_kernel"
    e.a.raw(f".globl {kn}\n.p2align 8\n.type {kn},@function")
    e.label(kn)
    prologue(e)
    gelu, h_off = phaseB(e)
    attn_setup(e, gelu, h_off)
    e(f"s_and_b32 s6, s{S_J}, 7\ns_cmp_eq_u32 s6, 7\ns_cbranch_scc1 C_noF")
    sn = e.snap(); ns = e.nst
    nq, fq = attn_loop(e, True)
    attn_finish(e, True)
    tail(e, nq, fq)
    nend = e.nst
    e("s_branch K_fin")
    e.label("C_noF")
    e.restore(sn); e.nst = ns
    attn_loop(e, False)
    attn_finish(e)
    o_flag(e)
    e(f"""s_cmp_eq_u32 s{S_RB}, 0
s_cbranch_scc0 C_noF_done
s_cmp_eq_u32 s{S_J}, 7
s_cbranch_scc0 C_noF_done
s_cmp_eq_u32 s{S_W}, 0
s_cbranch_scc0 C_noF_done""")
    for k in range(4):
        e(f"""v_lshrrev_b32 v{G}, 4, v0
v_and_b32 v{G+1}, 15, v0
v_lshlrev_b32 v{G}, 7, v{G}
v_lshl_add_u32 v{G}, v{G+1}, 2, v{G}
v_add_u32 v{G}, {F_H + 512*k}, v{G}""")
        e(f"buffer_load_dword v{G+1}, v{G}, {WS}, 0 offen {SC}"); e.mark[f"ep{k}"] = len(e.q['vm'])
        poll_check(e, G, G + 1, f"ep{k}")
    e(f"v_mov_b32 v{G}, {EPO}\nv_mov_b32 v{G+1}, s{S_NON}\ns_mov_b64 exec, 1\nbuffer_store_dword v{G+1}, v{G}, {WS}, 0 offen {SC}\ns_mov_b64 exec, -1")
    e.label("C_noF_done")
    while e.nst < nend and not STAMPS_OFF: e.stamp()
    e.label("K_fin")
    if os.environ.get("AMPAT"):
        e("""s_waitcnt vmcnt(0)
s_memrealtime s[92:93]
s_waitcnt lgkmcnt(0)
s_sub_u32 s7, s94, s96
s_mul_i32 s7, s7, 10
K_amp:
s_sleep 1
s_memrealtime s[98:99]
s_waitcnt lgkmcnt(0)
s_sub_u32 s6, s98, s92
s_cmp_lt_u32 s6, s7
s_cbranch_scc1 K_amp""")
    if 'stdiag' in X:
        e("""s_memtime s[92:93]
s_waitcnt lgkmcnt(0)
K_sd:
s_sleep 2
s_memtime s[90:91]
s_waitcnt lgkmcnt(0)
s_sub_u32 s6, s90, s92
s_cmp_lt_u32 s6, s94
s_cbranch_scc1 K_sd""")
    if 'fix' in X:
        e("""K_fx:
s_sleep 1
s_memrealtime s[98:99]
s_waitcnt lgkmcnt(0)
s_sub_u32 s6, s98, s96
s_cmp_lt_u32 s6, 10000
s_cbranch_scc1 K_fx""")
    if 'amp' in X:
        e("""s_waitcnt vmcnt(0)
s_memrealtime s[98:99]
s_waitcnt lgkmcnt(0)
s_sub_u32 s7, s98, s96
s_mul_i32 s7, s7, 10
K_fx:
s_sleep 1
s_memrealtime s[98:99]
s_waitcnt lgkmcnt(0)
s_sub_u32 s6, s98, s96
s_cmp_lt_u32 s6, s7
s_cbranch_scc1 K_fx""")
    if STAMPS:
        e.stamp()
        e.label("K_fin2")
        e("s_memrealtime s[98:99]\ns_waitcnt lgkmcnt(0) vmcnt(0)")
        e(f"""s_mov_b32 s40, s{P_WS}
s_mov_b32 s41, s{P_WS+1}
s_mov_b32 s42, 0x10000000
s_mov_b32 s43, 0x00020000
s_lshl_b32 s6, s2, 3
s_add_u32 s6, s6, s{S_W}
s_lshl_b32 s6, s6, 6
s_add_u32 s6, s6, {STAMP_WS}
v_mov_b32 v2, s96
v_mov_b32 v3, s98""")
        for k in range(10): e(f"v_mov_b32 v{4+k}, {'s%d' % (76+2*k) if k < e.nst else 0}")
        e("v_mov_b32 v1, 0\ns_mov_b64 exec, 1")
        for q in range(3): e(f"buffer_store_dwordx4 v[{2+4*q}:{5+4*q}], v1, s[40:43], s6 offen offset:{16*q}")
    e("s_endpgm")
    for fb, bk in FALLBACKS: fallback(e, fb, bk)
    e.label("K_end")
    e("s_endpgm")
    probs = check_hazards(e.a.lines, "k")
    hdr = open("cdna_kernels/" + NAME + ".s.ref").read().split("; Override launch")[0]
    out = hdr + f"; @launch grid=(256,1,1) block=(512,1,1) lds={LDS_BYTES}\n"
    out += '.amdgcn_target "amdgcn-amd-amdhsa--gfx950"\n.text\n' + e.a.text()
    out += f""".section .rodata,"a"
.p2align 6
.amdhsa_kernel {kn}
  .amdhsa_next_free_vgpr 256
  .amdhsa_next_free_sgpr 102
  .amdhsa_accum_offset 256
  .amdhsa_group_segment_fixed_size 0
  .amdhsa_kernarg_size 96
  .amdhsa_user_sgpr_count 2
  .amdhsa_user_sgpr_kernarg_segment_ptr 1
  .amdhsa_system_sgpr_workgroup_id_x 1
  .amdhsa_float_denorm_mode_32 3
.end_amdhsa_kernel
"""
    return out, probs

if __name__ == "__main__":
    out, probs = build()
    for p in probs: print("HAZARD", p, file=sys.stderr)
    open(sys.argv[1] if len(sys.argv) > 1 else "cdna_kernels/" + NAME + ".s", "w").write(out)
```

```python
import sys, os, math, struct
from asmlib import *
X = set(os.environ.get('XFLAGS', '').split(','))
def P(name, default): return int(os.environ.get(name, default))
NAME = "parallel_sum__grouped_kv_mqa__glu_gated_geglu__prompt"
def f2u(x): return struct.unpack("<I", struct.pack("<f", x))[0]

A2F = 0
W2T = 64 * 144 * 1024
QF  = W2T + 7 * 144 * 2048
KVF = QF + 64 * 16 * 2048
FLG = KVF + 64 * 4096
RKV = P("RKV", 16)
F_W  = FLG
F_H  = FLG + 2048
F_O  = FLG + 4096
EPO  = FLG + 6144
F_Q  = FLG + 4096
SPLITQ = P('SPLITQ', 0)
F_KV = FLG + 8192
F_O2 = F_KV + 256 * RKV
STAT = F_O2 + 32768
WS_END = STAT + 2048 * 8
OOB = 0x7ffffff0
P_X, P_WQ, P_WK, P_WV, P_WO, P_BX, P_WG, P_WU, P_WD, P_OUT, P_DBG, P_WS = 8, 10, 12, 14, 16, 18, 20, 22, 24, 26, 28, 30
SRD_X, SRD_WS, SRD_T, SRD_PC = 32, 36, 40, 44
SRD_OUT = SRD_T
S_W, S_RB, S_J = 3, 4, 5
(S_WB, S_MASK, S_XO, S_XO2, S_RT, S_CG, S_MUL, S_T0, S_T1, S_U, S_NON, S_LA, S_LB, S_TO, S_QU) = range(48, 63)
S_HI = 64
S_A, S_B, S_C, S_D, S_E, S_F = 66, 67, 68, 69, 70, 71
S_G, S_H2 = 72, 73
S_CNT = 74
WS = f"s[{SRD_WS}:{SRD_WS+3}]"
SC = "sc1"
STAMPS = bool(os.environ.get("STAMPS"))
STAMP_WS = 200 * 1024 * 1024
SPIN_MAX = 1 << 21
STAMPS_OFF = False

class Em:
    def __init__(s):
        s.a = Asm(); s.q = {'ds': [], 'vm': []}; s.done = {'ds': 0, 'vm': 0}; s.nst = 0; s.uid = 0; s.mark = {}
    def __call__(s, t): s.a(t)
    def label(s, l): s.a.label(l)
    def ds(s, ins, tag=None): s.a(ins); s.q['ds'].append(tag)
    def vm(s, ins, tag=None): s.a(ins); s.q['vm'].append(tag)
    def _n(s, k, tags, cap):
        idx = -1
        for t in tags:
            ii = [i for i, x in enumerate(s.q[k]) if x == t]
            if not ii and 'nodma' in X: continue
            assert ii, f"tag {t} never issued"
            idx = max(idx, ii[-1])
        if idx < s.done[k]: return None
        n = min(len(s.q[k]) - 1 - idx, cap)
        s.done[k] = len(s.q[k]) - n
        return n
    def wds(s, *tags):
        n = s._n('ds', tags, 15)
        if n is not None: s.a(f"s_waitcnt lgkmcnt({n})")
    def wvm(s, *tags):
        n = s._n('vm', tags, 63)
        if n is not None: s.a(f"s_waitcnt vmcnt({n})")
    def wboth(s, *tags):
        n = s._n('vm', tags, 63)
        s.a("s_waitcnt lgkmcnt(0)" if n is None else f"s_waitcnt vmcnt({n}) lgkmcnt(0)"); s.done['ds'] = len(s.q['ds'])
    def all_ds(s): s.a("s_waitcnt lgkmcnt(0)"); s.done['ds'] = len(s.q['ds'])
    def all_vm(s): s.a("s_waitcnt vmcnt(0)"); s.done['vm'] = len(s.q['vm'])
    def snap(s): return ({k: list(v) for k, v in s.q.items()}, dict(s.done))
    def restore(s, sn): s.q = {k: list(v) for k, v in sn[0].items()}; s.done = dict(sn[1])
    def stamp(s, name=None):
        if name is not None and name == os.environ.get("IDLEAT"): s.a("s_sleep 32")
        if name is not None and name == os.environ.get("AMPAT"):
            s.a("s_memrealtime s[94:95]"); s.all_ds()
        sel = os.environ.get("STSEL")
        if sel is not None and name is not None and name not in sel.split(","): return
        if sel is None and name is not None and name.startswith("x"): return
        if STAMPS and not STAMPS_OFF:
            assert s.nst < 10
            s.a(f"{'s_memrealtime' if os.environ.get('RT') else 's_memtime'} s[{76+2*s.nst}:{77+2*s.nst}]"); s.nst += 1
            s.all_ds()
    def newlabel(s, p): s.uid += 1; return f"{p}_{s.uid}"

def srd(e, d, p, nbytes):
    e(f"s_mov_b32 s{d}, s{p}\ns_mov_b32 s{d+1}, s{p+1}\ns_mov_b32 s{d+2}, {nbytes}\ns_mov_b32 s{d+3}, 0x00020000")
def mfma(d, A, B, C=None):
    return f"v_mfma_f32_32x32x16_bf16 {vr(d,16)}, {vr(A,4)}, {vr(B,4)}, {vr(d,16) if C is None else C}"
def mfma16(d, A, B, C=None):
    return f"v_mfma_f32_16x16x32_bf16 {vr(d,4)}, {vr(A,4)}, {vr(B,4)}, {vr(d,4) if C is None else C}"

class Side:
    def __init__(s, e): s.e = e; s.q = []
    def add(s, items):
        if isinstance(items, str):
            raw = [l.strip() for l in items.strip().split("\n") if l.strip()]
            items = []
            for l in raw:
                if l.startswith("s_cselect"): items[-1] += "\n" + l
                else: items.append(l)
        s.q += list(items)
    def emit(s, n):
        while n > 0 and s.q:
            it = s.q.pop(0)
            if callable(it): it()
            else: s.e(it)
            n -= 1
    def flush(s): s.emit(1 << 30)

def flag_store(e, addr_lines, nlanes, vt):
    l = e.newlabel("fl")
    e(f"s_cmp_eq_u32 s{S_W}, 0\ns_cbranch_scc0 {l}")
    e(addr_lines)
    e(f"v_mov_b32 v{vt+1}, s{S_NON}\ns_mov_b64 exec, {(1 << nlanes) - 1}\nbuffer_store_dword v{vt+1}, v{vt}, {WS}, 0 offen {SC}\ns_mov_b64 exec, -1")
    e.label(l)

def poll_issue(e, addr_lines, vaddr, vdat, tag):
    l = e.newlabel("pi")
    e(f"s_cmp_eq_u32 s{S_W}, 0\ns_cbranch_scc0 {l}")
    e(addr_lines)
    e(f"buffer_load_dword v{vdat}, v{vaddr}, {WS}, 0 offen {SC}")
    e.label(l)
    e.mark[tag] = len(e.q['vm'])

def poll_check(e, vaddr, vdat, tag, sleep=None):
    ok = e.newlabel("pok"); sp = e.newlabel("psp")
    e(f"s_cmp_eq_u32 s{S_W}, 0\ns_cbranch_scc0 {ok}")
    e(f"s_waitcnt vmcnt({min(63, len(e.q['vm']) - e.mark[tag])})")
    e(f"v_cmp_ne_u32 vcc, s{S_NON}, v{vdat}\ns_cbranch_vccz {ok}\ns_mov_b32 s{S_CNT}, {SPIN_MAX}")
    e.label(sp)
    e(f"""s_sleep {P('SLEEP', 4) if sleep is None else sleep}
buffer_load_dword v{vdat}, v{vaddr}, {WS}, 0 offen {SC}
s_sub_u32 s{S_CNT}, s{S_CNT}, 1
s_waitcnt vmcnt(0)
v_cmp_ne_u32 vcc, s{S_NON}, v{vdat}
s_cmp_eq_u32 s{S_CNT}, 0
s_cbranch_scc1 {ok}
s_cbranch_vccnz {sp}""")
    if 'spincnt' in X and tag in SPINIDX: e(f"s_sub_u32 s{78 + 2 * SPINIDX[tag]}, {SPIN_MAX + 1000}, s{S_CNT}")
    e.label(ok)
SPINIDX = {'kvp': 0, 'hp': 1, 'hb': 2, 'wo': 3, 'op': 4}

RING = 32768
L_W2T = 131072
L_CSA = L_W2T + 8192
L_CSB = L_CSA + 2048
L_ST  = L_CSB + 2048
L_KVB = L_ST + 4096
L_FLG = L_KVB + 4096
LDS_BYTES = L_FLG + 256

VL16, VT, VX, GA, GS = 1, 2, 3, 4, 6
XA, WA = 8, 12
ST, SEL, CSA, WF, TM = 20, 24, 28, 36, 60
ACCA, ACCB, XR, G = 64, 96, 128, 240
SQA, SQB, TP = 60, 240, 248
WB, GB, PL = 250, 102, 252
R_, S_, AC, BC, I2 = 8, 9, 10, 11, 3
BEXT = 60


TA, TS, TX, TD = 96, 98, 99, 100
S_ISQ, S_SH = 63, 75
RW = 104
def w_source(row, c, dst, gs, t0):
    return f"""v_cmp_le_u32 vcc, s{S_A}, v{c}
v_mul_lo_u32 v{dst}, v{row}, s{S_B}
v_lshl_add_u32 v{dst}, v{c}, 4, v{dst}
v_add_u32 v{dst}, s{S_C}, v{dst}
v_subrev_u32 v{c}, s{S_A}, v{c}
v_lshlrev_b32 v{c}, s{S_G}, v{c}
v_mul_lo_u32 v{t0}, v{row}, s{S_D}
v_add3_u32 v{t0}, v{t0}, v{c}, s{S_H2}
v_cndmask_b32 v{dst}, v{dst}, v{t0}, vcc
v_mov_b32 v{gs}, s{S_B}
v_mov_b32 v{t0}, s{S_D}
v_cndmask_b32 v{gs}, v{gs}, v{t0}, vcc
v_lshlrev_b32 v{gs}, 5, v{gs}"""

ROTS = {0: [0]*8, 1: [0, 3, 2, 5, 4, 0, 6, 2], 2: [0, 3, 3, 0, 0, 3, 3, 0], 3: [0, 1, 2, 3, 4, 5, 6, 0], 4: [0, 4, 1, 5, 2, 6, 3, 0]}
ROTTAB = sum(v << (4 * i) for i, v in enumerate(ROTS[P("ROT", 0)]))
S_ROT = 47
S_KVO, S_WB4, S_FA, S_FB0, S_FB1, S_OO, S_FQ, S_K1, S_OA, S_OL = 15, 18, 19, 20, 21, 22, 23, 28, 29, 44
S_WF = 46
RPAR, RBIT = P("RPAR", 0), P("RBIT", 0)
RPARCODE = "" if not RPAR else f"""
s_lshr_b32 s{S_F}, s2, 3
s_lshr_b32 s{S_T0}, s2, 6
s_xor_b32 s{S_F}, s{S_F}, s{S_T0}
s_and_b32 s{S_F}, s{S_F}, {RBIT or 1}
s_mul_i32 s{S_F}, s{S_F}, {RPAR}
s_add_u32 s{S_XO}, s{S_XO}, s{S_F}
s_cmp_ge_u32 s{S_XO}, 7
s_cselect_b32 s{S_F}, 7, 0
s_sub_u32 s{S_XO}, s{S_XO}, s{S_F}"""
def prologue(e):
    T = TM
    ROTCODE = f"""s_and_b32 s{S_XO}, s2, 7
s_lshl_b32 s{S_XO}, s{S_XO}, 2
s_lshr_b32 s{S_XO}, {ROTTAB:#x}, s{S_XO}
s_and_b32 s{S_XO}, s{S_XO}, 7{RPARCODE}
s_mov_b32 s{S_ROT}, s{S_XO}
s_lshl_b32 s{S_F}, s{S_XO}, 6
s_lshl_b32 s{S_XO}, s{S_XO}, 7
v_add_u32 v{T+2}, s{S_F}, v{T+2}
""" if any(ROTS[P('ROT', 0)]) or RPAR else f"s_mov_b32 s{S_ROT}, 0\n"
    e(f"s_cmp_ge_u32 s2, 256\ns_cbranch_scc1 K_end")
    if STAMPS or 'fix' in X or 'amp' in X or os.environ.get("AMPAT"): e("s_memrealtime s[96:97]")
    e.stamp()
    if 'spincnt' in X:
        for k in range(6): e(f"s_movk_i32 s{78 + 2*k}, 1000")
        e.nst = 7
    e("s_load_dwordx16 s[8:23], s[0:1], 0\ns_load_dwordx8 s[24:31], s[0:1], 64")
    e(f"s_getpc_b64 s[{SRD_PC}:{SRD_PC+1}]")
    e.label("K_pc")
    e(f"""s_mov_b32 s{SRD_PC+2}, K_end-K_pc
s_mov_b32 s{SRD_PC+3}, 0x00020000
v_lshlrev_b32 v1, 7, v0""")
    e.vm(f"buffer_load_dword v{TD}, v1, s[{SRD_PC}:{SRD_PC+3}], 0 offen")
    T = TM
    e(f"""v_lshrrev_b32 v1, 6, v0
v_and_b32 v0, 63, v0
v_readfirstlane_b32 s{S_W}, v1
s_nop 1""")
    if GT:
        e(f"""s_lshl_b32 s{S_TG}, s2, 3
s_add_u32 s{S_TG}, s{S_TG}, s{S_W}
s_min_u32 s6, s{S_TG}, 1393
s_cmp_ge_u32 s6, 448
s_cselect_b32 s7, 56, 48
s_cselect_b32 s{S_A}, 448, 0
s_mov_b32 s{S_D}, {448*3584}
s_cmp_ge_u32 s6, 896
s_cselect_b32 s7, 8, s7
s_cselect_b32 s{S_A}, 896, s{S_A}
s_cselect_b32 s{S_B}, 6, {15 if P('TQB', 0) else 11}
s_cselect_b32 s{S_C}, 7, 28
s_cselect_b32 s{S_D}, {448*896}, s{S_D}
s_cmp_ge_u32 s6, 1344
s_cselect_b32 s7, 16, s7
s_cselect_b32 s{S_A}, 1344, s{S_A}
s_cselect_b32 s{S_B}, 7, s{S_B}
s_cselect_b32 s{S_C}, 8, s{S_C}
s_cselect_b32 s{S_D}, {448*56}, s{S_D}
s_cmp_ge_u32 s6, 1369
s_cselect_b32 s7, 24, s7
s_cselect_b32 s{S_A}, 1369, s{S_A}
s_load_dwordx2 s[{SRD_T}:{SRD_T+1}], s[0:1], s7
s_mov_b32 s{SRD_T+2}, s{S_D}
s_mov_b32 s{SRD_T+3}, 0x00020000
s_sub_u32 s6, s6, s{S_A}
s_cmp_lt_u32 s6, {64 * P('GTS', 0)}
s_cselect_b32 s{S_TS}, 0, {OOB}
s_mul_i32 s6, s6, s{S_C}
v_min_u32 v{TA}, s{S_B}, v0
v_cmp_lt_u32 vcc, 11, v{TA}
v_add_u32 v{TA}, s6, v{TA}
v_add_u32 v{TA+1}, 12, v{TA}
v_cndmask_b32 v{TA}, v{TA}, v{TA+1}, vcc
v_lshlrev_b32 v{TA}, 7, v{TA}
s_mul_i32 s6, s{S_TG}, 896
v_lshl_add_u32 v{TX}, v0, 4, s6
v_cmp_lt_u32 vcc, 55, v0
v_mov_b32 v{TX+2}, {OOB}
s_nop 0
v_cndmask_b32 v{TX}, v{TX}, v{TX+2}, vcc""")
    e(f"""
s_bfe_u32 s{S_RB}, s2, 0x20001
s_lshl_b32 s{S_RB}, s{S_RB}, 2
s_lshr_b32 s6, s2, 6
s_add_u32 s{S_RB}, s{S_RB}, s6
s_and_b32 s{S_J}, s2, 1
s_lshl_b32 s{S_J}, s{S_J}, 3
s_bfe_u32 s7, s2, 0x30003
s_add_u32 s{S_J}, s{S_J}, s7
s_lshr_b32 s{S_QU}, s{S_J}, 2
s_sub_u32 s{S_LA}, s{S_J}, s{S_QU}
s_lshl_b32 s{S_WB}, s{S_W}, 10
s_lshl_b32 s{S_C}, s{S_LA}, 7
s_mul_i32 s{S_E}, s{S_QU}, 224
s_and_b32 s{S_F}, s{S_QU}, 1
s_sub_u32 s{S_G}, 4, s{S_F}
s_lshl_b32 s{S_F}, s{S_F}, 5
s_movk_i32 s{S_D}, 3584
s_and_b32 s{S_ISQ}, s{S_J}, 3
s_cmp_eq_u32 s{S_ISQ}, 3
s_cselect_b32 s{S_ISQ}, 1, 0
s_cselect_b32 s{S_A}, 14, 8
s_cselect_b32 s{S_B}, 896, s{S_D}
s_cselect_b32 s{S_D}, 56, s{S_D}
s_cselect_b32 s{S_H2}, s{S_F}, s{S_C}
s_cselect_b32 s{S_C}, s{S_E}, s{S_C}
s_cselect_b32 s{S_G}, s{S_G}, 4
s_add_u32 s{S_SH}, s{S_ISQ}, 1
s_lshl_b32 s{S_E}, s{S_RB}, 7
s_lshl_b32 s{S_F}, s{S_W}, 3
s_add_u32 s{S_F}, s{S_F}, s{S_E}
v_lshrrev_b32 v{T}, 3, v0
v_add_u32 v{T}, s{S_F}, v{T}
v_mul_u32_u24 v{T}, 896, v{T}
s_lshl_b32 s{S_F}, s{S_W}, 2
v_lshrrev_b32 v{T+1}, 4, v0
v_add_u32 v{T+2}, s{S_F}, v{T+1}
v_xor_b32 v{T+3}, v{T+2}, v0
v_and_b32 v{T+3}, 7, v{T+3}
v_lshl_add_u32 v{VX}, v{T+3}, 4, v{T}
{ROTCODE}v_lshlrev_b32 v{T+1}, s{S_SH}, v{T+1}
v_xor_b32 v{T+1}, v{T+1}, v0
v_and_b32 v{T+1}, 15, v{T+1}""")
    e(w_source(T + 2, T + 1, G, GS, T))
    e(f"s_mov_b64 s[{S_HI}:{S_HI+1}], vcc")
    if TOUCH:
        e(f"""s_and_b32 s6, s6, 3
s_lshl_b32 s6, s6, 3
s_add_u32 s6, s6, s{S_W}
s_lshl_b32 s6, s6, 1
s_lshl_b32 s7, s7, 3
s_add_u32 s7, s7, s{S_W}
s_lshl_b32 s7, s7, 1
s_add_u32 s7, s7, s{S_E}
v_bfe_u32 v{T+2}, v0, 3, 1
v_bfe_u32 v{T+1}, v0, 2, 1
v_lshl_add_u32 v{T+2}, v{T+2}, 6, v{T+1}
v_add_u32 v{T+2}, s6, v{T+2}
v_and_b32 v{T+1}, 3, v0
v_lshlrev_b32 v{T+1}, 2, v{T+1}
v_lshrrev_b32 v{T+1}, v{T+1}, s{S_MASK}
v_and_b32 v{T+1}, 15, v{T+1}
v_and_b32 v{T}, 1, v0
v_add_u32 v{T}, s7, v{T}
v_mul_u32_u24 v{TX}, 896, v{T}
v_bfe_u32 v{T}, v0, 1, 1
v_lshl_add_u32 v{TX}, v{T}, 7, v{TX}""".replace(f"v_lshrrev_b32 v{T+1}, v{T+1}, s{S_MASK}", f"s_movk_i32 s6, 0xed80\nv_lshrrev_b32 v{T+1}, v{T+1}, s6"))
        e(w_source(T + 2, T + 1, G + 1, TS, T))
    e("s_waitcnt lgkmcnt(0)")
    e.stamp("xs0")
    if 'stdiag' in X:
        e(f"""s_mov_b32 s40, s{P_WS}
s_mov_b32 s41, s{P_WS+1}
s_mov_b32 s42, 0x10000000
s_mov_b32 s43, 0x00020000
s_lshl_b32 s90, s2, 3
s_add_u32 s90, s90, s{S_W}
s_lshl_b32 s90, s90, 10
s_add_u32 s90, s90, {P('DOFF', 100) * 1024 * 1024}
v_lshlrev_b32 v110, 4, v0
buffer_store_dwordx4 v[112:115], v110, s[40:43], s90 offen sc1
s_waitcnt vmcnt(0)
s_add_u32 s90, s90, 0x200000
s_barrier
s_memtime s[92:93]
s_waitcnt lgkmcnt(0)
buffer_store_dwordx4 v[112:115], v110, s[40:43], s90 offen sc1
s_waitcnt vmcnt(0)
s_barrier
s_memtime s[94:95]
s_waitcnt lgkmcnt(0)
s_sub_u32 s94, s94, s92
s_mul_i32 s94, s94, 100""")
    srd(e, SRD_X, P_X, 2048 * 896)
    if GT:
        e.vm(f"buffer_load_dwordx4 {vr(RW,4)}, v{TX}, s[{SRD_X}:{SRD_X+3}], 0 offen", "row")
        if GT & 2: e.vm(f"buffer_load_dword v{TD}, v{TA}, s[{SRD_T}:{SRD_T+3}], {'s%d' % S_TS if P('GTS', 0) else 0} offen", "t")
        if P("GTW", 0): e.wvm("row")
    if P("XE", 1): dma_x(e, 0, 0)(); dma_x(e, 0, 1)()
    e(f"""s_cmp_lt_u32 s{S_QU}, 2
s_cselect_b32 s{S_C}, s{P_WK}, s{P_WV}
s_cselect_b32 s{S_D}, s{P_WK+1}, s{P_WV+1}
s_cmp_eq_u32 s{S_ISQ}, 1
s_cselect_b32 s{S_A}, s{P_WQ}, s{P_WG}
s_cselect_b32 s{S_B}, s{P_WQ+1}, s{P_WG+1}
s_cselect_b32 s{S_C}, s{S_C}, s{P_WU}
s_cselect_b32 s{S_D}, s{S_D}, s{P_WU+1}
v_mov_b32 v{T}, s{S_A}
v_mov_b32 v{T+1}, s{S_B}
v_mov_b32 v{T+2}, s{S_C}
v_mov_b32 v{T+3}, s{S_D}""")
    if TOUCH:
        e(f"""v_cndmask_b32 v{TA}, v{T}, v{T+2}, vcc
v_cndmask_b32 v{TA+1}, v{T+1}, v{T+3}, vcc
v_add_co_u32 v{TA}, vcc, v{TA}, v{G+1}
v_cndmask_b32 v{GA}, v{T}, v{T+2}, s[{S_HI}:{S_HI+1}]
v_cndmask_b32 v{GA+1}, v{T+1}, v{T+3}, s[{S_HI}:{S_HI+1}]
v_addc_co_u32 v{TA+1}, vcc, 0, v{TA+1}, vcc""")
        touch(e, 0)()
    else:
        e(f"""v_cndmask_b32 v{GA}, v{T}, v{T+2}, s[{S_HI}:{S_HI+1}]
v_cndmask_b32 v{GA+1}, v{T+1}, v{T+3}, s[{S_HI}:{S_HI+1}]""")
    e(f"v_add_co_u32 v{GA}, vcc, v{GA}, v{G}\nv_mov_b32 v{GS+1}, 0")
    if 'gonly' in X: e.all_vm(); e.stamp()
    if not P("XE", 1): dma_x(e, 0, 0)()
    else: e("s_nop 0")
    e(f"v_addc_co_u32 v{GA+1}, vcc, 0, v{GA+1}, vcc")

TOUCH = P("TOUCH", 0)
GT = P("GT", 3)
ROT = P("ROT", 0)
LDX = os.environ.get("LDX", ""); LDW = os.environ.get("LDW", ""); LDT = os.environ.get("LDT", "")
def touch(e, k):
    def f():
        st = (0, 2, 4, 5)[k]
        e.vm(f"global_load_dword v{TD}, {vr(TA,2)}, off", f"t{k}")
        e(f"s_movk_i32 s{S_XO2}, {st * 128}")
        e.vm(f"buffer_load_dword v{TD}, v{TX}, s[{SRD_X}:{SRD_X+3}], s{S_XO2} offen", f"t{k}")
        if k < 3: e(f"v_mad_u64_u32 {vr(TA,2)}, s[{S_E}:{S_E+1}], v{TS}, {4 if k < 2 else 2}, {vr(TA,2)}")
    return f
S_TG, S_TS = 61, 57
def gtouch(e, st):
    def f():
        e(f"s_mul_i32 s{S_XO2}, s{S_TS}, {st}")
        e.vm(f"buffer_load_dword v{TD}, v{TA}, s[{SRD_PC}:{SRD_PC+3}], s{S_XO2} offen {LDT}", "t")
        e(f"s_movk_i32 s{S_XO2}, {st * 128}")
        e.vm(f"buffer_load_dword v{TD}, v{TX}, s[{SRD_X}:{SRD_X+3}], s{S_XO2} offen {LDT}", "t")
    return f
def dma_x(e, sig, i):
    def f():
        e(f"s_add_u32 m0, s{S_WB}, {(sig % 4) * RING + i * 8192}")
        if i == 0: e("s_nop 0"); so = S_XO
        else: e(f"s_add_u32 s{S_XO2}, s{S_XO}, {64*896}"); so = S_XO2
        e.vm(f"buffer_load_dwordx4 v{VX}, s[{SRD_X}:{SRD_X+3}], s{so} offen {LDX} lds", f"d{sig}")
    return f
def dma_w(e, sig, off, i, first=False):
    def f():
        if i == 0 and not first:
            e(f"s_add_u32 s{S_XO}, s{S_XO}, 128\ns_cmp_eq_u32 s{S_XO}, 896\ns_cselect_b32 s{S_XO}, 0, s{S_XO}\ns_cselect_b32 s{S_MUL}, -13, 1")
        e(f"s_add_u32 m0, s{S_WB}, {(sig % 4) * RING + off + i * 8192}")
        if first == 2: e(f"s_add_u32 s{S_XO}, s{S_XO}, 128\ns_cmp_eq_u32 s{S_XO}, 896\ns_cselect_b32 s{S_XO}, 0, s{S_XO}")
        elif first: e("s_nop 0")
        elif i == 0: e(f"v_mad_i64_i32 {vr(GA,2)}, s[{S_E}:{S_E+1}], v{GS}, s{S_MUL}, {vr(GA,2)}")
        else: e(f"v_lshl_add_u64 {vr(GA,2)}, {vr(GS,2)}, 0, {vr(GA,2)}")
        e.vm(f"global_load_lds_dwordx4 {vr(GA,2)}, off {LDW}", f"d{sig}")
    return f
if not any(ROTS[P("ROT", 0)]) and not RPAR:
    def dma_x(e, sig, i):
        def f():
            e(f"s_add_u32 m0, s{S_WB}, {(sig % 4) * RING + i * 8192}\ns_mov_b32 s{S_XO}, {sig * 128 + i * 64 * 896}")
            e.vm(f"buffer_load_dwordx4 v{VX}, s[{SRD_X}:{SRD_X+3}], s{S_XO} offen {LDX} lds", f"d{sig}")
        return f
    def dma_w(e, sig, off, i, first=False):
        def f():
            e(f"s_add_u32 m0, s{S_WB}, {(sig % 4) * RING + off + i * 8192}")
            e("s_nop 0" if first else f"v_lshl_add_u64 {vr(GA,2)}, {vr(GS,2)}, 0, {vr(GA,2)}")
            e.vm(f"global_load_lds_dwordx4 {vr(GA,2)}, off {LDW}", f"d{sig}")
        return f
def stage_dmas(e, sig):
    if 'nodma' in X and 2 <= sig: return [(lambda: e.q['vm'].append(f'd{sig}') or e.q['vm'].pop() if False else None)] if False else [lambda: None]
    if sig == 0: return [dma_x(e, sig, 0), dma_w(e, sig, 16384, 0, True), dma_x(e, sig, 1), dma_w(e, sig, 16384, 1)]
    if sig < 7: return [dma_w(e, sig, 16384, 0), dma_x(e, sig, 0), dma_w(e, sig, 16384, 1), dma_x(e, sig, 1)]
    l = []
    if sig == 7: l.append(lambda: e(f"v_mov_b32 v{GA}, v{GB}\nv_mov_b32 v{GA+1}, v{GB+1}\nv_mov_b32 v{GS}, {32*3584}"))
    l += [dma_w(e, sig, 0, 0, 2 if sig == 7 else False), dma_w(e, sig, 0, 1)]
    if sig < 10: l += [dma_w(e, sig, 16384, 0), dma_w(e, sig, 16384, 1)]
    return l

def late_touch(e):
    if P('GTS', 0):
        e(f"s_xor_b32 s{S_TS}, s{S_TS}, {OOB}")
        e.vm(f"buffer_load_dword v{TD}, v{TA}, s[{SRD_T}:{SRD_T+3}], s{S_TS} offen", "t")

def h_off(line, dst):
    return f"""s_lshl_b32 s6, s{S_RB}, 2
s_add_u32 s6, s6, s{S_RT}
s_mul_i32 s6, s6, 144
s_lshl_b32 s{dst}, s{line}, 2
s_add_u32 s6, s6, s{dst}
s_add_u32 s6, s6, s{S_T0}
s_lshl_b32 s{dst}, s6, 10
s_add_u32 s{dst+1}, s{dst}, 1024"""
H_A, H_B = 10, 12
S_QO = 14
def f_scalars():
    return f"""s_lshr_b32 s6, s{S_J}, 3
s_lshl_b32 s7, s{S_RB}, 1
s_add_u32 s6, s6, s7
s_and_b32 s7, s{S_J}, 7
s_mul_i32 s{S_A}, s{S_W}, 6
s_lshl_b32 s{S_K1}, s{S_W}, 1
s_add_u32 s{S_K1}, s{S_K1}, 44
s_lshl_b32 s{S_K1}, s{S_K1}, 10
s_lshl_b32 s{S_FQ}, s{S_K1}, 1
s_mul_i32 s{S_FB0}, s6, 288
s_add_u32 s{S_FB0}, s{S_FB0}, s{S_A}
s_lshl_b32 s{S_FB0}, s{S_FB0}, 10
s_add_u32 s{S_FB1}, s{S_FB0}, {144*1024}
s_bitcmp1_b32 s{S_W}, 0
s_cselect_b32 s{S_B}, s{S_FB1}, s{S_FB0}
s_cselect_b32 s{S_FB1}, s{S_FB0}, s{S_FB1}
s_mov_b32 s{S_FB0}, s{S_B}
s_mul_i32 s{S_FA}, s7, 144
s_add_u32 s{S_FA}, s{S_FA}, s{S_A}
s_lshl_b32 s{S_FA}, s{S_FA}, 11
s_add_u32 s{S_FA}, s{S_FA}, {W2T}
s_lshr_b32 s{S_A}, s{S_W}, 1
s_lshl_b32 s{S_A}, s{S_A}, 3
s_mul_i32 s{S_OA}, s7, 144
s_add_u32 s{S_OA}, s{S_OA}, s{S_A}
s_add_u32 s{S_OA}, s{S_OA}, 112
s_lshl_b32 s{S_OA}, s{S_OA}, 11
s_add_u32 s{S_OA}, s{S_OA}, {W2T}
s_and_b32 s{S_B}, s{S_W}, 1
s_lshl_b32 s{S_B}, s{S_B}, 12
s_add_u32 s{S_OA}, s{S_OA}, s{S_B}
s_lshl_b32 s{S_OL}, s{S_W}, 12"""

def attn_scalars():
    return f"""s_lshl_b32 s{S_WB4}, s{S_W}, 12
s_lshl_b32 s6, s{S_CG}, 5
s_add_u32 s6, s6, s{S_RT}
s_lshl_b32 s6, s6, 12
s_add_u32 s{S_KVO}, s6, {KVF}
s_lshl_b32 s6, s{S_RB}, 2
s_add_u32 s6, s6, s{S_RT}
s_lshl_b32 s7, s6, 4
s_add_u32 s7, s7, s{S_J}
s_lshl_b32 s7, s7, 11
s_add_u32 s{S_QO}, s7, {QF}
s_mul_i32 s6, s6, 144
s_lshl_b32 s7, s{S_J}, 1
s_add_u32 s6, s6, s7
s_add_u32 s6, s6, s{S_CG}
s_add_u32 s6, s6, 112
s_lshl_b32 s{S_OO}, s6, 10"""

def phaseB(e):
    T = TM
    for f in (stage_dmas(e, 0)[1:] if not P('XE', 1) else stage_dmas(e, 0)[1::2]): f()
    if 'arr' in X:
        order = os.environ.get("ARR", "D1 D2 W0 D3 W1 D4 W2 D5 W3 D6 W4 W5 W6").split()
        for it in order:
            k = int(it[1:])
            if it[0] == 'D':
                for f in stage_dmas(e, k): f()
            elif it[0] == 'T': touch(e, k)()
            elif it[0] == 'G': gtouch(e, k)()
            elif it[0] == 'L': late_touch(e)
            elif it[0] == 'A': e.all_vm(); e.stamp()
            else: e.wvm(f"d{k}"); e("s_barrier"); e.stamp()
        srd(e, SRD_WS, P_WS, WS_END)
        e.stamp()
        e("s_branch K_fin2")
        global STAMPS_OFF; STAMPS_OFF = True
    e.stamp("xs2")
    e(f"s_mov_b32 s6, {EPO}\ns_load_dword s{S_NON}, s[{P_WS}:{P_WS+1}], s6")
    if TOUCH == 2: touch(e, 1)()
    for f in stage_dmas(e, 1): f()
    if TOUCH == 1: touch(e, 1)()
    late_touch(e)
    e.stamp("xs3")
    e(f"""s_and_b32 s{S_RT}, s{S_W}, 3
s_lshr_b32 s{S_CG}, s{S_W}, 2
s_lshl_b32 s{S_T0}, s{S_CG}, 1
s_add_u32 s{S_T1}, s{S_T0}, 1
s_xor_b32 s{S_A}, s{S_RT}, s{S_CG}
s_mov_b32 s{S_MASK}, 0xffff0000
s_mov_b32 s{S_HI}, 0
s_mov_b32 s{S_HI+1}, -1
v_lshlrev_b32 v{VL16}, 4, v0
v_and_b32 v{T}, 31, v0
v_lshrrev_b32 v{T+1}, 5, v0
v_bfe_u32 v{T+2}, v0, 1, 3
v_xor_b32 v{T+2}, v{T+2}, v{T+1}
v_lshlrev_b32 v{T+2}, 4, v{T+2}
v_lshl_add_u32 v{T+2}, v{T}, 7, v{T+2}
s_lshl_b32 s6, s{S_RT}, 12
s_lshl_b32 s{S_B}, s{S_A}, 5
s_or_b32 s6, s6, s{S_B}
v_xor_b32 v{XA}, s6, v{T+2}""")
    for pos in range(1, 4): e(f"v_xor_b32 v{XA+pos}, {pos<<5}, v{XA}")
    e(f"""v_bfe_u32 v{G+1}, v0, 2, 2
v_lshl_add_u32 v{WB}, v{T+1}, 3, v{G+1}
v_lshlrev_b32 v{WB}, 8, v{WB}
s_lshl_b32 s{S_A}, s{S_A}, 12
v_add_u32 v{WB}, s{S_A}, v{WB}
s_cmp_eq_u32 s{S_ISQ}, 1
s_cselect_b32 s{S_A}, 56, 32
s_cselect_b32 s{S_B}, 5, 7
s_cselect_b32 s{S_C}, 0x88880000, 0
s_mov_b32 s{S_D}, s{S_C}
s_add_u32 s6, s{S_SH}, 4
v_bfe_u32 v{T}, v0, 4, 1
v_and_b32 v{T+1}, 3, v0
v_lshlrev_b32 v{T}, s{S_B}, v{T}
v_lshl_add_u32 v{T}, v{T+1}, 3, v{T}
v_lshlrev_b32 v{T+1}, s6, v{G+1}""")
    for i, st_ in ((0, S_T0), (1, S_T1)):
        e(f"""s_mul_i32 s6, s{st_}, s{S_A}
s_lshl_b32 s7, s{st_}, 3
s_sub_u32 s7, 248, s7
v_add_u32 v{T+2}, s6, v{T}
v_mov_b32 v{T+3}, s7
v_cndmask_b32 v{T+2}, v{T+2}, v{T+3}, s[{S_C}:{S_D}]
v_xor_b32 v{T+2}, v{T+2}, v{T+1}
v_add_u32 v{WA+4*i}, v{T+2}, v{WB}""")
    for i in range(2):
        for pos in range(1, 4): e(f"v_xor_b32 v{WA+4*i+pos}, {pos<<12}, v{WA+4*i}")
    e(f"""v_bfe_u32 v{T}, v0, 4, 1
v_and_b32 v{T+1}, 15, v0
v_cmp_eq_u32 vcc, v{T}, v{T+1}
v_mov_b32 v{T}, 0x3f803f80
s_nop 0
v_cndmask_b32 v{SEL}, 0, v{T}, vcc
v_mov_b32 v{SEL+1}, v{SEL}
v_mov_b32 v{SEL+2}, v{SEL}
v_mov_b32 v{SEL+3}, v{SEL}""")
    w2t_addr = f"""s_mul_i32 s6, s{S_RB}, 12
s_add_u32 s6, s6, s{S_LA}
s_lshl_b32 s7, s{S_RB}, 2
s_add_u32 s7, s7, s{S_QU}
s_min_u32 s7, s7, 59
s_add_u32 s{S_A}, s7, 136
s_cmp_eq_u32 s{S_ISQ}, 1
s_cselect_b32 s6, s{S_A}, s6
s_cselect_b32 s7, s7, 63
s_mul_hi_u32 s{S_A}, s6, {(2**32 + 27)//28}
s_mul_i32 s{S_B}, s{S_A}, 28
s_sub_u32 s{S_B}, s6, s{S_B}
s_lshr_b32 s{S_C}, s7, 3
s_and_b32 s{S_D}, s7, 7
s_add_u32 s{S_D}, s{S_D}, 28
s_cmp_lt_u32 s7, 56
s_cselect_b32 s6, s{S_C}, s{S_A}
s_cselect_b32 s{S_B}, s{S_D}, s{S_B}
s_lshl_b32 s{S_WF}, s6, 6
s_add_u32 s{S_WF}, s{S_WF}, s{S_B}
s_lshl_b32 s{S_A}, s{S_B}, 2
s_lshr_b32 s{S_B}, s{S_W}, 1
s_add_u32 s{S_A}, s{S_A}, s{S_B}
s_mul_i32 s{S_U}, s6, 144
s_add_u32 s{S_U}, s{S_U}, s{S_A}
s_lshl_b32 s{S_B}, s{S_A}, 4
s_sub_u32 s{S_C}, s{S_A}, 112
s_lshr_b32 s{S_D}, s{S_C}, 1
s_mul_i32 s{S_D}, s{S_D}, 28
s_and_b32 s{S_C}, s{S_C}, 1
s_lshl_b32 s{S_C}, s{S_C}, 4
s_add_u32 s{S_C}, s{S_C}, s{S_D}
s_mov_b32 s{S_D}, {448*896}
s_cmp_lt_u32 s{S_A}, 112
s_cselect_b32 s{S_B}, s{S_B}, s{S_C}
s_cselect_b32 s{SRD_T}, s{P_WD}, s{P_WO}
s_cselect_b32 s{SRD_T+1}, s{P_WD+1}, s{P_WO+1}
s_cselect_b32 s{SRD_T+2}, {1792*896}, s{S_D}
s_mov_b32 s{SRD_T+3}, 0x00020000
s_and_b32 s{S_C}, s{S_W}, 1
s_lshl_b32 s{S_C}, s{S_C}, 3
s_add_u32 s{S_B}, s{S_B}, s{S_C}
s_mul_i32 s{S_B}, s{S_B}, 896
s_lshl_b32 s6, s6, 7
s_add_u32 s{S_TO}, s{S_B}, s6
v_lshrrev_b32 v{TP}, 3, v0
v_mul_u32_u24 v{TP}, 896, v{TP}
v_and_b32 v{TP+1}, 7, v0
v_lshl_add_u32 v{VT}, v{TP+1}, 4, v{TP}"""
    late = (f"""s_add_u32 s{S_LB}, s{S_LA}, 12
s_add_u32 s6, s{S_QU}, 24
s_cmp_eq_u32 s{S_ISQ}, 1
s_cselect_b32 s{S_LB}, s6, s{S_LB}
""" if P("LBOLD", 1) else f"s_add_u32 s{S_LB}, s{S_J}, 12\n") + f"""v_lshrrev_b32 v{TP}, 4, v0
s_lshl_b32 s6, s{S_ROT}, 4
s_add_u32 s6, s6, s{S_W}
s_lshl_b32 s6, s6, 2
v_add_u32 v{TP+1}, s6, v{TP}
v_mul_u32_u24 v{TP+1}, 3584, v{TP+1}
v_lshlrev_b32 v{TP}, 1, v{TP}
v_xor_b32 v{TP}, v{TP}, v0
v_and_b32 v{GB}, 7, v{TP}
v_lshl_add_u32 v{TP+1}, v{GB}, 4, v{TP+1}
s_lshl_b32 s6, s{S_LB}, 7
v_add_u32 v{TP+1}, s6, v{TP+1}
v_and_b32 v{TP}, 8, v{TP}
v_cmp_eq_u32 vcc, 8, v{TP}
v_mov_b32 v{GB}, s{P_WG}
v_mov_b32 v{TP}, s{P_WU}
v_cndmask_b32 v{GB}, v{GB}, v{TP}, vcc
v_mov_b32 v{GB+1}, s{P_WG+1}
v_mov_b32 v{TP}, s{P_WU+1}
v_cndmask_b32 v{GB+1}, v{GB+1}, v{TP}, vcc
v_add_co_u32 v{GB}, vcc, v{GB}, v{TP+1}
v_bfe_u32 v{TP}, v0, 4, 1
v_and_b32 v{TP+1}, 3, v0
v_addc_co_u32 v{GB+1}, vcc, 0, v{GB+1}, vcc
v_lshlrev_b32 v{TP+1}, 3, v{TP+1}
v_lshl_add_u32 v{TP}, v{TP}, 7, v{TP+1}
v_bfe_u32 v{TP+1}, v0, 2, 2
v_lshlrev_b32 v{TP+1}, 5, v{TP+1}
v_xor_b32 v{TP}, v{TP}, v{TP+1}
s_lshl_b32 s6, s{S_T0}, 5
v_xor_b32 v{TP}, s6, v{TP}
v_add_u32 v{WB}, v{TP}, v{WB}
v_xor_b32 v{WB+1}, 32, v{WB}"""
    e.stamp("xs4")
    e(f"s_lshl_b32 s45, s{S_TG}, 3\ns_add_u32 s45, s45, {STAT}")
    if P("HOIST", 1):
        e(late); e(w2t_addr)
        e(h_off(S_LA, H_A)); e(h_off(S_LB, H_B))
        e(attn_scalars()); e(f_scalars())
    srd(e, SRD_WS, P_WS, WS_END)
    e("s_waitcnt lgkmcnt(0)")
    e(f"s_add_u32 s{S_NON}, s{S_NON}, 1")
    U = RW + 4; A_, B_ = RW, RW + 1
    e.wvm("row")
    for k in range(4): e(f"v_lshlrev_b32 v{U+2*k}, 16, v{RW+k}\nv_and_b32 v{U+2*k+1}, s{S_MASK}, v{RW+k}")
    e(f"v_add_f32 v{A_}, v{U}, v{U+1}\nv_mul_f32 v{B_}, v{U}, v{U}\nv_add_f32 v{A_+2}, v{U+2}, v{U+3}\nv_mul_f32 v{B_+2}, v{U+1}, v{U+1}")
    for k in (2, 4, 6): e(f"v_fmac_f32 v{B_}, v{U+k}, v{U+k}\nv_fmac_f32 v{B_+2}, v{U+k+1}, v{U+k+1}")
    e(f"""v_add_f32 v{U}, v{U+4}, v{U+5}
v_add_f32 v{U+1}, v{U+6}, v{U+7}
v_add_f32 v{A_}, v{A_}, v{A_+2}
v_add_f32 v{U}, v{U}, v{U+1}
v_add_f32 v{B_}, v{B_}, v{B_+2}
v_add_f32 v{A_}, v{A_}, v{U}
s_nop 0""")
    for d in ("row_shr:1 row_mask:0xf bank_mask:0xf bound_ctrl:0", "row_shr:2 row_mask:0xf bank_mask:0xf bound_ctrl:0",
              "row_shr:4 row_mask:0xf bank_mask:0xf bound_ctrl:0", "row_shr:8 row_mask:0xf bank_mask:0xf bound_ctrl:0",
              "row_bcast:15 row_mask:0xa bank_mask:0xf", "row_bcast:31 row_mask:0xc bank_mask:0xf"):
        e(f"v_add_f32_dpp v{B_}, v{B_}, v{B_} {d}\nv_add_f32_dpp v{A_}, v{A_}, v{A_} {d}\ns_nop 0")
    e(f"""v_mul_f32 v{A_}, {f2u(1.0/448)}, v{A_}
v_mul_f32 v{B_}, {f2u(1.0/448)}, v{B_}
v_fma_f32 v{B_}, -v{A_}, v{A_}, v{B_}
v_max_f32 v{B_}, 0, v{B_}
v_cvt_pk_bf16_f32 v{B_}, v{B_}, v{B_}
v_and_b32 v{B_}, s{S_MASK}, v{B_}
v_add_f32 v{B_}, {f2u(1e-5)}, v{B_}
v_cvt_pk_bf16_f32 v{B_}, v{B_}, v{B_}
v_and_b32 v{B_}, s{S_MASK}, v{B_}
v_sqrt_f32 v{B_}, v{B_}
v_mov_b32 v{U}, s45
v_cvt_pk_bf16_f32 v{A_}, -v{A_}, v{B_}
v_mov_b32 v{B_}, s{S_NON}
s_mov_b32 exec_lo, 0
s_mov_b32 exec_hi, 0x80000000""")
    e.vm(f"buffer_store_dwordx2 {vr(A_,2)}, v{U}, {WS}, 0 offen {SC}", "sts")
    e("s_mov_b64 exec, -1")
    e.stamp("xs5")
    if P("PRIO", 2) & 1: e(f"s_cmp_ge_u32 s{S_W}, 4\ns_cbranch_scc0 K_np\ns_setprio 1\nK_np:")
    e.wvm("d0")
    e("s_barrier")
    e.stamp("start")

    half = {'x': [0]*4, 'w': [0]*4}
    def reads(gp):
        if gp < 28: sig, sub, pos, reg = gp // 4, 0, gp % 4, 16384
        else:
            g = gp - 28; sig, sub, pos = 7 + g // 8, (g // 4) & 1, g % 4; reg = sub * 16384
        sl = sig % 4; h = sl >> 1; imm = (sl & 1) * RING
        buf = WF + 8 * (gp % 3)
        pre = []
        if 28 <= gp < 32:
            pre = [f"v_xor_b32 v{WA+4*i+pos}, {(pos << 12) | (h << 16)}, v{WB+i}" for i in range(2)]
            half['w'][pos] = h
        elif half['w'][pos] != h:
            pre = [f"v_xor_b32 v{WA+4*i+pos}, 0x10000, v{WA+4*i+pos}" for i in range(2)]
            half['w'][pos] = h
        if gp < 28 and half['x'][pos] != h:
            pre.append(f"v_xor_b32 v{XA+pos}, 0x10000, v{XA+pos}"); half['x'][pos] = h
        out = [(lambda l=l: e(l)) for l in pre]
        if gp < 28: out.append(lambda: e.ds(f"ds_read_b128 {vr(XR+4*gp,4)}, v{XA+pos} offset:{imm}", f"r{gp}"))
        for i in range(2):
            for u in range(2):
                out.append(lambda i=i, u=u: e.ds(f"ds_read_b64_tr_b16 {vr(buf+4*i+2*u,2)}, v{WA+4*i+pos} offset:{imm+reg+u*1024}", f"r{gp}"))
        return out
    def position(gp, side, dmaq, nside, barrier=None):
        p2 = gp >= 28; g = gp - 28 if p2 else gp
        acc = ACCB if p2 else ACCA
        buf = WF + 8 * (gp % 3); xr = XR + 4 * g
        e.wds(f"r{gp}")
        e(mfma(acc, buf, xr, "0" if g == 0 else None))
        if barrier: barrier()
        R = reads(gp + 2) if gp + 2 < 56 else []
        nx = 1 if gp + 2 < 28 else 0
        pre = R[:max(0, len(R) - 4 - nx)]; xrd = R[len(pre):len(pre) + nx]; tr = R[len(pre) + nx:]
        na = (nside + 1) // 2; nb = nside // 2
        for f in pre: f()
        if P("ORD", 1) == 0:
            for f in xrd + tr[:2]: f()
            side.emit(na)
            e(mfma(acc + 16, buf + 4, xr, "0" if g == 0 else None))
            for f in tr[2:]: f()
            if g % 4 == 0: e(mfma16(CSA, SEL, buf, "0" if g == 0 else None))
            if dmaq: dmaq.pop(0)()
            side.emit(nb)
            if g % 4 == 0: e(mfma16(CSA + 4, SEL, buf + 4, "0" if g == 0 else None))
        else:
            for f in tr[:1]: f()
            side.emit(min(2, na))
            for f in tr[1:2]: f()
            side.emit(na - min(2, na))
            e(mfma(acc + 16, buf + 4, xr, "0" if g == 0 else None))
            for f in tr[2:3]: f()
            side.emit(min(2, nb))
            for f in tr[3:]: f()
            side.emit(nb - min(2, nb))
            if g % 4 == 0 and 'nosel' not in X: e(mfma16(CSA, SEL, buf, "0" if g == 0 else None))
            for f in xrd: f()
            if g % 4 == 0 and 'nosel' not in X: e(mfma16(CSA + 4, SEL, buf + 4, "0" if g == 0 else None))
            if dmaq: dmaq.pop(0)()
    def stats(gp):
        x = XR + 4 * gp; c = lambda r: "0" if gp == 0 else vr(r, 4)
        return [mfma16(ST, SEL, x, c(ST)),
                f"v_mfma_f32_4x4x4_16b_bf16 {vr(SQA,4)}, {vr(x,2)}, {vr(x,2)}, {c(SQA)}\nv_mfma_f32_4x4x4_16b_bf16 {vr(SQB,4)}, {vr(x+2,2)}, {vr(x+2,2)}, {c(SQB)}"]
    def cs_write(dst):
        return [f"v_lshlrev_b32 v{G+8}, 4, v0", f"s_lshl_b32 s6, s{S_T0}, 9", f"s_lshl_b32 s{S_A}, s{S_RT}, 2",
                f"s_add_u32 s6, s6, s{S_A}", f"s_add_u32 s6, s6, {dst}", f"v_add_u32 v{G+8}, s6, v{G+8}",
                lambda: (e("s_mov_b64 exec, 0xffff"),
                         e.ds(f"ds_write_b32 v{G+8}, v{CSA}", "csw"), e.ds(f"ds_write_b32 v{G+8}, v{CSA+1} offset:256", "csw"),
                         e.ds(f"ds_write_b32 v{G+8}, v{CSA+4} offset:512", "csw"), e.ds(f"ds_write_b32 v{G+8}, v{CSA+5} offset:768", "csw"),
                         e("s_mov_b64 exec, -1"))]
    def cs_read(src):
        l = [f"v_and_b32 v{G+8}, 31, v0", f"v_lshlrev_b32 v{G+8}, 4, v{G+8}", f"s_lshl_b32 s6, s{S_T0}, 9", f"s_add_u32 s6, s6, {src}",
             f"v_add_u32 v{G+8}, s6, v{G+8}",
             lambda: e.ds(f"ds_read_b128 {vr(G,4)}, v{G+8}", "csr"), lambda: e.ds(f"ds_read_b128 {vr(G+4,4)}, v{G+8} offset:512", "csr")]
        m = [lambda: e.wds("csr")]
        for i in range(2):
            b = G + 4 * i
            m += [f"v_add_f32 v{b}, v{b}, v{b+1}", f"v_add_f32 v{b+2}, v{b+2}, v{b+3}"]
        for i in range(2): m += [f"v_add_f32 v{G+4*i}, v{G+4*i}, v{G+4*i+2}"]
        for i in range(2): m += [f"v_cvt_pk_bf16_f32 v{G+4*i+1}, v{G+4*i}, v{G+4*i}"]
        for i in range(2): m += [f"v_and_b32 v{G+4*i+1}, s{S_MASK}, v{G+4*i+1}"]
        for i in range(2): m += [f"v_sub_f32 v{G+4*i+1}, v{G+4*i}, v{G+4*i+1}"]
        for i in range(2): m += [f"v_cvt_pk_bf16_f32 v{G+4*i}, v{G+4*i}, v{G+4*i+1}"]
        for i in range(2): m += [f"v_cndmask_b32 v{ST+2*i}, v{G+4*i}, 0, s[{S_HI}:{S_HI+1}]"]
        return l, m

    KA = -2.0 * math.log2(math.e) * math.sqrt(2.0 / math.pi)
    GST = P("GST", 18)
    def stat_check():
        ok = e.newlabel("sok"); sp = e.newlabel("ssp")
        e.wvm("stl")
        e(f"v_cmp_ne_u32 vcc, s{S_NON}, v{BEXT+3}\ns_cbranch_vccz {ok}\ns_mov_b32 s{S_CNT}, {SPIN_MAX}")
        e.label(sp)
        e(f"""s_sleep 4
buffer_load_dwordx2 {vr(BEXT+2,2)}, v{G}, {WS}, 0 offen {SC}
s_sub_u32 s{S_CNT}, s{S_CNT}, 1
s_waitcnt vmcnt(0)
v_cmp_ne_u32 vcc, s{S_NON}, v{BEXT+3}
s_cmp_eq_u32 s{S_CNT}, 0
s_cbranch_scc1 {ok}
s_cbranch_vccnz {sp}""")
        if 'spincnt' in X: e(f"s_sub_u32 s88, {SPIN_MAX + 1000}, s{S_CNT}")
        e.label(ok)
    def after_exchange(side):
        l, m = cs_read(L_CSA)
        side.add(l)
        side.add(f"""v_and_b32 v{S_}, s{S_MASK}, v{BEXT+2}
v_and_b32 v{BEXT}, 0xffff, v{BEXT+2}
v_rcp_f32 v{R_}, v{S_}
v_lshl_or_b32 v{BEXT}, v{BEXT+2}, 16, v{BEXT}
v_mul_f32 v{I2}, v{S_}, v{S_}
v_mul_f32 v{AC}, {f2u(KA)}, v{R_}
v_mul_f32 v{BC}, v{R_}, v{R_}
v_mov_b32 v{ST+1}, 0
v_mul_f32 v{BC}, v{BC}, v{AC}
v_mov_b32 v{ST+3}, 0
v_mul_f32 v{BC}, {f2u(0.044715)}, v{BC}
v_mov_b32 v{BEXT+1}, 0
v_mov_b32 v{BEXT+2}, 0
v_mov_b32 v{BEXT+3}, 0""")
        side.add(m)
    for f in reads(0) + reads(1): f()
    side = Side(e); dmaq = list(stage_dmas(e, 2)) + ([touch(e, 2)] if TOUCH else [])
    w2side = Side(e)
    if GT & 4:
        w2side.add(f"""s_min_u32 s6, s{S_TG}, 895
s_cmp_ge_u32 s6, 448
s_cselect_b32 s{SRD_T}, s{P_WU}, s{P_WG}
s_cselect_b32 s{SRD_T+1}, s{P_WU+1}, s{P_WG+1}
s_cselect_b32 s7, 448, 0
s_mov_b32 s{SRD_T+2}, {448*3584}
s_sub_u32 s6, s6, s7
s_mul_i32 s6, s6, 3584
s_add_u32 s6, s6, 1536
v_and_b32 v{TA}, 15, v0
v_lshlrev_b32 v{TA}, 7, v{TA}""")
        w2side.add([lambda: e.vm(f"buffer_load_dword v{TD}, v{TA}, s[{SRD_T}:{SRD_T+3}], s6 offen", "t2")])
    if not P('HOIST', 1): w2side.add(late); w2side.add(w2t_addr)
    for gp in range(28):
        sig, pos = gp // 4, gp % 4
        bar = None
        if pos == 2:
            def bar(sig=sig):
                if sig == 6: side.flush(); stat_check(); e.wds("csw")
                e.wvm(f"d{sig+1}"); e("s_barrier")
                if sig == 6: after_exchange(side)
                assert not dmaq
                dmaq.extend(stage_dmas(e, sig + 3))
                if sig == 0 and TOUCH: dmaq.append(touch(e, 3))
        if gp == GST:
            side.add([f"s_lshl_b32 s{S_G}, s{S_RB}, 2", f"s_add_u32 s{S_G}, s{S_G}, s{S_RT}", f"s_lshl_b32 s{S_G}, s{S_G}, 8", f"s_add_u32 s{S_G}, s{S_G}, {STAT}",
                      f"v_and_b32 v{G}, 31, v0", f"v_lshl_add_u32 v{G}, v{G}, 3, s{S_G}",
                      lambda: e.vm(f"buffer_load_dwordx2 {vr(BEXT+2,2)}, v{G}, {WS}, 0 offen {SC}", "stl")])
        if gp == 25: assert not w2side.q; side.add(cs_write(L_CSA))
        n = len(side.q) if gp < 26 else P('NEX', 10)
        while len(dmaq) > 4 - ((pos + 2) % 4): dmaq.pop(0)()
        e.stamp(f"xp{gp}")
        w2side.emit(0 if gp < P('WS0', 0) else 5 if gp < 2 else P('WSR', 3))
        position(gp, side, dmaq, n, bar)
    assert not w2side.q
    side.add(["s_nop 1", mfma(ACCA, ST, BEXT), mfma(ACCA + 16, ST + 2, BEXT)])
    carry = list(side.q)
    e.stamp("p1")

    KA = -2.0 * math.log2(math.e) * math.sqrt(2.0 / math.pi); KB = KA * 0.044715
    def gelu(acc, so, tb, keep=None, pk=0):
        l = []
        if pk:
            pr = lambda r: vr(r, 2)
            for k in range(0, 8, 2): l.append(f"v_pk_mul_f32 {pr(tb+k)}, {pr(acc+k)}, {pr(acc+k)}")
            for k in range(0, 8, 2): l.append(f"v_pk_fma_f32 {pr(tb+k)}, {pr(tb+k)}, {pr(AC)}, {pr(AC)} op_sel:[0,1,0] op_sel_hi:[1,1,0]")
            for k in range(0, 8, 2): l.append(f"v_pk_mul_f32 {pr(tb+k)}, {pr(tb+k)}, {pr(acc+k)}")
            for k in range(0, 8, 2): l += [f"v_exp_f32 v{tb+k}, v{tb+k}", f"v_exp_f32 v{tb+k+1}, v{tb+k+1}", f"v_pk_mul_f32 {pr(acc+k)}, {pr(acc+k)}, {pr(acc+8+k)}"]
            for k in range(0, 8, 2): l.append(f"v_pk_fma_f32 {pr(tb+k)}, {pr(tb+k)}, {pr(I2-1)}, {pr(I2-1)} op_sel:[0,1,1] op_sel_hi:[1,1,1]")
            for k in range(8): l.append(f"v_rcp_f32 v{tb+k}, v{tb+k}")
            for k in range(0, 8, 2): l.append(f"v_pk_mul_f32 {pr(acc+k)}, {pr(acc+k)}, {pr(tb+k)}")
        else:
            for k in range(8): l.append(f"v_mul_f32 v{tb+k}, v{acc+k}, v{acc+k}")
            for k in range(8): l.append(f"v_fma_f32 v{tb+k}, v{tb+k}, v{BC}, v{AC}")
            for k in range(8): l.append(f"v_mul_f32 v{tb+k}, v{tb+k}, v{acc+k}")
            for k in range(8): l += [f"v_exp_f32 v{tb+k}, v{tb+k}", f"v_mul_f32 v{acc+k}, v{acc+k}, v{acc+8+k}"]
            for k in range(8): l.append(f"v_fma_f32 v{tb+k}, v{tb+k}, v{I2}, v{I2}")
            for k in range(8): l.append(f"v_rcp_f32 v{tb+k}, v{tb+k}")
            for k in range(8): l.append(f"v_mul_f32 v{acc+k}, v{acc+k}, v{tb+k}")
        if keep is not None:
            return l + [f"v_cvt_pk_bf16_f32 v{keep+k}, v{acc+2*k}, v{acc+2*k+1}" for k in range(4)]
        for k in range(4): l.append(f"v_cvt_pk_bf16_f32 v{acc+8+k}, v{acc+2*k}, v{acc+2*k+1}")
        l.append(lambda: e.vm(f"buffer_store_dwordx4 {vr(acc+8,4)}, v{VL16}, {WS}, s{so} offen {SC}", "hs"))
        return l
    def w2t_out(side):
        side.add(f"""v_lshrrev_b32 v{TP}, 5, v0
v_bfe_u32 v{TP+1}, v0, 2, 2
v_lshl_add_u32 v{TP}, v{TP}, 2, v{TP+1}
v_lshlrev_b32 v{TP}, 7, v{TP}
v_bfe_u32 v{TP+1}, v0, 4, 1
v_lshl_add_u32 v{TP}, v{TP+1}, 5, v{TP}
v_and_b32 v{TP+1}, 3, v0
v_lshl_add_u32 v{TP}, v{TP+1}, 3, v{TP}
s_lshr_b32 s6, s{S_W}, 1
s_lshl_b32 s6, s6, 11
s_and_b32 s{S_A}, s{S_W}, 1
s_lshl_b32 s{S_B}, s{S_A}, 6
s_add_u32 s6, s6, s{S_B}
s_add_u32 s6, s6, {L_W2T}
v_add_u32 v{TP}, s6, v{TP}""")
        side.add([lambda: (e.ds(f"ds_read_b64_tr_b16 {vr(PL,2)}, v{TP}", "w2tr"), e.ds(f"ds_read_b64_tr_b16 {vr(PL+2,2)}, v{TP} offset:1024", "w2tr")),
                  f"s_lshl_b32 s6, s{S_U}, 11", f"s_lshl_b32 s{S_A}, s{S_A}, 10", f"s_add_u32 s6, s6, s{S_A}", f"s_add_u32 s{S_TO}, s6, {W2T}",
                  lambda: (e.wds("w2tr"), e.vm(f"buffer_store_dwordx4 {vr(PL,4)}, v{VL16}, {WS}, s{S_TO} offen {SC}", "w2ts"))])
    GEND = P("GEND", 22); GW2 = P("GW2", 22); GFQ = P("GFQ", 9)
    GX, GBN, GFL, QRATE = P("GX", 0), P("GBN", 2), P("GFL", 6 if SPLITQ else 9), P("QRATE", 40)
    def pass2(qfirst):
        side = Side(e); dq = list(dmaq); side.q = list(carry)
        for g in range(28):
            gp = 28 + g
            pre = []; wd = []; wv = []; post = []
            if g == 0:
                if not qfirst and 'nogelu' in X: pass
                elif not qfirst:
                    side.add(["s_nop 7"])
                    ga = gelu(ACCA, H_A, G); gb = gelu(ACCA + 16, H_A + 1, G)
                    k = P('HSD', 68)
                    side.add(ga[:-1] + gb[:k] + ga[-1:] + gb[k:])
                else: qkv_part1(side)
            if g == 6:
                post.append(lambda: dq.extend(stage_dmas(e, 10) + [lambda: (e(f"s_add_u32 m0, s{S_WB}, {L_W2T}\ns_nop 0"),
                            e.vm(f"buffer_load_dwordx4 v{VT}, s[{SRD_T}:{SRD_T+3}], s{S_TO} offen lds", "w2td"))]))
            if g == GW2: wv.append("w2td")
            if g in (6, 14, 22): wv.append(f"d{8 + g // 8}")
            if qfirst and g == GBN: pre.append(side.flush); wd.append("kvw"); post.append(lambda: qkv_part2(side))
            if qfirst and g == GFQ and SPLITQ:
                pre.append(side.flush); wv.append("qs")
                post.append(lambda: flag_store(e, f"""s_lshl_b32 s6, s{S_RB}, 5
s_add_u32 s6, s6, s{S_QU}
s_lshl_b32 s6, s6, 2
s_add_u32 s6, s6, {F_Q}
v_mov_b32 v{TP}, s6""", 1, TP))
            if qfirst and g == GFL:
                if SPLITQ: pre.append(lambda: e(f"s_waitcnt vmcnt({len(e.q['vm']) - e.mark['kvs']})")); wd.append("kvw")
                else: pre.append(side.flush); wv.append("qs")
                post.append(lambda: flag_store(e, f"""s_lshl_b32 s6, s{S_RB}, 2
s_add_u32 s6, s6, s{S_QU}
s_lshl_b32 s6, s6, 2
s_add_u32 s6, s6, {F_KV}
v_lshlrev_b32 v{TP}, 8, v0
v_add_u32 v{TP}, s6, v{TP}""", RKV, TP))
            if g == GW2 + 1 and 'now2o' not in X:
                q0 = side.q; side.q = []; w2t_out(side); side.q += q0
            if g == 24: side.flush()
            if g == P("GKP", 27):
                poll_issue(e, f"""s_and_b32 s6, s2, {RKV-1}
s_lshl_b32 s6, s6, 8
s_add_u32 s6, s6, {F_KV}
v_lshl_add_u32 v{PL}, v0, 2, s6""" + (f"""
s_lshl_b32 s6, s{S_RB}, 5
s_add_u32 s6, s6, s{S_QU}
s_lshl_b32 s6, s6, 2
s_add_u32 s6, s6, {F_Q}
v_mov_b32 v{PL+2}, s6
buffer_load_dword v{PL+3}, v{PL+2}, {WS}, 0 offen {SC}""" if SPLITQ else ""), PL, PL + 1, "kvp")
            if g == 25 and 'nocs' not in X:
                side.flush(); side.add(cs_write(L_CSB))
            if g == 26 and 'nocs' not in X:
                pre.append(side.flush); wd.append("csw")
                def p():
                    l, m = cs_read(L_CSB); side.add(l); side.add(m)
                post.append(p)
            bar = None
            if wd or wv:
                def bar():
                    for f in pre: f()
                    if wd: e.wds(*wd)
                    if wv: e.wvm(*wv)
                    e("s_barrier")
                    for f in post: f()
            if qfirst: n = QRATE if g < 9 else 12
            else: n = -(-len(side.q) // max(1, GEND - g)) if g < GEND else 12
            e.stamp(f"xg{g}")
            position(gp, side, dq, n, bar)
        side.flush()
        e.stamp("xpe2")
        e("s_nop 1")
        e(mfma(ACCB, ST, BEXT)); e(mfma(ACCB + 16, ST + 2, BEXT))
    RQ = PL
    def qkv_part1(side):
        side.add(f"""v_mul_f32 v{RQ}, {f2u(28 ** -0.5 * math.log2(math.e))}, v{R_}
v_and_b32 v{G+8}, 31, v0
v_lshlrev_b32 v{G+8}, 5, v{G+8}
s_lshl_b32 s6, s{S_RT}, 10
s_add_u32 s6, s6, {L_KVB}
v_add_u32 v{G+8}, s6, v{G+8}
s_mov_b32 s{S_D}, 0x00003f80
s_cmp_lt_u32 s{S_QU}, 2
s_cselect_b32 s{S_C}, 0x3f803f80, s{S_D}
s_cselect_b32 s{S_D}, s{S_D}, 0
s_nop 1""")
        for i, st_ in ((0, S_T0), (1, S_T1)):
            acc = ACCA + 16 * i; b = G + 4 * i
            for k in range(4): side.add([f"v_mul_f32 v{b+k}, v{acc+12+k}, v{R_}"])
            side.add(f"""s_sub_u32 s6, 3, s{st_}
s_lshl_b32 s{S_A}, s{st_}, 2
s_lshr_b32 s{S_A}, 0x0132, s{S_A}
s_and_b32 s{S_A}, s{S_A}, 3
s_bitcmp1_b32 s{S_QU}, 0
s_cselect_b32 s6, s{S_A}, s6
s_cselect_b32 s{S_A}, s{S_A}, 0
s_lshl_b32 s6, s6, 3
v_cvt_pk_bf16_f32 v{b}, v{b}, v{b+1}
v_cvt_pk_bf16_f32 v{b+1}, v{b+2}, v{b+3}
v_add_u32 v{b+2}, s6, v{G+8}""")
            def wr(b=b):
                l = e.newlabel("nc")
                e(f"s_cmp_eq_u32 s{S_A}, 3\ns_cbranch_scc0 {l}\nv_mov_b32 v{b}, s{S_C}\nv_mov_b32 v{b+1}, s{S_D}")
                e.label(l)
                e(f"s_mov_b64 exec, s[{S_HI}:{S_HI+1}]")
                e.ds(f"ds_write_b64 v{b+2}, {vr(b,2)}", "kvw")
                e("s_mov_b64 exec, -1")
            side.add([wr])
    def qkv_part2(side):
        def kv():
            l = e.newlabel("kvs"); lv = e.newlabel("kvv"); ls = e.newlabel("kvt")
            e(f"""s_cmp_eq_u32 s{S_CG}, 0
s_cbranch_scc0 {l}
s_lshl_b32 s6, s{S_RB}, 2
s_add_u32 s6, s6, s{S_RT}
s_lshl_b32 s6, s6, 12
s_add_u32 s6, s6, {KVF}
s_lshl_b32 s{S_A}, s{S_RT}, 10
s_add_u32 s{S_A}, s{S_A}, {L_KVB}
s_cmp_lt_u32 s{S_QU}, 2
s_cbranch_scc0 {lv}
v_and_b32 v{G}, 31, v0
v_lshrrev_b32 v{G+1}, 5, v0
v_lshlrev_b32 v{G}, 5, v{G}
v_lshl_add_u32 v{G}, v{G+1}, 3, v{G}
v_add_u32 v{G}, s{S_A}, v{G}
ds_read2_b64 {vr(G+4,4)}, v{G} offset0:0 offset1:2
s_lshl_b32 s{S_A}, s{S_QU}, 10
s_add_u32 s6, s6, s{S_A}
v_mov_b32 v{G+2}, v{VL16}
s_branch {ls}""")
            e.label(lv)
            e(f"""v_lshrrev_b32 v{G}, 5, v0
v_bfe_u32 v{G+1}, v0, 4, 1
v_lshlrev_b32 v{G+2}, 10, v{G}
v_lshl_add_u32 v{G+2}, v{G+1}, 9, v{G+2}
v_lshlrev_b32 v{G}, 4, v{G}
v_lshl_add_u32 v{G}, v{G+1}, 2, v{G}
v_bfe_u32 v{G+1}, v0, 2, 2
v_add_u32 v{G}, v{G}, v{G+1}
v_lshlrev_b32 v{G}, 5, v{G}
v_and_b32 v{G+1}, 3, v0
v_lshl_add_u32 v{G}, v{G+1}, 3, v{G}
v_add_u32 v{G}, s{S_A}, v{G}
ds_read_b64_tr_b16 {vr(G+4,2)}, v{G}
ds_read_b64_tr_b16 {vr(G+6,2)}, v{G} offset:256
v_and_b32 v{G+1}, 15, v0
v_lshl_add_u32 v{G+2}, v{G+1}, 4, v{G+2}
s_and_b32 s{S_A}, s{S_QU}, 1
s_lshl_b32 s{S_A}, s{S_A}, 8
s_add_u32 s6, s6, s{S_A}
s_add_u32 s6, s6, 2048""")
            e.label(ls)
            e(f"s_waitcnt lgkmcnt(0)\nbuffer_store_dwordx4 {vr(G+4,4)}, v{G+2}, {WS}, s6 offen {SC}")
            e.label(l)
            e.mark['kvs'] = len(e.q['vm'])
        side.add([kv])
        side.add(f"""s_lshl_b32 s6, s{S_RB}, 2
s_add_u32 s6, s6, s{S_RT}
s_lshl_b32 s6, s6, 2
s_add_u32 s6, s6, s{S_QU}
s_lshl_b32 s6, s6, 2
s_add_u32 s6, s6, s{S_T0}
s_lshl_b32 s6, s6, 11
s_add_u32 s{S_C}, s6, {QF}""")
        for i in range(2):
            acc = ACCA + 16 * i
            if P('PK', 0) & 4:
                for k in range(0, 16, 2): side.add([f"v_pk_mul_f32 {vr(acc+k,2)}, {vr(acc+k,2)}, {vr(RQ,2)} op_sel_hi:[1,0]"])
            else:
                for k in range(16): side.add([f"v_mul_f32 v{acc+k}, v{acc+k}, v{RQ}"])
            for k in range(8): side.add([f"v_cvt_pk_bf16_f32 v{acc+k}, v{acc+2*k}, v{acc+2*k+1}"])
            side.add([f"v_cndmask_b32 v{acc+6}, v{acc+6}, 0, s[{S_HI}:{S_HI+1}]", f"v_cndmask_b32 v{acc+7}, v{acc+7}, 0, s[{S_HI}:{S_HI+1}]",
                      lambda acc=acc, i=i: e.vm(f"buffer_store_dwordx4 {vr(acc,4)}, v{VL16}, {WS}, s{S_C} offen offset:{2048*i} {SC}", "qs"),
                      lambda acc=acc, i=i: e.vm(f"buffer_store_dwordx4 {vr(acc+4,4)}, v{VL16}, {WS}, s{S_C} offen offset:{2048*i+1024} {SC}", "qs")])
    e(f"s_cmp_eq_u32 s{S_ISQ}, 1\ns_cbranch_scc1 B_p2q")
    sn = e.snap(); hs = {k: list(v) for k, v in half.items()}; ns = e.nst
    pass2(False)
    e("s_branch B_join")
    e.label("B_p2q")
    e.nst = ns
    e.restore(sn); half.update({k: list(v) for k, v in hs.items()})
    pass2(True)
    e.label("B_join")
    e.q = {'ds': [], 'vm': []}; e.done = {'ds': 0, 'vm': 0}; e.mark['kvp'] = 0
    e.stamp("join")
    return gelu, h_off

LB0, LB1, VO = 3, 4, 5
Q, O, S0, PP, K, V0, V1 = 36, 44, 64, 96, 104, 112, 120
FA, FB = 128, 192
XRES = 244
S_KH, S_QT = S_CG, S_RT
F0 = P("F0", 8)
FP = P("FP", 2)
HBP = P("HBP", 10)
F3 = P("F3", 40)
WOP = 18

def kv_dma(e, st):
    def m(): e(f"s_add_u32 m0, s{S_WB4}, {((st + 3) % 4) * RING}" + ("\ns_nop 0" if st < 3 else ""))
    m.scalar = True
    l = [m]
    for f in range(4):
        l.append(lambda f=f: (e.vm(f"buffer_load_dwordx4 v{VL16}, {WS}, s{S_KVO} offen offset:{1024*f} {SC} lds", f"k{st}"),
                              e(f"s_add_u32 s{S_KVO}, s{S_KVO}, 16384") if f == 3 else None))
    return l

NB = P("NB", 4)
FBUF = [[FB + 16 * n + 4 * k for k in range(4)] for n in range(3)] + [[60, 124, 248, 252]]
def f_loads(e, q):
    bb = FBUF[q % NB]
    r = q if q < 6 else q - 6
    advA = advB = None
    if q == 5:
        advA = f"s_add_u32 s{S_FA}, s{S_FA}, s{S_FQ}"
        advB = f"s_add_u32 s{S_FB0}, s{S_FB0}, s{S_K1}\ns_add_u32 s{S_FB1}, s{S_FB1}, s{S_K1}"
    else:
        if r & 1: advA = f"s_add_u32 s{S_FA}, s{S_FA}, 4096"
        if (r & 3) == 3: advB = f"s_add_u32 s{S_FB0}, s{S_FB0}, 4096\ns_add_u32 s{S_FB1}, s{S_FB1}, 4096"
    return [lambda: e.vm(f"buffer_load_dwordx4 {vr(bb[0],4)}, v{VL16}, {WS}, s{S_FA} offen offset:{(r&1)*2048} {SC}", f"f{q}"),
            lambda: e.vm(f"buffer_load_dwordx4 {vr(bb[2],4)}, v{VL16}, {WS}, s{S_FB0} offen offset:{(r&3)*1024} {SC}", f"f{q}"),
            lambda: (e.vm(f"buffer_load_dwordx4 {vr(bb[1],4)}, v{VL16}, {WS}, s{S_FA} offen offset:{(r&1)*2048+1024} {SC}", f"f{q}"),
                     e(advA) if advA else None),
            lambda: (e.vm(f"buffer_load_dwordx4 {vr(bb[3],4)}, v{VL16}, {WS}, s{S_FB1} offen offset:{(r&3)*1024} {SC}", f"f{q}"),
                     e(advB) if advB else None)]
def f_mfma(q, k):
    bb = FBUF[q % NB]; r2, d2 = ((0, 0), (0, 1), (1, 1), (1, 0))[k]
    return mfma(FA + 32*r2 + 16*d2, bb[d2], bb[2 + r2], "0" if q == 0 else None)

OAREG = [8 + 4 * k for k in range(7)] + [FB + 4 * k for k in range(9)]
def oa_dma(e, n):
    def f():
        if n == 0: e(f"s_add_u32 m0, s{S_OL}, {3 * RING}\ns_nop 0")
        if n == 4: e(f"s_mov_b32 m0, s{S_OL}\ns_add_u32 s{S_OA}, s{S_OA}, 8192")
        e.vm(f"buffer_load_dwordx4 v{VL16}, {WS}, s{S_OA} offen offset:{(n & 3) * 1024} {SC} lds", "oa")
    return f
KVPRE = P('KVPRE', 2)
HDEF = P('HDEF', 1); HFL = P('HFL', 6 if HDEF else 2); S_HO = 47
def attn_setup(e, gelu, h_off):
    g0 = gelu(ACCB, S_C, G, 16 if HDEF else None, P('PK', 0) & 1); g1 = gelu(ACCB + 16, S_D, G + 8, 20 if HDEF else None, P('PK', 0) & 1)
    nfirst = P("GFIRST", 0)
    both = g0 + g1
    if P('GIL', 1): both = [x for p in zip(g0, g1) for x in p]
    for it in both[:nfirst]: it() if callable(it) else e(it)
    assert nfirst == 0
    poll_check(e, PL, PL + 1, "kvp", P("KSLEEP", 1))
    if SPLITQ: poll_check(e, PL + 2, PL + 3, "kvp", P("KSLEEP", 1))
    e.all_vm()
    e("s_barrier")
    e.stamp("xkv")
    flag_store(e, f"""s_lshl_b32 s6, s{S_RB}, 5
s_add_u32 s6, s6, s{S_J}
s_lshl_b32 s6, s6, 2
s_add_u32 s6, s6, {F_H + 64}
s_lshl_b32 s{S_A}, s{S_WF}, 2
s_add_u32 s{S_A}, s{S_A}, {F_W}
s_sub_u32 s{S_A}, s{S_A}, s6
v_mul_lo_u32 v{PL}, v0, s{S_A}
v_add_u32 v{PL}, s6, v{PL}""", 2, PL)
    if P("KVT", 0):
        e(f"""s_lshr_b32 s6, s2, 3
s_lshl_b32 s6, s6, 3
s_add_u32 s6, s6, s{S_W}
s_lshl_b32 s6, s6, 10
s_add_u32 s6, s6, {KVF}
v_and_b32 v{TP}, 7, v0
v_lshlrev_b32 v{TP}, 7, v{TP}""")
        e.vm(f"buffer_load_dword v{TP+1}, v{TP}, {WS}, s6 offen {SC}", "kvt")
    side = Side(e)
    side.add(kv_dma(e, 0))
    side.add([lambda: e.vm(f"buffer_load_dwordx4 {vr(Q,4)}, v{VL16}, {WS}, s{S_QO} offen {SC}", "q"),
              lambda: e.vm(f"buffer_load_dwordx4 {vr(Q+4,4)}, v{VL16}, {WS}, s{S_QO} offen offset:1024 {SC}", "q")])
    side.emit(P("KPRE0", 7))
    for st in range(1, KVPRE): side.add(kv_dma(e, st))
    for n, it in enumerate(both[nfirst:]):
        it() if callable(it) else e(it)
        if n % P('GSP', 1000) == P('GSP', 1000) - 1: side.emit(1)
        if n == 68: e.stamp("xg69")
    e.stamp("xgv")
    side.flush()
    e(f"""s_lshl_b32 s6, s{S_KH}, 14
v_add_u32 v{LB0}, s6, v{VL16}
v_add_u32 v{LB1}, 0x10000, v{LB0}""")

def rd(e, dst, tile, f, tag):
    sl = (tile // 4 + 3) % 4
    e.ds(f"ds_read_b128 {vr(dst,4)}, v{LB0 if sl < 2 else LB1} offset:{(sl & 1) * RING + (tile % 4) * 4096 + f * 1024}", tag)

def attn_loop(e, withF):
    e.stamp("xge")
    if P("PRIO", 2) == 2:
        l = e.newlabel("np"); e(f"s_cmp_ge_u32 s{S_W}, 4\ns_cbranch_scc0 {l}\ns_setprio 1"); e.label(l)
    if P("PRIO", 2) == 5: e("s_setprio 0")
    e.wvm("k0", "q"); e.stamp("xk0"); e("s_barrier")
    e.stamp("astart")
    rd(e, K, 0, 0, "a"); rd(e, K + 4, 0, 1, "a"); rd(e, V0, 0, 2, "b")
    e.wds("a")
    e(mfma(S0, K, Q, "0")); e(mfma(S0, K + 4, Q + 4))
    rd(e, K, 1, 0, "b"); rd(e, K + 4, 1, 1, "b")
    e("s_nop 9")
    NT = 32
    fq = []
    nq = 0
    dq = []
    fi = 0
    need = {}; keep = []; done = [0]
    for i in range(NT):
        sc = S0 + 16 * (i & 1); sn = S0 + 16 * ((i + 1) & 1)
        v0c = V0 + 4 * (i & 1); v0n = V0 + 4 * ((i + 1) & 1)
        E = lambda r: f"v_exp_f32 v{r}, v{r}"
        C = lambda d, r: f"v_cvt_pk_bf16_f32 v{d}, v{r}, v{r+1}"
        def g(k): return [E(sc + 4*k + q) for q in range(4)] + [C(PP + 2*k, sc + 4*k), C(PP + 2*k + 1, sc + 4*k + 2)]
        g0, g1, g2, g3 = g(0), g(1), g(2), g(3)
        fm = []; fl = []
        if withF:
            if i == FP - 2:
                assert FP % 4 == 2
                fl = [lambda: poll_issue(e, f"""s_lshl_b32 s6, s{S_RB}, 7
s_add_u32 s6, s6, {F_H + 64}
s_and_b32 s7, s{S_J}, 7
s_lshl_b32 s7, s7, 8
s_add_u32 s7, s7, {F_W - 64}
v_lshl_add_u32 v{G}, v0, 2, s6
v_lshl_add_u32 v{G+1}, v0, 2, s7
v_mov_b32 v{G+2}, s6
s_mov_b32 s{S_A}, 0xffff0000
s_mov_b32 s{S_B}, 0x00000fff
s_mov_b32 s{S_C}, 0x00008888
s_mov_b32 s{S_D}, 0xfffff000
v_cndmask_b32 v{G}, v{G}, v{G+1}, s[{S_A}:{S_B}]
v_cndmask_b32 v{G}, v{G}, v{G+2}, s[{S_C}:{S_D}]""", G, G + 1, "hp")]
            if FP <= i < F0:
                if i == FP:
                    for q in range(NB - 1): fq += f_loads(e, q)
                n = -(-len(fq) // (F0 - i))
                fl = fq[:n]; fq = fq[n:]
            pb = []
            if i == HBP - 2:
                pb = [lambda: poll_issue(e, f"""s_lshl_b32 s6, s{S_RB}, 7
s_add_u32 s6, s6, {F_H}
v_and_b32 v{G}, 15, v0
v_lshl_add_u32 v{G}, v{G}, 2, s6""", G, G + 1, "hb")]
            if i == WOP - 2:
                pb = [lambda: poll_issue(e, f"""s_and_b32 s6, s{S_J}, 7
s_lshl_b32 s6, s6, 8
s_add_u32 s6, s6, {F_W + 112}
v_and_b32 v{G}, 7, v0
v_lshl_add_u32 v{G}, v{G}, 2, s6""", G, G + 1, "wo")]
            if i >= F0:
                cnt = 3 if i >= F3 else 2
                idx = list(range(fi, min(fi + cnt, 56))); fi += len(idx)
                fm = [(n // 4, n % 4) for n in idx]
                for (q, k) in fm:
                    if k == 0 and q + NB - 1 < 14:
                        if q + NB - 1 == 6: assert i > HBP
                        nl = f_loads(e, q + NB - 1)
                        for f in nl: need[id(f)] = 4 * q
                        keep.extend(nl); fq += nl
                n = min(len(fq), cnt)
                fl = fq[:n] + pb; fq = fq[n:]
        def em(x): x() if callable(x) else e(x)
        e.stamp(f"xa{i}")
        ex = [E(sc + k) for k in range(16)]; cv = [C(PP + k, sc + 2 * k) for k in range(8)]
        if i + KVPRE <= 2: dq += kv_dma(e, i + KVPRE)
        misc = []
        if i == 29: misc.append(comb_addr())
        if HDEF and i in (HDEF, HDEF + 1):
            misc.append(lambda i=i: e.vm(f"buffer_store_dwordx4 {vr(16 + 4*(i - HDEF),4)}, v{VL16}, {WS}, s{H_B} offen offset:{1024*(i - HDEF)} {SC}", "hs"))
        if withF and 22 <= i < 30: misc.append(oa_dma(e, i - 22))
        gate = withF and i == FP
        def take(n):
            for _ in range(n):
                if fl and need.get(id(fl[0]), 0) <= done[0]: em(fl.pop(0))
        per = -(-len(fl) // 2)
        for x in ex[0:2]: em(x)
        def fmf(n):
            if n < len(fm):
                q, k = fm[n]
                e.wvm(f"f{q}"); e(f_mfma(q, k)); done[0] += 1
        if fm and fm[0][1] == 0: e.wboth(f"f{fm[0][0]}")
        else: e.all_ds()
        if i > 0: e(mfma(O, V1, PP + 4))
        rd(e, V1, i, 3, "c")
        for x in ex[2:5]: em(x)
        fmf(0)
        if not gate: take(1 if fm else per)
        for x in cv[0:2] + ex[5:7]: em(x)
        if i + 1 < NT: e(mfma(sn, K, Q, "0")); rd(e, v0n, i + 1, 2, "c")
        for x in ex[7:10]: em(x)
        if i + 1 < NT: e(mfma(sn, K + 4, Q + 4))
        if i % 4 == 2 and i + 2 < NT:
            st = i // 4
            if withF and i == FP: poll_check(e, G, G + 1, "hp")
            if withF and i == HBP: poll_check(e, G, G + 1, "hb")
            if withF and i == WOP: poll_check(e, G, G + 1, "wo")
            while dq and i == 2: dq.pop(0)()
            e.wvm(*([f"k{st+1}"] + (["hs"] if i == HFL else []))); e("s_barrier")
            if i == HFL:
                flag_store(e, f"""s_lshl_b32 s6, s{S_RB}, 5
s_add_u32 s6, s6, s{S_J}
s_lshl_b32 s6, s6, 2
s_add_u32 s6, s6, {F_H}
v_mov_b32 v{G+2}, s6""", 1, G + 2)
            assert not dq
            if st + 3 <= 7: dq += kv_dma(e, st + 3)
        if i + 2 < NT: rd(e, K, i + 2, 0, "c"); rd(e, K + 4, i + 2, 1, "c")
        if dq and getattr(dq[0], "scalar", False): dq.pop(0)()
        for x in cv[2:4] + ex[10:12]: em(x)
        fmf(1)
        take(1 if fm else len(fl) if not gate else per)
        for x in ex[12:14] + cv[4:6]: em(x)
        e(mfma(O, v0c, PP, "0" if i == 0 else None))
        for _ in range(1 if i >= 2 else 2):
            if dq: dq.pop(0)()
        if len(fm) < 3: take(len(fl))
        for x in misc: em(x)
        for x in ex[14:16] + cv[6:7]: em(x)
        fmf(2); take(len(fl))
        fq = fl + fq
        em(cv[7])
        if i + 2 >= NT: e("s_nop 1")
    e.all_ds()
    e("s_nop 0")
    e(mfma(O, V1, PP + 4))
    return fi, fq

CMB = L_W2T
def comb_addr():
    T = G
    return f"""s_lshl_b32 s6, s{S_W}, 11
s_add_u32 s6, s6, {CMB}
v_add_u32 v{T}, s6, v{VL16}
v_xor_b32 v{T+1}, 8192, v{T}
s_lshl_b32 s6, s{S_W}, 8
s_add_u32 s6, s6, {CMB + 16384}
v_lshl_add_u32 v{T+2}, v0, 2, s6
v_or_b32 v{T+3}, 32, v0
s_lshl_b32 s6, s{S_QT}, 8
s_add_u32 s6, s6, {CMB + 16384}
v_lshl_add_u32 v{T+3}, v{T+3}, 2, s6
s_mov_b32 s{S_C}, {f2u(2.0 ** -64)}
s_mov_b32 s{S_D}, {f2u(2.0 ** 64)}
s_lshl_b32 s6, s{S_RB}, 9
s_add_u32 s6, s6, s{S_J}
s_lshl_b32 s6, s6, 2
s_add_u32 s6, s6, {F_O2}
v_lshl_add_u32 v6, v0, 7, s6
v_mov_b32 v7, s{S_NON}"""

def attn_finish(e, withF=False):
    T = G
    e.stamp("aend")
    hi = e.newlabel("chi"); jn = e.newlabel("cjn"); fb = e.newlabel("cfb"); bk = e.newlabel("cbk")
    e(f"s_cmp_eq_u32 s{S_KH}, 0\ns_nop 10")
    e.ds(f"ds_write_b32 v{T+2}, v{O+12}")
    e(f"s_cbranch_scc0 {hi}")
    e.ds(f"ds_write_b128 v{T}, {vr(O+8,4)}"); e.ds(f"ds_write_b128 v{T}, {vr(O+12,4)} offset:1024")
    e(f"s_branch {jn}")
    e.label(hi)
    e(f"ds_write_b128 v{T}, {vr(O,4)}\nds_write_b128 v{T}, {vr(O+4,4)} offset:1024")
    e.all_ds()
    for k in range(8): e(f"v_mov_b32 v{O+k}, v{O+8+k}")
    e.label(jn)
    if withF: e.wboth("oa")
    else: e.all_ds()
    e.stamp("xc0")
    e("s_barrier")
    e.stamp("xc1")
    e.ds(f"ds_read2st64_b32 {vr(PP,2)}, v{T+3} offset0:0 offset1:4", "l")
    e.ds(f"ds_read_b128 {vr(S0,4)}, v{T+1}", "h0"); e.ds(f"ds_read_b128 {vr(S0+4,4)}, v{T+1} offset:1024", "h1")
    e(f"s_mov_b32 s{S_A}, 0\ns_sub_u32 s{S_B}, 0, s{S_KH}")
    e.wds("l")
    e(f"""v_add_f32 v{PP}, v{PP}, v{PP+1}
v_rcp_f32 v{PP+1}, v{PP}
v_cmp_nle_f32 vcc, s{S_C}, v{PP}
v_cmp_nge_f32 s[{S_E}:{S_F}], s{S_D}, v{PP}""")
    e.all_ds()
    for k in range(8): e(f"v_add_f32 v{S0+k}, v{S0+k}, v{O+k}")
    e(f"s_or_b64 s[{S_E}:{S_F}], s[{S_E}:{S_F}], vcc")
    for k in range(8): e(f"v_mul_f32 v{S0+k}, v{S0+k}, v{PP+1}")
    def pack_store():
        for k in range(4): e(f"v_cvt_pk_bf16_f32 v{K+k}, v{S0+2*k}, v{S0+2*k+1}")
        e(f"""v_cndmask_b32 v{K+2}, v{K+2}, 0, s[{S_A}:{S_B}]
v_cndmask_b32 v{K+3}, v{K+3}, 0, s[{S_A}:{S_B}]""")
    pack_store()
    e.vm(f"buffer_store_dwordx4 {vr(K,4)}, v{VL16}, {WS}, s{S_OO} offen {SC}", "os")
    e(f"""v_add_f32 v{PP+2}, |v{S0}|, |v{S0+1}|
v_add_f32 v{PP+3}, |v{S0+2}|, |v{S0+3}|
v_add_f32 v{PP+4}, |v{S0+4}|, |v{S0+5}|
v_add_f32 v{PP+5}, |v{S0+6}|, |v{S0+7}|
v_add_f32 v{PP+2}, v{PP+2}, v{PP+3}
v_add_f32 v{PP+4}, v{PP+4}, v{PP+5}
s_mov_b32 s6, 0x7f7fffff
v_add_f32 v{PP+2}, v{PP+2}, v{PP+4}
v_cmp_nge_f32 vcc, s6, v{PP+2}
s_nop 1
s_or_b64 vcc, vcc, s[{S_E}:{S_F}]""")
    if 'forcefb' in X: e("s_mov_b64 vcc, 1")
    e(f"s_cbranch_vccnz {fb}")
    e.label(bk)
    FALLBACKS.append((fb, bk))
    e.stamp("xc2")

FALLBACKS = []
def fallback(e, fb, bk):
    l1 = e.newlabel("fb1"); l2 = e.newlabel("fb2"); l3 = e.newlabel("fb3")
    M = PP + 7
    e.label(fb)
    if 'fbcount' in X:
        e(f"""s_mov_b32 s80, s{P_DBG}
s_mov_b32 s81, s{P_DBG+1}
s_mov_b32 s82, 256
s_mov_b32 s83, 0x00020000
v_mov_b32 v{M}, 0
v_mov_b32 v{M-1}, 1
s_mov_b64 exec, 1
buffer_atomic_add v{M-1}, v{M}, s[80:83], 0 offen
v_mov_b32 v{M-1}, s2
buffer_store_dword v{M-1}, v{M}, s[80:83], 0 offen offset:4
v_mov_b32 v{M-1}, s{S_W}
buffer_store_dword v{M-1}, v{M}, s[80:83], 0 offen offset:8
v_mov_b32 v{M-1}, vcc_lo
buffer_store_dword v{M-1}, v{M}, s[80:83], 0 offen offset:12
v_mov_b32 v{M-1}, vcc_hi
buffer_store_dword v{M-1}, v{M}, s[80:83], 0 offen offset:16
v_mov_b32 v{M-1}, s{S_E}
buffer_store_dword v{M-1}, v{M}, s[80:83], 0 offen offset:20
v_mov_b32 v{M-1}, s{S_F}
buffer_store_dword v{M-1}, v{M}, s[80:83], 0 offen offset:24
buffer_store_dword v{PP}, v{M}, s[80:83], 0 offen offset:28
buffer_store_dword v{PP+2}, v{M}, s[80:83], 0 offen offset:32
s_waitcnt vmcnt(0)
s_mov_b64 exec, -1""")
    e(f"s_mov_b32 s6, {KVF}\nv_mov_b32 v{M}, 0xff800000")
    e.label(l1)
    e(f"""buffer_load_dwordx4 {vr(K,4)}, v{VL16}, {WS}, s6 offen {SC}
buffer_load_dwordx4 {vr(K+4,4)}, v{VL16}, {WS}, s6 offen offset:1024 {SC}
s_add_u32 s6, s6, 4096
s_waitcnt vmcnt(0)""")
    e(mfma(S0, K, Q, "0")); e(mfma(S0, K + 4, Q + 4))
    e("s_nop 11")
    for k in range(8): e(f"v_max3_f32 v{M}, v{M}, v{S0+2*k}, v{S0+2*k+1}")
    e(f"""s_cmp_lt_u32 s6, {KVF + 64*4096}
s_cbranch_scc1 {l1}
v_mov_b32 v{PP}, v{M}
s_nop 1
v_permlane32_swap_b32 v{PP}, v{M}
v_max_f32 v{M}, v{M}, v{PP}
v_cvt_pk_bf16_f32 v{PP}, v{M}, v{M}
v_and_b32 v{PP}, s{S_MASK}, v{PP}
v_sub_f32 v{PP+1}, v{M}, v{PP}
v_cvt_pk_bf16_f32 v{PP+2}, v{PP+1}, v{PP+1}
v_and_b32 v{PP+2}, s{S_MASK}, v{PP+2}
v_sub_f32 v{PP+1}, v{PP+1}, v{PP+2}
v_cvt_pk_bf16_f32 v{PP}, -v{PP}, -v{PP+2}
v_cvt_pk_bf16_f32 v{PP+1}, -v{PP+1}, 0
v_cndmask_b32 v{Q+6}, v{Q+6}, v{PP}, s[{S_HI}:{S_HI+1}]
v_cndmask_b32 v{Q+7}, v{Q+7}, v{PP+1}, s[{S_HI}:{S_HI+1}]
s_mov_b32 s6, {KVF}""")
    for k in range(16): e(f"v_mov_b32 v{O+k}, 0")
    e.label(l2)
    for f in range(4): e(f"buffer_load_dwordx4 {vr(K+4*f,4)}, v{VL16}, {WS}, s6 offen offset:{1024*f} {SC}")
    e("s_add_u32 s6, s6, 4096\ns_waitcnt vmcnt(0)")
    e(mfma(S0, K, Q, "0")); e(mfma(S0, K + 4, Q + 4))
    e("s_nop 11")
    for k in range(16): e(f"v_exp_f32 v{S0+k}, v{S0+k}")
    e("s_nop 0")
    for k in range(8): e(f"v_cvt_pk_bf16_f32 v{PP+k}, v{S0+2*k}, v{S0+2*k+1}")
    e("s_nop 1")
    e(mfma(O, K + 8, PP)); e(mfma(O, K + 12, PP + 4))
    e(f"""s_cmp_lt_u32 s6, {KVF + 64*4096}
s_cbranch_scc1 {l2}
s_nop 11
v_mov_b32 v{PP}, v{O+12}
v_mov_b32 v{PP+1}, v{O+12}
s_cmp_eq_u32 s{S_KH}, 0
s_nop 0
v_permlane32_swap_b32 v{PP}, v{PP+1}
v_rcp_f32 v{PP+1}, v{PP+1}
s_cbranch_scc1 {l3}""")
    for k in range(8): e(f"v_mov_b32 v{O+k}, v{O+8+k}")
    e.label(l3)
    e("s_nop 0")
    for k in range(8): e(f"v_mul_f32 v{S0+k}, v{O+k}, v{PP+1}")
    for k in range(4): e(f"v_cvt_pk_bf16_f32 v{K+k}, v{S0+2*k}, v{S0+2*k+1}")
    e(f"""v_cndmask_b32 v{K+2}, v{K+2}, 0, s[{S_A}:{S_B}]
v_cndmask_b32 v{K+3}, v{K+3}, 0, s[{S_A}:{S_B}]
buffer_store_dwordx4 {vr(K,4)}, v{VL16}, {WS}, s{S_OO} offen {SC}
s_waitcnt vmcnt(0)
s_branch {bk}""")

OFA, OFD = 6, 7
def o_signal(e):
    l = e.newlabel("os")
    e(f"s_cbranch_vccz {l}\ns_mov_b64 exec, 0xffff\nbuffer_store_dword v{OFD}, v{OFA}, {WS}, 0 offen {SC}\ns_mov_b64 exec, -1")
    e.label(l)

def o_flag(e):
    e.stamp("xc3")
    e(f"s_cmp_eq_u32 s{S_W}, 0\ns_cselect_b64 vcc, -1, 0")
    e.wvm("os"); e.stamp("xc4"); e("s_barrier")
    o_signal(e)

def tail(e, nq, fq):
    T = G
    SUM = 232
    RB = 64
    OBR = [96 + 4 * k for k in range(7)] + [36]
    AD = 248
    for f in fq: f()
    for n in range(nq, 56):
        q, k = n // 4, n % 4
        if k == 0 and q + NB - 1 < 14:
            for f in f_loads(e, q + NB - 1): f()
        e.wvm(f"f{q}"); e(f_mfma(q, k))
    e(f"""s_lshl_b32 s6, s{S_W}, 13
s_add_u32 s6, s6, {RING}
v_add_u32 v{AD+6}, s6, v{VL16}
v_xor_b32 v{AD+7}, 8192, v{AD+6}""")
    if nq < 56: e("s_nop 8")
    setup = Side(e)
    setup.add(f"""s_lshr_b32 s6, s{S_J}, 3
s_lshl_b32 s7, s{S_RB}, 1
s_add_u32 s6, s6, s7
s_and_b32 s{S_B}, s{S_W}, 1
s_lshl_b32 s{S_C}, s6, 1
s_add_u32 s{S_C}, s{S_C}, s{S_B}
s_mul_i32 s{S_C}, s{S_C}, 144
s_lshr_b32 s{S_A}, s{S_W}, 1
s_lshl_b32 s{S_D}, s{S_A}, 3
s_add_u32 s{S_D}, s{S_D}, 112
s_add_u32 s{S_C}, s{S_C}, s{S_D}
s_lshl_b32 s{S_C}, s{S_C}, 10
s_and_b32 s7, s{S_J}, 7
s_add_u32 s{S_D}, s{S_C}, 4096
s_lshl_b32 s{S_A}, s{S_A}, 14
s_lshl_b32 s{S_B}, s{S_B}, 13
s_add_u32 s{S_G}, s{S_A}, s{S_B}
s_add_u32 s{S_G}, s{S_G}, {RING}
v_and_b32 v{T}, 31, v0
v_lshrrev_b32 v{T+1}, 5, v0
v_and_b32 v{T+2}, 7, v0
v_xor_b32 v{T+1}, v{T+1}, v{T+2}
v_lshlrev_b32 v{T+1}, 4, v{T+1}
v_lshl_add_u32 v{T}, v{T}, 8, v{T+1}
v_add_u32 v{AD}, s{S_G}, v{T}
v_xor_b32 v{AD+1}, 32, v{AD}
v_xor_b32 v{AD+2}, 64, v{AD}
v_xor_b32 v{AD+3}, 96, v{AD}
s_lshl_b32 s6, s6, 6
s_lshl_b32 s{S_B}, s{S_W}, 3
s_add_u32 s6, s6, s{S_B}
v_lshrrev_b32 v{T}, 3, v0
v_add_u32 v{T+1}, s6, v{T}
v_mul_u32_u24 v{T+1}, 896, v{T+1}
v_lshl_add_u32 v{T+1}, v{T+2}, 4, v{T+1}
s_lshl_b32 s7, s7, 7
v_add_u32 v{VO}, s7, v{T+1}
v_lshlrev_b32 v{T+2}, 1, v{T+2}
v_xor_b32 v{T+2}, v{T+2}, v{T}
v_lshlrev_b32 v{T+2}, 4, v{T+2}
v_lshl_add_u32 v{T}, v{T}, 8, v{T+2}
s_lshl_b32 s6, s{S_W}, 11
s_add_u32 s6, s6, {RING}
v_add_u32 v{AD+4}, s6, v{T}
v_xor_b32 v{AD+5}, 16, v{AD+4}
v_add_u32 v{T+2}, {3 * RING}, v{T+3}""")
    e(f"s_lshr_b32 s6, s{S_W}, 1\ns_lshl_b32 s6, s6, 13\nv_add_u32 v{T+3}, s6, v{VL16}\ns_nop 0")
    oaq = [(lambda k=k: e.ds(f"ds_read_b128 {vr(OAREG[k],4)}, v{T+2 if k < 8 else T+3} offset:{(k & 7) * 1024}", "oar")) for k in range(16)]
    nw1 = P("NW1", 2)
    def oflag():
        e.stamp("xc3")
        e(f"s_cmp_eq_u32 s{S_W}, 0\ns_cselect_b64 vcc, -1, 0")
        e.wvm("os")
        if nw1 == 8: e.all_ds()
        e.stamp("xc4"); e("s_barrier")
        o_signal(e)
    for q in range(8):
        if q == nw1: oflag()
        e.ds(f"ds_write_b128 v{AD+6}, {vr(FA+32+4*q,4)} offset:{q*1024}")
        setup.emit(6)
    setup.flush()
    if nw1 == 8: oflag()
    if not P('OAL', 1):
        for f in oaq: f()
    e.vm(f"buffer_load_dwordx4 {vr(XRES,4)}, v{VO}, s[{SRD_X}:{SRD_X+3}], 0 offen", "xr")
    if nw1 < 8: e.all_ds(); e("s_barrier")
    for q in range(8): e.ds(f"ds_read_b128 {vr(RB+4*q,4)}, v{AD+7} offset:{q*1024}", f"p{q}")
    def olook():
        poll_issue(e, f"""s_lshl_b32 s6, s{S_RB}, 4
s_add_u32 s6, s6, s{S_J}
s_lshl_b32 s6, s6, 7
s_add_u32 s6, s6, {F_O2}
v_and_b32 v{T}, 15, v0
v_lshl_add_u32 v{T}, v{T}, 2, s6""", T, T + 1, "op")
    if P('OLATE', 1) == 0: olook()
    srd(e, SRD_OUT, P_OUT, 2048 * 896)
    for q in range(8):
        e.wds(f"p{q}")
        for k in range(4): e(f"v_add_f32 v{FA+4*q+k}, v{FA+4*q+k}, v{RB+4*q+k}")
    if P('OLATE', 1) == 2:
        for f in oaq: f()
        oaq = []
    if P('OLATE', 1): olook()
    e.stamp("t1")
    poll_check(e, T, T + 1, "op", P("OSLEEP", 1))
    e("s_barrier")
    e.stamp("t2")
    for k in range(8):
        e.vm(f"buffer_load_dwordx4 {vr(OBR[k],4)}, v{VL16}, {WS}, s{S_C if k < 4 else S_D} offen offset:{(k&3)*1024} {SC}", f"ob{k}")
    if P('OAL', 1):
        for f in oaq: f()
        e.all_ds()
    e.wvm("xr")
    for k in range(4): e(f"v_lshlrev_b32 v{SUM+2*k}, 16, v{XRES+k}\nv_and_b32 v{SUM+1+2*k}, s{S_MASK}, v{XRES+k}")
    for k in range(8):
        e.wvm(f"ob{k}")
        for d2 in range(2): e(mfma(FA + 16*d2, OAREG[2*k + d2], OBR[k]))
    e("s_nop 10")
    e.stamp("t3")
    for d2 in range(2):
        for q in range(4): e.ds(f"ds_write_b128 v{AD+q}, {vr(FA+16*d2+4*q,4)} offset:{d2*128}")
    e.all_ds()
    e("s_barrier")
    for p in range(4):
        e.ds(f"ds_read_b128 {vr(RB+8*p,4)}, v{AD+4} offset:{p*16384}", f"s{p}")
        e.ds(f"ds_read_b128 {vr(RB+8*p+4,4)}, v{AD+5} offset:{p*16384}", f"s{p}")
    for p in range(4):
        e.wds(f"s{p}")
        for k in range(8): e(f"v_add_f32 v{SUM+k}, v{SUM+k}, v{RB+8*p+k}")
    for k in range(4): e(f"v_cvt_pk_bf16_f32 v{XRES+k}, v{SUM+2*k}, v{SUM+1+2*k}")
    e.vm(f"buffer_store_dwordx4 {vr(XRES,4)}, v{VO}, s[{SRD_OUT}:{SRD_OUT+3}], 0 offen {os.environ.get('OUTF', '')}")

def build():
    e = Em()
    kn = NAME + "_kernel"
    e.a.raw(f".globl {kn}\n.p2align 8\n.type {kn},@function")
    e.label(kn)
    prologue(e)
    gelu, h_off = phaseB(e)
    attn_setup(e, gelu, h_off)
    e(f"s_and_b32 s6, s{S_J}, 7\ns_cmp_eq_u32 s6, 7\ns_cbranch_scc1 C_noF")
    sn = e.snap(); ns = e.nst
    nq, fq = attn_loop(e, True)
    attn_finish(e, True)
    tail(e, nq, fq)
    nend = e.nst
    e("s_branch K_fin")
    e.label("C_noF")
    e.restore(sn); e.nst = ns
    attn_loop(e, False)
    attn_finish(e)
    o_flag(e)
    e(f"""s_cmp_eq_u32 s{S_RB}, 0
s_cbranch_scc0 C_noF_done
s_cmp_eq_u32 s{S_J}, 7
s_cbranch_scc0 C_noF_done
s_cmp_eq_u32 s{S_W}, 0
s_cbranch_scc0 C_noF_done""")
    for k in range(4):
        e(f"""v_lshrrev_b32 v{G}, 4, v0
v_and_b32 v{G+1}, 15, v0
v_lshlrev_b32 v{G}, 7, v{G}
v_lshl_add_u32 v{G}, v{G+1}, 2, v{G}
v_add_u32 v{G}, {F_H + 512*k}, v{G}""")
        e(f"buffer_load_dword v{G+1}, v{G}, {WS}, 0 offen {SC}"); e.mark[f"ep{k}"] = len(e.q['vm'])
        poll_check(e, G, G + 1, f"ep{k}")
    e(f"v_mov_b32 v{G}, {EPO}\nv_mov_b32 v{G+1}, s{S_NON}\ns_mov_b64 exec, 1\nbuffer_store_dword v{G+1}, v{G}, {WS}, 0 offen {SC}\ns_mov_b64 exec, -1")
    e.label("C_noF_done")
    while e.nst < nend and not STAMPS_OFF: e.stamp()
    e.label("K_fin")
    if os.environ.get("AMPAT"):
        e("""s_waitcnt vmcnt(0)
s_memrealtime s[92:93]
s_waitcnt lgkmcnt(0)
s_sub_u32 s7, s94, s96
s_mul_i32 s7, s7, 10
K_amp:
s_sleep 1
s_memrealtime s[98:99]
s_waitcnt lgkmcnt(0)
s_sub_u32 s6, s98, s92
s_cmp_lt_u32 s6, s7
s_cbranch_scc1 K_amp""")
    if 'stdiag' in X:
        e("""s_memtime s[92:93]
s_waitcnt lgkmcnt(0)
K_sd:
s_sleep 2
s_memtime s[90:91]
s_waitcnt lgkmcnt(0)
s_sub_u32 s6, s90, s92
s_cmp_lt_u32 s6, s94
s_cbranch_scc1 K_sd""")
    if 'fix' in X:
        e("""K_fx:
s_sleep 1
s_memrealtime s[98:99]
s_waitcnt lgkmcnt(0)
s_sub_u32 s6, s98, s96
s_cmp_lt_u32 s6, 10000
s_cbranch_scc1 K_fx""")
    if 'amp' in X:
        e("""s_waitcnt vmcnt(0)
s_memrealtime s[98:99]
s_waitcnt lgkmcnt(0)
s_sub_u32 s7, s98, s96
s_mul_i32 s7, s7, 10
K_fx:
s_sleep 1
s_memrealtime s[98:99]
s_waitcnt lgkmcnt(0)
s_sub_u32 s6, s98, s96
s_cmp_lt_u32 s6, s7
s_cbranch_scc1 K_fx""")
    if STAMPS:
        e.stamp()
        e.label("K_fin2")
        e("s_memrealtime s[98:99]\ns_waitcnt lgkmcnt(0) vmcnt(0)")
        e(f"""s_mov_b32 s40, s{P_WS}
s_mov_b32 s41, s{P_WS+1}
s_mov_b32 s42, 0x10000000
s_mov_b32 s43, 0x00020000
s_lshl_b32 s6, s2, 3
s_add_u32 s6, s6, s{S_W}
s_lshl_b32 s6, s6, 6
s_add_u32 s6, s6, {STAMP_WS}
v_mov_b32 v2, s96
v_mov_b32 v3, s98""")
        for k in range(10): e(f"v_mov_b32 v{4+k}, {'s%d' % (76+2*k) if k < e.nst else 0}")
        e("v_mov_b32 v1, 0\ns_mov_b64 exec, 1")
        for q in range(3): e(f"buffer_store_dwordx4 v[{2+4*q}:{5+4*q}], v1, s[40:43], s6 offen offset:{16*q}")
    e("s_endpgm")
    for fb, bk in FALLBACKS: fallback(e, fb, bk)
    e.label("K_end")
    e("s_endpgm")
    probs = check_hazards(e.a.lines, "k")
    hdr = open("cdna_kernels/" + NAME + ".s.ref").read().split("; Override launch")[0]
    out = hdr + f"; @launch grid=(256,1,1) block=(512,1,1) lds={LDS_BYTES}\n"
    out += '.amdgcn_target "amdgcn-amd-amdhsa--gfx950"\n.text\n' + e.a.text()
    out += f""".section .rodata,"a"
.p2align 6
.amdhsa_kernel {kn}
  .amdhsa_next_free_vgpr 256
  .amdhsa_next_free_sgpr 102
  .amdhsa_accum_offset 256
  .amdhsa_group_segment_fixed_size 0
  .amdhsa_kernarg_size 96
  .amdhsa_user_sgpr_count 2
  .amdhsa_user_sgpr_kernarg_segment_ptr 1
  .amdhsa_system_sgpr_workgroup_id_x 1
  .amdhsa_float_denorm_mode_32 3
.end_amdhsa_kernel
"""
    return out, probs

if __name__ == "__main__":
    out, probs = build()
    for p in probs: print("HAZARD", p, file=sys.stderr)
    open(sys.argv[1] if len(sys.argv) > 1 else "cdna_kernels/" + NAME + ".s", "w").write(out)
```

```python
import sys, os, math, struct
from asmlib import *
X = set(os.environ.get('XFLAGS', '').split(','))
def P(name, default): return int(os.environ.get(name, default))
NAME = "parallel_sum__grouped_kv_mqa__glu_gated_geglu__prompt"
def f2u(x): return struct.unpack("<I", struct.pack("<f", x))[0]

A2F = 0
W2T = 64 * 144 * 1024
QF  = W2T + 7 * 144 * 2048
KVF = QF + 64 * 16 * 2048
FLG = KVF + 64 * 4096
RKV = P("RKV", 16)
F_W  = FLG
F_H  = FLG + 2048
F_O  = FLG + 4096
EPO  = FLG + 6144
F_Q  = FLG + 4096
SPLITQ = P('SPLITQ', 0)
F_KV = FLG + 8192
F_O2 = F_KV + 256 * RKV
STAT = F_O2 + 32768
WS_END = STAT + 2048 * 8
OOB = 0x7ffffff0
P_X, P_WQ, P_WK, P_WV, P_WO, P_BX, P_WG, P_WU, P_WD, P_OUT, P_DBG, P_WS = 8, 10, 12, 14, 16, 18, 20, 22, 24, 26, 28, 30
SRD_X, SRD_WS, SRD_T, SRD_PC = 32, 36, 40, 44
SRD_OUT = SRD_T
S_W, S_RB, S_J = 3, 4, 5
(S_WB, S_MASK, S_XO, S_XO2, S_RT, S_CG, S_MUL, S_T0, S_T1, S_U, S_NON, S_LA, S_LB, S_TO, S_QU) = range(48, 63)
S_HI = 64
S_A, S_B, S_C, S_D, S_E, S_F = 66, 67, 68, 69, 70, 71
S_G, S_H2 = 72, 73
S_CNT = 74
WS = f"s[{SRD_WS}:{SRD_WS+3}]"
SC = "sc1"
STAMPS = bool(os.environ.get("STAMPS"))
STAMP_WS = 200 * 1024 * 1024
SPIN_MAX = 1 << 21
STAMPS_OFF = False

class Em:
    def __init__(s):
        s.a = Asm(); s.q = {'ds': [], 'vm': []}; s.done = {'ds': 0, 'vm': 0}; s.nst = 0; s.uid = 0; s.mark = {}
    def __call__(s, t): s.a(t)
    def label(s, l): s.a.label(l)
    def ds(s, ins, tag=None): s.a(ins); s.q['ds'].append(tag)
    def vm(s, ins, tag=None): s.a(ins); s.q['vm'].append(tag)
    def _n(s, k, tags, cap):
        idx = -1
        for t in tags:
            ii = [i for i, x in enumerate(s.q[k]) if x == t]
            if not ii and 'nodma' in X: continue
            assert ii, f"tag {t} never issued"
            idx = max(idx, ii[-1])
        if idx < s.done[k]: return None
        n = min(len(s.q[k]) - 1 - idx, cap)
        s.done[k] = len(s.q[k]) - n
        return n
    def wds(s, *tags):
        n = s._n('ds', tags, 15)
        if n is not None: s.a(f"s_waitcnt lgkmcnt({n})")
    def wvm(s, *tags):
        n = s._n('vm', tags, 63)
        if n is not None: s.a(f"s_waitcnt vmcnt({n})")
    def wboth(s, *tags):
        n = s._n('vm', tags, 63)
        s.a("s_waitcnt lgkmcnt(0)" if n is None else f"s_waitcnt vmcnt({n}) lgkmcnt(0)"); s.done['ds'] = len(s.q['ds'])
    def all_ds(s): s.a("s_waitcnt lgkmcnt(0)"); s.done['ds'] = len(s.q['ds'])
    def all_vm(s): s.a("s_waitcnt vmcnt(0)"); s.done['vm'] = len(s.q['vm'])
    def snap(s): return ({k: list(v) for k, v in s.q.items()}, dict(s.done))
    def restore(s, sn): s.q = {k: list(v) for k, v in sn[0].items()}; s.done = dict(sn[1])
    def stamp(s, name=None):
        if name is not None and name == os.environ.get("IDLEAT"): s.a("s_sleep 32")
        if name is not None and name == os.environ.get("AMPAT"):
            s.a("s_memrealtime s[94:95]"); s.all_ds()
        sel = os.environ.get("STSEL")
        if sel is not None and name is not None and name not in sel.split(","): return
        if sel is None and name is not None and name.startswith("x"): return
        if STAMPS and not STAMPS_OFF:
            assert s.nst < 10
            s.a(f"{'s_memrealtime' if os.environ.get('RT') else 's_memtime'} s[{76+2*s.nst}:{77+2*s.nst}]"); s.nst += 1
            s.all_ds()
    def newlabel(s, p): s.uid += 1; return f"{p}_{s.uid}"

def srd(e, d, p, nbytes):
    e(f"s_mov_b32 s{d}, s{p}\ns_mov_b32 s{d+1}, s{p+1}\ns_mov_b32 s{d+2}, {nbytes}\ns_mov_b32 s{d+3}, 0x00020000")
def mfma(d, A, B, C=None):
    return f"v_mfma_f32_32x32x16_bf16 {vr(d,16)}, {vr(A,4)}, {vr(B,4)}, {vr(d,16) if C is None else C}"
def mfma16(d, A, B, C=None):
    return f"v_mfma_f32_16x16x32_bf16 {vr(d,4)}, {vr(A,4)}, {vr(B,4)}, {vr(d,4) if C is None else C}"

class Side:
    def __init__(s, e): s.e = e; s.q = []
    def add(s, items):
        if isinstance(items, str):
            raw = [l.strip() for l in items.strip().split("\n") if l.strip()]
            items = []
            for l in raw:
                if l.startswith("s_cselect"): items[-1] += "\n" + l
                else: items.append(l)
        s.q += list(items)
    def emit(s, n):
        while n > 0 and s.q:
            it = s.q.pop(0)
            if callable(it): it()
            else: s.e(it)
            n -= 1
    def flush(s): s.emit(1 << 30)

def flag_store(e, addr_lines, nlanes, vt):
    l = e.newlabel("fl")
    e(f"s_cmp_eq_u32 s{S_W}, 0\ns_cbranch_scc0 {l}")
    e(addr_lines)
    e(f"v_mov_b32 v{vt+1}, s{S_NON}\ns_mov_b64 exec, {(1 << nlanes) - 1}\nbuffer_store_dword v{vt+1}, v{vt}, {WS}, 0 offen {SC}\ns_mov_b64 exec, -1")
    e.label(l)

def poll_issue(e, addr_lines, vaddr, vdat, tag):
    l = e.newlabel("pi")
    e(f"s_cmp_eq_u32 s{S_W}, 0\ns_cbranch_scc0 {l}")
    e(addr_lines)
    e(f"buffer_load_dword v{vdat}, v{vaddr}, {WS}, 0 offen {SC}")
    e.label(l)
    e.mark[tag] = len(e.q['vm'])

def poll_check(e, vaddr, vdat, tag, sleep=None):
    ok = e.newlabel("pok"); sp = e.newlabel("psp")
    e(f"s_cmp_eq_u32 s{S_W}, 0\ns_cbranch_scc0 {ok}")
    e(f"s_waitcnt vmcnt({min(63, len(e.q['vm']) - e.mark[tag])})")
    e(f"v_cmp_ne_u32 vcc, s{S_NON}, v{vdat}\ns_cbranch_vccz {ok}\ns_mov_b32 s{S_CNT}, {SPIN_MAX}")
    e.label(sp)
    e(f"""s_sleep {P('SLEEP', 4) if sleep is None else sleep}
buffer_load_dword v{vdat}, v{vaddr}, {WS}, 0 offen {SC}
s_sub_u32 s{S_CNT}, s{S_CNT}, 1
s_waitcnt vmcnt(0)
v_cmp_ne_u32 vcc, s{S_NON}, v{vdat}
s_cmp_eq_u32 s{S_CNT}, 0
s_cbranch_scc1 {ok}
s_cbranch_vccnz {sp}""")
    if 'spincnt' in X and tag in SPINIDX: e(f"s_sub_u32 s{78 + 2 * SPINIDX[tag]}, {SPIN_MAX + 1000}, s{S_CNT}")
    e.label(ok)
SPINIDX = {'kvp': 0, 'hp': 1, 'hb': 2, 'wo': 3, 'op': 4}

RING = 32768
L_W2T = 131072
L_CSA = L_W2T + 8192
L_CSB = L_CSA + 2048
L_ST  = L_CSB + 2048
L_KVB = L_ST + 4096
L_FLG = L_KVB + 4096
LDS_BYTES = L_FLG + 256

VL16, VT, VX, GA, GS = 1, 2, 3, 4, 6
XA, WA = 8, 12
ST, SEL, CSA, WF, TM = 20, 24, 28, 36, 60
ACCA, ACCB, XR, G = 64, 96, 128, 240
SQA, SQB, TP = 60, 240, 248
WB, GB, PL = 250, 102, 252
R_, S_, AC, BC, I2 = 8, 9, 10, 11, 3
BEXT = 60


TA, TS, TX, TD = 96, 98, 99, 100
S_ISQ, S_SH = 63, 75
RW = 104
def w_source(row, c, dst, gs, t0):
    return f"""v_cmp_le_u32 vcc, s{S_A}, v{c}
v_mul_lo_u32 v{dst}, v{row}, s{S_B}
v_lshl_add_u32 v{dst}, v{c}, 4, v{dst}
v_add_u32 v{dst}, s{S_C}, v{dst}
v_subrev_u32 v{c}, s{S_A}, v{c}
v_lshlrev_b32 v{c}, s{S_G}, v{c}
v_mul_lo_u32 v{t0}, v{row}, s{S_D}
v_add3_u32 v{t0}, v{t0}, v{c}, s{S_H2}
v_cndmask_b32 v{dst}, v{dst}, v{t0}, vcc
v_mov_b32 v{gs}, s{S_B}
v_mov_b32 v{t0}, s{S_D}
v_cndmask_b32 v{gs}, v{gs}, v{t0}, vcc
v_lshlrev_b32 v{gs}, 5, v{gs}"""

ROTS = {0: [0]*8, 1: [0, 3, 2, 5, 4, 0, 6, 2], 2: [0, 3, 3, 0, 0, 3, 3, 0], 3: [0, 1, 2, 3, 4, 5, 6, 0], 4: [0, 4, 1, 5, 2, 6, 3, 0]}
ROTTAB = sum(v << (4 * i) for i, v in enumerate(ROTS[P("ROT", 0)]))
S_ROT = 47
S_WF = 46
RPAR, RBIT = P("RPAR", 0), P("RBIT", 0)
RPARCODE = "" if not RPAR else f"""
s_lshr_b32 s{S_F}, s2, 3
s_lshr_b32 s{S_T0}, s2, 6
s_xor_b32 s{S_F}, s{S_F}, s{S_T0}
s_and_b32 s{S_F}, s{S_F}, {RBIT or 1}
s_mul_i32 s{S_F}, s{S_F}, {RPAR}
s_add_u32 s{S_XO}, s{S_XO}, s{S_F}
s_cmp_ge_u32 s{S_XO}, 7
s_cselect_b32 s{S_F}, 7, 0
s_sub_u32 s{S_XO}, s{S_XO}, s{S_F}"""
def prologue(e):
    T = TM
    ROTCODE = f"""s_and_b32 s{S_XO}, s2, 7
s_lshl_b32 s{S_XO}, s{S_XO}, 2
s_lshr_b32 s{S_XO}, {ROTTAB:#x}, s{S_XO}
s_and_b32 s{S_XO}, s{S_XO}, 7{RPARCODE}
s_mov_b32 s{S_ROT}, s{S_XO}
s_lshl_b32 s{S_F}, s{S_XO}, 6
s_lshl_b32 s{S_XO}, s{S_XO}, 7
v_add_u32 v{T+2}, s{S_F}, v{T+2}
""" if any(ROTS[P('ROT', 0)]) or RPAR else f"s_mov_b32 s{S_ROT}, 0\n"
    e(f"s_cmp_ge_u32 s2, 256\ns_cbranch_scc1 K_end")
    if STAMPS or 'fix' in X or 'amp' in X or os.environ.get("AMPAT"): e("s_memrealtime s[96:97]")
    e.stamp()
    if 'spincnt' in X:
        for k in range(6): e(f"s_movk_i32 s{78 + 2*k}, 1000")
        e.nst = 7
    e("s_load_dwordx16 s[8:23], s[0:1], 0\ns_load_dwordx8 s[24:31], s[0:1], 64")
    e(f"s_getpc_b64 s[{SRD_PC}:{SRD_PC+1}]")
    e.label("K_pc")
    e(f"""s_mov_b32 s{SRD_PC+2}, K_end-K_pc
s_mov_b32 s{SRD_PC+3}, 0x00020000""")
    if P("CPF", 1):
        e(f"s_lshr_b32 s6, s2, 3\ns_lshl_b32 s6, s6, 11\nv_lshrrev_b32 v1, 5, v0\nv_lshl_add_u32 v1, v1, 7, s6")
    else: e("v_lshlrev_b32 v1, 7, v0")
    e.vm(f"buffer_load_dword v{TD}, v1, s[{SRD_PC}:{SRD_PC+3}], 0 offen")
    T = TM
    e(f"""v_lshrrev_b32 v1, 6, v0
v_and_b32 v0, 63, v0
v_readfirstlane_b32 s{S_W}, v1
s_nop 1""")
    e(f"""s_lshl_b32 s{S_TG}, s2, 3
s_add_u32 s{S_TG}, s{S_TG}, s{S_W}
s_mul_i32 s6, s{S_TG}, 896
v_lshl_add_u32 v{TX}, v0, 4, s6
v_cmp_lt_u32 vcc, 55, v0
v_mov_b32 v{TX+2}, {OOB}
s_nop 0
v_cndmask_b32 v{TX}, v{TX}, v{TX+2}, vcc""")
    WT = f"""s_min_u32 s6, s{S_TG}, 1393
s_cmp_ge_u32 s6, 448
s_cselect_b32 s{SRD_T}, s{P_WU}, s{P_WG}
s_cselect_b32 s{SRD_T+1}, s{P_WU+1}, s{P_WG+1}
s_cselect_b32 s{S_A}, 448, 0
s_mov_b32 s{S_D}, {448*3584}
s_cmp_ge_u32 s6, 896
s_cselect_b32 s{SRD_T}, s{P_WQ}, s{SRD_T}
s_cselect_b32 s{SRD_T+1}, s{P_WQ+1}, s{SRD_T+1}
s_cselect_b32 s{S_A}, 896, s{S_A}
s_cselect_b32 s{S_B}, 6, 11
s_cselect_b32 s{S_C}, 7, 28
s_cselect_b32 s{S_D}, {448*896}, s{S_D}
s_cmp_ge_u32 s6, 1344
s_cselect_b32 s{SRD_T}, s{P_WK}, s{SRD_T}
s_cselect_b32 s{SRD_T+1}, s{P_WK+1}, s{SRD_T+1}
s_cselect_b32 s{S_A}, 1344, s{S_A}
s_cselect_b32 s{S_B}, 7, s{S_B}
s_cselect_b32 s{S_C}, 8, s{S_C}
s_cselect_b32 s{SRD_T+2}, {448*56}, s{S_D}
s_cmp_ge_u32 s6, 1369
s_cselect_b32 s{SRD_T}, s{P_WV}, s{SRD_T}
s_cselect_b32 s{SRD_T+1}, s{P_WV+1}, s{SRD_T+1}
s_cselect_b32 s{S_A}, 1369, s{S_A}
s_mov_b32 s{SRD_T+3}, 0x00020000
s_sub_u32 s6, s6, s{S_A}
s_mul_i32 s6, s6, s{S_C}
v_min_u32 v{TA}, s{S_B}, v0
v_add_u32 v{TA}, s6, v{TA}
v_lshlrev_b32 v{TA}, 7, v{TA}"""
    e(f"""
s_bfe_u32 s{S_RB}, s2, 0x20001
s_lshl_b32 s{S_RB}, s{S_RB}, 2
s_lshr_b32 s6, s2, 6
s_add_u32 s{S_RB}, s{S_RB}, s6
s_and_b32 s{S_J}, s2, 1
s_lshl_b32 s{S_J}, s{S_J}, 3
s_bfe_u32 s7, s2, 0x30003
s_add_u32 s{S_J}, s{S_J}, s7
s_lshr_b32 s{S_QU}, s{S_J}, 2
s_sub_u32 s{S_LA}, s{S_J}, s{S_QU}
s_lshl_b32 s{S_WB}, s{S_W}, 10
s_lshl_b32 s{S_C}, s{S_LA}, 7
s_mul_i32 s{S_E}, s{S_QU}, 224
s_and_b32 s{S_F}, s{S_QU}, 1
s_sub_u32 s{S_G}, 4, s{S_F}
s_lshl_b32 s{S_F}, s{S_F}, 5
s_movk_i32 s{S_D}, 3584
s_and_b32 s{S_ISQ}, s{S_J}, 3
s_cmp_eq_u32 s{S_ISQ}, 3
s_cselect_b32 s{S_ISQ}, 1, 0
s_cselect_b32 s{S_A}, 14, 8
s_cselect_b32 s{S_B}, 896, s{S_D}
s_cselect_b32 s{S_D}, 56, s{S_D}
s_cselect_b32 s{S_H2}, s{S_F}, s{S_C}
s_cselect_b32 s{S_C}, s{S_E}, s{S_C}
s_cselect_b32 s{S_G}, s{S_G}, 4
s_add_u32 s{S_SH}, s{S_ISQ}, 1
s_lshl_b32 s{S_E}, s{S_RB}, 7
s_lshl_b32 s{S_F}, s{S_W}, 3
s_add_u32 s{S_F}, s{S_F}, s{S_E}
v_lshrrev_b32 v{T}, 3, v0
v_add_u32 v{T}, s{S_F}, v{T}
v_mul_u32_u24 v{T}, 896, v{T}
s_lshl_b32 s{S_F}, s{S_W}, 2
v_lshrrev_b32 v{T+1}, 4, v0
v_add_u32 v{T+2}, s{S_F}, v{T+1}
v_xor_b32 v{T+3}, v{T+2}, v0
v_and_b32 v{T+3}, 7, v{T+3}
v_lshl_add_u32 v{VX}, v{T+3}, 4, v{T}
{ROTCODE}v_lshlrev_b32 v{T+1}, s{S_SH}, v{T+1}
v_xor_b32 v{T+1}, v{T+1}, v0
v_and_b32 v{T+1}, 15, v{T+1}""")
    e(w_source(T + 2, T + 1, G, GS, T))
    e(f"s_mov_b64 s[{S_HI}:{S_HI+1}], vcc")
    if TOUCH:
        e(f"""s_and_b32 s6, s6, 3
s_lshl_b32 s6, s6, 3
s_add_u32 s6, s6, s{S_W}
s_lshl_b32 s6, s6, 1
s_lshl_b32 s7, s7, 3
s_add_u32 s7, s7, s{S_W}
s_lshl_b32 s7, s7, 1
s_add_u32 s7, s7, s{S_E}
v_bfe_u32 v{T+2}, v0, 3, 1
v_bfe_u32 v{T+1}, v0, 2, 1
v_lshl_add_u32 v{T+2}, v{T+2}, 6, v{T+1}
v_add_u32 v{T+2}, s6, v{T+2}
v_and_b32 v{T+1}, 3, v0
v_lshlrev_b32 v{T+1}, 2, v{T+1}
v_lshrrev_b32 v{T+1}, v{T+1}, s{S_MASK}
v_and_b32 v{T+1}, 15, v{T+1}
v_and_b32 v{T}, 1, v0
v_add_u32 v{T}, s7, v{T}
v_mul_u32_u24 v{TX}, 896, v{T}
v_bfe_u32 v{T}, v0, 1, 1
v_lshl_add_u32 v{TX}, v{T}, 7, v{TX}""".replace(f"v_lshrrev_b32 v{T+1}, v{T+1}, s{S_MASK}", f"s_movk_i32 s6, 0xed80\nv_lshrrev_b32 v{T+1}, v{T+1}, s6"))
        e(w_source(T + 2, T + 1, G + 1, TS, T))
    e("s_waitcnt lgkmcnt(0)")
    e.stamp("xs0")
    if 'stdiag' in X:
        e(f"""s_mov_b32 s40, s{P_WS}
s_mov_b32 s41, s{P_WS+1}
s_mov_b32 s42, 0x10000000
s_mov_b32 s43, 0x00020000
s_lshl_b32 s90, s2, 3
s_add_u32 s90, s90, s{S_W}
s_lshl_b32 s90, s90, 10
s_add_u32 s90, s90, {P('DOFF', 100) * 1024 * 1024}
v_lshlrev_b32 v110, 4, v0
buffer_store_dwordx4 v[112:115], v110, s[40:43], s90 offen sc1
s_waitcnt vmcnt(0)
s_add_u32 s90, s90, 0x200000
s_barrier
s_memtime s[92:93]
s_waitcnt lgkmcnt(0)
buffer_store_dwordx4 v[112:115], v110, s[40:43], s90 offen sc1
s_waitcnt vmcnt(0)
s_barrier
s_memtime s[94:95]
s_waitcnt lgkmcnt(0)
s_sub_u32 s94, s94, s92
s_mul_i32 s94, s94, 100""")
    srd(e, SRD_X, P_X, 2048 * 896)
    if GT:
        e.vm(f"buffer_load_dwordx4 {vr(RW,4)}, v{TX}, s[{SRD_X}:{SRD_X+3}], 0 offen", "row")
        if GT & 2 and not P("PRO", 1): e.vm(f"buffer_load_dword v{TD}, v{TA}, s[{SRD_T}:{SRD_T+3}], {'s%d' % S_TS if P('GTS', 0) else 0} offen", "t")
        if P("GTW", 0): e.wvm("row")
    if P("XE", 1): dma_x(e, 0, 0)(); dma_x(e, 0, 1)()
    if P("PRO", 1) == 2:
        e(WT); e.vm(f"buffer_load_dword v{TD}, v{TA}, s[{SRD_T}:{SRD_T+3}], 0 offen", "t")
    e(f"""s_cmp_lt_u32 s{S_QU}, 2
s_cselect_b32 s{S_C}, s{P_WK}, s{P_WV}
s_cselect_b32 s{S_D}, s{P_WK+1}, s{P_WV+1}
s_cmp_eq_u32 s{S_ISQ}, 1
s_cselect_b32 s{S_A}, s{P_WQ}, s{P_WG}
s_cselect_b32 s{S_B}, s{P_WQ+1}, s{P_WG+1}
s_cselect_b32 s{S_C}, s{S_C}, s{P_WU}
s_cselect_b32 s{S_D}, s{S_D}, s{P_WU+1}
v_mov_b32 v{T}, s{S_A}
v_mov_b32 v{T+1}, s{S_B}
v_mov_b32 v{T+2}, s{S_C}
v_mov_b32 v{T+3}, s{S_D}""")
    if TOUCH:
        e(f"""v_cndmask_b32 v{TA}, v{T}, v{T+2}, vcc
v_cndmask_b32 v{TA+1}, v{T+1}, v{T+3}, vcc
v_add_co_u32 v{TA}, vcc, v{TA}, v{G+1}
v_cndmask_b32 v{GA}, v{T}, v{T+2}, s[{S_HI}:{S_HI+1}]
v_cndmask_b32 v{GA+1}, v{T+1}, v{T+3}, s[{S_HI}:{S_HI+1}]
v_addc_co_u32 v{TA+1}, vcc, 0, v{TA+1}, vcc""")
        touch(e, 0)()
    else:
        e(f"""v_cndmask_b32 v{GA}, v{T}, v{T+2}, s[{S_HI}:{S_HI+1}]
v_cndmask_b32 v{GA+1}, v{T+1}, v{T+3}, s[{S_HI}:{S_HI+1}]""")
    e(f"v_add_co_u32 v{GA}, vcc, v{GA}, v{G}\nv_mov_b32 v{GS+1}, 0")
    if 'gonly' in X: e.all_vm(); e.stamp()
    if not P("XE", 1): dma_x(e, 0, 0)()
    else: e("s_nop 0")
    e(f"v_addc_co_u32 v{GA+1}, vcc, 0, v{GA+1}, vcc")
    e.WT = WT

TOUCH = P("TOUCH", 0)
GT = P("GT", 3)
ROT = P("ROT", 0)
LDX = os.environ.get("LDX", ""); LDW = os.environ.get("LDW", ""); LDT = os.environ.get("LDT", "")
def touch(e, k):
    def f():
        st = (0, 2, 4, 5)[k]
        e.vm(f"global_load_dword v{TD}, {vr(TA,2)}, off", f"t{k}")
        e(f"s_movk_i32 s{S_XO2}, {st * 128}")
        e.vm(f"buffer_load_dword v{TD}, v{TX}, s[{SRD_X}:{SRD_X+3}], s{S_XO2} offen", f"t{k}")
        if k < 3: e(f"v_mad_u64_u32 {vr(TA,2)}, s[{S_E}:{S_E+1}], v{TS}, {4 if k < 2 else 2}, {vr(TA,2)}")
    return f
S_TG, S_TS = 61, 57
def gtouch(e, st):
    def f():
        e(f"s_mul_i32 s{S_XO2}, s{S_TS}, {st}")
        e.vm(f"buffer_load_dword v{TD}, v{TA}, s[{SRD_PC}:{SRD_PC+3}], s{S_XO2} offen {LDT}", "t")
        e(f"s_movk_i32 s{S_XO2}, {st * 128}")
        e.vm(f"buffer_load_dword v{TD}, v{TX}, s[{SRD_X}:{SRD_X+3}], s{S_XO2} offen {LDT}", "t")
    return f
def dma_x(e, sig, i):
    def f():
        e(f"s_add_u32 m0, s{S_WB}, {(sig % 4) * RING + i * 8192}")
        if i == 0: e("s_nop 0"); so = S_XO
        else: e(f"s_add_u32 s{S_XO2}, s{S_XO}, {64*896}"); so = S_XO2
        e.vm(f"buffer_load_dwordx4 v{VX}, s[{SRD_X}:{SRD_X+3}], s{so} offen {LDX} lds", f"d{sig}")
    return f
def dma_w(e, sig, off, i, first=False):
    def f():
        if i == 0 and not first:
            e(f"s_add_u32 s{S_XO}, s{S_XO}, 128\ns_cmp_eq_u32 s{S_XO}, 896\ns_cselect_b32 s{S_XO}, 0, s{S_XO}\ns_cselect_b32 s{S_MUL}, -13, 1")
        e(f"s_add_u32 m0, s{S_WB}, {(sig % 4) * RING + off + i * 8192}")
        if first == 2: e(f"s_add_u32 s{S_XO}, s{S_XO}, 128\ns_cmp_eq_u32 s{S_XO}, 896\ns_cselect_b32 s{S_XO}, 0, s{S_XO}")
        elif first: e("s_nop 0")
        elif i == 0: e(f"v_mad_i64_i32 {vr(GA,2)}, s[{S_E}:{S_E+1}], v{GS}, s{S_MUL}, {vr(GA,2)}")
        else: e(f"v_lshl_add_u64 {vr(GA,2)}, {vr(GS,2)}, 0, {vr(GA,2)}")
        e.vm(f"global_load_lds_dwordx4 {vr(GA,2)}, off {LDW}", f"d{sig}")
    return f
if not any(ROTS[P("ROT", 0)]) and not RPAR:
    def dma_x(e, sig, i):
        def f():
            e(f"s_add_u32 m0, s{S_WB}, {(sig % 4) * RING + i * 8192}\ns_mov_b32 s{S_XO}, {sig * 128 + i * 64 * 896}")
            e.vm(f"buffer_load_dwordx4 v{VX}, s[{SRD_X}:{SRD_X+3}], s{S_XO} offen {LDX} lds", f"d{sig}")
        return f
    def dma_w(e, sig, off, i, first=False):
        def f():
            e(f"s_add_u32 m0, s{S_WB}, {(sig % 4) * RING + off + i * 8192}")
            e("s_nop 0" if first else f"v_lshl_add_u64 {vr(GA,2)}, {vr(GS,2)}, 0, {vr(GA,2)}")
            e.vm(f"global_load_lds_dwordx4 {vr(GA,2)}, off {LDW}", f"d{sig}")
        return f
def stage_dmas(e, sig):
    if 'nodma' in X and 2 <= sig: return [(lambda: e.q['vm'].append(f'd{sig}') or e.q['vm'].pop() if False else None)] if False else [lambda: None]
    if sig == 0: return [dma_x(e, sig, 0), dma_w(e, sig, 16384, 0, True), dma_x(e, sig, 1), dma_w(e, sig, 16384, 1)]
    if sig < 7: return [dma_w(e, sig, 16384, 0), dma_x(e, sig, 0), dma_w(e, sig, 16384, 1), dma_x(e, sig, 1)]
    l = []
    if sig == 7: l.append(lambda: e(f"v_mov_b32 v{GA}, v{GB}\nv_mov_b32 v{GA+1}, v{GB+1}\nv_mov_b32 v{GS}, {32*3584}"))
    l += [dma_w(e, sig, 0, 0, 2 if sig == 7 else False), dma_w(e, sig, 0, 1)]
    if sig < 10: l += [dma_w(e, sig, 16384, 0), dma_w(e, sig, 16384, 1)]
    return l

def late_touch(e):
    if P('GTS', 0):
        e(f"s_xor_b32 s{S_TS}, s{S_TS}, {OOB}")
        e.vm(f"buffer_load_dword v{TD}, v{TA}, s[{SRD_T}:{SRD_T+3}], s{S_TS} offen", "t")

def phaseB(e):
    T = TM
    for f in (stage_dmas(e, 0)[1:] if not P('XE', 1) else stage_dmas(e, 0)[1::2]): f()
    if 'arr' in X:
        order = os.environ.get("ARR", "D1 D2 W0 D3 W1 D4 W2 D5 W3 D6 W4 W5 W6").split()
        for it in order:
            k = int(it[1:])
            if it[0] == 'D':
                for f in stage_dmas(e, k): f()
            elif it[0] == 'T': touch(e, k)()
            elif it[0] == 'G': gtouch(e, k)()
            elif it[0] == 'L': late_touch(e)
            elif it[0] == 'A': e.all_vm(); e.stamp()
            else: e.wvm(f"d{k}"); e("s_barrier"); e.stamp()
        srd(e, SRD_WS, P_WS, WS_END)
        e.stamp()
        e("s_branch K_fin2")
        global STAMPS_OFF; STAMPS_OFF = True
    e.stamp("xs2")
    if P("PRO", 1) == 1:
        e(e.WT)
        e.vm(f"buffer_load_dword v{TD}, v{TA}, s[{SRD_T}:{SRD_T+3}], 0 offen", "t")
    e(f"s_mov_b32 s6, {EPO}\ns_load_dword s{S_NON}, s[{P_WS}:{P_WS+1}], s6")
    if TOUCH == 2: touch(e, 1)()
    for f in stage_dmas(e, 1): f()
    if TOUCH == 1: touch(e, 1)()
    late_touch(e)
    e.stamp("xs3")
    e(f"""s_and_b32 s{S_RT}, s{S_W}, 3
s_lshr_b32 s{S_CG}, s{S_W}, 2
s_lshl_b32 s{S_T0}, s{S_CG}, 1
s_add_u32 s{S_T1}, s{S_T0}, 1
s_xor_b32 s{S_A}, s{S_RT}, s{S_CG}
s_mov_b32 s{S_MASK}, 0xffff0000
s_mov_b32 s{S_HI}, 0
s_mov_b32 s{S_HI+1}, -1
v_lshlrev_b32 v{VL16}, 4, v0
v_and_b32 v{T}, 31, v0
v_lshrrev_b32 v{T+1}, 5, v0
v_bfe_u32 v{T+2}, v0, 1, 3
v_xor_b32 v{T+2}, v{T+2}, v{T+1}
v_lshlrev_b32 v{T+2}, 4, v{T+2}
v_lshl_add_u32 v{T+2}, v{T}, 7, v{T+2}
s_lshl_b32 s6, s{S_RT}, 12
s_lshl_b32 s{S_B}, s{S_A}, 5
s_or_b32 s6, s6, s{S_B}
v_xor_b32 v{XA}, s6, v{T+2}""")
    for pos in range(1, 4): e(f"v_xor_b32 v{XA+pos}, {pos<<5}, v{XA}")
    e(f"""v_bfe_u32 v{G+1}, v0, 2, 2
v_lshl_add_u32 v{WB}, v{T+1}, 3, v{G+1}
v_lshlrev_b32 v{WB}, 8, v{WB}
s_lshl_b32 s{S_A}, s{S_A}, 12
v_add_u32 v{WB}, s{S_A}, v{WB}
s_cmp_eq_u32 s{S_ISQ}, 1
s_cselect_b32 s{S_A}, 56, 32
s_cselect_b32 s{S_B}, 5, 7
s_cselect_b32 s{S_C}, 0x88880000, 0
s_mov_b32 s{S_D}, s{S_C}
s_add_u32 s6, s{S_SH}, 4
v_bfe_u32 v{T}, v0, 4, 1
v_and_b32 v{T+1}, 3, v0
v_lshlrev_b32 v{T}, s{S_B}, v{T}
v_lshl_add_u32 v{T}, v{T+1}, 3, v{T}
v_lshlrev_b32 v{T+1}, s6, v{G+1}""")
    for i, st_ in ((0, S_T0), (1, S_T1)):
        e(f"""s_mul_i32 s6, s{st_}, s{S_A}
s_lshl_b32 s7, s{st_}, 3
s_sub_u32 s7, 248, s7
v_add_u32 v{T+2}, s6, v{T}
v_mov_b32 v{T+3}, s7
v_cndmask_b32 v{T+2}, v{T+2}, v{T+3}, s[{S_C}:{S_D}]
v_xor_b32 v{T+2}, v{T+2}, v{T+1}
v_add_u32 v{WA+4*i}, v{T+2}, v{WB}""")
    for i in range(2):
        for pos in range(1, 4): e(f"v_xor_b32 v{WA+4*i+pos}, {pos<<12}, v{WA+4*i}")
    e(f"""v_bfe_u32 v{T}, v0, 4, 1
v_and_b32 v{T+1}, 15, v0
v_cmp_eq_u32 vcc, v{T}, v{T+1}
v_mov_b32 v{T}, 0x3f803f80
s_nop 0
v_cndmask_b32 v{SEL}, 0, v{T}, vcc
v_mov_b32 v{SEL+1}, v{SEL}
v_mov_b32 v{SEL+2}, v{SEL}
v_mov_b32 v{SEL+3}, v{SEL}""")
    w2t_addr = f"""s_mul_i32 s6, s{S_RB}, 12
s_add_u32 s6, s6, s{S_LA}
s_lshl_b32 s7, s{S_RB}, 2
s_add_u32 s7, s7, s{S_QU}
s_min_u32 s7, s7, 59
s_add_u32 s{S_A}, s7, 136
s_cmp_eq_u32 s{S_ISQ}, 1
s_cselect_b32 s6, s{S_A}, s6
s_cselect_b32 s7, s7, 63
s_mul_hi_u32 s{S_A}, s6, {(2**32 + 27)//28}
s_mul_i32 s{S_B}, s{S_A}, 28
s_sub_u32 s{S_B}, s6, s{S_B}
s_lshr_b32 s{S_C}, s7, 3
s_and_b32 s{S_D}, s7, 7
s_add_u32 s{S_D}, s{S_D}, 28
s_cmp_lt_u32 s7, 56
s_cselect_b32 s6, s{S_C}, s{S_A}
s_cselect_b32 s{S_B}, s{S_D}, s{S_B}
s_lshl_b32 s{S_WF}, s6, 6
s_add_u32 s{S_WF}, s{S_WF}, s{S_B}
s_lshl_b32 s{S_A}, s{S_B}, 2
s_lshr_b32 s{S_B}, s{S_W}, 1
s_add_u32 s{S_A}, s{S_A}, s{S_B}
s_mul_i32 s{S_U}, s6, 144
s_add_u32 s{S_U}, s{S_U}, s{S_A}
s_lshl_b32 s{S_B}, s{S_A}, 4
s_sub_u32 s{S_C}, s{S_A}, 112
s_lshr_b32 s{S_D}, s{S_C}, 1
s_mul_i32 s{S_D}, s{S_D}, 28
s_and_b32 s{S_C}, s{S_C}, 1
s_lshl_b32 s{S_C}, s{S_C}, 4
s_add_u32 s{S_C}, s{S_C}, s{S_D}
s_mov_b32 s{S_D}, {448*896}
s_cmp_lt_u32 s{S_A}, 112
s_cselect_b32 s{S_B}, s{S_B}, s{S_C}
s_cselect_b32 s{SRD_T}, s{P_WD}, s{P_WO}
s_cselect_b32 s{SRD_T+1}, s{P_WD+1}, s{P_WO+1}
s_cselect_b32 s{SRD_T+2}, {1792*896}, s{S_D}
s_mov_b32 s{SRD_T+3}, 0x00020000
s_and_b32 s{S_C}, s{S_W}, 1
s_lshl_b32 s{S_C}, s{S_C}, 3
s_add_u32 s{S_B}, s{S_B}, s{S_C}
s_mul_i32 s{S_B}, s{S_B}, 896
s_lshl_b32 s6, s6, 7
s_add_u32 s{S_TO}, s{S_B}, s6
v_lshrrev_b32 v{TP}, 3, v0
v_mul_u32_u24 v{TP}, 896, v{TP}
v_and_b32 v{TP+1}, 7, v0
v_lshl_add_u32 v{VT}, v{TP+1}, 4, v{TP}"""
    late = (f"""s_add_u32 s{S_LB}, s{S_LA}, 12
s_add_u32 s6, s{S_QU}, 24
s_cmp_eq_u32 s{S_ISQ}, 1
s_cselect_b32 s{S_LB}, s6, s{S_LB}
""" if P("LBOLD", 1) else f"s_add_u32 s{S_LB}, s{S_J}, 12\n") + f"""v_lshrrev_b32 v{TP}, 4, v0
s_lshl_b32 s6, s{S_ROT}, 4
s_add_u32 s6, s6, s{S_W}
s_lshl_b32 s6, s6, 2
v_add_u32 v{TP+1}, s6, v{TP}
v_mul_u32_u24 v{TP+1}, 3584, v{TP+1}
v_lshlrev_b32 v{TP}, 1, v{TP}
v_xor_b32 v{TP}, v{TP}, v0
v_and_b32 v{GB}, 7, v{TP}
v_lshl_add_u32 v{TP+1}, v{GB}, 4, v{TP+1}
s_lshl_b32 s6, s{S_LB}, 7
v_add_u32 v{TP+1}, s6, v{TP+1}
v_and_b32 v{TP}, 8, v{TP}
v_cmp_eq_u32 vcc, 8, v{TP}
v_mov_b32 v{GB}, s{P_WG}
v_mov_b32 v{TP}, s{P_WU}
v_cndmask_b32 v{GB}, v{GB}, v{TP}, vcc
v_mov_b32 v{GB+1}, s{P_WG+1}
v_mov_b32 v{TP}, s{P_WU+1}
v_cndmask_b32 v{GB+1}, v{GB+1}, v{TP}, vcc
v_add_co_u32 v{GB}, vcc, v{GB}, v{TP+1}
v_bfe_u32 v{TP}, v0, 4, 1
v_and_b32 v{TP+1}, 3, v0
v_addc_co_u32 v{GB+1}, vcc, 0, v{GB+1}, vcc
v_lshlrev_b32 v{TP+1}, 3, v{TP+1}
v_lshl_add_u32 v{TP}, v{TP}, 7, v{TP+1}
v_bfe_u32 v{TP+1}, v0, 2, 2
v_lshlrev_b32 v{TP+1}, 5, v{TP+1}
v_xor_b32 v{TP}, v{TP}, v{TP+1}
s_lshl_b32 s6, s{S_T0}, 5
v_xor_b32 v{TP}, s6, v{TP}
v_add_u32 v{WB}, v{TP}, v{WB}
v_xor_b32 v{WB+1}, 32, v{WB}"""
    e.stamp("xs4")
    srd(e, SRD_WS, P_WS, WS_END)
    e("s_waitcnt lgkmcnt(0)")
    e(f"s_add_u32 s{S_NON}, s{S_NON}, 1")
    U = RW + 4; A_, B_ = RW, RW + 1
    e.wvm("row")
    for k in range(4): e(f"v_lshlrev_b32 v{U+2*k}, 16, v{RW+k}\nv_and_b32 v{U+2*k+1}, s{S_MASK}, v{RW+k}")
    e(f"v_add_f32 v{A_}, v{U}, v{U+1}\nv_mul_f32 v{B_}, v{U}, v{U}\nv_add_f32 v{A_+2}, v{U+2}, v{U+3}\nv_mul_f32 v{B_+2}, v{U+1}, v{U+1}")
    for k in (2, 4, 6): e(f"v_fmac_f32 v{B_}, v{U+k}, v{U+k}\nv_fmac_f32 v{B_+2}, v{U+k+1}, v{U+k+1}")
    e(f"""v_add_f32 v{U}, v{U+4}, v{U+5}
v_add_f32 v{U+1}, v{U+6}, v{U+7}
v_add_f32 v{A_}, v{A_}, v{A_+2}
v_add_f32 v{U}, v{U}, v{U+1}
v_add_f32 v{B_}, v{B_}, v{B_+2}
v_add_f32 v{A_}, v{A_}, v{U}
s_lshl_b32 s6, s{S_TG}, 3""")
    for d in ("row_shr:1 row_mask:0xf bank_mask:0xf bound_ctrl:0", "row_shr:2 row_mask:0xf bank_mask:0xf bound_ctrl:0",
              "row_shr:4 row_mask:0xf bank_mask:0xf bound_ctrl:0", "row_shr:8 row_mask:0xf bank_mask:0xf bound_ctrl:0",
              "row_bcast:15 row_mask:0xa bank_mask:0xf", "row_bcast:31 row_mask:0xc bank_mask:0xf"):
        e(f"v_add_f32_dpp v{B_}, v{B_}, v{B_} {d}\nv_add_f32_dpp v{A_}, v{A_}, v{A_} {d}\ns_nop 0")
    e(f"""s_add_u32 s6, s6, {STAT}
v_mul_f32 v{A_}, {f2u(1.0/448)}, v{A_}
v_mul_f32 v{B_}, {f2u(1.0/448)}, v{B_}
v_fma_f32 v{B_}, -v{A_}, v{A_}, v{B_}
v_max_f32 v{B_}, 0, v{B_}
v_cvt_pk_bf16_f32 v{B_}, v{B_}, v{B_}
v_and_b32 v{B_}, s{S_MASK}, v{B_}
v_add_f32 v{B_}, {f2u(1e-5)}, v{B_}
v_cvt_pk_bf16_f32 v{B_}, v{B_}, v{B_}
v_and_b32 v{B_}, s{S_MASK}, v{B_}
v_sqrt_f32 v{B_}, v{B_}
v_mov_b32 v{U}, s6
v_cvt_pk_bf16_f32 v{A_}, -v{A_}, v{B_}
v_mov_b32 v{B_}, s{S_NON}
s_mov_b32 exec_lo, 0
s_mov_b32 exec_hi, 0x80000000""")
    e.vm(f"buffer_store_dwordx2 {vr(A_,2)}, v{U}, {WS}, 0 offen {SC}", "sts")
    e("s_mov_b64 exec, -1")
    e.stamp("xs5")
    if P("PRIO", 2) & 1: e(f"s_cmp_ge_u32 s{S_W}, 4\ns_cbranch_scc0 K_np\ns_setprio 1\nK_np:")
    e.wvm("d0")
    e("s_barrier")
    e.stamp("start")

    half = {'x': [0]*4, 'w': [0]*4}
    def reads(gp):
        if gp < 28: sig, sub, pos, reg = gp // 4, 0, gp % 4, 16384
        else:
            g = gp - 28; sig, sub, pos = 7 + g // 8, (g // 4) & 1, g % 4; reg = sub * 16384
        sl = sig % 4; h = sl >> 1; imm = (sl & 1) * RING
        buf = WF + 8 * (gp % 3)
        pre = []
        if 28 <= gp < 32:
            pre = [f"v_xor_b32 v{WA+4*i+pos}, {(pos << 12) | (h << 16)}, v{WB+i}" for i in range(2)]
            half['w'][pos] = h
        elif half['w'][pos] != h:
            pre = [f"v_xor_b32 v{WA+4*i+pos}, 0x10000, v{WA+4*i+pos}" for i in range(2)]
            half['w'][pos] = h
        if gp < 28 and half['x'][pos] != h:
            pre.append(f"v_xor_b32 v{XA+pos}, 0x10000, v{XA+pos}"); half['x'][pos] = h
        out = [(lambda l=l: e(l)) for l in pre]
        if gp < 28: out.append(lambda: e.ds(f"ds_read_b128 {vr(XR+4*gp,4)}, v{XA+pos} offset:{imm}", f"r{gp}"))
        for i in range(2):
            for u in range(2):
                out.append(lambda i=i, u=u: e.ds(f"ds_read_b64_tr_b16 {vr(buf+4*i+2*u,2)}, v{WA+4*i+pos} offset:{imm+reg+u*1024}", f"r{gp}"))
        return out
    def position(gp, side, dmaq, nside, barrier=None):
        p2 = gp >= 28; g = gp - 28 if p2 else gp
        acc = ACCB if p2 else ACCA
        buf = WF + 8 * (gp % 3); xr = XR + 4 * g
        e.wds(f"r{gp}")
        e(mfma(acc, buf, xr, "0" if g == 0 else None))
        if barrier: barrier()
        R = reads(gp + 2) if gp + 2 < 56 else []
        nx = 1 if gp + 2 < 28 else 0
        pre = R[:max(0, len(R) - 4 - nx)]; xrd = R[len(pre):len(pre) + nx]; tr = R[len(pre) + nx:]
        na = (nside + 1) // 2; nb = nside // 2
        for f in pre: f()
        if P("ORD", 1) == 0:
            for f in xrd + tr[:2]: f()
            side.emit(na)
            e(mfma(acc + 16, buf + 4, xr, "0" if g == 0 else None))
            for f in tr[2:]: f()
            if g % 4 == 0: e(mfma16(CSA, SEL, buf, "0" if g == 0 else None))
            if dmaq: dmaq.pop(0)()
            side.emit(nb)
            if g % 4 == 0: e(mfma16(CSA + 4, SEL, buf + 4, "0" if g == 0 else None))
        else:
            for f in tr[:1]: f()
            side.emit(min(2, na))
            for f in tr[1:2]: f()
            side.emit(na - min(2, na))
            e(mfma(acc + 16, buf + 4, xr, "0" if g == 0 else None))
            for f in tr[2:3]: f()
            side.emit(min(2, nb))
            for f in tr[3:]: f()
            side.emit(nb - min(2, nb))
            if g % 4 == 0 and 'nosel' not in X: e(mfma16(CSA, SEL, buf, "0" if g == 0 else None))
            for f in xrd: f()
            if g % 4 == 0 and 'nosel' not in X: e(mfma16(CSA + 4, SEL, buf + 4, "0" if g == 0 else None))
            if dmaq: dmaq.pop(0)()
    def stats(gp):
        x = XR + 4 * gp; c = lambda r: "0" if gp == 0 else vr(r, 4)
        return [mfma16(ST, SEL, x, c(ST)),
                f"v_mfma_f32_4x4x4_16b_bf16 {vr(SQA,4)}, {vr(x,2)}, {vr(x,2)}, {c(SQA)}\nv_mfma_f32_4x4x4_16b_bf16 {vr(SQB,4)}, {vr(x+2,2)}, {vr(x+2,2)}, {c(SQB)}"]
    def cs_write(dst):
        return [f"v_lshlrev_b32 v{G+8}, 4, v0", f"s_lshl_b32 s6, s{S_T0}, 9", f"s_lshl_b32 s{S_A}, s{S_RT}, 2",
                f"s_add_u32 s6, s6, s{S_A}", f"s_add_u32 s6, s6, {dst}", f"v_add_u32 v{G+8}, s6, v{G+8}",
                lambda: (e("s_mov_b64 exec, 0xffff"),
                         e.ds(f"ds_write_b32 v{G+8}, v{CSA}", "csw"), e.ds(f"ds_write_b32 v{G+8}, v{CSA+1} offset:256", "csw"),
                         e.ds(f"ds_write_b32 v{G+8}, v{CSA+4} offset:512", "csw"), e.ds(f"ds_write_b32 v{G+8}, v{CSA+5} offset:768", "csw"),
                         e("s_mov_b64 exec, -1"))]
    def cs_read(src):
        l = [f"v_and_b32 v{G+8}, 31, v0", f"v_lshlrev_b32 v{G+8}, 4, v{G+8}", f"s_lshl_b32 s6, s{S_T0}, 9", f"s_add_u32 s6, s6, {src}",
             f"v_add_u32 v{G+8}, s6, v{G+8}",
             lambda: e.ds(f"ds_read_b128 {vr(G,4)}, v{G+8}", "csr"), lambda: e.ds(f"ds_read_b128 {vr(G+4,4)}, v{G+8} offset:512", "csr")]
        m = [lambda: e.wds("csr")]
        for i in range(2):
            b = G + 4 * i
            m += [f"v_add_f32 v{b}, v{b}, v{b+1}", f"v_add_f32 v{b+2}, v{b+2}, v{b+3}"]
        for i in range(2): m += [f"v_add_f32 v{G+4*i}, v{G+4*i}, v{G+4*i+2}"]
        for i in range(2): m += [f"v_cvt_pk_bf16_f32 v{G+4*i+1}, v{G+4*i}, v{G+4*i}"]
        for i in range(2): m += [f"v_and_b32 v{G+4*i+1}, s{S_MASK}, v{G+4*i+1}"]
        for i in range(2): m += [f"v_sub_f32 v{G+4*i+1}, v{G+4*i}, v{G+4*i+1}"]
        for i in range(2): m += [f"v_cvt_pk_bf16_f32 v{G+4*i}, v{G+4*i}, v{G+4*i+1}"]
        for i in range(2): m += [f"v_cndmask_b32 v{ST+2*i}, v{G+4*i}, 0, s[{S_HI}:{S_HI+1}]"]
        return l, m

    KA = -2.0 * math.log2(math.e) * math.sqrt(2.0 / math.pi)
    GST = P("GST", 18)
    def stat_check():
        ok = e.newlabel("sok"); sp = e.newlabel("ssp")
        e.wvm("stl")
        e(f"v_cmp_ne_u32 vcc, s{S_NON}, v{BEXT+3}\ns_cbranch_vccz {ok}\ns_mov_b32 s{S_CNT}, {SPIN_MAX}")
        e.label(sp)
        e(f"""s_sleep 4
buffer_load_dwordx2 {vr(BEXT+2,2)}, v{G}, {WS}, 0 offen {SC}
s_sub_u32 s{S_CNT}, s{S_CNT}, 1
s_waitcnt vmcnt(0)
v_cmp_ne_u32 vcc, s{S_NON}, v{BEXT+3}
s_cmp_eq_u32 s{S_CNT}, 0
s_cbranch_scc1 {ok}
s_cbranch_vccnz {sp}""")
        if 'spincnt' in X: e(f"s_sub_u32 s88, {SPIN_MAX + 1000}, s{S_CNT}")
        e.label(ok)
    def after_exchange(side):
        l, m = cs_read(L_CSA)
        side.add(l)
        side.add(f"""v_and_b32 v{S_}, s{S_MASK}, v{BEXT+2}
v_and_b32 v{BEXT}, 0xffff, v{BEXT+2}
v_rcp_f32 v{R_}, v{S_}
v_lshl_or_b32 v{BEXT}, v{BEXT+2}, 16, v{BEXT}
v_mul_f32 v{I2}, v{S_}, v{S_}
v_mul_f32 v{AC}, {f2u(KA)}, v{R_}
v_mul_f32 v{BC}, v{R_}, v{R_}
v_mov_b32 v{ST+1}, 0
v_mul_f32 v{BC}, v{BC}, v{AC}
v_mov_b32 v{ST+3}, 0
v_mul_f32 v{BC}, {f2u(0.044715)}, v{BC}
v_mov_b32 v{BEXT+1}, 0
v_mov_b32 v{BEXT+2}, 0
v_mov_b32 v{BEXT+3}, 0""")
        side.add(m)
    for f in reads(0) + reads(1): f()
    side = Side(e); dmaq = list(stage_dmas(e, 2)) + ([touch(e, 2)] if TOUCH else [])
    w2side = Side(e)
    if GT & 4:
        w2side.add(f"""s_min_u32 s6, s{S_TG}, 895
s_cmp_ge_u32 s6, 448
s_cselect_b32 s{SRD_T}, s{P_WU}, s{P_WG}
s_cselect_b32 s{SRD_T+1}, s{P_WU+1}, s{P_WG+1}
s_cselect_b32 s7, 448, 0
s_mov_b32 s{SRD_T+2}, {448*3584}
s_sub_u32 s6, s6, s7
s_mul_i32 s6, s6, 3584
s_add_u32 s6, s6, 1536
v_and_b32 v{TA}, 15, v0
v_lshlrev_b32 v{TA}, 7, v{TA}""")
        w2side.add([lambda: e.vm(f"buffer_load_dword v{TD}, v{TA}, s[{SRD_T}:{SRD_T+3}], s6 offen", "t2")])
    w2side.add(late); w2side.add(w2t_addr)
    for gp in range(28):
        sig, pos = gp // 4, gp % 4
        bar = None
        if pos == 2:
            def bar(sig=sig):
                if sig == 6: side.flush(); stat_check(); e.wds("csw")
                e.wvm(f"d{sig+1}"); e("s_barrier")
                if sig == 6: after_exchange(side)
                assert not dmaq
                dmaq.extend(stage_dmas(e, sig + 3))
                if sig == 0 and TOUCH: dmaq.append(touch(e, 3))
        if gp == GST:
            side.add([f"s_lshl_b32 s{S_G}, s{S_RB}, 2", f"s_add_u32 s{S_G}, s{S_G}, s{S_RT}", f"s_lshl_b32 s{S_G}, s{S_G}, 8", f"s_add_u32 s{S_G}, s{S_G}, {STAT}",
                      f"v_and_b32 v{G}, 31, v0", f"v_lshl_add_u32 v{G}, v{G}, 3, s{S_G}",
                      lambda: e.vm(f"buffer_load_dwordx2 {vr(BEXT+2,2)}, v{G}, {WS}, 0 offen {SC}", "stl")])
        if gp == 25: assert not w2side.q; side.add(cs_write(L_CSA))
        n = len(side.q) if gp < 26 else P('NEX', 10)
        while len(dmaq) > 4 - ((pos + 2) % 4): dmaq.pop(0)()
        e.stamp(f"xp{gp}")
        w2side.emit(0 if gp < P('WS0', 0) else 5 if gp < 2 else P('WSR', 3))
        position(gp, side, dmaq, n, bar)
    assert not w2side.q
    side.add(["s_nop 1", mfma(ACCA, ST, BEXT), mfma(ACCA + 16, ST + 2, BEXT)])
    carry = list(side.q)
    e.stamp("p1")

    KA = -2.0 * math.log2(math.e) * math.sqrt(2.0 / math.pi); KB = KA * 0.044715
    def gelu(acc, so, tb, keep=None, pk=0):
        l = []
        if pk:
            pr = lambda r: vr(r, 2)
            for k in range(0, 8, 2): l.append(f"v_pk_mul_f32 {pr(tb+k)}, {pr(acc+k)}, {pr(acc+k)}")
            for k in range(0, 8, 2): l.append(f"v_pk_fma_f32 {pr(tb+k)}, {pr(tb+k)}, {pr(AC)}, {pr(AC)} op_sel:[0,1,0] op_sel_hi:[1,1,0]")
            for k in range(0, 8, 2): l.append(f"v_pk_mul_f32 {pr(tb+k)}, {pr(tb+k)}, {pr(acc+k)}")
            for k in range(0, 8, 2): l += [f"v_exp_f32 v{tb+k}, v{tb+k}", f"v_exp_f32 v{tb+k+1}, v{tb+k+1}", f"v_pk_mul_f32 {pr(acc+k)}, {pr(acc+k)}, {pr(acc+8+k)}"]
            for k in range(0, 8, 2): l.append(f"v_pk_fma_f32 {pr(tb+k)}, {pr(tb+k)}, {pr(I2-1)}, {pr(I2-1)} op_sel:[0,1,1] op_sel_hi:[1,1,1]")
            for k in range(8): l.append(f"v_rcp_f32 v{tb+k}, v{tb+k}")
            for k in range(0, 8, 2): l.append(f"v_pk_mul_f32 {pr(acc+k)}, {pr(acc+k)}, {pr(tb+k)}")
        else:
            for k in range(8): l.append(f"v_mul_f32 v{tb+k}, v{acc+k}, v{acc+k}")
            for k in range(8): l.append(f"v_fma_f32 v{tb+k}, v{tb+k}, v{BC}, v{AC}")
            for k in range(8): l.append(f"v_mul_f32 v{tb+k}, v{tb+k}, v{acc+k}")
            for k in range(8): l += [f"v_exp_f32 v{tb+k}, v{tb+k}", f"v_mul_f32 v{acc+k}, v{acc+k}, v{acc+8+k}"]
            for k in range(8): l.append(f"v_fma_f32 v{tb+k}, v{tb+k}, v{I2}, v{I2}")
            for k in range(8): l.append(f"v_rcp_f32 v{tb+k}, v{tb+k}")
            for k in range(8): l.append(f"v_mul_f32 v{acc+k}, v{acc+k}, v{tb+k}")
        if keep is not None:
            return l + [f"v_cvt_pk_bf16_f32 v{keep+k}, v{acc+2*k}, v{acc+2*k+1}" for k in range(4)]
        for k in range(4): l.append(f"v_cvt_pk_bf16_f32 v{acc+8+k}, v{acc+2*k}, v{acc+2*k+1}")
        l.append(lambda: e.vm(f"buffer_store_dwordx4 {vr(acc+8,4)}, v{VL16}, {WS}, s{so} offen {SC}", "hs"))
        return l
    def h_off(line, dst):
        return f"""s_lshl_b32 s6, s{S_RB}, 2
s_add_u32 s6, s6, s{S_RT}
s_mul_i32 s6, s6, 144
s_lshl_b32 s{dst}, s{line}, 2
s_add_u32 s6, s6, s{dst}
s_add_u32 s6, s6, s{S_T0}
s_lshl_b32 s{dst}, s6, 10
s_add_u32 s{dst+1}, s{dst}, 1024"""
    def w2t_out(side):
        side.add(f"""v_lshrrev_b32 v{TP}, 5, v0
v_bfe_u32 v{TP+1}, v0, 2, 2
v_lshl_add_u32 v{TP}, v{TP}, 2, v{TP+1}
v_lshlrev_b32 v{TP}, 7, v{TP}
v_bfe_u32 v{TP+1}, v0, 4, 1
v_lshl_add_u32 v{TP}, v{TP+1}, 5, v{TP}
v_and_b32 v{TP+1}, 3, v0
v_lshl_add_u32 v{TP}, v{TP+1}, 3, v{TP}
s_lshr_b32 s6, s{S_W}, 1
s_lshl_b32 s6, s6, 11
s_and_b32 s{S_A}, s{S_W}, 1
s_lshl_b32 s{S_B}, s{S_A}, 6
s_add_u32 s6, s6, s{S_B}
s_add_u32 s6, s6, {L_W2T}
v_add_u32 v{TP}, s6, v{TP}""")
        side.add([lambda: (e.ds(f"ds_read_b64_tr_b16 {vr(PL,2)}, v{TP}", "w2tr"), e.ds(f"ds_read_b64_tr_b16 {vr(PL+2,2)}, v{TP} offset:1024", "w2tr")),
                  f"s_lshl_b32 s6, s{S_U}, 11", f"s_lshl_b32 s{S_A}, s{S_A}, 10", f"s_add_u32 s6, s6, s{S_A}", f"s_add_u32 s{S_TO}, s6, {W2T}",
                  lambda: (e.wds("w2tr"), e.vm(f"buffer_store_dwordx4 {vr(PL,4)}, v{VL16}, {WS}, s{S_TO} offen {SC}", "w2ts"))])
    GEND = P("GEND", 22); GW2 = P("GW2", 22); GFQ = P("GFQ", 9)
    GX, GBN, GFL, QRATE = P("GX", 0), P("GBN", 2), P("GFL", 6 if SPLITQ else 9), P("QRATE", 40)
    def pass2(qfirst):
        side = Side(e); dq = list(dmaq); side.q = list(carry)
        for g in range(28):
            gp = 28 + g
            pre = []; wd = []; wv = []; post = []
            if g == 0:
                if not qfirst and 'nogelu' in X: pass
                elif not qfirst:
                    side.add(h_off(S_LA, S_C))
                    ga = gelu(ACCA, S_C, G); gb = gelu(ACCA + 16, S_D, G)
                    k = P('HSD', 68)
                    side.add(ga[:-1] + gb[:k] + ga[-1:] + gb[k:])
                else: qkv_part1(side)
            if g == 6:
                post.append(lambda: dq.extend(stage_dmas(e, 10) + [lambda: (e(f"s_add_u32 m0, s{S_WB}, {L_W2T}\ns_nop 0"),
                            e.vm(f"buffer_load_dwordx4 v{VT}, s[{SRD_T}:{SRD_T+3}], s{S_TO} offen lds", "w2td"))]))
            if g == GW2: wv.append("w2td")
            if g in (6, 14, 22): wv.append(f"d{8 + g // 8}")
            if qfirst and g == GBN: pre.append(side.flush); wd.append("kvw"); post.append(lambda: qkv_part2(side))
            if qfirst and g == GFQ and SPLITQ:
                pre.append(side.flush); wv.append("qs")
                post.append(lambda: flag_store(e, f"""s_lshl_b32 s6, s{S_RB}, 5
s_add_u32 s6, s6, s{S_QU}
s_lshl_b32 s6, s6, 2
s_add_u32 s6, s6, {F_Q}
v_mov_b32 v{TP}, s6""", 1, TP))
            if qfirst and g == GFL:
                if SPLITQ: pre.append(lambda: e(f"s_waitcnt vmcnt({len(e.q['vm']) - e.mark['kvs']})")); wd.append("kvw")
                else: pre.append(side.flush); wv.append("qs")
                post.append(lambda: flag_store(e, f"""s_lshl_b32 s6, s{S_RB}, 2
s_add_u32 s6, s6, s{S_QU}
s_lshl_b32 s6, s6, 2
s_add_u32 s6, s6, {F_KV}
v_lshlrev_b32 v{TP}, 8, v0
v_add_u32 v{TP}, s6, v{TP}""", RKV, TP))
            if g == GW2 + 1 and 'now2o' not in X:
                q0 = side.q; side.q = []; w2t_out(side); side.q += q0
            if g == 24: side.flush()
            if g == P("GKP", 27):
                poll_issue(e, f"""s_and_b32 s6, s2, {RKV-1}
s_lshl_b32 s6, s6, 8
s_add_u32 s6, s6, {F_KV}
v_lshl_add_u32 v{PL}, v0, 2, s6""" + (f"""
s_lshl_b32 s6, s{S_RB}, 5
s_add_u32 s6, s6, s{S_QU}
s_lshl_b32 s6, s6, 2
s_add_u32 s6, s6, {F_Q}
v_mov_b32 v{PL+2}, s6
buffer_load_dword v{PL+3}, v{PL+2}, {WS}, 0 offen {SC}""" if SPLITQ else ""), PL, PL + 1, "kvp")
            if g == 25 and 'nocs' not in X:
                side.flush(); side.add(cs_write(L_CSB))
            if g == 26 and 'nocs' not in X:
                pre.append(side.flush); wd.append("csw")
                def p():
                    l, m = cs_read(L_CSB); side.add(l); side.add(m)
                post.append(p)
            bar = None
            if wd or wv:
                def bar():
                    for f in pre: f()
                    if wd: e.wds(*wd)
                    if wv: e.wvm(*wv)
                    e("s_barrier")
                    for f in post: f()
            if qfirst: n = QRATE if g < 9 else 12
            else: n = -(-len(side.q) // max(1, GEND - g)) if g < GEND else 12
            e.stamp(f"xg{g}")
            position(gp, side, dq, n, bar)
        side.flush()
        e.stamp("xpe2")
        e("s_nop 1")
        e(mfma(ACCB, ST, BEXT)); e(mfma(ACCB + 16, ST + 2, BEXT))
    RQ = PL
    def qkv_part1(side):
        side.add(f"""v_mul_f32 v{RQ}, {f2u(28 ** -0.5 * math.log2(math.e))}, v{R_}
v_and_b32 v{G+8}, 31, v0
v_lshlrev_b32 v{G+8}, 5, v{G+8}
s_lshl_b32 s6, s{S_RT}, 10
s_add_u32 s6, s6, {L_KVB}
v_add_u32 v{G+8}, s6, v{G+8}
s_mov_b32 s{S_D}, 0x00003f80
s_cmp_lt_u32 s{S_QU}, 2
s_cselect_b32 s{S_C}, 0x3f803f80, s{S_D}
s_cselect_b32 s{S_D}, s{S_D}, 0
s_nop 1""")
        for i, st_ in ((0, S_T0), (1, S_T1)):
            acc = ACCA + 16 * i; b = G + 4 * i
            for k in range(4): side.add([f"v_mul_f32 v{b+k}, v{acc+12+k}, v{R_}"])
            side.add(f"""s_sub_u32 s6, 3, s{st_}
s_lshl_b32 s{S_A}, s{st_}, 2
s_lshr_b32 s{S_A}, 0x0132, s{S_A}
s_and_b32 s{S_A}, s{S_A}, 3
s_bitcmp1_b32 s{S_QU}, 0
s_cselect_b32 s6, s{S_A}, s6
s_cselect_b32 s{S_A}, s{S_A}, 0
s_lshl_b32 s6, s6, 3
v_cvt_pk_bf16_f32 v{b}, v{b}, v{b+1}
v_cvt_pk_bf16_f32 v{b+1}, v{b+2}, v{b+3}
v_add_u32 v{b+2}, s6, v{G+8}""")
            def wr(b=b):
                l = e.newlabel("nc")
                e(f"s_cmp_eq_u32 s{S_A}, 3\ns_cbranch_scc0 {l}\nv_mov_b32 v{b}, s{S_C}\nv_mov_b32 v{b+1}, s{S_D}")
                e.label(l)
                e(f"s_mov_b64 exec, s[{S_HI}:{S_HI+1}]")
                e.ds(f"ds_write_b64 v{b+2}, {vr(b,2)}", "kvw")
                e("s_mov_b64 exec, -1")
            side.add([wr])
    def qkv_part2(side):
        def kv():
            l = e.newlabel("kvs"); lv = e.newlabel("kvv"); ls = e.newlabel("kvt")
            e(f"""s_cmp_eq_u32 s{S_CG}, 0
s_cbranch_scc0 {l}
s_lshl_b32 s6, s{S_RB}, 2
s_add_u32 s6, s6, s{S_RT}
s_lshl_b32 s6, s6, 12
s_add_u32 s6, s6, {KVF}
s_lshl_b32 s{S_A}, s{S_RT}, 10
s_add_u32 s{S_A}, s{S_A}, {L_KVB}
s_cmp_lt_u32 s{S_QU}, 2
s_cbranch_scc0 {lv}
v_and_b32 v{G}, 31, v0
v_lshrrev_b32 v{G+1}, 5, v0
v_lshlrev_b32 v{G}, 5, v{G}
v_lshl_add_u32 v{G}, v{G+1}, 3, v{G}
v_add_u32 v{G}, s{S_A}, v{G}
ds_read2_b64 {vr(G+4,4)}, v{G} offset0:0 offset1:2
s_lshl_b32 s{S_A}, s{S_QU}, 10
s_add_u32 s6, s6, s{S_A}
v_mov_b32 v{G+2}, v{VL16}
s_branch {ls}""")
            e.label(lv)
            e(f"""v_lshrrev_b32 v{G}, 5, v0
v_bfe_u32 v{G+1}, v0, 4, 1
v_lshlrev_b32 v{G+2}, 10, v{G}
v_lshl_add_u32 v{G+2}, v{G+1}, 9, v{G+2}
v_lshlrev_b32 v{G}, 4, v{G}
v_lshl_add_u32 v{G}, v{G+1}, 2, v{G}
v_bfe_u32 v{G+1}, v0, 2, 2
v_add_u32 v{G}, v{G}, v{G+1}
v_lshlrev_b32 v{G}, 5, v{G}
v_and_b32 v{G+1}, 3, v0
v_lshl_add_u32 v{G}, v{G+1}, 3, v{G}
v_add_u32 v{G}, s{S_A}, v{G}
ds_read_b64_tr_b16 {vr(G+4,2)}, v{G}
ds_read_b64_tr_b16 {vr(G+6,2)}, v{G} offset:256
v_and_b32 v{G+1}, 15, v0
v_lshl_add_u32 v{G+2}, v{G+1}, 4, v{G+2}
s_and_b32 s{S_A}, s{S_QU}, 1
s_lshl_b32 s{S_A}, s{S_A}, 8
s_add_u32 s6, s6, s{S_A}
s_add_u32 s6, s6, 2048""")
            e.label(ls)
            e(f"s_waitcnt lgkmcnt(0)\nbuffer_store_dwordx4 {vr(G+4,4)}, v{G+2}, {WS}, s6 offen {SC}")
            e.label(l)
            e.mark['kvs'] = len(e.q['vm'])
        side.add([kv])
        side.add(f"""s_lshl_b32 s6, s{S_RB}, 2
s_add_u32 s6, s6, s{S_RT}
s_lshl_b32 s6, s6, 2
s_add_u32 s6, s6, s{S_QU}
s_lshl_b32 s6, s6, 2
s_add_u32 s6, s6, s{S_T0}
s_lshl_b32 s6, s6, 11
s_add_u32 s{S_C}, s6, {QF}""")
        for i in range(2):
            acc = ACCA + 16 * i
            if P('PK', 0) & 4:
                for k in range(0, 16, 2): side.add([f"v_pk_mul_f32 {vr(acc+k,2)}, {vr(acc+k,2)}, {vr(RQ,2)} op_sel_hi:[1,0]"])
            else:
                for k in range(16): side.add([f"v_mul_f32 v{acc+k}, v{acc+k}, v{RQ}"])
            for k in range(8): side.add([f"v_cvt_pk_bf16_f32 v{acc+k}, v{acc+2*k}, v{acc+2*k+1}"])
            side.add([f"v_cndmask_b32 v{acc+6}, v{acc+6}, 0, s[{S_HI}:{S_HI+1}]", f"v_cndmask_b32 v{acc+7}, v{acc+7}, 0, s[{S_HI}:{S_HI+1}]",
                      lambda acc=acc, i=i: e.vm(f"buffer_store_dwordx4 {vr(acc,4)}, v{VL16}, {WS}, s{S_C} offen offset:{2048*i} {SC}", "qs"),
                      lambda acc=acc, i=i: e.vm(f"buffer_store_dwordx4 {vr(acc+4,4)}, v{VL16}, {WS}, s{S_C} offen offset:{2048*i+1024} {SC}", "qs")])
    e(f"s_cmp_eq_u32 s{S_ISQ}, 1\ns_cbranch_scc1 B_p2q")
    sn = e.snap(); hs = {k: list(v) for k, v in half.items()}; ns = e.nst
    pass2(False)
    e("s_branch B_join")
    e.label("B_p2q")
    e.nst = ns
    e.restore(sn); half.update({k: list(v) for k, v in hs.items()})
    pass2(True)
    e.label("B_join")
    e.q = {'ds': [], 'vm': []}; e.done = {'ds': 0, 'vm': 0}; e.mark['kvp'] = 0
    e.stamp("join")
    return gelu, h_off

LB0, LB1, VO = 3, 4, 5
Q, O, S0, PP, K, V0, V1 = 36, 44, 64, 96, 104, 112, 120
FA, FB = 128, 192
XRES = 244
S_KH, S_QT, S_KVO, S_WB4, S_FA, S_FB0, S_FB1, S_OO = 50, 51, 54, 55, 56, 57, 59, 60
S_FQ, S_K1 = 62, 63
F0 = P("F0", 8)
FP = P("FP", 2)
HBP = P("HBP", 10)
F3 = P("F3", 40)
WOP = 18

def kv_dma(e, st):
    def m(): e(f"s_add_u32 m0, s{S_WB4}, {((st + 3) % 4) * RING}" + ("\ns_nop 0" if st < 3 else ""))
    m.scalar = True
    l = [m]
    for f in range(4):
        l.append(lambda f=f: (e.vm(f"buffer_load_dwordx4 v{VL16}, {WS}, s{S_KVO} offen offset:{1024*f} {SC} lds", f"k{st}"),
                              e(f"s_add_u32 s{S_KVO}, s{S_KVO}, 16384") if f == 3 else None))
    return l

NB = P("NB", 4)
FBUF = [[FB + 16 * n + 4 * k for k in range(4)] for n in range(3)] + [[60, 124, 248, 252]]
def f_loads(e, q):
    bb = FBUF[q % NB]
    r = q if q < 6 else q - 6
    advA = advB = None
    if q == 5:
        advA = f"s_add_u32 s{S_FA}, s{S_FA}, s{S_FQ}"
        advB = f"s_add_u32 s{S_FB0}, s{S_FB0}, s{S_K1}\ns_add_u32 s{S_FB1}, s{S_FB1}, s{S_K1}"
    else:
        if r & 1: advA = f"s_add_u32 s{S_FA}, s{S_FA}, 4096"
        if (r & 3) == 3: advB = f"s_add_u32 s{S_FB0}, s{S_FB0}, 4096\ns_add_u32 s{S_FB1}, s{S_FB1}, 4096"
    return [lambda: e.vm(f"buffer_load_dwordx4 {vr(bb[0],4)}, v{VL16}, {WS}, s{S_FA} offen offset:{(r&1)*2048} {SC}", f"f{q}"),
            lambda: e.vm(f"buffer_load_dwordx4 {vr(bb[2],4)}, v{VL16}, {WS}, s{S_FB0} offen offset:{(r&3)*1024} {SC}", f"f{q}"),
            lambda: (e.vm(f"buffer_load_dwordx4 {vr(bb[1],4)}, v{VL16}, {WS}, s{S_FA} offen offset:{(r&1)*2048+1024} {SC}", f"f{q}"),
                     e(advA) if advA else None),
            lambda: (e.vm(f"buffer_load_dwordx4 {vr(bb[3],4)}, v{VL16}, {WS}, s{S_FB1} offen offset:{(r&3)*1024} {SC}", f"f{q}"),
                     e(advB) if advB else None)]
def f_mfma(q, k):
    bb = FBUF[q % NB]; r2, d2 = ((0, 0), (0, 1), (1, 1), (1, 0))[k]
    return mfma(FA + 32*r2 + 16*d2, bb[d2], bb[2 + r2], "0" if q == 0 else None)

S_OA, S_OL = 61, 75
OAREG = [8 + 4 * k for k in range(7)] + [FB + 4 * k for k in range(9)]
def oa_dma(e, n):
    def f():
        if n == 0: e(f"s_add_u32 m0, s{S_OL}, {3 * RING}\ns_nop 0")
        if n == 4: e(f"s_mov_b32 m0, s{S_OL}\ns_add_u32 s{S_OA}, s{S_OA}, 8192")
        e.vm(f"buffer_load_dwordx4 v{VL16}, {WS}, s{S_OA} offen offset:{(n & 3) * 1024} {SC} lds", "oa")
    return f
KVPRE = P('KVPRE', 2)
HDEF = P('HDEF', 1); HFL = P('HFL', 6 if HDEF else 2); S_HO = 47
def attn_setup(e, gelu, h_off):
    e(h_off(S_LB, S_C))
    e(f"""s_mov_b32 s{S_QT}, s{S_RT}
s_mov_b32 s{S_KH}, s{S_CG}
s_lshl_b32 s{S_WB4}, s{S_W}, 12
s_lshl_b32 s6, s{S_KH}, 5
s_add_u32 s6, s6, s{S_QT}
s_lshl_b32 s6, s6, 12
s_add_u32 s{S_KVO}, s6, {KVF}
s_lshl_b32 s6, s{S_RB}, 2
s_add_u32 s6, s6, s{S_QT}
s_lshl_b32 s7, s6, 4
s_add_u32 s7, s7, s{S_J}
s_lshl_b32 s7, s7, 11
s_add_u32 s7, s7, {QF}""")
    if HDEF: e(f"s_mov_b32 s{S_HO}, s{S_C}")
    g0 = gelu(ACCB, S_C, G, 16 if HDEF else None, P('PK', 0) & 1); g1 = gelu(ACCB + 16, S_D, G + 8, 20 if HDEF else None, P('PK', 0) & 1)
    nfirst = P("GFIRST", 0)
    both = g0 + g1
    if P('GIL', 1): both = [x for p in zip(g0, g1) for x in p]
    for it in both[:nfirst]: it() if callable(it) else e(it)
    assert nfirst == 0
    poll_check(e, PL, PL + 1, "kvp", P("KSLEEP", 1))
    if SPLITQ: poll_check(e, PL + 2, PL + 3, "kvp", P("KSLEEP", 1))
    e.all_vm()
    e("s_barrier")
    e.stamp("xkv")
    flag_store(e, f"""s_lshl_b32 s6, s{S_RB}, 5
s_add_u32 s6, s6, s{S_J}
s_lshl_b32 s6, s6, 2
s_add_u32 s6, s6, {F_H + 64}
s_lshl_b32 s{S_A}, s{S_WF}, 2
s_add_u32 s{S_A}, s{S_A}, {F_W}
s_sub_u32 s{S_A}, s{S_A}, s6
v_mul_lo_u32 v{PL}, v0, s{S_A}
v_add_u32 v{PL}, s6, v{PL}""", 2, PL)
    if P("KVT", 0):
        e(f"""s_lshr_b32 s6, s2, 3
s_lshl_b32 s6, s6, 3
s_add_u32 s6, s6, s{S_W}
s_lshl_b32 s6, s6, 10
s_add_u32 s6, s6, {KVF}
v_and_b32 v{TP}, 7, v0
v_lshlrev_b32 v{TP}, 7, v{TP}""")
        e.vm(f"buffer_load_dword v{TP+1}, v{TP}, {WS}, s6 offen {SC}", "kvt")
    side = Side(e)
    side.add(kv_dma(e, 0))
    side.add([lambda: e.vm(f"buffer_load_dwordx4 {vr(Q,4)}, v{VL16}, {WS}, s7 offen {SC}", "q"),
              lambda: e.vm(f"buffer_load_dwordx4 {vr(Q+4,4)}, v{VL16}, {WS}, s7 offen offset:1024 {SC}", "q")])
    side.emit(P("KPRE0", 7))
    for st in range(1, KVPRE): side.add(kv_dma(e, st))
    for n, it in enumerate(both[nfirst:]):
        it() if callable(it) else e(it)
        if n % P('GSP', 1000) == P('GSP', 1000) - 1: side.emit(1)
        if n == 68: e.stamp("xg69")
    e.stamp("xgv")
    side.flush()
    e(f"""s_lshl_b32 s6, s{S_KH}, 14
v_add_u32 v{LB0}, s6, v{VL16}
v_add_u32 v{LB1}, 0x10000, v{LB0}
s_lshl_b32 s6, s{S_RB}, 2
s_add_u32 s6, s6, s{S_QT}
s_mul_i32 s6, s6, 144
s_lshl_b32 s7, s{S_J}, 1
s_add_u32 s6, s6, s7
s_add_u32 s6, s6, s{S_KH}
s_add_u32 s6, s6, 112
s_lshl_b32 s{S_OO}, s6, 10""")

def rd(e, dst, tile, f, tag):
    sl = (tile // 4 + 3) % 4
    e.ds(f"ds_read_b128 {vr(dst,4)}, v{LB0 if sl < 2 else LB1} offset:{(sl & 1) * RING + (tile % 4) * 4096 + f * 1024}", tag)

def attn_loop(e, withF):
    e.stamp("xge")
    if P("PRIO", 2) == 2:
        l = e.newlabel("np"); e(f"s_cmp_ge_u32 s{S_W}, 4\ns_cbranch_scc0 {l}\ns_setprio 1"); e.label(l)
    if P("PRIO", 2) == 5: e("s_setprio 0")
    e.wvm("k0", "q"); e.stamp("xk0"); e("s_barrier")
    e.stamp("astart")
    rd(e, K, 0, 0, "a"); rd(e, K + 4, 0, 1, "a"); rd(e, V0, 0, 2, "b")
    e.wds("a")
    e(mfma(S0, K, Q, "0")); e(mfma(S0, K + 4, Q + 4))
    rd(e, K, 1, 0, "b"); rd(e, K + 4, 1, 1, "b")
    if withF:
        e(f"""s_lshr_b32 s6, s{S_J}, 3
s_lshl_b32 s7, s{S_RB}, 1
s_add_u32 s6, s6, s7
s_and_b32 s7, s{S_J}, 7
s_mul_i32 s{S_A}, s{S_W}, 6
s_lshl_b32 s{S_K1}, s{S_W}, 1
s_add_u32 s{S_K1}, s{S_K1}, 44
s_lshl_b32 s{S_K1}, s{S_K1}, 10
s_lshl_b32 s{S_FQ}, s{S_K1}, 1
s_mul_i32 s{S_FB0}, s6, 288
s_add_u32 s{S_FB0}, s{S_FB0}, s{S_A}
s_lshl_b32 s{S_FB0}, s{S_FB0}, 10
s_add_u32 s{S_FB1}, s{S_FB0}, {144*1024}
s_bitcmp1_b32 s{S_W}, 0
s_cselect_b32 s{S_B}, s{S_FB1}, s{S_FB0}
s_cselect_b32 s{S_FB1}, s{S_FB0}, s{S_FB1}
s_mov_b32 s{S_FB0}, s{S_B}
s_mul_i32 s{S_FA}, s7, 144
s_add_u32 s{S_FA}, s{S_FA}, s{S_A}
s_lshl_b32 s{S_FA}, s{S_FA}, 11
s_add_u32 s{S_FA}, s{S_FA}, {W2T}
s_lshr_b32 s{S_A}, s{S_W}, 1
s_lshl_b32 s{S_A}, s{S_A}, 3
s_mul_i32 s{S_OA}, s7, 144
s_add_u32 s{S_OA}, s{S_OA}, s{S_A}
s_add_u32 s{S_OA}, s{S_OA}, 112
s_lshl_b32 s{S_OA}, s{S_OA}, 11
s_add_u32 s{S_OA}, s{S_OA}, {W2T}
s_and_b32 s{S_B}, s{S_W}, 1
s_lshl_b32 s{S_B}, s{S_B}, 12
s_add_u32 s{S_OA}, s{S_OA}, s{S_B}
s_lshl_b32 s{S_OL}, s{S_W}, 12""")
    else:
        e("s_nop 9")
    NT = 32
    fq = []
    nq = 0
    dq = []
    fi = 0
    need = {}; keep = []; done = [0]
    for i in range(NT):
        sc = S0 + 16 * (i & 1); sn = S0 + 16 * ((i + 1) & 1)
        v0c = V0 + 4 * (i & 1); v0n = V0 + 4 * ((i + 1) & 1)
        E = lambda r: f"v_exp_f32 v{r}, v{r}"
        C = lambda d, r: f"v_cvt_pk_bf16_f32 v{d}, v{r}, v{r+1}"
        def g(k): return [E(sc + 4*k + q) for q in range(4)] + [C(PP + 2*k, sc + 4*k), C(PP + 2*k + 1, sc + 4*k + 2)]
        g0, g1, g2, g3 = g(0), g(1), g(2), g(3)
        fm = []; fl = []
        if withF:
            if i == FP - 2:
                assert FP % 4 == 2
                fl = [lambda: poll_issue(e, f"""s_lshl_b32 s6, s{S_RB}, 7
s_add_u32 s6, s6, {F_H + 64}
s_and_b32 s7, s{S_J}, 7
s_lshl_b32 s7, s7, 8
s_add_u32 s7, s7, {F_W - 64}
v_lshl_add_u32 v{G}, v0, 2, s6
v_lshl_add_u32 v{G+1}, v0, 2, s7
v_mov_b32 v{G+2}, s6
s_mov_b32 s{S_A}, 0xffff0000
s_mov_b32 s{S_B}, 0x00000fff
s_mov_b32 s{S_C}, 0x00008888
s_mov_b32 s{S_D}, 0xfffff000
v_cndmask_b32 v{G}, v{G}, v{G+1}, s[{S_A}:{S_B}]
v_cndmask_b32 v{G}, v{G}, v{G+2}, s[{S_C}:{S_D}]""", G, G + 1, "hp")]
            if FP <= i < F0:
                if i == FP:
                    for q in range(NB - 1): fq += f_loads(e, q)
                n = -(-len(fq) // (F0 - i))
                fl = fq[:n]; fq = fq[n:]
            pb = []
            if i == HBP - 2:
                pb = [lambda: poll_issue(e, f"""s_lshl_b32 s6, s{S_RB}, 7
s_add_u32 s6, s6, {F_H}
v_and_b32 v{G}, 15, v0
v_lshl_add_u32 v{G}, v{G}, 2, s6""", G, G + 1, "hb")]
            if i == WOP - 2:
                pb = [lambda: poll_issue(e, f"""s_and_b32 s6, s{S_J}, 7
s_lshl_b32 s6, s6, 8
s_add_u32 s6, s6, {F_W + 112}
v_and_b32 v{G}, 7, v0
v_lshl_add_u32 v{G}, v{G}, 2, s6""", G, G + 1, "wo")]
            if i >= F0:
                cnt = 3 if i >= F3 else 2
                idx = list(range(fi, min(fi + cnt, 56))); fi += len(idx)
                fm = [(n // 4, n % 4) for n in idx]
                for (q, k) in fm:
                    if k == 0 and q + NB - 1 < 14:
                        if q + NB - 1 == 6: assert i > HBP
                        nl = f_loads(e, q + NB - 1)
                        for f in nl: need[id(f)] = 4 * q
                        keep.extend(nl); fq += nl
                n = min(len(fq), cnt)
                fl = fq[:n] + pb; fq = fq[n:]
        def em(x): x() if callable(x) else e(x)
        e.stamp(f"xa{i}")
        ex = [E(sc + k) for k in range(16)]; cv = [C(PP + k, sc + 2 * k) for k in range(8)]
        if i + KVPRE <= 2: dq += kv_dma(e, i + KVPRE)
        misc = []
        if i == 29: misc.append(comb_addr())
        if HDEF and i in (HDEF, HDEF + 1):
            misc.append(lambda i=i: e.vm(f"buffer_store_dwordx4 {vr(16 + 4*(i - HDEF),4)}, v{VL16}, {WS}, s{S_HO} offen offset:{1024*(i - HDEF)} {SC}", "hs"))
        if withF and 22 <= i < 30: misc.append(oa_dma(e, i - 22))
        gate = withF and i == FP
        def take(n):
            for _ in range(n):
                if fl and need.get(id(fl[0]), 0) <= done[0]: em(fl.pop(0))
        per = -(-len(fl) // 2)
        for x in ex[0:2]: em(x)
        def fmf(n):
            if n < len(fm):
                q, k = fm[n]
                e.wvm(f"f{q}"); e(f_mfma(q, k)); done[0] += 1
        if fm and fm[0][1] == 0: e.wboth(f"f{fm[0][0]}")
        else: e.all_ds()
        if i > 0: e(mfma(O, V1, PP + 4))
        rd(e, V1, i, 3, "c")
        for x in ex[2:5]: em(x)
        fmf(0)
        if not gate: take(1 if fm else per)
        for x in cv[0:2] + ex[5:7]: em(x)
        if i + 1 < NT: e(mfma(sn, K, Q, "0")); rd(e, v0n, i + 1, 2, "c")
        for x in ex[7:10]: em(x)
        if i + 1 < NT: e(mfma(sn, K + 4, Q + 4))
        if i % 4 == 2 and i + 2 < NT:
            st = i // 4
            if withF and i == FP: poll_check(e, G, G + 1, "hp")
            if withF and i == HBP: poll_check(e, G, G + 1, "hb")
            if withF and i == WOP: poll_check(e, G, G + 1, "wo")
            while dq and i == 2: dq.pop(0)()
            e.wvm(*([f"k{st+1}"] + (["hs"] if i == HFL else []))); e("s_barrier")
            if i == HFL:
                flag_store(e, f"""s_lshl_b32 s6, s{S_RB}, 5
s_add_u32 s6, s6, s{S_J}
s_lshl_b32 s6, s6, 2
s_add_u32 s6, s6, {F_H}
v_mov_b32 v{G+2}, s6""", 1, G + 2)
            assert not dq
            if st + 3 <= 7: dq += kv_dma(e, st + 3)
        if i + 2 < NT: rd(e, K, i + 2, 0, "c"); rd(e, K + 4, i + 2, 1, "c")
        if dq and getattr(dq[0], "scalar", False): dq.pop(0)()
        for x in cv[2:4] + ex[10:12]: em(x)
        fmf(1)
        take(1 if fm else len(fl) if not gate else per)
        for x in ex[12:14] + cv[4:6]: em(x)
        e(mfma(O, v0c, PP, "0" if i == 0 else None))
        for _ in range(1 if i >= 2 else 2):
            if dq: dq.pop(0)()
        if len(fm) < 3: take(len(fl))
        for x in misc: em(x)
        for x in ex[14:16] + cv[6:7]: em(x)
        fmf(2); take(len(fl))
        fq = fl + fq
        em(cv[7])
        if i + 2 >= NT: e("s_nop 1")
    e.all_ds()
    e("s_nop 0")
    e(mfma(O, V1, PP + 4))
    return fi, fq

CMB = L_W2T
def comb_addr():
    T = G
    return f"""s_lshl_b32 s6, s{S_W}, 11
s_add_u32 s6, s6, {CMB}
v_add_u32 v{T}, s6, v{VL16}
v_xor_b32 v{T+1}, 8192, v{T}
s_lshl_b32 s6, s{S_W}, 8
s_add_u32 s6, s6, {CMB + 16384}
v_lshl_add_u32 v{T+2}, v0, 2, s6
v_or_b32 v{T+3}, 32, v0
s_lshl_b32 s6, s{S_QT}, 8
s_add_u32 s6, s6, {CMB + 16384}
v_lshl_add_u32 v{T+3}, v{T+3}, 2, s6
s_mov_b32 s{S_C}, {f2u(2.0 ** -64)}
s_mov_b32 s{S_D}, {f2u(2.0 ** 64)}
s_lshl_b32 s6, s{S_RB}, 9
s_add_u32 s6, s6, s{S_J}
s_lshl_b32 s6, s6, 2
s_add_u32 s6, s6, {F_O2}
v_lshl_add_u32 v6, v0, 7, s6
v_mov_b32 v7, s{S_NON}"""

def attn_finish(e, withF=False):
    T = G
    e.stamp("aend")
    hi = e.newlabel("chi"); jn = e.newlabel("cjn"); fb = e.newlabel("cfb"); bk = e.newlabel("cbk")
    e(f"s_cmp_eq_u32 s{S_KH}, 0\ns_nop 10")
    e.ds(f"ds_write_b32 v{T+2}, v{O+12}")
    e(f"s_cbranch_scc0 {hi}")
    e.ds(f"ds_write_b128 v{T}, {vr(O+8,4)}"); e.ds(f"ds_write_b128 v{T}, {vr(O+12,4)} offset:1024")
    e(f"s_branch {jn}")
    e.label(hi)
    e(f"ds_write_b128 v{T}, {vr(O,4)}\nds_write_b128 v{T}, {vr(O+4,4)} offset:1024")
    e.all_ds()
    for k in range(8): e(f"v_mov_b32 v{O+k}, v{O+8+k}")
    e.label(jn)
    if withF: e.wboth("oa")
    else: e.all_ds()
    e.stamp("xc0")
    e("s_barrier")
    e.stamp("xc1")
    e.ds(f"ds_read2st64_b32 {vr(PP,2)}, v{T+3} offset0:0 offset1:4", "l")
    e.ds(f"ds_read_b128 {vr(S0,4)}, v{T+1}", "h0"); e.ds(f"ds_read_b128 {vr(S0+4,4)}, v{T+1} offset:1024", "h1")
    e(f"s_mov_b32 s{S_A}, 0\ns_sub_u32 s{S_B}, 0, s{S_KH}")
    e.wds("l")
    e(f"""v_add_f32 v{PP}, v{PP}, v{PP+1}
v_rcp_f32 v{PP+1}, v{PP}
v_cmp_nle_f32 vcc, s{S_C}, v{PP}
v_cmp_nge_f32 s[{S_E}:{S_F}], s{S_D}, v{PP}""")
    e.all_ds()
    for k in range(8): e(f"v_add_f32 v{S0+k}, v{S0+k}, v{O+k}")
    e(f"s_or_b64 s[{S_E}:{S_F}], s[{S_E}:{S_F}], vcc")
    for k in range(8): e(f"v_mul_f32 v{S0+k}, v{S0+k}, v{PP+1}")
    def pack_store():
        for k in range(4): e(f"v_cvt_pk_bf16_f32 v{K+k}, v{S0+2*k}, v{S0+2*k+1}")
        e(f"""v_cndmask_b32 v{K+2}, v{K+2}, 0, s[{S_A}:{S_B}]
v_cndmask_b32 v{K+3}, v{K+3}, 0, s[{S_A}:{S_B}]""")
    pack_store()
    e.vm(f"buffer_store_dwordx4 {vr(K,4)}, v{VL16}, {WS}, s{S_OO} offen {SC}", "os")
    e(f"""v_add_f32 v{PP+2}, |v{S0}|, |v{S0+1}|
v_add_f32 v{PP+3}, |v{S0+2}|, |v{S0+3}|
v_add_f32 v{PP+4}, |v{S0+4}|, |v{S0+5}|
v_add_f32 v{PP+5}, |v{S0+6}|, |v{S0+7}|
v_add_f32 v{PP+2}, v{PP+2}, v{PP+3}
v_add_f32 v{PP+4}, v{PP+4}, v{PP+5}
s_mov_b32 s6, 0x7f7fffff
v_add_f32 v{PP+2}, v{PP+2}, v{PP+4}
v_cmp_nge_f32 vcc, s6, v{PP+2}
s_nop 1
s_or_b64 vcc, vcc, s[{S_E}:{S_F}]""")
    if 'forcefb' in X: e("s_mov_b64 vcc, 1")
    e(f"s_cbranch_vccnz {fb}")
    e.label(bk)
    FALLBACKS.append((fb, bk))
    e.stamp("xc2")

FALLBACKS = []
def fallback(e, fb, bk):
    l1 = e.newlabel("fb1"); l2 = e.newlabel("fb2"); l3 = e.newlabel("fb3")
    M = PP + 7
    e.label(fb)
    if 'fbcount' in X:
        e(f"""s_mov_b32 s80, s{P_DBG}
s_mov_b32 s81, s{P_DBG+1}
s_mov_b32 s82, 256
s_mov_b32 s83, 0x00020000
v_mov_b32 v{M}, 0
v_mov_b32 v{M-1}, 1
s_mov_b64 exec, 1
buffer_atomic_add v{M-1}, v{M}, s[80:83], 0 offen
v_mov_b32 v{M-1}, s2
buffer_store_dword v{M-1}, v{M}, s[80:83], 0 offen offset:4
v_mov_b32 v{M-1}, s{S_W}
buffer_store_dword v{M-1}, v{M}, s[80:83], 0 offen offset:8
v_mov_b32 v{M-1}, vcc_lo
buffer_store_dword v{M-1}, v{M}, s[80:83], 0 offen offset:12
v_mov_b32 v{M-1}, vcc_hi
buffer_store_dword v{M-1}, v{M}, s[80:83], 0 offen offset:16
v_mov_b32 v{M-1}, s{S_E}
buffer_store_dword v{M-1}, v{M}, s[80:83], 0 offen offset:20
v_mov_b32 v{M-1}, s{S_F}
buffer_store_dword v{M-1}, v{M}, s[80:83], 0 offen offset:24
buffer_store_dword v{PP}, v{M}, s[80:83], 0 offen offset:28
buffer_store_dword v{PP+2}, v{M}, s[80:83], 0 offen offset:32
s_waitcnt vmcnt(0)
s_mov_b64 exec, -1""")
    e(f"s_mov_b32 s6, {KVF}\nv_mov_b32 v{M}, 0xff800000")
    e.label(l1)
    e(f"""buffer_load_dwordx4 {vr(K,4)}, v{VL16}, {WS}, s6 offen {SC}
buffer_load_dwordx4 {vr(K+4,4)}, v{VL16}, {WS}, s6 offen offset:1024 {SC}
s_add_u32 s6, s6, 4096
s_waitcnt vmcnt(0)""")
    e(mfma(S0, K, Q, "0")); e(mfma(S0, K + 4, Q + 4))
    e("s_nop 11")
    for k in range(8): e(f"v_max3_f32 v{M}, v{M}, v{S0+2*k}, v{S0+2*k+1}")
    e(f"""s_cmp_lt_u32 s6, {KVF + 64*4096}
s_cbranch_scc1 {l1}
v_mov_b32 v{PP}, v{M}
s_nop 1
v_permlane32_swap_b32 v{PP}, v{M}
v_max_f32 v{M}, v{M}, v{PP}
v_cvt_pk_bf16_f32 v{PP}, v{M}, v{M}
v_and_b32 v{PP}, s{S_MASK}, v{PP}
v_sub_f32 v{PP+1}, v{M}, v{PP}
v_cvt_pk_bf16_f32 v{PP+2}, v{PP+1}, v{PP+1}
v_and_b32 v{PP+2}, s{S_MASK}, v{PP+2}
v_sub_f32 v{PP+1}, v{PP+1}, v{PP+2}
v_cvt_pk_bf16_f32 v{PP}, -v{PP}, -v{PP+2}
v_cvt_pk_bf16_f32 v{PP+1}, -v{PP+1}, 0
v_cndmask_b32 v{Q+6}, v{Q+6}, v{PP}, s[{S_HI}:{S_HI+1}]
v_cndmask_b32 v{Q+7}, v{Q+7}, v{PP+1}, s[{S_HI}:{S_HI+1}]
s_mov_b32 s6, {KVF}""")
    for k in range(16): e(f"v_mov_b32 v{O+k}, 0")
    e.label(l2)
    for f in range(4): e(f"buffer_load_dwordx4 {vr(K+4*f,4)}, v{VL16}, {WS}, s6 offen offset:{1024*f} {SC}")
    e("s_add_u32 s6, s6, 4096\ns_waitcnt vmcnt(0)")
    e(mfma(S0, K, Q, "0")); e(mfma(S0, K + 4, Q + 4))
    e("s_nop 11")
    for k in range(16): e(f"v_exp_f32 v{S0+k}, v{S0+k}")
    e("s_nop 0")
    for k in range(8): e(f"v_cvt_pk_bf16_f32 v{PP+k}, v{S0+2*k}, v{S0+2*k+1}")
    e("s_nop 1")
    e(mfma(O, K + 8, PP)); e(mfma(O, K + 12, PP + 4))
    e(f"""s_cmp_lt_u32 s6, {KVF + 64*4096}
s_cbranch_scc1 {l2}
s_nop 11
v_mov_b32 v{PP}, v{O+12}
v_mov_b32 v{PP+1}, v{O+12}
s_cmp_eq_u32 s{S_KH}, 0
s_nop 0
v_permlane32_swap_b32 v{PP}, v{PP+1}
v_rcp_f32 v{PP+1}, v{PP+1}
s_cbranch_scc1 {l3}""")
    for k in range(8): e(f"v_mov_b32 v{O+k}, v{O+8+k}")
    e.label(l3)
    e("s_nop 0")
    for k in range(8): e(f"v_mul_f32 v{S0+k}, v{O+k}, v{PP+1}")
    for k in range(4): e(f"v_cvt_pk_bf16_f32 v{K+k}, v{S0+2*k}, v{S0+2*k+1}")
    e(f"""v_cndmask_b32 v{K+2}, v{K+2}, 0, s[{S_A}:{S_B}]
v_cndmask_b32 v{K+3}, v{K+3}, 0, s[{S_A}:{S_B}]
buffer_store_dwordx4 {vr(K,4)}, v{VL16}, {WS}, s{S_OO} offen {SC}
s_waitcnt vmcnt(0)
s_branch {bk}""")

OFA, OFD = 6, 7
def o_signal(e):
    l = e.newlabel("os")
    e(f"s_cbranch_vccz {l}\ns_mov_b64 exec, 0xffff\nbuffer_store_dword v{OFD}, v{OFA}, {WS}, 0 offen {SC}\ns_mov_b64 exec, -1")
    e.label(l)

def o_flag(e):
    e.stamp("xc3")
    e(f"s_cmp_eq_u32 s{S_W}, 0\ns_cselect_b64 vcc, -1, 0")
    e.wvm("os"); e.stamp("xc4"); e("s_barrier")
    o_signal(e)

def tail(e, nq, fq):
    T = G
    SUM = 232
    RB = 64
    OBR = [96 + 4 * k for k in range(7)] + [36]
    AD = 248
    for f in fq: f()
    for n in range(nq, 56):
        q, k = n // 4, n % 4
        if k == 0 and q + NB - 1 < 14:
            for f in f_loads(e, q + NB - 1): f()
        e.wvm(f"f{q}"); e(f_mfma(q, k))
    e(f"""s_lshl_b32 s6, s{S_W}, 13
s_add_u32 s6, s6, {RING}
v_add_u32 v{AD+6}, s6, v{VL16}
v_xor_b32 v{AD+7}, 8192, v{AD+6}""")
    if nq < 56: e("s_nop 8")
    setup = Side(e)
    setup.add(f"""s_lshr_b32 s6, s{S_J}, 3
s_lshl_b32 s7, s{S_RB}, 1
s_add_u32 s6, s6, s7
s_and_b32 s{S_B}, s{S_W}, 1
s_lshl_b32 s{S_C}, s6, 1
s_add_u32 s{S_C}, s{S_C}, s{S_B}
s_mul_i32 s{S_C}, s{S_C}, 144
s_lshr_b32 s{S_A}, s{S_W}, 1
s_lshl_b32 s{S_D}, s{S_A}, 3
s_add_u32 s{S_D}, s{S_D}, 112
s_add_u32 s{S_C}, s{S_C}, s{S_D}
s_lshl_b32 s{S_C}, s{S_C}, 10
s_and_b32 s7, s{S_J}, 7
s_add_u32 s{S_D}, s{S_C}, 4096
s_lshl_b32 s{S_A}, s{S_A}, 14
s_lshl_b32 s{S_B}, s{S_B}, 13
s_add_u32 s{S_G}, s{S_A}, s{S_B}
s_add_u32 s{S_G}, s{S_G}, {RING}
v_and_b32 v{T}, 31, v0
v_lshrrev_b32 v{T+1}, 5, v0
v_and_b32 v{T+2}, 7, v0
v_xor_b32 v{T+1}, v{T+1}, v{T+2}
v_lshlrev_b32 v{T+1}, 4, v{T+1}
v_lshl_add_u32 v{T}, v{T}, 8, v{T+1}
v_add_u32 v{AD}, s{S_G}, v{T}
v_xor_b32 v{AD+1}, 32, v{AD}
v_xor_b32 v{AD+2}, 64, v{AD}
v_xor_b32 v{AD+3}, 96, v{AD}
s_lshl_b32 s6, s6, 6
s_lshl_b32 s{S_B}, s{S_W}, 3
s_add_u32 s6, s6, s{S_B}
v_lshrrev_b32 v{T}, 3, v0
v_add_u32 v{T+1}, s6, v{T}
v_mul_u32_u24 v{T+1}, 896, v{T+1}
v_lshl_add_u32 v{T+1}, v{T+2}, 4, v{T+1}
s_lshl_b32 s7, s7, 7
v_add_u32 v{VO}, s7, v{T+1}
v_lshlrev_b32 v{T+2}, 1, v{T+2}
v_xor_b32 v{T+2}, v{T+2}, v{T}
v_lshlrev_b32 v{T+2}, 4, v{T+2}
v_lshl_add_u32 v{T}, v{T}, 8, v{T+2}
s_lshl_b32 s6, s{S_W}, 11
s_add_u32 s6, s6, {RING}
v_add_u32 v{AD+4}, s6, v{T}
v_xor_b32 v{AD+5}, 16, v{AD+4}
v_add_u32 v{T+2}, {3 * RING}, v{T+3}""")
    e(f"s_lshr_b32 s6, s{S_W}, 1\ns_lshl_b32 s6, s6, 13\nv_add_u32 v{T+3}, s6, v{VL16}\ns_nop 0")
    oaq = [(lambda k=k: e.ds(f"ds_read_b128 {vr(OAREG[k],4)}, v{T+2 if k < 8 else T+3} offset:{(k & 7) * 1024}", "oar")) for k in range(16)]
    nw1 = P("NW1", 2)
    def oflag():
        e.stamp("xc3")
        e(f"s_cmp_eq_u32 s{S_W}, 0\ns_cselect_b64 vcc, -1, 0")
        e.wvm("os")
        if nw1 == 8: e.all_ds()
        e.stamp("xc4"); e("s_barrier")
        o_signal(e)
    for q in range(8):
        if q == nw1: oflag()
        e.ds(f"ds_write_b128 v{AD+6}, {vr(FA+32+4*q,4)} offset:{q*1024}")
        setup.emit(6)
    setup.flush()
    if nw1 == 8: oflag()
    if not P('OAL', 1):
        for f in oaq: f()
    e.vm(f"buffer_load_dwordx4 {vr(XRES,4)}, v{VO}, s[{SRD_X}:{SRD_X+3}], 0 offen", "xr")
    if nw1 < 8: e.all_ds(); e("s_barrier")
    for q in range(8): e.ds(f"ds_read_b128 {vr(RB+4*q,4)}, v{AD+7} offset:{q*1024}", f"p{q}")
    def olook():
        poll_issue(e, f"""s_lshl_b32 s6, s{S_RB}, 4
s_add_u32 s6, s6, s{S_J}
s_lshl_b32 s6, s6, 7
s_add_u32 s6, s6, {F_O2}
v_and_b32 v{T}, 15, v0
v_lshl_add_u32 v{T}, v{T}, 2, s6""", T, T + 1, "op")
    if P('OLATE', 1) == 0: olook()
    srd(e, SRD_OUT, P_OUT, 2048 * 896)
    for q in range(8):
        e.wds(f"p{q}")
        for k in range(4): e(f"v_add_f32 v{FA+4*q+k}, v{FA+4*q+k}, v{RB+4*q+k}")
    if P('OLATE', 1) == 2:
        for f in oaq: f()
        oaq = []
    if P('OLATE', 1): olook()
    e.stamp("t1")
    poll_check(e, T, T + 1, "op", P("OSLEEP", 1))
    e("s_barrier")
    e.stamp("t2")
    for k in range(8):
        e.vm(f"buffer_load_dwordx4 {vr(OBR[k],4)}, v{VL16}, {WS}, s{S_C if k < 4 else S_D} offen offset:{(k&3)*1024} {SC}", f"ob{k}")
    if P('OAL', 1):
        for f in oaq: f()
        e.all_ds()
    e.wvm("xr")
    for k in range(4): e(f"v_lshlrev_b32 v{SUM+2*k}, 16, v{XRES+k}\nv_and_b32 v{SUM+1+2*k}, s{S_MASK}, v{XRES+k}")
    for k in range(8):
        e.wvm(f"ob{k}")
        for d2 in range(2): e(mfma(FA + 16*d2, OAREG[2*k + d2], OBR[k]))
    e("s_nop 10")
    e.stamp("t3")
    for d2 in range(2):
        for q in range(4): e.ds(f"ds_write_b128 v{AD+q}, {vr(FA+16*d2+4*q,4)} offset:{d2*128}")
    e.all_ds()
    e("s_barrier")
    for p in range(4):
        e.ds(f"ds_read_b128 {vr(RB+8*p,4)}, v{AD+4} offset:{p*16384}", f"s{p}")
        e.ds(f"ds_read_b128 {vr(RB+8*p+4,4)}, v{AD+5} offset:{p*16384}", f"s{p}")
    for p in range(4):
        e.wds(f"s{p}")
        for k in range(8): e(f"v_add_f32 v{SUM+k}, v{SUM+k}, v{RB+8*p+k}")
    for k in range(4): e(f"v_cvt_pk_bf16_f32 v{XRES+k}, v{SUM+2*k}, v{SUM+1+2*k}")
    e.vm(f"buffer_store_dwordx4 {vr(XRES,4)}, v{VO}, s[{SRD_OUT}:{SRD_OUT+3}], 0 offen {os.environ.get('OUTF', '')}")

DOC = """;
;            one extra MFMA, 1/std folded into the GELU constants); h, q, k, v and the transposed down / output
;  tail    : o of the 16 heads, output projection, cross-wave reduction, residual, store
"""
def build():
    e = Em()
    kn = NAME + "_kernel"
    e.a.raw(f".globl {kn}\n.p2align 8\n.type {kn},@function")
    e.label(kn)
    prologue(e)
    gelu, h_off = phaseB(e)
    attn_setup(e, gelu, h_off)
    e(f"s_and_b32 s6, s{S_J}, 7\ns_cmp_eq_u32 s6, 7\ns_cbranch_scc1 C_noF")
    sn = e.snap(); ns = e.nst
    nq, fq = attn_loop(e, True)
    attn_finish(e, True)
    tail(e, nq, fq)
    nend = e.nst
    e("s_branch K_fin")
    e.label("C_noF")
    e.restore(sn); e.nst = ns
    attn_loop(e, False)
    attn_finish(e)
    o_flag(e)
    e(f"""s_cmp_eq_u32 s{S_RB}, 0
s_cbranch_scc0 C_noF_done
s_cmp_eq_u32 s{S_J}, 7
s_cbranch_scc0 C_noF_done
s_cmp_eq_u32 s{S_W}, 0
s_cbranch_scc0 C_noF_done""")
    for k in range(4):
        e(f"""v_lshrrev_b32 v{G}, 4, v0
v_and_b32 v{G+1}, 15, v0
v_lshlrev_b32 v{G}, 7, v{G}
v_lshl_add_u32 v{G}, v{G+1}, 2, v{G}
v_add_u32 v{G}, {F_H + 512*k}, v{G}""")
        e(f"buffer_load_dword v{G+1}, v{G}, {WS}, 0 offen {SC}"); e.mark[f"ep{k}"] = len(e.q['vm'])
        poll_check(e, G, G + 1, f"ep{k}")
    e(f"v_mov_b32 v{G}, {EPO}\nv_mov_b32 v{G+1}, s{S_NON}\ns_mov_b64 exec, 1\nbuffer_store_dword v{G+1}, v{G}, {WS}, 0 offen {SC}\ns_mov_b64 exec, -1")
    e.label("C_noF_done")
    while e.nst < nend and not STAMPS_OFF: e.stamp()
    e.label("K_fin")
    if os.environ.get("AMPAT"):
        e("""s_waitcnt vmcnt(0)
s_memrealtime s[92:93]
s_waitcnt lgkmcnt(0)
s_sub_u32 s7, s94, s96
s_mul_i32 s7, s7, 10
K_amp:
s_sleep 1
s_memrealtime s[98:99]
s_waitcnt lgkmcnt(0)
s_sub_u32 s6, s98, s92
s_cmp_lt_u32 s6, s7
s_cbranch_scc1 K_amp""")
    if 'stdiag' in X:
        e("""s_memtime s[92:93]
s_waitcnt lgkmcnt(0)
K_sd:
s_sleep 2
s_memtime s[90:91]
s_waitcnt lgkmcnt(0)
s_sub_u32 s6, s90, s92
s_cmp_lt_u32 s6, s94
s_cbranch_scc1 K_sd""")
    if 'fix' in X:
        e("""K_fx:
s_sleep 1
s_memrealtime s[98:99]
s_waitcnt lgkmcnt(0)
s_sub_u32 s6, s98, s96
s_cmp_lt_u32 s6, 10000
s_cbranch_scc1 K_fx""")
    if 'amp' in X:
        e("""s_waitcnt vmcnt(0)
s_memrealtime s[98:99]
s_waitcnt lgkmcnt(0)
s_sub_u32 s7, s98, s96
s_mul_i32 s7, s7, 10
K_fx:
s_sleep 1
s_memrealtime s[98:99]
s_waitcnt lgkmcnt(0)
s_sub_u32 s6, s98, s96
s_cmp_lt_u32 s6, s7
s_cbranch_scc1 K_fx""")
    if STAMPS:
        e.stamp()
        e.label("K_fin2")
        e("s_memrealtime s[98:99]\ns_waitcnt lgkmcnt(0) vmcnt(0)")
        e(f"""s_mov_b32 s40, s{P_WS}
s_mov_b32 s41, s{P_WS+1}
s_mov_b32 s42, 0x10000000
s_mov_b32 s43, 0x00020000
s_lshl_b32 s6, s2, 3
s_add_u32 s6, s6, s{S_W}
s_lshl_b32 s6, s6, 6
s_add_u32 s6, s6, {STAMP_WS}
v_mov_b32 v2, s96
v_mov_b32 v3, s98""")
        for k in range(10): e(f"v_mov_b32 v{4+k}, {'s%d' % (76+2*k) if k < e.nst else 0}")
        e("v_mov_b32 v1, 0\ns_mov_b64 exec, 1")
        for q in range(3): e(f"buffer_store_dwordx4 v[{2+4*q}:{5+4*q}], v1, s[40:43], s6 offen offset:{16*q}")
    e("s_endpgm")
    for fb, bk in FALLBACKS: fallback(e, fb, bk)
    e.label("K_end")
    e("s_endpgm")
    probs = check_hazards(e.a.lines, "k")
    hdr = open("cdna_kernels/" + NAME + ".s.ref").read().split("; Override launch")[0]
    out = hdr + f"; @launch grid=(256,1,1) block=(512,1,1) lds={LDS_BYTES}\n"
    out += DOC + '.amdgcn_target "amdgcn-amd-amdhsa--gfx950"\n.text\n' + e.a.text()
    out += f""".section .rodata,"a"
.p2align 6
.amdhsa_kernel {kn}
  .amdhsa_next_free_vgpr 256
  .amdhsa_next_free_sgpr 102
  .amdhsa_accum_offset 256
  .amdhsa_group_segment_fixed_size 0
  .amdhsa_kernarg_size 96
  .amdhsa_user_sgpr_count 2
  .amdhsa_user_sgpr_kernarg_segment_ptr 1
  .amdhsa_system_sgpr_workgroup_id_x 1
  .amdhsa_float_denorm_mode_32 3
.end_amdhsa_kernel
"""
    return out, probs

if __name__ == "__main__":
    out, probs = build()
    for p in probs: print("HAZARD", p, file=sys.stderr)
    open(sys.argv[1] if len(sys.argv) > 1 else "cdna_kernels/" + NAME + ".s", "w").write(out)
```

```python
import sys, os, math, struct
from asmlib import *
X = set(os.environ.get('XFLAGS', '').split(','))
def P(name, default): return int(os.environ.get(name, default))
NAME = "parallel_sum__grouped_kv_mqa__glu_gated_geglu__prompt"
def f2u(x): return struct.unpack("<I", struct.pack("<f", x))[0]

A2F = 0
W2T = 64 * 144 * 1024
QF  = W2T + 7 * 144 * 2048
KVF = QF + 64 * 16 * 2048
FLG = KVF + 64 * 4096
RKV = P("RKV", 16)
F_W  = FLG
F_H  = FLG + 2048
F_O  = FLG + 4096
EPO  = FLG + 6144
F_Q  = FLG + 4096
SPLITQ = P('SPLITQ', 0)
F_KV = FLG + 8192
F_O2 = F_KV + 256 * RKV
STAT = F_O2 + 32768
WS_END = STAT + 2048 * 8
OOB = 0x7ffffff0
P_X, P_WQ, P_WK, P_WV, P_WO, P_BX, P_WG, P_WU, P_WD, P_OUT, P_DBG, P_WS = 8, 10, 12, 14, 16, 18, 20, 22, 24, 26, 28, 30
SRD_X, SRD_WS, SRD_T, SRD_PC = 32, 36, 40, 44
SRD_OUT = SRD_T
S_W, S_RB, S_J = 3, 4, 5
(S_WB, S_MASK, S_XO, S_XO2, S_RT, S_CG, S_MUL, S_T0, S_T1, S_U, S_NON, S_LA, S_LB, S_TO, S_QU) = range(48, 63)
S_HI = 64
S_A, S_B, S_C, S_D, S_E, S_F = 66, 67, 68, 69, 70, 71
S_G, S_H2 = 72, 73
S_CNT = 74
WS = f"s[{SRD_WS}:{SRD_WS+3}]"
SC = "sc1"
STAMPS = bool(os.environ.get("STAMPS"))
STAMP_WS = 200 * 1024 * 1024
SPIN_MAX = 1 << 21
STAMPS_OFF = False

class Em:
    def __init__(s):
        s.a = Asm(); s.q = {'ds': [], 'vm': []}; s.done = {'ds': 0, 'vm': 0}; s.nst = 0; s.uid = 0; s.mark = {}
    def __call__(s, t): s.a(t)
    def label(s, l): s.a.label(l)
    def ds(s, ins, tag=None): s.a(ins); s.q['ds'].append(tag)
    def vm(s, ins, tag=None): s.a(ins); s.q['vm'].append(tag)
    def _n(s, k, tags, cap):
        idx = -1
        for t in tags:
            ii = [i for i, x in enumerate(s.q[k]) if x == t]
            if not ii and 'nodma' in X: continue
            assert ii, f"tag {t} never issued"
            idx = max(idx, ii[-1])
        if idx < s.done[k]: return None
        n = min(len(s.q[k]) - 1 - idx, cap)
        s.done[k] = len(s.q[k]) - n
        return n
    def wds(s, *tags):
        n = s._n('ds', tags, 15)
        if n is not None: s.a(f"s_waitcnt lgkmcnt({n})")
    def wvm(s, *tags):
        n = s._n('vm', tags, 63)
        if n is not None: s.a(f"s_waitcnt vmcnt({n})")
    def wboth(s, *tags):
        n = s._n('vm', tags, 63)
        s.a("s_waitcnt lgkmcnt(0)" if n is None else f"s_waitcnt vmcnt({n}) lgkmcnt(0)"); s.done['ds'] = len(s.q['ds'])
    def all_ds(s): s.a("s_waitcnt lgkmcnt(0)"); s.done['ds'] = len(s.q['ds'])
    def all_vm(s): s.a("s_waitcnt vmcnt(0)"); s.done['vm'] = len(s.q['vm'])
    def snap(s): return ({k: list(v) for k, v in s.q.items()}, dict(s.done))
    def restore(s, sn): s.q = {k: list(v) for k, v in sn[0].items()}; s.done = dict(sn[1])
    def stamp(s, name=None):
        if name is not None and name == os.environ.get("IDLEAT"): s.a("s_sleep 32")
        if name is not None and name == os.environ.get("AMPAT"):
            s.a("s_memrealtime s[94:95]"); s.all_ds()
        sel = os.environ.get("STSEL")
        if sel is not None and name is not None and name not in sel.split(","): return
        if sel is None and name is not None and name.startswith("x"): return
        if STAMPS and not STAMPS_OFF:
            assert s.nst < 10
            s.a(f"{'s_memrealtime' if os.environ.get('RT') else 's_memtime'} s[{76+2*s.nst}:{77+2*s.nst}]"); s.nst += 1
            s.all_ds()
    def newlabel(s, p): s.uid += 1; return f"{p}_{s.uid}"

def srd(e, d, p, nbytes):
    e(f"s_mov_b32 s{d}, s{p}\ns_mov_b32 s{d+1}, s{p+1}\ns_mov_b32 s{d+2}, {nbytes}\ns_mov_b32 s{d+3}, 0x00020000")
def mfma(d, A, B, C=None):
    return f"v_mfma_f32_32x32x16_bf16 {vr(d,16)}, {vr(A,4)}, {vr(B,4)}, {vr(d,16) if C is None else C}"
def mfma16(d, A, B, C=None):
    return f"v_mfma_f32_16x16x32_bf16 {vr(d,4)}, {vr(A,4)}, {vr(B,4)}, {vr(d,4) if C is None else C}"

class Side:
    def __init__(s, e): s.e = e; s.q = []
    def add(s, items):
        if isinstance(items, str):
            raw = [l.strip() for l in items.strip().split("\n") if l.strip()]
            items = []
            for l in raw:
                if l.startswith("s_cselect"): items[-1] += "\n" + l
                else: items.append(l)
        s.q += list(items)
    def emit(s, n):
        while n > 0 and s.q:
            it = s.q.pop(0)
            if callable(it): it()
            else: s.e(it)
            n -= 1
    def flush(s): s.emit(1 << 30)

def flag_store(e, addr_lines, nlanes, vt):
    l = e.newlabel("fl")
    e(f"s_cmp_eq_u32 s{S_W}, 0\ns_cbranch_scc0 {l}")
    e(addr_lines)
    e(f"v_mov_b32 v{vt+1}, s{S_NON}\ns_mov_b64 exec, {(1 << nlanes) - 1}\nbuffer_store_dword v{vt+1}, v{vt}, {WS}, 0 offen {SC}\ns_mov_b64 exec, -1")
    e.label(l)

def poll_issue(e, addr_lines, vaddr, vdat, tag):
    l = e.newlabel("pi")
    e(f"s_cmp_eq_u32 s{S_W}, 0\ns_cbranch_scc0 {l}")
    e(addr_lines)
    e(f"buffer_load_dword v{vdat}, v{vaddr}, {WS}, 0 offen {SC}")
    e.label(l)
    e.mark[tag] = len(e.q['vm'])

def poll_check(e, vaddr, vdat, tag, sleep=None):
    ok = e.newlabel("pok"); sp = e.newlabel("psp")
    e(f"s_cmp_eq_u32 s{S_W}, 0\ns_cbranch_scc0 {ok}")
    e(f"s_waitcnt vmcnt({min(63, len(e.q['vm']) - e.mark[tag])})")
    e(f"v_cmp_ne_u32 vcc, s{S_NON}, v{vdat}\ns_cbranch_vccz {ok}\ns_mov_b32 s{S_CNT}, {SPIN_MAX}")
    e.label(sp)
    e(f"""s_sleep {P('SLEEP', 4) if sleep is None else sleep}
buffer_load_dword v{vdat}, v{vaddr}, {WS}, 0 offen {SC}
s_sub_u32 s{S_CNT}, s{S_CNT}, 1
s_waitcnt vmcnt(0)
v_cmp_ne_u32 vcc, s{S_NON}, v{vdat}
s_cmp_eq_u32 s{S_CNT}, 0
s_cbranch_scc1 {ok}
s_cbranch_vccnz {sp}""")
    if 'spincnt' in X and tag in SPINIDX: e(f"s_sub_u32 s{78 + 2 * SPINIDX[tag]}, {SPIN_MAX + 1000}, s{S_CNT}")
    e.label(ok)
SPINIDX = {'kvp': 0, 'hp': 1, 'hb': 2, 'wo': 3, 'op': 4}

RING = 32768
L_W2T = 131072
L_CSA = L_W2T + 8192
L_CSB = L_CSA + 2048
L_ST  = L_CSB + 2048
L_KVB = L_ST + 4096
L_FLG = L_KVB + 4096
LDS_BYTES = L_FLG + 256

VL16, VT, VX, GA, GS = 1, 2, 3, 4, 6
XA, WA = 8, 12
ST, SEL, CSA, WF, TM = 20, 24, 28, 36, 60
ACCA, ACCB, XR, G = 64, 96, 128, 240
SQA, SQB, TP = 60, 240, 248
WB, GB, PL = 250, 102, 252
R_, S_, AC, BC, I2 = 8, 9, 10, 11, 3
BEXT = 60


TA, TS, TX, TD = 96, 98, 99, 100
S_ISQ, S_SH = 63, 75
RW = 104
def w_source(row, c, dst, gs, t0):
    return f"""v_cmp_le_u32 vcc, s{S_A}, v{c}
v_mul_lo_u32 v{dst}, v{row}, s{S_B}
v_lshl_add_u32 v{dst}, v{c}, 4, v{dst}
v_add_u32 v{dst}, s{S_C}, v{dst}
v_subrev_u32 v{c}, s{S_A}, v{c}
v_lshlrev_b32 v{c}, s{S_G}, v{c}
v_mul_lo_u32 v{t0}, v{row}, s{S_D}
v_add3_u32 v{t0}, v{t0}, v{c}, s{S_H2}
v_cndmask_b32 v{dst}, v{dst}, v{t0}, vcc
v_mov_b32 v{gs}, s{S_B}
v_mov_b32 v{t0}, s{S_D}
v_cndmask_b32 v{gs}, v{gs}, v{t0}, vcc
v_lshlrev_b32 v{gs}, 5, v{gs}"""

ROTS = {0: [0]*8, 1: [0, 3, 2, 5, 4, 0, 6, 2], 2: [0, 3, 3, 0, 0, 3, 3, 0], 3: [0, 1, 2, 3, 4, 5, 6, 0], 4: [0, 4, 1, 5, 2, 6, 3, 0]}
ROTTAB = sum(v << (4 * i) for i, v in enumerate(ROTS[P("ROT", 0)]))
S_ROT = 47
S_WF = 46
RPAR, RBIT = P("RPAR", 0), P("RBIT", 0)
RPARCODE = "" if not RPAR else f"""
s_lshr_b32 s{S_F}, s2, 3
s_lshr_b32 s{S_T0}, s2, 6
s_xor_b32 s{S_F}, s{S_F}, s{S_T0}
s_and_b32 s{S_F}, s{S_F}, {RBIT or 1}
s_mul_i32 s{S_F}, s{S_F}, {RPAR}
s_add_u32 s{S_XO}, s{S_XO}, s{S_F}
s_cmp_ge_u32 s{S_XO}, 7
s_cselect_b32 s{S_F}, 7, 0
s_sub_u32 s{S_XO}, s{S_XO}, s{S_F}"""
def prologue(e):
    T = TM
    ROTCODE = f"""s_and_b32 s{S_XO}, s2, 7
s_lshl_b32 s{S_XO}, s{S_XO}, 2
s_lshr_b32 s{S_XO}, {ROTTAB:#x}, s{S_XO}
s_and_b32 s{S_XO}, s{S_XO}, 7{RPARCODE}
s_mov_b32 s{S_ROT}, s{S_XO}
s_lshl_b32 s{S_F}, s{S_XO}, 6
s_lshl_b32 s{S_XO}, s{S_XO}, 7
v_add_u32 v{T+2}, s{S_F}, v{T+2}
""" if any(ROTS[P('ROT', 0)]) or RPAR else f"s_mov_b32 s{S_ROT}, 0\n"
    e(f"s_cmp_ge_u32 s2, 256\ns_cbranch_scc1 K_end")
    if STAMPS or 'fix' in X or 'amp' in X or os.environ.get("AMPAT"): e("s_memrealtime s[96:97]")
    e.stamp()
    if 'spincnt' in X:
        for k in range(6): e(f"s_movk_i32 s{78 + 2*k}, 1000")
        e.nst = 7
    e("s_load_dwordx16 s[8:23], s[0:1], 0\ns_load_dwordx8 s[24:31], s[0:1], 64")
    e(f"s_getpc_b64 s[{SRD_PC}:{SRD_PC+1}]")
    e.label("K_pc")
    e(f"""s_mov_b32 s{SRD_PC+2}, K_end-K_pc
s_mov_b32 s{SRD_PC+3}, 0x00020000""")
    if P("CPF", 1):
        e(f"s_lshr_b32 s6, s2, 3\ns_lshl_b32 s6, s6, 11\nv_lshrrev_b32 v1, 5, v0\nv_lshl_add_u32 v1, v1, 7, s6")
    else: e("v_lshlrev_b32 v1, 7, v0")
    e.vm(f"buffer_load_dword v{TD}, v1, s[{SRD_PC}:{SRD_PC+3}], 0 offen")
    T = TM
    e(f"""v_lshrrev_b32 v1, 6, v0
v_and_b32 v0, 63, v0
v_readfirstlane_b32 s{S_W}, v1
s_nop 1""")
    e(f"""s_lshl_b32 s{S_TG}, s2, 3
s_add_u32 s{S_TG}, s{S_TG}, s{S_W}
s_mul_i32 s6, s{S_TG}, 896
v_lshl_add_u32 v{TX}, v0, 4, s6
v_cmp_lt_u32 vcc, 55, v0
v_mov_b32 v{TX+2}, {OOB}
s_nop 0
v_cndmask_b32 v{TX}, v{TX}, v{TX+2}, vcc""")
    WT = f"""s_min_u32 s6, s{S_TG}, 1393
s_cmp_ge_u32 s6, 448
s_cselect_b32 s{SRD_T}, s{P_WU}, s{P_WG}
s_cselect_b32 s{SRD_T+1}, s{P_WU+1}, s{P_WG+1}
s_cselect_b32 s{S_A}, 448, 0
s_mov_b32 s{S_D}, {448*3584}
s_cmp_ge_u32 s6, 896
s_cselect_b32 s{SRD_T}, s{P_WQ}, s{SRD_T}
s_cselect_b32 s{SRD_T+1}, s{P_WQ+1}, s{SRD_T+1}
s_cselect_b32 s{S_A}, 896, s{S_A}
s_cselect_b32 s{S_B}, 6, 11
s_cselect_b32 s{S_C}, 7, 28
s_cselect_b32 s{S_D}, {448*896}, s{S_D}
s_cmp_ge_u32 s6, 1344
s_cselect_b32 s{SRD_T}, s{P_WK}, s{SRD_T}
s_cselect_b32 s{SRD_T+1}, s{P_WK+1}, s{SRD_T+1}
s_cselect_b32 s{S_A}, 1344, s{S_A}
s_cselect_b32 s{S_B}, 7, s{S_B}
s_cselect_b32 s{S_C}, 8, s{S_C}
s_cselect_b32 s{SRD_T+2}, {448*56}, s{S_D}
s_cmp_ge_u32 s6, 1369
s_cselect_b32 s{SRD_T}, s{P_WV}, s{SRD_T}
s_cselect_b32 s{SRD_T+1}, s{P_WV+1}, s{SRD_T+1}
s_cselect_b32 s{S_A}, 1369, s{S_A}
s_mov_b32 s{SRD_T+3}, 0x00020000
s_sub_u32 s6, s6, s{S_A}
s_mul_i32 s6, s6, s{S_C}
v_min_u32 v{TA}, s{S_B}, v0
v_add_u32 v{TA}, s6, v{TA}
v_lshlrev_b32 v{TA}, 7, v{TA}"""
    e(f"""
s_bfe_u32 s{S_RB}, s2, 0x20001
s_lshl_b32 s{S_RB}, s{S_RB}, 2
s_lshr_b32 s6, s2, 6
s_add_u32 s{S_RB}, s{S_RB}, s6
s_and_b32 s{S_J}, s2, 1
s_lshl_b32 s{S_J}, s{S_J}, 3
s_bfe_u32 s7, s2, 0x30003
s_add_u32 s{S_J}, s{S_J}, s7
s_lshr_b32 s{S_QU}, s{S_J}, 2
s_sub_u32 s{S_LA}, s{S_J}, s{S_QU}
s_lshl_b32 s{S_WB}, s{S_W}, 10
s_lshl_b32 s{S_C}, s{S_LA}, 7
s_mul_i32 s{S_E}, s{S_QU}, 224
s_and_b32 s{S_F}, s{S_QU}, 1
s_sub_u32 s{S_G}, 4, s{S_F}
s_lshl_b32 s{S_F}, s{S_F}, 5
s_movk_i32 s{S_D}, 3584
s_and_b32 s{S_ISQ}, s{S_J}, 3
s_cmp_eq_u32 s{S_ISQ}, 3
s_cselect_b32 s{S_ISQ}, 1, 0
s_cselect_b32 s{S_A}, 14, 8
s_cselect_b32 s{S_B}, 896, s{S_D}
s_cselect_b32 s{S_D}, 56, s{S_D}
s_cselect_b32 s{S_H2}, s{S_F}, s{S_C}
s_cselect_b32 s{S_C}, s{S_E}, s{S_C}
s_cselect_b32 s{S_G}, s{S_G}, 4
s_add_u32 s{S_SH}, s{S_ISQ}, 1
s_lshl_b32 s{S_E}, s{S_RB}, 7
s_lshl_b32 s{S_F}, s{S_W}, 3
s_add_u32 s{S_F}, s{S_F}, s{S_E}
v_lshrrev_b32 v{T}, 3, v0
v_add_u32 v{T}, s{S_F}, v{T}
v_mul_u32_u24 v{T}, 896, v{T}
s_lshl_b32 s{S_F}, s{S_W}, 2
v_lshrrev_b32 v{T+1}, 4, v0
v_add_u32 v{T+2}, s{S_F}, v{T+1}
v_xor_b32 v{T+3}, v{T+2}, v0
v_and_b32 v{T+3}, 7, v{T+3}
v_lshl_add_u32 v{VX}, v{T+3}, 4, v{T}
{ROTCODE}v_lshlrev_b32 v{T+1}, s{S_SH}, v{T+1}
v_xor_b32 v{T+1}, v{T+1}, v0
v_and_b32 v{T+1}, 15, v{T+1}""")
    e(w_source(T + 2, T + 1, G, GS, T))
    e(f"s_mov_b64 s[{S_HI}:{S_HI+1}], vcc")
    if TOUCH:
        e(f"""s_and_b32 s6, s6, 3
s_lshl_b32 s6, s6, 3
s_add_u32 s6, s6, s{S_W}
s_lshl_b32 s6, s6, 1
s_lshl_b32 s7, s7, 3
s_add_u32 s7, s7, s{S_W}
s_lshl_b32 s7, s7, 1
s_add_u32 s7, s7, s{S_E}
v_bfe_u32 v{T+2}, v0, 3, 1
v_bfe_u32 v{T+1}, v0, 2, 1
v_lshl_add_u32 v{T+2}, v{T+2}, 6, v{T+1}
v_add_u32 v{T+2}, s6, v{T+2}
v_and_b32 v{T+1}, 3, v0
v_lshlrev_b32 v{T+1}, 2, v{T+1}
v_lshrrev_b32 v{T+1}, v{T+1}, s{S_MASK}
v_and_b32 v{T+1}, 15, v{T+1}
v_and_b32 v{T}, 1, v0
v_add_u32 v{T}, s7, v{T}
v_mul_u32_u24 v{TX}, 896, v{T}
v_bfe_u32 v{T}, v0, 1, 1
v_lshl_add_u32 v{TX}, v{T}, 7, v{TX}""".replace(f"v_lshrrev_b32 v{T+1}, v{T+1}, s{S_MASK}", f"s_movk_i32 s6, 0xed80\nv_lshrrev_b32 v{T+1}, v{T+1}, s6"))
        e(w_source(T + 2, T + 1, G + 1, TS, T))
    e("s_waitcnt lgkmcnt(0)")
    e.stamp("xs0")
    if 'stdiag' in X:
        e(f"""s_mov_b32 s40, s{P_WS}
s_mov_b32 s41, s{P_WS+1}
s_mov_b32 s42, 0x10000000
s_mov_b32 s43, 0x00020000
s_lshl_b32 s90, s2, 3
s_add_u32 s90, s90, s{S_W}
s_lshl_b32 s90, s90, 10
s_add_u32 s90, s90, {P('DOFF', 100) * 1024 * 1024}
v_lshlrev_b32 v110, 4, v0
buffer_store_dwordx4 v[112:115], v110, s[40:43], s90 offen sc1
s_waitcnt vmcnt(0)
s_add_u32 s90, s90, 0x200000
s_barrier
s_memtime s[92:93]
s_waitcnt lgkmcnt(0)
buffer_store_dwordx4 v[112:115], v110, s[40:43], s90 offen sc1
s_waitcnt vmcnt(0)
s_barrier
s_memtime s[94:95]
s_waitcnt lgkmcnt(0)
s_sub_u32 s94, s94, s92
s_mul_i32 s94, s94, 100""")
    srd(e, SRD_X, P_X, 2048 * 896)
    if GT:
        e.vm(f"buffer_load_dwordx4 {vr(RW,4)}, v{TX}, s[{SRD_X}:{SRD_X+3}], 0 offen", "row")
        if GT & 2 and not P("PRO", 1): e.vm(f"buffer_load_dword v{TD}, v{TA}, s[{SRD_T}:{SRD_T+3}], {'s%d' % S_TS if P('GTS', 0) else 0} offen", "t")
        if P("GTW", 0): e.wvm("row")
    if P("XE", 1): dma_x(e, 0, 0)(); dma_x(e, 0, 1)()
    if P("PRO", 1) == 2:
        e(WT); e.vm(f"buffer_load_dword v{TD}, v{TA}, s[{SRD_T}:{SRD_T+3}], 0 offen", "t")
    e(f"""s_cmp_lt_u32 s{S_QU}, 2
s_cselect_b32 s{S_C}, s{P_WK}, s{P_WV}
s_cselect_b32 s{S_D}, s{P_WK+1}, s{P_WV+1}
s_cmp_eq_u32 s{S_ISQ}, 1
s_cselect_b32 s{S_A}, s{P_WQ}, s{P_WG}
s_cselect_b32 s{S_B}, s{P_WQ+1}, s{P_WG+1}
s_cselect_b32 s{S_C}, s{S_C}, s{P_WU}
s_cselect_b32 s{S_D}, s{S_D}, s{P_WU+1}
v_mov_b32 v{T}, s{S_A}
v_mov_b32 v{T+1}, s{S_B}
v_mov_b32 v{T+2}, s{S_C}
v_mov_b32 v{T+3}, s{S_D}""")
    if TOUCH:
        e(f"""v_cndmask_b32 v{TA}, v{T}, v{T+2}, vcc
v_cndmask_b32 v{TA+1}, v{T+1}, v{T+3}, vcc
v_add_co_u32 v{TA}, vcc, v{TA}, v{G+1}
v_cndmask_b32 v{GA}, v{T}, v{T+2}, s[{S_HI}:{S_HI+1}]
v_cndmask_b32 v{GA+1}, v{T+1}, v{T+3}, s[{S_HI}:{S_HI+1}]
v_addc_co_u32 v{TA+1}, vcc, 0, v{TA+1}, vcc""")
        touch(e, 0)()
    else:
        e(f"""v_cndmask_b32 v{GA}, v{T}, v{T+2}, s[{S_HI}:{S_HI+1}]
v_cndmask_b32 v{GA+1}, v{T+1}, v{T+3}, s[{S_HI}:{S_HI+1}]""")
    e(f"v_add_co_u32 v{GA}, vcc, v{GA}, v{G}\nv_mov_b32 v{GS+1}, 0")
    if 'gonly' in X: e.all_vm(); e.stamp()
    if not P("XE", 1): dma_x(e, 0, 0)()
    else: e("s_nop 0")
    e(f"v_addc_co_u32 v{GA+1}, vcc, 0, v{GA+1}, vcc")
    e.WT = WT

TOUCH = P("TOUCH", 0)
GT = P("GT", 3)
ROT = P("ROT", 0)
LDX = os.environ.get("LDX", ""); LDW = os.environ.get("LDW", ""); LDT = os.environ.get("LDT", "")
def touch(e, k):
    def f():
        st = (0, 2, 4, 5)[k]
        e.vm(f"global_load_dword v{TD}, {vr(TA,2)}, off", f"t{k}")
        e(f"s_movk_i32 s{S_XO2}, {st * 128}")
        e.vm(f"buffer_load_dword v{TD}, v{TX}, s[{SRD_X}:{SRD_X+3}], s{S_XO2} offen", f"t{k}")
        if k < 3: e(f"v_mad_u64_u32 {vr(TA,2)}, s[{S_E}:{S_E+1}], v{TS}, {4 if k < 2 else 2}, {vr(TA,2)}")
    return f
S_TG, S_TS = 61, 57
def gtouch(e, st):
    def f():
        e(f"s_mul_i32 s{S_XO2}, s{S_TS}, {st}")
        e.vm(f"buffer_load_dword v{TD}, v{TA}, s[{SRD_PC}:{SRD_PC+3}], s{S_XO2} offen {LDT}", "t")
        e(f"s_movk_i32 s{S_XO2}, {st * 128}")
        e.vm(f"buffer_load_dword v{TD}, v{TX}, s[{SRD_X}:{SRD_X+3}], s{S_XO2} offen {LDT}", "t")
    return f
def dma_x(e, sig, i):
    def f():
        e(f"s_add_u32 m0, s{S_WB}, {(sig % 4) * RING + i * 8192}")
        if i == 0: e("s_nop 0"); so = S_XO
        else: e(f"s_add_u32 s{S_XO2}, s{S_XO}, {64*896}"); so = S_XO2
        e.vm(f"buffer_load_dwordx4 v{VX}, s[{SRD_X}:{SRD_X+3}], s{so} offen {LDX} lds", f"d{sig}")
    return f
def dma_w(e, sig, off, i, first=False):
    def f():
        if i == 0 and not first:
            e(f"s_add_u32 s{S_XO}, s{S_XO}, 128\ns_cmp_eq_u32 s{S_XO}, 896\ns_cselect_b32 s{S_XO}, 0, s{S_XO}\ns_cselect_b32 s{S_MUL}, -13, 1")
        e(f"s_add_u32 m0, s{S_WB}, {(sig % 4) * RING + off + i * 8192}")
        if first == 2: e(f"s_add_u32 s{S_XO}, s{S_XO}, 128\ns_cmp_eq_u32 s{S_XO}, 896\ns_cselect_b32 s{S_XO}, 0, s{S_XO}")
        elif first: e("s_nop 0")
        elif i == 0: e(f"v_mad_i64_i32 {vr(GA,2)}, s[{S_E}:{S_E+1}], v{GS}, s{S_MUL}, {vr(GA,2)}")
        else: e(f"v_lshl_add_u64 {vr(GA,2)}, {vr(GS,2)}, 0, {vr(GA,2)}")
        e.vm(f"global_load_lds_dwordx4 {vr(GA,2)}, off {LDW}", f"d{sig}")
    return f
if not any(ROTS[P("ROT", 0)]) and not RPAR:
    def dma_x(e, sig, i):
        def f():
            e(f"s_add_u32 m0, s{S_WB}, {(sig % 4) * RING + i * 8192}\ns_mov_b32 s{S_XO}, {sig * 128 + i * 64 * 896}")
            e.vm(f"buffer_load_dwordx4 v{VX}, s[{SRD_X}:{SRD_X+3}], s{S_XO} offen {LDX} lds", f"d{sig}")
        return f
    def dma_w(e, sig, off, i, first=False):
        def f():
            e(f"s_add_u32 m0, s{S_WB}, {(sig % 4) * RING + off + i * 8192}")
            e("s_nop 0" if first else f"v_lshl_add_u64 {vr(GA,2)}, {vr(GS,2)}, 0, {vr(GA,2)}")
            e.vm(f"global_load_lds_dwordx4 {vr(GA,2)}, off {LDW}", f"d{sig}")
        return f
def stage_dmas(e, sig):
    if 'nodma' in X and 2 <= sig: return [(lambda: e.q['vm'].append(f'd{sig}') or e.q['vm'].pop() if False else None)] if False else [lambda: None]
    if sig == 0: return [dma_x(e, sig, 0), dma_w(e, sig, 16384, 0, True), dma_x(e, sig, 1), dma_w(e, sig, 16384, 1)]
    if sig < 7: return [dma_w(e, sig, 16384, 0), dma_x(e, sig, 0), dma_w(e, sig, 16384, 1), dma_x(e, sig, 1)]
    l = []
    if sig == 7: l.append(lambda: e(f"v_mov_b32 v{GA}, v{GB}\nv_mov_b32 v{GA+1}, v{GB+1}\nv_mov_b32 v{GS}, {32*3584}"))
    l += [dma_w(e, sig, 0, 0, 2 if sig == 7 else False), dma_w(e, sig, 0, 1)]
    if sig < 10: l += [dma_w(e, sig, 16384, 0), dma_w(e, sig, 16384, 1)]
    return l

def late_touch(e):
    if P('GTS', 0):
        e(f"s_xor_b32 s{S_TS}, s{S_TS}, {OOB}")
        e.vm(f"buffer_load_dword v{TD}, v{TA}, s[{SRD_T}:{SRD_T+3}], s{S_TS} offen", "t")

def phaseB(e):
    T = TM
    for f in (stage_dmas(e, 0)[1:] if not P('XE', 1) else stage_dmas(e, 0)[1::2]): f()
    if 'arr' in X:
        order = os.environ.get("ARR", "D1 D2 W0 D3 W1 D4 W2 D5 W3 D6 W4 W5 W6").split()
        for it in order:
            k = int(it[1:])
            if it[0] == 'D':
                for f in stage_dmas(e, k): f()
            elif it[0] == 'T': touch(e, k)()
            elif it[0] == 'G': gtouch(e, k)()
            elif it[0] == 'L': late_touch(e)
            elif it[0] == 'A': e.all_vm(); e.stamp()
            else: e.wvm(f"d{k}"); e("s_barrier"); e.stamp()
        srd(e, SRD_WS, P_WS, WS_END)
        e.stamp()
        e("s_branch K_fin2")
        global STAMPS_OFF; STAMPS_OFF = True
    e.stamp("xs2")
    if P("PRO", 1) == 1 and GT & 2:
        e(e.WT)
        e.vm(f"buffer_load_dword v{TD}, v{TA}, s[{SRD_T}:{SRD_T+3}], 0 offen", "t")
    e(f"s_mov_b32 s6, {EPO}\ns_load_dword s{S_NON}, s[{P_WS}:{P_WS+1}], s6")
    if TOUCH == 2: touch(e, 1)()
    PD1 = P("PD1", 0)
    if PD1 == 0:
        for f in stage_dmas(e, 1): f()
    if TOUCH == 1: touch(e, 1)()
    late_touch(e)
    e.stamp("xs3")
    e(f"""s_and_b32 s{S_RT}, s{S_W}, 3
s_lshr_b32 s{S_CG}, s{S_W}, 2
s_lshl_b32 s{S_T0}, s{S_CG}, 1
s_add_u32 s{S_T1}, s{S_T0}, 1
s_xor_b32 s{S_A}, s{S_RT}, s{S_CG}
s_mov_b32 s{S_MASK}, 0xffff0000
s_mov_b32 s{S_HI}, 0
s_mov_b32 s{S_HI+1}, -1
v_lshlrev_b32 v{VL16}, 4, v0
v_and_b32 v{T}, 31, v0
v_lshrrev_b32 v{T+1}, 5, v0
v_bfe_u32 v{T+2}, v0, 1, 3
v_xor_b32 v{T+2}, v{T+2}, v{T+1}
v_lshlrev_b32 v{T+2}, 4, v{T+2}
v_lshl_add_u32 v{T+2}, v{T}, 7, v{T+2}
s_lshl_b32 s6, s{S_RT}, 12
s_lshl_b32 s{S_B}, s{S_A}, 5
s_or_b32 s6, s6, s{S_B}
v_xor_b32 v{XA}, s6, v{T+2}""")
    for pos in range(1, 4): e(f"v_xor_b32 v{XA+pos}, {pos<<5}, v{XA}")
    e(f"""v_bfe_u32 v{G+1}, v0, 2, 2
v_lshl_add_u32 v{WB}, v{T+1}, 3, v{G+1}
v_lshlrev_b32 v{WB}, 8, v{WB}
s_lshl_b32 s{S_A}, s{S_A}, 12
v_add_u32 v{WB}, s{S_A}, v{WB}
s_cmp_eq_u32 s{S_ISQ}, 1
s_cselect_b32 s{S_A}, 56, 32
s_cselect_b32 s{S_B}, 5, 7
s_cselect_b32 s{S_C}, 0x88880000, 0
s_mov_b32 s{S_D}, s{S_C}
s_add_u32 s6, s{S_SH}, 4
v_bfe_u32 v{T}, v0, 4, 1
v_and_b32 v{T+1}, 3, v0
v_lshlrev_b32 v{T}, s{S_B}, v{T}
v_lshl_add_u32 v{T}, v{T+1}, 3, v{T}
v_lshlrev_b32 v{T+1}, s6, v{G+1}""")
    for i, st_ in ((0, S_T0), (1, S_T1)):
        e(f"""s_mul_i32 s6, s{st_}, s{S_A}
s_lshl_b32 s7, s{st_}, 3
s_sub_u32 s7, 248, s7
v_add_u32 v{T+2}, s6, v{T}
v_mov_b32 v{T+3}, s7
v_cndmask_b32 v{T+2}, v{T+2}, v{T+3}, s[{S_C}:{S_D}]
v_xor_b32 v{T+2}, v{T+2}, v{T+1}
v_add_u32 v{WA+4*i}, v{T+2}, v{WB}""")
    for i in range(2):
        for pos in range(1, 4): e(f"v_xor_b32 v{WA+4*i+pos}, {pos<<12}, v{WA+4*i}")
    e(f"""v_bfe_u32 v{T}, v0, 4, 1
v_and_b32 v{T+1}, 15, v0
v_cmp_eq_u32 vcc, v{T}, v{T+1}
v_mov_b32 v{T}, 0x3f803f80
s_nop 0
v_cndmask_b32 v{SEL}, 0, v{T}, vcc
v_mov_b32 v{SEL+1}, v{SEL}
v_mov_b32 v{SEL+2}, v{SEL}
v_mov_b32 v{SEL+3}, v{SEL}""")
    w2t_addr = f"""s_mul_i32 s6, s{S_RB}, 12
s_add_u32 s6, s6, s{S_LA}
s_lshl_b32 s7, s{S_RB}, 2
s_add_u32 s7, s7, s{S_QU}
s_min_u32 s7, s7, 59
s_add_u32 s{S_A}, s7, 136
s_cmp_eq_u32 s{S_ISQ}, 1
s_cselect_b32 s6, s{S_A}, s6
s_cselect_b32 s7, s7, 63
s_mul_hi_u32 s{S_A}, s6, {(2**32 + 27)//28}
s_mul_i32 s{S_B}, s{S_A}, 28
s_sub_u32 s{S_B}, s6, s{S_B}
s_lshr_b32 s{S_C}, s7, 3
s_and_b32 s{S_D}, s7, 7
s_add_u32 s{S_D}, s{S_D}, 28
s_cmp_lt_u32 s7, 56
s_cselect_b32 s6, s{S_C}, s{S_A}
s_cselect_b32 s{S_B}, s{S_D}, s{S_B}
s_lshl_b32 s{S_WF}, s6, 6
s_add_u32 s{S_WF}, s{S_WF}, s{S_B}
s_lshl_b32 s{S_A}, s{S_B}, 2
s_lshr_b32 s{S_B}, s{S_W}, 1
s_add_u32 s{S_A}, s{S_A}, s{S_B}
s_mul_i32 s{S_U}, s6, 144
s_add_u32 s{S_U}, s{S_U}, s{S_A}
s_lshl_b32 s{S_B}, s{S_A}, 4
s_sub_u32 s{S_C}, s{S_A}, 112
s_lshr_b32 s{S_D}, s{S_C}, 1
s_mul_i32 s{S_D}, s{S_D}, 28
s_and_b32 s{S_C}, s{S_C}, 1
s_lshl_b32 s{S_C}, s{S_C}, 4
s_add_u32 s{S_C}, s{S_C}, s{S_D}
s_mov_b32 s{S_D}, {448*896}
s_cmp_lt_u32 s{S_A}, 112
s_cselect_b32 s{S_B}, s{S_B}, s{S_C}
s_cselect_b32 s{SRD_T}, s{P_WD}, s{P_WO}
s_cselect_b32 s{SRD_T+1}, s{P_WD+1}, s{P_WO+1}
s_cselect_b32 s{SRD_T+2}, {1792*896}, s{S_D}
s_mov_b32 s{SRD_T+3}, 0x00020000
s_and_b32 s{S_C}, s{S_W}, 1
s_lshl_b32 s{S_C}, s{S_C}, 3
s_add_u32 s{S_B}, s{S_B}, s{S_C}
s_mul_i32 s{S_B}, s{S_B}, 896
s_lshl_b32 s6, s6, 7
s_add_u32 s{S_TO}, s{S_B}, s6
v_lshrrev_b32 v{TP}, 3, v0
v_mul_u32_u24 v{TP}, 896, v{TP}
v_and_b32 v{TP+1}, 7, v0
v_lshl_add_u32 v{VT}, v{TP+1}, 4, v{TP}"""
    late = (f"""s_add_u32 s{S_LB}, s{S_LA}, 12
s_add_u32 s6, s{S_QU}, 24
s_cmp_eq_u32 s{S_ISQ}, 1
s_cselect_b32 s{S_LB}, s6, s{S_LB}
""" if P("LBOLD", 1) else f"s_add_u32 s{S_LB}, s{S_J}, 12\n") + f"""v_lshrrev_b32 v{TP}, 4, v0
s_lshl_b32 s6, s{S_ROT}, 4
s_add_u32 s6, s6, s{S_W}
s_lshl_b32 s6, s6, 2
v_add_u32 v{TP+1}, s6, v{TP}
v_mul_u32_u24 v{TP+1}, 3584, v{TP+1}
v_lshlrev_b32 v{TP}, 1, v{TP}
v_xor_b32 v{TP}, v{TP}, v0
v_and_b32 v{GB}, 7, v{TP}
v_lshl_add_u32 v{TP+1}, v{GB}, 4, v{TP+1}
s_lshl_b32 s6, s{S_LB}, 7
v_add_u32 v{TP+1}, s6, v{TP+1}
v_and_b32 v{TP}, 8, v{TP}
v_cmp_eq_u32 vcc, 8, v{TP}
v_mov_b32 v{GB}, s{P_WG}
v_mov_b32 v{TP}, s{P_WU}
v_cndmask_b32 v{GB}, v{GB}, v{TP}, vcc
v_mov_b32 v{GB+1}, s{P_WG+1}
v_mov_b32 v{TP}, s{P_WU+1}
v_cndmask_b32 v{GB+1}, v{GB+1}, v{TP}, vcc
v_add_co_u32 v{GB}, vcc, v{GB}, v{TP+1}
v_bfe_u32 v{TP}, v0, 4, 1
v_and_b32 v{TP+1}, 3, v0
v_addc_co_u32 v{GB+1}, vcc, 0, v{GB+1}, vcc
v_lshlrev_b32 v{TP+1}, 3, v{TP+1}
v_lshl_add_u32 v{TP}, v{TP}, 7, v{TP+1}
v_bfe_u32 v{TP+1}, v0, 2, 2
v_lshlrev_b32 v{TP+1}, 5, v{TP+1}
v_xor_b32 v{TP}, v{TP}, v{TP+1}
s_lshl_b32 s6, s{S_T0}, 5
v_xor_b32 v{TP}, s6, v{TP}
v_add_u32 v{WB}, v{TP}, v{WB}
v_xor_b32 v{WB+1}, 32, v{WB}"""
    if PD1 == 1:
        for f in stage_dmas(e, 1): f()
    e.stamp("xs4")
    srd(e, SRD_WS, P_WS, WS_END)
    e("s_waitcnt lgkmcnt(0)")
    e(f"s_add_u32 s{S_NON}, s{S_NON}, 1")
    U = RW + 4; A_, B_ = RW, RW + 1
    e.wvm("row")
    for k in range(4): e(f"v_lshlrev_b32 v{U+2*k}, 16, v{RW+k}\nv_and_b32 v{U+2*k+1}, s{S_MASK}, v{RW+k}")
    e(f"v_add_f32 v{A_}, v{U}, v{U+1}\nv_mul_f32 v{B_}, v{U}, v{U}\nv_add_f32 v{A_+2}, v{U+2}, v{U+3}\nv_mul_f32 v{B_+2}, v{U+1}, v{U+1}")
    for k in (2, 4, 6): e(f"v_fmac_f32 v{B_}, v{U+k}, v{U+k}\nv_fmac_f32 v{B_+2}, v{U+k+1}, v{U+k+1}")
    e(f"""v_add_f32 v{U}, v{U+4}, v{U+5}
v_add_f32 v{U+1}, v{U+6}, v{U+7}
v_add_f32 v{A_}, v{A_}, v{A_+2}
v_add_f32 v{U}, v{U}, v{U+1}
v_add_f32 v{B_}, v{B_}, v{B_+2}
v_add_f32 v{A_}, v{A_}, v{U}
s_lshl_b32 s6, s{S_TG}, 3""")
    for d in ("row_shr:1 row_mask:0xf bank_mask:0xf bound_ctrl:0", "row_shr:2 row_mask:0xf bank_mask:0xf bound_ctrl:0",
              "row_shr:4 row_mask:0xf bank_mask:0xf bound_ctrl:0", "row_shr:8 row_mask:0xf bank_mask:0xf bound_ctrl:0",
              "row_bcast:15 row_mask:0xa bank_mask:0xf", "row_bcast:31 row_mask:0xc bank_mask:0xf"):
        e(f"v_add_f32_dpp v{B_}, v{B_}, v{B_} {d}\nv_add_f32_dpp v{A_}, v{A_}, v{A_} {d}\ns_nop 0")
    e(f"""s_add_u32 s6, s6, {STAT}
v_mul_f32 v{A_}, {f2u(1.0/448)}, v{A_}
v_mul_f32 v{B_}, {f2u(1.0/448)}, v{B_}
v_fma_f32 v{B_}, -v{A_}, v{A_}, v{B_}
v_max_f32 v{B_}, 0, v{B_}
v_cvt_pk_bf16_f32 v{B_}, v{B_}, v{B_}
v_and_b32 v{B_}, s{S_MASK}, v{B_}
v_add_f32 v{B_}, {f2u(1e-5)}, v{B_}
v_cvt_pk_bf16_f32 v{B_}, v{B_}, v{B_}
v_and_b32 v{B_}, s{S_MASK}, v{B_}
v_sqrt_f32 v{B_}, v{B_}
v_mov_b32 v{U}, s6
v_cvt_pk_bf16_f32 v{A_}, -v{A_}, v{B_}
v_mov_b32 v{B_}, s{S_NON}
s_mov_b32 exec_lo, 0
s_mov_b32 exec_hi, 0x80000000""")
    if PD1 == 2:
        e("s_mov_b64 exec, -1")
        for f in stage_dmas(e, 1): f()
        e("s_mov_b32 exec_lo, 0\ns_mov_b32 exec_hi, 0x80000000")
    e.vm(f"buffer_store_dwordx2 {vr(A_,2)}, v{U}, {WS}, 0 offen {SC}", "sts")
    e("s_mov_b64 exec, -1")
    e.stamp("xs5")
    if P("PRIO", 2) & 1: e(f"s_cmp_ge_u32 s{S_W}, 4\ns_cbranch_scc0 K_np\ns_setprio 1\nK_np:")
    e.wvm("d0")
    e("s_barrier")
    e.stamp("start")

    half = {'x': [0]*4, 'w': [0]*4}
    def reads(gp):
        if gp < 28: sig, sub, pos, reg = gp // 4, 0, gp % 4, 16384
        else:
            g = gp - 28; sig, sub, pos = 7 + g // 8, (g // 4) & 1, g % 4; reg = sub * 16384
        sl = sig % 4; h = sl >> 1; imm = (sl & 1) * RING
        buf = WF + 8 * (gp % 3)
        pre = []
        if 28 <= gp < 32:
            pre = [f"v_xor_b32 v{WA+4*i+pos}, {(pos << 12) | (h << 16)}, v{WB+i}" for i in range(2)]
            half['w'][pos] = h
        elif half['w'][pos] != h:
            pre = [f"v_xor_b32 v{WA+4*i+pos}, 0x10000, v{WA+4*i+pos}" for i in range(2)]
            half['w'][pos] = h
        if gp < 28 and half['x'][pos] != h:
            pre.append(f"v_xor_b32 v{XA+pos}, 0x10000, v{XA+pos}"); half['x'][pos] = h
        out = [(lambda l=l: e(l)) for l in pre]
        if gp < 28: out.append(lambda: e.ds(f"ds_read_b128 {vr(XR+4*gp,4)}, v{XA+pos} offset:{imm}", f"r{gp}"))
        for i in range(2):
            for u in range(2):
                out.append(lambda i=i, u=u: e.ds(f"ds_read_b64_tr_b16 {vr(buf+4*i+2*u,2)}, v{WA+4*i+pos} offset:{imm+reg+u*1024}", f"r{gp}"))
        return out
    def position(gp, side, dmaq, nside, barrier=None):
        p2 = gp >= 28; g = gp - 28 if p2 else gp
        acc = ACCB if p2 else ACCA
        buf = WF + 8 * (gp % 3); xr = XR + 4 * g
        e.wds(f"r{gp}")
        e(mfma(acc, buf, xr, "0" if g == 0 else None))
        if barrier: barrier()
        R = reads(gp + 2) if gp + 2 < 56 else []
        nx = 1 if gp + 2 < 28 else 0
        pre = R[:max(0, len(R) - 4 - nx)]; xrd = R[len(pre):len(pre) + nx]; tr = R[len(pre) + nx:]
        na = (nside + 1) // 2; nb = nside // 2
        for f in pre: f()
        if P("ORD", 1) == 0:
            for f in xrd + tr[:2]: f()
            side.emit(na)
            e(mfma(acc + 16, buf + 4, xr, "0" if g == 0 else None))
            for f in tr[2:]: f()
            if g % 4 == 0: e(mfma16(CSA, SEL, buf, "0" if g == 0 else None))
            if dmaq: dmaq.pop(0)()
            side.emit(nb)
            if g % 4 == 0: e(mfma16(CSA + 4, SEL, buf + 4, "0" if g == 0 else None))
        else:
            for f in tr[:1]: f()
            side.emit(min(2, na))
            for f in tr[1:2]: f()
            side.emit(na - min(2, na))
            e(mfma(acc + 16, buf + 4, xr, "0" if g == 0 else None))
            for f in tr[2:3]: f()
            side.emit(min(2, nb))
            for f in tr[3:]: f()
            side.emit(nb - min(2, nb))
            if g % 4 == 0 and 'nosel' not in X: e(mfma16(CSA, SEL, buf, "0" if g == 0 else None))
            for f in xrd: f()
            if g % 4 == 0 and 'nosel' not in X: e(mfma16(CSA + 4, SEL, buf + 4, "0" if g == 0 else None))
            if dmaq: dmaq.pop(0)()
    def stats(gp):
        x = XR + 4 * gp; c = lambda r: "0" if gp == 0 else vr(r, 4)
        return [mfma16(ST, SEL, x, c(ST)),
                f"v_mfma_f32_4x4x4_16b_bf16 {vr(SQA,4)}, {vr(x,2)}, {vr(x,2)}, {c(SQA)}\nv_mfma_f32_4x4x4_16b_bf16 {vr(SQB,4)}, {vr(x+2,2)}, {vr(x+2,2)}, {c(SQB)}"]
    def cs_write(dst):
        return [f"v_lshlrev_b32 v{G+8}, 4, v0", f"s_lshl_b32 s6, s{S_T0}, 9", f"s_lshl_b32 s{S_A}, s{S_RT}, 2",
                f"s_add_u32 s6, s6, s{S_A}", f"s_add_u32 s6, s6, {dst}", f"v_add_u32 v{G+8}, s6, v{G+8}",
                lambda: (e("s_mov_b64 exec, 0xffff"),
                         e.ds(f"ds_write_b32 v{G+8}, v{CSA}", "csw"), e.ds(f"ds_write_b32 v{G+8}, v{CSA+1} offset:256", "csw"),
                         e.ds(f"ds_write_b32 v{G+8}, v{CSA+4} offset:512", "csw"), e.ds(f"ds_write_b32 v{G+8}, v{CSA+5} offset:768", "csw"),
                         e("s_mov_b64 exec, -1"))]
    def cs_read(src):
        l = [f"v_and_b32 v{G+8}, 31, v0", f"v_lshlrev_b32 v{G+8}, 4, v{G+8}", f"s_lshl_b32 s6, s{S_T0}, 9", f"s_add_u32 s6, s6, {src}",
             f"v_add_u32 v{G+8}, s6, v{G+8}",
             lambda: e.ds(f"ds_read_b128 {vr(G,4)}, v{G+8}", "csr"), lambda: e.ds(f"ds_read_b128 {vr(G+4,4)}, v{G+8} offset:512", "csr")]
        m = [lambda: e.wds("csr")]
        for i in range(2):
            b = G + 4 * i
            m += [f"v_add_f32 v{b}, v{b}, v{b+1}", f"v_add_f32 v{b+2}, v{b+2}, v{b+3}"]
        for i in range(2): m += [f"v_add_f32 v{G+4*i}, v{G+4*i}, v{G+4*i+2}"]
        for i in range(2): m += [f"v_cvt_pk_bf16_f32 v{G+4*i+1}, v{G+4*i}, v{G+4*i}"]
        for i in range(2): m += [f"v_and_b32 v{G+4*i+1}, s{S_MASK}, v{G+4*i+1}"]
        for i in range(2): m += [f"v_sub_f32 v{G+4*i+1}, v{G+4*i}, v{G+4*i+1}"]
        for i in range(2): m += [f"v_cvt_pk_bf16_f32 v{G+4*i}, v{G+4*i}, v{G+4*i+1}"]
        for i in range(2): m += [f"v_cndmask_b32 v{ST+2*i}, v{G+4*i}, 0, s[{S_HI}:{S_HI+1}]"]
        return l, m

    KA = -2.0 * math.log2(math.e) * math.sqrt(2.0 / math.pi)
    GST = P("GST", 18)
    def stat_check():
        ok = e.newlabel("sok"); sp = e.newlabel("ssp")
        e.wvm("stl")
        e(f"v_cmp_ne_u32 vcc, s{S_NON}, v{BEXT+3}\ns_cbranch_vccz {ok}\ns_mov_b32 s{S_CNT}, {SPIN_MAX}")
        e.label(sp)
        e(f"""s_sleep 4
buffer_load_dwordx2 {vr(BEXT+2,2)}, v{G}, {WS}, 0 offen {SC}
s_sub_u32 s{S_CNT}, s{S_CNT}, 1
s_waitcnt vmcnt(0)
v_cmp_ne_u32 vcc, s{S_NON}, v{BEXT+3}
s_cmp_eq_u32 s{S_CNT}, 0
s_cbranch_scc1 {ok}
s_cbranch_vccnz {sp}""")
        if 'spincnt' in X: e(f"s_sub_u32 s88, {SPIN_MAX + 1000}, s{S_CNT}")
        e.label(ok)
    def after_exchange(side):
        l, m = cs_read(L_CSA)
        side.add(l)
        side.add(f"""v_and_b32 v{S_}, s{S_MASK}, v{BEXT+2}
v_and_b32 v{BEXT}, 0xffff, v{BEXT+2}
v_rcp_f32 v{R_}, v{S_}
v_lshl_or_b32 v{BEXT}, v{BEXT+2}, 16, v{BEXT}
v_mul_f32 v{I2}, v{S_}, v{S_}
v_mul_f32 v{AC}, {f2u(KA)}, v{R_}
v_mul_f32 v{BC}, v{R_}, v{R_}
v_mov_b32 v{ST+1}, 0
v_mul_f32 v{BC}, v{BC}, v{AC}
v_mov_b32 v{ST+3}, 0
v_mul_f32 v{BC}, {f2u(0.044715)}, v{BC}
v_mov_b32 v{BEXT+1}, 0
v_mov_b32 v{BEXT+2}, 0
v_mov_b32 v{BEXT+3}, 0""")
        side.add(m)
    for f in reads(0) + reads(1): f()
    side = Side(e); dmaq = list(stage_dmas(e, 2)) + ([touch(e, 2)] if TOUCH else [])
    w2side = Side(e)
    if GT & 4:
        w2side.add(f"""s_min_u32 s6, s{S_TG}, 895
s_cmp_ge_u32 s6, 448
s_cselect_b32 s{SRD_T}, s{P_WU}, s{P_WG}
s_cselect_b32 s{SRD_T+1}, s{P_WU+1}, s{P_WG+1}
s_cselect_b32 s7, 448, 0
s_mov_b32 s{SRD_T+2}, {448*3584}
s_sub_u32 s6, s6, s7
s_mul_i32 s6, s6, 3584
s_add_u32 s6, s6, 1536
v_and_b32 v{TA}, 15, v0
v_lshlrev_b32 v{TA}, 7, v{TA}""")
        w2side.add([lambda: e.vm(f"buffer_load_dword v{TD}, v{TA}, s[{SRD_T}:{SRD_T+3}], s6 offen", "t2")])
    w2side.add(late); w2side.add(w2t_addr)
    for gp in range(28):
        sig, pos = gp // 4, gp % 4
        bar = None
        if pos == 2:
            def bar(sig=sig):
                if sig == 6: side.flush(); stat_check(); e.wds("csw")
                e.wvm(f"d{sig+1}"); e("s_barrier")
                if sig == 6: after_exchange(side)
                assert not dmaq
                dmaq.extend(stage_dmas(e, sig + 3))
                if sig == 0 and TOUCH: dmaq.append(touch(e, 3))
        if gp == GST:
            side.add([f"s_lshl_b32 s{S_G}, s{S_RB}, 2", f"s_add_u32 s{S_G}, s{S_G}, s{S_RT}", f"s_lshl_b32 s{S_G}, s{S_G}, 8", f"s_add_u32 s{S_G}, s{S_G}, {STAT}",
                      f"v_and_b32 v{G}, 31, v0", f"v_lshl_add_u32 v{G}, v{G}, 3, s{S_G}",
                      lambda: e.vm(f"buffer_load_dwordx2 {vr(BEXT+2,2)}, v{G}, {WS}, 0 offen {SC}", "stl")])
        if gp == 25: assert not w2side.q; side.add(cs_write(L_CSA))
        n = len(side.q) if gp < 26 else P('NEX', 10)
        while len(dmaq) > 4 - ((pos + 2) % 4): dmaq.pop(0)()
        e.stamp(f"xp{gp}")
        w2side.emit(0 if gp < P('WS0', 0) else 5 if gp < 2 else P('WSR', 3))
        position(gp, side, dmaq, n, bar)
    assert not w2side.q
    side.add(["s_nop 1", mfma(ACCA, ST, BEXT), mfma(ACCA + 16, ST + 2, BEXT)])
    carry = list(side.q)
    e.stamp("p1")

    KA = -2.0 * math.log2(math.e) * math.sqrt(2.0 / math.pi); KB = KA * 0.044715
    def gelu(acc, so, tb, keep=None, pk=0):
        l = []
        if pk:
            pr = lambda r: vr(r, 2)
            for k in range(0, 8, 2): l.append(f"v_pk_mul_f32 {pr(tb+k)}, {pr(acc+k)}, {pr(acc+k)}")
            for k in range(0, 8, 2): l.append(f"v_pk_fma_f32 {pr(tb+k)}, {pr(tb+k)}, {pr(AC)}, {pr(AC)} op_sel:[0,1,0] op_sel_hi:[1,1,0]")
            for k in range(0, 8, 2): l.append(f"v_pk_mul_f32 {pr(tb+k)}, {pr(tb+k)}, {pr(acc+k)}")
            for k in range(0, 8, 2): l += [f"v_exp_f32 v{tb+k}, v{tb+k}", f"v_exp_f32 v{tb+k+1}, v{tb+k+1}", f"v_pk_mul_f32 {pr(acc+k)}, {pr(acc+k)}, {pr(acc+8+k)}"]
            for k in range(0, 8, 2): l.append(f"v_pk_fma_f32 {pr(tb+k)}, {pr(tb+k)}, {pr(I2-1)}, {pr(I2-1)} op_sel:[0,1,1] op_sel_hi:[1,1,1]")
            for k in range(8): l.append(f"v_rcp_f32 v{tb+k}, v{tb+k}")
            for k in range(0, 8, 2): l.append(f"v_pk_mul_f32 {pr(acc+k)}, {pr(acc+k)}, {pr(tb+k)}")
        else:
            for k in range(8): l.append(f"v_mul_f32 v{tb+k}, v{acc+k}, v{acc+k}")
            for k in range(8): l.append(f"v_fma_f32 v{tb+k}, v{tb+k}, v{BC}, v{AC}")
            for k in range(8): l.append(f"v_mul_f32 v{tb+k}, v{tb+k}, v{acc+k}")
            for k in range(8): l += [f"v_exp_f32 v{tb+k}, v{tb+k}", f"v_mul_f32 v{acc+k}, v{acc+k}, v{acc+8+k}"]
            for k in range(8): l.append(f"v_fma_f32 v{tb+k}, v{tb+k}, v{I2}, v{I2}")
            for k in range(8): l.append(f"v_rcp_f32 v{tb+k}, v{tb+k}")
            for k in range(8): l.append(f"v_mul_f32 v{acc+k}, v{acc+k}, v{tb+k}")
        if keep is not None:
            return l + [f"v_cvt_pk_bf16_f32 v{keep+k}, v{acc+2*k}, v{acc+2*k+1}" for k in range(4)]
        for k in range(4): l.append(f"v_cvt_pk_bf16_f32 v{acc+8+k}, v{acc+2*k}, v{acc+2*k+1}")
        l.append(lambda: e.vm(f"buffer_store_dwordx4 {vr(acc+8,4)}, v{VL16}, {WS}, s{so} offen {SC}", "hs"))
        return l
    def h_off(line, dst):
        return f"""s_lshl_b32 s6, s{S_RB}, 2
s_add_u32 s6, s6, s{S_RT}
s_mul_i32 s6, s6, 144
s_lshl_b32 s{dst}, s{line}, 2
s_add_u32 s6, s6, s{dst}
s_add_u32 s6, s6, s{S_T0}
s_lshl_b32 s{dst}, s6, 10
s_add_u32 s{dst+1}, s{dst}, 1024"""
    def w2t_out(side):
        side.add(f"""v_lshrrev_b32 v{TP}, 5, v0
v_bfe_u32 v{TP+1}, v0, 2, 2
v_lshl_add_u32 v{TP}, v{TP}, 2, v{TP+1}
v_lshlrev_b32 v{TP}, 7, v{TP}
v_bfe_u32 v{TP+1}, v0, 4, 1
v_lshl_add_u32 v{TP}, v{TP+1}, 5, v{TP}
v_and_b32 v{TP+1}, 3, v0
v_lshl_add_u32 v{TP}, v{TP+1}, 3, v{TP}
s_lshr_b32 s6, s{S_W}, 1
s_lshl_b32 s6, s6, 11
s_and_b32 s{S_A}, s{S_W}, 1
s_lshl_b32 s{S_B}, s{S_A}, 6
s_add_u32 s6, s6, s{S_B}
s_add_u32 s6, s6, {L_W2T}
v_add_u32 v{TP}, s6, v{TP}""")
        side.add([lambda: (e.ds(f"ds_read_b64_tr_b16 {vr(PL,2)}, v{TP}", "w2tr"), e.ds(f"ds_read_b64_tr_b16 {vr(PL+2,2)}, v{TP} offset:1024", "w2tr")),
                  f"s_lshl_b32 s6, s{S_U}, 11", f"s_lshl_b32 s{S_A}, s{S_A}, 10", f"s_add_u32 s6, s6, s{S_A}", f"s_add_u32 s{S_TO}, s6, {W2T}",
                  lambda: (e.wds("w2tr"), e.vm(f"buffer_store_dwordx4 {vr(PL,4)}, v{VL16}, {WS}, s{S_TO} offen {SC}", "w2ts"))])
    GEND = P("GEND", 22); GW2 = P("GW2", 22); GFQ = P("GFQ", 9)
    GX, GBN, GFL, QRATE = P("GX", 0), P("GBN", 2), P("GFL", 6 if SPLITQ else 9), P("QRATE", 40)
    def pass2(qfirst):
        side = Side(e); dq = list(dmaq); side.q = list(carry)
        for g in range(28):
            gp = 28 + g
            pre = []; wd = []; wv = []; post = []
            if g == 0:
                if not qfirst and 'nogelu' in X: pass
                elif not qfirst:
                    side.add(h_off(S_LA, S_C))
                    ga = gelu(ACCA, S_C, G); gb = gelu(ACCA + 16, S_D, G)
                    k = P('HSD', 68)
                    side.add(ga[:-1] + gb[:k] + ga[-1:] + gb[k:])
                else: qkv_part1(side)
            if g == 6:
                post.append(lambda: dq.extend(stage_dmas(e, 10) + [lambda: (e(f"s_add_u32 m0, s{S_WB}, {L_W2T}\ns_nop 0"),
                            e.vm(f"buffer_load_dwordx4 v{VT}, s[{SRD_T}:{SRD_T+3}], s{S_TO} offen lds", "w2td"))]))
            if g == GW2: wv.append("w2td")
            if g in (6, 14, 22): wv.append(f"d{8 + g // 8}")
            if qfirst and g == GBN: pre.append(side.flush); wd.append("kvw"); post.append(lambda: qkv_part2(side))
            if qfirst and g == GFQ and SPLITQ:
                pre.append(side.flush); wv.append("qs")
                post.append(lambda: flag_store(e, f"""s_lshl_b32 s6, s{S_RB}, 5
s_add_u32 s6, s6, s{S_QU}
s_lshl_b32 s6, s6, 2
s_add_u32 s6, s6, {F_Q}
v_mov_b32 v{TP}, s6""", 1, TP))
            if qfirst and g == GFL:
                if SPLITQ: pre.append(lambda: e(f"s_waitcnt vmcnt({len(e.q['vm']) - e.mark['kvs']})")); wd.append("kvw")
                else: pre.append(side.flush); wv.append("qs")
                post.append(lambda: flag_store(e, f"""s_lshl_b32 s6, s{S_RB}, 2
s_add_u32 s6, s6, s{S_QU}
s_lshl_b32 s6, s6, 2
s_add_u32 s6, s6, {F_KV}
v_lshlrev_b32 v{TP}, 8, v0
v_add_u32 v{TP}, s6, v{TP}""", RKV, TP))
            if g == GW2 + 1 and 'now2o' not in X:
                q0 = side.q; side.q = []; w2t_out(side); side.q += q0
            if g == 24: side.flush()
            if g == P("GKP", 27):
                poll_issue(e, f"""s_and_b32 s6, s2, {RKV-1}
s_lshl_b32 s6, s6, 8
s_add_u32 s6, s6, {F_KV}
v_lshl_add_u32 v{PL}, v0, 2, s6""" + (f"""
s_lshl_b32 s6, s{S_RB}, 5
s_add_u32 s6, s6, s{S_QU}
s_lshl_b32 s6, s6, 2
s_add_u32 s6, s6, {F_Q}
v_mov_b32 v{PL+2}, s6
buffer_load_dword v{PL+3}, v{PL+2}, {WS}, 0 offen {SC}""" if SPLITQ else ""), PL, PL + 1, "kvp")
            if g == 25 and 'nocs' not in X:
                side.flush(); side.add(cs_write(L_CSB))
            if g == 26 and 'nocs' not in X:
                pre.append(side.flush); wd.append("csw")
                def p():
                    l, m = cs_read(L_CSB); side.add(l); side.add(m)
                post.append(p)
            bar = None
            if wd or wv:
                def bar():
                    for f in pre: f()
                    if wd: e.wds(*wd)
                    if wv: e.wvm(*wv)
                    e("s_barrier")
                    for f in post: f()
            if qfirst: n = QRATE if g < 9 else 12
            else: n = -(-len(side.q) // max(1, GEND - g)) if g < GEND else 12
            e.stamp(f"xg{g}")
            position(gp, side, dq, n, bar)
        side.flush()
        e.stamp("xpe2")
        e("s_nop 1")
        e(mfma(ACCB, ST, BEXT)); e(mfma(ACCB + 16, ST + 2, BEXT))
    RQ = PL
    def qkv_part1(side):
        side.add(f"""v_mul_f32 v{RQ}, {f2u(28 ** -0.5 * math.log2(math.e))}, v{R_}
v_and_b32 v{G+8}, 31, v0
v_lshlrev_b32 v{G+8}, 5, v{G+8}
s_lshl_b32 s6, s{S_RT}, 10
s_add_u32 s6, s6, {L_KVB}
v_add_u32 v{G+8}, s6, v{G+8}
s_mov_b32 s{S_D}, 0x00003f80
s_cmp_lt_u32 s{S_QU}, 2
s_cselect_b32 s{S_C}, 0x3f803f80, s{S_D}
s_cselect_b32 s{S_D}, s{S_D}, 0
s_nop 1""")
        for i, st_ in ((0, S_T0), (1, S_T1)):
            acc = ACCA + 16 * i; b = G + 4 * i
            for k in range(4): side.add([f"v_mul_f32 v{b+k}, v{acc+12+k}, v{R_}"])
            side.add(f"""s_sub_u32 s6, 3, s{st_}
s_lshl_b32 s{S_A}, s{st_}, 2
s_lshr_b32 s{S_A}, 0x0132, s{S_A}
s_and_b32 s{S_A}, s{S_A}, 3
s_bitcmp1_b32 s{S_QU}, 0
s_cselect_b32 s6, s{S_A}, s6
s_cselect_b32 s{S_A}, s{S_A}, 0
s_lshl_b32 s6, s6, 3
v_cvt_pk_bf16_f32 v{b}, v{b}, v{b+1}
v_cvt_pk_bf16_f32 v{b+1}, v{b+2}, v{b+3}
v_add_u32 v{b+2}, s6, v{G+8}""")
            def wr(b=b):
                l = e.newlabel("nc")
                e(f"s_cmp_eq_u32 s{S_A}, 3\ns_cbranch_scc0 {l}\nv_mov_b32 v{b}, s{S_C}\nv_mov_b32 v{b+1}, s{S_D}")
                e.label(l)
                e(f"s_mov_b64 exec, s[{S_HI}:{S_HI+1}]")
                e.ds(f"ds_write_b64 v{b+2}, {vr(b,2)}", "kvw")
                e("s_mov_b64 exec, -1")
            side.add([wr])
    def qkv_part2(side):
        def kv():
            l = e.newlabel("kvs"); lv = e.newlabel("kvv"); ls = e.newlabel("kvt")
            e(f"""s_cmp_eq_u32 s{S_CG}, 0
s_cbranch_scc0 {l}
s_lshl_b32 s6, s{S_RB}, 2
s_add_u32 s6, s6, s{S_RT}
s_lshl_b32 s6, s6, 12
s_add_u32 s6, s6, {KVF}
s_lshl_b32 s{S_A}, s{S_RT}, 10
s_add_u32 s{S_A}, s{S_A}, {L_KVB}
s_cmp_lt_u32 s{S_QU}, 2
s_cbranch_scc0 {lv}
v_and_b32 v{G}, 31, v0
v_lshrrev_b32 v{G+1}, 5, v0
v_lshlrev_b32 v{G}, 5, v{G}
v_lshl_add_u32 v{G}, v{G+1}, 3, v{G}
v_add_u32 v{G}, s{S_A}, v{G}
ds_read2_b64 {vr(G+4,4)}, v{G} offset0:0 offset1:2
s_lshl_b32 s{S_A}, s{S_QU}, 10
s_add_u32 s6, s6, s{S_A}
v_mov_b32 v{G+2}, v{VL16}
s_branch {ls}""")
            e.label(lv)
            e(f"""v_lshrrev_b32 v{G}, 5, v0
v_bfe_u32 v{G+1}, v0, 4, 1
v_lshlrev_b32 v{G+2}, 10, v{G}
v_lshl_add_u32 v{G+2}, v{G+1}, 9, v{G+2}
v_lshlrev_b32 v{G}, 4, v{G}
v_lshl_add_u32 v{G}, v{G+1}, 2, v{G}
v_bfe_u32 v{G+1}, v0, 2, 2
v_add_u32 v{G}, v{G}, v{G+1}
v_lshlrev_b32 v{G}, 5, v{G}
v_and_b32 v{G+1}, 3, v0
v_lshl_add_u32 v{G}, v{G+1}, 3, v{G}
v_add_u32 v{G}, s{S_A}, v{G}
ds_read_b64_tr_b16 {vr(G+4,2)}, v{G}
ds_read_b64_tr_b16 {vr(G+6,2)}, v{G} offset:256
v_and_b32 v{G+1}, 15, v0
v_lshl_add_u32 v{G+2}, v{G+1}, 4, v{G+2}
s_and_b32 s{S_A}, s{S_QU}, 1
s_lshl_b32 s{S_A}, s{S_A}, 8
s_add_u32 s6, s6, s{S_A}
s_add_u32 s6, s6, 2048""")
            e.label(ls)
            e(f"s_waitcnt lgkmcnt(0)\nbuffer_store_dwordx4 {vr(G+4,4)}, v{G+2}, {WS}, s6 offen {SC}")
            e.label(l)
            e.mark['kvs'] = len(e.q['vm'])
        side.add([kv])
        side.add(f"""s_lshl_b32 s6, s{S_RB}, 2
s_add_u32 s6, s6, s{S_RT}
s_lshl_b32 s6, s6, 2
s_add_u32 s6, s6, s{S_QU}
s_lshl_b32 s6, s6, 2
s_add_u32 s6, s6, s{S_T0}
s_lshl_b32 s6, s6, 11
s_add_u32 s{S_C}, s6, {QF}""")
        for i in range(2):
            acc = ACCA + 16 * i
            if P('PK', 0) & 4:
                for k in range(0, 16, 2): side.add([f"v_pk_mul_f32 {vr(acc+k,2)}, {vr(acc+k,2)}, {vr(RQ,2)} op_sel_hi:[1,0]"])
            else:
                for k in range(16): side.add([f"v_mul_f32 v{acc+k}, v{acc+k}, v{RQ}"])
            for k in range(8): side.add([f"v_cvt_pk_bf16_f32 v{acc+k}, v{acc+2*k}, v{acc+2*k+1}"])
            side.add([f"v_cndmask_b32 v{acc+6}, v{acc+6}, 0, s[{S_HI}:{S_HI+1}]", f"v_cndmask_b32 v{acc+7}, v{acc+7}, 0, s[{S_HI}:{S_HI+1}]",
                      lambda acc=acc, i=i: e.vm(f"buffer_store_dwordx4 {vr(acc,4)}, v{VL16}, {WS}, s{S_C} offen offset:{2048*i} {SC}", "qs"),
                      lambda acc=acc, i=i: e.vm(f"buffer_store_dwordx4 {vr(acc+4,4)}, v{VL16}, {WS}, s{S_C} offen offset:{2048*i+1024} {SC}", "qs")])
    e(f"s_cmp_eq_u32 s{S_ISQ}, 1\ns_cbranch_scc1 B_p2q")
    sn = e.snap(); hs = {k: list(v) for k, v in half.items()}; ns = e.nst
    pass2(False)
    e("s_branch B_join")
    e.label("B_p2q")
    e.nst = ns
    e.restore(sn); half.update({k: list(v) for k, v in hs.items()})
    pass2(True)
    e.label("B_join")
    e.q = {'ds': [], 'vm': []}; e.done = {'ds': 0, 'vm': 0}; e.mark['kvp'] = 0
    e.stamp("join")
    return gelu, h_off

LB0, LB1, VO = 3, 4, 5
Q, O, S0, PP, K, V0, V1 = 36, 44, 64, 96, 104, 112, 120
FA, FB = 128, 192
XRES = 244
S_KH, S_QT, S_KVO, S_WB4, S_FA, S_FB0, S_FB1, S_OO = 50, 51, 54, 55, 56, 57, 59, 60
S_FQ, S_K1 = 62, 63
F0 = P("F0", 8)
FP = P("FP", 2)
HBP = P("HBP", 10)
F3 = P("F3", 40)
WOP = 18

def kv_dma(e, st):
    def m(): e(f"s_add_u32 m0, s{S_WB4}, {((st + 3) % 4) * RING}" + ("\ns_nop 0" if st < 3 else ""))
    m.scalar = True
    l = [m]
    for f in range(4):
        l.append(lambda f=f: (e.vm(f"buffer_load_dwordx4 v{VL16}, {WS}, s{S_KVO} offen offset:{1024*f} {SC} lds", f"k{st}"),
                              e(f"s_add_u32 s{S_KVO}, s{S_KVO}, 16384") if f == 3 else None))
    return l

NB = P("NB", 4)
FBUF = [[FB + 16 * n + 4 * k for k in range(4)] for n in range(3)] + [[60, 124, 248, 252]]
def f_loads(e, q):
    bb = FBUF[q % NB]
    r = q if q < 6 else q - 6
    advA = advB = None
    if q == 5:
        advA = f"s_add_u32 s{S_FA}, s{S_FA}, s{S_FQ}"
        advB = f"s_add_u32 s{S_FB0}, s{S_FB0}, s{S_K1}\ns_add_u32 s{S_FB1}, s{S_FB1}, s{S_K1}"
    else:
        if r & 1: advA = f"s_add_u32 s{S_FA}, s{S_FA}, 4096"
        if (r & 3) == 3: advB = f"s_add_u32 s{S_FB0}, s{S_FB0}, 4096\ns_add_u32 s{S_FB1}, s{S_FB1}, 4096"
    return [lambda: e.vm(f"buffer_load_dwordx4 {vr(bb[0],4)}, v{VL16}, {WS}, s{S_FA} offen offset:{(r&1)*2048} {SC}", f"f{q}"),
            lambda: e.vm(f"buffer_load_dwordx4 {vr(bb[2],4)}, v{VL16}, {WS}, s{S_FB0} offen offset:{(r&3)*1024} {SC}", f"f{q}"),
            lambda: (e.vm(f"buffer_load_dwordx4 {vr(bb[1],4)}, v{VL16}, {WS}, s{S_FA} offen offset:{(r&1)*2048+1024} {SC}", f"f{q}"),
                     e(advA) if advA else None),
            lambda: (e.vm(f"buffer_load_dwordx4 {vr(bb[3],4)}, v{VL16}, {WS}, s{S_FB1} offen offset:{(r&3)*1024} {SC}", f"f{q}"),
                     e(advB) if advB else None)]
def f_mfma(q, k):
    bb = FBUF[q % NB]; r2, d2 = ((0, 0), (0, 1), (1, 1), (1, 0))[k]
    return mfma(FA + 32*r2 + 16*d2, bb[d2], bb[2 + r2], "0" if q == 0 else None)

S_OA, S_OL = 61, 75
OAREG = [8 + 4 * k for k in range(7)] + [FB + 4 * k for k in range(9)]
def oa_dma(e, n):
    def f():
        if n == 0: e(f"s_add_u32 m0, s{S_OL}, {3 * RING}\ns_nop 0")
        if n == 4: e(f"s_mov_b32 m0, s{S_OL}\ns_add_u32 s{S_OA}, s{S_OA}, 8192")
        e.vm(f"buffer_load_dwordx4 v{VL16}, {WS}, s{S_OA} offen offset:{(n & 3) * 1024} {SC} lds", "oa")
    return f
KVPRE = P('KVPRE', 2)
HDEF = P('HDEF', 1); HFL = P('HFL', 6 if HDEF else 2); S_HO = 47
def attn_setup(e, gelu, h_off):
    e(h_off(S_LB, S_C))
    e(f"""s_mov_b32 s{S_QT}, s{S_RT}
s_mov_b32 s{S_KH}, s{S_CG}
s_lshl_b32 s{S_WB4}, s{S_W}, 12
s_lshl_b32 s6, s{S_KH}, 5
s_add_u32 s6, s6, s{S_QT}
s_lshl_b32 s6, s6, 12
s_add_u32 s{S_KVO}, s6, {KVF}
s_lshl_b32 s6, s{S_RB}, 2
s_add_u32 s6, s6, s{S_QT}
s_lshl_b32 s7, s6, 4
s_add_u32 s7, s7, s{S_J}
s_lshl_b32 s7, s7, 11
s_add_u32 s7, s7, {QF}""")
    if HDEF: e(f"s_mov_b32 s{S_HO}, s{S_C}")
    g0 = gelu(ACCB, S_C, G, 16 if HDEF else None, P('PK', 0) & 1); g1 = gelu(ACCB + 16, S_D, G + 8, 20 if HDEF else None, P('PK', 0) & 1)
    nfirst = P("GFIRST", 0)
    both = g0 + g1
    if P('GIL', 1): both = [x for p in zip(g0, g1) for x in p]
    for it in both[:nfirst]: it() if callable(it) else e(it)
    assert nfirst == 0
    poll_check(e, PL, PL + 1, "kvp", P("KSLEEP", 1))
    if SPLITQ: poll_check(e, PL + 2, PL + 3, "kvp", P("KSLEEP", 1))
    e.all_vm()
    e("s_barrier")
    e.stamp("xkv")
    flag_store(e, f"""s_lshl_b32 s6, s{S_RB}, 5
s_add_u32 s6, s6, s{S_J}
s_lshl_b32 s6, s6, 2
s_add_u32 s6, s6, {F_H + 64}
s_lshl_b32 s{S_A}, s{S_WF}, 2
s_add_u32 s{S_A}, s{S_A}, {F_W}
s_sub_u32 s{S_A}, s{S_A}, s6
v_mul_lo_u32 v{PL}, v0, s{S_A}
v_add_u32 v{PL}, s6, v{PL}""", 2, PL)
    if P("KVT", 0):
        e(f"""s_lshr_b32 s6, s2, 3
s_lshl_b32 s6, s6, 3
s_add_u32 s6, s6, s{S_W}
s_lshl_b32 s6, s6, 10
s_add_u32 s6, s6, {KVF}
v_and_b32 v{TP}, 7, v0
v_lshlrev_b32 v{TP}, 7, v{TP}""")
        e.vm(f"buffer_load_dword v{TP+1}, v{TP}, {WS}, s6 offen {SC}", "kvt")
    side = Side(e)
    side.add(kv_dma(e, 0))
    side.add([lambda: e.vm(f"buffer_load_dwordx4 {vr(Q,4)}, v{VL16}, {WS}, s7 offen {SC}", "q"),
              lambda: e.vm(f"buffer_load_dwordx4 {vr(Q+4,4)}, v{VL16}, {WS}, s7 offen offset:1024 {SC}", "q")])
    side.emit(P("KPRE0", 7))
    for st in range(1, KVPRE): side.add(kv_dma(e, st))
    for n, it in enumerate(both[nfirst:]):
        it() if callable(it) else e(it)
        if n % P('GSP', 1000) == P('GSP', 1000) - 1: side.emit(1)
        if n == 68: e.stamp("xg69")
    e.stamp("xgv")
    side.flush()
    e(f"""s_lshl_b32 s6, s{S_KH}, 14
v_add_u32 v{LB0}, s6, v{VL16}
v_add_u32 v{LB1}, 0x10000, v{LB0}
s_lshl_b32 s6, s{S_RB}, 2
s_add_u32 s6, s6, s{S_QT}
s_mul_i32 s6, s6, 144
s_lshl_b32 s7, s{S_J}, 1
s_add_u32 s6, s6, s7
s_add_u32 s6, s6, s{S_KH}
s_add_u32 s6, s6, 112
s_lshl_b32 s{S_OO}, s6, 10""")

def rd(e, dst, tile, f, tag):
    sl = (tile // 4 + 3) % 4
    e.ds(f"ds_read_b128 {vr(dst,4)}, v{LB0 if sl < 2 else LB1} offset:{(sl & 1) * RING + (tile % 4) * 4096 + f * 1024}", tag)

def attn_loop(e, withF):
    e.stamp("xge")
    if P("PRIO", 2) == 2:
        l = e.newlabel("np"); e(f"s_cmp_ge_u32 s{S_W}, 4\ns_cbranch_scc0 {l}\ns_setprio 1"); e.label(l)
    if P("PRIO", 2) == 5: e("s_setprio 0")
    e.wvm("k0", "q"); e.stamp("xk0"); e("s_barrier")
    e.stamp("astart")
    rd(e, K, 0, 0, "a"); rd(e, K + 4, 0, 1, "a"); rd(e, V0, 0, 2, "b")
    e.wds("a")
    e(mfma(S0, K, Q, "0")); e(mfma(S0, K + 4, Q + 4))
    rd(e, K, 1, 0, "b"); rd(e, K + 4, 1, 1, "b")
    if withF:
        e(f"""s_lshr_b32 s6, s{S_J}, 3
s_lshl_b32 s7, s{S_RB}, 1
s_add_u32 s6, s6, s7
s_and_b32 s7, s{S_J}, 7
s_mul_i32 s{S_A}, s{S_W}, 6
s_lshl_b32 s{S_K1}, s{S_W}, 1
s_add_u32 s{S_K1}, s{S_K1}, 44
s_lshl_b32 s{S_K1}, s{S_K1}, 10
s_lshl_b32 s{S_FQ}, s{S_K1}, 1
s_mul_i32 s{S_FB0}, s6, 288
s_add_u32 s{S_FB0}, s{S_FB0}, s{S_A}
s_lshl_b32 s{S_FB0}, s{S_FB0}, 10
s_add_u32 s{S_FB1}, s{S_FB0}, {144*1024}
s_bitcmp1_b32 s{S_W}, 0
s_cselect_b32 s{S_B}, s{S_FB1}, s{S_FB0}
s_cselect_b32 s{S_FB1}, s{S_FB0}, s{S_FB1}
s_mov_b32 s{S_FB0}, s{S_B}
s_mul_i32 s{S_FA}, s7, 144
s_add_u32 s{S_FA}, s{S_FA}, s{S_A}
s_lshl_b32 s{S_FA}, s{S_FA}, 11
s_add_u32 s{S_FA}, s{S_FA}, {W2T}
s_lshr_b32 s{S_A}, s{S_W}, 1
s_lshl_b32 s{S_A}, s{S_A}, 3
s_mul_i32 s{S_OA}, s7, 144
s_add_u32 s{S_OA}, s{S_OA}, s{S_A}
s_add_u32 s{S_OA}, s{S_OA}, 112
s_lshl_b32 s{S_OA}, s{S_OA}, 11
s_add_u32 s{S_OA}, s{S_OA}, {W2T}
s_and_b32 s{S_B}, s{S_W}, 1
s_lshl_b32 s{S_B}, s{S_B}, 12
s_add_u32 s{S_OA}, s{S_OA}, s{S_B}
s_lshl_b32 s{S_OL}, s{S_W}, 12""")
    else:
        e("s_nop 9")
    NT = 32
    fq = []
    nq = 0
    dq = []
    fi = 0
    need = {}; keep = []; done = [0]
    for i in range(NT):
        sc = S0 + 16 * (i & 1); sn = S0 + 16 * ((i + 1) & 1)
        v0c = V0 + 4 * (i & 1); v0n = V0 + 4 * ((i + 1) & 1)
        E = lambda r: f"v_exp_f32 v{r}, v{r}"
        C = lambda d, r: f"v_cvt_pk_bf16_f32 v{d}, v{r}, v{r+1}"
        def g(k): return [E(sc + 4*k + q) for q in range(4)] + [C(PP + 2*k, sc + 4*k), C(PP + 2*k + 1, sc + 4*k + 2)]
        g0, g1, g2, g3 = g(0), g(1), g(2), g(3)
        fm = []; fl = []
        if withF:
            if i == FP - 2:
                assert FP % 4 == 2
                fl = [lambda: poll_issue(e, f"""s_lshl_b32 s6, s{S_RB}, 7
s_add_u32 s6, s6, {F_H + 64}
s_and_b32 s7, s{S_J}, 7
s_lshl_b32 s7, s7, 8
s_add_u32 s7, s7, {F_W - 64}
v_lshl_add_u32 v{G}, v0, 2, s6
v_lshl_add_u32 v{G+1}, v0, 2, s7
v_mov_b32 v{G+2}, s6
s_mov_b32 s{S_A}, 0xffff0000
s_mov_b32 s{S_B}, 0x00000fff
s_mov_b32 s{S_C}, 0x00008888
s_mov_b32 s{S_D}, 0xfffff000
v_cndmask_b32 v{G}, v{G}, v{G+1}, s[{S_A}:{S_B}]
v_cndmask_b32 v{G}, v{G}, v{G+2}, s[{S_C}:{S_D}]""", G, G + 1, "hp")]
            if FP <= i < F0:
                if i == FP:
                    for q in range(NB - 1): fq += f_loads(e, q)
                n = -(-len(fq) // (F0 - i))
                fl = fq[:n]; fq = fq[n:]
            pb = []
            if i == HBP - 2:
                pb = [lambda: poll_issue(e, f"""s_lshl_b32 s6, s{S_RB}, 7
s_add_u32 s6, s6, {F_H}
v_and_b32 v{G}, 15, v0
v_lshl_add_u32 v{G}, v{G}, 2, s6""", G, G + 1, "hb")]
            if i == WOP - 2:
                pb = [lambda: poll_issue(e, f"""s_and_b32 s6, s{S_J}, 7
s_lshl_b32 s6, s6, 8
s_add_u32 s6, s6, {F_W + 112}
v_and_b32 v{G}, 7, v0
v_lshl_add_u32 v{G}, v{G}, 2, s6""", G, G + 1, "wo")]
            if i >= F0:
                cnt = 3 if i >= F3 else 2
                idx = list(range(fi, min(fi + cnt, 56))); fi += len(idx)
                fm = [(n // 4, n % 4) for n in idx]
                for (q, k) in fm:
                    if k == 0 and q + NB - 1 < 14:
                        if q + NB - 1 == 6: assert i > HBP
                        nl = f_loads(e, q + NB - 1)
                        for f in nl: need[id(f)] = 4 * q
                        keep.extend(nl); fq += nl
                n = min(len(fq), cnt)
                fl = fq[:n] + pb; fq = fq[n:]
        def em(x): x() if callable(x) else e(x)
        e.stamp(f"xa{i}")
        ex = [E(sc + k) for k in range(16)]; cv = [C(PP + k, sc + 2 * k) for k in range(8)]
        if i + KVPRE <= 2: dq += kv_dma(e, i + KVPRE)
        misc = []
        if i == 29: misc.append(comb_addr())
        if HDEF and i in (HDEF, HDEF + 1):
            misc.append(lambda i=i: e.vm(f"buffer_store_dwordx4 {vr(16 + 4*(i - HDEF),4)}, v{VL16}, {WS}, s{S_HO} offen offset:{1024*(i - HDEF)} {SC}", "hs"))
        if withF and 22 <= i < 30: misc.append(oa_dma(e, i - 22))
        gate = withF and i == FP
        def take(n):
            for _ in range(n):
                if fl and need.get(id(fl[0]), 0) <= done[0]: em(fl.pop(0))
        per = -(-len(fl) // 2)
        for x in ex[0:2]: em(x)
        def fmf(n):
            if n < len(fm):
                q, k = fm[n]
                e.wvm(f"f{q}"); e(f_mfma(q, k)); done[0] += 1
        if fm and fm[0][1] == 0: e.wboth(f"f{fm[0][0]}")
        else: e.all_ds()
        if i > 0: e(mfma(O, V1, PP + 4))
        rd(e, V1, i, 3, "c")
        for x in ex[2:5]: em(x)
        fmf(0)
        if not gate: take(1 if fm else per)
        for x in cv[0:2] + ex[5:7]: em(x)
        if i + 1 < NT: e(mfma(sn, K, Q, "0")); rd(e, v0n, i + 1, 2, "c")
        for x in ex[7:10]: em(x)
        if i + 1 < NT: e(mfma(sn, K + 4, Q + 4))
        if i % 4 == 2 and i + 2 < NT:
            st = i // 4
            if withF and i == FP: poll_check(e, G, G + 1, "hp")
            if withF and i == HBP: poll_check(e, G, G + 1, "hb")
            if withF and i == WOP: poll_check(e, G, G + 1, "wo")
            while dq and i == 2: dq.pop(0)()
            e.wvm(*([f"k{st+1}"] + (["hs"] if i == HFL else []))); e("s_barrier")
            if i == HFL:
                flag_store(e, f"""s_lshl_b32 s6, s{S_RB}, 5
s_add_u32 s6, s6, s{S_J}
s_lshl_b32 s6, s6, 2
s_add_u32 s6, s6, {F_H}
v_mov_b32 v{G+2}, s6""", 1, G + 2)
            assert not dq
            if st + 3 <= 7: dq += kv_dma(e, st + 3)
        if i + 2 < NT: rd(e, K, i + 2, 0, "c"); rd(e, K + 4, i + 2, 1, "c")
        if dq and getattr(dq[0], "scalar", False): dq.pop(0)()
        for x in cv[2:4] + ex[10:12]: em(x)
        fmf(1)
        take(1 if fm else len(fl) if not gate else per)
        for x in ex[12:14] + cv[4:6]: em(x)
        e(mfma(O, v0c, PP, "0" if i == 0 else None))
        for _ in range(1 if i >= 2 else 2):
            if dq: dq.pop(0)()
        if len(fm) < 3: take(len(fl))
        for x in misc: em(x)
        for x in ex[14:16] + cv[6:7]: em(x)
        fmf(2); take(len(fl))
        fq = fl + fq
        em(cv[7])
        if i + 2 >= NT: e("s_nop 1")
    e.all_ds()
    e("s_nop 0")
    e(mfma(O, V1, PP + 4))
    return fi, fq

CMB = L_W2T
def comb_addr():
    T = G
    return f"""s_lshl_b32 s6, s{S_W}, 11
s_add_u32 s6, s6, {CMB}
v_add_u32 v{T}, s6, v{VL16}
v_xor_b32 v{T+1}, 8192, v{T}
s_lshl_b32 s6, s{S_W}, 8
s_add_u32 s6, s6, {CMB + 16384}
v_lshl_add_u32 v{T+2}, v0, 2, s6
v_or_b32 v{T+3}, 32, v0
s_lshl_b32 s6, s{S_QT}, 8
s_add_u32 s6, s6, {CMB + 16384}
v_lshl_add_u32 v{T+3}, v{T+3}, 2, s6
s_mov_b32 s{S_C}, {f2u(2.0 ** -64)}
s_mov_b32 s{S_D}, {f2u(2.0 ** 64)}
s_lshl_b32 s6, s{S_RB}, 9
s_add_u32 s6, s6, s{S_J}
s_lshl_b32 s6, s6, 2
s_add_u32 s6, s6, {F_O2}
v_lshl_add_u32 v6, v0, 7, s6
v_mov_b32 v7, s{S_NON}"""

def attn_finish(e, withF=False):
    T = G
    e.stamp("aend")
    hi = e.newlabel("chi"); jn = e.newlabel("cjn"); fb = e.newlabel("cfb"); bk = e.newlabel("cbk")
    e(f"s_cmp_eq_u32 s{S_KH}, 0\ns_nop 10")
    e.ds(f"ds_write_b32 v{T+2}, v{O+12}")
    e(f"s_cbranch_scc0 {hi}")
    e.ds(f"ds_write_b128 v{T}, {vr(O+8,4)}"); e.ds(f"ds_write_b128 v{T}, {vr(O+12,4)} offset:1024")
    e(f"s_branch {jn}")
    e.label(hi)
    e(f"ds_write_b128 v{T}, {vr(O,4)}\nds_write_b128 v{T}, {vr(O+4,4)} offset:1024")
    e.all_ds()
    for k in range(8): e(f"v_mov_b32 v{O+k}, v{O+8+k}")
    e.label(jn)
    if withF: e.wboth("oa")
    else: e.all_ds()
    e.stamp("xc0")
    e("s_barrier")
    e.stamp("xc1")
    e.ds(f"ds_read2st64_b32 {vr(PP,2)}, v{T+3} offset0:0 offset1:4", "l")
    e.ds(f"ds_read_b128 {vr(S0,4)}, v{T+1}", "h0"); e.ds(f"ds_read_b128 {vr(S0+4,4)}, v{T+1} offset:1024", "h1")
    e(f"s_mov_b32 s{S_A}, 0\ns_sub_u32 s{S_B}, 0, s{S_KH}")
    e.wds("l")
    e(f"""v_add_f32 v{PP}, v{PP}, v{PP+1}
v_rcp_f32 v{PP+1}, v{PP}
v_cmp_nle_f32 vcc, s{S_C}, v{PP}
v_cmp_nge_f32 s[{S_E}:{S_F}], s{S_D}, v{PP}""")
    e.all_ds()
    for k in range(8): e(f"v_add_f32 v{S0+k}, v{S0+k}, v{O+k}")
    e(f"s_or_b64 s[{S_E}:{S_F}], s[{S_E}:{S_F}], vcc")
    for k in range(8): e(f"v_mul_f32 v{S0+k}, v{S0+k}, v{PP+1}")
    def pack_store():
        for k in range(4): e(f"v_cvt_pk_bf16_f32 v{K+k}, v{S0+2*k}, v{S0+2*k+1}")
        e(f"""v_cndmask_b32 v{K+2}, v{K+2}, 0, s[{S_A}:{S_B}]
v_cndmask_b32 v{K+3}, v{K+3}, 0, s[{S_A}:{S_B}]""")
    pack_store()
    e.vm(f"buffer_store_dwordx4 {vr(K,4)}, v{VL16}, {WS}, s{S_OO} offen {SC}", "os")
    e(f"""v_add_f32 v{PP+2}, |v{S0}|, |v{S0+1}|
v_add_f32 v{PP+3}, |v{S0+2}|, |v{S0+3}|
v_add_f32 v{PP+4}, |v{S0+4}|, |v{S0+5}|
v_add_f32 v{PP+5}, |v{S0+6}|, |v{S0+7}|
v_add_f32 v{PP+2}, v{PP+2}, v{PP+3}
v_add_f32 v{PP+4}, v{PP+4}, v{PP+5}
s_mov_b32 s6, 0x7f7fffff
v_add_f32 v{PP+2}, v{PP+2}, v{PP+4}
v_cmp_nge_f32 vcc, s6, v{PP+2}
s_nop 1
s_or_b64 vcc, vcc, s[{S_E}:{S_F}]""")
    if 'forcefb' in X: e("s_mov_b64 vcc, 1")
    e(f"s_cbranch_vccnz {fb}")
    e.label(bk)
    FALLBACKS.append((fb, bk))
    e.stamp("xc2")

FALLBACKS = []
def fallback(e, fb, bk):
    l1 = e.newlabel("fb1"); l2 = e.newlabel("fb2"); l3 = e.newlabel("fb3")
    M = PP + 7
    e.label(fb)
    if 'fbcount' in X:
        e(f"""s_mov_b32 s80, s{P_DBG}
s_mov_b32 s81, s{P_DBG+1}
s_mov_b32 s82, 256
s_mov_b32 s83, 0x00020000
v_mov_b32 v{M}, 0
v_mov_b32 v{M-1}, 1
s_mov_b64 exec, 1
buffer_atomic_add v{M-1}, v{M}, s[80:83], 0 offen
v_mov_b32 v{M-1}, s2
buffer_store_dword v{M-1}, v{M}, s[80:83], 0 offen offset:4
v_mov_b32 v{M-1}, s{S_W}
buffer_store_dword v{M-1}, v{M}, s[80:83], 0 offen offset:8
v_mov_b32 v{M-1}, vcc_lo
buffer_store_dword v{M-1}, v{M}, s[80:83], 0 offen offset:12
v_mov_b32 v{M-1}, vcc_hi
buffer_store_dword v{M-1}, v{M}, s[80:83], 0 offen offset:16
v_mov_b32 v{M-1}, s{S_E}
buffer_store_dword v{M-1}, v{M}, s[80:83], 0 offen offset:20
v_mov_b32 v{M-1}, s{S_F}
buffer_store_dword v{M-1}, v{M}, s[80:83], 0 offen offset:24
buffer_store_dword v{PP}, v{M}, s[80:83], 0 offen offset:28
buffer_store_dword v{PP+2}, v{M}, s[80:83], 0 offen offset:32
s_waitcnt vmcnt(0)
s_mov_b64 exec, -1""")
    e(f"s_mov_b32 s6, {KVF}\nv_mov_b32 v{M}, 0xff800000")
    e.label(l1)
    e(f"""buffer_load_dwordx4 {vr(K,4)}, v{VL16}, {WS}, s6 offen {SC}
buffer_load_dwordx4 {vr(K+4,4)}, v{VL16}, {WS}, s6 offen offset:1024 {SC}
s_add_u32 s6, s6, 4096
s_waitcnt vmcnt(0)""")
    e(mfma(S0, K, Q, "0")); e(mfma(S0, K + 4, Q + 4))
    e("s_nop 11")
    for k in range(8): e(f"v_max3_f32 v{M}, v{M}, v{S0+2*k}, v{S0+2*k+1}")
    e(f"""s_cmp_lt_u32 s6, {KVF + 64*4096}
s_cbranch_scc1 {l1}
v_mov_b32 v{PP}, v{M}
s_nop 1
v_permlane32_swap_b32 v{PP}, v{M}
v_max_f32 v{M}, v{M}, v{PP}
v_cvt_pk_bf16_f32 v{PP}, v{M}, v{M}
v_and_b32 v{PP}, s{S_MASK}, v{PP}
v_sub_f32 v{PP+1}, v{M}, v{PP}
v_cvt_pk_bf16_f32 v{PP+2}, v{PP+1}, v{PP+1}
v_and_b32 v{PP+2}, s{S_MASK}, v{PP+2}
v_sub_f32 v{PP+1}, v{PP+1}, v{PP+2}
v_cvt_pk_bf16_f32 v{PP}, -v{PP}, -v{PP+2}
v_cvt_pk_bf16_f32 v{PP+1}, -v{PP+1}, 0
v_cndmask_b32 v{Q+6}, v{Q+6}, v{PP}, s[{S_HI}:{S_HI+1}]
v_cndmask_b32 v{Q+7}, v{Q+7}, v{PP+1}, s[{S_HI}:{S_HI+1}]
s_mov_b32 s6, {KVF}""")
    for k in range(16): e(f"v_mov_b32 v{O+k}, 0")
    e.label(l2)
    for f in range(4): e(f"buffer_load_dwordx4 {vr(K+4*f,4)}, v{VL16}, {WS}, s6 offen offset:{1024*f} {SC}")
    e("s_add_u32 s6, s6, 4096\ns_waitcnt vmcnt(0)")
    e(mfma(S0, K, Q, "0")); e(mfma(S0, K + 4, Q + 4))
    e("s_nop 11")
    for k in range(16): e(f"v_exp_f32 v{S0+k}, v{S0+k}")
    e("s_nop 0")
    for k in range(8): e(f"v_cvt_pk_bf16_f32 v{PP+k}, v{S0+2*k}, v{S0+2*k+1}")
    e("s_nop 1")
    e(mfma(O, K + 8, PP)); e(mfma(O, K + 12, PP + 4))
    e(f"""s_cmp_lt_u32 s6, {KVF + 64*4096}
s_cbranch_scc1 {l2}
s_nop 11
v_mov_b32 v{PP}, v{O+12}
v_mov_b32 v{PP+1}, v{O+12}
s_cmp_eq_u32 s{S_KH}, 0
s_nop 0
v_permlane32_swap_b32 v{PP}, v{PP+1}
v_rcp_f32 v{PP+1}, v{PP+1}
s_cbranch_scc1 {l3}""")
    for k in range(8): e(f"v_mov_b32 v{O+k}, v{O+8+k}")
    e.label(l3)
    e("s_nop 0")
    for k in range(8): e(f"v_mul_f32 v{S0+k}, v{O+k}, v{PP+1}")
    for k in range(4): e(f"v_cvt_pk_bf16_f32 v{K+k}, v{S0+2*k}, v{S0+2*k+1}")
    e(f"""v_cndmask_b32 v{K+2}, v{K+2}, 0, s[{S_A}:{S_B}]
v_cndmask_b32 v{K+3}, v{K+3}, 0, s[{S_A}:{S_B}]
buffer_store_dwordx4 {vr(K,4)}, v{VL16}, {WS}, s{S_OO} offen {SC}
s_waitcnt vmcnt(0)
s_branch {bk}""")

OFA, OFD = 6, 7
def o_signal(e):
    l = e.newlabel("os")
    e(f"s_cbranch_vccz {l}\ns_mov_b64 exec, 0xffff\nbuffer_store_dword v{OFD}, v{OFA}, {WS}, 0 offen {SC}\ns_mov_b64 exec, -1")
    e.label(l)

def o_flag(e):
    e.stamp("xc3")
    e(f"s_cmp_eq_u32 s{S_W}, 0\ns_cselect_b64 vcc, -1, 0")
    e.wvm("os"); e.stamp("xc4"); e("s_barrier")
    o_signal(e)

def tail(e, nq, fq):
    T = G
    SUM = 232
    RB = 64
    OBR = [96 + 4 * k for k in range(7)] + [36]
    AD = 248
    for f in fq: f()
    for n in range(nq, 56):
        q, k = n // 4, n % 4
        if k == 0 and q + NB - 1 < 14:
            for f in f_loads(e, q + NB - 1): f()
        e.wvm(f"f{q}"); e(f_mfma(q, k))
    e(f"""s_lshl_b32 s6, s{S_W}, 13
s_add_u32 s6, s6, {RING}
v_add_u32 v{AD+6}, s6, v{VL16}
v_xor_b32 v{AD+7}, 8192, v{AD+6}""")
    if nq < 56: e("s_nop 8")
    setup = Side(e)
    setup.add(f"""s_lshr_b32 s6, s{S_J}, 3
s_lshl_b32 s7, s{S_RB}, 1
s_add_u32 s6, s6, s7
s_and_b32 s{S_B}, s{S_W}, 1
s_lshl_b32 s{S_C}, s6, 1
s_add_u32 s{S_C}, s{S_C}, s{S_B}
s_mul_i32 s{S_C}, s{S_C}, 144
s_lshr_b32 s{S_A}, s{S_W}, 1
s_lshl_b32 s{S_D}, s{S_A}, 3
s_add_u32 s{S_D}, s{S_D}, 112
s_add_u32 s{S_C}, s{S_C}, s{S_D}
s_lshl_b32 s{S_C}, s{S_C}, 10
s_and_b32 s7, s{S_J}, 7
s_add_u32 s{S_D}, s{S_C}, 4096
s_lshl_b32 s{S_A}, s{S_A}, 14
s_lshl_b32 s{S_B}, s{S_B}, 13
s_add_u32 s{S_G}, s{S_A}, s{S_B}
s_add_u32 s{S_G}, s{S_G}, {RING}
v_and_b32 v{T}, 31, v0
v_lshrrev_b32 v{T+1}, 5, v0
v_and_b32 v{T+2}, 7, v0
v_xor_b32 v{T+1}, v{T+1}, v{T+2}
v_lshlrev_b32 v{T+1}, 4, v{T+1}
v_lshl_add_u32 v{T}, v{T}, 8, v{T+1}
v_add_u32 v{AD}, s{S_G}, v{T}
v_xor_b32 v{AD+1}, 32, v{AD}
v_xor_b32 v{AD+2}, 64, v{AD}
v_xor_b32 v{AD+3}, 96, v{AD}
s_lshl_b32 s6, s6, 6
s_lshl_b32 s{S_B}, s{S_W}, 3
s_add_u32 s6, s6, s{S_B}
v_lshrrev_b32 v{T}, 3, v0
v_add_u32 v{T+1}, s6, v{T}
v_mul_u32_u24 v{T+1}, 896, v{T+1}
v_lshl_add_u32 v{T+1}, v{T+2}, 4, v{T+1}
s_lshl_b32 s7, s7, 7
v_add_u32 v{VO}, s7, v{T+1}
v_lshlrev_b32 v{T+2}, 1, v{T+2}
v_xor_b32 v{T+2}, v{T+2}, v{T}
v_lshlrev_b32 v{T+2}, 4, v{T+2}
v_lshl_add_u32 v{T}, v{T}, 8, v{T+2}
s_lshl_b32 s6, s{S_W}, 11
s_add_u32 s6, s6, {RING}
v_add_u32 v{AD+4}, s6, v{T}
v_xor_b32 v{AD+5}, 16, v{AD+4}
v_add_u32 v{T+2}, {3 * RING}, v{T+3}""")
    e(f"s_lshr_b32 s6, s{S_W}, 1\ns_lshl_b32 s6, s6, 13\nv_add_u32 v{T+3}, s6, v{VL16}\ns_nop 0")
    oaq = [(lambda k=k: e.ds(f"ds_read_b128 {vr(OAREG[k],4)}, v{T+2 if k < 8 else T+3} offset:{(k & 7) * 1024}", "oar")) for k in range(16)]
    nw1 = P("NW1", 2)
    def oflag():
        e.stamp("xc3")
        e(f"s_cmp_eq_u32 s{S_W}, 0\ns_cselect_b64 vcc, -1, 0")
        e.wvm("os")
        if nw1 == 8: e.all_ds()
        e.stamp("xc4"); e("s_barrier")
        o_signal(e)
    for q in range(8):
        if q == nw1: oflag()
        e.ds(f"ds_write_b128 v{AD+6}, {vr(FA+32+4*q,4)} offset:{q*1024}")
        setup.emit(6)
    setup.flush()
    if nw1 == 8: oflag()
    if not P('OAL', 1):
        for f in oaq: f()
    e.vm(f"buffer_load_dwordx4 {vr(XRES,4)}, v{VO}, s[{SRD_X}:{SRD_X+3}], 0 offen", "xr")
    if nw1 < 8: e.all_ds(); e("s_barrier")
    for q in range(8): e.ds(f"ds_read_b128 {vr(RB+4*q,4)}, v{AD+7} offset:{q*1024}", f"p{q}")
    def olook():
        poll_issue(e, f"""s_lshl_b32 s6, s{S_RB}, 4
s_add_u32 s6, s6, s{S_J}
s_lshl_b32 s6, s6, 7
s_add_u32 s6, s6, {F_O2}
v_and_b32 v{T}, 15, v0
v_lshl_add_u32 v{T}, v{T}, 2, s6""", T, T + 1, "op")
    if P('OLATE', 1) == 0: olook()
    srd(e, SRD_OUT, P_OUT, 2048 * 896)
    for q in range(8):
        e.wds(f"p{q}")
        for k in range(4): e(f"v_add_f32 v{FA+4*q+k}, v{FA+4*q+k}, v{RB+4*q+k}")
    if P('OLATE', 1) == 2:
        for f in oaq: f()
        oaq = []
    if P('OLATE', 1): olook()
    e.stamp("t1")
    poll_check(e, T, T + 1, "op", P("OSLEEP", 1))
    e("s_barrier")
    e.stamp("t2")
    for k in range(8):
        e.vm(f"buffer_load_dwordx4 {vr(OBR[k],4)}, v{VL16}, {WS}, s{S_C if k < 4 else S_D} offen offset:{(k&3)*1024} {SC}", f"ob{k}")
    if P('OAL', 1):
        for f in oaq: f()
        e.all_ds()
    e.wvm("xr")
    for k in range(4): e(f"v_lshlrev_b32 v{SUM+2*k}, 16, v{XRES+k}\nv_and_b32 v{SUM+1+2*k}, s{S_MASK}, v{XRES+k}")
    for k in range(8):
        e.wvm(f"ob{k}")
        for d2 in range(2): e(mfma(FA + 16*d2, OAREG[2*k + d2], OBR[k]))
    e("s_nop 10")
    e.stamp("t3")
    for d2 in range(2):
        for q in range(4): e.ds(f"ds_write_b128 v{AD+q}, {vr(FA+16*d2+4*q,4)} offset:{d2*128}")
    e.all_ds()
    e("s_barrier")
    for p in range(4):
        e.ds(f"ds_read_b128 {vr(RB+8*p,4)}, v{AD+4} offset:{p*16384}", f"s{p}")
        e.ds(f"ds_read_b128 {vr(RB+8*p+4,4)}, v{AD+5} offset:{p*16384}", f"s{p}")
    for p in range(4):
        e.wds(f"s{p}")
        for k in range(8): e(f"v_add_f32 v{SUM+k}, v{SUM+k}, v{RB+8*p+k}")
    for k in range(4): e(f"v_cvt_pk_bf16_f32 v{XRES+k}, v{SUM+2*k}, v{SUM+1+2*k}")
    e.vm(f"buffer_store_dwordx4 {vr(XRES,4)}, v{VO}, s[{SRD_OUT}:{SRD_OUT+3}], 0 offen {os.environ.get('OUTF', '')}")

DOC = """;
;            one extra MFMA, 1/std folded into the GELU constants); h, q, k, v and the transposed down / output
;  tail    : o of the 16 heads, output projection, cross-wave reduction, residual, store
"""
def build():
    e = Em()
    kn = NAME + "_kernel"
    e.a.raw(f".globl {kn}\n.p2align 8\n.type {kn},@function")
    e.label(kn)
    prologue(e)
    gelu, h_off = phaseB(e)
    attn_setup(e, gelu, h_off)
    e(f"s_and_b32 s6, s{S_J}, 7\ns_cmp_eq_u32 s6, 7\ns_cbranch_scc1 C_noF")
    sn = e.snap(); ns = e.nst
    nq, fq = attn_loop(e, True)
    attn_finish(e, True)
    tail(e, nq, fq)
    nend = e.nst
    e("s_branch K_fin")
    e.label("C_noF")
    e.restore(sn); e.nst = ns
    attn_loop(e, False)
    attn_finish(e)
    o_flag(e)
    e(f"""s_cmp_eq_u32 s{S_RB}, 0
s_cbranch_scc0 C_noF_done
s_cmp_eq_u32 s{S_J}, 7
s_cbranch_scc0 C_noF_done
s_cmp_eq_u32 s{S_W}, 0
s_cbranch_scc0 C_noF_done""")
    for k in range(4):
        e(f"""v_lshrrev_b32 v{G}, 4, v0
v_and_b32 v{G+1}, 15, v0
v_lshlrev_b32 v{G}, 7, v{G}
v_lshl_add_u32 v{G}, v{G+1}, 2, v{G}
v_add_u32 v{G}, {F_H + 512*k}, v{G}""")
        e(f"buffer_load_dword v{G+1}, v{G}, {WS}, 0 offen {SC}"); e.mark[f"ep{k}"] = len(e.q['vm'])
        poll_check(e, G, G + 1, f"ep{k}")
    e(f"v_mov_b32 v{G}, {EPO}\nv_mov_b32 v{G+1}, s{S_NON}\ns_mov_b64 exec, 1\nbuffer_store_dword v{G+1}, v{G}, {WS}, 0 offen {SC}\ns_mov_b64 exec, -1")
    e.label("C_noF_done")
    while e.nst < nend and not STAMPS_OFF: e.stamp()
    e.label("K_fin")
    if os.environ.get("AMPAT"):
        e("""s_waitcnt vmcnt(0)
s_memrealtime s[92:93]
s_waitcnt lgkmcnt(0)
s_sub_u32 s7, s94, s96
s_mul_i32 s7, s7, 10
K_amp:
s_sleep 1
s_memrealtime s[98:99]
s_waitcnt lgkmcnt(0)
s_sub_u32 s6, s98, s92
s_cmp_lt_u32 s6, s7
s_cbranch_scc1 K_amp""")
    if 'stdiag' in X:
        e("""s_memtime s[92:93]
s_waitcnt lgkmcnt(0)
K_sd:
s_sleep 2
s_memtime s[90:91]
s_waitcnt lgkmcnt(0)
s_sub_u32 s6, s90, s92
s_cmp_lt_u32 s6, s94
s_cbranch_scc1 K_sd""")
    if 'fix' in X:
        e("""K_fx:
s_sleep 1
s_memrealtime s[98:99]
s_waitcnt lgkmcnt(0)
s_sub_u32 s6, s98, s96
s_cmp_lt_u32 s6, 10000
s_cbranch_scc1 K_fx""")
    if 'amp' in X:
        e("""s_waitcnt vmcnt(0)
s_memrealtime s[98:99]
s_waitcnt lgkmcnt(0)
s_sub_u32 s7, s98, s96
s_mul_i32 s7, s7, 10
K_fx:
s_sleep 1
s_memrealtime s[98:99]
s_waitcnt lgkmcnt(0)
s_sub_u32 s6, s98, s96
s_cmp_lt_u32 s6, s7
s_cbranch_scc1 K_fx""")
    if STAMPS:
        e.stamp()
        e.label("K_fin2")
        e("s_memrealtime s[98:99]\ns_waitcnt lgkmcnt(0) vmcnt(0)")
        e(f"""s_mov_b32 s40, s{P_WS}
s_mov_b32 s41, s{P_WS+1}
s_mov_b32 s42, 0x10000000
s_mov_b32 s43, 0x00020000
s_lshl_b32 s6, s2, 3
s_add_u32 s6, s6, s{S_W}
s_lshl_b32 s6, s6, 6
s_add_u32 s6, s6, {STAMP_WS}
v_mov_b32 v2, s96
v_mov_b32 v3, s98""")
        for k in range(10): e(f"v_mov_b32 v{4+k}, {'s%d' % (76+2*k) if k < e.nst else 0}")
        e("v_mov_b32 v1, 0\ns_mov_b64 exec, 1")
        for q in range(3): e(f"buffer_store_dwordx4 v[{2+4*q}:{5+4*q}], v1, s[40:43], s6 offen offset:{16*q}")
    e("s_endpgm")
    for fb, bk in FALLBACKS: fallback(e, fb, bk)
    e.label("K_end")
    e("s_endpgm")
    probs = check_hazards(e.a.lines, "k")
    hdr = open("cdna_kernels/" + NAME + ".s.ref").read().split("; Override launch")[0]
    out = hdr + f"; @launch grid=(256,1,1) block=(512,1,1) lds={LDS_BYTES}\n"
    out += DOC + '.amdgcn_target "amdgcn-amd-amdhsa--gfx950"\n.text\n' + e.a.text()
    out += f""".section .rodata,"a"
.p2align 6
.amdhsa_kernel {kn}
  .amdhsa_next_free_vgpr 256
  .amdhsa_next_free_sgpr 102
  .amdhsa_accum_offset 256
  .amdhsa_group_segment_fixed_size 0
  .amdhsa_kernarg_size 96
  .amdhsa_user_sgpr_count 2
  .amdhsa_user_sgpr_kernarg_segment_ptr 1
  .amdhsa_system_sgpr_workgroup_id_x 1
  .amdhsa_float_denorm_mode_32 3
.end_amdhsa_kernel
"""
    return out, probs

if __name__ == "__main__":
    out, probs = build()
    for p in probs: print("HAZARD", p, file=sys.stderr)
    open(sys.argv[1] if len(sys.argv) > 1 else "cdna_kernels/" + NAME + ".s", "w").write(out)
```

```python
import sys, os, math, struct
from asmlib import *
X = set(os.environ.get('XFLAGS', '').split(','))
def P(name, default): return int(os.environ.get(name, default))
NAME = "parallel_sum__grouped_kv_mqa__glu_gated_geglu__prompt"
def f2u(x): return struct.unpack("<I", struct.pack("<f", x))[0]

A2F = 0
W2T = 64 * 144 * 1024
QF  = W2T + 7 * 144 * 2048
KVF = QF + 64 * 16 * 2048
FLG = KVF + 64 * 4096
RKV = P("RKV", 16)
F_W  = FLG
F_H  = FLG + 2048
F_O  = FLG + 4096
EPO  = FLG + 6144
F_Q  = FLG + 4096
SPLITQ = P('SPLITQ', 0)
F_KV = FLG + 8192
F_O2 = F_KV + 256 * RKV
STAT = F_O2 + 32768
WS_END = STAT + 2048 * 8
OOB = 0x7ffffff0
P_X, P_WQ, P_WK, P_WV, P_WO, P_BX, P_WG, P_WU, P_WD, P_OUT, P_DBG, P_WS = 8, 10, 12, 14, 16, 18, 20, 22, 24, 26, 28, 30
SRD_X, SRD_WS, SRD_T, SRD_PC = 32, 36, 40, 44
SRD_OUT = SRD_T
S_W, S_RB, S_J = 3, 4, 5
(S_WB, S_MASK, S_XO, S_XO2, S_RT, S_CG, S_MUL, S_T0, S_T1, S_U, S_NON, S_LA, S_LB, S_TO, S_QU) = range(48, 63)
S_HI = 64
S_A, S_B, S_C, S_D, S_E, S_F = 66, 67, 68, 69, 70, 71
S_G, S_H2 = 72, 73
S_CNT = 74
WS = f"s[{SRD_WS}:{SRD_WS+3}]"
SC = "sc1"
STAMPS = bool(os.environ.get("STAMPS"))
STAMP_WS = 200 * 1024 * 1024
SPIN_MAX = 1 << 21
STAMPS_OFF = False

class Em:
    def __init__(s):
        s.a = Asm(); s.q = {'ds': [], 'vm': []}; s.done = {'ds': 0, 'vm': 0}; s.nst = 0; s.uid = 0; s.mark = {}
    def __call__(s, t): s.a(t)
    def label(s, l): s.a.label(l)
    def ds(s, ins, tag=None): s.a(ins); s.q['ds'].append(tag)
    def vm(s, ins, tag=None): s.a(ins); s.q['vm'].append(tag)
    def _n(s, k, tags, cap):
        idx = -1
        for t in tags:
            ii = [i for i, x in enumerate(s.q[k]) if x == t]
            if not ii and 'nodma' in X: continue
            assert ii, f"tag {t} never issued"
            idx = max(idx, ii[-1])
        if idx < s.done[k]: return None
        n = min(len(s.q[k]) - 1 - idx, cap)
        s.done[k] = len(s.q[k]) - n
        return n
    def wds(s, *tags):
        n = s._n('ds', tags, 15)
        if n is not None: s.a(f"s_waitcnt lgkmcnt({n})")
    def wvm(s, *tags):
        n = s._n('vm', tags, 63)
        if n is not None: s.a(f"s_waitcnt vmcnt({n})")
    def wboth(s, *tags):
        n = s._n('vm', tags, 63)
        s.a("s_waitcnt lgkmcnt(0)" if n is None else f"s_waitcnt vmcnt({n}) lgkmcnt(0)"); s.done['ds'] = len(s.q['ds'])
    def all_ds(s): s.a("s_waitcnt lgkmcnt(0)"); s.done['ds'] = len(s.q['ds'])
    def all_vm(s): s.a("s_waitcnt vmcnt(0)"); s.done['vm'] = len(s.q['vm'])
    def snap(s): return ({k: list(v) for k, v in s.q.items()}, dict(s.done))
    def restore(s, sn): s.q = {k: list(v) for k, v in sn[0].items()}; s.done = dict(sn[1])
    def stamp(s, name=None):
        if name is not None and name == os.environ.get("IDLEAT"): s.a("s_sleep 32")
        if name is not None and name == os.environ.get("AMPAT"):
            s.a("s_memrealtime s[94:95]"); s.all_ds()
        sel = os.environ.get("STSEL")
        if sel is not None and name is not None and name not in sel.split(","): return
        if sel is None and name is not None and name.startswith("x"): return
        if STAMPS and not STAMPS_OFF:
            assert s.nst < 10
            s.a(f"{'s_memrealtime' if os.environ.get('RT') else 's_memtime'} s[{76+2*s.nst}:{77+2*s.nst}]"); s.nst += 1
            s.all_ds()
    def newlabel(s, p): s.uid += 1; return f"{p}_{s.uid}"

def srd(e, d, p, nbytes):
    e(f"s_mov_b32 s{d}, s{p}\ns_mov_b32 s{d+1}, s{p+1}\ns_mov_b32 s{d+2}, {nbytes}\ns_mov_b32 s{d+3}, 0x00020000")
def mfma(d, A, B, C=None):
    return f"v_mfma_f32_32x32x16_bf16 {vr(d,16)}, {vr(A,4)}, {vr(B,4)}, {vr(d,16) if C is None else C}"
def mfma16(d, A, B, C=None):
    return f"v_mfma_f32_16x16x32_bf16 {vr(d,4)}, {vr(A,4)}, {vr(B,4)}, {vr(d,4) if C is None else C}"

class Side:
    def __init__(s, e): s.e = e; s.q = []
    def add(s, items):
        if isinstance(items, str):
            raw = [l.strip() for l in items.strip().split("\n") if l.strip()]
            items = []
            for l in raw:
                if l.startswith("s_cselect"): items[-1] += "\n" + l
                else: items.append(l)
        s.q += list(items)
    def emit(s, n):
        while n > 0 and s.q:
            it = s.q.pop(0)
            if callable(it): it()
            else: s.e(it)
            n -= 1
    def flush(s): s.emit(1 << 30)

def flag_store(e, addr_lines, nlanes, vt):
    l = e.newlabel("fl")
    e(f"s_cmp_eq_u32 s{S_W}, 0\ns_cbranch_scc0 {l}")
    e(addr_lines)
    e(f"v_mov_b32 v{vt+1}, s{S_NON}\ns_mov_b64 exec, {(1 << nlanes) - 1}\nbuffer_store_dword v{vt+1}, v{vt}, {WS}, 0 offen {SC}\ns_mov_b64 exec, -1")
    e.label(l)

def poll_issue(e, addr_lines, vaddr, vdat, tag):
    l = e.newlabel("pi")
    e(f"s_cmp_eq_u32 s{S_W}, 0\ns_cbranch_scc0 {l}")
    e(addr_lines)
    e(f"buffer_load_dword v{vdat}, v{vaddr}, {WS}, 0 offen {SC}")
    e.label(l)
    e.mark[tag] = len(e.q['vm'])

def poll_check(e, vaddr, vdat, tag, sleep=None):
    ok = e.newlabel("pok"); sp = e.newlabel("psp")
    e(f"s_cmp_eq_u32 s{S_W}, 0\ns_cbranch_scc0 {ok}")
    e(f"s_waitcnt vmcnt({min(63, len(e.q['vm']) - e.mark[tag])})")
    e(f"v_cmp_ne_u32 vcc, s{S_NON}, v{vdat}\ns_cbranch_vccz {ok}\ns_mov_b32 s{S_CNT}, {SPIN_MAX}")
    e.label(sp)
    e(f"""s_sleep {P('SLEEP', 4) if sleep is None else sleep}
buffer_load_dword v{vdat}, v{vaddr}, {WS}, 0 offen {SC}
s_sub_u32 s{S_CNT}, s{S_CNT}, 1
s_waitcnt vmcnt(0)
v_cmp_ne_u32 vcc, s{S_NON}, v{vdat}
s_cmp_eq_u32 s{S_CNT}, 0
s_cbranch_scc1 {ok}
s_cbranch_vccnz {sp}""")
    if 'spincnt' in X and tag in SPINIDX: e(f"s_sub_u32 s{78 + 2 * SPINIDX[tag]}, {SPIN_MAX + 1000}, s{S_CNT}")
    e.label(ok)
SPINIDX = {'kvp': 0, 'hp': 1, 'hb': 2, 'wo': 3, 'op': 4}

RING = 32768
L_W2T = 131072
L_CSA = L_W2T + 8192
L_CSB = L_CSA + 2048
L_ST  = L_CSB + 2048
L_KVB = L_ST + 4096
L_FLG = L_KVB + 4096
LDS_BYTES = L_FLG + 256

VL16, VT, VX, GA, GS = 1, 2, 3, 4, 6
XA, WA = 8, 12
ST, SEL, CSA, WF, TM = 20, 24, 28, 36, 60
ACCA, ACCB, XR, G = 64, 96, 128, 240
SQA, SQB, TP = 60, 240, 248
WB, GB, PL = 250, 102, 252
R_, S_, AC, BC, I2 = 8, 9, 10, 11, 3
BEXT = 60


TA, TS, TX, TD = 96, 98, 99, 100
S_ISQ, S_SH = 63, 75
RW = 104
def w_source(row, c, dst, gs, t0):
    return f"""v_cmp_le_u32 vcc, s{S_A}, v{c}
v_mul_lo_u32 v{dst}, v{row}, s{S_B}
v_lshl_add_u32 v{dst}, v{c}, 4, v{dst}
v_add_u32 v{dst}, s{S_C}, v{dst}
v_subrev_u32 v{c}, s{S_A}, v{c}
v_lshlrev_b32 v{c}, s{S_G}, v{c}
v_mul_lo_u32 v{t0}, v{row}, s{S_D}
v_add3_u32 v{t0}, v{t0}, v{c}, s{S_H2}
v_cndmask_b32 v{dst}, v{dst}, v{t0}, vcc
v_mov_b32 v{gs}, s{S_B}
v_mov_b32 v{t0}, s{S_D}
v_cndmask_b32 v{gs}, v{gs}, v{t0}, vcc
v_lshlrev_b32 v{gs}, 5, v{gs}"""

ROTS = {0: [0]*8, 1: [0, 3, 2, 5, 4, 0, 6, 2], 2: [0, 3, 3, 0, 0, 3, 3, 0], 3: [0, 1, 2, 3, 4, 5, 6, 0], 4: [0, 4, 1, 5, 2, 6, 3, 0]}
ROTTAB = sum(v << (4 * i) for i, v in enumerate(ROTS[P("ROT", 0)]))
S_ROT = 47
S_WF = 46
RPAR, RBIT = P("RPAR", 0), P("RBIT", 0)
RPARCODE = "" if not RPAR else f"""
s_lshr_b32 s{S_F}, s2, 3
s_lshr_b32 s{S_T0}, s2, 6
s_xor_b32 s{S_F}, s{S_F}, s{S_T0}
s_and_b32 s{S_F}, s{S_F}, {RBIT or 1}
s_mul_i32 s{S_F}, s{S_F}, {RPAR}
s_add_u32 s{S_XO}, s{S_XO}, s{S_F}
s_cmp_ge_u32 s{S_XO}, 7
s_cselect_b32 s{S_F}, 7, 0
s_sub_u32 s{S_XO}, s{S_XO}, s{S_F}"""
def prologue(e):
    T = TM
    ROTCODE = f"""s_and_b32 s{S_XO}, s2, 7
s_lshl_b32 s{S_XO}, s{S_XO}, 2
s_lshr_b32 s{S_XO}, {ROTTAB:#x}, s{S_XO}
s_and_b32 s{S_XO}, s{S_XO}, 7{RPARCODE}
s_mov_b32 s{S_ROT}, s{S_XO}
s_lshl_b32 s{S_F}, s{S_XO}, 6
s_lshl_b32 s{S_XO}, s{S_XO}, 7
v_add_u32 v{T+2}, s{S_F}, v{T+2}
""" if any(ROTS[P('ROT', 0)]) or RPAR else f"s_mov_b32 s{S_ROT}, 0\n"
    e(f"s_cmp_ge_u32 s2, 256\ns_cbranch_scc1 K_end")
    if STAMPS or 'fix' in X or 'amp' in X or os.environ.get("AMPAT"): e("s_memrealtime s[96:97]")
    e.stamp()
    if 'spincnt' in X:
        for k in range(6): e(f"s_movk_i32 s{78 + 2*k}, 1000")
        e.nst = 7
    e("s_load_dwordx16 s[8:23], s[0:1], 0\ns_load_dwordx8 s[24:31], s[0:1], 64")
    e(f"s_getpc_b64 s[{SRD_PC}:{SRD_PC+1}]")
    e.label("K_pc")
    e(f"""s_mov_b32 s{SRD_PC+2}, K_end-K_pc
s_mov_b32 s{SRD_PC+3}, 0x00020000""")
    if P("CPF", 1):
        e(f"s_lshr_b32 s6, s2, 3\ns_lshl_b32 s6, s6, 11\nv_lshrrev_b32 v1, 5, v0\nv_lshl_add_u32 v1, v1, 7, s6")
    else: e("v_lshlrev_b32 v1, 7, v0")
    e.vm(f"buffer_load_dword v{TD}, v1, s[{SRD_PC}:{SRD_PC+3}], 0 offen")
    T = TM
    e(f"""v_lshrrev_b32 v1, 6, v0
v_and_b32 v0, 63, v0
v_readfirstlane_b32 s{S_W}, v1
s_nop 1""")
    e(f"""s_lshl_b32 s{S_TG}, s2, 3
s_add_u32 s{S_TG}, s{S_TG}, s{S_W}
s_mul_i32 s6, s{S_TG}, 896
v_lshl_add_u32 v{TX}, v0, 4, s6
v_cmp_lt_u32 vcc, 55, v0
v_mov_b32 v{TX+2}, {OOB}
s_nop 0
v_cndmask_b32 v{TX}, v{TX}, v{TX+2}, vcc""")
    WT = f"""s_min_u32 s6, s{S_TG}, 1393
s_cmp_ge_u32 s6, 448
s_cselect_b32 s{SRD_T}, s{P_WU}, s{P_WG}
s_cselect_b32 s{SRD_T+1}, s{P_WU+1}, s{P_WG+1}
s_cselect_b32 s{S_A}, 448, 0
s_mov_b32 s{S_D}, {448*3584}
s_cmp_ge_u32 s6, 896
s_cselect_b32 s{SRD_T}, s{P_WQ}, s{SRD_T}
s_cselect_b32 s{SRD_T+1}, s{P_WQ+1}, s{SRD_T+1}
s_cselect_b32 s{S_A}, 896, s{S_A}
s_cselect_b32 s{S_B}, 6, 11
s_cselect_b32 s{S_C}, 7, 28
s_cselect_b32 s{S_D}, {448*896}, s{S_D}
s_cmp_ge_u32 s6, 1344
s_cselect_b32 s{SRD_T}, s{P_WK}, s{SRD_T}
s_cselect_b32 s{SRD_T+1}, s{P_WK+1}, s{SRD_T+1}
s_cselect_b32 s{S_A}, 1344, s{S_A}
s_cselect_b32 s{S_B}, 7, s{S_B}
s_cselect_b32 s{S_C}, 8, s{S_C}
s_cselect_b32 s{SRD_T+2}, {448*56}, s{S_D}
s_cmp_ge_u32 s6, 1369
s_cselect_b32 s{SRD_T}, s{P_WV}, s{SRD_T}
s_cselect_b32 s{SRD_T+1}, s{P_WV+1}, s{SRD_T+1}
s_cselect_b32 s{S_A}, 1369, s{S_A}
s_mov_b32 s{SRD_T+3}, 0x00020000
s_sub_u32 s6, s6, s{S_A}
s_mul_i32 s6, s6, s{S_C}
v_min_u32 v{TA}, s{S_B}, v0
v_add_u32 v{TA}, s6, v{TA}
v_lshlrev_b32 v{TA}, 7, v{TA}"""
    e(f"""
s_bfe_u32 s{S_RB}, s2, 0x20001
s_lshl_b32 s{S_RB}, s{S_RB}, 2
s_lshr_b32 s6, s2, 6
s_add_u32 s{S_RB}, s{S_RB}, s6
s_and_b32 s{S_J}, s2, 1
s_lshl_b32 s{S_J}, s{S_J}, 3
s_bfe_u32 s7, s2, 0x30003
s_add_u32 s{S_J}, s{S_J}, s7
s_lshr_b32 s{S_QU}, s{S_J}, 2
s_sub_u32 s{S_LA}, s{S_J}, s{S_QU}
s_lshl_b32 s{S_WB}, s{S_W}, 10
s_lshl_b32 s{S_C}, s{S_LA}, 7
s_mul_i32 s{S_E}, s{S_QU}, 224
s_and_b32 s{S_F}, s{S_QU}, 1
s_sub_u32 s{S_G}, 4, s{S_F}
s_lshl_b32 s{S_F}, s{S_F}, 5
s_movk_i32 s{S_D}, 3584
s_and_b32 s{S_ISQ}, s{S_J}, 3
s_cmp_eq_u32 s{S_ISQ}, 3
s_cselect_b32 s{S_ISQ}, 1, 0
s_cselect_b32 s{S_A}, 14, 8
s_cselect_b32 s{S_B}, 896, s{S_D}
s_cselect_b32 s{S_D}, 56, s{S_D}
s_cselect_b32 s{S_H2}, s{S_F}, s{S_C}
s_cselect_b32 s{S_C}, s{S_E}, s{S_C}
s_cselect_b32 s{S_G}, s{S_G}, 4
s_add_u32 s{S_SH}, s{S_ISQ}, 1
s_lshl_b32 s{S_E}, s{S_RB}, 7
s_lshl_b32 s{S_F}, s{S_W}, 3
s_add_u32 s{S_F}, s{S_F}, s{S_E}
v_lshrrev_b32 v{T}, 3, v0
v_add_u32 v{T}, s{S_F}, v{T}
v_mul_u32_u24 v{T}, 896, v{T}
s_lshl_b32 s{S_F}, s{S_W}, 2
v_lshrrev_b32 v{T+1}, 4, v0
v_add_u32 v{T+2}, s{S_F}, v{T+1}
v_xor_b32 v{T+3}, v{T+2}, v0
v_and_b32 v{T+3}, 7, v{T+3}
v_lshl_add_u32 v{VX}, v{T+3}, 4, v{T}
{ROTCODE}v_lshlrev_b32 v{T+1}, s{S_SH}, v{T+1}
v_xor_b32 v{T+1}, v{T+1}, v0
v_and_b32 v{T+1}, 15, v{T+1}""")
    e(w_source(T + 2, T + 1, G, GS, T))
    e(f"s_mov_b64 s[{S_HI}:{S_HI+1}], vcc")
    if TOUCH:
        e(f"""s_and_b32 s6, s6, 3
s_lshl_b32 s6, s6, 3
s_add_u32 s6, s6, s{S_W}
s_lshl_b32 s6, s6, 1
s_lshl_b32 s7, s7, 3
s_add_u32 s7, s7, s{S_W}
s_lshl_b32 s7, s7, 1
s_add_u32 s7, s7, s{S_E}
v_bfe_u32 v{T+2}, v0, 3, 1
v_bfe_u32 v{T+1}, v0, 2, 1
v_lshl_add_u32 v{T+2}, v{T+2}, 6, v{T+1}
v_add_u32 v{T+2}, s6, v{T+2}
v_and_b32 v{T+1}, 3, v0
v_lshlrev_b32 v{T+1}, 2, v{T+1}
v_lshrrev_b32 v{T+1}, v{T+1}, s{S_MASK}
v_and_b32 v{T+1}, 15, v{T+1}
v_and_b32 v{T}, 1, v0
v_add_u32 v{T}, s7, v{T}
v_mul_u32_u24 v{TX}, 896, v{T}
v_bfe_u32 v{T}, v0, 1, 1
v_lshl_add_u32 v{TX}, v{T}, 7, v{TX}""".replace(f"v_lshrrev_b32 v{T+1}, v{T+1}, s{S_MASK}", f"s_movk_i32 s6, 0xed80\nv_lshrrev_b32 v{T+1}, v{T+1}, s6"))
        e(w_source(T + 2, T + 1, G + 1, TS, T))
    e("s_waitcnt lgkmcnt(0)")
    e.stamp("xs0")
    if 'stdiag' in X:
        e(f"""s_mov_b32 s40, s{P_WS}
s_mov_b32 s41, s{P_WS+1}
s_mov_b32 s42, 0x10000000
s_mov_b32 s43, 0x00020000
s_lshl_b32 s90, s2, 3
s_add_u32 s90, s90, s{S_W}
s_lshl_b32 s90, s90, 10
s_add_u32 s90, s90, {P('DOFF', 100) * 1024 * 1024}
v_lshlrev_b32 v110, 4, v0
buffer_store_dwordx4 v[112:115], v110, s[40:43], s90 offen sc1
s_waitcnt vmcnt(0)
s_add_u32 s90, s90, 0x200000
s_barrier
s_memtime s[92:93]
s_waitcnt lgkmcnt(0)
buffer_store_dwordx4 v[112:115], v110, s[40:43], s90 offen sc1
s_waitcnt vmcnt(0)
s_barrier
s_memtime s[94:95]
s_waitcnt lgkmcnt(0)
s_sub_u32 s94, s94, s92
s_mul_i32 s94, s94, 100""")
    srd(e, SRD_X, P_X, 2048 * 896)
    if GT:
        if not P("ROWL", 0): e.vm(f"buffer_load_dwordx4 {vr(RW,4)}, v{TX}, s[{SRD_X}:{SRD_X+3}], 0 offen", "row")
        if GT & 2 and not P("PRO", 2): e.vm(f"buffer_load_dword v{TD}, v{TA}, s[{SRD_T}:{SRD_T+3}], {'s%d' % S_TS if P('GTS', 0) else 0} offen", "t")
        if P("GTW", 0): e.wvm("row")
    if P("XE", 1): dma_x(e, 0, 0)(); dma_x(e, 0, 1)()
    if P("PRO", 2) == 2:
        e(WT); e.vm(f"buffer_load_dword v{TD}, v{TA}, s[{SRD_T}:{SRD_T+3}], 0 offen", "t")
    e(f"""s_cmp_lt_u32 s{S_QU}, 2
s_cselect_b32 s{S_C}, s{P_WK}, s{P_WV}
s_cselect_b32 s{S_D}, s{P_WK+1}, s{P_WV+1}
s_cmp_eq_u32 s{S_ISQ}, 1
s_cselect_b32 s{S_A}, s{P_WQ}, s{P_WG}
s_cselect_b32 s{S_B}, s{P_WQ+1}, s{P_WG+1}
s_cselect_b32 s{S_C}, s{S_C}, s{P_WU}
s_cselect_b32 s{S_D}, s{S_D}, s{P_WU+1}
v_mov_b32 v{T}, s{S_A}
v_mov_b32 v{T+1}, s{S_B}
v_mov_b32 v{T+2}, s{S_C}
v_mov_b32 v{T+3}, s{S_D}""")
    if TOUCH:
        e(f"""v_cndmask_b32 v{TA}, v{T}, v{T+2}, vcc
v_cndmask_b32 v{TA+1}, v{T+1}, v{T+3}, vcc
v_add_co_u32 v{TA}, vcc, v{TA}, v{G+1}
v_cndmask_b32 v{GA}, v{T}, v{T+2}, s[{S_HI}:{S_HI+1}]
v_cndmask_b32 v{GA+1}, v{T+1}, v{T+3}, s[{S_HI}:{S_HI+1}]
v_addc_co_u32 v{TA+1}, vcc, 0, v{TA+1}, vcc""")
        touch(e, 0)()
    else:
        e(f"""v_cndmask_b32 v{GA}, v{T}, v{T+2}, s[{S_HI}:{S_HI+1}]
v_cndmask_b32 v{GA+1}, v{T+1}, v{T+3}, s[{S_HI}:{S_HI+1}]""")
    e(f"v_add_co_u32 v{GA}, vcc, v{GA}, v{G}\nv_mov_b32 v{GS+1}, 0")
    if 'gonly' in X: e.all_vm(); e.stamp()
    if not P("XE", 1): dma_x(e, 0, 0)()
    else: e("s_nop 0")
    e(f"v_addc_co_u32 v{GA+1}, vcc, 0, v{GA+1}, vcc")
    e.WT = WT

TOUCH = P("TOUCH", 0)
GT = P("GT", 3)
ROT = P("ROT", 0)
LDX = os.environ.get("LDX", ""); LDW = os.environ.get("LDW", ""); LDT = os.environ.get("LDT", "")
def touch(e, k):
    def f():
        st = (0, 2, 4, 5)[k]
        e.vm(f"global_load_dword v{TD}, {vr(TA,2)}, off", f"t{k}")
        e(f"s_movk_i32 s{S_XO2}, {st * 128}")
        e.vm(f"buffer_load_dword v{TD}, v{TX}, s[{SRD_X}:{SRD_X+3}], s{S_XO2} offen", f"t{k}")
        if k < 3: e(f"v_mad_u64_u32 {vr(TA,2)}, s[{S_E}:{S_E+1}], v{TS}, {4 if k < 2 else 2}, {vr(TA,2)}")
    return f
S_TG, S_TS = 61, 57
def gtouch(e, st):
    def f():
        e(f"s_mul_i32 s{S_XO2}, s{S_TS}, {st}")
        e.vm(f"buffer_load_dword v{TD}, v{TA}, s[{SRD_PC}:{SRD_PC+3}], s{S_XO2} offen {LDT}", "t")
        e(f"s_movk_i32 s{S_XO2}, {st * 128}")
        e.vm(f"buffer_load_dword v{TD}, v{TX}, s[{SRD_X}:{SRD_X+3}], s{S_XO2} offen {LDT}", "t")
    return f
def dma_x(e, sig, i):
    def f():
        e(f"s_add_u32 m0, s{S_WB}, {(sig % 4) * RING + i * 8192}")
        if i == 0: e("s_nop 0"); so = S_XO
        else: e(f"s_add_u32 s{S_XO2}, s{S_XO}, {64*896}"); so = S_XO2
        e.vm(f"buffer_load_dwordx4 v{VX}, s[{SRD_X}:{SRD_X+3}], s{so} offen {LDX} lds", f"d{sig}")
    return f
def dma_w(e, sig, off, i, first=False):
    def f():
        if i == 0 and not first:
            e(f"s_add_u32 s{S_XO}, s{S_XO}, 128\ns_cmp_eq_u32 s{S_XO}, 896\ns_cselect_b32 s{S_XO}, 0, s{S_XO}\ns_cselect_b32 s{S_MUL}, -13, 1")
        e(f"s_add_u32 m0, s{S_WB}, {(sig % 4) * RING + off + i * 8192}")
        if first == 2: e(f"s_add_u32 s{S_XO}, s{S_XO}, 128\ns_cmp_eq_u32 s{S_XO}, 896\ns_cselect_b32 s{S_XO}, 0, s{S_XO}")
        elif first: e("s_nop 0")
        elif i == 0: e(f"v_mad_i64_i32 {vr(GA,2)}, s[{S_E}:{S_E+1}], v{GS}, s{S_MUL}, {vr(GA,2)}")
        else: e(f"v_lshl_add_u64 {vr(GA,2)}, {vr(GS,2)}, 0, {vr(GA,2)}")
        e.vm(f"global_load_lds_dwordx4 {vr(GA,2)}, off {LDW}", f"d{sig}")
    return f
if not any(ROTS[P("ROT", 0)]) and not RPAR:
    def dma_x(e, sig, i):
        def f():
            e(f"s_add_u32 m0, s{S_WB}, {(sig % 4) * RING + i * 8192}\ns_mov_b32 s{S_XO}, {sig * 128 + i * 64 * 896}")
            e.vm(f"buffer_load_dwordx4 v{VX}, s[{SRD_X}:{SRD_X+3}], s{S_XO} offen {LDX} lds", f"d{sig}")
        return f
    def dma_w(e, sig, off, i, first=False):
        def f():
            e(f"s_add_u32 m0, s{S_WB}, {(sig % 4) * RING + off + i * 8192}")
            e("s_nop 0" if first else f"v_lshl_add_u64 {vr(GA,2)}, {vr(GS,2)}, 0, {vr(GA,2)}")
            e.vm(f"global_load_lds_dwordx4 {vr(GA,2)}, off {LDW}", f"d{sig}")
        return f
def stage_dmas(e, sig):
    if 'nodma' in X and 2 <= sig: return [(lambda: e.q['vm'].append(f'd{sig}') or e.q['vm'].pop() if False else None)] if False else [lambda: None]
    if sig == 0: return [dma_x(e, sig, 0), dma_w(e, sig, 16384, 0, True), dma_x(e, sig, 1), dma_w(e, sig, 16384, 1)]
    if sig < 7: return [dma_w(e, sig, 16384, 0), dma_x(e, sig, 0), dma_w(e, sig, 16384, 1), dma_x(e, sig, 1)]
    l = []
    if sig == 7: l.append(lambda: e(f"v_mov_b32 v{GA}, v{GB}\nv_mov_b32 v{GA+1}, v{GB+1}\nv_mov_b32 v{GS}, {32*3584}"))
    l += [dma_w(e, sig, 0, 0, 2 if sig == 7 else False), dma_w(e, sig, 0, 1)]
    if sig < 10: l += [dma_w(e, sig, 16384, 0), dma_w(e, sig, 16384, 1)]
    return l

def late_touch(e):
    if P('GTS', 0):
        e(f"s_xor_b32 s{S_TS}, s{S_TS}, {OOB}")
        e.vm(f"buffer_load_dword v{TD}, v{TA}, s[{SRD_T}:{SRD_T+3}], s{S_TS} offen", "t")

def phaseB(e):
    T = TM
    for f in (stage_dmas(e, 0)[1:] if not P('XE', 1) else stage_dmas(e, 0)[1::2]): f()
    if 'arr' in X:
        order = os.environ.get("ARR", "D1 D2 W0 D3 W1 D4 W2 D5 W3 D6 W4 W5 W6").split()
        for it in order:
            k = int(it[1:])
            if it[0] == 'D':
                for f in stage_dmas(e, k): f()
            elif it[0] == 'T': touch(e, k)()
            elif it[0] == 'G': gtouch(e, k)()
            elif it[0] == 'L': late_touch(e)
            elif it[0] == 'A': e.all_vm(); e.stamp()
            else: e.wvm(f"d{k}"); e("s_barrier"); e.stamp()
        srd(e, SRD_WS, P_WS, WS_END)
        e.stamp()
        e("s_branch K_fin2")
        global STAMPS_OFF; STAMPS_OFF = True
    if P("ROWL", 0): e.vm(f"buffer_load_dwordx4 {vr(RW,4)}, v{TX}, s[{SRD_X}:{SRD_X+3}], 0 offen", "row")
    e.stamp("xs2")
    if P("PRO", 2) == 1 and GT & 2:
        e(e.WT)
        e.vm(f"buffer_load_dword v{TD}, v{TA}, s[{SRD_T}:{SRD_T+3}], 0 offen", "t")
    e(f"s_mov_b32 s6, {EPO}\ns_load_dword s{S_NON}, s[{P_WS}:{P_WS+1}], s6")
    if TOUCH == 2: touch(e, 1)()
    PD1 = P("PD1", 1)
    if PD1 == 0:
        for f in stage_dmas(e, 1): f()
    if TOUCH == 1: touch(e, 1)()
    late_touch(e)
    e.stamp("xs3")
    e(f"""s_and_b32 s{S_RT}, s{S_W}, 3
s_lshr_b32 s{S_CG}, s{S_W}, 2
s_lshl_b32 s{S_T0}, s{S_CG}, 1
s_add_u32 s{S_T1}, s{S_T0}, 1
s_xor_b32 s{S_A}, s{S_RT}, s{S_CG}
s_mov_b32 s{S_MASK}, 0xffff0000
s_mov_b32 s{S_HI}, 0
s_mov_b32 s{S_HI+1}, -1
v_lshlrev_b32 v{VL16}, 4, v0
v_and_b32 v{T}, 31, v0
v_lshrrev_b32 v{T+1}, 5, v0
v_bfe_u32 v{T+2}, v0, 1, 3
v_xor_b32 v{T+2}, v{T+2}, v{T+1}
v_lshlrev_b32 v{T+2}, 4, v{T+2}
v_lshl_add_u32 v{T+2}, v{T}, 7, v{T+2}
s_lshl_b32 s6, s{S_RT}, 12
s_lshl_b32 s{S_B}, s{S_A}, 5
s_or_b32 s6, s6, s{S_B}
v_xor_b32 v{XA}, s6, v{T+2}""")
    for pos in range(1, 4): e(f"v_xor_b32 v{XA+pos}, {pos<<5}, v{XA}")
    e(f"""v_bfe_u32 v{G+1}, v0, 2, 2
v_lshl_add_u32 v{WB}, v{T+1}, 3, v{G+1}
v_lshlrev_b32 v{WB}, 8, v{WB}
s_lshl_b32 s{S_A}, s{S_A}, 12
v_add_u32 v{WB}, s{S_A}, v{WB}
s_cmp_eq_u32 s{S_ISQ}, 1
s_cselect_b32 s{S_A}, 56, 32
s_cselect_b32 s{S_B}, 5, 7
s_cselect_b32 s{S_C}, 0x88880000, 0
s_mov_b32 s{S_D}, s{S_C}
s_add_u32 s6, s{S_SH}, 4
v_bfe_u32 v{T}, v0, 4, 1
v_and_b32 v{T+1}, 3, v0
v_lshlrev_b32 v{T}, s{S_B}, v{T}
v_lshl_add_u32 v{T}, v{T+1}, 3, v{T}
v_lshlrev_b32 v{T+1}, s6, v{G+1}""")
    for i, st_ in ((0, S_T0), (1, S_T1)):
        e(f"""s_mul_i32 s6, s{st_}, s{S_A}
s_lshl_b32 s7, s{st_}, 3
s_sub_u32 s7, 248, s7
v_add_u32 v{T+2}, s6, v{T}
v_mov_b32 v{T+3}, s7
v_cndmask_b32 v{T+2}, v{T+2}, v{T+3}, s[{S_C}:{S_D}]
v_xor_b32 v{T+2}, v{T+2}, v{T+1}
v_add_u32 v{WA+4*i}, v{T+2}, v{WB}""")
    for i in range(2):
        for pos in range(1, 4): e(f"v_xor_b32 v{WA+4*i+pos}, {pos<<12}, v{WA+4*i}")
    e(f"""v_bfe_u32 v{T}, v0, 4, 1
v_and_b32 v{T+1}, 15, v0
v_cmp_eq_u32 vcc, v{T}, v{T+1}
v_mov_b32 v{T}, 0x3f803f80
s_nop 0
v_cndmask_b32 v{SEL}, 0, v{T}, vcc
v_mov_b32 v{SEL+1}, v{SEL}
v_mov_b32 v{SEL+2}, v{SEL}
v_mov_b32 v{SEL+3}, v{SEL}""")
    w2t_addr = f"""s_mul_i32 s6, s{S_RB}, 12
s_add_u32 s6, s6, s{S_LA}
s_lshl_b32 s7, s{S_RB}, 2
s_add_u32 s7, s7, s{S_QU}
s_min_u32 s7, s7, 59
s_add_u32 s{S_A}, s7, 136
s_cmp_eq_u32 s{S_ISQ}, 1
s_cselect_b32 s6, s{S_A}, s6
s_cselect_b32 s7, s7, 63
s_mul_hi_u32 s{S_A}, s6, {(2**32 + 27)//28}
s_mul_i32 s{S_B}, s{S_A}, 28
s_sub_u32 s{S_B}, s6, s{S_B}
s_lshr_b32 s{S_C}, s7, 3
s_and_b32 s{S_D}, s7, 7
s_add_u32 s{S_D}, s{S_D}, 28
s_cmp_lt_u32 s7, 56
s_cselect_b32 s6, s{S_C}, s{S_A}
s_cselect_b32 s{S_B}, s{S_D}, s{S_B}
s_lshl_b32 s{S_WF}, s6, 6
s_add_u32 s{S_WF}, s{S_WF}, s{S_B}
s_lshl_b32 s{S_A}, s{S_B}, 2
s_lshr_b32 s{S_B}, s{S_W}, 1
s_add_u32 s{S_A}, s{S_A}, s{S_B}
s_mul_i32 s{S_U}, s6, 144
s_add_u32 s{S_U}, s{S_U}, s{S_A}
s_lshl_b32 s{S_B}, s{S_A}, 4
s_sub_u32 s{S_C}, s{S_A}, 112
s_lshr_b32 s{S_D}, s{S_C}, 1
s_mul_i32 s{S_D}, s{S_D}, 28
s_and_b32 s{S_C}, s{S_C}, 1
s_lshl_b32 s{S_C}, s{S_C}, 4
s_add_u32 s{S_C}, s{S_C}, s{S_D}
s_mov_b32 s{S_D}, {448*896}
s_cmp_lt_u32 s{S_A}, 112
s_cselect_b32 s{S_B}, s{S_B}, s{S_C}
s_cselect_b32 s{SRD_T}, s{P_WD}, s{P_WO}
s_cselect_b32 s{SRD_T+1}, s{P_WD+1}, s{P_WO+1}
s_cselect_b32 s{SRD_T+2}, {1792*896}, s{S_D}
s_mov_b32 s{SRD_T+3}, 0x00020000
s_and_b32 s{S_C}, s{S_W}, 1
s_lshl_b32 s{S_C}, s{S_C}, 3
s_add_u32 s{S_B}, s{S_B}, s{S_C}
s_mul_i32 s{S_B}, s{S_B}, 896
s_lshl_b32 s6, s6, 7
s_add_u32 s{S_TO}, s{S_B}, s6
v_lshrrev_b32 v{TP}, 3, v0
v_mul_u32_u24 v{TP}, 896, v{TP}
v_and_b32 v{TP+1}, 7, v0
v_lshl_add_u32 v{VT}, v{TP+1}, 4, v{TP}"""
    late = (f"""s_add_u32 s{S_LB}, s{S_LA}, 12
s_add_u32 s6, s{S_QU}, 24
s_cmp_eq_u32 s{S_ISQ}, 1
s_cselect_b32 s{S_LB}, s6, s{S_LB}
""" if P("LBOLD", 1) else f"s_add_u32 s{S_LB}, s{S_J}, 12\n") + f"""v_lshrrev_b32 v{TP}, 4, v0
s_lshl_b32 s6, s{S_ROT}, 4
s_add_u32 s6, s6, s{S_W}
s_lshl_b32 s6, s6, 2
v_add_u32 v{TP+1}, s6, v{TP}
v_mul_u32_u24 v{TP+1}, 3584, v{TP+1}
v_lshlrev_b32 v{TP}, 1, v{TP}
v_xor_b32 v{TP}, v{TP}, v0
v_and_b32 v{GB}, 7, v{TP}
v_lshl_add_u32 v{TP+1}, v{GB}, 4, v{TP+1}
s_lshl_b32 s6, s{S_LB}, 7
v_add_u32 v{TP+1}, s6, v{TP+1}
v_and_b32 v{TP}, 8, v{TP}
v_cmp_eq_u32 vcc, 8, v{TP}
v_mov_b32 v{GB}, s{P_WG}
v_mov_b32 v{TP}, s{P_WU}
v_cndmask_b32 v{GB}, v{GB}, v{TP}, vcc
v_mov_b32 v{GB+1}, s{P_WG+1}
v_mov_b32 v{TP}, s{P_WU+1}
v_cndmask_b32 v{GB+1}, v{GB+1}, v{TP}, vcc
v_add_co_u32 v{GB}, vcc, v{GB}, v{TP+1}
v_bfe_u32 v{TP}, v0, 4, 1
v_and_b32 v{TP+1}, 3, v0
v_addc_co_u32 v{GB+1}, vcc, 0, v{GB+1}, vcc
v_lshlrev_b32 v{TP+1}, 3, v{TP+1}
v_lshl_add_u32 v{TP}, v{TP}, 7, v{TP+1}
v_bfe_u32 v{TP+1}, v0, 2, 2
v_lshlrev_b32 v{TP+1}, 5, v{TP+1}
v_xor_b32 v{TP}, v{TP}, v{TP+1}
s_lshl_b32 s6, s{S_T0}, 5
v_xor_b32 v{TP}, s6, v{TP}
v_add_u32 v{WB}, v{TP}, v{WB}
v_xor_b32 v{WB+1}, 32, v{WB}"""
    if PD1 == 1:
        for f in stage_dmas(e, 1): f()
    e.stamp("xs4")
    srd(e, SRD_WS, P_WS, WS_END)
    e("s_waitcnt lgkmcnt(0)")
    e(f"s_add_u32 s{S_NON}, s{S_NON}, 1")
    U = RW + 4; A_, B_ = RW, RW + 1
    e.wvm("row")
    for k in range(4): e(f"v_lshlrev_b32 v{U+2*k}, 16, v{RW+k}\nv_and_b32 v{U+2*k+1}, s{S_MASK}, v{RW+k}")
    e(f"v_add_f32 v{A_}, v{U}, v{U+1}\nv_mul_f32 v{B_}, v{U}, v{U}\nv_add_f32 v{A_+2}, v{U+2}, v{U+3}\nv_mul_f32 v{B_+2}, v{U+1}, v{U+1}")
    for k in (2, 4, 6): e(f"v_fmac_f32 v{B_}, v{U+k}, v{U+k}\nv_fmac_f32 v{B_+2}, v{U+k+1}, v{U+k+1}")
    e(f"""v_add_f32 v{U}, v{U+4}, v{U+5}
v_add_f32 v{U+1}, v{U+6}, v{U+7}
v_add_f32 v{A_}, v{A_}, v{A_+2}
v_add_f32 v{U}, v{U}, v{U+1}
v_add_f32 v{B_}, v{B_}, v{B_+2}
v_add_f32 v{A_}, v{A_}, v{U}
s_lshl_b32 s6, s{S_TG}, 3""")
    for d in ("row_shr:1 row_mask:0xf bank_mask:0xf bound_ctrl:0", "row_shr:2 row_mask:0xf bank_mask:0xf bound_ctrl:0",
              "row_shr:4 row_mask:0xf bank_mask:0xf bound_ctrl:0", "row_shr:8 row_mask:0xf bank_mask:0xf bound_ctrl:0",
              "row_bcast:15 row_mask:0xa bank_mask:0xf", "row_bcast:31 row_mask:0xc bank_mask:0xf"):
        e(f"v_add_f32_dpp v{B_}, v{B_}, v{B_} {d}\nv_add_f32_dpp v{A_}, v{A_}, v{A_} {d}\ns_nop 0")
    e(f"""s_add_u32 s6, s6, {STAT}
v_mul_f32 v{A_}, {f2u(1.0/448)}, v{A_}
v_mul_f32 v{B_}, {f2u(1.0/448)}, v{B_}
v_fma_f32 v{B_}, -v{A_}, v{A_}, v{B_}
v_max_f32 v{B_}, 0, v{B_}
v_cvt_pk_bf16_f32 v{B_}, v{B_}, v{B_}
v_and_b32 v{B_}, s{S_MASK}, v{B_}
v_add_f32 v{B_}, {f2u(1e-5)}, v{B_}
v_cvt_pk_bf16_f32 v{B_}, v{B_}, v{B_}
v_and_b32 v{B_}, s{S_MASK}, v{B_}
v_sqrt_f32 v{B_}, v{B_}
v_mov_b32 v{U}, s6
v_cvt_pk_bf16_f32 v{A_}, -v{A_}, v{B_}
v_mov_b32 v{B_}, s{S_NON}
s_mov_b32 exec_lo, 0
s_mov_b32 exec_hi, 0x80000000""")
    if PD1 == 2:
        e("s_mov_b64 exec, -1")
        for f in stage_dmas(e, 1): f()
        e("s_mov_b32 exec_lo, 0\ns_mov_b32 exec_hi, 0x80000000")
    e.vm(f"buffer_store_dwordx2 {vr(A_,2)}, v{U}, {WS}, 0 offen {SC}", "sts")
    e("s_mov_b64 exec, -1")
    e.stamp("xs5")
    if P("PRIO", 2) & 1: e(f"s_cmp_ge_u32 s{S_W}, 4\ns_cbranch_scc0 K_np\ns_setprio 1\nK_np:")
    e.wvm("d0")
    e("s_barrier")
    e.stamp("start")

    half = {'x': [0]*4, 'w': [0]*4}
    def reads(gp):
        if gp < 28: sig, sub, pos, reg = gp // 4, 0, gp % 4, 16384
        else:
            g = gp - 28; sig, sub, pos = 7 + g // 8, (g // 4) & 1, g % 4; reg = sub * 16384
        sl = sig % 4; h = sl >> 1; imm = (sl & 1) * RING
        buf = WF + 8 * (gp % 3)
        pre = []
        if 28 <= gp < 32:
            pre = [f"v_xor_b32 v{WA+4*i+pos}, {(pos << 12) | (h << 16)}, v{WB+i}" for i in range(2)]
            half['w'][pos] = h
        elif half['w'][pos] != h:
            pre = [f"v_xor_b32 v{WA+4*i+pos}, 0x10000, v{WA+4*i+pos}" for i in range(2)]
            half['w'][pos] = h
        if gp < 28 and half['x'][pos] != h:
            pre.append(f"v_xor_b32 v{XA+pos}, 0x10000, v{XA+pos}"); half['x'][pos] = h
        out = [(lambda l=l: e(l)) for l in pre]
        if gp < 28: out.append(lambda: e.ds(f"ds_read_b128 {vr(XR+4*gp,4)}, v{XA+pos} offset:{imm}", f"r{gp}"))
        for i in range(2):
            for u in range(2):
                out.append(lambda i=i, u=u: e.ds(f"ds_read_b64_tr_b16 {vr(buf+4*i+2*u,2)}, v{WA+4*i+pos} offset:{imm+reg+u*1024}", f"r{gp}"))
        return out
    def position(gp, side, dmaq, nside, barrier=None):
        p2 = gp >= 28; g = gp - 28 if p2 else gp
        acc = ACCB if p2 else ACCA
        buf = WF + 8 * (gp % 3); xr = XR + 4 * g
        e.wds(f"r{gp}")
        e(mfma(acc, buf, xr, "0" if g == 0 else None))
        if barrier: barrier()
        R = reads(gp + 2) if gp + 2 < 56 else []
        nx = 1 if gp + 2 < 28 else 0
        pre = R[:max(0, len(R) - 4 - nx)]; xrd = R[len(pre):len(pre) + nx]; tr = R[len(pre) + nx:]
        na = (nside + 1) // 2; nb = nside // 2
        for f in pre: f()
        if P("ORD", 1) == 0:
            for f in xrd + tr[:2]: f()
            side.emit(na)
            e(mfma(acc + 16, buf + 4, xr, "0" if g == 0 else None))
            for f in tr[2:]: f()
            if g % 4 == 0: e(mfma16(CSA, SEL, buf, "0" if g == 0 else None))
            if dmaq: dmaq.pop(0)()
            side.emit(nb)
            if g % 4 == 0: e(mfma16(CSA + 4, SEL, buf + 4, "0" if g == 0 else None))
        else:
            for f in tr[:1]: f()
            side.emit(min(2, na))
            for f in tr[1:2]: f()
            side.emit(na - min(2, na))
            e(mfma(acc + 16, buf + 4, xr, "0" if g == 0 else None))
            for f in tr[2:3]: f()
            side.emit(min(2, nb))
            for f in tr[3:]: f()
            side.emit(nb - min(2, nb))
            if g % 4 == 0 and 'nosel' not in X: e(mfma16(CSA, SEL, buf, "0" if g == 0 else None))
            for f in xrd: f()
            if g % 4 == 0 and 'nosel' not in X: e(mfma16(CSA + 4, SEL, buf + 4, "0" if g == 0 else None))
            if dmaq: dmaq.pop(0)()
    def stats(gp):
        x = XR + 4 * gp; c = lambda r: "0" if gp == 0 else vr(r, 4)
        return [mfma16(ST, SEL, x, c(ST)),
                f"v_mfma_f32_4x4x4_16b_bf16 {vr(SQA,4)}, {vr(x,2)}, {vr(x,2)}, {c(SQA)}\nv_mfma_f32_4x4x4_16b_bf16 {vr(SQB,4)}, {vr(x+2,2)}, {vr(x+2,2)}, {c(SQB)}"]
    def cs_write(dst):
        return [f"v_lshlrev_b32 v{G+8}, 4, v0", f"s_lshl_b32 s6, s{S_T0}, 9", f"s_lshl_b32 s{S_A}, s{S_RT}, 2",
                f"s_add_u32 s6, s6, s{S_A}", f"s_add_u32 s6, s6, {dst}", f"v_add_u32 v{G+8}, s6, v{G+8}",
                lambda: (e("s_mov_b64 exec, 0xffff"),
                         e.ds(f"ds_write_b32 v{G+8}, v{CSA}", "csw"), e.ds(f"ds_write_b32 v{G+8}, v{CSA+1} offset:256", "csw"),
                         e.ds(f"ds_write_b32 v{G+8}, v{CSA+4} offset:512", "csw"), e.ds(f"ds_write_b32 v{G+8}, v{CSA+5} offset:768", "csw"),
                         e("s_mov_b64 exec, -1"))]
    def cs_read(src):
        l = [f"v_and_b32 v{G+8}, 31, v0", f"v_lshlrev_b32 v{G+8}, 4, v{G+8}", f"s_lshl_b32 s6, s{S_T0}, 9", f"s_add_u32 s6, s6, {src}",
             f"v_add_u32 v{G+8}, s6, v{G+8}",
             lambda: e.ds(f"ds_read_b128 {vr(G,4)}, v{G+8}", "csr"), lambda: e.ds(f"ds_read_b128 {vr(G+4,4)}, v{G+8} offset:512", "csr")]
        m = [lambda: e.wds("csr")]
        for i in range(2):
            b = G + 4 * i
            m += [f"v_add_f32 v{b}, v{b}, v{b+1}", f"v_add_f32 v{b+2}, v{b+2}, v{b+3}"]
        for i in range(2): m += [f"v_add_f32 v{G+4*i}, v{G+4*i}, v{G+4*i+2}"]
        for i in range(2): m += [f"v_cvt_pk_bf16_f32 v{G+4*i+1}, v{G+4*i}, v{G+4*i}"]
        for i in range(2): m += [f"v_and_b32 v{G+4*i+1}, s{S_MASK}, v{G+4*i+1}"]
        for i in range(2): m += [f"v_sub_f32 v{G+4*i+1}, v{G+4*i}, v{G+4*i+1}"]
        for i in range(2): m += [f"v_cvt_pk_bf16_f32 v{G+4*i}, v{G+4*i}, v{G+4*i+1}"]
        for i in range(2): m += [f"v_cndmask_b32 v{ST+2*i}, v{G+4*i}, 0, s[{S_HI}:{S_HI+1}]"]
        return l, m

    KA = -2.0 * math.log2(math.e) * math.sqrt(2.0 / math.pi)
    GST = P("GST", 18)
    def stat_check():
        ok = e.newlabel("sok"); sp = e.newlabel("ssp")
        e.wvm("stl")
        e(f"v_cmp_ne_u32 vcc, s{S_NON}, v{BEXT+3}\ns_cbranch_vccz {ok}\ns_mov_b32 s{S_CNT}, {SPIN_MAX}")
        e.label(sp)
        e(f"""s_sleep 4
buffer_load_dwordx2 {vr(BEXT+2,2)}, v{G}, {WS}, 0 offen {SC}
s_sub_u32 s{S_CNT}, s{S_CNT}, 1
s_waitcnt vmcnt(0)
v_cmp_ne_u32 vcc, s{S_NON}, v{BEXT+3}
s_cmp_eq_u32 s{S_CNT}, 0
s_cbranch_scc1 {ok}
s_cbranch_vccnz {sp}""")
        if 'spincnt' in X: e(f"s_sub_u32 s88, {SPIN_MAX + 1000}, s{S_CNT}")
        e.label(ok)
    def after_exchange(side):
        l, m = cs_read(L_CSA)
        side.add(l)
        side.add(f"""v_and_b32 v{S_}, s{S_MASK}, v{BEXT+2}
v_and_b32 v{BEXT}, 0xffff, v{BEXT+2}
v_rcp_f32 v{R_}, v{S_}
v_lshl_or_b32 v{BEXT}, v{BEXT+2}, 16, v{BEXT}
v_mul_f32 v{I2}, v{S_}, v{S_}
v_mul_f32 v{AC}, {f2u(KA)}, v{R_}
v_mul_f32 v{BC}, v{R_}, v{R_}
v_mov_b32 v{ST+1}, 0
v_mul_f32 v{BC}, v{BC}, v{AC}
v_mov_b32 v{ST+3}, 0
v_mul_f32 v{BC}, {f2u(0.044715)}, v{BC}
v_mov_b32 v{BEXT+1}, 0
v_mov_b32 v{BEXT+2}, 0
v_mov_b32 v{BEXT+3}, 0""")
        side.add(m)
    for f in reads(0) + reads(1): f()
    side = Side(e); dmaq = list(stage_dmas(e, 2)) + ([touch(e, 2)] if TOUCH else [])
    w2side = Side(e)
    if GT & 4:
        w2side.add(f"""s_min_u32 s6, s{S_TG}, 895
s_cmp_ge_u32 s6, 448
s_cselect_b32 s{SRD_T}, s{P_WU}, s{P_WG}
s_cselect_b32 s{SRD_T+1}, s{P_WU+1}, s{P_WG+1}
s_cselect_b32 s7, 448, 0
s_mov_b32 s{SRD_T+2}, {448*3584}
s_sub_u32 s6, s6, s7
s_mul_i32 s6, s6, 3584
s_add_u32 s6, s6, 1536
v_and_b32 v{TA}, 15, v0
v_lshlrev_b32 v{TA}, 7, v{TA}""")
        w2side.add([lambda: e.vm(f"buffer_load_dword v{TD}, v{TA}, s[{SRD_T}:{SRD_T+3}], s6 offen", "t2")])
    w2side.add(late); w2side.add(w2t_addr)
    for gp in range(28):
        sig, pos = gp // 4, gp % 4
        bar = None
        if pos == 2:
            def bar(sig=sig):
                if sig == 6: side.flush(); stat_check(); e.wds("csw")
                e.wvm(f"d{sig+1}"); e("s_barrier")
                if sig == 6: after_exchange(side)
                assert not dmaq
                dmaq.extend(stage_dmas(e, sig + 3))
                if sig == 0 and TOUCH: dmaq.append(touch(e, 3))
        if gp == GST:
            side.add([f"s_lshl_b32 s{S_G}, s{S_RB}, 2", f"s_add_u32 s{S_G}, s{S_G}, s{S_RT}", f"s_lshl_b32 s{S_G}, s{S_G}, 8", f"s_add_u32 s{S_G}, s{S_G}, {STAT}",
                      f"v_and_b32 v{G}, 31, v0", f"v_lshl_add_u32 v{G}, v{G}, 3, s{S_G}",
                      lambda: e.vm(f"buffer_load_dwordx2 {vr(BEXT+2,2)}, v{G}, {WS}, 0 offen {SC}", "stl")])
        if gp == 25: assert not w2side.q; side.add(cs_write(L_CSA))
        n = len(side.q) if gp < 26 else P('NEX', 10)
        while len(dmaq) > 4 - ((pos + 2) % 4): dmaq.pop(0)()
        e.stamp(f"xp{gp}")
        w2side.emit(0 if gp < P('WS0', 0) else 5 if gp < 2 else P('WSR', 3))
        position(gp, side, dmaq, n, bar)
    assert not w2side.q
    side.add(["s_nop 1", mfma(ACCA, ST, BEXT), mfma(ACCA + 16, ST + 2, BEXT)])
    carry = list(side.q)
    e.stamp("p1")

    KA = -2.0 * math.log2(math.e) * math.sqrt(2.0 / math.pi); KB = KA * 0.044715
    def gelu(acc, so, tb, keep=None, pk=0):
        l = []
        if pk:
            pr = lambda r: vr(r, 2)
            for k in range(0, 8, 2): l.append(f"v_pk_mul_f32 {pr(tb+k)}, {pr(acc+k)}, {pr(acc+k)}")
            for k in range(0, 8, 2): l.append(f"v_pk_fma_f32 {pr(tb+k)}, {pr(tb+k)}, {pr(AC)}, {pr(AC)} op_sel:[0,1,0] op_sel_hi:[1,1,0]")
            for k in range(0, 8, 2): l.append(f"v_pk_mul_f32 {pr(tb+k)}, {pr(tb+k)}, {pr(acc+k)}")
            for k in range(0, 8, 2): l += [f"v_exp_f32 v{tb+k}, v{tb+k}", f"v_exp_f32 v{tb+k+1}, v{tb+k+1}", f"v_pk_mul_f32 {pr(acc+k)}, {pr(acc+k)}, {pr(acc+8+k)}"]
            for k in range(0, 8, 2): l.append(f"v_pk_fma_f32 {pr(tb+k)}, {pr(tb+k)}, {pr(I2-1)}, {pr(I2-1)} op_sel:[0,1,1] op_sel_hi:[1,1,1]")
            for k in range(8): l.append(f"v_rcp_f32 v{tb+k}, v{tb+k}")
            for k in range(0, 8, 2): l.append(f"v_pk_mul_f32 {pr(acc+k)}, {pr(acc+k)}, {pr(tb+k)}")
        else:
            for k in range(8): l.append(f"v_mul_f32 v{tb+k}, v{acc+k}, v{acc+k}")
            for k in range(8): l.append(f"v_fma_f32 v{tb+k}, v{tb+k}, v{BC}, v{AC}")
            for k in range(8): l.append(f"v_mul_f32 v{tb+k}, v{tb+k}, v{acc+k}")
            for k in range(8): l += [f"v_exp_f32 v{tb+k}, v{tb+k}", f"v_mul_f32 v{acc+k}, v{acc+k}, v{acc+8+k}"]
            for k in range(8): l.append(f"v_fma_f32 v{tb+k}, v{tb+k}, v{I2}, v{I2}")
            for k in range(8): l.append(f"v_rcp_f32 v{tb+k}, v{tb+k}")
            for k in range(8): l.append(f"v_mul_f32 v{acc+k}, v{acc+k}, v{tb+k}")
        if keep is not None:
            return l + [f"v_cvt_pk_bf16_f32 v{keep+k}, v{acc+2*k}, v{acc+2*k+1}" for k in range(4)]
        for k in range(4): l.append(f"v_cvt_pk_bf16_f32 v{acc+8+k}, v{acc+2*k}, v{acc+2*k+1}")
        l.append(lambda: e.vm(f"buffer_store_dwordx4 {vr(acc+8,4)}, v{VL16}, {WS}, s{so} offen {SC}", "hs"))
        return l
    def h_off(line, dst):
        return f"""s_lshl_b32 s6, s{S_RB}, 2
s_add_u32 s6, s6, s{S_RT}
s_mul_i32 s6, s6, 144
s_lshl_b32 s{dst}, s{line}, 2
s_add_u32 s6, s6, s{dst}
s_add_u32 s6, s6, s{S_T0}
s_lshl_b32 s{dst}, s6, 10
s_add_u32 s{dst+1}, s{dst}, 1024"""
    def w2t_out(side):
        side.add(f"""v_lshrrev_b32 v{TP}, 5, v0
v_bfe_u32 v{TP+1}, v0, 2, 2
v_lshl_add_u32 v{TP}, v{TP}, 2, v{TP+1}
v_lshlrev_b32 v{TP}, 7, v{TP}
v_bfe_u32 v{TP+1}, v0, 4, 1
v_lshl_add_u32 v{TP}, v{TP+1}, 5, v{TP}
v_and_b32 v{TP+1}, 3, v0
v_lshl_add_u32 v{TP}, v{TP+1}, 3, v{TP}
s_lshr_b32 s6, s{S_W}, 1
s_lshl_b32 s6, s6, 11
s_and_b32 s{S_A}, s{S_W}, 1
s_lshl_b32 s{S_B}, s{S_A}, 6
s_add_u32 s6, s6, s{S_B}
s_add_u32 s6, s6, {L_W2T}
v_add_u32 v{TP}, s6, v{TP}""")
        side.add([lambda: (e.ds(f"ds_read_b64_tr_b16 {vr(PL,2)}, v{TP}", "w2tr"), e.ds(f"ds_read_b64_tr_b16 {vr(PL+2,2)}, v{TP} offset:1024", "w2tr")),
                  f"s_lshl_b32 s6, s{S_U}, 11", f"s_lshl_b32 s{S_A}, s{S_A}, 10", f"s_add_u32 s6, s6, s{S_A}", f"s_add_u32 s{S_TO}, s6, {W2T}",
                  lambda: (e.wds("w2tr"), e.vm(f"buffer_store_dwordx4 {vr(PL,4)}, v{VL16}, {WS}, s{S_TO} offen {SC}", "w2ts"))])
    GEND = P("GEND", 22); GW2 = P("GW2", 22); GFQ = P("GFQ", 9)
    GX, GBN, GFL, QRATE = P("GX", 0), P("GBN", 2), P("GFL", 6 if SPLITQ else 9), P("QRATE", 40)
    def pass2(qfirst):
        side = Side(e); dq = list(dmaq); side.q = list(carry)
        for g in range(28):
            gp = 28 + g
            pre = []; wd = []; wv = []; post = []
            if g == 0:
                if not qfirst and 'nogelu' in X: pass
                elif not qfirst:
                    side.add(h_off(S_LA, S_C))
                    ga = gelu(ACCA, S_C, G); gb = gelu(ACCA + 16, S_D, G)
                    k = P('HSD', 68)
                    side.add(ga[:-1] + gb[:k] + ga[-1:] + gb[k:])
                else: qkv_part1(side)
            if g == 6:
                post.append(lambda: dq.extend(stage_dmas(e, 10) + [lambda: (e(f"s_add_u32 m0, s{S_WB}, {L_W2T}\ns_nop 0"),
                            e.vm(f"buffer_load_dwordx4 v{VT}, s[{SRD_T}:{SRD_T+3}], s{S_TO} offen lds", "w2td"))]))
            if g == GW2: wv.append("w2td")
            if g in (6, 14, 22): wv.append(f"d{8 + g // 8}")
            if qfirst and g == GBN: pre.append(side.flush); wd.append("kvw"); post.append(lambda: qkv_part2(side))
            if qfirst and g == GFQ and SPLITQ:
                pre.append(side.flush); wv.append("qs")
                post.append(lambda: flag_store(e, f"""s_lshl_b32 s6, s{S_RB}, 5
s_add_u32 s6, s6, s{S_QU}
s_lshl_b32 s6, s6, 2
s_add_u32 s6, s6, {F_Q}
v_mov_b32 v{TP}, s6""", 1, TP))
            if qfirst and g == GFL:
                if SPLITQ: pre.append(lambda: e(f"s_waitcnt vmcnt({len(e.q['vm']) - e.mark['kvs']})")); wd.append("kvw")
                else: pre.append(side.flush); wv.append("qs")
                post.append(lambda: flag_store(e, f"""s_lshl_b32 s6, s{S_RB}, 2
s_add_u32 s6, s6, s{S_QU}
s_lshl_b32 s6, s6, 2
s_add_u32 s6, s6, {F_KV}
v_lshlrev_b32 v{TP}, 8, v0
v_add_u32 v{TP}, s6, v{TP}""", RKV, TP))
            if g == GW2 + 1 and 'now2o' not in X:
                q0 = side.q; side.q = []; w2t_out(side); side.q += q0
            if g == 24: side.flush()
            if g == P("GKP", 27):
                poll_issue(e, f"""s_and_b32 s6, s2, {RKV-1}
s_lshl_b32 s6, s6, 8
s_add_u32 s6, s6, {F_KV}
v_lshl_add_u32 v{PL}, v0, 2, s6""" + (f"""
s_lshl_b32 s6, s{S_RB}, 5
s_add_u32 s6, s6, s{S_QU}
s_lshl_b32 s6, s6, 2
s_add_u32 s6, s6, {F_Q}
v_mov_b32 v{PL+2}, s6
buffer_load_dword v{PL+3}, v{PL+2}, {WS}, 0 offen {SC}""" if SPLITQ else ""), PL, PL + 1, "kvp")
            if g == 25 and 'nocs' not in X:
                side.flush(); side.add(cs_write(L_CSB))
            if g == 26 and 'nocs' not in X:
                pre.append(side.flush); wd.append("csw")
                def p():
                    l, m = cs_read(L_CSB); side.add(l); side.add(m)
                post.append(p)
            bar = None
            if wd or wv:
                def bar():
                    for f in pre: f()
                    if wd: e.wds(*wd)
                    if wv: e.wvm(*wv)
                    e("s_barrier")
                    for f in post: f()
            if qfirst: n = QRATE if g < 9 else 12
            else: n = -(-len(side.q) // max(1, GEND - g)) if g < GEND else 12
            e.stamp(f"xg{g}")
            position(gp, side, dq, n, bar)
        side.flush()
        e.stamp("xpe2")
        e("s_nop 1")
        e(mfma(ACCB, ST, BEXT)); e(mfma(ACCB + 16, ST + 2, BEXT))
    RQ = PL
    def qkv_part1(side):
        side.add(f"""v_mul_f32 v{RQ}, {f2u(28 ** -0.5 * math.log2(math.e))}, v{R_}
v_and_b32 v{G+8}, 31, v0
v_lshlrev_b32 v{G+8}, 5, v{G+8}
s_lshl_b32 s6, s{S_RT}, 10
s_add_u32 s6, s6, {L_KVB}
v_add_u32 v{G+8}, s6, v{G+8}
s_mov_b32 s{S_D}, 0x00003f80
s_cmp_lt_u32 s{S_QU}, 2
s_cselect_b32 s{S_C}, 0x3f803f80, s{S_D}
s_cselect_b32 s{S_D}, s{S_D}, 0
s_nop 1""")
        for i, st_ in ((0, S_T0), (1, S_T1)):
            acc = ACCA + 16 * i; b = G + 4 * i
            for k in range(4): side.add([f"v_mul_f32 v{b+k}, v{acc+12+k}, v{R_}"])
            side.add(f"""s_sub_u32 s6, 3, s{st_}
s_lshl_b32 s{S_A}, s{st_}, 2
s_lshr_b32 s{S_A}, 0x0132, s{S_A}
s_and_b32 s{S_A}, s{S_A}, 3
s_bitcmp1_b32 s{S_QU}, 0
s_cselect_b32 s6, s{S_A}, s6
s_cselect_b32 s{S_A}, s{S_A}, 0
s_lshl_b32 s6, s6, 3
v_cvt_pk_bf16_f32 v{b}, v{b}, v{b+1}
v_cvt_pk_bf16_f32 v{b+1}, v{b+2}, v{b+3}
v_add_u32 v{b+2}, s6, v{G+8}""")
            def wr(b=b):
                l = e.newlabel("nc")
                e(f"s_cmp_eq_u32 s{S_A}, 3\ns_cbranch_scc0 {l}\nv_mov_b32 v{b}, s{S_C}\nv_mov_b32 v{b+1}, s{S_D}")
                e.label(l)
                e(f"s_mov_b64 exec, s[{S_HI}:{S_HI+1}]")
                e.ds(f"ds_write_b64 v{b+2}, {vr(b,2)}", "kvw")
                e("s_mov_b64 exec, -1")
            side.add([wr])
    def qkv_part2(side):
        def kv():
            l = e.newlabel("kvs"); lv = e.newlabel("kvv"); ls = e.newlabel("kvt")
            e(f"""s_cmp_eq_u32 s{S_CG}, 0
s_cbranch_scc0 {l}
s_lshl_b32 s6, s{S_RB}, 2
s_add_u32 s6, s6, s{S_RT}
s_lshl_b32 s6, s6, 12
s_add_u32 s6, s6, {KVF}
s_lshl_b32 s{S_A}, s{S_RT}, 10
s_add_u32 s{S_A}, s{S_A}, {L_KVB}
s_cmp_lt_u32 s{S_QU}, 2
s_cbranch_scc0 {lv}
v_and_b32 v{G}, 31, v0
v_lshrrev_b32 v{G+1}, 5, v0
v_lshlrev_b32 v{G}, 5, v{G}
v_lshl_add_u32 v{G}, v{G+1}, 3, v{G}
v_add_u32 v{G}, s{S_A}, v{G}
ds_read2_b64 {vr(G+4,4)}, v{G} offset0:0 offset1:2
s_lshl_b32 s{S_A}, s{S_QU}, 10
s_add_u32 s6, s6, s{S_A}
v_mov_b32 v{G+2}, v{VL16}
s_branch {ls}""")
            e.label(lv)
            e(f"""v_lshrrev_b32 v{G}, 5, v0
v_bfe_u32 v{G+1}, v0, 4, 1
v_lshlrev_b32 v{G+2}, 10, v{G}
v_lshl_add_u32 v{G+2}, v{G+1}, 9, v{G+2}
v_lshlrev_b32 v{G}, 4, v{G}
v_lshl_add_u32 v{G}, v{G+1}, 2, v{G}
v_bfe_u32 v{G+1}, v0, 2, 2
v_add_u32 v{G}, v{G}, v{G+1}
v_lshlrev_b32 v{G}, 5, v{G}
v_and_b32 v{G+1}, 3, v0
v_lshl_add_u32 v{G}, v{G+1}, 3, v{G}
v_add_u32 v{G}, s{S_A}, v{G}
ds_read_b64_tr_b16 {vr(G+4,2)}, v{G}
ds_read_b64_tr_b16 {vr(G+6,2)}, v{G} offset:256
v_and_b32 v{G+1}, 15, v0
v_lshl_add_u32 v{G+2}, v{G+1}, 4, v{G+2}
s_and_b32 s{S_A}, s{S_QU}, 1
s_lshl_b32 s{S_A}, s{S_A}, 8
s_add_u32 s6, s6, s{S_A}
s_add_u32 s6, s6, 2048""")
            e.label(ls)
            e(f"s_waitcnt lgkmcnt(0)\nbuffer_store_dwordx4 {vr(G+4,4)}, v{G+2}, {WS}, s6 offen {SC}")
            e.label(l)
            e.mark['kvs'] = len(e.q['vm'])
        side.add([kv])
        side.add(f"""s_lshl_b32 s6, s{S_RB}, 2
s_add_u32 s6, s6, s{S_RT}
s_lshl_b32 s6, s6, 2
s_add_u32 s6, s6, s{S_QU}
s_lshl_b32 s6, s6, 2
s_add_u32 s6, s6, s{S_T0}
s_lshl_b32 s6, s6, 11
s_add_u32 s{S_C}, s6, {QF}""")
        for i in range(2):
            acc = ACCA + 16 * i
            if P('PK', 0) & 4:
                for k in range(0, 16, 2): side.add([f"v_pk_mul_f32 {vr(acc+k,2)}, {vr(acc+k,2)}, {vr(RQ,2)} op_sel_hi:[1,0]"])
            else:
                for k in range(16): side.add([f"v_mul_f32 v{acc+k}, v{acc+k}, v{RQ}"])
            for k in range(8): side.add([f"v_cvt_pk_bf16_f32 v{acc+k}, v{acc+2*k}, v{acc+2*k+1}"])
            side.add([f"v_cndmask_b32 v{acc+6}, v{acc+6}, 0, s[{S_HI}:{S_HI+1}]", f"v_cndmask_b32 v{acc+7}, v{acc+7}, 0, s[{S_HI}:{S_HI+1}]",
                      lambda acc=acc, i=i: e.vm(f"buffer_store_dwordx4 {vr(acc,4)}, v{VL16}, {WS}, s{S_C} offen offset:{2048*i} {SC}", "qs"),
                      lambda acc=acc, i=i: e.vm(f"buffer_store_dwordx4 {vr(acc+4,4)}, v{VL16}, {WS}, s{S_C} offen offset:{2048*i+1024} {SC}", "qs")])
    e(f"s_cmp_eq_u32 s{S_ISQ}, 1\ns_cbranch_scc1 B_p2q")
    sn = e.snap(); hs = {k: list(v) for k, v in half.items()}; ns = e.nst
    pass2(False)
    e("s_branch B_join")
    e.label("B_p2q")
    e.nst = ns
    e.restore(sn); half.update({k: list(v) for k, v in hs.items()})
    pass2(True)
    e.label("B_join")
    e.q = {'ds': [], 'vm': []}; e.done = {'ds': 0, 'vm': 0}; e.mark['kvp'] = 0
    e.stamp("join")
    return gelu, h_off

LB0, LB1, VO = 3, 4, 5
Q, O, S0, PP, K, V0, V1 = 36, 44, 64, 96, 104, 112, 120
FA, FB = 128, 192
XRES = 244
S_KH, S_QT, S_KVO, S_WB4, S_FA, S_FB0, S_FB1, S_OO = 50, 51, 54, 55, 56, 57, 59, 60
S_FQ, S_K1 = 62, 63
F0 = P("F0", 8)
FP = P("FP", 2)
HBP = P("HBP", 10)
F3 = P("F3", 40)
WOP = 18

def kv_dma(e, st):
    def m(): e(f"s_add_u32 m0, s{S_WB4}, {((st + 3) % 4) * RING}" + ("\ns_nop 0" if st < 3 else ""))
    m.scalar = True
    l = [m]
    for f in range(4):
        l.append(lambda f=f: (e.vm(f"buffer_load_dwordx4 v{VL16}, {WS}, s{S_KVO} offen offset:{1024*f} {SC} lds", f"k{st}"),
                              e(f"s_add_u32 s{S_KVO}, s{S_KVO}, 16384") if f == 3 else None))
    return l

NB = P("NB", 4)
FBUF = [[FB + 16 * n + 4 * k for k in range(4)] for n in range(3)] + [[60, 124, 248, 252]]
def f_loads(e, q):
    bb = FBUF[q % NB]
    r = q if q < 6 else q - 6
    advA = advB = None
    if q == 5:
        advA = f"s_add_u32 s{S_FA}, s{S_FA}, s{S_FQ}"
        advB = f"s_add_u32 s{S_FB0}, s{S_FB0}, s{S_K1}\ns_add_u32 s{S_FB1}, s{S_FB1}, s{S_K1}"
    else:
        if r & 1: advA = f"s_add_u32 s{S_FA}, s{S_FA}, 4096"
        if (r & 3) == 3: advB = f"s_add_u32 s{S_FB0}, s{S_FB0}, 4096\ns_add_u32 s{S_FB1}, s{S_FB1}, 4096"
    return [lambda: e.vm(f"buffer_load_dwordx4 {vr(bb[0],4)}, v{VL16}, {WS}, s{S_FA} offen offset:{(r&1)*2048} {SC}", f"f{q}"),
            lambda: e.vm(f"buffer_load_dwordx4 {vr(bb[2],4)}, v{VL16}, {WS}, s{S_FB0} offen offset:{(r&3)*1024} {SC}", f"f{q}"),
            lambda: (e.vm(f"buffer_load_dwordx4 {vr(bb[1],4)}, v{VL16}, {WS}, s{S_FA} offen offset:{(r&1)*2048+1024} {SC}", f"f{q}"),
                     e(advA) if advA else None),
            lambda: (e.vm(f"buffer_load_dwordx4 {vr(bb[3],4)}, v{VL16}, {WS}, s{S_FB1} offen offset:{(r&3)*1024} {SC}", f"f{q}"),
                     e(advB) if advB else None)]
def f_mfma(q, k):
    bb = FBUF[q % NB]; r2, d2 = ((0, 0), (0, 1), (1, 1), (1, 0))[k]
    return mfma(FA + 32*r2 + 16*d2, bb[d2], bb[2 + r2], "0" if q == 0 else None)

S_OA, S_OL = 61, 75
OAREG = [8 + 4 * k for k in range(7)] + [FB + 4 * k for k in range(9)]
def oa_dma(e, n):
    def f():
        if n == 0: e(f"s_add_u32 m0, s{S_OL}, {3 * RING}\ns_nop 0")
        if n == 4: e(f"s_mov_b32 m0, s{S_OL}\ns_add_u32 s{S_OA}, s{S_OA}, 8192")
        e.vm(f"buffer_load_dwordx4 v{VL16}, {WS}, s{S_OA} offen offset:{(n & 3) * 1024} {SC} lds", "oa")
    return f
KVPRE = P('KVPRE', 2)
HDEF = P('HDEF', 1); HFL = P('HFL', 6 if HDEF else 2); S_HO = 47
def attn_setup(e, gelu, h_off):
    e(h_off(S_LB, S_C))
    e(f"""s_mov_b32 s{S_QT}, s{S_RT}
s_mov_b32 s{S_KH}, s{S_CG}
s_lshl_b32 s{S_WB4}, s{S_W}, 12
s_lshl_b32 s6, s{S_KH}, 5
s_add_u32 s6, s6, s{S_QT}
s_lshl_b32 s6, s6, 12
s_add_u32 s{S_KVO}, s6, {KVF}
s_lshl_b32 s6, s{S_RB}, 2
s_add_u32 s6, s6, s{S_QT}
s_lshl_b32 s7, s6, 4
s_add_u32 s7, s7, s{S_J}
s_lshl_b32 s7, s7, 11
s_add_u32 s7, s7, {QF}""")
    if HDEF: e(f"s_mov_b32 s{S_HO}, s{S_C}")
    g0 = gelu(ACCB, S_C, G, 16 if HDEF else None, P('PK', 0) & 1); g1 = gelu(ACCB + 16, S_D, G + 8, 20 if HDEF else None, P('PK', 0) & 1)
    nfirst = P("GFIRST", 0)
    both = g0 + g1
    if P('GIL', 1): both = [x for p in zip(g0, g1) for x in p]
    for it in both[:nfirst]: it() if callable(it) else e(it)
    assert nfirst == 0
    poll_check(e, PL, PL + 1, "kvp", P("KSLEEP", 1))
    if SPLITQ: poll_check(e, PL + 2, PL + 3, "kvp", P("KSLEEP", 1))
    e.all_vm()
    e("s_barrier")
    e.stamp("xkv")
    flag_store(e, f"""s_lshl_b32 s6, s{S_RB}, 5
s_add_u32 s6, s6, s{S_J}
s_lshl_b32 s6, s6, 2
s_add_u32 s6, s6, {F_H + 64}
s_lshl_b32 s{S_A}, s{S_WF}, 2
s_add_u32 s{S_A}, s{S_A}, {F_W}
s_sub_u32 s{S_A}, s{S_A}, s6
v_mul_lo_u32 v{PL}, v0, s{S_A}
v_add_u32 v{PL}, s6, v{PL}""", 2, PL)
    if P("KVT", 0):
        e(f"""s_lshr_b32 s6, s2, 3
s_lshl_b32 s6, s6, 3
s_add_u32 s6, s6, s{S_W}
s_lshl_b32 s6, s6, 10
s_add_u32 s6, s6, {KVF}
v_and_b32 v{TP}, 7, v0
v_lshlrev_b32 v{TP}, 7, v{TP}""")
        e.vm(f"buffer_load_dword v{TP+1}, v{TP}, {WS}, s6 offen {SC}", "kvt")
    side = Side(e)
    side.add(kv_dma(e, 0))
    side.add([lambda: e.vm(f"buffer_load_dwordx4 {vr(Q,4)}, v{VL16}, {WS}, s7 offen {SC}", "q"),
              lambda: e.vm(f"buffer_load_dwordx4 {vr(Q+4,4)}, v{VL16}, {WS}, s7 offen offset:1024 {SC}", "q")])
    side.emit(P("KPRE0", 7))
    for st in range(1, KVPRE): side.add(kv_dma(e, st))
    for n, it in enumerate(both[nfirst:]):
        it() if callable(it) else e(it)
        if n % P('GSP', 1000) == P('GSP', 1000) - 1: side.emit(1)
        if n == 68: e.stamp("xg69")
    e.stamp("xgv")
    side.flush()
    e(f"""s_lshl_b32 s6, s{S_KH}, 14
v_add_u32 v{LB0}, s6, v{VL16}
v_add_u32 v{LB1}, 0x10000, v{LB0}
s_lshl_b32 s6, s{S_RB}, 2
s_add_u32 s6, s6, s{S_QT}
s_mul_i32 s6, s6, 144
s_lshl_b32 s7, s{S_J}, 1
s_add_u32 s6, s6, s7
s_add_u32 s6, s6, s{S_KH}
s_add_u32 s6, s6, 112
s_lshl_b32 s{S_OO}, s6, 10""")

def rd(e, dst, tile, f, tag):
    sl = (tile // 4 + 3) % 4
    e.ds(f"ds_read_b128 {vr(dst,4)}, v{LB0 if sl < 2 else LB1} offset:{(sl & 1) * RING + (tile % 4) * 4096 + f * 1024}", tag)

def attn_loop(e, withF):
    e.stamp("xge")
    if P("PRIO", 2) == 2:
        l = e.newlabel("np"); e(f"s_cmp_ge_u32 s{S_W}, 4\ns_cbranch_scc0 {l}\ns_setprio 1"); e.label(l)
    if P("PRIO", 2) == 5: e("s_setprio 0")
    e.wvm("k0", "q"); e.stamp("xk0"); e("s_barrier")
    e.stamp("astart")
    rd(e, K, 0, 0, "a"); rd(e, K + 4, 0, 1, "a"); rd(e, V0, 0, 2, "b")
    e.wds("a")
    e(mfma(S0, K, Q, "0")); e(mfma(S0, K + 4, Q + 4))
    rd(e, K, 1, 0, "b"); rd(e, K + 4, 1, 1, "b")
    if withF:
        e(f"""s_lshr_b32 s6, s{S_J}, 3
s_lshl_b32 s7, s{S_RB}, 1
s_add_u32 s6, s6, s7
s_and_b32 s7, s{S_J}, 7
s_mul_i32 s{S_A}, s{S_W}, 6
s_lshl_b32 s{S_K1}, s{S_W}, 1
s_add_u32 s{S_K1}, s{S_K1}, 44
s_lshl_b32 s{S_K1}, s{S_K1}, 10
s_lshl_b32 s{S_FQ}, s{S_K1}, 1
s_mul_i32 s{S_FB0}, s6, 288
s_add_u32 s{S_FB0}, s{S_FB0}, s{S_A}
s_lshl_b32 s{S_FB0}, s{S_FB0}, 10
s_add_u32 s{S_FB1}, s{S_FB0}, {144*1024}
s_bitcmp1_b32 s{S_W}, 0
s_cselect_b32 s{S_B}, s{S_FB1}, s{S_FB0}
s_cselect_b32 s{S_FB1}, s{S_FB0}, s{S_FB1}
s_mov_b32 s{S_FB0}, s{S_B}
s_mul_i32 s{S_FA}, s7, 144
s_add_u32 s{S_FA}, s{S_FA}, s{S_A}
s_lshl_b32 s{S_FA}, s{S_FA}, 11
s_add_u32 s{S_FA}, s{S_FA}, {W2T}
s_lshr_b32 s{S_A}, s{S_W}, 1
s_lshl_b32 s{S_A}, s{S_A}, 3
s_mul_i32 s{S_OA}, s7, 144
s_add_u32 s{S_OA}, s{S_OA}, s{S_A}
s_add_u32 s{S_OA}, s{S_OA}, 112
s_lshl_b32 s{S_OA}, s{S_OA}, 11
s_add_u32 s{S_OA}, s{S_OA}, {W2T}
s_and_b32 s{S_B}, s{S_W}, 1
s_lshl_b32 s{S_B}, s{S_B}, 12
s_add_u32 s{S_OA}, s{S_OA}, s{S_B}
s_lshl_b32 s{S_OL}, s{S_W}, 12""")
    else:
        e("s_nop 9")
    NT = 32
    fq = []
    nq = 0
    dq = []
    fi = 0
    need = {}; keep = []; done = [0]
    for i in range(NT):
        sc = S0 + 16 * (i & 1); sn = S0 + 16 * ((i + 1) & 1)
        v0c = V0 + 4 * (i & 1); v0n = V0 + 4 * ((i + 1) & 1)
        E = lambda r: f"v_exp_f32 v{r}, v{r}"
        C = lambda d, r: f"v_cvt_pk_bf16_f32 v{d}, v{r}, v{r+1}"
        def g(k): return [E(sc + 4*k + q) for q in range(4)] + [C(PP + 2*k, sc + 4*k), C(PP + 2*k + 1, sc + 4*k + 2)]
        g0, g1, g2, g3 = g(0), g(1), g(2), g(3)
        fm = []; fl = []
        if withF:
            if i == FP - 2:
                assert FP % 4 == 2
                fl = [lambda: poll_issue(e, f"""s_lshl_b32 s6, s{S_RB}, 7
s_add_u32 s6, s6, {F_H + 64}
s_and_b32 s7, s{S_J}, 7
s_lshl_b32 s7, s7, 8
s_add_u32 s7, s7, {F_W - 64}
v_lshl_add_u32 v{G}, v0, 2, s6
v_lshl_add_u32 v{G+1}, v0, 2, s7
v_mov_b32 v{G+2}, s6
s_mov_b32 s{S_A}, 0xffff0000
s_mov_b32 s{S_B}, 0x00000fff
s_mov_b32 s{S_C}, 0x00008888
s_mov_b32 s{S_D}, 0xfffff000
v_cndmask_b32 v{G}, v{G}, v{G+1}, s[{S_A}:{S_B}]
v_cndmask_b32 v{G}, v{G}, v{G+2}, s[{S_C}:{S_D}]""", G, G + 1, "hp")]
            if FP <= i < F0:
                if i == FP:
                    for q in range(NB - 1): fq += f_loads(e, q)
                n = -(-len(fq) // (F0 - i))
                fl = fq[:n]; fq = fq[n:]
            pb = []
            if i == HBP - 2:
                pb = [lambda: poll_issue(e, f"""s_lshl_b32 s6, s{S_RB}, 7
s_add_u32 s6, s6, {F_H}
v_and_b32 v{G}, 15, v0
v_lshl_add_u32 v{G}, v{G}, 2, s6""", G, G + 1, "hb")]
            if i == WOP - 2:
                pb = [lambda: poll_issue(e, f"""s_and_b32 s6, s{S_J}, 7
s_lshl_b32 s6, s6, 8
s_add_u32 s6, s6, {F_W + 112}
v_and_b32 v{G}, 7, v0
v_lshl_add_u32 v{G}, v{G}, 2, s6""", G, G + 1, "wo")]
            if i >= F0:
                cnt = 3 if i >= F3 else 2
                idx = list(range(fi, min(fi + cnt, 56))); fi += len(idx)
                fm = [(n // 4, n % 4) for n in idx]
                for (q, k) in fm:
                    if k == 0 and q + NB - 1 < 14:
                        if q + NB - 1 == 6: assert i > HBP
                        nl = f_loads(e, q + NB - 1)
                        for f in nl: need[id(f)] = 4 * q
                        keep.extend(nl); fq += nl
                n = min(len(fq), cnt)
                fl = fq[:n] + pb; fq = fq[n:]
        def em(x): x() if callable(x) else e(x)
        e.stamp(f"xa{i}")
        ex = [E(sc + k) for k in range(16)]; cv = [C(PP + k, sc + 2 * k) for k in range(8)]
        if i + KVPRE <= 2: dq += kv_dma(e, i + KVPRE)
        misc = []
        if i == 29: misc.append(comb_addr())
        if HDEF and i in (HDEF, HDEF + 1):
            misc.append(lambda i=i: e.vm(f"buffer_store_dwordx4 {vr(16 + 4*(i - HDEF),4)}, v{VL16}, {WS}, s{S_HO} offen offset:{1024*(i - HDEF)} {SC}", "hs"))
        if withF and 22 <= i < 30: misc.append(oa_dma(e, i - 22))
        gate = withF and i == FP
        def take(n):
            for _ in range(n):
                if fl and need.get(id(fl[0]), 0) <= done[0]: em(fl.pop(0))
        per = -(-len(fl) // 2)
        for x in ex[0:2]: em(x)
        def fmf(n):
            if n < len(fm):
                q, k = fm[n]
                e.wvm(f"f{q}"); e(f_mfma(q, k)); done[0] += 1
        if fm and fm[0][1] == 0: e.wboth(f"f{fm[0][0]}")
        else: e.all_ds()
        if i > 0: e(mfma(O, V1, PP + 4))
        rd(e, V1, i, 3, "c")
        for x in ex[2:5]: em(x)
        fmf(0)
        if not gate: take(1 if fm else per)
        for x in cv[0:2] + ex[5:7]: em(x)
        if i + 1 < NT: e(mfma(sn, K, Q, "0")); rd(e, v0n, i + 1, 2, "c")
        for x in ex[7:10]: em(x)
        if i + 1 < NT: e(mfma(sn, K + 4, Q + 4))
        if i % 4 == 2 and i + 2 < NT:
            st = i // 4
            if withF and i == FP: poll_check(e, G, G + 1, "hp")
            if withF and i == HBP: poll_check(e, G, G + 1, "hb")
            if withF and i == WOP: poll_check(e, G, G + 1, "wo")
            while dq and i == 2: dq.pop(0)()
            e.wvm(*([f"k{st+1}"] + (["hs"] if i == HFL else []))); e("s_barrier")
            if i == HFL:
                flag_store(e, f"""s_lshl_b32 s6, s{S_RB}, 5
s_add_u32 s6, s6, s{S_J}
s_lshl_b32 s6, s6, 2
s_add_u32 s6, s6, {F_H}
v_mov_b32 v{G+2}, s6""", 1, G + 2)
            assert not dq
            if st + 3 <= 7: dq += kv_dma(e, st + 3)
        if i + 2 < NT: rd(e, K, i + 2, 0, "c"); rd(e, K + 4, i + 2, 1, "c")
        if dq and getattr(dq[0], "scalar", False): dq.pop(0)()
        for x in cv[2:4] + ex[10:12]: em(x)
        fmf(1)
        take(1 if fm else len(fl) if not gate else per)
        for x in ex[12:14] + cv[4:6]: em(x)
        e(mfma(O, v0c, PP, "0" if i == 0 else None))
        for _ in range(1 if i >= 2 else 2):
            if dq: dq.pop(0)()
        if len(fm) < 3: take(len(fl))
        for x in misc: em(x)
        for x in ex[14:16] + cv[6:7]: em(x)
        fmf(2); take(len(fl))
        fq = fl + fq
        em(cv[7])
        if i + 2 >= NT: e("s_nop 1")
    e.all_ds()
    e("s_nop 0")
    e(mfma(O, V1, PP + 4))
    return fi, fq

CMB = L_W2T
def comb_addr():
    T = G
    return f"""s_lshl_b32 s6, s{S_W}, 11
s_add_u32 s6, s6, {CMB}
v_add_u32 v{T}, s6, v{VL16}
v_xor_b32 v{T+1}, 8192, v{T}
s_lshl_b32 s6, s{S_W}, 8
s_add_u32 s6, s6, {CMB + 16384}
v_lshl_add_u32 v{T+2}, v0, 2, s6
v_or_b32 v{T+3}, 32, v0
s_lshl_b32 s6, s{S_QT}, 8
s_add_u32 s6, s6, {CMB + 16384}
v_lshl_add_u32 v{T+3}, v{T+3}, 2, s6
s_mov_b32 s{S_C}, {f2u(2.0 ** -64)}
s_mov_b32 s{S_D}, {f2u(2.0 ** 64)}
s_lshl_b32 s6, s{S_RB}, 9
s_add_u32 s6, s6, s{S_J}
s_lshl_b32 s6, s6, 2
s_add_u32 s6, s6, {F_O2}
v_lshl_add_u32 v6, v0, 7, s6
v_mov_b32 v7, s{S_NON}"""

def attn_finish(e, withF=False):
    T = G
    e.stamp("aend")
    hi = e.newlabel("chi"); jn = e.newlabel("cjn"); fb = e.newlabel("cfb"); bk = e.newlabel("cbk")
    e(f"s_cmp_eq_u32 s{S_KH}, 0\ns_nop 10")
    e.ds(f"ds_write_b32 v{T+2}, v{O+12}")
    e(f"s_cbranch_scc0 {hi}")
    e.ds(f"ds_write_b128 v{T}, {vr(O+8,4)}"); e.ds(f"ds_write_b128 v{T}, {vr(O+12,4)} offset:1024")
    e(f"s_branch {jn}")
    e.label(hi)
    e(f"ds_write_b128 v{T}, {vr(O,4)}\nds_write_b128 v{T}, {vr(O+4,4)} offset:1024")
    e.all_ds()
    for k in range(8): e(f"v_mov_b32 v{O+k}, v{O+8+k}")
    e.label(jn)
    if withF: e.wboth("oa")
    else: e.all_ds()
    e.stamp("xc0")
    e("s_barrier")
    e.stamp("xc1")
    e.ds(f"ds_read2st64_b32 {vr(PP,2)}, v{T+3} offset0:0 offset1:4", "l")
    e.ds(f"ds_read_b128 {vr(S0,4)}, v{T+1}", "h0"); e.ds(f"ds_read_b128 {vr(S0+4,4)}, v{T+1} offset:1024", "h1")
    e(f"s_mov_b32 s{S_A}, 0\ns_sub_u32 s{S_B}, 0, s{S_KH}")
    e.wds("l")
    e(f"""v_add_f32 v{PP}, v{PP}, v{PP+1}
v_rcp_f32 v{PP+1}, v{PP}
v_cmp_nle_f32 vcc, s{S_C}, v{PP}
v_cmp_nge_f32 s[{S_E}:{S_F}], s{S_D}, v{PP}""")
    e.all_ds()
    for k in range(8): e(f"v_add_f32 v{S0+k}, v{S0+k}, v{O+k}")
    e(f"s_or_b64 s[{S_E}:{S_F}], s[{S_E}:{S_F}], vcc")
    for k in range(8): e(f"v_mul_f32 v{S0+k}, v{S0+k}, v{PP+1}")
    def pack_store():
        for k in range(4): e(f"v_cvt_pk_bf16_f32 v{K+k}, v{S0+2*k}, v{S0+2*k+1}")
        e(f"""v_cndmask_b32 v{K+2}, v{K+2}, 0, s[{S_A}:{S_B}]
v_cndmask_b32 v{K+3}, v{K+3}, 0, s[{S_A}:{S_B}]""")
    pack_store()
    e.vm(f"buffer_store_dwordx4 {vr(K,4)}, v{VL16}, {WS}, s{S_OO} offen {SC}", "os")
    e(f"""v_add_f32 v{PP+2}, |v{S0}|, |v{S0+1}|
v_add_f32 v{PP+3}, |v{S0+2}|, |v{S0+3}|
v_add_f32 v{PP+4}, |v{S0+4}|, |v{S0+5}|
v_add_f32 v{PP+5}, |v{S0+6}|, |v{S0+7}|
v_add_f32 v{PP+2}, v{PP+2}, v{PP+3}
v_add_f32 v{PP+4}, v{PP+4}, v{PP+5}
s_mov_b32 s6, 0x7f7fffff
v_add_f32 v{PP+2}, v{PP+2}, v{PP+4}
v_cmp_nge_f32 vcc, s6, v{PP+2}
s_nop 1
s_or_b64 vcc, vcc, s[{S_E}:{S_F}]""")
    if 'forcefb' in X: e("s_mov_b64 vcc, 1")
    e(f"s_cbranch_vccnz {fb}")
    e.label(bk)
    FALLBACKS.append((fb, bk))
    e.stamp("xc2")

FALLBACKS = []
def fallback(e, fb, bk):
    l1 = e.newlabel("fb1"); l2 = e.newlabel("fb2"); l3 = e.newlabel("fb3")
    M = PP + 7
    e.label(fb)
    if 'fbcount' in X:
        e(f"""s_mov_b32 s80, s{P_DBG}
s_mov_b32 s81, s{P_DBG+1}
s_mov_b32 s82, 256
s_mov_b32 s83, 0x00020000
v_mov_b32 v{M}, 0
v_mov_b32 v{M-1}, 1
s_mov_b64 exec, 1
buffer_atomic_add v{M-1}, v{M}, s[80:83], 0 offen
v_mov_b32 v{M-1}, s2
buffer_store_dword v{M-1}, v{M}, s[80:83], 0 offen offset:4
v_mov_b32 v{M-1}, s{S_W}
buffer_store_dword v{M-1}, v{M}, s[80:83], 0 offen offset:8
v_mov_b32 v{M-1}, vcc_lo
buffer_store_dword v{M-1}, v{M}, s[80:83], 0 offen offset:12
v_mov_b32 v{M-1}, vcc_hi
buffer_store_dword v{M-1}, v{M}, s[80:83], 0 offen offset:16
v_mov_b32 v{M-1}, s{S_E}
buffer_store_dword v{M-1}, v{M}, s[80:83], 0 offen offset:20
v_mov_b32 v{M-1}, s{S_F}
buffer_store_dword v{M-1}, v{M}, s[80:83], 0 offen offset:24
buffer_store_dword v{PP}, v{M}, s[80:83], 0 offen offset:28
buffer_store_dword v{PP+2}, v{M}, s[80:83], 0 offen offset:32
s_waitcnt vmcnt(0)
s_mov_b64 exec, -1""")
    e(f"s_mov_b32 s6, {KVF}\nv_mov_b32 v{M}, 0xff800000")
    e.label(l1)
    e(f"""buffer_load_dwordx4 {vr(K,4)}, v{VL16}, {WS}, s6 offen {SC}
buffer_load_dwordx4 {vr(K+4,4)}, v{VL16}, {WS}, s6 offen offset:1024 {SC}
s_add_u32 s6, s6, 4096
s_waitcnt vmcnt(0)""")
    e(mfma(S0, K, Q, "0")); e(mfma(S0, K + 4, Q + 4))
    e("s_nop 11")
    for k in range(8): e(f"v_max3_f32 v{M}, v{M}, v{S0+2*k}, v{S0+2*k+1}")
    e(f"""s_cmp_lt_u32 s6, {KVF + 64*4096}
s_cbranch_scc1 {l1}
v_mov_b32 v{PP}, v{M}
s_nop 1
v_permlane32_swap_b32 v{PP}, v{M}
v_max_f32 v{M}, v{M}, v{PP}
v_cvt_pk_bf16_f32 v{PP}, v{M}, v{M}
v_and_b32 v{PP}, s{S_MASK}, v{PP}
v_sub_f32 v{PP+1}, v{M}, v{PP}
v_cvt_pk_bf16_f32 v{PP+2}, v{PP+1}, v{PP+1}
v_and_b32 v{PP+2}, s{S_MASK}, v{PP+2}
v_sub_f32 v{PP+1}, v{PP+1}, v{PP+2}
v_cvt_pk_bf16_f32 v{PP}, -v{PP}, -v{PP+2}
v_cvt_pk_bf16_f32 v{PP+1}, -v{PP+1}, 0
v_cndmask_b32 v{Q+6}, v{Q+6}, v{PP}, s[{S_HI}:{S_HI+1}]
v_cndmask_b32 v{Q+7}, v{Q+7}, v{PP+1}, s[{S_HI}:{S_HI+1}]
s_mov_b32 s6, {KVF}""")
    for k in range(16): e(f"v_mov_b32 v{O+k}, 0")
    e.label(l2)
    for f in range(4): e(f"buffer_load_dwordx4 {vr(K+4*f,4)}, v{VL16}, {WS}, s6 offen offset:{1024*f} {SC}")
    e("s_add_u32 s6, s6, 4096\ns_waitcnt vmcnt(0)")
    e(mfma(S0, K, Q, "0")); e(mfma(S0, K + 4, Q + 4))
    e("s_nop 11")
    for k in range(16): e(f"v_exp_f32 v{S0+k}, v{S0+k}")
    e("s_nop 0")
    for k in range(8): e(f"v_cvt_pk_bf16_f32 v{PP+k}, v{S0+2*k}, v{S0+2*k+1}")
    e("s_nop 1")
    e(mfma(O, K + 8, PP)); e(mfma(O, K + 12, PP + 4))
    e(f"""s_cmp_lt_u32 s6, {KVF + 64*4096}
s_cbranch_scc1 {l2}
s_nop 11
v_mov_b32 v{PP}, v{O+12}
v_mov_b32 v{PP+1}, v{O+12}
s_cmp_eq_u32 s{S_KH}, 0
s_nop 0
v_permlane32_swap_b32 v{PP}, v{PP+1}
v_rcp_f32 v{PP+1}, v{PP+1}
s_cbranch_scc1 {l3}""")
    for k in range(8): e(f"v_mov_b32 v{O+k}, v{O+8+k}")
    e.label(l3)
    e("s_nop 0")
    for k in range(8): e(f"v_mul_f32 v{S0+k}, v{O+k}, v{PP+1}")
    for k in range(4): e(f"v_cvt_pk_bf16_f32 v{K+k}, v{S0+2*k}, v{S0+2*k+1}")
    e(f"""v_cndmask_b32 v{K+2}, v{K+2}, 0, s[{S_A}:{S_B}]
v_cndmask_b32 v{K+3}, v{K+3}, 0, s[{S_A}:{S_B}]
buffer_store_dwordx4 {vr(K,4)}, v{VL16}, {WS}, s{S_OO} offen {SC}
s_waitcnt vmcnt(0)
s_branch {bk}""")

OFA, OFD = 6, 7
def o_signal(e):
    l = e.newlabel("os")
    e(f"s_cbranch_vccz {l}\ns_mov_b64 exec, 0xffff\nbuffer_store_dword v{OFD}, v{OFA}, {WS}, 0 offen {SC}\ns_mov_b64 exec, -1")
    e.label(l)

def o_flag(e):
    e.stamp("xc3")
    e(f"s_cmp_eq_u32 s{S_W}, 0\ns_cselect_b64 vcc, -1, 0")
    e.wvm("os"); e.stamp("xc4"); e("s_barrier")
    o_signal(e)

def tail(e, nq, fq):
    T = G
    SUM = 232
    RB = 64
    OBR = [96 + 4 * k for k in range(7)] + [36]
    AD = 248
    for f in fq: f()
    for n in range(nq, 56):
        q, k = n // 4, n % 4
        if k == 0 and q + NB - 1 < 14:
            for f in f_loads(e, q + NB - 1): f()
        e.wvm(f"f{q}"); e(f_mfma(q, k))
    e(f"""s_lshl_b32 s6, s{S_W}, 13
s_add_u32 s6, s6, {RING}
v_add_u32 v{AD+6}, s6, v{VL16}
v_xor_b32 v{AD+7}, 8192, v{AD+6}""")
    if nq < 56: e("s_nop 8")
    setup = Side(e)
    setup.add(f"""s_lshr_b32 s6, s{S_J}, 3
s_lshl_b32 s7, s{S_RB}, 1
s_add_u32 s6, s6, s7
s_and_b32 s{S_B}, s{S_W}, 1
s_lshl_b32 s{S_C}, s6, 1
s_add_u32 s{S_C}, s{S_C}, s{S_B}
s_mul_i32 s{S_C}, s{S_C}, 144
s_lshr_b32 s{S_A}, s{S_W}, 1
s_lshl_b32 s{S_D}, s{S_A}, 3
s_add_u32 s{S_D}, s{S_D}, 112
s_add_u32 s{S_C}, s{S_C}, s{S_D}
s_lshl_b32 s{S_C}, s{S_C}, 10
s_and_b32 s7, s{S_J}, 7
s_add_u32 s{S_D}, s{S_C}, 4096
s_lshl_b32 s{S_A}, s{S_A}, 14
s_lshl_b32 s{S_B}, s{S_B}, 13
s_add_u32 s{S_G}, s{S_A}, s{S_B}
s_add_u32 s{S_G}, s{S_G}, {RING}
v_and_b32 v{T}, 31, v0
v_lshrrev_b32 v{T+1}, 5, v0
v_and_b32 v{T+2}, 7, v0
v_xor_b32 v{T+1}, v{T+1}, v{T+2}
v_lshlrev_b32 v{T+1}, 4, v{T+1}
v_lshl_add_u32 v{T}, v{T}, 8, v{T+1}
v_add_u32 v{AD}, s{S_G}, v{T}
v_xor_b32 v{AD+1}, 32, v{AD}
v_xor_b32 v{AD+2}, 64, v{AD}
v_xor_b32 v{AD+3}, 96, v{AD}
s_lshl_b32 s6, s6, 6
s_lshl_b32 s{S_B}, s{S_W}, 3
s_add_u32 s6, s6, s{S_B}
v_lshrrev_b32 v{T}, 3, v0
v_add_u32 v{T+1}, s6, v{T}
v_mul_u32_u24 v{T+1}, 896, v{T+1}
v_lshl_add_u32 v{T+1}, v{T+2}, 4, v{T+1}
s_lshl_b32 s7, s7, 7
v_add_u32 v{VO}, s7, v{T+1}
v_lshlrev_b32 v{T+2}, 1, v{T+2}
v_xor_b32 v{T+2}, v{T+2}, v{T}
v_lshlrev_b32 v{T+2}, 4, v{T+2}
v_lshl_add_u32 v{T}, v{T}, 8, v{T+2}
s_lshl_b32 s6, s{S_W}, 11
s_add_u32 s6, s6, {RING}
v_add_u32 v{AD+4}, s6, v{T}
v_xor_b32 v{AD+5}, 16, v{AD+4}
v_add_u32 v{T+2}, {3 * RING}, v{T+3}""")
    e(f"s_lshr_b32 s6, s{S_W}, 1\ns_lshl_b32 s6, s6, 13\nv_add_u32 v{T+3}, s6, v{VL16}\ns_nop 0")
    oaq = [(lambda k=k: e.ds(f"ds_read_b128 {vr(OAREG[k],4)}, v{T+2 if k < 8 else T+3} offset:{(k & 7) * 1024}", "oar")) for k in range(16)]
    nw1 = P("NW1", 2)
    def oflag():
        e.stamp("xc3")
        e(f"s_cmp_eq_u32 s{S_W}, 0\ns_cselect_b64 vcc, -1, 0")
        e.wvm("os")
        if nw1 == 8: e.all_ds()
        e.stamp("xc4"); e("s_barrier")
        o_signal(e)
    for q in range(8):
        if q == nw1: oflag()
        e.ds(f"ds_write_b128 v{AD+6}, {vr(FA+32+4*q,4)} offset:{q*1024}")
        setup.emit(6)
    setup.flush()
    if nw1 == 8: oflag()
    if not P('OAL', 1):
        for f in oaq: f()
    e.vm(f"buffer_load_dwordx4 {vr(XRES,4)}, v{VO}, s[{SRD_X}:{SRD_X+3}], 0 offen", "xr")
    if nw1 < 8: e.all_ds(); e("s_barrier")
    for q in range(8): e.ds(f"ds_read_b128 {vr(RB+4*q,4)}, v{AD+7} offset:{q*1024}", f"p{q}")
    def olook():
        poll_issue(e, f"""s_lshl_b32 s6, s{S_RB}, 4
s_add_u32 s6, s6, s{S_J}
s_lshl_b32 s6, s6, 7
s_add_u32 s6, s6, {F_O2}
v_and_b32 v{T}, 15, v0
v_lshl_add_u32 v{T}, v{T}, 2, s6""", T, T + 1, "op")
    if P('OLATE', 1) == 0: olook()
    srd(e, SRD_OUT, P_OUT, 2048 * 896)
    for q in range(8):
        e.wds(f"p{q}")
        for k in range(4): e(f"v_add_f32 v{FA+4*q+k}, v{FA+4*q+k}, v{RB+4*q+k}")
    if P('OLATE', 1) == 2:
        for f in oaq: f()
        oaq = []
    if P('OLATE', 1): olook()
    e.stamp("t1")
    poll_check(e, T, T + 1, "op", P("OSLEEP", 1))
    e("s_barrier")
    e.stamp("t2")
    for k in range(8):
        e.vm(f"buffer_load_dwordx4 {vr(OBR[k],4)}, v{VL16}, {WS}, s{S_C if k < 4 else S_D} offen offset:{(k&3)*1024} {SC}", f"ob{k}")
    if P('OAL', 1):
        for f in oaq: f()
        e.all_ds()
    e.wvm("xr")
    for k in range(4): e(f"v_lshlrev_b32 v{SUM+2*k}, 16, v{XRES+k}\nv_and_b32 v{SUM+1+2*k}, s{S_MASK}, v{XRES+k}")
    for k in range(8):
        e.wvm(f"ob{k}")
        for d2 in range(2): e(mfma(FA + 16*d2, OAREG[2*k + d2], OBR[k]))
    e("s_nop 10")
    e.stamp("t3")
    for d2 in range(2):
        for q in range(4): e.ds(f"ds_write_b128 v{AD+q}, {vr(FA+16*d2+4*q,4)} offset:{d2*128}")
    e.all_ds()
    e("s_barrier")
    for p in range(4):
        e.ds(f"ds_read_b128 {vr(RB+8*p,4)}, v{AD+4} offset:{p*16384}", f"s{p}")
        e.ds(f"ds_read_b128 {vr(RB+8*p+4,4)}, v{AD+5} offset:{p*16384}", f"s{p}")
    for p in range(4):
        e.wds(f"s{p}")
        for k in range(8): e(f"v_add_f32 v{SUM+k}, v{SUM+k}, v{RB+8*p+k}")
    for k in range(4): e(f"v_cvt_pk_bf16_f32 v{XRES+k}, v{SUM+2*k}, v{SUM+1+2*k}")
    e.vm(f"buffer_store_dwordx4 {vr(XRES,4)}, v{VO}, s[{SRD_OUT}:{SRD_OUT+3}], 0 offen {os.environ.get('OUTF', '')}")

DOC = """;
;            one extra MFMA, 1/std folded into the GELU constants); h, q, k, v and the transposed down / output
;  tail    : o of the 16 heads, output projection, cross-wave reduction, residual, store
"""
def build():
    e = Em()
    kn = NAME + "_kernel"
    e.a.raw(f".globl {kn}\n.p2align 8\n.type {kn},@function")
    e.label(kn)
    prologue(e)
    gelu, h_off = phaseB(e)
    attn_setup(e, gelu, h_off)
    e(f"s_and_b32 s6, s{S_J}, 7\ns_cmp_eq_u32 s6, 7\ns_cbranch_scc1 C_noF")
    sn = e.snap(); ns = e.nst
    nq, fq = attn_loop(e, True)
    attn_finish(e, True)
    tail(e, nq, fq)
    nend = e.nst
    e("s_branch K_fin")
    e.label("C_noF")
    e.restore(sn); e.nst = ns
    attn_loop(e, False)
    attn_finish(e)
    o_flag(e)
    e(f"""s_cmp_eq_u32 s{S_RB}, 0
s_cbranch_scc0 C_noF_done
s_cmp_eq_u32 s{S_J}, 7
s_cbranch_scc0 C_noF_done
s_cmp_eq_u32 s{S_W}, 0
s_cbranch_scc0 C_noF_done""")
    for k in range(4):
        e(f"""v_lshrrev_b32 v{G}, 4, v0
v_and_b32 v{G+1}, 15, v0
v_lshlrev_b32 v{G}, 7, v{G}
v_lshl_add_u32 v{G}, v{G+1}, 2, v{G}
v_add_u32 v{G}, {F_H + 512*k}, v{G}""")
        e(f"buffer_load_dword v{G+1}, v{G}, {WS}, 0 offen {SC}"); e.mark[f"ep{k}"] = len(e.q['vm'])
        poll_check(e, G, G + 1, f"ep{k}")
    e(f"v_mov_b32 v{G}, {EPO}\nv_mov_b32 v{G+1}, s{S_NON}\ns_mov_b64 exec, 1\nbuffer_store_dword v{G+1}, v{G}, {WS}, 0 offen {SC}\ns_mov_b64 exec, -1")
    e.label("C_noF_done")
    while e.nst < nend and not STAMPS_OFF: e.stamp()
    e.label("K_fin")
    if os.environ.get("AMPAT"):
        e("""s_waitcnt vmcnt(0)
s_memrealtime s[92:93]
s_waitcnt lgkmcnt(0)
s_sub_u32 s7, s94, s96
s_mul_i32 s7, s7, 10
K_amp:
s_sleep 1
s_memrealtime s[98:99]
s_waitcnt lgkmcnt(0)
s_sub_u32 s6, s98, s92
s_cmp_lt_u32 s6, s7
s_cbranch_scc1 K_amp""")
    if 'stdiag' in X:
        e("""s_memtime s[92:93]
s_waitcnt lgkmcnt(0)
K_sd:
s_sleep 2
s_memtime s[90:91]
s_waitcnt lgkmcnt(0)
s_sub_u32 s6, s90, s92
s_cmp_lt_u32 s6, s94
s_cbranch_scc1 K_sd""")
    if 'fix' in X:
        e("""K_fx:
s_sleep 1
s_memrealtime s[98:99]
s_waitcnt lgkmcnt(0)
s_sub_u32 s6, s98, s96
s_cmp_lt_u32 s6, 10000
s_cbranch_scc1 K_fx""")
    if 'amp' in X:
        e("""s_waitcnt vmcnt(0)
s_memrealtime s[98:99]
s_waitcnt lgkmcnt(0)
s_sub_u32 s7, s98, s96
s_mul_i32 s7, s7, 10
K_fx:
s_sleep 1
s_memrealtime s[98:99]
s_waitcnt lgkmcnt(0)
s_sub_u32 s6, s98, s96
s_cmp_lt_u32 s6, s7
s_cbranch_scc1 K_fx""")
    if STAMPS:
        e.stamp()
        e.label("K_fin2")
        e("s_memrealtime s[98:99]\ns_waitcnt lgkmcnt(0) vmcnt(0)")
        e(f"""s_mov_b32 s40, s{P_WS}
s_mov_b32 s41, s{P_WS+1}
s_mov_b32 s42, 0x10000000
s_mov_b32 s43, 0x00020000
s_lshl_b32 s6, s2, 3
s_add_u32 s6, s6, s{S_W}
s_lshl_b32 s6, s6, 6
s_add_u32 s6, s6, {STAMP_WS}
v_mov_b32 v2, s96
v_mov_b32 v3, s98""")
        for k in range(10): e(f"v_mov_b32 v{4+k}, {'s%d' % (76+2*k) if k < e.nst else 0}")
        e("v_mov_b32 v1, 0\ns_mov_b64 exec, 1")
        for q in range(3): e(f"buffer_store_dwordx4 v[{2+4*q}:{5+4*q}], v1, s[40:43], s6 offen offset:{16*q}")
    e("s_endpgm")
    for fb, bk in FALLBACKS: fallback(e, fb, bk)
    e.label("K_end")
    e("s_endpgm")
    probs = check_hazards(e.a.lines, "k")
    hdr = open("cdna_kernels/" + NAME + ".s.ref").read().split("; Override launch")[0]
    out = hdr + f"; @launch grid=(256,1,1) block=(512,1,1) lds={LDS_BYTES}\n"
    out += DOC + '.amdgcn_target "amdgcn-amd-amdhsa--gfx950"\n.text\n' + e.a.text()
    out += f""".section .rodata,"a"
.p2align 6
.amdhsa_kernel {kn}
  .amdhsa_next_free_vgpr 256
  .amdhsa_next_free_sgpr 102
  .amdhsa_accum_offset 256
  .amdhsa_group_segment_fixed_size 0
  .amdhsa_kernarg_size 96
  .amdhsa_user_sgpr_count 2
  .amdhsa_user_sgpr_kernarg_segment_ptr 1
  .amdhsa_system_sgpr_workgroup_id_x 1
  .amdhsa_float_denorm_mode_32 3
.end_amdhsa_kernel
"""
    return out, probs

if __name__ == "__main__":
    out, probs = build()
    for p in probs: print("HAZARD", p, file=sys.stderr)
    open(sys.argv[1] if len(sys.argv) > 1 else "cdna_kernels/" + NAME + ".s", "w").write(out)
```

```python
import sys, os, math, struct
from asmlib import *
X = set(os.environ.get('XFLAGS', '').split(','))
def P(name, default): return int(os.environ.get(name, default))
NAME = "parallel_sum__grouped_kv_mqa__glu_gated_geglu__prompt"
def f2u(x): return struct.unpack("<I", struct.pack("<f", x))[0]

A2F = 0
W2T = 64 * 144 * 1024
QF  = W2T + 7 * 144 * 2048
KVF = QF + 64 * 16 * 2048
FLG = KVF + 64 * 4096
RKV = P("RKV", 16)
F_W  = FLG
F_H  = FLG + 2048
F_O  = FLG + 4096
EPO  = FLG + 6144
F_Q  = FLG + 4096
SPLITQ = P('SPLITQ', 0)
F_KV = FLG + 8192
F_O2 = F_KV + 256 * RKV
STAT = F_O2 + 32768
WS_END = STAT + 2048 * 8
OOB = 0x7ffffff0
P_X, P_WQ, P_WK, P_WV, P_WO, P_BX, P_WG, P_WU, P_WD, P_OUT, P_DBG, P_WS = 8, 10, 12, 14, 16, 18, 20, 22, 24, 26, 28, 30
SRD_X, SRD_WS, SRD_T, SRD_PC = 32, 36, 40, 44
SRD_OUT = SRD_T
S_W, S_RB, S_J = 3, 4, 5
(S_WB, S_MASK, S_XO, S_XO2, S_RT, S_CG, S_MUL, S_T0, S_T1, S_U, S_NON, S_LA, S_LB, S_TO, S_QU) = range(48, 63)
S_HI = 64
S_A, S_B, S_C, S_D, S_E, S_F = 66, 67, 68, 69, 70, 71
S_G, S_H2 = 72, 73
S_CNT = 74
WS = f"s[{SRD_WS}:{SRD_WS+3}]"
SC = "sc1"
STAMPS = bool(os.environ.get("STAMPS"))
STAMP_WS = 200 * 1024 * 1024
SPIN_MAX = 1 << 21
STAMPS_OFF = False

class Em:
    def __init__(s):
        s.a = Asm(); s.q = {'ds': [], 'vm': []}; s.done = {'ds': 0, 'vm': 0}; s.nst = 0; s.uid = 0; s.mark = {}
    def __call__(s, t): s.a(t)
    def label(s, l): s.a.label(l)
    def ds(s, ins, tag=None): s.a(ins); s.q['ds'].append(tag)
    def vm(s, ins, tag=None): s.a(ins); s.q['vm'].append(tag)
    def _n(s, k, tags, cap):
        idx = -1
        for t in tags:
            ii = [i for i, x in enumerate(s.q[k]) if x == t]
            if not ii and 'nodma' in X: continue
            assert ii, f"tag {t} never issued"
            idx = max(idx, ii[-1])
        if idx < s.done[k]: return None
        n = min(len(s.q[k]) - 1 - idx, cap)
        s.done[k] = len(s.q[k]) - n
        return n
    def wds(s, *tags):
        n = s._n('ds', tags, 15)
        if n is not None: s.a(f"s_waitcnt lgkmcnt({n})")
    def wvm(s, *tags):
        n = s._n('vm', tags, 63)
        if n is not None: s.a(f"s_waitcnt vmcnt({n})")
    def wboth(s, *tags):
        n = s._n('vm', tags, 63)
        s.a("s_waitcnt lgkmcnt(0)" if n is None else f"s_waitcnt vmcnt({n}) lgkmcnt(0)"); s.done['ds'] = len(s.q['ds'])
    def all_ds(s): s.a("s_waitcnt lgkmcnt(0)"); s.done['ds'] = len(s.q['ds'])
    def all_vm(s): s.a("s_waitcnt vmcnt(0)"); s.done['vm'] = len(s.q['vm'])
    def snap(s): return ({k: list(v) for k, v in s.q.items()}, dict(s.done))
    def restore(s, sn): s.q = {k: list(v) for k, v in sn[0].items()}; s.done = dict(sn[1])
    def stamp(s, name=None):
        if name is not None and name == os.environ.get("IDLEAT"): s.a("s_sleep 32")
        if name is not None and name == os.environ.get("AMPAT"):
            s.a("s_memrealtime s[94:95]"); s.all_ds()
        sel = os.environ.get("STSEL")
        if sel is not None and name is not None and name not in sel.split(","): return
        if sel is None and name is not None and name.startswith("x"): return
        if STAMPS and not STAMPS_OFF:
            assert s.nst < 10
            s.a(f"{'s_memrealtime' if os.environ.get('RT') else 's_memtime'} s[{76+2*s.nst}:{77+2*s.nst}]"); s.nst += 1
            s.all_ds()
    def newlabel(s, p): s.uid += 1; return f"{p}_{s.uid}"

def srd(e, d, p, nbytes):
    e(f"s_mov_b32 s{d}, s{p}\ns_mov_b32 s{d+1}, s{p+1}\ns_mov_b32 s{d+2}, {nbytes}\ns_mov_b32 s{d+3}, 0x00020000")
def mfma(d, A, B, C=None):
    return f"v_mfma_f32_32x32x16_bf16 {vr(d,16)}, {vr(A,4)}, {vr(B,4)}, {vr(d,16) if C is None else C}"
def mfma16(d, A, B, C=None):
    return f"v_mfma_f32_16x16x32_bf16 {vr(d,4)}, {vr(A,4)}, {vr(B,4)}, {vr(d,4) if C is None else C}"

class Side:
    def __init__(s, e): s.e = e; s.q = []
    def add(s, items):
        if isinstance(items, str):
            raw = [l.strip() for l in items.strip().split("\n") if l.strip()]
            items = []
            for l in raw:
                if l.startswith("s_cselect"): items[-1] += "\n" + l
                else: items.append(l)
        s.q += list(items)
    def emit(s, n):
        while n > 0 and s.q:
            it = s.q.pop(0)
            if callable(it): it()
            else: s.e(it)
            n -= 1
    def flush(s): s.emit(1 << 30)

def flag_store(e, addr_lines, nlanes, vt):
    l = e.newlabel("fl")
    e(f"s_cmp_eq_u32 s{S_W}, 0\ns_cbranch_scc0 {l}")
    e(addr_lines)
    e(f"v_mov_b32 v{vt+1}, s{S_NON}\ns_mov_b64 exec, {(1 << nlanes) - 1}\nbuffer_store_dword v{vt+1}, v{vt}, {WS}, 0 offen {SC}\ns_mov_b64 exec, -1")
    e.label(l)

def poll_issue(e, addr_lines, vaddr, vdat, tag):
    l = e.newlabel("pi")
    e(f"s_cmp_eq_u32 s{S_W}, 0\ns_cbranch_scc0 {l}")
    e(addr_lines)
    e(f"buffer_load_dword v{vdat}, v{vaddr}, {WS}, 0 offen {SC}")
    e.label(l)
    e.mark[tag] = len(e.q['vm'])

def poll_check(e, vaddr, vdat, tag, sleep=None):
    ok = e.newlabel("pok"); sp = e.newlabel("psp")
    e(f"s_cmp_eq_u32 s{S_W}, 0\ns_cbranch_scc0 {ok}")
    e(f"s_waitcnt vmcnt({min(63, len(e.q['vm']) - e.mark[tag])})")
    e(f"v_cmp_ne_u32 vcc, s{S_NON}, v{vdat}\ns_cbranch_vccz {ok}\ns_mov_b32 s{S_CNT}, {SPIN_MAX}")
    e.label(sp)
    e(f"""s_sleep {P('SLEEP', 4) if sleep is None else sleep}
buffer_load_dword v{vdat}, v{vaddr}, {WS}, 0 offen {SC}
s_sub_u32 s{S_CNT}, s{S_CNT}, 1
s_waitcnt vmcnt(0)
v_cmp_ne_u32 vcc, s{S_NON}, v{vdat}
s_cmp_eq_u32 s{S_CNT}, 0
s_cbranch_scc1 {ok}
s_cbranch_vccnz {sp}""")
    if 'spincnt' in X and tag in SPINIDX: e(f"s_sub_u32 s{78 + 2 * SPINIDX[tag]}, {SPIN_MAX + 1000}, s{S_CNT}")
    e.label(ok)
SPINIDX = {'kvp': 0, 'hp': 1, 'hb': 2, 'wo': 3, 'op': 4}

RING = 32768
L_W2T = 131072
L_CSA = L_W2T + 8192
L_CSB = L_CSA + 2048
L_ST  = L_CSB + 2048
L_KVB = L_ST + 4096
L_FLG = L_KVB + 4096
LDS_BYTES = L_FLG + 256

VL16, VT, VX, GA, GS = 1, 2, 3, 4, 6
XA, WA = 8, 12
ST, SEL, CSA, WF, TM = 20, 24, 28, 36, 60
ACCA, ACCB, XR, G = 64, 96, 128, 240
SQA, SQB, TP = 60, 240, 248
WB, GB, PL = 250, 102, 252
R_, S_, AC, BC, I2 = 8, 9, 10, 11, 3
BEXT = 60


TA, TS, TX, TD = 96, 98, 99, 100
S_ISQ, S_SH = 63, 75
RW = 104
def w_source(row, c, dst, gs, t0):
    return f"""v_cmp_le_u32 vcc, s{S_A}, v{c}
v_mul_lo_u32 v{dst}, v{row}, s{S_B}
v_lshl_add_u32 v{dst}, v{c}, 4, v{dst}
v_add_u32 v{dst}, s{S_C}, v{dst}
v_subrev_u32 v{c}, s{S_A}, v{c}
v_lshlrev_b32 v{c}, s{S_G}, v{c}
v_mul_lo_u32 v{t0}, v{row}, s{S_D}
v_add3_u32 v{t0}, v{t0}, v{c}, s{S_H2}
v_cndmask_b32 v{dst}, v{dst}, v{t0}, vcc
v_mov_b32 v{gs}, s{S_B}
v_mov_b32 v{t0}, s{S_D}
v_cndmask_b32 v{gs}, v{gs}, v{t0}, vcc
v_lshlrev_b32 v{gs}, 5, v{gs}"""

ROTS = {0: [0]*8, 1: [0, 3, 2, 5, 4, 0, 6, 2], 2: [0, 3, 3, 0, 0, 3, 3, 0], 3: [0, 1, 2, 3, 4, 5, 6, 0], 4: [0, 4, 1, 5, 2, 6, 3, 0]}
ROTTAB = sum(v << (4 * i) for i, v in enumerate(ROTS[P("ROT", 0)]))
S_ROT = 47
S_WF = 46
RPAR, RBIT = P("RPAR", 0), P("RBIT", 0)
RPARCODE = "" if not RPAR else f"""
s_lshr_b32 s{S_F}, s2, 3
s_lshr_b32 s{S_T0}, s2, 6
s_xor_b32 s{S_F}, s{S_F}, s{S_T0}
s_and_b32 s{S_F}, s{S_F}, {RBIT or 1}
s_mul_i32 s{S_F}, s{S_F}, {RPAR}
s_add_u32 s{S_XO}, s{S_XO}, s{S_F}
s_cmp_ge_u32 s{S_XO}, 7
s_cselect_b32 s{S_F}, 7, 0
s_sub_u32 s{S_XO}, s{S_XO}, s{S_F}"""
def prologue(e):
    T = TM
    ROTCODE = f"""s_and_b32 s{S_XO}, s2, 7
s_lshl_b32 s{S_XO}, s{S_XO}, 2
s_lshr_b32 s{S_XO}, {ROTTAB:#x}, s{S_XO}
s_and_b32 s{S_XO}, s{S_XO}, 7{RPARCODE}
s_mov_b32 s{S_ROT}, s{S_XO}
s_lshl_b32 s{S_F}, s{S_XO}, 6
s_lshl_b32 s{S_XO}, s{S_XO}, 7
v_add_u32 v{T+2}, s{S_F}, v{T+2}
""" if any(ROTS[P('ROT', 0)]) or RPAR else f"s_mov_b32 s{S_ROT}, 0\n"
    e(f"s_cmp_ge_u32 s2, 256\ns_cbranch_scc1 K_end")
    if STAMPS or 'fix' in X or 'amp' in X or os.environ.get("AMPAT"): e("s_memrealtime s[96:97]")
    e.stamp()
    if 'spincnt' in X:
        for k in range(6): e(f"s_movk_i32 s{78 + 2*k}, 1000")
        e.nst = 7
    e("s_load_dwordx16 s[8:23], s[0:1], 0\ns_load_dwordx8 s[24:31], s[0:1], 64")
    e(f"s_getpc_b64 s[{SRD_PC}:{SRD_PC+1}]")
    e.label("K_pc")
    e(f"""s_mov_b32 s{SRD_PC+2}, K_end-K_pc
s_mov_b32 s{SRD_PC+3}, 0x00020000""")
    if P("CPF", 1):
        e(f"s_lshr_b32 s6, s2, 3\ns_lshl_b32 s6, s6, 11\nv_lshrrev_b32 v1, 5, v0\nv_lshl_add_u32 v1, v1, 7, s6")
    else: e("v_lshlrev_b32 v1, 7, v0")
    e.vm(f"buffer_load_dword v{TD}, v1, s[{SRD_PC}:{SRD_PC+3}], 0 offen")
    T = TM
    e(f"""v_lshrrev_b32 v1, 6, v0
v_and_b32 v0, 63, v0
v_readfirstlane_b32 s{S_W}, v1
s_nop 1""")
    e(f"""s_lshl_b32 s{S_TG}, s2, 3
s_add_u32 s{S_TG}, s{S_TG}, s{S_W}
s_mul_i32 s6, s{S_TG}, 896
v_lshl_add_u32 v{TX}, v0, 4, s6
v_cmp_lt_u32 vcc, 55, v0
v_mov_b32 v{TX+2}, {OOB}
s_nop 0
v_cndmask_b32 v{TX}, v{TX}, v{TX+2}, vcc""")
    WT = f"""s_min_u32 s6, s{S_TG}, 1393
s_cmp_ge_u32 s6, 448
s_cselect_b32 s{SRD_T}, s{P_WU}, s{P_WG}
s_cselect_b32 s{SRD_T+1}, s{P_WU+1}, s{P_WG+1}
s_cselect_b32 s{S_A}, 448, 0
s_mov_b32 s{S_D}, {448*3584}
s_cmp_ge_u32 s6, 896
s_cselect_b32 s{SRD_T}, s{P_WQ}, s{SRD_T}
s_cselect_b32 s{SRD_T+1}, s{P_WQ+1}, s{SRD_T+1}
s_cselect_b32 s{S_A}, 896, s{S_A}
s_cselect_b32 s{S_B}, 6, 11
s_cselect_b32 s{S_C}, 7, 28
s_cselect_b32 s{S_D}, {448*896}, s{S_D}
s_cmp_ge_u32 s6, 1344
s_cselect_b32 s{SRD_T}, s{P_WK}, s{SRD_T}
s_cselect_b32 s{SRD_T+1}, s{P_WK+1}, s{SRD_T+1}
s_cselect_b32 s{S_A}, 1344, s{S_A}
s_cselect_b32 s{S_B}, 7, s{S_B}
s_cselect_b32 s{S_C}, 8, s{S_C}
s_cselect_b32 s{SRD_T+2}, {448*56}, s{S_D}
s_cmp_ge_u32 s6, 1369
s_cselect_b32 s{SRD_T}, s{P_WV}, s{SRD_T}
s_cselect_b32 s{SRD_T+1}, s{P_WV+1}, s{SRD_T+1}
s_cselect_b32 s{S_A}, 1369, s{S_A}
s_mov_b32 s{SRD_T+3}, 0x00020000
s_sub_u32 s6, s6, s{S_A}
s_mul_i32 s6, s6, s{S_C}
v_min_u32 v{TA}, s{S_B}, v0
v_add_u32 v{TA}, s6, v{TA}
v_lshlrev_b32 v{TA}, 7, v{TA}"""
    e(f"""
s_bfe_u32 s{S_RB}, s2, 0x20001
s_lshl_b32 s{S_RB}, s{S_RB}, 2
s_lshr_b32 s6, s2, 6
s_add_u32 s{S_RB}, s{S_RB}, s6
s_and_b32 s{S_J}, s2, 1
s_lshl_b32 s{S_J}, s{S_J}, 3
s_bfe_u32 s7, s2, 0x30003
s_add_u32 s{S_J}, s{S_J}, s7
s_lshr_b32 s{S_QU}, s{S_J}, 2
s_sub_u32 s{S_LA}, s{S_J}, s{S_QU}
s_lshl_b32 s{S_WB}, s{S_W}, 10
s_lshl_b32 s{S_C}, s{S_LA}, 7
s_mul_i32 s{S_E}, s{S_QU}, 224
s_and_b32 s{S_F}, s{S_QU}, 1
s_sub_u32 s{S_G}, 4, s{S_F}
s_lshl_b32 s{S_F}, s{S_F}, 5
s_movk_i32 s{S_D}, 3584
s_and_b32 s{S_ISQ}, s{S_J}, 3
s_cmp_eq_u32 s{S_ISQ}, 3
s_cselect_b32 s{S_ISQ}, 1, 0
s_cselect_b32 s{S_A}, 14, 8
s_cselect_b32 s{S_B}, 896, s{S_D}
s_cselect_b32 s{S_D}, 56, s{S_D}
s_cselect_b32 s{S_H2}, s{S_F}, s{S_C}
s_cselect_b32 s{S_C}, s{S_E}, s{S_C}
s_cselect_b32 s{S_G}, s{S_G}, 4
s_add_u32 s{S_SH}, s{S_ISQ}, 1
s_lshl_b32 s{S_E}, s{S_RB}, 7
s_lshl_b32 s{S_F}, s{S_W}, 3
s_add_u32 s{S_F}, s{S_F}, s{S_E}
v_lshrrev_b32 v{T}, 3, v0
v_add_u32 v{T}, s{S_F}, v{T}
v_mul_u32_u24 v{T}, 896, v{T}
s_lshl_b32 s{S_F}, s{S_W}, 2
v_lshrrev_b32 v{T+1}, 4, v0
v_add_u32 v{T+2}, s{S_F}, v{T+1}
v_xor_b32 v{T+3}, v{T+2}, v0
v_and_b32 v{T+3}, 7, v{T+3}
v_lshl_add_u32 v{VX}, v{T+3}, 4, v{T}
{ROTCODE}v_lshlrev_b32 v{T+1}, s{S_SH}, v{T+1}
v_xor_b32 v{T+1}, v{T+1}, v0
v_and_b32 v{T+1}, 15, v{T+1}""")
    e(w_source(T + 2, T + 1, G, GS, T))
    e(f"s_mov_b64 s[{S_HI}:{S_HI+1}], vcc")
    if TOUCH:
        e(f"""s_and_b32 s6, s6, 3
s_lshl_b32 s6, s6, 3
s_add_u32 s6, s6, s{S_W}
s_lshl_b32 s6, s6, 1
s_lshl_b32 s7, s7, 3
s_add_u32 s7, s7, s{S_W}
s_lshl_b32 s7, s7, 1
s_add_u32 s7, s7, s{S_E}
v_bfe_u32 v{T+2}, v0, 3, 1
v_bfe_u32 v{T+1}, v0, 2, 1
v_lshl_add_u32 v{T+2}, v{T+2}, 6, v{T+1}
v_add_u32 v{T+2}, s6, v{T+2}
v_and_b32 v{T+1}, 3, v0
v_lshlrev_b32 v{T+1}, 2, v{T+1}
v_lshrrev_b32 v{T+1}, v{T+1}, s{S_MASK}
v_and_b32 v{T+1}, 15, v{T+1}
v_and_b32 v{T}, 1, v0
v_add_u32 v{T}, s7, v{T}
v_mul_u32_u24 v{TX}, 896, v{T}
v_bfe_u32 v{T}, v0, 1, 1
v_lshl_add_u32 v{TX}, v{T}, 7, v{TX}""".replace(f"v_lshrrev_b32 v{T+1}, v{T+1}, s{S_MASK}", f"s_movk_i32 s6, 0xed80\nv_lshrrev_b32 v{T+1}, v{T+1}, s6"))
        e(w_source(T + 2, T + 1, G + 1, TS, T))
    e("s_waitcnt lgkmcnt(0)")
    e.stamp("xs0")
    if 'stdiag' in X:
        e(f"""s_mov_b32 s40, s{P_WS}
s_mov_b32 s41, s{P_WS+1}
s_mov_b32 s42, 0x10000000
s_mov_b32 s43, 0x00020000
s_lshl_b32 s90, s2, 3
s_add_u32 s90, s90, s{S_W}
s_lshl_b32 s90, s90, 10
s_add_u32 s90, s90, {P('DOFF', 100) * 1024 * 1024}
v_lshlrev_b32 v110, 4, v0
buffer_store_dwordx4 v[112:115], v110, s[40:43], s90 offen sc1
s_waitcnt vmcnt(0)
s_add_u32 s90, s90, 0x200000
s_barrier
s_memtime s[92:93]
s_waitcnt lgkmcnt(0)
buffer_store_dwordx4 v[112:115], v110, s[40:43], s90 offen sc1
s_waitcnt vmcnt(0)
s_barrier
s_memtime s[94:95]
s_waitcnt lgkmcnt(0)
s_sub_u32 s94, s94, s92
s_mul_i32 s94, s94, 100""")
    srd(e, SRD_X, P_X, 2048 * 896)
    if GT:
        if not P("ROWL", 0): e.vm(f"buffer_load_dwordx4 {vr(RW,4)}, v{TX}, s[{SRD_X}:{SRD_X+3}], 0 offen", "row")
        if GT & 2 and not P("PRO", 1): e.vm(f"buffer_load_dword v{TD}, v{TA}, s[{SRD_T}:{SRD_T+3}], {'s%d' % S_TS if P('GTS', 0) else 0} offen", "t")
        if P("GTW", 0): e.wvm("row")
    if P("XE", 1): dma_x(e, 0, 0)(); dma_x(e, 0, 1)()
    if P("PRO", 1) == 2:
        e(WT); e.vm(f"buffer_load_dword v{TD}, v{TA}, s[{SRD_T}:{SRD_T+3}], 0 offen", "t")
    e(f"""s_cmp_lt_u32 s{S_QU}, 2
s_cselect_b32 s{S_C}, s{P_WK}, s{P_WV}
s_cselect_b32 s{S_D}, s{P_WK+1}, s{P_WV+1}
s_cmp_eq_u32 s{S_ISQ}, 1
s_cselect_b32 s{S_A}, s{P_WQ}, s{P_WG}
s_cselect_b32 s{S_B}, s{P_WQ+1}, s{P_WG+1}
s_cselect_b32 s{S_C}, s{S_C}, s{P_WU}
s_cselect_b32 s{S_D}, s{S_D}, s{P_WU+1}
v_mov_b32 v{T}, s{S_A}
v_mov_b32 v{T+1}, s{S_B}
v_mov_b32 v{T+2}, s{S_C}
v_mov_b32 v{T+3}, s{S_D}""")
    if TOUCH:
        e(f"""v_cndmask_b32 v{TA}, v{T}, v{T+2}, vcc
v_cndmask_b32 v{TA+1}, v{T+1}, v{T+3}, vcc
v_add_co_u32 v{TA}, vcc, v{TA}, v{G+1}
v_cndmask_b32 v{GA}, v{T}, v{T+2}, s[{S_HI}:{S_HI+1}]
v_cndmask_b32 v{GA+1}, v{T+1}, v{T+3}, s[{S_HI}:{S_HI+1}]
v_addc_co_u32 v{TA+1}, vcc, 0, v{TA+1}, vcc""")
        touch(e, 0)()
    else:
        e(f"""v_cndmask_b32 v{GA}, v{T}, v{T+2}, s[{S_HI}:{S_HI+1}]
v_cndmask_b32 v{GA+1}, v{T+1}, v{T+3}, s[{S_HI}:{S_HI+1}]""")
    e(f"v_add_co_u32 v{GA}, vcc, v{GA}, v{G}\nv_mov_b32 v{GS+1}, 0")
    if 'gonly' in X: e.all_vm(); e.stamp()
    if not P("XE", 1): dma_x(e, 0, 0)()
    else: e("s_nop 0")
    e(f"v_addc_co_u32 v{GA+1}, vcc, 0, v{GA+1}, vcc")
    e.WT = WT

TOUCH = P("TOUCH", 0)
GT = P("GT", 3)
ROT = P("ROT", 0)
LDX = os.environ.get("LDX", ""); LDW = os.environ.get("LDW", ""); LDT = os.environ.get("LDT", "")
def touch(e, k):
    def f():
        st = (0, 2, 4, 5)[k]
        e.vm(f"global_load_dword v{TD}, {vr(TA,2)}, off", f"t{k}")
        e(f"s_movk_i32 s{S_XO2}, {st * 128}")
        e.vm(f"buffer_load_dword v{TD}, v{TX}, s[{SRD_X}:{SRD_X+3}], s{S_XO2} offen", f"t{k}")
        if k < 3: e(f"v_mad_u64_u32 {vr(TA,2)}, s[{S_E}:{S_E+1}], v{TS}, {4 if k < 2 else 2}, {vr(TA,2)}")
    return f
S_TG, S_TS = 61, 57
def gtouch(e, st):
    def f():
        e(f"s_mul_i32 s{S_XO2}, s{S_TS}, {st}")
        e.vm(f"buffer_load_dword v{TD}, v{TA}, s[{SRD_PC}:{SRD_PC+3}], s{S_XO2} offen {LDT}", "t")
        e(f"s_movk_i32 s{S_XO2}, {st * 128}")
        e.vm(f"buffer_load_dword v{TD}, v{TX}, s[{SRD_X}:{SRD_X+3}], s{S_XO2} offen {LDT}", "t")
    return f
def dma_x(e, sig, i):
    def f():
        e(f"s_add_u32 m0, s{S_WB}, {(sig % 4) * RING + i * 8192}")
        if i == 0: e("s_nop 0"); so = S_XO
        else: e(f"s_add_u32 s{S_XO2}, s{S_XO}, {64*896}"); so = S_XO2
        e.vm(f"buffer_load_dwordx4 v{VX}, s[{SRD_X}:{SRD_X+3}], s{so} offen {LDX} lds", f"d{sig}")
    return f
def dma_w(e, sig, off, i, first=False):
    def f():
        if i == 0 and not first:
            e(f"s_add_u32 s{S_XO}, s{S_XO}, 128\ns_cmp_eq_u32 s{S_XO}, 896\ns_cselect_b32 s{S_XO}, 0, s{S_XO}\ns_cselect_b32 s{S_MUL}, -13, 1")
        e(f"s_add_u32 m0, s{S_WB}, {(sig % 4) * RING + off + i * 8192}")
        if first == 2: e(f"s_add_u32 s{S_XO}, s{S_XO}, 128\ns_cmp_eq_u32 s{S_XO}, 896\ns_cselect_b32 s{S_XO}, 0, s{S_XO}")
        elif first: e("s_nop 0")
        elif i == 0: e(f"v_mad_i64_i32 {vr(GA,2)}, s[{S_E}:{S_E+1}], v{GS}, s{S_MUL}, {vr(GA,2)}")
        else: e(f"v_lshl_add_u64 {vr(GA,2)}, {vr(GS,2)}, 0, {vr(GA,2)}")
        e.vm(f"global_load_lds_dwordx4 {vr(GA,2)}, off {LDW}", f"d{sig}")
    return f
if not any(ROTS[P("ROT", 0)]) and not RPAR:
    def dma_x(e, sig, i):
        def f():
            e(f"s_add_u32 m0, s{S_WB}, {(sig % 4) * RING + i * 8192}\ns_mov_b32 s{S_XO}, {sig * 128 + i * 64 * 896}")
            e.vm(f"buffer_load_dwordx4 v{VX}, s[{SRD_X}:{SRD_X+3}], s{S_XO} offen {LDX} lds", f"d{sig}")
        return f
    def dma_w(e, sig, off, i, first=False):
        def f():
            e(f"s_add_u32 m0, s{S_WB}, {(sig % 4) * RING + off + i * 8192}")
            e("s_nop 0" if first else f"v_lshl_add_u64 {vr(GA,2)}, {vr(GS,2)}, 0, {vr(GA,2)}")
            e.vm(f"global_load_lds_dwordx4 {vr(GA,2)}, off {LDW}", f"d{sig}")
        return f
def stage_dmas(e, sig):
    if 'nodma' in X and 2 <= sig: return [(lambda: e.q['vm'].append(f'd{sig}') or e.q['vm'].pop() if False else None)] if False else [lambda: None]
    if sig == 0: return [dma_x(e, sig, 0), dma_w(e, sig, 16384, 0, True), dma_x(e, sig, 1), dma_w(e, sig, 16384, 1)]
    if sig < 7: return [dma_w(e, sig, 16384, 0), dma_x(e, sig, 0), dma_w(e, sig, 16384, 1), dma_x(e, sig, 1)]
    l = []
    if sig == 7: l.append(lambda: e(f"v_mov_b32 v{GA}, v{GB}\nv_mov_b32 v{GA+1}, v{GB+1}\nv_mov_b32 v{GS}, {32*3584}"))
    l += [dma_w(e, sig, 0, 0, 2 if sig == 7 else False), dma_w(e, sig, 0, 1)]
    if sig < 10: l += [dma_w(e, sig, 16384, 0), dma_w(e, sig, 16384, 1)]
    return l

def late_touch(e):
    if P('GTS', 0):
        e(f"s_xor_b32 s{S_TS}, s{S_TS}, {OOB}")
        e.vm(f"buffer_load_dword v{TD}, v{TA}, s[{SRD_T}:{SRD_T+3}], s{S_TS} offen", "t")

def phaseB(e):
    T = TM
    for f in (stage_dmas(e, 0)[1:] if not P('XE', 1) else stage_dmas(e, 0)[1::2]): f()
    if 'arr' in X:
        order = os.environ.get("ARR", "D1 D2 W0 D3 W1 D4 W2 D5 W3 D6 W4 W5 W6").split()
        for it in order:
            k = int(it[1:])
            if it[0] == 'D':
                for f in stage_dmas(e, k): f()
            elif it[0] == 'T': touch(e, k)()
            elif it[0] == 'G': gtouch(e, k)()
            elif it[0] == 'L': late_touch(e)
            elif it[0] == 'A': e.all_vm(); e.stamp()
            else: e.wvm(f"d{k}"); e("s_barrier"); e.stamp()
        srd(e, SRD_WS, P_WS, WS_END)
        e.stamp()
        e("s_branch K_fin2")
        global STAMPS_OFF; STAMPS_OFF = True
    if P("ROWL", 0): e.vm(f"buffer_load_dwordx4 {vr(RW,4)}, v{TX}, s[{SRD_X}:{SRD_X+3}], 0 offen", "row")
    e.stamp("xs2")
    if P("PRO", 1) == 1 and GT & 2:
        e(e.WT)
        e.vm(f"buffer_load_dword v{TD}, v{TA}, s[{SRD_T}:{SRD_T+3}], 0 offen", "t")
    e(f"s_mov_b32 s6, {EPO}\ns_load_dword s{S_NON}, s[{P_WS}:{P_WS+1}], s6")
    if TOUCH == 2: touch(e, 1)()
    PD1 = P("PD1", 1)
    if PD1 == 0:
        for f in stage_dmas(e, 1): f()
    if TOUCH == 1: touch(e, 1)()
    late_touch(e)
    e.stamp("xs3")
    e(f"""s_and_b32 s{S_RT}, s{S_W}, 3
s_lshr_b32 s{S_CG}, s{S_W}, 2
s_lshl_b32 s{S_T0}, s{S_CG}, 1
s_add_u32 s{S_T1}, s{S_T0}, 1
s_xor_b32 s{S_A}, s{S_RT}, s{S_CG}
s_mov_b32 s{S_MASK}, 0xffff0000
s_mov_b32 s{S_HI}, 0
s_mov_b32 s{S_HI+1}, -1
v_lshlrev_b32 v{VL16}, 4, v0
v_and_b32 v{T}, 31, v0
v_lshrrev_b32 v{T+1}, 5, v0
v_bfe_u32 v{T+2}, v0, 1, 3
v_xor_b32 v{T+2}, v{T+2}, v{T+1}
v_lshlrev_b32 v{T+2}, 4, v{T+2}
v_lshl_add_u32 v{T+2}, v{T}, 7, v{T+2}
s_lshl_b32 s6, s{S_RT}, 12
s_lshl_b32 s{S_B}, s{S_A}, 5
s_or_b32 s6, s6, s{S_B}
v_xor_b32 v{XA}, s6, v{T+2}""")
    for pos in range(1, 4): e(f"v_xor_b32 v{XA+pos}, {pos<<5}, v{XA}")
    e(f"""v_bfe_u32 v{G+1}, v0, 2, 2
v_lshl_add_u32 v{WB}, v{T+1}, 3, v{G+1}
v_lshlrev_b32 v{WB}, 8, v{WB}
s_lshl_b32 s{S_A}, s{S_A}, 12
v_add_u32 v{WB}, s{S_A}, v{WB}
s_cmp_eq_u32 s{S_ISQ}, 1
s_cselect_b32 s{S_A}, 56, 32
s_cselect_b32 s{S_B}, 5, 7
s_cselect_b32 s{S_C}, 0x88880000, 0
s_mov_b32 s{S_D}, s{S_C}
s_add_u32 s6, s{S_SH}, 4
v_bfe_u32 v{T}, v0, 4, 1
v_and_b32 v{T+1}, 3, v0
v_lshlrev_b32 v{T}, s{S_B}, v{T}
v_lshl_add_u32 v{T}, v{T+1}, 3, v{T}
v_lshlrev_b32 v{T+1}, s6, v{G+1}""")
    for i, st_ in ((0, S_T0), (1, S_T1)):
        e(f"""s_mul_i32 s6, s{st_}, s{S_A}
s_lshl_b32 s7, s{st_}, 3
s_sub_u32 s7, 248, s7
v_add_u32 v{T+2}, s6, v{T}
v_mov_b32 v{T+3}, s7
v_cndmask_b32 v{T+2}, v{T+2}, v{T+3}, s[{S_C}:{S_D}]
v_xor_b32 v{T+2}, v{T+2}, v{T+1}
v_add_u32 v{WA+4*i}, v{T+2}, v{WB}""")
    for i in range(2):
        for pos in range(1, 4): e(f"v_xor_b32 v{WA+4*i+pos}, {pos<<12}, v{WA+4*i}")
    e(f"""v_bfe_u32 v{T}, v0, 4, 1
v_and_b32 v{T+1}, 15, v0
v_cmp_eq_u32 vcc, v{T}, v{T+1}
v_mov_b32 v{T}, 0x3f803f80
s_nop 0
v_cndmask_b32 v{SEL}, 0, v{T}, vcc
v_mov_b32 v{SEL+1}, v{SEL}
v_mov_b32 v{SEL+2}, v{SEL}
v_mov_b32 v{SEL+3}, v{SEL}""")
    w2t_addr = f"""s_mul_i32 s6, s{S_RB}, 12
s_add_u32 s6, s6, s{S_LA}
s_lshl_b32 s7, s{S_RB}, 2
s_add_u32 s7, s7, s{S_QU}
s_min_u32 s7, s7, 59
s_add_u32 s{S_A}, s7, 136
s_cmp_eq_u32 s{S_ISQ}, 1
s_cselect_b32 s6, s{S_A}, s6
s_cselect_b32 s7, s7, 63
s_mul_hi_u32 s{S_A}, s6, {(2**32 + 27)//28}
s_mul_i32 s{S_B}, s{S_A}, 28
s_sub_u32 s{S_B}, s6, s{S_B}
s_lshr_b32 s{S_C}, s7, 3
s_and_b32 s{S_D}, s7, 7
s_add_u32 s{S_D}, s{S_D}, 28
s_cmp_lt_u32 s7, 56
s_cselect_b32 s6, s{S_C}, s{S_A}
s_cselect_b32 s{S_B}, s{S_D}, s{S_B}
s_lshl_b32 s{S_WF}, s6, 6
s_add_u32 s{S_WF}, s{S_WF}, s{S_B}
s_lshl_b32 s{S_A}, s{S_B}, 2
s_lshr_b32 s{S_B}, s{S_W}, 1
s_add_u32 s{S_A}, s{S_A}, s{S_B}
s_mul_i32 s{S_U}, s6, 144
s_add_u32 s{S_U}, s{S_U}, s{S_A}
s_lshl_b32 s{S_B}, s{S_A}, 4
s_sub_u32 s{S_C}, s{S_A}, 112
s_lshr_b32 s{S_D}, s{S_C}, 1
s_mul_i32 s{S_D}, s{S_D}, 28
s_and_b32 s{S_C}, s{S_C}, 1
s_lshl_b32 s{S_C}, s{S_C}, 4
s_add_u32 s{S_C}, s{S_C}, s{S_D}
s_mov_b32 s{S_D}, {448*896}
s_cmp_lt_u32 s{S_A}, 112
s_cselect_b32 s{S_B}, s{S_B}, s{S_C}
s_cselect_b32 s{SRD_T}, s{P_WD}, s{P_WO}
s_cselect_b32 s{SRD_T+1}, s{P_WD+1}, s{P_WO+1}
s_cselect_b32 s{SRD_T+2}, {1792*896}, s{S_D}
s_mov_b32 s{SRD_T+3}, 0x00020000
s_and_b32 s{S_C}, s{S_W}, 1
s_lshl_b32 s{S_C}, s{S_C}, 3
s_add_u32 s{S_B}, s{S_B}, s{S_C}
s_mul_i32 s{S_B}, s{S_B}, 896
s_lshl_b32 s6, s6, 7
s_add_u32 s{S_TO}, s{S_B}, s6
v_lshrrev_b32 v{TP}, 3, v0
v_mul_u32_u24 v{TP}, 896, v{TP}
v_and_b32 v{TP+1}, 7, v0
v_lshl_add_u32 v{VT}, v{TP+1}, 4, v{TP}"""
    late = (f"""s_add_u32 s{S_LB}, s{S_LA}, 12
s_add_u32 s6, s{S_QU}, 24
s_cmp_eq_u32 s{S_ISQ}, 1
s_cselect_b32 s{S_LB}, s6, s{S_LB}
""" if P("LBOLD", 1) else f"s_add_u32 s{S_LB}, s{S_J}, 12\n") + f"""v_lshrrev_b32 v{TP}, 4, v0
s_lshl_b32 s6, s{S_ROT}, 4
s_add_u32 s6, s6, s{S_W}
s_lshl_b32 s6, s6, 2
v_add_u32 v{TP+1}, s6, v{TP}
v_mul_u32_u24 v{TP+1}, 3584, v{TP+1}
v_lshlrev_b32 v{TP}, 1, v{TP}
v_xor_b32 v{TP}, v{TP}, v0
v_and_b32 v{GB}, 7, v{TP}
v_lshl_add_u32 v{TP+1}, v{GB}, 4, v{TP+1}
s_lshl_b32 s6, s{S_LB}, 7
v_add_u32 v{TP+1}, s6, v{TP+1}
v_and_b32 v{TP}, 8, v{TP}
v_cmp_eq_u32 vcc, 8, v{TP}
v_mov_b32 v{GB}, s{P_WG}
v_mov_b32 v{TP}, s{P_WU}
v_cndmask_b32 v{GB}, v{GB}, v{TP}, vcc
v_mov_b32 v{GB+1}, s{P_WG+1}
v_mov_b32 v{TP}, s{P_WU+1}
v_cndmask_b32 v{GB+1}, v{GB+1}, v{TP}, vcc
v_add_co_u32 v{GB}, vcc, v{GB}, v{TP+1}
v_bfe_u32 v{TP}, v0, 4, 1
v_and_b32 v{TP+1}, 3, v0
v_addc_co_u32 v{GB+1}, vcc, 0, v{GB+1}, vcc
v_lshlrev_b32 v{TP+1}, 3, v{TP+1}
v_lshl_add_u32 v{TP}, v{TP}, 7, v{TP+1}
v_bfe_u32 v{TP+1}, v0, 2, 2
v_lshlrev_b32 v{TP+1}, 5, v{TP+1}
v_xor_b32 v{TP}, v{TP}, v{TP+1}
s_lshl_b32 s6, s{S_T0}, 5
v_xor_b32 v{TP}, s6, v{TP}
v_add_u32 v{WB}, v{TP}, v{WB}
v_xor_b32 v{WB+1}, 32, v{WB}"""
    if PD1 == 1:
        for f in stage_dmas(e, 1): f()
    e.stamp("xs4")
    srd(e, SRD_WS, P_WS, WS_END)
    e("s_waitcnt lgkmcnt(0)")
    e(f"s_add_u32 s{S_NON}, s{S_NON}, 1")
    U = RW + 4; A_, B_ = RW, RW + 1
    e.wvm("row")
    for k in range(4): e(f"v_lshlrev_b32 v{U+2*k}, 16, v{RW+k}\nv_and_b32 v{U+2*k+1}, s{S_MASK}, v{RW+k}")
    e(f"v_add_f32 v{A_}, v{U}, v{U+1}\nv_mul_f32 v{B_}, v{U}, v{U}\nv_add_f32 v{A_+2}, v{U+2}, v{U+3}\nv_mul_f32 v{B_+2}, v{U+1}, v{U+1}")
    for k in (2, 4, 6): e(f"v_fmac_f32 v{B_}, v{U+k}, v{U+k}\nv_fmac_f32 v{B_+2}, v{U+k+1}, v{U+k+1}")
    e(f"""v_add_f32 v{U}, v{U+4}, v{U+5}
v_add_f32 v{U+1}, v{U+6}, v{U+7}
v_add_f32 v{A_}, v{A_}, v{A_+2}
v_add_f32 v{U}, v{U}, v{U+1}
v_add_f32 v{B_}, v{B_}, v{B_+2}
v_add_f32 v{A_}, v{A_}, v{U}
s_lshl_b32 s6, s{S_TG}, 3""")
    for d in ("row_shr:1 row_mask:0xf bank_mask:0xf bound_ctrl:0", "row_shr:2 row_mask:0xf bank_mask:0xf bound_ctrl:0",
              "row_shr:4 row_mask:0xf bank_mask:0xf bound_ctrl:0", "row_shr:8 row_mask:0xf bank_mask:0xf bound_ctrl:0",
              "row_bcast:15 row_mask:0xa bank_mask:0xf", "row_bcast:31 row_mask:0xc bank_mask:0xf"):
        e(f"v_add_f32_dpp v{B_}, v{B_}, v{B_} {d}\nv_add_f32_dpp v{A_}, v{A_}, v{A_} {d}\ns_nop 0")
    e(f"""s_add_u32 s6, s6, {STAT}
v_mul_f32 v{A_}, {f2u(1.0/448)}, v{A_}
v_mul_f32 v{B_}, {f2u(1.0/448)}, v{B_}
v_fma_f32 v{B_}, -v{A_}, v{A_}, v{B_}
v_max_f32 v{B_}, 0, v{B_}
v_cvt_pk_bf16_f32 v{B_}, v{B_}, v{B_}
v_and_b32 v{B_}, s{S_MASK}, v{B_}
v_add_f32 v{B_}, {f2u(1e-5)}, v{B_}
v_cvt_pk_bf16_f32 v{B_}, v{B_}, v{B_}
v_and_b32 v{B_}, s{S_MASK}, v{B_}
v_sqrt_f32 v{B_}, v{B_}
v_mov_b32 v{U}, s6
v_cvt_pk_bf16_f32 v{A_}, -v{A_}, v{B_}
v_mov_b32 v{B_}, s{S_NON}
s_mov_b32 exec_lo, 0
s_mov_b32 exec_hi, 0x80000000""")
    if PD1 == 2:
        e("s_mov_b64 exec, -1")
        for f in stage_dmas(e, 1): f()
        e("s_mov_b32 exec_lo, 0\ns_mov_b32 exec_hi, 0x80000000")
    e.vm(f"buffer_store_dwordx2 {vr(A_,2)}, v{U}, {WS}, 0 offen {SC}", "sts")
    e("s_mov_b64 exec, -1")
    e.stamp("xs5")
    if P("PRIO", 2) & 1: e(f"s_cmp_ge_u32 s{S_W}, 4\ns_cbranch_scc0 K_np\ns_setprio 1\nK_np:")
    e.wvm("d0")
    e("s_barrier")
    e.stamp("start")

    half = {'x': [0]*4, 'w': [0]*4}
    def reads(gp):
        if gp < 28: sig, sub, pos, reg = gp // 4, 0, gp % 4, 16384
        else:
            g = gp - 28; sig, sub, pos = 7 + g // 8, (g // 4) & 1, g % 4; reg = sub * 16384
        sl = sig % 4; h = sl >> 1; imm = (sl & 1) * RING
        buf = WF + 8 * (gp % 3)
        pre = []
        if 28 <= gp < 32:
            pre = [f"v_xor_b32 v{WA+4*i+pos}, {(pos << 12) | (h << 16)}, v{WB+i}" for i in range(2)]
            half['w'][pos] = h
        elif half['w'][pos] != h:
            pre = [f"v_xor_b32 v{WA+4*i+pos}, 0x10000, v{WA+4*i+pos}" for i in range(2)]
            half['w'][pos] = h
        if gp < 28 and half['x'][pos] != h:
            pre.append(f"v_xor_b32 v{XA+pos}, 0x10000, v{XA+pos}"); half['x'][pos] = h
        out = [(lambda l=l: e(l)) for l in pre]
        if gp < 28: out.append(lambda: e.ds(f"ds_read_b128 {vr(XR+4*gp,4)}, v{XA+pos} offset:{imm}", f"r{gp}"))
        for i in range(2):
            for u in range(2):
                out.append(lambda i=i, u=u: e.ds(f"ds_read_b64_tr_b16 {vr(buf+4*i+2*u,2)}, v{WA+4*i+pos} offset:{imm+reg+u*1024}", f"r{gp}"))
        return out
    def position(gp, side, dmaq, nside, barrier=None):
        p2 = gp >= 28; g = gp - 28 if p2 else gp
        acc = ACCB if p2 else ACCA
        buf = WF + 8 * (gp % 3); xr = XR + 4 * g
        e.wds(f"r{gp}")
        e(mfma(acc, buf, xr, "0" if g == 0 else None))
        if barrier: barrier()
        R = reads(gp + 2) if gp + 2 < 56 else []
        nx = 1 if gp + 2 < 28 else 0
        pre = R[:max(0, len(R) - 4 - nx)]; xrd = R[len(pre):len(pre) + nx]; tr = R[len(pre) + nx:]
        na = (nside + 1) // 2; nb = nside // 2
        for f in pre: f()
        if P("ORD", 1) == 0:
            for f in xrd + tr[:2]: f()
            side.emit(na)
            e(mfma(acc + 16, buf + 4, xr, "0" if g == 0 else None))
            for f in tr[2:]: f()
            if g % 4 == 0: e(mfma16(CSA, SEL, buf, "0" if g == 0 else None))
            if dmaq: dmaq.pop(0)()
            side.emit(nb)
            if g % 4 == 0: e(mfma16(CSA + 4, SEL, buf + 4, "0" if g == 0 else None))
        else:
            for f in tr[:1]: f()
            side.emit(min(2, na))
            for f in tr[1:2]: f()
            side.emit(na - min(2, na))
            e(mfma(acc + 16, buf + 4, xr, "0" if g == 0 else None))
            for f in tr[2:3]: f()
            side.emit(min(2, nb))
            for f in tr[3:]: f()
            side.emit(nb - min(2, nb))
            if g % 4 == 0 and 'nosel' not in X: e(mfma16(CSA, SEL, buf, "0" if g == 0 else None))
            for f in xrd: f()
            if g % 4 == 0 and 'nosel' not in X: e(mfma16(CSA + 4, SEL, buf + 4, "0" if g == 0 else None))
            if dmaq: dmaq.pop(0)()
    def stats(gp):
        x = XR + 4 * gp; c = lambda r: "0" if gp == 0 else vr(r, 4)
        return [mfma16(ST, SEL, x, c(ST)),
                f"v_mfma_f32_4x4x4_16b_bf16 {vr(SQA,4)}, {vr(x,2)}, {vr(x,2)}, {c(SQA)}\nv_mfma_f32_4x4x4_16b_bf16 {vr(SQB,4)}, {vr(x+2,2)}, {vr(x+2,2)}, {c(SQB)}"]
    def cs_write(dst):
        return [f"v_lshlrev_b32 v{G+8}, 4, v0", f"s_lshl_b32 s6, s{S_T0}, 9", f"s_lshl_b32 s{S_A}, s{S_RT}, 2",
                f"s_add_u32 s6, s6, s{S_A}", f"s_add_u32 s6, s6, {dst}", f"v_add_u32 v{G+8}, s6, v{G+8}",
                lambda: (e("s_mov_b64 exec, 0xffff"),
                         e.ds(f"ds_write_b32 v{G+8}, v{CSA}", "csw"), e.ds(f"ds_write_b32 v{G+8}, v{CSA+1} offset:256", "csw"),
                         e.ds(f"ds_write_b32 v{G+8}, v{CSA+4} offset:512", "csw"), e.ds(f"ds_write_b32 v{G+8}, v{CSA+5} offset:768", "csw"),
                         e("s_mov_b64 exec, -1"))]
    def cs_read(src):
        l = [f"v_and_b32 v{G+8}, 31, v0", f"v_lshlrev_b32 v{G+8}, 4, v{G+8}", f"s_lshl_b32 s6, s{S_T0}, 9", f"s_add_u32 s6, s6, {src}",
             f"v_add_u32 v{G+8}, s6, v{G+8}",
             lambda: e.ds(f"ds_read_b128 {vr(G,4)}, v{G+8}", "csr"), lambda: e.ds(f"ds_read_b128 {vr(G+4,4)}, v{G+8} offset:512", "csr")]
        m = [lambda: e.wds("csr")]
        for i in range(2):
            b = G + 4 * i
            m += [f"v_add_f32 v{b}, v{b}, v{b+1}", f"v_add_f32 v{b+2}, v{b+2}, v{b+3}"]
        for i in range(2): m += [f"v_add_f32 v{G+4*i}, v{G+4*i}, v{G+4*i+2}"]
        for i in range(2): m += [f"v_cvt_pk_bf16_f32 v{G+4*i+1}, v{G+4*i}, v{G+4*i}"]
        for i in range(2): m += [f"v_and_b32 v{G+4*i+1}, s{S_MASK}, v{G+4*i+1}"]
        for i in range(2): m += [f"v_sub_f32 v{G+4*i+1}, v{G+4*i}, v{G+4*i+1}"]
        for i in range(2): m += [f"v_cvt_pk_bf16_f32 v{G+4*i}, v{G+4*i}, v{G+4*i+1}"]
        for i in range(2): m += [f"v_cndmask_b32 v{ST+2*i}, v{G+4*i}, 0, s[{S_HI}:{S_HI+1}]"]
        return l, m

    KA = -2.0 * math.log2(math.e) * math.sqrt(2.0 / math.pi)
    GST = P("GST", 18)
    def stat_check():
        ok = e.newlabel("sok"); sp = e.newlabel("ssp")
        e.wvm("stl")
        e(f"v_cmp_ne_u32 vcc, s{S_NON}, v{BEXT+3}\ns_cbranch_vccz {ok}\ns_mov_b32 s{S_CNT}, {SPIN_MAX}")
        e.label(sp)
        e(f"""s_sleep 4
buffer_load_dwordx2 {vr(BEXT+2,2)}, v{G}, {WS}, 0 offen {SC}
s_sub_u32 s{S_CNT}, s{S_CNT}, 1
s_waitcnt vmcnt(0)
v_cmp_ne_u32 vcc, s{S_NON}, v{BEXT+3}
s_cmp_eq_u32 s{S_CNT}, 0
s_cbranch_scc1 {ok}
s_cbranch_vccnz {sp}""")
        if 'spincnt' in X: e(f"s_sub_u32 s88, {SPIN_MAX + 1000}, s{S_CNT}")
        e.label(ok)
    def after_exchange(side):
        l, m = cs_read(L_CSA)
        side.add(l)
        side.add(f"""v_and_b32 v{S_}, s{S_MASK}, v{BEXT+2}
v_and_b32 v{BEXT}, 0xffff, v{BEXT+2}
v_rcp_f32 v{R_}, v{S_}
v_lshl_or_b32 v{BEXT}, v{BEXT+2}, 16, v{BEXT}
v_mul_f32 v{I2}, v{S_}, v{S_}
v_mul_f32 v{AC}, {f2u(KA)}, v{R_}
v_mul_f32 v{BC}, v{R_}, v{R_}
v_mov_b32 v{ST+1}, 0
v_mul_f32 v{BC}, v{BC}, v{AC}
v_mov_b32 v{ST+3}, 0
v_mul_f32 v{BC}, {f2u(0.044715)}, v{BC}
v_mov_b32 v{BEXT+1}, 0
v_mov_b32 v{BEXT+2}, 0
v_mov_b32 v{BEXT+3}, 0""")
        side.add(m)
    for f in reads(0) + reads(1): f()
    side = Side(e); dmaq = list(stage_dmas(e, 2)) + ([touch(e, 2)] if TOUCH else [])
    w2side = Side(e)
    if GT & 4:
        w2side.add(f"""s_min_u32 s6, s{S_TG}, 895
s_cmp_ge_u32 s6, 448
s_cselect_b32 s{SRD_T}, s{P_WU}, s{P_WG}
s_cselect_b32 s{SRD_T+1}, s{P_WU+1}, s{P_WG+1}
s_cselect_b32 s7, 448, 0
s_mov_b32 s{SRD_T+2}, {448*3584}
s_sub_u32 s6, s6, s7
s_mul_i32 s6, s6, 3584
s_add_u32 s6, s6, 1536
v_and_b32 v{TA}, 15, v0
v_lshlrev_b32 v{TA}, 7, v{TA}""")
        w2side.add([lambda: e.vm(f"buffer_load_dword v{TD}, v{TA}, s[{SRD_T}:{SRD_T+3}], s6 offen", "t2")])
    w2side.add(late); w2side.add(w2t_addr)
    for gp in range(28):
        sig, pos = gp // 4, gp % 4
        bar = None
        if pos == 2:
            def bar(sig=sig):
                if sig == 6: side.flush(); stat_check(); e.wds("csw")
                e.wvm(f"d{sig+1}"); e("s_barrier")
                if sig == 6: after_exchange(side)
                assert not dmaq
                dmaq.extend(stage_dmas(e, sig + 3))
                if sig == 0 and TOUCH: dmaq.append(touch(e, 3))
        if gp == GST:
            side.add([f"s_lshl_b32 s{S_G}, s{S_RB}, 2", f"s_add_u32 s{S_G}, s{S_G}, s{S_RT}", f"s_lshl_b32 s{S_G}, s{S_G}, 8", f"s_add_u32 s{S_G}, s{S_G}, {STAT}",
                      f"v_and_b32 v{G}, 31, v0", f"v_lshl_add_u32 v{G}, v{G}, 3, s{S_G}",
                      lambda: e.vm(f"buffer_load_dwordx2 {vr(BEXT+2,2)}, v{G}, {WS}, 0 offen {SC}", "stl")])
        if gp == 25: assert not w2side.q; side.add(cs_write(L_CSA))
        n = len(side.q) if gp < 26 else P('NEX', 10)
        while len(dmaq) > 4 - ((pos + 2) % 4): dmaq.pop(0)()
        e.stamp(f"xp{gp}")
        w2side.emit(0 if gp < P('WS0', 0) else 5 if gp < 2 else P('WSR', 3))
        position(gp, side, dmaq, n, bar)
    assert not w2side.q
    side.add(["s_nop 1", mfma(ACCA, ST, BEXT), mfma(ACCA + 16, ST + 2, BEXT)])
    carry = list(side.q)
    e.stamp("p1")

    KA = -2.0 * math.log2(math.e) * math.sqrt(2.0 / math.pi); KB = KA * 0.044715
    def gelu(acc, so, tb, keep=None, pk=0):
        l = []
        if pk:
            pr = lambda r: vr(r, 2)
            for k in range(0, 8, 2): l.append(f"v_pk_mul_f32 {pr(tb+k)}, {pr(acc+k)}, {pr(acc+k)}")
            for k in range(0, 8, 2): l.append(f"v_pk_fma_f32 {pr(tb+k)}, {pr(tb+k)}, {pr(AC)}, {pr(AC)} op_sel:[0,1,0] op_sel_hi:[1,1,0]")
            for k in range(0, 8, 2): l.append(f"v_pk_mul_f32 {pr(tb+k)}, {pr(tb+k)}, {pr(acc+k)}")
            for k in range(0, 8, 2): l += [f"v_exp_f32 v{tb+k}, v{tb+k}", f"v_exp_f32 v{tb+k+1}, v{tb+k+1}", f"v_pk_mul_f32 {pr(acc+k)}, {pr(acc+k)}, {pr(acc+8+k)}"]
            for k in range(0, 8, 2): l.append(f"v_pk_fma_f32 {pr(tb+k)}, {pr(tb+k)}, {pr(I2-1)}, {pr(I2-1)} op_sel:[0,1,1] op_sel_hi:[1,1,1]")
            for k in range(8): l.append(f"v_rcp_f32 v{tb+k}, v{tb+k}")
            for k in range(0, 8, 2): l.append(f"v_pk_mul_f32 {pr(acc+k)}, {pr(acc+k)}, {pr(tb+k)}")
        else:
            for k in range(8): l.append(f"v_mul_f32 v{tb+k}, v{acc+k}, v{acc+k}")
            for k in range(8): l.append(f"v_fma_f32 v{tb+k}, v{tb+k}, v{BC}, v{AC}")
            for k in range(8): l.append(f"v_mul_f32 v{tb+k}, v{tb+k}, v{acc+k}")
            for k in range(8): l += [f"v_exp_f32 v{tb+k}, v{tb+k}", f"v_mul_f32 v{acc+k}, v{acc+k}, v{acc+8+k}"]
            for k in range(8): l.append(f"v_fma_f32 v{tb+k}, v{tb+k}, v{I2}, v{I2}")
            for k in range(8): l.append(f"v_rcp_f32 v{tb+k}, v{tb+k}")
            for k in range(8): l.append(f"v_mul_f32 v{acc+k}, v{acc+k}, v{tb+k}")
        if keep is not None:
            return l + [f"v_cvt_pk_bf16_f32 v{keep+k}, v{acc+2*k}, v{acc+2*k+1}" for k in range(4)]
        for k in range(4): l.append(f"v_cvt_pk_bf16_f32 v{acc+8+k}, v{acc+2*k}, v{acc+2*k+1}")
        l.append(lambda: e.vm(f"buffer_store_dwordx4 {vr(acc+8,4)}, v{VL16}, {WS}, s{so} offen {SC}", "hs"))
        return l
    def h_off(line, dst):
        return f"""s_lshl_b32 s6, s{S_RB}, 2
s_add_u32 s6, s6, s{S_RT}
s_mul_i32 s6, s6, 144
s_lshl_b32 s{dst}, s{line}, 2
s_add_u32 s6, s6, s{dst}
s_add_u32 s6, s6, s{S_T0}
s_lshl_b32 s{dst}, s6, 10
s_add_u32 s{dst+1}, s{dst}, 1024"""
    def w2t_out(side):
        side.add(f"""v_lshrrev_b32 v{TP}, 5, v0
v_bfe_u32 v{TP+1}, v0, 2, 2
v_lshl_add_u32 v{TP}, v{TP}, 2, v{TP+1}
v_lshlrev_b32 v{TP}, 7, v{TP}
v_bfe_u32 v{TP+1}, v0, 4, 1
v_lshl_add_u32 v{TP}, v{TP+1}, 5, v{TP}
v_and_b32 v{TP+1}, 3, v0
v_lshl_add_u32 v{TP}, v{TP+1}, 3, v{TP}
s_lshr_b32 s6, s{S_W}, 1
s_lshl_b32 s6, s6, 11
s_and_b32 s{S_A}, s{S_W}, 1
s_lshl_b32 s{S_B}, s{S_A}, 6
s_add_u32 s6, s6, s{S_B}
s_add_u32 s6, s6, {L_W2T}
v_add_u32 v{TP}, s6, v{TP}""")
        side.add([lambda: (e.ds(f"ds_read_b64_tr_b16 {vr(PL,2)}, v{TP}", "w2tr"), e.ds(f"ds_read_b64_tr_b16 {vr(PL+2,2)}, v{TP} offset:1024", "w2tr")),
                  f"s_lshl_b32 s6, s{S_U}, 11", f"s_lshl_b32 s{S_A}, s{S_A}, 10", f"s_add_u32 s6, s6, s{S_A}", f"s_add_u32 s{S_TO}, s6, {W2T}",
                  lambda: (e.wds("w2tr"), e.vm(f"buffer_store_dwordx4 {vr(PL,4)}, v{VL16}, {WS}, s{S_TO} offen {SC}", "w2ts"))])
    GEND = P("GEND", 22); GW2 = P("GW2", 22); GFQ = P("GFQ", 9)
    GX, GBN, GFL, QRATE = P("GX", 0), P("GBN", 2), P("GFL", 6 if SPLITQ else 9), P("QRATE", 40)
    def pass2(qfirst):
        side = Side(e); dq = list(dmaq); side.q = list(carry)
        for g in range(28):
            gp = 28 + g
            pre = []; wd = []; wv = []; post = []
            if g == 0:
                if not qfirst and 'nogelu' in X: pass
                elif not qfirst:
                    side.add(h_off(S_LA, S_C))
                    ga = gelu(ACCA, S_C, G); gb = gelu(ACCA + 16, S_D, G)
                    k = P('HSD', 68)
                    side.add(ga[:-1] + gb[:k] + ga[-1:] + gb[k:])
                else: qkv_part1(side)
            if g == 6:
                post.append(lambda: dq.extend(stage_dmas(e, 10) + [lambda: (e(f"s_add_u32 m0, s{S_WB}, {L_W2T}\ns_nop 0"),
                            e.vm(f"buffer_load_dwordx4 v{VT}, s[{SRD_T}:{SRD_T+3}], s{S_TO} offen lds", "w2td"))]))
            if g == GW2: wv.append("w2td")
            if g in (6, 14, 22): wv.append(f"d{8 + g // 8}")
            if qfirst and g == GBN: pre.append(side.flush); wd.append("kvw"); post.append(lambda: qkv_part2(side))
            if qfirst and g == GFQ and SPLITQ:
                pre.append(side.flush); wv.append("qs")
                post.append(lambda: flag_store(e, f"""s_lshl_b32 s6, s{S_RB}, 5
s_add_u32 s6, s6, s{S_QU}
s_lshl_b32 s6, s6, 2
s_add_u32 s6, s6, {F_Q}
v_mov_b32 v{TP}, s6""", 1, TP))
            if qfirst and g == GFL:
                if SPLITQ: pre.append(lambda: e(f"s_waitcnt vmcnt({len(e.q['vm']) - e.mark['kvs']})")); wd.append("kvw")
                else: pre.append(side.flush); wv.append("qs")
                post.append(lambda: flag_store(e, f"""s_lshl_b32 s6, s{S_RB}, 2
s_add_u32 s6, s6, s{S_QU}
s_lshl_b32 s6, s6, 2
s_add_u32 s6, s6, {F_KV}
v_lshlrev_b32 v{TP}, 8, v0
v_add_u32 v{TP}, s6, v{TP}""", RKV, TP))
            if g == GW2 + 1 and 'now2o' not in X:
                q0 = side.q; side.q = []; w2t_out(side); side.q += q0
            if g == 24: side.flush()
            if g == P("GKP", 27):
                poll_issue(e, f"""s_and_b32 s6, s2, {RKV-1}
s_lshl_b32 s6, s6, 8
s_add_u32 s6, s6, {F_KV}
v_lshl_add_u32 v{PL}, v0, 2, s6""" + (f"""
s_lshl_b32 s6, s{S_RB}, 5
s_add_u32 s6, s6, s{S_QU}
s_lshl_b32 s6, s6, 2
s_add_u32 s6, s6, {F_Q}
v_mov_b32 v{PL+2}, s6
buffer_load_dword v{PL+3}, v{PL+2}, {WS}, 0 offen {SC}""" if SPLITQ else ""), PL, PL + 1, "kvp")
            if g == 25 and 'nocs' not in X:
                side.flush(); side.add(cs_write(L_CSB))
            if g == 26 and 'nocs' not in X:
                pre.append(side.flush); wd.append("csw")
                def p():
                    l, m = cs_read(L_CSB); side.add(l); side.add(m)
                post.append(p)
            bar = None
            if wd or wv:
                def bar():
                    for f in pre: f()
                    if wd: e.wds(*wd)
                    if wv: e.wvm(*wv)
                    e("s_barrier")
                    for f in post: f()
            if qfirst: n = QRATE if g < 9 else 12
            else: n = -(-len(side.q) // max(1, GEND - g)) if g < GEND else 12
            e.stamp(f"xg{g}")
            position(gp, side, dq, n, bar)
        side.flush()
        e.stamp("xpe2")
        e("s_nop 1")
        e(mfma(ACCB, ST, BEXT)); e(mfma(ACCB + 16, ST + 2, BEXT))
    RQ = PL
    def qkv_part1(side):
        side.add(f"""v_mul_f32 v{RQ}, {f2u(28 ** -0.5 * math.log2(math.e))}, v{R_}
v_and_b32 v{G+8}, 31, v0
v_lshlrev_b32 v{G+8}, 5, v{G+8}
s_lshl_b32 s6, s{S_RT}, 10
s_add_u32 s6, s6, {L_KVB}
v_add_u32 v{G+8}, s6, v{G+8}
s_mov_b32 s{S_D}, 0x00003f80
s_cmp_lt_u32 s{S_QU}, 2
s_cselect_b32 s{S_C}, 0x3f803f80, s{S_D}
s_cselect_b32 s{S_D}, s{S_D}, 0
s_nop 1""")
        for i, st_ in ((0, S_T0), (1, S_T1)):
            acc = ACCA + 16 * i; b = G + 4 * i
            for k in range(4): side.add([f"v_mul_f32 v{b+k}, v{acc+12+k}, v{R_}"])
            side.add(f"""s_sub_u32 s6, 3, s{st_}
s_lshl_b32 s{S_A}, s{st_}, 2
s_lshr_b32 s{S_A}, 0x0132, s{S_A}
s_and_b32 s{S_A}, s{S_A}, 3
s_bitcmp1_b32 s{S_QU}, 0
s_cselect_b32 s6, s{S_A}, s6
s_cselect_b32 s{S_A}, s{S_A}, 0
s_lshl_b32 s6, s6, 3
v_cvt_pk_bf16_f32 v{b}, v{b}, v{b+1}
v_cvt_pk_bf16_f32 v{b+1}, v{b+2}, v{b+3}
v_add_u32 v{b+2}, s6, v{G+8}""")
            def wr(b=b):
                l = e.newlabel("nc")
                e(f"s_cmp_eq_u32 s{S_A}, 3\ns_cbranch_scc0 {l}\nv_mov_b32 v{b}, s{S_C}\nv_mov_b32 v{b+1}, s{S_D}")
                e.label(l)
                e(f"s_mov_b64 exec, s[{S_HI}:{S_HI+1}]")
                e.ds(f"ds_write_b64 v{b+2}, {vr(b,2)}", "kvw")
                e("s_mov_b64 exec, -1")
            side.add([wr])
    def qkv_part2(side):
        def kv():
            l = e.newlabel("kvs"); lv = e.newlabel("kvv"); ls = e.newlabel("kvt")
            e(f"""s_cmp_eq_u32 s{S_CG}, 0
s_cbranch_scc0 {l}
s_lshl_b32 s6, s{S_RB}, 2
s_add_u32 s6, s6, s{S_RT}
s_lshl_b32 s6, s6, 12
s_add_u32 s6, s6, {KVF}
s_lshl_b32 s{S_A}, s{S_RT}, 10
s_add_u32 s{S_A}, s{S_A}, {L_KVB}
s_cmp_lt_u32 s{S_QU}, 2
s_cbranch_scc0 {lv}
v_and_b32 v{G}, 31, v0
v_lshrrev_b32 v{G+1}, 5, v0
v_lshlrev_b32 v{G}, 5, v{G}
v_lshl_add_u32 v{G}, v{G+1}, 3, v{G}
v_add_u32 v{G}, s{S_A}, v{G}
ds_read2_b64 {vr(G+4,4)}, v{G} offset0:0 offset1:2
s_lshl_b32 s{S_A}, s{S_QU}, 10
s_add_u32 s6, s6, s{S_A}
v_mov_b32 v{G+2}, v{VL16}
s_branch {ls}""")
            e.label(lv)
            e(f"""v_lshrrev_b32 v{G}, 5, v0
v_bfe_u32 v{G+1}, v0, 4, 1
v_lshlrev_b32 v{G+2}, 10, v{G}
v_lshl_add_u32 v{G+2}, v{G+1}, 9, v{G+2}
v_lshlrev_b32 v{G}, 4, v{G}
v_lshl_add_u32 v{G}, v{G+1}, 2, v{G}
v_bfe_u32 v{G+1}, v0, 2, 2
v_add_u32 v{G}, v{G}, v{G+1}
v_lshlrev_b32 v{G}, 5, v{G}
v_and_b32 v{G+1}, 3, v0
v_lshl_add_u32 v{G}, v{G+1}, 3, v{G}
v_add_u32 v{G}, s{S_A}, v{G}
ds_read_b64_tr_b16 {vr(G+4,2)}, v{G}
ds_read_b64_tr_b16 {vr(G+6,2)}, v{G} offset:256
v_and_b32 v{G+1}, 15, v0
v_lshl_add_u32 v{G+2}, v{G+1}, 4, v{G+2}
s_and_b32 s{S_A}, s{S_QU}, 1
s_lshl_b32 s{S_A}, s{S_A}, 8
s_add_u32 s6, s6, s{S_A}
s_add_u32 s6, s6, 2048""")
            e.label(ls)
            e(f"s_waitcnt lgkmcnt(0)\nbuffer_store_dwordx4 {vr(G+4,4)}, v{G+2}, {WS}, s6 offen {SC}")
            e.label(l)
            e.mark['kvs'] = len(e.q['vm'])
        side.add([kv])
        side.add(f"""s_lshl_b32 s6, s{S_RB}, 2
s_add_u32 s6, s6, s{S_RT}
s_lshl_b32 s6, s6, 2
s_add_u32 s6, s6, s{S_QU}
s_lshl_b32 s6, s6, 2
s_add_u32 s6, s6, s{S_T0}
s_lshl_b32 s6, s6, 11
s_add_u32 s{S_C}, s6, {QF}""")
        for i in range(2):
            acc = ACCA + 16 * i
            if P('PK', 0) & 4:
                for k in range(0, 16, 2): side.add([f"v_pk_mul_f32 {vr(acc+k,2)}, {vr(acc+k,2)}, {vr(RQ,2)} op_sel_hi:[1,0]"])
            else:
                for k in range(16): side.add([f"v_mul_f32 v{acc+k}, v{acc+k}, v{RQ}"])
            for k in range(8): side.add([f"v_cvt_pk_bf16_f32 v{acc+k}, v{acc+2*k}, v{acc+2*k+1}"])
            side.add([f"v_cndmask_b32 v{acc+6}, v{acc+6}, 0, s[{S_HI}:{S_HI+1}]", f"v_cndmask_b32 v{acc+7}, v{acc+7}, 0, s[{S_HI}:{S_HI+1}]",
                      lambda acc=acc, i=i: e.vm(f"buffer_store_dwordx4 {vr(acc,4)}, v{VL16}, {WS}, s{S_C} offen offset:{2048*i} {SC}", "qs"),
                      lambda acc=acc, i=i: e.vm(f"buffer_store_dwordx4 {vr(acc+4,4)}, v{VL16}, {WS}, s{S_C} offen offset:{2048*i+1024} {SC}", "qs")])
    e(f"s_cmp_eq_u32 s{S_ISQ}, 1\ns_cbranch_scc1 B_p2q")
    sn = e.snap(); hs = {k: list(v) for k, v in half.items()}; ns = e.nst
    pass2(False)
    e("s_branch B_join")
    e.label("B_p2q")
    e.nst = ns
    e.restore(sn); half.update({k: list(v) for k, v in hs.items()})
    pass2(True)
    e.label("B_join")
    e.q = {'ds': [], 'vm': []}; e.done = {'ds': 0, 'vm': 0}; e.mark['kvp'] = 0
    e.stamp("join")
    return gelu, h_off

LB0, LB1, VO = 3, 4, 5
Q, O, S0, PP, K, V0, V1 = 36, 44, 64, 96, 104, 112, 120
FA, FB = 128, 192
XRES = 244
S_KH, S_QT, S_KVO, S_WB4, S_FA, S_FB0, S_FB1, S_OO = 50, 51, 54, 55, 56, 57, 59, 60
S_FQ, S_K1 = 62, 63
F0 = P("F0", 8)
FP = P("FP", 2)
HBP = P("HBP", 10)
F3 = P("F3", 40)
WOP = 18

def kv_dma(e, st):
    def m(): e(f"s_add_u32 m0, s{S_WB4}, {((st + 3) % 4) * RING}" + ("\ns_nop 0" if st < 3 else ""))
    m.scalar = True
    l = [m]
    for f in range(4):
        l.append(lambda f=f: (e.vm(f"buffer_load_dwordx4 v{VL16}, {WS}, s{S_KVO} offen offset:{1024*f} {SC} lds", f"k{st}"),
                              e(f"s_add_u32 s{S_KVO}, s{S_KVO}, 16384") if f == 3 else None))
    return l

NB = P("NB", 4)
FBUF = [[FB + 16 * n + 4 * k for k in range(4)] for n in range(3)] + [[60, 124, 248, 252]]
def f_loads(e, q):
    bb = FBUF[q % NB]
    r = q if q < 6 else q - 6
    advA = advB = None
    if q == 5:
        advA = f"s_add_u32 s{S_FA}, s{S_FA}, s{S_FQ}"
        advB = f"s_add_u32 s{S_FB0}, s{S_FB0}, s{S_K1}\ns_add_u32 s{S_FB1}, s{S_FB1}, s{S_K1}"
    else:
        if r & 1: advA = f"s_add_u32 s{S_FA}, s{S_FA}, 4096"
        if (r & 3) == 3: advB = f"s_add_u32 s{S_FB0}, s{S_FB0}, 4096\ns_add_u32 s{S_FB1}, s{S_FB1}, 4096"
    return [lambda: e.vm(f"buffer_load_dwordx4 {vr(bb[0],4)}, v{VL16}, {WS}, s{S_FA} offen offset:{(r&1)*2048} {SC}", f"f{q}"),
            lambda: e.vm(f"buffer_load_dwordx4 {vr(bb[2],4)}, v{VL16}, {WS}, s{S_FB0} offen offset:{(r&3)*1024} {SC}", f"f{q}"),
            lambda: (e.vm(f"buffer_load_dwordx4 {vr(bb[1],4)}, v{VL16}, {WS}, s{S_FA} offen offset:{(r&1)*2048+1024} {SC}", f"f{q}"),
                     e(advA) if advA else None),
            lambda: (e.vm(f"buffer_load_dwordx4 {vr(bb[3],4)}, v{VL16}, {WS}, s{S_FB1} offen offset:{(r&3)*1024} {SC}", f"f{q}"),
                     e(advB) if advB else None)]
def f_mfma(q, k):
    bb = FBUF[q % NB]; r2, d2 = ((0, 0), (0, 1), (1, 1), (1, 0))[k]
    return mfma(FA + 32*r2 + 16*d2, bb[d2], bb[2 + r2], "0" if q == 0 else None)

S_OA, S_OL = 61, 75
OAREG = [8 + 4 * k for k in range(7)] + [FB + 4 * k for k in range(9)]
def oa_dma(e, n):
    def f():
        if n == 0: e(f"s_add_u32 m0, s{S_OL}, {3 * RING}\ns_nop 0")
        if n == 4: e(f"s_mov_b32 m0, s{S_OL}\ns_add_u32 s{S_OA}, s{S_OA}, 8192")
        e.vm(f"buffer_load_dwordx4 v{VL16}, {WS}, s{S_OA} offen offset:{(n & 3) * 1024} {SC} lds", "oa")
    return f
KVPRE = P('KVPRE', 2)
HDEF = P('HDEF', 1); HFL = P('HFL', 6 if HDEF else 2); S_HO = 47
def attn_setup(e, gelu, h_off):
    e(h_off(S_LB, S_C))
    e(f"""s_mov_b32 s{S_QT}, s{S_RT}
s_mov_b32 s{S_KH}, s{S_CG}
s_lshl_b32 s{S_WB4}, s{S_W}, 12
s_lshl_b32 s6, s{S_KH}, 5
s_add_u32 s6, s6, s{S_QT}
s_lshl_b32 s6, s6, 12
s_add_u32 s{S_KVO}, s6, {KVF}
s_lshl_b32 s6, s{S_RB}, 2
s_add_u32 s6, s6, s{S_QT}
s_lshl_b32 s7, s6, 4
s_add_u32 s7, s7, s{S_J}
s_lshl_b32 s7, s7, 11
s_add_u32 s7, s7, {QF}""")
    if HDEF: e(f"s_mov_b32 s{S_HO}, s{S_C}")
    g0 = gelu(ACCB, S_C, G, 16 if HDEF else None, P('PK', 0) & 1); g1 = gelu(ACCB + 16, S_D, G + 8, 20 if HDEF else None, P('PK', 0) & 1)
    nfirst = P("GFIRST", 0)
    both = g0 + g1
    if P('GIL', 1): both = [x for p in zip(g0, g1) for x in p]
    for it in both[:nfirst]: it() if callable(it) else e(it)
    assert nfirst == 0
    poll_check(e, PL, PL + 1, "kvp", P("KSLEEP", 1))
    if SPLITQ: poll_check(e, PL + 2, PL + 3, "kvp", P("KSLEEP", 1))
    e.all_vm()
    e("s_barrier")
    e.stamp("xkv")
    flag_store(e, f"""s_lshl_b32 s6, s{S_RB}, 5
s_add_u32 s6, s6, s{S_J}
s_lshl_b32 s6, s6, 2
s_add_u32 s6, s6, {F_H + 64}
s_lshl_b32 s{S_A}, s{S_WF}, 2
s_add_u32 s{S_A}, s{S_A}, {F_W}
s_sub_u32 s{S_A}, s{S_A}, s6
v_mul_lo_u32 v{PL}, v0, s{S_A}
v_add_u32 v{PL}, s6, v{PL}""", 2, PL)
    if P("KVT", 0):
        e(f"""s_lshr_b32 s6, s2, 3
s_lshl_b32 s6, s6, 3
s_add_u32 s6, s6, s{S_W}
s_lshl_b32 s6, s6, 10
s_add_u32 s6, s6, {KVF}
v_and_b32 v{TP}, 7, v0
v_lshlrev_b32 v{TP}, 7, v{TP}""")
        e.vm(f"buffer_load_dword v{TP+1}, v{TP}, {WS}, s6 offen {SC}", "kvt")
    side = Side(e)
    side.add(kv_dma(e, 0))
    side.add([lambda: e.vm(f"buffer_load_dwordx4 {vr(Q,4)}, v{VL16}, {WS}, s7 offen {SC}", "q"),
              lambda: e.vm(f"buffer_load_dwordx4 {vr(Q+4,4)}, v{VL16}, {WS}, s7 offen offset:1024 {SC}", "q")])
    side.emit(P("KPRE0", 7))
    for st in range(1, KVPRE): side.add(kv_dma(e, st))
    for n, it in enumerate(both[nfirst:]):
        it() if callable(it) else e(it)
        if n % P('GSP', 1000) == P('GSP', 1000) - 1: side.emit(1)
        if n == 68: e.stamp("xg69")
    e.stamp("xgv")
    side.flush()
    e(f"""s_lshl_b32 s6, s{S_KH}, 14
v_add_u32 v{LB0}, s6, v{VL16}
v_add_u32 v{LB1}, 0x10000, v{LB0}
s_lshl_b32 s6, s{S_RB}, 2
s_add_u32 s6, s6, s{S_QT}
s_mul_i32 s6, s6, 144
s_lshl_b32 s7, s{S_J}, 1
s_add_u32 s6, s6, s7
s_add_u32 s6, s6, s{S_KH}
s_add_u32 s6, s6, 112
s_lshl_b32 s{S_OO}, s6, 10""")

def rd(e, dst, tile, f, tag):
    sl = (tile // 4 + 3) % 4
    e.ds(f"ds_read_b128 {vr(dst,4)}, v{LB0 if sl < 2 else LB1} offset:{(sl & 1) * RING + (tile % 4) * 4096 + f * 1024}", tag)

def attn_loop(e, withF):
    e.stamp("xge")
    if P("PRIO", 2) == 2:
        l = e.newlabel("np"); e(f"s_cmp_ge_u32 s{S_W}, 4\ns_cbranch_scc0 {l}\ns_setprio 1"); e.label(l)
    if P("PRIO", 2) == 5: e("s_setprio 0")
    e.wvm("k0", "q"); e.stamp("xk0"); e("s_barrier")
    e.stamp("astart")
    rd(e, K, 0, 0, "a"); rd(e, K + 4, 0, 1, "a"); rd(e, V0, 0, 2, "b")
    e.wds("a")
    e(mfma(S0, K, Q, "0")); e(mfma(S0, K + 4, Q + 4))
    rd(e, K, 1, 0, "b"); rd(e, K + 4, 1, 1, "b")
    if withF:
        e(f"""s_lshr_b32 s6, s{S_J}, 3
s_lshl_b32 s7, s{S_RB}, 1
s_add_u32 s6, s6, s7
s_and_b32 s7, s{S_J}, 7
s_mul_i32 s{S_A}, s{S_W}, 6
s_lshl_b32 s{S_K1}, s{S_W}, 1
s_add_u32 s{S_K1}, s{S_K1}, 44
s_lshl_b32 s{S_K1}, s{S_K1}, 10
s_lshl_b32 s{S_FQ}, s{S_K1}, 1
s_mul_i32 s{S_FB0}, s6, 288
s_add_u32 s{S_FB0}, s{S_FB0}, s{S_A}
s_lshl_b32 s{S_FB0}, s{S_FB0}, 10
s_add_u32 s{S_FB1}, s{S_FB0}, {144*1024}
s_bitcmp1_b32 s{S_W}, 0
s_cselect_b32 s{S_B}, s{S_FB1}, s{S_FB0}
s_cselect_b32 s{S_FB1}, s{S_FB0}, s{S_FB1}
s_mov_b32 s{S_FB0}, s{S_B}
s_mul_i32 s{S_FA}, s7, 144
s_add_u32 s{S_FA}, s{S_FA}, s{S_A}
s_lshl_b32 s{S_FA}, s{S_FA}, 11
s_add_u32 s{S_FA}, s{S_FA}, {W2T}
s_lshr_b32 s{S_A}, s{S_W}, 1
s_lshl_b32 s{S_A}, s{S_A}, 3
s_mul_i32 s{S_OA}, s7, 144
s_add_u32 s{S_OA}, s{S_OA}, s{S_A}
s_add_u32 s{S_OA}, s{S_OA}, 112
s_lshl_b32 s{S_OA}, s{S_OA}, 11
s_add_u32 s{S_OA}, s{S_OA}, {W2T}
s_and_b32 s{S_B}, s{S_W}, 1
s_lshl_b32 s{S_B}, s{S_B}, 12
s_add_u32 s{S_OA}, s{S_OA}, s{S_B}
s_lshl_b32 s{S_OL}, s{S_W}, 12""")
    else:
        e("s_nop 9")
    NT = 32
    fq = []
    nq = 0
    dq = []
    fi = 0
    need = {}; keep = []; done = [0]
    for i in range(NT):
        sc = S0 + 16 * (i & 1); sn = S0 + 16 * ((i + 1) & 1)
        v0c = V0 + 4 * (i & 1); v0n = V0 + 4 * ((i + 1) & 1)
        E = lambda r: f"v_exp_f32 v{r}, v{r}"
        C = lambda d, r: f"v_cvt_pk_bf16_f32 v{d}, v{r}, v{r+1}"
        def g(k): return [E(sc + 4*k + q) for q in range(4)] + [C(PP + 2*k, sc + 4*k), C(PP + 2*k + 1, sc + 4*k + 2)]
        g0, g1, g2, g3 = g(0), g(1), g(2), g(3)
        fm = []; fl = []
        if withF:
            if i == FP - 2:
                assert FP % 4 == 2
                fl = [lambda: poll_issue(e, f"""s_lshl_b32 s6, s{S_RB}, 7
s_add_u32 s6, s6, {F_H + 64}
s_and_b32 s7, s{S_J}, 7
s_lshl_b32 s7, s7, 8
s_add_u32 s7, s7, {F_W - 64}
v_lshl_add_u32 v{G}, v0, 2, s6
v_lshl_add_u32 v{G+1}, v0, 2, s7
v_mov_b32 v{G+2}, s6
s_mov_b32 s{S_A}, 0xffff0000
s_mov_b32 s{S_B}, 0x00000fff
s_mov_b32 s{S_C}, 0x00008888
s_mov_b32 s{S_D}, 0xfffff000
v_cndmask_b32 v{G}, v{G}, v{G+1}, s[{S_A}:{S_B}]
v_cndmask_b32 v{G}, v{G}, v{G+2}, s[{S_C}:{S_D}]""", G, G + 1, "hp")]
            if FP <= i < F0:
                if i == FP:
                    for q in range(NB - 1): fq += f_loads(e, q)
                n = -(-len(fq) // (F0 - i))
                fl = fq[:n]; fq = fq[n:]
            pb = []
            if i == HBP - 2:
                pb = [lambda: poll_issue(e, f"""s_lshl_b32 s6, s{S_RB}, 7
s_add_u32 s6, s6, {F_H}
v_and_b32 v{G}, 15, v0
v_lshl_add_u32 v{G}, v{G}, 2, s6""", G, G + 1, "hb")]
            if i == WOP - 2:
                pb = [lambda: poll_issue(e, f"""s_and_b32 s6, s{S_J}, 7
s_lshl_b32 s6, s6, 8
s_add_u32 s6, s6, {F_W + 112}
v_and_b32 v{G}, 7, v0
v_lshl_add_u32 v{G}, v{G}, 2, s6""", G, G + 1, "wo")]
            if i >= F0:
                cnt = 3 if i >= F3 else 2
                idx = list(range(fi, min(fi + cnt, 56))); fi += len(idx)
                fm = [(n // 4, n % 4) for n in idx]
                for (q, k) in fm:
                    if k == 0 and q + NB - 1 < 14:
                        if q + NB - 1 == 6: assert i > HBP
                        nl = f_loads(e, q + NB - 1)
                        for f in nl: need[id(f)] = 4 * q
                        keep.extend(nl); fq += nl
                n = min(len(fq), cnt)
                fl = fq[:n] + pb; fq = fq[n:]
        def em(x): x() if callable(x) else e(x)
        e.stamp(f"xa{i}")
        ex = [E(sc + k) for k in range(16)]; cv = [C(PP + k, sc + 2 * k) for k in range(8)]
        if i + KVPRE <= 2: dq += kv_dma(e, i + KVPRE)
        misc = []
        if i == 29: misc.append(comb_addr())
        if HDEF and i in (HDEF, HDEF + 1):
            misc.append(lambda i=i: e.vm(f"buffer_store_dwordx4 {vr(16 + 4*(i - HDEF),4)}, v{VL16}, {WS}, s{S_HO} offen offset:{1024*(i - HDEF)} {SC}", "hs"))
        if withF and 22 <= i < 30: misc.append(oa_dma(e, i - 22))
        gate = withF and i == FP
        def take(n):
            for _ in range(n):
                if fl and need.get(id(fl[0]), 0) <= done[0]: em(fl.pop(0))
        per = -(-len(fl) // 2)
        for x in ex[0:2]: em(x)
        def fmf(n):
            if n < len(fm):
                q, k = fm[n]
                e.wvm(f"f{q}"); e(f_mfma(q, k)); done[0] += 1
        if fm and fm[0][1] == 0: e.wboth(f"f{fm[0][0]}")
        else: e.all_ds()
        if i > 0: e(mfma(O, V1, PP + 4))
        rd(e, V1, i, 3, "c")
        for x in ex[2:5]: em(x)
        fmf(0)
        if not gate: take(1 if fm else per)
        for x in cv[0:2] + ex[5:7]: em(x)
        if i + 1 < NT: e(mfma(sn, K, Q, "0")); rd(e, v0n, i + 1, 2, "c")
        for x in ex[7:10]: em(x)
        if i + 1 < NT: e(mfma(sn, K + 4, Q + 4))
        if i % 4 == 2 and i + 2 < NT:
            st = i // 4
            if withF and i == FP: poll_check(e, G, G + 1, "hp")
            if withF and i == HBP: poll_check(e, G, G + 1, "hb")
            if withF and i == WOP: poll_check(e, G, G + 1, "wo")
            while dq and i == 2: dq.pop(0)()
            e.wvm(*([f"k{st+1}"] + (["hs"] if i == HFL else []))); e("s_barrier")
            if i == HFL:
                flag_store(e, f"""s_lshl_b32 s6, s{S_RB}, 5
s_add_u32 s6, s6, s{S_J}
s_lshl_b32 s6, s6, 2
s_add_u32 s6, s6, {F_H}
v_mov_b32 v{G+2}, s6""", 1, G + 2)
            assert not dq
            if st + 3 <= 7: dq += kv_dma(e, st + 3)
        if i + 2 < NT: rd(e, K, i + 2, 0, "c"); rd(e, K + 4, i + 2, 1, "c")
        if dq and getattr(dq[0], "scalar", False): dq.pop(0)()
        for x in cv[2:4] + ex[10:12]: em(x)
        fmf(1)
        take(1 if fm else len(fl) if not gate else per)
        for x in ex[12:14] + cv[4:6]: em(x)
        e(mfma(O, v0c, PP, "0" if i == 0 else None))
        for _ in range(1 if i >= 2 else 2):
            if dq: dq.pop(0)()
        if len(fm) < 3: take(len(fl))
        for x in misc: em(x)
        for x in ex[14:16] + cv[6:7]: em(x)
        fmf(2); take(len(fl))
        fq = fl + fq
        em(cv[7])
        if i + 2 >= NT: e("s_nop 1")
    e.all_ds()
    e("s_nop 0")
    e(mfma(O, V1, PP + 4))
    return fi, fq

CMB = L_W2T
def comb_addr():
    T = G
    return f"""s_lshl_b32 s6, s{S_W}, 11
s_add_u32 s6, s6, {CMB}
v_add_u32 v{T}, s6, v{VL16}
v_xor_b32 v{T+1}, 8192, v{T}
s_lshl_b32 s6, s{S_W}, 8
s_add_u32 s6, s6, {CMB + 16384}
v_lshl_add_u32 v{T+2}, v0, 2, s6
v_or_b32 v{T+3}, 32, v0
s_lshl_b32 s6, s{S_QT}, 8
s_add_u32 s6, s6, {CMB + 16384}
v_lshl_add_u32 v{T+3}, v{T+3}, 2, s6
s_mov_b32 s{S_C}, {f2u(2.0 ** -64)}
s_mov_b32 s{S_D}, {f2u(2.0 ** 64)}
s_lshl_b32 s6, s{S_RB}, 9
s_add_u32 s6, s6, s{S_J}
s_lshl_b32 s6, s6, 2
s_add_u32 s6, s6, {F_O2}
v_lshl_add_u32 v6, v0, 7, s6
v_mov_b32 v7, s{S_NON}"""

def attn_finish(e, withF=False):
    T = G
    e.stamp("aend")
    hi = e.newlabel("chi"); jn = e.newlabel("cjn"); fb = e.newlabel("cfb"); bk = e.newlabel("cbk")
    e(f"s_cmp_eq_u32 s{S_KH}, 0\ns_nop 10")
    e.ds(f"ds_write_b32 v{T+2}, v{O+12}")
    e(f"s_cbranch_scc0 {hi}")
    e.ds(f"ds_write_b128 v{T}, {vr(O+8,4)}"); e.ds(f"ds_write_b128 v{T}, {vr(O+12,4)} offset:1024")
    e(f"s_branch {jn}")
    e.label(hi)
    e(f"ds_write_b128 v{T}, {vr(O,4)}\nds_write_b128 v{T}, {vr(O+4,4)} offset:1024")
    e.all_ds()
    for k in range(8): e(f"v_mov_b32 v{O+k}, v{O+8+k}")
    e.label(jn)
    if withF: e.wboth("oa")
    else: e.all_ds()
    e.stamp("xc0")
    e("s_barrier")
    e.stamp("xc1")
    e.ds(f"ds_read2st64_b32 {vr(PP,2)}, v{T+3} offset0:0 offset1:4", "l")
    e.ds(f"ds_read_b128 {vr(S0,4)}, v{T+1}", "h0"); e.ds(f"ds_read_b128 {vr(S0+4,4)}, v{T+1} offset:1024", "h1")
    e(f"s_mov_b32 s{S_A}, 0\ns_sub_u32 s{S_B}, 0, s{S_KH}")
    e.wds("l")
    e(f"""v_add_f32 v{PP}, v{PP}, v{PP+1}
v_rcp_f32 v{PP+1}, v{PP}
v_cmp_nle_f32 vcc, s{S_C}, v{PP}
v_cmp_nge_f32 s[{S_E}:{S_F}], s{S_D}, v{PP}""")
    e.all_ds()
    for k in range(8): e(f"v_add_f32 v{S0+k}, v{S0+k}, v{O+k}")
    e(f"s_or_b64 s[{S_E}:{S_F}], s[{S_E}:{S_F}], vcc")
    for k in range(8): e(f"v_mul_f32 v{S0+k}, v{S0+k}, v{PP+1}")
    def pack_store():
        for k in range(4): e(f"v_cvt_pk_bf16_f32 v{K+k}, v{S0+2*k}, v{S0+2*k+1}")
        e(f"""v_cndmask_b32 v{K+2}, v{K+2}, 0, s[{S_A}:{S_B}]
v_cndmask_b32 v{K+3}, v{K+3}, 0, s[{S_A}:{S_B}]""")
    pack_store()
    e.vm(f"buffer_store_dwordx4 {vr(K,4)}, v{VL16}, {WS}, s{S_OO} offen {SC}", "os")
    e(f"""v_add_f32 v{PP+2}, |v{S0}|, |v{S0+1}|
v_add_f32 v{PP+3}, |v{S0+2}|, |v{S0+3}|
v_add_f32 v{PP+4}, |v{S0+4}|, |v{S0+5}|
v_add_f32 v{PP+5}, |v{S0+6}|, |v{S0+7}|
v_add_f32 v{PP+2}, v{PP+2}, v{PP+3}
v_add_f32 v{PP+4}, v{PP+4}, v{PP+5}
s_mov_b32 s6, 0x7f7fffff
v_add_f32 v{PP+2}, v{PP+2}, v{PP+4}
v_cmp_nge_f32 vcc, s6, v{PP+2}
s_nop 1
s_or_b64 vcc, vcc, s[{S_E}:{S_F}]""")
    if 'forcefb' in X: e("s_mov_b64 vcc, 1")
    e(f"s_cbranch_vccnz {fb}")
    e.label(bk)
    FALLBACKS.append((fb, bk))
    e.stamp("xc2")

FALLBACKS = []
def fallback(e, fb, bk):
    l1 = e.newlabel("fb1"); l2 = e.newlabel("fb2"); l3 = e.newlabel("fb3")
    M = PP + 7
    e.label(fb)
    if 'fbcount' in X:
        e(f"""s_mov_b32 s80, s{P_DBG}
s_mov_b32 s81, s{P_DBG+1}
s_mov_b32 s82, 256
s_mov_b32 s83, 0x00020000
v_mov_b32 v{M}, 0
v_mov_b32 v{M-1}, 1
s_mov_b64 exec, 1
buffer_atomic_add v{M-1}, v{M}, s[80:83], 0 offen
v_mov_b32 v{M-1}, s2
buffer_store_dword v{M-1}, v{M}, s[80:83], 0 offen offset:4
v_mov_b32 v{M-1}, s{S_W}
buffer_store_dword v{M-1}, v{M}, s[80:83], 0 offen offset:8
v_mov_b32 v{M-1}, vcc_lo
buffer_store_dword v{M-1}, v{M}, s[80:83], 0 offen offset:12
v_mov_b32 v{M-1}, vcc_hi
buffer_store_dword v{M-1}, v{M}, s[80:83], 0 offen offset:16
v_mov_b32 v{M-1}, s{S_E}
buffer_store_dword v{M-1}, v{M}, s[80:83], 0 offen offset:20
v_mov_b32 v{M-1}, s{S_F}
buffer_store_dword v{M-1}, v{M}, s[80:83], 0 offen offset:24
buffer_store_dword v{PP}, v{M}, s[80:83], 0 offen offset:28
buffer_store_dword v{PP+2}, v{M}, s[80:83], 0 offen offset:32
s_waitcnt vmcnt(0)
s_mov_b64 exec, -1""")
    e(f"s_mov_b32 s6, {KVF}\nv_mov_b32 v{M}, 0xff800000")
    e.label(l1)
    e(f"""buffer_load_dwordx4 {vr(K,4)}, v{VL16}, {WS}, s6 offen {SC}
buffer_load_dwordx4 {vr(K+4,4)}, v{VL16}, {WS}, s6 offen offset:1024 {SC}
s_add_u32 s6, s6, 4096
s_waitcnt vmcnt(0)""")
    e(mfma(S0, K, Q, "0")); e(mfma(S0, K + 4, Q + 4))
    e("s_nop 11")
    for k in range(8): e(f"v_max3_f32 v{M}, v{M}, v{S0+2*k}, v{S0+2*k+1}")
    e(f"""s_cmp_lt_u32 s6, {KVF + 64*4096}
s_cbranch_scc1 {l1}
v_mov_b32 v{PP}, v{M}
s_nop 1
v_permlane32_swap_b32 v{PP}, v{M}
v_max_f32 v{M}, v{M}, v{PP}
v_cvt_pk_bf16_f32 v{PP}, v{M}, v{M}
v_and_b32 v{PP}, s{S_MASK}, v{PP}
v_sub_f32 v{PP+1}, v{M}, v{PP}
v_cvt_pk_bf16_f32 v{PP+2}, v{PP+1}, v{PP+1}
v_and_b32 v{PP+2}, s{S_MASK}, v{PP+2}
v_sub_f32 v{PP+1}, v{PP+1}, v{PP+2}
v_cvt_pk_bf16_f32 v{PP}, -v{PP}, -v{PP+2}
v_cvt_pk_bf16_f32 v{PP+1}, -v{PP+1}, 0
v_cndmask_b32 v{Q+6}, v{Q+6}, v{PP}, s[{S_HI}:{S_HI+1}]
v_cndmask_b32 v{Q+7}, v{Q+7}, v{PP+1}, s[{S_HI}:{S_HI+1}]
s_mov_b32 s6, {KVF}""")
    for k in range(16): e(f"v_mov_b32 v{O+k}, 0")
    e.label(l2)
    for f in range(4): e(f"buffer_load_dwordx4 {vr(K+4*f,4)}, v{VL16}, {WS}, s6 offen offset:{1024*f} {SC}")
    e("s_add_u32 s6, s6, 4096\ns_waitcnt vmcnt(0)")
    e(mfma(S0, K, Q, "0")); e(mfma(S0, K + 4, Q + 4))
    e("s_nop 11")
    for k in range(16): e(f"v_exp_f32 v{S0+k}, v{S0+k}")
    e("s_nop 0")
    for k in range(8): e(f"v_cvt_pk_bf16_f32 v{PP+k}, v{S0+2*k}, v{S0+2*k+1}")
    e("s_nop 1")
    e(mfma(O, K + 8, PP)); e(mfma(O, K + 12, PP + 4))
    e(f"""s_cmp_lt_u32 s6, {KVF + 64*4096}
s_cbranch_scc1 {l2}
s_nop 11
v_mov_b32 v{PP}, v{O+12}
v_mov_b32 v{PP+1}, v{O+12}
s_cmp_eq_u32 s{S_KH}, 0
s_nop 0
v_permlane32_swap_b32 v{PP}, v{PP+1}
v_rcp_f32 v{PP+1}, v{PP+1}
s_cbranch_scc1 {l3}""")
    for k in range(8): e(f"v_mov_b32 v{O+k}, v{O+8+k}")
    e.label(l3)
    e("s_nop 0")
    for k in range(8): e(f"v_mul_f32 v{S0+k}, v{O+k}, v{PP+1}")
    for k in range(4): e(f"v_cvt_pk_bf16_f32 v{K+k}, v{S0+2*k}, v{S0+2*k+1}")
    e(f"""v_cndmask_b32 v{K+2}, v{K+2}, 0, s[{S_A}:{S_B}]
v_cndmask_b32 v{K+3}, v{K+3}, 0, s[{S_A}:{S_B}]
buffer_store_dwordx4 {vr(K,4)}, v{VL16}, {WS}, s{S_OO} offen {SC}
s_waitcnt vmcnt(0)
s_branch {bk}""")

OFA, OFD = 6, 7
def o_signal(e):
    l = e.newlabel("os")
    e(f"s_cbranch_vccz {l}\ns_mov_b64 exec, 0xffff\nbuffer_store_dword v{OFD}, v{OFA}, {WS}, 0 offen {SC}\ns_mov_b64 exec, -1")
    e.label(l)

def o_flag(e):
    e.stamp("xc3")
    e(f"s_cmp_eq_u32 s{S_W}, 0\ns_cselect_b64 vcc, -1, 0")
    e.wvm("os"); e.stamp("xc4"); e("s_barrier")
    o_signal(e)

def tail(e, nq, fq):
    T = G
    SUM = 232
    RB = 64
    OBR = [96 + 4 * k for k in range(7)] + [36]
    AD = 248
    for f in fq: f()
    for n in range(nq, 56):
        q, k = n // 4, n % 4
        if k == 0 and q + NB - 1 < 14:
            for f in f_loads(e, q + NB - 1): f()
        e.wvm(f"f{q}"); e(f_mfma(q, k))
    e(f"""s_lshl_b32 s6, s{S_W}, 13
s_add_u32 s6, s6, {RING}
v_add_u32 v{AD+6}, s6, v{VL16}
v_xor_b32 v{AD+7}, 8192, v{AD+6}""")
    if nq < 56: e("s_nop 8")
    setup = Side(e)
    setup.add(f"""s_lshr_b32 s6, s{S_J}, 3
s_lshl_b32 s7, s{S_RB}, 1
s_add_u32 s6, s6, s7
s_and_b32 s{S_B}, s{S_W}, 1
s_lshl_b32 s{S_C}, s6, 1
s_add_u32 s{S_C}, s{S_C}, s{S_B}
s_mul_i32 s{S_C}, s{S_C}, 144
s_lshr_b32 s{S_A}, s{S_W}, 1
s_lshl_b32 s{S_D}, s{S_A}, 3
s_add_u32 s{S_D}, s{S_D}, 112
s_add_u32 s{S_C}, s{S_C}, s{S_D}
s_lshl_b32 s{S_C}, s{S_C}, 10
s_and_b32 s7, s{S_J}, 7
s_add_u32 s{S_D}, s{S_C}, 4096
s_lshl_b32 s{S_A}, s{S_A}, 14
s_lshl_b32 s{S_B}, s{S_B}, 13
s_add_u32 s{S_G}, s{S_A}, s{S_B}
s_add_u32 s{S_G}, s{S_G}, {RING}
v_and_b32 v{T}, 31, v0
v_lshrrev_b32 v{T+1}, 5, v0
v_and_b32 v{T+2}, 7, v0
v_xor_b32 v{T+1}, v{T+1}, v{T+2}
v_lshlrev_b32 v{T+1}, 4, v{T+1}
v_lshl_add_u32 v{T}, v{T}, 8, v{T+1}
v_add_u32 v{AD}, s{S_G}, v{T}
v_xor_b32 v{AD+1}, 32, v{AD}
v_xor_b32 v{AD+2}, 64, v{AD}
v_xor_b32 v{AD+3}, 96, v{AD}
s_lshl_b32 s6, s6, 6
s_lshl_b32 s{S_B}, s{S_W}, 3
s_add_u32 s6, s6, s{S_B}
v_lshrrev_b32 v{T}, 3, v0
v_add_u32 v{T+1}, s6, v{T}
v_mul_u32_u24 v{T+1}, 896, v{T+1}
v_lshl_add_u32 v{T+1}, v{T+2}, 4, v{T+1}
s_lshl_b32 s7, s7, 7
v_add_u32 v{VO}, s7, v{T+1}
v_lshlrev_b32 v{T+2}, 1, v{T+2}
v_xor_b32 v{T+2}, v{T+2}, v{T}
v_lshlrev_b32 v{T+2}, 4, v{T+2}
v_lshl_add_u32 v{T}, v{T}, 8, v{T+2}
s_lshl_b32 s6, s{S_W}, 11
s_add_u32 s6, s6, {RING}
v_add_u32 v{AD+4}, s6, v{T}
v_xor_b32 v{AD+5}, 16, v{AD+4}
v_add_u32 v{T+2}, {3 * RING}, v{T+3}""")
    e(f"s_lshr_b32 s6, s{S_W}, 1\ns_lshl_b32 s6, s6, 13\nv_add_u32 v{T+3}, s6, v{VL16}\ns_nop 0")
    oaq = [(lambda k=k: e.ds(f"ds_read_b128 {vr(OAREG[k],4)}, v{T+2 if k < 8 else T+3} offset:{(k & 7) * 1024}", "oar")) for k in range(16)]
    nw1 = P("NW1", 2)
    def oflag():
        e.stamp("xc3")
        e(f"s_cmp_eq_u32 s{S_W}, 0\ns_cselect_b64 vcc, -1, 0")
        e.wvm("os")
        if nw1 == 8: e.all_ds()
        e.stamp("xc4"); e("s_barrier")
        o_signal(e)
    for q in range(8):
        if q == nw1: oflag()
        e.ds(f"ds_write_b128 v{AD+6}, {vr(FA+32+4*q,4)} offset:{q*1024}")
        setup.emit(6)
    setup.flush()
    if nw1 == 8: oflag()
    if not P('OAL', 1):
        for f in oaq: f()
    e.vm(f"buffer_load_dwordx4 {vr(XRES,4)}, v{VO}, s[{SRD_X}:{SRD_X+3}], 0 offen", "xr")
    if nw1 < 8: e.all_ds(); e("s_barrier")
    for q in range(8): e.ds(f"ds_read_b128 {vr(RB+4*q,4)}, v{AD+7} offset:{q*1024}", f"p{q}")
    def olook():
        poll_issue(e, f"""s_lshl_b32 s6, s{S_RB}, 4
s_add_u32 s6, s6, s{S_J}
s_lshl_b32 s6, s6, 7
s_add_u32 s6, s6, {F_O2}
v_and_b32 v{T}, 15, v0
v_lshl_add_u32 v{T}, v{T}, 2, s6""", T, T + 1, "op")
    if P('OLATE', 1) == 0: olook()
    srd(e, SRD_OUT, P_OUT, 2048 * 896)
    for q in range(8):
        e.wds(f"p{q}")
        for k in range(4): e(f"v_add_f32 v{FA+4*q+k}, v{FA+4*q+k}, v{RB+4*q+k}")
    if P('OLATE', 1) == 2:
        for f in oaq: f()
        oaq = []
    if P('OLATE', 1): olook()
    e.stamp("t1")
    poll_check(e, T, T + 1, "op", P("OSLEEP", 1))
    e("s_barrier")
    e.stamp("t2")
    for k in range(8):
        e.vm(f"buffer_load_dwordx4 {vr(OBR[k],4)}, v{VL16}, {WS}, s{S_C if k < 4 else S_D} offen offset:{(k&3)*1024} {SC}", f"ob{k}")
    if P('OAL', 1):
        for f in oaq: f()
        e.all_ds()
    e.wvm("xr")
    for k in range(4): e(f"v_lshlrev_b32 v{SUM+2*k}, 16, v{XRES+k}\nv_and_b32 v{SUM+1+2*k}, s{S_MASK}, v{XRES+k}")
    for k in range(8):
        e.wvm(f"ob{k}")
        for d2 in range(2): e(mfma(FA + 16*d2, OAREG[2*k + d2], OBR[k]))
    e("s_nop 10")
    e.stamp("t3")
    for d2 in range(2):
        for q in range(4): e.ds(f"ds_write_b128 v{AD+q}, {vr(FA+16*d2+4*q,4)} offset:{d2*128}")
    e.all_ds()
    e("s_barrier")
    for p in range(4):
        e.ds(f"ds_read_b128 {vr(RB+8*p,4)}, v{AD+4} offset:{p*16384}", f"s{p}")
        e.ds(f"ds_read_b128 {vr(RB+8*p+4,4)}, v{AD+5} offset:{p*16384}", f"s{p}")
    for p in range(4):
        e.wds(f"s{p}")
        for k in range(8): e(f"v_add_f32 v{SUM+k}, v{SUM+k}, v{RB+8*p+k}")
    for k in range(4): e(f"v_cvt_pk_bf16_f32 v{XRES+k}, v{SUM+2*k}, v{SUM+1+2*k}")
    e.vm(f"buffer_store_dwordx4 {vr(XRES,4)}, v{VO}, s[{SRD_OUT}:{SRD_OUT+3}], 0 offen {os.environ.get('OUTF', '')}")

DOC = """;
;            one extra MFMA, 1/std folded into the GELU constants); h, q, k, v and the transposed down / output
;  tail    : o of the 16 heads, output projection, cross-wave reduction, residual, store
"""
def build():
    e = Em()
    kn = NAME + "_kernel"
    e.a.raw(f".globl {kn}\n.p2align 8\n.type {kn},@function")
    e.label(kn)
    prologue(e)
    gelu, h_off = phaseB(e)
    attn_setup(e, gelu, h_off)
    e(f"s_and_b32 s6, s{S_J}, 7\ns_cmp_eq_u32 s6, 7\ns_cbranch_scc1 C_noF")
    sn = e.snap(); ns = e.nst
    nq, fq = attn_loop(e, True)
    attn_finish(e, True)
    tail(e, nq, fq)
    nend = e.nst
    e("s_branch K_fin")
    e.label("C_noF")
    e.restore(sn); e.nst = ns
    attn_loop(e, False)
    attn_finish(e)
    o_flag(e)
    e(f"""s_cmp_eq_u32 s{S_RB}, 0
s_cbranch_scc0 C_noF_done
s_cmp_eq_u32 s{S_J}, 7
s_cbranch_scc0 C_noF_done
s_cmp_eq_u32 s{S_W}, 0
s_cbranch_scc0 C_noF_done""")
    for k in range(4):
        e(f"""v_lshrrev_b32 v{G}, 4, v0
v_and_b32 v{G+1}, 15, v0
v_lshlrev_b32 v{G}, 7, v{G}
v_lshl_add_u32 v{G}, v{G+1}, 2, v{G}
v_add_u32 v{G}, {F_H + 512*k}, v{G}""")
        e(f"buffer_load_dword v{G+1}, v{G}, {WS}, 0 offen {SC}"); e.mark[f"ep{k}"] = len(e.q['vm'])
        poll_check(e, G, G + 1, f"ep{k}")
    e(f"v_mov_b32 v{G}, {EPO}\nv_mov_b32 v{G+1}, s{S_NON}\ns_mov_b64 exec, 1\nbuffer_store_dword v{G+1}, v{G}, {WS}, 0 offen {SC}\ns_mov_b64 exec, -1")
    e.label("C_noF_done")
    while e.nst < nend and not STAMPS_OFF: e.stamp()
    e.label("K_fin")
    if os.environ.get("AMPAT") == "xfin": e("s_waitcnt vmcnt(0)"); e.stamp("xfin")
    if os.environ.get("AMPAT"):
        e("""s_waitcnt vmcnt(0)
s_memrealtime s[92:93]
s_waitcnt lgkmcnt(0)
s_sub_u32 s7, s94, s96
s_mul_i32 s7, s7, 10
K_amp:
s_sleep 1
s_memrealtime s[98:99]
s_waitcnt lgkmcnt(0)
s_sub_u32 s6, s98, s92
s_cmp_lt_u32 s6, s7
s_cbranch_scc1 K_amp""")
    if 'stdiag' in X:
        e("""s_memtime s[92:93]
s_waitcnt lgkmcnt(0)
K_sd:
s_sleep 2
s_memtime s[90:91]
s_waitcnt lgkmcnt(0)
s_sub_u32 s6, s90, s92
s_cmp_lt_u32 s6, s94
s_cbranch_scc1 K_sd""")
    if 'fix' in X:
        e("""K_fx:
s_sleep 1
s_memrealtime s[98:99]
s_waitcnt lgkmcnt(0)
s_sub_u32 s6, s98, s96
s_cmp_lt_u32 s6, 10000
s_cbranch_scc1 K_fx""")
    if 'amp' in X:
        e("""s_waitcnt vmcnt(0)
s_memrealtime s[98:99]
s_waitcnt lgkmcnt(0)
s_sub_u32 s7, s98, s96
s_mul_i32 s7, s7, 10
K_fx:
s_sleep 1
s_memrealtime s[98:99]
s_waitcnt lgkmcnt(0)
s_sub_u32 s6, s98, s96
s_cmp_lt_u32 s6, s7
s_cbranch_scc1 K_fx""")
    if STAMPS:
        e.stamp()
        e.label("K_fin2")
        e("s_memrealtime s[98:99]\ns_waitcnt lgkmcnt(0) vmcnt(0)")
        e(f"""s_mov_b32 s40, s{P_WS}
s_mov_b32 s41, s{P_WS+1}
s_mov_b32 s42, 0x10000000
s_mov_b32 s43, 0x00020000
s_lshl_b32 s6, s2, 3
s_add_u32 s6, s6, s{S_W}
s_lshl_b32 s6, s6, 6
s_add_u32 s6, s6, {STAMP_WS}
v_mov_b32 v2, s96
v_mov_b32 v3, s98""")
        for k in range(10): e(f"v_mov_b32 v{4+k}, {'s%d' % (76+2*k) if k < e.nst else 0}")
        e("v_mov_b32 v1, 0\ns_mov_b64 exec, 1")
        for q in range(3): e(f"buffer_store_dwordx4 v[{2+4*q}:{5+4*q}], v1, s[40:43], s6 offen offset:{16*q}")
    e("s_endpgm")
    for fb, bk in FALLBACKS: fallback(e, fb, bk)
    e.label("K_end")
    e("s_endpgm")
    probs = check_hazards(e.a.lines, "k")
    hdr = open("cdna_kernels/" + NAME + ".s.ref").read().split("; Override launch")[0]
    out = hdr + f"; @launch grid=(256,1,1) block=(512,1,1) lds={LDS_BYTES}\n"
    out += DOC + '.amdgcn_target "amdgcn-amd-amdhsa--gfx950"\n.text\n' + e.a.text()
    out += f""".section .rodata,"a"
.p2align 6
.amdhsa_kernel {kn}
  .amdhsa_next_free_vgpr 256
  .amdhsa_next_free_sgpr 102
  .amdhsa_accum_offset 256
  .amdhsa_group_segment_fixed_size 0
  .amdhsa_kernarg_size 96
  .amdhsa_user_sgpr_count 2
  .amdhsa_user_sgpr_kernarg_segment_ptr 1
  .amdhsa_system_sgpr_workgroup_id_x 1
  .amdhsa_float_denorm_mode_32 3
.end_amdhsa_kernel
"""
    return out, probs

if __name__ == "__main__":
    out, probs = build()
    for p in probs: print("HAZARD", p, file=sys.stderr)
    open(sys.argv[1] if len(sys.argv) > 1 else "cdna_kernels/" + NAME + ".s", "w").write(out)
```

```python
import sys, os, math, struct
from asmlib import *
X = set(os.environ.get('XFLAGS', '').split(','))
def P(name, default): return int(os.environ.get(name, default))
NAME = "parallel_sum__grouped_kv_mqa__glu_gated_geglu__prompt"
def f2u(x): return struct.unpack("<I", struct.pack("<f", x))[0]

A2F = 0
W2T = 64 * 144 * 1024
QF  = W2T + 7 * 144 * 2048
KVF = QF + 64 * 16 * 2048
FLG = KVF + 64 * 4096
RKV = P("RKV", 16)
F_W  = FLG
F_H  = FLG + 2048
F_O  = FLG + 4096
EPO  = FLG + 6144
F_Q  = FLG + 4096
SPLITQ = P('SPLITQ', 1)
F_KV = FLG + 8192
F_O2 = F_KV + 256 * RKV
STAT = F_O2 + 32768
WS_END = STAT + 2048 * 8
OOB = 0x7ffffff0
P_X, P_WQ, P_WK, P_WV, P_WO, P_BX, P_WG, P_WU, P_WD, P_OUT, P_DBG, P_WS = 8, 10, 12, 14, 16, 18, 20, 22, 24, 26, 28, 30
SRD_X, SRD_WS, SRD_T, SRD_PC = 32, 36, 40, 44
SRD_OUT = SRD_T
S_W, S_RB, S_J = 3, 4, 5
(S_WB, S_MASK, S_XO, S_XO2, S_RT, S_CG, S_MUL, S_T0, S_T1, S_U, S_NON, S_LA, S_LB, S_TO, S_QU) = range(48, 63)
S_HI = 64
S_A, S_B, S_C, S_D, S_E, S_F = 66, 67, 68, 69, 70, 71
S_G, S_H2 = 72, 73
S_CNT = 74
WS = f"s[{SRD_WS}:{SRD_WS+3}]"
SC = "sc1"
STAMPS = bool(os.environ.get("STAMPS"))
STAMP_WS = 200 * 1024 * 1024
SPIN_MAX = 1 << 21
STAMPS_OFF = False

class Em:
    def __init__(s):
        s.a = Asm(); s.q = {'ds': [], 'vm': []}; s.done = {'ds': 0, 'vm': 0}; s.nst = 0; s.uid = 0; s.mark = {}
    def __call__(s, t): s.a(t)
    def label(s, l): s.a.label(l)
    def ds(s, ins, tag=None): s.a(ins); s.q['ds'].append(tag)
    def vm(s, ins, tag=None): s.a(ins); s.q['vm'].append(tag)
    def _n(s, k, tags, cap):
        idx = -1
        for t in tags:
            ii = [i for i, x in enumerate(s.q[k]) if x == t]
            if not ii and 'nodma' in X: continue
            assert ii, f"tag {t} never issued"
            idx = max(idx, ii[-1])
        if idx < s.done[k]: return None
        n = min(len(s.q[k]) - 1 - idx, cap)
        s.done[k] = len(s.q[k]) - n
        return n
    def wds(s, *tags):
        n = s._n('ds', tags, 15)
        if n is not None: s.a(f"s_waitcnt lgkmcnt({n})")
    def wvm(s, *tags):
        n = s._n('vm', tags, 63)
        if n is not None: s.a(f"s_waitcnt vmcnt({n})")
    def wboth(s, *tags):
        n = s._n('vm', tags, 63)
        s.a("s_waitcnt lgkmcnt(0)" if n is None else f"s_waitcnt vmcnt({n}) lgkmcnt(0)"); s.done['ds'] = len(s.q['ds'])
    def all_ds(s): s.a("s_waitcnt lgkmcnt(0)"); s.done['ds'] = len(s.q['ds'])
    def all_vm(s): s.a("s_waitcnt vmcnt(0)"); s.done['vm'] = len(s.q['vm'])
    def snap(s): return ({k: list(v) for k, v in s.q.items()}, dict(s.done))
    def restore(s, sn): s.q = {k: list(v) for k, v in sn[0].items()}; s.done = dict(sn[1])
    def stamp(s, name=None):
        if name is not None and name == os.environ.get("IDLEAT"): s.a("s_sleep 32")
        if name is not None and name == os.environ.get("AMPAT"):
            s.a("s_memrealtime s[94:95]"); s.all_ds()
        sel = os.environ.get("STSEL")
        if sel is not None and name is not None and name not in sel.split(","): return
        if sel is None and name is not None and name.startswith("x"): return
        if STAMPS and not STAMPS_OFF:
            assert s.nst < 10
            s.a(f"{'s_memrealtime' if os.environ.get('RT') else 's_memtime'} s[{76+2*s.nst}:{77+2*s.nst}]"); s.nst += 1
            s.all_ds()
    def newlabel(s, p): s.uid += 1; return f"{p}_{s.uid}"

def srd(e, d, p, nbytes):
    e(f"s_mov_b32 s{d}, s{p}\ns_mov_b32 s{d+1}, s{p+1}\ns_mov_b32 s{d+2}, {nbytes}\ns_mov_b32 s{d+3}, 0x00020000")
def mfma(d, A, B, C=None):
    return f"v_mfma_f32_32x32x16_bf16 {vr(d,16)}, {vr(A,4)}, {vr(B,4)}, {vr(d,16) if C is None else C}"
def mfma16(d, A, B, C=None):
    return f"v_mfma_f32_16x16x32_bf16 {vr(d,4)}, {vr(A,4)}, {vr(B,4)}, {vr(d,4) if C is None else C}"

class Side:
    def __init__(s, e): s.e = e; s.q = []
    def add(s, items):
        if isinstance(items, str):
            raw = [l.strip() for l in items.strip().split("\n") if l.strip()]
            items = []
            for l in raw:
                if l.startswith("s_cselect"): items[-1] += "\n" + l
                else: items.append(l)
        s.q += list(items)
    def emit(s, n):
        while n > 0 and s.q:
            it = s.q.pop(0)
            if callable(it): it()
            else: s.e(it)
            n -= 1
    def flush(s): s.emit(1 << 30)

def flag_store(e, addr_lines, nlanes, vt):
    l = e.newlabel("fl")
    e(f"s_cmp_eq_u32 s{S_W}, 0\ns_cbranch_scc0 {l}")
    e(addr_lines)
    e(f"v_mov_b32 v{vt+1}, s{S_NON}\ns_mov_b64 exec, {(1 << nlanes) - 1}\nbuffer_store_dword v{vt+1}, v{vt}, {WS}, 0 offen {SC}\ns_mov_b64 exec, -1")
    e.label(l)

def poll_issue(e, addr_lines, vaddr, vdat, tag):
    l = e.newlabel("pi")
    e(f"s_cmp_eq_u32 s{S_W}, 0\ns_cbranch_scc0 {l}")
    e(addr_lines)
    e(f"buffer_load_dword v{vdat}, v{vaddr}, {WS}, 0 offen {SC}")
    e.label(l)
    e.mark[tag] = len(e.q['vm'])

def poll_check(e, vaddr, vdat, tag, sleep=None):
    ok = e.newlabel("pok"); sp = e.newlabel("psp")
    e(f"s_cmp_eq_u32 s{S_W}, 0\ns_cbranch_scc0 {ok}")
    e(f"s_waitcnt vmcnt({min(63, len(e.q['vm']) - e.mark[tag])})")
    e(f"v_cmp_ne_u32 vcc, s{S_NON}, v{vdat}\ns_cbranch_vccz {ok}\ns_mov_b32 s{S_CNT}, {SPIN_MAX}")
    e.label(sp)
    e(f"""s_sleep {P('SLEEP', 4) if sleep is None else sleep}
buffer_load_dword v{vdat}, v{vaddr}, {WS}, 0 offen {SC}
s_sub_u32 s{S_CNT}, s{S_CNT}, 1
s_waitcnt vmcnt(0)
v_cmp_ne_u32 vcc, s{S_NON}, v{vdat}
s_cmp_eq_u32 s{S_CNT}, 0
s_cbranch_scc1 {ok}
s_cbranch_vccnz {sp}""")
    if 'spincnt' in X and tag in SPINIDX: e(f"s_sub_u32 s{78 + 2 * SPINIDX[tag]}, {SPIN_MAX + 1000}, s{S_CNT}")
    e.label(ok)
SPINIDX = {'kvp': 0, 'hp': 1, 'hb': 2, 'wo': 3, 'op': 4}

RING = 32768
L_W2T = 131072
L_CSA = L_W2T + 8192
L_CSB = L_CSA + 2048
L_ST  = L_CSB + 2048
L_KVB = L_ST + 4096
L_FLG = L_KVB + 4096
LDS_BYTES = L_FLG + 256

VL16, VT, VX, GA, GS = 1, 2, 3, 4, 6
XA, WA = 8, 12
ST, SEL, CSA, WF, TM = 20, 24, 28, 36, 60
ACCA, ACCB, XR, G = 64, 96, 128, 240
SQA, SQB, TP = 60, 240, 248
WB, GB, PL = 250, 102, 252
R_, S_, AC, BC, I2 = 8, 9, 10, 11, 3
BEXT = 60


TA, TS, TX, TD = 96, 98, 99, 100
S_ISQ, S_SH = 63, 75
RW = 104
def w_source(row, c, dst, gs, t0):
    return f"""v_cmp_le_u32 vcc, s{S_A}, v{c}
v_mul_lo_u32 v{dst}, v{row}, s{S_B}
v_lshl_add_u32 v{dst}, v{c}, 4, v{dst}
v_add_u32 v{dst}, s{S_C}, v{dst}
v_subrev_u32 v{c}, s{S_A}, v{c}
v_lshlrev_b32 v{c}, s{S_G}, v{c}
v_mul_lo_u32 v{t0}, v{row}, s{S_D}
v_add3_u32 v{t0}, v{t0}, v{c}, s{S_H2}
v_cndmask_b32 v{dst}, v{dst}, v{t0}, vcc
v_mov_b32 v{gs}, s{S_B}
v_mov_b32 v{t0}, s{S_D}
v_cndmask_b32 v{gs}, v{gs}, v{t0}, vcc
v_lshlrev_b32 v{gs}, 5, v{gs}"""

ROTS = {0: [0]*8, 1: [0, 3, 2, 5, 4, 0, 6, 2], 2: [0, 3, 3, 0, 0, 3, 3, 0], 3: [0, 1, 2, 3, 4, 5, 6, 0], 4: [0, 4, 1, 5, 2, 6, 3, 0]}
ROTTAB = sum(v << (4 * i) for i, v in enumerate(ROTS[P("ROT", 0)]))
S_ROT = 47
HLATE = P('HLATE', 0); S_HA = 45
S_WF = 46
RPAR, RBIT = P("RPAR", 0), P("RBIT", 0)
RPARCODE = "" if not RPAR else f"""
s_lshr_b32 s{S_F}, s2, 3
s_lshr_b32 s{S_T0}, s2, 6
s_xor_b32 s{S_F}, s{S_F}, s{S_T0}
s_and_b32 s{S_F}, s{S_F}, {RBIT or 1}
s_mul_i32 s{S_F}, s{S_F}, {RPAR}
s_add_u32 s{S_XO}, s{S_XO}, s{S_F}
s_cmp_ge_u32 s{S_XO}, 7
s_cselect_b32 s{S_F}, 7, 0
s_sub_u32 s{S_XO}, s{S_XO}, s{S_F}"""
def prologue(e):
    T = TM
    ROTCODE = f"""s_and_b32 s{S_XO}, s2, 7
s_lshl_b32 s{S_XO}, s{S_XO}, 2
s_lshr_b32 s{S_XO}, {ROTTAB:#x}, s{S_XO}
s_and_b32 s{S_XO}, s{S_XO}, 7{RPARCODE}
s_mov_b32 s{S_ROT}, s{S_XO}
s_lshl_b32 s{S_F}, s{S_XO}, 6
s_lshl_b32 s{S_XO}, s{S_XO}, 7
v_add_u32 v{T+2}, s{S_F}, v{T+2}
""" if any(ROTS[P('ROT', 0)]) or RPAR else f"s_mov_b32 s{S_ROT}, 0\n"
    e(f"s_cmp_ge_u32 s2, 256\ns_cbranch_scc1 K_end")
    if STAMPS or 'fix' in X or 'amp' in X or os.environ.get("AMPAT"): e("s_memrealtime s[96:97]")
    e.stamp()
    if 'spincnt' in X:
        for k in range(6): e(f"s_movk_i32 s{78 + 2*k}, 1000")
        e.nst = 7
    e("s_load_dwordx16 s[8:23], s[0:1], 0\ns_load_dwordx8 s[24:31], s[0:1], 64")
    e(f"s_getpc_b64 s[{SRD_PC}:{SRD_PC+1}]")
    e.label("K_pc")
    e(f"""s_mov_b32 s{SRD_PC+2}, K_end-K_pc
s_mov_b32 s{SRD_PC+3}, 0x00020000""")
    if P("CPF", 1):
        e(f"s_lshr_b32 s6, s2, 3\ns_lshl_b32 s6, s6, 11\nv_lshrrev_b32 v1, 5, v0\nv_lshl_add_u32 v1, v1, 7, s6")
    else: e("v_lshlrev_b32 v1, 7, v0")
    e.vm(f"buffer_load_dword v{TD}, v1, s[{SRD_PC}:{SRD_PC+3}], 0 offen")
    T = TM
    e(f"""v_lshrrev_b32 v1, 6, v0
v_and_b32 v0, 63, v0
v_readfirstlane_b32 s{S_W}, v1
s_nop 1""")
    e(f"""s_lshl_b32 s{S_TG}, s2, 3
s_add_u32 s{S_TG}, s{S_TG}, s{S_W}
s_mul_i32 s6, s{S_TG}, 896
v_lshl_add_u32 v{TX}, v0, 4, s6
v_cmp_lt_u32 vcc, 55, v0
v_mov_b32 v{TX+2}, {OOB}
s_nop 0
v_cndmask_b32 v{TX}, v{TX}, v{TX+2}, vcc""")
    WT = f"""s_min_u32 s6, s{S_TG}, 1393
s_cmp_ge_u32 s6, 448
s_cselect_b32 s{SRD_T}, s{P_WU}, s{P_WG}
s_cselect_b32 s{SRD_T+1}, s{P_WU+1}, s{P_WG+1}
s_cselect_b32 s{S_A}, 448, 0
s_mov_b32 s{S_D}, {448*3584}
s_cmp_ge_u32 s6, 896
s_cselect_b32 s{SRD_T}, s{P_WQ}, s{SRD_T}
s_cselect_b32 s{SRD_T+1}, s{P_WQ+1}, s{SRD_T+1}
s_cselect_b32 s{S_A}, 896, s{S_A}
s_cselect_b32 s{S_B}, 6, 11
s_cselect_b32 s{S_C}, 7, 28
s_cselect_b32 s{S_D}, {448*896}, s{S_D}
s_cmp_ge_u32 s6, 1344
s_cselect_b32 s{SRD_T}, s{P_WK}, s{SRD_T}
s_cselect_b32 s{SRD_T+1}, s{P_WK+1}, s{SRD_T+1}
s_cselect_b32 s{S_A}, 1344, s{S_A}
s_cselect_b32 s{S_B}, 7, s{S_B}
s_cselect_b32 s{S_C}, 8, s{S_C}
s_cselect_b32 s{SRD_T+2}, {448*56}, s{S_D}
s_cmp_ge_u32 s6, 1369
s_cselect_b32 s{SRD_T}, s{P_WV}, s{SRD_T}
s_cselect_b32 s{SRD_T+1}, s{P_WV+1}, s{SRD_T+1}
s_cselect_b32 s{S_A}, 1369, s{S_A}
s_mov_b32 s{SRD_T+3}, 0x00020000
s_sub_u32 s6, s6, s{S_A}
s_mul_i32 s6, s6, s{S_C}
v_min_u32 v{TA}, s{S_B}, v0
v_add_u32 v{TA}, s6, v{TA}
v_lshlrev_b32 v{TA}, 7, v{TA}"""
    e(f"""
s_bfe_u32 s{S_RB}, s2, 0x20001
s_lshl_b32 s{S_RB}, s{S_RB}, 2
s_lshr_b32 s6, s2, 6
s_add_u32 s{S_RB}, s{S_RB}, s6
s_and_b32 s{S_J}, s2, 1
s_lshl_b32 s{S_J}, s{S_J}, 3
s_bfe_u32 s7, s2, 0x30003
s_add_u32 s{S_J}, s{S_J}, s7
s_lshr_b32 s{S_QU}, s{S_J}, 2
s_sub_u32 s{S_LA}, s{S_J}, s{S_QU}
s_lshl_b32 s{S_WB}, s{S_W}, 10
s_lshl_b32 s{S_C}, s{S_LA}, 7
s_mul_i32 s{S_E}, s{S_QU}, 224
s_and_b32 s{S_F}, s{S_QU}, 1
s_sub_u32 s{S_G}, 4, s{S_F}
s_lshl_b32 s{S_F}, s{S_F}, 5
s_movk_i32 s{S_D}, 3584
s_and_b32 s{S_ISQ}, s{S_J}, 3
s_cmp_eq_u32 s{S_ISQ}, 3
s_cselect_b32 s{S_ISQ}, 1, 0
s_cselect_b32 s{S_A}, 14, 8
s_cselect_b32 s{S_B}, 896, s{S_D}
s_cselect_b32 s{S_D}, 56, s{S_D}
s_cselect_b32 s{S_H2}, s{S_F}, s{S_C}
s_cselect_b32 s{S_C}, s{S_E}, s{S_C}
s_cselect_b32 s{S_G}, s{S_G}, 4
s_add_u32 s{S_SH}, s{S_ISQ}, 1
s_lshl_b32 s{S_E}, s{S_RB}, 7
s_lshl_b32 s{S_F}, s{S_W}, 3
s_add_u32 s{S_F}, s{S_F}, s{S_E}
v_lshrrev_b32 v{T}, 3, v0
v_add_u32 v{T}, s{S_F}, v{T}
v_mul_u32_u24 v{T}, 896, v{T}
s_lshl_b32 s{S_F}, s{S_W}, 2
v_lshrrev_b32 v{T+1}, 4, v0
v_add_u32 v{T+2}, s{S_F}, v{T+1}
v_xor_b32 v{T+3}, v{T+2}, v0
v_and_b32 v{T+3}, 7, v{T+3}
v_lshl_add_u32 v{VX}, v{T+3}, 4, v{T}
{ROTCODE}v_lshlrev_b32 v{T+1}, s{S_SH}, v{T+1}
v_xor_b32 v{T+1}, v{T+1}, v0
v_and_b32 v{T+1}, 15, v{T+1}""")
    e(w_source(T + 2, T + 1, G, GS, T))
    e(f"s_mov_b64 s[{S_HI}:{S_HI+1}], vcc")
    if TOUCH:
        e(f"""s_and_b32 s6, s6, 3
s_lshl_b32 s6, s6, 3
s_add_u32 s6, s6, s{S_W}
s_lshl_b32 s6, s6, 1
s_lshl_b32 s7, s7, 3
s_add_u32 s7, s7, s{S_W}
s_lshl_b32 s7, s7, 1
s_add_u32 s7, s7, s{S_E}
v_bfe_u32 v{T+2}, v0, 3, 1
v_bfe_u32 v{T+1}, v0, 2, 1
v_lshl_add_u32 v{T+2}, v{T+2}, 6, v{T+1}
v_add_u32 v{T+2}, s6, v{T+2}
v_and_b32 v{T+1}, 3, v0
v_lshlrev_b32 v{T+1}, 2, v{T+1}
v_lshrrev_b32 v{T+1}, v{T+1}, s{S_MASK}
v_and_b32 v{T+1}, 15, v{T+1}
v_and_b32 v{T}, 1, v0
v_add_u32 v{T}, s7, v{T}
v_mul_u32_u24 v{TX}, 896, v{T}
v_bfe_u32 v{T}, v0, 1, 1
v_lshl_add_u32 v{TX}, v{T}, 7, v{TX}""".replace(f"v_lshrrev_b32 v{T+1}, v{T+1}, s{S_MASK}", f"s_movk_i32 s6, 0xed80\nv_lshrrev_b32 v{T+1}, v{T+1}, s6"))
        e(w_source(T + 2, T + 1, G + 1, TS, T))
    e("s_waitcnt lgkmcnt(0)")
    e.stamp("xs0")
    if 'stdiag' in X:
        e(f"""s_mov_b32 s40, s{P_WS}
s_mov_b32 s41, s{P_WS+1}
s_mov_b32 s42, 0x10000000
s_mov_b32 s43, 0x00020000
s_lshl_b32 s90, s2, 3
s_add_u32 s90, s90, s{S_W}
s_lshl_b32 s90, s90, 10
s_add_u32 s90, s90, {P('DOFF', 100) * 1024 * 1024}
v_lshlrev_b32 v110, 4, v0
buffer_store_dwordx4 v[112:115], v110, s[40:43], s90 offen sc1
s_waitcnt vmcnt(0)
s_add_u32 s90, s90, 0x200000
s_barrier
s_memtime s[92:93]
s_waitcnt lgkmcnt(0)
buffer_store_dwordx4 v[112:115], v110, s[40:43], s90 offen sc1
s_waitcnt vmcnt(0)
s_barrier
s_memtime s[94:95]
s_waitcnt lgkmcnt(0)
s_sub_u32 s94, s94, s92
s_mul_i32 s94, s94, 100""")
    srd(e, SRD_X, P_X, 2048 * 896)
    if GT:
        if not P("ROWL", 0): e.vm(f"buffer_load_dwordx4 {vr(RW,4)}, v{TX}, s[{SRD_X}:{SRD_X+3}], 0 offen", "row")
        if GT & 2 and not P("PRO", 1): e.vm(f"buffer_load_dword v{TD}, v{TA}, s[{SRD_T}:{SRD_T+3}], {'s%d' % S_TS if P('GTS', 0) else 0} offen", "t")
        if P("GTW", 0): e.wvm("row")
    if P("XE", 1): dma_x(e, 0, 0)(); dma_x(e, 0, 1)()
    if P("PRO", 1) == 2:
        e(WT); e.vm(f"buffer_load_dword v{TD}, v{TA}, s[{SRD_T}:{SRD_T+3}], 0 offen", "t")
    e(f"""s_cmp_lt_u32 s{S_QU}, 2
s_cselect_b32 s{S_C}, s{P_WK}, s{P_WV}
s_cselect_b32 s{S_D}, s{P_WK+1}, s{P_WV+1}
s_cmp_eq_u32 s{S_ISQ}, 1
s_cselect_b32 s{S_A}, s{P_WQ}, s{P_WG}
s_cselect_b32 s{S_B}, s{P_WQ+1}, s{P_WG+1}
s_cselect_b32 s{S_C}, s{S_C}, s{P_WU}
s_cselect_b32 s{S_D}, s{S_D}, s{P_WU+1}
v_mov_b32 v{T}, s{S_A}
v_mov_b32 v{T+1}, s{S_B}
v_mov_b32 v{T+2}, s{S_C}
v_mov_b32 v{T+3}, s{S_D}""")
    if TOUCH:
        e(f"""v_cndmask_b32 v{TA}, v{T}, v{T+2}, vcc
v_cndmask_b32 v{TA+1}, v{T+1}, v{T+3}, vcc
v_add_co_u32 v{TA}, vcc, v{TA}, v{G+1}
v_cndmask_b32 v{GA}, v{T}, v{T+2}, s[{S_HI}:{S_HI+1}]
v_cndmask_b32 v{GA+1}, v{T+1}, v{T+3}, s[{S_HI}:{S_HI+1}]
v_addc_co_u32 v{TA+1}, vcc, 0, v{TA+1}, vcc""")
        touch(e, 0)()
    else:
        e(f"""v_cndmask_b32 v{GA}, v{T}, v{T+2}, s[{S_HI}:{S_HI+1}]
v_cndmask_b32 v{GA+1}, v{T+1}, v{T+3}, s[{S_HI}:{S_HI+1}]""")
    e(f"v_add_co_u32 v{GA}, vcc, v{GA}, v{G}\nv_mov_b32 v{GS+1}, 0")
    if 'gonly' in X: e.all_vm(); e.stamp()
    if not P("XE", 1): dma_x(e, 0, 0)()
    else: e("s_nop 0")
    e(f"v_addc_co_u32 v{GA+1}, vcc, 0, v{GA+1}, vcc")
    e.WT = WT

TOUCH = P("TOUCH", 0)
GT = P("GT", 3)
ROT = P("ROT", 0)
LDX = os.environ.get("LDX", ""); LDW = os.environ.get("LDW", ""); LDT = os.environ.get("LDT", "")
def touch(e, k):
    def f():
        st = (0, 2, 4, 5)[k]
        e.vm(f"global_load_dword v{TD}, {vr(TA,2)}, off", f"t{k}")
        e(f"s_movk_i32 s{S_XO2}, {st * 128}")
        e.vm(f"buffer_load_dword v{TD}, v{TX}, s[{SRD_X}:{SRD_X+3}], s{S_XO2} offen", f"t{k}")
        if k < 3: e(f"v_mad_u64_u32 {vr(TA,2)}, s[{S_E}:{S_E+1}], v{TS}, {4 if k < 2 else 2}, {vr(TA,2)}")
    return f
S_TG, S_TS = 61, 57
def gtouch(e, st):
    def f():
        e(f"s_mul_i32 s{S_XO2}, s{S_TS}, {st}")
        e.vm(f"buffer_load_dword v{TD}, v{TA}, s[{SRD_PC}:{SRD_PC+3}], s{S_XO2} offen {LDT}", "t")
        e(f"s_movk_i32 s{S_XO2}, {st * 128}")
        e.vm(f"buffer_load_dword v{TD}, v{TX}, s[{SRD_X}:{SRD_X+3}], s{S_XO2} offen {LDT}", "t")
    return f
def dma_x(e, sig, i):
    def f():
        e(f"s_add_u32 m0, s{S_WB}, {(sig % 4) * RING + i * 8192}")
        if i == 0: e("s_nop 0"); so = S_XO
        else: e(f"s_add_u32 s{S_XO2}, s{S_XO}, {64*896}"); so = S_XO2
        e.vm(f"buffer_load_dwordx4 v{VX}, s[{SRD_X}:{SRD_X+3}], s{so} offen {LDX} lds", f"d{sig}")
    return f
def dma_w(e, sig, off, i, first=False):
    def f():
        if i == 0 and not first:
            e(f"s_add_u32 s{S_XO}, s{S_XO}, 128\ns_cmp_eq_u32 s{S_XO}, 896\ns_cselect_b32 s{S_XO}, 0, s{S_XO}\ns_cselect_b32 s{S_MUL}, -13, 1")
        e(f"s_add_u32 m0, s{S_WB}, {(sig % 4) * RING + off + i * 8192}")
        if first == 2: e(f"s_add_u32 s{S_XO}, s{S_XO}, 128\ns_cmp_eq_u32 s{S_XO}, 896\ns_cselect_b32 s{S_XO}, 0, s{S_XO}")
        elif first: e("s_nop 0")
        elif i == 0: e(f"v_mad_i64_i32 {vr(GA,2)}, s[{S_E}:{S_E+1}], v{GS}, s{S_MUL}, {vr(GA,2)}")
        else: e(f"v_lshl_add_u64 {vr(GA,2)}, {vr(GS,2)}, 0, {vr(GA,2)}")
        e.vm(f"global_load_lds_dwordx4 {vr(GA,2)}, off {LDW}", f"d{sig}")
    return f
if not any(ROTS[P("ROT", 0)]) and not RPAR:
    def dma_x(e, sig, i):
        def f():
            e(f"s_add_u32 m0, s{S_WB}, {(sig % 4) * RING + i * 8192}\ns_mov_b32 s{S_XO}, {sig * 128 + i * 64 * 896}")
            e.vm(f"buffer_load_dwordx4 v{VX}, s[{SRD_X}:{SRD_X+3}], s{S_XO} offen {LDX} lds", f"d{sig}")
        return f
    def dma_w(e, sig, off, i, first=False):
        def f():
            e(f"s_add_u32 m0, s{S_WB}, {(sig % 4) * RING + off + i * 8192}")
            e("s_nop 0" if first else f"v_lshl_add_u64 {vr(GA,2)}, {vr(GS,2)}, 0, {vr(GA,2)}")
            e.vm(f"global_load_lds_dwordx4 {vr(GA,2)}, off {LDW}", f"d{sig}")
        return f
def stage_dmas(e, sig):
    if 'nodma' in X and 2 <= sig: return [(lambda: e.q['vm'].append(f'd{sig}') or e.q['vm'].pop() if False else None)] if False else [lambda: None]
    if sig == 0: return [dma_x(e, sig, 0), dma_w(e, sig, 16384, 0, True), dma_x(e, sig, 1), dma_w(e, sig, 16384, 1)]
    if sig < 7: return [dma_w(e, sig, 16384, 0), dma_x(e, sig, 0), dma_w(e, sig, 16384, 1), dma_x(e, sig, 1)]
    l = []
    if sig == 7: l.append(lambda: e(f"v_mov_b32 v{GA}, v{GB}\nv_mov_b32 v{GA+1}, v{GB+1}\nv_mov_b32 v{GS}, {32*3584}"))
    l += [dma_w(e, sig, 0, 0, 2 if sig == 7 else False), dma_w(e, sig, 0, 1)]
    if sig < 10: l += [dma_w(e, sig, 16384, 0), dma_w(e, sig, 16384, 1)]
    return l

def late_touch(e):
    if P('GTS', 0):
        e(f"s_xor_b32 s{S_TS}, s{S_TS}, {OOB}")
        e.vm(f"buffer_load_dword v{TD}, v{TA}, s[{SRD_T}:{SRD_T+3}], s{S_TS} offen", "t")

def phaseB(e):
    T = TM
    for f in (stage_dmas(e, 0)[1:] if not P('XE', 1) else stage_dmas(e, 0)[1::2]): f()
    if 'arr' in X:
        order = os.environ.get("ARR", "D1 D2 W0 D3 W1 D4 W2 D5 W3 D6 W4 W5 W6").split()
        for it in order:
            k = int(it[1:])
            if it[0] == 'D':
                for f in stage_dmas(e, k): f()
            elif it[0] == 'T': touch(e, k)()
            elif it[0] == 'G': gtouch(e, k)()
            elif it[0] == 'L': late_touch(e)
            elif it[0] == 'A': e.all_vm(); e.stamp()
            else: e.wvm(f"d{k}"); e("s_barrier"); e.stamp()
        srd(e, SRD_WS, P_WS, WS_END)
        e.stamp()
        e("s_branch K_fin2")
        global STAMPS_OFF; STAMPS_OFF = True
    if P("ROWL", 0): e.vm(f"buffer_load_dwordx4 {vr(RW,4)}, v{TX}, s[{SRD_X}:{SRD_X+3}], 0 offen", "row")
    e.stamp("xs2")
    if P("PRO", 1) == 1 and GT & 2:
        e(e.WT)
        e.vm(f"buffer_load_dword v{TD}, v{TA}, s[{SRD_T}:{SRD_T+3}], 0 offen", "t")
    e(f"s_mov_b32 s6, {EPO}\ns_load_dword s{S_NON}, s[{P_WS}:{P_WS+1}], s6")
    if TOUCH == 2: touch(e, 1)()
    PD1 = P("PD1", 1)
    if PD1 == 0:
        for f in stage_dmas(e, 1): f()
    if TOUCH == 1: touch(e, 1)()
    late_touch(e)
    e.stamp("xs3")
    e(f"""s_and_b32 s{S_RT}, s{S_W}, 3
s_lshr_b32 s{S_CG}, s{S_W}, 2
s_lshl_b32 s{S_T0}, s{S_CG}, 1
s_add_u32 s{S_T1}, s{S_T0}, 1
s_xor_b32 s{S_A}, s{S_RT}, s{S_CG}
s_mov_b32 s{S_MASK}, 0xffff0000
s_mov_b32 s{S_HI}, 0
s_mov_b32 s{S_HI+1}, -1
v_lshlrev_b32 v{VL16}, 4, v0
v_and_b32 v{T}, 31, v0
v_lshrrev_b32 v{T+1}, 5, v0
v_bfe_u32 v{T+2}, v0, 1, 3
v_xor_b32 v{T+2}, v{T+2}, v{T+1}
v_lshlrev_b32 v{T+2}, 4, v{T+2}
v_lshl_add_u32 v{T+2}, v{T}, 7, v{T+2}
s_lshl_b32 s6, s{S_RT}, 12
s_lshl_b32 s{S_B}, s{S_A}, 5
s_or_b32 s6, s6, s{S_B}
v_xor_b32 v{XA}, s6, v{T+2}""")
    for pos in range(1, 4): e(f"v_xor_b32 v{XA+pos}, {pos<<5}, v{XA}")
    e(f"""v_bfe_u32 v{G+1}, v0, 2, 2
v_lshl_add_u32 v{WB}, v{T+1}, 3, v{G+1}
v_lshlrev_b32 v{WB}, 8, v{WB}
s_lshl_b32 s{S_A}, s{S_A}, 12
v_add_u32 v{WB}, s{S_A}, v{WB}
s_cmp_eq_u32 s{S_ISQ}, 1
s_cselect_b32 s{S_A}, 56, 32
s_cselect_b32 s{S_B}, 5, 7
s_cselect_b32 s{S_C}, 0x88880000, 0
s_mov_b32 s{S_D}, s{S_C}
s_add_u32 s6, s{S_SH}, 4
v_bfe_u32 v{T}, v0, 4, 1
v_and_b32 v{T+1}, 3, v0
v_lshlrev_b32 v{T}, s{S_B}, v{T}
v_lshl_add_u32 v{T}, v{T+1}, 3, v{T}
v_lshlrev_b32 v{T+1}, s6, v{G+1}""")
    for i, st_ in ((0, S_T0), (1, S_T1)):
        e(f"""s_mul_i32 s6, s{st_}, s{S_A}
s_lshl_b32 s7, s{st_}, 3
s_sub_u32 s7, 248, s7
v_add_u32 v{T+2}, s6, v{T}
v_mov_b32 v{T+3}, s7
v_cndmask_b32 v{T+2}, v{T+2}, v{T+3}, s[{S_C}:{S_D}]
v_xor_b32 v{T+2}, v{T+2}, v{T+1}
v_add_u32 v{WA+4*i}, v{T+2}, v{WB}""")
    for i in range(2):
        for pos in range(1, 4): e(f"v_xor_b32 v{WA+4*i+pos}, {pos<<12}, v{WA+4*i}")
    e(f"""v_bfe_u32 v{T}, v0, 4, 1
v_and_b32 v{T+1}, 15, v0
v_cmp_eq_u32 vcc, v{T}, v{T+1}
v_mov_b32 v{T}, 0x3f803f80
s_nop 0
v_cndmask_b32 v{SEL}, 0, v{T}, vcc
v_mov_b32 v{SEL+1}, v{SEL}
v_mov_b32 v{SEL+2}, v{SEL}
v_mov_b32 v{SEL+3}, v{SEL}""")
    w2t_addr = f"""s_mul_i32 s6, s{S_RB}, 12
s_add_u32 s6, s6, s{S_LA}
s_lshl_b32 s7, s{S_RB}, 2
s_add_u32 s7, s7, s{S_QU}
s_min_u32 s7, s7, 59
s_add_u32 s{S_A}, s7, 136
s_cmp_eq_u32 s{S_ISQ}, 1
s_cselect_b32 s6, s{S_A}, s6
s_cselect_b32 s7, s7, 63
s_mul_hi_u32 s{S_A}, s6, {(2**32 + 27)//28}
s_mul_i32 s{S_B}, s{S_A}, 28
s_sub_u32 s{S_B}, s6, s{S_B}
s_lshr_b32 s{S_C}, s7, 3
s_and_b32 s{S_D}, s7, 7
s_add_u32 s{S_D}, s{S_D}, 28
s_cmp_lt_u32 s7, 56
s_cselect_b32 s6, s{S_C}, s{S_A}
s_cselect_b32 s{S_B}, s{S_D}, s{S_B}
s_lshl_b32 s{S_WF}, s6, 6
s_add_u32 s{S_WF}, s{S_WF}, s{S_B}
s_lshl_b32 s{S_A}, s{S_B}, 2
s_lshr_b32 s{S_B}, s{S_W}, 1
s_add_u32 s{S_A}, s{S_A}, s{S_B}
s_mul_i32 s{S_U}, s6, 144
s_add_u32 s{S_U}, s{S_U}, s{S_A}
s_lshl_b32 s{S_B}, s{S_A}, 4
s_sub_u32 s{S_C}, s{S_A}, 112
s_lshr_b32 s{S_D}, s{S_C}, 1
s_mul_i32 s{S_D}, s{S_D}, 28
s_and_b32 s{S_C}, s{S_C}, 1
s_lshl_b32 s{S_C}, s{S_C}, 4
s_add_u32 s{S_C}, s{S_C}, s{S_D}
s_mov_b32 s{S_D}, {448*896}
s_cmp_lt_u32 s{S_A}, 112
s_cselect_b32 s{S_B}, s{S_B}, s{S_C}
s_cselect_b32 s{SRD_T}, s{P_WD}, s{P_WO}
s_cselect_b32 s{SRD_T+1}, s{P_WD+1}, s{P_WO+1}
s_cselect_b32 s{SRD_T+2}, {1792*896}, s{S_D}
s_mov_b32 s{SRD_T+3}, 0x00020000
s_and_b32 s{S_C}, s{S_W}, 1
s_lshl_b32 s{S_C}, s{S_C}, 3
s_add_u32 s{S_B}, s{S_B}, s{S_C}
s_mul_i32 s{S_B}, s{S_B}, 896
s_lshl_b32 s6, s6, 7
s_add_u32 s{S_TO}, s{S_B}, s6
v_lshrrev_b32 v{TP}, 3, v0
v_mul_u32_u24 v{TP}, 896, v{TP}
v_and_b32 v{TP+1}, 7, v0
v_lshl_add_u32 v{VT}, v{TP+1}, 4, v{TP}"""
    late = (f"""s_add_u32 s{S_LB}, s{S_LA}, 12
s_add_u32 s6, s{S_QU}, 24
s_cmp_eq_u32 s{S_ISQ}, 1
s_cselect_b32 s{S_LB}, s6, s{S_LB}
""" if P("LBOLD", 1) else f"s_add_u32 s{S_LB}, s{S_J}, 12\n") + f"""v_lshrrev_b32 v{TP}, 4, v0
s_lshl_b32 s6, s{S_ROT}, 4
s_add_u32 s6, s6, s{S_W}
s_lshl_b32 s6, s6, 2
v_add_u32 v{TP+1}, s6, v{TP}
v_mul_u32_u24 v{TP+1}, 3584, v{TP+1}
v_lshlrev_b32 v{TP}, 1, v{TP}
v_xor_b32 v{TP}, v{TP}, v0
v_and_b32 v{GB}, 7, v{TP}
v_lshl_add_u32 v{TP+1}, v{GB}, 4, v{TP+1}
s_lshl_b32 s6, s{S_LB}, 7
v_add_u32 v{TP+1}, s6, v{TP+1}
v_and_b32 v{TP}, 8, v{TP}
v_cmp_eq_u32 vcc, 8, v{TP}
v_mov_b32 v{GB}, s{P_WG}
v_mov_b32 v{TP}, s{P_WU}
v_cndmask_b32 v{GB}, v{GB}, v{TP}, vcc
v_mov_b32 v{GB+1}, s{P_WG+1}
v_mov_b32 v{TP}, s{P_WU+1}
v_cndmask_b32 v{GB+1}, v{GB+1}, v{TP}, vcc
v_add_co_u32 v{GB}, vcc, v{GB}, v{TP+1}
v_bfe_u32 v{TP}, v0, 4, 1
v_and_b32 v{TP+1}, 3, v0
v_addc_co_u32 v{GB+1}, vcc, 0, v{GB+1}, vcc
v_lshlrev_b32 v{TP+1}, 3, v{TP+1}
v_lshl_add_u32 v{TP}, v{TP}, 7, v{TP+1}
v_bfe_u32 v{TP+1}, v0, 2, 2
v_lshlrev_b32 v{TP+1}, 5, v{TP+1}
v_xor_b32 v{TP}, v{TP}, v{TP+1}
s_lshl_b32 s6, s{S_T0}, 5
v_xor_b32 v{TP}, s6, v{TP}
v_add_u32 v{WB}, v{TP}, v{WB}
v_xor_b32 v{WB+1}, 32, v{WB}"""
    if PD1 == 1:
        for f in stage_dmas(e, 1): f()
    e.stamp("xs4")
    srd(e, SRD_WS, P_WS, WS_END)
    e("s_waitcnt lgkmcnt(0)")
    e(f"s_add_u32 s{S_NON}, s{S_NON}, 1")
    U = RW + 4; A_, B_ = RW, RW + 1
    e.wvm("row")
    for k in range(4): e(f"v_lshlrev_b32 v{U+2*k}, 16, v{RW+k}\nv_and_b32 v{U+2*k+1}, s{S_MASK}, v{RW+k}")
    e(f"v_add_f32 v{A_}, v{U}, v{U+1}\nv_mul_f32 v{B_}, v{U}, v{U}\nv_add_f32 v{A_+2}, v{U+2}, v{U+3}\nv_mul_f32 v{B_+2}, v{U+1}, v{U+1}")
    for k in (2, 4, 6): e(f"v_fmac_f32 v{B_}, v{U+k}, v{U+k}\nv_fmac_f32 v{B_+2}, v{U+k+1}, v{U+k+1}")
    e(f"""v_add_f32 v{U}, v{U+4}, v{U+5}
v_add_f32 v{U+1}, v{U+6}, v{U+7}
v_add_f32 v{A_}, v{A_}, v{A_+2}
v_add_f32 v{U}, v{U}, v{U+1}
v_add_f32 v{B_}, v{B_}, v{B_+2}
v_add_f32 v{A_}, v{A_}, v{U}
s_lshl_b32 s6, s{S_TG}, 3""")
    for d in ("row_shr:1 row_mask:0xf bank_mask:0xf bound_ctrl:0", "row_shr:2 row_mask:0xf bank_mask:0xf bound_ctrl:0",
              "row_shr:4 row_mask:0xf bank_mask:0xf bound_ctrl:0", "row_shr:8 row_mask:0xf bank_mask:0xf bound_ctrl:0",
              "row_bcast:15 row_mask:0xa bank_mask:0xf", "row_bcast:31 row_mask:0xc bank_mask:0xf"):
        e(f"v_add_f32_dpp v{B_}, v{B_}, v{B_} {d}\nv_add_f32_dpp v{A_}, v{A_}, v{A_} {d}\ns_nop 0")
    e(f"""s_add_u32 s6, s6, {STAT}
v_mul_f32 v{A_}, {f2u(1.0/448)}, v{A_}
v_mul_f32 v{B_}, {f2u(1.0/448)}, v{B_}
v_fma_f32 v{B_}, -v{A_}, v{A_}, v{B_}
v_max_f32 v{B_}, 0, v{B_}
v_cvt_pk_bf16_f32 v{B_}, v{B_}, v{B_}
v_and_b32 v{B_}, s{S_MASK}, v{B_}
v_add_f32 v{B_}, {f2u(1e-5)}, v{B_}
v_cvt_pk_bf16_f32 v{B_}, v{B_}, v{B_}
v_and_b32 v{B_}, s{S_MASK}, v{B_}
v_sqrt_f32 v{B_}, v{B_}
v_mov_b32 v{U}, s6
v_cvt_pk_bf16_f32 v{A_}, -v{A_}, v{B_}
v_mov_b32 v{B_}, s{S_NON}
s_mov_b32 exec_lo, 0
s_mov_b32 exec_hi, 0x80000000""")
    if PD1 == 2:
        e("s_mov_b64 exec, -1")
        for f in stage_dmas(e, 1): f()
        e("s_mov_b32 exec_lo, 0\ns_mov_b32 exec_hi, 0x80000000")
    e.vm(f"buffer_store_dwordx2 {vr(A_,2)}, v{U}, {WS}, 0 offen {SC}", "sts")
    e("s_mov_b64 exec, -1")
    e.stamp("xs5")
    if P("PRIO", 2) & 1: e(f"s_cmp_ge_u32 s{S_W}, 4\ns_cbranch_scc0 K_np\ns_setprio 1\nK_np:")
    e.wvm("d0")
    e("s_barrier")
    e.stamp("start")

    half = {'x': [0]*4, 'w': [0]*4}
    def reads(gp):
        if gp < 28: sig, sub, pos, reg = gp // 4, 0, gp % 4, 16384
        else:
            g = gp - 28; sig, sub, pos = 7 + g // 8, (g // 4) & 1, g % 4; reg = sub * 16384
        sl = sig % 4; h = sl >> 1; imm = (sl & 1) * RING
        buf = WF + 8 * (gp % 3)
        pre = []
        if 28 <= gp < 32:
            pre = [f"v_xor_b32 v{WA+4*i+pos}, {(pos << 12) | (h << 16)}, v{WB+i}" for i in range(2)]
            half['w'][pos] = h
        elif half['w'][pos] != h:
            pre = [f"v_xor_b32 v{WA+4*i+pos}, 0x10000, v{WA+4*i+pos}" for i in range(2)]
            half['w'][pos] = h
        if gp < 28 and half['x'][pos] != h:
            pre.append(f"v_xor_b32 v{XA+pos}, 0x10000, v{XA+pos}"); half['x'][pos] = h
        out = [(lambda l=l: e(l)) for l in pre]
        if gp < 28: out.append(lambda: e.ds(f"ds_read_b128 {vr(XR+4*gp,4)}, v{XA+pos} offset:{imm}", f"r{gp}"))
        for i in range(2):
            for u in range(2):
                out.append(lambda i=i, u=u: e.ds(f"ds_read_b64_tr_b16 {vr(buf+4*i+2*u,2)}, v{WA+4*i+pos} offset:{imm+reg+u*1024}", f"r{gp}"))
        return out
    def position(gp, side, dmaq, nside, barrier=None):
        p2 = gp >= 28; g = gp - 28 if p2 else gp
        acc = ACCB if p2 else ACCA
        buf = WF + 8 * (gp % 3); xr = XR + 4 * g
        e.wds(f"r{gp}")
        e(mfma(acc, buf, xr, "0" if g == 0 else None))
        if barrier: barrier()
        R = reads(gp + 2) if gp + 2 < 56 else []
        nx = 1 if gp + 2 < 28 else 0
        pre = R[:max(0, len(R) - 4 - nx)]; xrd = R[len(pre):len(pre) + nx]; tr = R[len(pre) + nx:]
        na = (nside + 1) // 2; nb = nside // 2
        for f in pre: f()
        if P("ORD", 1) == 0:
            for f in xrd + tr[:2]: f()
            side.emit(na)
            e(mfma(acc + 16, buf + 4, xr, "0" if g == 0 else None))
            for f in tr[2:]: f()
            if g % 4 == 0: e(mfma16(CSA, SEL, buf, "0" if g == 0 else None))
            if dmaq: dmaq.pop(0)()
            side.emit(nb)
            if g % 4 == 0: e(mfma16(CSA + 4, SEL, buf + 4, "0" if g == 0 else None))
        else:
            for f in tr[:1]: f()
            side.emit(min(2, na))
            for f in tr[1:2]: f()
            side.emit(na - min(2, na))
            e(mfma(acc + 16, buf + 4, xr, "0" if g == 0 else None))
            for f in tr[2:3]: f()
            side.emit(min(2, nb))
            for f in tr[3:]: f()
            side.emit(nb - min(2, nb))
            if g % 4 == 0 and 'nosel' not in X: e(mfma16(CSA, SEL, buf, "0" if g == 0 else None))
            for f in xrd: f()
            if g % 4 == 0 and 'nosel' not in X: e(mfma16(CSA + 4, SEL, buf + 4, "0" if g == 0 else None))
            if dmaq: dmaq.pop(0)()
    def stats(gp):
        x = XR + 4 * gp; c = lambda r: "0" if gp == 0 else vr(r, 4)
        return [mfma16(ST, SEL, x, c(ST)),
                f"v_mfma_f32_4x4x4_16b_bf16 {vr(SQA,4)}, {vr(x,2)}, {vr(x,2)}, {c(SQA)}\nv_mfma_f32_4x4x4_16b_bf16 {vr(SQB,4)}, {vr(x+2,2)}, {vr(x+2,2)}, {c(SQB)}"]
    def cs_write(dst):
        return [f"v_lshlrev_b32 v{G+8}, 4, v0", f"s_lshl_b32 s6, s{S_T0}, 9", f"s_lshl_b32 s{S_A}, s{S_RT}, 2",
                f"s_add_u32 s6, s6, s{S_A}", f"s_add_u32 s6, s6, {dst}", f"v_add_u32 v{G+8}, s6, v{G+8}",
                lambda: (e("s_mov_b64 exec, 0xffff"),
                         e.ds(f"ds_write_b32 v{G+8}, v{CSA}", "csw"), e.ds(f"ds_write_b32 v{G+8}, v{CSA+1} offset:256", "csw"),
                         e.ds(f"ds_write_b32 v{G+8}, v{CSA+4} offset:512", "csw"), e.ds(f"ds_write_b32 v{G+8}, v{CSA+5} offset:768", "csw"),
                         e("s_mov_b64 exec, -1"))]
    def cs_read(src):
        l = [f"v_and_b32 v{G+8}, 31, v0", f"v_lshlrev_b32 v{G+8}, 4, v{G+8}", f"s_lshl_b32 s6, s{S_T0}, 9", f"s_add_u32 s6, s6, {src}",
             f"v_add_u32 v{G+8}, s6, v{G+8}",
             lambda: e.ds(f"ds_read_b128 {vr(G,4)}, v{G+8}", "csr"), lambda: e.ds(f"ds_read_b128 {vr(G+4,4)}, v{G+8} offset:512", "csr")]
        m = [lambda: e.wds("csr")]
        for i in range(2):
            b = G + 4 * i
            m += [f"v_add_f32 v{b}, v{b}, v{b+1}", f"v_add_f32 v{b+2}, v{b+2}, v{b+3}"]
        for i in range(2): m += [f"v_add_f32 v{G+4*i}, v{G+4*i}, v{G+4*i+2}"]
        for i in range(2): m += [f"v_cvt_pk_bf16_f32 v{G+4*i+1}, v{G+4*i}, v{G+4*i}"]
        for i in range(2): m += [f"v_and_b32 v{G+4*i+1}, s{S_MASK}, v{G+4*i+1}"]
        for i in range(2): m += [f"v_sub_f32 v{G+4*i+1}, v{G+4*i}, v{G+4*i+1}"]
        for i in range(2): m += [f"v_cvt_pk_bf16_f32 v{G+4*i}, v{G+4*i}, v{G+4*i+1}"]
        for i in range(2): m += [f"v_cndmask_b32 v{ST+2*i}, v{G+4*i}, 0, s[{S_HI}:{S_HI+1}]"]
        return l, m

    KA = -2.0 * math.log2(math.e) * math.sqrt(2.0 / math.pi)
    GST = P("GST", 18)
    def stat_check():
        ok = e.newlabel("sok"); sp = e.newlabel("ssp")
        e.wvm("stl")
        e(f"v_cmp_ne_u32 vcc, s{S_NON}, v{BEXT+3}\ns_cbranch_vccz {ok}\ns_mov_b32 s{S_CNT}, {SPIN_MAX}")
        e.label(sp)
        e(f"""s_sleep 4
buffer_load_dwordx2 {vr(BEXT+2,2)}, v{G}, {WS}, 0 offen {SC}
s_sub_u32 s{S_CNT}, s{S_CNT}, 1
s_waitcnt vmcnt(0)
v_cmp_ne_u32 vcc, s{S_NON}, v{BEXT+3}
s_cmp_eq_u32 s{S_CNT}, 0
s_cbranch_scc1 {ok}
s_cbranch_vccnz {sp}""")
        if 'spincnt' in X: e(f"s_sub_u32 s88, {SPIN_MAX + 1000}, s{S_CNT}")
        e.label(ok)
    def after_exchange(side):
        l, m = cs_read(L_CSA)
        side.add(l)
        side.add(f"""v_and_b32 v{S_}, s{S_MASK}, v{BEXT+2}
v_and_b32 v{BEXT}, 0xffff, v{BEXT+2}
v_rcp_f32 v{R_}, v{S_}
v_lshl_or_b32 v{BEXT}, v{BEXT+2}, 16, v{BEXT}
v_mul_f32 v{I2}, v{S_}, v{S_}
v_mul_f32 v{AC}, {f2u(KA)}, v{R_}
v_mul_f32 v{BC}, v{R_}, v{R_}
v_mov_b32 v{ST+1}, 0
v_mul_f32 v{BC}, v{BC}, v{AC}
v_mov_b32 v{ST+3}, 0
v_mul_f32 v{BC}, {f2u(0.044715)}, v{BC}
v_mov_b32 v{BEXT+1}, 0
v_mov_b32 v{BEXT+2}, 0
v_mov_b32 v{BEXT+3}, 0""")
        side.add(m)
    for f in reads(0) + reads(1): f()
    side = Side(e); dmaq = list(stage_dmas(e, 2)) + ([touch(e, 2)] if TOUCH else [])
    w2side = Side(e)
    if GT & 4:
        w2side.add(f"""s_min_u32 s6, s{S_TG}, 895
s_cmp_ge_u32 s6, 448
s_cselect_b32 s{SRD_T}, s{P_WU}, s{P_WG}
s_cselect_b32 s{SRD_T+1}, s{P_WU+1}, s{P_WG+1}
s_cselect_b32 s7, 448, 0
s_mov_b32 s{SRD_T+2}, {448*3584}
s_sub_u32 s6, s6, s7
s_mul_i32 s6, s6, 3584
s_add_u32 s6, s6, 1536
v_and_b32 v{TA}, 15, v0
v_lshlrev_b32 v{TA}, 7, v{TA}""")
        w2side.add([lambda: e.vm(f"buffer_load_dword v{TD}, v{TA}, s[{SRD_T}:{SRD_T+3}], s6 offen", "t2")])
    w2side.add(late); w2side.add(w2t_addr)
    for gp in range(28):
        sig, pos = gp // 4, gp % 4
        bar = None
        if pos == 2:
            def bar(sig=sig):
                if sig == 6: side.flush(); stat_check(); e.wds("csw")
                e.wvm(f"d{sig+1}"); e("s_barrier")
                if sig == 6: after_exchange(side)
                assert not dmaq
                dmaq.extend(stage_dmas(e, sig + 3))
                if sig == 0 and TOUCH: dmaq.append(touch(e, 3))
        if gp == GST:
            side.add([f"s_lshl_b32 s{S_G}, s{S_RB}, 2", f"s_add_u32 s{S_G}, s{S_G}, s{S_RT}", f"s_lshl_b32 s{S_G}, s{S_G}, 8", f"s_add_u32 s{S_G}, s{S_G}, {STAT}",
                      f"v_and_b32 v{G}, 31, v0", f"v_lshl_add_u32 v{G}, v{G}, 3, s{S_G}",
                      lambda: e.vm(f"buffer_load_dwordx2 {vr(BEXT+2,2)}, v{G}, {WS}, 0 offen {SC}", "stl")])
        if gp == 25: assert not w2side.q; side.add(cs_write(L_CSA))
        n = len(side.q) if gp < 26 else P('NEX', 10)
        while len(dmaq) > 4 - ((pos + 2) % 4): dmaq.pop(0)()
        e.stamp(f"xp{gp}")
        w2side.emit(0 if gp < P('WS0', 0) else 5 if gp < 2 else P('WSR', 3))
        position(gp, side, dmaq, n, bar)
    assert not w2side.q
    side.add(["s_nop 1", mfma(ACCA, ST, BEXT), mfma(ACCA + 16, ST + 2, BEXT)])
    carry = list(side.q)
    e.stamp("p1")

    KA = -2.0 * math.log2(math.e) * math.sqrt(2.0 / math.pi); KB = KA * 0.044715
    def gelu(acc, so, tb, keep=None, pk=0):
        l = []
        if pk:
            pr = lambda r: vr(r, 2)
            for k in range(0, 8, 2): l.append(f"v_pk_mul_f32 {pr(tb+k)}, {pr(acc+k)}, {pr(acc+k)}")
            for k in range(0, 8, 2): l.append(f"v_pk_fma_f32 {pr(tb+k)}, {pr(tb+k)}, {pr(AC)}, {pr(AC)} op_sel:[0,1,0] op_sel_hi:[1,1,0]")
            for k in range(0, 8, 2): l.append(f"v_pk_mul_f32 {pr(tb+k)}, {pr(tb+k)}, {pr(acc+k)}")
            for k in range(0, 8, 2): l += [f"v_exp_f32 v{tb+k}, v{tb+k}", f"v_exp_f32 v{tb+k+1}, v{tb+k+1}", f"v_pk_mul_f32 {pr(acc+k)}, {pr(acc+k)}, {pr(acc+8+k)}"]
            for k in range(0, 8, 2): l.append(f"v_pk_fma_f32 {pr(tb+k)}, {pr(tb+k)}, {pr(I2-1)}, {pr(I2-1)} op_sel:[0,1,1] op_sel_hi:[1,1,1]")
            for k in range(8): l.append(f"v_rcp_f32 v{tb+k}, v{tb+k}")
            for k in range(0, 8, 2): l.append(f"v_pk_mul_f32 {pr(acc+k)}, {pr(acc+k)}, {pr(tb+k)}")
        else:
            for k in range(8): l.append(f"v_mul_f32 v{tb+k}, v{acc+k}, v{acc+k}")
            for k in range(8): l.append(f"v_fma_f32 v{tb+k}, v{tb+k}, v{BC}, v{AC}")
            for k in range(8): l.append(f"v_mul_f32 v{tb+k}, v{tb+k}, v{acc+k}")
            for k in range(8): l += [f"v_exp_f32 v{tb+k}, v{tb+k}", f"v_mul_f32 v{acc+k}, v{acc+k}, v{acc+8+k}"]
            for k in range(8): l.append(f"v_fma_f32 v{tb+k}, v{tb+k}, v{I2}, v{I2}")
            for k in range(8): l.append(f"v_rcp_f32 v{tb+k}, v{tb+k}")
            for k in range(8): l.append(f"v_mul_f32 v{acc+k}, v{acc+k}, v{tb+k}")
        if keep is not None:
            return l + [f"v_cvt_pk_bf16_f32 v{keep+k}, v{acc+2*k}, v{acc+2*k+1}" for k in range(4)]
        for k in range(4): l.append(f"v_cvt_pk_bf16_f32 v{acc+8+k}, v{acc+2*k}, v{acc+2*k+1}")
        l.append(lambda: e.vm(f"buffer_store_dwordx4 {vr(acc+8,4)}, v{VL16}, {WS}, s{so} offen {SC}", "hs"))
        return l
    def h_off(line, dst):
        return f"""s_lshl_b32 s6, s{S_RB}, 2
s_add_u32 s6, s6, s{S_RT}
s_mul_i32 s6, s6, 144
s_lshl_b32 s{dst}, s{line}, 2
s_add_u32 s6, s6, s{dst}
s_add_u32 s6, s6, s{S_T0}
s_lshl_b32 s{dst}, s6, 10
s_add_u32 s{dst+1}, s{dst}, 1024"""
    def w2t_out(side):
        side.add(f"""v_lshrrev_b32 v{TP}, 5, v0
v_bfe_u32 v{TP+1}, v0, 2, 2
v_lshl_add_u32 v{TP}, v{TP}, 2, v{TP+1}
v_lshlrev_b32 v{TP}, 7, v{TP}
v_bfe_u32 v{TP+1}, v0, 4, 1
v_lshl_add_u32 v{TP}, v{TP+1}, 5, v{TP}
v_and_b32 v{TP+1}, 3, v0
v_lshl_add_u32 v{TP}, v{TP+1}, 3, v{TP}
s_lshr_b32 s6, s{S_W}, 1
s_lshl_b32 s6, s6, 11
s_and_b32 s{S_A}, s{S_W}, 1
s_lshl_b32 s{S_B}, s{S_A}, 6
s_add_u32 s6, s6, s{S_B}
s_add_u32 s6, s6, {L_W2T}
v_add_u32 v{TP}, s6, v{TP}""")
        side.add([lambda: (e.ds(f"ds_read_b64_tr_b16 {vr(PL,2)}, v{TP}", "w2tr"), e.ds(f"ds_read_b64_tr_b16 {vr(PL+2,2)}, v{TP} offset:1024", "w2tr")),
                  f"s_lshl_b32 s6, s{S_U}, 11", f"s_lshl_b32 s{S_A}, s{S_A}, 10", f"s_add_u32 s6, s6, s{S_A}", f"s_add_u32 s{S_TO}, s6, {W2T}",
                  lambda: (e.wds("w2tr"), e.vm(f"buffer_store_dwordx4 {vr(PL,4)}, v{VL16}, {WS}, s{S_TO} offen {SC}", "w2ts"))])
    GEND = P("GEND", 20); GW2 = P("GW2", 22); GFQ = P("GFQ", 14)
    GX, GBN, GFL, QRATE = P("GX", 0), P("GBN", 2), P("GFL", 6 if SPLITQ else 9), P("QRATE", 40)
    def pass2(qfirst):
        side = Side(e); dq = list(dmaq); side.q = list(carry)
        for g in range(28):
            gp = 28 + g
            pre = []; wd = []; wv = []; post = []
            if g == 0:
                if not qfirst and 'nogelu' in X: pass
                elif not qfirst:
                    side.add(h_off(S_LA, S_C))
                    ga = gelu(ACCA, S_C, G); gb = gelu(ACCA + 16, S_D, G)
                    k = P('HSD', 68)
                    side.add(ga[:-1] + gb[:k] + ga[-1:] + gb[k:] if not HLATE else ga[:-1] + gb[:-1] + [f"s_mov_b32 s{S_HA}, s{S_C}"])
                else: qkv_part1(side)
            if g == 6:
                post.append(lambda: dq.extend(stage_dmas(e, 10) + [lambda: (e(f"s_add_u32 m0, s{S_WB}, {L_W2T}\ns_nop 0"),
                            e.vm(f"buffer_load_dwordx4 v{VT}, s[{SRD_T}:{SRD_T+3}], s{S_TO} offen lds", "w2td"))]))
            if g == GW2: wv.append("w2td")
            if g in (6, 14, 22): wv.append(f"d{8 + g // 8}")
            if qfirst and g == GBN: pre.append(side.flush); wd.append("kvw"); post.append(lambda: qkv_part2(side))
            if qfirst and g == GFQ and SPLITQ:
                pre.append(side.flush); wv.append("qs")
                post.append(lambda: flag_store(e, f"""s_lshl_b32 s6, s{S_RB}, 5
s_add_u32 s6, s6, s{S_QU}
s_lshl_b32 s6, s6, 2
s_add_u32 s6, s6, {F_Q}
v_mov_b32 v{TP}, s6""", 1, TP))
            if qfirst and g == GFL:
                if SPLITQ: pre.append(lambda: e(f"s_waitcnt vmcnt({len(e.q['vm']) - e.mark['kvs']})")); wd.append("kvw")
                else: pre.append(side.flush); wv.append("qs")
                post.append(lambda: flag_store(e, f"""s_lshl_b32 s6, s{S_RB}, 2
s_add_u32 s6, s6, s{S_QU}
s_lshl_b32 s6, s6, 2
s_add_u32 s6, s6, {F_KV}
v_lshlrev_b32 v{TP}, 8, v0
v_add_u32 v{TP}, s6, v{TP}""", RKV, TP))
            if g == GW2 + 1 and HLATE < 2:
                q0 = side.q; side.q = []; w2t_out(side); side.q += q0
            if g == 24: side.flush()
            if g == P("GKP", 27):
                poll_issue(e, f"""s_and_b32 s6, s2, {RKV-1}
s_lshl_b32 s6, s6, 8
s_add_u32 s6, s6, {F_KV}
v_lshl_add_u32 v{PL}, v0, 2, s6""" + (f"""
s_lshl_b32 s6, s{S_RB}, 5
s_add_u32 s6, s6, s{S_QU}
s_lshl_b32 s6, s6, 2
s_add_u32 s6, s6, {F_Q}
v_mov_b32 v{PL+2}, s6
buffer_load_dword v{PL+3}, v{PL+2}, {WS}, 0 offen {SC}""" if SPLITQ else ""), PL, PL + 1, "kvp")
            if g == 25 and 'nocs' not in X:
                side.flush(); side.add(cs_write(L_CSB))
            if g == 26 and 'nocs' not in X:
                pre.append(side.flush); wd.append("csw")
                def p():
                    l, m = cs_read(L_CSB); side.add(l); side.add(m)
                post.append(p)
            bar = None
            if wd or wv:
                def bar():
                    for f in pre: f()
                    if wd: e.wds(*wd)
                    if wv: e.wvm(*wv)
                    e("s_barrier")
                    for f in post: f()
            if qfirst: n = QRATE if g < 9 else 12
            else: n = -(-len(side.q) // max(1, GEND - g)) if g < GEND else 12
            e.stamp(f"xg{g}")
            position(gp, side, dq, n, bar)
        side.flush()
        e.stamp("xpe2")
        e("s_nop 1")
        e(mfma(ACCB, ST, BEXT)); e(mfma(ACCB + 16, ST + 2, BEXT))
    RQ = PL
    def qkv_part1(side):
        side.add(f"""v_mul_f32 v{RQ}, {f2u(28 ** -0.5 * math.log2(math.e))}, v{R_}
v_and_b32 v{G+8}, 31, v0
v_lshlrev_b32 v{G+8}, 5, v{G+8}
s_lshl_b32 s6, s{S_RT}, 10
s_add_u32 s6, s6, {L_KVB}
v_add_u32 v{G+8}, s6, v{G+8}
s_mov_b32 s{S_D}, 0x00003f80
s_cmp_lt_u32 s{S_QU}, 2
s_cselect_b32 s{S_C}, 0x3f803f80, s{S_D}
s_cselect_b32 s{S_D}, s{S_D}, 0
s_nop 1""")
        for i, st_ in ((0, S_T0), (1, S_T1)):
            acc = ACCA + 16 * i; b = G + 4 * i
            for k in range(4): side.add([f"v_mul_f32 v{b+k}, v{acc+12+k}, v{R_}"])
            side.add(f"""s_sub_u32 s6, 3, s{st_}
s_lshl_b32 s{S_A}, s{st_}, 2
s_lshr_b32 s{S_A}, 0x0132, s{S_A}
s_and_b32 s{S_A}, s{S_A}, 3
s_bitcmp1_b32 s{S_QU}, 0
s_cselect_b32 s6, s{S_A}, s6
s_cselect_b32 s{S_A}, s{S_A}, 0
s_lshl_b32 s6, s6, 3
v_cvt_pk_bf16_f32 v{b}, v{b}, v{b+1}
v_cvt_pk_bf16_f32 v{b+1}, v{b+2}, v{b+3}
v_add_u32 v{b+2}, s6, v{G+8}""")
            def wr(b=b):
                l = e.newlabel("nc")
                e(f"s_cmp_eq_u32 s{S_A}, 3\ns_cbranch_scc0 {l}\nv_mov_b32 v{b}, s{S_C}\nv_mov_b32 v{b+1}, s{S_D}")
                e.label(l)
                e(f"s_mov_b64 exec, s[{S_HI}:{S_HI+1}]")
                e.ds(f"ds_write_b64 v{b+2}, {vr(b,2)}", "kvw")
                e("s_mov_b64 exec, -1")
            side.add([wr])
    def qkv_part2(side):
        def kv():
            l = e.newlabel("kvs"); lv = e.newlabel("kvv"); ls = e.newlabel("kvt")
            e(f"""s_cmp_eq_u32 s{S_CG}, 0
s_cbranch_scc0 {l}
s_lshl_b32 s6, s{S_RB}, 2
s_add_u32 s6, s6, s{S_RT}
s_lshl_b32 s6, s6, 12
s_add_u32 s6, s6, {KVF}
s_lshl_b32 s{S_A}, s{S_RT}, 10
s_add_u32 s{S_A}, s{S_A}, {L_KVB}
s_cmp_lt_u32 s{S_QU}, 2
s_cbranch_scc0 {lv}
v_and_b32 v{G}, 31, v0
v_lshrrev_b32 v{G+1}, 5, v0
v_lshlrev_b32 v{G}, 5, v{G}
v_lshl_add_u32 v{G}, v{G+1}, 3, v{G}
v_add_u32 v{G}, s{S_A}, v{G}
ds_read2_b64 {vr(G+4,4)}, v{G} offset0:0 offset1:2
s_lshl_b32 s{S_A}, s{S_QU}, 10
s_add_u32 s6, s6, s{S_A}
v_mov_b32 v{G+2}, v{VL16}
s_branch {ls}""")
            e.label(lv)
            e(f"""v_lshrrev_b32 v{G}, 5, v0
v_bfe_u32 v{G+1}, v0, 4, 1
v_lshlrev_b32 v{G+2}, 10, v{G}
v_lshl_add_u32 v{G+2}, v{G+1}, 9, v{G+2}
v_lshlrev_b32 v{G}, 4, v{G}
v_lshl_add_u32 v{G}, v{G+1}, 2, v{G}
v_bfe_u32 v{G+1}, v0, 2, 2
v_add_u32 v{G}, v{G}, v{G+1}
v_lshlrev_b32 v{G}, 5, v{G}
v_and_b32 v{G+1}, 3, v0
v_lshl_add_u32 v{G}, v{G+1}, 3, v{G}
v_add_u32 v{G}, s{S_A}, v{G}
ds_read_b64_tr_b16 {vr(G+4,2)}, v{G}
ds_read_b64_tr_b16 {vr(G+6,2)}, v{G} offset:256
v_and_b32 v{G+1}, 15, v0
v_lshl_add_u32 v{G+2}, v{G+1}, 4, v{G+2}
s_and_b32 s{S_A}, s{S_QU}, 1
s_lshl_b32 s{S_A}, s{S_A}, 8
s_add_u32 s6, s6, s{S_A}
s_add_u32 s6, s6, 2048""")
            e.label(ls)
            e(f"s_waitcnt lgkmcnt(0)\nbuffer_store_dwordx4 {vr(G+4,4)}, v{G+2}, {WS}, s6 offen {SC}")
            e.label(l)
            e.mark['kvs'] = len(e.q['vm'])
        side.add([kv])
        side.add(f"""s_lshl_b32 s6, s{S_RB}, 2
s_add_u32 s6, s6, s{S_RT}
s_lshl_b32 s6, s6, 2
s_add_u32 s6, s6, s{S_QU}
s_lshl_b32 s6, s6, 2
s_add_u32 s6, s6, s{S_T0}
s_lshl_b32 s6, s6, 11
s_add_u32 s{S_C}, s6, {QF}""")
        for i in range(2):
            acc = ACCA + 16 * i
            if P('PK', 0) & 4:
                for k in range(0, 16, 2): side.add([f"v_pk_mul_f32 {vr(acc+k,2)}, {vr(acc+k,2)}, {vr(RQ,2)} op_sel_hi:[1,0]"])
            else:
                for k in range(16): side.add([f"v_mul_f32 v{acc+k}, v{acc+k}, v{RQ}"])
            for k in range(8): side.add([f"v_cvt_pk_bf16_f32 v{acc+k}, v{acc+2*k}, v{acc+2*k+1}"])
            side.add([f"v_cndmask_b32 v{acc+6}, v{acc+6}, 0, s[{S_HI}:{S_HI+1}]", f"v_cndmask_b32 v{acc+7}, v{acc+7}, 0, s[{S_HI}:{S_HI+1}]",
                      lambda acc=acc, i=i: e.vm(f"buffer_store_dwordx4 {vr(acc,4)}, v{VL16}, {WS}, s{S_C} offen offset:{2048*i} {SC}", "qs"),
                      lambda acc=acc, i=i: e.vm(f"buffer_store_dwordx4 {vr(acc+4,4)}, v{VL16}, {WS}, s{S_C} offen offset:{2048*i+1024} {SC}", "qs")])
    e(f"s_cmp_eq_u32 s{S_ISQ}, 1\ns_cbranch_scc1 B_p2q")
    sn = e.snap(); hs = {k: list(v) for k, v in half.items()}; ns = e.nst
    pass2(False)
    e("s_branch B_join")
    e.label("B_p2q")
    e.nst = ns
    e.restore(sn); half.update({k: list(v) for k, v in hs.items()})
    pass2(True)
    e.label("B_join")
    e.q = {'ds': [], 'vm': []}; e.done = {'ds': 0, 'vm': 0}; e.mark['kvp'] = 0
    e.stamp("join")
    return gelu, h_off, w2t_out

LB0, LB1, VO = 3, 4, 5
Q, O, S0, PP, K, V0, V1 = 36, 44, 64, 96, 104, 112, 120
FA, FB = 128, 192
XRES = 244
S_KH, S_QT, S_KVO, S_WB4, S_FA, S_FB0, S_FB1, S_OO = 50, 51, 54, 55, 56, 57, 59, 60
S_FQ, S_K1 = 62, 63
F0 = P("F0", 8)
FP = P("FP", 2)
HBP = P("HBP", 14)
F3 = P("F3", 40)
WOP = 18

def kv_dma(e, st):
    def m(): e(f"s_add_u32 m0, s{S_WB4}, {((st + 3) % 4) * RING}" + ("\ns_nop 0" if st < 3 else ""))
    m.scalar = True
    l = [m]
    for f in range(4):
        l.append(lambda f=f: (e.vm(f"buffer_load_dwordx4 v{VL16}, {WS}, s{S_KVO} offen offset:{1024*f} {SC} lds", f"k{st}"),
                              e(f"s_add_u32 s{S_KVO}, s{S_KVO}, 16384") if f == 3 else None))
    return l

NB = P("NB", 3)
FBUF = [[FB + 16 * n + 4 * k for k in range(4)] for n in range(3)] + [[60, 124, 248, 252]]
def f_loads(e, q):
    bb = FBUF[q % NB]
    r = q if q < 6 else q - 6
    advA = advB = None
    if q == 5:
        advA = f"s_add_u32 s{S_FA}, s{S_FA}, s{S_FQ}"
        advB = f"s_add_u32 s{S_FB0}, s{S_FB0}, s{S_K1}\ns_add_u32 s{S_FB1}, s{S_FB1}, s{S_K1}"
    else:
        if r & 1: advA = f"s_add_u32 s{S_FA}, s{S_FA}, 4096"
        if (r & 3) == 3: advB = f"s_add_u32 s{S_FB0}, s{S_FB0}, 4096\ns_add_u32 s{S_FB1}, s{S_FB1}, 4096"
    return [lambda: e.vm(f"buffer_load_dwordx4 {vr(bb[0],4)}, v{VL16}, {WS}, s{S_FA} offen offset:{(r&1)*2048} {SC}", f"f{q}"),
            lambda: e.vm(f"buffer_load_dwordx4 {vr(bb[2],4)}, v{VL16}, {WS}, s{S_FB0} offen offset:{(r&3)*1024} {SC}", f"f{q}"),
            lambda: (e.vm(f"buffer_load_dwordx4 {vr(bb[1],4)}, v{VL16}, {WS}, s{S_FA} offen offset:{(r&1)*2048+1024} {SC}", f"f{q}"),
                     e(advA) if advA else None),
            lambda: (e.vm(f"buffer_load_dwordx4 {vr(bb[3],4)}, v{VL16}, {WS}, s{S_FB1} offen offset:{(r&3)*1024} {SC}", f"f{q}"),
                     e(advB) if advB else None)]
def f_mfma(q, k):
    bb = FBUF[q % NB]; r2, d2 = ((0, 0), (0, 1), (1, 1), (1, 0))[k]
    return mfma(FA + 32*r2 + 16*d2, bb[d2], bb[2 + r2], "0" if q == 0 else None)

S_OA, S_OL = 61, 75
OAREG = [8 + 4 * k for k in range(7)] + [FB + 4 * k for k in range(9)]
def oa_dma(e, n):
    def f():
        if n == 0: e(f"s_add_u32 m0, s{S_OL}, {3 * RING}\ns_nop 0")
        if n == 4: e(f"s_mov_b32 m0, s{S_OL}\ns_add_u32 s{S_OA}, s{S_OA}, 8192")
        e.vm(f"buffer_load_dwordx4 v{VL16}, {WS}, s{S_OA} offen offset:{(n & 3) * 1024} {SC} lds", "oa")
    return f
KVPRE = P('KVPRE', 2)
HDEF = P('HDEF', 1); HFL = P('HFL', 6 if HDEF else 2); S_HO = 47
def ha_flag(e):
    flag_store(e, f"""s_lshl_b32 s6, s{S_RB}, 5
s_add_u32 s6, s6, s{S_J}
s_lshl_b32 s6, s6, 2
s_add_u32 s6, s6, {F_H + 64}
s_lshl_b32 s{S_A}, s{S_WF}, 2
s_add_u32 s{S_A}, s{S_A}, {F_W}
s_sub_u32 s{S_A}, s{S_A}, s6
v_mul_lo_u32 v{PL}, v0, s{S_A}
v_add_u32 v{PL}, s6, v{PL}""", 2, PL)

def attn_setup(e, gelu, h_off, w2t_out):
    e(h_off(S_LB, S_C))
    e(f"""s_mov_b32 s{S_QT}, s{S_RT}
s_mov_b32 s{S_KH}, s{S_CG}
s_lshl_b32 s{S_WB4}, s{S_W}, 12
s_lshl_b32 s6, s{S_KH}, 5
s_add_u32 s6, s6, s{S_QT}
s_lshl_b32 s6, s6, 12
s_add_u32 s{S_KVO}, s6, {KVF}
s_lshl_b32 s6, s{S_RB}, 2
s_add_u32 s6, s6, s{S_QT}
s_lshl_b32 s7, s6, 4
s_add_u32 s7, s7, s{S_J}
s_lshl_b32 s7, s7, 11
s_add_u32 s7, s7, {QF}""")
    if HDEF: e(f"s_mov_b32 s{S_HO}, s{S_C}")
    g0 = gelu(ACCB, S_C, G, 16 if HDEF else None, P('PK', 0) & 1); g1 = gelu(ACCB + 16, S_D, G + 8, 20 if HDEF else None, P('PK', 0) & 1)
    nfirst = P("GFIRST", 0)
    both = g0 + g1
    if P('GIL', 1): both = [x for p in zip(g0, g1) for x in p]
    for it in both[:nfirst]: it() if callable(it) else e(it)
    assert nfirst == 0
    poll_check(e, PL, PL + 1, "kvp", P("KSLEEP", 1))
    if SPLITQ: poll_check(e, PL + 2, PL + 3, "kvp", P("KSLEEP", 1))
    e.all_vm()
    e("s_barrier")
    e.stamp("xkv")
    if not HLATE: ha_flag(e)
    if P("KVT", 0):
        e(f"""s_lshr_b32 s6, s2, 3
s_lshl_b32 s6, s6, 3
s_add_u32 s6, s6, s{S_W}
s_lshl_b32 s6, s6, 10
s_add_u32 s6, s6, {KVF}
v_and_b32 v{TP}, 7, v0
v_lshlrev_b32 v{TP}, 7, v{TP}""")
        e.vm(f"buffer_load_dword v{TP+1}, v{TP}, {WS}, s6 offen {SC}", "kvt")
    side = Side(e)
    side.add(kv_dma(e, 0))
    side.add([lambda: e.vm(f"buffer_load_dwordx4 {vr(Q,4)}, v{VL16}, {WS}, s7 offen {SC}", "q"),
              lambda: e.vm(f"buffer_load_dwordx4 {vr(Q+4,4)}, v{VL16}, {WS}, s7 offen offset:1024 {SC}", "q")])
    side.emit(P("KPRE0", 7))
    if HLATE:
        l = e.newlabel("hl")
        e(f"s_cmp_eq_u32 s{S_ISQ}, 1\ns_cbranch_scc1 {l}")
        for it in range(2): e(f"buffer_store_dwordx4 {vr(ACCA+16*it+8,4)}, v{VL16}, {WS}, s{S_HA} offen offset:{1024*it} {SC}")
        e.label(l)
        e.mark['hl'] = len(e.q['vm'])
        if HLATE == 2:
            sd = Side(e); w2t_out(sd); sd.flush(); e.mark['hl'] = len(e.q['vm'])
    for st in range(1, KVPRE): side.add(kv_dma(e, st))
    for n, it in enumerate(both[nfirst:]):
        it() if callable(it) else e(it)
        if n % P('GSP', 1000) == P('GSP', 1000) - 1: side.emit(1)
        if n == 68: e.stamp("xg69")
    e.stamp("xgv")
    side.flush()
    e(f"""s_lshl_b32 s6, s{S_KH}, 14
v_add_u32 v{LB0}, s6, v{VL16}
v_add_u32 v{LB1}, 0x10000, v{LB0}
s_lshl_b32 s6, s{S_RB}, 2
s_add_u32 s6, s6, s{S_QT}
s_mul_i32 s6, s6, 144
s_lshl_b32 s7, s{S_J}, 1
s_add_u32 s6, s6, s7
s_add_u32 s6, s6, s{S_KH}
s_add_u32 s6, s6, 112
s_lshl_b32 s{S_OO}, s6, 10""")

def rd(e, dst, tile, f, tag):
    sl = (tile // 4 + 3) % 4
    e.ds(f"ds_read_b128 {vr(dst,4)}, v{LB0 if sl < 2 else LB1} offset:{(sl & 1) * RING + (tile % 4) * 4096 + f * 1024}", tag)

def attn_loop(e, withF):
    e.stamp("xge")
    if P("PRIO", 2) == 2:
        l = e.newlabel("np"); e(f"s_cmp_ge_u32 s{S_W}, 4\ns_cbranch_scc0 {l}\ns_setprio 1"); e.label(l)
    if P("PRIO", 2) == 5: e("s_setprio 0")
    e.wvm("k0", "q")
    if HLATE: e(f"s_waitcnt vmcnt({len(e.q['vm']) - e.mark['hl']})")
    e.stamp("xk0"); e("s_barrier")
    if HLATE: ha_flag(e)
    e.stamp("astart")
    rd(e, K, 0, 0, "a"); rd(e, K + 4, 0, 1, "a"); rd(e, V0, 0, 2, "b")
    e.wds("a")
    e(mfma(S0, K, Q, "0")); e(mfma(S0, K + 4, Q + 4))
    rd(e, K, 1, 0, "b"); rd(e, K + 4, 1, 1, "b")
    if withF:
        e(f"""s_lshr_b32 s6, s{S_J}, 3
s_lshl_b32 s7, s{S_RB}, 1
s_add_u32 s6, s6, s7
s_and_b32 s7, s{S_J}, 7
s_mul_i32 s{S_A}, s{S_W}, 6
s_lshl_b32 s{S_K1}, s{S_W}, 1
s_add_u32 s{S_K1}, s{S_K1}, 44
s_lshl_b32 s{S_K1}, s{S_K1}, 10
s_lshl_b32 s{S_FQ}, s{S_K1}, 1
s_mul_i32 s{S_FB0}, s6, 288
s_add_u32 s{S_FB0}, s{S_FB0}, s{S_A}
s_lshl_b32 s{S_FB0}, s{S_FB0}, 10
s_add_u32 s{S_FB1}, s{S_FB0}, {144*1024}
s_bitcmp1_b32 s{S_W}, 0
s_cselect_b32 s{S_B}, s{S_FB1}, s{S_FB0}
s_cselect_b32 s{S_FB1}, s{S_FB0}, s{S_FB1}
s_mov_b32 s{S_FB0}, s{S_B}
s_mul_i32 s{S_FA}, s7, 144
s_add_u32 s{S_FA}, s{S_FA}, s{S_A}
s_lshl_b32 s{S_FA}, s{S_FA}, 11
s_add_u32 s{S_FA}, s{S_FA}, {W2T}
s_lshr_b32 s{S_A}, s{S_W}, 1
s_lshl_b32 s{S_A}, s{S_A}, 3
s_mul_i32 s{S_OA}, s7, 144
s_add_u32 s{S_OA}, s{S_OA}, s{S_A}
s_add_u32 s{S_OA}, s{S_OA}, 112
s_lshl_b32 s{S_OA}, s{S_OA}, 11
s_add_u32 s{S_OA}, s{S_OA}, {W2T}
s_and_b32 s{S_B}, s{S_W}, 1
s_lshl_b32 s{S_B}, s{S_B}, 12
s_add_u32 s{S_OA}, s{S_OA}, s{S_B}
s_lshl_b32 s{S_OL}, s{S_W}, 12""")
    else:
        e("s_nop 9")
    NT = 32
    fq = []
    nq = 0
    dq = []
    fi = 0
    need = {}; keep = []; done = [0]
    for i in range(NT):
        sc = S0 + 16 * (i & 1); sn = S0 + 16 * ((i + 1) & 1)
        v0c = V0 + 4 * (i & 1); v0n = V0 + 4 * ((i + 1) & 1)
        E = lambda r: f"v_exp_f32 v{r}, v{r}"
        C = lambda d, r: f"v_cvt_pk_bf16_f32 v{d}, v{r}, v{r+1}"
        def g(k): return [E(sc + 4*k + q) for q in range(4)] + [C(PP + 2*k, sc + 4*k), C(PP + 2*k + 1, sc + 4*k + 2)]
        g0, g1, g2, g3 = g(0), g(1), g(2), g(3)
        fm = []; fl = []
        if withF:
            if i == FP - 2:
                assert FP % 4 == 2
                fl = [lambda: poll_issue(e, f"""s_lshl_b32 s6, s{S_RB}, 7
s_add_u32 s6, s6, {F_H + 64}
s_and_b32 s7, s{S_J}, 7
s_lshl_b32 s7, s7, 8
s_add_u32 s7, s7, {F_W - 64}
v_lshl_add_u32 v{G}, v0, 2, s6
v_lshl_add_u32 v{G+1}, v0, 2, s7
v_mov_b32 v{G+2}, s6
s_mov_b32 s{S_A}, 0xffff0000
s_mov_b32 s{S_B}, 0x00000fff
s_mov_b32 s{S_C}, 0x00008888
s_mov_b32 s{S_D}, 0xfffff000
v_cndmask_b32 v{G}, v{G}, v{G+1}, s[{S_A}:{S_B}]
v_cndmask_b32 v{G}, v{G}, v{G+2}, s[{S_C}:{S_D}]""", G, G + 1, "hp")]
            if FP <= i < F0:
                if i == FP:
                    for q in range(NB - 1): fq += f_loads(e, q)
                n = -(-len(fq) // (F0 - i))
                fl = fq[:n]; fq = fq[n:]
            pb = []
            if i == HBP - 2:
                pb = [lambda: poll_issue(e, f"""s_lshl_b32 s6, s{S_RB}, 7
s_add_u32 s6, s6, {F_H}
v_and_b32 v{G}, 15, v0
v_lshl_add_u32 v{G}, v{G}, 2, s6""", G, G + 1, "hb")]
            if i == WOP - 2:
                pb = [lambda: poll_issue(e, f"""s_and_b32 s6, s{S_J}, 7
s_lshl_b32 s6, s6, 8
s_add_u32 s6, s6, {F_W + 112}
v_and_b32 v{G}, 7, v0
v_lshl_add_u32 v{G}, v{G}, 2, s6""", G, G + 1, "wo")]
            if i >= F0:
                cnt = 3 if i >= F3 else 2
                idx = list(range(fi, min(fi + cnt, 56))); fi += len(idx)
                fm = [(n // 4, n % 4) for n in idx]
                for (q, k) in fm:
                    if k == 0 and q + NB - 1 < 14:
                        if q + NB - 1 == 6: assert i > HBP
                        nl = f_loads(e, q + NB - 1)
                        for f in nl: need[id(f)] = 4 * q
                        keep.extend(nl); fq += nl
                n = min(len(fq), cnt)
                fl = fq[:n] + pb; fq = fq[n:]
        def em(x): x() if callable(x) else e(x)
        e.stamp(f"xa{i}")
        ex = [E(sc + k) for k in range(16)]; cv = [C(PP + k, sc + 2 * k) for k in range(8)]
        if i + KVPRE <= 2: dq += kv_dma(e, i + KVPRE)
        misc = []
        if i == 29: misc.append(comb_addr())
        if HDEF and i in (HDEF, HDEF + 1):
            misc.append(lambda i=i: e.vm(f"buffer_store_dwordx4 {vr(16 + 4*(i - HDEF),4)}, v{VL16}, {WS}, s{S_HO} offen offset:{1024*(i - HDEF)} {SC}", "hs"))
        if withF and 22 <= i < 30: misc.append(oa_dma(e, i - 22))
        gate = withF and i == FP
        def take(n):
            for _ in range(n):
                if fl and need.get(id(fl[0]), 0) <= done[0]: em(fl.pop(0))
        per = -(-len(fl) // 2)
        for x in ex[0:2]: em(x)
        def fmf(n):
            if n < len(fm):
                q, k = fm[n]
                e.wvm(f"f{q}"); e(f_mfma(q, k)); done[0] += 1
        if fm and fm[0][1] == 0: e.wboth(f"f{fm[0][0]}")
        else: e.all_ds()
        if i > 0: e(mfma(O, V1, PP + 4))
        rd(e, V1, i, 3, "c")
        for x in ex[2:5]: em(x)
        fmf(0)
        if not gate: take(1 if fm else per)
        for x in cv[0:2] + ex[5:7]: em(x)
        if i + 1 < NT: e(mfma(sn, K, Q, "0")); rd(e, v0n, i + 1, 2, "c")
        for x in ex[7:10]: em(x)
        if i + 1 < NT: e(mfma(sn, K + 4, Q + 4))
        if i % 4 == 2 and i + 2 < NT:
            st = i // 4
            if withF and i == FP: poll_check(e, G, G + 1, "hp")
            if withF and i == HBP: poll_check(e, G, G + 1, "hb")
            if withF and i == WOP: poll_check(e, G, G + 1, "wo")
            while dq and i == 2: dq.pop(0)()
            e.wvm(*([f"k{st+1}"] + (["hs"] if i == HFL else []))); e("s_barrier")
            if i == HFL:
                flag_store(e, f"""s_lshl_b32 s6, s{S_RB}, 5
s_add_u32 s6, s6, s{S_J}
s_lshl_b32 s6, s6, 2
s_add_u32 s6, s6, {F_H}
v_mov_b32 v{G+2}, s6""", 1, G + 2)
            assert not dq
            if st + 3 <= 7: dq += kv_dma(e, st + 3)
        if i + 2 < NT: rd(e, K, i + 2, 0, "c"); rd(e, K + 4, i + 2, 1, "c")
        if dq and getattr(dq[0], "scalar", False): dq.pop(0)()
        for x in cv[2:4] + ex[10:12]: em(x)
        fmf(1)
        take(1 if fm else len(fl) if not gate else per)
        for x in ex[12:14] + cv[4:6]: em(x)
        e(mfma(O, v0c, PP, "0" if i == 0 else None))
        for _ in range(1 if i >= 2 else 2):
            if dq: dq.pop(0)()
        if len(fm) < 3: take(len(fl))
        for x in misc: em(x)
        for x in ex[14:16] + cv[6:7]: em(x)
        fmf(2); take(len(fl))
        fq = fl + fq
        em(cv[7])
        if i + 2 >= NT: e("s_nop 1")
    e.all_ds()
    e("s_nop 0")
    e(mfma(O, V1, PP + 4))
    return fi, fq

CMB = L_W2T
def comb_addr():
    T = G
    return f"""s_lshl_b32 s6, s{S_W}, 11
s_add_u32 s6, s6, {CMB}
v_add_u32 v{T}, s6, v{VL16}
v_xor_b32 v{T+1}, 8192, v{T}
s_lshl_b32 s6, s{S_W}, 8
s_add_u32 s6, s6, {CMB + 16384}
v_lshl_add_u32 v{T+2}, v0, 2, s6
v_or_b32 v{T+3}, 32, v0
s_lshl_b32 s6, s{S_QT}, 8
s_add_u32 s6, s6, {CMB + 16384}
v_lshl_add_u32 v{T+3}, v{T+3}, 2, s6
s_mov_b32 s{S_C}, {f2u(2.0 ** -64)}
s_mov_b32 s{S_D}, {f2u(2.0 ** 64)}
s_lshl_b32 s6, s{S_RB}, 9
s_add_u32 s6, s6, s{S_J}
s_lshl_b32 s6, s6, 2
s_add_u32 s6, s6, {F_O2}
v_lshl_add_u32 v6, v0, 7, s6
v_mov_b32 v7, s{S_NON}"""

def attn_finish(e, withF=False):
    T = G
    e.stamp("aend")
    hi = e.newlabel("chi"); jn = e.newlabel("cjn"); fb = e.newlabel("cfb"); bk = e.newlabel("cbk")
    e(f"s_cmp_eq_u32 s{S_KH}, 0\ns_nop 10")
    e.ds(f"ds_write_b32 v{T+2}, v{O+12}")
    e(f"s_cbranch_scc0 {hi}")
    e.ds(f"ds_write_b128 v{T}, {vr(O+8,4)}"); e.ds(f"ds_write_b128 v{T}, {vr(O+12,4)} offset:1024")
    e(f"s_branch {jn}")
    e.label(hi)
    e(f"ds_write_b128 v{T}, {vr(O,4)}\nds_write_b128 v{T}, {vr(O+4,4)} offset:1024")
    e.all_ds()
    for k in range(8): e(f"v_mov_b32 v{O+k}, v{O+8+k}")
    e.label(jn)
    if withF: e.wboth("oa")
    else: e.all_ds()
    e.stamp("xc0")
    e("s_barrier")
    e.stamp("xc1")
    e.ds(f"ds_read2st64_b32 {vr(PP,2)}, v{T+3} offset0:0 offset1:4", "l")
    e.ds(f"ds_read_b128 {vr(S0,4)}, v{T+1}", "h0"); e.ds(f"ds_read_b128 {vr(S0+4,4)}, v{T+1} offset:1024", "h1")
    e(f"s_mov_b32 s{S_A}, 0\ns_sub_u32 s{S_B}, 0, s{S_KH}")
    e.wds("l")
    e(f"""v_add_f32 v{PP}, v{PP}, v{PP+1}
v_rcp_f32 v{PP+1}, v{PP}
v_cmp_nle_f32 vcc, s{S_C}, v{PP}
v_cmp_nge_f32 s[{S_E}:{S_F}], s{S_D}, v{PP}""")
    e.all_ds()
    for k in range(8): e(f"v_add_f32 v{S0+k}, v{S0+k}, v{O+k}")
    e(f"s_or_b64 s[{S_E}:{S_F}], s[{S_E}:{S_F}], vcc")
    for k in range(8): e(f"v_mul_f32 v{S0+k}, v{S0+k}, v{PP+1}")
    def pack_store():
        for k in range(4): e(f"v_cvt_pk_bf16_f32 v{K+k}, v{S0+2*k}, v{S0+2*k+1}")
        e(f"""v_cndmask_b32 v{K+2}, v{K+2}, 0, s[{S_A}:{S_B}]
v_cndmask_b32 v{K+3}, v{K+3}, 0, s[{S_A}:{S_B}]""")
    pack_store()
    e.vm(f"buffer_store_dwordx4 {vr(K,4)}, v{VL16}, {WS}, s{S_OO} offen {SC}", "os")
    e(f"""v_add_f32 v{PP+2}, |v{S0}|, |v{S0+1}|
v_add_f32 v{PP+3}, |v{S0+2}|, |v{S0+3}|
v_add_f32 v{PP+4}, |v{S0+4}|, |v{S0+5}|
v_add_f32 v{PP+5}, |v{S0+6}|, |v{S0+7}|
v_add_f32 v{PP+2}, v{PP+2}, v{PP+3}
v_add_f32 v{PP+4}, v{PP+4}, v{PP+5}
s_mov_b32 s6, 0x7f7fffff
v_add_f32 v{PP+2}, v{PP+2}, v{PP+4}
v_cmp_nge_f32 vcc, s6, v{PP+2}
s_nop 1
s_or_b64 vcc, vcc, s[{S_E}:{S_F}]""")
    if 'forcefb' in X: e("s_mov_b64 vcc, 1")
    e(f"s_cbranch_vccnz {fb}")
    e.label(bk)
    FALLBACKS.append((fb, bk))
    e.stamp("xc2")

FALLBACKS = []
def fallback(e, fb, bk):
    l1 = e.newlabel("fb1"); l2 = e.newlabel("fb2"); l3 = e.newlabel("fb3")
    M = PP + 7
    e.label(fb)
    if 'fbcount' in X:
        e(f"""s_mov_b32 s80, s{P_DBG}
s_mov_b32 s81, s{P_DBG+1}
s_mov_b32 s82, 256
s_mov_b32 s83, 0x00020000
v_mov_b32 v{M}, 0
v_mov_b32 v{M-1}, 1
s_mov_b64 exec, 1
buffer_atomic_add v{M-1}, v{M}, s[80:83], 0 offen
v_mov_b32 v{M-1}, s2
buffer_store_dword v{M-1}, v{M}, s[80:83], 0 offen offset:4
v_mov_b32 v{M-1}, s{S_W}
buffer_store_dword v{M-1}, v{M}, s[80:83], 0 offen offset:8
v_mov_b32 v{M-1}, vcc_lo
buffer_store_dword v{M-1}, v{M}, s[80:83], 0 offen offset:12
v_mov_b32 v{M-1}, vcc_hi
buffer_store_dword v{M-1}, v{M}, s[80:83], 0 offen offset:16
v_mov_b32 v{M-1}, s{S_E}
buffer_store_dword v{M-1}, v{M}, s[80:83], 0 offen offset:20
v_mov_b32 v{M-1}, s{S_F}
buffer_store_dword v{M-1}, v{M}, s[80:83], 0 offen offset:24
buffer_store_dword v{PP}, v{M}, s[80:83], 0 offen offset:28
buffer_store_dword v{PP+2}, v{M}, s[80:83], 0 offen offset:32
s_waitcnt vmcnt(0)
s_mov_b64 exec, -1""")
    e(f"s_mov_b32 s6, {KVF}\nv_mov_b32 v{M}, 0xff800000")
    e.label(l1)
    e(f"""buffer_load_dwordx4 {vr(K,4)}, v{VL16}, {WS}, s6 offen {SC}
buffer_load_dwordx4 {vr(K+4,4)}, v{VL16}, {WS}, s6 offen offset:1024 {SC}
s_add_u32 s6, s6, 4096
s_waitcnt vmcnt(0)""")
    e(mfma(S0, K, Q, "0")); e(mfma(S0, K + 4, Q + 4))
    e("s_nop 11")
    for k in range(8): e(f"v_max3_f32 v{M}, v{M}, v{S0+2*k}, v{S0+2*k+1}")
    e(f"""s_cmp_lt_u32 s6, {KVF + 64*4096}
s_cbranch_scc1 {l1}
v_mov_b32 v{PP}, v{M}
s_nop 1
v_permlane32_swap_b32 v{PP}, v{M}
v_max_f32 v{M}, v{M}, v{PP}
v_cvt_pk_bf16_f32 v{PP}, v{M}, v{M}
v_and_b32 v{PP}, s{S_MASK}, v{PP}
v_sub_f32 v{PP+1}, v{M}, v{PP}
v_cvt_pk_bf16_f32 v{PP+2}, v{PP+1}, v{PP+1}
v_and_b32 v{PP+2}, s{S_MASK}, v{PP+2}
v_sub_f32 v{PP+1}, v{PP+1}, v{PP+2}
v_cvt_pk_bf16_f32 v{PP}, -v{PP}, -v{PP+2}
v_cvt_pk_bf16_f32 v{PP+1}, -v{PP+1}, 0
v_cndmask_b32 v{Q+6}, v{Q+6}, v{PP}, s[{S_HI}:{S_HI+1}]
v_cndmask_b32 v{Q+7}, v{Q+7}, v{PP+1}, s[{S_HI}:{S_HI+1}]
s_mov_b32 s6, {KVF}""")
    for k in range(16): e(f"v_mov_b32 v{O+k}, 0")
    e.label(l2)
    for f in range(4): e(f"buffer_load_dwordx4 {vr(K+4*f,4)}, v{VL16}, {WS}, s6 offen offset:{1024*f} {SC}")
    e("s_add_u32 s6, s6, 4096\ns_waitcnt vmcnt(0)")
    e(mfma(S0, K, Q, "0")); e(mfma(S0, K + 4, Q + 4))
    e("s_nop 11")
    for k in range(16): e(f"v_exp_f32 v{S0+k}, v{S0+k}")
    e("s_nop 0")
    for k in range(8): e(f"v_cvt_pk_bf16_f32 v{PP+k}, v{S0+2*k}, v{S0+2*k+1}")
    e("s_nop 1")
    e(mfma(O, K + 8, PP)); e(mfma(O, K + 12, PP + 4))
    e(f"""s_cmp_lt_u32 s6, {KVF + 64*4096}
s_cbranch_scc1 {l2}
s_nop 11
v_mov_b32 v{PP}, v{O+12}
v_mov_b32 v{PP+1}, v{O+12}
s_cmp_eq_u32 s{S_KH}, 0
s_nop 0
v_permlane32_swap_b32 v{PP}, v{PP+1}
v_rcp_f32 v{PP+1}, v{PP+1}
s_cbranch_scc1 {l3}""")
    for k in range(8): e(f"v_mov_b32 v{O+k}, v{O+8+k}")
    e.label(l3)
    e("s_nop 0")
    for k in range(8): e(f"v_mul_f32 v{S0+k}, v{O+k}, v{PP+1}")
    for k in range(4): e(f"v_cvt_pk_bf16_f32 v{K+k}, v{S0+2*k}, v{S0+2*k+1}")
    e(f"""v_cndmask_b32 v{K+2}, v{K+2}, 0, s[{S_A}:{S_B}]
v_cndmask_b32 v{K+3}, v{K+3}, 0, s[{S_A}:{S_B}]
buffer_store_dwordx4 {vr(K,4)}, v{VL16}, {WS}, s{S_OO} offen {SC}
s_waitcnt vmcnt(0)
s_branch {bk}""")

OFA, OFD = 6, 7
def o_signal(e):
    l = e.newlabel("os")
    e(f"s_cbranch_vccz {l}\ns_mov_b64 exec, 0xffff\nbuffer_store_dword v{OFD}, v{OFA}, {WS}, 0 offen {SC}\ns_mov_b64 exec, -1")
    e.label(l)

def o_flag(e):
    e.stamp("xc3")
    e(f"s_cmp_eq_u32 s{S_W}, 0\ns_cselect_b64 vcc, -1, 0")
    e.wvm("os"); e.stamp("xc4"); e("s_barrier")
    o_signal(e)

def tail(e, nq, fq):
    T = G
    SUM = 232
    RB = 64
    OBR = [96 + 4 * k for k in range(7)] + [36]
    AD = 248
    for f in fq: f()
    for n in range(nq, 56):
        q, k = n // 4, n % 4
        if k == 0 and q + NB - 1 < 14:
            for f in f_loads(e, q + NB - 1): f()
        e.wvm(f"f{q}"); e(f_mfma(q, k))
    e(f"""s_lshl_b32 s6, s{S_W}, 13
s_add_u32 s6, s6, {RING}
v_add_u32 v{AD+6}, s6, v{VL16}
v_xor_b32 v{AD+7}, 8192, v{AD+6}""")
    if nq < 56: e("s_nop 8")
    setup = Side(e)
    setup.add(f"""s_lshr_b32 s6, s{S_J}, 3
s_lshl_b32 s7, s{S_RB}, 1
s_add_u32 s6, s6, s7
s_and_b32 s{S_B}, s{S_W}, 1
s_lshl_b32 s{S_C}, s6, 1
s_add_u32 s{S_C}, s{S_C}, s{S_B}
s_mul_i32 s{S_C}, s{S_C}, 144
s_lshr_b32 s{S_A}, s{S_W}, 1
s_lshl_b32 s{S_D}, s{S_A}, 3
s_add_u32 s{S_D}, s{S_D}, 112
s_add_u32 s{S_C}, s{S_C}, s{S_D}
s_lshl_b32 s{S_C}, s{S_C}, 10
s_and_b32 s7, s{S_J}, 7
s_add_u32 s{S_D}, s{S_C}, 4096
s_lshl_b32 s{S_A}, s{S_A}, 14
s_lshl_b32 s{S_B}, s{S_B}, 13
s_add_u32 s{S_G}, s{S_A}, s{S_B}
s_add_u32 s{S_G}, s{S_G}, {RING}
v_and_b32 v{T}, 31, v0
v_lshrrev_b32 v{T+1}, 5, v0
v_and_b32 v{T+2}, 7, v0
v_xor_b32 v{T+1}, v{T+1}, v{T+2}
v_lshlrev_b32 v{T+1}, 4, v{T+1}
v_lshl_add_u32 v{T}, v{T}, 8, v{T+1}
v_add_u32 v{AD}, s{S_G}, v{T}
v_xor_b32 v{AD+1}, 32, v{AD}
v_xor_b32 v{AD+2}, 64, v{AD}
v_xor_b32 v{AD+3}, 96, v{AD}
s_lshl_b32 s6, s6, 6
s_lshl_b32 s{S_B}, s{S_W}, 3
s_add_u32 s6, s6, s{S_B}
v_lshrrev_b32 v{T}, 3, v0
v_add_u32 v{T+1}, s6, v{T}
v_mul_u32_u24 v{T+1}, 896, v{T+1}
v_lshl_add_u32 v{T+1}, v{T+2}, 4, v{T+1}
s_lshl_b32 s7, s7, 7
v_add_u32 v{VO}, s7, v{T+1}
v_lshlrev_b32 v{T+2}, 1, v{T+2}
v_xor_b32 v{T+2}, v{T+2}, v{T}
v_lshlrev_b32 v{T+2}, 4, v{T+2}
v_lshl_add_u32 v{T}, v{T}, 8, v{T+2}
s_lshl_b32 s6, s{S_W}, 11
s_add_u32 s6, s6, {RING}
v_add_u32 v{AD+4}, s6, v{T}
v_xor_b32 v{AD+5}, 16, v{AD+4}
v_add_u32 v{T+2}, {3 * RING}, v{T+3}""")
    e(f"s_lshr_b32 s6, s{S_W}, 1\ns_lshl_b32 s6, s6, 13\nv_add_u32 v{T+3}, s6, v{VL16}\ns_nop 0")
    oaq = [(lambda k=k: e.ds(f"ds_read_b128 {vr(OAREG[k],4)}, v{T+2 if k < 8 else T+3} offset:{(k & 7) * 1024}", "oar")) for k in range(16)]
    nw1 = P("NW1", 2)
    def oflag():
        e.stamp("xc3")
        e(f"s_cmp_eq_u32 s{S_W}, 0\ns_cselect_b64 vcc, -1, 0")
        e.wvm("os")
        if nw1 == 8: e.all_ds()
        e.stamp("xc4"); e("s_barrier")
        o_signal(e)
    for q in range(8):
        if q == nw1: oflag()
        e.ds(f"ds_write_b128 v{AD+6}, {vr(FA+32+4*q,4)} offset:{q*1024}")
        setup.emit(6)
    setup.flush()
    if nw1 == 8: oflag()
    if not P('OAL', 1):
        for f in oaq: f()
    e.vm(f"buffer_load_dwordx4 {vr(XRES,4)}, v{VO}, s[{SRD_X}:{SRD_X+3}], 0 offen", "xr")
    if nw1 < 8: e.all_ds(); e("s_barrier")
    for q in range(8): e.ds(f"ds_read_b128 {vr(RB+4*q,4)}, v{AD+7} offset:{q*1024}", f"p{q}")
    def olook():
        poll_issue(e, f"""s_lshl_b32 s6, s{S_RB}, 4
s_add_u32 s6, s6, s{S_J}
s_lshl_b32 s6, s6, 7
s_add_u32 s6, s6, {F_O2}
v_and_b32 v{T}, 15, v0
v_lshl_add_u32 v{T}, v{T}, 2, s6""", T, T + 1, "op")
    if P('OLATE', 1) == 0: olook()
    srd(e, SRD_OUT, P_OUT, 2048 * 896)
    for q in range(8):
        e.wds(f"p{q}")
        for k in range(4): e(f"v_add_f32 v{FA+4*q+k}, v{FA+4*q+k}, v{RB+4*q+k}")
    if P('OLATE', 1) == 2:
        for f in oaq: f()
        oaq = []
    if P('OLATE', 1): olook()
    e.stamp("t1")
    poll_check(e, T, T + 1, "op", P("OSLEEP", 1))
    e("s_barrier")
    e.stamp("t2")
    for k in range(8):
        e.vm(f"buffer_load_dwordx4 {vr(OBR[k],4)}, v{VL16}, {WS}, s{S_C if k < 4 else S_D} offen offset:{(k&3)*1024} {SC}", f"ob{k}")
    if P('OAL', 1):
        for f in oaq: f()
        e.all_ds()
    e.wvm("xr")
    for k in range(4): e(f"v_lshlrev_b32 v{SUM+2*k}, 16, v{XRES+k}\nv_and_b32 v{SUM+1+2*k}, s{S_MASK}, v{XRES+k}")
    for k in range(8):
        e.wvm(f"ob{k}")
        for d2 in range(2): e(mfma(FA + 16*d2, OAREG[2*k + d2], OBR[k]))
    e("s_nop 10")
    e.stamp("t3")
    for d2 in range(2):
        for q in range(4): e.ds(f"ds_write_b128 v{AD+q}, {vr(FA+16*d2+4*q,4)} offset:{d2*128}")
    e.all_ds()
    e("s_barrier")
    for p in range(4):
        e.ds(f"ds_read_b128 {vr(RB+8*p,4)}, v{AD+4} offset:{p*16384}", f"s{p}")
        e.ds(f"ds_read_b128 {vr(RB+8*p+4,4)}, v{AD+5} offset:{p*16384}", f"s{p}")
    for p in range(4):
        e.wds(f"s{p}")
        for k in range(8): e(f"v_add_f32 v{SUM+k}, v{SUM+k}, v{RB+8*p+k}")
    for k in range(4): e(f"v_cvt_pk_bf16_f32 v{XRES+k}, v{SUM+2*k}, v{SUM+1+2*k}")
    e.vm(f"buffer_store_dwordx4 {vr(XRES,4)}, v{VO}, s[{SRD_OUT}:{SRD_OUT+3}], 0 offen {os.environ.get('OUTF', '')}")

DOC = """;
;            one extra MFMA, 1/std folded into the GELU constants); h, q, k, v and the transposed down / output
;  tail    : o of the 16 heads, output projection, cross-wave reduction, residual, store
"""
def build():
    e = Em()
    kn = NAME + "_kernel"
    e.a.raw(f".globl {kn}\n.p2align 8\n.type {kn},@function")
    e.label(kn)
    prologue(e)
    gelu, h_off, w2t_out = phaseB(e)
    attn_setup(e, gelu, h_off, w2t_out)
    e(f"s_and_b32 s6, s{S_J}, 7\ns_cmp_eq_u32 s6, 7\ns_cbranch_scc1 C_noF")
    sn = e.snap(); ns = e.nst
    nq, fq = attn_loop(e, True)
    attn_finish(e, True)
    tail(e, nq, fq)
    nend = e.nst
    e("s_branch K_fin")
    e.label("C_noF")
    e.restore(sn); e.nst = ns
    attn_loop(e, False)
    attn_finish(e)
    o_flag(e)
    e(f"""s_cmp_eq_u32 s{S_RB}, 0
s_cbranch_scc0 C_noF_done
s_cmp_eq_u32 s{S_J}, 7
s_cbranch_scc0 C_noF_done
s_cmp_eq_u32 s{S_W}, 0
s_cbranch_scc0 C_noF_done""")
    for k in range(4):
        e(f"""v_lshrrev_b32 v{G}, 4, v0
v_and_b32 v{G+1}, 15, v0
v_lshlrev_b32 v{G}, 7, v{G}
v_lshl_add_u32 v{G}, v{G+1}, 2, v{G}
v_add_u32 v{G}, {F_H + 512*k}, v{G}""")
        e(f"buffer_load_dword v{G+1}, v{G}, {WS}, 0 offen {SC}"); e.mark[f"ep{k}"] = len(e.q['vm'])
        poll_check(e, G, G + 1, f"ep{k}")
    e(f"v_mov_b32 v{G}, {EPO}\nv_mov_b32 v{G+1}, s{S_NON}\ns_mov_b64 exec, 1\nbuffer_store_dword v{G+1}, v{G}, {WS}, 0 offen {SC}\ns_mov_b64 exec, -1")
    e.label("C_noF_done")
    while e.nst < nend and not STAMPS_OFF: e.stamp()
    e.label("K_fin")
    if os.environ.get("AMPAT") == "xfin": e("s_waitcnt vmcnt(0)"); e.stamp("xfin")
    if os.environ.get("AMPAT"):
        e("""s_waitcnt vmcnt(0)
s_memrealtime s[92:93]
s_waitcnt lgkmcnt(0)
s_sub_u32 s7, s94, s96
s_mul_i32 s7, s7, 10
K_amp:
s_sleep 1
s_memrealtime s[98:99]
s_waitcnt lgkmcnt(0)
s_sub_u32 s6, s98, s92
s_cmp_lt_u32 s6, s7
s_cbranch_scc1 K_amp""")
    if 'stdiag' in X:
        e("""s_memtime s[92:93]
s_waitcnt lgkmcnt(0)
K_sd:
s_sleep 2
s_memtime s[90:91]
s_waitcnt lgkmcnt(0)
s_sub_u32 s6, s90, s92
s_cmp_lt_u32 s6, s94
s_cbranch_scc1 K_sd""")
    if 'fix' in X:
        e("""K_fx:
s_sleep 1
s_memrealtime s[98:99]
s_waitcnt lgkmcnt(0)
s_sub_u32 s6, s98, s96
s_cmp_lt_u32 s6, 10000
s_cbranch_scc1 K_fx""")
    if 'amp' in X:
        e("""s_waitcnt vmcnt(0)
s_memrealtime s[98:99]
s_waitcnt lgkmcnt(0)
s_sub_u32 s7, s98, s96
s_mul_i32 s7, s7, 10
K_fx:
s_sleep 1
s_memrealtime s[98:99]
s_waitcnt lgkmcnt(0)
s_sub_u32 s6, s98, s96
s_cmp_lt_u32 s6, s7
s_cbranch_scc1 K_fx""")
    if STAMPS:
        e.stamp()
        e.label("K_fin2")
        e("s_memrealtime s[98:99]\ns_waitcnt lgkmcnt(0) vmcnt(0)")
        e(f"""s_mov_b32 s40, s{P_WS}
s_mov_b32 s41, s{P_WS+1}
s_mov_b32 s42, 0x10000000
s_mov_b32 s43, 0x00020000
s_lshl_b32 s6, s2, 3
s_add_u32 s6, s6, s{S_W}
s_lshl_b32 s6, s6, 6
s_add_u32 s6, s6, {STAMP_WS}
v_mov_b32 v2, s96
v_mov_b32 v3, s98""")
        for k in range(10): e(f"v_mov_b32 v{4+k}, {'s%d' % (76+2*k) if k < e.nst else 0}")
        e("v_mov_b32 v1, 0\ns_mov_b64 exec, 1")
        for q in range(3): e(f"buffer_store_dwordx4 v[{2+4*q}:{5+4*q}], v1, s[40:43], s6 offen offset:{16*q}")
    e("s_endpgm")
    for fb, bk in FALLBACKS: fallback(e, fb, bk)
    e.label("K_end")
    e("s_endpgm")
    probs = check_hazards(e.a.lines, "k")
    hdr = open("cdna_kernels/" + NAME + ".s.ref").read().split("; Override launch")[0]
    out = hdr + f"; @launch grid=(256,1,1) block=(512,1,1) lds={LDS_BYTES}\n"
    out += DOC + '.amdgcn_target "amdgcn-amd-amdhsa--gfx950"\n.text\n' + e.a.text()
    out += f""".section .rodata,"a"
.p2align 6
.amdhsa_kernel {kn}
  .amdhsa_next_free_vgpr 256
  .amdhsa_next_free_sgpr 102
  .amdhsa_accum_offset 256
  .amdhsa_group_segment_fixed_size 0
  .amdhsa_kernarg_size 96
  .amdhsa_user_sgpr_count 2
  .amdhsa_user_sgpr_kernarg_segment_ptr 1
  .amdhsa_system_sgpr_workgroup_id_x 1
  .amdhsa_float_denorm_mode_32 3
.end_amdhsa_kernel
"""
    return out, probs

if __name__ == "__main__":
    out, probs = build()
    for p in probs: print("HAZARD", p, file=sys.stderr)
    open(sys.argv[1] if len(sys.argv) > 1 else "cdna_kernels/" + NAME + ".s", "w").write(out)
```

```python
import sys, os, math, struct
from asmlib import *
X = set(os.environ.get('XFLAGS', '').split(','))
def P(name, default): return int(os.environ.get(name, default))
NAME = "parallel_sum__grouped_kv_mqa__glu_gated_geglu__prompt"
def f2u(x): return struct.unpack("<I", struct.pack("<f", x))[0]

A2F = 0
W2T = 64 * 144 * 1024
QF  = W2T + 7 * 144 * 2048
KVF = QF + 64 * 16 * 2048
FLG = KVF + 64 * 4096
RKV = P("RKV", 16)
F_W  = FLG
F_H  = FLG + 2048
F_O  = FLG + 4096
EPO  = FLG + 6144
F_Q  = FLG + 4096
SPLITQ = P('SPLITQ', 1)
F_KV = FLG + 8192
F_O2 = F_KV + 256 * RKV
STAT = F_O2 + 32768
WS_END = STAT + 2048 * 8
OOB = 0x7ffffff0
P_X, P_WQ, P_WK, P_WV, P_WO, P_BX, P_WG, P_WU, P_WD, P_OUT, P_DBG, P_WS = 8, 10, 12, 14, 16, 18, 20, 22, 24, 26, 28, 30
SRD_X, SRD_WS, SRD_T, SRD_PC = 32, 36, 40, 44
SRD_OUT = SRD_T
S_W, S_RB, S_J = 3, 4, 5
(S_WB, S_MASK, S_XO, S_XO2, S_RT, S_CG, S_MUL, S_T0, S_T1, S_U, S_NON, S_LA, S_LB, S_TO, S_QU) = range(48, 63)
S_HI = 64
S_A, S_B, S_C, S_D, S_E, S_F = 66, 67, 68, 69, 70, 71
S_G, S_H2 = 72, 73
S_CNT = 74
WS = f"s[{SRD_WS}:{SRD_WS+3}]"
SC = "sc1"
STAMPS = bool(os.environ.get("STAMPS"))
STAMP_WS = 200 * 1024 * 1024
SPIN_MAX = 1 << 21
STAMPS_OFF = False

class Em:
    def __init__(s):
        s.a = Asm(); s.q = {'ds': [], 'vm': []}; s.done = {'ds': 0, 'vm': 0}; s.nst = 0; s.uid = 0; s.mark = {}
    def __call__(s, t): s.a(t)
    def label(s, l): s.a.label(l)
    def ds(s, ins, tag=None): s.a(ins); s.q['ds'].append(tag)
    def vm(s, ins, tag=None): s.a(ins); s.q['vm'].append(tag)
    def _n(s, k, tags, cap):
        idx = -1
        for t in tags:
            ii = [i for i, x in enumerate(s.q[k]) if x == t]
            if not ii and 'nodma' in X: continue
            assert ii, f"tag {t} never issued"
            idx = max(idx, ii[-1])
        if idx < s.done[k]: return None
        n = min(len(s.q[k]) - 1 - idx, cap)
        s.done[k] = len(s.q[k]) - n
        return n
    def wds(s, *tags):
        n = s._n('ds', tags, 15)
        if n is not None: s.a(f"s_waitcnt lgkmcnt({n})")
    def wvm(s, *tags):
        n = s._n('vm', tags, 63)
        if n is not None: s.a(f"s_waitcnt vmcnt({n})")
    def wboth(s, *tags):
        n = s._n('vm', tags, 63)
        s.a("s_waitcnt lgkmcnt(0)" if n is None else f"s_waitcnt vmcnt({n}) lgkmcnt(0)"); s.done['ds'] = len(s.q['ds'])
    def all_ds(s): s.a("s_waitcnt lgkmcnt(0)"); s.done['ds'] = len(s.q['ds'])
    def all_vm(s): s.a("s_waitcnt vmcnt(0)"); s.done['vm'] = len(s.q['vm'])
    def snap(s): return ({k: list(v) for k, v in s.q.items()}, dict(s.done))
    def restore(s, sn): s.q = {k: list(v) for k, v in sn[0].items()}; s.done = dict(sn[1])
    def stamp(s, name=None):
        if name is not None and name == os.environ.get("IDLEAT"): s.a("s_sleep 32")
        if name is not None and name == os.environ.get("AMPAT"):
            s.a("s_memrealtime s[94:95]"); s.all_ds()
        sel = os.environ.get("STSEL")
        if sel is not None and name is not None and name not in sel.split(","): return
        if sel is None and name is not None and name.startswith("x"): return
        if STAMPS and not STAMPS_OFF:
            assert s.nst < 10
            s.a(f"{'s_memrealtime' if os.environ.get('RT') else 's_memtime'} s[{76+2*s.nst}:{77+2*s.nst}]"); s.nst += 1
            s.all_ds()
    def newlabel(s, p): s.uid += 1; return f"{p}_{s.uid}"

def srd(e, d, p, nbytes):
    e(f"s_mov_b32 s{d}, s{p}\ns_mov_b32 s{d+1}, s{p+1}\ns_mov_b32 s{d+2}, {nbytes}\ns_mov_b32 s{d+3}, 0x00020000")
def mfma(d, A, B, C=None):
    return f"v_mfma_f32_32x32x16_bf16 {vr(d,16)}, {vr(A,4)}, {vr(B,4)}, {vr(d,16) if C is None else C}"
def mfma16(d, A, B, C=None):
    return f"v_mfma_f32_16x16x32_bf16 {vr(d,4)}, {vr(A,4)}, {vr(B,4)}, {vr(d,4) if C is None else C}"

class Side:
    def __init__(s, e): s.e = e; s.q = []
    def add(s, items):
        if isinstance(items, str):
            raw = [l.strip() for l in items.strip().split("\n") if l.strip()]
            items = []
            for l in raw:
                if l.startswith("s_cselect"): items[-1] += "\n" + l
                else: items.append(l)
        s.q += list(items)
    def emit(s, n):
        while n > 0 and s.q:
            it = s.q.pop(0)
            if callable(it): it()
            else: s.e(it)
            n -= 1
    def flush(s): s.emit(1 << 30)

def flag_store(e, addr_lines, nlanes, vt):
    l = e.newlabel("fl")
    e(f"s_cmp_eq_u32 s{S_W}, 0\ns_cbranch_scc0 {l}")
    e(addr_lines)
    e(f"v_mov_b32 v{vt+1}, s{S_NON}\ns_mov_b64 exec, {(1 << nlanes) - 1}\nbuffer_store_dword v{vt+1}, v{vt}, {WS}, 0 offen {SC}\ns_mov_b64 exec, -1")
    e.label(l)

def poll_issue(e, addr_lines, vaddr, vdat, tag):
    l = e.newlabel("pi")
    e(f"s_cmp_eq_u32 s{S_W}, 0\ns_cbranch_scc0 {l}")
    e(addr_lines)
    e(f"buffer_load_dword v{vdat}, v{vaddr}, {WS}, 0 offen {SC}")
    e.label(l)
    e.mark[tag] = len(e.q['vm'])

def poll_check(e, vaddr, vdat, tag, sleep=None):
    ok = e.newlabel("pok"); sp = e.newlabel("psp")
    e(f"s_cmp_eq_u32 s{S_W}, 0\ns_cbranch_scc0 {ok}")
    e(f"s_waitcnt vmcnt({min(63, len(e.q['vm']) - e.mark[tag])})")
    e(f"v_cmp_ne_u32 vcc, s{S_NON}, v{vdat}\ns_cbranch_vccz {ok}\ns_mov_b32 s{S_CNT}, {SPIN_MAX}")
    e.label(sp)
    e(f"""s_sleep {P('SLEEP', 4) if sleep is None else sleep}
buffer_load_dword v{vdat}, v{vaddr}, {WS}, 0 offen {SC}
s_sub_u32 s{S_CNT}, s{S_CNT}, 1
s_waitcnt vmcnt(0)
v_cmp_ne_u32 vcc, s{S_NON}, v{vdat}
s_cmp_eq_u32 s{S_CNT}, 0
s_cbranch_scc1 {ok}
s_cbranch_vccnz {sp}""")
    if 'spincnt' in X and tag in SPINIDX: e(f"s_sub_u32 s{78 + 2 * SPINIDX[tag]}, {SPIN_MAX + 1000}, s{S_CNT}")
    e.label(ok)
SPINIDX = {'kvp': 0, 'hp': 1, 'hb': 2, 'wo': 3, 'op': 4}

RING = 32768
L_W2T = 131072
L_CSA = L_W2T + 8192
L_CSB = L_CSA + 2048
L_ST  = L_CSB + 2048
L_KVB = L_ST + 4096
L_FLG = L_KVB + 4096
LDS_BYTES = L_FLG + 256

VL16, VT, VX, GA, GS = 1, 2, 3, 4, 6
XA, WA = 8, 12
ST, SEL, CSA, WF, TM = 20, 24, 28, 36, 60
ACCA, ACCB, XR, G = 64, 96, 128, 240
SQA, SQB, TP = 60, 240, 248
WB, GB, PL = 250, 102, 252
R_, S_, AC, BC, I2 = 8, 9, 10, 11, 3
BEXT = 60


TA, TS, TX, TD = 96, 98, 99, 100
S_ISQ, S_SH = 63, 75
RW = 104
def w_source(row, c, dst, gs, t0):
    return f"""v_cmp_le_u32 vcc, s{S_A}, v{c}
v_mul_lo_u32 v{dst}, v{row}, s{S_B}
v_lshl_add_u32 v{dst}, v{c}, 4, v{dst}
v_add_u32 v{dst}, s{S_C}, v{dst}
v_subrev_u32 v{c}, s{S_A}, v{c}
v_lshlrev_b32 v{c}, s{S_G}, v{c}
v_mul_lo_u32 v{t0}, v{row}, s{S_D}
v_add3_u32 v{t0}, v{t0}, v{c}, s{S_H2}
v_cndmask_b32 v{dst}, v{dst}, v{t0}, vcc
v_mov_b32 v{gs}, s{S_B}
v_mov_b32 v{t0}, s{S_D}
v_cndmask_b32 v{gs}, v{gs}, v{t0}, vcc
v_lshlrev_b32 v{gs}, 5, v{gs}"""

ROTS = {0: [0]*8, 1: [0, 3, 2, 5, 4, 0, 6, 2], 2: [0, 3, 3, 0, 0, 3, 3, 0], 3: [0, 1, 2, 3, 4, 5, 6, 0], 4: [0, 4, 1, 5, 2, 6, 3, 0]}
ROTTAB = sum(v << (4 * i) for i, v in enumerate(ROTS[P("ROT", 0)]))
S_ROT = 47
S_KVO, S_WB4, S_FA, S_FB0, S_FB1, S_OO, S_FQ, S_K1, S_OA, S_OL = 15, 18, 19, 20, 21, 22, 23, 28, 29, 44
HLATE = P('HLATE', 0); S_HA = 45
S_WF = 46
RPAR, RBIT = P("RPAR", 0), P("RBIT", 0)
RPARCODE = "" if not RPAR else f"""
s_lshr_b32 s{S_F}, s2, 3
s_lshr_b32 s{S_T0}, s2, 6
s_xor_b32 s{S_F}, s{S_F}, s{S_T0}
s_and_b32 s{S_F}, s{S_F}, {RBIT or 1}
s_mul_i32 s{S_F}, s{S_F}, {RPAR}
s_add_u32 s{S_XO}, s{S_XO}, s{S_F}
s_cmp_ge_u32 s{S_XO}, 7
s_cselect_b32 s{S_F}, 7, 0
s_sub_u32 s{S_XO}, s{S_XO}, s{S_F}"""
def prologue(e):
    T = TM
    ROTCODE = f"""s_and_b32 s{S_XO}, s2, 7
s_lshl_b32 s{S_XO}, s{S_XO}, 2
s_lshr_b32 s{S_XO}, {ROTTAB:#x}, s{S_XO}
s_and_b32 s{S_XO}, s{S_XO}, 7{RPARCODE}
s_mov_b32 s{S_ROT}, s{S_XO}
s_lshl_b32 s{S_F}, s{S_XO}, 6
s_lshl_b32 s{S_XO}, s{S_XO}, 7
v_add_u32 v{T+2}, s{S_F}, v{T+2}
""" if any(ROTS[P('ROT', 0)]) or RPAR else f"s_mov_b32 s{S_ROT}, 0\n"
    e(f"s_cmp_ge_u32 s2, 256\ns_cbranch_scc1 K_end")
    if STAMPS or 'fix' in X or 'amp' in X or os.environ.get("AMPAT"): e("s_memrealtime s[96:97]")
    e.stamp()
    if 'spincnt' in X:
        for k in range(6): e(f"s_movk_i32 s{78 + 2*k}, 1000")
        e.nst = 7
    e("s_load_dwordx16 s[8:23], s[0:1], 0\ns_load_dwordx8 s[24:31], s[0:1], 64")
    e(f"s_getpc_b64 s[{SRD_PC}:{SRD_PC+1}]")
    e.label("K_pc")
    e(f"""s_mov_b32 s{SRD_PC+2}, K_end-K_pc
s_mov_b32 s{SRD_PC+3}, 0x00020000""")
    if P("CPF", 1):
        e(f"s_lshr_b32 s6, s2, 3\ns_lshl_b32 s6, s6, 11\nv_lshrrev_b32 v1, 5, v0\nv_lshl_add_u32 v1, v1, 7, s6")
    else: e("v_lshlrev_b32 v1, 7, v0")
    e.vm(f"buffer_load_dword v{TD}, v1, s[{SRD_PC}:{SRD_PC+3}], 0 offen")
    T = TM
    e(f"""v_lshrrev_b32 v1, 6, v0
v_and_b32 v0, 63, v0
v_readfirstlane_b32 s{S_W}, v1
s_nop 1""")
    e(f"""s_lshl_b32 s{S_TG}, s2, 3
s_add_u32 s{S_TG}, s{S_TG}, s{S_W}
s_mul_i32 s6, s{S_TG}, 896
v_lshl_add_u32 v{TX}, v0, 4, s6
v_cmp_lt_u32 vcc, 55, v0
v_mov_b32 v{TX+2}, {OOB}
s_nop 0
v_cndmask_b32 v{TX}, v{TX}, v{TX+2}, vcc""")
    WT = f"""s_min_u32 s6, s{S_TG}, 1393
s_cmp_ge_u32 s6, 448
s_cselect_b32 s{SRD_T}, s{P_WU}, s{P_WG}
s_cselect_b32 s{SRD_T+1}, s{P_WU+1}, s{P_WG+1}
s_cselect_b32 s{S_A}, 448, 0
s_mov_b32 s{S_D}, {448*3584}
s_cmp_ge_u32 s6, 896
s_cselect_b32 s{SRD_T}, s{P_WQ}, s{SRD_T}
s_cselect_b32 s{SRD_T+1}, s{P_WQ+1}, s{SRD_T+1}
s_cselect_b32 s{S_A}, 896, s{S_A}
s_cselect_b32 s{S_B}, 6, 11
s_cselect_b32 s{S_C}, 7, 28
s_cselect_b32 s{S_D}, {448*896}, s{S_D}
s_cmp_ge_u32 s6, 1344
s_cselect_b32 s{SRD_T}, s{P_WK}, s{SRD_T}
s_cselect_b32 s{SRD_T+1}, s{P_WK+1}, s{SRD_T+1}
s_cselect_b32 s{S_A}, 1344, s{S_A}
s_cselect_b32 s{S_B}, 7, s{S_B}
s_cselect_b32 s{S_C}, 8, s{S_C}
s_cselect_b32 s{SRD_T+2}, {448*56}, s{S_D}
s_cmp_ge_u32 s6, 1369
s_cselect_b32 s{SRD_T}, s{P_WV}, s{SRD_T}
s_cselect_b32 s{SRD_T+1}, s{P_WV+1}, s{SRD_T+1}
s_cselect_b32 s{S_A}, 1369, s{S_A}
s_mov_b32 s{SRD_T+3}, 0x00020000
s_sub_u32 s6, s6, s{S_A}
s_mul_i32 s6, s6, s{S_C}
v_min_u32 v{TA}, s{S_B}, v0
v_add_u32 v{TA}, s6, v{TA}
v_lshlrev_b32 v{TA}, 7, v{TA}"""
    e(f"""
s_bfe_u32 s{S_RB}, s2, 0x20001
s_lshl_b32 s{S_RB}, s{S_RB}, 2
s_lshr_b32 s6, s2, 6
s_add_u32 s{S_RB}, s{S_RB}, s6
s_and_b32 s{S_J}, s2, 1
s_lshl_b32 s{S_J}, s{S_J}, 3
s_bfe_u32 s7, s2, 0x30003
s_add_u32 s{S_J}, s{S_J}, s7
s_lshr_b32 s{S_QU}, s{S_J}, 2
s_sub_u32 s{S_LA}, s{S_J}, s{S_QU}
s_lshl_b32 s{S_WB}, s{S_W}, 10
s_lshl_b32 s{S_C}, s{S_LA}, 7
s_mul_i32 s{S_E}, s{S_QU}, 224
s_and_b32 s{S_F}, s{S_QU}, 1
s_sub_u32 s{S_G}, 4, s{S_F}
s_lshl_b32 s{S_F}, s{S_F}, 5
s_movk_i32 s{S_D}, 3584
s_and_b32 s{S_ISQ}, s{S_J}, 3
s_cmp_eq_u32 s{S_ISQ}, 3
s_cselect_b32 s{S_ISQ}, 1, 0
s_cselect_b32 s{S_A}, 14, 8
s_cselect_b32 s{S_B}, 896, s{S_D}
s_cselect_b32 s{S_D}, 56, s{S_D}
s_cselect_b32 s{S_H2}, s{S_F}, s{S_C}
s_cselect_b32 s{S_C}, s{S_E}, s{S_C}
s_cselect_b32 s{S_G}, s{S_G}, 4
s_add_u32 s{S_SH}, s{S_ISQ}, 1
s_lshl_b32 s{S_E}, s{S_RB}, 7
s_lshl_b32 s{S_F}, s{S_W}, 3
s_add_u32 s{S_F}, s{S_F}, s{S_E}
v_lshrrev_b32 v{T}, 3, v0
v_add_u32 v{T}, s{S_F}, v{T}
v_mul_u32_u24 v{T}, 896, v{T}
s_lshl_b32 s{S_F}, s{S_W}, 2
v_lshrrev_b32 v{T+1}, 4, v0
v_add_u32 v{T+2}, s{S_F}, v{T+1}
v_xor_b32 v{T+3}, v{T+2}, v0
v_and_b32 v{T+3}, 7, v{T+3}
v_lshl_add_u32 v{VX}, v{T+3}, 4, v{T}
{ROTCODE}v_lshlrev_b32 v{T+1}, s{S_SH}, v{T+1}
v_xor_b32 v{T+1}, v{T+1}, v0
v_and_b32 v{T+1}, 15, v{T+1}""")
    e(w_source(T + 2, T + 1, G, GS, T))
    e(f"s_mov_b64 s[{S_HI}:{S_HI+1}], vcc")
    if TOUCH:
        e(f"""s_and_b32 s6, s6, 3
s_lshl_b32 s6, s6, 3
s_add_u32 s6, s6, s{S_W}
s_lshl_b32 s6, s6, 1
s_lshl_b32 s7, s7, 3
s_add_u32 s7, s7, s{S_W}
s_lshl_b32 s7, s7, 1
s_add_u32 s7, s7, s{S_E}
v_bfe_u32 v{T+2}, v0, 3, 1
v_bfe_u32 v{T+1}, v0, 2, 1
v_lshl_add_u32 v{T+2}, v{T+2}, 6, v{T+1}
v_add_u32 v{T+2}, s6, v{T+2}
v_and_b32 v{T+1}, 3, v0
v_lshlrev_b32 v{T+1}, 2, v{T+1}
v_lshrrev_b32 v{T+1}, v{T+1}, s{S_MASK}
v_and_b32 v{T+1}, 15, v{T+1}
v_and_b32 v{T}, 1, v0
v_add_u32 v{T}, s7, v{T}
v_mul_u32_u24 v{TX}, 896, v{T}
v_bfe_u32 v{T}, v0, 1, 1
v_lshl_add_u32 v{TX}, v{T}, 7, v{TX}""".replace(f"v_lshrrev_b32 v{T+1}, v{T+1}, s{S_MASK}", f"s_movk_i32 s6, 0xed80\nv_lshrrev_b32 v{T+1}, v{T+1}, s6"))
        e(w_source(T + 2, T + 1, G + 1, TS, T))
    e("s_waitcnt lgkmcnt(0)")
    e.stamp("xs0")
    if 'stdiag' in X:
        e(f"""s_mov_b32 s40, s{P_WS}
s_mov_b32 s41, s{P_WS+1}
s_mov_b32 s42, 0x10000000
s_mov_b32 s43, 0x00020000
s_lshl_b32 s90, s2, 3
s_add_u32 s90, s90, s{S_W}
s_lshl_b32 s90, s90, 10
s_add_u32 s90, s90, {P('DOFF', 100) * 1024 * 1024}
v_lshlrev_b32 v110, 4, v0
buffer_store_dwordx4 v[112:115], v110, s[40:43], s90 offen sc1
s_waitcnt vmcnt(0)
s_add_u32 s90, s90, 0x200000
s_barrier
s_memtime s[92:93]
s_waitcnt lgkmcnt(0)
buffer_store_dwordx4 v[112:115], v110, s[40:43], s90 offen sc1
s_waitcnt vmcnt(0)
s_barrier
s_memtime s[94:95]
s_waitcnt lgkmcnt(0)
s_sub_u32 s94, s94, s92
s_mul_i32 s94, s94, 100""")
    srd(e, SRD_X, P_X, 2048 * 896)
    if GT:
        if not P("ROWL", 0): e.vm(f"buffer_load_dwordx4 {vr(RW,4)}, v{TX}, s[{SRD_X}:{SRD_X+3}], 0 offen", "row")
        if GT & 2 and not P("PRO", 1): e.vm(f"buffer_load_dword v{TD}, v{TA}, s[{SRD_T}:{SRD_T+3}], {'s%d' % S_TS if P('GTS', 0) else 0} offen", "t")
        if P("GTW", 0): e.wvm("row")
    if P("XE", 1): dma_x(e, 0, 0)(); dma_x(e, 0, 1)()
    if P("PRO", 1) == 2:
        e(WT); e.vm(f"buffer_load_dword v{TD}, v{TA}, s[{SRD_T}:{SRD_T+3}], 0 offen", "t")
    e(f"""s_cmp_lt_u32 s{S_QU}, 2
s_cselect_b32 s{S_C}, s{P_WK}, s{P_WV}
s_cselect_b32 s{S_D}, s{P_WK+1}, s{P_WV+1}
s_cmp_eq_u32 s{S_ISQ}, 1
s_cselect_b32 s{S_A}, s{P_WQ}, s{P_WG}
s_cselect_b32 s{S_B}, s{P_WQ+1}, s{P_WG+1}
s_cselect_b32 s{S_C}, s{S_C}, s{P_WU}
s_cselect_b32 s{S_D}, s{S_D}, s{P_WU+1}
v_mov_b32 v{T}, s{S_A}
v_mov_b32 v{T+1}, s{S_B}
v_mov_b32 v{T+2}, s{S_C}
v_mov_b32 v{T+3}, s{S_D}""")
    if TOUCH:
        e(f"""v_cndmask_b32 v{TA}, v{T}, v{T+2}, vcc
v_cndmask_b32 v{TA+1}, v{T+1}, v{T+3}, vcc
v_add_co_u32 v{TA}, vcc, v{TA}, v{G+1}
v_cndmask_b32 v{GA}, v{T}, v{T+2}, s[{S_HI}:{S_HI+1}]
v_cndmask_b32 v{GA+1}, v{T+1}, v{T+3}, s[{S_HI}:{S_HI+1}]
v_addc_co_u32 v{TA+1}, vcc, 0, v{TA+1}, vcc""")
        touch(e, 0)()
    else:
        e(f"""v_cndmask_b32 v{GA}, v{T}, v{T+2}, s[{S_HI}:{S_HI+1}]
v_cndmask_b32 v{GA+1}, v{T+1}, v{T+3}, s[{S_HI}:{S_HI+1}]""")
    e(f"v_add_co_u32 v{GA}, vcc, v{GA}, v{G}\nv_mov_b32 v{GS+1}, 0")
    if 'gonly' in X: e.all_vm(); e.stamp()
    if not P("XE", 1): dma_x(e, 0, 0)()
    else: e("s_nop 0")
    e(f"v_addc_co_u32 v{GA+1}, vcc, 0, v{GA+1}, vcc")
    e.WT = WT

TOUCH = P("TOUCH", 0)
GT = P("GT", 3)
ROT = P("ROT", 0)
LDX = os.environ.get("LDX", ""); LDW = os.environ.get("LDW", ""); LDT = os.environ.get("LDT", "")
def touch(e, k):
    def f():
        st = (0, 2, 4, 5)[k]
        e.vm(f"global_load_dword v{TD}, {vr(TA,2)}, off", f"t{k}")
        e(f"s_movk_i32 s{S_XO2}, {st * 128}")
        e.vm(f"buffer_load_dword v{TD}, v{TX}, s[{SRD_X}:{SRD_X+3}], s{S_XO2} offen", f"t{k}")
        if k < 3: e(f"v_mad_u64_u32 {vr(TA,2)}, s[{S_E}:{S_E+1}], v{TS}, {4 if k < 2 else 2}, {vr(TA,2)}")
    return f
S_TG, S_TS = 61, 57
def gtouch(e, st):
    def f():
        e(f"s_mul_i32 s{S_XO2}, s{S_TS}, {st}")
        e.vm(f"buffer_load_dword v{TD}, v{TA}, s[{SRD_PC}:{SRD_PC+3}], s{S_XO2} offen {LDT}", "t")
        e(f"s_movk_i32 s{S_XO2}, {st * 128}")
        e.vm(f"buffer_load_dword v{TD}, v{TX}, s[{SRD_X}:{SRD_X+3}], s{S_XO2} offen {LDT}", "t")
    return f
def dma_x(e, sig, i):
    def f():
        e(f"s_add_u32 m0, s{S_WB}, {(sig % 4) * RING + i * 8192}")
        if i == 0: e("s_nop 0"); so = S_XO
        else: e(f"s_add_u32 s{S_XO2}, s{S_XO}, {64*896}"); so = S_XO2
        e.vm(f"buffer_load_dwordx4 v{VX}, s[{SRD_X}:{SRD_X+3}], s{so} offen {LDX} lds", f"d{sig}")
    return f
def dma_w(e, sig, off, i, first=False):
    def f():
        if i == 0 and not first:
            e(f"s_add_u32 s{S_XO}, s{S_XO}, 128\ns_cmp_eq_u32 s{S_XO}, 896\ns_cselect_b32 s{S_XO}, 0, s{S_XO}\ns_cselect_b32 s{S_MUL}, -13, 1")
        e(f"s_add_u32 m0, s{S_WB}, {(sig % 4) * RING + off + i * 8192}")
        if first == 2: e(f"s_add_u32 s{S_XO}, s{S_XO}, 128\ns_cmp_eq_u32 s{S_XO}, 896\ns_cselect_b32 s{S_XO}, 0, s{S_XO}")
        elif first: e("s_nop 0")
        elif i == 0: e(f"v_mad_i64_i32 {vr(GA,2)}, s[{S_E}:{S_E+1}], v{GS}, s{S_MUL}, {vr(GA,2)}")
        else: e(f"v_lshl_add_u64 {vr(GA,2)}, {vr(GS,2)}, 0, {vr(GA,2)}")
        e.vm(f"global_load_lds_dwordx4 {vr(GA,2)}, off {LDW}", f"d{sig}")
    return f
if not any(ROTS[P("ROT", 0)]) and not RPAR:
    def dma_x(e, sig, i):
        def f():
            e(f"s_add_u32 m0, s{S_WB}, {(sig % 4) * RING + i * 8192}\ns_mov_b32 s{S_XO}, {sig * 128 + i * 64 * 896}")
            e.vm(f"buffer_load_dwordx4 v{VX}, s[{SRD_X}:{SRD_X+3}], s{S_XO} offen {LDX} lds", f"d{sig}")
        return f
    def dma_w(e, sig, off, i, first=False):
        def f():
            e(f"s_add_u32 m0, s{S_WB}, {(sig % 4) * RING + off + i * 8192}")
            e("s_nop 0" if first else f"v_lshl_add_u64 {vr(GA,2)}, {vr(GS,2)}, 0, {vr(GA,2)}")
            e.vm(f"global_load_lds_dwordx4 {vr(GA,2)}, off {LDW}", f"d{sig}")
        return f
def stage_dmas(e, sig):
    if 'nodma' in X and 2 <= sig: return [(lambda: e.q['vm'].append(f'd{sig}') or e.q['vm'].pop() if False else None)] if False else [lambda: None]
    if sig == 0: return [dma_x(e, sig, 0), dma_w(e, sig, 16384, 0, True), dma_x(e, sig, 1), dma_w(e, sig, 16384, 1)]
    if sig < 7: return [dma_w(e, sig, 16384, 0), dma_x(e, sig, 0), dma_w(e, sig, 16384, 1), dma_x(e, sig, 1)]
    l = []
    if sig == 7: l.append(lambda: e(f"v_mov_b32 v{GA}, v{GB}\nv_mov_b32 v{GA+1}, v{GB+1}\nv_mov_b32 v{GS}, {32*3584}"))
    l += [dma_w(e, sig, 0, 0, 2 if sig == 7 else False), dma_w(e, sig, 0, 1)]
    if sig < 10: l += [dma_w(e, sig, 16384, 0), dma_w(e, sig, 16384, 1)]
    return l

def late_touch(e):
    if P('GTS', 0):
        e(f"s_xor_b32 s{S_TS}, s{S_TS}, {OOB}")
        e.vm(f"buffer_load_dword v{TD}, v{TA}, s[{SRD_T}:{SRD_T+3}], s{S_TS} offen", "t")

def h_off(line, dst):
    return f"""s_lshl_b32 s6, s{S_RB}, 2
s_add_u32 s6, s6, s{S_RT}
s_mul_i32 s6, s6, 144
s_lshl_b32 s{dst}, s{line}, 2
s_add_u32 s6, s6, s{dst}
s_add_u32 s6, s6, s{S_T0}
s_lshl_b32 s{dst}, s6, 10
s_add_u32 s{dst+1}, s{dst}, 1024"""
H_A, H_B = 10, 12
S_QO = 14
HOIST = P("HOIST", 1)
def f_scalars():
    return f"""s_lshr_b32 s6, s{S_J}, 3
s_lshl_b32 s7, s{S_RB}, 1
s_add_u32 s6, s6, s7
s_and_b32 s7, s{S_J}, 7
s_mul_i32 s{S_A}, s{S_W}, 6
s_lshl_b32 s{S_K1}, s{S_W}, 1
s_add_u32 s{S_K1}, s{S_K1}, 44
s_lshl_b32 s{S_K1}, s{S_K1}, 10
s_lshl_b32 s{S_FQ}, s{S_K1}, 1
s_mul_i32 s{S_FB0}, s6, 288
s_add_u32 s{S_FB0}, s{S_FB0}, s{S_A}
s_lshl_b32 s{S_FB0}, s{S_FB0}, 10
s_add_u32 s{S_FB1}, s{S_FB0}, {144*1024}
s_bitcmp1_b32 s{S_W}, 0
s_cselect_b32 s{S_B}, s{S_FB1}, s{S_FB0}
s_cselect_b32 s{S_FB1}, s{S_FB0}, s{S_FB1}
s_mov_b32 s{S_FB0}, s{S_B}
s_mul_i32 s{S_FA}, s7, 144
s_add_u32 s{S_FA}, s{S_FA}, s{S_A}
s_lshl_b32 s{S_FA}, s{S_FA}, 11
s_add_u32 s{S_FA}, s{S_FA}, {W2T}
s_lshr_b32 s{S_A}, s{S_W}, 1
s_lshl_b32 s{S_A}, s{S_A}, 3
s_mul_i32 s{S_OA}, s7, 144
s_add_u32 s{S_OA}, s{S_OA}, s{S_A}
s_add_u32 s{S_OA}, s{S_OA}, 112
s_lshl_b32 s{S_OA}, s{S_OA}, 11
s_add_u32 s{S_OA}, s{S_OA}, {W2T}
s_and_b32 s{S_B}, s{S_W}, 1
s_lshl_b32 s{S_B}, s{S_B}, 12
s_add_u32 s{S_OA}, s{S_OA}, s{S_B}
s_lshl_b32 s{S_OL}, s{S_W}, 12"""

def attn_scalars():
    return f"""s_lshl_b32 s{S_WB4}, s{S_W}, 12
s_lshl_b32 s6, s{S_CG}, 5
s_add_u32 s6, s6, s{S_RT}
s_lshl_b32 s6, s6, 12
s_add_u32 s{S_KVO}, s6, {KVF}
s_lshl_b32 s6, s{S_RB}, 2
s_add_u32 s6, s6, s{S_RT}
s_lshl_b32 s7, s6, 4
s_add_u32 s7, s7, s{S_J}
s_lshl_b32 s7, s7, 11
s_add_u32 s{S_QO}, s7, {QF}
s_mul_i32 s6, s6, 144
s_lshl_b32 s7, s{S_J}, 1
s_add_u32 s6, s6, s7
s_add_u32 s6, s6, s{S_CG}
s_add_u32 s6, s6, 112
s_lshl_b32 s{S_OO}, s6, 10"""

def phaseB(e):
    T = TM
    for f in (stage_dmas(e, 0)[1:] if not P('XE', 1) else stage_dmas(e, 0)[1::2]): f()
    if 'arr' in X:
        order = os.environ.get("ARR", "D1 D2 W0 D3 W1 D4 W2 D5 W3 D6 W4 W5 W6").split()
        for it in order:
            k = int(it[1:])
            if it[0] == 'D':
                for f in stage_dmas(e, k): f()
            elif it[0] == 'T': touch(e, k)()
            elif it[0] == 'G': gtouch(e, k)()
            elif it[0] == 'L': late_touch(e)
            elif it[0] == 'A': e.all_vm(); e.stamp()
            else: e.wvm(f"d{k}"); e("s_barrier"); e.stamp()
        srd(e, SRD_WS, P_WS, WS_END)
        e.stamp()
        e("s_branch K_fin2")
        global STAMPS_OFF; STAMPS_OFF = True
    if P("ROWL", 0): e.vm(f"buffer_load_dwordx4 {vr(RW,4)}, v{TX}, s[{SRD_X}:{SRD_X+3}], 0 offen", "row")
    e.stamp("xs2")
    if P("PRO", 1) == 1 and GT & 2:
        e(e.WT)
        e.vm(f"buffer_load_dword v{TD}, v{TA}, s[{SRD_T}:{SRD_T+3}], 0 offen", "t")
    e(f"s_mov_b32 s6, {EPO}\ns_load_dword s{S_NON}, s[{P_WS}:{P_WS+1}], s6")
    if TOUCH == 2: touch(e, 1)()
    PD1 = P("PD1", 1)
    if PD1 == 0:
        for f in stage_dmas(e, 1): f()
    if TOUCH == 1: touch(e, 1)()
    late_touch(e)
    e.stamp("xs3")
    e(f"""s_and_b32 s{S_RT}, s{S_W}, 3
s_lshr_b32 s{S_CG}, s{S_W}, 2
s_lshl_b32 s{S_T0}, s{S_CG}, 1
s_add_u32 s{S_T1}, s{S_T0}, 1
s_xor_b32 s{S_A}, s{S_RT}, s{S_CG}
s_mov_b32 s{S_MASK}, 0xffff0000
s_mov_b32 s{S_HI}, 0
s_mov_b32 s{S_HI+1}, -1
v_lshlrev_b32 v{VL16}, 4, v0
v_and_b32 v{T}, 31, v0
v_lshrrev_b32 v{T+1}, 5, v0
v_bfe_u32 v{T+2}, v0, 1, 3
v_xor_b32 v{T+2}, v{T+2}, v{T+1}
v_lshlrev_b32 v{T+2}, 4, v{T+2}
v_lshl_add_u32 v{T+2}, v{T}, 7, v{T+2}
s_lshl_b32 s6, s{S_RT}, 12
s_lshl_b32 s{S_B}, s{S_A}, 5
s_or_b32 s6, s6, s{S_B}
v_xor_b32 v{XA}, s6, v{T+2}""")
    for pos in range(1, 4): e(f"v_xor_b32 v{XA+pos}, {pos<<5}, v{XA}")
    e(f"""v_bfe_u32 v{G+1}, v0, 2, 2
v_lshl_add_u32 v{WB}, v{T+1}, 3, v{G+1}
v_lshlrev_b32 v{WB}, 8, v{WB}
s_lshl_b32 s{S_A}, s{S_A}, 12
v_add_u32 v{WB}, s{S_A}, v{WB}
s_cmp_eq_u32 s{S_ISQ}, 1
s_cselect_b32 s{S_A}, 56, 32
s_cselect_b32 s{S_B}, 5, 7
s_cselect_b32 s{S_C}, 0x88880000, 0
s_mov_b32 s{S_D}, s{S_C}
s_add_u32 s6, s{S_SH}, 4
v_bfe_u32 v{T}, v0, 4, 1
v_and_b32 v{T+1}, 3, v0
v_lshlrev_b32 v{T}, s{S_B}, v{T}
v_lshl_add_u32 v{T}, v{T+1}, 3, v{T}
v_lshlrev_b32 v{T+1}, s6, v{G+1}""")
    for i, st_ in ((0, S_T0), (1, S_T1)):
        e(f"""s_mul_i32 s6, s{st_}, s{S_A}
s_lshl_b32 s7, s{st_}, 3
s_sub_u32 s7, 248, s7
v_add_u32 v{T+2}, s6, v{T}
v_mov_b32 v{T+3}, s7
v_cndmask_b32 v{T+2}, v{T+2}, v{T+3}, s[{S_C}:{S_D}]
v_xor_b32 v{T+2}, v{T+2}, v{T+1}
v_add_u32 v{WA+4*i}, v{T+2}, v{WB}""")
    for i in range(2):
        for pos in range(1, 4): e(f"v_xor_b32 v{WA+4*i+pos}, {pos<<12}, v{WA+4*i}")
    e(f"""v_bfe_u32 v{T}, v0, 4, 1
v_and_b32 v{T+1}, 15, v0
v_cmp_eq_u32 vcc, v{T}, v{T+1}
v_mov_b32 v{T}, 0x3f803f80
s_nop 0
v_cndmask_b32 v{SEL}, 0, v{T}, vcc
v_mov_b32 v{SEL+1}, v{SEL}
v_mov_b32 v{SEL+2}, v{SEL}
v_mov_b32 v{SEL+3}, v{SEL}""")
    w2t_addr = f"""s_mul_i32 s6, s{S_RB}, 12
s_add_u32 s6, s6, s{S_LA}
s_lshl_b32 s7, s{S_RB}, 2
s_add_u32 s7, s7, s{S_QU}
s_min_u32 s7, s7, 59
s_add_u32 s{S_A}, s7, 136
s_cmp_eq_u32 s{S_ISQ}, 1
s_cselect_b32 s6, s{S_A}, s6
s_cselect_b32 s7, s7, 63
s_mul_hi_u32 s{S_A}, s6, {(2**32 + 27)//28}
s_mul_i32 s{S_B}, s{S_A}, 28
s_sub_u32 s{S_B}, s6, s{S_B}
s_lshr_b32 s{S_C}, s7, 3
s_and_b32 s{S_D}, s7, 7
s_add_u32 s{S_D}, s{S_D}, 28
s_cmp_lt_u32 s7, 56
s_cselect_b32 s6, s{S_C}, s{S_A}
s_cselect_b32 s{S_B}, s{S_D}, s{S_B}
s_lshl_b32 s{S_WF}, s6, 6
s_add_u32 s{S_WF}, s{S_WF}, s{S_B}
s_lshl_b32 s{S_A}, s{S_B}, 2
s_lshr_b32 s{S_B}, s{S_W}, 1
s_add_u32 s{S_A}, s{S_A}, s{S_B}
s_mul_i32 s{S_U}, s6, 144
s_add_u32 s{S_U}, s{S_U}, s{S_A}
s_lshl_b32 s{S_B}, s{S_A}, 4
s_sub_u32 s{S_C}, s{S_A}, 112
s_lshr_b32 s{S_D}, s{S_C}, 1
s_mul_i32 s{S_D}, s{S_D}, 28
s_and_b32 s{S_C}, s{S_C}, 1
s_lshl_b32 s{S_C}, s{S_C}, 4
s_add_u32 s{S_C}, s{S_C}, s{S_D}
s_mov_b32 s{S_D}, {448*896}
s_cmp_lt_u32 s{S_A}, 112
s_cselect_b32 s{S_B}, s{S_B}, s{S_C}
s_cselect_b32 s{SRD_T}, s{P_WD}, s{P_WO}
s_cselect_b32 s{SRD_T+1}, s{P_WD+1}, s{P_WO+1}
s_cselect_b32 s{SRD_T+2}, {1792*896}, s{S_D}
s_mov_b32 s{SRD_T+3}, 0x00020000
s_and_b32 s{S_C}, s{S_W}, 1
s_lshl_b32 s{S_C}, s{S_C}, 3
s_add_u32 s{S_B}, s{S_B}, s{S_C}
s_mul_i32 s{S_B}, s{S_B}, 896
s_lshl_b32 s6, s6, 7
s_add_u32 s{S_TO}, s{S_B}, s6
v_lshrrev_b32 v{TP}, 3, v0
v_mul_u32_u24 v{TP}, 896, v{TP}
v_and_b32 v{TP+1}, 7, v0
v_lshl_add_u32 v{VT}, v{TP+1}, 4, v{TP}"""
    late = (f"""s_add_u32 s{S_LB}, s{S_LA}, 12
s_add_u32 s6, s{S_QU}, 24
s_cmp_eq_u32 s{S_ISQ}, 1
s_cselect_b32 s{S_LB}, s6, s{S_LB}
""" if P("LBOLD", 1) else f"s_add_u32 s{S_LB}, s{S_J}, 12\n") + f"""v_lshrrev_b32 v{TP}, 4, v0
s_lshl_b32 s6, s{S_ROT}, 4
s_add_u32 s6, s6, s{S_W}
s_lshl_b32 s6, s6, 2
v_add_u32 v{TP+1}, s6, v{TP}
v_mul_u32_u24 v{TP+1}, 3584, v{TP+1}
v_lshlrev_b32 v{TP}, 1, v{TP}
v_xor_b32 v{TP}, v{TP}, v0
v_and_b32 v{GB}, 7, v{TP}
v_lshl_add_u32 v{TP+1}, v{GB}, 4, v{TP+1}
s_lshl_b32 s6, s{S_LB}, 7
v_add_u32 v{TP+1}, s6, v{TP+1}
v_and_b32 v{TP}, 8, v{TP}
v_cmp_eq_u32 vcc, 8, v{TP}
v_mov_b32 v{GB}, s{P_WG}
v_mov_b32 v{TP}, s{P_WU}
v_cndmask_b32 v{GB}, v{GB}, v{TP}, vcc
v_mov_b32 v{GB+1}, s{P_WG+1}
v_mov_b32 v{TP}, s{P_WU+1}
v_cndmask_b32 v{GB+1}, v{GB+1}, v{TP}, vcc
v_add_co_u32 v{GB}, vcc, v{GB}, v{TP+1}
v_bfe_u32 v{TP}, v0, 4, 1
v_and_b32 v{TP+1}, 3, v0
v_addc_co_u32 v{GB+1}, vcc, 0, v{GB+1}, vcc
v_lshlrev_b32 v{TP+1}, 3, v{TP+1}
v_lshl_add_u32 v{TP}, v{TP}, 7, v{TP+1}
v_bfe_u32 v{TP+1}, v0, 2, 2
v_lshlrev_b32 v{TP+1}, 5, v{TP+1}
v_xor_b32 v{TP}, v{TP}, v{TP+1}
s_lshl_b32 s6, s{S_T0}, 5
v_xor_b32 v{TP}, s6, v{TP}
v_add_u32 v{WB}, v{TP}, v{WB}
v_xor_b32 v{WB+1}, 32, v{WB}"""
    e(f"s_lshl_b32 s45, s{S_TG}, 3\ns_add_u32 s45, s45, {STAT}")
    def hoisted():
        e(late); e(w2t_addr); e(h_off(S_LA, H_A)); e(h_off(S_LB, H_B)); e(attn_scalars()); e(f_scalars())
    if HOIST == 1: hoisted()
    if PD1 == 1:
        for f in stage_dmas(e, 1): f()
    if HOIST == 2: hoisted()
    e.stamp("xs4")
    srd(e, SRD_WS, P_WS, WS_END)
    e("s_waitcnt lgkmcnt(0)")
    e(f"s_add_u32 s{S_NON}, s{S_NON}, 1")
    U = RW + 4; A_, B_ = RW, RW + 1
    e.wvm("row")
    for k in range(4): e(f"v_lshlrev_b32 v{U+2*k}, 16, v{RW+k}\nv_and_b32 v{U+2*k+1}, s{S_MASK}, v{RW+k}")
    e(f"v_add_f32 v{A_}, v{U}, v{U+1}\nv_mul_f32 v{B_}, v{U}, v{U}\nv_add_f32 v{A_+2}, v{U+2}, v{U+3}\nv_mul_f32 v{B_+2}, v{U+1}, v{U+1}")
    for k in (2, 4, 6): e(f"v_fmac_f32 v{B_}, v{U+k}, v{U+k}\nv_fmac_f32 v{B_+2}, v{U+k+1}, v{U+k+1}")
    e(f"""v_add_f32 v{U}, v{U+4}, v{U+5}
v_add_f32 v{U+1}, v{U+6}, v{U+7}
v_add_f32 v{A_}, v{A_}, v{A_+2}
v_add_f32 v{U}, v{U}, v{U+1}
v_add_f32 v{B_}, v{B_}, v{B_+2}
v_add_f32 v{A_}, v{A_}, v{U}
s_nop 0""")
    for d in ("row_shr:1 row_mask:0xf bank_mask:0xf bound_ctrl:0", "row_shr:2 row_mask:0xf bank_mask:0xf bound_ctrl:0",
              "row_shr:4 row_mask:0xf bank_mask:0xf bound_ctrl:0", "row_shr:8 row_mask:0xf bank_mask:0xf bound_ctrl:0",
              "row_bcast:15 row_mask:0xa bank_mask:0xf", "row_bcast:31 row_mask:0xc bank_mask:0xf"):
        e(f"v_add_f32_dpp v{B_}, v{B_}, v{B_} {d}\nv_add_f32_dpp v{A_}, v{A_}, v{A_} {d}\ns_nop 0")
    e(f"""v_mul_f32 v{A_}, {f2u(1.0/448)}, v{A_}
v_mul_f32 v{B_}, {f2u(1.0/448)}, v{B_}
v_fma_f32 v{B_}, -v{A_}, v{A_}, v{B_}
v_max_f32 v{B_}, 0, v{B_}
v_cvt_pk_bf16_f32 v{B_}, v{B_}, v{B_}
v_and_b32 v{B_}, s{S_MASK}, v{B_}
v_add_f32 v{B_}, {f2u(1e-5)}, v{B_}
v_cvt_pk_bf16_f32 v{B_}, v{B_}, v{B_}
v_and_b32 v{B_}, s{S_MASK}, v{B_}
v_sqrt_f32 v{B_}, v{B_}
v_mov_b32 v{U}, s45
v_cvt_pk_bf16_f32 v{A_}, -v{A_}, v{B_}
v_mov_b32 v{B_}, s{S_NON}
s_mov_b32 exec_lo, 0
s_mov_b32 exec_hi, 0x80000000""")
    if PD1 == 2:
        e("s_mov_b64 exec, -1")
        for f in stage_dmas(e, 1): f()
        e("s_mov_b32 exec_lo, 0\ns_mov_b32 exec_hi, 0x80000000")
    e.vm(f"buffer_store_dwordx2 {vr(A_,2)}, v{U}, {WS}, 0 offen {SC}", "sts")
    e("s_mov_b64 exec, -1")
    e.stamp("xs5")
    if P("PRIO", 2) & 1: e(f"s_cmp_ge_u32 s{S_W}, 4\ns_cbranch_scc0 K_np\ns_setprio 1\nK_np:")
    e.wvm("d0")
    e("s_barrier")
    e.stamp("start")

    half = {'x': [0]*4, 'w': [0]*4}
    def reads(gp):
        if gp < 28: sig, sub, pos, reg = gp // 4, 0, gp % 4, 16384
        else:
            g = gp - 28; sig, sub, pos = 7 + g // 8, (g // 4) & 1, g % 4; reg = sub * 16384
        sl = sig % 4; h = sl >> 1; imm = (sl & 1) * RING
        buf = WF + 8 * (gp % 3)
        pre = []
        if 28 <= gp < 32:
            pre = [f"v_xor_b32 v{WA+4*i+pos}, {(pos << 12) | (h << 16)}, v{WB+i}" for i in range(2)]
            half['w'][pos] = h
        elif half['w'][pos] != h:
            pre = [f"v_xor_b32 v{WA+4*i+pos}, 0x10000, v{WA+4*i+pos}" for i in range(2)]
            half['w'][pos] = h
        if gp < 28 and half['x'][pos] != h:
            pre.append(f"v_xor_b32 v{XA+pos}, 0x10000, v{XA+pos}"); half['x'][pos] = h
        out = [(lambda l=l: e(l)) for l in pre]
        if gp < 28: out.append(lambda: e.ds(f"ds_read_b128 {vr(XR+4*gp,4)}, v{XA+pos} offset:{imm}", f"r{gp}"))
        for i in range(2):
            for u in range(2):
                out.append(lambda i=i, u=u: e.ds(f"ds_read_b64_tr_b16 {vr(buf+4*i+2*u,2)}, v{WA+4*i+pos} offset:{imm+reg+u*1024}", f"r{gp}"))
        return out
    def position(gp, side, dmaq, nside, barrier=None):
        p2 = gp >= 28; g = gp - 28 if p2 else gp
        acc = ACCB if p2 else ACCA
        buf = WF + 8 * (gp % 3); xr = XR + 4 * g
        e.wds(f"r{gp}")
        e(mfma(acc, buf, xr, "0" if g == 0 else None))
        if barrier: barrier()
        R = reads(gp + 2) if gp + 2 < 56 else []
        nx = 1 if gp + 2 < 28 else 0
        pre = R[:max(0, len(R) - 4 - nx)]; xrd = R[len(pre):len(pre) + nx]; tr = R[len(pre) + nx:]
        na = (nside + 1) // 2; nb = nside // 2
        for f in pre: f()
        if P("ORD", 1) == 0:
            for f in xrd + tr[:2]: f()
            side.emit(na)
            e(mfma(acc + 16, buf + 4, xr, "0" if g == 0 else None))
            for f in tr[2:]: f()
            if g % 4 == 0: e(mfma16(CSA, SEL, buf, "0" if g == 0 else None))
            if dmaq: dmaq.pop(0)()
            side.emit(nb)
            if g % 4 == 0: e(mfma16(CSA + 4, SEL, buf + 4, "0" if g == 0 else None))
        else:
            for f in tr[:1]: f()
            side.emit(min(2, na))
            for f in tr[1:2]: f()
            side.emit(na - min(2, na))
            e(mfma(acc + 16, buf + 4, xr, "0" if g == 0 else None))
            for f in tr[2:3]: f()
            side.emit(min(2, nb))
            for f in tr[3:]: f()
            side.emit(nb - min(2, nb))
            if g % 4 == 0 and 'nosel' not in X: e(mfma16(CSA, SEL, buf, "0" if g == 0 else None))
            for f in xrd: f()
            if g % 4 == 0 and 'nosel' not in X: e(mfma16(CSA + 4, SEL, buf + 4, "0" if g == 0 else None))
            if dmaq: dmaq.pop(0)()
    def stats(gp):
        x = XR + 4 * gp; c = lambda r: "0" if gp == 0 else vr(r, 4)
        return [mfma16(ST, SEL, x, c(ST)),
                f"v_mfma_f32_4x4x4_16b_bf16 {vr(SQA,4)}, {vr(x,2)}, {vr(x,2)}, {c(SQA)}\nv_mfma_f32_4x4x4_16b_bf16 {vr(SQB,4)}, {vr(x+2,2)}, {vr(x+2,2)}, {c(SQB)}"]
    def cs_write(dst):
        return [f"v_lshlrev_b32 v{G+8}, 4, v0", f"s_lshl_b32 s6, s{S_T0}, 9", f"s_lshl_b32 s{S_A}, s{S_RT}, 2",
                f"s_add_u32 s6, s6, s{S_A}", f"s_add_u32 s6, s6, {dst}", f"v_add_u32 v{G+8}, s6, v{G+8}",
                lambda: (e("s_mov_b64 exec, 0xffff"),
                         e.ds(f"ds_write_b32 v{G+8}, v{CSA}", "csw"), e.ds(f"ds_write_b32 v{G+8}, v{CSA+1} offset:256", "csw"),
                         e.ds(f"ds_write_b32 v{G+8}, v{CSA+4} offset:512", "csw"), e.ds(f"ds_write_b32 v{G+8}, v{CSA+5} offset:768", "csw"),
                         e("s_mov_b64 exec, -1"))]
    def cs_read(src):
        l = [f"v_and_b32 v{G+8}, 31, v0", f"v_lshlrev_b32 v{G+8}, 4, v{G+8}", f"s_lshl_b32 s6, s{S_T0}, 9", f"s_add_u32 s6, s6, {src}",
             f"v_add_u32 v{G+8}, s6, v{G+8}",
             lambda: e.ds(f"ds_read_b128 {vr(G,4)}, v{G+8}", "csr"), lambda: e.ds(f"ds_read_b128 {vr(G+4,4)}, v{G+8} offset:512", "csr")]
        m = [lambda: e.wds("csr")]
        for i in range(2):
            b = G + 4 * i
            m += [f"v_add_f32 v{b}, v{b}, v{b+1}", f"v_add_f32 v{b+2}, v{b+2}, v{b+3}"]
        for i in range(2): m += [f"v_add_f32 v{G+4*i}, v{G+4*i}, v{G+4*i+2}"]
        for i in range(2): m += [f"v_cvt_pk_bf16_f32 v{G+4*i+1}, v{G+4*i}, v{G+4*i}"]
        for i in range(2): m += [f"v_and_b32 v{G+4*i+1}, s{S_MASK}, v{G+4*i+1}"]
        for i in range(2): m += [f"v_sub_f32 v{G+4*i+1}, v{G+4*i}, v{G+4*i+1}"]
        for i in range(2): m += [f"v_cvt_pk_bf16_f32 v{G+4*i}, v{G+4*i}, v{G+4*i+1}"]
        for i in range(2): m += [f"v_cndmask_b32 v{ST+2*i}, v{G+4*i}, 0, s[{S_HI}:{S_HI+1}]"]
        return l, m

    KA = -2.0 * math.log2(math.e) * math.sqrt(2.0 / math.pi)
    GST = P("GST", 18)
    def stat_check():
        ok = e.newlabel("sok"); sp = e.newlabel("ssp")
        e.wvm("stl")
        e(f"v_cmp_ne_u32 vcc, s{S_NON}, v{BEXT+3}\ns_cbranch_vccz {ok}\ns_mov_b32 s{S_CNT}, {SPIN_MAX}")
        e.label(sp)
        e(f"""s_sleep 4
buffer_load_dwordx2 {vr(BEXT+2,2)}, v{G}, {WS}, 0 offen {SC}
s_sub_u32 s{S_CNT}, s{S_CNT}, 1
s_waitcnt vmcnt(0)
v_cmp_ne_u32 vcc, s{S_NON}, v{BEXT+3}
s_cmp_eq_u32 s{S_CNT}, 0
s_cbranch_scc1 {ok}
s_cbranch_vccnz {sp}""")
        if 'spincnt' in X: e(f"s_sub_u32 s88, {SPIN_MAX + 1000}, s{S_CNT}")
        e.label(ok)
    def after_exchange(side):
        l, m = cs_read(L_CSA)
        side.add(l)
        side.add(f"""v_and_b32 v{S_}, s{S_MASK}, v{BEXT+2}
v_and_b32 v{BEXT}, 0xffff, v{BEXT+2}
v_rcp_f32 v{R_}, v{S_}
v_lshl_or_b32 v{BEXT}, v{BEXT+2}, 16, v{BEXT}
v_mul_f32 v{I2}, v{S_}, v{S_}
v_mul_f32 v{AC}, {f2u(KA)}, v{R_}
v_mul_f32 v{BC}, v{R_}, v{R_}
v_mov_b32 v{ST+1}, 0
v_mul_f32 v{BC}, v{BC}, v{AC}
v_mov_b32 v{ST+3}, 0
v_mul_f32 v{BC}, {f2u(0.044715)}, v{BC}
v_mov_b32 v{BEXT+1}, 0
v_mov_b32 v{BEXT+2}, 0
v_mov_b32 v{BEXT+3}, 0""")
        side.add(m)
    for f in reads(0) + reads(1): f()
    side = Side(e); dmaq = list(stage_dmas(e, 2)) + ([touch(e, 2)] if TOUCH else [])
    w2side = Side(e)
    if GT & 4:
        w2side.add(f"""s_min_u32 s6, s{S_TG}, 895
s_cmp_ge_u32 s6, 448
s_cselect_b32 s{SRD_T}, s{P_WU}, s{P_WG}
s_cselect_b32 s{SRD_T+1}, s{P_WU+1}, s{P_WG+1}
s_cselect_b32 s7, 448, 0
s_mov_b32 s{SRD_T+2}, {448*3584}
s_sub_u32 s6, s6, s7
s_mul_i32 s6, s6, 3584
s_add_u32 s6, s6, 1536
v_and_b32 v{TA}, 15, v0
v_lshlrev_b32 v{TA}, 7, v{TA}""")
        w2side.add([lambda: e.vm(f"buffer_load_dword v{TD}, v{TA}, s[{SRD_T}:{SRD_T+3}], s6 offen", "t2")])
    if HOIST == 3: w2side.add(late); w2side.add(w2t_addr); w2side.add(h_off(S_LA, H_A)); w2side.add(h_off(S_LB, H_B)); w2side.add(attn_scalars()); w2side.add(f_scalars())
    for gp in range(28):
        sig, pos = gp // 4, gp % 4
        bar = None
        if pos == 2:
            def bar(sig=sig):
                if sig == 6: side.flush(); stat_check(); e.wds("csw")
                e.wvm(f"d{sig+1}"); e("s_barrier")
                if sig == 6: after_exchange(side)
                assert not dmaq
                dmaq.extend(stage_dmas(e, sig + 3))
                if sig == 0 and TOUCH: dmaq.append(touch(e, 3))
        if gp == GST:
            side.add([f"s_lshl_b32 s{S_G}, s{S_RB}, 2", f"s_add_u32 s{S_G}, s{S_G}, s{S_RT}", f"s_lshl_b32 s{S_G}, s{S_G}, 8", f"s_add_u32 s{S_G}, s{S_G}, {STAT}",
                      f"v_and_b32 v{G}, 31, v0", f"v_lshl_add_u32 v{G}, v{G}, 3, s{S_G}",
                      lambda: e.vm(f"buffer_load_dwordx2 {vr(BEXT+2,2)}, v{G}, {WS}, 0 offen {SC}", "stl")])
        if gp == 25: assert not w2side.q; side.add(cs_write(L_CSA))
        n = len(side.q) if gp < 26 else P('NEX', 10)
        while len(dmaq) > 4 - ((pos + 2) % 4): dmaq.pop(0)()
        e.stamp(f"xp{gp}")
        w2side.emit(0 if gp < P('WS0', 0) else 5 if gp < 2 else P('WSR', 6))
        position(gp, side, dmaq, n, bar)
    assert not w2side.q
    side.add(["s_nop 1", mfma(ACCA, ST, BEXT), mfma(ACCA + 16, ST + 2, BEXT)])
    carry = list(side.q)
    e.stamp("p1")

    KA = -2.0 * math.log2(math.e) * math.sqrt(2.0 / math.pi); KB = KA * 0.044715
    def gelu(acc, so, tb, keep=None, pk=0):
        l = []
        if pk:
            pr = lambda r: vr(r, 2)
            for k in range(0, 8, 2): l.append(f"v_pk_mul_f32 {pr(tb+k)}, {pr(acc+k)}, {pr(acc+k)}")
            for k in range(0, 8, 2): l.append(f"v_pk_fma_f32 {pr(tb+k)}, {pr(tb+k)}, {pr(AC)}, {pr(AC)} op_sel:[0,1,0] op_sel_hi:[1,1,0]")
            for k in range(0, 8, 2): l.append(f"v_pk_mul_f32 {pr(tb+k)}, {pr(tb+k)}, {pr(acc+k)}")
            for k in range(0, 8, 2): l += [f"v_exp_f32 v{tb+k}, v{tb+k}", f"v_exp_f32 v{tb+k+1}, v{tb+k+1}", f"v_pk_mul_f32 {pr(acc+k)}, {pr(acc+k)}, {pr(acc+8+k)}"]
            for k in range(0, 8, 2): l.append(f"v_pk_fma_f32 {pr(tb+k)}, {pr(tb+k)}, {pr(I2-1)}, {pr(I2-1)} op_sel:[0,1,1] op_sel_hi:[1,1,1]")
            for k in range(8): l.append(f"v_rcp_f32 v{tb+k}, v{tb+k}")
            for k in range(0, 8, 2): l.append(f"v_pk_mul_f32 {pr(acc+k)}, {pr(acc+k)}, {pr(tb+k)}")
        else:
            for k in range(8): l.append(f"v_mul_f32 v{tb+k}, v{acc+k}, v{acc+k}")
            for k in range(8): l.append(f"v_fma_f32 v{tb+k}, v{tb+k}, v{BC}, v{AC}")
            for k in range(8): l.append(f"v_mul_f32 v{tb+k}, v{tb+k}, v{acc+k}")
            for k in range(8): l += [f"v_exp_f32 v{tb+k}, v{tb+k}", f"v_mul_f32 v{acc+k}, v{acc+k}, v{acc+8+k}"]
            for k in range(8): l.append(f"v_fma_f32 v{tb+k}, v{tb+k}, v{I2}, v{I2}")
            for k in range(8): l.append(f"v_rcp_f32 v{tb+k}, v{tb+k}")
            for k in range(8): l.append(f"v_mul_f32 v{acc+k}, v{acc+k}, v{tb+k}")
        if keep is not None:
            return l + [f"v_cvt_pk_bf16_f32 v{keep+k}, v{acc+2*k}, v{acc+2*k+1}" for k in range(4)]
        for k in range(4): l.append(f"v_cvt_pk_bf16_f32 v{acc+8+k}, v{acc+2*k}, v{acc+2*k+1}")
        l.append(lambda: e.vm(f"buffer_store_dwordx4 {vr(acc+8,4)}, v{VL16}, {WS}, s{so} offen {SC}", "hs"))
        return l
    def w2t_out(side):
        side.add(f"""v_lshrrev_b32 v{TP}, 5, v0
v_bfe_u32 v{TP+1}, v0, 2, 2
v_lshl_add_u32 v{TP}, v{TP}, 2, v{TP+1}
v_lshlrev_b32 v{TP}, 7, v{TP}
v_bfe_u32 v{TP+1}, v0, 4, 1
v_lshl_add_u32 v{TP}, v{TP+1}, 5, v{TP}
v_and_b32 v{TP+1}, 3, v0
v_lshl_add_u32 v{TP}, v{TP+1}, 3, v{TP}
s_lshr_b32 s6, s{S_W}, 1
s_lshl_b32 s6, s6, 11
s_and_b32 s{S_A}, s{S_W}, 1
s_lshl_b32 s{S_B}, s{S_A}, 6
s_add_u32 s6, s6, s{S_B}
s_add_u32 s6, s6, {L_W2T}
v_add_u32 v{TP}, s6, v{TP}""")
        side.add([lambda: (e.ds(f"ds_read_b64_tr_b16 {vr(PL,2)}, v{TP}", "w2tr"), e.ds(f"ds_read_b64_tr_b16 {vr(PL+2,2)}, v{TP} offset:1024", "w2tr")),
                  f"s_lshl_b32 s6, s{S_U}, 11", f"s_lshl_b32 s{S_A}, s{S_A}, 10", f"s_add_u32 s6, s6, s{S_A}", f"s_add_u32 s{S_TO}, s6, {W2T}",
                  lambda: (e.wds("w2tr"), e.vm(f"buffer_store_dwordx4 {vr(PL,4)}, v{VL16}, {WS}, s{S_TO} offen {SC}", "w2ts"))])
    GEND = P("GEND", 20); GW2 = P("GW2", 22); GFQ = P("GFQ", 14)
    GX, GBN, GFL, QRATE = P("GX", 0), P("GBN", 2), P("GFL", 6 if SPLITQ else 9), P("QRATE", 40)
    def pass2(qfirst):
        side = Side(e); dq = list(dmaq); side.q = list(carry)
        for g in range(28):
            gp = 28 + g
            pre = []; wd = []; wv = []; post = []
            if g == 0:
                if not qfirst and 'nogelu' in X: pass
                elif not qfirst:
                    side.add(["s_nop 7"])
                    ga = gelu(ACCA, H_A, G); gb = gelu(ACCA + 16, H_A + 1, G)
                    k = P('HSD', 68)
                    side.add(ga[:-1] + gb[:k] + ga[-1:] + gb[k:] if not HLATE else ga[:-1] + gb[:-1] + [f"s_mov_b32 s{S_HA}, s{S_C}"])
                else: qkv_part1(side)
            if g == 6:
                post.append(lambda: dq.extend(stage_dmas(e, 10) + [lambda: (e(f"s_add_u32 m0, s{S_WB}, {L_W2T}\ns_nop 0"),
                            e.vm(f"buffer_load_dwordx4 v{VT}, s[{SRD_T}:{SRD_T+3}], s{S_TO} offen lds", "w2td"))]))
            if g == GW2: wv.append("w2td")
            if g in (6, 14, 22): wv.append(f"d{8 + g // 8}")
            if qfirst and g == GBN: pre.append(side.flush); wd.append("kvw"); post.append(lambda: qkv_part2(side))
            if qfirst and g == GFQ and SPLITQ:
                pre.append(side.flush); wv.append("qs")
                post.append(lambda: flag_store(e, f"""s_lshl_b32 s6, s{S_RB}, 5
s_add_u32 s6, s6, s{S_QU}
s_lshl_b32 s6, s6, 2
s_add_u32 s6, s6, {F_Q}
v_mov_b32 v{TP}, s6""", 1, TP))
            if qfirst and g == GFL:
                if SPLITQ: pre.append(lambda: e(f"s_waitcnt vmcnt({len(e.q['vm']) - e.mark['kvs']})")); wd.append("kvw")
                else: pre.append(side.flush); wv.append("qs")
                post.append(lambda: flag_store(e, f"""s_lshl_b32 s6, s{S_RB}, 2
s_add_u32 s6, s6, s{S_QU}
s_lshl_b32 s6, s6, 2
s_add_u32 s6, s6, {F_KV}
v_lshlrev_b32 v{TP}, 8, v0
v_add_u32 v{TP}, s6, v{TP}""", RKV, TP))
            if g == GW2 + 1 and HLATE < 2:
                q0 = side.q; side.q = []; w2t_out(side); side.q += q0
            if g == 24: side.flush()
            if g == P("GKP", 27):
                poll_issue(e, f"""s_and_b32 s6, s2, {RKV-1}
s_lshl_b32 s6, s6, 8
s_add_u32 s6, s6, {F_KV}
v_lshl_add_u32 v{PL}, v0, 2, s6""" + (f"""
s_lshl_b32 s6, s{S_RB}, 5
s_add_u32 s6, s6, s{S_QU}
s_lshl_b32 s6, s6, 2
s_add_u32 s6, s6, {F_Q}
v_mov_b32 v{PL+2}, s6
buffer_load_dword v{PL+3}, v{PL+2}, {WS}, 0 offen {SC}""" if SPLITQ else ""), PL, PL + 1, "kvp")
            if g == 25 and 'nocs' not in X:
                side.flush(); side.add(cs_write(L_CSB))
            if g == 26 and 'nocs' not in X:
                pre.append(side.flush); wd.append("csw")
                def p():
                    l, m = cs_read(L_CSB); side.add(l); side.add(m)
                post.append(p)
            bar = None
            if wd or wv:
                def bar():
                    for f in pre: f()
                    if wd: e.wds(*wd)
                    if wv: e.wvm(*wv)
                    e("s_barrier")
                    for f in post: f()
            if qfirst: n = QRATE if g < 9 else 12
            else: n = -(-len(side.q) // max(1, GEND - g)) if g < GEND else 12
            e.stamp(f"xg{g}")
            position(gp, side, dq, n, bar)
        side.flush()
        e.stamp("xpe2")
        e("s_nop 1")
        e(mfma(ACCB, ST, BEXT)); e(mfma(ACCB + 16, ST + 2, BEXT))
    RQ = PL
    def qkv_part1(side):
        side.add(f"""v_mul_f32 v{RQ}, {f2u(28 ** -0.5 * math.log2(math.e))}, v{R_}
v_and_b32 v{G+8}, 31, v0
v_lshlrev_b32 v{G+8}, 5, v{G+8}
s_lshl_b32 s6, s{S_RT}, 10
s_add_u32 s6, s6, {L_KVB}
v_add_u32 v{G+8}, s6, v{G+8}
s_mov_b32 s{S_D}, 0x00003f80
s_cmp_lt_u32 s{S_QU}, 2
s_cselect_b32 s{S_C}, 0x3f803f80, s{S_D}
s_cselect_b32 s{S_D}, s{S_D}, 0
s_nop 1""")
        for i, st_ in ((0, S_T0), (1, S_T1)):
            acc = ACCA + 16 * i; b = G + 4 * i
            for k in range(4): side.add([f"v_mul_f32 v{b+k}, v{acc+12+k}, v{R_}"])
            side.add(f"""s_sub_u32 s6, 3, s{st_}
s_lshl_b32 s{S_A}, s{st_}, 2
s_lshr_b32 s{S_A}, 0x0132, s{S_A}
s_and_b32 s{S_A}, s{S_A}, 3
s_bitcmp1_b32 s{S_QU}, 0
s_cselect_b32 s6, s{S_A}, s6
s_cselect_b32 s{S_A}, s{S_A}, 0
s_lshl_b32 s6, s6, 3
v_cvt_pk_bf16_f32 v{b}, v{b}, v{b+1}
v_cvt_pk_bf16_f32 v{b+1}, v{b+2}, v{b+3}
v_add_u32 v{b+2}, s6, v{G+8}""")
            def wr(b=b):
                l = e.newlabel("nc")
                e(f"s_cmp_eq_u32 s{S_A}, 3\ns_cbranch_scc0 {l}\nv_mov_b32 v{b}, s{S_C}\nv_mov_b32 v{b+1}, s{S_D}")
                e.label(l)
                e(f"s_mov_b64 exec, s[{S_HI}:{S_HI+1}]")
                e.ds(f"ds_write_b64 v{b+2}, {vr(b,2)}", "kvw")
                e("s_mov_b64 exec, -1")
            side.add([wr])
    def qkv_part2(side):
        def kv():
            l = e.newlabel("kvs"); lv = e.newlabel("kvv"); ls = e.newlabel("kvt")
            e(f"""s_cmp_eq_u32 s{S_CG}, 0
s_cbranch_scc0 {l}
s_lshl_b32 s6, s{S_RB}, 2
s_add_u32 s6, s6, s{S_RT}
s_lshl_b32 s6, s6, 12
s_add_u32 s6, s6, {KVF}
s_lshl_b32 s{S_A}, s{S_RT}, 10
s_add_u32 s{S_A}, s{S_A}, {L_KVB}
s_cmp_lt_u32 s{S_QU}, 2
s_cbranch_scc0 {lv}
v_and_b32 v{G}, 31, v0
v_lshrrev_b32 v{G+1}, 5, v0
v_lshlrev_b32 v{G}, 5, v{G}
v_lshl_add_u32 v{G}, v{G+1}, 3, v{G}
v_add_u32 v{G}, s{S_A}, v{G}
ds_read2_b64 {vr(G+4,4)}, v{G} offset0:0 offset1:2
s_lshl_b32 s{S_A}, s{S_QU}, 10
s_add_u32 s6, s6, s{S_A}
v_mov_b32 v{G+2}, v{VL16}
s_branch {ls}""")
            e.label(lv)
            e(f"""v_lshrrev_b32 v{G}, 5, v0
v_bfe_u32 v{G+1}, v0, 4, 1
v_lshlrev_b32 v{G+2}, 10, v{G}
v_lshl_add_u32 v{G+2}, v{G+1}, 9, v{G+2}
v_lshlrev_b32 v{G}, 4, v{G}
v_lshl_add_u32 v{G}, v{G+1}, 2, v{G}
v_bfe_u32 v{G+1}, v0, 2, 2
v_add_u32 v{G}, v{G}, v{G+1}
v_lshlrev_b32 v{G}, 5, v{G}
v_and_b32 v{G+1}, 3, v0
v_lshl_add_u32 v{G}, v{G+1}, 3, v{G}
v_add_u32 v{G}, s{S_A}, v{G}
ds_read_b64_tr_b16 {vr(G+4,2)}, v{G}
ds_read_b64_tr_b16 {vr(G+6,2)}, v{G} offset:256
v_and_b32 v{G+1}, 15, v0
v_lshl_add_u32 v{G+2}, v{G+1}, 4, v{G+2}
s_and_b32 s{S_A}, s{S_QU}, 1
s_lshl_b32 s{S_A}, s{S_A}, 8
s_add_u32 s6, s6, s{S_A}
s_add_u32 s6, s6, 2048""")
            e.label(ls)
            e(f"s_waitcnt lgkmcnt(0)\nbuffer_store_dwordx4 {vr(G+4,4)}, v{G+2}, {WS}, s6 offen {SC}")
            e.label(l)
            e.mark['kvs'] = len(e.q['vm'])
        side.add([kv])
        side.add(f"""s_lshl_b32 s6, s{S_RB}, 2
s_add_u32 s6, s6, s{S_RT}
s_lshl_b32 s6, s6, 2
s_add_u32 s6, s6, s{S_QU}
s_lshl_b32 s6, s6, 2
s_add_u32 s6, s6, s{S_T0}
s_lshl_b32 s6, s6, 11
s_add_u32 s{S_C}, s6, {QF}""")
        for i in range(2):
            acc = ACCA + 16 * i
            if P('PK', 0) & 4:
                for k in range(0, 16, 2): side.add([f"v_pk_mul_f32 {vr(acc+k,2)}, {vr(acc+k,2)}, {vr(RQ,2)} op_sel_hi:[1,0]"])
            else:
                for k in range(16): side.add([f"v_mul_f32 v{acc+k}, v{acc+k}, v{RQ}"])
            for k in range(8): side.add([f"v_cvt_pk_bf16_f32 v{acc+k}, v{acc+2*k}, v{acc+2*k+1}"])
            side.add([f"v_cndmask_b32 v{acc+6}, v{acc+6}, 0, s[{S_HI}:{S_HI+1}]", f"v_cndmask_b32 v{acc+7}, v{acc+7}, 0, s[{S_HI}:{S_HI+1}]",
                      lambda acc=acc, i=i: e.vm(f"buffer_store_dwordx4 {vr(acc,4)}, v{VL16}, {WS}, s{S_C} offen offset:{2048*i} {SC}", "qs"),
                      lambda acc=acc, i=i: e.vm(f"buffer_store_dwordx4 {vr(acc+4,4)}, v{VL16}, {WS}, s{S_C} offen offset:{2048*i+1024} {SC}", "qs")])
    e(f"s_cmp_eq_u32 s{S_ISQ}, 1\ns_cbranch_scc1 B_p2q")
    sn = e.snap(); hs = {k: list(v) for k, v in half.items()}; ns = e.nst
    pass2(False)
    e("s_branch B_join")
    e.label("B_p2q")
    e.nst = ns
    e.restore(sn); half.update({k: list(v) for k, v in hs.items()})
    pass2(True)
    e.label("B_join")
    e.q = {'ds': [], 'vm': []}; e.done = {'ds': 0, 'vm': 0}; e.mark['kvp'] = 0
    e.stamp("join")
    return gelu, h_off, w2t_out

LB0, LB1, VO = 3, 4, 5
Q, O, S0, PP, K, V0, V1 = 36, 44, 64, 96, 104, 112, 120
FA, FB = 128, 192
XRES = 244
S_KH, S_QT = S_CG, S_RT
F0 = P("F0", 8)
FP = P("FP", 2)
HBP = P("HBP", 14)
F3 = P("F3", 40)
WOP = 18

def kv_dma(e, st):
    def m(): e(f"s_add_u32 m0, s{S_WB4}, {((st + 3) % 4) * RING}" + ("\ns_nop 0" if st < 3 else ""))
    m.scalar = True
    l = [m]
    for f in range(4):
        l.append(lambda f=f: (e.vm(f"buffer_load_dwordx4 v{VL16}, {WS}, s{S_KVO} offen offset:{1024*f} {SC} lds", f"k{st}"),
                              e(f"s_add_u32 s{S_KVO}, s{S_KVO}, 16384") if f == 3 else None))
    return l

NB = P("NB", 3)
FBUF = [[FB + 16 * n + 4 * k for k in range(4)] for n in range(3)] + [[60, 124, 248, 252]]
def f_loads(e, q):
    bb = FBUF[q % NB]
    r = q if q < 6 else q - 6
    advA = advB = None
    if q == 5:
        advA = f"s_add_u32 s{S_FA}, s{S_FA}, s{S_FQ}"
        advB = f"s_add_u32 s{S_FB0}, s{S_FB0}, s{S_K1}\ns_add_u32 s{S_FB1}, s{S_FB1}, s{S_K1}"
    else:
        if r & 1: advA = f"s_add_u32 s{S_FA}, s{S_FA}, 4096"
        if (r & 3) == 3: advB = f"s_add_u32 s{S_FB0}, s{S_FB0}, 4096\ns_add_u32 s{S_FB1}, s{S_FB1}, 4096"
    return [lambda: e.vm(f"buffer_load_dwordx4 {vr(bb[0],4)}, v{VL16}, {WS}, s{S_FA} offen offset:{(r&1)*2048} {SC}", f"f{q}"),
            lambda: e.vm(f"buffer_load_dwordx4 {vr(bb[2],4)}, v{VL16}, {WS}, s{S_FB0} offen offset:{(r&3)*1024} {SC}", f"f{q}"),
            lambda: (e.vm(f"buffer_load_dwordx4 {vr(bb[1],4)}, v{VL16}, {WS}, s{S_FA} offen offset:{(r&1)*2048+1024} {SC}", f"f{q}"),
                     e(advA) if advA else None),
            lambda: (e.vm(f"buffer_load_dwordx4 {vr(bb[3],4)}, v{VL16}, {WS}, s{S_FB1} offen offset:{(r&3)*1024} {SC}", f"f{q}"),
                     e(advB) if advB else None)]
def f_mfma(q, k):
    bb = FBUF[q % NB]; r2, d2 = ((0, 0), (0, 1), (1, 1), (1, 0))[k]
    return mfma(FA + 32*r2 + 16*d2, bb[d2], bb[2 + r2], "0" if q == 0 else None)

OAREG = [8 + 4 * k for k in range(7)] + [FB + 4 * k for k in range(9)]
def oa_dma(e, n):
    def f():
        if n == 0: e(f"s_add_u32 m0, s{S_OL}, {3 * RING}\ns_nop 0")
        if n == 4: e(f"s_mov_b32 m0, s{S_OL}\ns_add_u32 s{S_OA}, s{S_OA}, 8192")
        e.vm(f"buffer_load_dwordx4 v{VL16}, {WS}, s{S_OA} offen offset:{(n & 3) * 1024} {SC} lds", "oa")
    return f
KVPRE = P('KVPRE', 2)
HDEF = P('HDEF', 1); HFL = P('HFL', 6 if HDEF else 2); S_HO = 47
def ha_flag(e):
    flag_store(e, f"""s_lshl_b32 s6, s{S_RB}, 5
s_add_u32 s6, s6, s{S_J}
s_lshl_b32 s6, s6, 2
s_add_u32 s6, s6, {F_H + 64}
s_lshl_b32 s{S_A}, s{S_WF}, 2
s_add_u32 s{S_A}, s{S_A}, {F_W}
s_sub_u32 s{S_A}, s{S_A}, s6
v_mul_lo_u32 v{PL}, v0, s{S_A}
v_add_u32 v{PL}, s6, v{PL}""", 2, PL)

def attn_setup(e, gelu, h_off, w2t_out):
    g0 = gelu(ACCB, S_C, G, 16 if HDEF else None, P('PK', 0) & 1); g1 = gelu(ACCB + 16, S_D, G + 8, 20 if HDEF else None, P('PK', 0) & 1)
    nfirst = P("GFIRST", 0)
    both = g0 + g1
    if P('GIL', 1): both = [x for p in zip(g0, g1) for x in p]
    for it in both[:nfirst]: it() if callable(it) else e(it)
    assert nfirst == 0
    poll_check(e, PL, PL + 1, "kvp", P("KSLEEP", 1))
    if SPLITQ: poll_check(e, PL + 2, PL + 3, "kvp", P("KSLEEP", 1))
    e.all_vm()
    e("s_barrier")
    e.stamp("xkv")
    if not HLATE: ha_flag(e)
    if P("KVT", 0):
        e(f"""s_lshr_b32 s6, s2, 3
s_lshl_b32 s6, s6, 3
s_add_u32 s6, s6, s{S_W}
s_lshl_b32 s6, s6, 10
s_add_u32 s6, s6, {KVF}
v_and_b32 v{TP}, 7, v0
v_lshlrev_b32 v{TP}, 7, v{TP}""")
        e.vm(f"buffer_load_dword v{TP+1}, v{TP}, {WS}, s6 offen {SC}", "kvt")
    side = Side(e)
    side.add(kv_dma(e, 0))
    side.add([lambda: e.vm(f"buffer_load_dwordx4 {vr(Q,4)}, v{VL16}, {WS}, s{S_QO} offen {SC}", "q"),
              lambda: e.vm(f"buffer_load_dwordx4 {vr(Q+4,4)}, v{VL16}, {WS}, s{S_QO} offen offset:1024 {SC}", "q")])
    side.emit(P("KPRE0", 7))
    if HLATE:
        l = e.newlabel("hl")
        e(f"s_cmp_eq_u32 s{S_ISQ}, 1\ns_cbranch_scc1 {l}")
        for it in range(2): e(f"buffer_store_dwordx4 {vr(ACCA+16*it+8,4)}, v{VL16}, {WS}, s{S_HA} offen offset:{1024*it} {SC}")
        e.label(l)
        e.mark['hl'] = len(e.q['vm'])
        if HLATE == 2:
            sd = Side(e); w2t_out(sd); sd.flush(); e.mark['hl'] = len(e.q['vm'])
    for st in range(1, KVPRE): side.add(kv_dma(e, st))
    for n, it in enumerate(both[nfirst:]):
        it() if callable(it) else e(it)
        if n % P('GSP', 1000) == P('GSP', 1000) - 1: side.emit(1)
        if n == 68: e.stamp("xg69")
    e.stamp("xgv")
    side.flush()
    e(f"""s_lshl_b32 s6, s{S_KH}, 14
v_add_u32 v{LB0}, s6, v{VL16}
v_add_u32 v{LB1}, 0x10000, v{LB0}""")

def rd(e, dst, tile, f, tag):
    sl = (tile // 4 + 3) % 4
    e.ds(f"ds_read_b128 {vr(dst,4)}, v{LB0 if sl < 2 else LB1} offset:{(sl & 1) * RING + (tile % 4) * 4096 + f * 1024}", tag)

def attn_loop(e, withF):
    e.stamp("xge")
    if P("PRIO", 2) == 2:
        l = e.newlabel("np"); e(f"s_cmp_ge_u32 s{S_W}, 4\ns_cbranch_scc0 {l}\ns_setprio 1"); e.label(l)
    if P("PRIO", 2) == 5: e("s_setprio 0")
    e.wvm("k0", "q")
    if HLATE: e(f"s_waitcnt vmcnt({len(e.q['vm']) - e.mark['hl']})")
    e.stamp("xk0"); e("s_barrier")
    if HLATE: ha_flag(e)
    e.stamp("astart")
    rd(e, K, 0, 0, "a"); rd(e, K + 4, 0, 1, "a"); rd(e, V0, 0, 2, "b")
    e.wds("a")
    e(mfma(S0, K, Q, "0")); e(mfma(S0, K + 4, Q + 4))
    rd(e, K, 1, 0, "b"); rd(e, K + 4, 1, 1, "b")
    e("s_nop 9")
    NT = 32
    fq = []
    nq = 0
    dq = []
    fi = 0
    need = {}; keep = []; done = [0]
    for i in range(NT):
        sc = S0 + 16 * (i & 1); sn = S0 + 16 * ((i + 1) & 1)
        v0c = V0 + 4 * (i & 1); v0n = V0 + 4 * ((i + 1) & 1)
        E = lambda r: f"v_exp_f32 v{r}, v{r}"
        C = lambda d, r: f"v_cvt_pk_bf16_f32 v{d}, v{r}, v{r+1}"
        def g(k): return [E(sc + 4*k + q) for q in range(4)] + [C(PP + 2*k, sc + 4*k), C(PP + 2*k + 1, sc + 4*k + 2)]
        g0, g1, g2, g3 = g(0), g(1), g(2), g(3)
        fm = []; fl = []
        if withF:
            if i == FP - 2:
                assert FP % 4 == 2
                fl = [lambda: poll_issue(e, f"""s_lshl_b32 s6, s{S_RB}, 7
s_add_u32 s6, s6, {F_H + 64}
s_and_b32 s7, s{S_J}, 7
s_lshl_b32 s7, s7, 8
s_add_u32 s7, s7, {F_W - 64}
v_lshl_add_u32 v{G}, v0, 2, s6
v_lshl_add_u32 v{G+1}, v0, 2, s7
v_mov_b32 v{G+2}, s6
s_mov_b32 s{S_A}, 0xffff0000
s_mov_b32 s{S_B}, 0x00000fff
s_mov_b32 s{S_C}, 0x00008888
s_mov_b32 s{S_D}, 0xfffff000
v_cndmask_b32 v{G}, v{G}, v{G+1}, s[{S_A}:{S_B}]
v_cndmask_b32 v{G}, v{G}, v{G+2}, s[{S_C}:{S_D}]""", G, G + 1, "hp")]
            if FP <= i < F0:
                if i == FP:
                    for q in range(NB - 1): fq += f_loads(e, q)
                n = -(-len(fq) // (F0 - i))
                fl = fq[:n]; fq = fq[n:]
            pb = []
            if i == HBP - 2:
                pb = [lambda: poll_issue(e, f"""s_lshl_b32 s6, s{S_RB}, 7
s_add_u32 s6, s6, {F_H}
v_and_b32 v{G}, 15, v0
v_lshl_add_u32 v{G}, v{G}, 2, s6""", G, G + 1, "hb")]
            if i == WOP - 2:
                pb = [lambda: poll_issue(e, f"""s_and_b32 s6, s{S_J}, 7
s_lshl_b32 s6, s6, 8
s_add_u32 s6, s6, {F_W + 112}
v_and_b32 v{G}, 7, v0
v_lshl_add_u32 v{G}, v{G}, 2, s6""", G, G + 1, "wo")]
            if i >= F0:
                cnt = 3 if i >= F3 else 2
                idx = list(range(fi, min(fi + cnt, 56))); fi += len(idx)
                fm = [(n // 4, n % 4) for n in idx]
                for (q, k) in fm:
                    if k == 0 and q + NB - 1 < 14:
                        if q + NB - 1 == 6: assert i > HBP
                        nl = f_loads(e, q + NB - 1)
                        for f in nl: need[id(f)] = 4 * q
                        keep.extend(nl); fq += nl
                n = min(len(fq), cnt)
                fl = fq[:n] + pb; fq = fq[n:]
        def em(x): x() if callable(x) else e(x)
        e.stamp(f"xa{i}")
        ex = [E(sc + k) for k in range(16)]; cv = [C(PP + k, sc + 2 * k) for k in range(8)]
        if i + KVPRE <= 2: dq += kv_dma(e, i + KVPRE)
        misc = []
        if i == 29: misc.append(comb_addr())
        if HDEF and i in (HDEF, HDEF + 1):
            misc.append(lambda i=i: e.vm(f"buffer_store_dwordx4 {vr(16 + 4*(i - HDEF),4)}, v{VL16}, {WS}, s{H_B} offen offset:{1024*(i - HDEF)} {SC}", "hs"))
        if withF and 22 <= i < 30: misc.append(oa_dma(e, i - 22))
        gate = withF and i == FP
        def take(n):
            for _ in range(n):
                if fl and need.get(id(fl[0]), 0) <= done[0]: em(fl.pop(0))
        per = -(-len(fl) // 2)
        for x in ex[0:2]: em(x)
        def fmf(n):
            if n < len(fm):
                q, k = fm[n]
                e.wvm(f"f{q}"); e(f_mfma(q, k)); done[0] += 1
        if fm and fm[0][1] == 0: e.wboth(f"f{fm[0][0]}")
        else: e.all_ds()
        if i > 0: e(mfma(O, V1, PP + 4))
        rd(e, V1, i, 3, "c")
        for x in ex[2:5]: em(x)
        fmf(0)
        if not gate: take(1 if fm else per)
        for x in cv[0:2] + ex[5:7]: em(x)
        if i + 1 < NT: e(mfma(sn, K, Q, "0")); rd(e, v0n, i + 1, 2, "c")
        for x in ex[7:10]: em(x)
        if i + 1 < NT: e(mfma(sn, K + 4, Q + 4))
        if i % 4 == 2 and i + 2 < NT:
            st = i // 4
            if withF and i == FP: poll_check(e, G, G + 1, "hp")
            if withF and i == HBP: poll_check(e, G, G + 1, "hb")
            if withF and i == WOP: poll_check(e, G, G + 1, "wo")
            while dq and i == 2: dq.pop(0)()
            e.wvm(*([f"k{st+1}"] + (["hs"] if i == HFL else []))); e("s_barrier")
            if i == HFL:
                flag_store(e, f"""s_lshl_b32 s6, s{S_RB}, 5
s_add_u32 s6, s6, s{S_J}
s_lshl_b32 s6, s6, 2
s_add_u32 s6, s6, {F_H}
v_mov_b32 v{G+2}, s6""", 1, G + 2)
            assert not dq
            if st + 3 <= 7: dq += kv_dma(e, st + 3)
        if i + 2 < NT: rd(e, K, i + 2, 0, "c"); rd(e, K + 4, i + 2, 1, "c")
        if dq and getattr(dq[0], "scalar", False): dq.pop(0)()
        for x in cv[2:4] + ex[10:12]: em(x)
        fmf(1)
        take(1 if fm else len(fl) if not gate else per)
        for x in ex[12:14] + cv[4:6]: em(x)
        e(mfma(O, v0c, PP, "0" if i == 0 else None))
        for _ in range(1 if i >= 2 else 2):
            if dq: dq.pop(0)()
        if len(fm) < 3: take(len(fl))
        for x in misc: em(x)
        for x in ex[14:16] + cv[6:7]: em(x)
        fmf(2); take(len(fl))
        fq = fl + fq
        em(cv[7])
        if i + 2 >= NT: e("s_nop 1")
    e.all_ds()
    e("s_nop 0")
    e(mfma(O, V1, PP + 4))
    return fi, fq

CMB = L_W2T
def comb_addr():
    T = G
    return f"""s_lshl_b32 s6, s{S_W}, 11
s_add_u32 s6, s6, {CMB}
v_add_u32 v{T}, s6, v{VL16}
v_xor_b32 v{T+1}, 8192, v{T}
s_lshl_b32 s6, s{S_W}, 8
s_add_u32 s6, s6, {CMB + 16384}
v_lshl_add_u32 v{T+2}, v0, 2, s6
v_or_b32 v{T+3}, 32, v0
s_lshl_b32 s6, s{S_QT}, 8
s_add_u32 s6, s6, {CMB + 16384}
v_lshl_add_u32 v{T+3}, v{T+3}, 2, s6
s_mov_b32 s{S_C}, {f2u(2.0 ** -64)}
s_mov_b32 s{S_D}, {f2u(2.0 ** 64)}
s_lshl_b32 s6, s{S_RB}, 9
s_add_u32 s6, s6, s{S_J}
s_lshl_b32 s6, s6, 2
s_add_u32 s6, s6, {F_O2}
v_lshl_add_u32 v6, v0, 7, s6
v_mov_b32 v7, s{S_NON}"""

def attn_finish(e, withF=False):
    T = G
    e.stamp("aend")
    hi = e.newlabel("chi"); jn = e.newlabel("cjn"); fb = e.newlabel("cfb"); bk = e.newlabel("cbk")
    e(f"s_cmp_eq_u32 s{S_KH}, 0\ns_nop 10")
    e.ds(f"ds_write_b32 v{T+2}, v{O+12}")
    e(f"s_cbranch_scc0 {hi}")
    e.ds(f"ds_write_b128 v{T}, {vr(O+8,4)}"); e.ds(f"ds_write_b128 v{T}, {vr(O+12,4)} offset:1024")
    e(f"s_branch {jn}")
    e.label(hi)
    e(f"ds_write_b128 v{T}, {vr(O,4)}\nds_write_b128 v{T}, {vr(O+4,4)} offset:1024")
    e.all_ds()
    for k in range(8): e(f"v_mov_b32 v{O+k}, v{O+8+k}")
    e.label(jn)
    if withF: e.wboth("oa")
    else: e.all_ds()
    e.stamp("xc0")
    e("s_barrier")
    e.stamp("xc1")
    e.ds(f"ds_read2st64_b32 {vr(PP,2)}, v{T+3} offset0:0 offset1:4", "l")
    e.ds(f"ds_read_b128 {vr(S0,4)}, v{T+1}", "h0"); e.ds(f"ds_read_b128 {vr(S0+4,4)}, v{T+1} offset:1024", "h1")
    e(f"s_mov_b32 s{S_A}, 0\ns_sub_u32 s{S_B}, 0, s{S_KH}")
    e.wds("l")
    e(f"""v_add_f32 v{PP}, v{PP}, v{PP+1}
v_rcp_f32 v{PP+1}, v{PP}
v_cmp_nle_f32 vcc, s{S_C}, v{PP}
v_cmp_nge_f32 s[{S_E}:{S_F}], s{S_D}, v{PP}""")
    e.all_ds()
    for k in range(8): e(f"v_add_f32 v{S0+k}, v{S0+k}, v{O+k}")
    e(f"s_or_b64 s[{S_E}:{S_F}], s[{S_E}:{S_F}], vcc")
    for k in range(8): e(f"v_mul_f32 v{S0+k}, v{S0+k}, v{PP+1}")
    def pack_store():
        for k in range(4): e(f"v_cvt_pk_bf16_f32 v{K+k}, v{S0+2*k}, v{S0+2*k+1}")
        e(f"""v_cndmask_b32 v{K+2}, v{K+2}, 0, s[{S_A}:{S_B}]
v_cndmask_b32 v{K+3}, v{K+3}, 0, s[{S_A}:{S_B}]""")
    pack_store()
    e.vm(f"buffer_store_dwordx4 {vr(K,4)}, v{VL16}, {WS}, s{S_OO} offen {SC}", "os")
    e(f"""v_add_f32 v{PP+2}, |v{S0}|, |v{S0+1}|
v_add_f32 v{PP+3}, |v{S0+2}|, |v{S0+3}|
v_add_f32 v{PP+4}, |v{S0+4}|, |v{S0+5}|
v_add_f32 v{PP+5}, |v{S0+6}|, |v{S0+7}|
v_add_f32 v{PP+2}, v{PP+2}, v{PP+3}
v_add_f32 v{PP+4}, v{PP+4}, v{PP+5}
s_mov_b32 s6, 0x7f7fffff
v_add_f32 v{PP+2}, v{PP+2}, v{PP+4}
v_cmp_nge_f32 vcc, s6, v{PP+2}
s_nop 1
s_or_b64 vcc, vcc, s[{S_E}:{S_F}]""")
    if 'forcefb' in X: e("s_mov_b64 vcc, 1")
    e(f"s_cbranch_vccnz {fb}")
    e.label(bk)
    FALLBACKS.append((fb, bk))
    e.stamp("xc2")

FALLBACKS = []
def fallback(e, fb, bk):
    l1 = e.newlabel("fb1"); l2 = e.newlabel("fb2"); l3 = e.newlabel("fb3")
    M = PP + 7
    e.label(fb)
    if 'fbcount' in X:
        e(f"""s_mov_b32 s80, s{P_DBG}
s_mov_b32 s81, s{P_DBG+1}
s_mov_b32 s82, 256
s_mov_b32 s83, 0x00020000
v_mov_b32 v{M}, 0
v_mov_b32 v{M-1}, 1
s_mov_b64 exec, 1
buffer_atomic_add v{M-1}, v{M}, s[80:83], 0 offen
v_mov_b32 v{M-1}, s2
buffer_store_dword v{M-1}, v{M}, s[80:83], 0 offen offset:4
v_mov_b32 v{M-1}, s{S_W}
buffer_store_dword v{M-1}, v{M}, s[80:83], 0 offen offset:8
v_mov_b32 v{M-1}, vcc_lo
buffer_store_dword v{M-1}, v{M}, s[80:83], 0 offen offset:12
v_mov_b32 v{M-1}, vcc_hi
buffer_store_dword v{M-1}, v{M}, s[80:83], 0 offen offset:16
v_mov_b32 v{M-1}, s{S_E}
buffer_store_dword v{M-1}, v{M}, s[80:83], 0 offen offset:20
v_mov_b32 v{M-1}, s{S_F}
buffer_store_dword v{M-1}, v{M}, s[80:83], 0 offen offset:24
buffer_store_dword v{PP}, v{M}, s[80:83], 0 offen offset:28
buffer_store_dword v{PP+2}, v{M}, s[80:83], 0 offen offset:32
s_waitcnt vmcnt(0)
s_mov_b64 exec, -1""")
    e(f"s_mov_b32 s6, {KVF}\nv_mov_b32 v{M}, 0xff800000")
    e.label(l1)
    e(f"""buffer_load_dwordx4 {vr(K,4)}, v{VL16}, {WS}, s6 offen {SC}
buffer_load_dwordx4 {vr(K+4,4)}, v{VL16}, {WS}, s6 offen offset:1024 {SC}
s_add_u32 s6, s6, 4096
s_waitcnt vmcnt(0)""")
    e(mfma(S0, K, Q, "0")); e(mfma(S0, K + 4, Q + 4))
    e("s_nop 11")
    for k in range(8): e(f"v_max3_f32 v{M}, v{M}, v{S0+2*k}, v{S0+2*k+1}")
    e(f"""s_cmp_lt_u32 s6, {KVF + 64*4096}
s_cbranch_scc1 {l1}
v_mov_b32 v{PP}, v{M}
s_nop 1
v_permlane32_swap_b32 v{PP}, v{M}
v_max_f32 v{M}, v{M}, v{PP}
v_cvt_pk_bf16_f32 v{PP}, v{M}, v{M}
v_and_b32 v{PP}, s{S_MASK}, v{PP}
v_sub_f32 v{PP+1}, v{M}, v{PP}
v_cvt_pk_bf16_f32 v{PP+2}, v{PP+1}, v{PP+1}
v_and_b32 v{PP+2}, s{S_MASK}, v{PP+2}
v_sub_f32 v{PP+1}, v{PP+1}, v{PP+2}
v_cvt_pk_bf16_f32 v{PP}, -v{PP}, -v{PP+2}
v_cvt_pk_bf16_f32 v{PP+1}, -v{PP+1}, 0
v_cndmask_b32 v{Q+6}, v{Q+6}, v{PP}, s[{S_HI}:{S_HI+1}]
v_cndmask_b32 v{Q+7}, v{Q+7}, v{PP+1}, s[{S_HI}:{S_HI+1}]
s_mov_b32 s6, {KVF}""")
    for k in range(16): e(f"v_mov_b32 v{O+k}, 0")
    e.label(l2)
    for f in range(4): e(f"buffer_load_dwordx4 {vr(K+4*f,4)}, v{VL16}, {WS}, s6 offen offset:{1024*f} {SC}")
    e("s_add_u32 s6, s6, 4096\ns_waitcnt vmcnt(0)")
    e(mfma(S0, K, Q, "0")); e(mfma(S0, K + 4, Q + 4))
    e("s_nop 11")
    for k in range(16): e(f"v_exp_f32 v{S0+k}, v{S0+k}")
    e("s_nop 0")
    for k in range(8): e(f"v_cvt_pk_bf16_f32 v{PP+k}, v{S0+2*k}, v{S0+2*k+1}")
    e("s_nop 1")
    e(mfma(O, K + 8, PP)); e(mfma(O, K + 12, PP + 4))
    e(f"""s_cmp_lt_u32 s6, {KVF + 64*4096}
s_cbranch_scc1 {l2}
s_nop 11
v_mov_b32 v{PP}, v{O+12}
v_mov_b32 v{PP+1}, v{O+12}
s_cmp_eq_u32 s{S_KH}, 0
s_nop 0
v_permlane32_swap_b32 v{PP}, v{PP+1}
v_rcp_f32 v{PP+1}, v{PP+1}
s_cbranch_scc1 {l3}""")
    for k in range(8): e(f"v_mov_b32 v{O+k}, v{O+8+k}")
    e.label(l3)
    e("s_nop 0")
    for k in range(8): e(f"v_mul_f32 v{S0+k}, v{O+k}, v{PP+1}")
    for k in range(4): e(f"v_cvt_pk_bf16_f32 v{K+k}, v{S0+2*k}, v{S0+2*k+1}")
    e(f"""v_cndmask_b32 v{K+2}, v{K+2}, 0, s[{S_A}:{S_B}]
v_cndmask_b32 v{K+3}, v{K+3}, 0, s[{S_A}:{S_B}]
buffer_store_dwordx4 {vr(K,4)}, v{VL16}, {WS}, s{S_OO} offen {SC}
s_waitcnt vmcnt(0)
s_branch {bk}""")

OFA, OFD = 6, 7
def o_signal(e):
    l = e.newlabel("os")
    e(f"s_cbranch_vccz {l}\ns_mov_b64 exec, 0xffff\nbuffer_store_dword v{OFD}, v{OFA}, {WS}, 0 offen {SC}\ns_mov_b64 exec, -1")
    e.label(l)

def o_flag(e):
    e.stamp("xc3")
    e(f"s_cmp_eq_u32 s{S_W}, 0\ns_cselect_b64 vcc, -1, 0")
    e.wvm("os"); e.stamp("xc4"); e("s_barrier")
    o_signal(e)

def tail(e, nq, fq):
    T = G
    SUM = 232
    RB = 64
    OBR = [96 + 4 * k for k in range(7)] + [36]
    AD = 248
    for f in fq: f()
    for n in range(nq, 56):
        q, k = n // 4, n % 4
        if k == 0 and q + NB - 1 < 14:
            for f in f_loads(e, q + NB - 1): f()
        e.wvm(f"f{q}"); e(f_mfma(q, k))
    e(f"""s_lshl_b32 s6, s{S_W}, 13
s_add_u32 s6, s6, {RING}
v_add_u32 v{AD+6}, s6, v{VL16}
v_xor_b32 v{AD+7}, 8192, v{AD+6}""")
    if nq < 56: e("s_nop 8")
    setup = Side(e)
    setup.add(f"""s_lshr_b32 s6, s{S_J}, 3
s_lshl_b32 s7, s{S_RB}, 1
s_add_u32 s6, s6, s7
s_and_b32 s{S_B}, s{S_W}, 1
s_lshl_b32 s{S_C}, s6, 1
s_add_u32 s{S_C}, s{S_C}, s{S_B}
s_mul_i32 s{S_C}, s{S_C}, 144
s_lshr_b32 s{S_A}, s{S_W}, 1
s_lshl_b32 s{S_D}, s{S_A}, 3
s_add_u32 s{S_D}, s{S_D}, 112
s_add_u32 s{S_C}, s{S_C}, s{S_D}
s_lshl_b32 s{S_C}, s{S_C}, 10
s_and_b32 s7, s{S_J}, 7
s_add_u32 s{S_D}, s{S_C}, 4096
s_lshl_b32 s{S_A}, s{S_A}, 14
s_lshl_b32 s{S_B}, s{S_B}, 13
s_add_u32 s{S_G}, s{S_A}, s{S_B}
s_add_u32 s{S_G}, s{S_G}, {RING}
v_and_b32 v{T}, 31, v0
v_lshrrev_b32 v{T+1}, 5, v0
v_and_b32 v{T+2}, 7, v0
v_xor_b32 v{T+1}, v{T+1}, v{T+2}
v_lshlrev_b32 v{T+1}, 4, v{T+1}
v_lshl_add_u32 v{T}, v{T}, 8, v{T+1}
v_add_u32 v{AD}, s{S_G}, v{T}
v_xor_b32 v{AD+1}, 32, v{AD}
v_xor_b32 v{AD+2}, 64, v{AD}
v_xor_b32 v{AD+3}, 96, v{AD}
s_lshl_b32 s6, s6, 6
s_lshl_b32 s{S_B}, s{S_W}, 3
s_add_u32 s6, s6, s{S_B}
v_lshrrev_b32 v{T}, 3, v0
v_add_u32 v{T+1}, s6, v{T}
v_mul_u32_u24 v{T+1}, 896, v{T+1}
v_lshl_add_u32 v{T+1}, v{T+2}, 4, v{T+1}
s_lshl_b32 s7, s7, 7
v_add_u32 v{VO}, s7, v{T+1}
v_lshlrev_b32 v{T+2}, 1, v{T+2}
v_xor_b32 v{T+2}, v{T+2}, v{T}
v_lshlrev_b32 v{T+2}, 4, v{T+2}
v_lshl_add_u32 v{T}, v{T}, 8, v{T+2}
s_lshl_b32 s6, s{S_W}, 11
s_add_u32 s6, s6, {RING}
v_add_u32 v{AD+4}, s6, v{T}
v_xor_b32 v{AD+5}, 16, v{AD+4}
v_add_u32 v{T+2}, {3 * RING}, v{T+3}""")
    e(f"s_lshr_b32 s6, s{S_W}, 1\ns_lshl_b32 s6, s6, 13\nv_add_u32 v{T+3}, s6, v{VL16}\ns_nop 0")
    oaq = [(lambda k=k: e.ds(f"ds_read_b128 {vr(OAREG[k],4)}, v{T+2 if k < 8 else T+3} offset:{(k & 7) * 1024}", "oar")) for k in range(16)]
    nw1 = P("NW1", 0)
    def oflag():
        e.stamp("xc3")
        e(f"s_cmp_eq_u32 s{S_W}, 0\ns_cselect_b64 vcc, -1, 0")
        e.wvm("os")
        if nw1 == 8: e.all_ds()
        e.stamp("xc4"); e("s_barrier")
        o_signal(e)
    for q in range(8):
        if q == nw1: oflag()
        e.ds(f"ds_write_b128 v{AD+6}, {vr(FA+32+4*q,4)} offset:{q*1024}")
        setup.emit(6)
    setup.flush()
    if nw1 == 8: oflag()
    if not P('OAL', 1):
        for f in oaq: f()
    e.vm(f"buffer_load_dwordx4 {vr(XRES,4)}, v{VO}, s[{SRD_X}:{SRD_X+3}], 0 offen", "xr")
    if nw1 < 8: e.all_ds(); e("s_barrier")
    for q in range(8): e.ds(f"ds_read_b128 {vr(RB+4*q,4)}, v{AD+7} offset:{q*1024}", f"p{q}")
    def olook():
        poll_issue(e, f"""s_lshl_b32 s6, s{S_RB}, 4
s_add_u32 s6, s6, s{S_J}
s_lshl_b32 s6, s6, 7
s_add_u32 s6, s6, {F_O2}
v_and_b32 v{T}, 15, v0
v_lshl_add_u32 v{T}, v{T}, 2, s6""", T, T + 1, "op")
    if P('OLATE', 1) == 0: olook()
    srd(e, SRD_OUT, P_OUT, 2048 * 896)
    for q in range(8):
        e.wds(f"p{q}")
        for k in range(4): e(f"v_add_f32 v{FA+4*q+k}, v{FA+4*q+k}, v{RB+4*q+k}")
    if P('OLATE', 1) == 2:
        for f in oaq: f()
        oaq = []
    if P('OLATE', 1): olook()
    e.stamp("t1")
    poll_check(e, T, T + 1, "op", P("OSLEEP", 1))
    e("s_barrier")
    e.stamp("t2")
    for k in range(8):
        e.vm(f"buffer_load_dwordx4 {vr(OBR[k],4)}, v{VL16}, {WS}, s{S_C if k < 4 else S_D} offen offset:{(k&3)*1024} {SC}", f"ob{k}")
    if P('OAL', 1):
        for f in oaq: f()
        e.all_ds()
    e.wvm("xr")
    for k in range(4): e(f"v_lshlrev_b32 v{SUM+2*k}, 16, v{XRES+k}\nv_and_b32 v{SUM+1+2*k}, s{S_MASK}, v{XRES+k}")
    for k in range(8):
        e.wvm(f"ob{k}")
        for d2 in range(2): e(mfma(FA + 16*d2, OAREG[2*k + d2], OBR[k]))
    e("s_nop 10")
    e.stamp("t3")
    for d2 in range(2):
        for q in range(4): e.ds(f"ds_write_b128 v{AD+q}, {vr(FA+16*d2+4*q,4)} offset:{d2*128}")
    e.all_ds()
    e("s_barrier")
    for p in range(4):
        e.ds(f"ds_read_b128 {vr(RB+8*p,4)}, v{AD+4} offset:{p*16384}", f"s{p}")
        e.ds(f"ds_read_b128 {vr(RB+8*p+4,4)}, v{AD+5} offset:{p*16384}", f"s{p}")
    for p in range(4):
        e.wds(f"s{p}")
        for k in range(8): e(f"v_add_f32 v{SUM+k}, v{SUM+k}, v{RB+8*p+k}")
    for k in range(4): e(f"v_cvt_pk_bf16_f32 v{XRES+k}, v{SUM+2*k}, v{SUM+1+2*k}")
    e.vm(f"buffer_store_dwordx4 {vr(XRES,4)}, v{VO}, s[{SRD_OUT}:{SRD_OUT+3}], 0 offen {os.environ.get('OUTF', '')}")

DOC = """;
;            one extra MFMA, 1/std folded into the GELU constants); h, q, k, v and the transposed down / output
;  tail    : o of the 16 heads, output projection, cross-wave reduction, residual, store
"""
def build():
    e = Em()
    kn = NAME + "_kernel"
    e.a.raw(f".globl {kn}\n.p2align 8\n.type {kn},@function")
    e.label(kn)
    prologue(e)
    gelu, h_off, w2t_out = phaseB(e)
    attn_setup(e, gelu, h_off, w2t_out)
    e(f"s_and_b32 s6, s{S_J}, 7\ns_cmp_eq_u32 s6, 7\ns_cbranch_scc1 C_noF")
    sn = e.snap(); ns = e.nst
    nq, fq = attn_loop(e, True)
    attn_finish(e, True)
    tail(e, nq, fq)
    nend = e.nst
    e("s_branch K_fin")
    e.label("C_noF")
    e.restore(sn); e.nst = ns
    attn_loop(e, False)
    attn_finish(e)
    o_flag(e)
    e(f"""s_cmp_eq_u32 s{S_RB}, 0
s_cbranch_scc0 C_noF_done
s_cmp_eq_u32 s{S_J}, 7
s_cbranch_scc0 C_noF_done
s_cmp_eq_u32 s{S_W}, 0
s_cbranch_scc0 C_noF_done""")
    for k in range(4):
        e(f"""v_lshrrev_b32 v{G}, 4, v0
v_and_b32 v{G+1}, 15, v0
v_lshlrev_b32 v{G}, 7, v{G}
v_lshl_add_u32 v{G}, v{G+1}, 2, v{G}
v_add_u32 v{G}, {F_H + 512*k}, v{G}""")
        e(f"buffer_load_dword v{G+1}, v{G}, {WS}, 0 offen {SC}"); e.mark[f"ep{k}"] = len(e.q['vm'])
        poll_check(e, G, G + 1, f"ep{k}")
    e(f"v_mov_b32 v{G}, {EPO}\nv_mov_b32 v{G+1}, s{S_NON}\ns_mov_b64 exec, 1\nbuffer_store_dword v{G+1}, v{G}, {WS}, 0 offen {SC}\ns_mov_b64 exec, -1")
    e.label("C_noF_done")
    while e.nst < nend and not STAMPS_OFF: e.stamp()
    e.label("K_fin")
    if os.environ.get("AMPAT") == "xfin": e("s_waitcnt vmcnt(0)"); e.stamp("xfin")
    if os.environ.get("AMPAT"):
        e("""s_waitcnt vmcnt(0)
s_memrealtime s[92:93]
s_waitcnt lgkmcnt(0)
s_sub_u32 s7, s94, s96
s_mul_i32 s7, s7, 10
K_amp:
s_sleep 1
s_memrealtime s[98:99]
s_waitcnt lgkmcnt(0)
s_sub_u32 s6, s98, s92
s_cmp_lt_u32 s6, s7
s_cbranch_scc1 K_amp""")
    if 'stdiag' in X:
        e("""s_memtime s[92:93]
s_waitcnt lgkmcnt(0)
K_sd:
s_sleep 2
s_memtime s[90:91]
s_waitcnt lgkmcnt(0)
s_sub_u32 s6, s90, s92
s_cmp_lt_u32 s6, s94
s_cbranch_scc1 K_sd""")
    if 'fix' in X:
        e("""K_fx:
s_sleep 1
s_memrealtime s[98:99]
s_waitcnt lgkmcnt(0)
s_sub_u32 s6, s98, s96
s_cmp_lt_u32 s6, 10000
s_cbranch_scc1 K_fx""")
    if 'amp' in X:
        e("""s_waitcnt vmcnt(0)
s_memrealtime s[98:99]
s_waitcnt lgkmcnt(0)
s_sub_u32 s7, s98, s96
s_mul_i32 s7, s7, 10
K_fx:
s_sleep 1
s_memrealtime s[98:99]
s_waitcnt lgkmcnt(0)
s_sub_u32 s6, s98, s96
s_cmp_lt_u32 s6, s7
s_cbranch_scc1 K_fx""")
    if STAMPS:
        e.stamp()
        e.label("K_fin2")
        e("s_memrealtime s[98:99]\ns_waitcnt lgkmcnt(0) vmcnt(0)")
        e(f"""s_mov_b32 s40, s{P_WS}
s_mov_b32 s41, s{P_WS+1}
s_mov_b32 s42, 0x10000000
s_mov_b32 s43, 0x00020000
s_lshl_b32 s6, s2, 3
s_add_u32 s6, s6, s{S_W}
s_lshl_b32 s6, s6, 6
s_add_u32 s6, s6, {STAMP_WS}
v_mov_b32 v2, s96
v_mov_b32 v3, s98""")
        for k in range(10): e(f"v_mov_b32 v{4+k}, {'s%d' % (76+2*k) if k < e.nst else 0}")
        e("v_mov_b32 v1, 0\ns_mov_b64 exec, 1")
        for q in range(3): e(f"buffer_store_dwordx4 v[{2+4*q}:{5+4*q}], v1, s[40:43], s6 offen offset:{16*q}")
    e("s_endpgm")
    for fb, bk in FALLBACKS: fallback(e, fb, bk)
    e.label("K_end")
    e("s_endpgm")
    probs = check_hazards(e.a.lines, "k")
    hdr = open("cdna_kernels/" + NAME + ".s.ref").read().split("; Override launch")[0]
    out = hdr + f"; @launch grid=(256,1,1) block=(512,1,1) lds={LDS_BYTES}\n"
    out += DOC + '.amdgcn_target "amdgcn-amd-amdhsa--gfx950"\n.text\n' + e.a.text()
    out += f""".section .rodata,"a"
.p2align 6
.amdhsa_kernel {kn}
  .amdhsa_next_free_vgpr 256
  .amdhsa_next_free_sgpr 102
  .amdhsa_accum_offset 256
  .amdhsa_group_segment_fixed_size 0
  .amdhsa_kernarg_size 96
  .amdhsa_user_sgpr_count 2
  .amdhsa_user_sgpr_kernarg_segment_ptr 1
  .amdhsa_system_sgpr_workgroup_id_x 1
  .amdhsa_float_denorm_mode_32 3
.end_amdhsa_kernel
"""
    return out, probs

if __name__ == "__main__":
    out, probs = build()
    for p in probs: print("HAZARD", p, file=sys.stderr)
    open(sys.argv[1] if len(sys.argv) > 1 else "cdna_kernels/" + NAME + ".s", "w").write(out)
```

```python
import sys, os, math, struct
from asmlib import *
X = set(os.environ.get('XFLAGS', '').split(','))
def P(name, default): return int(os.environ.get(name, default))
NAME = "parallel_sum__grouped_kv_mqa__glu_gated_geglu__prompt"
def f2u(x): return struct.unpack("<I", struct.pack("<f", x))[0]

A2F = 0
W2T = 64 * 144 * 1024
QF  = W2T + 7 * 144 * 2048
KVF = QF + 64 * 16 * 2048
FLG = KVF + 64 * 4096
RKV = P("RKV", 16)
F_W  = FLG
F_H  = FLG + 2048
F_O  = FLG + 4096
EPO  = FLG + 6144
F_Q  = FLG + 4096
SPLITQ = P('SPLITQ', 1)
F_KV = FLG + 8192
F_O2 = F_KV + 256 * RKV
STAT = F_O2 + 32768
WS_END = STAT + 2048 * 8
OOB = 0x7ffffff0
P_X, P_WQ, P_WK, P_WV, P_WO, P_BX, P_WG, P_WU, P_WD, P_OUT, P_DBG, P_WS = 8, 10, 12, 14, 16, 18, 20, 22, 24, 26, 28, 30
SRD_X, SRD_WS, SRD_T, SRD_PC = 32, 36, 40, 44
SRD_OUT = SRD_T
S_W, S_RB, S_J = 3, 4, 5
(S_WB, S_MASK, S_XO, S_XO2, S_RT, S_CG, S_MUL, S_T0, S_T1, S_U, S_NON, S_LA, S_LB, S_TO, S_QU) = range(48, 63)
S_HI = 64
S_A, S_B, S_C, S_D, S_E, S_F = 66, 67, 68, 69, 70, 71
S_G, S_H2 = 72, 73
S_CNT = 74
WS = f"s[{SRD_WS}:{SRD_WS+3}]"
SC = "sc1"
STAMPS = bool(os.environ.get("STAMPS"))
STAMP_WS = 200 * 1024 * 1024
SPIN_MAX = 1 << 21
STAMPS_OFF = False

class Em:
    def __init__(s):
        s.a = Asm(); s.q = {'ds': [], 'vm': []}; s.done = {'ds': 0, 'vm': 0}; s.nst = 0; s.uid = 0; s.mark = {}
    def __call__(s, t): s.a(t)
    def label(s, l): s.a.label(l)
    def ds(s, ins, tag=None): s.a(ins); s.q['ds'].append(tag)
    def vm(s, ins, tag=None): s.a(ins); s.q['vm'].append(tag)
    def _n(s, k, tags, cap):
        idx = -1
        for t in tags:
            ii = [i for i, x in enumerate(s.q[k]) if x == t]
            if not ii and 'nodma' in X: continue
            assert ii, f"tag {t} never issued"
            idx = max(idx, ii[-1])
        if idx < s.done[k]: return None
        n = min(len(s.q[k]) - 1 - idx, cap)
        s.done[k] = len(s.q[k]) - n
        return n
    def wds(s, *tags):
        n = s._n('ds', tags, 15)
        if n is not None: s.a(f"s_waitcnt lgkmcnt({n})")
    def wvm(s, *tags):
        n = s._n('vm', tags, 63)
        if n is not None: s.a(f"s_waitcnt vmcnt({n})")
    def wboth(s, *tags):
        n = s._n('vm', tags, 63)
        s.a("s_waitcnt lgkmcnt(0)" if n is None else f"s_waitcnt vmcnt({n}) lgkmcnt(0)"); s.done['ds'] = len(s.q['ds'])
    def all_ds(s): s.a("s_waitcnt lgkmcnt(0)"); s.done['ds'] = len(s.q['ds'])
    def all_vm(s): s.a("s_waitcnt vmcnt(0)"); s.done['vm'] = len(s.q['vm'])
    def snap(s): return ({k: list(v) for k, v in s.q.items()}, dict(s.done))
    def restore(s, sn): s.q = {k: list(v) for k, v in sn[0].items()}; s.done = dict(sn[1])
    def stamp(s, name=None):
        if name is not None and name == os.environ.get("IDLEAT"): s.a("s_sleep 32")
        if name is not None and name == os.environ.get("AMPAT"):
            s.a("s_memrealtime s[94:95]"); s.all_ds()
        sel = os.environ.get("STSEL")
        if sel is not None and name is not None and name not in sel.split(","): return
        if sel is None and name is not None and name.startswith("x"): return
        if STAMPS and not STAMPS_OFF:
            assert s.nst < 10
            s.a(f"{'s_memrealtime' if os.environ.get('RT') else 's_memtime'} s[{76+2*s.nst}:{77+2*s.nst}]"); s.nst += 1
            s.all_ds()
    def newlabel(s, p): s.uid += 1; return f"{p}_{s.uid}"

def srd(e, d, p, nbytes):
    e(f"s_mov_b32 s{d}, s{p}\ns_mov_b32 s{d+1}, s{p+1}\ns_mov_b32 s{d+2}, {nbytes}\ns_mov_b32 s{d+3}, 0x00020000")
def mfma(d, A, B, C=None):
    return f"v_mfma_f32_32x32x16_bf16 {vr(d,16)}, {vr(A,4)}, {vr(B,4)}, {vr(d,16) if C is None else C}"
def mfma16(d, A, B, C=None):
    return f"v_mfma_f32_16x16x32_bf16 {vr(d,4)}, {vr(A,4)}, {vr(B,4)}, {vr(d,4) if C is None else C}"

class Side:
    def __init__(s, e): s.e = e; s.q = []
    def add(s, items):
        if isinstance(items, str):
            raw = [l.strip() for l in items.strip().split("\n") if l.strip()]
            items = []
            for l in raw:
                if l.startswith("s_cselect"): items[-1] += "\n" + l
                else: items.append(l)
        s.q += list(items)
    def emit(s, n):
        while n > 0 and s.q:
            it = s.q.pop(0)
            if callable(it): it()
            else: s.e(it)
            n -= 1
    def flush(s): s.emit(1 << 30)

def flag_store(e, addr_lines, nlanes, vt):
    l = e.newlabel("fl")
    e(f"s_cmp_eq_u32 s{S_W}, 0\ns_cbranch_scc0 {l}")
    e(addr_lines)
    e(f"v_mov_b32 v{vt+1}, s{S_NON}\ns_mov_b64 exec, {(1 << nlanes) - 1}\nbuffer_store_dword v{vt+1}, v{vt}, {WS}, 0 offen {SC}\ns_mov_b64 exec, -1")
    e.label(l)

def poll_issue(e, addr_lines, vaddr, vdat, tag):
    l = e.newlabel("pi")
    e(f"s_cmp_eq_u32 s{S_W}, 0\ns_cbranch_scc0 {l}")
    e(addr_lines)
    e(f"buffer_load_dword v{vdat}, v{vaddr}, {WS}, 0 offen {SC}")
    e.label(l)
    e.mark[tag] = len(e.q['vm'])

def poll_check(e, vaddr, vdat, tag, sleep=None):
    ok = e.newlabel("pok"); sp = e.newlabel("psp")
    e(f"s_cmp_eq_u32 s{S_W}, 0\ns_cbranch_scc0 {ok}")
    e(f"s_waitcnt vmcnt({min(63, len(e.q['vm']) - e.mark[tag])})")
    e(f"v_cmp_ne_u32 vcc, s{S_NON}, v{vdat}\ns_cbranch_vccz {ok}\ns_mov_b32 s{S_CNT}, {SPIN_MAX}")
    e.label(sp)
    e(f"""s_sleep {P('SLEEP', 4) if sleep is None else sleep}
buffer_load_dword v{vdat}, v{vaddr}, {WS}, 0 offen {SC}
s_sub_u32 s{S_CNT}, s{S_CNT}, 1
s_waitcnt vmcnt(0)
v_cmp_ne_u32 vcc, s{S_NON}, v{vdat}
s_cmp_eq_u32 s{S_CNT}, 0
s_cbranch_scc1 {ok}
s_cbranch_vccnz {sp}""")
    if 'spincnt' in X and tag in SPINIDX: e(f"s_sub_u32 s{78 + 2 * SPINIDX[tag]}, {SPIN_MAX + 1000}, s{S_CNT}")
    e.label(ok)
SPINIDX = {'kvp': 0, 'hp': 1, 'hb': 2, 'wo': 3, 'op': 4}

RING = 32768
L_W2T = 131072
L_CSA = L_W2T + 8192
L_CSB = L_CSA + 2048
L_ST  = L_CSB + 2048
L_KVB = L_ST + 4096
L_FLG = L_KVB + 4096
LDS_BYTES = L_FLG + 256

VL16, VT, VX, GA, GS = 1, 2, 3, 4, 6
XA, WA = 8, 12
ST, SEL, CSA, WF, TM = 20, 24, 28, 36, 60
ACCA, ACCB, XR, G = 64, 96, 128, 240
SQA, SQB, TP = 60, 240, 248
WB, GB, PL = 250, 102, 252
R_, S_, AC, BC, I2 = 8, 9, 10, 11, 3
BEXT = 60


TA, TS, TX, TD = 96, 98, 99, 100
S_ISQ, S_SH = 63, 75
RW = 104
def w_source(row, c, dst, gs, t0):
    return f"""v_cmp_le_u32 vcc, s{S_A}, v{c}
v_mul_lo_u32 v{dst}, v{row}, s{S_B}
v_lshl_add_u32 v{dst}, v{c}, 4, v{dst}
v_add_u32 v{dst}, s{S_C}, v{dst}
v_subrev_u32 v{c}, s{S_A}, v{c}
v_lshlrev_b32 v{c}, s{S_G}, v{c}
v_mul_lo_u32 v{t0}, v{row}, s{S_D}
v_add3_u32 v{t0}, v{t0}, v{c}, s{S_H2}
v_cndmask_b32 v{dst}, v{dst}, v{t0}, vcc
v_mov_b32 v{gs}, s{S_B}
v_mov_b32 v{t0}, s{S_D}
v_cndmask_b32 v{gs}, v{gs}, v{t0}, vcc
v_lshlrev_b32 v{gs}, 5, v{gs}"""

ROTS = {0: [0]*8, 1: [0, 3, 2, 5, 4, 0, 6, 2], 2: [0, 3, 3, 0, 0, 3, 3, 0], 3: [0, 1, 2, 3, 4, 5, 6, 0], 4: [0, 4, 1, 5, 2, 6, 3, 0]}
ROTTAB = sum(v << (4 * i) for i, v in enumerate(ROTS[P("ROT", 0)]))
S_ROT = 47
S_KVO, S_WB4, S_FA, S_FB0, S_FB1, S_OO, S_FQ, S_K1, S_OA, S_OL = 15, 18, 19, 20, 21, 22, 23, 28, 29, 44
HLATE = P('HLATE', 0); S_HA = 45
S_WF = 46
RPAR, RBIT = P("RPAR", 0), P("RBIT", 0)
RPARCODE = "" if not RPAR else f"""
s_lshr_b32 s{S_F}, s2, 3
s_lshr_b32 s{S_T0}, s2, 6
s_xor_b32 s{S_F}, s{S_F}, s{S_T0}
s_and_b32 s{S_F}, s{S_F}, {RBIT or 1}
s_mul_i32 s{S_F}, s{S_F}, {RPAR}
s_add_u32 s{S_XO}, s{S_XO}, s{S_F}
s_cmp_ge_u32 s{S_XO}, 7
s_cselect_b32 s{S_F}, 7, 0
s_sub_u32 s{S_XO}, s{S_XO}, s{S_F}"""
def prologue(e):
    T = TM
    ROTCODE = f"""s_and_b32 s{S_XO}, s2, 7
s_lshl_b32 s{S_XO}, s{S_XO}, 2
s_lshr_b32 s{S_XO}, {ROTTAB:#x}, s{S_XO}
s_and_b32 s{S_XO}, s{S_XO}, 7{RPARCODE}
s_mov_b32 s{S_ROT}, s{S_XO}
s_lshl_b32 s{S_F}, s{S_XO}, 6
s_lshl_b32 s{S_XO}, s{S_XO}, 7
v_add_u32 v{T+2}, s{S_F}, v{T+2}
""" if any(ROTS[P('ROT', 0)]) or RPAR else f"s_mov_b32 s{S_ROT}, 0\n"
    e(f"s_cmp_ge_u32 s2, 256\ns_cbranch_scc1 K_end")
    if STAMPS or 'fix' in X or 'amp' in X or os.environ.get("AMPAT"): e("s_memrealtime s[96:97]")
    e.stamp()
    if 'spincnt' in X:
        for k in range(6): e(f"s_movk_i32 s{78 + 2*k}, 1000")
        e.nst = 7
    e("s_load_dwordx16 s[8:23], s[0:1], 0\ns_load_dwordx8 s[24:31], s[0:1], 64")
    e(f"s_getpc_b64 s[{SRD_PC}:{SRD_PC+1}]")
    e.label("K_pc")
    e(f"""s_mov_b32 s{SRD_PC+2}, K_end-K_pc
s_mov_b32 s{SRD_PC+3}, 0x00020000""")
    if P("CPF", 1):
        e(f"s_lshr_b32 s6, s2, 3\ns_lshl_b32 s6, s6, 11\nv_lshrrev_b32 v1, 5, v0\nv_lshl_add_u32 v1, v1, 7, s6")
    else: e("v_lshlrev_b32 v1, 7, v0")
    e.vm(f"buffer_load_dword v{TD}, v1, s[{SRD_PC}:{SRD_PC+3}], 0 offen")
    T = TM
    e(f"""v_lshrrev_b32 v1, 6, v0
v_and_b32 v0, 63, v0
v_readfirstlane_b32 s{S_W}, v1
s_nop 1""")
    e(f"""s_lshl_b32 s{S_TG}, s2, 3
s_add_u32 s{S_TG}, s{S_TG}, s{S_W}
s_mul_i32 s6, s{S_TG}, 896
v_lshl_add_u32 v{TX}, v0, 4, s6
v_cmp_lt_u32 vcc, 55, v0
v_mov_b32 v{TX+2}, {OOB}
s_nop 0
v_cndmask_b32 v{TX}, v{TX}, v{TX+2}, vcc""")
    WT = f"""s_min_u32 s6, s{S_TG}, 1393
s_cmp_ge_u32 s6, 448
s_cselect_b32 s{SRD_T}, s{P_WU}, s{P_WG}
s_cselect_b32 s{SRD_T+1}, s{P_WU+1}, s{P_WG+1}
s_cselect_b32 s{S_A}, 448, 0
s_mov_b32 s{S_D}, {448*3584}
s_cmp_ge_u32 s6, 896
s_cselect_b32 s{SRD_T}, s{P_WQ}, s{SRD_T}
s_cselect_b32 s{SRD_T+1}, s{P_WQ+1}, s{SRD_T+1}
s_cselect_b32 s{S_A}, 896, s{S_A}
s_cselect_b32 s{S_B}, 6, 11
s_cselect_b32 s{S_C}, 7, 28
s_cselect_b32 s{S_D}, {448*896}, s{S_D}
s_cmp_ge_u32 s6, 1344
s_cselect_b32 s{SRD_T}, s{P_WK}, s{SRD_T}
s_cselect_b32 s{SRD_T+1}, s{P_WK+1}, s{SRD_T+1}
s_cselect_b32 s{S_A}, 1344, s{S_A}
s_cselect_b32 s{S_B}, 7, s{S_B}
s_cselect_b32 s{S_C}, 8, s{S_C}
s_cselect_b32 s{SRD_T+2}, {448*56}, s{S_D}
s_cmp_ge_u32 s6, 1369
s_cselect_b32 s{SRD_T}, s{P_WV}, s{SRD_T}
s_cselect_b32 s{SRD_T+1}, s{P_WV+1}, s{SRD_T+1}
s_cselect_b32 s{S_A}, 1369, s{S_A}
s_mov_b32 s{SRD_T+3}, 0x00020000
s_sub_u32 s6, s6, s{S_A}
s_mul_i32 s6, s6, s{S_C}
v_min_u32 v{TA}, s{S_B}, v0
v_add_u32 v{TA}, s6, v{TA}
v_lshlrev_b32 v{TA}, 7, v{TA}"""
    e(f"""
s_bfe_u32 s{S_RB}, s2, 0x20001
s_lshl_b32 s{S_RB}, s{S_RB}, 2
s_lshr_b32 s6, s2, 6
s_add_u32 s{S_RB}, s{S_RB}, s6
s_and_b32 s{S_J}, s2, 1
s_lshl_b32 s{S_J}, s{S_J}, 3
s_bfe_u32 s7, s2, 0x30003
s_add_u32 s{S_J}, s{S_J}, s7
s_lshr_b32 s{S_QU}, s{S_J}, 2
s_sub_u32 s{S_LA}, s{S_J}, s{S_QU}
s_lshl_b32 s{S_WB}, s{S_W}, 10
s_lshl_b32 s{S_C}, s{S_LA}, 7
s_mul_i32 s{S_E}, s{S_QU}, 224
s_and_b32 s{S_F}, s{S_QU}, 1
s_sub_u32 s{S_G}, 4, s{S_F}
s_lshl_b32 s{S_F}, s{S_F}, 5
s_movk_i32 s{S_D}, 3584
s_and_b32 s{S_ISQ}, s{S_J}, 3
s_cmp_eq_u32 s{S_ISQ}, 3
s_cselect_b32 s{S_ISQ}, 1, 0
s_cselect_b32 s{S_A}, 14, 8
s_cselect_b32 s{S_B}, 896, s{S_D}
s_cselect_b32 s{S_D}, 56, s{S_D}
s_cselect_b32 s{S_H2}, s{S_F}, s{S_C}
s_cselect_b32 s{S_C}, s{S_E}, s{S_C}
s_cselect_b32 s{S_G}, s{S_G}, 4
s_add_u32 s{S_SH}, s{S_ISQ}, 1
s_lshl_b32 s{S_E}, s{S_RB}, 7
s_lshl_b32 s{S_F}, s{S_W}, 3
s_add_u32 s{S_F}, s{S_F}, s{S_E}
v_lshrrev_b32 v{T}, 3, v0
v_add_u32 v{T}, s{S_F}, v{T}
v_mul_u32_u24 v{T}, 896, v{T}
s_lshl_b32 s{S_F}, s{S_W}, 2
v_lshrrev_b32 v{T+1}, 4, v0
v_add_u32 v{T+2}, s{S_F}, v{T+1}
v_xor_b32 v{T+3}, v{T+2}, v0
v_and_b32 v{T+3}, 7, v{T+3}
v_lshl_add_u32 v{VX}, v{T+3}, 4, v{T}
{ROTCODE}v_lshlrev_b32 v{T+1}, s{S_SH}, v{T+1}
v_xor_b32 v{T+1}, v{T+1}, v0
v_and_b32 v{T+1}, 15, v{T+1}""")
    e(w_source(T + 2, T + 1, G, GS, T))
    e(f"s_mov_b64 s[{S_HI}:{S_HI+1}], vcc")
    if TOUCH:
        e(f"""s_and_b32 s6, s6, 3
s_lshl_b32 s6, s6, 3
s_add_u32 s6, s6, s{S_W}
s_lshl_b32 s6, s6, 1
s_lshl_b32 s7, s7, 3
s_add_u32 s7, s7, s{S_W}
s_lshl_b32 s7, s7, 1
s_add_u32 s7, s7, s{S_E}
v_bfe_u32 v{T+2}, v0, 3, 1
v_bfe_u32 v{T+1}, v0, 2, 1
v_lshl_add_u32 v{T+2}, v{T+2}, 6, v{T+1}
v_add_u32 v{T+2}, s6, v{T+2}
v_and_b32 v{T+1}, 3, v0
v_lshlrev_b32 v{T+1}, 2, v{T+1}
v_lshrrev_b32 v{T+1}, v{T+1}, s{S_MASK}
v_and_b32 v{T+1}, 15, v{T+1}
v_and_b32 v{T}, 1, v0
v_add_u32 v{T}, s7, v{T}
v_mul_u32_u24 v{TX}, 896, v{T}
v_bfe_u32 v{T}, v0, 1, 1
v_lshl_add_u32 v{TX}, v{T}, 7, v{TX}""".replace(f"v_lshrrev_b32 v{T+1}, v{T+1}, s{S_MASK}", f"s_movk_i32 s6, 0xed80\nv_lshrrev_b32 v{T+1}, v{T+1}, s6"))
        e(w_source(T + 2, T + 1, G + 1, TS, T))
    e("s_waitcnt lgkmcnt(0)")
    e.stamp("xs0")
    if 'stdiag' in X:
        e(f"""s_mov_b32 s40, s{P_WS}
s_mov_b32 s41, s{P_WS+1}
s_mov_b32 s42, 0x10000000
s_mov_b32 s43, 0x00020000
s_lshl_b32 s90, s2, 3
s_add_u32 s90, s90, s{S_W}
s_lshl_b32 s90, s90, 10
s_add_u32 s90, s90, {P('DOFF', 100) * 1024 * 1024}
v_lshlrev_b32 v110, 4, v0
buffer_store_dwordx4 v[112:115], v110, s[40:43], s90 offen sc1
s_waitcnt vmcnt(0)
s_add_u32 s90, s90, 0x200000
s_barrier
s_memtime s[92:93]
s_waitcnt lgkmcnt(0)
buffer_store_dwordx4 v[112:115], v110, s[40:43], s90 offen sc1
s_waitcnt vmcnt(0)
s_barrier
s_memtime s[94:95]
s_waitcnt lgkmcnt(0)
s_sub_u32 s94, s94, s92
s_mul_i32 s94, s94, 100""")
    srd(e, SRD_X, P_X, 2048 * 896)
    if GT:
        if not P("ROWL", 0): e.vm(f"buffer_load_dwordx4 {vr(RW,4)}, v{TX}, s[{SRD_X}:{SRD_X+3}], 0 offen", "row")
        if GT & 2 and not P("PRO", 1): e.vm(f"buffer_load_dword v{TD}, v{TA}, s[{SRD_T}:{SRD_T+3}], {'s%d' % S_TS if P('GTS', 0) else 0} offen", "t")
        if P("GTW", 0): e.wvm("row")
    if P("XE", 1): dma_x(e, 0, 0)(); dma_x(e, 0, 1)()
    if P("PRO", 1) == 2:
        e(WT); e.vm(f"buffer_load_dword v{TD}, v{TA}, s[{SRD_T}:{SRD_T+3}], 0 offen", "t")
    e(f"""s_cmp_lt_u32 s{S_QU}, 2
s_cselect_b32 s{S_C}, s{P_WK}, s{P_WV}
s_cselect_b32 s{S_D}, s{P_WK+1}, s{P_WV+1}
s_cmp_eq_u32 s{S_ISQ}, 1
s_cselect_b32 s{S_A}, s{P_WQ}, s{P_WG}
s_cselect_b32 s{S_B}, s{P_WQ+1}, s{P_WG+1}
s_cselect_b32 s{S_C}, s{S_C}, s{P_WU}
s_cselect_b32 s{S_D}, s{S_D}, s{P_WU+1}
v_mov_b32 v{T}, s{S_A}
v_mov_b32 v{T+1}, s{S_B}
v_mov_b32 v{T+2}, s{S_C}
v_mov_b32 v{T+3}, s{S_D}""")
    if TOUCH:
        e(f"""v_cndmask_b32 v{TA}, v{T}, v{T+2}, vcc
v_cndmask_b32 v{TA+1}, v{T+1}, v{T+3}, vcc
v_add_co_u32 v{TA}, vcc, v{TA}, v{G+1}
v_cndmask_b32 v{GA}, v{T}, v{T+2}, s[{S_HI}:{S_HI+1}]
v_cndmask_b32 v{GA+1}, v{T+1}, v{T+3}, s[{S_HI}:{S_HI+1}]
v_addc_co_u32 v{TA+1}, vcc, 0, v{TA+1}, vcc""")
        touch(e, 0)()
    else:
        e(f"""v_cndmask_b32 v{GA}, v{T}, v{T+2}, s[{S_HI}:{S_HI+1}]
v_cndmask_b32 v{GA+1}, v{T+1}, v{T+3}, s[{S_HI}:{S_HI+1}]""")
    e(f"v_add_co_u32 v{GA}, vcc, v{GA}, v{G}\nv_mov_b32 v{GS+1}, 0")
    if 'gonly' in X: e.all_vm(); e.stamp()
    if not P("XE", 1): dma_x(e, 0, 0)()
    else: e("s_nop 0")
    e(f"v_addc_co_u32 v{GA+1}, vcc, 0, v{GA+1}, vcc")
    e.WT = WT

TOUCH = P("TOUCH", 0)
GT = P("GT", 3)
ROT = P("ROT", 0)
LDX = os.environ.get("LDX", ""); LDW = os.environ.get("LDW", ""); LDT = os.environ.get("LDT", "")
def touch(e, k):
    def f():
        st = (0, 2, 4, 5)[k]
        e.vm(f"global_load_dword v{TD}, {vr(TA,2)}, off", f"t{k}")
        e(f"s_movk_i32 s{S_XO2}, {st * 128}")
        e.vm(f"buffer_load_dword v{TD}, v{TX}, s[{SRD_X}:{SRD_X+3}], s{S_XO2} offen", f"t{k}")
        if k < 3: e(f"v_mad_u64_u32 {vr(TA,2)}, s[{S_E}:{S_E+1}], v{TS}, {4 if k < 2 else 2}, {vr(TA,2)}")
    return f
S_TG, S_TS = 61, 57
def gtouch(e, st):
    def f():
        e(f"s_mul_i32 s{S_XO2}, s{S_TS}, {st}")
        e.vm(f"buffer_load_dword v{TD}, v{TA}, s[{SRD_PC}:{SRD_PC+3}], s{S_XO2} offen {LDT}", "t")
        e(f"s_movk_i32 s{S_XO2}, {st * 128}")
        e.vm(f"buffer_load_dword v{TD}, v{TX}, s[{SRD_X}:{SRD_X+3}], s{S_XO2} offen {LDT}", "t")
    return f
def dma_x(e, sig, i):
    def f():
        e(f"s_add_u32 m0, s{S_WB}, {(sig % 4) * RING + i * 8192}")
        if i == 0: e("s_nop 0"); so = S_XO
        else: e(f"s_add_u32 s{S_XO2}, s{S_XO}, {64*896}"); so = S_XO2
        e.vm(f"buffer_load_dwordx4 v{VX}, s[{SRD_X}:{SRD_X+3}], s{so} offen {LDX} lds", f"d{sig}")
    return f
def dma_w(e, sig, off, i, first=False):
    def f():
        if i == 0 and not first:
            e(f"s_add_u32 s{S_XO}, s{S_XO}, 128\ns_cmp_eq_u32 s{S_XO}, 896\ns_cselect_b32 s{S_XO}, 0, s{S_XO}\ns_cselect_b32 s{S_MUL}, -13, 1")
        e(f"s_add_u32 m0, s{S_WB}, {(sig % 4) * RING + off + i * 8192}")
        if first == 2: e(f"s_add_u32 s{S_XO}, s{S_XO}, 128\ns_cmp_eq_u32 s{S_XO}, 896\ns_cselect_b32 s{S_XO}, 0, s{S_XO}")
        elif first: e("s_nop 0")
        elif i == 0: e(f"v_mad_i64_i32 {vr(GA,2)}, s[{S_E}:{S_E+1}], v{GS}, s{S_MUL}, {vr(GA,2)}")
        else: e(f"v_lshl_add_u64 {vr(GA,2)}, {vr(GS,2)}, 0, {vr(GA,2)}")
        e.vm(f"global_load_lds_dwordx4 {vr(GA,2)}, off {LDW}", f"d{sig}")
    return f
if not any(ROTS[P("ROT", 0)]) and not RPAR:
    def dma_x(e, sig, i):
        def f():
            e(f"s_add_u32 m0, s{S_WB}, {(sig % 4) * RING + i * 8192}\ns_mov_b32 s{S_XO}, {sig * 128 + i * 64 * 896}")
            e.vm(f"buffer_load_dwordx4 v{VX}, s[{SRD_X}:{SRD_X+3}], s{S_XO} offen {LDX} lds", f"d{sig}")
        return f
    def dma_w(e, sig, off, i, first=False):
        def f():
            e(f"s_add_u32 m0, s{S_WB}, {(sig % 4) * RING + off + i * 8192}")
            e("s_nop 0" if first else f"v_lshl_add_u64 {vr(GA,2)}, {vr(GS,2)}, 0, {vr(GA,2)}")
            e.vm(f"global_load_lds_dwordx4 {vr(GA,2)}, off {LDW}", f"d{sig}")
        return f
def stage_dmas(e, sig):
    if 'nodma' in X and 2 <= sig: return [(lambda: e.q['vm'].append(f'd{sig}') or e.q['vm'].pop() if False else None)] if False else [lambda: None]
    if sig == 0: return [dma_x(e, sig, 0), dma_w(e, sig, 16384, 0, True), dma_x(e, sig, 1), dma_w(e, sig, 16384, 1)]
    if sig < 7: return [dma_w(e, sig, 16384, 0), dma_x(e, sig, 0), dma_w(e, sig, 16384, 1), dma_x(e, sig, 1)]
    l = []
    if sig == 7: l.append(lambda: e(f"v_mov_b32 v{GA}, v{GB}\nv_mov_b32 v{GA+1}, v{GB+1}\nv_mov_b32 v{GS}, {32*3584}"))
    l += [dma_w(e, sig, 0, 0, 2 if sig == 7 else False), dma_w(e, sig, 0, 1)]
    if sig < 10: l += [dma_w(e, sig, 16384, 0), dma_w(e, sig, 16384, 1)]
    return l

def late_touch(e):
    if P('GTS', 0):
        e(f"s_xor_b32 s{S_TS}, s{S_TS}, {OOB}")
        e.vm(f"buffer_load_dword v{TD}, v{TA}, s[{SRD_T}:{SRD_T+3}], s{S_TS} offen", "t")

def h_off(line, dst):
    return f"""s_lshl_b32 s6, s{S_RB}, 2
s_add_u32 s6, s6, s{S_RT}
s_mul_i32 s6, s6, 144
s_lshl_b32 s{dst}, s{line}, 2
s_add_u32 s6, s6, s{dst}
s_add_u32 s6, s6, s{S_T0}
s_lshl_b32 s{dst}, s6, 10
s_add_u32 s{dst+1}, s{dst}, 1024"""
H_A, H_B = 10, 12
S_QO = 14
HOIST = P("HOIST", 3)
def f_scalars():
    return f"""s_lshr_b32 s6, s{S_J}, 3
s_lshl_b32 s7, s{S_RB}, 1
s_add_u32 s6, s6, s7
s_and_b32 s7, s{S_J}, 7
s_mul_i32 s{S_A}, s{S_W}, 6
s_lshl_b32 s{S_K1}, s{S_W}, 1
s_add_u32 s{S_K1}, s{S_K1}, 44
s_lshl_b32 s{S_K1}, s{S_K1}, 10
s_lshl_b32 s{S_FQ}, s{S_K1}, 1
s_mul_i32 s{S_FB0}, s6, 288
s_add_u32 s{S_FB0}, s{S_FB0}, s{S_A}
s_lshl_b32 s{S_FB0}, s{S_FB0}, 10
s_add_u32 s{S_FB1}, s{S_FB0}, {144*1024}
s_bitcmp1_b32 s{S_W}, 0
s_cselect_b32 s{S_B}, s{S_FB1}, s{S_FB0}
s_cselect_b32 s{S_FB1}, s{S_FB0}, s{S_FB1}
s_mov_b32 s{S_FB0}, s{S_B}
s_mul_i32 s{S_FA}, s7, 144
s_add_u32 s{S_FA}, s{S_FA}, s{S_A}
s_lshl_b32 s{S_FA}, s{S_FA}, 11
s_add_u32 s{S_FA}, s{S_FA}, {W2T}
s_lshr_b32 s{S_A}, s{S_W}, 1
s_lshl_b32 s{S_A}, s{S_A}, 3
s_mul_i32 s{S_OA}, s7, 144
s_add_u32 s{S_OA}, s{S_OA}, s{S_A}
s_add_u32 s{S_OA}, s{S_OA}, 112
s_lshl_b32 s{S_OA}, s{S_OA}, 11
s_add_u32 s{S_OA}, s{S_OA}, {W2T}
s_and_b32 s{S_B}, s{S_W}, 1
s_lshl_b32 s{S_B}, s{S_B}, 12
s_add_u32 s{S_OA}, s{S_OA}, s{S_B}
s_lshl_b32 s{S_OL}, s{S_W}, 12"""

S_C1, S_C2, S_CF, S_KS, S_QS, S_WL, S_WO = 16, 17, 24, 25, 54, 47, 59
QB0, QB1, KVA = 253, 254, 255
def more_addr():
    slot = ""
    for st_, dst in ((S_T0, QB0), (S_T1, QB1)):
        slot += f"""s_sub_u32 s6, 3, s{st_}
s_lshl_b32 s7, s{st_}, 2
s_lshr_b32 s7, 0x0132, s7
s_and_b32 s7, s7, 3
s_bitcmp1_b32 s{S_QU}, 0
s_cselect_b32 s6, s7, s6
s_cselect_b32 s{S_CF}, s7, 0
s_lshl_b32 s6, s6, 3
v_add_u32 v{dst}, s6, v{KVA}
"""
    return f"""v_and_b32 v{TP}, 31, v0
s_lshl_b32 s6, s{S_T0}, 9
s_add_u32 s6, s6, {L_CSA}
v_lshl_add_u32 v{TP}, v{TP}, 4, s6
s_lshl_b32 s6, s{S_RT}, 2
v_add_u32 v{TP+1}, s6, v{TP}
s_lshr_b32 s6, s{S_W}, 1
s_lshl_b32 s6, s6, 11
s_and_b32 s7, s{S_W}, 1
s_lshl_b32 s{S_WL}, s7, 6
s_add_u32 s{S_WL}, s{S_WL}, s6
s_add_u32 s{S_WL}, s{S_WL}, {L_W2T}
s_lshl_b32 s6, s{S_U}, 11
s_lshl_b32 s7, s7, 10
s_add_u32 s6, s6, s7
s_add_u32 s{S_WO}, s6, {W2T}
s_mov_b32 s{S_C2}, 0x00003f80
s_cmp_lt_u32 s{S_QU}, 2
s_cselect_b32 s{S_C1}, 0x3f803f80, s{S_C2}
s_cselect_b32 s{S_C2}, s{S_C2}, 0
s_lshl_b32 s6, s{S_RB}, 2
s_add_u32 s6, s6, s{S_RT}
s_lshl_b32 s{S_KS}, s6, 12
s_lshl_b32 s6, s6, 2
s_add_u32 s6, s6, s{S_QU}
s_lshl_b32 s6, s6, 2
s_add_u32 s6, s6, s{S_T0}
s_lshl_b32 s6, s6, 11
s_add_u32 s{S_QS}, s6, {QF}
s_and_b32 s6, s{S_QU}, 1
s_lshl_b32 s7, s6, 8
s_add_u32 s7, s7, 2048
s_lshl_b32 s6, s6, 10
s_cmp_lt_u32 s{S_QU}, 2
s_cselect_b32 s6, s6, s7
s_add_u32 s{S_KS}, s{S_KS}, s6
s_add_u32 s{S_KS}, s{S_KS}, {KVF}
v_and_b32 v{KVA}, 31, v0
v_lshlrev_b32 v{KVA}, 5, v{KVA}
s_lshl_b32 s{S_A}, s{S_RT}, 10
s_add_u32 s{S_A}, s{S_A}, {L_KVB}
v_add_u32 v{KVA}, s{S_A}, v{KVA}
{slot}v_lshrrev_b32 v{PL}, 5, v0
v_lshl_add_u32 v{KVA}, v{PL}, 3, v{KVA}
v_lshlrev_b32 v{G+1}, 2, v{PL}
v_bfe_u32 v{PL}, v0, 4, 1
v_add_u32 v{G+1}, v{G+1}, v{PL}
v_bfe_u32 v{PL}, v0, 2, 2
v_lshl_add_u32 v{G+1}, v{G+1}, 2, v{PL}
v_lshlrev_b32 v{G+1}, 5, v{G+1}
v_and_b32 v{PL}, 3, v0
v_lshl_add_u32 v{G+1}, v{PL}, 3, v{G+1}
v_add_u32 v{G+1}, s{S_A}, v{G+1}
s_cmp_lt_u32 s{S_QU}, 2
s_cselect_b64 vcc, -1, 0
v_cndmask_b32 v{KVA}, v{G+1}, v{KVA}, vcc"""

def attn_scalars():
    return f"""s_lshl_b32 s{S_WB4}, s{S_W}, 12
s_lshl_b32 s6, s{S_CG}, 5
s_add_u32 s6, s6, s{S_RT}
s_lshl_b32 s6, s6, 12
s_add_u32 s{S_KVO}, s6, {KVF}
s_lshl_b32 s6, s{S_RB}, 2
s_add_u32 s6, s6, s{S_RT}
s_lshl_b32 s7, s6, 4
s_add_u32 s7, s7, s{S_J}
s_lshl_b32 s7, s7, 11
s_add_u32 s{S_QO}, s7, {QF}
s_mul_i32 s6, s6, 144
s_lshl_b32 s7, s{S_J}, 1
s_add_u32 s6, s6, s7
s_add_u32 s6, s6, s{S_CG}
s_add_u32 s6, s6, 112
s_lshl_b32 s{S_OO}, s6, 10"""

def phaseB(e):
    T = TM
    for f in (stage_dmas(e, 0)[1:] if not P('XE', 1) else stage_dmas(e, 0)[1::2]): f()
    if 'arr' in X:
        order = os.environ.get("ARR", "D1 D2 W0 D3 W1 D4 W2 D5 W3 D6 W4 W5 W6").split()
        for it in order:
            k = int(it[1:])
            if it[0] == 'D':
                for f in stage_dmas(e, k): f()
            elif it[0] == 'T': touch(e, k)()
            elif it[0] == 'G': gtouch(e, k)()
            elif it[0] == 'L': late_touch(e)
            elif it[0] == 'A': e.all_vm(); e.stamp()
            else: e.wvm(f"d{k}"); e("s_barrier"); e.stamp()
        srd(e, SRD_WS, P_WS, WS_END)
        e.stamp()
        e("s_branch K_fin2")
        global STAMPS_OFF; STAMPS_OFF = True
    if P("ROWL", 0): e.vm(f"buffer_load_dwordx4 {vr(RW,4)}, v{TX}, s[{SRD_X}:{SRD_X+3}], 0 offen", "row")
    e.stamp("xs2")
    if P("PRO", 1) == 1 and GT & 2:
        e(e.WT)
        e.vm(f"buffer_load_dword v{TD}, v{TA}, s[{SRD_T}:{SRD_T+3}], 0 offen", "t")
    e(f"s_mov_b32 s6, {EPO}\ns_load_dword s{S_NON}, s[{P_WS}:{P_WS+1}], s6")
    if TOUCH == 2: touch(e, 1)()
    PD1 = P("PD1", 1)
    if PD1 == 0:
        for f in stage_dmas(e, 1): f()
    if TOUCH == 1: touch(e, 1)()
    late_touch(e)
    e.stamp("xs3")
    e(f"""s_and_b32 s{S_RT}, s{S_W}, 3
s_lshr_b32 s{S_CG}, s{S_W}, 2
s_lshl_b32 s{S_T0}, s{S_CG}, 1
s_add_u32 s{S_T1}, s{S_T0}, 1
s_xor_b32 s{S_A}, s{S_RT}, s{S_CG}
s_mov_b32 s{S_MASK}, 0xffff0000
s_mov_b32 s{S_HI}, 0
s_mov_b32 s{S_HI+1}, -1
v_lshlrev_b32 v{VL16}, 4, v0
v_and_b32 v{T}, 31, v0
v_lshrrev_b32 v{T+1}, 5, v0
v_bfe_u32 v{T+2}, v0, 1, 3
v_xor_b32 v{T+2}, v{T+2}, v{T+1}
v_lshlrev_b32 v{T+2}, 4, v{T+2}
v_lshl_add_u32 v{T+2}, v{T}, 7, v{T+2}
s_lshl_b32 s6, s{S_RT}, 12
s_lshl_b32 s{S_B}, s{S_A}, 5
s_or_b32 s6, s6, s{S_B}
v_xor_b32 v{XA}, s6, v{T+2}""")
    for pos in range(1, 4): e(f"v_xor_b32 v{XA+pos}, {pos<<5}, v{XA}")
    e(f"""v_bfe_u32 v{G+1}, v0, 2, 2
v_lshl_add_u32 v{WB}, v{T+1}, 3, v{G+1}
v_lshlrev_b32 v{WB}, 8, v{WB}
s_lshl_b32 s{S_A}, s{S_A}, 12
v_add_u32 v{WB}, s{S_A}, v{WB}
s_cmp_eq_u32 s{S_ISQ}, 1
s_cselect_b32 s{S_A}, 56, 32
s_cselect_b32 s{S_B}, 5, 7
s_cselect_b32 s{S_C}, 0x88880000, 0
s_mov_b32 s{S_D}, s{S_C}
s_add_u32 s6, s{S_SH}, 4
v_bfe_u32 v{T}, v0, 4, 1
v_and_b32 v{T+1}, 3, v0
v_lshlrev_b32 v{T}, s{S_B}, v{T}
v_lshl_add_u32 v{T}, v{T+1}, 3, v{T}
v_lshlrev_b32 v{T+1}, s6, v{G+1}""")
    for i, st_ in ((0, S_T0), (1, S_T1)):
        e(f"""s_mul_i32 s6, s{st_}, s{S_A}
s_lshl_b32 s7, s{st_}, 3
s_sub_u32 s7, 248, s7
v_add_u32 v{T+2}, s6, v{T}
v_mov_b32 v{T+3}, s7
v_cndmask_b32 v{T+2}, v{T+2}, v{T+3}, s[{S_C}:{S_D}]
v_xor_b32 v{T+2}, v{T+2}, v{T+1}
v_add_u32 v{WA+4*i}, v{T+2}, v{WB}""")
    for i in range(2):
        for pos in range(1, 4): e(f"v_xor_b32 v{WA+4*i+pos}, {pos<<12}, v{WA+4*i}")
    e(f"""v_bfe_u32 v{T}, v0, 4, 1
v_and_b32 v{T+1}, 15, v0
v_cmp_eq_u32 vcc, v{T}, v{T+1}
v_mov_b32 v{T}, 0x3f803f80
s_nop 0
v_cndmask_b32 v{SEL}, 0, v{T}, vcc
v_mov_b32 v{SEL+1}, v{SEL}
v_mov_b32 v{SEL+2}, v{SEL}
v_mov_b32 v{SEL+3}, v{SEL}""")
    w2t_addr = f"""s_mul_i32 s6, s{S_RB}, 12
s_add_u32 s6, s6, s{S_LA}
s_lshl_b32 s7, s{S_RB}, 2
s_add_u32 s7, s7, s{S_QU}
s_min_u32 s7, s7, 59
s_add_u32 s{S_A}, s7, 136
s_cmp_eq_u32 s{S_ISQ}, 1
s_cselect_b32 s6, s{S_A}, s6
s_cselect_b32 s7, s7, 63
s_mul_hi_u32 s{S_A}, s6, {(2**32 + 27)//28}
s_mul_i32 s{S_B}, s{S_A}, 28
s_sub_u32 s{S_B}, s6, s{S_B}
s_lshr_b32 s{S_C}, s7, 3
s_and_b32 s{S_D}, s7, 7
s_add_u32 s{S_D}, s{S_D}, 28
s_cmp_lt_u32 s7, 56
s_cselect_b32 s6, s{S_C}, s{S_A}
s_cselect_b32 s{S_B}, s{S_D}, s{S_B}
s_lshl_b32 s{S_WF}, s6, 6
s_add_u32 s{S_WF}, s{S_WF}, s{S_B}
s_lshl_b32 s{S_A}, s{S_B}, 2
s_lshr_b32 s{S_B}, s{S_W}, 1
s_add_u32 s{S_A}, s{S_A}, s{S_B}
s_mul_i32 s{S_U}, s6, 144
s_add_u32 s{S_U}, s{S_U}, s{S_A}
s_lshl_b32 s{S_B}, s{S_A}, 4
s_sub_u32 s{S_C}, s{S_A}, 112
s_lshr_b32 s{S_D}, s{S_C}, 1
s_mul_i32 s{S_D}, s{S_D}, 28
s_and_b32 s{S_C}, s{S_C}, 1
s_lshl_b32 s{S_C}, s{S_C}, 4
s_add_u32 s{S_C}, s{S_C}, s{S_D}
s_mov_b32 s{S_D}, {448*896}
s_cmp_lt_u32 s{S_A}, 112
s_cselect_b32 s{S_B}, s{S_B}, s{S_C}
s_cselect_b32 s{SRD_T}, s{P_WD}, s{P_WO}
s_cselect_b32 s{SRD_T+1}, s{P_WD+1}, s{P_WO+1}
s_cselect_b32 s{SRD_T+2}, {1792*896}, s{S_D}
s_mov_b32 s{SRD_T+3}, 0x00020000
s_and_b32 s{S_C}, s{S_W}, 1
s_lshl_b32 s{S_C}, s{S_C}, 3
s_add_u32 s{S_B}, s{S_B}, s{S_C}
s_mul_i32 s{S_B}, s{S_B}, 896
s_lshl_b32 s6, s6, 7
s_add_u32 s{S_TO}, s{S_B}, s6
v_lshrrev_b32 v{TP}, 3, v0
v_mul_u32_u24 v{TP}, 896, v{TP}
v_and_b32 v{TP+1}, 7, v0
v_lshl_add_u32 v{VT}, v{TP+1}, 4, v{TP}"""
    late = (f"""s_add_u32 s{S_LB}, s{S_LA}, 12
s_add_u32 s6, s{S_QU}, 24
s_cmp_eq_u32 s{S_ISQ}, 1
s_cselect_b32 s{S_LB}, s6, s{S_LB}
""" if P("LBOLD", 1) else f"s_add_u32 s{S_LB}, s{S_J}, 12\n") + f"""v_lshrrev_b32 v{TP}, 4, v0
s_lshl_b32 s6, s{S_ROT}, 4
s_add_u32 s6, s6, s{S_W}
s_lshl_b32 s6, s6, 2
v_add_u32 v{TP+1}, s6, v{TP}
v_mul_u32_u24 v{TP+1}, 3584, v{TP+1}
v_lshlrev_b32 v{TP}, 1, v{TP}
v_xor_b32 v{TP}, v{TP}, v0
v_and_b32 v{GB}, 7, v{TP}
v_lshl_add_u32 v{TP+1}, v{GB}, 4, v{TP+1}
s_lshl_b32 s6, s{S_LB}, 7
v_add_u32 v{TP+1}, s6, v{TP+1}
v_and_b32 v{TP}, 8, v{TP}
v_cmp_eq_u32 vcc, 8, v{TP}
v_mov_b32 v{GB}, s{P_WG}
v_mov_b32 v{TP}, s{P_WU}
v_cndmask_b32 v{GB}, v{GB}, v{TP}, vcc
v_mov_b32 v{GB+1}, s{P_WG+1}
v_mov_b32 v{TP}, s{P_WU+1}
v_cndmask_b32 v{GB+1}, v{GB+1}, v{TP}, vcc
v_add_co_u32 v{GB}, vcc, v{GB}, v{TP+1}
v_bfe_u32 v{TP}, v0, 4, 1
v_and_b32 v{TP+1}, 3, v0
v_addc_co_u32 v{GB+1}, vcc, 0, v{GB+1}, vcc
v_lshlrev_b32 v{TP+1}, 3, v{TP+1}
v_lshl_add_u32 v{TP}, v{TP}, 7, v{TP+1}
v_bfe_u32 v{TP+1}, v0, 2, 2
v_lshlrev_b32 v{TP+1}, 5, v{TP+1}
v_xor_b32 v{TP}, v{TP}, v{TP+1}
s_lshl_b32 s6, s{S_T0}, 5
v_xor_b32 v{TP}, s6, v{TP}
v_add_u32 v{WB}, v{TP}, v{WB}
v_xor_b32 v{WB+1}, 32, v{WB}"""
    e(f"s_lshl_b32 s45, s{S_TG}, 3\ns_add_u32 s45, s45, {STAT}")
    def hoisted():
        e(late); e(w2t_addr); e(h_off(S_LA, H_A)); e(h_off(S_LB, H_B)); e(attn_scalars()); e(f_scalars())
    if HOIST == 1: hoisted()
    if HOIST == 4: e(late); e(w2t_addr)
    if PD1 == 1:
        for f in stage_dmas(e, 1): f()
    if HOIST == 2: hoisted()
    e.stamp("xs4")
    srd(e, SRD_WS, P_WS, WS_END)
    e("s_waitcnt lgkmcnt(0)")
    e(f"s_add_u32 s{S_NON}, s{S_NON}, 1")
    U = RW + 4; A_, B_ = RW, RW + 1
    e.wvm("row")
    for k in range(4): e(f"v_lshlrev_b32 v{U+2*k}, 16, v{RW+k}\nv_and_b32 v{U+2*k+1}, s{S_MASK}, v{RW+k}")
    e(f"v_add_f32 v{A_}, v{U}, v{U+1}\nv_mul_f32 v{B_}, v{U}, v{U}\nv_add_f32 v{A_+2}, v{U+2}, v{U+3}\nv_mul_f32 v{B_+2}, v{U+1}, v{U+1}")
    for k in (2, 4, 6): e(f"v_fmac_f32 v{B_}, v{U+k}, v{U+k}\nv_fmac_f32 v{B_+2}, v{U+k+1}, v{U+k+1}")
    e(f"""v_add_f32 v{U}, v{U+4}, v{U+5}
v_add_f32 v{U+1}, v{U+6}, v{U+7}
v_add_f32 v{A_}, v{A_}, v{A_+2}
v_add_f32 v{U}, v{U}, v{U+1}
v_add_f32 v{B_}, v{B_}, v{B_+2}
v_add_f32 v{A_}, v{A_}, v{U}
s_nop 0""")
    for d in ("row_shr:1 row_mask:0xf bank_mask:0xf bound_ctrl:0", "row_shr:2 row_mask:0xf bank_mask:0xf bound_ctrl:0",
              "row_shr:4 row_mask:0xf bank_mask:0xf bound_ctrl:0", "row_shr:8 row_mask:0xf bank_mask:0xf bound_ctrl:0",
              "row_bcast:15 row_mask:0xa bank_mask:0xf", "row_bcast:31 row_mask:0xc bank_mask:0xf"):
        e(f"v_add_f32_dpp v{B_}, v{B_}, v{B_} {d}\nv_add_f32_dpp v{A_}, v{A_}, v{A_} {d}\ns_nop 0")
    e(f"""v_mul_f32 v{A_}, {f2u(1.0/448)}, v{A_}
v_mul_f32 v{B_}, {f2u(1.0/448)}, v{B_}
v_fma_f32 v{B_}, -v{A_}, v{A_}, v{B_}
v_max_f32 v{B_}, 0, v{B_}
v_cvt_pk_bf16_f32 v{B_}, v{B_}, v{B_}
v_and_b32 v{B_}, s{S_MASK}, v{B_}
v_add_f32 v{B_}, {f2u(1e-5)}, v{B_}
v_cvt_pk_bf16_f32 v{B_}, v{B_}, v{B_}
v_and_b32 v{B_}, s{S_MASK}, v{B_}
v_sqrt_f32 v{B_}, v{B_}
v_mov_b32 v{U}, s45
v_cvt_pk_bf16_f32 v{A_}, -v{A_}, v{B_}
v_mov_b32 v{B_}, s{S_NON}
s_mov_b32 exec_lo, 0
s_mov_b32 exec_hi, 0x80000000""")
    if PD1 == 2:
        e("s_mov_b64 exec, -1")
        for f in stage_dmas(e, 1): f()
        e("s_mov_b32 exec_lo, 0\ns_mov_b32 exec_hi, 0x80000000")
    e.vm(f"buffer_store_dwordx2 {vr(A_,2)}, v{U}, {WS}, 0 offen {SC}", "sts")
    e("s_mov_b64 exec, -1")
    e.stamp("xs5")
    if P("PRIO", 2) & 1: e(f"s_cmp_ge_u32 s{S_W}, 4\ns_cbranch_scc0 K_np\ns_setprio 1\nK_np:")
    e.wvm("d0")
    e("s_barrier")
    e.stamp("start")

    half = {'x': [0]*4, 'w': [0]*4}
    def reads(gp):
        if gp < 28: sig, sub, pos, reg = gp // 4, 0, gp % 4, 16384
        else:
            g = gp - 28; sig, sub, pos = 7 + g // 8, (g // 4) & 1, g % 4; reg = sub * 16384
        sl = sig % 4; h = sl >> 1; imm = (sl & 1) * RING
        buf = WF + 8 * (gp % 3)
        pre = []
        if 28 <= gp < 32:
            pre = [f"v_xor_b32 v{WA+4*i+pos}, {(pos << 12) | (h << 16)}, v{WB+i}" for i in range(2)]
            half['w'][pos] = h
        elif half['w'][pos] != h:
            pre = [f"v_xor_b32 v{WA+4*i+pos}, 0x10000, v{WA+4*i+pos}" for i in range(2)]
            half['w'][pos] = h
        if gp < 28 and half['x'][pos] != h:
            pre.append(f"v_xor_b32 v{XA+pos}, 0x10000, v{XA+pos}"); half['x'][pos] = h
        out = [(lambda l=l: e(l)) for l in pre]
        if gp < 28: out.append(lambda: e.ds(f"ds_read_b128 {vr(XR+4*gp,4)}, v{XA+pos} offset:{imm}", f"r{gp}"))
        for i in range(2):
            for u in range(2):
                out.append(lambda i=i, u=u: e.ds(f"ds_read_b64_tr_b16 {vr(buf+4*i+2*u,2)}, v{WA+4*i+pos} offset:{imm+reg+u*1024}", f"r{gp}"))
        return out
    def position(gp, side, dmaq, nside, barrier=None):
        p2 = gp >= 28; g = gp - 28 if p2 else gp
        acc = ACCB if p2 else ACCA
        buf = WF + 8 * (gp % 3); xr = XR + 4 * g
        e.wds(f"r{gp}")
        e(mfma(acc, buf, xr, "0" if g == 0 else None))
        if barrier: barrier()
        R = reads(gp + 2) if gp + 2 < 56 else []
        nx = 1 if gp + 2 < 28 else 0
        pre = R[:max(0, len(R) - 4 - nx)]; xrd = R[len(pre):len(pre) + nx]; tr = R[len(pre) + nx:]
        na = (nside + 1) // 2; nb = nside // 2
        for f in pre: f()
        if P("ORD", 1) == 0:
            for f in xrd + tr[:2]: f()
            side.emit(na)
            e(mfma(acc + 16, buf + 4, xr, "0" if g == 0 else None))
            for f in tr[2:]: f()
            if g % 4 == 0: e(mfma16(CSA, SEL, buf, "0" if g == 0 else None))
            if dmaq: dmaq.pop(0)()
            side.emit(nb)
            if g % 4 == 0: e(mfma16(CSA + 4, SEL, buf + 4, "0" if g == 0 else None))
        else:
            for f in tr[:1]: f()
            side.emit(min(2, na))
            for f in tr[1:2]: f()
            side.emit(na - min(2, na))
            e(mfma(acc + 16, buf + 4, xr, "0" if g == 0 else None))
            for f in tr[2:3]: f()
            side.emit(min(2, nb))
            for f in tr[3:]: f()
            side.emit(nb - min(2, nb))
            if g % 4 == 0 and 'nosel' not in X: e(mfma16(CSA, SEL, buf, "0" if g == 0 else None))
            for f in xrd: f()
            if g % 4 == 0 and 'nosel' not in X: e(mfma16(CSA + 4, SEL, buf + 4, "0" if g == 0 else None))
            if dmaq: dmaq.pop(0)()
    def stats(gp):
        x = XR + 4 * gp; c = lambda r: "0" if gp == 0 else vr(r, 4)
        return [mfma16(ST, SEL, x, c(ST)),
                f"v_mfma_f32_4x4x4_16b_bf16 {vr(SQA,4)}, {vr(x,2)}, {vr(x,2)}, {c(SQA)}\nv_mfma_f32_4x4x4_16b_bf16 {vr(SQB,4)}, {vr(x+2,2)}, {vr(x+2,2)}, {c(SQB)}"]
    def cs_write(dst):
        o = dst - L_CSA
        return ["s_nop 1", lambda: (e("s_mov_b64 exec, 0xffff"),
                         e.ds(f"ds_write_b32 v{TP+1}, v{CSA} offset:{o}", "csw"), e.ds(f"ds_write_b32 v{TP+1}, v{CSA+1} offset:{o+256}", "csw"),
                         e.ds(f"ds_write_b32 v{TP+1}, v{CSA+4} offset:{o+512}", "csw"), e.ds(f"ds_write_b32 v{TP+1}, v{CSA+5} offset:{o+768}", "csw"),
                         e("s_mov_b64 exec, -1"))]
    def cs_read(src):
        o = src - L_CSA
        l = [lambda: e.ds(f"ds_read_b128 {vr(G,4)}, v{TP} offset:{o}", "csr"), lambda: e.ds(f"ds_read_b128 {vr(G+4,4)}, v{TP} offset:{o+512}", "csr")]
        m = [lambda: e.wds("csr")]
        for i in range(2):
            b = G + 4 * i
            m += [f"v_add_f32 v{b}, v{b}, v{b+1}", f"v_add_f32 v{b+2}, v{b+2}, v{b+3}"]
        for i in range(2): m += [f"v_add_f32 v{G+4*i}, v{G+4*i}, v{G+4*i+2}"]
        for i in range(2): m += [f"v_cvt_pk_bf16_f32 v{G+4*i+1}, v{G+4*i}, v{G+4*i}"]
        for i in range(2): m += [f"v_and_b32 v{G+4*i+1}, s{S_MASK}, v{G+4*i+1}"]
        for i in range(2): m += [f"v_sub_f32 v{G+4*i+1}, v{G+4*i}, v{G+4*i+1}"]
        for i in range(2): m += [f"v_cvt_pk_bf16_f32 v{G+4*i}, v{G+4*i}, v{G+4*i+1}"]
        for i in range(2): m += [f"v_cndmask_b32 v{ST+2*i}, v{G+4*i}, 0, s[{S_HI}:{S_HI+1}]"]
        return l, m

    KA = -2.0 * math.log2(math.e) * math.sqrt(2.0 / math.pi)
    GST = P("GST", 18)
    def stat_check():
        ok = e.newlabel("sok"); sp = e.newlabel("ssp")
        e.wvm("stl")
        e(f"v_cmp_ne_u32 vcc, s{S_NON}, v{BEXT+3}\ns_cbranch_vccz {ok}\ns_mov_b32 s{S_CNT}, {SPIN_MAX}")
        e.label(sp)
        e(f"""s_sleep 4
buffer_load_dwordx2 {vr(BEXT+2,2)}, v{G}, {WS}, 0 offen {SC}
s_sub_u32 s{S_CNT}, s{S_CNT}, 1
s_waitcnt vmcnt(0)
v_cmp_ne_u32 vcc, s{S_NON}, v{BEXT+3}
s_cmp_eq_u32 s{S_CNT}, 0
s_cbranch_scc1 {ok}
s_cbranch_vccnz {sp}""")
        if 'spincnt' in X: e(f"s_sub_u32 s88, {SPIN_MAX + 1000}, s{S_CNT}")
        e.label(ok)
    def after_exchange(side):
        l, m = cs_read(L_CSA)
        side.add(l)
        side.add(f"""v_and_b32 v{S_}, s{S_MASK}, v{BEXT+2}
v_and_b32 v{BEXT}, 0xffff, v{BEXT+2}
v_rcp_f32 v{R_}, v{S_}
v_lshl_or_b32 v{BEXT}, v{BEXT+2}, 16, v{BEXT}
v_mul_f32 v{I2}, v{S_}, v{S_}
v_mul_f32 v{AC}, {f2u(KA)}, v{R_}
v_mul_f32 v{BC}, v{R_}, v{R_}
v_mov_b32 v{ST+1}, 0
v_mul_f32 v{BC}, v{BC}, v{AC}
v_mov_b32 v{ST+3}, 0
v_mul_f32 v{BC}, {f2u(0.044715)}, v{BC}
v_mov_b32 v{BEXT+1}, 0
v_mov_b32 v{BEXT+2}, 0
v_mov_b32 v{BEXT+3}, 0""")
        side.add(m)
    for f in reads(0) + reads(1): f()
    side = Side(e); dmaq = list(stage_dmas(e, 2)) + ([touch(e, 2)] if TOUCH else [])
    w2side = Side(e)
    if GT & 4:
        w2side.add(f"""s_min_u32 s6, s{S_TG}, 895
s_cmp_ge_u32 s6, 448
s_cselect_b32 s{SRD_T}, s{P_WU}, s{P_WG}
s_cselect_b32 s{SRD_T+1}, s{P_WU+1}, s{P_WG+1}
s_cselect_b32 s7, 448, 0
s_mov_b32 s{SRD_T+2}, {448*3584}
s_sub_u32 s6, s6, s7
s_mul_i32 s6, s6, 3584
s_add_u32 s6, s6, 1536
v_and_b32 v{TA}, 15, v0
v_lshlrev_b32 v{TA}, 7, v{TA}""")
        w2side.add([lambda: e.vm(f"buffer_load_dword v{TD}, v{TA}, s[{SRD_T}:{SRD_T+3}], s6 offen", "t2")])
    if HOIST == 3: w2side.add(late); w2side.add(w2t_addr)
    if HOIST >= 3: w2side.add(h_off(S_LA, H_A)); w2side.add(h_off(S_LB, H_B)); w2side.add(attn_scalars()); w2side.add(f_scalars()); w2side.add(more_addr())
    for gp in range(28):
        sig, pos = gp // 4, gp % 4
        bar = None
        if pos == 2:
            def bar(sig=sig):
                if sig == 6: side.flush(); stat_check(); e.wds("csw")
                e.wvm(f"d{sig+1}"); e("s_barrier")
                if sig == 6: after_exchange(side)
                assert not dmaq
                dmaq.extend(stage_dmas(e, sig + 3))
                if sig == 0 and TOUCH: dmaq.append(touch(e, 3))
        if gp == GST:
            side.add([f"s_lshl_b32 s{S_G}, s{S_RB}, 2", f"s_add_u32 s{S_G}, s{S_G}, s{S_RT}", f"s_lshl_b32 s{S_G}, s{S_G}, 8", f"s_add_u32 s{S_G}, s{S_G}, {STAT}",
                      f"v_and_b32 v{G}, 31, v0", f"v_lshl_add_u32 v{G}, v{G}, 3, s{S_G}",
                      lambda: e.vm(f"buffer_load_dwordx2 {vr(BEXT+2,2)}, v{G}, {WS}, 0 offen {SC}", "stl")])
        if gp == 25: assert not w2side.q; side.add(cs_write(L_CSA))
        n = len(side.q) if gp < 26 else P('NEX', 10)
        while len(dmaq) > 4 - ((pos + 2) % 4): dmaq.pop(0)()
        e.stamp(f"xp{gp}")
        w2side.emit(0 if gp < P('WS0', 0) else 5 if gp < 2 else P('WSR', 9 if HOIST == 3 else 6))
        position(gp, side, dmaq, n, bar)
    assert not w2side.q
    side.add(["s_nop 1", mfma(ACCA, ST, BEXT), mfma(ACCA + 16, ST + 2, BEXT)])
    carry = list(side.q)
    e.stamp("p1")

    KA = -2.0 * math.log2(math.e) * math.sqrt(2.0 / math.pi); KB = KA * 0.044715
    def gelu(acc, so, tb, keep=None, pk=0):
        l = []
        if pk:
            pr = lambda r: vr(r, 2)
            for k in range(0, 8, 2): l.append(f"v_pk_mul_f32 {pr(tb+k)}, {pr(acc+k)}, {pr(acc+k)}")
            for k in range(0, 8, 2): l.append(f"v_pk_fma_f32 {pr(tb+k)}, {pr(tb+k)}, {pr(AC)}, {pr(AC)} op_sel:[0,1,0] op_sel_hi:[1,1,0]")
            for k in range(0, 8, 2): l.append(f"v_pk_mul_f32 {pr(tb+k)}, {pr(tb+k)}, {pr(acc+k)}")
            for k in range(0, 8, 2): l += [f"v_exp_f32 v{tb+k}, v{tb+k}", f"v_exp_f32 v{tb+k+1}, v{tb+k+1}", f"v_pk_mul_f32 {pr(acc+k)}, {pr(acc+k)}, {pr(acc+8+k)}"]
            for k in range(0, 8, 2): l.append(f"v_pk_fma_f32 {pr(tb+k)}, {pr(tb+k)}, {pr(I2-1)}, {pr(I2-1)} op_sel:[0,1,1] op_sel_hi:[1,1,1]")
            for k in range(8): l.append(f"v_rcp_f32 v{tb+k}, v{tb+k}")
            for k in range(0, 8, 2): l.append(f"v_pk_mul_f32 {pr(acc+k)}, {pr(acc+k)}, {pr(tb+k)}")
        else:
            for k in range(8): l.append(f"v_mul_f32 v{tb+k}, v{acc+k}, v{acc+k}")
            for k in range(8): l.append(f"v_fma_f32 v{tb+k}, v{tb+k}, v{BC}, v{AC}")
            for k in range(8): l.append(f"v_mul_f32 v{tb+k}, v{tb+k}, v{acc+k}")
            for k in range(8): l += [f"v_exp_f32 v{tb+k}, v{tb+k}", f"v_mul_f32 v{acc+k}, v{acc+k}, v{acc+8+k}"]
            for k in range(8): l.append(f"v_fma_f32 v{tb+k}, v{tb+k}, v{I2}, v{I2}")
            for k in range(8): l.append(f"v_rcp_f32 v{tb+k}, v{tb+k}")
            for k in range(8): l.append(f"v_mul_f32 v{acc+k}, v{acc+k}, v{tb+k}")
        if keep is not None:
            return l + [f"v_cvt_pk_bf16_f32 v{keep+k}, v{acc+2*k}, v{acc+2*k+1}" for k in range(4)]
        for k in range(4): l.append(f"v_cvt_pk_bf16_f32 v{acc+8+k}, v{acc+2*k}, v{acc+2*k+1}")
        l.append(lambda: e.vm(f"buffer_store_dwordx4 {vr(acc+8,4)}, v{VL16}, {WS}, s{so} offen {SC}", "hs"))
        return l
    def w2t_out(side):
        t = WB
        side.add(f"""v_lshrrev_b32 v{t}, 5, v0
v_bfe_u32 v{t+1}, v0, 2, 2
v_lshl_add_u32 v{t}, v{t}, 2, v{t+1}
v_lshlrev_b32 v{t}, 7, v{t}
v_bfe_u32 v{t+1}, v0, 4, 1
v_lshl_add_u32 v{t}, v{t+1}, 5, v{t}
v_and_b32 v{t+1}, 3, v0
v_lshl_add_u32 v{t}, v{t+1}, 3, v{t}
v_add_u32 v{t}, s{S_WL}, v{t}""")
        side.add([lambda: (e.ds(f"ds_read_b64_tr_b16 {vr(PL,2)}, v{t}", "w2tr"), e.ds(f"ds_read_b64_tr_b16 {vr(PL+2,2)}, v{t} offset:1024", "w2tr"))])
        return lambda: (e.wds("w2tr"), e.vm(f"buffer_store_dwordx4 {vr(PL,4)}, v{VL16}, {WS}, s{S_WO} offen {SC}", "w2ts"))
    GEND = P("GEND", 20); GW2 = P("GW2", 22); GFQ = P("GFQ", 14)
    GX, GBN, GFL, QRATE = P("GX", 0), P("GBN", 1), P("GFL", 6 if SPLITQ else 9), P("QRATE", 40)
    def pass2(qfirst):
        side = Side(e); dq = list(dmaq); side.q = list(carry); w2st = []
        for g in range(28):
            gp = 28 + g
            pre = []; wd = []; wv = []; post = []
            if g == 0:
                if not qfirst and 'nogelu' in X: pass
                elif not qfirst:
                    side.add(["s_nop 7"])
                    ga = gelu(ACCA, H_A, G); gb = gelu(ACCA + 16, H_A + 1, G)
                    k = P('HSD', 68)
                    side.add(ga[:-1] + gb[:k] + ga[-1:] + gb[k:] if not HLATE else ga[:-1] + gb[:-1] + [f"s_mov_b32 s{S_HA}, s{S_C}"])
                else: qkv_part1(side)
            if g == 6:
                post.append(lambda: dq.extend(stage_dmas(e, 10) + [lambda: (e(f"s_add_u32 m0, s{S_WB}, {L_W2T}\ns_nop 0"),
                            e.vm(f"buffer_load_dwordx4 v{VT}, s[{SRD_T}:{SRD_T+3}], s{S_TO} offen lds", "w2td"))]))
            if g == GW2: wv.append("w2td")
            if g in (6, 14, 22): wv.append(f"d{8 + g // 8}")
            if qfirst and g == GBN: pre.append(side.flush); wd.append("kvw"); post.append(lambda: qkv_part2(side))
            if qfirst and g == GFQ and SPLITQ:
                pre.append(side.flush); wv.append("qs")
                post.append(lambda: flag_store(e, f"""s_lshl_b32 s6, s{S_RB}, 5
s_add_u32 s6, s6, s{S_QU}
s_lshl_b32 s6, s6, 2
s_add_u32 s6, s6, {F_Q}
v_mov_b32 v{WB}, s6""", 1, WB))
            if qfirst and g == GFL:
                if SPLITQ: pre.append(lambda: e(f"s_waitcnt vmcnt({len(e.q['vm']) - e.mark['kvs']})")); wd.append("kvw")
                else: pre.append(side.flush); wv.append("qs")
                post.append(lambda: flag_store(e, f"""s_lshl_b32 s6, s{S_RB}, 2
s_add_u32 s6, s6, s{S_QU}
s_lshl_b32 s6, s6, 2
s_add_u32 s6, s6, {F_KV}
v_lshlrev_b32 v{WB}, 8, v0
v_add_u32 v{WB}, s6, v{WB}""", RKV, WB))
            if g == GW2 + 1:
                q0 = side.q; side.q = []; st = w2t_out(side); side.q += q0; w2st.append(st)
            if g == 24:
                side.flush()
                for f in w2st: f()
            if g == P("GKP", 27):
                poll_issue(e, f"""s_and_b32 s6, s2, {RKV-1}
s_lshl_b32 s6, s6, 8
s_add_u32 s6, s6, {F_KV}
v_lshl_add_u32 v{PL}, v0, 2, s6""" + (f"""
s_lshl_b32 s6, s{S_RB}, 5
s_add_u32 s6, s6, s{S_QU}
s_lshl_b32 s6, s6, 2
s_add_u32 s6, s6, {F_Q}
v_mov_b32 v{PL+2}, s6
buffer_load_dword v{PL+3}, v{PL+2}, {WS}, 0 offen {SC}""" if SPLITQ else ""), PL, PL + 1, "kvp")
            if g == 25 and 'nocs' not in X:
                side.flush(); side.add(cs_write(L_CSB))
            if g == 26 and 'nocs' not in X:
                pre.append(side.flush); wd.append("csw")
                def p():
                    l, m = cs_read(L_CSB); side.add(l); side.add(m)
                post.append(p)
            bar = None
            if wd or wv:
                def bar():
                    for f in pre: f()
                    if wd: e.wds(*wd)
                    if wv: e.wvm(*wv)
                    e("s_barrier")
                    for f in post: f()
            if qfirst: n = QRATE if g < 9 else 12
            else: n = -(-len(side.q) // max(1, GEND - g)) if g < GEND else 12
            e.stamp(f"xg{g}")
            position(gp, side, dq, n, bar)
        side.flush()
        e.stamp("xpe2")
        e("s_nop 1")
        e(mfma(ACCB, ST, BEXT)); e(mfma(ACCB + 16, ST + 2, BEXT))
    RQ = PL
    def qkv_part1(side):
        side.add([f"v_mul_f32 v{RQ}, {f2u(28 ** -0.5 * math.log2(math.e))}, v{R_}", "s_nop 9"])
        for i in range(2):
            for k in range(4): side.add([f"v_mul_f32 v{G+4*i+k}, v{ACCA+16*i+12+k}, v{R_}"])
        for i in range(2): side.add([f"v_cvt_pk_bf16_f32 v{G+4*i}, v{G+4*i}, v{G+4*i+1}", f"v_cvt_pk_bf16_f32 v{G+4*i+1}, v{G+4*i+2}, v{G+4*i+3}"])
        def wr():
            l = e.newlabel("nc")
            e(f"s_cmp_eq_u32 s{S_CF}, 3\ns_cbranch_scc0 {l}\nv_mov_b32 v{G+4}, s{S_C1}\nv_mov_b32 v{G+5}, s{S_C2}")
            e.label(l)
            e(f"s_mov_b64 exec, s[{S_HI}:{S_HI+1}]")
            e.ds(f"ds_write_b64 v{QB0}, {vr(G,2)}", "kvw"); e.ds(f"ds_write_b64 v{QB1}, {vr(G+4,2)}", "kvw")
            e("s_mov_b64 exec, -1")
        side.add([wr])
    def qkv_part2(side):
        def kv():
            l = e.newlabel("kvs"); lv = e.newlabel("kvv"); ls = e.newlabel("kvt")
            e(f"""s_cmp_eq_u32 s{S_CG}, 0
s_cbranch_scc0 {l}
s_cmp_lt_u32 s{S_QU}, 2
s_cbranch_scc0 {lv}
ds_read2_b64 {vr(G+4,4)}, v{KVA} offset0:0 offset1:2
v_mov_b32 v{G+2}, v{VL16}
s_branch {ls}""")
            e.label(lv)
            e(f"""ds_read_b64_tr_b16 {vr(G+4,2)}, v{KVA}
ds_read_b64_tr_b16 {vr(G+6,2)}, v{KVA} offset:256
v_lshrrev_b32 v{G+2}, 4, v0
v_and_b32 v{G+1}, 15, v0
v_lshlrev_b32 v{G+2}, 9, v{G+2}
v_lshl_add_u32 v{G+2}, v{G+1}, 4, v{G+2}""")
            e.label(ls)
            e(f"s_waitcnt lgkmcnt(0)\nbuffer_store_dwordx4 {vr(G+4,4)}, v{G+2}, {WS}, s{S_KS} offen {SC}")
            e.label(l)
            e.mark['kvs'] = len(e.q['vm'])
        side.add([kv])
        for i in range(2):
            acc = ACCA + 16 * i
            if P('PK', 0) & 4:
                for k in range(0, 16, 2): side.add([f"v_pk_mul_f32 {vr(acc+k,2)}, {vr(acc+k,2)}, {vr(RQ,2)} op_sel_hi:[1,0]"])
            else:
                for k in range(16): side.add([f"v_mul_f32 v{acc+k}, v{acc+k}, v{RQ}"])
            for k in range(8): side.add([f"v_cvt_pk_bf16_f32 v{acc+k}, v{acc+2*k}, v{acc+2*k+1}"])
            side.add([f"v_cndmask_b32 v{acc+6}, v{acc+6}, 0, s[{S_HI}:{S_HI+1}]", f"v_cndmask_b32 v{acc+7}, v{acc+7}, 0, s[{S_HI}:{S_HI+1}]",
                      lambda acc=acc, i=i: e.vm(f"buffer_store_dwordx4 {vr(acc,4)}, v{VL16}, {WS}, s{S_QS} offen offset:{2048*i} {SC}", "qs"),
                      lambda acc=acc, i=i: e.vm(f"buffer_store_dwordx4 {vr(acc+4,4)}, v{VL16}, {WS}, s{S_QS} offen offset:{2048*i+1024} {SC}", "qs")])
    e(f"s_cmp_eq_u32 s{S_ISQ}, 1\ns_cbranch_scc1 B_p2q")
    sn = e.snap(); hs = {k: list(v) for k, v in half.items()}; ns = e.nst
    pass2(False)
    e("s_branch B_join")
    e.label("B_p2q")
    e.nst = ns
    e.restore(sn); half.update({k: list(v) for k, v in hs.items()})
    pass2(True)
    e.label("B_join")
    e.q = {'ds': [], 'vm': []}; e.done = {'ds': 0, 'vm': 0}; e.mark['kvp'] = 0
    e.stamp("join")
    return gelu, h_off, w2t_out

LB0, LB1, VO = 3, 4, 5
Q, O, S0, PP, K, V0, V1 = 36, 44, 64, 96, 104, 112, 120
FA, FB = 128, 192
XRES = 244
S_KH, S_QT = S_CG, S_RT
F0 = P("F0", 8)
FP = P("FP", 2)
HBP = P("HBP", 14)
F3 = P("F3", 40)
WOP = 18

def kv_dma(e, st):
    def m(): e(f"s_add_u32 m0, s{S_WB4}, {((st + 3) % 4) * RING}" + ("\ns_nop 0" if st < 3 else ""))
    m.scalar = True
    l = [m]
    for f in range(4):
        l.append(lambda f=f: (e.vm(f"buffer_load_dwordx4 v{VL16}, {WS}, s{S_KVO} offen offset:{1024*f} {SC} lds", f"k{st}"),
                              e(f"s_add_u32 s{S_KVO}, s{S_KVO}, 16384") if f == 3 else None))
    return l

NB = P("NB", 3)
FBUF = [[FB + 16 * n + 4 * k for k in range(4)] for n in range(3)] + [[60, 124, 248, 252]]
def f_loads(e, q):
    bb = FBUF[q % NB]
    r = q if q < 6 else q - 6
    advA = advB = None
    if q == 5:
        advA = f"s_add_u32 s{S_FA}, s{S_FA}, s{S_FQ}"
        advB = f"s_add_u32 s{S_FB0}, s{S_FB0}, s{S_K1}\ns_add_u32 s{S_FB1}, s{S_FB1}, s{S_K1}"
    else:
        if r & 1: advA = f"s_add_u32 s{S_FA}, s{S_FA}, 4096"
        if (r & 3) == 3: advB = f"s_add_u32 s{S_FB0}, s{S_FB0}, 4096\ns_add_u32 s{S_FB1}, s{S_FB1}, 4096"
    return [lambda: e.vm(f"buffer_load_dwordx4 {vr(bb[0],4)}, v{VL16}, {WS}, s{S_FA} offen offset:{(r&1)*2048} {SC}", f"f{q}"),
            lambda: e.vm(f"buffer_load_dwordx4 {vr(bb[2],4)}, v{VL16}, {WS}, s{S_FB0} offen offset:{(r&3)*1024} {SC}", f"f{q}"),
            lambda: (e.vm(f"buffer_load_dwordx4 {vr(bb[1],4)}, v{VL16}, {WS}, s{S_FA} offen offset:{(r&1)*2048+1024} {SC}", f"f{q}"),
                     e(advA) if advA else None),
            lambda: (e.vm(f"buffer_load_dwordx4 {vr(bb[3],4)}, v{VL16}, {WS}, s{S_FB1} offen offset:{(r&3)*1024} {SC}", f"f{q}"),
                     e(advB) if advB else None)]
def f_mfma(q, k):
    bb = FBUF[q % NB]; r2, d2 = ((0, 0), (0, 1), (1, 1), (1, 0))[k]
    return mfma(FA + 32*r2 + 16*d2, bb[d2], bb[2 + r2], "0" if q == 0 else None)

OAREG = [8 + 4 * k for k in range(7)] + [FB + 4 * k for k in range(9)]
def oa_dma(e, n):
    def f():
        if n == 0: e(f"s_add_u32 m0, s{S_OL}, {3 * RING}\ns_nop 0")
        if n == 4: e(f"s_mov_b32 m0, s{S_OL}\ns_add_u32 s{S_OA}, s{S_OA}, 8192")
        e.vm(f"buffer_load_dwordx4 v{VL16}, {WS}, s{S_OA} offen offset:{(n & 3) * 1024} {SC} lds", "oa")
    return f
KVPRE = P('KVPRE', 2)
HDEF = P('HDEF', 1); HFL = P('HFL', 6 if HDEF else 2); S_HO = 47
def ha_flag(e):
    flag_store(e, f"""s_lshl_b32 s6, s{S_RB}, 5
s_add_u32 s6, s6, s{S_J}
s_lshl_b32 s6, s6, 2
s_add_u32 s6, s6, {F_H + 64}
s_lshl_b32 s{S_A}, s{S_WF}, 2
s_add_u32 s{S_A}, s{S_A}, {F_W}
s_sub_u32 s{S_A}, s{S_A}, s6
v_mul_lo_u32 v{PL}, v0, s{S_A}
v_add_u32 v{PL}, s6, v{PL}""", 2, PL)

def attn_setup(e, gelu, h_off, w2t_out):
    g0 = gelu(ACCB, S_C, G, 16 if HDEF else None, P('PK', 0) & 1); g1 = gelu(ACCB + 16, S_D, G + 8, 20 if HDEF else None, P('PK', 0) & 1)
    nfirst = P("GFIRST", 0)
    both = g0 + g1
    if P('GIL', 1): both = [x for p in zip(g0, g1) for x in p]
    for it in both[:nfirst]: it() if callable(it) else e(it)
    assert nfirst == 0
    poll_check(e, PL, PL + 1, "kvp", P("KSLEEP", 1))
    if SPLITQ: poll_check(e, PL + 2, PL + 3, "kvp", P("KSLEEP", 1))
    e.all_vm()
    e("s_barrier")
    e.stamp("xkv")
    if not HLATE: ha_flag(e)
    if P("KVT", 0):
        e(f"""s_lshr_b32 s6, s2, 3
s_lshl_b32 s6, s6, 3
s_add_u32 s6, s6, s{S_W}
s_lshl_b32 s6, s6, 10
s_add_u32 s6, s6, {KVF}
v_and_b32 v{TP}, 7, v0
v_lshlrev_b32 v{TP}, 7, v{TP}""")
        e.vm(f"buffer_load_dword v{TP+1}, v{TP}, {WS}, s6 offen {SC}", "kvt")
    side = Side(e)
    side.add(kv_dma(e, 0))
    side.add([lambda: e.vm(f"buffer_load_dwordx4 {vr(Q,4)}, v{VL16}, {WS}, s{S_QO} offen {SC}", "q"),
              lambda: e.vm(f"buffer_load_dwordx4 {vr(Q+4,4)}, v{VL16}, {WS}, s{S_QO} offen offset:1024 {SC}", "q")])
    side.emit(P("KPRE0", 7))
    if HLATE:
        l = e.newlabel("hl")
        e(f"s_cmp_eq_u32 s{S_ISQ}, 1\ns_cbranch_scc1 {l}")
        for it in range(2): e(f"buffer_store_dwordx4 {vr(ACCA+16*it+8,4)}, v{VL16}, {WS}, s{S_HA} offen offset:{1024*it} {SC}")
        e.label(l)
        e.mark['hl'] = len(e.q['vm'])
        if HLATE == 2:
            sd = Side(e); w2t_out(sd); sd.flush(); e.mark['hl'] = len(e.q['vm'])
    for st in range(1, KVPRE): side.add(kv_dma(e, st))
    for n, it in enumerate(both[nfirst:]):
        it() if callable(it) else e(it)
        if n % P('GSP', 1000) == P('GSP', 1000) - 1: side.emit(1)
        if n == 68: e.stamp("xg69")
    e.stamp("xgv")
    side.flush()
    e(f"""s_lshl_b32 s6, s{S_KH}, 14
v_add_u32 v{LB0}, s6, v{VL16}
v_add_u32 v{LB1}, 0x10000, v{LB0}""")

def rd(e, dst, tile, f, tag):
    sl = (tile // 4 + 3) % 4
    e.ds(f"ds_read_b128 {vr(dst,4)}, v{LB0 if sl < 2 else LB1} offset:{(sl & 1) * RING + (tile % 4) * 4096 + f * 1024}", tag)

def attn_loop(e, withF):
    e.stamp("xge")
    if P("PRIO", 2) == 2:
        l = e.newlabel("np"); e(f"s_cmp_ge_u32 s{S_W}, 4\ns_cbranch_scc0 {l}\ns_setprio 1"); e.label(l)
    if P("PRIO", 2) == 5: e("s_setprio 0")
    e.wvm("k0", "q")
    if HLATE: e(f"s_waitcnt vmcnt({len(e.q['vm']) - e.mark['hl']})")
    e.stamp("xk0"); e("s_barrier")
    if HLATE: ha_flag(e)
    e.stamp("astart")
    rd(e, K, 0, 0, "a"); rd(e, K + 4, 0, 1, "a"); rd(e, V0, 0, 2, "b")
    e.wds("a")
    e(mfma(S0, K, Q, "0")); e(mfma(S0, K + 4, Q + 4))
    rd(e, K, 1, 0, "b"); rd(e, K + 4, 1, 1, "b")
    e("s_nop 9")
    NT = 32
    fq = []
    nq = 0
    dq = []
    fi = 0
    need = {}; keep = []; done = [0]
    for i in range(NT):
        sc = S0 + 16 * (i & 1); sn = S0 + 16 * ((i + 1) & 1)
        v0c = V0 + 4 * (i & 1); v0n = V0 + 4 * ((i + 1) & 1)
        E = lambda r: f"v_exp_f32 v{r}, v{r}"
        C = lambda d, r: f"v_cvt_pk_bf16_f32 v{d}, v{r}, v{r+1}"
        def g(k): return [E(sc + 4*k + q) for q in range(4)] + [C(PP + 2*k, sc + 4*k), C(PP + 2*k + 1, sc + 4*k + 2)]
        g0, g1, g2, g3 = g(0), g(1), g(2), g(3)
        fm = []; fl = []
        if withF:
            if i == FP - 2:
                assert FP % 4 == 2
                fl = [lambda: poll_issue(e, f"""s_lshl_b32 s6, s{S_RB}, 7
s_add_u32 s6, s6, {F_H + 64}
s_and_b32 s7, s{S_J}, 7
s_lshl_b32 s7, s7, 8
s_add_u32 s7, s7, {F_W - 64}
v_lshl_add_u32 v{G}, v0, 2, s6
v_lshl_add_u32 v{G+1}, v0, 2, s7
v_mov_b32 v{G+2}, s6
s_mov_b32 s{S_A}, 0xffff0000
s_mov_b32 s{S_B}, 0x00000fff
s_mov_b32 s{S_C}, 0x00008888
s_mov_b32 s{S_D}, 0xfffff000
v_cndmask_b32 v{G}, v{G}, v{G+1}, s[{S_A}:{S_B}]
v_cndmask_b32 v{G}, v{G}, v{G+2}, s[{S_C}:{S_D}]""", G, G + 1, "hp")]
            if FP <= i < F0:
                if i == FP:
                    for q in range(NB - 1): fq += f_loads(e, q)
                n = -(-len(fq) // (F0 - i))
                fl = fq[:n]; fq = fq[n:]
            pb = []
            if i == HBP - 2:
                pb = [lambda: poll_issue(e, f"""s_lshl_b32 s6, s{S_RB}, 7
s_add_u32 s6, s6, {F_H}
v_and_b32 v{G}, 15, v0
v_lshl_add_u32 v{G}, v{G}, 2, s6""", G, G + 1, "hb")]
            if i == WOP - 2:
                pb = [lambda: poll_issue(e, f"""s_and_b32 s6, s{S_J}, 7
s_lshl_b32 s6, s6, 8
s_add_u32 s6, s6, {F_W + 112}
v_and_b32 v{G}, 7, v0
v_lshl_add_u32 v{G}, v{G}, 2, s6""", G, G + 1, "wo")]
            if i >= F0:
                cnt = 3 if i >= F3 else 2
                idx = list(range(fi, min(fi + cnt, 56))); fi += len(idx)
                fm = [(n // 4, n % 4) for n in idx]
                for (q, k) in fm:
                    if k == 0 and q + NB - 1 < 14:
                        if q + NB - 1 == 6: assert i > HBP
                        nl = f_loads(e, q + NB - 1)
                        for f in nl: need[id(f)] = 4 * q
                        keep.extend(nl); fq += nl
                n = min(len(fq), cnt)
                fl = fq[:n] + pb; fq = fq[n:]
        def em(x): x() if callable(x) else e(x)
        e.stamp(f"xa{i}")
        ex = [E(sc + k) for k in range(16)]; cv = [C(PP + k, sc + 2 * k) for k in range(8)]
        if i + KVPRE <= 2: dq += kv_dma(e, i + KVPRE)
        misc = []
        if i == 29: misc.append(comb_addr())
        if HDEF and i in (HDEF, HDEF + 1):
            misc.append(lambda i=i: e.vm(f"buffer_store_dwordx4 {vr(16 + 4*(i - HDEF),4)}, v{VL16}, {WS}, s{H_B} offen offset:{1024*(i - HDEF)} {SC}", "hs"))
        if withF and 22 <= i < 30: misc.append(oa_dma(e, i - 22))
        gate = withF and i == FP
        def take(n):
            for _ in range(n):
                if fl and need.get(id(fl[0]), 0) <= done[0]: em(fl.pop(0))
        per = -(-len(fl) // 2)
        for x in ex[0:2]: em(x)
        def fmf(n):
            if n < len(fm):
                q, k = fm[n]
                e.wvm(f"f{q}"); e(f_mfma(q, k)); done[0] += 1
        if fm and fm[0][1] == 0: e.wboth(f"f{fm[0][0]}")
        else: e.all_ds()
        if i > 0: e(mfma(O, V1, PP + 4))
        rd(e, V1, i, 3, "c")
        for x in ex[2:5]: em(x)
        fmf(0)
        if not gate: take(1 if fm else per)
        for x in cv[0:2] + ex[5:7]: em(x)
        if i + 1 < NT: e(mfma(sn, K, Q, "0")); rd(e, v0n, i + 1, 2, "c")
        for x in ex[7:10]: em(x)
        if i + 1 < NT: e(mfma(sn, K + 4, Q + 4))
        if i % 4 == 2 and i + 2 < NT:
            st = i // 4
            if withF and i == FP: poll_check(e, G, G + 1, "hp")
            if withF and i == HBP: poll_check(e, G, G + 1, "hb")
            if withF and i == WOP: poll_check(e, G, G + 1, "wo")
            while dq and i == 2: dq.pop(0)()
            e.wvm(*([f"k{st+1}"] + (["hs"] if i == HFL else []))); e("s_barrier")
            if i == HFL:
                flag_store(e, f"""s_lshl_b32 s6, s{S_RB}, 5
s_add_u32 s6, s6, s{S_J}
s_lshl_b32 s6, s6, 2
s_add_u32 s6, s6, {F_H}
v_mov_b32 v{G+2}, s6""", 1, G + 2)
            assert not dq
            if st + 3 <= 7: dq += kv_dma(e, st + 3)
        if i + 2 < NT: rd(e, K, i + 2, 0, "c"); rd(e, K + 4, i + 2, 1, "c")
        if dq and getattr(dq[0], "scalar", False): dq.pop(0)()
        for x in cv[2:4] + ex[10:12]: em(x)
        fmf(1)
        take(1 if fm else len(fl) if not gate else per)
        for x in ex[12:14] + cv[4:6]: em(x)
        e(mfma(O, v0c, PP, "0" if i == 0 else None))
        for _ in range(1 if i >= 2 else 2):
            if dq: dq.pop(0)()
        if len(fm) < 3: take(len(fl))
        for x in misc: em(x)
        for x in ex[14:16] + cv[6:7]: em(x)
        fmf(2); take(len(fl))
        fq = fl + fq
        em(cv[7])
        if i + 2 >= NT: e("s_nop 1")
    e.all_ds()
    e("s_nop 0")
    e(mfma(O, V1, PP + 4))
    return fi, fq

CMB = L_W2T
def comb_addr():
    T = G
    return f"""s_lshl_b32 s6, s{S_W}, 11
s_add_u32 s6, s6, {CMB}
v_add_u32 v{T}, s6, v{VL16}
v_xor_b32 v{T+1}, 8192, v{T}
s_lshl_b32 s6, s{S_W}, 8
s_add_u32 s6, s6, {CMB + 16384}
v_lshl_add_u32 v{T+2}, v0, 2, s6
v_or_b32 v{T+3}, 32, v0
s_lshl_b32 s6, s{S_QT}, 8
s_add_u32 s6, s6, {CMB + 16384}
v_lshl_add_u32 v{T+3}, v{T+3}, 2, s6
s_mov_b32 s{S_C}, {f2u(2.0 ** -64)}
s_mov_b32 s{S_D}, {f2u(2.0 ** 64)}
s_lshl_b32 s6, s{S_RB}, 9
s_add_u32 s6, s6, s{S_J}
s_lshl_b32 s6, s6, 2
s_add_u32 s6, s6, {F_O2}
v_lshl_add_u32 v6, v0, 7, s6
v_mov_b32 v7, s{S_NON}"""

def attn_finish(e, withF=False):
    T = G
    e.stamp("aend")
    hi = e.newlabel("chi"); jn = e.newlabel("cjn"); fb = e.newlabel("cfb"); bk = e.newlabel("cbk")
    e(f"s_cmp_eq_u32 s{S_KH}, 0\ns_nop 10")
    e.ds(f"ds_write_b32 v{T+2}, v{O+12}")
    e(f"s_cbranch_scc0 {hi}")
    e.ds(f"ds_write_b128 v{T}, {vr(O+8,4)}"); e.ds(f"ds_write_b128 v{T}, {vr(O+12,4)} offset:1024")
    e(f"s_branch {jn}")
    e.label(hi)
    e(f"ds_write_b128 v{T}, {vr(O,4)}\nds_write_b128 v{T}, {vr(O+4,4)} offset:1024")
    e.all_ds()
    for k in range(8): e(f"v_mov_b32 v{O+k}, v{O+8+k}")
    e.label(jn)
    if withF: e.wboth("oa")
    else: e.all_ds()
    e.stamp("xc0")
    e("s_barrier")
    e.stamp("xc1")
    e.ds(f"ds_read2st64_b32 {vr(PP,2)}, v{T+3} offset0:0 offset1:4", "l")
    e.ds(f"ds_read_b128 {vr(S0,4)}, v{T+1}", "h0"); e.ds(f"ds_read_b128 {vr(S0+4,4)}, v{T+1} offset:1024", "h1")
    e(f"s_mov_b32 s{S_A}, 0\ns_sub_u32 s{S_B}, 0, s{S_KH}")
    e.wds("l")
    e(f"""v_add_f32 v{PP}, v{PP}, v{PP+1}
v_rcp_f32 v{PP+1}, v{PP}
v_cmp_nle_f32 vcc, s{S_C}, v{PP}
v_cmp_nge_f32 s[{S_E}:{S_F}], s{S_D}, v{PP}""")
    e.all_ds()
    for k in range(8): e(f"v_add_f32 v{S0+k}, v{S0+k}, v{O+k}")
    e(f"s_or_b64 s[{S_E}:{S_F}], s[{S_E}:{S_F}], vcc")
    for k in range(8): e(f"v_mul_f32 v{S0+k}, v{S0+k}, v{PP+1}")
    def pack_store():
        for k in range(4): e(f"v_cvt_pk_bf16_f32 v{K+k}, v{S0+2*k}, v{S0+2*k+1}")
        e(f"""v_cndmask_b32 v{K+2}, v{K+2}, 0, s[{S_A}:{S_B}]
v_cndmask_b32 v{K+3}, v{K+3}, 0, s[{S_A}:{S_B}]""")
    pack_store()
    e.vm(f"buffer_store_dwordx4 {vr(K,4)}, v{VL16}, {WS}, s{S_OO} offen {SC}", "os")
    e(f"""v_add_f32 v{PP+2}, |v{S0}|, |v{S0+1}|
v_add_f32 v{PP+3}, |v{S0+2}|, |v{S0+3}|
v_add_f32 v{PP+4}, |v{S0+4}|, |v{S0+5}|
v_add_f32 v{PP+5}, |v{S0+6}|, |v{S0+7}|
v_add_f32 v{PP+2}, v{PP+2}, v{PP+3}
v_add_f32 v{PP+4}, v{PP+4}, v{PP+5}
s_mov_b32 s6, 0x7f7fffff
v_add_f32 v{PP+2}, v{PP+2}, v{PP+4}
v_cmp_nge_f32 vcc, s6, v{PP+2}
s_nop 1
s_or_b64 vcc, vcc, s[{S_E}:{S_F}]""")
    if 'forcefb' in X: e("s_mov_b64 vcc, 1")
    e(f"s_cbranch_vccnz {fb}")
    e.label(bk)
    FALLBACKS.append((fb, bk))
    e.stamp("xc2")

FALLBACKS = []
def fallback(e, fb, bk):
    l1 = e.newlabel("fb1"); l2 = e.newlabel("fb2"); l3 = e.newlabel("fb3")
    M = PP + 7
    e.label(fb)
    if 'fbcount' in X:
        e(f"""s_mov_b32 s80, s{P_DBG}
s_mov_b32 s81, s{P_DBG+1}
s_mov_b32 s82, 256
s_mov_b32 s83, 0x00020000
v_mov_b32 v{M}, 0
v_mov_b32 v{M-1}, 1
s_mov_b64 exec, 1
buffer_atomic_add v{M-1}, v{M}, s[80:83], 0 offen
v_mov_b32 v{M-1}, s2
buffer_store_dword v{M-1}, v{M}, s[80:83], 0 offen offset:4
v_mov_b32 v{M-1}, s{S_W}
buffer_store_dword v{M-1}, v{M}, s[80:83], 0 offen offset:8
v_mov_b32 v{M-1}, vcc_lo
buffer_store_dword v{M-1}, v{M}, s[80:83], 0 offen offset:12
v_mov_b32 v{M-1}, vcc_hi
buffer_store_dword v{M-1}, v{M}, s[80:83], 0 offen offset:16
v_mov_b32 v{M-1}, s{S_E}
buffer_store_dword v{M-1}, v{M}, s[80:83], 0 offen offset:20
v_mov_b32 v{M-1}, s{S_F}
buffer_store_dword v{M-1}, v{M}, s[80:83], 0 offen offset:24
buffer_store_dword v{PP}, v{M}, s[80:83], 0 offen offset:28
buffer_store_dword v{PP+2}, v{M}, s[80:83], 0 offen offset:32
s_waitcnt vmcnt(0)
s_mov_b64 exec, -1""")
    e(f"s_mov_b32 s6, {KVF}\nv_mov_b32 v{M}, 0xff800000")
    e.label(l1)
    e(f"""buffer_load_dwordx4 {vr(K,4)}, v{VL16}, {WS}, s6 offen {SC}
buffer_load_dwordx4 {vr(K+4,4)}, v{VL16}, {WS}, s6 offen offset:1024 {SC}
s_add_u32 s6, s6, 4096
s_waitcnt vmcnt(0)""")
    e(mfma(S0, K, Q, "0")); e(mfma(S0, K + 4, Q + 4))
    e("s_nop 11")
    for k in range(8): e(f"v_max3_f32 v{M}, v{M}, v{S0+2*k}, v{S0+2*k+1}")
    e(f"""s_cmp_lt_u32 s6, {KVF + 64*4096}
s_cbranch_scc1 {l1}
v_mov_b32 v{PP}, v{M}
s_nop 1
v_permlane32_swap_b32 v{PP}, v{M}
v_max_f32 v{M}, v{M}, v{PP}
v_cvt_pk_bf16_f32 v{PP}, v{M}, v{M}
v_and_b32 v{PP}, s{S_MASK}, v{PP}
v_sub_f32 v{PP+1}, v{M}, v{PP}
v_cvt_pk_bf16_f32 v{PP+2}, v{PP+1}, v{PP+1}
v_and_b32 v{PP+2}, s{S_MASK}, v{PP+2}
v_sub_f32 v{PP+1}, v{PP+1}, v{PP+2}
v_cvt_pk_bf16_f32 v{PP}, -v{PP}, -v{PP+2}
v_cvt_pk_bf16_f32 v{PP+1}, -v{PP+1}, 0
v_cndmask_b32 v{Q+6}, v{Q+6}, v{PP}, s[{S_HI}:{S_HI+1}]
v_cndmask_b32 v{Q+7}, v{Q+7}, v{PP+1}, s[{S_HI}:{S_HI+1}]
s_mov_b32 s6, {KVF}""")
    for k in range(16): e(f"v_mov_b32 v{O+k}, 0")
    e.label(l2)
    for f in range(4): e(f"buffer_load_dwordx4 {vr(K+4*f,4)}, v{VL16}, {WS}, s6 offen offset:{1024*f} {SC}")
    e("s_add_u32 s6, s6, 4096\ns_waitcnt vmcnt(0)")
    e(mfma(S0, K, Q, "0")); e(mfma(S0, K + 4, Q + 4))
    e("s_nop 11")
    for k in range(16): e(f"v_exp_f32 v{S0+k}, v{S0+k}")
    e("s_nop 0")
    for k in range(8): e(f"v_cvt_pk_bf16_f32 v{PP+k}, v{S0+2*k}, v{S0+2*k+1}")
    e("s_nop 1")
    e(mfma(O, K + 8, PP)); e(mfma(O, K + 12, PP + 4))
    e(f"""s_cmp_lt_u32 s6, {KVF + 64*4096}
s_cbranch_scc1 {l2}
s_nop 11
v_mov_b32 v{PP}, v{O+12}
v_mov_b32 v{PP+1}, v{O+12}
s_cmp_eq_u32 s{S_KH}, 0
s_nop 0
v_permlane32_swap_b32 v{PP}, v{PP+1}
v_rcp_f32 v{PP+1}, v{PP+1}
s_cbranch_scc1 {l3}""")
    for k in range(8): e(f"v_mov_b32 v{O+k}, v{O+8+k}")
    e.label(l3)
    e("s_nop 0")
    for k in range(8): e(f"v_mul_f32 v{S0+k}, v{O+k}, v{PP+1}")
    for k in range(4): e(f"v_cvt_pk_bf16_f32 v{K+k}, v{S0+2*k}, v{S0+2*k+1}")
    e(f"""v_cndmask_b32 v{K+2}, v{K+2}, 0, s[{S_A}:{S_B}]
v_cndmask_b32 v{K+3}, v{K+3}, 0, s[{S_A}:{S_B}]
buffer_store_dwordx4 {vr(K,4)}, v{VL16}, {WS}, s{S_OO} offen {SC}
s_waitcnt vmcnt(0)
s_branch {bk}""")

OFA, OFD = 6, 7
def o_signal(e):
    l = e.newlabel("os")
    e(f"s_cbranch_vccz {l}\ns_mov_b64 exec, 0xffff\nbuffer_store_dword v{OFD}, v{OFA}, {WS}, 0 offen {SC}\ns_mov_b64 exec, -1")
    e.label(l)

def o_flag(e):
    e.stamp("xc3")
    e(f"s_cmp_eq_u32 s{S_W}, 0\ns_cselect_b64 vcc, -1, 0")
    e.wvm("os"); e.stamp("xc4"); e("s_barrier")
    o_signal(e)

def tail(e, nq, fq):
    T = G
    SUM = 232
    RB = 64
    OBR = [96 + 4 * k for k in range(7)] + [36]
    AD = 248
    for f in fq: f()
    for n in range(nq, 56):
        q, k = n // 4, n % 4
        if k == 0 and q + NB - 1 < 14:
            for f in f_loads(e, q + NB - 1): f()
        e.wvm(f"f{q}"); e(f_mfma(q, k))
    e(f"""s_lshl_b32 s6, s{S_W}, 13
s_add_u32 s6, s6, {RING}
v_add_u32 v{AD+6}, s6, v{VL16}
v_xor_b32 v{AD+7}, 8192, v{AD+6}""")
    if nq < 56: e("s_nop 8")
    setup = Side(e)
    setup.add(f"""s_lshr_b32 s6, s{S_J}, 3
s_lshl_b32 s7, s{S_RB}, 1
s_add_u32 s6, s6, s7
s_and_b32 s{S_B}, s{S_W}, 1
s_lshl_b32 s{S_C}, s6, 1
s_add_u32 s{S_C}, s{S_C}, s{S_B}
s_mul_i32 s{S_C}, s{S_C}, 144
s_lshr_b32 s{S_A}, s{S_W}, 1
s_lshl_b32 s{S_D}, s{S_A}, 3
s_add_u32 s{S_D}, s{S_D}, 112
s_add_u32 s{S_C}, s{S_C}, s{S_D}
s_lshl_b32 s{S_C}, s{S_C}, 10
s_and_b32 s7, s{S_J}, 7
s_add_u32 s{S_D}, s{S_C}, 4096
s_lshl_b32 s{S_A}, s{S_A}, 14
s_lshl_b32 s{S_B}, s{S_B}, 13
s_add_u32 s{S_G}, s{S_A}, s{S_B}
s_add_u32 s{S_G}, s{S_G}, {RING}
v_and_b32 v{T}, 31, v0
v_lshrrev_b32 v{T+1}, 5, v0
v_and_b32 v{T+2}, 7, v0
v_xor_b32 v{T+1}, v{T+1}, v{T+2}
v_lshlrev_b32 v{T+1}, 4, v{T+1}
v_lshl_add_u32 v{T}, v{T}, 8, v{T+1}
v_add_u32 v{AD}, s{S_G}, v{T}
v_xor_b32 v{AD+1}, 32, v{AD}
v_xor_b32 v{AD+2}, 64, v{AD}
v_xor_b32 v{AD+3}, 96, v{AD}
s_lshl_b32 s6, s6, 6
s_lshl_b32 s{S_B}, s{S_W}, 3
s_add_u32 s6, s6, s{S_B}
v_lshrrev_b32 v{T}, 3, v0
v_add_u32 v{T+1}, s6, v{T}
v_mul_u32_u24 v{T+1}, 896, v{T+1}
v_lshl_add_u32 v{T+1}, v{T+2}, 4, v{T+1}
s_lshl_b32 s7, s7, 7
v_add_u32 v{VO}, s7, v{T+1}
v_lshlrev_b32 v{T+2}, 1, v{T+2}
v_xor_b32 v{T+2}, v{T+2}, v{T}
v_lshlrev_b32 v{T+2}, 4, v{T+2}
v_lshl_add_u32 v{T}, v{T}, 8, v{T+2}
s_lshl_b32 s6, s{S_W}, 11
s_add_u32 s6, s6, {RING}
v_add_u32 v{AD+4}, s6, v{T}
v_xor_b32 v{AD+5}, 16, v{AD+4}
v_add_u32 v{T+2}, {3 * RING}, v{T+3}""")
    e(f"s_lshr_b32 s6, s{S_W}, 1\ns_lshl_b32 s6, s6, 13\nv_add_u32 v{T+3}, s6, v{VL16}\ns_nop 0")
    oaq = [(lambda k=k: e.ds(f"ds_read_b128 {vr(OAREG[k],4)}, v{T+2 if k < 8 else T+3} offset:{(k & 7) * 1024}", "oar")) for k in range(16)]
    nw1 = P("NW1", 0)
    def oflag():
        e.stamp("xc3")
        e(f"s_cmp_eq_u32 s{S_W}, 0\ns_cselect_b64 vcc, -1, 0")
        e.wvm("os")
        if nw1 == 8: e.all_ds()
        e.stamp("xc4"); e("s_barrier")
        o_signal(e)
    for q in range(8):
        if q == nw1: oflag()
        e.ds(f"ds_write_b128 v{AD+6}, {vr(FA+32+4*q,4)} offset:{q*1024}")
        setup.emit(6)
    setup.flush()
    if nw1 == 8: oflag()
    if not P('OAL', 1):
        for f in oaq: f()
    e.vm(f"buffer_load_dwordx4 {vr(XRES,4)}, v{VO}, s[{SRD_X}:{SRD_X+3}], 0 offen", "xr")
    if nw1 < 8: e.all_ds(); e("s_barrier")
    for q in range(8): e.ds(f"ds_read_b128 {vr(RB+4*q,4)}, v{AD+7} offset:{q*1024}", f"p{q}")
    def olook():
        poll_issue(e, f"""s_lshl_b32 s6, s{S_RB}, 4
s_add_u32 s6, s6, s{S_J}
s_lshl_b32 s6, s6, 7
s_add_u32 s6, s6, {F_O2}
v_and_b32 v{T}, 15, v0
v_lshl_add_u32 v{T}, v{T}, 2, s6""", T, T + 1, "op")
    if P('OLATE', 1) == 0: olook()
    srd(e, SRD_OUT, P_OUT, 2048 * 896)
    for q in range(8):
        e.wds(f"p{q}")
        for k in range(4): e(f"v_add_f32 v{FA+4*q+k}, v{FA+4*q+k}, v{RB+4*q+k}")
    if P('OLATE', 1) == 2:
        for f in oaq: f()
        oaq = []
    if P('OLATE', 1): olook()
    e.stamp("t1")
    poll_check(e, T, T + 1, "op", P("OSLEEP", 1))
    e("s_barrier")
    e.stamp("t2")
    for k in range(8):
        e.vm(f"buffer_load_dwordx4 {vr(OBR[k],4)}, v{VL16}, {WS}, s{S_C if k < 4 else S_D} offen offset:{(k&3)*1024} {SC}", f"ob{k}")
    if P('OAL', 1):
        for f in oaq: f()
        e.all_ds()
    e.wvm("xr")
    for k in range(4): e(f"v_lshlrev_b32 v{SUM+2*k}, 16, v{XRES+k}\nv_and_b32 v{SUM+1+2*k}, s{S_MASK}, v{XRES+k}")
    for k in range(8):
        e.wvm(f"ob{k}")
        for d2 in range(2): e(mfma(FA + 16*d2, OAREG[2*k + d2], OBR[k]))
    e("s_nop 10")
    e.stamp("t3")
    for d2 in range(2):
        for q in range(4): e.ds(f"ds_write_b128 v{AD+q}, {vr(FA+16*d2+4*q,4)} offset:{d2*128}")
    e.all_ds()
    e("s_barrier")
    for p in range(4):
        e.ds(f"ds_read_b128 {vr(RB+8*p,4)}, v{AD+4} offset:{p*16384}", f"s{p}")
        e.ds(f"ds_read_b128 {vr(RB+8*p+4,4)}, v{AD+5} offset:{p*16384}", f"s{p}")
    for p in range(4):
        e.wds(f"s{p}")
        for k in range(8): e(f"v_add_f32 v{SUM+k}, v{SUM+k}, v{RB+8*p+k}")
    for k in range(4): e(f"v_cvt_pk_bf16_f32 v{XRES+k}, v{SUM+2*k}, v{SUM+1+2*k}")
    e.vm(f"buffer_store_dwordx4 {vr(XRES,4)}, v{VO}, s[{SRD_OUT}:{SRD_OUT+3}], 0 offen {os.environ.get('OUTF', '')}")

DOC = """;
;            one extra MFMA, 1/std folded into the GELU constants); h, q, k, v and the transposed down / output
;  tail    : o of the 16 heads, output projection, cross-wave reduction, residual, store
"""
def build():
    e = Em()
    kn = NAME + "_kernel"
    e.a.raw(f".globl {kn}\n.p2align 8\n.type {kn},@function")
    e.label(kn)
    prologue(e)
    gelu, h_off, w2t_out = phaseB(e)
    attn_setup(e, gelu, h_off, w2t_out)
    e(f"s_and_b32 s6, s{S_J}, 7\ns_cmp_eq_u32 s6, 7\ns_cbranch_scc1 C_noF")
    sn = e.snap(); ns = e.nst
    nq, fq = attn_loop(e, True)
    attn_finish(e, True)
    tail(e, nq, fq)
    nend = e.nst
    e("s_branch K_fin")
    e.label("C_noF")
    e.restore(sn); e.nst = ns
    attn_loop(e, False)
    attn_finish(e)
    o_flag(e)
    e(f"""s_cmp_eq_u32 s{S_RB}, 0
s_cbranch_scc0 C_noF_done
s_cmp_eq_u32 s{S_J}, 7
s_cbranch_scc0 C_noF_done
s_cmp_eq_u32 s{S_W}, 0
s_cbranch_scc0 C_noF_done""")
    for k in range(4):
        e(f"""v_lshrrev_b32 v{G}, 4, v0
v_and_b32 v{G+1}, 15, v0
v_lshlrev_b32 v{G}, 7, v{G}
v_lshl_add_u32 v{G}, v{G+1}, 2, v{G}
v_add_u32 v{G}, {F_H + 512*k}, v{G}""")
        e(f"buffer_load_dword v{G+1}, v{G}, {WS}, 0 offen {SC}"); e.mark[f"ep{k}"] = len(e.q['vm'])
        poll_check(e, G, G + 1, f"ep{k}")
    e(f"v_mov_b32 v{G}, {EPO}\nv_mov_b32 v{G+1}, s{S_NON}\ns_mov_b64 exec, 1\nbuffer_store_dword v{G+1}, v{G}, {WS}, 0 offen {SC}\ns_mov_b64 exec, -1")
    e.label("C_noF_done")
    while e.nst < nend and not STAMPS_OFF: e.stamp()
    e.label("K_fin")
    if os.environ.get("AMPAT") == "xfin": e("s_waitcnt vmcnt(0)"); e.stamp("xfin")
    if os.environ.get("AMPAT"):
        e("""s_waitcnt vmcnt(0)
s_memrealtime s[92:93]
s_waitcnt lgkmcnt(0)
s_sub_u32 s7, s94, s96
s_mul_i32 s7, s7, 10
K_amp:
s_sleep 1
s_memrealtime s[98:99]
s_waitcnt lgkmcnt(0)
s_sub_u32 s6, s98, s92
s_cmp_lt_u32 s6, s7
s_cbranch_scc1 K_amp""")
    if 'stdiag' in X:
        e("""s_memtime s[92:93]
s_waitcnt lgkmcnt(0)
K_sd:
s_sleep 2
s_memtime s[90:91]
s_waitcnt lgkmcnt(0)
s_sub_u32 s6, s90, s92
s_cmp_lt_u32 s6, s94
s_cbranch_scc1 K_sd""")
    if 'fix' in X:
        e("""K_fx:
s_sleep 1
s_memrealtime s[98:99]
s_waitcnt lgkmcnt(0)
s_sub_u32 s6, s98, s96
s_cmp_lt_u32 s6, 10000
s_cbranch_scc1 K_fx""")
    if 'amp' in X:
        e("""s_waitcnt vmcnt(0)
s_memrealtime s[98:99]
s_waitcnt lgkmcnt(0)
s_sub_u32 s7, s98, s96
s_mul_i32 s7, s7, 10
K_fx:
s_sleep 1
s_memrealtime s[98:99]
s_waitcnt lgkmcnt(0)
s_sub_u32 s6, s98, s96
s_cmp_lt_u32 s6, s7
s_cbranch_scc1 K_fx""")
    if STAMPS:
        e.stamp()
        e.label("K_fin2")
        e("s_memrealtime s[98:99]\ns_waitcnt lgkmcnt(0) vmcnt(0)")
        e(f"""s_mov_b32 s40, s{P_WS}
s_mov_b32 s41, s{P_WS+1}
s_mov_b32 s42, 0x10000000
s_mov_b32 s43, 0x00020000
s_lshl_b32 s6, s2, 3
s_add_u32 s6, s6, s{S_W}
s_lshl_b32 s6, s6, 6
s_add_u32 s6, s6, {STAMP_WS}
v_mov_b32 v2, s96
v_mov_b32 v3, s98""")
        for k in range(10): e(f"v_mov_b32 v{4+k}, {'s%d' % (76+2*k) if k < e.nst else 0}")
        e("v_mov_b32 v1, 0\ns_mov_b64 exec, 1")
        for q in range(3): e(f"buffer_store_dwordx4 v[{2+4*q}:{5+4*q}], v1, s[40:43], s6 offen offset:{16*q}")
    e("s_endpgm")
    for fb, bk in FALLBACKS: fallback(e, fb, bk)
    e.label("K_end")
    e("s_endpgm")
    probs = check_hazards(e.a.lines, "k")
    hdr = open("cdna_kernels/" + NAME + ".s.ref").read().split("; Override launch")[0]
    out = hdr + f"; @launch grid=(256,1,1) block=(512,1,1) lds={LDS_BYTES}\n"
    out += DOC + '.amdgcn_target "amdgcn-amd-amdhsa--gfx950"\n.text\n' + e.a.text()
    out += f""".section .rodata,"a"
.p2align 6
.amdhsa_kernel {kn}
  .amdhsa_next_free_vgpr 256
  .amdhsa_next_free_sgpr 102
  .amdhsa_accum_offset 256
  .amdhsa_group_segment_fixed_size 0
  .amdhsa_kernarg_size 96
  .amdhsa_user_sgpr_count 2
  .amdhsa_user_sgpr_kernarg_segment_ptr 1
  .amdhsa_system_sgpr_workgroup_id_x 1
  .amdhsa_float_denorm_mode_32 3
.end_amdhsa_kernel
"""
    return out, probs

if __name__ == "__main__":
    out, probs = build()
    for p in probs: print("HAZARD", p, file=sys.stderr)
    open(sys.argv[1] if len(sys.argv) > 1 else "cdna_kernels/" + NAME + ".s", "w").write(out)
```

```python
import sys, os, math, struct
from asmlib import *
X = set(os.environ.get('XFLAGS', '').split(','))
def P(name, default): return int(os.environ.get(name, default))
NAME = "parallel_sum__grouped_kv_mqa__glu_gated_geglu__prompt"
def f2u(x): return struct.unpack("<I", struct.pack("<f", x))[0]

A2F = 0
W2T = 64 * 144 * 1024
QF  = W2T + 7 * 144 * 2048
KVF = QF + 64 * 16 * 2048
FLG = KVF + 64 * 4096
RKV = P("RKV", 16)
F_W  = FLG
F_H  = FLG + 2048
F_O  = FLG + 4096
EPO  = FLG + 6144
F_Q  = FLG + 4096
SPLITQ = P('SPLITQ', 1)
F_KV = FLG + 8192
F_O2 = F_KV + 256 * RKV
STAT = F_O2 + 32768
WS_END = STAT + 2048 * 8
OOB = 0x7ffffff0
P_X, P_WQ, P_WK, P_WV, P_WO, P_BX, P_WG, P_WU, P_WD, P_OUT, P_DBG, P_WS = 8, 10, 12, 14, 16, 18, 20, 22, 24, 26, 28, 30
SRD_X, SRD_WS, SRD_T, SRD_PC = 32, 36, 40, 44
SRD_OUT = SRD_T
S_W, S_RB, S_J = 3, 4, 5
(S_WB, S_MASK, S_XO, S_XO2, S_RT, S_CG, S_MUL, S_T0, S_T1, S_U, S_NON, S_LA, S_LB, S_TO, S_QU) = range(48, 63)
S_HI = 64
S_A, S_B, S_C, S_D, S_E, S_F = 66, 67, 68, 69, 70, 71
S_G, S_H2 = 72, 73
S_CNT = 74
WS = f"s[{SRD_WS}:{SRD_WS+3}]"
SC = "sc1"
STAMPS = bool(os.environ.get("STAMPS"))
STAMP_WS = 200 * 1024 * 1024
SPIN_MAX = 1 << 21
STAMPS_OFF = False

class Em:
    def __init__(s):
        s.a = Asm(); s.q = {'ds': [], 'vm': []}; s.done = {'ds': 0, 'vm': 0}; s.nst = 0; s.uid = 0; s.mark = {}
    def __call__(s, t): s.a(t)
    def label(s, l): s.a.label(l)
    def ds(s, ins, tag=None): s.a(ins); s.q['ds'].append(tag)
    def vm(s, ins, tag=None): s.a(ins); s.q['vm'].append(tag)
    def _n(s, k, tags, cap):
        idx = -1
        for t in tags:
            ii = [i for i, x in enumerate(s.q[k]) if x == t]
            if not ii and 'nodma' in X: continue
            assert ii, f"tag {t} never issued"
            idx = max(idx, ii[-1])
        if idx < s.done[k]: return None
        n = min(len(s.q[k]) - 1 - idx, cap)
        s.done[k] = len(s.q[k]) - n
        return n
    def wds(s, *tags):
        n = s._n('ds', tags, 15)
        if n is not None: s.a(f"s_waitcnt lgkmcnt({n})")
    def wvm(s, *tags):
        n = s._n('vm', tags, 63)
        if n is not None: s.a(f"s_waitcnt vmcnt({n})")
    def wboth(s, *tags):
        n = s._n('vm', tags, 63)
        s.a("s_waitcnt lgkmcnt(0)" if n is None else f"s_waitcnt vmcnt({n}) lgkmcnt(0)"); s.done['ds'] = len(s.q['ds'])
    def all_ds(s): s.a("s_waitcnt lgkmcnt(0)"); s.done['ds'] = len(s.q['ds'])
    def all_vm(s): s.a("s_waitcnt vmcnt(0)"); s.done['vm'] = len(s.q['vm'])
    def snap(s): return ({k: list(v) for k, v in s.q.items()}, dict(s.done))
    def restore(s, sn): s.q = {k: list(v) for k, v in sn[0].items()}; s.done = dict(sn[1])
    def stamp(s, name=None):
        if name is not None and name == os.environ.get("IDLEAT"): s.a("s_sleep 32")
        if name is not None and name == os.environ.get("AMPAT"):
            s.a("s_memrealtime s[94:95]"); s.all_ds()
        sel = os.environ.get("STSEL")
        if sel is not None and name is not None and name not in sel.split(","): return
        if sel is None and name is not None and name.startswith("x"): return
        if STAMPS and not STAMPS_OFF:
            assert s.nst < 10
            s.a(f"{'s_memrealtime' if os.environ.get('RT') else 's_memtime'} s[{76+2*s.nst}:{77+2*s.nst}]"); s.nst += 1
            s.all_ds()
    def newlabel(s, p): s.uid += 1; return f"{p}_{s.uid}"

def srd(e, d, p, nbytes):
    e(f"s_mov_b32 s{d}, s{p}\ns_mov_b32 s{d+1}, s{p+1}\ns_mov_b32 s{d+2}, {nbytes}\ns_mov_b32 s{d+3}, 0x00020000")
def mfma(d, A, B, C=None):
    return f"v_mfma_f32_32x32x16_bf16 {vr(d,16)}, {vr(A,4)}, {vr(B,4)}, {vr(d,16) if C is None else C}"
def mfma16(d, A, B, C=None):
    return f"v_mfma_f32_16x16x32_bf16 {vr(d,4)}, {vr(A,4)}, {vr(B,4)}, {vr(d,4) if C is None else C}"

class Side:
    def __init__(s, e): s.e = e; s.q = []
    def add(s, items):
        if isinstance(items, str):
            raw = [l.strip() for l in items.strip().split("\n") if l.strip()]
            items = []
            for l in raw:
                if l.startswith("s_cselect"): items[-1] += "\n" + l
                else: items.append(l)
        s.q += list(items)
    def emit(s, n):
        while n > 0 and s.q:
            it = s.q.pop(0)
            if callable(it): it()
            else: s.e(it)
            n -= 1
    def flush(s): s.emit(1 << 30)

def flag_store(e, addr_lines, nlanes, vt):
    l = e.newlabel("fl")
    e(f"s_cmp_eq_u32 s{S_W}, 0\ns_cbranch_scc0 {l}")
    e(addr_lines)
    e(f"v_mov_b32 v{vt+1}, s{S_NON}\ns_mov_b64 exec, {(1 << nlanes) - 1}\nbuffer_store_dword v{vt+1}, v{vt}, {WS}, 0 offen {SC}\ns_mov_b64 exec, -1")
    e.label(l)

def poll_issue(e, addr_lines, vaddr, vdat, tag):
    l = e.newlabel("pi")
    e(f"s_cmp_eq_u32 s{S_W}, 0\ns_cbranch_scc0 {l}")
    e(addr_lines)
    e(f"buffer_load_dword v{vdat}, v{vaddr}, {WS}, 0 offen {SC}")
    e.label(l)
    e.mark[tag] = len(e.q['vm'])

def poll_check(e, vaddr, vdat, tag, sleep=None):
    ok = e.newlabel("pok"); sp = e.newlabel("psp")
    e(f"s_cmp_eq_u32 s{S_W}, 0\ns_cbranch_scc0 {ok}")
    e(f"s_waitcnt vmcnt({min(63, len(e.q['vm']) - e.mark[tag])})")
    e(f"v_cmp_ne_u32 vcc, s{S_NON}, v{vdat}\ns_cbranch_vccz {ok}\ns_mov_b32 s{S_CNT}, {SPIN_MAX}")
    e.label(sp)
    e(f"""s_sleep {P('SLEEP', 4) if sleep is None else sleep}
buffer_load_dword v{vdat}, v{vaddr}, {WS}, 0 offen {SC}
s_sub_u32 s{S_CNT}, s{S_CNT}, 1
s_waitcnt vmcnt(0)
v_cmp_ne_u32 vcc, s{S_NON}, v{vdat}
s_cmp_eq_u32 s{S_CNT}, 0
s_cbranch_scc1 {ok}
s_cbranch_vccnz {sp}""")
    if 'spincnt' in X and tag in SPINIDX: e(f"s_sub_u32 s{78 + 2 * SPINIDX[tag]}, {SPIN_MAX + 1000}, s{S_CNT}")
    e.label(ok)
SPINIDX = {'kvp': 0, 'hp': 1, 'hb': 2, 'wo': 3, 'op': 4}

RING = 32768
L_W2T = 131072
L_CSA = L_W2T + 8192
L_CSB = L_CSA + 2048
L_ST  = L_CSB + 2048
L_KVB = L_ST + 4096
L_FLG = L_KVB + 4096
LDS_BYTES = L_FLG + 256

VL16, VT, VX, GA, GS = 1, 2, 3, 4, 6
XA, WA = 8, 12
ST, SEL, CSA, WF, TM = 20, 24, 28, 36, 60
ACCA, ACCB, XR, G = 64, 96, 128, 240
SQA, SQB, TP = 60, 240, 248
WB, GB, PL = 250, 102, 252
R_, S_, AC, BC, I2 = 8, 9, 10, 11, 3
BEXT = 60


TA, TS, TX, TD = 96, 98, 99, 100
S_ISQ, S_SH = 63, 75
RW = 104
def w_source(row, c, dst, gs, t0):
    return f"""v_cmp_le_u32 vcc, s{S_A}, v{c}
v_mul_lo_u32 v{dst}, v{row}, s{S_B}
v_lshl_add_u32 v{dst}, v{c}, 4, v{dst}
v_add_u32 v{dst}, s{S_C}, v{dst}
v_subrev_u32 v{c}, s{S_A}, v{c}
v_lshlrev_b32 v{c}, s{S_G}, v{c}
v_mul_lo_u32 v{t0}, v{row}, s{S_D}
v_add3_u32 v{t0}, v{t0}, v{c}, s{S_H2}
v_cndmask_b32 v{dst}, v{dst}, v{t0}, vcc
v_mov_b32 v{gs}, s{S_B}
v_mov_b32 v{t0}, s{S_D}
v_cndmask_b32 v{gs}, v{gs}, v{t0}, vcc
v_lshlrev_b32 v{gs}, 5, v{gs}"""

ROTS = {0: [0]*8, 1: [0, 3, 2, 5, 4, 0, 6, 2], 2: [0, 3, 3, 0, 0, 3, 3, 0], 3: [0, 1, 2, 3, 4, 5, 6, 0], 4: [0, 4, 1, 5, 2, 6, 3, 0]}
ROTTAB = sum(v << (4 * i) for i, v in enumerate(ROTS[P("ROT", 0)]))
S_ROT = 47
S_KVO, S_WB4, S_FA, S_FB0, S_FB1, S_OO, S_FQ, S_K1, S_OA, S_OL = 15, 18, 19, 20, 21, 22, 23, 28, 29, 44
HLATE = P('HLATE', 0); S_HA = 45
S_WF = 46
RPAR, RBIT = P("RPAR", 0), P("RBIT", 0)
RPARCODE = "" if not RPAR else f"""
s_lshr_b32 s{S_F}, s2, 3
s_lshr_b32 s{S_T0}, s2, 6
s_xor_b32 s{S_F}, s{S_F}, s{S_T0}
s_and_b32 s{S_F}, s{S_F}, {RBIT or 1}
s_mul_i32 s{S_F}, s{S_F}, {RPAR}
s_add_u32 s{S_XO}, s{S_XO}, s{S_F}
s_cmp_ge_u32 s{S_XO}, 7
s_cselect_b32 s{S_F}, 7, 0
s_sub_u32 s{S_XO}, s{S_XO}, s{S_F}"""
def prologue(e):
    T = TM
    ROTCODE = f"""s_and_b32 s{S_XO}, s2, 7
s_lshl_b32 s{S_XO}, s{S_XO}, 2
s_lshr_b32 s{S_XO}, {ROTTAB:#x}, s{S_XO}
s_and_b32 s{S_XO}, s{S_XO}, 7{RPARCODE}
s_mov_b32 s{S_ROT}, s{S_XO}
s_lshl_b32 s{S_F}, s{S_XO}, 6
s_lshl_b32 s{S_XO}, s{S_XO}, 7
v_add_u32 v{T+2}, s{S_F}, v{T+2}
""" if any(ROTS[P('ROT', 0)]) or RPAR else f"s_mov_b32 s{S_ROT}, 0\n"
    e(f"s_cmp_ge_u32 s2, 256\ns_cbranch_scc1 K_end")
    if STAMPS or 'fix' in X or 'amp' in X or os.environ.get("AMPAT"): e("s_memrealtime s[96:97]")
    e.stamp()
    if 'spincnt' in X:
        for k in range(6): e(f"s_movk_i32 s{78 + 2*k}, 1000")
        e.nst = 7
    e("s_load_dwordx16 s[8:23], s[0:1], 0\ns_load_dwordx8 s[24:31], s[0:1], 64")
    e(f"s_getpc_b64 s[{SRD_PC}:{SRD_PC+1}]")
    e.label("K_pc")
    e(f"""s_mov_b32 s{SRD_PC+2}, K_end-K_pc
s_mov_b32 s{SRD_PC+3}, 0x00020000""")
    if P("CPF", 1):
        e(f"s_lshr_b32 s6, s2, 3\ns_lshl_b32 s6, s6, 11\nv_lshrrev_b32 v1, 5, v0\nv_lshl_add_u32 v1, v1, 7, s6")
    else: e("v_lshlrev_b32 v1, 7, v0")
    e.vm(f"buffer_load_dword v{TD}, v1, s[{SRD_PC}:{SRD_PC+3}], 0 offen")
    T = TM
    e(f"""v_lshrrev_b32 v1, 6, v0
v_and_b32 v0, 63, v0
v_readfirstlane_b32 s{S_W}, v1
s_nop 1""")
    e(f"""s_lshl_b32 s{S_TG}, s2, 3
s_add_u32 s{S_TG}, s{S_TG}, s{S_W}
s_mul_i32 s6, s{S_TG}, 896
v_lshl_add_u32 v{TX}, v0, 4, s6
v_cmp_lt_u32 vcc, 55, v0
v_mov_b32 v{TX+2}, {OOB}
s_nop 0
v_cndmask_b32 v{TX}, v{TX}, v{TX+2}, vcc""")
    WT = f"""s_min_u32 s6, s{S_TG}, 1393
s_cmp_ge_u32 s6, 448
s_cselect_b32 s{SRD_T}, s{P_WU}, s{P_WG}
s_cselect_b32 s{SRD_T+1}, s{P_WU+1}, s{P_WG+1}
s_cselect_b32 s{S_A}, 448, 0
s_mov_b32 s{S_D}, {448*3584}
s_cmp_ge_u32 s6, 896
s_cselect_b32 s{SRD_T}, s{P_WQ}, s{SRD_T}
s_cselect_b32 s{SRD_T+1}, s{P_WQ+1}, s{SRD_T+1}
s_cselect_b32 s{S_A}, 896, s{S_A}
s_cselect_b32 s{S_B}, 6, 11
s_cselect_b32 s{S_C}, 7, 28
s_cselect_b32 s{S_D}, {448*896}, s{S_D}
s_cmp_ge_u32 s6, 1344
s_cselect_b32 s{SRD_T}, s{P_WK}, s{SRD_T}
s_cselect_b32 s{SRD_T+1}, s{P_WK+1}, s{SRD_T+1}
s_cselect_b32 s{S_A}, 1344, s{S_A}
s_cselect_b32 s{S_B}, 7, s{S_B}
s_cselect_b32 s{S_C}, 8, s{S_C}
s_cselect_b32 s{SRD_T+2}, {448*56}, s{S_D}
s_cmp_ge_u32 s6, 1369
s_cselect_b32 s{SRD_T}, s{P_WV}, s{SRD_T}
s_cselect_b32 s{SRD_T+1}, s{P_WV+1}, s{SRD_T+1}
s_cselect_b32 s{S_A}, 1369, s{S_A}
s_mov_b32 s{SRD_T+3}, 0x00020000
s_sub_u32 s6, s6, s{S_A}
s_mul_i32 s6, s6, s{S_C}
v_min_u32 v{TA}, s{S_B}, v0
v_add_u32 v{TA}, s6, v{TA}
v_lshlrev_b32 v{TA}, 7, v{TA}"""
    e(f"""
s_bfe_u32 s{S_RB}, s2, 0x20001
s_lshl_b32 s{S_RB}, s{S_RB}, 2
s_lshr_b32 s6, s2, 6
s_add_u32 s{S_RB}, s{S_RB}, s6
s_and_b32 s{S_J}, s2, 1
s_lshl_b32 s{S_J}, s{S_J}, 3
s_bfe_u32 s7, s2, 0x30003
s_add_u32 s{S_J}, s{S_J}, s7
s_lshr_b32 s{S_QU}, s{S_J}, 2
s_sub_u32 s{S_LA}, s{S_J}, s{S_QU}
s_lshl_b32 s{S_WB}, s{S_W}, 10
s_lshl_b32 s{S_C}, s{S_LA}, 7
s_mul_i32 s{S_E}, s{S_QU}, 224
s_and_b32 s{S_F}, s{S_QU}, 1
s_sub_u32 s{S_G}, 4, s{S_F}
s_lshl_b32 s{S_F}, s{S_F}, 5
s_movk_i32 s{S_D}, 3584
s_and_b32 s{S_ISQ}, s{S_J}, 3
s_cmp_eq_u32 s{S_ISQ}, 3
s_cselect_b32 s{S_ISQ}, 1, 0
s_cselect_b32 s{S_A}, 14, 8
s_cselect_b32 s{S_B}, 896, s{S_D}
s_cselect_b32 s{S_D}, 56, s{S_D}
s_cselect_b32 s{S_H2}, s{S_F}, s{S_C}
s_cselect_b32 s{S_C}, s{S_E}, s{S_C}
s_cselect_b32 s{S_G}, s{S_G}, 4
s_add_u32 s{S_SH}, s{S_ISQ}, 1
s_lshl_b32 s{S_E}, s{S_RB}, 7
s_lshl_b32 s{S_F}, s{S_W}, 3
s_add_u32 s{S_F}, s{S_F}, s{S_E}
v_lshrrev_b32 v{T}, 3, v0
v_add_u32 v{T}, s{S_F}, v{T}
v_mul_u32_u24 v{T}, 896, v{T}
s_lshl_b32 s{S_F}, s{S_W}, 2
v_lshrrev_b32 v{T+1}, 4, v0
v_add_u32 v{T+2}, s{S_F}, v{T+1}
v_xor_b32 v{T+3}, v{T+2}, v0
v_and_b32 v{T+3}, 7, v{T+3}
v_lshl_add_u32 v{VX}, v{T+3}, 4, v{T}
{ROTCODE}v_lshlrev_b32 v{T+1}, s{S_SH}, v{T+1}
v_xor_b32 v{T+1}, v{T+1}, v0
v_and_b32 v{T+1}, 15, v{T+1}""")
    e(w_source(T + 2, T + 1, G, GS, T))
    e(f"s_mov_b64 s[{S_HI}:{S_HI+1}], vcc")
    if TOUCH:
        e(f"""s_and_b32 s6, s6, 3
s_lshl_b32 s6, s6, 3
s_add_u32 s6, s6, s{S_W}
s_lshl_b32 s6, s6, 1
s_lshl_b32 s7, s7, 3
s_add_u32 s7, s7, s{S_W}
s_lshl_b32 s7, s7, 1
s_add_u32 s7, s7, s{S_E}
v_bfe_u32 v{T+2}, v0, 3, 1
v_bfe_u32 v{T+1}, v0, 2, 1
v_lshl_add_u32 v{T+2}, v{T+2}, 6, v{T+1}
v_add_u32 v{T+2}, s6, v{T+2}
v_and_b32 v{T+1}, 3, v0
v_lshlrev_b32 v{T+1}, 2, v{T+1}
v_lshrrev_b32 v{T+1}, v{T+1}, s{S_MASK}
v_and_b32 v{T+1}, 15, v{T+1}
v_and_b32 v{T}, 1, v0
v_add_u32 v{T}, s7, v{T}
v_mul_u32_u24 v{TX}, 896, v{T}
v_bfe_u32 v{T}, v0, 1, 1
v_lshl_add_u32 v{TX}, v{T}, 7, v{TX}""".replace(f"v_lshrrev_b32 v{T+1}, v{T+1}, s{S_MASK}", f"s_movk_i32 s6, 0xed80\nv_lshrrev_b32 v{T+1}, v{T+1}, s6"))
        e(w_source(T + 2, T + 1, G + 1, TS, T))
    e("s_waitcnt lgkmcnt(0)")
    e.stamp("xs0")
    if 'stdiag' in X:
        e(f"""s_mov_b32 s40, s{P_WS}
s_mov_b32 s41, s{P_WS+1}
s_mov_b32 s42, 0x10000000
s_mov_b32 s43, 0x00020000
s_lshl_b32 s90, s2, 3
s_add_u32 s90, s90, s{S_W}
s_lshl_b32 s90, s90, 10
s_add_u32 s90, s90, {P('DOFF', 100) * 1024 * 1024}
v_lshlrev_b32 v110, 4, v0
buffer_store_dwordx4 v[112:115], v110, s[40:43], s90 offen sc1
s_waitcnt vmcnt(0)
s_add_u32 s90, s90, 0x200000
s_barrier
s_memtime s[92:93]
s_waitcnt lgkmcnt(0)
buffer_store_dwordx4 v[112:115], v110, s[40:43], s90 offen sc1
s_waitcnt vmcnt(0)
s_barrier
s_memtime s[94:95]
s_waitcnt lgkmcnt(0)
s_sub_u32 s94, s94, s92
s_mul_i32 s94, s94, 100""")
    srd(e, SRD_X, P_X, 2048 * 896)
    if GT:
        if not P("ROWL", 0): e.vm(f"buffer_load_dwordx4 {vr(RW,4)}, v{TX}, s[{SRD_X}:{SRD_X+3}], 0 offen", "row")
        if GT & 2 and not P("PRO", 1): e.vm(f"buffer_load_dword v{TD}, v{TA}, s[{SRD_T}:{SRD_T+3}], {'s%d' % S_TS if P('GTS', 0) else 0} offen", "t")
        if P("GTW", 0): e.wvm("row")
    if P("XE", 1): dma_x(e, 0, 0)(); dma_x(e, 0, 1)()
    if P("PRO", 1) == 2:
        e(WT); e.vm(f"buffer_load_dword v{TD}, v{TA}, s[{SRD_T}:{SRD_T+3}], 0 offen", "t")
    e(f"""s_cmp_lt_u32 s{S_QU}, 2
s_cselect_b32 s{S_C}, s{P_WK}, s{P_WV}
s_cselect_b32 s{S_D}, s{P_WK+1}, s{P_WV+1}
s_cmp_eq_u32 s{S_ISQ}, 1
s_cselect_b32 s{S_A}, s{P_WQ}, s{P_WG}
s_cselect_b32 s{S_B}, s{P_WQ+1}, s{P_WG+1}
s_cselect_b32 s{S_C}, s{S_C}, s{P_WU}
s_cselect_b32 s{S_D}, s{S_D}, s{P_WU+1}
v_mov_b32 v{T}, s{S_A}
v_mov_b32 v{T+1}, s{S_B}
v_mov_b32 v{T+2}, s{S_C}
v_mov_b32 v{T+3}, s{S_D}""")
    if TOUCH:
        e(f"""v_cndmask_b32 v{TA}, v{T}, v{T+2}, vcc
v_cndmask_b32 v{TA+1}, v{T+1}, v{T+3}, vcc
v_add_co_u32 v{TA}, vcc, v{TA}, v{G+1}
v_cndmask_b32 v{GA}, v{T}, v{T+2}, s[{S_HI}:{S_HI+1}]
v_cndmask_b32 v{GA+1}, v{T+1}, v{T+3}, s[{S_HI}:{S_HI+1}]
v_addc_co_u32 v{TA+1}, vcc, 0, v{TA+1}, vcc""")
        touch(e, 0)()
    else:
        e(f"""v_cndmask_b32 v{GA}, v{T}, v{T+2}, s[{S_HI}:{S_HI+1}]
v_cndmask_b32 v{GA+1}, v{T+1}, v{T+3}, s[{S_HI}:{S_HI+1}]""")
    e(f"v_add_co_u32 v{GA}, vcc, v{GA}, v{G}\nv_mov_b32 v{GS+1}, 0")
    if 'gonly' in X: e.all_vm(); e.stamp()
    if not P("XE", 1): dma_x(e, 0, 0)()
    else: e("s_nop 0")
    e(f"v_addc_co_u32 v{GA+1}, vcc, 0, v{GA+1}, vcc")
    e.WT = WT

TOUCH = P("TOUCH", 0)
GT = P("GT", 3)
ROT = P("ROT", 0)
LDX = os.environ.get("LDX", ""); LDW = os.environ.get("LDW", ""); LDT = os.environ.get("LDT", "")
def touch(e, k):
    def f():
        st = (0, 2, 4, 5)[k]
        e.vm(f"global_load_dword v{TD}, {vr(TA,2)}, off", f"t{k}")
        e(f"s_movk_i32 s{S_XO2}, {st * 128}")
        e.vm(f"buffer_load_dword v{TD}, v{TX}, s[{SRD_X}:{SRD_X+3}], s{S_XO2} offen", f"t{k}")
        if k < 3: e(f"v_mad_u64_u32 {vr(TA,2)}, s[{S_E}:{S_E+1}], v{TS}, {4 if k < 2 else 2}, {vr(TA,2)}")
    return f
S_TG, S_TS = 61, 57
def gtouch(e, st):
    def f():
        e(f"s_mul_i32 s{S_XO2}, s{S_TS}, {st}")
        e.vm(f"buffer_load_dword v{TD}, v{TA}, s[{SRD_PC}:{SRD_PC+3}], s{S_XO2} offen {LDT}", "t")
        e(f"s_movk_i32 s{S_XO2}, {st * 128}")
        e.vm(f"buffer_load_dword v{TD}, v{TX}, s[{SRD_X}:{SRD_X+3}], s{S_XO2} offen {LDT}", "t")
    return f
def dma_x(e, sig, i):
    def f():
        e(f"s_add_u32 m0, s{S_WB}, {(sig % 4) * RING + i * 8192}")
        if i == 0: e("s_nop 0"); so = S_XO
        else: e(f"s_add_u32 s{S_XO2}, s{S_XO}, {64*896}"); so = S_XO2
        e.vm(f"buffer_load_dwordx4 v{VX}, s[{SRD_X}:{SRD_X+3}], s{so} offen {LDX} lds", f"d{sig}")
    return f
def dma_w(e, sig, off, i, first=False):
    def f():
        if i == 0 and not first:
            e(f"s_add_u32 s{S_XO}, s{S_XO}, 128\ns_cmp_eq_u32 s{S_XO}, 896\ns_cselect_b32 s{S_XO}, 0, s{S_XO}\ns_cselect_b32 s{S_MUL}, -13, 1")
        e(f"s_add_u32 m0, s{S_WB}, {(sig % 4) * RING + off + i * 8192}")
        if first == 2: e(f"s_add_u32 s{S_XO}, s{S_XO}, 128\ns_cmp_eq_u32 s{S_XO}, 896\ns_cselect_b32 s{S_XO}, 0, s{S_XO}")
        elif first: e("s_nop 0")
        elif i == 0: e(f"v_mad_i64_i32 {vr(GA,2)}, s[{S_E}:{S_E+1}], v{GS}, s{S_MUL}, {vr(GA,2)}")
        else: e(f"v_lshl_add_u64 {vr(GA,2)}, {vr(GS,2)}, 0, {vr(GA,2)}")
        e.vm(f"global_load_lds_dwordx4 {vr(GA,2)}, off {LDW}", f"d{sig}")
    return f
if not any(ROTS[P("ROT", 0)]) and not RPAR:
    def dma_x(e, sig, i):
        def f():
            e(f"s_add_u32 m0, s{S_WB}, {(sig % 4) * RING + i * 8192}\ns_mov_b32 s{S_XO}, {sig * 128 + i * 64 * 896}")
            e.vm(f"buffer_load_dwordx4 v{VX}, s[{SRD_X}:{SRD_X+3}], s{S_XO} offen {LDX} lds", f"d{sig}")
        return f
    def dma_w(e, sig, off, i, first=False):
        def f():
            e(f"s_add_u32 m0, s{S_WB}, {(sig % 4) * RING + off + i * 8192}")
            e("s_nop 0" if first else f"v_lshl_add_u64 {vr(GA,2)}, {vr(GS,2)}, 0, {vr(GA,2)}")
            e.vm(f"global_load_lds_dwordx4 {vr(GA,2)}, off {LDW}", f"d{sig}")
        return f
def stage_dmas(e, sig):
    if 'nodma' in X and 2 <= sig: return [(lambda: e.q['vm'].append(f'd{sig}') or e.q['vm'].pop() if False else None)] if False else [lambda: None]
    if sig == 0: return [dma_x(e, sig, 0), dma_w(e, sig, 16384, 0, True), dma_x(e, sig, 1), dma_w(e, sig, 16384, 1)]
    if sig < 7: return [dma_w(e, sig, 16384, 0), dma_x(e, sig, 0), dma_w(e, sig, 16384, 1), dma_x(e, sig, 1)]
    l = []
    if sig == 7: l.append(lambda: e(f"v_mov_b32 v{GA}, v{GB}\nv_mov_b32 v{GA+1}, v{GB+1}\nv_mov_b32 v{GS}, {32*3584}"))
    l += [dma_w(e, sig, 0, 0, 2 if sig == 7 else False), dma_w(e, sig, 0, 1)]
    if sig < 10: l += [dma_w(e, sig, 16384, 0), dma_w(e, sig, 16384, 1)]
    return l

def late_touch(e):
    if P('GTS', 0):
        e(f"s_xor_b32 s{S_TS}, s{S_TS}, {OOB}")
        e.vm(f"buffer_load_dword v{TD}, v{TA}, s[{SRD_T}:{SRD_T+3}], s{S_TS} offen", "t")

def h_off(line, dst):
    return f"""s_lshl_b32 s6, s{S_RB}, 2
s_add_u32 s6, s6, s{S_RT}
s_mul_i32 s6, s6, 144
s_lshl_b32 s{dst}, s{line}, 2
s_add_u32 s6, s6, s{dst}
s_add_u32 s6, s6, s{S_T0}
s_lshl_b32 s{dst}, s6, 10
s_add_u32 s{dst+1}, s{dst}, 1024"""
H_A, H_B = 10, 12
S_QO = 14
HOIST = P("HOIST", 4)
def f_scalars():
    return f"""s_lshr_b32 s6, s{S_J}, 3
s_lshl_b32 s7, s{S_RB}, 1
s_add_u32 s6, s6, s7
s_and_b32 s7, s{S_J}, 7
s_mul_i32 s{S_A}, s{S_W}, 6
s_lshl_b32 s{S_K1}, s{S_W}, 1
s_add_u32 s{S_K1}, s{S_K1}, 44
s_lshl_b32 s{S_K1}, s{S_K1}, 10
s_lshl_b32 s{S_FQ}, s{S_K1}, 1
s_mul_i32 s{S_FB0}, s6, 288
s_add_u32 s{S_FB0}, s{S_FB0}, s{S_A}
s_lshl_b32 s{S_FB0}, s{S_FB0}, 10
s_add_u32 s{S_FB1}, s{S_FB0}, {144*1024}
s_bitcmp1_b32 s{S_W}, 0
s_cselect_b32 s{S_B}, s{S_FB1}, s{S_FB0}
s_cselect_b32 s{S_FB1}, s{S_FB0}, s{S_FB1}
s_mov_b32 s{S_FB0}, s{S_B}
s_mul_i32 s{S_FA}, s7, 144
s_add_u32 s{S_FA}, s{S_FA}, s{S_A}
s_lshl_b32 s{S_FA}, s{S_FA}, 11
s_add_u32 s{S_FA}, s{S_FA}, {W2T}
s_lshr_b32 s{S_A}, s{S_W}, 1
s_lshl_b32 s{S_A}, s{S_A}, 3
s_mul_i32 s{S_OA}, s7, 144
s_add_u32 s{S_OA}, s{S_OA}, s{S_A}
s_add_u32 s{S_OA}, s{S_OA}, 112
s_lshl_b32 s{S_OA}, s{S_OA}, 11
s_add_u32 s{S_OA}, s{S_OA}, {W2T}
s_and_b32 s{S_B}, s{S_W}, 1
s_lshl_b32 s{S_B}, s{S_B}, 12
s_add_u32 s{S_OA}, s{S_OA}, s{S_B}
s_lshl_b32 s{S_OL}, s{S_W}, 12"""

S_C1, S_C2, S_CF, S_KS, S_QS, S_WL, S_WO = 16, 17, 24, 25, 54, 47, 59
QB0, QB1, KVA = 253, 254, 255
def more_addr():
    slot = ""
    for st_, dst in ((S_T0, QB0), (S_T1, QB1)):
        slot += f"""s_sub_u32 s6, 3, s{st_}
s_lshl_b32 s7, s{st_}, 2
s_lshr_b32 s7, 0x0132, s7
s_and_b32 s7, s7, 3
s_bitcmp1_b32 s{S_QU}, 0
s_cselect_b32 s6, s7, s6
s_cselect_b32 s{S_CF}, s7, 0
s_lshl_b32 s6, s6, 3
v_add_u32 v{dst}, s6, v{KVA}
"""
    return f"""v_and_b32 v{TP}, 31, v0
s_lshl_b32 s6, s{S_T0}, 9
s_add_u32 s6, s6, {L_CSA}
v_lshl_add_u32 v{TP}, v{TP}, 4, s6
s_lshl_b32 s6, s{S_RT}, 2
v_add_u32 v{TP+1}, s6, v{TP}
s_lshr_b32 s6, s{S_W}, 1
s_lshl_b32 s6, s6, 11
s_and_b32 s7, s{S_W}, 1
s_lshl_b32 s{S_WL}, s7, 6
s_add_u32 s{S_WL}, s{S_WL}, s6
s_add_u32 s{S_WL}, s{S_WL}, {L_W2T}
s_lshl_b32 s6, s{S_U}, 11
s_lshl_b32 s7, s7, 10
s_add_u32 s6, s6, s7
s_add_u32 s{S_WO}, s6, {W2T}
s_mov_b32 s{S_C2}, 0x00003f80
s_cmp_lt_u32 s{S_QU}, 2
s_cselect_b32 s{S_C1}, 0x3f803f80, s{S_C2}
s_cselect_b32 s{S_C2}, s{S_C2}, 0
s_lshl_b32 s6, s{S_RB}, 2
s_add_u32 s6, s6, s{S_RT}
s_lshl_b32 s{S_KS}, s6, 12
s_lshl_b32 s6, s6, 2
s_add_u32 s6, s6, s{S_QU}
s_lshl_b32 s6, s6, 2
s_add_u32 s6, s6, s{S_T0}
s_lshl_b32 s6, s6, 11
s_add_u32 s{S_QS}, s6, {QF}
s_and_b32 s6, s{S_QU}, 1
s_lshl_b32 s7, s6, 8
s_add_u32 s7, s7, 2048
s_lshl_b32 s6, s6, 10
s_cmp_lt_u32 s{S_QU}, 2
s_cselect_b32 s6, s6, s7
s_add_u32 s{S_KS}, s{S_KS}, s6
s_add_u32 s{S_KS}, s{S_KS}, {KVF}
v_and_b32 v{KVA}, 31, v0
v_lshlrev_b32 v{KVA}, 5, v{KVA}
s_lshl_b32 s{S_A}, s{S_RT}, 10
s_add_u32 s{S_A}, s{S_A}, {L_KVB}
v_add_u32 v{KVA}, s{S_A}, v{KVA}
{slot}v_lshrrev_b32 v{PL}, 5, v0
v_lshl_add_u32 v{KVA}, v{PL}, 3, v{KVA}
v_lshlrev_b32 v{G+1}, 2, v{PL}
v_bfe_u32 v{PL}, v0, 4, 1
v_add_u32 v{G+1}, v{G+1}, v{PL}
v_bfe_u32 v{PL}, v0, 2, 2
v_lshl_add_u32 v{G+1}, v{G+1}, 2, v{PL}
v_lshlrev_b32 v{G+1}, 5, v{G+1}
v_and_b32 v{PL}, 3, v0
v_lshl_add_u32 v{G+1}, v{PL}, 3, v{G+1}
v_add_u32 v{G+1}, s{S_A}, v{G+1}
s_cmp_lt_u32 s{S_QU}, 2
s_cselect_b64 vcc, -1, 0
v_cndmask_b32 v{KVA}, v{G+1}, v{KVA}, vcc"""

def add_more(e, side):
    lines = more_addr().split("\n")
    k = lines.index(f"s_mov_b32 s{S_C2}, 0x00003f80")
    side.add("\n".join(lines[:k]))
    if not P("QCOND", 1): side.add("\n".join(lines[k:])); return
    tmp = Side(e); tmp.add("\n".join(lines[k:]))
    n = P("QCH", 12)
    for i in range(0, len(tmp.q), n):
        def blk(part=tmp.q[i:i + n]):
            l = e.newlabel("qo")
            e(f"s_cmp_eq_u32 s{S_ISQ}, 1\ns_cbranch_scc0 {l}"); e("\n".join(part)); e.label(l)
        side.add([blk] + [lambda: None] * (P('WSR', 4) - 1))

def attn_scalars():
    return f"""s_lshl_b32 s{S_WB4}, s{S_W}, 12
s_lshl_b32 s6, s{S_CG}, 5
s_add_u32 s6, s6, s{S_RT}
s_lshl_b32 s6, s6, 12
s_add_u32 s{S_KVO}, s6, {KVF}
s_lshl_b32 s6, s{S_RB}, 2
s_add_u32 s6, s6, s{S_RT}
s_lshl_b32 s7, s6, 4
s_add_u32 s7, s7, s{S_J}
s_lshl_b32 s7, s7, 11
s_add_u32 s{S_QO}, s7, {QF}
s_mul_i32 s6, s6, 144
s_lshl_b32 s7, s{S_J}, 1
s_add_u32 s6, s6, s7
s_add_u32 s6, s6, s{S_CG}
s_add_u32 s6, s6, 112
s_lshl_b32 s{S_OO}, s6, 10"""

def phaseB(e):
    T = TM
    for f in (stage_dmas(e, 0)[1:] if not P('XE', 1) else stage_dmas(e, 0)[1::2]): f()
    if 'arr' in X:
        order = os.environ.get("ARR", "D1 D2 W0 D3 W1 D4 W2 D5 W3 D6 W4 W5 W6").split()
        for it in order:
            k = int(it[1:])
            if it[0] == 'D':
                for f in stage_dmas(e, k): f()
            elif it[0] == 'T': touch(e, k)()
            elif it[0] == 'G': gtouch(e, k)()
            elif it[0] == 'L': late_touch(e)
            elif it[0] == 'A': e.all_vm(); e.stamp()
            else: e.wvm(f"d{k}"); e("s_barrier"); e.stamp()
        srd(e, SRD_WS, P_WS, WS_END)
        e.stamp()
        e("s_branch K_fin2")
        global STAMPS_OFF; STAMPS_OFF = True
    if P("ROWL", 0): e.vm(f"buffer_load_dwordx4 {vr(RW,4)}, v{TX}, s[{SRD_X}:{SRD_X+3}], 0 offen", "row")
    e.stamp("xs2")
    if P("PRO", 1) == 1 and GT & 2:
        e(e.WT)
        e.vm(f"buffer_load_dword v{TD}, v{TA}, s[{SRD_T}:{SRD_T+3}], 0 offen", "t")
    e(f"s_mov_b32 s6, {EPO}\ns_load_dword s{S_NON}, s[{P_WS}:{P_WS+1}], s6")
    if TOUCH == 2: touch(e, 1)()
    PD1 = P("PD1", 1)
    if PD1 == 0:
        for f in stage_dmas(e, 1): f()
    if TOUCH == 1: touch(e, 1)()
    late_touch(e)
    e.stamp("xs3")
    e(f"""s_and_b32 s{S_RT}, s{S_W}, 3
s_lshr_b32 s{S_CG}, s{S_W}, 2
s_lshl_b32 s{S_T0}, s{S_CG}, 1
s_add_u32 s{S_T1}, s{S_T0}, 1
s_xor_b32 s{S_A}, s{S_RT}, s{S_CG}
s_mov_b32 s{S_MASK}, 0xffff0000
s_mov_b32 s{S_HI}, 0
s_mov_b32 s{S_HI+1}, -1
v_lshlrev_b32 v{VL16}, 4, v0
v_and_b32 v{T}, 31, v0
v_lshrrev_b32 v{T+1}, 5, v0
v_bfe_u32 v{T+2}, v0, 1, 3
v_xor_b32 v{T+2}, v{T+2}, v{T+1}
v_lshlrev_b32 v{T+2}, 4, v{T+2}
v_lshl_add_u32 v{T+2}, v{T}, 7, v{T+2}
s_lshl_b32 s6, s{S_RT}, 12
s_lshl_b32 s{S_B}, s{S_A}, 5
s_or_b32 s6, s6, s{S_B}
v_xor_b32 v{XA}, s6, v{T+2}""")
    for pos in range(1, 4): e(f"v_xor_b32 v{XA+pos}, {pos<<5}, v{XA}")
    e(f"""v_bfe_u32 v{G+1}, v0, 2, 2
v_lshl_add_u32 v{WB}, v{T+1}, 3, v{G+1}
v_lshlrev_b32 v{WB}, 8, v{WB}
s_lshl_b32 s{S_A}, s{S_A}, 12
v_add_u32 v{WB}, s{S_A}, v{WB}
s_cmp_eq_u32 s{S_ISQ}, 1
s_cselect_b32 s{S_A}, 56, 32
s_cselect_b32 s{S_B}, 5, 7
s_cselect_b32 s{S_C}, 0x88880000, 0
s_mov_b32 s{S_D}, s{S_C}
s_add_u32 s6, s{S_SH}, 4
v_bfe_u32 v{T}, v0, 4, 1
v_and_b32 v{T+1}, 3, v0
v_lshlrev_b32 v{T}, s{S_B}, v{T}
v_lshl_add_u32 v{T}, v{T+1}, 3, v{T}
v_lshlrev_b32 v{T+1}, s6, v{G+1}""")
    for i, st_ in ((0, S_T0), (1, S_T1)):
        e(f"""s_mul_i32 s6, s{st_}, s{S_A}
s_lshl_b32 s7, s{st_}, 3
s_sub_u32 s7, 248, s7
v_add_u32 v{T+2}, s6, v{T}
v_mov_b32 v{T+3}, s7
v_cndmask_b32 v{T+2}, v{T+2}, v{T+3}, s[{S_C}:{S_D}]
v_xor_b32 v{T+2}, v{T+2}, v{T+1}
v_add_u32 v{WA+4*i}, v{T+2}, v{WB}""")
    for i in range(2):
        for pos in range(1, 4): e(f"v_xor_b32 v{WA+4*i+pos}, {pos<<12}, v{WA+4*i}")
    e(f"""v_bfe_u32 v{T}, v0, 4, 1
v_and_b32 v{T+1}, 15, v0
v_cmp_eq_u32 vcc, v{T}, v{T+1}
v_mov_b32 v{T}, 0x3f803f80
s_nop 0
v_cndmask_b32 v{SEL}, 0, v{T}, vcc
v_mov_b32 v{SEL+1}, v{SEL}
v_mov_b32 v{SEL+2}, v{SEL}
v_mov_b32 v{SEL+3}, v{SEL}""")
    w2t_addr = f"""s_mul_i32 s6, s{S_RB}, 12
s_add_u32 s6, s6, s{S_LA}
s_lshl_b32 s7, s{S_RB}, 2
s_add_u32 s7, s7, s{S_QU}
s_min_u32 s7, s7, 59
s_add_u32 s{S_A}, s7, 136
s_cmp_eq_u32 s{S_ISQ}, 1
s_cselect_b32 s6, s{S_A}, s6
s_cselect_b32 s7, s7, 63
s_mul_hi_u32 s{S_A}, s6, {(2**32 + 27)//28}
s_mul_i32 s{S_B}, s{S_A}, 28
s_sub_u32 s{S_B}, s6, s{S_B}
s_lshr_b32 s{S_C}, s7, 3
s_and_b32 s{S_D}, s7, 7
s_add_u32 s{S_D}, s{S_D}, 28
s_cmp_lt_u32 s7, 56
s_cselect_b32 s6, s{S_C}, s{S_A}
s_cselect_b32 s{S_B}, s{S_D}, s{S_B}
s_lshl_b32 s{S_WF}, s6, 6
s_add_u32 s{S_WF}, s{S_WF}, s{S_B}
s_lshl_b32 s{S_A}, s{S_B}, 2
s_lshr_b32 s{S_B}, s{S_W}, 1
s_add_u32 s{S_A}, s{S_A}, s{S_B}
s_mul_i32 s{S_U}, s6, 144
s_add_u32 s{S_U}, s{S_U}, s{S_A}
s_lshl_b32 s{S_B}, s{S_A}, 4
s_sub_u32 s{S_C}, s{S_A}, 112
s_lshr_b32 s{S_D}, s{S_C}, 1
s_mul_i32 s{S_D}, s{S_D}, 28
s_and_b32 s{S_C}, s{S_C}, 1
s_lshl_b32 s{S_C}, s{S_C}, 4
s_add_u32 s{S_C}, s{S_C}, s{S_D}
s_mov_b32 s{S_D}, {448*896}
s_cmp_lt_u32 s{S_A}, 112
s_cselect_b32 s{S_B}, s{S_B}, s{S_C}
s_cselect_b32 s{SRD_T}, s{P_WD}, s{P_WO}
s_cselect_b32 s{SRD_T+1}, s{P_WD+1}, s{P_WO+1}
s_cselect_b32 s{SRD_T+2}, {1792*896}, s{S_D}
s_mov_b32 s{SRD_T+3}, 0x00020000
s_and_b32 s{S_C}, s{S_W}, 1
s_lshl_b32 s{S_C}, s{S_C}, 3
s_add_u32 s{S_B}, s{S_B}, s{S_C}
s_mul_i32 s{S_B}, s{S_B}, 896
s_lshl_b32 s6, s6, 7
s_add_u32 s{S_TO}, s{S_B}, s6
v_lshrrev_b32 v{TP}, 3, v0
v_mul_u32_u24 v{TP}, 896, v{TP}
v_and_b32 v{TP+1}, 7, v0
v_lshl_add_u32 v{VT}, v{TP+1}, 4, v{TP}"""
    late = (f"""s_add_u32 s{S_LB}, s{S_LA}, 12
s_add_u32 s6, s{S_QU}, 24
s_cmp_eq_u32 s{S_ISQ}, 1
s_cselect_b32 s{S_LB}, s6, s{S_LB}
""" if P("LBOLD", 1) else f"s_add_u32 s{S_LB}, s{S_J}, 12\n") + f"""v_lshrrev_b32 v{TP}, 4, v0
s_lshl_b32 s6, s{S_ROT}, 4
s_add_u32 s6, s6, s{S_W}
s_lshl_b32 s6, s6, 2
v_add_u32 v{TP+1}, s6, v{TP}
v_mul_u32_u24 v{TP+1}, 3584, v{TP+1}
v_lshlrev_b32 v{TP}, 1, v{TP}
v_xor_b32 v{TP}, v{TP}, v0
v_and_b32 v{GB}, 7, v{TP}
v_lshl_add_u32 v{TP+1}, v{GB}, 4, v{TP+1}
s_lshl_b32 s6, s{S_LB}, 7
v_add_u32 v{TP+1}, s6, v{TP+1}
v_and_b32 v{TP}, 8, v{TP}
v_cmp_eq_u32 vcc, 8, v{TP}
v_mov_b32 v{GB}, s{P_WG}
v_mov_b32 v{TP}, s{P_WU}
v_cndmask_b32 v{GB}, v{GB}, v{TP}, vcc
v_mov_b32 v{GB+1}, s{P_WG+1}
v_mov_b32 v{TP}, s{P_WU+1}
v_cndmask_b32 v{GB+1}, v{GB+1}, v{TP}, vcc
v_add_co_u32 v{GB}, vcc, v{GB}, v{TP+1}
v_bfe_u32 v{TP}, v0, 4, 1
v_and_b32 v{TP+1}, 3, v0
v_addc_co_u32 v{GB+1}, vcc, 0, v{GB+1}, vcc
v_lshlrev_b32 v{TP+1}, 3, v{TP+1}
v_lshl_add_u32 v{TP}, v{TP}, 7, v{TP+1}
v_bfe_u32 v{TP+1}, v0, 2, 2
v_lshlrev_b32 v{TP+1}, 5, v{TP+1}
v_xor_b32 v{TP}, v{TP}, v{TP+1}
s_lshl_b32 s6, s{S_T0}, 5
v_xor_b32 v{TP}, s6, v{TP}
v_add_u32 v{WB}, v{TP}, v{WB}
v_xor_b32 v{WB+1}, 32, v{WB}"""
    e(f"s_lshl_b32 s45, s{S_TG}, 3\ns_add_u32 s45, s45, {STAT}")
    def hoisted():
        e(late); e(w2t_addr); e(h_off(S_LA, H_A)); e(h_off(S_LB, H_B)); e(attn_scalars()); e(f_scalars())
    if HOIST == 1: hoisted()
    if HOIST == 4: e(late); e(w2t_addr)
    if PD1 == 1:
        for f in stage_dmas(e, 1): f()
    if HOIST == 2: hoisted()
    e.stamp("xs4")
    srd(e, SRD_WS, P_WS, WS_END)
    e("s_waitcnt lgkmcnt(0)")
    e(f"s_add_u32 s{S_NON}, s{S_NON}, 1")
    U = RW + 4; A_, B_ = RW, RW + 1
    e.wvm("row")
    for k in range(4): e(f"v_lshlrev_b32 v{U+2*k}, 16, v{RW+k}\nv_and_b32 v{U+2*k+1}, s{S_MASK}, v{RW+k}")
    e(f"v_add_f32 v{A_}, v{U}, v{U+1}\nv_mul_f32 v{B_}, v{U}, v{U}\nv_add_f32 v{A_+2}, v{U+2}, v{U+3}\nv_mul_f32 v{B_+2}, v{U+1}, v{U+1}")
    for k in (2, 4, 6): e(f"v_fmac_f32 v{B_}, v{U+k}, v{U+k}\nv_fmac_f32 v{B_+2}, v{U+k+1}, v{U+k+1}")
    e(f"""v_add_f32 v{U}, v{U+4}, v{U+5}
v_add_f32 v{U+1}, v{U+6}, v{U+7}
v_add_f32 v{A_}, v{A_}, v{A_+2}
v_add_f32 v{U}, v{U}, v{U+1}
v_add_f32 v{B_}, v{B_}, v{B_+2}
v_add_f32 v{A_}, v{A_}, v{U}
s_nop 0""")
    for d in ("row_shr:1 row_mask:0xf bank_mask:0xf bound_ctrl:0", "row_shr:2 row_mask:0xf bank_mask:0xf bound_ctrl:0",
              "row_shr:4 row_mask:0xf bank_mask:0xf bound_ctrl:0", "row_shr:8 row_mask:0xf bank_mask:0xf bound_ctrl:0",
              "row_bcast:15 row_mask:0xa bank_mask:0xf", "row_bcast:31 row_mask:0xc bank_mask:0xf"):
        e(f"v_add_f32_dpp v{B_}, v{B_}, v{B_} {d}\nv_add_f32_dpp v{A_}, v{A_}, v{A_} {d}\ns_nop 0")
    e(f"""v_mul_f32 v{A_}, {f2u(1.0/448)}, v{A_}
v_mul_f32 v{B_}, {f2u(1.0/448)}, v{B_}
v_fma_f32 v{B_}, -v{A_}, v{A_}, v{B_}
v_max_f32 v{B_}, 0, v{B_}
v_cvt_pk_bf16_f32 v{B_}, v{B_}, v{B_}
v_and_b32 v{B_}, s{S_MASK}, v{B_}
v_add_f32 v{B_}, {f2u(1e-5)}, v{B_}
v_cvt_pk_bf16_f32 v{B_}, v{B_}, v{B_}
v_and_b32 v{B_}, s{S_MASK}, v{B_}
v_sqrt_f32 v{B_}, v{B_}
v_mov_b32 v{U}, s45
v_cvt_pk_bf16_f32 v{A_}, -v{A_}, v{B_}
v_mov_b32 v{B_}, s{S_NON}
s_mov_b32 exec_lo, 0
s_mov_b32 exec_hi, 0x80000000""")
    if PD1 == 2:
        e("s_mov_b64 exec, -1")
        for f in stage_dmas(e, 1): f()
        e("s_mov_b32 exec_lo, 0\ns_mov_b32 exec_hi, 0x80000000")
    e.vm(f"buffer_store_dwordx2 {vr(A_,2)}, v{U}, {WS}, 0 offen {SC}", "sts")
    e("s_mov_b64 exec, -1")
    e.stamp("xs5")
    if P("PRIO", 2) & 1: e(f"s_cmp_ge_u32 s{S_W}, 4\ns_cbranch_scc0 K_np\ns_setprio 1\nK_np:")
    e.wvm("d0")
    e("s_barrier")
    e.stamp("start")

    half = {'x': [0]*4, 'w': [0]*4}
    def reads(gp):
        if gp < 28: sig, sub, pos, reg = gp // 4, 0, gp % 4, 16384
        else:
            g = gp - 28; sig, sub, pos = 7 + g // 8, (g // 4) & 1, g % 4; reg = sub * 16384
        sl = sig % 4; h = sl >> 1; imm = (sl & 1) * RING
        buf = WF + 8 * (gp % 3)
        pre = []
        if 28 <= gp < 32:
            pre = [f"v_xor_b32 v{WA+4*i+pos}, {(pos << 12) | (h << 16)}, v{WB+i}" for i in range(2)]
            half['w'][pos] = h
        elif half['w'][pos] != h:
            pre = [f"v_xor_b32 v{WA+4*i+pos}, 0x10000, v{WA+4*i+pos}" for i in range(2)]
            half['w'][pos] = h
        if gp < 28 and half['x'][pos] != h:
            pre.append(f"v_xor_b32 v{XA+pos}, 0x10000, v{XA+pos}"); half['x'][pos] = h
        out = [(lambda l=l: e(l)) for l in pre]
        if gp < 28: out.append(lambda: e.ds(f"ds_read_b128 {vr(XR+4*gp,4)}, v{XA+pos} offset:{imm}", f"r{gp}"))
        for i in range(2):
            for u in range(2):
                out.append(lambda i=i, u=u: e.ds(f"ds_read_b64_tr_b16 {vr(buf+4*i+2*u,2)}, v{WA+4*i+pos} offset:{imm+reg+u*1024}", f"r{gp}"))
        return out
    def position(gp, side, dmaq, nside, barrier=None):
        p2 = gp >= 28; g = gp - 28 if p2 else gp
        acc = ACCB if p2 else ACCA
        buf = WF + 8 * (gp % 3); xr = XR + 4 * g
        e.wds(f"r{gp}")
        e(mfma(acc, buf, xr, "0" if g == 0 else None))
        if barrier: barrier()
        R = reads(gp + 2) if gp + 2 < 56 else []
        nx = 1 if gp + 2 < 28 else 0
        pre = R[:max(0, len(R) - 4 - nx)]; xrd = R[len(pre):len(pre) + nx]; tr = R[len(pre) + nx:]
        na = (nside + 1) // 2; nb = nside // 2
        for f in pre: f()
        if P("ORD", 1) == 0:
            for f in xrd + tr[:2]: f()
            side.emit(na)
            e(mfma(acc + 16, buf + 4, xr, "0" if g == 0 else None))
            for f in tr[2:]: f()
            if g % 4 == 0: e(mfma16(CSA, SEL, buf, "0" if g == 0 else None))
            if dmaq: dmaq.pop(0)()
            side.emit(nb)
            if g % 4 == 0: e(mfma16(CSA + 4, SEL, buf + 4, "0" if g == 0 else None))
        else:
            for f in tr[:1]: f()
            side.emit(min(2, na))
            for f in tr[1:2]: f()
            side.emit(na - min(2, na))
            e(mfma(acc + 16, buf + 4, xr, "0" if g == 0 else None))
            for f in tr[2:3]: f()
            side.emit(min(2, nb))
            for f in tr[3:]: f()
            side.emit(nb - min(2, nb))
            if g % 4 == 0 and 'nosel' not in X: e(mfma16(CSA, SEL, buf, "0" if g == 0 else None))
            for f in xrd: f()
            if g % 4 == 0 and 'nosel' not in X: e(mfma16(CSA + 4, SEL, buf + 4, "0" if g == 0 else None))
            if dmaq: dmaq.pop(0)()
    def stats(gp):
        x = XR + 4 * gp; c = lambda r: "0" if gp == 0 else vr(r, 4)
        return [mfma16(ST, SEL, x, c(ST)),
                f"v_mfma_f32_4x4x4_16b_bf16 {vr(SQA,4)}, {vr(x,2)}, {vr(x,2)}, {c(SQA)}\nv_mfma_f32_4x4x4_16b_bf16 {vr(SQB,4)}, {vr(x+2,2)}, {vr(x+2,2)}, {c(SQB)}"]
    def cs_write(dst):
        o = dst - L_CSA
        return ["s_nop 1", lambda: (e("s_mov_b64 exec, 0xffff"),
                         e.ds(f"ds_write_b32 v{TP+1}, v{CSA} offset:{o}", "csw"), e.ds(f"ds_write_b32 v{TP+1}, v{CSA+1} offset:{o+256}", "csw"),
                         e.ds(f"ds_write_b32 v{TP+1}, v{CSA+4} offset:{o+512}", "csw"), e.ds(f"ds_write_b32 v{TP+1}, v{CSA+5} offset:{o+768}", "csw"),
                         e("s_mov_b64 exec, -1"))]
    def cs_read(src):
        o = src - L_CSA
        l = [lambda: e.ds(f"ds_read_b128 {vr(G,4)}, v{TP} offset:{o}", "csr"), lambda: e.ds(f"ds_read_b128 {vr(G+4,4)}, v{TP} offset:{o+512}", "csr")]
        m = [lambda: e.wds("csr")]
        for i in range(2):
            b = G + 4 * i
            m += [f"v_add_f32 v{b}, v{b}, v{b+1}", f"v_add_f32 v{b+2}, v{b+2}, v{b+3}"]
        for i in range(2): m += [f"v_add_f32 v{G+4*i}, v{G+4*i}, v{G+4*i+2}"]
        for i in range(2): m += [f"v_cvt_pk_bf16_f32 v{G+4*i+1}, v{G+4*i}, v{G+4*i}"]
        for i in range(2): m += [f"v_and_b32 v{G+4*i+1}, s{S_MASK}, v{G+4*i+1}"]
        for i in range(2): m += [f"v_sub_f32 v{G+4*i+1}, v{G+4*i}, v{G+4*i+1}"]
        for i in range(2): m += [f"v_cvt_pk_bf16_f32 v{G+4*i}, v{G+4*i}, v{G+4*i+1}"]
        for i in range(2): m += [f"v_cndmask_b32 v{ST+2*i}, v{G+4*i}, 0, s[{S_HI}:{S_HI+1}]"]
        return l, m

    KA = -2.0 * math.log2(math.e) * math.sqrt(2.0 / math.pi)
    GST = P("GST", 18)
    def stat_check():
        ok = e.newlabel("sok"); sp = e.newlabel("ssp")
        e.wvm("stl")
        e(f"v_cmp_ne_u32 vcc, s{S_NON}, v{BEXT+3}\ns_cbranch_vccz {ok}\ns_mov_b32 s{S_CNT}, {SPIN_MAX}")
        e.label(sp)
        e(f"""s_sleep 4
buffer_load_dwordx2 {vr(BEXT+2,2)}, v{G}, {WS}, 0 offen {SC}
s_sub_u32 s{S_CNT}, s{S_CNT}, 1
s_waitcnt vmcnt(0)
v_cmp_ne_u32 vcc, s{S_NON}, v{BEXT+3}
s_cmp_eq_u32 s{S_CNT}, 0
s_cbranch_scc1 {ok}
s_cbranch_vccnz {sp}""")
        if 'spincnt' in X: e(f"s_sub_u32 s88, {SPIN_MAX + 1000}, s{S_CNT}")
        e.label(ok)
    def after_exchange(side):
        l, m = cs_read(L_CSA)
        side.add(l)
        side.add(f"""v_and_b32 v{S_}, s{S_MASK}, v{BEXT+2}
v_and_b32 v{BEXT}, 0xffff, v{BEXT+2}
v_rcp_f32 v{R_}, v{S_}
v_lshl_or_b32 v{BEXT}, v{BEXT+2}, 16, v{BEXT}
v_mul_f32 v{I2}, v{S_}, v{S_}
v_mul_f32 v{AC}, {f2u(KA)}, v{R_}
v_mul_f32 v{BC}, v{R_}, v{R_}
v_mov_b32 v{ST+1}, 0
v_mul_f32 v{BC}, v{BC}, v{AC}
v_mov_b32 v{ST+3}, 0
v_mul_f32 v{BC}, {f2u(0.044715)}, v{BC}
v_mov_b32 v{BEXT+1}, 0
v_mov_b32 v{BEXT+2}, 0
v_mov_b32 v{BEXT+3}, 0""")
        side.add(m)
    for f in reads(0) + reads(1): f()
    side = Side(e); dmaq = list(stage_dmas(e, 2)) + ([touch(e, 2)] if TOUCH else [])
    w2side = Side(e)
    if GT & 4:
        w2side.add(f"""s_min_u32 s6, s{S_TG}, 895
s_cmp_ge_u32 s6, 448
s_cselect_b32 s{SRD_T}, s{P_WU}, s{P_WG}
s_cselect_b32 s{SRD_T+1}, s{P_WU+1}, s{P_WG+1}
s_cselect_b32 s7, 448, 0
s_mov_b32 s{SRD_T+2}, {448*3584}
s_sub_u32 s6, s6, s7
s_mul_i32 s6, s6, 3584
s_add_u32 s6, s6, 1536
v_and_b32 v{TA}, 15, v0
v_lshlrev_b32 v{TA}, 7, v{TA}""")
        w2side.add([lambda: e.vm(f"buffer_load_dword v{TD}, v{TA}, s[{SRD_T}:{SRD_T+3}], s6 offen", "t2")])
    if HOIST == 3: w2side.add(late); w2side.add(w2t_addr)
    if HOIST >= 3: w2side.add(h_off(S_LA, H_A)); w2side.add(h_off(S_LB, H_B)); w2side.add(attn_scalars()); w2side.add(f_scalars()); add_more(e, w2side)
    for gp in range(28):
        sig, pos = gp // 4, gp % 4
        bar = None
        if pos == 2:
            def bar(sig=sig):
                if sig == 6: side.flush(); stat_check(); e.wds("csw")
                e.wvm(f"d{sig+1}"); e("s_barrier")
                if sig == 6: after_exchange(side)
                assert not dmaq
                dmaq.extend(stage_dmas(e, sig + 3))
                if sig == 0 and TOUCH: dmaq.append(touch(e, 3))
        if gp == GST:
            side.add([f"s_lshl_b32 s{S_G}, s{S_RB}, 2", f"s_add_u32 s{S_G}, s{S_G}, s{S_RT}", f"s_lshl_b32 s{S_G}, s{S_G}, 8", f"s_add_u32 s{S_G}, s{S_G}, {STAT}",
                      f"v_and_b32 v{G}, 31, v0", f"v_lshl_add_u32 v{G}, v{G}, 3, s{S_G}",
                      lambda: e.vm(f"buffer_load_dwordx2 {vr(BEXT+2,2)}, v{G}, {WS}, 0 offen {SC}", "stl")])
        if gp == 25: assert not w2side.q; side.add(cs_write(L_CSA))
        n = len(side.q) if gp < 26 else P('NEX', 10)
        while len(dmaq) > 4 - ((pos + 2) % 4): dmaq.pop(0)()
        e.stamp(f"xp{gp}")
        w2side.emit(0 if gp < P('WS0', 0) else 5 if gp < 2 else P('WSR', 4))
        position(gp, side, dmaq, n, bar)
    assert not w2side.q
    side.add(["s_nop 1", mfma(ACCA, ST, BEXT), mfma(ACCA + 16, ST + 2, BEXT)])
    carry = list(side.q)
    e.stamp("p1")

    KA = -2.0 * math.log2(math.e) * math.sqrt(2.0 / math.pi); KB = KA * 0.044715
    def gelu(acc, so, tb, keep=None, pk=0):
        l = []
        if pk:
            pr = lambda r: vr(r, 2)
            for k in range(0, 8, 2): l.append(f"v_pk_mul_f32 {pr(tb+k)}, {pr(acc+k)}, {pr(acc+k)}")
            for k in range(0, 8, 2): l.append(f"v_pk_fma_f32 {pr(tb+k)}, {pr(tb+k)}, {pr(AC)}, {pr(AC)} op_sel:[0,1,0] op_sel_hi:[1,1,0]")
            for k in range(0, 8, 2): l.append(f"v_pk_mul_f32 {pr(tb+k)}, {pr(tb+k)}, {pr(acc+k)}")
            for k in range(0, 8, 2): l += [f"v_exp_f32 v{tb+k}, v{tb+k}", f"v_exp_f32 v{tb+k+1}, v{tb+k+1}", f"v_pk_mul_f32 {pr(acc+k)}, {pr(acc+k)}, {pr(acc+8+k)}"]
            for k in range(0, 8, 2): l.append(f"v_pk_fma_f32 {pr(tb+k)}, {pr(tb+k)}, {pr(I2-1)}, {pr(I2-1)} op_sel:[0,1,1] op_sel_hi:[1,1,1]")
            for k in range(8): l.append(f"v_rcp_f32 v{tb+k}, v{tb+k}")
            for k in range(0, 8, 2): l.append(f"v_pk_mul_f32 {pr(acc+k)}, {pr(acc+k)}, {pr(tb+k)}")
        else:
            for k in range(8): l.append(f"v_mul_f32 v{tb+k}, v{acc+k}, v{acc+k}")
            for k in range(8): l.append(f"v_fma_f32 v{tb+k}, v{tb+k}, v{BC}, v{AC}")
            for k in range(8): l.append(f"v_mul_f32 v{tb+k}, v{tb+k}, v{acc+k}")
            for k in range(8): l += [f"v_exp_f32 v{tb+k}, v{tb+k}", f"v_mul_f32 v{acc+k}, v{acc+k}, v{acc+8+k}"]
            for k in range(8): l.append(f"v_fma_f32 v{tb+k}, v{tb+k}, v{I2}, v{I2}")
            for k in range(8): l.append(f"v_rcp_f32 v{tb+k}, v{tb+k}")
            for k in range(8): l.append(f"v_mul_f32 v{acc+k}, v{acc+k}, v{tb+k}")
        if keep is not None:
            return l + [f"v_cvt_pk_bf16_f32 v{keep+k}, v{acc+2*k}, v{acc+2*k+1}" for k in range(4)]
        for k in range(4): l.append(f"v_cvt_pk_bf16_f32 v{acc+8+k}, v{acc+2*k}, v{acc+2*k+1}")
        l.append(lambda: e.vm(f"buffer_store_dwordx4 {vr(acc+8,4)}, v{VL16}, {WS}, s{so} offen {SC}", "hs"))
        return l
    def w2t_out(side):
        t = WB
        side.add(f"""v_lshrrev_b32 v{t}, 5, v0
v_bfe_u32 v{t+1}, v0, 2, 2
v_lshl_add_u32 v{t}, v{t}, 2, v{t+1}
v_lshlrev_b32 v{t}, 7, v{t}
v_bfe_u32 v{t+1}, v0, 4, 1
v_lshl_add_u32 v{t}, v{t+1}, 5, v{t}
v_and_b32 v{t+1}, 3, v0
v_lshl_add_u32 v{t}, v{t+1}, 3, v{t}
v_add_u32 v{t}, s{S_WL}, v{t}""")
        side.add([lambda: (e.ds(f"ds_read_b64_tr_b16 {vr(PL,2)}, v{t}", "w2tr"), e.ds(f"ds_read_b64_tr_b16 {vr(PL+2,2)}, v{t} offset:1024", "w2tr"))])
        return lambda: (e.wds("w2tr"), e.vm(f"buffer_store_dwordx4 {vr(PL,4)}, v{VL16}, {WS}, s{S_WO} offen {SC}", "w2ts"))
    GEND = P("GEND", 20); GW2 = P("GW2", 22); GFQ = P("GFQ", 14)
    GX, GBN, GFL, QRATE = P("GX", 0), P("GBN", 1), P("GFL", 6 if SPLITQ else 9), P("QRATE", 40)
    def pass2(qfirst):
        side = Side(e); dq = list(dmaq); side.q = list(carry); w2st = []
        for g in range(28):
            gp = 28 + g
            pre = []; wd = []; wv = []; post = []
            if g == 0:
                if not qfirst and 'nogelu' in X: pass
                elif not qfirst:
                    side.add(["s_nop 7"])
                    ga = gelu(ACCA, H_A, G); gb = gelu(ACCA + 16, H_A + 1, G)
                    k = P('HSD', 68)
                    side.add(ga[:-1] + gb[:k] + ga[-1:] + gb[k:] if not HLATE else ga[:-1] + gb[:-1] + [f"s_mov_b32 s{S_HA}, s{S_C}"])
                else: qkv_part1(side)
            if g == 6:
                post.append(lambda: dq.extend(stage_dmas(e, 10) + [lambda: (e(f"s_add_u32 m0, s{S_WB}, {L_W2T}\ns_nop 0"),
                            e.vm(f"buffer_load_dwordx4 v{VT}, s[{SRD_T}:{SRD_T+3}], s{S_TO} offen lds", "w2td"))]))
            if g == GW2: wv.append("w2td")
            if g in (6, 14, 22): wv.append(f"d{8 + g // 8}")
            if qfirst and g == GBN: pre.append(side.flush); wd.append("kvw"); post.append(lambda: qkv_part2(side))
            if qfirst and g == GFQ and SPLITQ:
                pre.append(side.flush); wv.append("qs")
                post.append(lambda: flag_store(e, f"""s_lshl_b32 s6, s{S_RB}, 5
s_add_u32 s6, s6, s{S_QU}
s_lshl_b32 s6, s6, 2
s_add_u32 s6, s6, {F_Q}
v_mov_b32 v{WB}, s6""", 1, WB))
            if qfirst and g == GFL:
                if SPLITQ: pre.append(lambda: e(f"s_waitcnt vmcnt({len(e.q['vm']) - e.mark['kvs']})")); wd.append("kvw")
                else: pre.append(side.flush); wv.append("qs")
                post.append(lambda: flag_store(e, f"""s_lshl_b32 s6, s{S_RB}, 2
s_add_u32 s6, s6, s{S_QU}
s_lshl_b32 s6, s6, 2
s_add_u32 s6, s6, {F_KV}
v_lshlrev_b32 v{WB}, 8, v0
v_add_u32 v{WB}, s6, v{WB}""", RKV, WB))
            if g == GW2 + 1:
                q0 = side.q; side.q = []; st = w2t_out(side); side.q += q0; w2st.append(st)
            if g == 24:
                side.flush()
                for f in w2st: f()
            if g == P("GKP", 27):
                poll_issue(e, f"""s_and_b32 s6, s2, {RKV-1}
s_lshl_b32 s6, s6, 8
s_add_u32 s6, s6, {F_KV}
v_lshl_add_u32 v{PL}, v0, 2, s6""" + (f"""
s_lshl_b32 s6, s{S_RB}, 5
s_add_u32 s6, s6, s{S_QU}
s_lshl_b32 s6, s6, 2
s_add_u32 s6, s6, {F_Q}
v_mov_b32 v{PL+2}, s6
buffer_load_dword v{PL+3}, v{PL+2}, {WS}, 0 offen {SC}""" if SPLITQ else ""), PL, PL + 1, "kvp")
            if g == 25 and 'nocs' not in X:
                side.flush(); side.add(cs_write(L_CSB))
            if g == 26 and 'nocs' not in X:
                pre.append(side.flush); wd.append("csw")
                def p():
                    l, m = cs_read(L_CSB); side.add(l); side.add(m)
                post.append(p)
            bar = None
            if wd or wv:
                def bar():
                    for f in pre: f()
                    if wd: e.wds(*wd)
                    if wv: e.wvm(*wv)
                    e("s_barrier")
                    for f in post: f()
            if qfirst: n = QRATE if g < 9 else 12
            else: n = -(-len(side.q) // max(1, GEND - g)) if g < GEND else 12
            e.stamp(f"xg{g}")
            position(gp, side, dq, n, bar)
        side.flush()
        e.stamp("xpe2")
        e("s_nop 1")
        e(mfma(ACCB, ST, BEXT)); e(mfma(ACCB + 16, ST + 2, BEXT))
    RQ = PL
    def qkv_part1(side):
        side.add([f"v_mul_f32 v{RQ}, {f2u(28 ** -0.5 * math.log2(math.e))}, v{R_}", "s_nop 9"])
        for i in range(2):
            for k in range(4): side.add([f"v_mul_f32 v{G+4*i+k}, v{ACCA+16*i+12+k}, v{R_}"])
        for i in range(2): side.add([f"v_cvt_pk_bf16_f32 v{G+4*i}, v{G+4*i}, v{G+4*i+1}", f"v_cvt_pk_bf16_f32 v{G+4*i+1}, v{G+4*i+2}, v{G+4*i+3}"])
        def wr():
            l = e.newlabel("nc")
            e(f"s_cmp_eq_u32 s{S_CF}, 3\ns_cbranch_scc0 {l}\nv_mov_b32 v{G+4}, s{S_C1}\nv_mov_b32 v{G+5}, s{S_C2}")
            e.label(l)
            e(f"s_mov_b64 exec, s[{S_HI}:{S_HI+1}]")
            e.ds(f"ds_write_b64 v{QB0}, {vr(G,2)}", "kvw"); e.ds(f"ds_write_b64 v{QB1}, {vr(G+4,2)}", "kvw")
            e("s_mov_b64 exec, -1")
        side.add([wr])
    def qkv_part2(side):
        def kv():
            l = e.newlabel("kvs"); lv = e.newlabel("kvv"); ls = e.newlabel("kvt")
            e(f"""s_cmp_eq_u32 s{S_CG}, 0
s_cbranch_scc0 {l}
s_cmp_lt_u32 s{S_QU}, 2
s_cbranch_scc0 {lv}
ds_read2_b64 {vr(G+4,4)}, v{KVA} offset0:0 offset1:2
v_mov_b32 v{G+2}, v{VL16}
s_branch {ls}""")
            e.label(lv)
            e(f"""ds_read_b64_tr_b16 {vr(G+4,2)}, v{KVA}
ds_read_b64_tr_b16 {vr(G+6,2)}, v{KVA} offset:256
v_lshrrev_b32 v{G+2}, 4, v0
v_and_b32 v{G+1}, 15, v0
v_lshlrev_b32 v{G+2}, 9, v{G+2}
v_lshl_add_u32 v{G+2}, v{G+1}, 4, v{G+2}""")
            e.label(ls)
            e(f"s_waitcnt lgkmcnt(0)\nbuffer_store_dwordx4 {vr(G+4,4)}, v{G+2}, {WS}, s{S_KS} offen {SC}")
            e.label(l)
            e.mark['kvs'] = len(e.q['vm'])
        side.add([kv])
        for i in range(2):
            acc = ACCA + 16 * i
            if P('PK', 0) & 4:
                for k in range(0, 16, 2): side.add([f"v_pk_mul_f32 {vr(acc+k,2)}, {vr(acc+k,2)}, {vr(RQ,2)} op_sel_hi:[1,0]"])
            else:
                for k in range(16): side.add([f"v_mul_f32 v{acc+k}, v{acc+k}, v{RQ}"])
            for k in range(8): side.add([f"v_cvt_pk_bf16_f32 v{acc+k}, v{acc+2*k}, v{acc+2*k+1}"])
            side.add([f"v_cndmask_b32 v{acc+6}, v{acc+6}, 0, s[{S_HI}:{S_HI+1}]", f"v_cndmask_b32 v{acc+7}, v{acc+7}, 0, s[{S_HI}:{S_HI+1}]",
                      lambda acc=acc, i=i: e.vm(f"buffer_store_dwordx4 {vr(acc,4)}, v{VL16}, {WS}, s{S_QS} offen offset:{2048*i} {SC}", "qs"),
                      lambda acc=acc, i=i: e.vm(f"buffer_store_dwordx4 {vr(acc+4,4)}, v{VL16}, {WS}, s{S_QS} offen offset:{2048*i+1024} {SC}", "qs")])
    e(f"s_cmp_eq_u32 s{S_ISQ}, 1\ns_cbranch_scc1 B_p2q")
    sn = e.snap(); hs = {k: list(v) for k, v in half.items()}; ns = e.nst
    pass2(False)
    e("s_branch B_join")
    e.label("B_p2q")
    e.nst = ns
    e.restore(sn); half.update({k: list(v) for k, v in hs.items()})
    pass2(True)
    e.label("B_join")
    e.q = {'ds': [], 'vm': []}; e.done = {'ds': 0, 'vm': 0}; e.mark['kvp'] = 0
    e.stamp("join")
    return gelu, h_off, w2t_out

LB0, LB1, VO = 3, 4, 5
Q, O, S0, PP, K, V0, V1 = 36, 44, 64, 96, 104, 112, 120
FA, FB = 128, 192
XRES = 244
S_KH, S_QT = S_CG, S_RT
F0 = P("F0", 8)
FP = P("FP", 2)
HBP = P("HBP", 14)
F3 = P("F3", 40)
WOP = 18

def kv_dma(e, st):
    def m(): e(f"s_add_u32 m0, s{S_WB4}, {((st + 3) % 4) * RING}" + ("\ns_nop 0" if st < 3 else ""))
    m.scalar = True
    l = [m]
    for f in range(4):
        l.append(lambda f=f: (e.vm(f"buffer_load_dwordx4 v{VL16}, {WS}, s{S_KVO} offen offset:{1024*f} {SC} lds", f"k{st}"),
                              e(f"s_add_u32 s{S_KVO}, s{S_KVO}, 16384") if f == 3 else None))
    return l

NB = P("NB", 3)
FBUF = [[FB + 16 * n + 4 * k for k in range(4)] for n in range(3)] + [[60, 124, 248, 252]]
def f_loads(e, q):
    bb = FBUF[q % NB]
    r = q if q < 6 else q - 6
    advA = advB = None
    if q == 5:
        advA = f"s_add_u32 s{S_FA}, s{S_FA}, s{S_FQ}"
        advB = f"s_add_u32 s{S_FB0}, s{S_FB0}, s{S_K1}\ns_add_u32 s{S_FB1}, s{S_FB1}, s{S_K1}"
    else:
        if r & 1: advA = f"s_add_u32 s{S_FA}, s{S_FA}, 4096"
        if (r & 3) == 3: advB = f"s_add_u32 s{S_FB0}, s{S_FB0}, 4096\ns_add_u32 s{S_FB1}, s{S_FB1}, 4096"
    return [lambda: e.vm(f"buffer_load_dwordx4 {vr(bb[0],4)}, v{VL16}, {WS}, s{S_FA} offen offset:{(r&1)*2048} {SC}", f"f{q}"),
            lambda: e.vm(f"buffer_load_dwordx4 {vr(bb[2],4)}, v{VL16}, {WS}, s{S_FB0} offen offset:{(r&3)*1024} {SC}", f"f{q}"),
            lambda: (e.vm(f"buffer_load_dwordx4 {vr(bb[1],4)}, v{VL16}, {WS}, s{S_FA} offen offset:{(r&1)*2048+1024} {SC}", f"f{q}"),
                     e(advA) if advA else None),
            lambda: (e.vm(f"buffer_load_dwordx4 {vr(bb[3],4)}, v{VL16}, {WS}, s{S_FB1} offen offset:{(r&3)*1024} {SC}", f"f{q}"),
                     e(advB) if advB else None)]
def f_mfma(q, k):
    bb = FBUF[q % NB]; r2, d2 = ((0, 0), (0, 1), (1, 1), (1, 0))[k]
    return mfma(FA + 32*r2 + 16*d2, bb[d2], bb[2 + r2], "0" if q == 0 else None)

OAREG = [8 + 4 * k for k in range(7)] + [FB + 4 * k for k in range(9)]
def oa_dma(e, n):
    def f():
        if n == 0: e(f"s_add_u32 m0, s{S_OL}, {3 * RING}\ns_nop 0")
        if n == 4: e(f"s_mov_b32 m0, s{S_OL}\ns_add_u32 s{S_OA}, s{S_OA}, 8192")
        e.vm(f"buffer_load_dwordx4 v{VL16}, {WS}, s{S_OA} offen offset:{(n & 3) * 1024} {SC} lds", "oa")
    return f
KVPRE = P('KVPRE', 2)
HDEF = P('HDEF', 1); HFL = P('HFL', 6 if HDEF else 2); S_HO = 47
def ha_flag(e):
    flag_store(e, f"""s_lshl_b32 s6, s{S_RB}, 5
s_add_u32 s6, s6, s{S_J}
s_lshl_b32 s6, s6, 2
s_add_u32 s6, s6, {F_H + 64}
s_lshl_b32 s{S_A}, s{S_WF}, 2
s_add_u32 s{S_A}, s{S_A}, {F_W}
s_sub_u32 s{S_A}, s{S_A}, s6
v_mul_lo_u32 v{PL}, v0, s{S_A}
v_add_u32 v{PL}, s6, v{PL}""", 2, PL)

def attn_setup(e, gelu, h_off, w2t_out):
    g0 = gelu(ACCB, S_C, G, 16 if HDEF else None, P('PK', 0) & 1); g1 = gelu(ACCB + 16, S_D, G + 8, 20 if HDEF else None, P('PK', 0) & 1)
    nfirst = P("GFIRST", 0)
    both = g0 + g1
    if P('GIL', 1): both = [x for p in zip(g0, g1) for x in p]
    for it in both[:nfirst]: it() if callable(it) else e(it)
    assert nfirst == 0
    poll_check(e, PL, PL + 1, "kvp", P("KSLEEP", 1))
    if SPLITQ: poll_check(e, PL + 2, PL + 3, "kvp", P("KSLEEP", 1))
    e.all_vm()
    e("s_barrier")
    e.stamp("xkv")
    if not HLATE: ha_flag(e)
    if P("KVT", 0):
        e(f"""s_lshr_b32 s6, s2, 3
s_lshl_b32 s6, s6, 3
s_add_u32 s6, s6, s{S_W}
s_lshl_b32 s6, s6, 10
s_add_u32 s6, s6, {KVF}
v_and_b32 v{TP}, 7, v0
v_lshlrev_b32 v{TP}, 7, v{TP}""")
        e.vm(f"buffer_load_dword v{TP+1}, v{TP}, {WS}, s6 offen {SC}", "kvt")
    side = Side(e)
    side.add(kv_dma(e, 0))
    side.add([lambda: e.vm(f"buffer_load_dwordx4 {vr(Q,4)}, v{VL16}, {WS}, s{S_QO} offen {SC}", "q"),
              lambda: e.vm(f"buffer_load_dwordx4 {vr(Q+4,4)}, v{VL16}, {WS}, s{S_QO} offen offset:1024 {SC}", "q")])
    side.emit(P("KPRE0", 7))
    if HLATE:
        l = e.newlabel("hl")
        e(f"s_cmp_eq_u32 s{S_ISQ}, 1\ns_cbranch_scc1 {l}")
        for it in range(2): e(f"buffer_store_dwordx4 {vr(ACCA+16*it+8,4)}, v{VL16}, {WS}, s{S_HA} offen offset:{1024*it} {SC}")
        e.label(l)
        e.mark['hl'] = len(e.q['vm'])
        if HLATE == 2:
            sd = Side(e); w2t_out(sd); sd.flush(); e.mark['hl'] = len(e.q['vm'])
    for st in range(1, KVPRE): side.add(kv_dma(e, st))
    for n, it in enumerate(both[nfirst:]):
        it() if callable(it) else e(it)
        if n % P('GSP', 1000) == P('GSP', 1000) - 1: side.emit(1)
        if n == 68: e.stamp("xg69")
    e.stamp("xgv")
    side.flush()
    e(f"""s_lshl_b32 s6, s{S_KH}, 14
v_add_u32 v{LB0}, s6, v{VL16}
v_add_u32 v{LB1}, 0x10000, v{LB0}""")

def rd(e, dst, tile, f, tag):
    sl = (tile // 4 + 3) % 4
    e.ds(f"ds_read_b128 {vr(dst,4)}, v{LB0 if sl < 2 else LB1} offset:{(sl & 1) * RING + (tile % 4) * 4096 + f * 1024}", tag)

def attn_loop(e, withF):
    e.stamp("xge")
    if P("PRIO", 2) == 2:
        l = e.newlabel("np"); e(f"s_cmp_ge_u32 s{S_W}, 4\ns_cbranch_scc0 {l}\ns_setprio 1"); e.label(l)
    if P("PRIO", 2) == 5: e("s_setprio 0")
    e.wvm("k0", "q")
    if HLATE: e(f"s_waitcnt vmcnt({len(e.q['vm']) - e.mark['hl']})")
    e.stamp("xk0"); e("s_barrier")
    if HLATE: ha_flag(e)
    e.stamp("astart")
    rd(e, K, 0, 0, "a"); rd(e, K + 4, 0, 1, "a"); rd(e, V0, 0, 2, "b")
    e.wds("a")
    e(mfma(S0, K, Q, "0")); e(mfma(S0, K + 4, Q + 4))
    rd(e, K, 1, 0, "b"); rd(e, K + 4, 1, 1, "b")
    e("s_nop 9")
    NT = 32
    fq = []
    nq = 0
    dq = []
    fi = 0
    need = {}; keep = []; done = [0]
    for i in range(NT):
        sc = S0 + 16 * (i & 1); sn = S0 + 16 * ((i + 1) & 1)
        v0c = V0 + 4 * (i & 1); v0n = V0 + 4 * ((i + 1) & 1)
        E = lambda r: f"v_exp_f32 v{r}, v{r}"
        C = lambda d, r: f"v_cvt_pk_bf16_f32 v{d}, v{r}, v{r+1}"
        def g(k): return [E(sc + 4*k + q) for q in range(4)] + [C(PP + 2*k, sc + 4*k), C(PP + 2*k + 1, sc + 4*k + 2)]
        g0, g1, g2, g3 = g(0), g(1), g(2), g(3)
        fm = []; fl = []
        if withF:
            if i == FP - 2:
                assert FP % 4 == 2
                fl = [lambda: poll_issue(e, f"""s_lshl_b32 s6, s{S_RB}, 7
s_add_u32 s6, s6, {F_H + 64}
s_and_b32 s7, s{S_J}, 7
s_lshl_b32 s7, s7, 8
s_add_u32 s7, s7, {F_W - 64}
v_lshl_add_u32 v{G}, v0, 2, s6
v_lshl_add_u32 v{G+1}, v0, 2, s7
v_mov_b32 v{G+2}, s6
s_mov_b32 s{S_A}, 0xffff0000
s_mov_b32 s{S_B}, 0x00000fff
s_mov_b32 s{S_C}, 0x00008888
s_mov_b32 s{S_D}, 0xfffff000
v_cndmask_b32 v{G}, v{G}, v{G+1}, s[{S_A}:{S_B}]
v_cndmask_b32 v{G}, v{G}, v{G+2}, s[{S_C}:{S_D}]""", G, G + 1, "hp")]
            if FP <= i < F0:
                if i == FP:
                    for q in range(NB - 1): fq += f_loads(e, q)
                n = -(-len(fq) // (F0 - i))
                fl = fq[:n]; fq = fq[n:]
            pb = []
            if i == HBP - 2:
                pb = [lambda: poll_issue(e, f"""s_lshl_b32 s6, s{S_RB}, 7
s_add_u32 s6, s6, {F_H}
v_and_b32 v{G}, 15, v0
v_lshl_add_u32 v{G}, v{G}, 2, s6""", G, G + 1, "hb")]
            if i == WOP - 2:
                pb = [lambda: poll_issue(e, f"""s_and_b32 s6, s{S_J}, 7
s_lshl_b32 s6, s6, 8
s_add_u32 s6, s6, {F_W + 112}
v_and_b32 v{G}, 7, v0
v_lshl_add_u32 v{G}, v{G}, 2, s6""", G, G + 1, "wo")]
            if i >= F0:
                cnt = 3 if i >= F3 else 2
                idx = list(range(fi, min(fi + cnt, 56))); fi += len(idx)
                fm = [(n // 4, n % 4) for n in idx]
                for (q, k) in fm:
                    if k == 0 and q + NB - 1 < 14:
                        if q + NB - 1 == 6: assert i > HBP
                        nl = f_loads(e, q + NB - 1)
                        for f in nl: need[id(f)] = 4 * q
                        keep.extend(nl); fq += nl
                n = min(len(fq), cnt)
                fl = fq[:n] + pb; fq = fq[n:]
        def em(x): x() if callable(x) else e(x)
        e.stamp(f"xa{i}")
        ex = [E(sc + k) for k in range(16)]; cv = [C(PP + k, sc + 2 * k) for k in range(8)]
        if i + KVPRE <= 2: dq += kv_dma(e, i + KVPRE)
        misc = []
        if i == 29: misc.append(comb_addr())
        if HDEF and i in (HDEF, HDEF + 1):
            misc.append(lambda i=i: e.vm(f"buffer_store_dwordx4 {vr(16 + 4*(i - HDEF),4)}, v{VL16}, {WS}, s{H_B} offen offset:{1024*(i - HDEF)} {SC}", "hs"))
        if withF and 22 <= i < 30: misc.append(oa_dma(e, i - 22))
        gate = withF and i == FP
        def take(n):
            for _ in range(n):
                if fl and need.get(id(fl[0]), 0) <= done[0]: em(fl.pop(0))
        per = -(-len(fl) // 2)
        for x in ex[0:2]: em(x)
        def fmf(n):
            if n < len(fm):
                q, k = fm[n]
                e.wvm(f"f{q}"); e(f_mfma(q, k)); done[0] += 1
        if fm and fm[0][1] == 0: e.wboth(f"f{fm[0][0]}")
        else: e.all_ds()
        if i > 0: e(mfma(O, V1, PP + 4))
        rd(e, V1, i, 3, "c")
        for x in ex[2:5]: em(x)
        fmf(0)
        if not gate: take(1 if fm else per)
        for x in cv[0:2] + ex[5:7]: em(x)
        if i + 1 < NT: e(mfma(sn, K, Q, "0")); rd(e, v0n, i + 1, 2, "c")
        for x in ex[7:10]: em(x)
        if i + 1 < NT: e(mfma(sn, K + 4, Q + 4))
        if i % 4 == 2 and i + 2 < NT:
            st = i // 4
            if withF and i == FP: poll_check(e, G, G + 1, "hp")
            if withF and i == HBP: poll_check(e, G, G + 1, "hb")
            if withF and i == WOP: poll_check(e, G, G + 1, "wo")
            while dq and i == 2: dq.pop(0)()
            e.wvm(*([f"k{st+1}"] + (["hs"] if i == HFL else []))); e("s_barrier")
            if i == HFL:
                flag_store(e, f"""s_lshl_b32 s6, s{S_RB}, 5
s_add_u32 s6, s6, s{S_J}
s_lshl_b32 s6, s6, 2
s_add_u32 s6, s6, {F_H}
v_mov_b32 v{G+2}, s6""", 1, G + 2)
            assert not dq
            if st + 3 <= 7: dq += kv_dma(e, st + 3)
        if i + 2 < NT: rd(e, K, i + 2, 0, "c"); rd(e, K + 4, i + 2, 1, "c")
        if dq and getattr(dq[0], "scalar", False): dq.pop(0)()
        for x in cv[2:4] + ex[10:12]: em(x)
        fmf(1)
        take(1 if fm else len(fl) if not gate else per)
        for x in ex[12:14] + cv[4:6]: em(x)
        e(mfma(O, v0c, PP, "0" if i == 0 else None))
        for _ in range(1 if i >= 2 else 2):
            if dq: dq.pop(0)()
        if len(fm) < 3: take(len(fl))
        for x in misc: em(x)
        for x in ex[14:16] + cv[6:7]: em(x)
        fmf(2); take(len(fl))
        fq = fl + fq
        em(cv[7])
        if i + 2 >= NT: e("s_nop 1")
    e.all_ds()
    e("s_nop 0")
    e(mfma(O, V1, PP + 4))
    return fi, fq

CMB = L_W2T
def comb_addr():
    T = G
    return f"""s_lshl_b32 s6, s{S_W}, 11
s_add_u32 s6, s6, {CMB}
v_add_u32 v{T}, s6, v{VL16}
v_xor_b32 v{T+1}, 8192, v{T}
s_lshl_b32 s6, s{S_W}, 8
s_add_u32 s6, s6, {CMB + 16384}
v_lshl_add_u32 v{T+2}, v0, 2, s6
v_or_b32 v{T+3}, 32, v0
s_lshl_b32 s6, s{S_QT}, 8
s_add_u32 s6, s6, {CMB + 16384}
v_lshl_add_u32 v{T+3}, v{T+3}, 2, s6
s_mov_b32 s{S_C}, {f2u(2.0 ** -64)}
s_mov_b32 s{S_D}, {f2u(2.0 ** 64)}
s_lshl_b32 s6, s{S_RB}, 9
s_add_u32 s6, s6, s{S_J}
s_lshl_b32 s6, s6, 2
s_add_u32 s6, s6, {F_O2}
v_lshl_add_u32 v6, v0, 7, s6
v_mov_b32 v7, s{S_NON}"""

def attn_finish(e, withF=False):
    T = G
    e.stamp("aend")
    hi = e.newlabel("chi"); jn = e.newlabel("cjn"); fb = e.newlabel("cfb"); bk = e.newlabel("cbk")
    e(f"s_cmp_eq_u32 s{S_KH}, 0\ns_nop 10")
    e.ds(f"ds_write_b32 v{T+2}, v{O+12}")
    e(f"s_cbranch_scc0 {hi}")
    e.ds(f"ds_write_b128 v{T}, {vr(O+8,4)}"); e.ds(f"ds_write_b128 v{T}, {vr(O+12,4)} offset:1024")
    e(f"s_branch {jn}")
    e.label(hi)
    e(f"ds_write_b128 v{T}, {vr(O,4)}\nds_write_b128 v{T}, {vr(O+4,4)} offset:1024")
    e.all_ds()
    for k in range(8): e(f"v_mov_b32 v{O+k}, v{O+8+k}")
    e.label(jn)
    if withF: e.wboth("oa")
    else: e.all_ds()
    e.stamp("xc0")
    e("s_barrier")
    e.stamp("xc1")
    e.ds(f"ds_read2st64_b32 {vr(PP,2)}, v{T+3} offset0:0 offset1:4", "l")
    e.ds(f"ds_read_b128 {vr(S0,4)}, v{T+1}", "h0"); e.ds(f"ds_read_b128 {vr(S0+4,4)}, v{T+1} offset:1024", "h1")
    e(f"s_mov_b32 s{S_A}, 0\ns_sub_u32 s{S_B}, 0, s{S_KH}")
    e.wds("l")
    e(f"""v_add_f32 v{PP}, v{PP}, v{PP+1}
v_rcp_f32 v{PP+1}, v{PP}
v_cmp_nle_f32 vcc, s{S_C}, v{PP}
v_cmp_nge_f32 s[{S_E}:{S_F}], s{S_D}, v{PP}""")
    e.all_ds()
    for k in range(8): e(f"v_add_f32 v{S0+k}, v{S0+k}, v{O+k}")
    e(f"s_or_b64 s[{S_E}:{S_F}], s[{S_E}:{S_F}], vcc")
    for k in range(8): e(f"v_mul_f32 v{S0+k}, v{S0+k}, v{PP+1}")
    def pack_store():
        for k in range(4): e(f"v_cvt_pk_bf16_f32 v{K+k}, v{S0+2*k}, v{S0+2*k+1}")
        e(f"""v_cndmask_b32 v{K+2}, v{K+2}, 0, s[{S_A}:{S_B}]
v_cndmask_b32 v{K+3}, v{K+3}, 0, s[{S_A}:{S_B}]""")
    pack_store()
    e.vm(f"buffer_store_dwordx4 {vr(K,4)}, v{VL16}, {WS}, s{S_OO} offen {SC}", "os")
    e(f"""v_add_f32 v{PP+2}, |v{S0}|, |v{S0+1}|
v_add_f32 v{PP+3}, |v{S0+2}|, |v{S0+3}|
v_add_f32 v{PP+4}, |v{S0+4}|, |v{S0+5}|
v_add_f32 v{PP+5}, |v{S0+6}|, |v{S0+7}|
v_add_f32 v{PP+2}, v{PP+2}, v{PP+3}
v_add_f32 v{PP+4}, v{PP+4}, v{PP+5}
s_mov_b32 s6, 0x7f7fffff
v_add_f32 v{PP+2}, v{PP+2}, v{PP+4}
v_cmp_nge_f32 vcc, s6, v{PP+2}
s_nop 1
s_or_b64 vcc, vcc, s[{S_E}:{S_F}]""")
    if 'forcefb' in X: e("s_mov_b64 vcc, 1")
    e(f"s_cbranch_vccnz {fb}")
    e.label(bk)
    FALLBACKS.append((fb, bk))
    e.stamp("xc2")

FALLBACKS = []
def fallback(e, fb, bk):
    l1 = e.newlabel("fb1"); l2 = e.newlabel("fb2"); l3 = e.newlabel("fb3")
    M = PP + 7
    e.label(fb)
    if 'fbcount' in X:
        e(f"""s_mov_b32 s80, s{P_DBG}
s_mov_b32 s81, s{P_DBG+1}
s_mov_b32 s82, 256
s_mov_b32 s83, 0x00020000
v_mov_b32 v{M}, 0
v_mov_b32 v{M-1}, 1
s_mov_b64 exec, 1
buffer_atomic_add v{M-1}, v{M}, s[80:83], 0 offen
v_mov_b32 v{M-1}, s2
buffer_store_dword v{M-1}, v{M}, s[80:83], 0 offen offset:4
v_mov_b32 v{M-1}, s{S_W}
buffer_store_dword v{M-1}, v{M}, s[80:83], 0 offen offset:8
v_mov_b32 v{M-1}, vcc_lo
buffer_store_dword v{M-1}, v{M}, s[80:83], 0 offen offset:12
v_mov_b32 v{M-1}, vcc_hi
buffer_store_dword v{M-1}, v{M}, s[80:83], 0 offen offset:16
v_mov_b32 v{M-1}, s{S_E}
buffer_store_dword v{M-1}, v{M}, s[80:83], 0 offen offset:20
v_mov_b32 v{M-1}, s{S_F}
buffer_store_dword v{M-1}, v{M}, s[80:83], 0 offen offset:24
buffer_store_dword v{PP}, v{M}, s[80:83], 0 offen offset:28
buffer_store_dword v{PP+2}, v{M}, s[80:83], 0 offen offset:32
s_waitcnt vmcnt(0)
s_mov_b64 exec, -1""")
    e(f"s_mov_b32 s6, {KVF}\nv_mov_b32 v{M}, 0xff800000")
    e.label(l1)
    e(f"""buffer_load_dwordx4 {vr(K,4)}, v{VL16}, {WS}, s6 offen {SC}
buffer_load_dwordx4 {vr(K+4,4)}, v{VL16}, {WS}, s6 offen offset:1024 {SC}
s_add_u32 s6, s6, 4096
s_waitcnt vmcnt(0)""")
    e(mfma(S0, K, Q, "0")); e(mfma(S0, K + 4, Q + 4))
    e("s_nop 11")
    for k in range(8): e(f"v_max3_f32 v{M}, v{M}, v{S0+2*k}, v{S0+2*k+1}")
    e(f"""s_cmp_lt_u32 s6, {KVF + 64*4096}
s_cbranch_scc1 {l1}
v_mov_b32 v{PP}, v{M}
s_nop 1
v_permlane32_swap_b32 v{PP}, v{M}
v_max_f32 v{M}, v{M}, v{PP}
v_cvt_pk_bf16_f32 v{PP}, v{M}, v{M}
v_and_b32 v{PP}, s{S_MASK}, v{PP}
v_sub_f32 v{PP+1}, v{M}, v{PP}
v_cvt_pk_bf16_f32 v{PP+2}, v{PP+1}, v{PP+1}
v_and_b32 v{PP+2}, s{S_MASK}, v{PP+2}
v_sub_f32 v{PP+1}, v{PP+1}, v{PP+2}
v_cvt_pk_bf16_f32 v{PP}, -v{PP}, -v{PP+2}
v_cvt_pk_bf16_f32 v{PP+1}, -v{PP+1}, 0
v_cndmask_b32 v{Q+6}, v{Q+6}, v{PP}, s[{S_HI}:{S_HI+1}]
v_cndmask_b32 v{Q+7}, v{Q+7}, v{PP+1}, s[{S_HI}:{S_HI+1}]
s_mov_b32 s6, {KVF}""")
    for k in range(16): e(f"v_mov_b32 v{O+k}, 0")
    e.label(l2)
    for f in range(4): e(f"buffer_load_dwordx4 {vr(K+4*f,4)}, v{VL16}, {WS}, s6 offen offset:{1024*f} {SC}")
    e("s_add_u32 s6, s6, 4096\ns_waitcnt vmcnt(0)")
    e(mfma(S0, K, Q, "0")); e(mfma(S0, K + 4, Q + 4))
    e("s_nop 11")
    for k in range(16): e(f"v_exp_f32 v{S0+k}, v{S0+k}")
    e("s_nop 0")
    for k in range(8): e(f"v_cvt_pk_bf16_f32 v{PP+k}, v{S0+2*k}, v{S0+2*k+1}")
    e("s_nop 1")
    e(mfma(O, K + 8, PP)); e(mfma(O, K + 12, PP + 4))
    e(f"""s_cmp_lt_u32 s6, {KVF + 64*4096}
s_cbranch_scc1 {l2}
s_nop 11
v_mov_b32 v{PP}, v{O+12}
v_mov_b32 v{PP+1}, v{O+12}
s_cmp_eq_u32 s{S_KH}, 0
s_nop 0
v_permlane32_swap_b32 v{PP}, v{PP+1}
v_rcp_f32 v{PP+1}, v{PP+1}
s_cbranch_scc1 {l3}""")
    for k in range(8): e(f"v_mov_b32 v{O+k}, v{O+8+k}")
    e.label(l3)
    e("s_nop 0")
    for k in range(8): e(f"v_mul_f32 v{S0+k}, v{O+k}, v{PP+1}")
    for k in range(4): e(f"v_cvt_pk_bf16_f32 v{K+k}, v{S0+2*k}, v{S0+2*k+1}")
    e(f"""v_cndmask_b32 v{K+2}, v{K+2}, 0, s[{S_A}:{S_B}]
v_cndmask_b32 v{K+3}, v{K+3}, 0, s[{S_A}:{S_B}]
buffer_store_dwordx4 {vr(K,4)}, v{VL16}, {WS}, s{S_OO} offen {SC}
s_waitcnt vmcnt(0)
s_branch {bk}""")

OFA, OFD = 6, 7
def o_signal(e):
    l = e.newlabel("os")
    e(f"s_cbranch_vccz {l}\ns_mov_b64 exec, 0xffff\nbuffer_store_dword v{OFD}, v{OFA}, {WS}, 0 offen {SC}\ns_mov_b64 exec, -1")
    e.label(l)

def o_flag(e):
    e.stamp("xc3")
    e(f"s_cmp_eq_u32 s{S_W}, 0\ns_cselect_b64 vcc, -1, 0")
    e.wvm("os"); e.stamp("xc4"); e("s_barrier")
    o_signal(e)

def tail(e, nq, fq):
    T = G
    SUM = 232
    RB = 64
    OBR = [96 + 4 * k for k in range(7)] + [36]
    AD = 248
    for f in fq: f()
    for n in range(nq, 56):
        q, k = n // 4, n % 4
        if k == 0 and q + NB - 1 < 14:
            for f in f_loads(e, q + NB - 1): f()
        e.wvm(f"f{q}"); e(f_mfma(q, k))
    e(f"""s_lshl_b32 s6, s{S_W}, 13
s_add_u32 s6, s6, {RING}
v_add_u32 v{AD+6}, s6, v{VL16}
v_xor_b32 v{AD+7}, 8192, v{AD+6}""")
    if nq < 56: e("s_nop 8")
    setup = Side(e)
    setup.add(f"""s_lshr_b32 s6, s{S_J}, 3
s_lshl_b32 s7, s{S_RB}, 1
s_add_u32 s6, s6, s7
s_and_b32 s{S_B}, s{S_W}, 1
s_lshl_b32 s{S_C}, s6, 1
s_add_u32 s{S_C}, s{S_C}, s{S_B}
s_mul_i32 s{S_C}, s{S_C}, 144
s_lshr_b32 s{S_A}, s{S_W}, 1
s_lshl_b32 s{S_D}, s{S_A}, 3
s_add_u32 s{S_D}, s{S_D}, 112
s_add_u32 s{S_C}, s{S_C}, s{S_D}
s_lshl_b32 s{S_C}, s{S_C}, 10
s_and_b32 s7, s{S_J}, 7
s_add_u32 s{S_D}, s{S_C}, 4096
s_lshl_b32 s{S_A}, s{S_A}, 14
s_lshl_b32 s{S_B}, s{S_B}, 13
s_add_u32 s{S_G}, s{S_A}, s{S_B}
s_add_u32 s{S_G}, s{S_G}, {RING}
v_and_b32 v{T}, 31, v0
v_lshrrev_b32 v{T+1}, 5, v0
v_and_b32 v{T+2}, 7, v0
v_xor_b32 v{T+1}, v{T+1}, v{T+2}
v_lshlrev_b32 v{T+1}, 4, v{T+1}
v_lshl_add_u32 v{T}, v{T}, 8, v{T+1}
v_add_u32 v{AD}, s{S_G}, v{T}
v_xor_b32 v{AD+1}, 32, v{AD}
v_xor_b32 v{AD+2}, 64, v{AD}
v_xor_b32 v{AD+3}, 96, v{AD}
s_lshl_b32 s6, s6, 6
s_lshl_b32 s{S_B}, s{S_W}, 3
s_add_u32 s6, s6, s{S_B}
v_lshrrev_b32 v{T}, 3, v0
v_add_u32 v{T+1}, s6, v{T}
v_mul_u32_u24 v{T+1}, 896, v{T+1}
v_lshl_add_u32 v{T+1}, v{T+2}, 4, v{T+1}
s_lshl_b32 s7, s7, 7
v_add_u32 v{VO}, s7, v{T+1}
v_lshlrev_b32 v{T+2}, 1, v{T+2}
v_xor_b32 v{T+2}, v{T+2}, v{T}
v_lshlrev_b32 v{T+2}, 4, v{T+2}
v_lshl_add_u32 v{T}, v{T}, 8, v{T+2}
s_lshl_b32 s6, s{S_W}, 11
s_add_u32 s6, s6, {RING}
v_add_u32 v{AD+4}, s6, v{T}
v_xor_b32 v{AD+5}, 16, v{AD+4}
v_add_u32 v{T+2}, {3 * RING}, v{T+3}""")
    e(f"s_lshr_b32 s6, s{S_W}, 1\ns_lshl_b32 s6, s6, 13\nv_add_u32 v{T+3}, s6, v{VL16}\ns_nop 0")
    oaq = [(lambda k=k: e.ds(f"ds_read_b128 {vr(OAREG[k],4)}, v{T+2 if k < 8 else T+3} offset:{(k & 7) * 1024}", "oar")) for k in range(16)]
    nw1 = P("NW1", 0)
    def oflag():
        e.stamp("xc3")
        e(f"s_cmp_eq_u32 s{S_W}, 0\ns_cselect_b64 vcc, -1, 0")
        e.wvm("os")
        if nw1 == 8: e.all_ds()
        e.stamp("xc4"); e("s_barrier")
        o_signal(e)
    for q in range(8):
        if q == nw1: oflag()
        e.ds(f"ds_write_b128 v{AD+6}, {vr(FA+32+4*q,4)} offset:{q*1024}")
        setup.emit(6)
    setup.flush()
    if nw1 == 8: oflag()
    if not P('OAL', 1):
        for f in oaq: f()
    e.vm(f"buffer_load_dwordx4 {vr(XRES,4)}, v{VO}, s[{SRD_X}:{SRD_X+3}], 0 offen", "xr")
    if nw1 < 8: e.all_ds(); e("s_barrier")
    for q in range(8): e.ds(f"ds_read_b128 {vr(RB+4*q,4)}, v{AD+7} offset:{q*1024}", f"p{q}")
    def olook():
        poll_issue(e, f"""s_lshl_b32 s6, s{S_RB}, 4
s_add_u32 s6, s6, s{S_J}
s_lshl_b32 s6, s6, 7
s_add_u32 s6, s6, {F_O2}
v_and_b32 v{T}, 15, v0
v_lshl_add_u32 v{T}, v{T}, 2, s6""", T, T + 1, "op")
    if P('OLATE', 1) == 0: olook()
    srd(e, SRD_OUT, P_OUT, 2048 * 896)
    for q in range(8):
        e.wds(f"p{q}")
        for k in range(4): e(f"v_add_f32 v{FA+4*q+k}, v{FA+4*q+k}, v{RB+4*q+k}")
    if P('OLATE', 1) == 2:
        for f in oaq: f()
        oaq = []
    if P('OLATE', 1): olook()
    e.stamp("t1")
    poll_check(e, T, T + 1, "op", P("OSLEEP", 1))
    e("s_barrier")
    e.stamp("t2")
    for k in range(8):
        e.vm(f"buffer_load_dwordx4 {vr(OBR[k],4)}, v{VL16}, {WS}, s{S_C if k < 4 else S_D} offen offset:{(k&3)*1024} {SC}", f"ob{k}")
    if P('OAL', 1):
        for f in oaq: f()
        e.all_ds()
    e.wvm("xr")
    for k in range(4): e(f"v_lshlrev_b32 v{SUM+2*k}, 16, v{XRES+k}\nv_and_b32 v{SUM+1+2*k}, s{S_MASK}, v{XRES+k}")
    for k in range(8):
        e.wvm(f"ob{k}")
        for d2 in range(2): e(mfma(FA + 16*d2, OAREG[2*k + d2], OBR[k]))
    e("s_nop 10")
    e.stamp("t3")
    for d2 in range(2):
        for q in range(4): e.ds(f"ds_write_b128 v{AD+q}, {vr(FA+16*d2+4*q,4)} offset:{d2*128}")
    e.all_ds()
    e("s_barrier")
    for p in range(4):
        e.ds(f"ds_read_b128 {vr(RB+8*p,4)}, v{AD+4} offset:{p*16384}", f"s{p}")
        e.ds(f"ds_read_b128 {vr(RB+8*p+4,4)}, v{AD+5} offset:{p*16384}", f"s{p}")
    for p in range(4):
        e.wds(f"s{p}")
        for k in range(8): e(f"v_add_f32 v{SUM+k}, v{SUM+k}, v{RB+8*p+k}")
    for k in range(4): e(f"v_cvt_pk_bf16_f32 v{XRES+k}, v{SUM+2*k}, v{SUM+1+2*k}")
    e.vm(f"buffer_store_dwordx4 {vr(XRES,4)}, v{VO}, s[{SRD_OUT}:{SRD_OUT+3}], 0 offen {os.environ.get('OUTF', '')}")

DOC = """;
;            one extra MFMA, 1/std folded into the GELU constants); h, q, k, v and the transposed down / output
;  tail    : o of the 16 heads, output projection, cross-wave reduction, residual, store
"""
def build():
    e = Em()
    kn = NAME + "_kernel"
    e.a.raw(f".globl {kn}\n.p2align 8\n.type {kn},@function")
    e.label(kn)
    prologue(e)
    gelu, h_off, w2t_out = phaseB(e)
    attn_setup(e, gelu, h_off, w2t_out)
    e(f"s_and_b32 s6, s{S_J}, 7\ns_cmp_eq_u32 s6, 7\ns_cbranch_scc1 C_noF")
    sn = e.snap(); ns = e.nst
    nq, fq = attn_loop(e, True)
    attn_finish(e, True)
    tail(e, nq, fq)
    nend = e.nst
    e("s_branch K_fin")
    e.label("C_noF")
    e.restore(sn); e.nst = ns
    attn_loop(e, False)
    attn_finish(e)
    o_flag(e)
    e(f"""s_cmp_eq_u32 s{S_RB}, 0
s_cbranch_scc0 C_noF_done
s_cmp_eq_u32 s{S_J}, 7
s_cbranch_scc0 C_noF_done
s_cmp_eq_u32 s{S_W}, 0
s_cbranch_scc0 C_noF_done""")
    for k in range(4):
        e(f"""v_lshrrev_b32 v{G}, 4, v0
v_and_b32 v{G+1}, 15, v0
v_lshlrev_b32 v{G}, 7, v{G}
v_lshl_add_u32 v{G}, v{G+1}, 2, v{G}
v_add_u32 v{G}, {F_H + 512*k}, v{G}""")
        e(f"buffer_load_dword v{G+1}, v{G}, {WS}, 0 offen {SC}"); e.mark[f"ep{k}"] = len(e.q['vm'])
        poll_check(e, G, G + 1, f"ep{k}")
    e(f"v_mov_b32 v{G}, {EPO}\nv_mov_b32 v{G+1}, s{S_NON}\ns_mov_b64 exec, 1\nbuffer_store_dword v{G+1}, v{G}, {WS}, 0 offen {SC}\ns_mov_b64 exec, -1")
    e.label("C_noF_done")
    while e.nst < nend and not STAMPS_OFF: e.stamp()
    e.label("K_fin")
    if os.environ.get("AMPAT") == "xfin": e("s_waitcnt vmcnt(0)"); e.stamp("xfin")
    if os.environ.get("AMPAT"):
        e("""s_waitcnt vmcnt(0)
s_memrealtime s[92:93]
s_waitcnt lgkmcnt(0)
s_sub_u32 s7, s94, s96
s_mul_i32 s7, s7, 10
K_amp:
s_sleep 1
s_memrealtime s[98:99]
s_waitcnt lgkmcnt(0)
s_sub_u32 s6, s98, s92
s_cmp_lt_u32 s6, s7
s_cbranch_scc1 K_amp""")
    if 'stdiag' in X:
        e("""s_memtime s[92:93]
s_waitcnt lgkmcnt(0)
K_sd:
s_sleep 2
s_memtime s[90:91]
s_waitcnt lgkmcnt(0)
s_sub_u32 s6, s90, s92
s_cmp_lt_u32 s6, s94
s_cbranch_scc1 K_sd""")
    if 'fix' in X:
        e("""K_fx:
s_sleep 1
s_memrealtime s[98:99]
s_waitcnt lgkmcnt(0)
s_sub_u32 s6, s98, s96
s_cmp_lt_u32 s6, 10000
s_cbranch_scc1 K_fx""")
    if 'amp' in X:
        e("""s_waitcnt vmcnt(0)
s_memrealtime s[98:99]
s_waitcnt lgkmcnt(0)
s_sub_u32 s7, s98, s96
s_mul_i32 s7, s7, 10
K_fx:
s_sleep 1
s_memrealtime s[98:99]
s_waitcnt lgkmcnt(0)
s_sub_u32 s6, s98, s96
s_cmp_lt_u32 s6, s7
s_cbranch_scc1 K_fx""")
    if STAMPS:
        e.stamp()
        e.label("K_fin2")
        e("s_memrealtime s[98:99]\ns_waitcnt lgkmcnt(0) vmcnt(0)")
        e(f"""s_mov_b32 s40, s{P_WS}
s_mov_b32 s41, s{P_WS+1}
s_mov_b32 s42, 0x10000000
s_mov_b32 s43, 0x00020000
s_lshl_b32 s6, s2, 3
s_add_u32 s6, s6, s{S_W}
s_lshl_b32 s6, s6, 6
s_add_u32 s6, s6, {STAMP_WS}
v_mov_b32 v2, s96
v_mov_b32 v3, s98""")
        for k in range(10): e(f"v_mov_b32 v{4+k}, {'s%d' % (76+2*k) if k < e.nst else 0}")
        e("v_mov_b32 v1, 0\ns_mov_b64 exec, 1")
        for q in range(3): e(f"buffer_store_dwordx4 v[{2+4*q}:{5+4*q}], v1, s[40:43], s6 offen offset:{16*q}")
    e("s_endpgm")
    for fb, bk in FALLBACKS: fallback(e, fb, bk)
    e.label("K_end")
    e("s_endpgm")
    probs = check_hazards(e.a.lines, "k")
    hdr = open("cdna_kernels/" + NAME + ".s.ref").read().split("; Override launch")[0]
    out = hdr + f"; @launch grid=(256,1,1) block=(512,1,1) lds={LDS_BYTES}\n"
    out += DOC + '.amdgcn_target "amdgcn-amd-amdhsa--gfx950"\n.text\n' + e.a.text()
    out += f""".section .rodata,"a"
.p2align 6
.amdhsa_kernel {kn}
  .amdhsa_next_free_vgpr 256
  .amdhsa_next_free_sgpr 102
  .amdhsa_accum_offset 256
  .amdhsa_group_segment_fixed_size 0
  .amdhsa_kernarg_size 96
  .amdhsa_user_sgpr_count 2
  .amdhsa_user_sgpr_kernarg_segment_ptr 1
  .amdhsa_system_sgpr_workgroup_id_x 1
  .amdhsa_float_denorm_mode_32 3
.end_amdhsa_kernel
"""
    return out, probs

if __name__ == "__main__":
    out, probs = build()
    for p in probs: print("HAZARD", p, file=sys.stderr)
    open(sys.argv[1] if len(sys.argv) > 1 else "cdna_kernels/" + NAME + ".s", "w").write(out)
```

```python
import sys, os, math, struct
from asmlib import *
X = set(os.environ.get('XFLAGS', '').split(','))
def P(name, default): return int(os.environ.get(name, default))
NAME = "parallel_sum__grouped_kv_mqa__glu_gated_geglu__prompt"
def f2u(x): return struct.unpack("<I", struct.pack("<f", x))[0]

A2F = 0
W2T = 64 * 144 * 1024
QF  = W2T + 7 * 144 * 2048
KVF = QF + 64 * 16 * 2048
FLG = KVF + 64 * 4096
RKV = P("RKV", 16)
F_W  = FLG
F_H  = FLG + 2048
F_O  = FLG + 4096
EPO  = FLG + 6144
F_Q  = FLG + 4096
SPLITQ = P('SPLITQ', 1)
F_KV = FLG + 8192
F_O2 = F_KV + 256 * RKV
STAT = F_O2 + 32768
WS_END = STAT + 2048 * 8
OOB = 0x7ffffff0
P_X, P_WQ, P_WK, P_WV, P_WO, P_BX, P_WG, P_WU, P_WD, P_OUT, P_DBG, P_WS = 8, 10, 12, 14, 16, 18, 20, 22, 24, 26, 28, 30
SRD_X, SRD_WS, SRD_T, SRD_PC = 32, 36, 40, 44
SRD_OUT = SRD_T
S_W, S_RB, S_J = 3, 4, 5
(S_WB, S_MASK, S_XO, S_XO2, S_RT, S_CG, S_MUL, S_T0, S_T1, S_U, S_NON, S_LA, S_LB, S_TO, S_QU) = range(48, 63)
S_HI = 64
S_A, S_B, S_C, S_D, S_E, S_F = 66, 67, 68, 69, 70, 71
S_G, S_H2 = 72, 73
S_CNT = 74
WS = f"s[{SRD_WS}:{SRD_WS+3}]"
SC = "sc1"
STAMPS = bool(os.environ.get("STAMPS"))
STAMP_WS = 200 * 1024 * 1024
SPIN_MAX = 1 << 21
STAMPS_OFF = False

class Em:
    def __init__(s):
        s.a = Asm(); s.q = {'ds': [], 'vm': []}; s.done = {'ds': 0, 'vm': 0}; s.nst = 0; s.uid = 0; s.mark = {}
    def __call__(s, t): s.a(t)
    def label(s, l): s.a.label(l)
    def ds(s, ins, tag=None): s.a(ins); s.q['ds'].append(tag)
    def vm(s, ins, tag=None): s.a(ins); s.q['vm'].append(tag)
    def _n(s, k, tags, cap):
        idx = -1
        for t in tags:
            ii = [i for i, x in enumerate(s.q[k]) if x == t]
            if not ii and 'nodma' in X: continue
            assert ii, f"tag {t} never issued"
            idx = max(idx, ii[-1])
        if idx < s.done[k]: return None
        n = min(len(s.q[k]) - 1 - idx, cap)
        s.done[k] = len(s.q[k]) - n
        return n
    def wds(s, *tags):
        n = s._n('ds', tags, 15)
        if n is not None: s.a(f"s_waitcnt lgkmcnt({n})")
    def wvm(s, *tags):
        n = s._n('vm', tags, 63)
        if n is not None: s.a(f"s_waitcnt vmcnt({n})")
    def wboth(s, *tags):
        n = s._n('vm', tags, 63)
        s.a("s_waitcnt lgkmcnt(0)" if n is None else f"s_waitcnt vmcnt({n}) lgkmcnt(0)"); s.done['ds'] = len(s.q['ds'])
    def all_ds(s): s.a("s_waitcnt lgkmcnt(0)"); s.done['ds'] = len(s.q['ds'])
    def all_vm(s): s.a("s_waitcnt vmcnt(0)"); s.done['vm'] = len(s.q['vm'])
    def snap(s): return ({k: list(v) for k, v in s.q.items()}, dict(s.done))
    def restore(s, sn): s.q = {k: list(v) for k, v in sn[0].items()}; s.done = dict(sn[1])
    def stamp(s, name=None):
        if name is not None and name == os.environ.get("IDLEAT"): s.a("s_sleep 32")
        if name is not None and name == os.environ.get("AMPAT"):
            s.a("s_memrealtime s[94:95]"); s.all_ds()
        sel = os.environ.get("STSEL")
        if sel is not None and name is not None and name not in sel.split(","): return
        if sel is None and name is not None and name.startswith("x"): return
        if STAMPS and not STAMPS_OFF:
            assert s.nst < 10
            s.a(f"{'s_memrealtime' if os.environ.get('RT') else 's_memtime'} s[{76+2*s.nst}:{77+2*s.nst}]"); s.nst += 1
            s.all_ds()
    def newlabel(s, p): s.uid += 1; return f"{p}_{s.uid}"

def srd(e, d, p, nbytes):
    e(f"s_mov_b32 s{d}, s{p}\ns_mov_b32 s{d+1}, s{p+1}\ns_mov_b32 s{d+2}, {nbytes}\ns_mov_b32 s{d+3}, 0x00020000")
def mfma(d, A, B, C=None):
    return f"v_mfma_f32_32x32x16_bf16 {vr(d,16)}, {vr(A,4)}, {vr(B,4)}, {vr(d,16) if C is None else C}"
def mfma16(d, A, B, C=None):
    return f"v_mfma_f32_16x16x32_bf16 {vr(d,4)}, {vr(A,4)}, {vr(B,4)}, {vr(d,4) if C is None else C}"

class Side:
    def __init__(s, e): s.e = e; s.q = []
    def add(s, items):
        if isinstance(items, str):
            raw = [l.strip() for l in items.strip().split("\n") if l.strip()]
            items = []
            for l in raw:
                if l.startswith("s_cselect"): items[-1] += "\n" + l
                else: items.append(l)
        s.q += list(items)
    def emit(s, n):
        while n > 0 and s.q:
            it = s.q.pop(0)
            if callable(it): it()
            else: s.e(it)
            n -= 1
    def flush(s): s.emit(1 << 30)

def flag_store(e, addr_lines, nlanes, vt):
    l = e.newlabel("fl")
    e(f"s_cmp_eq_u32 s{S_W}, 0\ns_cbranch_scc0 {l}")
    e(addr_lines)
    e(f"v_mov_b32 v{vt+1}, s{S_NON}\ns_mov_b64 exec, {(1 << nlanes) - 1}\nbuffer_store_dword v{vt+1}, v{vt}, {WS}, 0 offen {SC}\ns_mov_b64 exec, -1")
    e.label(l)

def poll_issue(e, addr_lines, vaddr, vdat, tag):
    l = e.newlabel("pi")
    e(f"s_cmp_eq_u32 s{S_W}, 0\ns_cbranch_scc0 {l}")
    e(addr_lines)
    e(f"buffer_load_dword v{vdat}, v{vaddr}, {WS}, 0 offen {SC}")
    e.label(l)
    e.mark[tag] = len(e.q['vm'])

def poll_check(e, vaddr, vdat, tag, sleep=None):
    ok = e.newlabel("pok"); sp = e.newlabel("psp")
    e(f"s_cmp_eq_u32 s{S_W}, 0\ns_cbranch_scc0 {ok}")
    e(f"s_waitcnt vmcnt({min(63, len(e.q['vm']) - e.mark[tag])})")
    e(f"v_cmp_ne_u32 vcc, s{S_NON}, v{vdat}\ns_cbranch_vccz {ok}\ns_mov_b32 s{S_CNT}, {SPIN_MAX}")
    e.label(sp)
    e(f"""s_sleep {P('SLEEP', 4) if sleep is None else sleep}
buffer_load_dword v{vdat}, v{vaddr}, {WS}, 0 offen {SC}
s_sub_u32 s{S_CNT}, s{S_CNT}, 1
s_waitcnt vmcnt(0)
v_cmp_ne_u32 vcc, s{S_NON}, v{vdat}
s_cmp_eq_u32 s{S_CNT}, 0
s_cbranch_scc1 {ok}
s_cbranch_vccnz {sp}""")
    if 'spincnt' in X and tag in SPINIDX: e(f"s_sub_u32 s{78 + 2 * SPINIDX[tag]}, {SPIN_MAX + 1000}, s{S_CNT}")
    e.label(ok)
SPINIDX = {'kvp': 0, 'hp': 1, 'hb': 2, 'wo': 3, 'op': 4}

RING = 32768
L_W2T = 131072
L_CSA = L_W2T + 8192
L_CSB = L_CSA + 2048
L_ST  = L_CSB + 2048
L_KVB = L_ST + 4096
L_FLG = L_KVB + 4096
LDS_BYTES = L_FLG + 256

VL16, VT, VX, GA, GS = 1, 2, 3, 4, 6
XA, WA = 8, 12
ST, SEL, CSA, WF, TM = 20, 24, 28, 36, 60
ACCA, ACCB, XR, G = 64, 96, 128, 240
SQA, SQB, TP = 60, 240, 248
WB, GB, PL = 250, 102, 252
R_, S_, AC, BC, I2 = 8, 9, 10, 11, 3
BEXT = 60


TA, TS, TX, TD = 96, 98, 99, 100
S_ISQ, S_SH = 63, 75
RW = 104
def w_source(row, c, dst, gs, t0):
    return f"""v_cmp_le_u32 vcc, s{S_A}, v{c}
v_mul_lo_u32 v{dst}, v{row}, s{S_B}
v_lshl_add_u32 v{dst}, v{c}, 4, v{dst}
v_add_u32 v{dst}, s{S_C}, v{dst}
v_subrev_u32 v{c}, s{S_A}, v{c}
v_lshlrev_b32 v{c}, s{S_G}, v{c}
v_mul_lo_u32 v{t0}, v{row}, s{S_D}
v_add3_u32 v{t0}, v{t0}, v{c}, s{S_H2}
v_cndmask_b32 v{dst}, v{dst}, v{t0}, vcc
v_mov_b32 v{gs}, s{S_B}
v_mov_b32 v{t0}, s{S_D}
v_cndmask_b32 v{gs}, v{gs}, v{t0}, vcc
v_lshlrev_b32 v{gs}, 5, v{gs}"""

ROTS = {0: [0]*8, 1: [0, 3, 2, 5, 4, 0, 6, 2], 2: [0, 3, 3, 0, 0, 3, 3, 0], 3: [0, 1, 2, 3, 4, 5, 6, 0], 4: [0, 4, 1, 5, 2, 6, 3, 0]}
ROTTAB = sum(v << (4 * i) for i, v in enumerate(ROTS[P("ROT", 0)]))
S_ROT = 47
S_KVO, S_WB4, S_FA, S_FB0, S_FB1, S_OO, S_FQ, S_K1, S_OA, S_OL = 15, 18, 19, 20, 21, 22, 23, 28, 29, 44
HLATE = P('HLATE', 0); S_HA = 45
S_WF = 46
RPAR, RBIT = P("RPAR", 0), P("RBIT", 0)
RPARCODE = "" if not RPAR else f"""
s_lshr_b32 s{S_F}, s2, 3
s_lshr_b32 s{S_T0}, s2, 6
s_xor_b32 s{S_F}, s{S_F}, s{S_T0}
s_and_b32 s{S_F}, s{S_F}, {RBIT or 1}
s_mul_i32 s{S_F}, s{S_F}, {RPAR}
s_add_u32 s{S_XO}, s{S_XO}, s{S_F}
s_cmp_ge_u32 s{S_XO}, 7
s_cselect_b32 s{S_F}, 7, 0
s_sub_u32 s{S_XO}, s{S_XO}, s{S_F}"""
def prologue(e):
    T = TM
    ROTCODE = f"""s_and_b32 s{S_XO}, s2, 7
s_lshl_b32 s{S_XO}, s{S_XO}, 2
s_lshr_b32 s{S_XO}, {ROTTAB:#x}, s{S_XO}
s_and_b32 s{S_XO}, s{S_XO}, 7{RPARCODE}
s_mov_b32 s{S_ROT}, s{S_XO}
s_lshl_b32 s{S_F}, s{S_XO}, 6
s_lshl_b32 s{S_XO}, s{S_XO}, 7
v_add_u32 v{T+2}, s{S_F}, v{T+2}
""" if any(ROTS[P('ROT', 0)]) or RPAR else f"s_mov_b32 s{S_ROT}, 0\n"
    e(f"s_cmp_ge_u32 s2, 256\ns_cbranch_scc1 K_end")
    if STAMPS or 'fix' in X or 'amp' in X or os.environ.get("AMPAT"): e("s_memrealtime s[96:97]")
    e.stamp()
    if 'spincnt' in X:
        for k in range(6): e(f"s_movk_i32 s{78 + 2*k}, 1000")
        e.nst = 7
    e("s_load_dwordx16 s[8:23], s[0:1], 0\ns_load_dwordx8 s[24:31], s[0:1], 64")
    e(f"s_getpc_b64 s[{SRD_PC}:{SRD_PC+1}]")
    e.label("K_pc")
    e(f"""s_mov_b32 s{SRD_PC+2}, K_end-K_pc
s_mov_b32 s{SRD_PC+3}, 0x00020000""")
    if P("CPF", 1):
        e(f"s_lshr_b32 s6, s2, 3\ns_lshl_b32 s6, s6, 11\nv_lshrrev_b32 v1, 5, v0\nv_lshl_add_u32 v1, v1, 7, s6")
    else: e("v_lshlrev_b32 v1, 7, v0")
    e.vm(f"buffer_load_dword v{TD}, v1, s[{SRD_PC}:{SRD_PC+3}], 0 offen")
    T = TM
    e(f"""v_lshrrev_b32 v1, 6, v0
v_and_b32 v0, 63, v0
v_readfirstlane_b32 s{S_W}, v1
s_nop 1""")
    e(f"""s_lshl_b32 s{S_TG}, s2, 3
s_add_u32 s{S_TG}, s{S_TG}, s{S_W}
s_mul_i32 s6, s{S_TG}, 896
v_lshl_add_u32 v{TX}, v0, 4, s6
v_cmp_lt_u32 vcc, 55, v0
v_mov_b32 v{TX+2}, {OOB}
s_nop 0
v_cndmask_b32 v{TX}, v{TX}, v{TX+2}, vcc""")
    WT = f"""s_min_u32 s6, s{S_TG}, 1393
s_cmp_ge_u32 s6, 448
s_cselect_b32 s{SRD_T}, s{P_WU}, s{P_WG}
s_cselect_b32 s{SRD_T+1}, s{P_WU+1}, s{P_WG+1}
s_cselect_b32 s{S_A}, 448, 0
s_mov_b32 s{S_D}, {448*3584}
s_cmp_ge_u32 s6, 896
s_cselect_b32 s{SRD_T}, s{P_WQ}, s{SRD_T}
s_cselect_b32 s{SRD_T+1}, s{P_WQ+1}, s{SRD_T+1}
s_cselect_b32 s{S_A}, 896, s{S_A}
s_cselect_b32 s{S_B}, 6, 11
s_cselect_b32 s{S_C}, 7, 28
s_cselect_b32 s{S_D}, {448*896}, s{S_D}
s_cmp_ge_u32 s6, 1344
s_cselect_b32 s{SRD_T}, s{P_WK}, s{SRD_T}
s_cselect_b32 s{SRD_T+1}, s{P_WK+1}, s{SRD_T+1}
s_cselect_b32 s{S_A}, 1344, s{S_A}
s_cselect_b32 s{S_B}, 7, s{S_B}
s_cselect_b32 s{S_C}, 8, s{S_C}
s_cselect_b32 s{SRD_T+2}, {448*56}, s{S_D}
s_cmp_ge_u32 s6, 1369
s_cselect_b32 s{SRD_T}, s{P_WV}, s{SRD_T}
s_cselect_b32 s{SRD_T+1}, s{P_WV+1}, s{SRD_T+1}
s_cselect_b32 s{S_A}, 1369, s{S_A}
s_mov_b32 s{SRD_T+3}, 0x00020000
s_sub_u32 s6, s6, s{S_A}
s_mul_i32 s6, s6, s{S_C}
v_min_u32 v{TA}, s{S_B}, v0
v_add_u32 v{TA}, s6, v{TA}
v_lshlrev_b32 v{TA}, 7, v{TA}"""
    e(f"""
s_bfe_u32 s{S_RB}, s2, 0x20001
s_lshl_b32 s{S_RB}, s{S_RB}, 2
s_lshr_b32 s6, s2, 6
s_add_u32 s{S_RB}, s{S_RB}, s6
s_and_b32 s{S_J}, s2, 1
s_lshl_b32 s{S_J}, s{S_J}, 3
s_bfe_u32 s7, s2, 0x30003
s_add_u32 s{S_J}, s{S_J}, s7
s_lshr_b32 s{S_QU}, s{S_J}, 2
s_sub_u32 s{S_LA}, s{S_J}, s{S_QU}
s_lshl_b32 s{S_WB}, s{S_W}, 10
s_lshl_b32 s{S_C}, s{S_LA}, 7
s_mul_i32 s{S_E}, s{S_QU}, 224
s_and_b32 s{S_F}, s{S_QU}, 1
s_sub_u32 s{S_G}, 4, s{S_F}
s_lshl_b32 s{S_F}, s{S_F}, 5
s_movk_i32 s{S_D}, 3584
s_and_b32 s{S_ISQ}, s{S_J}, 3
s_cmp_eq_u32 s{S_ISQ}, 3
s_cselect_b32 s{S_ISQ}, 1, 0
s_cselect_b32 s{S_A}, 14, 8
s_cselect_b32 s{S_B}, 896, s{S_D}
s_cselect_b32 s{S_D}, 56, s{S_D}
s_cselect_b32 s{S_H2}, s{S_F}, s{S_C}
s_cselect_b32 s{S_C}, s{S_E}, s{S_C}
s_cselect_b32 s{S_G}, s{S_G}, 4
s_add_u32 s{S_SH}, s{S_ISQ}, 1
s_lshl_b32 s{S_E}, s{S_RB}, 7
s_lshl_b32 s{S_F}, s{S_W}, 3
s_add_u32 s{S_F}, s{S_F}, s{S_E}
v_lshrrev_b32 v{T}, 3, v0
v_add_u32 v{T}, s{S_F}, v{T}
v_mul_u32_u24 v{T}, 896, v{T}
s_lshl_b32 s{S_F}, s{S_W}, 2
v_lshrrev_b32 v{T+1}, 4, v0
v_add_u32 v{T+2}, s{S_F}, v{T+1}
v_xor_b32 v{T+3}, v{T+2}, v0
v_and_b32 v{T+3}, 7, v{T+3}
v_lshl_add_u32 v{VX}, v{T+3}, 4, v{T}
{ROTCODE}v_lshlrev_b32 v{T+1}, s{S_SH}, v{T+1}
v_xor_b32 v{T+1}, v{T+1}, v0
v_and_b32 v{T+1}, 15, v{T+1}""")
    e(w_source(T + 2, T + 1, G, GS, T))
    e(f"s_mov_b64 s[{S_HI}:{S_HI+1}], vcc")
    if TOUCH:
        e(f"""s_and_b32 s6, s6, 3
s_lshl_b32 s6, s6, 3
s_add_u32 s6, s6, s{S_W}
s_lshl_b32 s6, s6, 1
s_lshl_b32 s7, s7, 3
s_add_u32 s7, s7, s{S_W}
s_lshl_b32 s7, s7, 1
s_add_u32 s7, s7, s{S_E}
v_bfe_u32 v{T+2}, v0, 3, 1
v_bfe_u32 v{T+1}, v0, 2, 1
v_lshl_add_u32 v{T+2}, v{T+2}, 6, v{T+1}
v_add_u32 v{T+2}, s6, v{T+2}
v_and_b32 v{T+1}, 3, v0
v_lshlrev_b32 v{T+1}, 2, v{T+1}
v_lshrrev_b32 v{T+1}, v{T+1}, s{S_MASK}
v_and_b32 v{T+1}, 15, v{T+1}
v_and_b32 v{T}, 1, v0
v_add_u32 v{T}, s7, v{T}
v_mul_u32_u24 v{TX}, 896, v{T}
v_bfe_u32 v{T}, v0, 1, 1
v_lshl_add_u32 v{TX}, v{T}, 7, v{TX}""".replace(f"v_lshrrev_b32 v{T+1}, v{T+1}, s{S_MASK}", f"s_movk_i32 s6, 0xed80\nv_lshrrev_b32 v{T+1}, v{T+1}, s6"))
        e(w_source(T + 2, T + 1, G + 1, TS, T))
    e("s_waitcnt lgkmcnt(0)")
    e.stamp("xs0")
    if 'stdiag' in X:
        e(f"""s_mov_b32 s40, s{P_WS}
s_mov_b32 s41, s{P_WS+1}
s_mov_b32 s42, 0x10000000
s_mov_b32 s43, 0x00020000
s_lshl_b32 s90, s2, 3
s_add_u32 s90, s90, s{S_W}
s_lshl_b32 s90, s90, 10
s_add_u32 s90, s90, {P('DOFF', 100) * 1024 * 1024}
v_lshlrev_b32 v110, 4, v0
buffer_store_dwordx4 v[112:115], v110, s[40:43], s90 offen sc1
s_waitcnt vmcnt(0)
s_add_u32 s90, s90, 0x200000
s_barrier
s_memtime s[92:93]
s_waitcnt lgkmcnt(0)
buffer_store_dwordx4 v[112:115], v110, s[40:43], s90 offen sc1
s_waitcnt vmcnt(0)
s_barrier
s_memtime s[94:95]
s_waitcnt lgkmcnt(0)
s_sub_u32 s94, s94, s92
s_mul_i32 s94, s94, 100""")
    srd(e, SRD_X, P_X, 2048 * 896)
    if GT:
        if not P("ROWL", 0): e.vm(f"buffer_load_dwordx4 {vr(RW,4)}, v{TX}, s[{SRD_X}:{SRD_X+3}], 0 offen", "row")
        if GT & 2 and not P("PRO", 1): e.vm(f"buffer_load_dword v{TD}, v{TA}, s[{SRD_T}:{SRD_T+3}], {'s%d' % S_TS if P('GTS', 0) else 0} offen", "t")
        if P("GTW", 0): e.wvm("row")
    if P("XE", 1): dma_x(e, 0, 0)(); dma_x(e, 0, 1)()
    if P("PRO", 1) == 2:
        e(WT); e.vm(f"buffer_load_dword v{TD}, v{TA}, s[{SRD_T}:{SRD_T+3}], 0 offen", "t")
    e(f"""s_cmp_lt_u32 s{S_QU}, 2
s_cselect_b32 s{S_C}, s{P_WK}, s{P_WV}
s_cselect_b32 s{S_D}, s{P_WK+1}, s{P_WV+1}
s_cmp_eq_u32 s{S_ISQ}, 1
s_cselect_b32 s{S_A}, s{P_WQ}, s{P_WG}
s_cselect_b32 s{S_B}, s{P_WQ+1}, s{P_WG+1}
s_cselect_b32 s{S_C}, s{S_C}, s{P_WU}
s_cselect_b32 s{S_D}, s{S_D}, s{P_WU+1}
v_mov_b32 v{T}, s{S_A}
v_mov_b32 v{T+1}, s{S_B}
v_mov_b32 v{T+2}, s{S_C}
v_mov_b32 v{T+3}, s{S_D}""")
    if TOUCH:
        e(f"""v_cndmask_b32 v{TA}, v{T}, v{T+2}, vcc
v_cndmask_b32 v{TA+1}, v{T+1}, v{T+3}, vcc
v_add_co_u32 v{TA}, vcc, v{TA}, v{G+1}
v_cndmask_b32 v{GA}, v{T}, v{T+2}, s[{S_HI}:{S_HI+1}]
v_cndmask_b32 v{GA+1}, v{T+1}, v{T+3}, s[{S_HI}:{S_HI+1}]
v_addc_co_u32 v{TA+1}, vcc, 0, v{TA+1}, vcc""")
        touch(e, 0)()
    else:
        e(f"""v_cndmask_b32 v{GA}, v{T}, v{T+2}, s[{S_HI}:{S_HI+1}]
v_cndmask_b32 v{GA+1}, v{T+1}, v{T+3}, s[{S_HI}:{S_HI+1}]""")
    e(f"v_add_co_u32 v{GA}, vcc, v{GA}, v{G}\nv_mov_b32 v{GS+1}, 0")
    if 'gonly' in X: e.all_vm(); e.stamp()
    if not P("XE", 1): dma_x(e, 0, 0)()
    else: e("s_nop 0")
    e(f"v_addc_co_u32 v{GA+1}, vcc, 0, v{GA+1}, vcc")
    e.WT = WT

TOUCH = P("TOUCH", 0)
GT = P("GT", 3)
ROT = P("ROT", 0)
LDX = os.environ.get("LDX", ""); LDW = os.environ.get("LDW", ""); LDT = os.environ.get("LDT", "")
def touch(e, k):
    def f():
        st = (0, 2, 4, 5)[k]
        e.vm(f"global_load_dword v{TD}, {vr(TA,2)}, off", f"t{k}")
        e(f"s_movk_i32 s{S_XO2}, {st * 128}")
        e.vm(f"buffer_load_dword v{TD}, v{TX}, s[{SRD_X}:{SRD_X+3}], s{S_XO2} offen", f"t{k}")
        if k < 3: e(f"v_mad_u64_u32 {vr(TA,2)}, s[{S_E}:{S_E+1}], v{TS}, {4 if k < 2 else 2}, {vr(TA,2)}")
    return f
S_TG, S_TS = 61, 57
def gtouch(e, st):
    def f():
        e(f"s_mul_i32 s{S_XO2}, s{S_TS}, {st}")
        e.vm(f"buffer_load_dword v{TD}, v{TA}, s[{SRD_PC}:{SRD_PC+3}], s{S_XO2} offen {LDT}", "t")
        e(f"s_movk_i32 s{S_XO2}, {st * 128}")
        e.vm(f"buffer_load_dword v{TD}, v{TX}, s[{SRD_X}:{SRD_X+3}], s{S_XO2} offen {LDT}", "t")
    return f
def dma_x(e, sig, i):
    def f():
        e(f"s_add_u32 m0, s{S_WB}, {(sig % 4) * RING + i * 8192}")
        if i == 0: e("s_nop 0"); so = S_XO
        else: e(f"s_add_u32 s{S_XO2}, s{S_XO}, {64*896}"); so = S_XO2
        e.vm(f"buffer_load_dwordx4 v{VX}, s[{SRD_X}:{SRD_X+3}], s{so} offen {LDX} lds", f"d{sig}")
    return f
def dma_w(e, sig, off, i, first=False):
    def f():
        if i == 0 and not first:
            e(f"s_add_u32 s{S_XO}, s{S_XO}, 128\ns_cmp_eq_u32 s{S_XO}, 896\ns_cselect_b32 s{S_XO}, 0, s{S_XO}\ns_cselect_b32 s{S_MUL}, -13, 1")
        e(f"s_add_u32 m0, s{S_WB}, {(sig % 4) * RING + off + i * 8192}")
        if first == 2: e(f"s_add_u32 s{S_XO}, s{S_XO}, 128\ns_cmp_eq_u32 s{S_XO}, 896\ns_cselect_b32 s{S_XO}, 0, s{S_XO}")
        elif first: e("s_nop 0")
        elif i == 0: e(f"v_mad_i64_i32 {vr(GA,2)}, s[{S_E}:{S_E+1}], v{GS}, s{S_MUL}, {vr(GA,2)}")
        else: e(f"v_lshl_add_u64 {vr(GA,2)}, {vr(GS,2)}, 0, {vr(GA,2)}")
        e.vm(f"global_load_lds_dwordx4 {vr(GA,2)}, off {LDW}", f"d{sig}")
    return f
if not any(ROTS[P("ROT", 0)]) and not RPAR:
    def dma_x(e, sig, i):
        def f():
            e(f"s_add_u32 m0, s{S_WB}, {(sig % 4) * RING + i * 8192}\ns_mov_b32 s{S_XO}, {sig * 128 + i * 64 * 896}")
            e.vm(f"buffer_load_dwordx4 v{VX}, s[{SRD_X}:{SRD_X+3}], s{S_XO} offen {LDX} lds", f"d{sig}")
        return f
    def dma_w(e, sig, off, i, first=False):
        def f():
            e(f"s_add_u32 m0, s{S_WB}, {(sig % 4) * RING + off + i * 8192}")
            e("s_nop 0" if first else f"v_lshl_add_u64 {vr(GA,2)}, {vr(GS,2)}, 0, {vr(GA,2)}")
            e.vm(f"global_load_lds_dwordx4 {vr(GA,2)}, off {LDW}", f"d{sig}")
        return f
def stage_dmas(e, sig):
    if 'nodma' in X and 2 <= sig: return [(lambda: e.q['vm'].append(f'd{sig}') or e.q['vm'].pop() if False else None)] if False else [lambda: None]
    if sig == 0: return [dma_x(e, sig, 0), dma_w(e, sig, 16384, 0, True), dma_x(e, sig, 1), dma_w(e, sig, 16384, 1)]
    if sig < 7: return [dma_w(e, sig, 16384, 0), dma_x(e, sig, 0), dma_w(e, sig, 16384, 1), dma_x(e, sig, 1)]
    l = []
    if sig == 7: l.append(lambda: e(f"v_mov_b32 v{GA}, v{GB}\nv_mov_b32 v{GA+1}, v{GB+1}\nv_mov_b32 v{GS}, {32*3584}"))
    l += [dma_w(e, sig, 0, 0, 2 if sig == 7 else False), dma_w(e, sig, 0, 1)]
    if sig < 10: l += [dma_w(e, sig, 16384, 0), dma_w(e, sig, 16384, 1)]
    return l

def late_touch(e):
    if P('GTS', 0):
        e(f"s_xor_b32 s{S_TS}, s{S_TS}, {OOB}")
        e.vm(f"buffer_load_dword v{TD}, v{TA}, s[{SRD_T}:{SRD_T+3}], s{S_TS} offen", "t")

def h_off(line, dst):
    return f"""s_lshl_b32 s6, s{S_RB}, 2
s_add_u32 s6, s6, s{S_RT}
s_mul_i32 s6, s6, 144
s_lshl_b32 s{dst}, s{line}, 2
s_add_u32 s6, s6, s{dst}
s_add_u32 s6, s6, s{S_T0}
s_lshl_b32 s{dst}, s6, 10
s_add_u32 s{dst+1}, s{dst}, 1024"""
H_A, H_B = 10, 12
S_QO = 14
HOIST = P("HOIST", 4)
def f_scalars():
    return f"""s_lshr_b32 s6, s{S_J}, 3
s_lshl_b32 s7, s{S_RB}, 1
s_add_u32 s6, s6, s7
s_and_b32 s7, s{S_J}, 7
s_mul_i32 s{S_A}, s{S_W}, 6
s_lshl_b32 s{S_K1}, s{S_W}, 1
s_add_u32 s{S_K1}, s{S_K1}, 44
s_lshl_b32 s{S_K1}, s{S_K1}, 10
s_lshl_b32 s{S_FQ}, s{S_K1}, 1
s_mul_i32 s{S_FB0}, s6, 288
s_add_u32 s{S_FB0}, s{S_FB0}, s{S_A}
s_lshl_b32 s{S_FB0}, s{S_FB0}, 10
s_add_u32 s{S_FB1}, s{S_FB0}, {144*1024}
s_bitcmp1_b32 s{S_W}, 0
s_cselect_b32 s{S_B}, s{S_FB1}, s{S_FB0}
s_cselect_b32 s{S_FB1}, s{S_FB0}, s{S_FB1}
s_mov_b32 s{S_FB0}, s{S_B}
s_mul_i32 s{S_FA}, s7, 144
s_add_u32 s{S_FA}, s{S_FA}, s{S_A}
s_lshl_b32 s{S_FA}, s{S_FA}, 11
s_add_u32 s{S_FA}, s{S_FA}, {W2T}
s_lshr_b32 s{S_A}, s{S_W}, 1
s_lshl_b32 s{S_A}, s{S_A}, 3
s_mul_i32 s{S_OA}, s7, 144
s_add_u32 s{S_OA}, s{S_OA}, s{S_A}
s_add_u32 s{S_OA}, s{S_OA}, 112
s_lshl_b32 s{S_OA}, s{S_OA}, 11
s_add_u32 s{S_OA}, s{S_OA}, {W2T}
s_and_b32 s{S_B}, s{S_W}, 1
s_lshl_b32 s{S_B}, s{S_B}, 12
s_add_u32 s{S_OA}, s{S_OA}, s{S_B}
s_lshl_b32 s{S_OL}, s{S_W}, 12"""

S_C1, S_C2, S_CF, S_KS, S_QS, S_WL, S_WO = 16, 17, 24, 25, 54, 47, 59
QB0, QB1, KVA = 253, 254, 255
def more_addr():
    slot = ""
    for st_, dst in ((S_T0, QB0), (S_T1, QB1)):
        slot += f"""s_sub_u32 s6, 3, s{st_}
s_lshl_b32 s7, s{st_}, 2
s_lshr_b32 s7, 0x0132, s7
s_and_b32 s7, s7, 3
s_bitcmp1_b32 s{S_QU}, 0
s_cselect_b32 s6, s7, s6
s_cselect_b32 s{S_CF}, s7, 0
s_lshl_b32 s6, s6, 3
v_add_u32 v{dst}, s6, v{KVA}
"""
    return f"""v_and_b32 v{TP}, 31, v0
s_lshl_b32 s6, s{S_T0}, 9
s_add_u32 s6, s6, {L_CSA}
v_lshl_add_u32 v{TP}, v{TP}, 4, s6
s_lshl_b32 s6, s{S_RT}, 2
v_add_u32 v{TP+1}, s6, v{TP}
s_lshr_b32 s6, s{S_W}, 1
s_lshl_b32 s6, s6, 11
s_and_b32 s7, s{S_W}, 1
s_lshl_b32 s{S_WL}, s7, 6
s_add_u32 s{S_WL}, s{S_WL}, s6
s_add_u32 s{S_WL}, s{S_WL}, {L_W2T}
s_lshl_b32 s6, s{S_U}, 11
s_lshl_b32 s7, s7, 10
s_add_u32 s6, s6, s7
s_add_u32 s{S_WO}, s6, {W2T}
s_mov_b32 s{S_C2}, 0x00003f80
s_cmp_lt_u32 s{S_QU}, 2
s_cselect_b32 s{S_C1}, 0x3f803f80, s{S_C2}
s_cselect_b32 s{S_C2}, s{S_C2}, 0
s_lshl_b32 s6, s{S_RB}, 2
s_add_u32 s6, s6, s{S_RT}
s_lshl_b32 s{S_KS}, s6, 12
s_lshl_b32 s6, s6, 2
s_add_u32 s6, s6, s{S_QU}
s_lshl_b32 s6, s6, 2
s_add_u32 s6, s6, s{S_T0}
s_lshl_b32 s6, s6, 11
s_add_u32 s{S_QS}, s6, {QF}
s_and_b32 s6, s{S_QU}, 1
s_lshl_b32 s7, s6, 8
s_add_u32 s7, s7, 2048
s_lshl_b32 s6, s6, 10
s_cmp_lt_u32 s{S_QU}, 2
s_cselect_b32 s6, s6, s7
s_add_u32 s{S_KS}, s{S_KS}, s6
s_add_u32 s{S_KS}, s{S_KS}, {KVF}
v_and_b32 v{KVA}, 31, v0
v_lshlrev_b32 v{KVA}, 5, v{KVA}
s_lshl_b32 s{S_A}, s{S_RT}, 10
s_add_u32 s{S_A}, s{S_A}, {L_KVB}
v_add_u32 v{KVA}, s{S_A}, v{KVA}
{slot}v_lshrrev_b32 v{PL}, 5, v0
v_lshl_add_u32 v{KVA}, v{PL}, 3, v{KVA}
v_lshlrev_b32 v{G+1}, 2, v{PL}
v_bfe_u32 v{PL}, v0, 4, 1
v_add_u32 v{G+1}, v{G+1}, v{PL}
v_bfe_u32 v{PL}, v0, 2, 2
v_lshl_add_u32 v{G+1}, v{G+1}, 2, v{PL}
v_lshlrev_b32 v{G+1}, 5, v{G+1}
v_and_b32 v{PL}, 3, v0
v_lshl_add_u32 v{G+1}, v{PL}, 3, v{G+1}
v_add_u32 v{G+1}, s{S_A}, v{G+1}
s_cmp_lt_u32 s{S_QU}, 2
s_cselect_b64 vcc, -1, 0
v_cndmask_b32 v{KVA}, v{G+1}, v{KVA}, vcc"""

def add_more(e, side):
    lines = more_addr().split("\n")
    k = lines.index(f"s_mov_b32 s{S_C2}, 0x00003f80")
    side.add("\n".join(lines[:k]))
    if not P("QCOND", 0): side.add("\n".join(lines[k:])); return
    tmp = Side(e); tmp.add("\n".join(lines[k:]))
    n = P("QCH", 12)
    for i in range(0, len(tmp.q), n):
        def blk(part=tmp.q[i:i + n]):
            l = e.newlabel("qo")
            e(f"s_cmp_eq_u32 s{S_ISQ}, 1\ns_cbranch_scc0 {l}"); e("\n".join(part)); e.label(l)
        side.add([blk] + [lambda: None] * (P('WSR', 6) - 1))

def attn_scalars():
    return f"""s_lshl_b32 s{S_WB4}, s{S_W}, 12
s_lshl_b32 s6, s{S_CG}, 5
s_add_u32 s6, s6, s{S_RT}
s_lshl_b32 s6, s6, 12
s_add_u32 s{S_KVO}, s6, {KVF}
s_lshl_b32 s6, s{S_RB}, 2
s_add_u32 s6, s6, s{S_RT}
s_lshl_b32 s7, s6, 4
s_add_u32 s7, s7, s{S_J}
s_lshl_b32 s7, s7, 11
s_add_u32 s{S_QO}, s7, {QF}
s_mul_i32 s6, s6, 144
s_lshl_b32 s7, s{S_J}, 1
s_add_u32 s6, s6, s7
s_add_u32 s6, s6, s{S_CG}
s_add_u32 s6, s6, 112
s_lshl_b32 s{S_OO}, s6, 10"""

def phaseB(e):
    T = TM
    for f in (stage_dmas(e, 0)[1:] if not P('XE', 1) else stage_dmas(e, 0)[1::2]): f()
    if 'arr' in X:
        order = os.environ.get("ARR", "D1 D2 W0 D3 W1 D4 W2 D5 W3 D6 W4 W5 W6").split()
        for it in order:
            k = int(it[1:])
            if it[0] == 'D':
                for f in stage_dmas(e, k): f()
            elif it[0] == 'T': touch(e, k)()
            elif it[0] == 'G': gtouch(e, k)()
            elif it[0] == 'L': late_touch(e)
            elif it[0] == 'A': e.all_vm(); e.stamp()
            else: e.wvm(f"d{k}"); e("s_barrier"); e.stamp()
        srd(e, SRD_WS, P_WS, WS_END)
        e.stamp()
        e("s_branch K_fin2")
        global STAMPS_OFF; STAMPS_OFF = True
    if P("ROWL", 0): e.vm(f"buffer_load_dwordx4 {vr(RW,4)}, v{TX}, s[{SRD_X}:{SRD_X+3}], 0 offen", "row")
    e.stamp("xs2")
    if P("PRO", 1) == 1 and GT & 2:
        e(e.WT)
        e.vm(f"buffer_load_dword v{TD}, v{TA}, s[{SRD_T}:{SRD_T+3}], 0 offen", "t")
    e(f"s_mov_b32 s6, {EPO}\ns_load_dword s{S_NON}, s[{P_WS}:{P_WS+1}], s6")
    if TOUCH == 2: touch(e, 1)()
    PD1 = P("PD1", 1)
    if PD1 == 0:
        for f in stage_dmas(e, 1): f()
    if TOUCH == 1: touch(e, 1)()
    late_touch(e)
    e.stamp("xs3")
    e(f"""s_and_b32 s{S_RT}, s{S_W}, 3
s_lshr_b32 s{S_CG}, s{S_W}, 2
s_lshl_b32 s{S_T0}, s{S_CG}, 1
s_add_u32 s{S_T1}, s{S_T0}, 1
s_xor_b32 s{S_A}, s{S_RT}, s{S_CG}
s_mov_b32 s{S_MASK}, 0xffff0000
s_mov_b32 s{S_HI}, 0
s_mov_b32 s{S_HI+1}, -1
v_lshlrev_b32 v{VL16}, 4, v0
v_and_b32 v{T}, 31, v0
v_lshrrev_b32 v{T+1}, 5, v0
v_bfe_u32 v{T+2}, v0, 1, 3
v_xor_b32 v{T+2}, v{T+2}, v{T+1}
v_lshlrev_b32 v{T+2}, 4, v{T+2}
v_lshl_add_u32 v{T+2}, v{T}, 7, v{T+2}
s_lshl_b32 s6, s{S_RT}, 12
s_lshl_b32 s{S_B}, s{S_A}, 5
s_or_b32 s6, s6, s{S_B}
v_xor_b32 v{XA}, s6, v{T+2}""")
    for pos in range(1, 4): e(f"v_xor_b32 v{XA+pos}, {pos<<5}, v{XA}")
    e(f"""v_bfe_u32 v{G+1}, v0, 2, 2
v_lshl_add_u32 v{WB}, v{T+1}, 3, v{G+1}
v_lshlrev_b32 v{WB}, 8, v{WB}
s_lshl_b32 s{S_A}, s{S_A}, 12
v_add_u32 v{WB}, s{S_A}, v{WB}
s_cmp_eq_u32 s{S_ISQ}, 1
s_cselect_b32 s{S_A}, 56, 32
s_cselect_b32 s{S_B}, 5, 7
s_cselect_b32 s{S_C}, 0x88880000, 0
s_mov_b32 s{S_D}, s{S_C}
s_add_u32 s6, s{S_SH}, 4
v_bfe_u32 v{T}, v0, 4, 1
v_and_b32 v{T+1}, 3, v0
v_lshlrev_b32 v{T}, s{S_B}, v{T}
v_lshl_add_u32 v{T}, v{T+1}, 3, v{T}
v_lshlrev_b32 v{T+1}, s6, v{G+1}""")
    for i, st_ in ((0, S_T0), (1, S_T1)):
        e(f"""s_mul_i32 s6, s{st_}, s{S_A}
s_lshl_b32 s7, s{st_}, 3
s_sub_u32 s7, 248, s7
v_add_u32 v{T+2}, s6, v{T}
v_mov_b32 v{T+3}, s7
v_cndmask_b32 v{T+2}, v{T+2}, v{T+3}, s[{S_C}:{S_D}]
v_xor_b32 v{T+2}, v{T+2}, v{T+1}
v_add_u32 v{WA+4*i}, v{T+2}, v{WB}""")
    for i in range(2):
        for pos in range(1, 4): e(f"v_xor_b32 v{WA+4*i+pos}, {pos<<12}, v{WA+4*i}")
    e(f"""v_bfe_u32 v{T}, v0, 4, 1
v_and_b32 v{T+1}, 15, v0
v_cmp_eq_u32 vcc, v{T}, v{T+1}
v_mov_b32 v{T}, 0x3f803f80
s_nop 0
v_cndmask_b32 v{SEL}, 0, v{T}, vcc
v_mov_b32 v{SEL+1}, v{SEL}
v_mov_b32 v{SEL+2}, v{SEL}
v_mov_b32 v{SEL+3}, v{SEL}""")
    w2t_addr = f"""s_mul_i32 s6, s{S_RB}, 12
s_add_u32 s6, s6, s{S_LA}
s_lshl_b32 s7, s{S_RB}, 2
s_add_u32 s7, s7, s{S_QU}
s_min_u32 s7, s7, 59
s_add_u32 s{S_A}, s7, 136
s_cmp_eq_u32 s{S_ISQ}, 1
s_cselect_b32 s6, s{S_A}, s6
s_cselect_b32 s7, s7, 63
s_mul_hi_u32 s{S_A}, s6, {(2**32 + 27)//28}
s_mul_i32 s{S_B}, s{S_A}, 28
s_sub_u32 s{S_B}, s6, s{S_B}
s_lshr_b32 s{S_C}, s7, 3
s_and_b32 s{S_D}, s7, 7
s_add_u32 s{S_D}, s{S_D}, 28
s_cmp_lt_u32 s7, 56
s_cselect_b32 s6, s{S_C}, s{S_A}
s_cselect_b32 s{S_B}, s{S_D}, s{S_B}
s_lshl_b32 s{S_WF}, s6, 6
s_add_u32 s{S_WF}, s{S_WF}, s{S_B}
s_lshl_b32 s{S_A}, s{S_B}, 2
s_lshr_b32 s{S_B}, s{S_W}, 1
s_add_u32 s{S_A}, s{S_A}, s{S_B}
s_mul_i32 s{S_U}, s6, 144
s_add_u32 s{S_U}, s{S_U}, s{S_A}
s_lshl_b32 s{S_B}, s{S_A}, 4
s_sub_u32 s{S_C}, s{S_A}, 112
s_lshr_b32 s{S_D}, s{S_C}, 1
s_mul_i32 s{S_D}, s{S_D}, 28
s_and_b32 s{S_C}, s{S_C}, 1
s_lshl_b32 s{S_C}, s{S_C}, 4
s_add_u32 s{S_C}, s{S_C}, s{S_D}
s_mov_b32 s{S_D}, {448*896}
s_cmp_lt_u32 s{S_A}, 112
s_cselect_b32 s{S_B}, s{S_B}, s{S_C}
s_cselect_b32 s{SRD_T}, s{P_WD}, s{P_WO}
s_cselect_b32 s{SRD_T+1}, s{P_WD+1}, s{P_WO+1}
s_cselect_b32 s{SRD_T+2}, {1792*896}, s{S_D}
s_mov_b32 s{SRD_T+3}, 0x00020000
s_and_b32 s{S_C}, s{S_W}, 1
s_lshl_b32 s{S_C}, s{S_C}, 3
s_add_u32 s{S_B}, s{S_B}, s{S_C}
s_mul_i32 s{S_B}, s{S_B}, 896
s_lshl_b32 s6, s6, 7
s_add_u32 s{S_TO}, s{S_B}, s6
v_lshrrev_b32 v{TP}, 3, v0
v_mul_u32_u24 v{TP}, 896, v{TP}
v_and_b32 v{TP+1}, 7, v0
v_lshl_add_u32 v{VT}, v{TP+1}, 4, v{TP}"""
    late = (f"""s_add_u32 s{S_LB}, s{S_LA}, 12
s_add_u32 s6, s{S_QU}, 24
s_cmp_eq_u32 s{S_ISQ}, 1
s_cselect_b32 s{S_LB}, s6, s{S_LB}
""" if P("LBOLD", 1) else f"s_add_u32 s{S_LB}, s{S_J}, 12\n") + f"""v_lshrrev_b32 v{TP}, 4, v0
s_lshl_b32 s6, s{S_ROT}, 4
s_add_u32 s6, s6, s{S_W}
s_lshl_b32 s6, s6, 2
v_add_u32 v{TP+1}, s6, v{TP}
v_mul_u32_u24 v{TP+1}, 3584, v{TP+1}
v_lshlrev_b32 v{TP}, 1, v{TP}
v_xor_b32 v{TP}, v{TP}, v0
v_and_b32 v{GB}, 7, v{TP}
v_lshl_add_u32 v{TP+1}, v{GB}, 4, v{TP+1}
s_lshl_b32 s6, s{S_LB}, 7
v_add_u32 v{TP+1}, s6, v{TP+1}
v_and_b32 v{TP}, 8, v{TP}
v_cmp_eq_u32 vcc, 8, v{TP}
v_mov_b32 v{GB}, s{P_WG}
v_mov_b32 v{TP}, s{P_WU}
v_cndmask_b32 v{GB}, v{GB}, v{TP}, vcc
v_mov_b32 v{GB+1}, s{P_WG+1}
v_mov_b32 v{TP}, s{P_WU+1}
v_cndmask_b32 v{GB+1}, v{GB+1}, v{TP}, vcc
v_add_co_u32 v{GB}, vcc, v{GB}, v{TP+1}
v_bfe_u32 v{TP}, v0, 4, 1
v_and_b32 v{TP+1}, 3, v0
v_addc_co_u32 v{GB+1}, vcc, 0, v{GB+1}, vcc
v_lshlrev_b32 v{TP+1}, 3, v{TP+1}
v_lshl_add_u32 v{TP}, v{TP}, 7, v{TP+1}
v_bfe_u32 v{TP+1}, v0, 2, 2
v_lshlrev_b32 v{TP+1}, 5, v{TP+1}
v_xor_b32 v{TP}, v{TP}, v{TP+1}
s_lshl_b32 s6, s{S_T0}, 5
v_xor_b32 v{TP}, s6, v{TP}
v_add_u32 v{WB}, v{TP}, v{WB}
v_xor_b32 v{WB+1}, 32, v{WB}"""
    e(f"s_lshl_b32 s45, s{S_TG}, 3\ns_add_u32 s45, s45, {STAT}")
    def hoisted():
        e(late); e(w2t_addr); e(h_off(S_LA, H_A)); e(h_off(S_LB, H_B)); e(attn_scalars()); e(f_scalars())
    if HOIST == 1: hoisted()
    if HOIST == 4: e(late); e(w2t_addr)
    if PD1 == 1:
        for f in stage_dmas(e, 1): f()
    if HOIST == 2: hoisted()
    e.stamp("xs4")
    srd(e, SRD_WS, P_WS, WS_END)
    e("s_waitcnt lgkmcnt(0)")
    e(f"s_add_u32 s{S_NON}, s{S_NON}, 1")
    U = RW + 4; A_, B_ = RW, RW + 1
    e.wvm("row")
    for k in range(4): e(f"v_lshlrev_b32 v{U+2*k}, 16, v{RW+k}\nv_and_b32 v{U+2*k+1}, s{S_MASK}, v{RW+k}")
    e(f"v_add_f32 v{A_}, v{U}, v{U+1}\nv_mul_f32 v{B_}, v{U}, v{U}\nv_add_f32 v{A_+2}, v{U+2}, v{U+3}\nv_mul_f32 v{B_+2}, v{U+1}, v{U+1}")
    for k in (2, 4, 6): e(f"v_fmac_f32 v{B_}, v{U+k}, v{U+k}\nv_fmac_f32 v{B_+2}, v{U+k+1}, v{U+k+1}")
    e(f"""v_add_f32 v{U}, v{U+4}, v{U+5}
v_add_f32 v{U+1}, v{U+6}, v{U+7}
v_add_f32 v{A_}, v{A_}, v{A_+2}
v_add_f32 v{U}, v{U}, v{U+1}
v_add_f32 v{B_}, v{B_}, v{B_+2}
v_add_f32 v{A_}, v{A_}, v{U}
s_nop 0""")
    for d in ("row_shr:1 row_mask:0xf bank_mask:0xf bound_ctrl:0", "row_shr:2 row_mask:0xf bank_mask:0xf bound_ctrl:0",
              "row_shr:4 row_mask:0xf bank_mask:0xf bound_ctrl:0", "row_shr:8 row_mask:0xf bank_mask:0xf bound_ctrl:0",
              "row_bcast:15 row_mask:0xa bank_mask:0xf", "row_bcast:31 row_mask:0xc bank_mask:0xf"):
        e(f"v_add_f32_dpp v{B_}, v{B_}, v{B_} {d}\nv_add_f32_dpp v{A_}, v{A_}, v{A_} {d}\ns_nop 0")
    e(f"""v_mul_f32 v{A_}, {f2u(1.0/448)}, v{A_}
v_mul_f32 v{B_}, {f2u(1.0/448)}, v{B_}
v_fma_f32 v{B_}, -v{A_}, v{A_}, v{B_}
v_max_f32 v{B_}, 0, v{B_}
v_cvt_pk_bf16_f32 v{B_}, v{B_}, v{B_}
v_and_b32 v{B_}, s{S_MASK}, v{B_}
v_add_f32 v{B_}, {f2u(1e-5)}, v{B_}
v_cvt_pk_bf16_f32 v{B_}, v{B_}, v{B_}
v_and_b32 v{B_}, s{S_MASK}, v{B_}
v_sqrt_f32 v{B_}, v{B_}
v_mov_b32 v{U}, s45
v_cvt_pk_bf16_f32 v{A_}, -v{A_}, v{B_}
v_mov_b32 v{B_}, s{S_NON}
s_mov_b32 exec_lo, 0
s_mov_b32 exec_hi, 0x80000000""")
    if PD1 == 2:
        e("s_mov_b64 exec, -1")
        for f in stage_dmas(e, 1): f()
        e("s_mov_b32 exec_lo, 0\ns_mov_b32 exec_hi, 0x80000000")
    e.vm(f"buffer_store_dwordx2 {vr(A_,2)}, v{U}, {WS}, 0 offen {SC}", "sts")
    e("s_mov_b64 exec, -1")
    e.stamp("xs5")
    if P("PRIO", 2) & 1: e(f"s_cmp_ge_u32 s{S_W}, 4\ns_cbranch_scc0 K_np\ns_setprio 1\nK_np:")
    e.wvm("d0")
    e("s_barrier")
    e.stamp("start")

    half = {'x': [0]*4, 'w': [0]*4}
    def reads(gp):
        if gp < 28: sig, sub, pos, reg = gp // 4, 0, gp % 4, 16384
        else:
            g = gp - 28; sig, sub, pos = 7 + g // 8, (g // 4) & 1, g % 4; reg = sub * 16384
        sl = sig % 4; h = sl >> 1; imm = (sl & 1) * RING
        buf = WF + 8 * (gp % 3)
        pre = []
        if 28 <= gp < 32:
            pre = [f"v_xor_b32 v{WA+4*i+pos}, {(pos << 12) | (h << 16)}, v{WB+i}" for i in range(2)]
            half['w'][pos] = h
        elif half['w'][pos] != h:
            pre = [f"v_xor_b32 v{WA+4*i+pos}, 0x10000, v{WA+4*i+pos}" for i in range(2)]
            half['w'][pos] = h
        if gp < 28 and half['x'][pos] != h:
            pre.append(f"v_xor_b32 v{XA+pos}, 0x10000, v{XA+pos}"); half['x'][pos] = h
        out = [(lambda l=l: e(l)) for l in pre]
        if gp < 28: out.append(lambda: e.ds(f"ds_read_b128 {vr(XR+4*gp,4)}, v{XA+pos} offset:{imm}", f"r{gp}"))
        for i in range(2):
            for u in range(2):
                out.append(lambda i=i, u=u: e.ds(f"ds_read_b64_tr_b16 {vr(buf+4*i+2*u,2)}, v{WA+4*i+pos} offset:{imm+reg+u*1024}", f"r{gp}"))
        return out
    def position(gp, side, dmaq, nside, barrier=None):
        p2 = gp >= 28; g = gp - 28 if p2 else gp
        acc = ACCB if p2 else ACCA
        buf = WF + 8 * (gp % 3); xr = XR + 4 * g
        e.wds(f"r{gp}")
        e(mfma(acc, buf, xr, "0" if g == 0 else None))
        if barrier: barrier()
        R = reads(gp + 2) if gp + 2 < 56 else []
        nx = 1 if gp + 2 < 28 else 0
        pre = R[:max(0, len(R) - 4 - nx)]; xrd = R[len(pre):len(pre) + nx]; tr = R[len(pre) + nx:]
        na = (nside + 1) // 2; nb = nside // 2
        for f in pre: f()
        if P("ORD", 1) == 0:
            for f in xrd + tr[:2]: f()
            side.emit(na)
            e(mfma(acc + 16, buf + 4, xr, "0" if g == 0 else None))
            for f in tr[2:]: f()
            if g % 4 == 0: e(mfma16(CSA, SEL, buf, "0" if g == 0 else None))
            if dmaq: dmaq.pop(0)()
            side.emit(nb)
            if g % 4 == 0: e(mfma16(CSA + 4, SEL, buf + 4, "0" if g == 0 else None))
        else:
            for f in tr[:1]: f()
            side.emit(min(2, na))
            for f in tr[1:2]: f()
            side.emit(na - min(2, na))
            e(mfma(acc + 16, buf + 4, xr, "0" if g == 0 else None))
            for f in tr[2:3]: f()
            side.emit(min(2, nb))
            for f in tr[3:]: f()
            side.emit(nb - min(2, nb))
            if g % 4 == 0 and 'nosel' not in X: e(mfma16(CSA, SEL, buf, "0" if g == 0 else None))
            for f in xrd: f()
            if g % 4 == 0 and 'nosel' not in X: e(mfma16(CSA + 4, SEL, buf + 4, "0" if g == 0 else None))
            if dmaq: dmaq.pop(0)()
    def stats(gp):
        x = XR + 4 * gp; c = lambda r: "0" if gp == 0 else vr(r, 4)
        return [mfma16(ST, SEL, x, c(ST)),
                f"v_mfma_f32_4x4x4_16b_bf16 {vr(SQA,4)}, {vr(x,2)}, {vr(x,2)}, {c(SQA)}\nv_mfma_f32_4x4x4_16b_bf16 {vr(SQB,4)}, {vr(x+2,2)}, {vr(x+2,2)}, {c(SQB)}"]
    def cs_write(dst):
        o = dst - L_CSA
        return ["s_nop 1", lambda: (e("s_mov_b64 exec, 0xffff"),
                         e.ds(f"ds_write_b32 v{TP+1}, v{CSA} offset:{o}", "csw"), e.ds(f"ds_write_b32 v{TP+1}, v{CSA+1} offset:{o+256}", "csw"),
                         e.ds(f"ds_write_b32 v{TP+1}, v{CSA+4} offset:{o+512}", "csw"), e.ds(f"ds_write_b32 v{TP+1}, v{CSA+5} offset:{o+768}", "csw"),
                         e("s_mov_b64 exec, -1"))]
    def cs_read(src):
        o = src - L_CSA
        l = [lambda: e.ds(f"ds_read_b128 {vr(G,4)}, v{TP} offset:{o}", "csr"), lambda: e.ds(f"ds_read_b128 {vr(G+4,4)}, v{TP} offset:{o+512}", "csr")]
        m = [lambda: e.wds("csr")]
        for i in range(2):
            b = G + 4 * i
            m += [f"v_add_f32 v{b}, v{b}, v{b+1}", f"v_add_f32 v{b+2}, v{b+2}, v{b+3}"]
        for i in range(2): m += [f"v_add_f32 v{G+4*i}, v{G+4*i}, v{G+4*i+2}"]
        for i in range(2): m += [f"v_cvt_pk_bf16_f32 v{G+4*i+1}, v{G+4*i}, v{G+4*i}"]
        for i in range(2): m += [f"v_and_b32 v{G+4*i+1}, s{S_MASK}, v{G+4*i+1}"]
        for i in range(2): m += [f"v_sub_f32 v{G+4*i+1}, v{G+4*i}, v{G+4*i+1}"]
        for i in range(2): m += [f"v_cvt_pk_bf16_f32 v{G+4*i}, v{G+4*i}, v{G+4*i+1}"]
        for i in range(2): m += [f"v_cndmask_b32 v{ST+2*i}, v{G+4*i}, 0, s[{S_HI}:{S_HI+1}]"]
        return l, m

    KA = -2.0 * math.log2(math.e) * math.sqrt(2.0 / math.pi)
    GST = P("GST", 18)
    def stat_check():
        ok = e.newlabel("sok"); sp = e.newlabel("ssp")
        e.wvm("stl")
        e(f"v_cmp_ne_u32 vcc, s{S_NON}, v{BEXT+3}\ns_cbranch_vccz {ok}\ns_mov_b32 s{S_CNT}, {SPIN_MAX}")
        e.label(sp)
        e(f"""s_sleep 4
buffer_load_dwordx2 {vr(BEXT+2,2)}, v{G}, {WS}, 0 offen {SC}
s_sub_u32 s{S_CNT}, s{S_CNT}, 1
s_waitcnt vmcnt(0)
v_cmp_ne_u32 vcc, s{S_NON}, v{BEXT+3}
s_cmp_eq_u32 s{S_CNT}, 0
s_cbranch_scc1 {ok}
s_cbranch_vccnz {sp}""")
        if 'spincnt' in X: e(f"s_sub_u32 s88, {SPIN_MAX + 1000}, s{S_CNT}")
        e.label(ok)
    def after_exchange(side):
        l, m = cs_read(L_CSA)
        side.add(l)
        side.add(f"""v_and_b32 v{S_}, s{S_MASK}, v{BEXT+2}
v_and_b32 v{BEXT}, 0xffff, v{BEXT+2}
v_rcp_f32 v{R_}, v{S_}
v_lshl_or_b32 v{BEXT}, v{BEXT+2}, 16, v{BEXT}
v_mul_f32 v{I2}, v{S_}, v{S_}
v_mul_f32 v{AC}, {f2u(KA)}, v{R_}
v_mul_f32 v{BC}, v{R_}, v{R_}
v_mov_b32 v{ST+1}, 0
v_mul_f32 v{BC}, v{BC}, v{AC}
v_mov_b32 v{ST+3}, 0
v_mul_f32 v{BC}, {f2u(0.044715)}, v{BC}
v_mov_b32 v{BEXT+1}, 0
v_mov_b32 v{BEXT+2}, 0
v_mov_b32 v{BEXT+3}, 0""")
        side.add(m)
    for f in reads(0) + reads(1): f()
    side = Side(e); dmaq = list(stage_dmas(e, 2)) + ([touch(e, 2)] if TOUCH else [])
    w2side = Side(e)
    if GT & 4:
        w2side.add(f"""s_min_u32 s6, s{S_TG}, 895
s_cmp_ge_u32 s6, 448
s_cselect_b32 s{SRD_T}, s{P_WU}, s{P_WG}
s_cselect_b32 s{SRD_T+1}, s{P_WU+1}, s{P_WG+1}
s_cselect_b32 s7, 448, 0
s_mov_b32 s{SRD_T+2}, {448*3584}
s_sub_u32 s6, s6, s7
s_mul_i32 s6, s6, 3584
s_add_u32 s6, s6, 1536
v_and_b32 v{TA}, 15, v0
v_lshlrev_b32 v{TA}, 7, v{TA}""")
        w2side.add([lambda: e.vm(f"buffer_load_dword v{TD}, v{TA}, s[{SRD_T}:{SRD_T+3}], s6 offen", "t2")])
    if HOIST == 3: w2side.add(late); w2side.add(w2t_addr)
    if HOIST >= 3: w2side.add(h_off(S_LA, H_A)); w2side.add(h_off(S_LB, H_B)); w2side.add(attn_scalars()); w2side.add(f_scalars()); add_more(e, w2side)
    for gp in range(28):
        sig, pos = gp // 4, gp % 4
        bar = None
        if pos == 2:
            def bar(sig=sig):
                if sig == 6: side.flush(); stat_check(); e.wds("csw")
                e.wvm(f"d{sig+1}"); e("s_barrier")
                if sig == 6: after_exchange(side)
                assert not dmaq
                dmaq.extend(stage_dmas(e, sig + 3))
                if sig == 0 and TOUCH: dmaq.append(touch(e, 3))
        if gp == GST:
            side.add([f"s_lshl_b32 s{S_G}, s{S_RB}, 2", f"s_add_u32 s{S_G}, s{S_G}, s{S_RT}", f"s_lshl_b32 s{S_G}, s{S_G}, 8", f"s_add_u32 s{S_G}, s{S_G}, {STAT}",
                      f"v_and_b32 v{G}, 31, v0", f"v_lshl_add_u32 v{G}, v{G}, 3, s{S_G}",
                      lambda: e.vm(f"buffer_load_dwordx2 {vr(BEXT+2,2)}, v{G}, {WS}, 0 offen {SC}", "stl")])
        if gp == 25: assert not w2side.q; side.add(cs_write(L_CSA))
        n = len(side.q) if gp < 26 else P('NEX', 10)
        while len(dmaq) > 4 - ((pos + 2) % 4): dmaq.pop(0)()
        e.stamp(f"xp{gp}")
        w2side.emit(0 if gp < P('WS0', 0) else 5 if gp < 2 else P('WSR', 6))
        position(gp, side, dmaq, n, bar)
    assert not w2side.q
    side.add(["s_nop 1", mfma(ACCA, ST, BEXT), mfma(ACCA + 16, ST + 2, BEXT)])
    carry = list(side.q)
    e.stamp("p1")

    KA = -2.0 * math.log2(math.e) * math.sqrt(2.0 / math.pi); KB = KA * 0.044715
    def gelu(acc, so, tb, keep=None, pk=0):
        l = []
        if pk:
            pr = lambda r: vr(r, 2)
            for k in range(0, 8, 2): l.append(f"v_pk_mul_f32 {pr(tb+k)}, {pr(acc+k)}, {pr(acc+k)}")
            for k in range(0, 8, 2): l.append(f"v_pk_fma_f32 {pr(tb+k)}, {pr(tb+k)}, {pr(AC)}, {pr(AC)} op_sel:[0,1,0] op_sel_hi:[1,1,0]")
            for k in range(0, 8, 2): l.append(f"v_pk_mul_f32 {pr(tb+k)}, {pr(tb+k)}, {pr(acc+k)}")
            for k in range(0, 8, 2): l += [f"v_exp_f32 v{tb+k}, v{tb+k}", f"v_exp_f32 v{tb+k+1}, v{tb+k+1}", f"v_pk_mul_f32 {pr(acc+k)}, {pr(acc+k)}, {pr(acc+8+k)}"]
            for k in range(0, 8, 2): l.append(f"v_pk_fma_f32 {pr(tb+k)}, {pr(tb+k)}, {pr(I2-1)}, {pr(I2-1)} op_sel:[0,1,1] op_sel_hi:[1,1,1]")
            for k in range(8): l.append(f"v_rcp_f32 v{tb+k}, v{tb+k}")
            for k in range(0, 8, 2): l.append(f"v_pk_mul_f32 {pr(acc+k)}, {pr(acc+k)}, {pr(tb+k)}")
        else:
            for k in range(8): l.append(f"v_mul_f32 v{tb+k}, v{acc+k}, v{acc+k}")
            for k in range(8): l.append(f"v_fma_f32 v{tb+k}, v{tb+k}, v{BC}, v{AC}")
            for k in range(8): l.append(f"v_mul_f32 v{tb+k}, v{tb+k}, v{acc+k}")
            for k in range(8): l += [f"v_exp_f32 v{tb+k}, v{tb+k}", f"v_mul_f32 v{acc+k}, v{acc+k}, v{acc+8+k}"]
            for k in range(8): l.append(f"v_fma_f32 v{tb+k}, v{tb+k}, v{I2}, v{I2}")
            for k in range(8): l.append(f"v_rcp_f32 v{tb+k}, v{tb+k}")
            for k in range(8): l.append(f"v_mul_f32 v{acc+k}, v{acc+k}, v{tb+k}")
        if keep is not None:
            return l + [f"v_cvt_pk_bf16_f32 v{keep+k}, v{acc+2*k}, v{acc+2*k+1}" for k in range(4)]
        for k in range(4): l.append(f"v_cvt_pk_bf16_f32 v{acc+8+k}, v{acc+2*k}, v{acc+2*k+1}")
        l.append(lambda: e.vm(f"buffer_store_dwordx4 {vr(acc+8,4)}, v{VL16}, {WS}, s{so} offen {SC}", "hs"))
        return l
    def w2t_out(side):
        t = WB
        side.add(f"""v_lshrrev_b32 v{t}, 5, v0
v_bfe_u32 v{t+1}, v0, 2, 2
v_lshl_add_u32 v{t}, v{t}, 2, v{t+1}
v_lshlrev_b32 v{t}, 7, v{t}
v_bfe_u32 v{t+1}, v0, 4, 1
v_lshl_add_u32 v{t}, v{t+1}, 5, v{t}
v_and_b32 v{t+1}, 3, v0
v_lshl_add_u32 v{t}, v{t+1}, 3, v{t}
v_add_u32 v{t}, s{S_WL}, v{t}""")
        side.add([lambda: (e.ds(f"ds_read_b64_tr_b16 {vr(PL,2)}, v{t}", "w2tr"), e.ds(f"ds_read_b64_tr_b16 {vr(PL+2,2)}, v{t} offset:1024", "w2tr"))])
        return lambda: (e.wds("w2tr"), e.vm(f"buffer_store_dwordx4 {vr(PL,4)}, v{VL16}, {WS}, s{S_WO} offen {SC}", "w2ts"))
    GEND = P("GEND", 20); GW2 = P("GW2", 22); GFQ = P("GFQ", 14)
    GX, GBN, GFL, QRATE = P("GX", 0), P("GBN", 1), P("GFL", 6 if SPLITQ else 9), P("QRATE", 40)
    def pass2(qfirst):
        side = Side(e); dq = list(dmaq); side.q = list(carry); w2st = []
        for g in range(28):
            gp = 28 + g
            pre = []; wd = []; wv = []; post = []
            if g == 0:
                if not qfirst and 'nogelu' in X: pass
                elif not qfirst:
                    side.add(["s_nop 7"])
                    ga = gelu(ACCA, H_A, G); gb = gelu(ACCA + 16, H_A + 1, G)
                    k = P('HSD', 68)
                    side.add(ga[:-1] + gb[:k] + ga[-1:] + gb[k:] if not HLATE else ga[:-1] + gb[:-1] + [f"s_mov_b32 s{S_HA}, s{S_C}"])
                else: qkv_part1(side)
            if g == 6:
                post.append(lambda: dq.extend(stage_dmas(e, 10) + [lambda: (e(f"s_add_u32 m0, s{S_WB}, {L_W2T}\ns_nop 0"),
                            e.vm(f"buffer_load_dwordx4 v{VT}, s[{SRD_T}:{SRD_T+3}], s{S_TO} offen lds", "w2td"))]))
            if g == GW2: wv.append("w2td")
            if g in (6, 14, 22): wv.append(f"d{8 + g // 8}")
            if qfirst and g == GBN: pre.append(side.flush); wd.append("kvw"); post.append(lambda: qkv_part2(side))
            if qfirst and g == GFQ and SPLITQ:
                pre.append(side.flush); wv.append("qs")
                post.append(lambda: flag_store(e, f"""s_lshl_b32 s6, s{S_RB}, 5
s_add_u32 s6, s6, s{S_QU}
s_lshl_b32 s6, s6, 2
s_add_u32 s6, s6, {F_Q}
v_mov_b32 v{WB}, s6""", 1, WB))
            if qfirst and g == GFL:
                if SPLITQ: pre.append(lambda: e(f"s_waitcnt vmcnt({len(e.q['vm']) - e.mark['kvs']})")); wd.append("kvw")
                else: pre.append(side.flush); wv.append("qs")
                post.append(lambda: flag_store(e, f"""s_lshl_b32 s6, s{S_RB}, 2
s_add_u32 s6, s6, s{S_QU}
s_lshl_b32 s6, s6, 2
s_add_u32 s6, s6, {F_KV}
v_lshlrev_b32 v{WB}, 8, v0
v_add_u32 v{WB}, s6, v{WB}""", RKV, WB))
            if g == GW2 + 1:
                q0 = side.q; side.q = []; st = w2t_out(side); side.q += q0; w2st.append(st)
            if g == 24:
                side.flush()
                for f in w2st: f()
            if g == P("GKP", 27):
                poll_issue(e, f"""s_and_b32 s6, s2, {RKV-1}
s_lshl_b32 s6, s6, 8
s_add_u32 s6, s6, {F_KV}
v_lshl_add_u32 v{PL}, v0, 2, s6""" + (f"""
s_lshl_b32 s6, s{S_RB}, 5
s_add_u32 s6, s6, s{S_QU}
s_lshl_b32 s6, s6, 2
s_add_u32 s6, s6, {F_Q}
v_mov_b32 v{PL+2}, s6
buffer_load_dword v{PL+3}, v{PL+2}, {WS}, 0 offen {SC}""" if SPLITQ else ""), PL, PL + 1, "kvp")
            if g == 25 and 'nocs' not in X:
                side.flush(); side.add(cs_write(L_CSB))
            if g == 26 and 'nocs' not in X:
                pre.append(side.flush); wd.append("csw")
                def p():
                    l, m = cs_read(L_CSB); side.add(l); side.add(m)
                post.append(p)
            bar = None
            if wd or wv:
                def bar():
                    for f in pre: f()
                    if wd: e.wds(*wd)
                    if wv: e.wvm(*wv)
                    e("s_barrier")
                    for f in post: f()
            if qfirst: n = QRATE if g < 9 else 12
            else: n = -(-len(side.q) // max(1, GEND - g)) if g < GEND else 12
            e.stamp(f"xg{g}")
            position(gp, side, dq, n, bar)
        side.flush()
        e.stamp("xpe2")
        e("s_nop 1")
        e(mfma(ACCB, ST, BEXT)); e(mfma(ACCB + 16, ST + 2, BEXT))
    RQ = PL
    def qkv_part1(side):
        side.add([f"v_mul_f32 v{RQ}, {f2u(28 ** -0.5 * math.log2(math.e))}, v{R_}", "s_nop 9"])
        for i in range(2):
            for k in range(4): side.add([f"v_mul_f32 v{G+4*i+k}, v{ACCA+16*i+12+k}, v{R_}"])
        for i in range(2): side.add([f"v_cvt_pk_bf16_f32 v{G+4*i}, v{G+4*i}, v{G+4*i+1}", f"v_cvt_pk_bf16_f32 v{G+4*i+1}, v{G+4*i+2}, v{G+4*i+3}"])
        def wr():
            l = e.newlabel("nc")
            e(f"s_cmp_eq_u32 s{S_CF}, 3\ns_cbranch_scc0 {l}\nv_mov_b32 v{G+4}, s{S_C1}\nv_mov_b32 v{G+5}, s{S_C2}")
            e.label(l)
            e(f"s_mov_b64 exec, s[{S_HI}:{S_HI+1}]")
            e.ds(f"ds_write_b64 v{QB0}, {vr(G,2)}", "kvw"); e.ds(f"ds_write_b64 v{QB1}, {vr(G+4,2)}", "kvw")
            e("s_mov_b64 exec, -1")
        side.add([wr])
    def qkv_part2(side):
        def kv():
            l = e.newlabel("kvs"); lv = e.newlabel("kvv"); ls = e.newlabel("kvt")
            e(f"""s_cmp_eq_u32 s{S_CG}, 0
s_cbranch_scc0 {l}
s_cmp_lt_u32 s{S_QU}, 2
s_cbranch_scc0 {lv}
ds_read2_b64 {vr(G+4,4)}, v{KVA} offset0:0 offset1:2
v_mov_b32 v{G+2}, v{VL16}
s_branch {ls}""")
            e.label(lv)
            e(f"""ds_read_b64_tr_b16 {vr(G+4,2)}, v{KVA}
ds_read_b64_tr_b16 {vr(G+6,2)}, v{KVA} offset:256
v_lshrrev_b32 v{G+2}, 4, v0
v_and_b32 v{G+1}, 15, v0
v_lshlrev_b32 v{G+2}, 9, v{G+2}
v_lshl_add_u32 v{G+2}, v{G+1}, 4, v{G+2}""")
            e.label(ls)
            e(f"s_waitcnt lgkmcnt(0)\nbuffer_store_dwordx4 {vr(G+4,4)}, v{G+2}, {WS}, s{S_KS} offen {SC}")
            e.label(l)
            e.mark['kvs'] = len(e.q['vm'])
        side.add([kv])
        for i in range(2):
            acc = ACCA + 16 * i
            if P('PK', 0) & 4:
                for k in range(0, 16, 2): side.add([f"v_pk_mul_f32 {vr(acc+k,2)}, {vr(acc+k,2)}, {vr(RQ,2)} op_sel_hi:[1,0]"])
            else:
                for k in range(16): side.add([f"v_mul_f32 v{acc+k}, v{acc+k}, v{RQ}"])
            for k in range(8): side.add([f"v_cvt_pk_bf16_f32 v{acc+k}, v{acc+2*k}, v{acc+2*k+1}"])
            side.add([f"v_cndmask_b32 v{acc+6}, v{acc+6}, 0, s[{S_HI}:{S_HI+1}]", f"v_cndmask_b32 v{acc+7}, v{acc+7}, 0, s[{S_HI}:{S_HI+1}]",
                      lambda acc=acc, i=i: e.vm(f"buffer_store_dwordx4 {vr(acc,4)}, v{VL16}, {WS}, s{S_QS} offen offset:{2048*i} {SC}", "qs"),
                      lambda acc=acc, i=i: e.vm(f"buffer_store_dwordx4 {vr(acc+4,4)}, v{VL16}, {WS}, s{S_QS} offen offset:{2048*i+1024} {SC}", "qs")])
    e(f"s_cmp_eq_u32 s{S_ISQ}, 1\ns_cbranch_scc1 B_p2q")
    sn = e.snap(); hs = {k: list(v) for k, v in half.items()}; ns = e.nst
    pass2(False)
    e("s_branch B_join")
    e.label("B_p2q")
    e.nst = ns
    e.restore(sn); half.update({k: list(v) for k, v in hs.items()})
    pass2(True)
    e.label("B_join")
    e.q = {'ds': [], 'vm': []}; e.done = {'ds': 0, 'vm': 0}; e.mark['kvp'] = 0
    e.stamp("join")
    return gelu, h_off, w2t_out

LB0, LB1, VO = 3, 4, 5
Q, O, S0, PP, K, V0, V1 = 36, 44, 64, 96, 104, 112, 120
FA, FB = 128, 192
XRES = 244
S_KH, S_QT = S_CG, S_RT
F0 = P("F0", 8)
FP = P("FP", 2)
HBP = P("HBP", 14)
F3 = P("F3", 40)
WOP = 18

def kv_dma(e, st):
    def m(): e(f"s_add_u32 m0, s{S_WB4}, {((st + 3) % 4) * RING}" + ("\ns_nop 0" if st < 3 else ""))
    m.scalar = True
    l = [m]
    for f in range(4):
        l.append(lambda f=f: (e.vm(f"buffer_load_dwordx4 v{VL16}, {WS}, s{S_KVO} offen offset:{1024*f} {SC} lds", f"k{st}"),
                              e(f"s_add_u32 s{S_KVO}, s{S_KVO}, 16384") if f == 3 else None))
    return l

NB = P("NB", 3)
FBUF = [[FB + 16 * n + 4 * k for k in range(4)] for n in range(3)] + [[60, 124, 248, 252]]
def f_loads(e, q):
    bb = FBUF[q % NB]
    r = q if q < 6 else q - 6
    advA = advB = None
    if q == 5:
        advA = f"s_add_u32 s{S_FA}, s{S_FA}, s{S_FQ}"
        advB = f"s_add_u32 s{S_FB0}, s{S_FB0}, s{S_K1}\ns_add_u32 s{S_FB1}, s{S_FB1}, s{S_K1}"
    else:
        if r & 1: advA = f"s_add_u32 s{S_FA}, s{S_FA}, 4096"
        if (r & 3) == 3: advB = f"s_add_u32 s{S_FB0}, s{S_FB0}, 4096\ns_add_u32 s{S_FB1}, s{S_FB1}, 4096"
    return [lambda: e.vm(f"buffer_load_dwordx4 {vr(bb[0],4)}, v{VL16}, {WS}, s{S_FA} offen offset:{(r&1)*2048} {SC}", f"f{q}"),
            lambda: e.vm(f"buffer_load_dwordx4 {vr(bb[2],4)}, v{VL16}, {WS}, s{S_FB0} offen offset:{(r&3)*1024} {SC}", f"f{q}"),
            lambda: (e.vm(f"buffer_load_dwordx4 {vr(bb[1],4)}, v{VL16}, {WS}, s{S_FA} offen offset:{(r&1)*2048+1024} {SC}", f"f{q}"),
                     e(advA) if advA else None),
            lambda: (e.vm(f"buffer_load_dwordx4 {vr(bb[3],4)}, v{VL16}, {WS}, s{S_FB1} offen offset:{(r&3)*1024} {SC}", f"f{q}"),
                     e(advB) if advB else None)]
def f_mfma(q, k):
    bb = FBUF[q % NB]; r2, d2 = ((0, 0), (0, 1), (1, 1), (1, 0))[k]
    return mfma(FA + 32*r2 + 16*d2, bb[d2], bb[2 + r2], "0" if q == 0 else None)

OAREG = [8 + 4 * k for k in range(7)] + [FB + 4 * k for k in range(9)]
def oa_dma(e, n):
    def f():
        if n == 0: e(f"s_add_u32 m0, s{S_OL}, {3 * RING}\ns_nop 0")
        if n == 4: e(f"s_mov_b32 m0, s{S_OL}\ns_add_u32 s{S_OA}, s{S_OA}, 8192")
        e.vm(f"buffer_load_dwordx4 v{VL16}, {WS}, s{S_OA} offen offset:{(n & 3) * 1024} {SC} lds", "oa")
    return f
KVPRE = P('KVPRE', 2)
HDEF = P('HDEF', 1); HFL = P('HFL', 6 if HDEF else 2); S_HO = 47
def ha_flag(e):
    flag_store(e, f"""s_lshl_b32 s6, s{S_RB}, 5
s_add_u32 s6, s6, s{S_J}
s_lshl_b32 s6, s6, 2
s_add_u32 s6, s6, {F_H + 64}
s_lshl_b32 s{S_A}, s{S_WF}, 2
s_add_u32 s{S_A}, s{S_A}, {F_W}
s_sub_u32 s{S_A}, s{S_A}, s6
v_mul_lo_u32 v{PL}, v0, s{S_A}
v_add_u32 v{PL}, s6, v{PL}""", 2, PL)

def attn_setup(e, gelu, h_off, w2t_out):
    g0 = gelu(ACCB, S_C, G, 16 if HDEF else None, P('PK', 0) & 1); g1 = gelu(ACCB + 16, S_D, G + 8, 20 if HDEF else None, P('PK', 0) & 1)
    nfirst = P("GFIRST", 0)
    both = g0 + g1
    if P('GIL', 1): both = [x for p in zip(g0, g1) for x in p]
    for it in both[:nfirst]: it() if callable(it) else e(it)
    assert nfirst == 0
    poll_check(e, PL, PL + 1, "kvp", P("KSLEEP", 1))
    if SPLITQ: poll_check(e, PL + 2, PL + 3, "kvp", P("KSLEEP", 1))
    e.all_vm()
    e("s_barrier")
    e.stamp("xkv")
    if not HLATE: ha_flag(e)
    if P("KVT", 0):
        e(f"""s_lshr_b32 s6, s2, 3
s_lshl_b32 s6, s6, 3
s_add_u32 s6, s6, s{S_W}
s_lshl_b32 s6, s6, 10
s_add_u32 s6, s6, {KVF}
v_and_b32 v{TP}, 7, v0
v_lshlrev_b32 v{TP}, 7, v{TP}""")
        e.vm(f"buffer_load_dword v{TP+1}, v{TP}, {WS}, s6 offen {SC}", "kvt")
    side = Side(e)
    side.add(kv_dma(e, 0))
    side.add([lambda: e.vm(f"buffer_load_dwordx4 {vr(Q,4)}, v{VL16}, {WS}, s{S_QO} offen {SC}", "q"),
              lambda: e.vm(f"buffer_load_dwordx4 {vr(Q+4,4)}, v{VL16}, {WS}, s{S_QO} offen offset:1024 {SC}", "q")])
    side.emit(P("KPRE0", 7))
    if HLATE:
        l = e.newlabel("hl")
        e(f"s_cmp_eq_u32 s{S_ISQ}, 1\ns_cbranch_scc1 {l}")
        for it in range(2): e(f"buffer_store_dwordx4 {vr(ACCA+16*it+8,4)}, v{VL16}, {WS}, s{S_HA} offen offset:{1024*it} {SC}")
        e.label(l)
        e.mark['hl'] = len(e.q['vm'])
        if HLATE == 2:
            sd = Side(e); w2t_out(sd); sd.flush(); e.mark['hl'] = len(e.q['vm'])
    for st in range(1, KVPRE): side.add(kv_dma(e, st))
    for n, it in enumerate(both[nfirst:]):
        it() if callable(it) else e(it)
        if n % P('GSP', 1000) == P('GSP', 1000) - 1: side.emit(1)
        if n == 68: e.stamp("xg69")
    e.stamp("xgv")
    side.flush()
    e(f"""s_lshl_b32 s6, s{S_KH}, 14
v_add_u32 v{LB0}, s6, v{VL16}
v_add_u32 v{LB1}, 0x10000, v{LB0}""")

def rd(e, dst, tile, f, tag):
    sl = (tile // 4 + 3) % 4
    e.ds(f"ds_read_b128 {vr(dst,4)}, v{LB0 if sl < 2 else LB1} offset:{(sl & 1) * RING + (tile % 4) * 4096 + f * 1024}", tag)

def attn_loop(e, withF):
    e.stamp("xge")
    if P("PRIO", 2) == 2:
        l = e.newlabel("np"); e(f"s_cmp_ge_u32 s{S_W}, 4\ns_cbranch_scc0 {l}\ns_setprio 1"); e.label(l)
    if P("PRIO", 2) == 5: e("s_setprio 0")
    if P("PRIO", 2) == 6:
        l = e.newlabel("np"); e(f"s_cmp_lt_u32 s{S_W}, 4\ns_cbranch_scc0 {l}\ns_setprio 1"); e.label(l)
    e.wvm("k0", "q")
    if HLATE: e(f"s_waitcnt vmcnt({len(e.q['vm']) - e.mark['hl']})")
    e.stamp("xk0"); e("s_barrier")
    if HLATE: ha_flag(e)
    e.stamp("astart")
    rd(e, K, 0, 0, "a"); rd(e, K + 4, 0, 1, "a"); rd(e, V0, 0, 2, "b")
    e.wds("a")
    e(mfma(S0, K, Q, "0")); e(mfma(S0, K + 4, Q + 4))
    rd(e, K, 1, 0, "b"); rd(e, K + 4, 1, 1, "b")
    e("s_nop 9")
    NT = 32
    fq = []
    nq = 0
    dq = []
    fi = 0
    need = {}; keep = []; done = [0]
    for i in range(NT):
        sc = S0 + 16 * (i & 1); sn = S0 + 16 * ((i + 1) & 1)
        v0c = V0 + 4 * (i & 1); v0n = V0 + 4 * ((i + 1) & 1)
        E = lambda r: f"v_exp_f32 v{r}, v{r}"
        C = lambda d, r: f"v_cvt_pk_bf16_f32 v{d}, v{r}, v{r+1}"
        def g(k): return [E(sc + 4*k + q) for q in range(4)] + [C(PP + 2*k, sc + 4*k), C(PP + 2*k + 1, sc + 4*k + 2)]
        g0, g1, g2, g3 = g(0), g(1), g(2), g(3)
        fm = []; fl = []
        if withF:
            if i == FP - 2:
                assert FP % 4 == 2
                fl = [lambda: poll_issue(e, f"""s_lshl_b32 s6, s{S_RB}, 7
s_add_u32 s6, s6, {F_H + 64}
s_and_b32 s7, s{S_J}, 7
s_lshl_b32 s7, s7, 8
s_add_u32 s7, s7, {F_W - 64}
v_lshl_add_u32 v{G}, v0, 2, s6
v_lshl_add_u32 v{G+1}, v0, 2, s7
v_mov_b32 v{G+2}, s6
s_mov_b32 s{S_A}, 0xffff0000
s_mov_b32 s{S_B}, 0x00000fff
s_mov_b32 s{S_C}, 0x00008888
s_mov_b32 s{S_D}, 0xfffff000
v_cndmask_b32 v{G}, v{G}, v{G+1}, s[{S_A}:{S_B}]
v_cndmask_b32 v{G}, v{G}, v{G+2}, s[{S_C}:{S_D}]""", G, G + 1, "hp")]
            if FP <= i < F0:
                if i == FP:
                    for q in range(NB - 1): fq += f_loads(e, q)
                n = -(-len(fq) // (F0 - i))
                fl = fq[:n]; fq = fq[n:]
            pb = []
            if i == HBP - 2:
                pb = [lambda: poll_issue(e, f"""s_lshl_b32 s6, s{S_RB}, 7
s_add_u32 s6, s6, {F_H}
v_and_b32 v{G}, 15, v0
v_lshl_add_u32 v{G}, v{G}, 2, s6""", G, G + 1, "hb")]
            if i == WOP - 2:
                pb = [lambda: poll_issue(e, f"""s_and_b32 s6, s{S_J}, 7
s_lshl_b32 s6, s6, 8
s_add_u32 s6, s6, {F_W + 112}
v_and_b32 v{G}, 7, v0
v_lshl_add_u32 v{G}, v{G}, 2, s6""", G, G + 1, "wo")]
            if i >= F0:
                cnt = 3 if i >= F3 else 2
                idx = list(range(fi, min(fi + cnt, 56))); fi += len(idx)
                fm = [(n // 4, n % 4) for n in idx]
                for (q, k) in fm:
                    if k == 0 and q + NB - 1 < 14:
                        if q + NB - 1 == 6: assert i > HBP
                        nl = f_loads(e, q + NB - 1)
                        for f in nl: need[id(f)] = 4 * q
                        keep.extend(nl); fq += nl
                n = min(len(fq), cnt)
                fl = fq[:n] + pb; fq = fq[n:]
        def em(x): x() if callable(x) else e(x)
        e.stamp(f"xa{i}")
        ex = [E(sc + k) for k in range(16)]; cv = [C(PP + k, sc + 2 * k) for k in range(8)]
        if i + KVPRE <= 2: dq += kv_dma(e, i + KVPRE)
        misc = []
        if i == 29: misc.append(comb_addr())
        if HDEF and i in (HDEF, HDEF + 1):
            misc.append(lambda i=i: e.vm(f"buffer_store_dwordx4 {vr(16 + 4*(i - HDEF),4)}, v{VL16}, {WS}, s{H_B} offen offset:{1024*(i - HDEF)} {SC}", "hs"))
        if withF and 22 <= i < 30: misc.append(oa_dma(e, i - 22))
        gate = withF and i == FP
        def take(n):
            for _ in range(n):
                if fl and need.get(id(fl[0]), 0) <= done[0]: em(fl.pop(0))
        per = -(-len(fl) // 2)
        if P("PRIO", 2) == 7: e("s_setprio 1")
        if P("PRIO", 2) == 9: e("s_setprio 0")
        for x in ex[0:2]: em(x)
        def fmf(n):
            if n < len(fm):
                q, k = fm[n]
                e.wvm(f"f{q}"); e(f_mfma(q, k)); done[0] += 1
        if fm and fm[0][1] == 0: e.wboth(f"f{fm[0][0]}")
        else: e.all_ds()
        if i > 0: e(mfma(O, V1, PP + 4))
        rd(e, V1, i, 3, "c")
        for x in ex[2:5]: em(x)
        fmf(0)
        if not gate: take(1 if fm else per)
        for x in cv[0:2] + ex[5:7]: em(x)
        if i + 1 < NT: e(mfma(sn, K, Q, "0")); rd(e, v0n, i + 1, 2, "c")
        for x in ex[7:10]: em(x)
        if i + 1 < NT: e(mfma(sn, K + 4, Q + 4))
        if i % 4 == 2 and i + 2 < NT:
            st = i // 4
            if withF and i == FP: poll_check(e, G, G + 1, "hp")
            if withF and i == HBP: poll_check(e, G, G + 1, "hb")
            if withF and i == WOP: poll_check(e, G, G + 1, "wo")
            while dq and i == 2: dq.pop(0)()
            e.wvm(*([f"k{st+1}"] + (["hs"] if i == HFL else []))); e("s_barrier")
            if i == HFL:
                flag_store(e, f"""s_lshl_b32 s6, s{S_RB}, 5
s_add_u32 s6, s6, s{S_J}
s_lshl_b32 s6, s6, 2
s_add_u32 s6, s6, {F_H}
v_mov_b32 v{G+2}, s6""", 1, G + 2)
            assert not dq
            if st + 3 <= 7: dq += kv_dma(e, st + 3)
        if i + 2 < NT: rd(e, K, i + 2, 0, "c"); rd(e, K + 4, i + 2, 1, "c")
        if dq and getattr(dq[0], "scalar", False): dq.pop(0)()
        if P("PRIO", 2) == 7: e("s_setprio 0")
        if P("PRIO", 2) == 9: e("s_setprio 1")
        for x in cv[2:4] + ex[10:12]: em(x)
        fmf(1)
        take(1 if fm else len(fl) if not gate else per)
        for x in ex[12:14] + cv[4:6]: em(x)
        e(mfma(O, v0c, PP, "0" if i == 0 else None))
        for _ in range(1 if i >= 2 else 2):
            if dq: dq.pop(0)()
        if len(fm) < 3: take(len(fl))
        for x in misc: em(x)
        for x in ex[14:16] + cv[6:7]: em(x)
        fmf(2); take(len(fl))
        fq = fl + fq
        em(cv[7])
        if i + 2 >= NT: e("s_nop 1")
    e.all_ds()
    e("s_nop 0")
    e(mfma(O, V1, PP + 4))
    return fi, fq

CMB = L_W2T
def comb_addr():
    T = G
    return f"""s_lshl_b32 s6, s{S_W}, 11
s_add_u32 s6, s6, {CMB}
v_add_u32 v{T}, s6, v{VL16}
v_xor_b32 v{T+1}, 8192, v{T}
s_lshl_b32 s6, s{S_W}, 8
s_add_u32 s6, s6, {CMB + 16384}
v_lshl_add_u32 v{T+2}, v0, 2, s6
v_or_b32 v{T+3}, 32, v0
s_lshl_b32 s6, s{S_QT}, 8
s_add_u32 s6, s6, {CMB + 16384}
v_lshl_add_u32 v{T+3}, v{T+3}, 2, s6
s_mov_b32 s{S_C}, {f2u(2.0 ** -64)}
s_mov_b32 s{S_D}, {f2u(2.0 ** 64)}
s_lshl_b32 s6, s{S_RB}, 9
s_add_u32 s6, s6, s{S_J}
s_lshl_b32 s6, s6, 2
s_add_u32 s6, s6, {F_O2}
v_lshl_add_u32 v6, v0, 7, s6
v_mov_b32 v7, s{S_NON}"""

def attn_finish(e, withF=False):
    T = G
    e.stamp("aend")
    if P("PEND", 0): e("s_setprio 0")
    hi = e.newlabel("chi"); jn = e.newlabel("cjn"); fb = e.newlabel("cfb"); bk = e.newlabel("cbk")
    e(f"s_cmp_eq_u32 s{S_KH}, 0\ns_nop 10")
    e.ds(f"ds_write_b32 v{T+2}, v{O+12}")
    e(f"s_cbranch_scc0 {hi}")
    e.ds(f"ds_write_b128 v{T}, {vr(O+8,4)}"); e.ds(f"ds_write_b128 v{T}, {vr(O+12,4)} offset:1024")
    e(f"s_branch {jn}")
    e.label(hi)
    e(f"ds_write_b128 v{T}, {vr(O,4)}\nds_write_b128 v{T}, {vr(O+4,4)} offset:1024")
    e.all_ds()
    for k in range(8): e(f"v_mov_b32 v{O+k}, v{O+8+k}")
    e.label(jn)
    if withF: e.wboth("oa")
    else: e.all_ds()
    e.stamp("xc0")
    e("s_barrier")
    e.stamp("xc1")
    e.ds(f"ds_read2st64_b32 {vr(PP,2)}, v{T+3} offset0:0 offset1:4", "l")
    e.ds(f"ds_read_b128 {vr(S0,4)}, v{T+1}", "h0"); e.ds(f"ds_read_b128 {vr(S0+4,4)}, v{T+1} offset:1024", "h1")
    e(f"s_mov_b32 s{S_A}, 0\ns_sub_u32 s{S_B}, 0, s{S_KH}")
    e.wds("l")
    e(f"""v_add_f32 v{PP}, v{PP}, v{PP+1}
v_rcp_f32 v{PP+1}, v{PP}
v_cmp_nle_f32 vcc, s{S_C}, v{PP}
v_cmp_nge_f32 s[{S_E}:{S_F}], s{S_D}, v{PP}""")
    e.all_ds()
    for k in range(8): e(f"v_add_f32 v{S0+k}, v{S0+k}, v{O+k}")
    e(f"s_or_b64 s[{S_E}:{S_F}], s[{S_E}:{S_F}], vcc")
    for k in range(8): e(f"v_mul_f32 v{S0+k}, v{S0+k}, v{PP+1}")
    def pack_store():
        for k in range(4): e(f"v_cvt_pk_bf16_f32 v{K+k}, v{S0+2*k}, v{S0+2*k+1}")
        e(f"""v_cndmask_b32 v{K+2}, v{K+2}, 0, s[{S_A}:{S_B}]
v_cndmask_b32 v{K+3}, v{K+3}, 0, s[{S_A}:{S_B}]""")
    pack_store()
    e.vm(f"buffer_store_dwordx4 {vr(K,4)}, v{VL16}, {WS}, s{S_OO} offen {SC}", "os")
    e(f"""v_add_f32 v{PP+2}, |v{S0}|, |v{S0+1}|
v_add_f32 v{PP+3}, |v{S0+2}|, |v{S0+3}|
v_add_f32 v{PP+4}, |v{S0+4}|, |v{S0+5}|
v_add_f32 v{PP+5}, |v{S0+6}|, |v{S0+7}|
v_add_f32 v{PP+2}, v{PP+2}, v{PP+3}
v_add_f32 v{PP+4}, v{PP+4}, v{PP+5}
s_mov_b32 s6, 0x7f7fffff
v_add_f32 v{PP+2}, v{PP+2}, v{PP+4}
v_cmp_nge_f32 vcc, s6, v{PP+2}
s_nop 1
s_or_b64 vcc, vcc, s[{S_E}:{S_F}]""")
    if 'forcefb' in X: e("s_mov_b64 vcc, 1")
    e(f"s_cbranch_vccnz {fb}")
    e.label(bk)
    FALLBACKS.append((fb, bk))
    e.stamp("xc2")

FALLBACKS = []
def fallback(e, fb, bk):
    l1 = e.newlabel("fb1"); l2 = e.newlabel("fb2"); l3 = e.newlabel("fb3")
    M = PP + 7
    e.label(fb)
    if 'fbcount' in X:
        e(f"""s_mov_b32 s80, s{P_DBG}
s_mov_b32 s81, s{P_DBG+1}
s_mov_b32 s82, 256
s_mov_b32 s83, 0x00020000
v_mov_b32 v{M}, 0
v_mov_b32 v{M-1}, 1
s_mov_b64 exec, 1
buffer_atomic_add v{M-1}, v{M}, s[80:83], 0 offen
v_mov_b32 v{M-1}, s2
buffer_store_dword v{M-1}, v{M}, s[80:83], 0 offen offset:4
v_mov_b32 v{M-1}, s{S_W}
buffer_store_dword v{M-1}, v{M}, s[80:83], 0 offen offset:8
v_mov_b32 v{M-1}, vcc_lo
buffer_store_dword v{M-1}, v{M}, s[80:83], 0 offen offset:12
v_mov_b32 v{M-1}, vcc_hi
buffer_store_dword v{M-1}, v{M}, s[80:83], 0 offen offset:16
v_mov_b32 v{M-1}, s{S_E}
buffer_store_dword v{M-1}, v{M}, s[80:83], 0 offen offset:20
v_mov_b32 v{M-1}, s{S_F}
buffer_store_dword v{M-1}, v{M}, s[80:83], 0 offen offset:24
buffer_store_dword v{PP}, v{M}, s[80:83], 0 offen offset:28
buffer_store_dword v{PP+2}, v{M}, s[80:83], 0 offen offset:32
s_waitcnt vmcnt(0)
s_mov_b64 exec, -1""")
    e(f"s_mov_b32 s6, {KVF}\nv_mov_b32 v{M}, 0xff800000")
    e.label(l1)
    e(f"""buffer_load_dwordx4 {vr(K,4)}, v{VL16}, {WS}, s6 offen {SC}
buffer_load_dwordx4 {vr(K+4,4)}, v{VL16}, {WS}, s6 offen offset:1024 {SC}
s_add_u32 s6, s6, 4096
s_waitcnt vmcnt(0)""")
    e(mfma(S0, K, Q, "0")); e(mfma(S0, K + 4, Q + 4))
    e("s_nop 11")
    for k in range(8): e(f"v_max3_f32 v{M}, v{M}, v{S0+2*k}, v{S0+2*k+1}")
    e(f"""s_cmp_lt_u32 s6, {KVF + 64*4096}
s_cbranch_scc1 {l1}
v_mov_b32 v{PP}, v{M}
s_nop 1
v_permlane32_swap_b32 v{PP}, v{M}
v_max_f32 v{M}, v{M}, v{PP}
v_cvt_pk_bf16_f32 v{PP}, v{M}, v{M}
v_and_b32 v{PP}, s{S_MASK}, v{PP}
v_sub_f32 v{PP+1}, v{M}, v{PP}
v_cvt_pk_bf16_f32 v{PP+2}, v{PP+1}, v{PP+1}
v_and_b32 v{PP+2}, s{S_MASK}, v{PP+2}
v_sub_f32 v{PP+1}, v{PP+1}, v{PP+2}
v_cvt_pk_bf16_f32 v{PP}, -v{PP}, -v{PP+2}
v_cvt_pk_bf16_f32 v{PP+1}, -v{PP+1}, 0
v_cndmask_b32 v{Q+6}, v{Q+6}, v{PP}, s[{S_HI}:{S_HI+1}]
v_cndmask_b32 v{Q+7}, v{Q+7}, v{PP+1}, s[{S_HI}:{S_HI+1}]
s_mov_b32 s6, {KVF}""")
    for k in range(16): e(f"v_mov_b32 v{O+k}, 0")
    e.label(l2)
    for f in range(4): e(f"buffer_load_dwordx4 {vr(K+4*f,4)}, v{VL16}, {WS}, s6 offen offset:{1024*f} {SC}")
    e("s_add_u32 s6, s6, 4096\ns_waitcnt vmcnt(0)")
    e(mfma(S0, K, Q, "0")); e(mfma(S0, K + 4, Q + 4))
    e("s_nop 11")
    for k in range(16): e(f"v_exp_f32 v{S0+k}, v{S0+k}")
    e("s_nop 0")
    for k in range(8): e(f"v_cvt_pk_bf16_f32 v{PP+k}, v{S0+2*k}, v{S0+2*k+1}")
    e("s_nop 1")
    e(mfma(O, K + 8, PP)); e(mfma(O, K + 12, PP + 4))
    e(f"""s_cmp_lt_u32 s6, {KVF + 64*4096}
s_cbranch_scc1 {l2}
s_nop 11
v_mov_b32 v{PP}, v{O+12}
v_mov_b32 v{PP+1}, v{O+12}
s_cmp_eq_u32 s{S_KH}, 0
s_nop 0
v_permlane32_swap_b32 v{PP}, v{PP+1}
v_rcp_f32 v{PP+1}, v{PP+1}
s_cbranch_scc1 {l3}""")
    for k in range(8): e(f"v_mov_b32 v{O+k}, v{O+8+k}")
    e.label(l3)
    e("s_nop 0")
    for k in range(8): e(f"v_mul_f32 v{S0+k}, v{O+k}, v{PP+1}")
    for k in range(4): e(f"v_cvt_pk_bf16_f32 v{K+k}, v{S0+2*k}, v{S0+2*k+1}")
    e(f"""v_cndmask_b32 v{K+2}, v{K+2}, 0, s[{S_A}:{S_B}]
v_cndmask_b32 v{K+3}, v{K+3}, 0, s[{S_A}:{S_B}]
buffer_store_dwordx4 {vr(K,4)}, v{VL16}, {WS}, s{S_OO} offen {SC}
s_waitcnt vmcnt(0)
s_branch {bk}""")

OFA, OFD = 6, 7
def o_signal(e):
    l = e.newlabel("os")
    e(f"s_cbranch_vccz {l}\ns_mov_b64 exec, 0xffff\nbuffer_store_dword v{OFD}, v{OFA}, {WS}, 0 offen {SC}\ns_mov_b64 exec, -1")
    e.label(l)

def o_flag(e):
    e.stamp("xc3")
    e(f"s_cmp_eq_u32 s{S_W}, 0\ns_cselect_b64 vcc, -1, 0")
    e.wvm("os"); e.stamp("xc4"); e("s_barrier")
    o_signal(e)

def tail(e, nq, fq):
    T = G
    SUM = 232
    RB = 64
    OBR = [96 + 4 * k for k in range(7)] + [36]
    AD = 248
    for f in fq: f()
    for n in range(nq, 56):
        q, k = n // 4, n % 4
        if k == 0 and q + NB - 1 < 14:
            for f in f_loads(e, q + NB - 1): f()
        e.wvm(f"f{q}"); e(f_mfma(q, k))
    e(f"""s_lshl_b32 s6, s{S_W}, 13
s_add_u32 s6, s6, {RING}
v_add_u32 v{AD+6}, s6, v{VL16}
v_xor_b32 v{AD+7}, 8192, v{AD+6}""")
    if nq < 56: e("s_nop 8")
    setup = Side(e)
    setup.add(f"""s_lshr_b32 s6, s{S_J}, 3
s_lshl_b32 s7, s{S_RB}, 1
s_add_u32 s6, s6, s7
s_and_b32 s{S_B}, s{S_W}, 1
s_lshl_b32 s{S_C}, s6, 1
s_add_u32 s{S_C}, s{S_C}, s{S_B}
s_mul_i32 s{S_C}, s{S_C}, 144
s_lshr_b32 s{S_A}, s{S_W}, 1
s_lshl_b32 s{S_D}, s{S_A}, 3
s_add_u32 s{S_D}, s{S_D}, 112
s_add_u32 s{S_C}, s{S_C}, s{S_D}
s_lshl_b32 s{S_C}, s{S_C}, 10
s_and_b32 s7, s{S_J}, 7
s_add_u32 s{S_D}, s{S_C}, 4096
s_lshl_b32 s{S_A}, s{S_A}, 14
s_lshl_b32 s{S_B}, s{S_B}, 13
s_add_u32 s{S_G}, s{S_A}, s{S_B}
s_add_u32 s{S_G}, s{S_G}, {RING}
v_and_b32 v{T}, 31, v0
v_lshrrev_b32 v{T+1}, 5, v0
v_and_b32 v{T+2}, 7, v0
v_xor_b32 v{T+1}, v{T+1}, v{T+2}
v_lshlrev_b32 v{T+1}, 4, v{T+1}
v_lshl_add_u32 v{T}, v{T}, 8, v{T+1}
v_add_u32 v{AD}, s{S_G}, v{T}
v_xor_b32 v{AD+1}, 32, v{AD}
v_xor_b32 v{AD+2}, 64, v{AD}
v_xor_b32 v{AD+3}, 96, v{AD}
s_lshl_b32 s6, s6, 6
s_lshl_b32 s{S_B}, s{S_W}, 3
s_add_u32 s6, s6, s{S_B}
v_lshrrev_b32 v{T}, 3, v0
v_add_u32 v{T+1}, s6, v{T}
v_mul_u32_u24 v{T+1}, 896, v{T+1}
v_lshl_add_u32 v{T+1}, v{T+2}, 4, v{T+1}
s_lshl_b32 s7, s7, 7
v_add_u32 v{VO}, s7, v{T+1}
v_lshlrev_b32 v{T+2}, 1, v{T+2}
v_xor_b32 v{T+2}, v{T+2}, v{T}
v_lshlrev_b32 v{T+2}, 4, v{T+2}
v_lshl_add_u32 v{T}, v{T}, 8, v{T+2}
s_lshl_b32 s6, s{S_W}, 11
s_add_u32 s6, s6, {RING}
v_add_u32 v{AD+4}, s6, v{T}
v_xor_b32 v{AD+5}, 16, v{AD+4}
v_add_u32 v{T+2}, {3 * RING}, v{T+3}""")
    e(f"s_lshr_b32 s6, s{S_W}, 1\ns_lshl_b32 s6, s6, 13\nv_add_u32 v{T+3}, s6, v{VL16}\ns_nop 0")
    oaq = [(lambda k=k: e.ds(f"ds_read_b128 {vr(OAREG[k],4)}, v{T+2 if k < 8 else T+3} offset:{(k & 7) * 1024}", "oar")) for k in range(16)]
    nw1 = P("NW1", 0)
    def oflag():
        e.stamp("xc3")
        e(f"s_cmp_eq_u32 s{S_W}, 0\ns_cselect_b64 vcc, -1, 0")
        e.wvm("os")
        if nw1 == 8: e.all_ds()
        e.stamp("xc4"); e("s_barrier")
        o_signal(e)
    for q in range(8):
        if q == nw1: oflag()
        e.ds(f"ds_write_b128 v{AD+6}, {vr(FA+32+4*q,4)} offset:{q*1024}")
        setup.emit(6)
    setup.flush()
    if nw1 == 8: oflag()
    if not P('OAL', 1):
        for f in oaq: f()
    e.vm(f"buffer_load_dwordx4 {vr(XRES,4)}, v{VO}, s[{SRD_X}:{SRD_X+3}], 0 offen", "xr")
    if nw1 < 8: e.all_ds(); e("s_barrier")
    for q in range(8): e.ds(f"ds_read_b128 {vr(RB+4*q,4)}, v{AD+7} offset:{q*1024}", f"p{q}")
    def olook():
        poll_issue(e, f"""s_lshl_b32 s6, s{S_RB}, 4
s_add_u32 s6, s6, s{S_J}
s_lshl_b32 s6, s6, 7
s_add_u32 s6, s6, {F_O2}
v_and_b32 v{T}, 15, v0
v_lshl_add_u32 v{T}, v{T}, 2, s6""", T, T + 1, "op")
    if P('OLATE', 1) == 0: olook()
    srd(e, SRD_OUT, P_OUT, 2048 * 896)
    for q in range(8):
        e.wds(f"p{q}")
        for k in range(4): e(f"v_add_f32 v{FA+4*q+k}, v{FA+4*q+k}, v{RB+4*q+k}")
    if P('OLATE', 1) == 2:
        for f in oaq: f()
        oaq = []
    if P('OLATE', 1): olook()
    e.stamp("t1")
    poll_check(e, T, T + 1, "op", P("OSLEEP", 1))
    e("s_barrier")
    e.stamp("t2")
    for k in range(8):
        e.vm(f"buffer_load_dwordx4 {vr(OBR[k],4)}, v{VL16}, {WS}, s{S_C if k < 4 else S_D} offen offset:{(k&3)*1024} {SC}", f"ob{k}")
    if P('OAL', 1):
        for f in oaq: f()
        e.all_ds()
    e.wvm("xr")
    for k in range(4): e(f"v_lshlrev_b32 v{SUM+2*k}, 16, v{XRES+k}\nv_and_b32 v{SUM+1+2*k}, s{S_MASK}, v{XRES+k}")
    for k in range(8):
        e.wvm(f"ob{k}")
        for d2 in range(2): e(mfma(FA + 16*d2, OAREG[2*k + d2], OBR[k]))
    e("s_nop 10")
    e.stamp("t3")
    for d2 in range(2):
        for q in range(4): e.ds(f"ds_write_b128 v{AD+q}, {vr(FA+16*d2+4*q,4)} offset:{d2*128}")
    e.all_ds()
    e("s_barrier")
    for p in range(4):
        e.ds(f"ds_read_b128 {vr(RB+8*p,4)}, v{AD+4} offset:{p*16384}", f"s{p}")
        e.ds(f"ds_read_b128 {vr(RB+8*p+4,4)}, v{AD+5} offset:{p*16384}", f"s{p}")
    for p in range(4):
        e.wds(f"s{p}")
        for k in range(8): e(f"v_add_f32 v{SUM+k}, v{SUM+k}, v{RB+8*p+k}")
    for k in range(4): e(f"v_cvt_pk_bf16_f32 v{XRES+k}, v{SUM+2*k}, v{SUM+1+2*k}")
    e.vm(f"buffer_store_dwordx4 {vr(XRES,4)}, v{VO}, s[{SRD_OUT}:{SRD_OUT+3}], 0 offen {os.environ.get('OUTF', '')}")

DOC = """;
;            one extra MFMA, 1/std folded into the GELU constants); h, q, k, v and the transposed down / output
;  tail    : o of the 16 heads, output projection, cross-wave reduction, residual, store
"""
def build():
    e = Em()
    kn = NAME + "_kernel"
    e.a.raw(f".globl {kn}\n.p2align 8\n.type {kn},@function")
    e.label(kn)
    prologue(e)
    gelu, h_off, w2t_out = phaseB(e)
    attn_setup(e, gelu, h_off, w2t_out)
    e(f"s_and_b32 s6, s{S_J}, 7\ns_cmp_eq_u32 s6, 7\ns_cbranch_scc1 C_noF")
    sn = e.snap(); ns = e.nst
    nq, fq = attn_loop(e, True)
    attn_finish(e, True)
    tail(e, nq, fq)
    nend = e.nst
    e("s_branch K_fin")
    e.label("C_noF")
    e.restore(sn); e.nst = ns
    attn_loop(e, False)
    attn_finish(e)
    o_flag(e)
    e(f"""s_cmp_eq_u32 s{S_RB}, 0
s_cbranch_scc0 C_noF_done
s_cmp_eq_u32 s{S_J}, 7
s_cbranch_scc0 C_noF_done
s_cmp_eq_u32 s{S_W}, 0
s_cbranch_scc0 C_noF_done""")
    for k in range(4):
        e(f"""v_lshrrev_b32 v{G}, 4, v0
v_and_b32 v{G+1}, 15, v0
v_lshlrev_b32 v{G}, 7, v{G}
v_lshl_add_u32 v{G}, v{G+1}, 2, v{G}
v_add_u32 v{G}, {F_H + 512*k}, v{G}""")
        e(f"buffer_load_dword v{G+1}, v{G}, {WS}, 0 offen {SC}"); e.mark[f"ep{k}"] = len(e.q['vm'])
        poll_check(e, G, G + 1, f"ep{k}")
    e(f"v_mov_b32 v{G}, {EPO}\nv_mov_b32 v{G+1}, s{S_NON}\ns_mov_b64 exec, 1\nbuffer_store_dword v{G+1}, v{G}, {WS}, 0 offen {SC}\ns_mov_b64 exec, -1")
    e.label("C_noF_done")
    while e.nst < nend and not STAMPS_OFF: e.stamp()
    e.label("K_fin")
    if os.environ.get("AMPAT") == "xfin": e("s_waitcnt vmcnt(0)"); e.stamp("xfin")
    if os.environ.get("AMPAT"):
        e("""s_waitcnt vmcnt(0)
s_memrealtime s[92:93]
s_waitcnt lgkmcnt(0)
s_sub_u32 s7, s94, s96
s_mul_i32 s7, s7, 10
K_amp:
s_sleep 1
s_memrealtime s[98:99]
s_waitcnt lgkmcnt(0)
s_sub_u32 s6, s98, s92
s_cmp_lt_u32 s6, s7
s_cbranch_scc1 K_amp""")
    if 'stdiag' in X:
        e("""s_memtime s[92:93]
s_waitcnt lgkmcnt(0)
K_sd:
s_sleep 2
s_memtime s[90:91]
s_waitcnt lgkmcnt(0)
s_sub_u32 s6, s90, s92
s_cmp_lt_u32 s6, s94
s_cbranch_scc1 K_sd""")
    if 'fix' in X:
        e("""K_fx:
s_sleep 1
s_memrealtime s[98:99]
s_waitcnt lgkmcnt(0)
s_sub_u32 s6, s98, s96
s_cmp_lt_u32 s6, 10000
s_cbranch_scc1 K_fx""")
    if 'amp' in X:
        e("""s_waitcnt vmcnt(0)
s_memrealtime s[98:99]
s_waitcnt lgkmcnt(0)
s_sub_u32 s7, s98, s96
s_mul_i32 s7, s7, 10
K_fx:
s_sleep 1
s_memrealtime s[98:99]
s_waitcnt lgkmcnt(0)
s_sub_u32 s6, s98, s96
s_cmp_lt_u32 s6, s7
s_cbranch_scc1 K_fx""")
    if STAMPS:
        e.stamp()
        e.label("K_fin2")
        e("s_memrealtime s[98:99]\ns_waitcnt lgkmcnt(0) vmcnt(0)")
        e(f"""s_mov_b32 s40, s{P_WS}
s_mov_b32 s41, s{P_WS+1}
s_mov_b32 s42, 0x10000000
s_mov_b32 s43, 0x00020000
s_lshl_b32 s6, s2, 3
s_add_u32 s6, s6, s{S_W}
s_lshl_b32 s6, s6, 6
s_add_u32 s6, s6, {STAMP_WS}
v_mov_b32 v2, s96
v_mov_b32 v3, s98""")
        for k in range(10): e(f"v_mov_b32 v{4+k}, {'s%d' % (76+2*k) if k < e.nst else 0}")
        e("v_mov_b32 v1, 0\ns_mov_b64 exec, 1")
        for q in range(3): e(f"buffer_store_dwordx4 v[{2+4*q}:{5+4*q}], v1, s[40:43], s6 offen offset:{16*q}")
    e("s_endpgm")
    for fb, bk in FALLBACKS: fallback(e, fb, bk)
    e.label("K_end")
    e("s_endpgm")
    probs = check_hazards(e.a.lines, "k")
    hdr = open("cdna_kernels/" + NAME + ".s.ref").read().split("; Override launch")[0]
    out = hdr + f"; @launch grid=(256,1,1) block=(512,1,1) lds={LDS_BYTES}\n"
    out += DOC + '.amdgcn_target "amdgcn-amd-amdhsa--gfx950"\n.text\n' + e.a.text()
    out += f""".section .rodata,"a"
.p2align 6
.amdhsa_kernel {kn}
  .amdhsa_next_free_vgpr 256
  .amdhsa_next_free_sgpr 102
  .amdhsa_accum_offset 256
  .amdhsa_group_segment_fixed_size 0
  .amdhsa_kernarg_size 96
  .amdhsa_user_sgpr_count 2
  .amdhsa_user_sgpr_kernarg_segment_ptr 1
  .amdhsa_system_sgpr_workgroup_id_x 1
  .amdhsa_float_denorm_mode_32 3
.end_amdhsa_kernel
"""
    return out, probs

if __name__ == "__main__":
    out, probs = build()
    for p in probs: print("HAZARD", p, file=sys.stderr)
    open(sys.argv[1] if len(sys.argv) > 1 else "cdna_kernels/" + NAME + ".s", "w").write(out)
```

```python
import sys, os, math, struct
from asmlib import *
X = set(os.environ.get('XFLAGS', '').split(','))
def P(name, default): return int(os.environ.get(name, default))
NAME = "parallel_sum__grouped_kv_mqa__glu_gated_geglu__prompt"
def f2u(x): return struct.unpack("<I", struct.pack("<f", x))[0]

A2F = 0
W2T = 64 * 144 * 1024
QF  = W2T + 7 * 144 * 2048
KVF = QF + 64 * 16 * 2048
FLG = KVF + 64 * 4096
RKV = P("RKV", 16)
F_W  = FLG
F_H  = FLG + 2048
F_O  = FLG + 4096
EPO  = FLG + 6144
F_Q  = FLG + 4096
SPLITQ = P('SPLITQ', 1)
F_KV = FLG + 8192
F_O2 = F_KV + 256 * RKV
STAT = F_O2 + 32768
WS_END = STAT + 2048 * 8
OOB = 0x7ffffff0
P_X, P_WQ, P_WK, P_WV, P_WO, P_BX, P_WG, P_WU, P_WD, P_OUT, P_DBG, P_WS = 8, 10, 12, 14, 16, 18, 20, 22, 24, 26, 28, 30
SRD_X, SRD_WS, SRD_T, SRD_PC = 32, 36, 40, 44
SRD_OUT = SRD_T
S_W, S_RB, S_J = 3, 4, 5
(S_WB, S_MASK, S_XO, S_XO2, S_RT, S_CG, S_MUL, S_T0, S_T1, S_U, S_NON, S_LA, S_LB, S_TO, S_QU) = range(48, 63)
S_HI = 64
S_A, S_B, S_C, S_D, S_E, S_F = 66, 67, 68, 69, 70, 71
S_G, S_H2 = 72, 73
S_CNT = 74
WS = f"s[{SRD_WS}:{SRD_WS+3}]"
SC = "sc1"
STAMPS = bool(os.environ.get("STAMPS"))
STAMP_WS = 200 * 1024 * 1024
SPIN_MAX = 1 << 21
STAMPS_OFF = False

class Em:
    def __init__(s):
        s.a = Asm(); s.q = {'ds': [], 'vm': []}; s.done = {'ds': 0, 'vm': 0}; s.nst = 0; s.uid = 0; s.mark = {}
    def __call__(s, t): s.a(t)
    def label(s, l): s.a.label(l)
    def ds(s, ins, tag=None): s.a(ins); s.q['ds'].append(tag)
    def vm(s, ins, tag=None): s.a(ins); s.q['vm'].append(tag)
    def _n(s, k, tags, cap):
        idx = -1
        for t in tags:
            ii = [i for i, x in enumerate(s.q[k]) if x == t]
            if not ii and 'nodma' in X: continue
            assert ii, f"tag {t} never issued"
            idx = max(idx, ii[-1])
        if idx < s.done[k]: return None
        n = min(len(s.q[k]) - 1 - idx, cap)
        s.done[k] = len(s.q[k]) - n
        return n
    def wds(s, *tags):
        n = s._n('ds', tags, 15)
        if n is not None: s.a(f"s_waitcnt lgkmcnt({n})")
    def wvm(s, *tags):
        n = s._n('vm', tags, 63)
        if n is not None: s.a(f"s_waitcnt vmcnt({n})")
    def wboth(s, *tags):
        n = s._n('vm', tags, 63)
        s.a("s_waitcnt lgkmcnt(0)" if n is None else f"s_waitcnt vmcnt({n}) lgkmcnt(0)"); s.done['ds'] = len(s.q['ds'])
    def all_ds(s): s.a("s_waitcnt lgkmcnt(0)"); s.done['ds'] = len(s.q['ds'])
    def all_vm(s): s.a("s_waitcnt vmcnt(0)"); s.done['vm'] = len(s.q['vm'])
    def snap(s): return ({k: list(v) for k, v in s.q.items()}, dict(s.done))
    def restore(s, sn): s.q = {k: list(v) for k, v in sn[0].items()}; s.done = dict(sn[1])
    def stamp(s, name=None):
        if name is not None and name == os.environ.get("IDLEAT"): s.a("s_sleep 32")
        if name is not None and name == os.environ.get("AMPAT"):
            s.a("s_memrealtime s[94:95]"); s.all_ds()
        sel = os.environ.get("STSEL")
        if sel is not None and name is not None and name not in sel.split(","): return
        if sel is None and name is not None and name.startswith("x"): return
        if STAMPS and not STAMPS_OFF:
            assert s.nst < 10
            s.a(f"{'s_memrealtime' if os.environ.get('RT') else 's_memtime'} s[{76+2*s.nst}:{77+2*s.nst}]"); s.nst += 1
            s.all_ds()
    def newlabel(s, p): s.uid += 1; return f"{p}_{s.uid}"

def srd(e, d, p, nbytes):
    e(f"s_mov_b32 s{d}, s{p}\ns_mov_b32 s{d+1}, s{p+1}\ns_mov_b32 s{d+2}, {nbytes}\ns_mov_b32 s{d+3}, 0x00020000")
def mfma(d, A, B, C=None):
    return f"v_mfma_f32_32x32x16_bf16 {vr(d,16)}, {vr(A,4)}, {vr(B,4)}, {vr(d,16) if C is None else C}"
def mfma16(d, A, B, C=None):
    return f"v_mfma_f32_16x16x32_bf16 {vr(d,4)}, {vr(A,4)}, {vr(B,4)}, {vr(d,4) if C is None else C}"

class Side:
    def __init__(s, e): s.e = e; s.q = []
    def add(s, items):
        if isinstance(items, str):
            raw = [l.strip() for l in items.strip().split("\n") if l.strip()]
            items = []
            for l in raw:
                if l.startswith("s_cselect"): items[-1] += "\n" + l
                else: items.append(l)
        s.q += list(items)
    def emit(s, n):
        while n > 0 and s.q:
            it = s.q.pop(0)
            if callable(it): it()
            else: s.e(it)
            n -= 1
    def flush(s): s.emit(1 << 30)

def flag_store(e, addr_lines, nlanes, vt):
    l = e.newlabel("fl")
    e(f"s_cmp_eq_u32 s{S_W}, 0\ns_cbranch_scc0 {l}")
    e(addr_lines)
    e(f"v_mov_b32 v{vt+1}, s{S_NON}\ns_mov_b64 exec, {(1 << nlanes) - 1}\nbuffer_store_dword v{vt+1}, v{vt}, {WS}, 0 offen {SC}\ns_mov_b64 exec, -1")
    e.label(l)

def poll_issue(e, addr_lines, vaddr, vdat, tag):
    l = e.newlabel("pi")
    e(f"s_cmp_eq_u32 s{S_W}, 0\ns_cbranch_scc0 {l}")
    e(addr_lines)
    e(f"buffer_load_dword v{vdat}, v{vaddr}, {WS}, 0 offen {SC}")
    e.label(l)
    e.mark[tag] = len(e.q['vm'])

def poll_check(e, vaddr, vdat, tag, sleep=None):
    ok = e.newlabel("pok"); sp = e.newlabel("psp")
    e(f"s_cmp_eq_u32 s{S_W}, 0\ns_cbranch_scc0 {ok}")
    e(f"s_waitcnt vmcnt({min(63, len(e.q['vm']) - e.mark[tag])})")
    e(f"v_cmp_ne_u32 vcc, s{S_NON}, v{vdat}\ns_cbranch_vccz {ok}\ns_mov_b32 s{S_CNT}, {SPIN_MAX}")
    e.label(sp)
    e(f"""s_sleep {P('SLEEP', 4) if sleep is None else sleep}
buffer_load_dword v{vdat}, v{vaddr}, {WS}, 0 offen {SC}
s_sub_u32 s{S_CNT}, s{S_CNT}, 1
s_waitcnt vmcnt(0)
v_cmp_ne_u32 vcc, s{S_NON}, v{vdat}
s_cmp_eq_u32 s{S_CNT}, 0
s_cbranch_scc1 {ok}
s_cbranch_vccnz {sp}""")
    if 'spincnt' in X and tag in SPINIDX: e(f"s_sub_u32 s{78 + 2 * SPINIDX[tag]}, {SPIN_MAX + 1000}, s{S_CNT}")
    e.label(ok)
SPINIDX = {'kvp': 0, 'hp': 1, 'hb': 2, 'wo': 3, 'op': 4}

RING = 32768
L_W2T = 131072
L_CSA = L_W2T + 8192
L_CSB = L_CSA + 2048
L_ST  = L_CSB + 2048
L_KVB = L_ST + 4096
L_FLG = L_KVB + 4096
LDS_BYTES = L_FLG + 256

VL16, VT, VX, GA, GS = 1, 2, 3, 4, 6
XA, WA = 8, 12
ST, SEL, CSA, WF, TM = 20, 24, 28, 36, 60
ACCA, ACCB, XR, G = 64, 96, 128, 240
SQA, SQB, TP = 60, 240, 248
WB, GB, PL = 250, 102, 252
R_, S_, AC, BC, I2 = 8, 9, 10, 11, 3
BEXT = 60


TA, TS, TX, TD = 96, 98, 99, 100
S_ISQ, S_SH = 63, 75
RW = 104
def w_source(row, c, dst, gs, t0):
    return f"""v_cmp_le_u32 vcc, s{S_A}, v{c}
v_mul_lo_u32 v{dst}, v{row}, s{S_B}
v_lshl_add_u32 v{dst}, v{c}, 4, v{dst}
v_add_u32 v{dst}, s{S_C}, v{dst}
v_subrev_u32 v{c}, s{S_A}, v{c}
v_lshlrev_b32 v{c}, s{S_G}, v{c}
v_mul_lo_u32 v{t0}, v{row}, s{S_D}
v_add3_u32 v{t0}, v{t0}, v{c}, s{S_H2}
v_cndmask_b32 v{dst}, v{dst}, v{t0}, vcc
v_mov_b32 v{gs}, s{S_B}
v_mov_b32 v{t0}, s{S_D}
v_cndmask_b32 v{gs}, v{gs}, v{t0}, vcc
v_lshlrev_b32 v{gs}, 5, v{gs}"""

ROTS = {0: [0]*8, 1: [0, 3, 2, 5, 4, 0, 6, 2], 2: [0, 3, 3, 0, 0, 3, 3, 0], 3: [0, 1, 2, 3, 4, 5, 6, 0], 4: [0, 4, 1, 5, 2, 6, 3, 0]}
ROTTAB = sum(v << (4 * i) for i, v in enumerate(ROTS[P("ROT", 0)]))
S_ROT = 47
S_KVO, S_WB4, S_FA, S_FB0, S_FB1, S_OO, S_FQ, S_K1, S_OA, S_OL = 15, 18, 19, 20, 21, 22, 23, 28, 29, 44
HLATE = P('HLATE', 0); S_HA = 45
S_WF = 46
RPAR, RBIT = P("RPAR", 0), P("RBIT", 0)
RPARCODE = "" if not RPAR else f"""
s_lshr_b32 s{S_F}, s2, 3
s_lshr_b32 s{S_T0}, s2, 6
s_xor_b32 s{S_F}, s{S_F}, s{S_T0}
s_and_b32 s{S_F}, s{S_F}, {RBIT or 1}
s_mul_i32 s{S_F}, s{S_F}, {RPAR}
s_add_u32 s{S_XO}, s{S_XO}, s{S_F}
s_cmp_ge_u32 s{S_XO}, 7
s_cselect_b32 s{S_F}, 7, 0
s_sub_u32 s{S_XO}, s{S_XO}, s{S_F}"""
def prologue(e):
    T = TM
    ROTCODE = f"""s_and_b32 s{S_XO}, s2, 7
s_lshl_b32 s{S_XO}, s{S_XO}, 2
s_lshr_b32 s{S_XO}, {ROTTAB:#x}, s{S_XO}
s_and_b32 s{S_XO}, s{S_XO}, 7{RPARCODE}
s_mov_b32 s{S_ROT}, s{S_XO}
s_lshl_b32 s{S_F}, s{S_XO}, 6
s_lshl_b32 s{S_XO}, s{S_XO}, 7
v_add_u32 v{T+2}, s{S_F}, v{T+2}
""" if any(ROTS[P('ROT', 0)]) or RPAR else f"s_mov_b32 s{S_ROT}, 0\n"
    e(f"s_cmp_ge_u32 s2, 256\ns_cbranch_scc1 K_end")
    if STAMPS or 'fix' in X or 'amp' in X or os.environ.get("AMPAT"): e("s_memrealtime s[96:97]")
    e.stamp()
    if 'spincnt' in X:
        for k in range(6): e(f"s_movk_i32 s{78 + 2*k}, 1000")
        e.nst = 7
    e("s_load_dwordx16 s[8:23], s[0:1], 0\ns_load_dwordx8 s[24:31], s[0:1], 64")
    e(f"s_getpc_b64 s[{SRD_PC}:{SRD_PC+1}]")
    e.label("K_pc")
    e(f"""s_mov_b32 s{SRD_PC+2}, K_end-K_pc
s_mov_b32 s{SRD_PC+3}, 0x00020000""")
    if P("CPF", 1):
        e(f"s_lshr_b32 s6, s2, 3\ns_lshl_b32 s6, s6, 11\nv_lshrrev_b32 v1, 5, v0\nv_lshl_add_u32 v1, v1, 7, s6")
    else: e("v_lshlrev_b32 v1, 7, v0")
    e.vm(f"buffer_load_dword v{TD}, v1, s[{SRD_PC}:{SRD_PC+3}], 0 offen")
    T = TM
    e(f"""v_lshrrev_b32 v1, 6, v0
v_and_b32 v0, 63, v0
v_readfirstlane_b32 s{S_W}, v1
s_nop 1""")
    e(f"""s_lshl_b32 s{S_TG}, s2, 3
s_add_u32 s{S_TG}, s{S_TG}, s{S_W}
s_mul_i32 s6, s{S_TG}, 896
v_lshl_add_u32 v{TX}, v0, 4, s6
v_cmp_lt_u32 vcc, 55, v0
v_mov_b32 v{TX+2}, {OOB}
s_nop 0
v_cndmask_b32 v{TX}, v{TX}, v{TX+2}, vcc""")
    WT = f"""s_min_u32 s6, s{S_TG}, 1393
s_cmp_ge_u32 s6, 448
s_cselect_b32 s{SRD_T}, s{P_WU}, s{P_WG}
s_cselect_b32 s{SRD_T+1}, s{P_WU+1}, s{P_WG+1}
s_cselect_b32 s{S_A}, 448, 0
s_mov_b32 s{S_D}, {448*3584}
s_cmp_ge_u32 s6, 896
s_cselect_b32 s{SRD_T}, s{P_WQ}, s{SRD_T}
s_cselect_b32 s{SRD_T+1}, s{P_WQ+1}, s{SRD_T+1}
s_cselect_b32 s{S_A}, 896, s{S_A}
s_cselect_b32 s{S_B}, 6, 11
s_cselect_b32 s{S_C}, 7, 28
s_cselect_b32 s{S_D}, {448*896}, s{S_D}
s_cmp_ge_u32 s6, 1344
s_cselect_b32 s{SRD_T}, s{P_WK}, s{SRD_T}
s_cselect_b32 s{SRD_T+1}, s{P_WK+1}, s{SRD_T+1}
s_cselect_b32 s{S_A}, 1344, s{S_A}
s_cselect_b32 s{S_B}, 7, s{S_B}
s_cselect_b32 s{S_C}, 8, s{S_C}
s_cselect_b32 s{SRD_T+2}, {448*56}, s{S_D}
s_cmp_ge_u32 s6, 1369
s_cselect_b32 s{SRD_T}, s{P_WV}, s{SRD_T}
s_cselect_b32 s{SRD_T+1}, s{P_WV+1}, s{SRD_T+1}
s_cselect_b32 s{S_A}, 1369, s{S_A}
s_mov_b32 s{SRD_T+3}, 0x00020000
s_sub_u32 s6, s6, s{S_A}
s_mul_i32 s6, s6, s{S_C}
v_min_u32 v{TA}, s{S_B}, v0
v_add_u32 v{TA}, s6, v{TA}
v_lshlrev_b32 v{TA}, 7, v{TA}"""
    e(f"""
s_bfe_u32 s{S_RB}, s2, 0x20001
s_lshl_b32 s{S_RB}, s{S_RB}, 2
s_lshr_b32 s6, s2, 6
s_add_u32 s{S_RB}, s{S_RB}, s6
s_and_b32 s{S_J}, s2, 1
s_lshl_b32 s{S_J}, s{S_J}, 3
s_bfe_u32 s7, s2, 0x30003
s_add_u32 s{S_J}, s{S_J}, s7
s_lshr_b32 s{S_QU}, s{S_J}, 2
s_sub_u32 s{S_LA}, s{S_J}, s{S_QU}
s_lshl_b32 s{S_WB}, s{S_W}, 10
s_lshl_b32 s{S_C}, s{S_LA}, 7
s_mul_i32 s{S_E}, s{S_QU}, 224
s_and_b32 s{S_F}, s{S_QU}, 1
s_sub_u32 s{S_G}, 4, s{S_F}
s_lshl_b32 s{S_F}, s{S_F}, 5
s_movk_i32 s{S_D}, 3584
s_and_b32 s{S_ISQ}, s{S_J}, 3
s_cmp_eq_u32 s{S_ISQ}, 3
s_cselect_b32 s{S_ISQ}, 1, 0
s_cselect_b32 s{S_A}, 14, 8
s_cselect_b32 s{S_B}, 896, s{S_D}
s_cselect_b32 s{S_D}, 56, s{S_D}
s_cselect_b32 s{S_H2}, s{S_F}, s{S_C}
s_cselect_b32 s{S_C}, s{S_E}, s{S_C}
s_cselect_b32 s{S_G}, s{S_G}, 4
s_add_u32 s{S_SH}, s{S_ISQ}, 1
s_lshl_b32 s{S_E}, s{S_RB}, 7
s_lshl_b32 s{S_F}, s{S_W}, 3
s_add_u32 s{S_F}, s{S_F}, s{S_E}
v_lshrrev_b32 v{T}, 3, v0
v_add_u32 v{T}, s{S_F}, v{T}
v_mul_u32_u24 v{T}, 896, v{T}
s_lshl_b32 s{S_F}, s{S_W}, 2
v_lshrrev_b32 v{T+1}, 4, v0
v_add_u32 v{T+2}, s{S_F}, v{T+1}
v_xor_b32 v{T+3}, v{T+2}, v0
v_and_b32 v{T+3}, 7, v{T+3}
v_lshl_add_u32 v{VX}, v{T+3}, 4, v{T}
{ROTCODE}v_lshlrev_b32 v{T+1}, s{S_SH}, v{T+1}
v_xor_b32 v{T+1}, v{T+1}, v0
v_and_b32 v{T+1}, 15, v{T+1}""")
    e(w_source(T + 2, T + 1, G, GS, T))
    e(f"s_mov_b64 s[{S_HI}:{S_HI+1}], vcc")
    if TOUCH:
        e(f"""s_and_b32 s6, s6, 3
s_lshl_b32 s6, s6, 3
s_add_u32 s6, s6, s{S_W}
s_lshl_b32 s6, s6, 1
s_lshl_b32 s7, s7, 3
s_add_u32 s7, s7, s{S_W}
s_lshl_b32 s7, s7, 1
s_add_u32 s7, s7, s{S_E}
v_bfe_u32 v{T+2}, v0, 3, 1
v_bfe_u32 v{T+1}, v0, 2, 1
v_lshl_add_u32 v{T+2}, v{T+2}, 6, v{T+1}
v_add_u32 v{T+2}, s6, v{T+2}
v_and_b32 v{T+1}, 3, v0
v_lshlrev_b32 v{T+1}, 2, v{T+1}
v_lshrrev_b32 v{T+1}, v{T+1}, s{S_MASK}
v_and_b32 v{T+1}, 15, v{T+1}
v_and_b32 v{T}, 1, v0
v_add_u32 v{T}, s7, v{T}
v_mul_u32_u24 v{TX}, 896, v{T}
v_bfe_u32 v{T}, v0, 1, 1
v_lshl_add_u32 v{TX}, v{T}, 7, v{TX}""".replace(f"v_lshrrev_b32 v{T+1}, v{T+1}, s{S_MASK}", f"s_movk_i32 s6, 0xed80\nv_lshrrev_b32 v{T+1}, v{T+1}, s6"))
        e(w_source(T + 2, T + 1, G + 1, TS, T))
    e("s_waitcnt lgkmcnt(0)")
    e.stamp("xs0")
    if 'stdiag' in X:
        e(f"""s_mov_b32 s40, s{P_WS}
s_mov_b32 s41, s{P_WS+1}
s_mov_b32 s42, 0x10000000
s_mov_b32 s43, 0x00020000
s_lshl_b32 s90, s2, 3
s_add_u32 s90, s90, s{S_W}
s_lshl_b32 s90, s90, 10
s_add_u32 s90, s90, {P('DOFF', 100) * 1024 * 1024}
v_lshlrev_b32 v110, 4, v0
buffer_store_dwordx4 v[112:115], v110, s[40:43], s90 offen sc1
s_waitcnt vmcnt(0)
s_add_u32 s90, s90, 0x200000
s_barrier
s_memtime s[92:93]
s_waitcnt lgkmcnt(0)
buffer_store_dwordx4 v[112:115], v110, s[40:43], s90 offen sc1
s_waitcnt vmcnt(0)
s_barrier
s_memtime s[94:95]
s_waitcnt lgkmcnt(0)
s_sub_u32 s94, s94, s92
s_mul_i32 s94, s94, 100""")
    srd(e, SRD_X, P_X, 2048 * 896)
    if GT:
        if not P("ROWL", 0): e.vm(f"buffer_load_dwordx4 {vr(RW,4)}, v{TX}, s[{SRD_X}:{SRD_X+3}], 0 offen", "row")
        if GT & 2 and not P("PRO", 1): e.vm(f"buffer_load_dword v{TD}, v{TA}, s[{SRD_T}:{SRD_T+3}], {'s%d' % S_TS if P('GTS', 0) else 0} offen", "t")
        if P("GTW", 0): e.wvm("row")
    if P("XE", 1): dma_x(e, 0, 0)(); dma_x(e, 0, 1)()
    if P("PRO", 1) == 2:
        e(WT); e.vm(f"buffer_load_dword v{TD}, v{TA}, s[{SRD_T}:{SRD_T+3}], 0 offen", "t")
    e(f"""s_cmp_lt_u32 s{S_QU}, 2
s_cselect_b32 s{S_C}, s{P_WK}, s{P_WV}
s_cselect_b32 s{S_D}, s{P_WK+1}, s{P_WV+1}
s_cmp_eq_u32 s{S_ISQ}, 1
s_cselect_b32 s{S_A}, s{P_WQ}, s{P_WG}
s_cselect_b32 s{S_B}, s{P_WQ+1}, s{P_WG+1}
s_cselect_b32 s{S_C}, s{S_C}, s{P_WU}
s_cselect_b32 s{S_D}, s{S_D}, s{P_WU+1}
v_mov_b32 v{T}, s{S_A}
v_mov_b32 v{T+1}, s{S_B}
v_mov_b32 v{T+2}, s{S_C}
v_mov_b32 v{T+3}, s{S_D}""")
    if TOUCH:
        e(f"""v_cndmask_b32 v{TA}, v{T}, v{T+2}, vcc
v_cndmask_b32 v{TA+1}, v{T+1}, v{T+3}, vcc
v_add_co_u32 v{TA}, vcc, v{TA}, v{G+1}
v_cndmask_b32 v{GA}, v{T}, v{T+2}, s[{S_HI}:{S_HI+1}]
v_cndmask_b32 v{GA+1}, v{T+1}, v{T+3}, s[{S_HI}:{S_HI+1}]
v_addc_co_u32 v{TA+1}, vcc, 0, v{TA+1}, vcc""")
        touch(e, 0)()
    else:
        e(f"""v_cndmask_b32 v{GA}, v{T}, v{T+2}, s[{S_HI}:{S_HI+1}]
v_cndmask_b32 v{GA+1}, v{T+1}, v{T+3}, s[{S_HI}:{S_HI+1}]""")
    e(f"v_add_co_u32 v{GA}, vcc, v{GA}, v{G}\nv_mov_b32 v{GS+1}, 0")
    if 'gonly' in X: e.all_vm(); e.stamp()
    if not P("XE", 1): dma_x(e, 0, 0)()
    else: e("s_nop 0")
    e(f"v_addc_co_u32 v{GA+1}, vcc, 0, v{GA+1}, vcc")
    e.WT = WT

TOUCH = P("TOUCH", 0)
GT = P("GT", 3)
ROT = P("ROT", 0)
LDX = os.environ.get("LDX", ""); LDW = os.environ.get("LDW", ""); LDT = os.environ.get("LDT", "")
def touch(e, k):
    def f():
        st = (0, 2, 4, 5)[k]
        e.vm(f"global_load_dword v{TD}, {vr(TA,2)}, off", f"t{k}")
        e(f"s_movk_i32 s{S_XO2}, {st * 128}")
        e.vm(f"buffer_load_dword v{TD}, v{TX}, s[{SRD_X}:{SRD_X+3}], s{S_XO2} offen", f"t{k}")
        if k < 3: e(f"v_mad_u64_u32 {vr(TA,2)}, s[{S_E}:{S_E+1}], v{TS}, {4 if k < 2 else 2}, {vr(TA,2)}")
    return f
S_TG, S_TS = 61, 57
def gtouch(e, st):
    def f():
        e(f"s_mul_i32 s{S_XO2}, s{S_TS}, {st}")
        e.vm(f"buffer_load_dword v{TD}, v{TA}, s[{SRD_PC}:{SRD_PC+3}], s{S_XO2} offen {LDT}", "t")
        e(f"s_movk_i32 s{S_XO2}, {st * 128}")
        e.vm(f"buffer_load_dword v{TD}, v{TX}, s[{SRD_X}:{SRD_X+3}], s{S_XO2} offen {LDT}", "t")
    return f
def dma_x(e, sig, i):
    def f():
        e(f"s_add_u32 m0, s{S_WB}, {(sig % 4) * RING + i * 8192}")
        if i == 0: e("s_nop 0"); so = S_XO
        else: e(f"s_add_u32 s{S_XO2}, s{S_XO}, {64*896}"); so = S_XO2
        e.vm(f"buffer_load_dwordx4 v{VX}, s[{SRD_X}:{SRD_X+3}], s{so} offen {LDX} lds", f"d{sig}")
    return f
def dma_w(e, sig, off, i, first=False):
    def f():
        if i == 0 and not first:
            e(f"s_add_u32 s{S_XO}, s{S_XO}, 128\ns_cmp_eq_u32 s{S_XO}, 896\ns_cselect_b32 s{S_XO}, 0, s{S_XO}\ns_cselect_b32 s{S_MUL}, -13, 1")
        e(f"s_add_u32 m0, s{S_WB}, {(sig % 4) * RING + off + i * 8192}")
        if first == 2: e(f"s_add_u32 s{S_XO}, s{S_XO}, 128\ns_cmp_eq_u32 s{S_XO}, 896\ns_cselect_b32 s{S_XO}, 0, s{S_XO}")
        elif first: e("s_nop 0")
        elif i == 0: e(f"v_mad_i64_i32 {vr(GA,2)}, s[{S_E}:{S_E+1}], v{GS}, s{S_MUL}, {vr(GA,2)}")
        else: e(f"v_lshl_add_u64 {vr(GA,2)}, {vr(GS,2)}, 0, {vr(GA,2)}")
        e.vm(f"global_load_lds_dwordx4 {vr(GA,2)}, off {LDW}", f"d{sig}")
    return f
if not any(ROTS[P("ROT", 0)]) and not RPAR:
    def dma_x(e, sig, i):
        def f():
            e(f"s_add_u32 m0, s{S_WB}, {(sig % 4) * RING + i * 8192}\ns_mov_b32 s{S_XO}, {sig * 128 + i * 64 * 896}")
            e.vm(f"buffer_load_dwordx4 v{VX}, s[{SRD_X}:{SRD_X+3}], s{S_XO} offen {LDX} lds", f"d{sig}")
        return f
    def dma_w(e, sig, off, i, first=False):
        def f():
            e(f"s_add_u32 m0, s{S_WB}, {(sig % 4) * RING + off + i * 8192}")
            e("s_nop 0" if first else f"v_lshl_add_u64 {vr(GA,2)}, {vr(GS,2)}, 0, {vr(GA,2)}")
            e.vm(f"global_load_lds_dwordx4 {vr(GA,2)}, off {LDW}", f"d{sig}")
        return f
def stage_dmas(e, sig):
    if 'nodma' in X and 2 <= sig: return [(lambda: e.q['vm'].append(f'd{sig}') or e.q['vm'].pop() if False else None)] if False else [lambda: None]
    if sig == 0: return [dma_x(e, sig, 0), dma_w(e, sig, 16384, 0, True), dma_x(e, sig, 1), dma_w(e, sig, 16384, 1)]
    if sig < 7: return [dma_w(e, sig, 16384, 0), dma_x(e, sig, 0), dma_w(e, sig, 16384, 1), dma_x(e, sig, 1)]
    l = []
    if sig == 7: l.append(lambda: e(f"v_mov_b32 v{GA}, v{GB}\nv_mov_b32 v{GA+1}, v{GB+1}\nv_mov_b32 v{GS}, {32*3584}"))
    l += [dma_w(e, sig, 0, 0, 2 if sig == 7 else False), dma_w(e, sig, 0, 1)]
    if sig < 10: l += [dma_w(e, sig, 16384, 0), dma_w(e, sig, 16384, 1)]
    return l

def late_touch(e):
    if P('GTS', 0):
        e(f"s_xor_b32 s{S_TS}, s{S_TS}, {OOB}")
        e.vm(f"buffer_load_dword v{TD}, v{TA}, s[{SRD_T}:{SRD_T+3}], s{S_TS} offen", "t")

def h_off(line, dst):
    return f"""s_lshl_b32 s6, s{S_RB}, 2
s_add_u32 s6, s6, s{S_RT}
s_mul_i32 s6, s6, 144
s_lshl_b32 s{dst}, s{line}, 2
s_add_u32 s6, s6, s{dst}
s_add_u32 s6, s6, s{S_T0}
s_lshl_b32 s{dst}, s6, 10
s_add_u32 s{dst+1}, s{dst}, 1024"""
H_A, H_B = 10, 12
S_QO = 14
HOIST = P("HOIST", 4)
def f_scalars():
    return f"""s_lshr_b32 s6, s{S_J}, 3
s_lshl_b32 s7, s{S_RB}, 1
s_add_u32 s6, s6, s7
s_and_b32 s7, s{S_J}, 7
s_mul_i32 s{S_A}, s{S_W}, 6
s_lshl_b32 s{S_K1}, s{S_W}, 1
s_add_u32 s{S_K1}, s{S_K1}, 44
s_lshl_b32 s{S_K1}, s{S_K1}, 10
s_lshl_b32 s{S_FQ}, s{S_K1}, 1
s_mul_i32 s{S_FB0}, s6, 288
s_add_u32 s{S_FB0}, s{S_FB0}, s{S_A}
s_lshl_b32 s{S_FB0}, s{S_FB0}, 10
s_add_u32 s{S_FB1}, s{S_FB0}, {144*1024}
s_bitcmp1_b32 s{S_W}, 0
s_cselect_b32 s{S_B}, s{S_FB1}, s{S_FB0}
s_cselect_b32 s{S_FB1}, s{S_FB0}, s{S_FB1}
s_mov_b32 s{S_FB0}, s{S_B}
s_mul_i32 s{S_FA}, s7, 144
s_add_u32 s{S_FA}, s{S_FA}, s{S_A}
s_lshl_b32 s{S_FA}, s{S_FA}, 11
s_add_u32 s{S_FA}, s{S_FA}, {W2T}
s_lshr_b32 s{S_A}, s{S_W}, 1
s_lshl_b32 s{S_A}, s{S_A}, 3
s_mul_i32 s{S_OA}, s7, 144
s_add_u32 s{S_OA}, s{S_OA}, s{S_A}
s_add_u32 s{S_OA}, s{S_OA}, 112
s_lshl_b32 s{S_OA}, s{S_OA}, 11
s_add_u32 s{S_OA}, s{S_OA}, {W2T}
s_and_b32 s{S_B}, s{S_W}, 1
s_lshl_b32 s{S_B}, s{S_B}, 12
s_add_u32 s{S_OA}, s{S_OA}, s{S_B}
s_lshl_b32 s{S_OL}, s{S_W}, 12"""

S_C1, S_C2, S_CF, S_KS, S_QS, S_WL, S_WO = 16, 17, 24, 25, 54, 47, 59
QB0, QB1, KVA = 253, 254, 255
def more_addr():
    slot = ""
    for st_, dst in ((S_T0, QB0), (S_T1, QB1)):
        slot += f"""s_sub_u32 s6, 3, s{st_}
s_lshl_b32 s7, s{st_}, 2
s_lshr_b32 s7, 0x0132, s7
s_and_b32 s7, s7, 3
s_bitcmp1_b32 s{S_QU}, 0
s_cselect_b32 s6, s7, s6
s_cselect_b32 s{S_CF}, s7, 0
s_lshl_b32 s6, s6, 3
v_add_u32 v{dst}, s6, v{KVA}
"""
    return f"""v_and_b32 v{TP}, 31, v0
s_lshl_b32 s6, s{S_T0}, 9
s_add_u32 s6, s6, {L_CSA}
v_lshl_add_u32 v{TP}, v{TP}, 4, s6
s_lshl_b32 s6, s{S_RT}, 2
v_add_u32 v{TP+1}, s6, v{TP}
s_lshr_b32 s6, s{S_W}, 1
s_lshl_b32 s6, s6, 11
s_and_b32 s7, s{S_W}, 1
s_lshl_b32 s{S_WL}, s7, 6
s_add_u32 s{S_WL}, s{S_WL}, s6
s_add_u32 s{S_WL}, s{S_WL}, {L_W2T}
s_lshl_b32 s6, s{S_U}, 11
s_lshl_b32 s7, s7, 10
s_add_u32 s6, s6, s7
s_add_u32 s{S_WO}, s6, {W2T}
s_mov_b32 s{S_C2}, 0x00003f80
s_cmp_lt_u32 s{S_QU}, 2
s_cselect_b32 s{S_C1}, 0x3f803f80, s{S_C2}
s_cselect_b32 s{S_C2}, s{S_C2}, 0
s_lshl_b32 s6, s{S_RB}, 2
s_add_u32 s6, s6, s{S_RT}
s_lshl_b32 s{S_KS}, s6, 12
s_lshl_b32 s6, s6, 2
s_add_u32 s6, s6, s{S_QU}
s_lshl_b32 s6, s6, 2
s_add_u32 s6, s6, s{S_T0}
s_lshl_b32 s6, s6, 11
s_add_u32 s{S_QS}, s6, {QF}
s_and_b32 s6, s{S_QU}, 1
s_lshl_b32 s7, s6, 8
s_add_u32 s7, s7, 2048
s_lshl_b32 s6, s6, 10
s_cmp_lt_u32 s{S_QU}, 2
s_cselect_b32 s6, s6, s7
s_add_u32 s{S_KS}, s{S_KS}, s6
s_add_u32 s{S_KS}, s{S_KS}, {KVF}
v_and_b32 v{KVA}, 31, v0
v_lshlrev_b32 v{KVA}, 5, v{KVA}
s_lshl_b32 s{S_A}, s{S_RT}, 10
s_add_u32 s{S_A}, s{S_A}, {L_KVB}
v_add_u32 v{KVA}, s{S_A}, v{KVA}
{slot}v_lshrrev_b32 v{PL}, 5, v0
v_lshl_add_u32 v{KVA}, v{PL}, 3, v{KVA}
v_lshlrev_b32 v{G+1}, 2, v{PL}
v_bfe_u32 v{PL}, v0, 4, 1
v_add_u32 v{G+1}, v{G+1}, v{PL}
v_bfe_u32 v{PL}, v0, 2, 2
v_lshl_add_u32 v{G+1}, v{G+1}, 2, v{PL}
v_lshlrev_b32 v{G+1}, 5, v{G+1}
v_and_b32 v{PL}, 3, v0
v_lshl_add_u32 v{G+1}, v{PL}, 3, v{G+1}
v_add_u32 v{G+1}, s{S_A}, v{G+1}
s_cmp_lt_u32 s{S_QU}, 2
s_cselect_b64 vcc, -1, 0
v_cndmask_b32 v{KVA}, v{G+1}, v{KVA}, vcc"""

def add_more(e, side):
    lines = more_addr().split("\n")
    k = lines.index(f"s_mov_b32 s{S_C2}, 0x00003f80")
    side.add("\n".join(lines[:k]))
    if not P("QCOND", 0): side.add("\n".join(lines[k:])); return
    tmp = Side(e); tmp.add("\n".join(lines[k:]))
    n = P("QCH", 12)
    for i in range(0, len(tmp.q), n):
        def blk(part=tmp.q[i:i + n]):
            l = e.newlabel("qo")
            e(f"s_cmp_eq_u32 s{S_ISQ}, 1\ns_cbranch_scc0 {l}"); e("\n".join(part)); e.label(l)
        side.add([blk] + [lambda: None] * (P('WSR', 6) - 1))

def attn_scalars():
    return f"""s_lshl_b32 s{S_WB4}, s{S_W}, 12
s_lshl_b32 s6, s{S_CG}, 5
s_add_u32 s6, s6, s{S_RT}
s_lshl_b32 s6, s6, 12
s_add_u32 s{S_KVO}, s6, {KVF}
s_lshl_b32 s6, s{S_RB}, 2
s_add_u32 s6, s6, s{S_RT}
s_lshl_b32 s7, s6, 4
s_add_u32 s7, s7, s{S_J}
s_lshl_b32 s7, s7, 11
s_add_u32 s{S_QO}, s7, {QF}
s_mul_i32 s6, s6, 144
s_lshl_b32 s7, s{S_J}, 1
s_add_u32 s6, s6, s7
s_add_u32 s6, s6, s{S_CG}
s_add_u32 s6, s6, 112
s_lshl_b32 s{S_OO}, s6, 10"""

def phaseB(e):
    T = TM
    for f in (stage_dmas(e, 0)[1:] if not P('XE', 1) else stage_dmas(e, 0)[1::2]): f()
    if 'arr' in X:
        order = os.environ.get("ARR", "D1 D2 W0 D3 W1 D4 W2 D5 W3 D6 W4 W5 W6").split()
        for it in order:
            k = int(it[1:])
            if it[0] == 'D':
                for f in stage_dmas(e, k): f()
            elif it[0] == 'T': touch(e, k)()
            elif it[0] == 'G': gtouch(e, k)()
            elif it[0] == 'L': late_touch(e)
            elif it[0] == 'A': e.all_vm(); e.stamp()
            else: e.wvm(f"d{k}"); e("s_barrier"); e.stamp()
        srd(e, SRD_WS, P_WS, WS_END)
        e.stamp()
        e("s_branch K_fin2")
        global STAMPS_OFF; STAMPS_OFF = True
    if P("ROWL", 0): e.vm(f"buffer_load_dwordx4 {vr(RW,4)}, v{TX}, s[{SRD_X}:{SRD_X+3}], 0 offen", "row")
    e.stamp("xs2")
    if P("PRO", 1) == 1 and GT & 2:
        e(e.WT)
        e.vm(f"buffer_load_dword v{TD}, v{TA}, s[{SRD_T}:{SRD_T+3}], 0 offen", "t")
    e(f"s_mov_b32 s6, {EPO}\ns_load_dword s{S_NON}, s[{P_WS}:{P_WS+1}], s6")
    if TOUCH == 2: touch(e, 1)()
    PD1 = P("PD1", 1)
    if PD1 == 0:
        for f in stage_dmas(e, 1): f()
    if TOUCH == 1: touch(e, 1)()
    late_touch(e)
    e.stamp("xs3")
    e(f"""s_and_b32 s{S_RT}, s{S_W}, 3
s_lshr_b32 s{S_CG}, s{S_W}, 2
s_lshl_b32 s{S_T0}, s{S_CG}, 1
s_add_u32 s{S_T1}, s{S_T0}, 1
s_xor_b32 s{S_A}, s{S_RT}, s{S_CG}
s_mov_b32 s{S_MASK}, 0xffff0000
s_mov_b32 s{S_HI}, 0
s_mov_b32 s{S_HI+1}, -1
v_lshlrev_b32 v{VL16}, 4, v0
v_and_b32 v{T}, 31, v0
v_lshrrev_b32 v{T+1}, 5, v0
v_bfe_u32 v{T+2}, v0, 1, 3
v_xor_b32 v{T+2}, v{T+2}, v{T+1}
v_lshlrev_b32 v{T+2}, 4, v{T+2}
v_lshl_add_u32 v{T+2}, v{T}, 7, v{T+2}
s_lshl_b32 s6, s{S_RT}, 12
s_lshl_b32 s{S_B}, s{S_A}, 5
s_or_b32 s6, s6, s{S_B}
v_xor_b32 v{XA}, s6, v{T+2}""")
    for pos in range(1, 4): e(f"v_xor_b32 v{XA+pos}, {pos<<5}, v{XA}")
    e(f"""v_bfe_u32 v{G+1}, v0, 2, 2
v_lshl_add_u32 v{WB}, v{T+1}, 3, v{G+1}
v_lshlrev_b32 v{WB}, 8, v{WB}
s_lshl_b32 s{S_A}, s{S_A}, 12
v_add_u32 v{WB}, s{S_A}, v{WB}
s_cmp_eq_u32 s{S_ISQ}, 1
s_cselect_b32 s{S_A}, 56, 32
s_cselect_b32 s{S_B}, 5, 7
s_cselect_b32 s{S_C}, 0x88880000, 0
s_mov_b32 s{S_D}, s{S_C}
s_add_u32 s6, s{S_SH}, 4
v_bfe_u32 v{T}, v0, 4, 1
v_and_b32 v{T+1}, 3, v0
v_lshlrev_b32 v{T}, s{S_B}, v{T}
v_lshl_add_u32 v{T}, v{T+1}, 3, v{T}
v_lshlrev_b32 v{T+1}, s6, v{G+1}""")
    for i, st_ in ((0, S_T0), (1, S_T1)):
        e(f"""s_mul_i32 s6, s{st_}, s{S_A}
s_lshl_b32 s7, s{st_}, 3
s_sub_u32 s7, 248, s7
v_add_u32 v{T+2}, s6, v{T}
v_mov_b32 v{T+3}, s7
v_cndmask_b32 v{T+2}, v{T+2}, v{T+3}, s[{S_C}:{S_D}]
v_xor_b32 v{T+2}, v{T+2}, v{T+1}
v_add_u32 v{WA+4*i}, v{T+2}, v{WB}""")
    for i in range(2):
        for pos in range(1, 4): e(f"v_xor_b32 v{WA+4*i+pos}, {pos<<12}, v{WA+4*i}")
    e(f"""v_bfe_u32 v{T}, v0, 4, 1
v_and_b32 v{T+1}, 15, v0
v_cmp_eq_u32 vcc, v{T}, v{T+1}
v_mov_b32 v{T}, 0x3f803f80
s_nop 0
v_cndmask_b32 v{SEL}, 0, v{T}, vcc
v_mov_b32 v{SEL+1}, v{SEL}
v_mov_b32 v{SEL+2}, v{SEL}
v_mov_b32 v{SEL+3}, v{SEL}""")
    w2t_addr = f"""s_mul_i32 s6, s{S_RB}, 12
s_add_u32 s6, s6, s{S_LA}
s_lshl_b32 s7, s{S_RB}, 2
s_add_u32 s7, s7, s{S_QU}
s_min_u32 s7, s7, 59
s_add_u32 s{S_A}, s7, 136
s_cmp_eq_u32 s{S_ISQ}, 1
s_cselect_b32 s6, s{S_A}, s6
s_cselect_b32 s7, s7, 63
s_mul_hi_u32 s{S_A}, s6, {(2**32 + 27)//28}
s_mul_i32 s{S_B}, s{S_A}, 28
s_sub_u32 s{S_B}, s6, s{S_B}
s_lshr_b32 s{S_C}, s7, 3
s_and_b32 s{S_D}, s7, 7
s_add_u32 s{S_D}, s{S_D}, 28
s_cmp_lt_u32 s7, 56
s_cselect_b32 s6, s{S_C}, s{S_A}
s_cselect_b32 s{S_B}, s{S_D}, s{S_B}
s_lshl_b32 s{S_WF}, s6, 6
s_add_u32 s{S_WF}, s{S_WF}, s{S_B}
s_lshl_b32 s{S_A}, s{S_B}, 2
s_lshr_b32 s{S_B}, s{S_W}, 1
s_add_u32 s{S_A}, s{S_A}, s{S_B}
s_mul_i32 s{S_U}, s6, 144
s_add_u32 s{S_U}, s{S_U}, s{S_A}
s_lshl_b32 s{S_B}, s{S_A}, 4
s_sub_u32 s{S_C}, s{S_A}, 112
s_lshr_b32 s{S_D}, s{S_C}, 1
s_mul_i32 s{S_D}, s{S_D}, 28
s_and_b32 s{S_C}, s{S_C}, 1
s_lshl_b32 s{S_C}, s{S_C}, 4
s_add_u32 s{S_C}, s{S_C}, s{S_D}
s_mov_b32 s{S_D}, {448*896}
s_cmp_lt_u32 s{S_A}, 112
s_cselect_b32 s{S_B}, s{S_B}, s{S_C}
s_cselect_b32 s{SRD_T}, s{P_WD}, s{P_WO}
s_cselect_b32 s{SRD_T+1}, s{P_WD+1}, s{P_WO+1}
s_cselect_b32 s{SRD_T+2}, {1792*896}, s{S_D}
s_mov_b32 s{SRD_T+3}, 0x00020000
s_and_b32 s{S_C}, s{S_W}, 1
s_lshl_b32 s{S_C}, s{S_C}, 3
s_add_u32 s{S_B}, s{S_B}, s{S_C}
s_mul_i32 s{S_B}, s{S_B}, 896
s_lshl_b32 s6, s6, 7
s_add_u32 s{S_TO}, s{S_B}, s6
v_lshrrev_b32 v{TP}, 3, v0
v_mul_u32_u24 v{TP}, 896, v{TP}
v_and_b32 v{TP+1}, 7, v0
v_lshl_add_u32 v{VT}, v{TP+1}, 4, v{TP}"""
    late = (f"""s_add_u32 s{S_LB}, s{S_LA}, 12
s_add_u32 s6, s{S_QU}, 24
s_cmp_eq_u32 s{S_ISQ}, 1
s_cselect_b32 s{S_LB}, s6, s{S_LB}
""" if P("LBOLD", 1) else f"s_add_u32 s{S_LB}, s{S_J}, 12\n") + f"""v_lshrrev_b32 v{TP}, 4, v0
s_lshl_b32 s6, s{S_ROT}, 4
s_add_u32 s6, s6, s{S_W}
s_lshl_b32 s6, s6, 2
v_add_u32 v{TP+1}, s6, v{TP}
v_mul_u32_u24 v{TP+1}, 3584, v{TP+1}
v_lshlrev_b32 v{TP}, 1, v{TP}
v_xor_b32 v{TP}, v{TP}, v0
v_and_b32 v{GB}, 7, v{TP}
v_lshl_add_u32 v{TP+1}, v{GB}, 4, v{TP+1}
s_lshl_b32 s6, s{S_LB}, 7
v_add_u32 v{TP+1}, s6, v{TP+1}
v_and_b32 v{TP}, 8, v{TP}
v_cmp_eq_u32 vcc, 8, v{TP}
v_mov_b32 v{GB}, s{P_WG}
v_mov_b32 v{TP}, s{P_WU}
v_cndmask_b32 v{GB}, v{GB}, v{TP}, vcc
v_mov_b32 v{GB+1}, s{P_WG+1}
v_mov_b32 v{TP}, s{P_WU+1}
v_cndmask_b32 v{GB+1}, v{GB+1}, v{TP}, vcc
v_add_co_u32 v{GB}, vcc, v{GB}, v{TP+1}
v_bfe_u32 v{TP}, v0, 4, 1
v_and_b32 v{TP+1}, 3, v0
v_addc_co_u32 v{GB+1}, vcc, 0, v{GB+1}, vcc
v_lshlrev_b32 v{TP+1}, 3, v{TP+1}
v_lshl_add_u32 v{TP}, v{TP}, 7, v{TP+1}
v_bfe_u32 v{TP+1}, v0, 2, 2
v_lshlrev_b32 v{TP+1}, 5, v{TP+1}
v_xor_b32 v{TP}, v{TP}, v{TP+1}
s_lshl_b32 s6, s{S_T0}, 5
v_xor_b32 v{TP}, s6, v{TP}
v_add_u32 v{WB}, v{TP}, v{WB}
v_xor_b32 v{WB+1}, 32, v{WB}"""
    e(f"s_lshl_b32 s45, s{S_TG}, 3\ns_add_u32 s45, s45, {STAT}")
    def hoisted():
        e(late); e(w2t_addr); e(h_off(S_LA, H_A)); e(h_off(S_LB, H_B)); e(attn_scalars()); e(f_scalars())
    if HOIST == 1: hoisted()
    if HOIST == 4: e(late); e(w2t_addr)
    if PD1 == 1:
        for f in stage_dmas(e, 1): f()
    if HOIST == 2: hoisted()
    e.stamp("xs4")
    srd(e, SRD_WS, P_WS, WS_END)
    e("s_waitcnt lgkmcnt(0)")
    e(f"s_add_u32 s{S_NON}, s{S_NON}, 1")
    U = RW + 4; A_, B_ = RW, RW + 1
    e.wvm("row")
    for k in range(4): e(f"v_lshlrev_b32 v{U+2*k}, 16, v{RW+k}\nv_and_b32 v{U+2*k+1}, s{S_MASK}, v{RW+k}")
    e(f"v_add_f32 v{A_}, v{U}, v{U+1}\nv_mul_f32 v{B_}, v{U}, v{U}\nv_add_f32 v{A_+2}, v{U+2}, v{U+3}\nv_mul_f32 v{B_+2}, v{U+1}, v{U+1}")
    for k in (2, 4, 6): e(f"v_fmac_f32 v{B_}, v{U+k}, v{U+k}\nv_fmac_f32 v{B_+2}, v{U+k+1}, v{U+k+1}")
    e(f"""v_add_f32 v{U}, v{U+4}, v{U+5}
v_add_f32 v{U+1}, v{U+6}, v{U+7}
v_add_f32 v{A_}, v{A_}, v{A_+2}
v_add_f32 v{U}, v{U}, v{U+1}
v_add_f32 v{B_}, v{B_}, v{B_+2}
v_add_f32 v{A_}, v{A_}, v{U}
s_nop 0""")
    for d in ("row_shr:1 row_mask:0xf bank_mask:0xf bound_ctrl:0", "row_shr:2 row_mask:0xf bank_mask:0xf bound_ctrl:0",
              "row_shr:4 row_mask:0xf bank_mask:0xf bound_ctrl:0", "row_shr:8 row_mask:0xf bank_mask:0xf bound_ctrl:0",
              "row_bcast:15 row_mask:0xa bank_mask:0xf", "row_bcast:31 row_mask:0xc bank_mask:0xf"):
        e(f"v_add_f32_dpp v{B_}, v{B_}, v{B_} {d}\nv_add_f32_dpp v{A_}, v{A_}, v{A_} {d}\ns_nop 0")
    e(f"""v_mul_f32 v{A_}, {f2u(1.0/448)}, v{A_}
v_mul_f32 v{B_}, {f2u(1.0/448)}, v{B_}
v_fma_f32 v{B_}, -v{A_}, v{A_}, v{B_}
v_max_f32 v{B_}, 0, v{B_}
v_cvt_pk_bf16_f32 v{B_}, v{B_}, v{B_}
v_and_b32 v{B_}, s{S_MASK}, v{B_}
v_add_f32 v{B_}, {f2u(1e-5)}, v{B_}
v_cvt_pk_bf16_f32 v{B_}, v{B_}, v{B_}
v_and_b32 v{B_}, s{S_MASK}, v{B_}
v_sqrt_f32 v{B_}, v{B_}
v_mov_b32 v{U}, s45
v_cvt_pk_bf16_f32 v{A_}, -v{A_}, v{B_}
v_mov_b32 v{B_}, s{S_NON}
s_mov_b32 exec_lo, 0
s_mov_b32 exec_hi, 0x80000000""")
    if PD1 == 2:
        e("s_mov_b64 exec, -1")
        for f in stage_dmas(e, 1): f()
        e("s_mov_b32 exec_lo, 0\ns_mov_b32 exec_hi, 0x80000000")
    e.vm(f"buffer_store_dwordx2 {vr(A_,2)}, v{U}, {WS}, 0 offen {SC}", "sts")
    e("s_mov_b64 exec, -1")
    e.stamp("xs5")
    if P("PRIO", 2) & 1: e(f"s_cmp_ge_u32 s{S_W}, 4\ns_cbranch_scc0 K_np\ns_setprio 1\nK_np:")
    e.wvm("d0")
    e("s_barrier")
    e.stamp("start")

    half = {'x': [0]*4, 'w': [0]*4}
    def reads(gp):
        if gp < 28: sig, sub, pos, reg = gp // 4, 0, gp % 4, 16384
        else:
            g = gp - 28; sig, sub, pos = 7 + g // 8, (g // 4) & 1, g % 4; reg = sub * 16384
        sl = sig % 4; h = sl >> 1; imm = (sl & 1) * RING
        buf = WF + 8 * (gp % 3)
        pre = []
        if 28 <= gp < 32:
            pre = [f"v_xor_b32 v{WA+4*i+pos}, {(pos << 12) | (h << 16)}, v{WB+i}" for i in range(2)]
            half['w'][pos] = h
        elif half['w'][pos] != h:
            pre = [f"v_xor_b32 v{WA+4*i+pos}, 0x10000, v{WA+4*i+pos}" for i in range(2)]
            half['w'][pos] = h
        if gp < 28 and half['x'][pos] != h:
            pre.append(f"v_xor_b32 v{XA+pos}, 0x10000, v{XA+pos}"); half['x'][pos] = h
        out = [(lambda l=l: e(l)) for l in pre]
        if gp < 28: out.append(lambda: e.ds(f"ds_read_b128 {vr(XR+4*gp,4)}, v{XA+pos} offset:{imm}", f"r{gp}"))
        for i in range(2):
            for u in range(2):
                out.append(lambda i=i, u=u: e.ds(f"ds_read_b64_tr_b16 {vr(buf+4*i+2*u,2)}, v{WA+4*i+pos} offset:{imm+reg+u*1024}", f"r{gp}"))
        return out
    def position(gp, side, dmaq, nside, barrier=None):
        p2 = gp >= 28; g = gp - 28 if p2 else gp
        acc = ACCB if p2 else ACCA
        buf = WF + 8 * (gp % 3); xr = XR + 4 * g
        e.wds(f"r{gp}")
        e(mfma(acc, buf, xr, "0" if g == 0 else None))
        if barrier: barrier()
        R = reads(gp + 2) if gp + 2 < 56 else []
        nx = 1 if gp + 2 < 28 else 0
        pre = R[:max(0, len(R) - 4 - nx)]; xrd = R[len(pre):len(pre) + nx]; tr = R[len(pre) + nx:]
        na = (nside + 1) // 2; nb = nside // 2
        for f in pre: f()
        if P("ORD", 1) == 0:
            for f in xrd + tr[:2]: f()
            side.emit(na)
            e(mfma(acc + 16, buf + 4, xr, "0" if g == 0 else None))
            for f in tr[2:]: f()
            if g % 4 == 0: e(mfma16(CSA, SEL, buf, "0" if g == 0 else None))
            if dmaq: dmaq.pop(0)()
            side.emit(nb)
            if g % 4 == 0: e(mfma16(CSA + 4, SEL, buf + 4, "0" if g == 0 else None))
        else:
            for f in tr[:1]: f()
            side.emit(min(2, na))
            for f in tr[1:2]: f()
            side.emit(na - min(2, na))
            e(mfma(acc + 16, buf + 4, xr, "0" if g == 0 else None))
            for f in tr[2:3]: f()
            side.emit(min(2, nb))
            for f in tr[3:]: f()
            side.emit(nb - min(2, nb))
            if g % 4 == 0 and 'nosel' not in X: e(mfma16(CSA, SEL, buf, "0" if g == 0 else None))
            for f in xrd: f()
            if g % 4 == 0 and 'nosel' not in X: e(mfma16(CSA + 4, SEL, buf + 4, "0" if g == 0 else None))
            if dmaq: dmaq.pop(0)()
    def stats(gp):
        x = XR + 4 * gp; c = lambda r: "0" if gp == 0 else vr(r, 4)
        return [mfma16(ST, SEL, x, c(ST)),
                f"v_mfma_f32_4x4x4_16b_bf16 {vr(SQA,4)}, {vr(x,2)}, {vr(x,2)}, {c(SQA)}\nv_mfma_f32_4x4x4_16b_bf16 {vr(SQB,4)}, {vr(x+2,2)}, {vr(x+2,2)}, {c(SQB)}"]
    def cs_write(dst):
        o = dst - L_CSA
        return ["s_nop 1", lambda: (e("s_mov_b64 exec, 0xffff"),
                         e.ds(f"ds_write_b32 v{TP+1}, v{CSA} offset:{o}", "csw"), e.ds(f"ds_write_b32 v{TP+1}, v{CSA+1} offset:{o+256}", "csw"),
                         e.ds(f"ds_write_b32 v{TP+1}, v{CSA+4} offset:{o+512}", "csw"), e.ds(f"ds_write_b32 v{TP+1}, v{CSA+5} offset:{o+768}", "csw"),
                         e("s_mov_b64 exec, -1"))]
    def cs_read(src):
        o = src - L_CSA
        l = [lambda: e.ds(f"ds_read_b128 {vr(G,4)}, v{TP} offset:{o}", "csr"), lambda: e.ds(f"ds_read_b128 {vr(G+4,4)}, v{TP} offset:{o+512}", "csr")]
        m = [lambda: e.wds("csr")]
        for i in range(2):
            b = G + 4 * i
            m += [f"v_add_f32 v{b}, v{b}, v{b+1}", f"v_add_f32 v{b+2}, v{b+2}, v{b+3}"]
        for i in range(2): m += [f"v_add_f32 v{G+4*i}, v{G+4*i}, v{G+4*i+2}"]
        for i in range(2): m += [f"v_cvt_pk_bf16_f32 v{G+4*i+1}, v{G+4*i}, v{G+4*i}"]
        for i in range(2): m += [f"v_and_b32 v{G+4*i+1}, s{S_MASK}, v{G+4*i+1}"]
        for i in range(2): m += [f"v_sub_f32 v{G+4*i+1}, v{G+4*i}, v{G+4*i+1}"]
        for i in range(2): m += [f"v_cvt_pk_bf16_f32 v{G+4*i}, v{G+4*i}, v{G+4*i+1}"]
        for i in range(2): m += [f"v_cndmask_b32 v{ST+2*i}, v{G+4*i}, 0, s[{S_HI}:{S_HI+1}]"]
        return l, m

    KA = -2.0 * math.log2(math.e) * math.sqrt(2.0 / math.pi)
    GST = P("GST", 18)
    def stat_check():
        ok = e.newlabel("sok"); sp = e.newlabel("ssp")
        e.wvm("stl")
        e(f"v_cmp_ne_u32 vcc, s{S_NON}, v{BEXT+3}\ns_cbranch_vccz {ok}\ns_mov_b32 s{S_CNT}, {SPIN_MAX}")
        e.label(sp)
        e(f"""s_sleep 4
buffer_load_dwordx2 {vr(BEXT+2,2)}, v{G}, {WS}, 0 offen {SC}
s_sub_u32 s{S_CNT}, s{S_CNT}, 1
s_waitcnt vmcnt(0)
v_cmp_ne_u32 vcc, s{S_NON}, v{BEXT+3}
s_cmp_eq_u32 s{S_CNT}, 0
s_cbranch_scc1 {ok}
s_cbranch_vccnz {sp}""")
        if 'spincnt' in X: e(f"s_sub_u32 s88, {SPIN_MAX + 1000}, s{S_CNT}")
        e.label(ok)
    def after_exchange(side):
        l, m = cs_read(L_CSA)
        side.add(l)
        side.add(f"""v_and_b32 v{S_}, s{S_MASK}, v{BEXT+2}
v_and_b32 v{BEXT}, 0xffff, v{BEXT+2}
v_rcp_f32 v{R_}, v{S_}
v_lshl_or_b32 v{BEXT}, v{BEXT+2}, 16, v{BEXT}
v_mul_f32 v{I2}, v{S_}, v{S_}
v_mul_f32 v{AC}, {f2u(KA)}, v{R_}
v_mul_f32 v{BC}, v{R_}, v{R_}
v_mov_b32 v{ST+1}, 0
v_mul_f32 v{BC}, v{BC}, v{AC}
v_mov_b32 v{ST+3}, 0
v_mul_f32 v{BC}, {f2u(0.044715)}, v{BC}
v_mov_b32 v{BEXT+1}, 0
v_mov_b32 v{BEXT+2}, 0
v_mov_b32 v{BEXT+3}, 0""")
        side.add(m)
    for f in reads(0) + reads(1): f()
    side = Side(e); dmaq = list(stage_dmas(e, 2)) + ([touch(e, 2)] if TOUCH else [])
    w2side = Side(e)
    if GT & 4:
        w2side.add(f"""s_min_u32 s6, s{S_TG}, 895
s_cmp_ge_u32 s6, 448
s_cselect_b32 s{SRD_T}, s{P_WU}, s{P_WG}
s_cselect_b32 s{SRD_T+1}, s{P_WU+1}, s{P_WG+1}
s_cselect_b32 s7, 448, 0
s_mov_b32 s{SRD_T+2}, {448*3584}
s_sub_u32 s6, s6, s7
s_mul_i32 s6, s6, 3584
s_add_u32 s6, s6, 1536
v_and_b32 v{TA}, 15, v0
v_lshlrev_b32 v{TA}, 7, v{TA}""")
        w2side.add([lambda: e.vm(f"buffer_load_dword v{TD}, v{TA}, s[{SRD_T}:{SRD_T+3}], s6 offen", "t2")])
    if HOIST == 3: w2side.add(late); w2side.add(w2t_addr)
    if HOIST >= 3: w2side.add(h_off(S_LA, H_A)); w2side.add(h_off(S_LB, H_B)); w2side.add(attn_scalars()); w2side.add(f_scalars()); add_more(e, w2side)
    for gp in range(28):
        sig, pos = gp // 4, gp % 4
        bar = None
        if pos == 2:
            def bar(sig=sig):
                if sig == 6: side.flush(); stat_check(); e.wds("csw")
                e.wvm(f"d{sig+1}"); e("s_barrier")
                if sig == 6: after_exchange(side)
                assert not dmaq
                dmaq.extend(stage_dmas(e, sig + 3))
                if sig == 0 and TOUCH: dmaq.append(touch(e, 3))
        if gp == GST:
            side.add([f"s_lshl_b32 s{S_G}, s{S_RB}, 2", f"s_add_u32 s{S_G}, s{S_G}, s{S_RT}", f"s_lshl_b32 s{S_G}, s{S_G}, 8", f"s_add_u32 s{S_G}, s{S_G}, {STAT}",
                      f"v_and_b32 v{G}, 31, v0", f"v_lshl_add_u32 v{G}, v{G}, 3, s{S_G}",
                      lambda: e.vm(f"buffer_load_dwordx2 {vr(BEXT+2,2)}, v{G}, {WS}, 0 offen {SC}", "stl")])
        if gp == 25: assert not w2side.q; side.add(cs_write(L_CSA))
        n = len(side.q) if gp < 26 else P('NEX', 10)
        while len(dmaq) > 4 - ((pos + 2) % 4): dmaq.pop(0)()
        e.stamp(f"xp{gp}")
        w2side.emit(0 if gp < P('WS0', 0) else 5 if gp < 2 else P('WSR', 6))
        position(gp, side, dmaq, n, bar)
    assert not w2side.q
    side.add(["s_nop 1", mfma(ACCA, ST, BEXT), mfma(ACCA + 16, ST + 2, BEXT)])
    carry = list(side.q)
    e.stamp("p1")

    KA = -2.0 * math.log2(math.e) * math.sqrt(2.0 / math.pi); KB = KA * 0.044715
    def gelu(acc, so, tb, keep=None, pk=0):
        l = []
        if pk:
            pr = lambda r: vr(r, 2)
            for k in range(0, 8, 2): l.append(f"v_pk_mul_f32 {pr(tb+k)}, {pr(acc+k)}, {pr(acc+k)}")
            for k in range(0, 8, 2): l.append(f"v_pk_fma_f32 {pr(tb+k)}, {pr(tb+k)}, {pr(AC)}, {pr(AC)} op_sel:[0,1,0] op_sel_hi:[1,1,0]")
            for k in range(0, 8, 2): l.append(f"v_pk_mul_f32 {pr(tb+k)}, {pr(tb+k)}, {pr(acc+k)}")
            for k in range(0, 8, 2): l += [f"v_exp_f32 v{tb+k}, v{tb+k}", f"v_exp_f32 v{tb+k+1}, v{tb+k+1}", f"v_pk_mul_f32 {pr(acc+k)}, {pr(acc+k)}, {pr(acc+8+k)}"]
            for k in range(0, 8, 2): l.append(f"v_pk_fma_f32 {pr(tb+k)}, {pr(tb+k)}, {pr(I2-1)}, {pr(I2-1)} op_sel:[0,1,1] op_sel_hi:[1,1,1]")
            for k in range(8): l.append(f"v_rcp_f32 v{tb+k}, v{tb+k}")
            for k in range(0, 8, 2): l.append(f"v_pk_mul_f32 {pr(acc+k)}, {pr(acc+k)}, {pr(tb+k)}")
        else:
            for k in range(8): l.append(f"v_mul_f32 v{tb+k}, v{acc+k}, v{acc+k}")
            for k in range(8): l.append(f"v_fma_f32 v{tb+k}, v{tb+k}, v{BC}, v{AC}")
            for k in range(8): l.append(f"v_mul_f32 v{tb+k}, v{tb+k}, v{acc+k}")
            for k in range(8): l += [f"v_exp_f32 v{tb+k}, v{tb+k}", f"v_mul_f32 v{acc+k}, v{acc+k}, v{acc+8+k}"]
            for k in range(8): l.append(f"v_fma_f32 v{tb+k}, v{tb+k}, v{I2}, v{I2}")
            for k in range(8): l.append(f"v_rcp_f32 v{tb+k}, v{tb+k}")
            for k in range(8): l.append(f"v_mul_f32 v{acc+k}, v{acc+k}, v{tb+k}")
        if keep is not None:
            return l + [f"v_cvt_pk_bf16_f32 v{keep+k}, v{acc+2*k}, v{acc+2*k+1}" for k in range(4)]
        for k in range(4): l.append(f"v_cvt_pk_bf16_f32 v{acc+8+k}, v{acc+2*k}, v{acc+2*k+1}")
        l.append(lambda: e.vm(f"buffer_store_dwordx4 {vr(acc+8,4)}, v{VL16}, {WS}, s{so} offen {SC}", "hs"))
        return l
    def w2t_out(side):
        t = WB
        side.add(f"""v_lshrrev_b32 v{t}, 5, v0
v_bfe_u32 v{t+1}, v0, 2, 2
v_lshl_add_u32 v{t}, v{t}, 2, v{t+1}
v_lshlrev_b32 v{t}, 7, v{t}
v_bfe_u32 v{t+1}, v0, 4, 1
v_lshl_add_u32 v{t}, v{t+1}, 5, v{t}
v_and_b32 v{t+1}, 3, v0
v_lshl_add_u32 v{t}, v{t+1}, 3, v{t}
v_add_u32 v{t}, s{S_WL}, v{t}""")
        side.add([lambda: (e.ds(f"ds_read_b64_tr_b16 {vr(PL,2)}, v{t}", "w2tr"), e.ds(f"ds_read_b64_tr_b16 {vr(PL+2,2)}, v{t} offset:1024", "w2tr"))])
        return lambda: (e.wds("w2tr"), e.vm(f"buffer_store_dwordx4 {vr(PL,4)}, v{VL16}, {WS}, s{S_WO} offen {SC}", "w2ts"))
    GEND = P("GEND", 20); GW2 = P("GW2", 22); GFQ = P("GFQ", 14)
    GX, GBN, GFL, QRATE = P("GX", 0), P("GBN", 1), P("GFL", 6 if SPLITQ else 9), P("QRATE", 40)
    def pass2(qfirst):
        side = Side(e); dq = list(dmaq); side.q = list(carry); w2st = []
        for g in range(28):
            gp = 28 + g
            pre = []; wd = []; wv = []; post = []
            if g == 0:
                if not qfirst and 'nogelu' in X: pass
                elif not qfirst:
                    side.add(["s_nop 7"])
                    ga = gelu(ACCA, H_A, G); gb = gelu(ACCA + 16, H_A + 1, G)
                    k = P('HSD', 68)
                    side.add(ga[:-1] + gb[:k] + ga[-1:] + gb[k:] if not HLATE else ga[:-1] + gb[:-1] + [f"s_mov_b32 s{S_HA}, s{S_C}"])
                else: qkv_part1(side)
            if g == 6:
                post.append(lambda: dq.extend(stage_dmas(e, 10) + [lambda: (e(f"s_add_u32 m0, s{S_WB}, {L_W2T}\ns_nop 0"),
                            e.vm(f"buffer_load_dwordx4 v{VT}, s[{SRD_T}:{SRD_T+3}], s{S_TO} offen lds", "w2td"))]))
            if g == GW2: wv.append("w2td")
            if g in (6, 14, 22): wv.append(f"d{8 + g // 8}")
            if qfirst and g == GBN: pre.append(side.flush); wd.append("kvw"); post.append(lambda: qkv_part2(side))
            if qfirst and g == GFQ and SPLITQ:
                pre.append(side.flush); wv.append("qs")
                post.append(lambda: flag_store(e, f"""s_lshl_b32 s6, s{S_RB}, 5
s_add_u32 s6, s6, s{S_QU}
s_lshl_b32 s6, s6, 2
s_add_u32 s6, s6, {F_Q}
v_mov_b32 v{WB}, s6""", 1, WB))
            if qfirst and g == GFL:
                if SPLITQ: pre.append(lambda: e(f"s_waitcnt vmcnt({len(e.q['vm']) - e.mark['kvs']})")); wd.append("kvw")
                else: pre.append(side.flush); wv.append("qs")
                post.append(lambda: flag_store(e, f"""s_lshl_b32 s6, s{S_RB}, 2
s_add_u32 s6, s6, s{S_QU}
s_lshl_b32 s6, s6, 2
s_add_u32 s6, s6, {F_KV}
v_lshlrev_b32 v{WB}, 8, v0
v_add_u32 v{WB}, s6, v{WB}""", RKV, WB))
            if g == GW2 + 1:
                q0 = side.q; side.q = []; st = w2t_out(side); side.q += q0; w2st.append(st)
            if g == 24:
                side.flush()
                for f in w2st: f()
            if g == P("GKP", 27):
                poll_issue(e, f"""s_and_b32 s6, s2, {RKV-1}
s_lshl_b32 s6, s6, 8
s_add_u32 s6, s6, {F_KV}
v_lshl_add_u32 v{PL}, v0, 2, s6""" + (f"""
s_lshl_b32 s6, s{S_RB}, 5
s_add_u32 s6, s6, s{S_QU}
s_lshl_b32 s6, s6, 2
s_add_u32 s6, s6, {F_Q}
v_mov_b32 v{PL+2}, s6
buffer_load_dword v{PL+3}, v{PL+2}, {WS}, 0 offen {SC}""" if SPLITQ else ""), PL, PL + 1, "kvp")
            if g == 25 and 'nocs' not in X:
                side.flush(); side.add(cs_write(L_CSB))
            if g == 26 and 'nocs' not in X:
                pre.append(side.flush); wd.append("csw")
                def p():
                    l, m = cs_read(L_CSB); side.add(l); side.add(m)
                post.append(p)
            bar = None
            if wd or wv:
                def bar():
                    for f in pre: f()
                    if wd: e.wds(*wd)
                    if wv: e.wvm(*wv)
                    e("s_barrier")
                    for f in post: f()
            if qfirst: n = QRATE if g < 9 else 12
            else: n = -(-len(side.q) // max(1, GEND - g)) if g < GEND else 12
            e.stamp(f"xg{g}")
            position(gp, side, dq, n, bar)
        side.flush()
        e.stamp("xpe2")
        e("s_nop 1")
        e(mfma(ACCB, ST, BEXT)); e(mfma(ACCB + 16, ST + 2, BEXT))
    RQ = PL
    def qkv_part1(side):
        side.add([f"v_mul_f32 v{RQ}, {f2u(28 ** -0.5 * math.log2(math.e))}, v{R_}", "s_nop 9"])
        for i in range(2):
            for k in range(4): side.add([f"v_mul_f32 v{G+4*i+k}, v{ACCA+16*i+12+k}, v{R_}"])
        for i in range(2): side.add([f"v_cvt_pk_bf16_f32 v{G+4*i}, v{G+4*i}, v{G+4*i+1}", f"v_cvt_pk_bf16_f32 v{G+4*i+1}, v{G+4*i+2}, v{G+4*i+3}"])
        def wr():
            l = e.newlabel("nc")
            e(f"s_cmp_eq_u32 s{S_CF}, 3\ns_cbranch_scc0 {l}\nv_mov_b32 v{G+4}, s{S_C1}\nv_mov_b32 v{G+5}, s{S_C2}")
            e.label(l)
            e(f"s_mov_b64 exec, s[{S_HI}:{S_HI+1}]")
            e.ds(f"ds_write_b64 v{QB0}, {vr(G,2)}", "kvw"); e.ds(f"ds_write_b64 v{QB1}, {vr(G+4,2)}", "kvw")
            e("s_mov_b64 exec, -1")
        side.add([wr])
    def qkv_part2(side):
        def kv():
            l = e.newlabel("kvs"); lv = e.newlabel("kvv"); ls = e.newlabel("kvt")
            e(f"""s_cmp_eq_u32 s{S_CG}, 0
s_cbranch_scc0 {l}
s_cmp_lt_u32 s{S_QU}, 2
s_cbranch_scc0 {lv}
ds_read2_b64 {vr(G+4,4)}, v{KVA} offset0:0 offset1:2
v_mov_b32 v{G+2}, v{VL16}
s_branch {ls}""")
            e.label(lv)
            e(f"""ds_read_b64_tr_b16 {vr(G+4,2)}, v{KVA}
ds_read_b64_tr_b16 {vr(G+6,2)}, v{KVA} offset:256
v_lshrrev_b32 v{G+2}, 4, v0
v_and_b32 v{G+1}, 15, v0
v_lshlrev_b32 v{G+2}, 9, v{G+2}
v_lshl_add_u32 v{G+2}, v{G+1}, 4, v{G+2}""")
            e.label(ls)
            e(f"s_waitcnt lgkmcnt(0)\nbuffer_store_dwordx4 {vr(G+4,4)}, v{G+2}, {WS}, s{S_KS} offen {SC}")
            e.label(l)
            e.mark['kvs'] = len(e.q['vm'])
        side.add([kv])
        for i in range(2):
            acc = ACCA + 16 * i
            if P('PK', 0) & 4:
                for k in range(0, 16, 2): side.add([f"v_pk_mul_f32 {vr(acc+k,2)}, {vr(acc+k,2)}, {vr(RQ,2)} op_sel_hi:[1,0]"])
            else:
                for k in range(16): side.add([f"v_mul_f32 v{acc+k}, v{acc+k}, v{RQ}"])
            for k in range(8): side.add([f"v_cvt_pk_bf16_f32 v{acc+k}, v{acc+2*k}, v{acc+2*k+1}"])
            side.add([f"v_cndmask_b32 v{acc+6}, v{acc+6}, 0, s[{S_HI}:{S_HI+1}]", f"v_cndmask_b32 v{acc+7}, v{acc+7}, 0, s[{S_HI}:{S_HI+1}]",
                      lambda acc=acc, i=i: e.vm(f"buffer_store_dwordx4 {vr(acc,4)}, v{VL16}, {WS}, s{S_QS} offen offset:{2048*i} {SC}", "qs"),
                      lambda acc=acc, i=i: e.vm(f"buffer_store_dwordx4 {vr(acc+4,4)}, v{VL16}, {WS}, s{S_QS} offen offset:{2048*i+1024} {SC}", "qs")])
    e(f"s_cmp_eq_u32 s{S_ISQ}, 1\ns_cbranch_scc1 B_p2q")
    sn = e.snap(); hs = {k: list(v) for k, v in half.items()}; ns = e.nst
    pass2(False)
    e("s_branch B_join")
    e.label("B_p2q")
    e.nst = ns
    e.restore(sn); half.update({k: list(v) for k, v in hs.items()})
    pass2(True)
    e.label("B_join")
    e.q = {'ds': [], 'vm': []}; e.done = {'ds': 0, 'vm': 0}; e.mark['kvp'] = 0
    e.stamp("join")
    return gelu, h_off, w2t_out

LB0, LB1, VO = 3, 4, 5
Q, O, S0, PP, K, V0, V1 = 36, 44, 64, 96, 104, 112, 120
FA, FB = 128, 192
XRES = 244
S_KH, S_QT = S_CG, S_RT
F0 = P("F0", 8)
FP = P("FP", 2)
HBP = P("HBP", 14)
F3 = P("F3", 40)
WOP = 18

def kv_dma(e, st):
    def m(): e(f"s_add_u32 m0, s{S_WB4}, {((st + 3) % 4) * RING}" + ("\ns_nop 0" if st < 3 else ""))
    m.scalar = True
    l = [m]
    for f in range(4):
        l.append(lambda f=f: (e.vm(f"buffer_load_dwordx4 v{VL16}, {WS}, s{S_KVO} offen offset:{1024*f} {SC} lds", f"k{st}"),
                              e(f"s_add_u32 s{S_KVO}, s{S_KVO}, 16384") if f == 3 else None))
    return l

NB = P("NB", 3)
FBUF = [[FB + 16 * n + 4 * k for k in range(4)] for n in range(3)] + [[60, 124, 248, 252]]
def f_loads(e, q):
    bb = FBUF[q % NB]
    r = q if q < 6 else q - 6
    advA = advB = None
    if q == 5:
        advA = f"s_add_u32 s{S_FA}, s{S_FA}, s{S_FQ}"
        advB = f"s_add_u32 s{S_FB0}, s{S_FB0}, s{S_K1}\ns_add_u32 s{S_FB1}, s{S_FB1}, s{S_K1}"
    else:
        if r & 1: advA = f"s_add_u32 s{S_FA}, s{S_FA}, 4096"
        if (r & 3) == 3: advB = f"s_add_u32 s{S_FB0}, s{S_FB0}, 4096\ns_add_u32 s{S_FB1}, s{S_FB1}, 4096"
    return [lambda: e.vm(f"buffer_load_dwordx4 {vr(bb[0],4)}, v{VL16}, {WS}, s{S_FA} offen offset:{(r&1)*2048} {SC}", f"f{q}"),
            lambda: e.vm(f"buffer_load_dwordx4 {vr(bb[2],4)}, v{VL16}, {WS}, s{S_FB0} offen offset:{(r&3)*1024} {SC}", f"f{q}"),
            lambda: (e.vm(f"buffer_load_dwordx4 {vr(bb[1],4)}, v{VL16}, {WS}, s{S_FA} offen offset:{(r&1)*2048+1024} {SC}", f"f{q}"),
                     e(advA) if advA else None),
            lambda: (e.vm(f"buffer_load_dwordx4 {vr(bb[3],4)}, v{VL16}, {WS}, s{S_FB1} offen offset:{(r&3)*1024} {SC}", f"f{q}"),
                     e(advB) if advB else None)]
def f_mfma(q, k):
    bb = FBUF[q % NB]; r2, d2 = ((0, 0), (0, 1), (1, 1), (1, 0))[k]
    return mfma(FA + 32*r2 + 16*d2, bb[d2], bb[2 + r2], "0" if q == 0 else None)

OAREG = [8 + 4 * k for k in range(7)] + [FB + 4 * k for k in range(9)]
def oa_dma(e, n):
    def f():
        if n == 0: e(f"s_add_u32 m0, s{S_OL}, {3 * RING}\ns_nop 0")
        if n == 4: e(f"s_mov_b32 m0, s{S_OL}\ns_add_u32 s{S_OA}, s{S_OA}, 8192")
        e.vm(f"buffer_load_dwordx4 v{VL16}, {WS}, s{S_OA} offen offset:{(n & 3) * 1024} {SC} lds", "oa")
    return f
KVPRE = P('KVPRE', 2)
HDEF = P('HDEF', 1); HFL = P('HFL', 6 if HDEF else 2); S_HO = 47
def ha_flag(e):
    flag_store(e, f"""s_lshl_b32 s6, s{S_RB}, 5
s_add_u32 s6, s6, s{S_J}
s_lshl_b32 s6, s6, 2
s_add_u32 s6, s6, {F_H + 64}
s_lshl_b32 s{S_A}, s{S_WF}, 2
s_add_u32 s{S_A}, s{S_A}, {F_W}
s_sub_u32 s{S_A}, s{S_A}, s6
v_mul_lo_u32 v{PL}, v0, s{S_A}
v_add_u32 v{PL}, s6, v{PL}""", 2, PL)

def attn_setup(e, gelu, h_off, w2t_out):
    g0 = gelu(ACCB, S_C, G, 16 if HDEF else None, P('PK', 0) & 1); g1 = gelu(ACCB + 16, S_D, G + 8, 20 if HDEF else None, P('PK', 0) & 1)
    nfirst = P("GFIRST", 0)
    both = g0 + g1
    if P('GIL', 1): both = [x for p in zip(g0, g1) for x in p]
    for it in both[:nfirst]: it() if callable(it) else e(it)
    assert nfirst == 0
    poll_check(e, PL, PL + 1, "kvp", P("KSLEEP", 1))
    if SPLITQ: poll_check(e, PL + 2, PL + 3, "kvp", P("KSLEEP", 1))
    e.all_vm()
    e("s_barrier")
    e.stamp("xkv")
    if not HLATE: ha_flag(e)
    if P("KVT", 0):
        e(f"""s_lshr_b32 s6, s2, 3
s_lshl_b32 s6, s6, 3
s_add_u32 s6, s6, s{S_W}
s_lshl_b32 s6, s6, 10
s_add_u32 s6, s6, {KVF}
v_and_b32 v{TP}, 7, v0
v_lshlrev_b32 v{TP}, 7, v{TP}""")
        e.vm(f"buffer_load_dword v{TP+1}, v{TP}, {WS}, s6 offen {SC}", "kvt")
    side = Side(e)
    side.add(kv_dma(e, 0))
    side.add([lambda: e.vm(f"buffer_load_dwordx4 {vr(Q,4)}, v{VL16}, {WS}, s{S_QO} offen {SC}", "q"),
              lambda: e.vm(f"buffer_load_dwordx4 {vr(Q+4,4)}, v{VL16}, {WS}, s{S_QO} offen offset:1024 {SC}", "q")])
    side.emit(P("KPRE0", 7))
    if HLATE:
        l = e.newlabel("hl")
        e(f"s_cmp_eq_u32 s{S_ISQ}, 1\ns_cbranch_scc1 {l}")
        for it in range(2): e(f"buffer_store_dwordx4 {vr(ACCA+16*it+8,4)}, v{VL16}, {WS}, s{S_HA} offen offset:{1024*it} {SC}")
        e.label(l)
        e.mark['hl'] = len(e.q['vm'])
        if HLATE == 2:
            sd = Side(e); w2t_out(sd); sd.flush(); e.mark['hl'] = len(e.q['vm'])
    for st in range(1, KVPRE): side.add(kv_dma(e, st))
    for n, it in enumerate(both[nfirst:]):
        it() if callable(it) else e(it)
        if n % P('GSP', 1000) == P('GSP', 1000) - 1: side.emit(1)
        if n == 68: e.stamp("xg69")
    e.stamp("xgv")
    side.flush()
    e(f"""s_lshl_b32 s6, s{S_KH}, 14
v_add_u32 v{LB0}, s6, v{VL16}
v_add_u32 v{LB1}, 0x10000, v{LB0}""")

def rd(e, dst, tile, f, tag):
    sl = (tile // 4 + 3) % 4
    e.ds(f"ds_read_b128 {vr(dst,4)}, v{LB0 if sl < 2 else LB1} offset:{(sl & 1) * RING + (tile % 4) * 4096 + f * 1024}", tag)

def attn_loop(e, withF):
    e.stamp("xge")
    if P("PRIO", 2) == 2:
        l = e.newlabel("np"); e(f"s_cmp_ge_u32 s{S_W}, 4\ns_cbranch_scc0 {l}\ns_setprio 1"); e.label(l)
    if P("PRIO", 2) == 5: e("s_setprio 0")
    if P("PRIO", 2) == 6:
        l = e.newlabel("np"); e(f"s_cmp_lt_u32 s{S_W}, 4\ns_cbranch_scc0 {l}\ns_setprio 1"); e.label(l)
    e.wvm("k0", "q")
    if HLATE: e(f"s_waitcnt vmcnt({len(e.q['vm']) - e.mark['hl']})")
    e.stamp("xk0"); e("s_barrier")
    if HLATE: ha_flag(e)
    e.stamp("astart")
    rd(e, K, 0, 0, "a"); rd(e, K + 4, 0, 1, "a"); rd(e, V0, 0, 2, "b")
    e.wds("a")
    e(mfma(S0, K, Q, "0")); e(mfma(S0, K + 4, Q + 4))
    rd(e, K, 1, 0, "b"); rd(e, K + 4, 1, 1, "b")
    e("s_nop 9")
    NT = 32
    fq = []
    nq = 0
    dq = []
    fi = 0
    need = {}; keep = []; done = [0]
    for i in range(NT):
        sc = S0 + 16 * (i & 1); sn = S0 + 16 * ((i + 1) & 1)
        v0c = V0 + 4 * (i & 1); v0n = V0 + 4 * ((i + 1) & 1)
        E = lambda r: f"v_exp_f32 v{r}, v{r}"
        C = lambda d, r: f"v_cvt_pk_bf16_f32 v{d}, v{r}, v{r+1}"
        def g(k): return [E(sc + 4*k + q) for q in range(4)] + [C(PP + 2*k, sc + 4*k), C(PP + 2*k + 1, sc + 4*k + 2)]
        g0, g1, g2, g3 = g(0), g(1), g(2), g(3)
        fm = []; fl = []
        if withF:
            if i == FP - 2:
                assert FP % 4 == 2
                fl = [lambda: poll_issue(e, f"""s_lshl_b32 s6, s{S_RB}, 7
s_add_u32 s6, s6, {F_H + 64}
s_and_b32 s7, s{S_J}, 7
s_lshl_b32 s7, s7, 8
s_add_u32 s7, s7, {F_W - 64}
v_lshl_add_u32 v{G}, v0, 2, s6
v_lshl_add_u32 v{G+1}, v0, 2, s7
v_mov_b32 v{G+2}, s6
s_mov_b32 s{S_A}, 0xffff0000
s_mov_b32 s{S_B}, 0x00000fff
s_mov_b32 s{S_C}, 0x00008888
s_mov_b32 s{S_D}, 0xfffff000
v_cndmask_b32 v{G}, v{G}, v{G+1}, s[{S_A}:{S_B}]
v_cndmask_b32 v{G}, v{G}, v{G+2}, s[{S_C}:{S_D}]""", G, G + 1, "hp")]
            if FP <= i < F0:
                if i == FP:
                    for q in range(NB - 1): fq += f_loads(e, q)
                n = -(-len(fq) // (F0 - i))
                fl = fq[:n]; fq = fq[n:]
            pb = []
            if i == HBP - 2:
                pb = [lambda: poll_issue(e, f"""s_lshl_b32 s6, s{S_RB}, 7
s_add_u32 s6, s6, {F_H}
v_and_b32 v{G}, 15, v0
v_lshl_add_u32 v{G}, v{G}, 2, s6""", G, G + 1, "hb")]
            if i == WOP - 2:
                pb = [lambda: poll_issue(e, f"""s_and_b32 s6, s{S_J}, 7
s_lshl_b32 s6, s6, 8
s_add_u32 s6, s6, {F_W + 112}
v_and_b32 v{G}, 7, v0
v_lshl_add_u32 v{G}, v{G}, 2, s6""", G, G + 1, "wo")]
            if i >= F0:
                cnt = 3 if i >= F3 else 2
                idx = list(range(fi, min(fi + cnt, 56))); fi += len(idx)
                fm = [(n // 4, n % 4) for n in idx]
                for (q, k) in fm:
                    if k == 0 and q + NB - 1 < 14:
                        if q + NB - 1 == 6: assert i > HBP
                        nl = f_loads(e, q + NB - 1)
                        for f in nl: need[id(f)] = 4 * q
                        keep.extend(nl); fq += nl
                n = min(len(fq), cnt)
                fl = fq[:n] + pb; fq = fq[n:]
        def em(x): x() if callable(x) else e(x)
        e.stamp(f"xa{i}")
        ex = [E(sc + k) for k in range(16)]; cv = [C(PP + k, sc + 2 * k) for k in range(8)]
        if i + KVPRE <= 2: dq += kv_dma(e, i + KVPRE)
        misc = []
        if i == 29: misc.append(comb_addr())
        if HDEF and i in (HDEF, HDEF + 1):
            misc.append(lambda i=i: e.vm(f"buffer_store_dwordx4 {vr(16 + 4*(i - HDEF),4)}, v{VL16}, {WS}, s{H_B} offen offset:{1024*(i - HDEF)} {SC}", "hs"))
        if withF and 22 <= i < 30: misc.append(oa_dma(e, i - 22))
        gate = withF and i == FP
        def take(n):
            for _ in range(n):
                if fl and need.get(id(fl[0]), 0) <= done[0]: em(fl.pop(0))
        per = -(-len(fl) // 2)
        if P("PRIO", 2) == 7: e("s_setprio 1")
        if P("PRIO", 2) == 9: e("s_setprio 0")
        if P("PRIO", 2) == 10:
            up, dn = P("PUP", 3), P("PDN", 1)
            if i % 4 in (up, dn) or i == 0:
                l = e.newlabel("pr"); e(f"s_cmp_ge_u32 s{S_W}, 4\ns_cbranch_scc0 {l}\ns_setprio {int(i % 4 == up or i == 0)}"); e.label(l)
        for x in ex[0:2]: em(x)
        def fmf(n):
            if n < len(fm):
                q, k = fm[n]
                e.wvm(f"f{q}"); e(f_mfma(q, k)); done[0] += 1
        if fm and fm[0][1] == 0: e.wboth(f"f{fm[0][0]}")
        else: e.all_ds()
        if i > 0: e(mfma(O, V1, PP + 4))
        rd(e, V1, i, 3, "c")
        for x in ex[2:5]: em(x)
        fmf(0)
        if not gate: take(1 if fm else per)
        for x in cv[0:2] + ex[5:7]: em(x)
        if i + 1 < NT: e(mfma(sn, K, Q, "0")); rd(e, v0n, i + 1, 2, "c")
        for x in ex[7:10]: em(x)
        if i + 1 < NT: e(mfma(sn, K + 4, Q + 4))
        if i % 4 == 2 and i + 2 < NT:
            st = i // 4
            if withF and i == FP: poll_check(e, G, G + 1, "hp")
            if withF and i == HBP: poll_check(e, G, G + 1, "hb")
            if withF and i == WOP: poll_check(e, G, G + 1, "wo")
            while dq and i == 2: dq.pop(0)()
            e.wvm(*([f"k{st+1}"] + (["hs"] if i == HFL else []))); e("s_barrier")
            if i == HFL:
                flag_store(e, f"""s_lshl_b32 s6, s{S_RB}, 5
s_add_u32 s6, s6, s{S_J}
s_lshl_b32 s6, s6, 2
s_add_u32 s6, s6, {F_H}
v_mov_b32 v{G+2}, s6""", 1, G + 2)
            assert not dq
            if st + 3 <= 7: dq += kv_dma(e, st + 3)
        if i + 2 < NT: rd(e, K, i + 2, 0, "c"); rd(e, K + 4, i + 2, 1, "c")
        if dq and getattr(dq[0], "scalar", False): dq.pop(0)()
        if P("PRIO", 2) == 7: e("s_setprio 0")
        if P("PRIO", 2) == 9: e("s_setprio 1")
        for x in cv[2:4] + ex[10:12]: em(x)
        fmf(1)
        take(1 if fm else len(fl) if not gate else per)
        for x in ex[12:14] + cv[4:6]: em(x)
        e(mfma(O, v0c, PP, "0" if i == 0 else None))
        for _ in range(1 if i >= 2 else 2):
            if dq: dq.pop(0)()
        if len(fm) < 3: take(len(fl))
        for x in misc: em(x)
        for x in ex[14:16] + cv[6:7]: em(x)
        fmf(2); take(len(fl))
        fq = fl + fq
        em(cv[7])
        if i + 2 >= NT: e("s_nop 1")
    e.all_ds()
    e("s_nop 0")
    e(mfma(O, V1, PP + 4))
    return fi, fq

CMB = L_W2T
def comb_addr():
    T = G
    return f"""s_lshl_b32 s6, s{S_W}, 11
s_add_u32 s6, s6, {CMB}
v_add_u32 v{T}, s6, v{VL16}
v_xor_b32 v{T+1}, 8192, v{T}
s_lshl_b32 s6, s{S_W}, 8
s_add_u32 s6, s6, {CMB + 16384}
v_lshl_add_u32 v{T+2}, v0, 2, s6
v_or_b32 v{T+3}, 32, v0
s_lshl_b32 s6, s{S_QT}, 8
s_add_u32 s6, s6, {CMB + 16384}
v_lshl_add_u32 v{T+3}, v{T+3}, 2, s6
s_mov_b32 s{S_C}, {f2u(2.0 ** -64)}
s_mov_b32 s{S_D}, {f2u(2.0 ** 64)}
s_lshl_b32 s6, s{S_RB}, 9
s_add_u32 s6, s6, s{S_J}
s_lshl_b32 s6, s6, 2
s_add_u32 s6, s6, {F_O2}
v_lshl_add_u32 v6, v0, 7, s6
v_mov_b32 v7, s{S_NON}"""

def attn_finish(e, withF=False):
    T = G
    e.stamp("aend")
    if P("PEND", 0): e("s_setprio 0")
    hi = e.newlabel("chi"); jn = e.newlabel("cjn"); fb = e.newlabel("cfb"); bk = e.newlabel("cbk")
    e(f"s_cmp_eq_u32 s{S_KH}, 0\ns_nop 10")
    e.ds(f"ds_write_b32 v{T+2}, v{O+12}")
    e(f"s_cbranch_scc0 {hi}")
    e.ds(f"ds_write_b128 v{T}, {vr(O+8,4)}"); e.ds(f"ds_write_b128 v{T}, {vr(O+12,4)} offset:1024")
    e(f"s_branch {jn}")
    e.label(hi)
    e(f"ds_write_b128 v{T}, {vr(O,4)}\nds_write_b128 v{T}, {vr(O+4,4)} offset:1024")
    e.all_ds()
    for k in range(8): e(f"v_mov_b32 v{O+k}, v{O+8+k}")
    e.label(jn)
    if withF: e.wboth("oa")
    else: e.all_ds()
    e.stamp("xc0")
    e("s_barrier")
    e.stamp("xc1")
    e.ds(f"ds_read2st64_b32 {vr(PP,2)}, v{T+3} offset0:0 offset1:4", "l")
    e.ds(f"ds_read_b128 {vr(S0,4)}, v{T+1}", "h0"); e.ds(f"ds_read_b128 {vr(S0+4,4)}, v{T+1} offset:1024", "h1")
    e(f"s_mov_b32 s{S_A}, 0\ns_sub_u32 s{S_B}, 0, s{S_KH}")
    e.wds("l")
    e(f"""v_add_f32 v{PP}, v{PP}, v{PP+1}
v_rcp_f32 v{PP+1}, v{PP}
v_cmp_nle_f32 vcc, s{S_C}, v{PP}
v_cmp_nge_f32 s[{S_E}:{S_F}], s{S_D}, v{PP}""")
    e.all_ds()
    for k in range(8): e(f"v_add_f32 v{S0+k}, v{S0+k}, v{O+k}")
    e(f"s_or_b64 s[{S_E}:{S_F}], s[{S_E}:{S_F}], vcc")
    for k in range(8): e(f"v_mul_f32 v{S0+k}, v{S0+k}, v{PP+1}")
    def pack_store():
        for k in range(4): e(f"v_cvt_pk_bf16_f32 v{K+k}, v{S0+2*k}, v{S0+2*k+1}")
        e(f"""v_cndmask_b32 v{K+2}, v{K+2}, 0, s[{S_A}:{S_B}]
v_cndmask_b32 v{K+3}, v{K+3}, 0, s[{S_A}:{S_B}]""")
    pack_store()
    e.vm(f"buffer_store_dwordx4 {vr(K,4)}, v{VL16}, {WS}, s{S_OO} offen {SC}", "os")
    e(f"""v_add_f32 v{PP+2}, |v{S0}|, |v{S0+1}|
v_add_f32 v{PP+3}, |v{S0+2}|, |v{S0+3}|
v_add_f32 v{PP+4}, |v{S0+4}|, |v{S0+5}|
v_add_f32 v{PP+5}, |v{S0+6}|, |v{S0+7}|
v_add_f32 v{PP+2}, v{PP+2}, v{PP+3}
v_add_f32 v{PP+4}, v{PP+4}, v{PP+5}
s_mov_b32 s6, 0x7f7fffff
v_add_f32 v{PP+2}, v{PP+2}, v{PP+4}
v_cmp_nge_f32 vcc, s6, v{PP+2}
s_nop 1
s_or_b64 vcc, vcc, s[{S_E}:{S_F}]""")
    if 'forcefb' in X: e("s_mov_b64 vcc, 1")
    e(f"s_cbranch_vccnz {fb}")
    e.label(bk)
    FALLBACKS.append((fb, bk))
    e.stamp("xc2")

FALLBACKS = []
def fallback(e, fb, bk):
    l1 = e.newlabel("fb1"); l2 = e.newlabel("fb2"); l3 = e.newlabel("fb3")
    M = PP + 7
    e.label(fb)
    if 'fbcount' in X:
        e(f"""s_mov_b32 s80, s{P_DBG}
s_mov_b32 s81, s{P_DBG+1}
s_mov_b32 s82, 256
s_mov_b32 s83, 0x00020000
v_mov_b32 v{M}, 0
v_mov_b32 v{M-1}, 1
s_mov_b64 exec, 1
buffer_atomic_add v{M-1}, v{M}, s[80:83], 0 offen
v_mov_b32 v{M-1}, s2
buffer_store_dword v{M-1}, v{M}, s[80:83], 0 offen offset:4
v_mov_b32 v{M-1}, s{S_W}
buffer_store_dword v{M-1}, v{M}, s[80:83], 0 offen offset:8
v_mov_b32 v{M-1}, vcc_lo
buffer_store_dword v{M-1}, v{M}, s[80:83], 0 offen offset:12
v_mov_b32 v{M-1}, vcc_hi
buffer_store_dword v{M-1}, v{M}, s[80:83], 0 offen offset:16
v_mov_b32 v{M-1}, s{S_E}
buffer_store_dword v{M-1}, v{M}, s[80:83], 0 offen offset:20
v_mov_b32 v{M-1}, s{S_F}
buffer_store_dword v{M-1}, v{M}, s[80:83], 0 offen offset:24
buffer_store_dword v{PP}, v{M}, s[80:83], 0 offen offset:28
buffer_store_dword v{PP+2}, v{M}, s[80:83], 0 offen offset:32
s_waitcnt vmcnt(0)
s_mov_b64 exec, -1""")
    e(f"s_mov_b32 s6, {KVF}\nv_mov_b32 v{M}, 0xff800000")
    e.label(l1)
    e(f"""buffer_load_dwordx4 {vr(K,4)}, v{VL16}, {WS}, s6 offen {SC}
buffer_load_dwordx4 {vr(K+4,4)}, v{VL16}, {WS}, s6 offen offset:1024 {SC}
s_add_u32 s6, s6, 4096
s_waitcnt vmcnt(0)""")
    e(mfma(S0, K, Q, "0")); e(mfma(S0, K + 4, Q + 4))
    e("s_nop 11")
    for k in range(8): e(f"v_max3_f32 v{M}, v{M}, v{S0+2*k}, v{S0+2*k+1}")
    e(f"""s_cmp_lt_u32 s6, {KVF + 64*4096}
s_cbranch_scc1 {l1}
v_mov_b32 v{PP}, v{M}
s_nop 1
v_permlane32_swap_b32 v{PP}, v{M}
v_max_f32 v{M}, v{M}, v{PP}
v_cvt_pk_bf16_f32 v{PP}, v{M}, v{M}
v_and_b32 v{PP}, s{S_MASK}, v{PP}
v_sub_f32 v{PP+1}, v{M}, v{PP}
v_cvt_pk_bf16_f32 v{PP+2}, v{PP+1}, v{PP+1}
v_and_b32 v{PP+2}, s{S_MASK}, v{PP+2}
v_sub_f32 v{PP+1}, v{PP+1}, v{PP+2}
v_cvt_pk_bf16_f32 v{PP}, -v{PP}, -v{PP+2}
v_cvt_pk_bf16_f32 v{PP+1}, -v{PP+1}, 0
v_cndmask_b32 v{Q+6}, v{Q+6}, v{PP}, s[{S_HI}:{S_HI+1}]
v_cndmask_b32 v{Q+7}, v{Q+7}, v{PP+1}, s[{S_HI}:{S_HI+1}]
s_mov_b32 s6, {KVF}""")
    for k in range(16): e(f"v_mov_b32 v{O+k}, 0")
    e.label(l2)
    for f in range(4): e(f"buffer_load_dwordx4 {vr(K+4*f,4)}, v{VL16}, {WS}, s6 offen offset:{1024*f} {SC}")
    e("s_add_u32 s6, s6, 4096\ns_waitcnt vmcnt(0)")
    e(mfma(S0, K, Q, "0")); e(mfma(S0, K + 4, Q + 4))
    e("s_nop 11")
    for k in range(16): e(f"v_exp_f32 v{S0+k}, v{S0+k}")
    e("s_nop 0")
    for k in range(8): e(f"v_cvt_pk_bf16_f32 v{PP+k}, v{S0+2*k}, v{S0+2*k+1}")
    e("s_nop 1")
    e(mfma(O, K + 8, PP)); e(mfma(O, K + 12, PP + 4))
    e(f"""s_cmp_lt_u32 s6, {KVF + 64*4096}
s_cbranch_scc1 {l2}
s_nop 11
v_mov_b32 v{PP}, v{O+12}
v_mov_b32 v{PP+1}, v{O+12}
s_cmp_eq_u32 s{S_KH}, 0
s_nop 0
v_permlane32_swap_b32 v{PP}, v{PP+1}
v_rcp_f32 v{PP+1}, v{PP+1}
s_cbranch_scc1 {l3}""")
    for k in range(8): e(f"v_mov_b32 v{O+k}, v{O+8+k}")
    e.label(l3)
    e("s_nop 0")
    for k in range(8): e(f"v_mul_f32 v{S0+k}, v{O+k}, v{PP+1}")
    for k in range(4): e(f"v_cvt_pk_bf16_f32 v{K+k}, v{S0+2*k}, v{S0+2*k+1}")
    e(f"""v_cndmask_b32 v{K+2}, v{K+2}, 0, s[{S_A}:{S_B}]
v_cndmask_b32 v{K+3}, v{K+3}, 0, s[{S_A}:{S_B}]
buffer_store_dwordx4 {vr(K,4)}, v{VL16}, {WS}, s{S_OO} offen {SC}
s_waitcnt vmcnt(0)
s_branch {bk}""")

OFA, OFD = 6, 7
def o_signal(e):
    l = e.newlabel("os")
    e(f"s_cbranch_vccz {l}\ns_mov_b64 exec, 0xffff\nbuffer_store_dword v{OFD}, v{OFA}, {WS}, 0 offen {SC}\ns_mov_b64 exec, -1")
    e.label(l)

def o_flag(e):
    e.stamp("xc3")
    e(f"s_cmp_eq_u32 s{S_W}, 0\ns_cselect_b64 vcc, -1, 0")
    e.wvm("os"); e.stamp("xc4"); e("s_barrier")
    o_signal(e)

def tail(e, nq, fq):
    T = G
    SUM = 232
    RB = 64
    OBR = [96 + 4 * k for k in range(7)] + [36]
    AD = 248
    for f in fq: f()
    for n in range(nq, 56):
        q, k = n // 4, n % 4
        if k == 0 and q + NB - 1 < 14:
            for f in f_loads(e, q + NB - 1): f()
        e.wvm(f"f{q}"); e(f_mfma(q, k))
    e(f"""s_lshl_b32 s6, s{S_W}, 13
s_add_u32 s6, s6, {RING}
v_add_u32 v{AD+6}, s6, v{VL16}
v_xor_b32 v{AD+7}, 8192, v{AD+6}""")
    if nq < 56: e("s_nop 8")
    setup = Side(e)
    setup.add(f"""s_lshr_b32 s6, s{S_J}, 3
s_lshl_b32 s7, s{S_RB}, 1
s_add_u32 s6, s6, s7
s_and_b32 s{S_B}, s{S_W}, 1
s_lshl_b32 s{S_C}, s6, 1
s_add_u32 s{S_C}, s{S_C}, s{S_B}
s_mul_i32 s{S_C}, s{S_C}, 144
s_lshr_b32 s{S_A}, s{S_W}, 1
s_lshl_b32 s{S_D}, s{S_A}, 3
s_add_u32 s{S_D}, s{S_D}, 112
s_add_u32 s{S_C}, s{S_C}, s{S_D}
s_lshl_b32 s{S_C}, s{S_C}, 10
s_and_b32 s7, s{S_J}, 7
s_add_u32 s{S_D}, s{S_C}, 4096
s_lshl_b32 s{S_A}, s{S_A}, 14
s_lshl_b32 s{S_B}, s{S_B}, 13
s_add_u32 s{S_G}, s{S_A}, s{S_B}
s_add_u32 s{S_G}, s{S_G}, {RING}
v_and_b32 v{T}, 31, v0
v_lshrrev_b32 v{T+1}, 5, v0
v_and_b32 v{T+2}, 7, v0
v_xor_b32 v{T+1}, v{T+1}, v{T+2}
v_lshlrev_b32 v{T+1}, 4, v{T+1}
v_lshl_add_u32 v{T}, v{T}, 8, v{T+1}
v_add_u32 v{AD}, s{S_G}, v{T}
v_xor_b32 v{AD+1}, 32, v{AD}
v_xor_b32 v{AD+2}, 64, v{AD}
v_xor_b32 v{AD+3}, 96, v{AD}
s_lshl_b32 s6, s6, 6
s_lshl_b32 s{S_B}, s{S_W}, 3
s_add_u32 s6, s6, s{S_B}
v_lshrrev_b32 v{T}, 3, v0
v_add_u32 v{T+1}, s6, v{T}
v_mul_u32_u24 v{T+1}, 896, v{T+1}
v_lshl_add_u32 v{T+1}, v{T+2}, 4, v{T+1}
s_lshl_b32 s7, s7, 7
v_add_u32 v{VO}, s7, v{T+1}
v_lshlrev_b32 v{T+2}, 1, v{T+2}
v_xor_b32 v{T+2}, v{T+2}, v{T}
v_lshlrev_b32 v{T+2}, 4, v{T+2}
v_lshl_add_u32 v{T}, v{T}, 8, v{T+2}
s_lshl_b32 s6, s{S_W}, 11
s_add_u32 s6, s6, {RING}
v_add_u32 v{AD+4}, s6, v{T}
v_xor_b32 v{AD+5}, 16, v{AD+4}
v_add_u32 v{T+2}, {3 * RING}, v{T+3}""")
    e(f"s_lshr_b32 s6, s{S_W}, 1\ns_lshl_b32 s6, s6, 13\nv_add_u32 v{T+3}, s6, v{VL16}\ns_nop 0")
    oaq = [(lambda k=k: e.ds(f"ds_read_b128 {vr(OAREG[k],4)}, v{T+2 if k < 8 else T+3} offset:{(k & 7) * 1024}", "oar")) for k in range(16)]
    nw1 = P("NW1", 0)
    def oflag():
        e.stamp("xc3")
        e(f"s_cmp_eq_u32 s{S_W}, 0\ns_cselect_b64 vcc, -1, 0")
        e.wvm("os")
        if nw1 == 8: e.all_ds()
        e.stamp("xc4"); e("s_barrier")
        o_signal(e)
    for q in range(8):
        if q == nw1: oflag()
        e.ds(f"ds_write_b128 v{AD+6}, {vr(FA+32+4*q,4)} offset:{q*1024}")
        setup.emit(6)
    setup.flush()
    if nw1 == 8: oflag()
    if not P('OAL', 1):
        for f in oaq: f()
    e.vm(f"buffer_load_dwordx4 {vr(XRES,4)}, v{VO}, s[{SRD_X}:{SRD_X+3}], 0 offen", "xr")
    if nw1 < 8: e.all_ds(); e("s_barrier")
    for q in range(8): e.ds(f"ds_read_b128 {vr(RB+4*q,4)}, v{AD+7} offset:{q*1024}", f"p{q}")
    def olook():
        poll_issue(e, f"""s_lshl_b32 s6, s{S_RB}, 4
s_add_u32 s6, s6, s{S_J}
s_lshl_b32 s6, s6, 7
s_add_u32 s6, s6, {F_O2}
v_and_b32 v{T}, 15, v0
v_lshl_add_u32 v{T}, v{T}, 2, s6""", T, T + 1, "op")
    if P('OLATE', 1) == 0: olook()
    srd(e, SRD_OUT, P_OUT, 2048 * 896)
    for q in range(8):
        e.wds(f"p{q}")
        for k in range(4): e(f"v_add_f32 v{FA+4*q+k}, v{FA+4*q+k}, v{RB+4*q+k}")
    if P('OLATE', 1) == 2:
        for f in oaq: f()
        oaq = []
    if P('OLATE', 1): olook()
    e.stamp("t1")
    poll_check(e, T, T + 1, "op", P("OSLEEP", 1))
    e("s_barrier")
    e.stamp("t2")
    for k in range(8):
        e.vm(f"buffer_load_dwordx4 {vr(OBR[k],4)}, v{VL16}, {WS}, s{S_C if k < 4 else S_D} offen offset:{(k&3)*1024} {SC}", f"ob{k}")
    if P('OAL', 1):
        for f in oaq: f()
        e.all_ds()
    e.wvm("xr")
    for k in range(4): e(f"v_lshlrev_b32 v{SUM+2*k}, 16, v{XRES+k}\nv_and_b32 v{SUM+1+2*k}, s{S_MASK}, v{XRES+k}")
    for k in range(8):
        e.wvm(f"ob{k}")
        for d2 in range(2): e(mfma(FA + 16*d2, OAREG[2*k + d2], OBR[k]))
    e("s_nop 10")
    e.stamp("t3")
    for d2 in range(2):
        for q in range(4): e.ds(f"ds_write_b128 v{AD+q}, {vr(FA+16*d2+4*q,4)} offset:{d2*128}")
    e.all_ds()
    e("s_barrier")
    for p in range(4):
        e.ds(f"ds_read_b128 {vr(RB+8*p,4)}, v{AD+4} offset:{p*16384}", f"s{p}")
        e.ds(f"ds_read_b128 {vr(RB+8*p+4,4)}, v{AD+5} offset:{p*16384}", f"s{p}")
    for p in range(4):
        e.wds(f"s{p}")
        for k in range(8): e(f"v_add_f32 v{SUM+k}, v{SUM+k}, v{RB+8*p+k}")
    for k in range(4): e(f"v_cvt_pk_bf16_f32 v{XRES+k}, v{SUM+2*k}, v{SUM+1+2*k}")
    e.vm(f"buffer_store_dwordx4 {vr(XRES,4)}, v{VO}, s[{SRD_OUT}:{SRD_OUT+3}], 0 offen {os.environ.get('OUTF', '')}")

DOC = """;
;            one extra MFMA, 1/std folded into the GELU constants); h, q, k, v and the transposed down / output
;  tail    : o of the 16 heads, output projection, cross-wave reduction, residual, store
"""
def build():
    e = Em()
    kn = NAME + "_kernel"
    e.a.raw(f".globl {kn}\n.p2align 8\n.type {kn},@function")
    e.label(kn)
    prologue(e)
    gelu, h_off, w2t_out = phaseB(e)
    attn_setup(e, gelu, h_off, w2t_out)
    e(f"s_and_b32 s6, s{S_J}, 7\ns_cmp_eq_u32 s6, 7\ns_cbranch_scc1 C_noF")
    sn = e.snap(); ns = e.nst
    nq, fq = attn_loop(e, True)
    attn_finish(e, True)
    tail(e, nq, fq)
    nend = e.nst
    e("s_branch K_fin")
    e.label("C_noF")
    e.restore(sn); e.nst = ns
    attn_loop(e, False)
    attn_finish(e)
    o_flag(e)
    e(f"""s_cmp_eq_u32 s{S_RB}, 0
s_cbranch_scc0 C_noF_done
s_cmp_eq_u32 s{S_J}, 7
s_cbranch_scc0 C_noF_done
s_cmp_eq_u32 s{S_W}, 0
s_cbranch_scc0 C_noF_done""")
    for k in range(4):
        e(f"""v_lshrrev_b32 v{G}, 4, v0
v_and_b32 v{G+1}, 15, v0
v_lshlrev_b32 v{G}, 7, v{G}
v_lshl_add_u32 v{G}, v{G+1}, 2, v{G}
v_add_u32 v{G}, {F_H + 512*k}, v{G}""")
        e(f"buffer_load_dword v{G+1}, v{G}, {WS}, 0 offen {SC}"); e.mark[f"ep{k}"] = len(e.q['vm'])
        poll_check(e, G, G + 1, f"ep{k}")
    e(f"v_mov_b32 v{G}, {EPO}\nv_mov_b32 v{G+1}, s{S_NON}\ns_mov_b64 exec, 1\nbuffer_store_dword v{G+1}, v{G}, {WS}, 0 offen {SC}\ns_mov_b64 exec, -1")
    e.label("C_noF_done")
    while e.nst < nend and not STAMPS_OFF: e.stamp()
    e.label("K_fin")
    if os.environ.get("AMPAT") == "xfin": e("s_waitcnt vmcnt(0)"); e.stamp("xfin")
    if os.environ.get("AMPAT"):
        e("""s_waitcnt vmcnt(0)
s_memrealtime s[92:93]
s_waitcnt lgkmcnt(0)
s_sub_u32 s7, s94, s96
s_mul_i32 s7, s7, 10
K_amp:
s_sleep 1
s_memrealtime s[98:99]
s_waitcnt lgkmcnt(0)
s_sub_u32 s6, s98, s92
s_cmp_lt_u32 s6, s7
s_cbranch_scc1 K_amp""")
    if 'stdiag' in X:
        e("""s_memtime s[92:93]
s_waitcnt lgkmcnt(0)
K_sd:
s_sleep 2
s_memtime s[90:91]
s_waitcnt lgkmcnt(0)
s_sub_u32 s6, s90, s92
s_cmp_lt_u32 s6, s94
s_cbranch_scc1 K_sd""")
    if 'fix' in X:
        e("""K_fx:
s_sleep 1
s_memrealtime s[98:99]
s_waitcnt lgkmcnt(0)
s_sub_u32 s6, s98, s96
s_cmp_lt_u32 s6, 10000
s_cbranch_scc1 K_fx""")
    if 'amp' in X:
        e("""s_waitcnt vmcnt(0)
s_memrealtime s[98:99]
s_waitcnt lgkmcnt(0)
s_sub_u32 s7, s98, s96
s_mul_i32 s7, s7, 10
K_fx:
s_sleep 1
s_memrealtime s[98:99]
s_waitcnt lgkmcnt(0)
s_sub_u32 s6, s98, s96
s_cmp_lt_u32 s6, s7
s_cbranch_scc1 K_fx""")
    if STAMPS:
        e.stamp()
        e.label("K_fin2")
        e("s_memrealtime s[98:99]\ns_waitcnt lgkmcnt(0) vmcnt(0)")
        e(f"""s_mov_b32 s40, s{P_WS}
s_mov_b32 s41, s{P_WS+1}
s_mov_b32 s42, 0x10000000
s_mov_b32 s43, 0x00020000
s_lshl_b32 s6, s2, 3
s_add_u32 s6, s6, s{S_W}
s_lshl_b32 s6, s6, 6
s_add_u32 s6, s6, {STAMP_WS}
v_mov_b32 v2, s96
v_mov_b32 v3, s98""")
        for k in range(10): e(f"v_mov_b32 v{4+k}, {'s%d' % (76+2*k) if k < e.nst else 0}")
        e("v_mov_b32 v1, 0\ns_mov_b64 exec, 1")
        for q in range(3): e(f"buffer_store_dwordx4 v[{2+4*q}:{5+4*q}], v1, s[40:43], s6 offen offset:{16*q}")
    e("s_endpgm")
    for fb, bk in FALLBACKS: fallback(e, fb, bk)
    e.label("K_end")
    e("s_endpgm")
    probs = check_hazards(e.a.lines, "k")
    hdr = open("cdna_kernels/" + NAME + ".s.ref").read().split("; Override launch")[0]
    out = hdr + f"; @launch grid=(256,1,1) block=(512,1,1) lds={LDS_BYTES}\n"
    out += DOC + '.amdgcn_target "amdgcn-amd-amdhsa--gfx950"\n.text\n' + e.a.text()
    out += f""".section .rodata,"a"
.p2align 6
.amdhsa_kernel {kn}
  .amdhsa_next_free_vgpr 256
  .amdhsa_next_free_sgpr 102
  .amdhsa_accum_offset 256
  .amdhsa_group_segment_fixed_size 0
  .amdhsa_kernarg_size 96
  .amdhsa_user_sgpr_count 2
  .amdhsa_user_sgpr_kernarg_segment_ptr 1
  .amdhsa_system_sgpr_workgroup_id_x 1
  .amdhsa_float_denorm_mode_32 3
.end_amdhsa_kernel
"""
    return out, probs

if __name__ == "__main__":
    out, probs = build()
    for p in probs: print("HAZARD", p, file=sys.stderr)
    open(sys.argv[1] if len(sys.argv) > 1 else "cdna_kernels/" + NAME + ".s", "w").write(out)
```

```python
import sys, os, math, struct
from asmlib import *
X = set(os.environ.get('XFLAGS', '').split(','))
def P(name, default): return int(os.environ.get(name, default))
NAME = "parallel_sum__grouped_kv_mqa__glu_gated_geglu__prompt"
def f2u(x): return struct.unpack("<I", struct.pack("<f", x))[0]

A2F = 0
W2T = 64 * 144 * 1024
QF  = W2T + 7 * 144 * 2048
KVF = QF + 64 * 16 * 2048
FLG = KVF + 64 * 4096
RKV = P("RKV", 16)
F_W  = FLG
F_H  = FLG + 2048
F_O  = FLG + 4096
EPO  = FLG + 6144
F_Q  = FLG + 4096
SPLITQ = P('SPLITQ', 1)
F_KV = FLG + 8192
F_O2 = F_KV + 256 * RKV
STAT = F_O2 + 32768
WS_END = STAT + 2048 * 8
OOB = 0x7ffffff0
P_X, P_WQ, P_WK, P_WV, P_WO, P_BX, P_WG, P_WU, P_WD, P_OUT, P_DBG, P_WS = 8, 10, 12, 14, 16, 18, 20, 22, 24, 26, 28, 30
SRD_X, SRD_WS, SRD_T, SRD_PC = 32, 36, 40, 44
SRD_OUT = SRD_T
S_W, S_RB, S_J = 3, 4, 5
(S_WB, S_MASK, S_XO, S_XO2, S_RT, S_CG, S_MUL, S_T0, S_T1, S_U, S_NON, S_LA, S_LB, S_TO, S_QU) = range(48, 63)
S_HI = 64
S_A, S_B, S_C, S_D, S_E, S_F = 66, 67, 68, 69, 70, 71
S_G, S_H2 = 72, 73
S_CNT = 74
WS = f"s[{SRD_WS}:{SRD_WS+3}]"
SC = "sc1"
STAMPS = bool(os.environ.get("STAMPS"))
STAMP_WS = 200 * 1024 * 1024
SPIN_MAX = 1 << 21
STAMPS_OFF = False

class Em:
    def __init__(s):
        s.a = Asm(); s.q = {'ds': [], 'vm': []}; s.done = {'ds': 0, 'vm': 0}; s.nst = 0; s.uid = 0; s.mark = {}
    def __call__(s, t): s.a(t)
    def label(s, l): s.a.label(l)
    def ds(s, ins, tag=None): s.a(ins); s.q['ds'].append(tag)
    def vm(s, ins, tag=None): s.a(ins); s.q['vm'].append(tag)
    def _n(s, k, tags, cap):
        idx = -1
        for t in tags:
            ii = [i for i, x in enumerate(s.q[k]) if x == t]
            if not ii and 'nodma' in X: continue
            assert ii, f"tag {t} never issued"
            idx = max(idx, ii[-1])
        if idx < s.done[k]: return None
        n = min(len(s.q[k]) - 1 - idx, cap)
        s.done[k] = len(s.q[k]) - n
        return n
    def wds(s, *tags):
        n = s._n('ds', tags, 15)
        if n is not None: s.a(f"s_waitcnt lgkmcnt({n})")
    def wvm(s, *tags):
        n = s._n('vm', tags, 63)
        if n is not None: s.a(f"s_waitcnt vmcnt({n})")
    def wboth(s, *tags):
        n = s._n('vm', tags, 63)
        s.a("s_waitcnt lgkmcnt(0)" if n is None else f"s_waitcnt vmcnt({n}) lgkmcnt(0)"); s.done['ds'] = len(s.q['ds'])
    def all_ds(s): s.a("s_waitcnt lgkmcnt(0)"); s.done['ds'] = len(s.q['ds'])
    def all_vm(s): s.a("s_waitcnt vmcnt(0)"); s.done['vm'] = len(s.q['vm'])
    def snap(s): return ({k: list(v) for k, v in s.q.items()}, dict(s.done))
    def restore(s, sn): s.q = {k: list(v) for k, v in sn[0].items()}; s.done = dict(sn[1])
    def stamp(s, name=None):
        if name is not None and name == os.environ.get("IDLEAT"): s.a("s_sleep 32")
        if name is not None and name == os.environ.get("AMPAT"):
            s.a("s_memrealtime s[94:95]"); s.all_ds()
        sel = os.environ.get("STSEL")
        if sel is not None and name is not None and name not in sel.split(","): return
        if sel is None and name is not None and name.startswith("x"): return
        if STAMPS and not STAMPS_OFF:
            assert s.nst < 10
            s.a(f"{'s_memrealtime' if os.environ.get('RT') else 's_memtime'} s[{76+2*s.nst}:{77+2*s.nst}]"); s.nst += 1
            s.all_ds()
    def newlabel(s, p): s.uid += 1; return f"{p}_{s.uid}"

def srd(e, d, p, nbytes):
    e(f"s_mov_b32 s{d}, s{p}\ns_mov_b32 s{d+1}, s{p+1}\ns_mov_b32 s{d+2}, {nbytes}\ns_mov_b32 s{d+3}, 0x00020000")
def mfma(d, A, B, C=None):
    return f"v_mfma_f32_32x32x16_bf16 {vr(d,16)}, {vr(A,4)}, {vr(B,4)}, {vr(d,16) if C is None else C}"
def mfma16(d, A, B, C=None):
    return f"v_mfma_f32_16x16x32_bf16 {vr(d,4)}, {vr(A,4)}, {vr(B,4)}, {vr(d,4) if C is None else C}"

class Side:
    def __init__(s, e): s.e = e; s.q = []
    def add(s, items):
        if isinstance(items, str):
            raw = [l.strip() for l in items.strip().split("\n") if l.strip()]
            items = []
            for l in raw:
                if l.startswith("s_cselect"): items[-1] += "\n" + l
                else: items.append(l)
        s.q += list(items)
    def emit(s, n):
        while n > 0 and s.q:
            it = s.q.pop(0)
            if callable(it): it()
            else: s.e(it)
            n -= 1
    def flush(s): s.emit(1 << 30)

def flag_store(e, addr_lines, nlanes, vt):
    l = e.newlabel("fl")
    e(f"s_cmp_eq_u32 s{S_W}, 0\ns_cbranch_scc0 {l}")
    e(addr_lines)
    e(f"v_mov_b32 v{vt+1}, s{S_NON}\ns_mov_b64 exec, {(1 << nlanes) - 1}\nbuffer_store_dword v{vt+1}, v{vt}, {WS}, 0 offen {SC}\ns_mov_b64 exec, -1")
    e.label(l)

def poll_issue(e, addr_lines, vaddr, vdat, tag):
    l = e.newlabel("pi")
    e(f"s_cmp_eq_u32 s{S_W}, 0\ns_cbranch_scc0 {l}")
    e(addr_lines)
    e(f"buffer_load_dword v{vdat}, v{vaddr}, {WS}, 0 offen {SC}")
    e.label(l)
    e.mark[tag] = len(e.q['vm'])

def poll_check(e, vaddr, vdat, tag, sleep=None):
    ok = e.newlabel("pok"); sp = e.newlabel("psp")
    e(f"s_cmp_eq_u32 s{S_W}, 0\ns_cbranch_scc0 {ok}")
    e(f"s_waitcnt vmcnt({min(63, len(e.q['vm']) - e.mark[tag])})")
    e(f"v_cmp_ne_u32 vcc, s{S_NON}, v{vdat}\ns_cbranch_vccz {ok}\ns_mov_b32 s{S_CNT}, {SPIN_MAX}")
    e.label(sp)
    e(f"""s_sleep {P('SLEEP', 4) if sleep is None else sleep}
buffer_load_dword v{vdat}, v{vaddr}, {WS}, 0 offen {SC}
s_sub_u32 s{S_CNT}, s{S_CNT}, 1
s_waitcnt vmcnt(0)
v_cmp_ne_u32 vcc, s{S_NON}, v{vdat}
s_cmp_eq_u32 s{S_CNT}, 0
s_cbranch_scc1 {ok}
s_cbranch_vccnz {sp}""")
    if 'spincnt' in X and tag in SPINIDX: e(f"s_sub_u32 s{78 + 2 * SPINIDX[tag]}, {SPIN_MAX + 1000}, s{S_CNT}")
    e.label(ok)
SPINIDX = {'kvp': 0, 'hp': 1, 'hb': 2, 'wo': 3, 'op': 4}

RING = 32768
L_W2T = 131072
L_CSA = L_W2T + 8192
L_CSB = L_CSA + 2048
L_ST  = L_CSB + 2048
L_KVB = L_ST + 4096
L_FLG = L_KVB + 4096
LDS_BYTES = L_FLG + 256

VL16, VT, VX, GA, GS = 1, 2, 3, 4, 6
XA, WA = 8, 12
ST, SEL, CSA, WF, TM = 20, 24, 28, 36, 60
ACCA, ACCB, XR, G = 64, 96, 128, 240
SQA, SQB, TP = 60, 240, 248
WB, GB, PL = 250, 102, 252
R_, S_, AC, BC, I2 = 8, 9, 10, 11, 3
BEXT = 60


TA, TS, TX, TD = 96, 98, 99, 100
S_ISQ, S_SH = 63, 75
RW = 104
def w_source(row, c, dst, gs, t0):
    return f"""v_cmp_le_u32 vcc, s{S_A}, v{c}
v_mul_lo_u32 v{dst}, v{row}, s{S_B}
v_lshl_add_u32 v{dst}, v{c}, 4, v{dst}
v_add_u32 v{dst}, s{S_C}, v{dst}
v_subrev_u32 v{c}, s{S_A}, v{c}
v_lshlrev_b32 v{c}, s{S_G}, v{c}
v_mul_lo_u32 v{t0}, v{row}, s{S_D}
v_add3_u32 v{t0}, v{t0}, v{c}, s{S_H2}
v_cndmask_b32 v{dst}, v{dst}, v{t0}, vcc
v_mov_b32 v{gs}, s{S_B}
v_mov_b32 v{t0}, s{S_D}
v_cndmask_b32 v{gs}, v{gs}, v{t0}, vcc
v_lshlrev_b32 v{gs}, 5, v{gs}"""

ROTS = {0: [0]*8, 1: [0, 3, 2, 5, 4, 0, 6, 2], 2: [0, 3, 3, 0, 0, 3, 3, 0], 3: [0, 1, 2, 3, 4, 5, 6, 0], 4: [0, 4, 1, 5, 2, 6, 3, 0]}
ROTTAB = sum(v << (4 * i) for i, v in enumerate(ROTS[P("ROT", 0)]))
S_ROT = 47
S_KVO, S_WB4, S_FA, S_FB0, S_FB1, S_OO, S_FQ, S_K1, S_OA, S_OL = 15, 18, 19, 20, 21, 22, 23, 28, 29, 44
HLATE = P('HLATE', 0); S_HA = 45
S_WF = 46
RPAR, RBIT = P("RPAR", 0), P("RBIT", 0)
RPARCODE = "" if not RPAR else f"""
s_lshr_b32 s{S_F}, s2, 3
s_lshr_b32 s{S_T0}, s2, 6
s_xor_b32 s{S_F}, s{S_F}, s{S_T0}
s_and_b32 s{S_F}, s{S_F}, {RBIT or 1}
s_mul_i32 s{S_F}, s{S_F}, {RPAR}
s_add_u32 s{S_XO}, s{S_XO}, s{S_F}
s_cmp_ge_u32 s{S_XO}, 7
s_cselect_b32 s{S_F}, 7, 0
s_sub_u32 s{S_XO}, s{S_XO}, s{S_F}"""
def prologue(e):
    T = TM
    ROTCODE = f"""s_and_b32 s{S_XO}, s2, 7
s_lshl_b32 s{S_XO}, s{S_XO}, 2
s_lshr_b32 s{S_XO}, {ROTTAB:#x}, s{S_XO}
s_and_b32 s{S_XO}, s{S_XO}, 7{RPARCODE}
s_mov_b32 s{S_ROT}, s{S_XO}
s_lshl_b32 s{S_F}, s{S_XO}, 6
s_lshl_b32 s{S_XO}, s{S_XO}, 7
v_add_u32 v{T+2}, s{S_F}, v{T+2}
""" if any(ROTS[P('ROT', 0)]) or RPAR else f"s_mov_b32 s{S_ROT}, 0\n"
    e(f"s_cmp_ge_u32 s2, 256\ns_cbranch_scc1 K_end")
    if STAMPS or 'fix' in X or 'amp' in X or os.environ.get("AMPAT"): e("s_memrealtime s[96:97]")
    e.stamp()
    if 'spincnt' in X:
        for k in range(6): e(f"s_movk_i32 s{78 + 2*k}, 1000")
        e.nst = 7
    e("s_load_dwordx16 s[8:23], s[0:1], 0\ns_load_dwordx8 s[24:31], s[0:1], 64")
    e(f"s_getpc_b64 s[{SRD_PC}:{SRD_PC+1}]")
    e.label("K_pc")
    e(f"""s_mov_b32 s{SRD_PC+2}, K_end-K_pc
s_mov_b32 s{SRD_PC+3}, 0x00020000""")
    if P("CPF", 1):
        e(f"s_lshr_b32 s6, s2, 3\ns_lshl_b32 s6, s6, 11\nv_lshrrev_b32 v1, 5, v0\nv_lshl_add_u32 v1, v1, 7, s6")
    else: e("v_lshlrev_b32 v1, 7, v0")
    e.vm(f"buffer_load_dword v{TD}, v1, s[{SRD_PC}:{SRD_PC+3}], 0 offen")
    T = TM
    e(f"""v_lshrrev_b32 v1, 6, v0
v_and_b32 v0, 63, v0
v_readfirstlane_b32 s{S_W}, v1
s_nop 1""")
    e(f"""s_lshl_b32 s{S_TG}, s2, 3
s_add_u32 s{S_TG}, s{S_TG}, s{S_W}
s_mul_i32 s6, s{S_TG}, 896
v_lshl_add_u32 v{TX}, v0, 4, s6
v_cmp_lt_u32 vcc, 55, v0
v_mov_b32 v{TX+2}, {OOB}
s_nop 0
v_cndmask_b32 v{TX}, v{TX}, v{TX+2}, vcc""")
    WT = f"""s_min_u32 s6, s{S_TG}, 1393
s_cmp_ge_u32 s6, 448
s_cselect_b32 s{SRD_T}, s{P_WU}, s{P_WG}
s_cselect_b32 s{SRD_T+1}, s{P_WU+1}, s{P_WG+1}
s_cselect_b32 s{S_A}, 448, 0
s_mov_b32 s{S_D}, {448*3584}
s_cmp_ge_u32 s6, 896
s_cselect_b32 s{SRD_T}, s{P_WQ}, s{SRD_T}
s_cselect_b32 s{SRD_T+1}, s{P_WQ+1}, s{SRD_T+1}
s_cselect_b32 s{S_A}, 896, s{S_A}
s_cselect_b32 s{S_B}, 6, 11
s_cselect_b32 s{S_C}, 7, 28
s_cselect_b32 s{S_D}, {448*896}, s{S_D}
s_cmp_ge_u32 s6, 1344
s_cselect_b32 s{SRD_T}, s{P_WK}, s{SRD_T}
s_cselect_b32 s{SRD_T+1}, s{P_WK+1}, s{SRD_T+1}
s_cselect_b32 s{S_A}, 1344, s{S_A}
s_cselect_b32 s{S_B}, 7, s{S_B}
s_cselect_b32 s{S_C}, 8, s{S_C}
s_cselect_b32 s{SRD_T+2}, {448*56}, s{S_D}
s_cmp_ge_u32 s6, 1369
s_cselect_b32 s{SRD_T}, s{P_WV}, s{SRD_T}
s_cselect_b32 s{SRD_T+1}, s{P_WV+1}, s{SRD_T+1}
s_cselect_b32 s{S_A}, 1369, s{S_A}
s_mov_b32 s{SRD_T+3}, 0x00020000
s_sub_u32 s6, s6, s{S_A}
s_mul_i32 s6, s6, s{S_C}
v_min_u32 v{TA}, s{S_B}, v0
v_add_u32 v{TA}, s6, v{TA}
v_lshlrev_b32 v{TA}, 7, v{TA}"""
    e(f"""
s_bfe_u32 s{S_RB}, s2, 0x20001
s_lshl_b32 s{S_RB}, s{S_RB}, 2
s_lshr_b32 s6, s2, 6
s_add_u32 s{S_RB}, s{S_RB}, s6
s_and_b32 s{S_J}, s2, 1
s_lshl_b32 s{S_J}, s{S_J}, 3
s_bfe_u32 s7, s2, 0x30003
s_add_u32 s{S_J}, s{S_J}, s7
s_lshr_b32 s{S_QU}, s{S_J}, 2
s_sub_u32 s{S_LA}, s{S_J}, s{S_QU}
s_lshl_b32 s{S_WB}, s{S_W}, 10
s_lshl_b32 s{S_C}, s{S_LA}, 7
s_mul_i32 s{S_E}, s{S_QU}, 224
s_and_b32 s{S_F}, s{S_QU}, 1
s_sub_u32 s{S_G}, 4, s{S_F}
s_lshl_b32 s{S_F}, s{S_F}, 5
s_movk_i32 s{S_D}, 3584
s_and_b32 s{S_ISQ}, s{S_J}, 3
s_cmp_eq_u32 s{S_ISQ}, 3
s_cselect_b32 s{S_ISQ}, 1, 0
s_cselect_b32 s{S_A}, 14, 8
s_cselect_b32 s{S_B}, 896, s{S_D}
s_cselect_b32 s{S_D}, 56, s{S_D}
s_cselect_b32 s{S_H2}, s{S_F}, s{S_C}
s_cselect_b32 s{S_C}, s{S_E}, s{S_C}
s_cselect_b32 s{S_G}, s{S_G}, 4
s_add_u32 s{S_SH}, s{S_ISQ}, 1
s_lshl_b32 s{S_E}, s{S_RB}, 7
s_lshl_b32 s{S_F}, s{S_W}, 3
s_add_u32 s{S_F}, s{S_F}, s{S_E}
v_lshrrev_b32 v{T}, 3, v0
v_add_u32 v{T}, s{S_F}, v{T}
v_mul_u32_u24 v{T}, 896, v{T}
s_lshl_b32 s{S_F}, s{S_W}, 2
v_lshrrev_b32 v{T+1}, 4, v0
v_add_u32 v{T+2}, s{S_F}, v{T+1}
v_xor_b32 v{T+3}, v{T+2}, v0
v_and_b32 v{T+3}, 7, v{T+3}
v_lshl_add_u32 v{VX}, v{T+3}, 4, v{T}
{ROTCODE}v_lshlrev_b32 v{T+1}, s{S_SH}, v{T+1}
v_xor_b32 v{T+1}, v{T+1}, v0
v_and_b32 v{T+1}, 15, v{T+1}""")
    e(w_source(T + 2, T + 1, G, GS, T))
    e(f"s_mov_b64 s[{S_HI}:{S_HI+1}], vcc")
    if TOUCH:
        e(f"""s_and_b32 s6, s6, 3
s_lshl_b32 s6, s6, 3
s_add_u32 s6, s6, s{S_W}
s_lshl_b32 s6, s6, 1
s_lshl_b32 s7, s7, 3
s_add_u32 s7, s7, s{S_W}
s_lshl_b32 s7, s7, 1
s_add_u32 s7, s7, s{S_E}
v_bfe_u32 v{T+2}, v0, 3, 1
v_bfe_u32 v{T+1}, v0, 2, 1
v_lshl_add_u32 v{T+2}, v{T+2}, 6, v{T+1}
v_add_u32 v{T+2}, s6, v{T+2}
v_and_b32 v{T+1}, 3, v0
v_lshlrev_b32 v{T+1}, 2, v{T+1}
v_lshrrev_b32 v{T+1}, v{T+1}, s{S_MASK}
v_and_b32 v{T+1}, 15, v{T+1}
v_and_b32 v{T}, 1, v0
v_add_u32 v{T}, s7, v{T}
v_mul_u32_u24 v{TX}, 896, v{T}
v_bfe_u32 v{T}, v0, 1, 1
v_lshl_add_u32 v{TX}, v{T}, 7, v{TX}""".replace(f"v_lshrrev_b32 v{T+1}, v{T+1}, s{S_MASK}", f"s_movk_i32 s6, 0xed80\nv_lshrrev_b32 v{T+1}, v{T+1}, s6"))
        e(w_source(T + 2, T + 1, G + 1, TS, T))
    e("s_waitcnt lgkmcnt(0)")
    e.stamp("xs0")
    if 'stdiag' in X:
        e(f"""s_mov_b32 s40, s{P_WS}
s_mov_b32 s41, s{P_WS+1}
s_mov_b32 s42, 0x10000000
s_mov_b32 s43, 0x00020000
s_lshl_b32 s90, s2, 3
s_add_u32 s90, s90, s{S_W}
s_lshl_b32 s90, s90, 10
s_add_u32 s90, s90, {P('DOFF', 100) * 1024 * 1024}
v_lshlrev_b32 v110, 4, v0
buffer_store_dwordx4 v[112:115], v110, s[40:43], s90 offen sc1
s_waitcnt vmcnt(0)
s_add_u32 s90, s90, 0x200000
s_barrier
s_memtime s[92:93]
s_waitcnt lgkmcnt(0)
buffer_store_dwordx4 v[112:115], v110, s[40:43], s90 offen sc1
s_waitcnt vmcnt(0)
s_barrier
s_memtime s[94:95]
s_waitcnt lgkmcnt(0)
s_sub_u32 s94, s94, s92
s_mul_i32 s94, s94, 100""")
    srd(e, SRD_X, P_X, 2048 * 896)
    if GT:
        if not P("ROWL", 0): e.vm(f"buffer_load_dwordx4 {vr(RW,4)}, v{TX}, s[{SRD_X}:{SRD_X+3}], 0 offen", "row")
        if GT & 2 and not P("PRO", 1): e.vm(f"buffer_load_dword v{TD}, v{TA}, s[{SRD_T}:{SRD_T+3}], {'s%d' % S_TS if P('GTS', 0) else 0} offen", "t")
        if P("GTW", 0): e.wvm("row")
    if P("XE", 1): dma_x(e, 0, 0)(); dma_x(e, 0, 1)()
    if P("PRO", 1) == 2:
        e(WT); e.vm(f"buffer_load_dword v{TD}, v{TA}, s[{SRD_T}:{SRD_T+3}], 0 offen", "t")
    e(f"""s_cmp_lt_u32 s{S_QU}, 2
s_cselect_b32 s{S_C}, s{P_WK}, s{P_WV}
s_cselect_b32 s{S_D}, s{P_WK+1}, s{P_WV+1}
s_cmp_eq_u32 s{S_ISQ}, 1
s_cselect_b32 s{S_A}, s{P_WQ}, s{P_WG}
s_cselect_b32 s{S_B}, s{P_WQ+1}, s{P_WG+1}
s_cselect_b32 s{S_C}, s{S_C}, s{P_WU}
s_cselect_b32 s{S_D}, s{S_D}, s{P_WU+1}
v_mov_b32 v{T}, s{S_A}
v_mov_b32 v{T+1}, s{S_B}
v_mov_b32 v{T+2}, s{S_C}
v_mov_b32 v{T+3}, s{S_D}""")
    if TOUCH:
        e(f"""v_cndmask_b32 v{TA}, v{T}, v{T+2}, vcc
v_cndmask_b32 v{TA+1}, v{T+1}, v{T+3}, vcc
v_add_co_u32 v{TA}, vcc, v{TA}, v{G+1}
v_cndmask_b32 v{GA}, v{T}, v{T+2}, s[{S_HI}:{S_HI+1}]
v_cndmask_b32 v{GA+1}, v{T+1}, v{T+3}, s[{S_HI}:{S_HI+1}]
v_addc_co_u32 v{TA+1}, vcc, 0, v{TA+1}, vcc""")
        touch(e, 0)()
    else:
        e(f"""v_cndmask_b32 v{GA}, v{T}, v{T+2}, s[{S_HI}:{S_HI+1}]
v_cndmask_b32 v{GA+1}, v{T+1}, v{T+3}, s[{S_HI}:{S_HI+1}]""")
    e(f"v_add_co_u32 v{GA}, vcc, v{GA}, v{G}\nv_mov_b32 v{GS+1}, 0")
    if 'gonly' in X: e.all_vm(); e.stamp()
    if not P("XE", 1): dma_x(e, 0, 0)()
    else: e("s_nop 0")
    e(f"v_addc_co_u32 v{GA+1}, vcc, 0, v{GA+1}, vcc")
    e.WT = WT

TOUCH = P("TOUCH", 0)
GT = P("GT", 3)
ROT = P("ROT", 0)
LDX = os.environ.get("LDX", ""); LDW = os.environ.get("LDW", ""); LDT = os.environ.get("LDT", "")
def touch(e, k):
    def f():
        st = (0, 2, 4, 5)[k]
        e.vm(f"global_load_dword v{TD}, {vr(TA,2)}, off", f"t{k}")
        e(f"s_movk_i32 s{S_XO2}, {st * 128}")
        e.vm(f"buffer_load_dword v{TD}, v{TX}, s[{SRD_X}:{SRD_X+3}], s{S_XO2} offen", f"t{k}")
        if k < 3: e(f"v_mad_u64_u32 {vr(TA,2)}, s[{S_E}:{S_E+1}], v{TS}, {4 if k < 2 else 2}, {vr(TA,2)}")
    return f
S_TG, S_TS = 61, 57
def gtouch(e, st):
    def f():
        e(f"s_mul_i32 s{S_XO2}, s{S_TS}, {st}")
        e.vm(f"buffer_load_dword v{TD}, v{TA}, s[{SRD_PC}:{SRD_PC+3}], s{S_XO2} offen {LDT}", "t")
        e(f"s_movk_i32 s{S_XO2}, {st * 128}")
        e.vm(f"buffer_load_dword v{TD}, v{TX}, s[{SRD_X}:{SRD_X+3}], s{S_XO2} offen {LDT}", "t")
    return f
def dma_x(e, sig, i):
    def f():
        e(f"s_add_u32 m0, s{S_WB}, {(sig % 4) * RING + i * 8192}")
        if i == 0: e("s_nop 0"); so = S_XO
        else: e(f"s_add_u32 s{S_XO2}, s{S_XO}, {64*896}"); so = S_XO2
        e.vm(f"buffer_load_dwordx4 v{VX}, s[{SRD_X}:{SRD_X+3}], s{so} offen {LDX} lds", f"d{sig}")
    return f
def dma_w(e, sig, off, i, first=False):
    def f():
        if i == 0 and not first:
            e(f"s_add_u32 s{S_XO}, s{S_XO}, 128\ns_cmp_eq_u32 s{S_XO}, 896\ns_cselect_b32 s{S_XO}, 0, s{S_XO}\ns_cselect_b32 s{S_MUL}, -13, 1")
        e(f"s_add_u32 m0, s{S_WB}, {(sig % 4) * RING + off + i * 8192}")
        if first == 2: e(f"s_add_u32 s{S_XO}, s{S_XO}, 128\ns_cmp_eq_u32 s{S_XO}, 896\ns_cselect_b32 s{S_XO}, 0, s{S_XO}")
        elif first: e("s_nop 0")
        elif i == 0: e(f"v_mad_i64_i32 {vr(GA,2)}, s[{S_E}:{S_E+1}], v{GS}, s{S_MUL}, {vr(GA,2)}")
        else: e(f"v_lshl_add_u64 {vr(GA,2)}, {vr(GS,2)}, 0, {vr(GA,2)}")
        e.vm(f"global_load_lds_dwordx4 {vr(GA,2)}, off {LDW}", f"d{sig}")
    return f
if not any(ROTS[P("ROT", 0)]) and not RPAR:
    def dma_x(e, sig, i):
        def f():
            e(f"s_add_u32 m0, s{S_WB}, {(sig % 4) * RING + i * 8192}\ns_mov_b32 s{S_XO}, {sig * 128 + i * 64 * 896}")
            e.vm(f"buffer_load_dwordx4 v{VX}, s[{SRD_X}:{SRD_X+3}], s{S_XO} offen {LDX} lds", f"d{sig}")
        return f
    def dma_w(e, sig, off, i, first=False):
        def f():
            e(f"s_add_u32 m0, s{S_WB}, {(sig % 4) * RING + off + i * 8192}")
            e("s_nop 0" if first else f"v_lshl_add_u64 {vr(GA,2)}, {vr(GS,2)}, 0, {vr(GA,2)}")
            e.vm(f"global_load_lds_dwordx4 {vr(GA,2)}, off {LDW}", f"d{sig}")
        return f
def stage_dmas(e, sig):
    if 'nodma' in X and 2 <= sig: return [(lambda: e.q['vm'].append(f'd{sig}') or e.q['vm'].pop() if False else None)] if False else [lambda: None]
    if sig == 0: return [dma_x(e, sig, 0), dma_w(e, sig, 16384, 0, True), dma_x(e, sig, 1), dma_w(e, sig, 16384, 1)]
    if sig < 7: return [dma_w(e, sig, 16384, 0), dma_x(e, sig, 0), dma_w(e, sig, 16384, 1), dma_x(e, sig, 1)]
    l = []
    if sig == 7: l.append(lambda: e(f"v_mov_b32 v{GA}, v{GB}\nv_mov_b32 v{GA+1}, v{GB+1}\nv_mov_b32 v{GS}, {32*3584}"))
    l += [dma_w(e, sig, 0, 0, 2 if sig == 7 else False), dma_w(e, sig, 0, 1)]
    if sig < 10: l += [dma_w(e, sig, 16384, 0), dma_w(e, sig, 16384, 1)]
    return l

def late_touch(e):
    if P('GTS', 0):
        e(f"s_xor_b32 s{S_TS}, s{S_TS}, {OOB}")
        e.vm(f"buffer_load_dword v{TD}, v{TA}, s[{SRD_T}:{SRD_T+3}], s{S_TS} offen", "t")

def h_off(line, dst):
    return f"""s_lshl_b32 s6, s{S_RB}, 2
s_add_u32 s6, s6, s{S_RT}
s_mul_i32 s6, s6, 144
s_lshl_b32 s{dst}, s{line}, 2
s_add_u32 s6, s6, s{dst}
s_add_u32 s6, s6, s{S_T0}
s_lshl_b32 s{dst}, s6, 10
s_add_u32 s{dst+1}, s{dst}, 1024"""
H_A, H_B = 10, 12
S_QO = 14
HOIST = P("HOIST", 4)
def f_scalars():
    return f"""s_lshr_b32 s6, s{S_J}, 3
s_lshl_b32 s7, s{S_RB}, 1
s_add_u32 s6, s6, s7
s_and_b32 s7, s{S_J}, 7
s_mul_i32 s{S_A}, s{S_W}, 6
s_lshl_b32 s{S_K1}, s{S_W}, 1
s_add_u32 s{S_K1}, s{S_K1}, 44
s_lshl_b32 s{S_K1}, s{S_K1}, 10
s_lshl_b32 s{S_FQ}, s{S_K1}, 1
s_mul_i32 s{S_FB0}, s6, 288
s_add_u32 s{S_FB0}, s{S_FB0}, s{S_A}
s_lshl_b32 s{S_FB0}, s{S_FB0}, 10
s_add_u32 s{S_FB1}, s{S_FB0}, {144*1024}
s_bitcmp1_b32 s{S_W}, 0
s_cselect_b32 s{S_B}, s{S_FB1}, s{S_FB0}
s_cselect_b32 s{S_FB1}, s{S_FB0}, s{S_FB1}
s_mov_b32 s{S_FB0}, s{S_B}
s_mul_i32 s{S_FA}, s7, 144
s_add_u32 s{S_FA}, s{S_FA}, s{S_A}
s_lshl_b32 s{S_FA}, s{S_FA}, 11
s_add_u32 s{S_FA}, s{S_FA}, {W2T}
s_lshr_b32 s{S_A}, s{S_W}, 1
s_lshl_b32 s{S_A}, s{S_A}, 3
s_mul_i32 s{S_OA}, s7, 144
s_add_u32 s{S_OA}, s{S_OA}, s{S_A}
s_add_u32 s{S_OA}, s{S_OA}, 112
s_lshl_b32 s{S_OA}, s{S_OA}, 11
s_add_u32 s{S_OA}, s{S_OA}, {W2T}
s_and_b32 s{S_B}, s{S_W}, 1
s_lshl_b32 s{S_B}, s{S_B}, 12
s_add_u32 s{S_OA}, s{S_OA}, s{S_B}
s_lshl_b32 s{S_OL}, s{S_W}, 12"""

S_C1, S_C2, S_CF, S_KS, S_QS, S_WL, S_WO = 16, 17, 24, 25, 54, 47, 59
QB0, QB1, KVA = 253, 254, 255
def more_addr():
    slot = ""
    for st_, dst in ((S_T0, QB0), (S_T1, QB1)):
        slot += f"""s_sub_u32 s6, 3, s{st_}
s_lshl_b32 s7, s{st_}, 2
s_lshr_b32 s7, 0x0132, s7
s_and_b32 s7, s7, 3
s_bitcmp1_b32 s{S_QU}, 0
s_cselect_b32 s6, s7, s6
s_cselect_b32 s{S_CF}, s7, 0
s_lshl_b32 s6, s6, 3
v_add_u32 v{dst}, s6, v{KVA}
"""
    return f"""v_and_b32 v{TP}, 31, v0
s_lshl_b32 s6, s{S_T0}, 9
s_add_u32 s6, s6, {L_CSA}
v_lshl_add_u32 v{TP}, v{TP}, 4, s6
s_lshl_b32 s6, s{S_RT}, 2
v_add_u32 v{TP+1}, s6, v{TP}
s_lshr_b32 s6, s{S_W}, 1
s_lshl_b32 s6, s6, 11
s_and_b32 s7, s{S_W}, 1
s_lshl_b32 s{S_WL}, s7, 6
s_add_u32 s{S_WL}, s{S_WL}, s6
s_add_u32 s{S_WL}, s{S_WL}, {L_W2T}
s_lshl_b32 s6, s{S_U}, 11
s_lshl_b32 s7, s7, 10
s_add_u32 s6, s6, s7
s_add_u32 s{S_WO}, s6, {W2T}
s_mov_b32 s{S_C2}, 0x00003f80
s_cmp_lt_u32 s{S_QU}, 2
s_cselect_b32 s{S_C1}, 0x3f803f80, s{S_C2}
s_cselect_b32 s{S_C2}, s{S_C2}, 0
s_lshl_b32 s6, s{S_RB}, 2
s_add_u32 s6, s6, s{S_RT}
s_lshl_b32 s{S_KS}, s6, 12
s_lshl_b32 s6, s6, 2
s_add_u32 s6, s6, s{S_QU}
s_lshl_b32 s6, s6, 2
s_add_u32 s6, s6, s{S_T0}
s_lshl_b32 s6, s6, 11
s_add_u32 s{S_QS}, s6, {QF}
s_and_b32 s6, s{S_QU}, 1
s_lshl_b32 s7, s6, 8
s_add_u32 s7, s7, 2048
s_lshl_b32 s6, s6, 10
s_cmp_lt_u32 s{S_QU}, 2
s_cselect_b32 s6, s6, s7
s_add_u32 s{S_KS}, s{S_KS}, s6
s_add_u32 s{S_KS}, s{S_KS}, {KVF}
v_and_b32 v{KVA}, 31, v0
v_lshlrev_b32 v{KVA}, 5, v{KVA}
s_lshl_b32 s{S_A}, s{S_RT}, 10
s_add_u32 s{S_A}, s{S_A}, {L_KVB}
v_add_u32 v{KVA}, s{S_A}, v{KVA}
{slot}v_lshrrev_b32 v{PL}, 5, v0
v_lshl_add_u32 v{KVA}, v{PL}, 3, v{KVA}
v_lshlrev_b32 v{G+1}, 2, v{PL}
v_bfe_u32 v{PL}, v0, 4, 1
v_add_u32 v{G+1}, v{G+1}, v{PL}
v_bfe_u32 v{PL}, v0, 2, 2
v_lshl_add_u32 v{G+1}, v{G+1}, 2, v{PL}
v_lshlrev_b32 v{G+1}, 5, v{G+1}
v_and_b32 v{PL}, 3, v0
v_lshl_add_u32 v{G+1}, v{PL}, 3, v{G+1}
v_add_u32 v{G+1}, s{S_A}, v{G+1}
s_cmp_lt_u32 s{S_QU}, 2
s_cselect_b64 vcc, -1, 0
v_cndmask_b32 v{KVA}, v{G+1}, v{KVA}, vcc"""

def add_more(e, side):
    lines = more_addr().split("\n")
    k = lines.index(f"s_mov_b32 s{S_C2}, 0x00003f80")
    side.add("\n".join(lines[:k]))
    if not P("QCOND", 0): side.add("\n".join(lines[k:])); return
    tmp = Side(e); tmp.add("\n".join(lines[k:]))
    n = P("QCH", 12)
    for i in range(0, len(tmp.q), n):
        def blk(part=tmp.q[i:i + n]):
            l = e.newlabel("qo")
            e(f"s_cmp_eq_u32 s{S_ISQ}, 1\ns_cbranch_scc0 {l}"); e("\n".join(part)); e.label(l)
        side.add([blk] + [lambda: None] * (P('WSR', 6) - 1))

def attn_scalars():
    return f"""s_lshl_b32 s{S_WB4}, s{S_W}, 12
s_lshl_b32 s6, s{S_CG}, 5
s_add_u32 s6, s6, s{S_RT}
s_lshl_b32 s6, s6, 12
s_add_u32 s{S_KVO}, s6, {KVF}
s_lshl_b32 s6, s{S_RB}, 2
s_add_u32 s6, s6, s{S_RT}
s_lshl_b32 s7, s6, 4
s_add_u32 s7, s7, s{S_J}
s_lshl_b32 s7, s7, 11
s_add_u32 s{S_QO}, s7, {QF}
s_mul_i32 s6, s6, 144
s_lshl_b32 s7, s{S_J}, 1
s_add_u32 s6, s6, s7
s_add_u32 s6, s6, s{S_CG}
s_add_u32 s6, s6, 112
s_lshl_b32 s{S_OO}, s6, 10"""

def phaseB(e):
    T = TM
    for f in (stage_dmas(e, 0)[1:] if not P('XE', 1) else stage_dmas(e, 0)[1::2]): f()
    if 'arr' in X:
        order = os.environ.get("ARR", "D1 D2 W0 D3 W1 D4 W2 D5 W3 D6 W4 W5 W6").split()
        for it in order:
            k = int(it[1:])
            if it[0] == 'D':
                for f in stage_dmas(e, k): f()
            elif it[0] == 'T': touch(e, k)()
            elif it[0] == 'G': gtouch(e, k)()
            elif it[0] == 'L': late_touch(e)
            elif it[0] == 'A': e.all_vm(); e.stamp()
            else: e.wvm(f"d{k}"); e("s_barrier"); e.stamp()
        srd(e, SRD_WS, P_WS, WS_END)
        e.stamp()
        e("s_branch K_fin2")
        global STAMPS_OFF; STAMPS_OFF = True
    if P("ROWL", 0): e.vm(f"buffer_load_dwordx4 {vr(RW,4)}, v{TX}, s[{SRD_X}:{SRD_X+3}], 0 offen", "row")
    e.stamp("xs2")
    if P("PRO", 1) == 1 and GT & 2:
        e(e.WT)
        e.vm(f"buffer_load_dword v{TD}, v{TA}, s[{SRD_T}:{SRD_T+3}], 0 offen", "t")
    e(f"s_mov_b32 s6, {EPO}\ns_load_dword s{S_NON}, s[{P_WS}:{P_WS+1}], s6")
    if TOUCH == 2: touch(e, 1)()
    PD1 = P("PD1", 1)
    if PD1 == 0:
        for f in stage_dmas(e, 1): f()
    if TOUCH == 1: touch(e, 1)()
    late_touch(e)
    e.stamp("xs3")
    e(f"""s_and_b32 s{S_RT}, s{S_W}, 3
s_lshr_b32 s{S_CG}, s{S_W}, 2
s_lshl_b32 s{S_T0}, s{S_CG}, 1
s_add_u32 s{S_T1}, s{S_T0}, 1
s_xor_b32 s{S_A}, s{S_RT}, s{S_CG}
s_mov_b32 s{S_MASK}, 0xffff0000
s_mov_b32 s{S_HI}, 0
s_mov_b32 s{S_HI+1}, -1
v_lshlrev_b32 v{VL16}, 4, v0
v_and_b32 v{T}, 31, v0
v_lshrrev_b32 v{T+1}, 5, v0
v_bfe_u32 v{T+2}, v0, 1, 3
v_xor_b32 v{T+2}, v{T+2}, v{T+1}
v_lshlrev_b32 v{T+2}, 4, v{T+2}
v_lshl_add_u32 v{T+2}, v{T}, 7, v{T+2}
s_lshl_b32 s6, s{S_RT}, 12
s_lshl_b32 s{S_B}, s{S_A}, 5
s_or_b32 s6, s6, s{S_B}
v_xor_b32 v{XA}, s6, v{T+2}""")
    for pos in range(1, 4): e(f"v_xor_b32 v{XA+pos}, {pos<<5}, v{XA}")
    e(f"""v_bfe_u32 v{G+1}, v0, 2, 2
v_lshl_add_u32 v{WB}, v{T+1}, 3, v{G+1}
v_lshlrev_b32 v{WB}, 8, v{WB}
s_lshl_b32 s{S_A}, s{S_A}, 12
v_add_u32 v{WB}, s{S_A}, v{WB}
s_cmp_eq_u32 s{S_ISQ}, 1
s_cselect_b32 s{S_A}, 56, 32
s_cselect_b32 s{S_B}, 5, 7
s_cselect_b32 s{S_C}, 0x88880000, 0
s_mov_b32 s{S_D}, s{S_C}
s_add_u32 s6, s{S_SH}, 4
v_bfe_u32 v{T}, v0, 4, 1
v_and_b32 v{T+1}, 3, v0
v_lshlrev_b32 v{T}, s{S_B}, v{T}
v_lshl_add_u32 v{T}, v{T+1}, 3, v{T}
v_lshlrev_b32 v{T+1}, s6, v{G+1}""")
    for i, st_ in ((0, S_T0), (1, S_T1)):
        e(f"""s_mul_i32 s6, s{st_}, s{S_A}
s_lshl_b32 s7, s{st_}, 3
s_sub_u32 s7, 248, s7
v_add_u32 v{T+2}, s6, v{T}
v_mov_b32 v{T+3}, s7
v_cndmask_b32 v{T+2}, v{T+2}, v{T+3}, s[{S_C}:{S_D}]
v_xor_b32 v{T+2}, v{T+2}, v{T+1}
v_add_u32 v{WA+4*i}, v{T+2}, v{WB}""")
    for i in range(2):
        for pos in range(1, 4): e(f"v_xor_b32 v{WA+4*i+pos}, {pos<<12}, v{WA+4*i}")
    e(f"""v_bfe_u32 v{T}, v0, 4, 1
v_and_b32 v{T+1}, 15, v0
v_cmp_eq_u32 vcc, v{T}, v{T+1}
v_mov_b32 v{T}, 0x3f803f80
s_nop 0
v_cndmask_b32 v{SEL}, 0, v{T}, vcc
v_mov_b32 v{SEL+1}, v{SEL}
v_mov_b32 v{SEL+2}, v{SEL}
v_mov_b32 v{SEL+3}, v{SEL}""")
    w2t_addr = f"""s_mul_i32 s6, s{S_RB}, 12
s_add_u32 s6, s6, s{S_LA}
s_lshl_b32 s7, s{S_RB}, 2
s_add_u32 s7, s7, s{S_QU}
s_min_u32 s7, s7, 59
s_add_u32 s{S_A}, s7, 136
s_cmp_eq_u32 s{S_ISQ}, 1
s_cselect_b32 s6, s{S_A}, s6
s_cselect_b32 s7, s7, 63
s_mul_hi_u32 s{S_A}, s6, {(2**32 + 27)//28}
s_mul_i32 s{S_B}, s{S_A}, 28
s_sub_u32 s{S_B}, s6, s{S_B}
s_lshr_b32 s{S_C}, s7, 3
s_and_b32 s{S_D}, s7, 7
s_add_u32 s{S_D}, s{S_D}, 28
s_cmp_lt_u32 s7, 56
s_cselect_b32 s6, s{S_C}, s{S_A}
s_cselect_b32 s{S_B}, s{S_D}, s{S_B}
s_lshl_b32 s{S_WF}, s6, 6
s_add_u32 s{S_WF}, s{S_WF}, s{S_B}
s_lshl_b32 s{S_A}, s{S_B}, 2
s_lshr_b32 s{S_B}, s{S_W}, 1
s_add_u32 s{S_A}, s{S_A}, s{S_B}
s_mul_i32 s{S_U}, s6, 144
s_add_u32 s{S_U}, s{S_U}, s{S_A}
s_lshl_b32 s{S_B}, s{S_A}, 4
s_sub_u32 s{S_C}, s{S_A}, 112
s_lshr_b32 s{S_D}, s{S_C}, 1
s_mul_i32 s{S_D}, s{S_D}, 28
s_and_b32 s{S_C}, s{S_C}, 1
s_lshl_b32 s{S_C}, s{S_C}, 4
s_add_u32 s{S_C}, s{S_C}, s{S_D}
s_mov_b32 s{S_D}, {448*896}
s_cmp_lt_u32 s{S_A}, 112
s_cselect_b32 s{S_B}, s{S_B}, s{S_C}
s_cselect_b32 s{SRD_T}, s{P_WD}, s{P_WO}
s_cselect_b32 s{SRD_T+1}, s{P_WD+1}, s{P_WO+1}
s_cselect_b32 s{SRD_T+2}, {1792*896}, s{S_D}
s_mov_b32 s{SRD_T+3}, 0x00020000
s_and_b32 s{S_C}, s{S_W}, 1
s_lshl_b32 s{S_C}, s{S_C}, 3
s_add_u32 s{S_B}, s{S_B}, s{S_C}
s_mul_i32 s{S_B}, s{S_B}, 896
s_lshl_b32 s6, s6, 7
s_add_u32 s{S_TO}, s{S_B}, s6
v_lshrrev_b32 v{TP}, 3, v0
v_mul_u32_u24 v{TP}, 896, v{TP}
v_and_b32 v{TP+1}, 7, v0
v_lshl_add_u32 v{VT}, v{TP+1}, 4, v{TP}"""
    late = (f"""s_add_u32 s{S_LB}, s{S_LA}, 12
s_add_u32 s6, s{S_QU}, 24
s_cmp_eq_u32 s{S_ISQ}, 1
s_cselect_b32 s{S_LB}, s6, s{S_LB}
""" if P("LBOLD", 1) else f"s_add_u32 s{S_LB}, s{S_J}, 12\n") + f"""v_lshrrev_b32 v{TP}, 4, v0
s_lshl_b32 s6, s{S_ROT}, 4
s_add_u32 s6, s6, s{S_W}
s_lshl_b32 s6, s6, 2
v_add_u32 v{TP+1}, s6, v{TP}
v_mul_u32_u24 v{TP+1}, 3584, v{TP+1}
v_lshlrev_b32 v{TP}, 1, v{TP}
v_xor_b32 v{TP}, v{TP}, v0
v_and_b32 v{GB}, 7, v{TP}
v_lshl_add_u32 v{TP+1}, v{GB}, 4, v{TP+1}
s_lshl_b32 s6, s{S_LB}, 7
v_add_u32 v{TP+1}, s6, v{TP+1}
v_and_b32 v{TP}, 8, v{TP}
v_cmp_eq_u32 vcc, 8, v{TP}
v_mov_b32 v{GB}, s{P_WG}
v_mov_b32 v{TP}, s{P_WU}
v_cndmask_b32 v{GB}, v{GB}, v{TP}, vcc
v_mov_b32 v{GB+1}, s{P_WG+1}
v_mov_b32 v{TP}, s{P_WU+1}
v_cndmask_b32 v{GB+1}, v{GB+1}, v{TP}, vcc
v_add_co_u32 v{GB}, vcc, v{GB}, v{TP+1}
v_bfe_u32 v{TP}, v0, 4, 1
v_and_b32 v{TP+1}, 3, v0
v_addc_co_u32 v{GB+1}, vcc, 0, v{GB+1}, vcc
v_lshlrev_b32 v{TP+1}, 3, v{TP+1}
v_lshl_add_u32 v{TP}, v{TP}, 7, v{TP+1}
v_bfe_u32 v{TP+1}, v0, 2, 2
v_lshlrev_b32 v{TP+1}, 5, v{TP+1}
v_xor_b32 v{TP}, v{TP}, v{TP+1}
s_lshl_b32 s6, s{S_T0}, 5
v_xor_b32 v{TP}, s6, v{TP}
v_add_u32 v{WB}, v{TP}, v{WB}
v_xor_b32 v{WB+1}, 32, v{WB}"""
    e(f"s_lshl_b32 s45, s{S_TG}, 3\ns_add_u32 s45, s45, {STAT}")
    def hoisted():
        e(late); e(w2t_addr); e(h_off(S_LA, H_A)); e(h_off(S_LB, H_B)); e(attn_scalars()); e(f_scalars())
    if HOIST == 1: hoisted()
    if HOIST == 4: e(late); e(w2t_addr)
    if PD1 == 1:
        for f in stage_dmas(e, 1): f()
    if HOIST == 2: hoisted()
    e.stamp("xs4")
    srd(e, SRD_WS, P_WS, WS_END)
    e("s_waitcnt lgkmcnt(0)")
    e(f"s_add_u32 s{S_NON}, s{S_NON}, 1")
    U = RW + 4; A_, B_ = RW, RW + 1
    e.wvm("row")
    for k in range(4): e(f"v_lshlrev_b32 v{U+2*k}, 16, v{RW+k}\nv_and_b32 v{U+2*k+1}, s{S_MASK}, v{RW+k}")
    e(f"v_add_f32 v{A_}, v{U}, v{U+1}\nv_mul_f32 v{B_}, v{U}, v{U}\nv_add_f32 v{A_+2}, v{U+2}, v{U+3}\nv_mul_f32 v{B_+2}, v{U+1}, v{U+1}")
    for k in (2, 4, 6): e(f"v_fmac_f32 v{B_}, v{U+k}, v{U+k}\nv_fmac_f32 v{B_+2}, v{U+k+1}, v{U+k+1}")
    e(f"""v_add_f32 v{U}, v{U+4}, v{U+5}
v_add_f32 v{U+1}, v{U+6}, v{U+7}
v_add_f32 v{A_}, v{A_}, v{A_+2}
v_add_f32 v{U}, v{U}, v{U+1}
v_add_f32 v{B_}, v{B_}, v{B_+2}
v_add_f32 v{A_}, v{A_}, v{U}
s_nop 0""")
    for d in ("row_shr:1 row_mask:0xf bank_mask:0xf bound_ctrl:0", "row_shr:2 row_mask:0xf bank_mask:0xf bound_ctrl:0",
              "row_shr:4 row_mask:0xf bank_mask:0xf bound_ctrl:0", "row_shr:8 row_mask:0xf bank_mask:0xf bound_ctrl:0",
              "row_bcast:15 row_mask:0xa bank_mask:0xf", "row_bcast:31 row_mask:0xc bank_mask:0xf"):
        e(f"v_add_f32_dpp v{B_}, v{B_}, v{B_} {d}\nv_add_f32_dpp v{A_}, v{A_}, v{A_} {d}\ns_nop 0")
    e(f"""v_mul_f32 v{A_}, {f2u(1.0/448)}, v{A_}
v_mul_f32 v{B_}, {f2u(1.0/448)}, v{B_}
v_fma_f32 v{B_}, -v{A_}, v{A_}, v{B_}
v_max_f32 v{B_}, 0, v{B_}
v_cvt_pk_bf16_f32 v{B_}, v{B_}, v{B_}
v_and_b32 v{B_}, s{S_MASK}, v{B_}
v_add_f32 v{B_}, {f2u(1e-5)}, v{B_}
v_cvt_pk_bf16_f32 v{B_}, v{B_}, v{B_}
v_and_b32 v{B_}, s{S_MASK}, v{B_}
v_sqrt_f32 v{B_}, v{B_}
v_mov_b32 v{U}, s45
v_cvt_pk_bf16_f32 v{A_}, -v{A_}, v{B_}
v_mov_b32 v{B_}, s{S_NON}
s_mov_b32 exec_lo, 0
s_mov_b32 exec_hi, 0x80000000""")
    if PD1 == 2:
        e("s_mov_b64 exec, -1")
        for f in stage_dmas(e, 1): f()
        e("s_mov_b32 exec_lo, 0\ns_mov_b32 exec_hi, 0x80000000")
    e.vm(f"buffer_store_dwordx2 {vr(A_,2)}, v{U}, {WS}, 0 offen {SC}", "sts")
    e("s_mov_b64 exec, -1")
    e.stamp("xs5")
    if P("PRIO", 2) & 1: e(f"s_cmp_ge_u32 s{S_W}, 4\ns_cbranch_scc0 K_np\ns_setprio 1\nK_np:")
    e.wvm("d0")
    e("s_barrier")
    e.stamp("start")

    half = {'x': [0]*4, 'w': [0]*4}
    def reads(gp):
        if gp < 28: sig, sub, pos, reg = gp // 4, 0, gp % 4, 16384
        else:
            g = gp - 28; sig, sub, pos = 7 + g // 8, (g // 4) & 1, g % 4; reg = sub * 16384
        sl = sig % 4; h = sl >> 1; imm = (sl & 1) * RING
        buf = WF + 8 * (gp % 3)
        pre = []
        if 28 <= gp < 32:
            pre = [f"v_xor_b32 v{WA+4*i+pos}, {(pos << 12) | (h << 16)}, v{WB+i}" for i in range(2)]
            half['w'][pos] = h
        elif half['w'][pos] != h:
            pre = [f"v_xor_b32 v{WA+4*i+pos}, 0x10000, v{WA+4*i+pos}" for i in range(2)]
            half['w'][pos] = h
        if gp < 28 and half['x'][pos] != h:
            pre.append(f"v_xor_b32 v{XA+pos}, 0x10000, v{XA+pos}"); half['x'][pos] = h
        out = [(lambda l=l: e(l)) for l in pre]
        if gp < 28: out.append(lambda: e.ds(f"ds_read_b128 {vr(XR+4*gp,4)}, v{XA+pos} offset:{imm}", f"r{gp}"))
        for i in range(2):
            for u in range(2):
                out.append(lambda i=i, u=u: e.ds(f"ds_read_b64_tr_b16 {vr(buf+4*i+2*u,2)}, v{WA+4*i+pos} offset:{imm+reg+u*1024}", f"r{gp}"))
        return out
    def position(gp, side, dmaq, nside, barrier=None):
        p2 = gp >= 28; g = gp - 28 if p2 else gp
        acc = ACCB if p2 else ACCA
        buf = WF + 8 * (gp % 3); xr = XR + 4 * g
        e.wds(f"r{gp}")
        e(mfma(acc, buf, xr, "0" if g == 0 else None))
        if barrier: barrier()
        R = reads(gp + 2) if gp + 2 < 56 else []
        nx = 1 if gp + 2 < 28 else 0
        pre = R[:max(0, len(R) - 4 - nx)]; xrd = R[len(pre):len(pre) + nx]; tr = R[len(pre) + nx:]
        na = (nside + 1) // 2; nb = nside // 2
        for f in pre: f()
        if P("ORD", 1) == 0:
            for f in xrd + tr[:2]: f()
            side.emit(na)
            e(mfma(acc + 16, buf + 4, xr, "0" if g == 0 else None))
            for f in tr[2:]: f()
            if g % 4 == 0: e(mfma16(CSA, SEL, buf, "0" if g == 0 else None))
            if dmaq: dmaq.pop(0)()
            side.emit(nb)
            if g % 4 == 0: e(mfma16(CSA + 4, SEL, buf + 4, "0" if g == 0 else None))
        else:
            for f in tr[:1]: f()
            side.emit(min(2, na))
            for f in tr[1:2]: f()
            side.emit(na - min(2, na))
            e(mfma(acc + 16, buf + 4, xr, "0" if g == 0 else None))
            for f in tr[2:3]: f()
            side.emit(min(2, nb))
            for f in tr[3:]: f()
            side.emit(nb - min(2, nb))
            if g % 4 == 0 and 'nosel' not in X: e(mfma16(CSA, SEL, buf, "0" if g == 0 else None))
            for f in xrd: f()
            if g % 4 == 0 and 'nosel' not in X: e(mfma16(CSA + 4, SEL, buf + 4, "0" if g == 0 else None))
            if dmaq: dmaq.pop(0)()
    def stats(gp):
        x = XR + 4 * gp; c = lambda r: "0" if gp == 0 else vr(r, 4)
        return [mfma16(ST, SEL, x, c(ST)),
                f"v_mfma_f32_4x4x4_16b_bf16 {vr(SQA,4)}, {vr(x,2)}, {vr(x,2)}, {c(SQA)}\nv_mfma_f32_4x4x4_16b_bf16 {vr(SQB,4)}, {vr(x+2,2)}, {vr(x+2,2)}, {c(SQB)}"]
    def cs_write(dst):
        o = dst - L_CSA
        return ["s_nop 1", lambda: (e("s_mov_b64 exec, 0xffff"),
                         e.ds(f"ds_write_b32 v{TP+1}, v{CSA} offset:{o}", "csw"), e.ds(f"ds_write_b32 v{TP+1}, v{CSA+1} offset:{o+256}", "csw"),
                         e.ds(f"ds_write_b32 v{TP+1}, v{CSA+4} offset:{o+512}", "csw"), e.ds(f"ds_write_b32 v{TP+1}, v{CSA+5} offset:{o+768}", "csw"),
                         e("s_mov_b64 exec, -1"))]
    def cs_read(src):
        o = src - L_CSA
        l = [lambda: e.ds(f"ds_read_b128 {vr(G,4)}, v{TP} offset:{o}", "csr"), lambda: e.ds(f"ds_read_b128 {vr(G+4,4)}, v{TP} offset:{o+512}", "csr")]
        m = [lambda: e.wds("csr")]
        for i in range(2):
            b = G + 4 * i
            m += [f"v_add_f32 v{b}, v{b}, v{b+1}", f"v_add_f32 v{b+2}, v{b+2}, v{b+3}"]
        for i in range(2): m += [f"v_add_f32 v{G+4*i}, v{G+4*i}, v{G+4*i+2}"]
        for i in range(2): m += [f"v_cvt_pk_bf16_f32 v{G+4*i+1}, v{G+4*i}, v{G+4*i}"]
        for i in range(2): m += [f"v_and_b32 v{G+4*i+1}, s{S_MASK}, v{G+4*i+1}"]
        for i in range(2): m += [f"v_sub_f32 v{G+4*i+1}, v{G+4*i}, v{G+4*i+1}"]
        for i in range(2): m += [f"v_cvt_pk_bf16_f32 v{G+4*i}, v{G+4*i}, v{G+4*i+1}"]
        for i in range(2): m += [f"v_cndmask_b32 v{ST+2*i}, v{G+4*i}, 0, s[{S_HI}:{S_HI+1}]"]
        return l, m

    KA = -2.0 * math.log2(math.e) * math.sqrt(2.0 / math.pi)
    GST = P("GST", 18)
    def stat_check():
        ok = e.newlabel("sok"); sp = e.newlabel("ssp")
        e.wvm("stl")
        e(f"v_cmp_ne_u32 vcc, s{S_NON}, v{BEXT+3}\ns_cbranch_vccz {ok}\ns_mov_b32 s{S_CNT}, {SPIN_MAX}")
        e.label(sp)
        e(f"""s_sleep 4
buffer_load_dwordx2 {vr(BEXT+2,2)}, v{G}, {WS}, 0 offen {SC}
s_sub_u32 s{S_CNT}, s{S_CNT}, 1
s_waitcnt vmcnt(0)
v_cmp_ne_u32 vcc, s{S_NON}, v{BEXT+3}
s_cmp_eq_u32 s{S_CNT}, 0
s_cbranch_scc1 {ok}
s_cbranch_vccnz {sp}""")
        if 'spincnt' in X: e(f"s_sub_u32 s88, {SPIN_MAX + 1000}, s{S_CNT}")
        e.label(ok)
    def after_exchange(side):
        l, m = cs_read(L_CSA)
        side.add(l)
        side.add(f"""v_and_b32 v{S_}, s{S_MASK}, v{BEXT+2}
v_and_b32 v{BEXT}, 0xffff, v{BEXT+2}
v_rcp_f32 v{R_}, v{S_}
v_lshl_or_b32 v{BEXT}, v{BEXT+2}, 16, v{BEXT}
v_mul_f32 v{I2}, v{S_}, v{S_}
v_mul_f32 v{AC}, {f2u(KA)}, v{R_}
v_mul_f32 v{BC}, v{R_}, v{R_}
v_mov_b32 v{ST+1}, 0
v_mul_f32 v{BC}, v{BC}, v{AC}
v_mov_b32 v{ST+3}, 0
v_mul_f32 v{BC}, {f2u(0.044715)}, v{BC}
v_mov_b32 v{BEXT+1}, 0
v_mov_b32 v{BEXT+2}, 0
v_mov_b32 v{BEXT+3}, 0""")
        side.add(m)
    for f in reads(0) + reads(1): f()
    side = Side(e); dmaq = list(stage_dmas(e, 2)) + ([touch(e, 2)] if TOUCH else [])
    w2side = Side(e)
    if GT & 4:
        w2side.add(f"""s_min_u32 s6, s{S_TG}, 895
s_cmp_ge_u32 s6, 448
s_cselect_b32 s{SRD_T}, s{P_WU}, s{P_WG}
s_cselect_b32 s{SRD_T+1}, s{P_WU+1}, s{P_WG+1}
s_cselect_b32 s7, 448, 0
s_mov_b32 s{SRD_T+2}, {448*3584}
s_sub_u32 s6, s6, s7
s_mul_i32 s6, s6, 3584
s_add_u32 s6, s6, 1536
v_and_b32 v{TA}, 15, v0
v_lshlrev_b32 v{TA}, 7, v{TA}""")
        w2side.add([lambda: e.vm(f"buffer_load_dword v{TD}, v{TA}, s[{SRD_T}:{SRD_T+3}], s6 offen", "t2")])
    if HOIST == 3: w2side.add(late); w2side.add(w2t_addr)
    if HOIST >= 3: w2side.add(h_off(S_LA, H_A)); w2side.add(h_off(S_LB, H_B)); w2side.add(attn_scalars()); w2side.add(f_scalars()); add_more(e, w2side)
    for gp in range(28):
        sig, pos = gp // 4, gp % 4
        bar = None
        if pos == 2:
            def bar(sig=sig):
                if sig == 6: side.flush(); stat_check(); e.wds("csw")
                e.wvm(f"d{sig+1}"); e("s_barrier")
                if sig == 6: after_exchange(side)
                assert not dmaq
                dmaq.extend(stage_dmas(e, sig + 3))
                if sig == 0 and TOUCH: dmaq.append(touch(e, 3))
        if gp == GST:
            side.add([f"s_lshl_b32 s{S_G}, s{S_RB}, 2", f"s_add_u32 s{S_G}, s{S_G}, s{S_RT}", f"s_lshl_b32 s{S_G}, s{S_G}, 8", f"s_add_u32 s{S_G}, s{S_G}, {STAT}",
                      f"v_and_b32 v{G}, 31, v0", f"v_lshl_add_u32 v{G}, v{G}, 3, s{S_G}",
                      lambda: e.vm(f"buffer_load_dwordx2 {vr(BEXT+2,2)}, v{G}, {WS}, 0 offen {SC}", "stl")])
        if gp == 25: assert not w2side.q; side.add(cs_write(L_CSA))
        n = len(side.q) if gp < 26 else P('NEX', 10)
        while len(dmaq) > 4 - ((pos + 2) % 4): dmaq.pop(0)()
        e.stamp(f"xp{gp}")
        w2side.emit(0 if gp < P('WS0', 0) else 5 if gp < 2 else P('WSR', 6))
        position(gp, side, dmaq, n, bar)
    assert not w2side.q
    side.add(["s_nop 1", mfma(ACCA, ST, BEXT), mfma(ACCA + 16, ST + 2, BEXT)])
    carry = list(side.q)
    e.stamp("p1")

    KA = -2.0 * math.log2(math.e) * math.sqrt(2.0 / math.pi); KB = KA * 0.044715
    def gelu(acc, so, tb, keep=None, pk=0):
        l = []
        if pk:
            pr = lambda r: vr(r, 2)
            for k in range(0, 8, 2): l.append(f"v_pk_mul_f32 {pr(tb+k)}, {pr(acc+k)}, {pr(acc+k)}")
            for k in range(0, 8, 2): l.append(f"v_pk_fma_f32 {pr(tb+k)}, {pr(tb+k)}, {pr(AC)}, {pr(AC)} op_sel:[0,1,0] op_sel_hi:[1,1,0]")
            for k in range(0, 8, 2): l.append(f"v_pk_mul_f32 {pr(tb+k)}, {pr(tb+k)}, {pr(acc+k)}")
            for k in range(0, 8, 2): l += [f"v_exp_f32 v{tb+k}, v{tb+k}", f"v_exp_f32 v{tb+k+1}, v{tb+k+1}", f"v_pk_mul_f32 {pr(acc+k)}, {pr(acc+k)}, {pr(acc+8+k)}"]
            for k in range(0, 8, 2): l.append(f"v_pk_fma_f32 {pr(tb+k)}, {pr(tb+k)}, {pr(I2-1)}, {pr(I2-1)} op_sel:[0,1,1] op_sel_hi:[1,1,1]")
            for k in range(8): l.append(f"v_rcp_f32 v{tb+k}, v{tb+k}")
            for k in range(0, 8, 2): l.append(f"v_pk_mul_f32 {pr(acc+k)}, {pr(acc+k)}, {pr(tb+k)}")
        else:
            for k in range(8): l.append(f"v_mul_f32 v{tb+k}, v{acc+k}, v{acc+k}")
            for k in range(8): l.append(f"v_fma_f32 v{tb+k}, v{tb+k}, v{BC}, v{AC}")
            for k in range(8): l.append(f"v_mul_f32 v{tb+k}, v{tb+k}, v{acc+k}")
            for k in range(8): l += [f"v_exp_f32 v{tb+k}, v{tb+k}", f"v_mul_f32 v{acc+k}, v{acc+k}, v{acc+8+k}"]
            for k in range(8): l.append(f"v_fma_f32 v{tb+k}, v{tb+k}, v{I2}, v{I2}")
            for k in range(8): l.append(f"v_rcp_f32 v{tb+k}, v{tb+k}")
            for k in range(8): l.append(f"v_mul_f32 v{acc+k}, v{acc+k}, v{tb+k}")
        if keep is not None:
            return l + [f"v_cvt_pk_bf16_f32 v{keep+k}, v{acc+2*k}, v{acc+2*k+1}" for k in range(4)]
        for k in range(4): l.append(f"v_cvt_pk_bf16_f32 v{acc+8+k}, v{acc+2*k}, v{acc+2*k+1}")
        l.append(lambda: e.vm(f"buffer_store_dwordx4 {vr(acc+8,4)}, v{VL16}, {WS}, s{so} offen {SC}", "hs"))
        return l
    def w2t_out(side):
        t = WB
        side.add(f"""v_lshrrev_b32 v{t}, 5, v0
v_bfe_u32 v{t+1}, v0, 2, 2
v_lshl_add_u32 v{t}, v{t}, 2, v{t+1}
v_lshlrev_b32 v{t}, 7, v{t}
v_bfe_u32 v{t+1}, v0, 4, 1
v_lshl_add_u32 v{t}, v{t+1}, 5, v{t}
v_and_b32 v{t+1}, 3, v0
v_lshl_add_u32 v{t}, v{t+1}, 3, v{t}
v_add_u32 v{t}, s{S_WL}, v{t}""")
        side.add([lambda: (e.ds(f"ds_read_b64_tr_b16 {vr(PL,2)}, v{t}", "w2tr"), e.ds(f"ds_read_b64_tr_b16 {vr(PL+2,2)}, v{t} offset:1024", "w2tr"))])
        return lambda: (e.wds("w2tr"), e.vm(f"buffer_store_dwordx4 {vr(PL,4)}, v{VL16}, {WS}, s{S_WO} offen {SC}", "w2ts"))
    GEND = P("GEND", 20); GW2 = P("GW2", 22); GFQ = P("GFQ", 14)
    GX, GBN, GFL, QRATE = P("GX", 0), P("GBN", 1), P("GFL", 6 if SPLITQ else 9), P("QRATE", 40)
    def pass2(qfirst):
        side = Side(e); dq = list(dmaq); side.q = list(carry); w2st = []
        for g in range(28):
            gp = 28 + g
            pre = []; wd = []; wv = []; post = []
            if g == 0:
                if not qfirst and 'nogelu' in X: pass
                elif not qfirst:
                    side.add(["s_nop 7"])
                    ga = gelu(ACCA, H_A, G); gb = gelu(ACCA + 16, H_A + 1, G)
                    k = P('HSD', 68)
                    side.add(ga[:-1] + gb[:k] + ga[-1:] + gb[k:] if not HLATE else ga[:-1] + gb[:-1] + [f"s_mov_b32 s{S_HA}, s{S_C}"])
                else: qkv_part1(side)
            if g == 6:
                post.append(lambda: dq.extend(stage_dmas(e, 10) + [lambda: (e(f"s_add_u32 m0, s{S_WB}, {L_W2T}\ns_nop 0"),
                            e.vm(f"buffer_load_dwordx4 v{VT}, s[{SRD_T}:{SRD_T+3}], s{S_TO} offen lds", "w2td"))]))
            if g == GW2: wv.append("w2td")
            if g in (6, 14, 22): wv.append(f"d{8 + g // 8}")
            if qfirst and g == GBN: pre.append(side.flush); wd.append("kvw"); post.append(lambda: qkv_part2(side))
            if qfirst and g == GFQ and SPLITQ:
                pre.append(side.flush); wv.append("qs")
                post.append(lambda: flag_store(e, f"""s_lshl_b32 s6, s{S_RB}, 5
s_add_u32 s6, s6, s{S_QU}
s_lshl_b32 s6, s6, 2
s_add_u32 s6, s6, {F_Q}
v_mov_b32 v{WB}, s6""", 1, WB))
            if qfirst and g == GFL:
                if SPLITQ: pre.append(lambda: e(f"s_waitcnt vmcnt({len(e.q['vm']) - e.mark['kvs']})")); wd.append("kvw")
                else: pre.append(side.flush); wv.append("qs")
                post.append(lambda: flag_store(e, f"""s_lshl_b32 s6, s{S_RB}, 2
s_add_u32 s6, s6, s{S_QU}
s_lshl_b32 s6, s6, 2
s_add_u32 s6, s6, {F_KV}
v_lshlrev_b32 v{WB}, 8, v0
v_add_u32 v{WB}, s6, v{WB}""", RKV, WB))
            if g == GW2 + 1:
                q0 = side.q; side.q = []; st = w2t_out(side); side.q += q0; w2st.append(st)
            if g == 24:
                side.flush()
                for f in w2st: f()
            if g == P("GKP", 27):
                poll_issue(e, f"""s_and_b32 s6, s2, {RKV-1}
s_lshl_b32 s6, s6, 8
s_add_u32 s6, s6, {F_KV}
v_lshl_add_u32 v{PL}, v0, 2, s6""" + (f"""
s_lshl_b32 s6, s{S_RB}, 5
s_add_u32 s6, s6, s{S_QU}
s_lshl_b32 s6, s6, 2
s_add_u32 s6, s6, {F_Q}
v_mov_b32 v{PL+2}, s6
buffer_load_dword v{PL+3}, v{PL+2}, {WS}, 0 offen {SC}""" if SPLITQ else ""), PL, PL + 1, "kvp")
            if g == 25 and 'nocs' not in X:
                side.flush(); side.add(cs_write(L_CSB))
            if g == 26 and 'nocs' not in X:
                pre.append(side.flush); wd.append("csw")
                def p():
                    l, m = cs_read(L_CSB); side.add(l); side.add(m)
                post.append(p)
            bar = None
            if wd or wv:
                def bar():
                    for f in pre: f()
                    if wd: e.wds(*wd)
                    if wv: e.wvm(*wv)
                    e("s_barrier")
                    for f in post: f()
            if qfirst: n = QRATE if g < 9 else 12
            else: n = -(-len(side.q) // max(1, GEND - g)) if g < GEND else 12
            e.stamp(f"xg{g}")
            position(gp, side, dq, n, bar)
        side.flush()
        e.stamp("xpe2")
        e("s_nop 1")
        e(mfma(ACCB, ST, BEXT)); e(mfma(ACCB + 16, ST + 2, BEXT))
    RQ = PL
    def qkv_part1(side):
        side.add([f"v_mul_f32 v{RQ}, {f2u(28 ** -0.5 * math.log2(math.e))}, v{R_}", "s_nop 9"])
        for i in range(2):
            for k in range(4): side.add([f"v_mul_f32 v{G+4*i+k}, v{ACCA+16*i+12+k}, v{R_}"])
        for i in range(2): side.add([f"v_cvt_pk_bf16_f32 v{G+4*i}, v{G+4*i}, v{G+4*i+1}", f"v_cvt_pk_bf16_f32 v{G+4*i+1}, v{G+4*i+2}, v{G+4*i+3}"])
        def wr():
            l = e.newlabel("nc")
            e(f"s_cmp_eq_u32 s{S_CF}, 3\ns_cbranch_scc0 {l}\nv_mov_b32 v{G+4}, s{S_C1}\nv_mov_b32 v{G+5}, s{S_C2}")
            e.label(l)
            e(f"s_mov_b64 exec, s[{S_HI}:{S_HI+1}]")
            e.ds(f"ds_write_b64 v{QB0}, {vr(G,2)}", "kvw"); e.ds(f"ds_write_b64 v{QB1}, {vr(G+4,2)}", "kvw")
            e("s_mov_b64 exec, -1")
        side.add([wr])
    def qkv_part2(side):
        def kv():
            l = e.newlabel("kvs"); lv = e.newlabel("kvv"); ls = e.newlabel("kvt")
            e(f"""s_cmp_eq_u32 s{S_CG}, 0
s_cbranch_scc0 {l}
s_cmp_lt_u32 s{S_QU}, 2
s_cbranch_scc0 {lv}
ds_read2_b64 {vr(G+4,4)}, v{KVA} offset0:0 offset1:2
v_mov_b32 v{G+2}, v{VL16}
s_branch {ls}""")
            e.label(lv)
            e(f"""ds_read_b64_tr_b16 {vr(G+4,2)}, v{KVA}
ds_read_b64_tr_b16 {vr(G+6,2)}, v{KVA} offset:256
v_lshrrev_b32 v{G+2}, 4, v0
v_and_b32 v{G+1}, 15, v0
v_lshlrev_b32 v{G+2}, 9, v{G+2}
v_lshl_add_u32 v{G+2}, v{G+1}, 4, v{G+2}""")
            e.label(ls)
            e(f"s_waitcnt lgkmcnt(0)\nbuffer_store_dwordx4 {vr(G+4,4)}, v{G+2}, {WS}, s{S_KS} offen {SC}")
            e.label(l)
            e.mark['kvs'] = len(e.q['vm'])
        side.add([kv])
        for i in range(2):
            acc = ACCA + 16 * i
            if P('PK', 0) & 4:
                for k in range(0, 16, 2): side.add([f"v_pk_mul_f32 {vr(acc+k,2)}, {vr(acc+k,2)}, {vr(RQ,2)} op_sel_hi:[1,0]"])
            else:
                for k in range(16): side.add([f"v_mul_f32 v{acc+k}, v{acc+k}, v{RQ}"])
            for k in range(8): side.add([f"v_cvt_pk_bf16_f32 v{acc+k}, v{acc+2*k}, v{acc+2*k+1}"])
            side.add([f"v_cndmask_b32 v{acc+6}, v{acc+6}, 0, s[{S_HI}:{S_HI+1}]", f"v_cndmask_b32 v{acc+7}, v{acc+7}, 0, s[{S_HI}:{S_HI+1}]",
                      lambda acc=acc, i=i: e.vm(f"buffer_store_dwordx4 {vr(acc,4)}, v{VL16}, {WS}, s{S_QS} offen offset:{2048*i} {SC}", "qs"),
                      lambda acc=acc, i=i: e.vm(f"buffer_store_dwordx4 {vr(acc+4,4)}, v{VL16}, {WS}, s{S_QS} offen offset:{2048*i+1024} {SC}", "qs")])
    e(f"s_cmp_eq_u32 s{S_ISQ}, 1\ns_cbranch_scc1 B_p2q")
    sn = e.snap(); hs = {k: list(v) for k, v in half.items()}; ns = e.nst
    pass2(False)
    e("s_branch B_join")
    e.label("B_p2q")
    e.nst = ns
    e.restore(sn); half.update({k: list(v) for k, v in hs.items()})
    pass2(True)
    e.label("B_join")
    e.q = {'ds': [], 'vm': []}; e.done = {'ds': 0, 'vm': 0}; e.mark['kvp'] = 0
    e.stamp("join")
    return gelu, h_off, w2t_out

LB0, LB1, VO = 3, 4, 5
Q, O, S0, PP, K, V0, V1 = 36, 44, 64, 96, 104, 112, 120
FA, FB = 128, 192
XRES = 244
S_KH, S_QT = S_CG, S_RT
F0 = P("F0", 8)
FP = P("FP", 2)
HBP = P("HBP", 14)
F3 = P("F3", 40)
WOP = 18

def kv_dma(e, st):
    def m(): e(f"s_add_u32 m0, s{S_WB4}, {((st + 3) % 4) * RING}" + ("\ns_nop 0" if st < 3 else ""))
    m.scalar = True
    l = [m]
    for f in range(4):
        l.append(lambda f=f: (e.vm(f"buffer_load_dwordx4 v{VL16}, {WS}, s{S_KVO} offen offset:{1024*f} {SC} lds", f"k{st}"),
                              e(f"s_add_u32 s{S_KVO}, s{S_KVO}, 16384") if f == 3 else None))
    return l

NB = P("NB", 3)
FBUF = [[FB + 16 * n + 4 * k for k in range(4)] for n in range(3)] + [[60, 124, 248, 252]]
def f_loads(e, q):
    bb = FBUF[q % NB]
    r = q if q < 6 else q - 6
    advA = advB = None
    if q == 5:
        advA = f"s_add_u32 s{S_FA}, s{S_FA}, s{S_FQ}"
        advB = f"s_add_u32 s{S_FB0}, s{S_FB0}, s{S_K1}\ns_add_u32 s{S_FB1}, s{S_FB1}, s{S_K1}"
    else:
        if r & 1: advA = f"s_add_u32 s{S_FA}, s{S_FA}, 4096"
        if (r & 3) == 3: advB = f"s_add_u32 s{S_FB0}, s{S_FB0}, 4096\ns_add_u32 s{S_FB1}, s{S_FB1}, 4096"
    return [lambda: e.vm(f"buffer_load_dwordx4 {vr(bb[0],4)}, v{VL16}, {WS}, s{S_FA} offen offset:{(r&1)*2048} {SC}", f"f{q}"),
            lambda: e.vm(f"buffer_load_dwordx4 {vr(bb[2],4)}, v{VL16}, {WS}, s{S_FB0} offen offset:{(r&3)*1024} {SC}", f"f{q}"),
            lambda: (e.vm(f"buffer_load_dwordx4 {vr(bb[1],4)}, v{VL16}, {WS}, s{S_FA} offen offset:{(r&1)*2048+1024} {SC}", f"f{q}"),
                     e(advA) if advA else None),
            lambda: (e.vm(f"buffer_load_dwordx4 {vr(bb[3],4)}, v{VL16}, {WS}, s{S_FB1} offen offset:{(r&3)*1024} {SC}", f"f{q}"),
                     e(advB) if advB else None)]
def f_mfma(q, k):
    bb = FBUF[q % NB]; r2, d2 = ((0, 0), (0, 1), (1, 1), (1, 0))[k]
    return mfma(FA + 32*r2 + 16*d2, bb[d2], bb[2 + r2], "0" if q == 0 else None)

OAREG = [8 + 4 * k for k in range(7)] + [FB + 4 * k for k in range(9)]
def oa_dma(e, n):
    def f():
        if n == 0: e(f"s_add_u32 m0, s{S_OL}, {3 * RING}\ns_nop 0")
        if n == 4: e(f"s_mov_b32 m0, s{S_OL}\ns_add_u32 s{S_OA}, s{S_OA}, 8192")
        e.vm(f"buffer_load_dwordx4 v{VL16}, {WS}, s{S_OA} offen offset:{(n & 3) * 1024} {SC} lds", "oa")
    return f
KVPRE = P('KVPRE', 2)
HDEF = P('HDEF', 1); HFL = P('HFL', 6 if HDEF else 2); S_HO = 47
def ha_flag(e):
    flag_store(e, f"""s_lshl_b32 s6, s{S_RB}, 5
s_add_u32 s6, s6, s{S_J}
s_lshl_b32 s6, s6, 2
s_add_u32 s6, s6, {F_H + 64}
s_lshl_b32 s{S_A}, s{S_WF}, 2
s_add_u32 s{S_A}, s{S_A}, {F_W}
s_sub_u32 s{S_A}, s{S_A}, s6
v_mul_lo_u32 v{PL}, v0, s{S_A}
v_add_u32 v{PL}, s6, v{PL}""", 2, PL)

def attn_setup(e, gelu, h_off, w2t_out):
    g0 = gelu(ACCB, S_C, G, 16 if HDEF else None, P('PK', 0) & 1); g1 = gelu(ACCB + 16, S_D, G + 8, 20 if HDEF else None, P('PK', 0) & 1)
    nfirst = P("GFIRST", 0)
    both = g0 + g1
    if P('GIL', 1): both = [x for p in zip(g0, g1) for x in p]
    for it in both[:nfirst]: it() if callable(it) else e(it)
    assert nfirst == 0
    poll_check(e, PL, PL + 1, "kvp", P("KSLEEP", 1))
    if SPLITQ: poll_check(e, PL + 2, PL + 3, "kvp", P("KSLEEP", 1))
    e.all_vm()
    e("s_barrier")
    e.stamp("xkv")
    if not HLATE: ha_flag(e)
    if P("KVT", 0):
        e(f"""s_lshr_b32 s6, s2, 3
s_lshl_b32 s6, s6, 3
s_add_u32 s6, s6, s{S_W}
s_lshl_b32 s6, s6, 10
s_add_u32 s6, s6, {KVF}
v_and_b32 v{TP}, 7, v0
v_lshlrev_b32 v{TP}, 7, v{TP}""")
        e.vm(f"buffer_load_dword v{TP+1}, v{TP}, {WS}, s6 offen {SC}", "kvt")
    side = Side(e)
    side.add(kv_dma(e, 0))
    side.add([lambda: e.vm(f"buffer_load_dwordx4 {vr(Q,4)}, v{VL16}, {WS}, s{S_QO} offen {SC}", "q"),
              lambda: e.vm(f"buffer_load_dwordx4 {vr(Q+4,4)}, v{VL16}, {WS}, s{S_QO} offen offset:1024 {SC}", "q")])
    side.emit(P("KPRE0", 7))
    if HLATE:
        l = e.newlabel("hl")
        e(f"s_cmp_eq_u32 s{S_ISQ}, 1\ns_cbranch_scc1 {l}")
        for it in range(2): e(f"buffer_store_dwordx4 {vr(ACCA+16*it+8,4)}, v{VL16}, {WS}, s{S_HA} offen offset:{1024*it} {SC}")
        e.label(l)
        e.mark['hl'] = len(e.q['vm'])
        if HLATE == 2:
            sd = Side(e); w2t_out(sd); sd.flush(); e.mark['hl'] = len(e.q['vm'])
    for st in range(1, KVPRE): side.add(kv_dma(e, st))
    for n, it in enumerate(both[nfirst:]):
        it() if callable(it) else e(it)
        if n % P('GSP', 1000) == P('GSP', 1000) - 1: side.emit(1)
        if n == 68: e.stamp("xg69")
    e.stamp("xgv")
    side.flush()
    e(f"""s_lshl_b32 s6, s{S_KH}, 14
v_add_u32 v{LB0}, s6, v{VL16}
v_add_u32 v{LB1}, 0x10000, v{LB0}""")

def rd(e, dst, tile, f, tag):
    sl = (tile // 4 + 3) % 4
    e.ds(f"ds_read_b128 {vr(dst,4)}, v{LB0 if sl < 2 else LB1} offset:{(sl & 1) * RING + (tile % 4) * 4096 + f * 1024}", tag)

def attn_loop(e, withF):
    e.stamp("xge")
    if P("PRIO", 2) == 2:
        l = e.newlabel("np"); e(f"s_cmp_ge_u32 s{S_W}, 4\ns_cbranch_scc0 {l}\ns_setprio 1"); e.label(l)
    if P("PRIO", 2) == 5: e("s_setprio 0")
    e.wvm("k0", "q")
    if HLATE: e(f"s_waitcnt vmcnt({len(e.q['vm']) - e.mark['hl']})")
    e.stamp("xk0"); e("s_barrier")
    if HLATE: ha_flag(e)
    e.stamp("astart")
    rd(e, K, 0, 0, "a"); rd(e, K + 4, 0, 1, "a"); rd(e, V0, 0, 2, "b")
    e.wds("a")
    e(mfma(S0, K, Q, "0")); e(mfma(S0, K + 4, Q + 4))
    rd(e, K, 1, 0, "b"); rd(e, K + 4, 1, 1, "b")
    e("s_nop 9")
    NT = 32
    fq = []
    nq = 0
    dq = []
    fi = 0
    need = {}; keep = []; done = [0]
    for i in range(NT):
        sc = S0 + 16 * (i & 1); sn = S0 + 16 * ((i + 1) & 1)
        v0c = V0 + 4 * (i & 1); v0n = V0 + 4 * ((i + 1) & 1)
        E = lambda r: f"v_exp_f32 v{r}, v{r}"
        C = lambda d, r: f"v_cvt_pk_bf16_f32 v{d}, v{r}, v{r+1}"
        def g(k): return [E(sc + 4*k + q) for q in range(4)] + [C(PP + 2*k, sc + 4*k), C(PP + 2*k + 1, sc + 4*k + 2)]
        g0, g1, g2, g3 = g(0), g(1), g(2), g(3)
        fm = []; fl = []
        if withF:
            if i == FP - 2:
                assert FP % 4 == 2
                fl = [lambda: poll_issue(e, f"""s_lshl_b32 s6, s{S_RB}, 7
s_add_u32 s6, s6, {F_H + 64}
s_and_b32 s7, s{S_J}, 7
s_lshl_b32 s7, s7, 8
s_add_u32 s7, s7, {F_W - 64}
v_lshl_add_u32 v{G}, v0, 2, s6
v_lshl_add_u32 v{G+1}, v0, 2, s7
v_mov_b32 v{G+2}, s6
s_mov_b32 s{S_A}, 0xffff0000
s_mov_b32 s{S_B}, 0x00000fff
s_mov_b32 s{S_C}, 0x00008888
s_mov_b32 s{S_D}, 0xfffff000
v_cndmask_b32 v{G}, v{G}, v{G+1}, s[{S_A}:{S_B}]
v_cndmask_b32 v{G}, v{G}, v{G+2}, s[{S_C}:{S_D}]""", G, G + 1, "hp")]
            if FP <= i < F0:
                if i == FP:
                    for q in range(NB - 1): fq += f_loads(e, q)
                n = -(-len(fq) // (F0 - i))
                fl = fq[:n]; fq = fq[n:]
            pb = []
            if i == HBP - 2:
                pb = [lambda: poll_issue(e, f"""s_lshl_b32 s6, s{S_RB}, 7
s_add_u32 s6, s6, {F_H}
v_and_b32 v{G}, 15, v0
v_lshl_add_u32 v{G}, v{G}, 2, s6""", G, G + 1, "hb")]
            if i == WOP - 2:
                pb = [lambda: poll_issue(e, f"""s_and_b32 s6, s{S_J}, 7
s_lshl_b32 s6, s6, 8
s_add_u32 s6, s6, {F_W + 112}
v_and_b32 v{G}, 7, v0
v_lshl_add_u32 v{G}, v{G}, 2, s6""", G, G + 1, "wo")]
            if i >= F0:
                cnt = 3 if i >= F3 else 2
                idx = list(range(fi, min(fi + cnt, 56))); fi += len(idx)
                fm = [(n // 4, n % 4) for n in idx]
                for (q, k) in fm:
                    if k == 0 and q + NB - 1 < 14:
                        if q + NB - 1 == 6: assert i > HBP
                        nl = f_loads(e, q + NB - 1)
                        for f in nl: need[id(f)] = 4 * q
                        keep.extend(nl); fq += nl
                n = min(len(fq), cnt)
                fl = fq[:n] + pb; fq = fq[n:]
        def em(x): x() if callable(x) else e(x)
        e.stamp(f"xa{i}")
        ex = [E(sc + k) for k in range(16)]; cv = [C(PP + k, sc + 2 * k) for k in range(8)]
        if i + KVPRE <= 2: dq += kv_dma(e, i + KVPRE)
        misc = []
        if i == 29: misc.append(comb_addr())
        if HDEF and i in (HDEF, HDEF + 1):
            misc.append(lambda i=i: e.vm(f"buffer_store_dwordx4 {vr(16 + 4*(i - HDEF),4)}, v{VL16}, {WS}, s{H_B} offen offset:{1024*(i - HDEF)} {SC}", "hs"))
        if withF and 22 <= i < 30: misc.append(oa_dma(e, i - 22))
        gate = withF and i == FP
        def take(n):
            for _ in range(n):
                if fl and need.get(id(fl[0]), 0) <= done[0]: em(fl.pop(0))
        per = -(-len(fl) // 2)
        for x in ex[0:2]: em(x)
        def fmf(n):
            if n < len(fm):
                q, k = fm[n]
                e.wvm(f"f{q}"); e(f_mfma(q, k)); done[0] += 1
        if fm and fm[0][1] == 0: e.wboth(f"f{fm[0][0]}")
        else: e.all_ds()
        if i > 0: e(mfma(O, V1, PP + 4))
        rd(e, V1, i, 3, "c")
        for x in ex[2:5]: em(x)
        fmf(0)
        if not gate: take(1 if fm else per)
        for x in cv[0:2] + ex[5:7]: em(x)
        if i + 1 < NT: e(mfma(sn, K, Q, "0")); rd(e, v0n, i + 1, 2, "c")
        for x in ex[7:10]: em(x)
        if i + 1 < NT: e(mfma(sn, K + 4, Q + 4))
        if i % 4 == 2 and i + 2 < NT:
            st = i // 4
            if withF and i == FP: poll_check(e, G, G + 1, "hp")
            if withF and i == HBP: poll_check(e, G, G + 1, "hb")
            if withF and i == WOP: poll_check(e, G, G + 1, "wo")
            while dq and i == 2: dq.pop(0)()
            e.wvm(*([f"k{st+1}"] + (["hs"] if i == HFL else []))); e("s_barrier")
            if i == HFL:
                flag_store(e, f"""s_lshl_b32 s6, s{S_RB}, 5
s_add_u32 s6, s6, s{S_J}
s_lshl_b32 s6, s6, 2
s_add_u32 s6, s6, {F_H}
v_mov_b32 v{G+2}, s6""", 1, G + 2)
            assert not dq
            if st + 3 <= 7: dq += kv_dma(e, st + 3)
        if i + 2 < NT: rd(e, K, i + 2, 0, "c"); rd(e, K + 4, i + 2, 1, "c")
        if dq and getattr(dq[0], "scalar", False): dq.pop(0)()
        for x in cv[2:4] + ex[10:12]: em(x)
        fmf(1)
        take(1 if fm else len(fl) if not gate else per)
        for x in ex[12:14] + cv[4:6]: em(x)
        e(mfma(O, v0c, PP, "0" if i == 0 else None))
        for _ in range(1 if i >= 2 else 2):
            if dq: dq.pop(0)()
        if len(fm) < 3: take(len(fl))
        for x in misc: em(x)
        for x in ex[14:16] + cv[6:7]: em(x)
        fmf(2); take(len(fl))
        fq = fl + fq
        em(cv[7])
        if i + 2 >= NT: e("s_nop 1")
    e.all_ds()
    e("s_nop 0")
    e(mfma(O, V1, PP + 4))
    return fi, fq

CMB = L_W2T
def comb_addr():
    T = G
    return f"""s_lshl_b32 s6, s{S_W}, 11
s_add_u32 s6, s6, {CMB}
v_add_u32 v{T}, s6, v{VL16}
v_xor_b32 v{T+1}, 8192, v{T}
s_lshl_b32 s6, s{S_W}, 8
s_add_u32 s6, s6, {CMB + 16384}
v_lshl_add_u32 v{T+2}, v0, 2, s6
v_or_b32 v{T+3}, 32, v0
s_lshl_b32 s6, s{S_QT}, 8
s_add_u32 s6, s6, {CMB + 16384}
v_lshl_add_u32 v{T+3}, v{T+3}, 2, s6
s_mov_b32 s{S_C}, {f2u(2.0 ** -64)}
s_mov_b32 s{S_D}, {f2u(2.0 ** 64)}
s_lshl_b32 s6, s{S_RB}, 9
s_add_u32 s6, s6, s{S_J}
s_lshl_b32 s6, s6, 2
s_add_u32 s6, s6, {F_O2}
v_lshl_add_u32 v6, v0, 7, s6
v_mov_b32 v7, s{S_NON}"""

def attn_finish(e, withF=False):
    T = G
    e.stamp("aend")
    hi = e.newlabel("chi"); jn = e.newlabel("cjn"); fb = e.newlabel("cfb"); bk = e.newlabel("cbk")
    e(f"s_cmp_eq_u32 s{S_KH}, 0\ns_nop 10")
    e.ds(f"ds_write_b32 v{T+2}, v{O+12}")
    e(f"s_cbranch_scc0 {hi}")
    e.ds(f"ds_write_b128 v{T}, {vr(O+8,4)}"); e.ds(f"ds_write_b128 v{T}, {vr(O+12,4)} offset:1024")
    e(f"s_branch {jn}")
    e.label(hi)
    e(f"ds_write_b128 v{T}, {vr(O,4)}\nds_write_b128 v{T}, {vr(O+4,4)} offset:1024")
    e.all_ds()
    for k in range(8): e(f"v_mov_b32 v{O+k}, v{O+8+k}")
    e.label(jn)
    if withF: e.wboth("oa")
    else: e.all_ds()
    e.stamp("xc0")
    e("s_barrier")
    e.stamp("xc1")
    e.ds(f"ds_read2st64_b32 {vr(PP,2)}, v{T+3} offset0:0 offset1:4", "l")
    e.ds(f"ds_read_b128 {vr(S0,4)}, v{T+1}", "h0"); e.ds(f"ds_read_b128 {vr(S0+4,4)}, v{T+1} offset:1024", "h1")
    e(f"s_mov_b32 s{S_A}, 0\ns_sub_u32 s{S_B}, 0, s{S_KH}")
    e.wds("l")
    e(f"""v_add_f32 v{PP}, v{PP}, v{PP+1}
v_rcp_f32 v{PP+1}, v{PP}
v_cmp_nle_f32 vcc, s{S_C}, v{PP}
v_cmp_nge_f32 s[{S_E}:{S_F}], s{S_D}, v{PP}""")
    e.all_ds()
    for k in range(8): e(f"v_add_f32 v{S0+k}, v{S0+k}, v{O+k}")
    e(f"s_or_b64 s[{S_E}:{S_F}], s[{S_E}:{S_F}], vcc")
    for k in range(8): e(f"v_mul_f32 v{S0+k}, v{S0+k}, v{PP+1}")
    def pack_store():
        for k in range(4): e(f"v_cvt_pk_bf16_f32 v{K+k}, v{S0+2*k}, v{S0+2*k+1}")
        e(f"""v_cndmask_b32 v{K+2}, v{K+2}, 0, s[{S_A}:{S_B}]
v_cndmask_b32 v{K+3}, v{K+3}, 0, s[{S_A}:{S_B}]""")
    pack_store()
    e.vm(f"buffer_store_dwordx4 {vr(K,4)}, v{VL16}, {WS}, s{S_OO} offen {SC}", "os")
    e(f"""v_add_f32 v{PP+2}, |v{S0}|, |v{S0+1}|
v_add_f32 v{PP+3}, |v{S0+2}|, |v{S0+3}|
v_add_f32 v{PP+4}, |v{S0+4}|, |v{S0+5}|
v_add_f32 v{PP+5}, |v{S0+6}|, |v{S0+7}|
v_add_f32 v{PP+2}, v{PP+2}, v{PP+3}
v_add_f32 v{PP+4}, v{PP+4}, v{PP+5}
s_mov_b32 s6, 0x7f7fffff
v_add_f32 v{PP+2}, v{PP+2}, v{PP+4}
v_cmp_nge_f32 vcc, s6, v{PP+2}
s_nop 1
s_or_b64 vcc, vcc, s[{S_E}:{S_F}]""")
    if 'forcefb' in X: e("s_mov_b64 vcc, 1")
    e(f"s_cbranch_vccnz {fb}")
    e.label(bk)
    FALLBACKS.append((fb, bk))
    e.stamp("xc2")

FALLBACKS = []
def fallback(e, fb, bk):
    l1 = e.newlabel("fb1"); l2 = e.newlabel("fb2"); l3 = e.newlabel("fb3")
    M = PP + 7
    e.label(fb)
    if 'fbcount' in X:
        e(f"""s_mov_b32 s80, s{P_DBG}
s_mov_b32 s81, s{P_DBG+1}
s_mov_b32 s82, 256
s_mov_b32 s83, 0x00020000
v_mov_b32 v{M}, 0
v_mov_b32 v{M-1}, 1
s_mov_b64 exec, 1
buffer_atomic_add v{M-1}, v{M}, s[80:83], 0 offen
v_mov_b32 v{M-1}, s2
buffer_store_dword v{M-1}, v{M}, s[80:83], 0 offen offset:4
v_mov_b32 v{M-1}, s{S_W}
buffer_store_dword v{M-1}, v{M}, s[80:83], 0 offen offset:8
v_mov_b32 v{M-1}, vcc_lo
buffer_store_dword v{M-1}, v{M}, s[80:83], 0 offen offset:12
v_mov_b32 v{M-1}, vcc_hi
buffer_store_dword v{M-1}, v{M}, s[80:83], 0 offen offset:16
v_mov_b32 v{M-1}, s{S_E}
buffer_store_dword v{M-1}, v{M}, s[80:83], 0 offen offset:20
v_mov_b32 v{M-1}, s{S_F}
buffer_store_dword v{M-1}, v{M}, s[80:83], 0 offen offset:24
buffer_store_dword v{PP}, v{M}, s[80:83], 0 offen offset:28
buffer_store_dword v{PP+2}, v{M}, s[80:83], 0 offen offset:32
s_waitcnt vmcnt(0)
s_mov_b64 exec, -1""")
    e(f"s_mov_b32 s6, {KVF}\nv_mov_b32 v{M}, 0xff800000")
    e.label(l1)
    e(f"""buffer_load_dwordx4 {vr(K,4)}, v{VL16}, {WS}, s6 offen {SC}
buffer_load_dwordx4 {vr(K+4,4)}, v{VL16}, {WS}, s6 offen offset:1024 {SC}
s_add_u32 s6, s6, 4096
s_waitcnt vmcnt(0)""")
    e(mfma(S0, K, Q, "0")); e(mfma(S0, K + 4, Q + 4))
    e("s_nop 11")
    for k in range(8): e(f"v_max3_f32 v{M}, v{M}, v{S0+2*k}, v{S0+2*k+1}")
    e(f"""s_cmp_lt_u32 s6, {KVF + 64*4096}
s_cbranch_scc1 {l1}
v_mov_b32 v{PP}, v{M}
s_nop 1
v_permlane32_swap_b32 v{PP}, v{M}
v_max_f32 v{M}, v{M}, v{PP}
v_cvt_pk_bf16_f32 v{PP}, v{M}, v{M}
v_and_b32 v{PP}, s{S_MASK}, v{PP}
v_sub_f32 v{PP+1}, v{M}, v{PP}
v_cvt_pk_bf16_f32 v{PP+2}, v{PP+1}, v{PP+1}
v_and_b32 v{PP+2}, s{S_MASK}, v{PP+2}
v_sub_f32 v{PP+1}, v{PP+1}, v{PP+2}
v_cvt_pk_bf16_f32 v{PP}, -v{PP}, -v{PP+2}
v_cvt_pk_bf16_f32 v{PP+1}, -v{PP+1}, 0
v_cndmask_b32 v{Q+6}, v{Q+6}, v{PP}, s[{S_HI}:{S_HI+1}]
v_cndmask_b32 v{Q+7}, v{Q+7}, v{PP+1}, s[{S_HI}:{S_HI+1}]
s_mov_b32 s6, {KVF}""")
    for k in range(16): e(f"v_mov_b32 v{O+k}, 0")
    e.label(l2)
    for f in range(4): e(f"buffer_load_dwordx4 {vr(K+4*f,4)}, v{VL16}, {WS}, s6 offen offset:{1024*f} {SC}")
    e("s_add_u32 s6, s6, 4096\ns_waitcnt vmcnt(0)")
    e(mfma(S0, K, Q, "0")); e(mfma(S0, K + 4, Q + 4))
    e("s_nop 11")
    for k in range(16): e(f"v_exp_f32 v{S0+k}, v{S0+k}")
    e("s_nop 0")
    for k in range(8): e(f"v_cvt_pk_bf16_f32 v{PP+k}, v{S0+2*k}, v{S0+2*k+1}")
    e("s_nop 1")
    e(mfma(O, K + 8, PP)); e(mfma(O, K + 12, PP + 4))
    e(f"""s_cmp_lt_u32 s6, {KVF + 64*4096}
s_cbranch_scc1 {l2}
s_nop 11
v_mov_b32 v{PP}, v{O+12}
v_mov_b32 v{PP+1}, v{O+12}
s_cmp_eq_u32 s{S_KH}, 0
s_nop 0
v_permlane32_swap_b32 v{PP}, v{PP+1}
v_rcp_f32 v{PP+1}, v{PP+1}
s_cbranch_scc1 {l3}""")
    for k in range(8): e(f"v_mov_b32 v{O+k}, v{O+8+k}")
    e.label(l3)
    e("s_nop 0")
    for k in range(8): e(f"v_mul_f32 v{S0+k}, v{O+k}, v{PP+1}")
    for k in range(4): e(f"v_cvt_pk_bf16_f32 v{K+k}, v{S0+2*k}, v{S0+2*k+1}")
    e(f"""v_cndmask_b32 v{K+2}, v{K+2}, 0, s[{S_A}:{S_B}]
v_cndmask_b32 v{K+3}, v{K+3}, 0, s[{S_A}:{S_B}]
buffer_store_dwordx4 {vr(K,4)}, v{VL16}, {WS}, s{S_OO} offen {SC}
s_waitcnt vmcnt(0)
s_branch {bk}""")

OFA, OFD = 6, 7
def o_signal(e):
    l = e.newlabel("os")
    e(f"s_cbranch_vccz {l}\ns_mov_b64 exec, 0xffff\nbuffer_store_dword v{OFD}, v{OFA}, {WS}, 0 offen {SC}\ns_mov_b64 exec, -1")
    e.label(l)

def o_flag(e):
    e.stamp("xc3")
    e(f"s_cmp_eq_u32 s{S_W}, 0\ns_cselect_b64 vcc, -1, 0")
    e.wvm("os"); e.stamp("xc4"); e("s_barrier")
    o_signal(e)

def tail(e, nq, fq):
    T = G
    SUM = 232
    RB = 64
    OBR = [96 + 4 * k for k in range(7)] + [36]
    AD = 248
    for f in fq: f()
    for n in range(nq, 56):
        q, k = n // 4, n % 4
        if k == 0 and q + NB - 1 < 14:
            for f in f_loads(e, q + NB - 1): f()
        e.wvm(f"f{q}"); e(f_mfma(q, k))
    e(f"""s_lshl_b32 s6, s{S_W}, 13
s_add_u32 s6, s6, {RING}
v_add_u32 v{AD+6}, s6, v{VL16}
v_xor_b32 v{AD+7}, 8192, v{AD+6}""")
    if nq < 56: e("s_nop 8")
    setup = Side(e)
    setup.add(f"""s_lshr_b32 s6, s{S_J}, 3
s_lshl_b32 s7, s{S_RB}, 1
s_add_u32 s6, s6, s7
s_and_b32 s{S_B}, s{S_W}, 1
s_lshl_b32 s{S_C}, s6, 1
s_add_u32 s{S_C}, s{S_C}, s{S_B}
s_mul_i32 s{S_C}, s{S_C}, 144
s_lshr_b32 s{S_A}, s{S_W}, 1
s_lshl_b32 s{S_D}, s{S_A}, 3
s_add_u32 s{S_D}, s{S_D}, 112
s_add_u32 s{S_C}, s{S_C}, s{S_D}
s_lshl_b32 s{S_C}, s{S_C}, 10
s_and_b32 s7, s{S_J}, 7
s_add_u32 s{S_D}, s{S_C}, 4096
s_lshl_b32 s{S_A}, s{S_A}, 14
s_lshl_b32 s{S_B}, s{S_B}, 13
s_add_u32 s{S_G}, s{S_A}, s{S_B}
s_add_u32 s{S_G}, s{S_G}, {RING}
v_and_b32 v{T}, 31, v0
v_lshrrev_b32 v{T+1}, 5, v0
v_and_b32 v{T+2}, 7, v0
v_xor_b32 v{T+1}, v{T+1}, v{T+2}
v_lshlrev_b32 v{T+1}, 4, v{T+1}
v_lshl_add_u32 v{T}, v{T}, 8, v{T+1}
v_add_u32 v{AD}, s{S_G}, v{T}
v_xor_b32 v{AD+1}, 32, v{AD}
v_xor_b32 v{AD+2}, 64, v{AD}
v_xor_b32 v{AD+3}, 96, v{AD}
s_lshl_b32 s6, s6, 6
s_lshl_b32 s{S_B}, s{S_W}, 3
s_add_u32 s6, s6, s{S_B}
v_lshrrev_b32 v{T}, 3, v0
v_add_u32 v{T+1}, s6, v{T}
v_mul_u32_u24 v{T+1}, 896, v{T+1}
v_lshl_add_u32 v{T+1}, v{T+2}, 4, v{T+1}
s_lshl_b32 s7, s7, 7
v_add_u32 v{VO}, s7, v{T+1}
v_lshlrev_b32 v{T+2}, 1, v{T+2}
v_xor_b32 v{T+2}, v{T+2}, v{T}
v_lshlrev_b32 v{T+2}, 4, v{T+2}
v_lshl_add_u32 v{T}, v{T}, 8, v{T+2}
s_lshl_b32 s6, s{S_W}, 11
s_add_u32 s6, s6, {RING}
v_add_u32 v{AD+4}, s6, v{T}
v_xor_b32 v{AD+5}, 16, v{AD+4}
v_add_u32 v{T+2}, {3 * RING}, v{T+3}""")
    e(f"s_lshr_b32 s6, s{S_W}, 1\ns_lshl_b32 s6, s6, 13\nv_add_u32 v{T+3}, s6, v{VL16}\ns_nop 0")
    oaq = [(lambda k=k: e.ds(f"ds_read_b128 {vr(OAREG[k],4)}, v{T+2 if k < 8 else T+3} offset:{(k & 7) * 1024}", "oar")) for k in range(16)]
    nw1 = P("NW1", 0)
    def oflag():
        e.stamp("xc3")
        e(f"s_cmp_eq_u32 s{S_W}, 0\ns_cselect_b64 vcc, -1, 0")
        e.wvm("os")
        if nw1 == 8: e.all_ds()
        e.stamp("xc4"); e("s_barrier")
        o_signal(e)
    for q in range(8):
        if q == nw1: oflag()
        e.ds(f"ds_write_b128 v{AD+6}, {vr(FA+32+4*q,4)} offset:{q*1024}")
        setup.emit(6)
    setup.flush()
    if nw1 == 8: oflag()
    if not P('OAL', 1):
        for f in oaq: f()
    e.vm(f"buffer_load_dwordx4 {vr(XRES,4)}, v{VO}, s[{SRD_X}:{SRD_X+3}], 0 offen", "xr")
    if nw1 < 8: e.all_ds(); e("s_barrier")
    for q in range(8): e.ds(f"ds_read_b128 {vr(RB+4*q,4)}, v{AD+7} offset:{q*1024}", f"p{q}")
    def olook():
        poll_issue(e, f"""s_lshl_b32 s6, s{S_RB}, 4
s_add_u32 s6, s6, s{S_J}
s_lshl_b32 s6, s6, 7
s_add_u32 s6, s6, {F_O2}
v_and_b32 v{T}, 15, v0
v_lshl_add_u32 v{T}, v{T}, 2, s6""", T, T + 1, "op")
    if P('OLATE', 1) == 0: olook()
    srd(e, SRD_OUT, P_OUT, 2048 * 896)
    for q in range(8):
        e.wds(f"p{q}")
        for k in range(4): e(f"v_add_f32 v{FA+4*q+k}, v{FA+4*q+k}, v{RB+4*q+k}")
    if P('OLATE', 1) == 2:
        for f in oaq: f()
        oaq = []
    if P('OLATE', 1): olook()
    e.stamp("t1")
    poll_check(e, T, T + 1, "op", P("OSLEEP", 1))
    e("s_barrier")
    e.stamp("t2")
    for k in range(8):
        e.vm(f"buffer_load_dwordx4 {vr(OBR[k],4)}, v{VL16}, {WS}, s{S_C if k < 4 else S_D} offen offset:{(k&3)*1024} {SC}", f"ob{k}")
    if P('OAL', 1):
        for f in oaq: f()
        e.all_ds()
    e.wvm("xr")
    for k in range(4): e(f"v_lshlrev_b32 v{SUM+2*k}, 16, v{XRES+k}\nv_and_b32 v{SUM+1+2*k}, s{S_MASK}, v{XRES+k}")
    for k in range(8):
        e.wvm(f"ob{k}")
        for d2 in range(2): e(mfma(FA + 16*d2, OAREG[2*k + d2], OBR[k]))
    e("s_nop 10")
    e.stamp("t3")
    for d2 in range(2):
        for q in range(4): e.ds(f"ds_write_b128 v{AD+q}, {vr(FA+16*d2+4*q,4)} offset:{d2*128}")
    e.all_ds()
    e("s_barrier")
    for p in range(4):
        e.ds(f"ds_read_b128 {vr(RB+8*p,4)}, v{AD+4} offset:{p*16384}", f"s{p}")
        e.ds(f"ds_read_b128 {vr(RB+8*p+4,4)}, v{AD+5} offset:{p*16384}", f"s{p}")
    for p in range(4):
        e.wds(f"s{p}")
        for k in range(8): e(f"v_add_f32 v{SUM+k}, v{SUM+k}, v{RB+8*p+k}")
    for k in range(4): e(f"v_cvt_pk_bf16_f32 v{XRES+k}, v{SUM+2*k}, v{SUM+1+2*k}")
    e.vm(f"buffer_store_dwordx4 {vr(XRES,4)}, v{VO}, s[{SRD_OUT}:{SRD_OUT+3}], 0 offen {os.environ.get('OUTF', '')}")

DOC = """;
;            one extra MFMA, 1/std folded into the GELU constants); h, q, k, v and the transposed down / output
;  tail    : o of the 16 heads, output projection, cross-wave reduction, residual, store
"""
def build():
    e = Em()
    kn = NAME + "_kernel"
    e.a.raw(f".globl {kn}\n.p2align 8\n.type {kn},@function")
    e.label(kn)
    prologue(e)
    gelu, h_off, w2t_out = phaseB(e)
    attn_setup(e, gelu, h_off, w2t_out)
    e(f"s_and_b32 s6, s{S_J}, 7\ns_cmp_eq_u32 s6, 7\ns_cbranch_scc1 C_noF")
    sn = e.snap(); ns = e.nst
    nq, fq = attn_loop(e, True)
    attn_finish(e, True)
    tail(e, nq, fq)
    nend = e.nst
    e("s_branch K_fin")
    e.label("C_noF")
    e.restore(sn); e.nst = ns
    attn_loop(e, False)
    attn_finish(e)
    o_flag(e)
    e(f"""s_cmp_eq_u32 s{S_RB}, 0
s_cbranch_scc0 C_noF_done
s_cmp_eq_u32 s{S_J}, 7
s_cbranch_scc0 C_noF_done
s_cmp_eq_u32 s{S_W}, 0
s_cbranch_scc0 C_noF_done""")
    for k in range(4):
        e(f"""v_lshrrev_b32 v{G}, 4, v0
v_and_b32 v{G+1}, 15, v0
v_lshlrev_b32 v{G}, 7, v{G}
v_lshl_add_u32 v{G}, v{G+1}, 2, v{G}
v_add_u32 v{G}, {F_H + 512*k}, v{G}""")
        e(f"buffer_load_dword v{G+1}, v{G}, {WS}, 0 offen {SC}"); e.mark[f"ep{k}"] = len(e.q['vm'])
        poll_check(e, G, G + 1, f"ep{k}")
    e(f"v_mov_b32 v{G}, {EPO}\nv_mov_b32 v{G+1}, s{S_NON}\ns_mov_b64 exec, 1\nbuffer_store_dword v{G+1}, v{G}, {WS}, 0 offen {SC}\ns_mov_b64 exec, -1")
    e.label("C_noF_done")
    while e.nst < nend and not STAMPS_OFF: e.stamp()
    e.label("K_fin")
    if os.environ.get("AMPAT") == "xfin": e("s_waitcnt vmcnt(0)"); e.stamp("xfin")
    if os.environ.get("AMPAT"):
        e("""s_waitcnt vmcnt(0)
s_memrealtime s[92:93]
s_waitcnt lgkmcnt(0)
s_sub_u32 s7, s94, s96
s_mul_i32 s7, s7, 10
K_amp:
s_sleep 1
s_memrealtime s[98:99]
s_waitcnt lgkmcnt(0)
s_sub_u32 s6, s98, s92
s_cmp_lt_u32 s6, s7
s_cbranch_scc1 K_amp""")
    if 'stdiag' in X:
        e("""s_memtime s[92:93]
s_waitcnt lgkmcnt(0)
K_sd:
s_sleep 2
s_memtime s[90:91]
s_waitcnt lgkmcnt(0)
s_sub_u32 s6, s90, s92
s_cmp_lt_u32 s6, s94
s_cbranch_scc1 K_sd""")
    if 'fix' in X:
        e("""K_fx:
s_sleep 1
s_memrealtime s[98:99]
s_waitcnt lgkmcnt(0)
s_sub_u32 s6, s98, s96
s_cmp_lt_u32 s6, 10000
s_cbranch_scc1 K_fx""")
    if 'amp' in X:
        e("""s_waitcnt vmcnt(0)
s_memrealtime s[98:99]
s_waitcnt lgkmcnt(0)
s_sub_u32 s7, s98, s96
s_mul_i32 s7, s7, 10
K_fx:
s_sleep 1
s_memrealtime s[98:99]
s_waitcnt lgkmcnt(0)
s_sub_u32 s6, s98, s96
s_cmp_lt_u32 s6, s7
s_cbranch_scc1 K_fx""")
    if STAMPS:
        e.stamp()
        e.label("K_fin2")
        e("s_memrealtime s[98:99]\ns_waitcnt lgkmcnt(0) vmcnt(0)")
        e(f"""s_mov_b32 s40, s{P_WS}
s_mov_b32 s41, s{P_WS+1}
s_mov_b32 s42, 0x10000000
s_mov_b32 s43, 0x00020000
s_lshl_b32 s6, s2, 3
s_add_u32 s6, s6, s{S_W}
s_lshl_b32 s6, s6, 6
s_add_u32 s6, s6, {STAMP_WS}
v_mov_b32 v2, s96
v_mov_b32 v3, s98""")
        for k in range(10): e(f"v_mov_b32 v{4+k}, {'s%d' % (76+2*k) if k < e.nst else 0}")
        e("v_mov_b32 v1, 0\ns_mov_b64 exec, 1")
        for q in range(3): e(f"buffer_store_dwordx4 v[{2+4*q}:{5+4*q}], v1, s[40:43], s6 offen offset:{16*q}")
    e("s_endpgm")
    for fb, bk in FALLBACKS: fallback(e, fb, bk)
    e.label("K_end")
    e("s_endpgm")
    probs = check_hazards(e.a.lines, "k")
    hdr = open("cdna_kernels/" + NAME + ".s.ref").read().split("; Override launch")[0]
    out = hdr + f"; @launch grid=(256,1,1) block=(512,1,1) lds={LDS_BYTES}\n"
    out += DOC + '.amdgcn_target "amdgcn-amd-amdhsa--gfx950"\n.text\n' + e.a.text()
    out += f""".section .rodata,"a"
.p2align 6
.amdhsa_kernel {kn}
  .amdhsa_next_free_vgpr 256
  .amdhsa_next_free_sgpr 102
  .amdhsa_accum_offset 256
  .amdhsa_group_segment_fixed_size 0
  .amdhsa_kernarg_size 96
  .amdhsa_user_sgpr_count 2
  .amdhsa_user_sgpr_kernarg_segment_ptr 1
  .amdhsa_system_sgpr_workgroup_id_x 1
  .amdhsa_float_denorm_mode_32 3
.end_amdhsa_kernel
"""
    return out, probs

if __name__ == "__main__":
    out, probs = build()
    for p in probs: print("HAZARD", p, file=sys.stderr)
    open(sys.argv[1] if len(sys.argv) > 1 else "cdna_kernels/" + NAME + ".s", "w").write(out)
```
